```python
import torch

def _softmax(x, axis=-1):
    return torch.softmax(x, dim=axis)
def _gelu(x):
    return torch.nn.functional.gelu(x, approximate="tanh")
def _silu(x):
    return torch.nn.functional.silu(x)
def _sigmoid(x):
    return torch.sigmoid(x)
def _layernorm(x, axis=-1, eps=1e-5):
    m = x.mean(dim=axis, keepdim=True)
    v = x.var(dim=axis, keepdim=True, unbiased=False)
    return (x - m) / torch.sqrt(v + eps)
def _scatter_add(tgt, idx, src, axis=0):
    return tgt.clone().index_add_(axis, idx, src)
def _segment_sum(src, seg, n):
    out = torch.zeros((n,) + src.shape[1:], dtype=src.dtype)
    return out.index_add_(0, seg, src)
def _pad(x, pw):
    flat = tuple(v for pair in reversed(pw) for v in pair)
    return torch.nn.functional.pad(x, flat)

kernel_name = 'standalone__edge_featured_mpnn_mpnn__graph'

def setup_inputs():

    _w = (lambda a: (lambda t: t.to(torch.bfloat16) if t.is_floating_point() else t)(torch.as_tensor(a)))
    N, deg, D, De = 10000, 32, 128, max(16, 1)
    E = N * deg
    H = 2 * D
    return {
        "x": _w((lambda *s: torch.randn(*s, dtype=torch.bfloat16) * 0.05)(N, D)),
        "e_attr": _w((lambda *s: torch.randn(*s, dtype=torch.bfloat16) * 0.8)(E, De)),
        "src": _w((lambda lo, hi, *s: torch.randint(lo, hi, s))(0, N, E).to(torch.int64)),
        "dst": _w((lambda lo, hi, *s: torch.randint(lo, hi, s))(0, N, E).to(torch.int64)),
        "w1": _w((lambda *s: torch.randn(*s, dtype=torch.bfloat16) * 0.8)(2 * D + De, H) * (1.0 / (2 * D + De) ** 0.5)),
        "b1": _w((lambda *s: torch.randn(*s, dtype=torch.bfloat16) * 0.4)(H) * 0.01),
        "w2": _w((lambda *s: torch.randn(*s, dtype=torch.bfloat16) * 0.05)(H, D) * (1.0 / H ** 0.5)),
        "b2": _w((lambda *s: torch.randn(*s, dtype=torch.bfloat16) * 0.05)(D) * 0.01),
    }

def reference(x, e_attr, src, dst, w1, b1, w2, b2):
    N, D = x.shape
    h_src = x[src]
    h_dst = x[dst]
    m_in = torch.concatenate([h_src, h_dst, e_attr], axis=-1)
    h = _silu(m_in @ w1 + b1)
    msg = h @ w2 + b2
    return _segment_sum(msg, dst, N)
```

```python
import re

TRANS = ("v_exp_f32", "v_rcp_f32", "v_log_f32", "v_rsq_f32", "v_sqrt_f32", "v_sin_f32", "v_cos_f32")

def v(r, n=1):
    return f"v{r}" if n == 1 else f"v[{r}:{r+n-1}]"
def s(r, n=1):
    return f"s{r}" if n == 1 else f"s[{r}:{r+n-1}]"

def _expand(op):
    op = op.strip()
    op = re.sub(r"^-", "", op)
    m = re.match(r"^abs\((.*)\)$", op)
    if m: op = m.group(1)
    m = re.match(r"^\|(.*)\|$", op)
    if m: op = m.group(1)
    m = re.match(r"^([vsa])(\d+)$", op)
    if m: return [(m.group(1), int(m.group(2)))]
    m = re.match(r"^([vsa])\[(\d+):(\d+)\]$", op)
    if m: return [(m.group(1), i) for i in range(int(m.group(2)), int(m.group(3)) + 1)]
    if op in ("vcc", "vcc_lo", "vcc_hi"): return [("s", 106), ("s", 107)]
    if op in ("exec", "exec_lo", "exec_hi"): return [("s", 126), ("s", 127)]
    if op == "m0": return [("s", 124)]
    return []

class Ins:
    def __init__(self, text):
        self.text = text
        t = text.split(";")[0].strip()
        parts = t.split(None, 1)
        self.mn = parts[0]
        rest = parts[1] if len(parts) > 1 else ""
        ops = []; depth = 0; cur = ""
        for ch in rest:
            if ch in "[(": depth += 1
            if ch in "])": depth -= 1
            if ch == "," and depth == 0:
                ops.append(cur); cur = ""
            else: cur += ch
        if cur.strip(): ops.append(cur)
        self.mods = ""
        if ops:
            last = ops[-1].strip().split(None, 1)
            ops[-1] = last[0]
            self.mods = last[1] if len(last) > 1 else ""
        self.ops = [o.strip() for o in ops]
        mn = self.mn
        self.w = set(); self.r = set()
        self.cls = "other"
        E = [_expand(o) for o in self.ops]
        if mn.startswith("v_mfma"):
            self.cls = "mfma"
            self.passes = 8 if "32x32" in mn else 4
            self.w = set(E[0]); self.A = set(E[1]); self.B = set(E[2]); self.C = set(E[3])
            self.r = self.A | self.B | self.C
        elif mn.startswith("v_"):
            self.cls = "valu"
            self.trans = any(mn.startswith(x) for x in TRANS)
            self.w = set(E[0])
            srcs = E[1:]
            if mn.startswith("v_cmpx"):
                self.w |= {("s", 126), ("s", 127)}
            if re.match(r"v_(add|sub|subrev|addc|subb)_co", mn) or mn.startswith("v_mad_u64"):
                self.w |= set(E[1]); srcs = E[2:]
            for x in srcs: self.r |= set(x)
            if mn.startswith("v_fmac") or mn.startswith("v_writelane") or "_dpp" in mn or mn.startswith("v_permlane"):
                self.r |= set(E[0])
            if mn.startswith("v_permlane"): self.w |= set(E[1])
            self.dpp = "_dpp" in mn
        elif mn.startswith("buffer_") or mn.startswith("global_"):
            self.cls = "vmem"
            self.lds = " lds" in (" " + self.mods)
            if "load" in mn and not self.lds:
                self.w = set(E[0])
                for x in E[1:]: self.r |= set(x)
            else:
                for x in E: self.r |= set(x)
            self.widestore = "store" in mn and ("x4" in mn or "x3" in mn)
            self.data = set(E[0]) if "store" in mn else set()
        elif mn.startswith("ds_"):
            self.cls = "ds"
            if "read" in mn or "rtn" in mn or "permute" in mn or "swizzle" in mn:
                self.w = set(E[0])
                for x in E[1:]: self.r |= set(x)
            else:
                for x in E: self.r |= set(x)
        elif mn.startswith("s_"):
            self.cls = "salu"
            if mn.startswith("s_cmp") or mn.startswith("s_cbranch") or mn in ("s_branch", "s_waitcnt", "s_nop", "s_barrier", "s_endpgm", "s_setprio", "s_sleep"):
                for x in E: self.r |= set(x)
            else:
                if E: self.w = set(E[0])
                for x in E[1:]: self.r |= set(x)
                if "saveexec" in mn: self.w |= {("s", 126), ("s", 127)}
        self.states = 1
        if mn == "s_nop": self.states = int(self.ops[0], 0) + 1

def check_hazards(lines, name=""):
    ins = []
    for l in lines:
        t = l.split(";")[0].strip()
        if not t or t.endswith(":") or t.startswith("."): continue
        ins.append(Ins(t))
    errs = []
    EXEC = {("s", 126), ("s", 127)}
    for i, c in enumerate(ins):
        dist = 0
        for j in range(i - 1, max(-1, i - 30), -1):
            p = ins[j]
            need = 0; why = ""
            def req(n, w):
                nonlocal need, why
                if n > need: need, why = n, w
            pv = {x for x in p.w if x[0] == "v"}
            ps = {x for x in p.w if x[0] == "s"}
            if p.cls == "valu":
                if c.cls == "mfma" and pv & c.r: req(2, "valu->mfma")
                if p.trans and c.cls == "valu" and not c.trans and pv & c.r: req(1, "trans->valu")
                if c.cls == "vmem" and ps & c.r: req(5, "valu sgpr->vmem")
                if c.cls == "valu" and (ps - EXEC) & c.r:
                    req(2, "valu sgpr->valu const")
                    if c.mn.startswith("v_readlane") or c.mn.startswith("v_writelane"): req(4, "lane select")
                if c.cls == "valu" and (c.mn.startswith("v_readlane") or c.mn.startswith("v_readfirstlane")) and pv & c.r: req(1, "valu->readlane")
                if c.cls == "valu" and (c.dpp or c.mn.startswith("v_permlane")) and pv & c.r: req(2, "valu->dpp")
                if ps & EXEC and p.mn.startswith("v_cmpx"):
                    if c.cls == "valu" and c.dpp: req(5, "exec->dpp")
                    if c.cls == "valu" and (c.mn.startswith("v_readlane") or c.mn.startswith("v_readfirstlane") or c.mn.startswith("v_permlane")): req(4, "exec->readlane")
                    if c.cls == "mfma": req(4, "exec->mfma")
                if c.cls == "salu" and (ps - EXEC) & c.r: req(1, "valu sgpr->salu (pad)")
            if p.cls == "mfma":
                big = 12 if p.passes == 8 else 8
                if c.cls == "valu" and p.w & (c.r | c.w): req(big, "mfma D->valu")
                if c.cls in ("vmem", "ds") and p.w & (c.r | c.w): req(big, "mfma D->mem")
                if c.cls == "mfma":
                    if p.w & (c.A | c.B): req(big, "mfma D->A/B")
                    if p.w & c.C and not (p.w == c.C and p.passes == c.passes): req(big - 2, "mfma D->C overlap")
                    if p.w & c.w and not p.w & c.C: req(0, "")
                if c.cls == "valu" and p.C & c.w: req(7 if p.passes == 8 else 3, "mfma C WAR")
            if p.cls == "salu" and ("s", 124) in p.w and c.cls == "vmem" and c.lds: req(1, "m0->lds dma")
            if p.cls == "vmem" and p.widestore and c.cls == "valu" and p.data & c.w: req(2, "store data WAR")
            if p.cls in ("ds", "vmem") and c.cls == "valu" and c.dpp and pv & c.r: pass
            if need > dist:
                errs.append(f"[{name}] hazard {why}: need {need} have {dist}\n    {p.text}\n    {c.text}")
            dist += p.states
            if dist >= 20: break
    return errs

class Asm:
    def __init__(self):
        self.lines = []
    def __call__(self, text):
        for l in text.split("\n"):
            l = l.strip()
            if l: self.lines.append(l)
    def label(self, n): self.lines.append(n + ":")
    def text(self):
        out = []
        for l in self.lines:
            if l.endswith(":") or l.startswith("."): out.append(l)
            elif l.startswith("s_sleep"): out.append("    " + l + "   ; back-off inside a wait-for-other-waves loop")
            else: out.append("    " + l)
        return "\n".join(out) + "\n"
```

```python
from asmlib import *

N = 10000; E = 320000
P_OFF = 0
Q_OFF = 0x500000
CELL_OFF = 0xA00000
W2F_OFF = 0xE00000
WCF_OFF = 0xE10000
NSORT = 128
CHUNK = 2500
NGEMM = 157
K1_WGS = NSORT + 2 * NGEMM
K1_LDS = 81920
NEGLOG2E = 0xBFB8AA3B
OVF = 0xFFFFFFFE

def srd(a, r, lo, hi, size):
    a(f"s_mov_b32 s{r}, {lo}")
    a(f"s_mov_b32 s{r+1}, {hi}")
    a(f"s_mov_b32 s{r+2}, {size}")
    a(f"s_mov_b32 s{r+3}, 0x00020000")

def srd_ws(a, r, wslo, off, size):
    a(f"s_add_u32 s{r}, s{wslo}, {off}")
    a(f"s_addc_u32 s{r+1}, s{wslo+1}, 0")
    a(f"s_mov_b32 s{r+2}, {size}")
    a(f"s_mov_b32 s{r+3}, 0x00020000")

def gen_k1():
    a = Asm()
    a.label("mpnn_pre_kernel")
    a(f"s_cmp_ge_u32 s2, {K1_WGS}")
    a("s_cbranch_scc1 K1_END")
    a("s_load_dwordx16 s[4:19], s[0:1], 0")
    a("s_load_dwordx2 s[20:21], s[0:1], 80")
    a("v_lshrrev_b32 v1, 6, v0")
    a("v_and_b32 v2, 63, v0")
    a("v_readfirstlane_b32 s22, v1")
    a(f"s_cmp_lt_u32 s2, {NSORT}")
    a("s_cbranch_scc1 K1_SORT")
    XI = 65536
    a(f"s_sub_u32 s23, s2, {NSORT}")
    a("s_and_b32 s24, s23, 1")
    a("s_lshr_b32 s25, s23, 1")
    a("s_lshr_b32 s26, s22, 2")
    a("s_and_b32 s27, s22, 3")
    a("v_lshrrev_b32 v5, 5, v2")
    a("v_and_b32 v6, 31, v2")
    a("v_lshlrev_b32 v7, 2, v5")
    a("v_xor_b32 v7, v7, v6")
    a("v_lshlrev_b32 v7, 4, v7")
    a("v_lshl_add_u32 v3, v5, 9, v7")
    a("v_xor_b32 v4, 0x80, v3")
    a("v_lshrrev_b32 v10, 4, v2")
    a("s_lshl_b32 s44, s22, 3")
    a("v_add_u32 v10, s44, v10")
    a("v_xor_b32 v11, v10, v2")
    a("v_and_b32 v11, 15, v11")
    a("v_lshlrev_b32 v11, 4, v11")
    a("v_lshl_add_u32 v8, v10, 8, v11")
    a("v_xor_b32 v9, 64, v8")
    a("s_lshl_b32 s45, s22, 13")
    a("s_lshl_b32 s46, s24, 16")
    a("s_add_u32 s46, s46, s45")
    a("s_add_u32 s47, s46, 4096")
    a("s_lshl_b32 s48, s25, 14")
    a("s_waitcnt lgkmcnt(0)")
    srd(a, 28, "s12", "s13", 272 * 512)
    srd(a, 32, "s4", "s5", N * 256)
    a("s_lshl_b32 s49, s22, 11")
    a(f"s_add_u32 m0, s49, {XI}")
    a("s_nop 0")
    a("buffer_load_dwordx4 v8, s[32:35], s48 offen lds")
    a("buffer_load_dwordx4 v9, s[32:35], s48 offen offset:1024 lds")
    a("s_mov_b32 m0, s45")
    a("s_nop 0")
    for k in range(4):
        a(f"buffer_load_dwordx4 v{3 + (k & 1)}, s[28:31], s46 offen offset:{k*1024} lds")
    a("s_add_u32 m0, s45, 4096")
    a("s_nop 0")
    for k in range(4):
        a(f"buffer_load_dwordx4 v{3 + (k & 1)}, s[28:31], s47 offen offset:{k*1024} lds")
    a("s_mov_b32 s40, s14")
    a("s_mov_b32 s41, s15")
    a("s_lshl_b32 s42, s24, 9")
    a("s_mov_b32 s43, 0x00020000")
    a("v_lshlrev_b32 v12, 1, v6")
    a("s_lshl_b32 s50, s27, 7")
    a("buffer_load_ushort v14, v12, s[40:43], s50 offen")
    a("buffer_load_ushort v15, v12, s[40:43], s50 offen offset:64")
    a(f"s_mul_i32 s51, s24, {Q_OFF}")
    a("s_add_u32 s36, s20, s51")
    a("s_addc_u32 s37, s21, 0")
    a("s_lshl_b32 s51, s24, 9")
    a(f"s_sub_u32 s38, {(N+1)*512}, s51")
    a("s_mov_b32 s39, 0x00020000")
    a("v_and_b32 v17, 15, v2")
    a("v_xor_b32 v17, v17, v5")
    a("v_lshlrev_b32 v17, 4, v17")
    a("v_lshl_add_u32 v16, v6, 8, v17")
    a("s_lshl_b32 s51, s26, 13")
    a(f"s_add_u32 s51, s51, {XI}")
    a("v_add_u32 v16, s51, v16")
    for sidx in range(1, 8):
        a(f"v_xor_b32 v{16+sidx}, {sidx << 5}, v16")
    a("v_bfe_u32 v26, v2, 2, 2")
    a("v_lshl_add_u32 v27, v5, 3, v26")
    a("v_and_b32 v28, 3, v2")
    a("v_lshlrev_b32 v28, 3, v28")
    a("v_bfe_u32 v29, v2, 4, 1")
    a("v_lshl_add_u32 v28, v29, 5, v28")
    a("v_add_u32 v28, s50, v28")
    a("v_lshlrev_b32 v26, 6, v26")
    a("v_xor_b32 v28, v28, v26")
    a("v_lshl_add_u32 v24, v27, 9, v28")
    a("v_xor_b32 v25, 64, v24")
    a("v_lshlrev_b32 v13, 2, v6")
    a("v_lshl_add_u32 v13, v5, 11, v13")
    a("v_add_u32 v13, s50, v13")
    a("s_lshl_b32 s52, s25, 15")
    a("s_lshl_b32 s51, s26, 14")
    a("s_add_u32 s52, s52, s51")
    a("s_add_u32 s53, s52, 4096")
    a("s_add_u32 s54, s52, 8192")
    a("s_add_u32 s55, s52, 12288")
    a(f"s_mov_b32 s56, {NEGLOG2E:#x}")
    a("s_waitcnt vmcnt(0)")
    a("s_barrier")
    AF = 32; BF = 48; DA = 80; DB = 96
    def reads(sidx):
        st = sidx & 3
        a(f"ds_read_b128 {v(AF+4*st,4)}, v{16+sidx}")
        for X in range(2):
            for e in range(2):
                a(f"ds_read_b64_tr_b16 {v(BF+8*st+4*X+2*e,2)}, v{24+X} offset:{sidx*8192+e*2048}")
    reads(0); reads(1); reads(2)
    a("v_lshlrev_b32 v14, 16, v14")
    a("v_lshlrev_b32 v15, 16, v15")
    a("v_mul_f32 v14, s56, v14")
    a("v_mul_f32 v15, s56, v15")
    for sidx in range(8):
        rem = min(7 - sidx, 2)
        a(f"s_waitcnt lgkmcnt({5*rem})")
        ca = "0" if sidx == 0 else v(DA, 16)
        cb = "0" if sidx == 0 else v(DB, 16)
        st = sidx & 3
        a(f"v_mfma_f32_32x32x16_bf16 {v(DA,16)}, {v(AF+4*st,4)}, {v(BF+8*st,4)}, {ca}")
        a(f"v_mfma_f32_32x32x16_bf16 {v(DB,16)}, {v(AF+4*st,4)}, {v(BF+8*st+4,4)}, {cb}")
        if sidx + 3 < 8: reads(sidx + 3)
    a("s_nop 11")
    for r in range(16):
        a(f"v_fma_f32 v{DA+r}, v{DA+r}, s56, v14")
        a(f"v_fma_f32 v{DB+r}, v{DB+r}, s56, v15")
        a(f"v_cvt_pk_bf16_f32 v{AF+r}, v{DA+r}, v{DB+r}")
        a(f"buffer_store_dword v{AF+r}, v13, s[36:39], s{52 + (r >> 2)} offen offset:{(r & 3)*512}")
    a("s_endpgm")
    a.label("K1_SORT")
    CNT = 32768
    a("v_lshlrev_b32 v3, 2, v0")
    a("v_add_u32 v4, 4096, v3")
    a("v_add_u32 v5, 8192, v3")
    a(f"s_mul_i32 s23, s2, {CHUNK*4}")
    a("v_mov_b32 v24, -1\nv_mov_b32 v25, -1\nv_mov_b32 v26, -1\nv_mov_b32 v27, -1")
    a("v_mov_b32 v28, 0")
    a("v_lshlrev_b32 v6, 4, v0")
    a("v_and_b32 v40, 15, v2")
    a("v_lshlrev_b32 v40, 1, v40")
    a("v_lshrrev_b32 v41, 4, v2")
    a("v_lshl_add_u32 v40, v41, 10, v40")
    a("v_add_u32 v41, 8192, v40")
    a("v_and_b32 v42, 1, v2")
    a("v_lshlrev_b32 v42, 6, v42")
    a("v_and_b32 v43, 30, v2")
    a("v_add_u32 v42, v42, v43")
    a("v_lshrrev_b32 v43, 5, v2")
    a("v_lshl_add_u32 v42, v43, 12, v42")
    a("s_waitcnt lgkmcnt(0)")
    srd(a, 28, "s8", "s9", E * 4)
    srd(a, 32, "s10", "s11", E * 4)
    srd(a, 44, "s16", "s17", 256 * 256)
    srd(a, 48, "s12", "s13", 272 * 512)
    a("s_cmp_lg_u32 s22, 0")
    a("s_cbranch_scc1 K1_NOPREP")
    a("s_cmp_ge_u32 s2, 64")
    a("s_cbranch_scc1 K1_PREPC")
    a("s_bfe_u32 s24, s2, 0x20001")
    a("s_lshl_b32 s24, s24, 14")
    a("s_and_b32 s25, s2, 1")
    a("s_lshl_b32 s25, s25, 12")
    a("s_add_u32 s24, s24, s25")
    a("s_lshr_b32 s25, s2, 3")
    a("s_lshl_b32 s25, s25, 5")
    a("s_add_u32 s24, s24, s25")
    for e in range(8):
        a(f"buffer_load_ushort v{48+e}, v{40 + (e & 1)}, s[44:47], s24 offen offset:{(e >> 1)*256}")
    a("s_branch K1_NOPREP")
    a.label("K1_PREPC")
    a("s_cmp_ge_u32 s2, 72")
    a("s_cbranch_scc1 K1_NOPREP")
    a("s_bfe_u32 s24, s2, 0x20001")
    a("s_lshl_b32 s24, s24, 7")
    a("s_and_b32 s25, s2, 1")
    a("s_lshl_b32 s25, s25, 5")
    a("s_add_u32 s24, s24, s25")
    a(f"s_add_u32 s24, s24, {256*512}")
    for e in range(8):
        a(f"buffer_load_ushort v{48+e}, v42, s[48:51], s24 offen offset:{e*512}")
    a.label("K1_NOPREP")
    for i in range(5):
        a(f"buffer_load_dword v{10+i}, v{3 + (i >> 1)}, s[32:35], s23 offen offset:{(i & 1)*2048}")
    for i in range(5):
        a(f"buffer_load_dword v{16+i}, v{3 + (i >> 1)}, s[28:31], s23 offen offset:{(i & 1)*2048}")
    for i in range(4):
        a(f"ds_write_b128 v6, v[24:27] offset:{i*8192}")
    a(f"ds_write_b32 v3, v28 offset:{CNT}")
    srd_ws(a, 36, 20, CELL_OFF, 256 * 128 * 128)
    srd_ws(a, 40, 20, W2F_OFF, 0x12000)
    a("v_mov_b32 v29, 1")
    a(f"v_mov_b32 v30, {OVF - (1 << 32)}")
    a("v_lshlrev_b32 v31, 6, v0")
    a(f"v_cmp_gt_u32 vcc, {CHUNK - 2048}, v0")
    a("s_waitcnt lgkmcnt(0)")
    a("s_mov_b64 s[52:53], vcc")
    a("s_barrier")
    for i in range(5):
        a(f"s_waitcnt vmcnt({9 - i})")
        a(f"v_and_b32 v{32+i}, 255, v{10+i}")
        a(f"v_lshlrev_b32 v{32+i}, 2, v{32+i}")
        if i == 4: a("s_mov_b64 exec, s[52:53]")
        a(f"ds_add_rtn_u32 v{60+i}, v{32+i}, v29 offset:{CNT}")
        if i == 4: a("s_mov_b64 exec, -1")
    for i in range(5):
        a(f"s_waitcnt vmcnt({4 - i})")
        a(f"v_lshrrev_b32 v{10+i}, 8, v{10+i}")
        a(f"v_lshl_or_b32 v{10+i}, v{16+i}, 18, v{10+i}")
        a(f"v_add_u32 v{16+i}, {i*32768}, v31")
        a(f"v_or_b32 v{10+i}, v{10+i}, v{16+i}")
        a(f"v_and_b32 v{16+i}, 28, v{32+i}")
        a(f"v_lshlrev_b32 v{16+i}, 2, v{16+i}")
    for i in range(5):
        a(f"s_waitcnt lgkmcnt({4 - i})" if i == 0 else f"s_waitcnt lgkmcnt(4)")
        a(f"v_cmp_lt_u32 vcc, 30, v{60+i}")
        a(f"v_min_u32 v{60+i}, 31, v{60+i}")
        a(f"v_lshlrev_b32 v{60+i}, 2, v{60+i}")
        a(f"v_cndmask_b32 v{10+i}, v{10+i}, v30, vcc")
        a(f"v_xor_b32 v{60+i}, v{60+i}, v{16+i}")
        a(f"v_lshl_add_u32 v{60+i}, v{32+i}, 5, v{60+i}")
        if i == 4: a("s_mov_b64 exec, s[52:53]")
        a(f"ds_write_b32 v{60+i}, v{10+i}")
        if i == 4: a("s_mov_b64 exec, -1")
    a("v_lshrrev_b32 v3, 3, v0")
    a("v_xor_b32 v4, v3, v0")
    a("v_and_b32 v4, 7, v4")
    a("v_lshlrev_b32 v4, 4, v4")
    a("v_lshl_add_u32 v4, v3, 7, v4")
    a("v_and_b32 v5, 7, v0")
    a("v_lshlrev_b32 v5, 4, v5")
    a("v_lshl_add_u32 v5, v3, 14, v5")
    a("s_lshl_b32 s24, s2, 7")
    for i in range(1, 4):
        a(f"s_add_u32 s{24+i}, s24, {i << 20}")
    a("s_waitcnt lgkmcnt(0)")
    a("s_barrier")
    for i in range(4):
        a(f"ds_read_b128 {v(64+4*i,4)}, v4 offset:{i*8192}")
    for i in range(4):
        a(f"s_waitcnt lgkmcnt({3 - i})")
        a(f"buffer_store_dwordx4 {v(64+4*i,4)}, v5, s[36:39], s{24+i} offen")
    a("s_cmp_lg_u32 s22, 0")
    a("s_cbranch_scc1 K1_END")
    a("s_cmp_ge_u32 s2, 72")
    a("s_cbranch_scc1 K1_END")
    a("v_lshlrev_b32 v6, 4, v2")
    a("s_lshl_b32 s24, s2, 10")
    a("s_cmp_ge_u32 s2, 64")
    a("s_cbranch_scc1 K1_FINC")
    for e in range(4):
        a(f"v_lshl_or_b32 v{56+e}, v{49+2*e}, 16, v{48+2*e}")
    a("buffer_store_dwordx4 v[56:59], v6, s[40:43], s24 offen")
    a("s_endpgm")
    a.label("K1_FINC")
    a(f"s_mov_b32 s25, {NEGLOG2E:#x}")
    for e in range(8):
        a(f"v_lshlrev_b32 v{48+e}, 16, v{48+e}")
        a(f"v_mul_f32 v{48+e}, s25, v{48+e}")
    for e in range(4):
        a(f"v_cvt_pk_bf16_f32 v{56+e}, v{48+2*e}, v{49+2*e}")
    a("buffer_store_dwordx4 v[56:59], v6, s[40:43], s24 offen")
    a.label("K1_END")
    a("s_endpgm")
    return a, 112, 64
```

```python
from asmlib import *
from k1 import *

NW = 12
ERING = 0; QIMG = 0
PSLOT = 24576
OH = 73728
ZERO = 122880
IDX = 126976
EOFF = IDX + 8192
HIMG = 142336
HSTR = 528
FLAG = 163456
CNT = 163584
K2_LDS = 163840
GCAP = 48
KILL = 0x40000000
NEGLN2 = 0xBF317218

aAP = 2; aAE = 6; aAO = 7; aS1 = 8; aS2 = 9; aIDX = 10; aEOFF = 11; eLane = 12; eVal = 13; CHK = 14
D = [16, 32]; EX = 48; ACC = 64; BC = [80, 84]; BQ = [88, 92]; ID = [96, 100]
AE = 104; AO = 108; S = 112; AP = [116, 120, 124, 128]; HQ = 132; IX = [136, 138, 140, 142]
NV2 = 144

def pr(r): return v(r, 2)
def q4(r): return v(r, 4)
def x16(r): return v(r, 16)

def mf_tile(Y):
    d = D[Y]
    return [f"v_mfma_f32_32x32x16_bf16 {x16(d)}, {q4(AE)}, {q4(BC[Y])}, 0",
            f"v_mfma_f32_32x32x16_bf16 {x16(d)}, {q4(AO)}, {q4(BQ[Y])}, {x16(d)}",
            f"v_mfma_f32_32x32x16_bf16 {x16(d)}, {q4(AP[2*Y])}, {q4(ID[0])}, {x16(d)}",
            f"v_mfma_f32_32x32x16_bf16 {x16(d)}, {q4(AP[2*Y+1])}, {q4(ID[1])}, {x16(d)}"]
SEGSUM = f"v_mfma_f32_32x32x16_bf16 {x16(ACC)}, {q4(HQ)}, {q4(S)}, {x16(ACC)}"

def tile(X, mf, ex_exp, mid, ex_rcp):
    d = D[X]; out = []; mi = 0
    for i in range(16):
        if i % 3 == 0 and mi < len(mf):
            out.append(mf[mi]); mi += 1
        out.append(f"v_exp_f32 v{EX+i}, v{d+i}")
        out += ex_exp.get(i, [])
    out += mid
    NAB, NCD, DAB, DCD = d, d + 8, EX, EX + 8
    out.append(f"v_pk_add_f32 {pr(DAB)}, {pr(EX)}, 1.0 op_sel_hi:[1,0]")
    out.append(f"v_pk_add_f32 {pr(DCD)}, {pr(EX+8)}, 1.0 op_sel_hi:[1,0]")
    for k in range(1, 4):
        out.append(f"v_pk_fma_f32 {pr(NAB)}, {pr(NAB)}, {pr(EX+2*k)}, {pr(NAB)}")
        out.append(f"v_pk_fma_f32 {pr(NCD)}, {pr(NCD)}, {pr(EX+8+2*k)}, {pr(NCD)}")
        out.append(f"v_pk_fma_f32 {pr(NAB)}, {pr(d+2*k)}, {pr(DAB)}, {pr(NAB)}")
        out.append(f"v_pk_fma_f32 {pr(NCD)}, {pr(d+8+2*k)}, {pr(DCD)}, {pr(NCD)}")
        out.append(f"v_pk_fma_f32 {pr(DAB)}, {pr(DAB)}, {pr(EX+2*k)}, {pr(DAB)}")
        out.append(f"v_pk_fma_f32 {pr(DCD)}, {pr(DCD)}, {pr(EX+8+2*k)}, {pr(DCD)}")
    out.append(f"v_pk_fma_f32 {pr(CHK)}, {pr(DAB)}, {pr(DCD)}, {pr(CHK)}")
    out += ex_rcp
    for r in (DAB, DAB + 1, DCD, DCD + 1):
        out.append(f"v_rcp_f32 v{r}, v{r}")
    out.append(f"v_pk_mul_f32 {pr(NAB)}, {pr(NAB)}, {pr(DAB)}")
    out.append(f"v_pk_mul_f32 {pr(NCD)}, {pr(NCD)}, {pr(DCD)}")
    out.append(f"v_cvt_pk_bf16_f32 v{HQ+2*X}, v{NAB}, v{NAB+1}")
    out.append(f"v_cvt_pk_bf16_f32 v{HQ+2*X+1}, v{NCD}, v{NCD+1}")
    return out

def p_dma():
    out = []
    for k in range(4):
        out.append(f"s_add_u32 m0, s57, {k*1024}")
        out.append("s_nop 0")
        out.append(f"buffer_load_dwordx4 {pr(IX[k])}, s[32:35], s58 idxen offen lds")
    return out

def e_dma():
    return [f"v_add_u32 v{eVal}, v{eVal}, v{eLane}",
            "s_cmp_lt_u32 s61, s53",
            f"s_cselect_b32 s60, 0, {KILL:#x}",
            "s_mov_b32 m0, s59",
            "s_add_u32 s61, s61, 4",
            f"buffer_load_dwordx4 v{eVal}, s[28:31], s60 offen nt lds",
            "s_xor_b32 s59, s59, 4096"]

def gen_k2(opt=None):
    opt = opt or {}
    a = Asm()
    a.label("mpnn_main_kernel")
    a("s_cmp_ge_u32 s2, 256")
    a("s_cbranch_scc1 K2_END")
    a("s_load_dwordx16 s[4:19], s[0:1], 0")
    a("s_load_dwordx2 s[20:21], s[0:1], 64")
    a("s_load_dwordx2 s[22:23], s[0:1], 80")
    a("v_lshrrev_b32 v16, 6, v0")
    a("v_and_b32 v1, 63, v0")
    a("v_readfirstlane_b32 s24, v16")
    a("s_mov_b32 s66, 43691")
    a("v_mul_u32_u24 v16, s66, v0")
    a("v_lshrrev_b32 v16, 18, v16")
    a("v_mul_u32_u24 v17, 6, v16")
    a("v_sub_u32 v17, v0, v17")
    a("v_lshlrev_b32 v17, 4, v17")
    a("v_lshl_add_u32 v18, v16, 7, v17")
    a("v_lshrrev_b32 v21, 1, v0")
    a("v_and_b32 v19, 1, v0")
    a("v_lshlrev_b32 v19, 4, v19")
    a("v_lshl_add_u32 v19, v21, 7, v19")
    a("v_lshrrev_b32 v22, 5, v1")
    a("v_and_b32 v23, 31, v1")
    a("v_lshlrev_b32 v20, 4, v23")
    a("v_lshl_add_u32 v20, v22, 17, v20")
    a("v_lshlrev_b32 v32, 4, v1")
    a("s_and_b32 s25, s24, 3")
    a("s_lshr_b32 s26, s24, 2")
    a("s_lshl_b32 s66, s2, 14")
    a("s_cmp_lt_u32 s24, 4")
    a(f"s_cselect_b32 s67, s66, {KILL:#x}")
    a("s_lshl_b32 s68, s2, 9")
    a("s_lshl_b32 s69, s24, 18")
    a("s_add_u32 s68, s68, s69")
    a(f"s_add_u32 s69, s68, {12 << 18}")
    a("s_lshl_b32 s72, s25, 11")
    a(f"s_add_u32 s72, s72, {WCF_OFF - CELL_OFF}")
    a("s_lshl_b32 s73, s24, 10")
    a("s_waitcnt lgkmcnt(0)")
    srd_ws(a, 40, 22, CELL_OFF, 0x412000)
    srd_ws(a, 36, 22, Q_OFF, N * 512)
    a("buffer_load_dwordx4 v[24:27], v18, s[40:43], s66 offen")
    a("buffer_load_dwordx4 v[28:31], v19, s[40:43], s67 offen offset:96")
    a("s_mov_b32 m0, s73")
    a("s_nop 0")
    a("buffer_load_dwordx4 v20, s[36:39], s68 offen lds")
    a(f"s_add_u32 m0, s73, {12*1024}")
    a("s_nop 0")
    a("buffer_load_dwordx4 v20, s[36:39], s69 offen lds")
    a(f"buffer_load_dwordx4 {q4(BC[0])}, v32, s[40:43], s72 offen")
    a(f"buffer_load_dwordx4 {q4(BC[1])}, v32, s[40:43], s72 offen offset:1024")
    a("v_lshlrev_b32 v33, 4, v0")
    a(f"v_add_u32 v33, {OH}, v33")
    a(f"v_add_u32 v34, {4*12288}, v33")
    for i in range(4): a(f"v_mov_b32 v{36+i}, 0")
    for i in range(4): a(f"ds_write_b128 v33, v[36:39] offset:{i*12288}")
    a(f"ds_write_b128 v34, v[36:39] offset:{2*12288}")
    a("s_cmp_lt_u32 s24, 4")
    a(f"s_cselect_b32 s66, 0, {N}")
    a("s_cbranch_scc0 K2_I1")
    a(f"ds_write_b128 v34, v[36:39] offset:{3*12288}")
    a.label("K2_I1")
    a("s_cmp_lt_u32 s24, 7")
    a(f"s_cselect_b32 s67, {KILL:#x}, 0")
    for i in range(4): a(f"v_mov_b32 v{40+i}, s66")
    for i in range(4): a(f"v_mov_b32 v{44+i}, s67")
    a("ds_write_b128 v34, v[40:43]")
    a(f"ds_write_b128 v34, v[44:47] offset:12288")
    srd(a, 28, "s6", "s7", E * 32)
    a("s_mov_b32 s32, s22")
    a("s_and_b32 s33, s23, 0xffff")
    a(f"s_or_b32 s33, s33, {512 << 16:#x}")
    a(f"s_mov_b32 s34, {N+1}")
    a("s_mov_b32 s35, 0x00020000")
    srd(a, 44, "s20", "s21", N * 256)
    srd(a, 48, "s18", "s19", 256)
    a("s_mov_b32 s70, 0")
    a("v_and_b32 v48, 16, v23")
    a("v_and_b32 v49, 4, v23")
    a("v_lshl_or_b32 v48, v49, 1, v48")
    a("v_and_b32 v49, 1, v23")
    a("v_lshl_or_b32 v48, v49, 2, v48")
    a("v_bfe_u32 v49, v23, 3, 1")
    a("v_lshl_or_b32 v48, v49, 1, v48")
    a("v_bfe_u32 v49, v23, 1, 1")
    a("v_or_b32 v48, v48, v49")
    a("s_lshl_b32 s57, s24, 12")
    a(f"s_add_u32 s57, s57, {PSLOT}")
    a("s_lshl_b32 s58, s25, 7")
    a("v_bfe_u32 v49, v48, 1, 3")
    a("v_xor_b32 v49, v49, v22")
    a("v_lshlrev_b32 v49, 4, v49")
    a(f"v_lshl_add_u32 v{aAP}, v48, 7, v49")
    a(f"v_add_u32 v{aAP}, s57, v{aAP}")
    for m in range(1, 4): a(f"v_xor_b32 v{aAP+m}, {m << 5}, v{aAP}")
    a("v_bfe_u32 v49, v48, 3, 1")
    a("v_xor_b32 v49, v49, v22")
    a("v_lshlrev_b32 v49, 4, v49")
    a(f"v_lshl_add_u32 v{aAE}, v48, 5, v49")
    a("s_lshl_b32 s59, s26, 13")
    a(f"v_add_u32 v{aAE}, s59, v{aAE}")
    a("s_lshl_b32 s66, s25, 10")
    a("s_add_u32 s59, s59, s66")
    a("v_lshlrev_b32 v49, 4, v22")
    a(f"v_lshl_add_u32 v{aAO}, v48, 5, v49")
    a("v_bfe_u32 v49, v1, 3, 1")
    a("v_lshlrev_b32 v50, 9, v49")
    a("v_lshl_add_u32 v50, v22, 8, v50")
    a("v_bfe_u32 v49, v1, 2, 1")
    a("v_lshl_add_u32 v50, v49, 7, v50")
    a("v_and_b32 v51, 3, v1")
    a("v_lshl_add_u32 v50, v51, 3, v50")
    a("s_mov_b32 s62, 0xffff\ns_mov_b32 s63, 0xffff\ns_mov_b32 s64, 0xffff0000\ns_mov_b32 s65, 0xffff0000")
    a(f"v_lshrrev_b32 v49, 3, v1")
    a(f"v_lshlrev_b32 v{aIDX}, 2, v49")
    a("v_lshrrev_b32 v49, 4, v1")
    a("v_xor_b32 v49, v49, v1")
    a(f"v_and_b32 v{eLane}, 1, v49")
    a(f"v_lshlrev_b32 v{eLane}, 4, v{eLane}")
    a("v_and_b32 v49, 7, v49")
    a(f"v_lshlrev_b32 v{IX[0]+1}, 4, v49")
    a(f"v_xor_b32 v{IX[1]+1}, 64, v{IX[0]+1}")
    a(f"v_mov_b32 v{IX[2]+1}, v{IX[0]+1}")
    a(f"v_mov_b32 v{IX[3]+1}, v{IX[1]+1}")
    a(f"v_lshrrev_b32 v49, 1, v1")
    a(f"v_lshlrev_b32 v{aEOFF}, 2, v49")
    a("v_and_b32 v49, 1, v1")
    a("v_lshlrev_b32 v49, 4, v49")
    a("v_mov_b32 v52, 0x3f80")
    a("v_lshlrev_b32 v52, v49, v52")
    a("v_lshrrev_b32 v49, 1, v23")
    a("v_lshlrev_b32 v53, 2, v22")
    a("v_sub_u32 v49, v49, v53")
    for mm in range(2):
        for rho in range(4):
            a(f"v_cmp_eq_u32 s[{74+2*(rho&1)}:{75+2*(rho&1)}], {8*mm+rho}, v49")
            if rho & 1:
                a("s_nop 0")
                a(f"v_cndmask_b32 v{ID[mm]+rho-1}, 0, v52, s[74:75]")
                a(f"v_cndmask_b32 v{ID[mm]+rho}, 0, v52, s[76:77]")
    a("s_mul_i32 s71, s26, 12")
    a("v_bfe_u32 v49, v1, 2, 2")
    a("v_lshl_add_u32 v49, v22, 3, v49")
    a("v_subrev_u32 v49, s71, v49")
    a("v_add_u32 v53, 4, v49")
    a("v_and_b32 v49, 15, v49")
    a("v_and_b32 v53, 15, v53")
    a("v_add_u32 v49, s71, v49")
    a("v_add_u32 v53, s71, v53")
    a("v_bfe_u32 v56, v1, 4, 1")
    a("v_lshlrev_b32 v56, 5, v56")
    a("v_lshl_add_u32 v56, v51, 3, v56")
    a("v_add_u32 v56, s58, v56")
    a("v_lshl_add_u32 v54, v49, 9, v56")
    a("v_lshl_add_u32 v55, v53, 9, v56")
    a(f"s_mov_b32 s66, {CHUNK*32}")
    a("v_mul_lo_u32 v16, s66, v16")
    a("v_mul_lo_u32 v21, s66, v21")
    a("v_mov_b32 v17, 1")
    a("v_mov_b32 v18, 0x3f80")
    a(f"v_lshlrev_b32 v19, 2, v1")
    a(f"v_add_u32 v19, {CNT}, v19")
    a(f"s_mov_b32 s78, {CNT}")
    a(f"s_mov_b32 s79, {IDX}")
    a(f"s_mov_b32 s80, {OH}")
    a(f"v_mov_b32 v{CHK}, 0\nv_mov_b32 v{CHK+1}, 0")
    for i in range(4): a(f"v_mov_b32 v{HQ+i}, 0")
    for i in range(4): a(f"v_mov_b32 v{S+i}, 0")
    a("s_mov_b32 s81, 0")
    a("s_waitcnt lgkmcnt(0)")
    a("s_barrier")
    a("s_waitcnt vmcnt(4)")
    def count(base, abase, rbase):
        for k in range(4):
            a(f"v_and_b32 v{abase+k}, 63, v{base+k}")
            a(f"v_lshl_add_u32 v{abase+k}, v{abase+k}, 2, s78")
        for k in range(4):
            a(f"v_cmpx_gt_u32 vcc, -2, v{base+k}")
            a(f"ds_add_rtn_u32 v{rbase+k}, v{abase+k}, v17")
        a("s_mov_b64 exec, -1")
    count(24, 32, 40)
    a("s_cmp_ge_u32 s24, 4")
    a("s_cbranch_scc1 K2_C1")
    a("v_cmp_ne_u32 vcc, -1, v28")
    a("s_nop 1")
    a("s_cbranch_vccz K2_C1")
    a("s_mov_b32 s81, 1")
    count(28, 36, 44)
    a(f"v_mov_b32 v57, {FLAG}")
    a("v_cmpx_eq_u32 vcc, -2, v31")
    a("ds_write_b32 v57, v17")
    a("s_mov_b64 exec, -1")
    a.label("K2_C1")
    a("s_waitcnt vmcnt(0) lgkmcnt(0)")
    a("s_barrier")
    a("ds_read_b32 v57, v19")
    a(f"v_mov_b32 v58, {FLAG}")
    a("ds_read_b32 v58, v58")
    for X in range(2):
        for e in range(2):
            a(f"ds_read_b64_tr_b16 {pr(BQ[X]+2*e)}, v{54+e} offset:{X*64}")
    for i in range(16): a(f"v_mov_b32 v{ACC+i}, 0")
    a("s_waitcnt lgkmcnt(4)")
    a("v_add_u32 v57, 3, v57")
    a("v_lshrrev_b32 v57, 2, v57")
    a("v_mov_b32 v59, v57")
    a("v_readfirstlane_b32 s82, v58")
    a("s_nop 0")
    for sh in (1, 2, 4, 8):
        a(f"v_add_u32_dpp v59, v59, v59 row_shr:{sh} row_mask:0xf bank_mask:0xf bound_ctrl:0")
        a("s_nop 1")
    a("v_add_u32_dpp v59, v59, v59 row_bcast:15 row_mask:0xa bank_mask:0xf")
    a("s_nop 1")
    a("v_add_u32_dpp v59, v59, v59 row_bcast:31 row_mask:0xc bank_mask:0xf")
    a("v_sub_u32 v60, v59, v57")
    a("v_lshlrev_b32 v61, 2, v60")
    a("v_readlane_b32 s83, v59, 63")
    SB = AP[0]
    for k in range(4): a(f"ds_bpermute_b32 v{SB+k}, v{32+k}, v61")
    a("v_readlane_b32 s84, v60, 12")
    a("v_readlane_b32 s85, v60, 16")
    a("v_readlane_b32 s86, v60, 24")
    a("v_readlane_b32 s87, v60, 28")
    a("s_add_u32 s83, s83, 7")
    a("s_lshr_b32 s83, s83, 3")
    a("s_add_u32 s84, s84, 7")
    a("s_lshr_b32 s84, s84, 3")
    a("s_lshr_b32 s85, s85, 3")
    a("s_add_u32 s86, s86, 7")
    a("s_lshr_b32 s86, s86, 3")
    a("s_lshr_b32 s87, s87, 3")
    a("s_cmp_lg_u32 s82, 0")
    a("s_cbranch_scc1 K2_SLOW")
    a(f"s_cmp_gt_u32 s83, {GCAP}")
    a("s_cbranch_scc1 K2_SLOW")
    a("s_cmp_gt_u32 s84, s85")
    a("s_cbranch_scc1 K2_SLOW")
    a("s_cmp_gt_u32 s86, s87")
    a("s_cbranch_scc1 K2_SLOW")
    if opt.get("force_slow"): a("s_branch K2_SLOW")
    a("s_add_u32 s88, s83, 2")
    a("s_mul_i32 s88, s88, 171")
    a("s_lshr_b32 s88, s88, 9")
    a("s_max_u32 s88, s88, s84")
    a("s_min_u32 s88, s88, s85")
    a("s_add_u32 s89, s83, s88")
    a("s_add_u32 s89, s89, 1")
    a("s_lshr_b32 s89, s89, 1")
    a("s_max_u32 s89, s89, s86")
    a("s_min_u32 s89, s89, s87")
    a("s_sub_u32 s90, s89, s88")
    a("s_sub_u32 s91, s83, s89")
    a("s_max_u32 s54, s88, s90")
    a("s_max_u32 s54, s54, s91")
    a("s_lshr_b32 s54, s54, 2")
    a("s_mov_b32 s52, 0")
    a("s_mov_b32 s53, s88")
    a("s_cmp_eq_u32 s26, 1")
    a("s_cselect_b32 s52, s88, s52")
    a("s_cselect_b32 s53, s90, s53")
    a("s_cmp_eq_u32 s26, 2")
    a("s_cselect_b32 s52, s89, s52")
    a("s_cselect_b32 s53, s91, s53")
    def scatter(base, rbase, cbase):
        T = AP[1]
        for k in range(4):
            a(f"v_lshrrev_b32 v{T+k}, 18, v{base+k}")
            a(f"v_bfe_u32 v{T+4+k}, v{base+k}, 6, 12")
            a(f"v_lshl_add_u32 v{T+4+k}, v{T+4+k}, 5, v{cbase}")
            a(f"v_and_b32 v{T+8+k}, 15, v{base+k}")
            a(f"v_lshl_add_u32 v{T+8+k}, v{T+8+k}, 1, s80")
        a("s_waitcnt lgkmcnt(0)")
        for k in range(4):
            a(f"v_add_u32 v{SB+k}, v{SB+k}, v{rbase+k}")
            a(f"v_lshl_add_u32 v{T+8+k}, v{SB+k}, 5, v{T+8+k}")
            a(f"v_lshl_add_u32 v{SB+k}, v{SB+k}, 2, s79")
        for k in range(4):
            a(f"v_cmpx_gt_u32 vcc, -2, v{base+k}")
            a(f"ds_write2st64_b32 v{SB+k}, v{T+k}, v{T+4+k} offset0:0 offset1:32")
            a(f"ds_write_b16 v{T+8+k}, v18")
        a("s_mov_b64 exec, -1")
    scatter(24, 40, 16)
    a("s_cmp_eq_u32 s81, 0")
    a("s_cbranch_scc1 K2_S1")
    a("s_waitcnt lgkmcnt(0)")
    for k in range(4): a(f"ds_bpermute_b32 v{SB+k}, v{36+k}, v61")
    scatter(28, 44, 21)
    a.label("K2_S1")
    a("s_lshl_b32 s66, s52, 10")
    a(f"s_add_u32 s66, s66, {OH}")
    a(f"v_add_u32 v{aAO}, s66, v{aAO}")
    a("v_add_u32 v50, s66, v50")
    a(f"v_mov_b32 v49, {ZERO}")
    a(f"v_cndmask_b32 v{aS1}, v49, v50, s[62:63]")
    a(f"v_cndmask_b32 v{aS2}, v49, v50, s[64:65]")
    a("s_lshl_b32 s66, s52, 7")
    a(f"s_add_u32 s67, s66, {IDX}")
    a(f"v_add_u32 v{aIDX}, s67, v{aIDX}")
    a("s_add_u32 s67, s67, s58")
    a(f"s_add_u32 s67, s67, {EOFF - IDX}")
    a(f"v_add_u32 v{aEOFF}, s67, v{aEOFF}")
    a("s_mov_b32 s61, s25")
    a("s_mov_b32 s55, 0")
    a("s_mov_b32 s56, 0")
    a("s_waitcnt lgkmcnt(0)")
    a("s_barrier")
    for k in range(4): a(f"ds_read_b32 v{IX[k]}, v{aIDX} offset:{k*32}")
    a(f"ds_read_b32 v{eVal}, v{aEOFF}")
    a(f"ds_read_b32 v16, v{aEOFF} offset:512")
    a("s_waitcnt lgkmcnt(2)")
    a("\n".join(p_dma()))
    a("s_waitcnt lgkmcnt(0)")
    a("\n".join(e_dma()))
    a(f"v_mov_b32 v{eVal}, v16")
    for k in range(4): a(f"ds_read_b32 v{IX[k]}, v{aIDX} offset:{128+k*32}")
    a(f"ds_read_b128 {q4(AO)}, v{aAO}")
    a("s_waitcnt vmcnt(1)")
    for m in range(4): a(f"ds_read_b128 {q4(AP[m])}, v{aAP+m}")
    a("s_waitcnt lgkmcnt(0)")
    a("\n".join(p_dma()))
    a("\n".join(e_dma()))
    a("s_waitcnt vmcnt(5)")
    a("s_barrier")
    a("s_cmp_eq_u32 s53, 0")
    a("s_cbranch_scc1 K2_EXIT")
    a(f"ds_read_b128 {q4(AE)}, v{aAE}")
    a("s_waitcnt lgkmcnt(0)")
    a("\n".join(mf_tile(0)))
    a("s_nop 10")
    a(".p2align 6")
    a.label("K2_LOOP")
    loop_start = len(a.lines)
    for u in range(4):
        ex0 = {}
        ex0[1] = [f"ds_read_b32 v{IX[k]}, v{aIDX} offset:{(u+2)*128+k*32}" for k in range(4)]
        mid = [f"s_waitcnt vmcnt({1 if u == 0 else 0})"]
        if u == 3:
            mid += ["s_barrier", "s_add_u32 s56, s56, 1", f"v_xor_b32 v{aAE}, 4096, v{aAE}"]
            if opt.get("prio", 1): mid += ["s_setprio 3"]
        mid += [f"ds_read_b128 {q4(AP[m])}, v{aAP+m}" for m in range(4)]
        mid += [f"ds_read_b128 {q4(AE)}, v{aAE} offset:{((u+1)&3)*1024}",
                f"ds_read_b128 {q4(AO)}, v{aAO} offset:{(u+1)*1024}"]
        if u == 3: mid += [f"ds_read_b32 v{eVal}, v{aEOFF} offset:1024"]
        elif opt.get("prio", 1): mid += [f"s_setprio {2-u}"]
        exr = ["s_add_u32 s66, s55, 2", "s_cmp_ge_u32 s66, s53", "s_waitcnt lgkmcnt(0)", f"s_cbranch_scc1 K2_ND{u}"] + p_dma() + [f"K2_ND{u}:"]
        if u == 3: exr += e_dma()
        t0 = tile(0, mf_tile(1) + [SEGSUM], ex0, mid, exr)
        ex1 = {}
        ex1[1] = [f"ds_read_b64_tr_b16 {pr(S)}, v{aS1} offset:{u*1024}", f"ds_read_b64_tr_b16 {pr(S+2)}, v{aS2} offset:{u*1024}"]
        mid1 = []
        if u == 3:
            mid1 = [f"v_add_u32 v{aAO}, 4096, v{aAO}", f"v_add_u32 v{aIDX}, 512, v{aIDX}", f"v_add_u32 v{aEOFF}, 512, v{aEOFF}",
                    "s_mov_b64 exec, s[62:63]", f"v_add_u32 v{aS1}, 4096, v{aS1}", "s_mov_b64 exec, s[64:65]", f"v_add_u32 v{aS2}, 4096, v{aS2}", "s_mov_b64 exec, -1"]
        t1 = tile(1, mf_tile(0), ex1, mid1, ["s_waitcnt lgkmcnt(0)"])
        a("\n".join(t0 + t1))
        a("s_add_u32 s55, s55, 1")
        a("s_cmp_ge_u32 s55, s53")
        if u < 3: a("s_cbranch_scc1 K2_EXIT")
        else: a("s_cbranch_scc0 K2_LOOP")
    loop_end = len(a.lines)
    a.label("K2_EXIT")
    a(SEGSUM)
    a("s_setprio 0")
    a("v_and_b32 v2, 15, v1")
    a("v_subrev_u32 v2, s71, v2")
    a("v_and_b32 v2, 15, v2")
    a("v_add_u32 v2, s71, v2")
    a(f"v_mul_u32_u24 v2, {HSTR}, v2")
    a("v_bfe_u32 v3, v1, 4, 1")
    a("v_lshl_add_u32 v2, v3, 6, v2")
    a("v_lshrrev_b32 v3, 5, v1")
    a("v_lshl_add_u32 v2, v3, 3, v2")
    a(f"s_add_u32 s66, s58, {HIMG}")
    a("v_add_u32 v2, s66, v2")
    a("s_mov_b32 s66, 0x4e800000")
    a("s_mov_b32 s67, 0x4e800000")
    a(f"v_pk_mul_f32 {pr(CHK)}, {pr(CHK)}, s[66:67]")
    a("v_mov_b32 v4, 0x207")
    a("s_nop 1")
    for k in range(8):
        a(f"v_pk_fma_f32 {pr(CHK)}, {pr(ACC+2*k)}, 0, {pr(CHK)} op_sel_hi:[1,0,1]")
        a(f"v_cvt_pk_bf16_f32 v{EX+k}, v{ACC+2*k}, v{ACC+2*k+1}")
        a(f"ds_pk_add_bf16 v2, v{EX+k} offset:{(8*(k>>1) + 2*(k&1))*2}")
    a(f"v_add_f32 v{CHK}, v{CHK}, v{CHK+1}")
    a(f"v_mov_b32 v5, {FLAG}")
    a("v_mov_b32 v6, 1")
    a(f"v_cmpx_class_f32 vcc, v{CHK}, v4")
    a("ds_write_b32 v5, v6")
    a("s_mov_b64 exec, -1")
    a.label("K2_RB")
    a("s_cmp_ge_u32 s56, s54")
    a("s_cbranch_scc1 K2_FIN")
    a("s_barrier")
    a("s_add_u32 s56, s56, 1")
    a("s_branch K2_RB")
    a.label("K2_FIN")
    WF = 16
    a("v_lshlrev_b32 v7, 4, v1")
    a("s_lshl_b32 s66, s24, 13")
    a(f"s_add_u32 s66, s66, {W2F_OFF - CELL_OFF}")
    a("s_cmp_lt_u32 s24, 8")
    a(f"s_cselect_b32 s66, s66, {KILL:#x}")
    a("s_add_u32 s67, s66, 4096")
    for sidx in range(8):
        a(f"buffer_load_dwordx4 {q4(WF+4*sidx)}, v7, s[40:43], s{66 + (sidx >> 2)} offen offset:{(sidx & 3)*1024}")
    a("v_lshrrev_b32 v8, 4, v1")
    a("v_lshlrev_b32 v9, 3, v8")
    a("s_lshl_b32 s68, s24, 5")
    a("buffer_load_dwordx2 v[10:11], v9, s[48:51], s68 offen")
    a("v_and_b32 v12, 15, v1")
    a(f"v_mul_u32_u24 v2, {HSTR}, v12")
    a("v_lshl_add_u32 v2, v8, 4, v2")
    a(f"v_add_u32 v2, {HIMG}, v2")
    a("v_min_u32 v3, 7, v12")
    a(f"v_mul_u32_u24 v3, {HSTR}, v3")
    a("v_lshl_add_u32 v3, v8, 4, v3")
    a(f"v_add_u32 v3, {HIMG + 32*HSTR}, v3")
    a("v_lshlrev_b32 v4, 2, v12")
    a(f"v_add_u32 v4, {CNT}, v4")
    a(f"v_mov_b32 v5, {FLAG}")
    a("v_lshl_add_u32 v13, v12, 16, v9")
    a("s_lshl_b32 s69, s2, 8")
    a("s_add_u32 s69, s69, s68")
    a(f"s_add_u32 s72, s69, {16 << 16}")
    a(f"s_add_u32 s73, s69, {32 << 16}")
    a(f"s_mov_b32 s74, {NEGLN2:#x}")
    a("s_waitcnt lgkmcnt(0)")
    a("s_barrier")
    a("ds_read_b32 v6, v5")
    for mt in range(3): a(f"ds_read_b32 v{112+mt}, v4 offset:{mt*64}")
    HB = 48
    def hread(sidx):
        for mt in range(3):
            r = HB + (sidx & 3) * 12 + mt * 4
            if mt < 2: a(f"ds_read_b128 {q4(r)}, v2 offset:{mt*16*HSTR + sidx*64}")
            else: a(f"ds_read_b128 {q4(r)}, v3 offset:{sidx*64}")
    hread(0); hread(1); hread(2)
    a("s_waitcnt lgkmcnt(12)")
    a("v_readfirstlane_b32 s82, v6")
    a("s_nop 0")
    a("s_andn2_b32 s82, s82, s70")
    a("s_cmp_lg_u32 s82, 0")
    a("s_cbranch_scc1 K2_SLOW")
    a("s_cmp_ge_u32 s24, 8")
    a("s_cbranch_scc1 K2_END")
    OD = 96
    for sidx in range(8):
        rem = min(7 - sidx, 2)
        a(f"s_waitcnt vmcnt({8 - sidx}) lgkmcnt({3*rem})")
        for mt in range(3):
            r = HB + (sidx & 3) * 12 + mt * 4
            c = "0" if sidx == 0 else q4(OD + 4*mt)
            a(f"v_mfma_f32_16x16x32_bf16 {q4(OD+4*mt)}, {q4(WF+4*sidx)}, {q4(r)}, {c}")
        if sidx + 3 < 8: hread(sidx + 3)
    a("s_waitcnt vmcnt(0)")
    a("v_lshlrev_b32 v116, 16, v10")
    a("v_and_b32 v117, 0xffff0000, v10")
    a("v_lshlrev_b32 v118, 16, v11")
    a("v_and_b32 v119, 0xffff0000, v11")
    for mt in range(3): a(f"v_cvt_f32_u32 v{112+mt}, v{112+mt}")
    a("s_nop 0")
    for mt in range(3):
        for i in range(4):
            a(f"v_mul_f32 v{120+i}, v{112+mt}, v{116+i}")
            a(f"v_fma_f32 v{120+i}, v{OD+4*mt+i}, s74, v{120+i}")
        a(f"v_cvt_pk_bf16_f32 v{124+2*mt}, v120, v121")
        a(f"v_cvt_pk_bf16_f32 v{125+2*mt}, v122, v123")
        a(f"buffer_store_dwordx2 {pr(124+2*mt)}, v13, s[44:47], s{(69,72,73)[mt]} offen")
    a.label("K2_END")
    a("s_endpgm")
    a.label("K2_SLOW")
    a("s_setprio 0")
    a("s_mov_b32 s70, -1")
    a("s_waitcnt vmcnt(0) lgkmcnt(0)")
    a("s_barrier")
    a("v_lshlrev_b32 v2, 4, v0")
    for i in range(4): a(f"v_mov_b32 v{4+i}, 0")
    for i in range(4): a(f"ds_write_b128 v2, v[4:7] offset:{i*12288}")
    a("v_lshlrev_b32 v3, 2, v1")
    a(f"v_add_u32 v3, {CNT}, v3")
    a("ds_write_b32 v3, v4")
    srd(a, 84, "s8", "s9", E * 4)
    srd(a, 88, "s10", "s11", E * 4)
    srd(a, 92, "s22", "s23", N * 512)
    a("v_and_b32 v8, 31, v1")
    a("v_lshlrev_b32 v8, 4, v8")
    a("v_lshrrev_b32 v9, 5, v1")
    a("v_lshl_add_u32 v8, v9, 10, v8")
    a("s_lshl_b32 s72, s25, 11")
    a(f"s_add_u32 s72, s72, {WCF_OFF - CELL_OFF}")
    a("buffer_load_dwordx4 v[16:19], v8, s[40:43], s72 offen")
    a("buffer_load_dwordx4 v[20:23], v8, s[40:43], s72 offen offset:512")
    a("v_lshlrev_b32 v10, 1, v1")
    a("v_add_u32 v10, s58, v10")
    a("v_lshlrev_b32 v11, 1, v10")
    a("v_lshlrev_b32 v12, 2, v1")
    a("v_mov_b32 v13, 1")
    a("s_waitcnt vmcnt(0)")
    for k in range(8):
        a(f"v_lshlrev_b32 v{24+2*k}, 16, v{16+k}")
        a(f"v_and_b32 v{25+2*k}, 0xffff0000, v{16+k}")
    a("s_waitcnt lgkmcnt(0)")
    a("s_barrier")
    a("s_mov_b32 s66, s26")
    a.label("K2_SL_BLK")
    a("s_lshl_b32 s67, s66, 8")
    a("buffer_load_dword v40, v12, s[88:91], s67 offen")
    a("buffer_load_dword v41, v12, s[84:87], s67 offen")
    a("s_waitcnt vmcnt(0)")
    a("v_and_b32 v42, 255, v40")
    a("v_cmp_eq_u32 vcc, s2, v42")
    a("s_nop 1")
    a("s_mov_b64 s[68:69], vcc")
    a.label("K2_SL_E")
    a("s_cmp_eq_u64 s[68:69], 0")
    a("s_cbranch_scc1 K2_SL_NB")
    a("s_ff1_i32_b64 s72, s[68:69]")
    a("s_bitset0_b64 s[68:69], s72")
    a("v_readlane_b32 s73, v40, s72")
    a("v_readlane_b32 s74, v41, s72")
    a("s_lshl_b32 s75, s66, 6")
    a("s_add_u32 s75, s75, s72")
    a("s_lshl_b32 s75, s75, 5")
    a("s_load_dwordx8 s[76:83], s[6:7], s75")
    a("s_lshl_b32 s74, s74, 9")
    a("s_lshl_b32 s75, s73, 9")
    a("s_lshr_b32 s73, s73, 8")
    a("s_nop 2")
    a("buffer_load_ushort v43, v10, s[92:95], s74 offen")
    a("buffer_load_ushort v44, v10, s[36:39], s75 offen")
    a("s_waitcnt vmcnt(0) lgkmcnt(0)")
    a("v_lshlrev_b32 v43, 16, v43")
    a("v_lshlrev_b32 v44, 16, v44")
    a("v_add_f32 v43, v43, v44")
    for k in range(8):
        a(f"s_lshl_b32 s74, s{76+k}, 16")
        a(f"v_fmac_f32 v43, s74, v{24+2*k}")
        a(f"s_and_b32 s74, s{76+k}, 0xffff0000")
        a(f"v_fmac_f32 v43, s74, v{25+2*k}")
    a("v_exp_f32 v44, v43")
    a("s_lshl_b32 s74, s73, 10")
    a("v_add_f32 v44, 1.0, v44")
    a("v_rcp_f32 v44, v44")
    a("v_add_u32 v45, s74, v11")
    a("v_mul_f32 v43, v43, v44")
    a("ds_add_f32 v45, v43")
    a("s_cmp_lg_u32 s25, 0")
    a("s_cbranch_scc1 K2_SL_E")
    a("s_lshl_b32 s74, s73, 2")
    a(f"s_add_u32 s74, s74, {CNT}")
    a("v_mov_b32 v45, s74")
    a("s_mov_b64 exec, 1")
    a("ds_add_u32 v45, v13")
    a("s_mov_b64 exec, -1")
    a("s_branch K2_SL_E")
    a.label("K2_SL_NB")
    a("s_add_u32 s66, s66, 3")
    a(f"s_cmp_lt_u32 s66, {E // 64}")
    a("s_cbranch_scc1 K2_SL_BLK")
    a("s_waitcnt lgkmcnt(0)")
    a("s_barrier")
    a("v_mov_b32 v2, v0")
    a("s_mov_b32 s66, 0")
    a.label("K2_SL_CV")
    a("v_cmp_gt_u32 vcc, 5120, v2")
    a("s_and_saveexec_b64 s[68:69], vcc")
    a("v_lshlrev_b32 v3, 3, v2")
    a("ds_read_b64 v[4:5], v3")
    a("v_lshrrev_b32 v6, 7, v2")
    a(f"v_mul_u32_u24 v6, {HSTR}, v6")
    a("v_and_b32 v7, 127, v2")
    a("v_lshl_add_u32 v6, v7, 2, v6")
    a(f"v_add_u32 v6, {HIMG}, v6")
    a("s_waitcnt lgkmcnt(0)")
    a("v_cvt_pk_bf16_f32 v4, v4, v5")
    a("ds_write_b32 v6, v4")
    a("s_mov_b64 exec, -1")
    a("v_add_u32 v2, 768, v2")
    a("s_add_u32 s66, s66, 1")
    a("s_cmp_lt_u32 s66, 7")
    a("s_cbranch_scc1 K2_SL_CV")
    a("s_branch K2_FIN")
    a.loop = (loop_start, loop_end)
    return a, NV2, 100
```

```python
import sys, re
from asmlib import *
from k1 import *
from k2 import *

def build(opt):
    hdr = open("standalone__edge_featured_mpnn_mpnn__graph.s.ref").read().split("\n")
    hdr = [l for l in hdr if l.startswith(";")][:12]
    out = "\n".join(hdr) + "\n"
    out += f"; @launch kernel=mpnn_pre_kernel grid=({K1_WGS},1,1) block=(512,1,1) lds={K1_LDS}\n"
    if not opt.get("k1only"):
        out += f"; @launch kernel=mpnn_main_kernel grid=(256,1,1) block=(768,1,1) lds={K2_LDS}\n"
    out += '.amdgcn_target "amdgcn-amd-amdhsa--gfx950"\n.text\n'
    ks = [("mpnn_pre_kernel",) + gen_k1(), ("mpnn_main_kernel",) + gen_k2(opt)]
    errs = []
    for name, a, nv, ns in ks:
        errs += check_hazards(a.lines, name)
        if hasattr(a, "loop"):
            b = a.lines[a.loop[0]:a.loop[1]]
            errs += check_hazards(b[-40:] + b[:40], name + " backedge")
        out += f".globl {name}\n.p2align 8\n.type {name},@function\n" + a.text()
    out += '.section .rodata,"a"\n'
    for name, a, nv, ns in ks:
        out += f""".p2align 6
.amdhsa_kernel {name}
  .amdhsa_next_free_vgpr {nv}
  .amdhsa_next_free_sgpr {ns}
  .amdhsa_accum_offset {(nv + 3) // 4 * 4}
  .amdhsa_group_segment_fixed_size 0
  .amdhsa_kernarg_size 88
  .amdhsa_user_sgpr_count 2
  .amdhsa_user_sgpr_kernarg_segment_ptr 1
  .amdhsa_system_sgpr_workgroup_id_x 1
  .amdhsa_float_denorm_mode_32 3
.end_amdhsa_kernel
"""
    return out, errs

if __name__ == "__main__":
    opt = {}
    dst = "standalone__edge_featured_mpnn_mpnn__graph.s"
    for x in sys.argv[1:]:
        if x.endswith(".s"): dst = x
        else:
            k, _, val = x.partition("=")
            opt[k] = int(val) if val else 1
    out, errs = build(opt)
    for e in errs: print(e)
    open(dst, "w").write(out)
    print("wrote", dst, len(out), "bytes; hazards:", len(errs))
```

```python
from asmlib import *

N = 10000; E = 320000
P_OFF = 0
Q_OFF = 0x500000
CELL_OFF = 0xA00000
W2F_OFF = 0xE00000
WCF_OFF = 0xE10000
NSORT = 128
CHUNK = 2500
NGEMM = 157
K1_WGS = NSORT + 2 * NGEMM
K1_LDS = 81920
NEGLOG2E = 0xBFB8AA3B
OVF = 0xFFFFFFFE

def srd(a, r, lo, hi, size):
    a(f"s_mov_b32 s{r}, {lo}")
    a(f"s_mov_b32 s{r+1}, {hi}")
    a(f"s_mov_b32 s{r+2}, {size}")
    a(f"s_mov_b32 s{r+3}, 0x00020000")

def srd_ws(a, r, wslo, off, size):
    a(f"s_add_u32 s{r}, s{wslo}, {off}")
    a(f"s_addc_u32 s{r+1}, s{wslo+1}, 0")
    a(f"s_mov_b32 s{r+2}, {size}")
    a(f"s_mov_b32 s{r+3}, 0x00020000")

STAMPV = 150
def stamp(a, opt, idx, vreg=STAMPV, sreg=96):
    if not opt.get("stamps"): return
    a(f"s_memrealtime s[{sreg}:{sreg+1}]")
    a("s_waitcnt lgkmcnt(0)")
    a(f"v_writelane_b32 v{vreg}, s{sreg}, {idx}")
def stamp_clk(a, opt, idx, vreg=STAMPV, sreg=96):
    if not opt.get("stamps"): return
    a(f"s_memtime s[{sreg}:{sreg+1}]")
    a("s_waitcnt lgkmcnt(0)")
    a(f"v_writelane_b32 v{vreg}, s{sreg}, {idx}")
def stamp_out(a, opt, wslo, off, wavereg, vreg=STAMPV, sreg=96, tmpv=151):
    if not opt.get("stamps"): return
    a(f"s_add_u32 s{sreg}, s{wslo}, {off}")
    a(f"s_addc_u32 s{sreg+1}, s{wslo+1}, 0")
    a(f"s_mov_b32 s{sreg+2}, 0x80000")
    a(f"s_mov_b32 s{sreg+3}, 0x00020000")
    a(f"s_lshl_b32 s100, s2, 4")
    a(f"s_add_u32 s100, s100, s{wavereg}")
    a(f"s_lshl_b32 s100, s100, 6")
    a(f"v_mbcnt_lo_u32_b32 v{tmpv}, -1, 0")
    a(f"v_lshlrev_b32 v{tmpv}, 2, v{tmpv}")
    a("s_mov_b64 exec, 0xffff")
    a(f"buffer_store_dword v{vreg}, v{tmpv}, s[{sreg}:{sreg+3}], s100 offen")
    a("s_mov_b64 exec, -1")

def gen_k1(opt=None):
    opt = opt or {}
    SV = 120
    a = Asm()
    a.label("mpnn_pre_kernel")
    a(f"s_cmp_ge_u32 s2, {K1_WGS}")
    a("s_cbranch_scc1 K1_END")
    if opt.get("stamps"): a(f"v_mov_b32 v{SV}, 0")
    stamp(a, opt, 0, SV)
    a("s_load_dwordx16 s[4:19], s[0:1], 0")
    a("s_load_dwordx2 s[20:21], s[0:1], 80")
    a("v_lshrrev_b32 v1, 6, v0")
    a("v_and_b32 v2, 63, v0")
    a("v_readfirstlane_b32 s22, v1")
    a(f"s_cmp_lt_u32 s2, {NSORT}")
    a("s_cbranch_scc1 K1_SORT")
    XI = 65536
    a(f"s_sub_u32 s23, s2, {NSORT}")
    a("s_and_b32 s24, s23, 1")
    a("s_lshr_b32 s25, s23, 1")
    a("s_lshr_b32 s26, s22, 2")
    a("s_and_b32 s27, s22, 3")
    a("v_lshrrev_b32 v5, 5, v2")
    a("v_and_b32 v6, 31, v2")
    a("v_lshlrev_b32 v7, 2, v5")
    a("v_xor_b32 v7, v7, v6")
    a("v_lshlrev_b32 v7, 4, v7")
    a("v_lshl_add_u32 v3, v5, 9, v7")
    a("v_xor_b32 v4, 0x80, v3")
    a("v_lshrrev_b32 v10, 4, v2")
    a("s_lshl_b32 s44, s22, 3")
    a("v_add_u32 v10, s44, v10")
    a("v_xor_b32 v11, v10, v2")
    a("v_and_b32 v11, 15, v11")
    a("v_lshlrev_b32 v11, 4, v11")
    a("v_lshl_add_u32 v8, v10, 8, v11")
    a("v_xor_b32 v9, 64, v8")
    a("s_lshl_b32 s45, s22, 13")
    a("s_lshl_b32 s46, s24, 16")
    a("s_add_u32 s46, s46, s45")
    a("s_add_u32 s47, s46, 4096")
    a("s_lshl_b32 s48, s25, 14")
    a("s_waitcnt lgkmcnt(0)")
    srd(a, 28, "s12", "s13", 272 * 512)
    srd(a, 32, "s4", "s5", N * 256)
    a("s_lshl_b32 s49, s22, 11")
    a(f"s_add_u32 m0, s49, {XI}")
    a("s_nop 0")
    a("buffer_load_dwordx4 v8, s[32:35], s48 offen lds")
    a("buffer_load_dwordx4 v9, s[32:35], s48 offen offset:1024 lds")
    a("s_mov_b32 m0, s45")
    a("s_nop 0")
    for k in range(4):
        a(f"buffer_load_dwordx4 v{3 + (k & 1)}, s[28:31], s46 offen offset:{k*1024} lds")
    a("s_add_u32 m0, s45, 4096")
    a("s_nop 0")
    for k in range(4):
        a(f"buffer_load_dwordx4 v{3 + (k & 1)}, s[28:31], s47 offen offset:{k*1024} lds")
    a("s_mov_b32 s40, s14")
    a("s_mov_b32 s41, s15")
    a("s_lshl_b32 s42, s24, 9")
    a("s_mov_b32 s43, 0x00020000")
    a("v_lshlrev_b32 v12, 1, v6")
    a("s_lshl_b32 s50, s27, 7")
    a("buffer_load_ushort v14, v12, s[40:43], s50 offen")
    a("buffer_load_ushort v15, v12, s[40:43], s50 offen offset:64")
    a(f"s_mul_i32 s51, s24, {Q_OFF}")
    a("s_add_u32 s36, s20, s51")
    a("s_addc_u32 s37, s21, 0")
    a("s_lshl_b32 s51, s24, 9")
    a(f"s_sub_u32 s38, {(N+1)*512}, s51")
    a("s_mov_b32 s39, 0x00020000")
    a("v_and_b32 v17, 15, v2")
    a("v_xor_b32 v17, v17, v5")
    a("v_lshlrev_b32 v17, 4, v17")
    a("v_lshl_add_u32 v16, v6, 8, v17")
    a("s_lshl_b32 s51, s26, 13")
    a(f"s_add_u32 s51, s51, {XI}")
    a("v_add_u32 v16, s51, v16")
    for sidx in range(1, 8):
        a(f"v_xor_b32 v{16+sidx}, {sidx << 5}, v16")
    a("v_bfe_u32 v26, v2, 2, 2")
    a("v_lshl_add_u32 v27, v5, 3, v26")
    a("v_and_b32 v28, 3, v2")
    a("v_lshlrev_b32 v28, 3, v28")
    a("v_bfe_u32 v29, v2, 4, 1")
    a("v_lshl_add_u32 v28, v29, 5, v28")
    a("v_add_u32 v28, s50, v28")
    a("v_lshlrev_b32 v26, 6, v26")
    a("v_xor_b32 v28, v28, v26")
    a("v_lshl_add_u32 v24, v27, 9, v28")
    a("v_xor_b32 v25, 64, v24")
    a("v_lshlrev_b32 v13, 2, v6")
    a("v_lshl_add_u32 v13, v5, 11, v13")
    a("v_add_u32 v13, s50, v13")
    a("s_lshl_b32 s52, s25, 15")
    a("s_lshl_b32 s51, s26, 14")
    a("s_add_u32 s52, s52, s51")
    a("s_add_u32 s53, s52, 4096")
    a("s_add_u32 s54, s52, 8192")
    a("s_add_u32 s55, s52, 12288")
    a(f"s_mov_b32 s56, {NEGLOG2E:#x}")
    stamp(a, opt, 1, SV)
    a("s_waitcnt vmcnt(0)")
    stamp(a, opt, 2, SV)
    a("s_barrier")
    AF = 32; BF = 48; DA = 80; DB = 96
    def reads(sidx):
        st = sidx & 3
        a(f"ds_read_b128 {v(AF+4*st,4)}, v{16+sidx}")
        for X in range(2):
            for e in range(2):
                a(f"ds_read_b64_tr_b16 {v(BF+8*st+4*X+2*e,2)}, v{24+X} offset:{sidx*8192+e*2048}")
    reads(0); reads(1); reads(2)
    a("v_lshlrev_b32 v14, 16, v14")
    a("v_lshlrev_b32 v15, 16, v15")
    a("v_mul_f32 v14, s56, v14")
    a("v_mul_f32 v15, s56, v15")
    for sidx in range(8):
        rem = min(7 - sidx, 2)
        a(f"s_waitcnt lgkmcnt({5*rem})")
        ca = "0" if sidx == 0 else v(DA, 16)
        cb = "0" if sidx == 0 else v(DB, 16)
        st = sidx & 3
        a(f"v_mfma_f32_32x32x16_bf16 {v(DA,16)}, {v(AF+4*st,4)}, {v(BF+8*st,4)}, {ca}")
        a(f"v_mfma_f32_32x32x16_bf16 {v(DB,16)}, {v(AF+4*st,4)}, {v(BF+8*st+4,4)}, {cb}")
        if sidx + 3 < 8: reads(sidx + 3)
    a("s_nop 11")
    stamp(a, opt, 3, SV)
    for r in range(16):
        a(f"v_fma_f32 v{DA+r}, v{DA+r}, s56, v14")
        a(f"v_fma_f32 v{DB+r}, v{DB+r}, s56, v15")
        a(f"v_cvt_pk_bf16_f32 v{AF+r}, v{DA+r}, v{DB+r}")
        a(f"buffer_store_dword v{AF+r}, v13, s[36:39], s{52 + (r >> 2)} offen offset:{(r & 3)*512}")
    stamp(a, opt, 4, SV)
    if opt.get("stamps"): a("s_waitcnt vmcnt(0)")
    stamp(a, opt, 5, SV)
    stamp_out(a, opt, 20, 0xF00000, 22, SV, tmpv=121)
    a("s_endpgm")
    a.label("K1_SORT")
    CNT = 32768
    a("v_lshlrev_b32 v3, 2, v0")
    a("v_add_u32 v4, 4096, v3")
    a("v_add_u32 v5, 8192, v3")
    a(f"s_mul_i32 s23, s2, {CHUNK*4}")
    a("v_mov_b32 v24, -1\nv_mov_b32 v25, -1\nv_mov_b32 v26, -1\nv_mov_b32 v27, -1")
    a("v_mov_b32 v28, 0")
    a("v_lshlrev_b32 v6, 4, v0")
    a("v_and_b32 v40, 15, v2")
    a("v_lshlrev_b32 v40, 1, v40")
    a("v_lshrrev_b32 v41, 4, v2")
    a("v_lshl_add_u32 v40, v41, 10, v40")
    a("v_add_u32 v41, 8192, v40")
    a("v_and_b32 v42, 1, v2")
    a("v_lshlrev_b32 v42, 6, v42")
    a("v_and_b32 v43, 30, v2")
    a("v_add_u32 v42, v42, v43")
    a("v_lshrrev_b32 v43, 5, v2")
    a("v_lshl_add_u32 v42, v43, 12, v42")
    a("s_waitcnt lgkmcnt(0)")
    srd(a, 28, "s8", "s9", E * 4)
    srd(a, 32, "s10", "s11", E * 4)
    srd(a, 44, "s16", "s17", 256 * 256)
    srd(a, 48, "s12", "s13", 272 * 512)
    a("s_cmp_lg_u32 s22, 0")
    a("s_cbranch_scc1 K1_NOPREP")
    a("s_cmp_ge_u32 s2, 64")
    a("s_cbranch_scc1 K1_PREPC")
    a("s_bfe_u32 s24, s2, 0x20001")
    a("s_lshl_b32 s24, s24, 14")
    a("s_and_b32 s25, s2, 1")
    a("s_lshl_b32 s25, s25, 12")
    a("s_add_u32 s24, s24, s25")
    a("s_lshr_b32 s25, s2, 3")
    a("s_lshl_b32 s25, s25, 5")
    a("s_add_u32 s24, s24, s25")
    for e in range(8):
        a(f"buffer_load_ushort v{48+e}, v{40 + (e & 1)}, s[44:47], s24 offen offset:{(e >> 1)*256}")
    a("s_branch K1_NOPREP")
    a.label("K1_PREPC")
    a("s_cmp_ge_u32 s2, 72")
    a("s_cbranch_scc1 K1_NOPREP")
    a("s_bfe_u32 s24, s2, 0x20001")
    a("s_lshl_b32 s24, s24, 7")
    a("s_and_b32 s25, s2, 1")
    a("s_lshl_b32 s25, s25, 5")
    a("s_add_u32 s24, s24, s25")
    a(f"s_add_u32 s24, s24, {256*512}")
    for e in range(8):
        a(f"buffer_load_ushort v{48+e}, v42, s[48:51], s24 offen offset:{e*512}")
    a.label("K1_NOPREP")
    for i in range(5):
        a(f"buffer_load_dword v{10+i}, v{3 + (i >> 1)}, s[32:35], s23 offen offset:{(i & 1)*2048}")
    for i in range(5):
        a(f"buffer_load_dword v{16+i}, v{3 + (i >> 1)}, s[28:31], s23 offen offset:{(i & 1)*2048}")
    for i in range(4):
        a(f"ds_write_b128 v6, v[24:27] offset:{i*8192}")
    a(f"ds_write_b32 v3, v28 offset:{CNT}")
    srd_ws(a, 36, 20, CELL_OFF, 256 * 128 * 128)
    srd_ws(a, 40, 20, W2F_OFF, 0x12000)
    a("v_mov_b32 v29, 1")
    a(f"v_mov_b32 v30, {OVF - (1 << 32)}")
    a("v_lshlrev_b32 v31, 6, v0")
    a(f"v_cmp_gt_u32 vcc, {CHUNK - 2048}, v0")
    a("s_waitcnt lgkmcnt(0)")
    a("s_mov_b64 s[52:53], vcc")
    stamp(a, opt, 1, SV)
    a("s_barrier")
    if opt.get("stamps"): a("s_waitcnt vmcnt(0)")
    stamp(a, opt, 2, SV)
    for i in range(5):
        a(f"s_waitcnt vmcnt({9 - i})")
        a(f"v_and_b32 v{32+i}, 255, v{10+i}")
        a(f"v_lshlrev_b32 v{32+i}, 2, v{32+i}")
        if i == 4: a("s_mov_b64 exec, s[52:53]")
        a(f"ds_add_rtn_u32 v{60+i}, v{32+i}, v29 offset:{CNT}")
        if i == 4: a("s_mov_b64 exec, -1")
    for i in range(5):
        a(f"s_waitcnt vmcnt({4 - i})")
        a(f"v_lshrrev_b32 v{10+i}, 8, v{10+i}")
        a(f"v_lshl_or_b32 v{10+i}, v{16+i}, 18, v{10+i}")
        a(f"v_add_u32 v{16+i}, {i*32768}, v31")
        a(f"v_or_b32 v{10+i}, v{10+i}, v{16+i}")
        a(f"v_and_b32 v{16+i}, 28, v{32+i}")
        a(f"v_lshlrev_b32 v{16+i}, 2, v{16+i}")
    for i in range(5):
        a(f"s_waitcnt lgkmcnt({4 - i})" if i == 0 else f"s_waitcnt lgkmcnt(4)")
        a(f"v_cmp_lt_u32 vcc, 30, v{60+i}")
        a(f"v_min_u32 v{60+i}, 31, v{60+i}")
        a(f"v_lshlrev_b32 v{60+i}, 2, v{60+i}")
        a(f"v_cndmask_b32 v{10+i}, v{10+i}, v30, vcc")
        a(f"v_xor_b32 v{60+i}, v{60+i}, v{16+i}")
        a(f"v_lshl_add_u32 v{60+i}, v{32+i}, 5, v{60+i}")
        if i == 4: a("s_mov_b64 exec, s[52:53]")
        a(f"ds_write_b32 v{60+i}, v{10+i}")
        if i == 4: a("s_mov_b64 exec, -1")
    a("v_lshrrev_b32 v3, 3, v0")
    a("v_xor_b32 v4, v3, v0")
    a("v_and_b32 v4, 7, v4")
    a("v_lshlrev_b32 v4, 4, v4")
    a("v_lshl_add_u32 v4, v3, 7, v4")
    a("v_and_b32 v5, 7, v0")
    a("v_lshlrev_b32 v5, 4, v5")
    a("v_lshl_add_u32 v5, v3, 14, v5")
    a("s_lshl_b32 s24, s2, 7")
    for i in range(1, 4):
        a(f"s_add_u32 s{24+i}, s24, {i << 20}")
    a("s_waitcnt lgkmcnt(0)")
    a("s_barrier")
    stamp(a, opt, 3, SV)
    for i in range(4):
        a(f"ds_read_b128 {v(64+4*i,4)}, v4 offset:{i*8192}")
    for i in range(4):
        a(f"s_waitcnt lgkmcnt({3 - i})")
        a(f"buffer_store_dwordx4 {v(64+4*i,4)}, v5, s[36:39], s{24+i} offen")
    stamp(a, opt, 4, SV)
    if opt.get("stamps"): a("s_waitcnt vmcnt(0)")
    stamp(a, opt, 5, SV)
    stamp_out(a, opt, 20, 0xF00000, 22, SV, tmpv=121)
    a("s_cmp_lg_u32 s22, 0")
    a("s_cbranch_scc1 K1_END")
    a("s_cmp_ge_u32 s2, 72")
    a("s_cbranch_scc1 K1_END")
    a("v_lshlrev_b32 v6, 4, v2")
    a("s_lshl_b32 s24, s2, 10")
    a("s_cmp_ge_u32 s2, 64")
    a("s_cbranch_scc1 K1_FINC")
    for e in range(4):
        a(f"v_lshl_or_b32 v{56+e}, v{49+2*e}, 16, v{48+2*e}")
    a("buffer_store_dwordx4 v[56:59], v6, s[40:43], s24 offen")
    a("s_endpgm")
    a.label("K1_FINC")
    a(f"s_mov_b32 s25, {NEGLOG2E:#x}")
    for e in range(8):
        a(f"v_lshlrev_b32 v{48+e}, 16, v{48+e}")
        a(f"v_mul_f32 v{48+e}, s25, v{48+e}")
    for e in range(4):
        a(f"v_cvt_pk_bf16_f32 v{56+e}, v{48+2*e}, v{49+2*e}")
    a("buffer_store_dwordx4 v[56:59], v6, s[40:43], s24 offen")
    a.label("K1_END")
    a("s_endpgm")
    return a, (128 if opt.get('stamps') else 112), (102 if opt.get('stamps') else 64)
```

```python
from asmlib import *
from k1 import *

NW = 12
ERING = 0; QIMG = 0
PSLOT = 24576
OH = 73728
ZERO = 122880
IDX = 126976
EOFF = IDX + 8192
HIMG = 142336
HSTR = 528
FLAG = 163456
CNT = 163584
K2_LDS = 163840
GCAP = 48
KILL = 0x40000000
NEGLN2 = 0xBF317218

aAP = 2; aAE = 6; aAO = 7; aS1 = 8; aS2 = 9; aIDX = 10; aEOFF = 11; eLane = 12; eVal = 13; CHK = 14
D = [16, 32]; EX = 48; ACC = 64; BC = [80, 84]; BQ = [88, 92]; ID = [96, 100]
AE = 104; AO = 108; S = 112; AP = [116, 120, 124, 128]; HQ = 132; IX = [136, 138, 140, 142]
NV2 = 144

def pr(r): return v(r, 2)
def q4(r): return v(r, 4)
def x16(r): return v(r, 16)

def mf_tile(Y):
    d = D[Y]
    return [f"v_mfma_f32_32x32x16_bf16 {x16(d)}, {q4(AE)}, {q4(BC[Y])}, 0",
            f"v_mfma_f32_32x32x16_bf16 {x16(d)}, {q4(AO)}, {q4(BQ[Y])}, {x16(d)}",
            f"v_mfma_f32_32x32x16_bf16 {x16(d)}, {q4(AP[2*Y])}, {q4(ID[0])}, {x16(d)}",
            f"v_mfma_f32_32x32x16_bf16 {x16(d)}, {q4(AP[2*Y+1])}, {q4(ID[1])}, {x16(d)}"]
SEGSUM = f"v_mfma_f32_32x32x16_bf16 {x16(ACC)}, {q4(HQ)}, {q4(S)}, {x16(ACC)}"

def tile(X, mf, ex_exp, mid, ex_rcp):
    d = D[X]; out = []; mi = 0
    for i in range(16):
        if i % 3 == 0 and mi < len(mf):
            out.append(mf[mi]); mi += 1
        out.append(f"v_exp_f32 v{EX+i}, v{d+i}")
        out += ex_exp.get(i, [])
    out += mid
    NAB, NCD, DAB, DCD = d, d + 8, EX, EX + 8
    out.append(f"v_pk_add_f32 {pr(DAB)}, {pr(EX)}, 1.0 op_sel_hi:[1,0]")
    out.append(f"v_pk_add_f32 {pr(DCD)}, {pr(EX+8)}, 1.0 op_sel_hi:[1,0]")
    for k in range(1, 4):
        out.append(f"v_pk_fma_f32 {pr(NAB)}, {pr(NAB)}, {pr(EX+2*k)}, {pr(NAB)}")
        out.append(f"v_pk_fma_f32 {pr(NCD)}, {pr(NCD)}, {pr(EX+8+2*k)}, {pr(NCD)}")
        out.append(f"v_pk_fma_f32 {pr(NAB)}, {pr(d+2*k)}, {pr(DAB)}, {pr(NAB)}")
        out.append(f"v_pk_fma_f32 {pr(NCD)}, {pr(d+8+2*k)}, {pr(DCD)}, {pr(NCD)}")
        out.append(f"v_pk_fma_f32 {pr(DAB)}, {pr(DAB)}, {pr(EX+2*k)}, {pr(DAB)}")
        out.append(f"v_pk_fma_f32 {pr(DCD)}, {pr(DCD)}, {pr(EX+8+2*k)}, {pr(DCD)}")
    out.append(f"v_pk_fma_f32 {pr(CHK)}, {pr(DAB)}, {pr(DCD)}, {pr(CHK)}")
    out += ex_rcp
    for r in (DAB, DAB + 1, DCD, DCD + 1):
        out.append(f"v_rcp_f32 v{r}, v{r}")
    out.append(f"v_pk_mul_f32 {pr(NAB)}, {pr(NAB)}, {pr(DAB)}")
    out.append(f"v_pk_mul_f32 {pr(NCD)}, {pr(NCD)}, {pr(DCD)}")
    out.append(f"v_cvt_pk_bf16_f32 v{HQ+2*X}, v{NAB}, v{NAB+1}")
    out.append(f"v_cvt_pk_bf16_f32 v{HQ+2*X+1}, v{NCD}, v{NCD+1}")
    return out

def p_dma():
    out = []
    for k in range(4):
        out.append(f"s_add_u32 m0, s57, {k*1024}")
        out.append("s_nop 0")
        out.append(f"buffer_load_dwordx4 {pr(IX[k])}, s[32:35], s58 idxen offen lds")
    return out

def e_dma():
    return [f"v_add_u32 v{eVal}, v{eVal}, v{eLane}",
            "s_cmp_lt_u32 s61, s53",
            f"s_cselect_b32 s60, 0, {KILL:#x}",
            "s_mov_b32 m0, s59",
            "s_add_u32 s61, s61, 4",
            f"buffer_load_dwordx4 v{eVal}, s[28:31], s60 offen nt lds",
            "s_xor_b32 s59, s59, 4096"]

def gen_k2(opt=None):
    opt = opt or {}
    a = Asm()
    a.label("mpnn_main_kernel")
    a("s_cmp_ge_u32 s2, 256")
    a("s_cbranch_scc1 K2_END")
    if opt.get("stamps"): a(f"v_mov_b32 v{STAMPV}, 0")
    stamp(a, opt, 0)
    a("s_load_dwordx16 s[4:19], s[0:1], 0")
    a("s_load_dwordx2 s[20:21], s[0:1], 64")
    a("s_load_dwordx2 s[22:23], s[0:1], 80")
    a("v_lshrrev_b32 v16, 6, v0")
    a("v_and_b32 v1, 63, v0")
    a("v_readfirstlane_b32 s24, v16")
    a("s_mov_b32 s66, 43691")
    a("v_mul_u32_u24 v16, s66, v0")
    a("v_lshrrev_b32 v16, 18, v16")
    a("v_mul_u32_u24 v17, 6, v16")
    a("v_sub_u32 v17, v0, v17")
    a("v_lshlrev_b32 v17, 4, v17")
    a("v_lshl_add_u32 v18, v16, 7, v17")
    a("v_lshrrev_b32 v21, 1, v0")
    a("v_and_b32 v19, 1, v0")
    a("v_lshlrev_b32 v19, 4, v19")
    a("v_lshl_add_u32 v19, v21, 7, v19")
    a("v_lshrrev_b32 v22, 5, v1")
    a("v_and_b32 v23, 31, v1")
    a("v_lshlrev_b32 v20, 4, v23")
    a("v_lshl_add_u32 v20, v22, 17, v20")
    a("v_lshlrev_b32 v32, 4, v1")
    a("s_and_b32 s25, s24, 3")
    a("s_lshr_b32 s26, s24, 2")
    a("s_lshl_b32 s66, s2, 14")
    a("s_cmp_lt_u32 s24, 4")
    a(f"s_cselect_b32 s67, s66, {KILL:#x}")
    a("s_lshl_b32 s68, s2, 9")
    a("s_lshl_b32 s69, s24, 18")
    a("s_add_u32 s68, s68, s69")
    a(f"s_add_u32 s69, s68, {12 << 18}")
    a("s_lshl_b32 s72, s25, 11")
    a(f"s_add_u32 s72, s72, {WCF_OFF - CELL_OFF}")
    a("s_lshl_b32 s73, s24, 10")
    a("s_waitcnt lgkmcnt(0)")
    srd_ws(a, 40, 22, CELL_OFF, 0x412000)
    srd_ws(a, 36, 22, Q_OFF, N * 512)
    a("buffer_load_dwordx4 v[24:27], v18, s[40:43], s66 offen")
    a("buffer_load_dwordx4 v[28:31], v19, s[40:43], s67 offen offset:96")
    a("s_mov_b32 m0, s73")
    a("s_nop 0")
    a("buffer_load_dwordx4 v20, s[36:39], s68 offen lds")
    a(f"s_add_u32 m0, s73, {12*1024}")
    a("s_nop 0")
    a("buffer_load_dwordx4 v20, s[36:39], s69 offen lds")
    a(f"buffer_load_dwordx4 {q4(BC[0])}, v32, s[40:43], s72 offen")
    a(f"buffer_load_dwordx4 {q4(BC[1])}, v32, s[40:43], s72 offen offset:1024")
    a("v_lshlrev_b32 v33, 4, v0")
    a(f"v_add_u32 v33, {OH}, v33")
    a(f"v_add_u32 v34, {4*12288}, v33")
    for i in range(4): a(f"v_mov_b32 v{36+i}, 0")
    for i in range(4): a(f"ds_write_b128 v33, v[36:39] offset:{i*12288}")
    a(f"ds_write_b128 v34, v[36:39] offset:{2*12288}")
    a("s_cmp_lt_u32 s24, 4")
    a(f"s_cselect_b32 s66, 0, {N}")
    a("s_cbranch_scc0 K2_I1")
    a(f"ds_write_b128 v34, v[36:39] offset:{3*12288}")
    a.label("K2_I1")
    a("s_cmp_lt_u32 s24, 7")
    a(f"s_cselect_b32 s67, {KILL:#x}, 0")
    for i in range(4): a(f"v_mov_b32 v{40+i}, s66")
    for i in range(4): a(f"v_mov_b32 v{44+i}, s67")
    a("ds_write_b128 v34, v[40:43]")
    a(f"ds_write_b128 v34, v[44:47] offset:12288")
    srd(a, 28, "s6", "s7", E * 32)
    a("s_mov_b32 s32, s22")
    a("s_and_b32 s33, s23, 0xffff")
    a(f"s_or_b32 s33, s33, {512 << 16:#x}")
    a(f"s_mov_b32 s34, {N+1}")
    a("s_mov_b32 s35, 0x00020000")
    srd(a, 44, "s20", "s21", N * 256)
    srd(a, 48, "s18", "s19", 256)
    a("s_mov_b32 s70, 0")
    a("v_and_b32 v48, 16, v23")
    a("v_and_b32 v49, 4, v23")
    a("v_lshl_or_b32 v48, v49, 1, v48")
    a("v_and_b32 v49, 1, v23")
    a("v_lshl_or_b32 v48, v49, 2, v48")
    a("v_bfe_u32 v49, v23, 3, 1")
    a("v_lshl_or_b32 v48, v49, 1, v48")
    a("v_bfe_u32 v49, v23, 1, 1")
    a("v_or_b32 v48, v48, v49")
    a("s_lshl_b32 s57, s24, 12")
    a(f"s_add_u32 s57, s57, {PSLOT}")
    a("s_lshl_b32 s58, s25, 7")
    a("v_bfe_u32 v49, v48, 1, 3")
    a("v_xor_b32 v49, v49, v22")
    a("v_lshlrev_b32 v49, 4, v49")
    a(f"v_lshl_add_u32 v{aAP}, v48, 7, v49")
    a(f"v_add_u32 v{aAP}, s57, v{aAP}")
    for m in range(1, 4): a(f"v_xor_b32 v{aAP+m}, {m << 5}, v{aAP}")
    a("v_bfe_u32 v49, v48, 3, 1")
    a("v_xor_b32 v49, v49, v22")
    a("v_lshlrev_b32 v49, 4, v49")
    a(f"v_lshl_add_u32 v{aAE}, v48, 5, v49")
    a("s_lshl_b32 s59, s26, 13")
    a(f"v_add_u32 v{aAE}, s59, v{aAE}")
    a("s_lshl_b32 s66, s25, 10")
    a("s_add_u32 s59, s59, s66")
    a("v_lshlrev_b32 v49, 4, v22")
    a(f"v_lshl_add_u32 v{aAO}, v48, 5, v49")
    a("v_bfe_u32 v49, v1, 3, 1")
    a("v_lshlrev_b32 v50, 9, v49")
    a("v_lshl_add_u32 v50, v22, 8, v50")
    a("v_bfe_u32 v49, v1, 2, 1")
    a("v_lshl_add_u32 v50, v49, 7, v50")
    a("v_and_b32 v51, 3, v1")
    a("v_lshl_add_u32 v50, v51, 3, v50")
    a("s_mov_b32 s62, 0xffff\ns_mov_b32 s63, 0xffff\ns_mov_b32 s64, 0xffff0000\ns_mov_b32 s65, 0xffff0000")
    a(f"v_lshrrev_b32 v49, 3, v1")
    a(f"v_lshlrev_b32 v{aIDX}, 2, v49")
    a("v_lshrrev_b32 v49, 4, v1")
    a("v_xor_b32 v49, v49, v1")
    a(f"v_and_b32 v{eLane}, 1, v49")
    a(f"v_lshlrev_b32 v{eLane}, 4, v{eLane}")
    a("v_and_b32 v49, 7, v49")
    a(f"v_lshlrev_b32 v{IX[0]+1}, 4, v49")
    a(f"v_xor_b32 v{IX[1]+1}, 64, v{IX[0]+1}")
    a(f"v_mov_b32 v{IX[2]+1}, v{IX[0]+1}")
    a(f"v_mov_b32 v{IX[3]+1}, v{IX[1]+1}")
    a(f"v_lshrrev_b32 v49, 1, v1")
    a(f"v_lshlrev_b32 v{aEOFF}, 2, v49")
    a("v_and_b32 v49, 1, v1")
    a("v_lshlrev_b32 v49, 4, v49")
    a("v_mov_b32 v52, 0x3f80")
    a("v_lshlrev_b32 v52, v49, v52")
    a("v_lshrrev_b32 v49, 1, v23")
    a("v_lshlrev_b32 v53, 2, v22")
    a("v_sub_u32 v49, v49, v53")
    for mm in range(2):
        for rho in range(4):
            a(f"v_cmp_eq_u32 s[{74+2*(rho&1)}:{75+2*(rho&1)}], {8*mm+rho}, v49")
            if rho & 1:
                a("s_nop 0")
                a(f"v_cndmask_b32 v{ID[mm]+rho-1}, 0, v52, s[74:75]")
                a(f"v_cndmask_b32 v{ID[mm]+rho}, 0, v52, s[76:77]")
    a("s_mul_i32 s71, s26, 12")
    a("v_bfe_u32 v49, v1, 2, 2")
    a("v_lshl_add_u32 v49, v22, 3, v49")
    a("v_subrev_u32 v49, s71, v49")
    a("v_add_u32 v53, 4, v49")
    a("v_and_b32 v49, 15, v49")
    a("v_and_b32 v53, 15, v53")
    a("v_add_u32 v49, s71, v49")
    a("v_add_u32 v53, s71, v53")
    a("v_bfe_u32 v56, v1, 4, 1")
    a("v_lshlrev_b32 v56, 5, v56")
    a("v_lshl_add_u32 v56, v51, 3, v56")
    a("v_add_u32 v56, s58, v56")
    a("v_lshl_add_u32 v54, v49, 9, v56")
    a("v_lshl_add_u32 v55, v53, 9, v56")
    a(f"s_mov_b32 s66, {CHUNK*32}")
    a("v_mul_lo_u32 v16, s66, v16")
    a("v_mul_lo_u32 v21, s66, v21")
    a("v_mov_b32 v17, 1")
    a("v_mov_b32 v18, 0x3f80")
    a(f"v_lshlrev_b32 v19, 2, v1")
    a(f"v_add_u32 v19, {CNT}, v19")
    a(f"s_mov_b32 s78, {CNT}")
    a(f"s_mov_b32 s79, {IDX}")
    a(f"s_mov_b32 s80, {OH}")
    a(f"v_mov_b32 v{CHK}, 0\nv_mov_b32 v{CHK+1}, 0")
    for i in range(4): a(f"v_mov_b32 v{HQ+i}, 0")
    for i in range(4): a(f"v_mov_b32 v{S+i}, 0")
    a("s_mov_b32 s81, 0")
    a("s_waitcnt lgkmcnt(0)")
    stamp(a, opt, 1)
    a("s_barrier")
    a("s_waitcnt vmcnt(4)")
    stamp(a, opt, 2)
    def count(base, abase, rbase):
        for k in range(4):
            a(f"v_and_b32 v{abase+k}, 63, v{base+k}")
            a(f"v_lshl_add_u32 v{abase+k}, v{abase+k}, 2, s78")
        for k in range(4):
            a(f"v_cmpx_gt_u32 vcc, -2, v{base+k}")
            a(f"ds_add_rtn_u32 v{rbase+k}, v{abase+k}, v17")
        a("s_mov_b64 exec, -1")
    count(24, 32, 40)
    a("s_cmp_ge_u32 s24, 4")
    a("s_cbranch_scc1 K2_C1")
    a("v_cmp_ne_u32 vcc, -1, v28")
    a("s_nop 1")
    a("s_cbranch_vccz K2_C1")
    a("s_mov_b32 s81, 1")
    count(28, 36, 44)
    a(f"v_mov_b32 v57, {FLAG}")
    a("v_cmpx_eq_u32 vcc, -2, v31")
    a("ds_write_b32 v57, v17")
    a("s_mov_b64 exec, -1")
    a.label("K2_C1")
    a("s_waitcnt vmcnt(0) lgkmcnt(0)")
    a("s_barrier")
    stamp(a, opt, 3)
    a("ds_read_b32 v57, v19")
    a(f"v_mov_b32 v58, {FLAG}")
    a("ds_read_b32 v58, v58")
    for X in range(2):
        for e in range(2):
            a(f"ds_read_b64_tr_b16 {pr(BQ[X]+2*e)}, v{54+e} offset:{X*64}")
    for i in range(16): a(f"v_mov_b32 v{ACC+i}, 0")
    a("s_waitcnt lgkmcnt(4)")
    a("v_add_u32 v57, 3, v57")
    a("v_lshrrev_b32 v57, 2, v57")
    a("v_mov_b32 v59, v57")
    a("v_readfirstlane_b32 s82, v58")
    a("s_nop 0")
    for sh in (1, 2, 4, 8):
        a(f"v_add_u32_dpp v59, v59, v59 row_shr:{sh} row_mask:0xf bank_mask:0xf bound_ctrl:0")
        a("s_nop 1")
    a("v_add_u32_dpp v59, v59, v59 row_bcast:15 row_mask:0xa bank_mask:0xf")
    a("s_nop 1")
    a("v_add_u32_dpp v59, v59, v59 row_bcast:31 row_mask:0xc bank_mask:0xf")
    a("v_sub_u32 v60, v59, v57")
    a("v_lshlrev_b32 v61, 2, v60")
    a("v_readlane_b32 s83, v59, 63")
    SB = AP[0]
    for k in range(4): a(f"ds_bpermute_b32 v{SB+k}, v{32+k}, v61")
    a("v_readlane_b32 s84, v60, 12")
    a("v_readlane_b32 s85, v60, 16")
    a("v_readlane_b32 s86, v60, 24")
    a("v_readlane_b32 s87, v60, 28")
    a("s_add_u32 s83, s83, 7")
    a("s_lshr_b32 s83, s83, 3")
    a("s_add_u32 s84, s84, 7")
    a("s_lshr_b32 s84, s84, 3")
    a("s_lshr_b32 s85, s85, 3")
    a("s_add_u32 s86, s86, 7")
    a("s_lshr_b32 s86, s86, 3")
    a("s_lshr_b32 s87, s87, 3")
    a("s_cmp_lg_u32 s82, 0")
    a("s_cbranch_scc1 K2_SLOW")
    a(f"s_cmp_gt_u32 s83, {GCAP}")
    a("s_cbranch_scc1 K2_SLOW")
    a("s_cmp_gt_u32 s84, s85")
    a("s_cbranch_scc1 K2_SLOW")
    a("s_cmp_gt_u32 s86, s87")
    a("s_cbranch_scc1 K2_SLOW")
    if opt.get("force_slow"): a("s_branch K2_SLOW")
    a("s_add_u32 s88, s83, 2")
    a("s_mul_i32 s88, s88, 171")
    a("s_lshr_b32 s88, s88, 9")
    a("s_max_u32 s88, s88, s84")
    a("s_min_u32 s88, s88, s85")
    a("s_add_u32 s89, s83, s88")
    a("s_add_u32 s89, s89, 1")
    a("s_lshr_b32 s89, s89, 1")
    a("s_max_u32 s89, s89, s86")
    a("s_min_u32 s89, s89, s87")
    a("s_sub_u32 s90, s89, s88")
    a("s_sub_u32 s91, s83, s89")
    a("s_max_u32 s54, s88, s90")
    a("s_max_u32 s54, s54, s91")
    a("s_lshr_b32 s54, s54, 2")
    a("s_mov_b32 s52, 0")
    a("s_mov_b32 s53, s88")
    a("s_cmp_eq_u32 s26, 1")
    a("s_cselect_b32 s52, s88, s52")
    a("s_cselect_b32 s53, s90, s53")
    a("s_cmp_eq_u32 s26, 2")
    a("s_cselect_b32 s52, s89, s52")
    a("s_cselect_b32 s53, s91, s53")
    def scatter(base, rbase, cbase):
        T = AP[1]
        for k in range(4):
            a(f"v_lshrrev_b32 v{T+k}, 18, v{base+k}")
            a(f"v_bfe_u32 v{T+4+k}, v{base+k}, 6, 12")
            a(f"v_lshl_add_u32 v{T+4+k}, v{T+4+k}, 5, v{cbase}")
            a(f"v_and_b32 v{T+8+k}, 15, v{base+k}")
            a(f"v_lshl_add_u32 v{T+8+k}, v{T+8+k}, 1, s80")
        a("s_waitcnt lgkmcnt(0)")
        for k in range(4):
            a(f"v_add_u32 v{SB+k}, v{SB+k}, v{rbase+k}")
            a(f"v_lshl_add_u32 v{T+8+k}, v{SB+k}, 5, v{T+8+k}")
            a(f"v_lshl_add_u32 v{SB+k}, v{SB+k}, 2, s79")
        for k in range(4):
            a(f"v_cmpx_gt_u32 vcc, -2, v{base+k}")
            a(f"ds_write2st64_b32 v{SB+k}, v{T+k}, v{T+4+k} offset0:0 offset1:32")
            a(f"ds_write_b16 v{T+8+k}, v18")
        a("s_mov_b64 exec, -1")
    scatter(24, 40, 16)
    a("s_cmp_eq_u32 s81, 0")
    a("s_cbranch_scc1 K2_S1")
    a("s_waitcnt lgkmcnt(0)")
    for k in range(4): a(f"ds_bpermute_b32 v{SB+k}, v{36+k}, v61")
    scatter(28, 44, 21)
    a.label("K2_S1")
    a("s_lshl_b32 s66, s52, 10")
    a(f"s_add_u32 s66, s66, {OH}")
    a(f"v_add_u32 v{aAO}, s66, v{aAO}")
    a("v_add_u32 v50, s66, v50")
    a(f"v_mov_b32 v49, {ZERO}")
    a(f"v_cndmask_b32 v{aS1}, v49, v50, s[62:63]")
    a(f"v_cndmask_b32 v{aS2}, v49, v50, s[64:65]")
    a("s_lshl_b32 s66, s52, 7")
    a(f"s_add_u32 s67, s66, {IDX}")
    a(f"v_add_u32 v{aIDX}, s67, v{aIDX}")
    a("s_add_u32 s67, s67, s58")
    a(f"s_add_u32 s67, s67, {EOFF - IDX}")
    a(f"v_add_u32 v{aEOFF}, s67, v{aEOFF}")
    a("s_mov_b32 s61, s25")
    a("s_mov_b32 s55, 0")
    a("s_mov_b32 s56, 0")
    a("s_waitcnt lgkmcnt(0)")
    a("s_barrier")
    stamp(a, opt, 4)
    for k in range(4): a(f"ds_read_b32 v{IX[k]}, v{aIDX} offset:{k*32}")
    a(f"ds_read_b32 v{eVal}, v{aEOFF}")
    a(f"ds_read_b32 v16, v{aEOFF} offset:512")
    a("s_waitcnt lgkmcnt(2)")
    a("\n".join(p_dma()))
    a("s_waitcnt lgkmcnt(0)")
    a("\n".join(e_dma()))
    a(f"v_mov_b32 v{eVal}, v16")
    for k in range(4): a(f"ds_read_b32 v{IX[k]}, v{aIDX} offset:{128+k*32}")
    a(f"ds_read_b128 {q4(AO)}, v{aAO}")
    a("s_waitcnt vmcnt(1)")
    stamp(a, opt, 5)
    for m in range(4): a(f"ds_read_b128 {q4(AP[m])}, v{aAP+m}")
    a("s_waitcnt lgkmcnt(0)")
    a("\n".join(p_dma()))
    a("\n".join(e_dma()))
    a("s_waitcnt vmcnt(5)")
    a("s_barrier")
    stamp(a, opt, 6)
    stamp_clk(a, opt, 12)
    a("s_cmp_eq_u32 s53, 0")
    a("s_cbranch_scc1 K2_EXIT")
    a(f"ds_read_b128 {q4(AE)}, v{aAE}")
    a("s_waitcnt lgkmcnt(0)")
    a("\n".join(mf_tile(0)))
    a("s_nop 10")
    a(".p2align 6")
    a.label("K2_LOOP")
    loop_start = len(a.lines)
    for u in range(4):
        ex0 = {}
        ex0[1] = [f"ds_read_b32 v{IX[k]}, v{aIDX} offset:{(u+2)*128+k*32}" for k in range(4)]
        mid = [f"s_waitcnt vmcnt({1 if u == 0 else 0})"]
        if u == 3:
            mid += ["s_barrier", "s_add_u32 s56, s56, 1", f"v_xor_b32 v{aAE}, 4096, v{aAE}"]
            if opt.get("prio", 1): mid += ["s_setprio 3"]
        mid += [f"ds_read_b128 {q4(AP[m])}, v{aAP+m}" for m in range(4)]
        mid += [f"ds_read_b128 {q4(AE)}, v{aAE} offset:{((u+1)&3)*1024}",
                f"ds_read_b128 {q4(AO)}, v{aAO} offset:{(u+1)*1024}"]
        if u == 3: mid += [f"ds_read_b32 v{eVal}, v{aEOFF} offset:1024"]
        elif opt.get("prio", 1): mid += [f"s_setprio {2-u}"]
        exr = ["s_add_u32 s66, s55, 2", "s_cmp_ge_u32 s66, s53", "s_waitcnt lgkmcnt(0)", f"s_cbranch_scc1 K2_ND{u}"] + p_dma() + [f"K2_ND{u}:"]
        if u == 3: exr += e_dma()
        t0 = tile(0, mf_tile(1) + [SEGSUM], ex0, mid, exr)
        ex1 = {}
        ex1[1] = [f"ds_read_b64_tr_b16 {pr(S)}, v{aS1} offset:{u*1024}", f"ds_read_b64_tr_b16 {pr(S+2)}, v{aS2} offset:{u*1024}"]
        mid1 = []
        if u == 3:
            mid1 = [f"v_add_u32 v{aAO}, 4096, v{aAO}", f"v_add_u32 v{aIDX}, 512, v{aIDX}", f"v_add_u32 v{aEOFF}, 512, v{aEOFF}",
                    "s_mov_b64 exec, s[62:63]", f"v_add_u32 v{aS1}, 4096, v{aS1}", "s_mov_b64 exec, s[64:65]", f"v_add_u32 v{aS2}, 4096, v{aS2}", "s_mov_b64 exec, -1"]
        t1 = tile(1, mf_tile(0), ex1, mid1, ["s_waitcnt lgkmcnt(0)"])
        a("\n".join(t0 + t1))
        a("s_add_u32 s55, s55, 1")
        a("s_cmp_ge_u32 s55, s53")
        if u < 3: a("s_cbranch_scc1 K2_EXIT")
        else: a("s_cbranch_scc0 K2_LOOP")
    loop_end = len(a.lines)
    a.label("K2_EXIT")
    a(SEGSUM)
    stamp(a, opt, 7)
    stamp_clk(a, opt, 13)
    if opt.get("stamps"): a(f"v_writelane_b32 v{STAMPV}, s53, 14")
    a("s_setprio 0")
    a("v_and_b32 v2, 15, v1")
    a("v_subrev_u32 v2, s71, v2")
    a("v_and_b32 v2, 15, v2")
    a("v_add_u32 v2, s71, v2")
    a(f"v_mul_u32_u24 v2, {HSTR}, v2")
    a("v_bfe_u32 v3, v1, 4, 1")
    a("v_lshl_add_u32 v2, v3, 6, v2")
    a("v_lshrrev_b32 v3, 5, v1")
    a("v_lshl_add_u32 v2, v3, 3, v2")
    a(f"s_add_u32 s66, s58, {HIMG}")
    a("v_add_u32 v2, s66, v2")
    a("s_mov_b32 s66, 0x4e800000")
    a("s_mov_b32 s67, 0x4e800000")
    a(f"v_pk_mul_f32 {pr(CHK)}, {pr(CHK)}, s[66:67]")
    a("v_mov_b32 v4, 0x207")
    a("s_nop 1")
    for k in range(8):
        a(f"v_pk_fma_f32 {pr(CHK)}, {pr(ACC+2*k)}, 0, {pr(CHK)} op_sel_hi:[1,0,1]")
        a(f"v_cvt_pk_bf16_f32 v{EX+k}, v{ACC+2*k}, v{ACC+2*k+1}")
        a(f"ds_pk_add_bf16 v2, v{EX+k} offset:{(8*(k>>1) + 2*(k&1))*2}")
    a(f"v_add_f32 v{CHK}, v{CHK}, v{CHK+1}")
    a(f"v_mov_b32 v5, {FLAG}")
    a("v_mov_b32 v6, 1")
    a(f"v_cmpx_class_f32 vcc, v{CHK}, v4")
    a("ds_write_b32 v5, v6")
    a("s_mov_b64 exec, -1")
    a.label("K2_RB")
    a("s_cmp_ge_u32 s56, s54")
    a("s_cbranch_scc1 K2_FIN")
    a("s_barrier")
    a("s_add_u32 s56, s56, 1")
    a("s_branch K2_RB")
    a.label("K2_FIN")
    WF = 16
    a("v_lshlrev_b32 v7, 4, v1")
    a("s_lshl_b32 s66, s24, 13")
    a(f"s_add_u32 s66, s66, {W2F_OFF - CELL_OFF}")
    a("s_cmp_lt_u32 s24, 8")
    a(f"s_cselect_b32 s66, s66, {KILL:#x}")
    a("s_add_u32 s67, s66, 4096")
    for sidx in range(8):
        a(f"buffer_load_dwordx4 {q4(WF+4*sidx)}, v7, s[40:43], s{66 + (sidx >> 2)} offen offset:{(sidx & 3)*1024}")
    a("v_lshrrev_b32 v8, 4, v1")
    a("v_lshlrev_b32 v9, 3, v8")
    a("s_lshl_b32 s68, s24, 5")
    a("buffer_load_dwordx2 v[10:11], v9, s[48:51], s68 offen")
    a("v_and_b32 v12, 15, v1")
    a(f"v_mul_u32_u24 v2, {HSTR}, v12")
    a("v_lshl_add_u32 v2, v8, 4, v2")
    a(f"v_add_u32 v2, {HIMG}, v2")
    a("v_min_u32 v3, 7, v12")
    a(f"v_mul_u32_u24 v3, {HSTR}, v3")
    a("v_lshl_add_u32 v3, v8, 4, v3")
    a(f"v_add_u32 v3, {HIMG + 32*HSTR}, v3")
    a("v_lshlrev_b32 v4, 2, v12")
    a(f"v_add_u32 v4, {CNT}, v4")
    a(f"v_mov_b32 v5, {FLAG}")
    a("v_lshl_add_u32 v13, v12, 16, v9")
    a("s_lshl_b32 s69, s2, 8")
    a("s_add_u32 s69, s69, s68")
    a(f"s_add_u32 s72, s69, {16 << 16}")
    a(f"s_add_u32 s73, s69, {32 << 16}")
    a(f"s_mov_b32 s74, {NEGLN2:#x}")
    a("s_waitcnt lgkmcnt(0)")
    stamp(a, opt, 8)
    a("s_barrier")
    stamp(a, opt, 9)
    a("ds_read_b32 v6, v5")
    for mt in range(3): a(f"ds_read_b32 v{112+mt}, v4 offset:{mt*64}")
    HB = 48
    def hread(sidx):
        for mt in range(3):
            r = HB + (sidx & 3) * 12 + mt * 4
            if mt < 2: a(f"ds_read_b128 {q4(r)}, v2 offset:{mt*16*HSTR + sidx*64}")
            else: a(f"ds_read_b128 {q4(r)}, v3 offset:{sidx*64}")
    hread(0); hread(1); hread(2)
    a("s_waitcnt lgkmcnt(12)")
    a("v_readfirstlane_b32 s82, v6")
    a("s_nop 0")
    a("s_andn2_b32 s82, s82, s70")
    a("s_cmp_lg_u32 s82, 0")
    a("s_cbranch_scc1 K2_SLOW")
    a("s_cmp_ge_u32 s24, 8")
    a("s_cbranch_scc1 K2_END2")
    OD = 96
    for sidx in range(8):
        rem = min(7 - sidx, 2)
        a(f"s_waitcnt vmcnt({8 - sidx}) lgkmcnt({3*rem})")
        for mt in range(3):
            r = HB + (sidx & 3) * 12 + mt * 4
            c = "0" if sidx == 0 else q4(OD + 4*mt)
            a(f"v_mfma_f32_16x16x32_bf16 {q4(OD+4*mt)}, {q4(WF+4*sidx)}, {q4(r)}, {c}")
        if sidx + 3 < 8: hread(sidx + 3)
    a("s_waitcnt vmcnt(0)")
    a("v_lshlrev_b32 v116, 16, v10")
    a("v_and_b32 v117, 0xffff0000, v10")
    a("v_lshlrev_b32 v118, 16, v11")
    a("v_and_b32 v119, 0xffff0000, v11")
    for mt in range(3): a(f"v_cvt_f32_u32 v{112+mt}, v{112+mt}")
    a("s_nop 0")
    for mt in range(3):
        for i in range(4):
            a(f"v_mul_f32 v{120+i}, v{112+mt}, v{116+i}")
            a(f"v_fma_f32 v{120+i}, v{OD+4*mt+i}, s74, v{120+i}")
        a(f"v_cvt_pk_bf16_f32 v{124+2*mt}, v120, v121")
        a(f"v_cvt_pk_bf16_f32 v{125+2*mt}, v122, v123")
        a(f"buffer_store_dwordx2 {pr(124+2*mt)}, v13, s[44:47], s{(69,72,73)[mt]} offen")
    stamp(a, opt, 10)
    if opt.get("stamps"): a("s_waitcnt vmcnt(0)")
    stamp(a, opt, 11)
    a.label("K2_END2")
    stamp_out(a, opt, 22, 0xF80000, 24)
    a.label("K2_END")
    a("s_endpgm")
    a.label("K2_SLOW")
    a("s_setprio 0")
    a("s_mov_b32 s70, -1")
    a("s_waitcnt vmcnt(0) lgkmcnt(0)")
    a("s_barrier")
    a("v_lshlrev_b32 v2, 4, v0")
    for i in range(4): a(f"v_mov_b32 v{4+i}, 0")
    for i in range(4): a(f"ds_write_b128 v2, v[4:7] offset:{i*12288}")
    a("v_lshlrev_b32 v3, 2, v1")
    a(f"v_add_u32 v3, {CNT}, v3")
    a("ds_write_b32 v3, v4")
    srd(a, 84, "s8", "s9", E * 4)
    srd(a, 88, "s10", "s11", E * 4)
    srd(a, 92, "s22", "s23", N * 512)
    a("v_and_b32 v8, 31, v1")
    a("v_lshlrev_b32 v8, 4, v8")
    a("v_lshrrev_b32 v9, 5, v1")
    a("v_lshl_add_u32 v8, v9, 10, v8")
    a("s_lshl_b32 s72, s25, 11")
    a(f"s_add_u32 s72, s72, {WCF_OFF - CELL_OFF}")
    a("buffer_load_dwordx4 v[16:19], v8, s[40:43], s72 offen")
    a("buffer_load_dwordx4 v[20:23], v8, s[40:43], s72 offen offset:512")
    a("v_lshlrev_b32 v10, 1, v1")
    a("v_add_u32 v10, s58, v10")
    a("v_lshlrev_b32 v11, 1, v10")
    a("v_lshlrev_b32 v12, 2, v1")
    a("v_mov_b32 v13, 1")
    a("s_waitcnt vmcnt(0)")
    for k in range(8):
        a(f"v_lshlrev_b32 v{24+2*k}, 16, v{16+k}")
        a(f"v_and_b32 v{25+2*k}, 0xffff0000, v{16+k}")
    a("s_waitcnt lgkmcnt(0)")
    a("s_barrier")
    a("s_mov_b32 s66, s26")
    a.label("K2_SL_BLK")
    a("s_lshl_b32 s67, s66, 8")
    a("buffer_load_dword v40, v12, s[88:91], s67 offen")
    a("buffer_load_dword v41, v12, s[84:87], s67 offen")
    a("s_waitcnt vmcnt(0)")
    a("v_and_b32 v42, 255, v40")
    a("v_cmp_eq_u32 vcc, s2, v42")
    a("s_nop 1")
    a("s_mov_b64 s[68:69], vcc")
    a.label("K2_SL_E")
    a("s_cmp_eq_u64 s[68:69], 0")
    a("s_cbranch_scc1 K2_SL_NB")
    a("s_ff1_i32_b64 s72, s[68:69]")
    a("s_bitset0_b64 s[68:69], s72")
    a("v_readlane_b32 s73, v40, s72")
    a("v_readlane_b32 s74, v41, s72")
    a("s_lshl_b32 s75, s66, 6")
    a("s_add_u32 s75, s75, s72")
    a("s_lshl_b32 s75, s75, 5")
    a("s_load_dwordx8 s[76:83], s[6:7], s75")
    a("s_lshl_b32 s74, s74, 9")
    a("s_lshl_b32 s75, s73, 9")
    a("s_lshr_b32 s73, s73, 8")
    a("s_nop 2")
    a("buffer_load_ushort v43, v10, s[92:95], s74 offen")
    a("buffer_load_ushort v44, v10, s[36:39], s75 offen")
    a("s_waitcnt vmcnt(0) lgkmcnt(0)")
    a("v_lshlrev_b32 v43, 16, v43")
    a("v_lshlrev_b32 v44, 16, v44")
    a("v_add_f32 v43, v43, v44")
    for k in range(8):
        a(f"s_lshl_b32 s74, s{76+k}, 16")
        a(f"v_fmac_f32 v43, s74, v{24+2*k}")
        a(f"s_and_b32 s74, s{76+k}, 0xffff0000")
        a(f"v_fmac_f32 v43, s74, v{25+2*k}")
    a("v_exp_f32 v44, v43")
    a("s_lshl_b32 s74, s73, 10")
    a("v_add_f32 v44, 1.0, v44")
    a("v_rcp_f32 v44, v44")
    a("v_add_u32 v45, s74, v11")
    a("v_mul_f32 v43, v43, v44")
    a("ds_add_f32 v45, v43")
    a("s_cmp_lg_u32 s25, 0")
    a("s_cbranch_scc1 K2_SL_E")
    a("s_lshl_b32 s74, s73, 2")
    a(f"s_add_u32 s74, s74, {CNT}")
    a("v_mov_b32 v45, s74")
    a("s_mov_b64 exec, 1")
    a("ds_add_u32 v45, v13")
    a("s_mov_b64 exec, -1")
    a("s_branch K2_SL_E")
    a.label("K2_SL_NB")
    a("s_add_u32 s66, s66, 3")
    a(f"s_cmp_lt_u32 s66, {E // 64}")
    a("s_cbranch_scc1 K2_SL_BLK")
    a("s_waitcnt lgkmcnt(0)")
    a("s_barrier")
    a("v_mov_b32 v2, v0")
    a("s_mov_b32 s66, 0")
    a.label("K2_SL_CV")
    a("v_cmp_gt_u32 vcc, 5120, v2")
    a("s_and_saveexec_b64 s[68:69], vcc")
    a("v_lshlrev_b32 v3, 3, v2")
    a("ds_read_b64 v[4:5], v3")
    a("v_lshrrev_b32 v6, 7, v2")
    a(f"v_mul_u32_u24 v6, {HSTR}, v6")
    a("v_and_b32 v7, 127, v2")
    a("v_lshl_add_u32 v6, v7, 2, v6")
    a(f"v_add_u32 v6, {HIMG}, v6")
    a("s_waitcnt lgkmcnt(0)")
    a("v_cvt_pk_bf16_f32 v4, v4, v5")
    a("ds_write_b32 v6, v4")
    a("s_mov_b64 exec, -1")
    a("v_add_u32 v2, 768, v2")
    a("s_add_u32 s66, s66, 1")
    a("s_cmp_lt_u32 s66, 7")
    a("s_cbranch_scc1 K2_SL_CV")
    a("s_branch K2_FIN")
    a.loop = (loop_start, loop_end)
    return a, (152 if opt.get('stamps') else NV2), (102 if opt.get('stamps') else 100)
```

```python
import sys, re
from asmlib import *
from k1 import *
from k2 import *

def build(opt):
    hdr = open("standalone__edge_featured_mpnn_mpnn__graph.s.ref").read().split("\n")
    hdr = [l for l in hdr if l.startswith(";")][:12]
    out = "\n".join(hdr) + "\n"
    for _ in range(opt.get("pre_empty", 0)):
        out += "; @launch kernel=mpnn_empty_kernel grid=(256,1,1) block=(64,1,1) lds=0\n"
    out += f"; @launch kernel=mpnn_pre_kernel grid=({K1_WGS},1,1) block=(512,1,1) lds={K1_LDS}\n"
    if not opt.get("k1only"):
        out += f"; @launch kernel=mpnn_main_kernel grid=(256,1,1) block=(768,1,1) lds={K2_LDS}\n"
    for _ in range(opt.get("post_empty", 0)):
        out += "; @launch kernel=mpnn_empty_kernel grid=(256,1,1) block=(64,1,1) lds=0\n"
    out += '.amdgcn_target "amdgcn-amd-amdhsa--gfx950"\n.text\n'
    ks = [("mpnn_pre_kernel",) + gen_k1(opt), ("mpnn_main_kernel",) + gen_k2(opt)]
    if opt.get("pre_empty") or opt.get("post_empty"):
        e = Asm(); e.label("mpnn_empty_kernel"); e("s_endpgm")
        ks.append(("mpnn_empty_kernel", e, 8, 8))
    errs = []
    for name, a, nv, ns in ks:
        errs += check_hazards(a.lines, name)
        if hasattr(a, "loop"):
            b = a.lines[a.loop[0]:a.loop[1]]
            errs += check_hazards(b[-40:] + b[:40], name + " backedge")
        out += f".globl {name}\n.p2align 8\n.type {name},@function\n" + a.text()
    out += '.section .rodata,"a"\n'
    for name, a, nv, ns in ks:
        out += f""".p2align 6
.amdhsa_kernel {name}
  .amdhsa_next_free_vgpr {nv}
  .amdhsa_next_free_sgpr {ns}
  .amdhsa_accum_offset {(nv + 3) // 4 * 4}
  .amdhsa_group_segment_fixed_size 0
  .amdhsa_kernarg_size 88
  .amdhsa_user_sgpr_count 2
  .amdhsa_user_sgpr_kernarg_segment_ptr 1
  .amdhsa_system_sgpr_workgroup_id_x 1
  .amdhsa_float_denorm_mode_32 3
.end_amdhsa_kernel
"""
    return out, errs

if __name__ == "__main__":
    opt = {}
    dst = "standalone__edge_featured_mpnn_mpnn__graph.s"
    for x in sys.argv[1:]:
        if x.endswith(".s"): dst = x
        else:
            k, _, val = x.partition("=")
            opt[k] = int(val) if val else 1
    out, errs = build(opt)
    for e in errs: print(e)
    open(dst, "w").write(out)
    print("wrote", dst, len(out), "bytes; hazards:", len(errs))
```

```python
from asmlib import *

N = 10000; E = 320000
P_OFF = 0
Q_OFF = 0x500000
CELL_OFF = 0xA00000
W2F_OFF = 0xE00000
WCF_OFF = 0xE10000
NSORT = 128
CHUNK = 2500
NGEMM = 157
K1_WGS = NSORT + 2 * NGEMM
K1_LDS = 81920
NEGLOG2E = 0xBFB8AA3B
OVF = 0xFFFFFFFE

def srd(a, r, lo, hi, size):
    a(f"s_mov_b32 s{r}, {lo}")
    a(f"s_mov_b32 s{r+1}, {hi}")
    a(f"s_mov_b32 s{r+2}, {size}")
    a(f"s_mov_b32 s{r+3}, 0x00020000")

def srd_ws(a, r, wslo, off, size):
    a(f"s_add_u32 s{r}, s{wslo}, {off}")
    a(f"s_addc_u32 s{r+1}, s{wslo+1}, 0")
    a(f"s_mov_b32 s{r+2}, {size}")
    a(f"s_mov_b32 s{r+3}, 0x00020000")

STAMPV = 150
def stamp(a, opt, idx, vreg=STAMPV, sreg=96):
    if not opt.get("stamps"): return
    a(f"s_memrealtime s[{sreg}:{sreg+1}]")
    a("s_waitcnt lgkmcnt(0)")
    a(f"v_writelane_b32 v{vreg}, s{sreg}, {idx}")
def stamp_clk(a, opt, idx, vreg=STAMPV, sreg=96):
    if not opt.get("stamps"): return
    a(f"s_memtime s[{sreg}:{sreg+1}]")
    a("s_waitcnt lgkmcnt(0)")
    a(f"v_writelane_b32 v{vreg}, s{sreg}, {idx}")
def stamp_out(a, opt, wslo, off, wavereg, vreg=STAMPV, sreg=96, tmpv=151):
    if not opt.get("stamps"): return
    a(f"s_add_u32 s{sreg}, s{wslo}, {off}")
    a(f"s_addc_u32 s{sreg+1}, s{wslo+1}, 0")
    a(f"s_mov_b32 s{sreg+2}, 0x80000")
    a(f"s_mov_b32 s{sreg+3}, 0x00020000")
    a(f"s_lshl_b32 s100, s2, 4")
    a(f"s_add_u32 s100, s100, s{wavereg}")
    a(f"s_lshl_b32 s100, s100, 6")
    a(f"v_mbcnt_lo_u32_b32 v{tmpv}, -1, 0")
    a(f"v_lshlrev_b32 v{tmpv}, 2, v{tmpv}")
    a("s_mov_b64 exec, 0xffff")
    a(f"buffer_store_dword v{vreg}, v{tmpv}, s[{sreg}:{sreg+3}], s100 offen")
    a("s_mov_b64 exec, -1")

def gen_k1(opt=None):
    opt = opt or {}
    SV = 120
    SF = {0: "", 1: " sc1", 2: " sc0 sc1", 3: " nt", 4: " nt sc1"}[opt.get("sf", 0)]
    a = Asm()
    a.label("mpnn_pre_kernel")
    a(f"s_cmp_ge_u32 s2, {K1_WGS}")
    a("s_cbranch_scc1 K1_END")
    if opt.get("stamps"): a(f"v_mov_b32 v{SV}, 0")
    stamp(a, opt, 0, SV)
    a("s_load_dwordx16 s[4:19], s[0:1], 0")
    a("s_load_dwordx2 s[20:21], s[0:1], 80")
    a("v_lshrrev_b32 v1, 6, v0")
    a("v_and_b32 v2, 63, v0")
    a("v_readfirstlane_b32 s22, v1")
    a(f"s_cmp_lt_u32 s2, {NSORT}")
    a("s_cbranch_scc1 K1_SORT")
    XI = 65536
    a(f"s_sub_u32 s23, s2, {NSORT}")
    a("s_and_b32 s24, s23, 1")
    a("s_lshr_b32 s25, s23, 1")
    a("s_lshr_b32 s26, s22, 2")
    a("s_and_b32 s27, s22, 3")
    a("v_lshrrev_b32 v5, 5, v2")
    a("v_and_b32 v6, 31, v2")
    a("v_lshlrev_b32 v7, 2, v5")
    a("v_xor_b32 v7, v7, v6")
    a("v_lshlrev_b32 v7, 4, v7")
    a("v_lshl_add_u32 v3, v5, 9, v7")
    a("v_xor_b32 v4, 0x80, v3")
    a("v_lshrrev_b32 v10, 4, v2")
    a("s_lshl_b32 s44, s22, 3")
    a("v_add_u32 v10, s44, v10")
    a("v_xor_b32 v11, v10, v2")
    a("v_and_b32 v11, 15, v11")
    a("v_lshlrev_b32 v11, 4, v11")
    a("v_lshl_add_u32 v8, v10, 8, v11")
    a("v_xor_b32 v9, 64, v8")
    a("s_lshl_b32 s45, s22, 13")
    a("s_lshl_b32 s46, s24, 16")
    a("s_add_u32 s46, s46, s45")
    a("s_add_u32 s47, s46, 4096")
    a("s_lshl_b32 s48, s25, 14")
    a("s_waitcnt lgkmcnt(0)")
    srd(a, 28, "s12", "s13", 272 * 512)
    srd(a, 32, "s4", "s5", N * 256)
    a("s_lshl_b32 s49, s22, 11")
    a(f"s_add_u32 m0, s49, {XI}")
    a("s_nop 0")
    a("buffer_load_dwordx4 v8, s[32:35], s48 offen lds")
    a("buffer_load_dwordx4 v9, s[32:35], s48 offen offset:1024 lds")
    a("s_mov_b32 m0, s45")
    a("s_nop 0")
    for k in range(4):
        a(f"buffer_load_dwordx4 v{3 + (k & 1)}, s[28:31], s46 offen offset:{k*1024} lds")
    a("s_add_u32 m0, s45, 4096")
    a("s_nop 0")
    for k in range(4):
        a(f"buffer_load_dwordx4 v{3 + (k & 1)}, s[28:31], s47 offen offset:{k*1024} lds")
    a("s_mov_b32 s40, s14")
    a("s_mov_b32 s41, s15")
    a("s_lshl_b32 s42, s24, 9")
    a("s_mov_b32 s43, 0x00020000")
    a("v_lshlrev_b32 v12, 1, v6")
    a("s_lshl_b32 s50, s27, 7")
    a("buffer_load_ushort v14, v12, s[40:43], s50 offen")
    a("buffer_load_ushort v15, v12, s[40:43], s50 offen offset:64")
    a(f"s_mul_i32 s51, s24, {Q_OFF}")
    a("s_add_u32 s36, s20, s51")
    a("s_addc_u32 s37, s21, 0")
    a("s_lshl_b32 s51, s24, 9")
    a(f"s_sub_u32 s38, {(N+1)*512}, s51")
    a("s_mov_b32 s39, 0x00020000")
    a("v_and_b32 v17, 15, v2")
    a("v_xor_b32 v17, v17, v5")
    a("v_lshlrev_b32 v17, 4, v17")
    a("v_lshl_add_u32 v16, v6, 8, v17")
    a("s_lshl_b32 s51, s26, 13")
    a(f"s_add_u32 s51, s51, {XI}")
    a("v_add_u32 v16, s51, v16")
    for sidx in range(1, 8):
        a(f"v_xor_b32 v{16+sidx}, {sidx << 5}, v16")
    a("v_bfe_u32 v26, v2, 2, 2")
    a("v_lshl_add_u32 v27, v5, 3, v26")
    a("v_and_b32 v28, 3, v2")
    a("v_lshlrev_b32 v28, 3, v28")
    a("v_bfe_u32 v29, v2, 4, 1")
    a("v_lshl_add_u32 v28, v29, 5, v28")
    a("v_add_u32 v28, s50, v28")
    a("v_lshlrev_b32 v26, 6, v26")
    a("v_xor_b32 v28, v28, v26")
    a("v_lshl_add_u32 v24, v27, 9, v28")
    a("v_xor_b32 v25, 64, v24")
    a("v_lshlrev_b32 v13, 2, v6")
    a("v_lshl_add_u32 v13, v5, 11, v13")
    a("v_add_u32 v13, s50, v13")
    a("s_lshl_b32 s52, s25, 15")
    a("s_lshl_b32 s51, s26, 14")
    a("s_add_u32 s52, s52, s51")
    a("s_add_u32 s53, s52, 4096")
    a("s_add_u32 s54, s52, 8192")
    a("s_add_u32 s55, s52, 12288")
    a(f"s_mov_b32 s56, {NEGLOG2E:#x}")
    stamp(a, opt, 1, SV)
    a("s_waitcnt vmcnt(0)")
    stamp(a, opt, 2, SV)
    a("s_barrier")
    AF = 32; BF = 48; DA = 80; DB = 96
    def reads(sidx):
        st = sidx & 3
        a(f"ds_read_b128 {v(AF+4*st,4)}, v{16+sidx}")
        for X in range(2):
            for e in range(2):
                a(f"ds_read_b64_tr_b16 {v(BF+8*st+4*X+2*e,2)}, v{24+X} offset:{sidx*8192+e*2048}")
    reads(0); reads(1); reads(2)
    a("v_lshlrev_b32 v14, 16, v14")
    a("v_lshlrev_b32 v15, 16, v15")
    a("v_mul_f32 v14, s56, v14")
    a("v_mul_f32 v15, s56, v15")
    for sidx in range(8):
        rem = min(7 - sidx, 2)
        a(f"s_waitcnt lgkmcnt({5*rem})")
        ca = "0" if sidx == 0 else v(DA, 16)
        cb = "0" if sidx == 0 else v(DB, 16)
        st = sidx & 3
        a(f"v_mfma_f32_32x32x16_bf16 {v(DA,16)}, {v(AF+4*st,4)}, {v(BF+8*st,4)}, {ca}")
        a(f"v_mfma_f32_32x32x16_bf16 {v(DB,16)}, {v(AF+4*st,4)}, {v(BF+8*st+4,4)}, {cb}")
        if sidx + 3 < 8: reads(sidx + 3)
    a("s_nop 11")
    stamp(a, opt, 3, SV)
    for r in range(16):
        a(f"v_fma_f32 v{DA+r}, v{DA+r}, s56, v14")
        a(f"v_fma_f32 v{DB+r}, v{DB+r}, s56, v15")
        a(f"v_cvt_pk_bf16_f32 v{AF+r}, v{DA+r}, v{DB+r}")
        if opt.get("nogst"): continue
        a(f"buffer_store_dword v{AF+r}, v13, s[36:39], s{52 + (r >> 2)} offen offset:{(r & 3)*512}{SF}")
    stamp(a, opt, 4, SV)
    if opt.get("stamps"): a("s_waitcnt vmcnt(0)")
    stamp(a, opt, 5, SV)
    stamp_out(a, opt, 20, 0xF00000, 22, SV, tmpv=121)
    a("s_endpgm")
    a.label("K1_SORT")
    CNT = 32768
    a("v_lshlrev_b32 v3, 2, v0")
    a("v_add_u32 v4, 4096, v3")
    a("v_add_u32 v5, 8192, v3")
    a(f"s_mul_i32 s23, s2, {CHUNK*4}")
    a("v_mov_b32 v24, -1\nv_mov_b32 v25, -1\nv_mov_b32 v26, -1\nv_mov_b32 v27, -1")
    a("v_mov_b32 v28, 0")
    a("v_lshlrev_b32 v6, 4, v0")
    a("v_and_b32 v40, 15, v2")
    a("v_lshlrev_b32 v40, 1, v40")
    a("v_lshrrev_b32 v41, 4, v2")
    a("v_lshl_add_u32 v40, v41, 10, v40")
    a("v_add_u32 v41, 8192, v40")
    a("v_and_b32 v42, 1, v2")
    a("v_lshlrev_b32 v42, 6, v42")
    a("v_and_b32 v43, 30, v2")
    a("v_add_u32 v42, v42, v43")
    a("v_lshrrev_b32 v43, 5, v2")
    a("v_lshl_add_u32 v42, v43, 12, v42")
    a("s_waitcnt lgkmcnt(0)")
    srd(a, 28, "s8", "s9", E * 4)
    srd(a, 32, "s10", "s11", E * 4)
    srd(a, 44, "s16", "s17", 256 * 256)
    srd(a, 48, "s12", "s13", 272 * 512)
    a("s_cmp_lg_u32 s22, 0")
    a("s_cbranch_scc1 K1_NOPREP")
    a("s_cmp_ge_u32 s2, 64")
    a("s_cbranch_scc1 K1_PREPC")
    a("s_bfe_u32 s24, s2, 0x20001")
    a("s_lshl_b32 s24, s24, 14")
    a("s_and_b32 s25, s2, 1")
    a("s_lshl_b32 s25, s25, 12")
    a("s_add_u32 s24, s24, s25")
    a("s_lshr_b32 s25, s2, 3")
    a("s_lshl_b32 s25, s25, 5")
    a("s_add_u32 s24, s24, s25")
    for e in range(8):
        a(f"buffer_load_ushort v{48+e}, v{40 + (e & 1)}, s[44:47], s24 offen offset:{(e >> 1)*256}")
    a("s_branch K1_NOPREP")
    a.label("K1_PREPC")
    a("s_cmp_ge_u32 s2, 72")
    a("s_cbranch_scc1 K1_NOPREP")
    a("s_bfe_u32 s24, s2, 0x20001")
    a("s_lshl_b32 s24, s24, 7")
    a("s_and_b32 s25, s2, 1")
    a("s_lshl_b32 s25, s25, 5")
    a("s_add_u32 s24, s24, s25")
    a(f"s_add_u32 s24, s24, {256*512}")
    for e in range(8):
        a(f"buffer_load_ushort v{48+e}, v42, s[48:51], s24 offen offset:{e*512}")
    a.label("K1_NOPREP")
    for i in range(5):
        a(f"buffer_load_dword v{10+i}, v{3 + (i >> 1)}, s[32:35], s23 offen offset:{(i & 1)*2048}")
    for i in range(5):
        a(f"buffer_load_dword v{16+i}, v{3 + (i >> 1)}, s[28:31], s23 offen offset:{(i & 1)*2048}")
    for i in range(4):
        a(f"ds_write_b128 v6, v[24:27] offset:{i*8192}")
    a(f"ds_write_b32 v3, v28 offset:{CNT}")
    srd_ws(a, 36, 20, CELL_OFF, 256 * 128 * 128)
    srd_ws(a, 40, 20, W2F_OFF, 0x12000)
    a("v_mov_b32 v29, 1")
    a(f"v_mov_b32 v30, {OVF - (1 << 32)}")
    a("v_lshlrev_b32 v31, 6, v0")
    a(f"v_cmp_gt_u32 vcc, {CHUNK - 2048}, v0")
    a("s_waitcnt lgkmcnt(0)")
    a("s_mov_b64 s[52:53], vcc")
    stamp(a, opt, 1, SV)
    a("s_barrier")
    if opt.get("stamps"): a("s_waitcnt vmcnt(0)")
    stamp(a, opt, 2, SV)
    for i in range(5):
        a(f"s_waitcnt vmcnt({9 - i})")
        a(f"v_and_b32 v{32+i}, 255, v{10+i}")
        a(f"v_lshlrev_b32 v{32+i}, 2, v{32+i}")
        if i == 4: a("s_mov_b64 exec, s[52:53]")
        a(f"ds_add_rtn_u32 v{60+i}, v{32+i}, v29 offset:{CNT}")
        if i == 4: a("s_mov_b64 exec, -1")
    for i in range(5):
        a(f"s_waitcnt vmcnt({4 - i})")
        a(f"v_lshrrev_b32 v{10+i}, 8, v{10+i}")
        a(f"v_lshl_or_b32 v{10+i}, v{16+i}, 18, v{10+i}")
        a(f"v_add_u32 v{16+i}, {i*32768}, v31")
        a(f"v_or_b32 v{10+i}, v{10+i}, v{16+i}")
        a(f"v_and_b32 v{16+i}, 28, v{32+i}")
        a(f"v_lshlrev_b32 v{16+i}, 2, v{16+i}")
    for i in range(5):
        a(f"s_waitcnt lgkmcnt({4 - i})" if i == 0 else f"s_waitcnt lgkmcnt(4)")
        a(f"v_cmp_lt_u32 vcc, 30, v{60+i}")
        a(f"v_min_u32 v{60+i}, 31, v{60+i}")
        a(f"v_lshlrev_b32 v{60+i}, 2, v{60+i}")
        a(f"v_cndmask_b32 v{10+i}, v{10+i}, v30, vcc")
        a(f"v_xor_b32 v{60+i}, v{60+i}, v{16+i}")
        a(f"v_lshl_add_u32 v{60+i}, v{32+i}, 5, v{60+i}")
        if i == 4: a("s_mov_b64 exec, s[52:53]")
        a(f"ds_write_b32 v{60+i}, v{10+i}")
        if i == 4: a("s_mov_b64 exec, -1")
    a("v_lshrrev_b32 v3, 3, v0")
    a("v_xor_b32 v4, v3, v0")
    a("v_and_b32 v4, 7, v4")
    a("v_lshlrev_b32 v4, 4, v4")
    a("v_lshl_add_u32 v4, v3, 7, v4")
    a("v_and_b32 v5, 7, v0")
    a("v_lshlrev_b32 v5, 4, v5")
    a("v_lshl_add_u32 v5, v3, 14, v5")
    a("s_and_b32 s24, s2, 7")
    a("s_lshl_b32 s24, s24, 4")
    a("s_lshr_b32 s25, s2, 3")
    a("s_or_b32 s24, s24, s25")
    a("s_lshl_b32 s24, s24, 7")
    for i in range(1, 4):
        a(f"s_add_u32 s{24+i}, s24, {i << 20}")
    a("s_waitcnt lgkmcnt(0)")
    a("s_barrier")
    stamp(a, opt, 3, SV)
    for i in range(4):
        a(f"ds_read_b128 {v(64+4*i,4)}, v4 offset:{i*8192}")
    for i in range(4):
        a(f"s_waitcnt lgkmcnt({3 - i})")
        if opt.get("nocst"): continue
        a(f"buffer_store_dwordx4 {v(64+4*i,4)}, v5, s[36:39], s{24+i} offen{SF}")
    stamp(a, opt, 4, SV)
    if opt.get("stamps"): a("s_waitcnt vmcnt(0)")
    stamp(a, opt, 5, SV)
    stamp_out(a, opt, 20, 0xF00000, 22, SV, tmpv=121)
    a("s_cmp_lg_u32 s22, 0")
    a("s_cbranch_scc1 K1_END")
    a("s_cmp_ge_u32 s2, 72")
    a("s_cbranch_scc1 K1_END")
    a("v_lshlrev_b32 v6, 4, v2")
    a("s_lshl_b32 s24, s2, 10")
    a("s_cmp_ge_u32 s2, 64")
    a("s_cbranch_scc1 K1_FINC")
    for e in range(4):
        a(f"v_lshl_or_b32 v{56+e}, v{49+2*e}, 16, v{48+2*e}")
    a("buffer_store_dwordx4 v[56:59], v6, s[40:43], s24 offen")
    a("s_endpgm")
    a.label("K1_FINC")
    a(f"s_mov_b32 s25, {NEGLOG2E:#x}")
    for e in range(8):
        a(f"v_lshlrev_b32 v{48+e}, 16, v{48+e}")
        a(f"v_mul_f32 v{48+e}, s25, v{48+e}")
    for e in range(4):
        a(f"v_cvt_pk_bf16_f32 v{56+e}, v{48+2*e}, v{49+2*e}")
    a("buffer_store_dwordx4 v[56:59], v6, s[40:43], s24 offen")
    a.label("K1_END")
    a("s_endpgm")
    return a, (128 if opt.get('stamps') else 112), (102 if opt.get('stamps') else 64)
```

```python
from asmlib import *
from k1 import *

NW = 12
ERING = 0; QIMG = 0
PSLOT = 24576
OH = 73728
ZERO = 122880
IDX = 126976
EOFF = IDX + 8192
HSTR = 144
FLAG = 142336
CNT = 142592
K2_LDS = 143360
GCAP = 48
KILL = 0x40000000
NEGLN2 = 0xBF317218

aAP = 2; aAE = 6; aAO = 7; aS1 = 8; aS2 = 9; aIDX = 10; aEOFF = 11; eLane = 12; eVal = 13; CHK = 14
D = [16, 32]; EX = 48; ACC = 64; BC = [80, 84]; BQ = [88, 92]; ID = [96, 100]
AE = 104; AO = 108; S = 112; AP = [116, 120, 124, 128]; HQ = 132; IX = [136, 138, 140, 142]
NV2 = 144

def pr(r): return v(r, 2)
def q4(r): return v(r, 4)
def x16(r): return v(r, 16)

def mf_tile(Y):
    d = D[Y]
    return [f"v_mfma_f32_32x32x16_bf16 {x16(d)}, {q4(AE)}, {q4(BC[Y])}, 0",
            f"v_mfma_f32_32x32x16_bf16 {x16(d)}, {q4(AO)}, {q4(BQ[Y])}, {x16(d)}",
            f"v_mfma_f32_32x32x16_bf16 {x16(d)}, {q4(AP[2*Y])}, {q4(ID[0])}, {x16(d)}",
            f"v_mfma_f32_32x32x16_bf16 {x16(d)}, {q4(AP[2*Y+1])}, {q4(ID[1])}, {x16(d)}"]
SEGSUM = f"v_mfma_f32_32x32x16_bf16 {x16(ACC)}, {q4(HQ)}, {q4(S)}, {x16(ACC)}"

def tile(X, mf, ex_exp, mid, ex_rcp):
    d = D[X]; out = []; mi = 0
    for i in range(16):
        if i % 3 == 0 and mi < len(mf):
            out.append(mf[mi]); mi += 1
        out.append(f"v_exp_f32 v{EX+i}, v{d+i}")
        out += ex_exp.get(i, [])
    out += mid
    NAB, NCD, DAB, DCD = d, d + 8, EX, EX + 8
    out.append(f"v_pk_add_f32 {pr(DAB)}, {pr(EX)}, 1.0 op_sel_hi:[1,0]")
    out.append(f"v_pk_add_f32 {pr(DCD)}, {pr(EX+8)}, 1.0 op_sel_hi:[1,0]")
    for k in range(1, 4):
        out.append(f"v_pk_fma_f32 {pr(NAB)}, {pr(NAB)}, {pr(EX+2*k)}, {pr(NAB)}")
        out.append(f"v_pk_fma_f32 {pr(NCD)}, {pr(NCD)}, {pr(EX+8+2*k)}, {pr(NCD)}")
        out.append(f"v_pk_fma_f32 {pr(NAB)}, {pr(d+2*k)}, {pr(DAB)}, {pr(NAB)}")
        out.append(f"v_pk_fma_f32 {pr(NCD)}, {pr(d+8+2*k)}, {pr(DCD)}, {pr(NCD)}")
        out.append(f"v_pk_fma_f32 {pr(DAB)}, {pr(DAB)}, {pr(EX+2*k)}, {pr(DAB)}")
        out.append(f"v_pk_fma_f32 {pr(DCD)}, {pr(DCD)}, {pr(EX+8+2*k)}, {pr(DCD)}")
    out.append(f"v_pk_fma_f32 {pr(CHK)}, {pr(DAB)}, {pr(DCD)}, {pr(CHK)}")
    out += ex_rcp
    for r in (DAB, DAB + 1, DCD, DCD + 1):
        out.append(f"v_rcp_f32 v{r}, v{r}")
    out.append(f"v_pk_mul_f32 {pr(NAB)}, {pr(NAB)}, {pr(DAB)}")
    out.append(f"v_pk_mul_f32 {pr(NCD)}, {pr(NCD)}, {pr(DCD)}")
    out.append(f"v_cvt_pk_bf16_f32 v{HQ+2*X}, v{NAB}, v{NAB+1}")
    out.append(f"v_cvt_pk_bf16_f32 v{HQ+2*X+1}, v{NCD}, v{NCD+1}")
    return out

def p_dma():
    out = []
    for k in range(4):
        out.append(f"s_add_u32 m0, s57, {k*1024}")
        out.append("s_nop 0")
        out.append(f"buffer_load_dwordx4 {pr(IX[k])}, s[32:35], s58 idxen offen lds")
    return out

def e_dma():
    return [f"v_add_u32 v{eVal}, v{eVal}, v{eLane}",
            "s_cmp_lt_u32 s61, s53",
            f"s_cselect_b32 s60, 0, {KILL:#x}",
            "s_mov_b32 m0, s59",
            "s_add_u32 s61, s61, 4",
            f"buffer_load_dwordx4 v{eVal}, s[28:31], s60 offen nt lds",
            "s_xor_b32 s59, s59, 4096"]

def gen_k2(opt=None):
    opt = opt or {}
    a = Asm()
    a.label("mpnn_main_kernel")
    a("s_cmp_ge_u32 s2, 256")
    a("s_cbranch_scc1 K2_END")
    if opt.get("stamps"): a(f"v_mov_b32 v{STAMPV}, 0")
    stamp(a, opt, 0)
    a("s_load_dwordx16 s[4:19], s[0:1], 0")
    a("s_load_dwordx2 s[20:21], s[0:1], 64")
    a("s_load_dwordx2 s[22:23], s[0:1], 80")
    a("v_lshrrev_b32 v16, 6, v0")
    a("v_and_b32 v1, 63, v0")
    a("v_readfirstlane_b32 s24, v16")
    a("s_mov_b32 s66, 43691")
    a("v_mul_u32_u24 v16, s66, v0")
    a("v_lshrrev_b32 v16, 18, v16")
    a("v_mul_u32_u24 v17, 6, v16")
    a("v_sub_u32 v17, v0, v17")
    a("v_lshlrev_b32 v17, 4, v17")
    a("v_lshl_add_u32 v18, v16, 7, v17")
    a("v_lshrrev_b32 v21, 1, v0")
    a("v_and_b32 v19, 1, v0")
    a("v_lshlrev_b32 v19, 4, v19")
    a("v_lshl_add_u32 v19, v21, 7, v19")
    a("v_lshrrev_b32 v22, 5, v1")
    a("v_and_b32 v23, 31, v1")
    a("v_lshlrev_b32 v20, 4, v23")
    a("v_lshl_add_u32 v20, v22, 17, v20")
    a("v_lshlrev_b32 v32, 4, v1")
    a("s_and_b32 s25, s24, 3")
    a("s_lshr_b32 s26, s24, 2")
    a("s_lshl_b32 s66, s2, 14")
    a("s_cmp_lt_u32 s24, 4")
    a(f"s_cselect_b32 s67, s66, {KILL:#x}")
    a("s_lshl_b32 s68, s2, 9")
    a("s_lshl_b32 s69, s24, 18")
    a("s_add_u32 s68, s68, s69")
    a(f"s_add_u32 s69, s68, {12 << 18}")
    a("s_lshl_b32 s72, s25, 11")
    a(f"s_add_u32 s72, s72, {WCF_OFF - CELL_OFF}")
    a("s_lshl_b32 s73, s24, 10")
    a("s_waitcnt lgkmcnt(0)")
    srd_ws(a, 40, 22, CELL_OFF, 0x412000)
    srd_ws(a, 36, 22, Q_OFF, N * 512)
    a("buffer_load_dwordx4 v[24:27], v18, s[40:43], s66 offen")
    a("buffer_load_dwordx4 v[28:31], v19, s[40:43], s67 offen offset:96")
    a("s_mov_b32 m0, s73")
    a("s_nop 0")
    a("buffer_load_dwordx4 v20, s[36:39], s68 offen lds")
    a(f"s_add_u32 m0, s73, {12*1024}")
    a("s_nop 0")
    a("buffer_load_dwordx4 v20, s[36:39], s69 offen lds")
    a(f"buffer_load_dwordx4 {q4(BC[0])}, v32, s[40:43], s72 offen")
    a(f"buffer_load_dwordx4 {q4(BC[1])}, v32, s[40:43], s72 offen offset:1024")
    a("v_lshlrev_b32 v33, 4, v0")
    a(f"v_add_u32 v33, {OH}, v33")
    a(f"v_add_u32 v34, {4*12288}, v33")
    for i in range(4): a(f"v_mov_b32 v{36+i}, 0")
    for i in range(4): a(f"ds_write_b128 v33, v[36:39] offset:{i*12288}")
    a("s_cmp_lt_u32 s24, 4")
    a(f"s_cselect_b32 s66, 0, {N}")
    a("s_cmp_lt_u32 s24, 7")
    a(f"s_cselect_b32 s67, {KILL:#x}, 0")
    for i in range(4): a(f"v_mov_b32 v{40+i}, s66")
    for i in range(4): a(f"v_mov_b32 v{44+i}, s67")
    a("ds_write_b128 v34, v[40:43]")
    a("s_cmp_lt_u32 s24, 8")
    a("s_cbranch_scc0 K2_I1")
    a(f"ds_write_b128 v34, v[44:47] offset:12288")
    a.label("K2_I1")
    srd(a, 28, "s6", "s7", E * 32)
    a("s_mov_b32 s32, s22")
    a("s_and_b32 s33, s23, 0xffff")
    a(f"s_or_b32 s33, s33, {512 << 16:#x}")
    a(f"s_mov_b32 s34, {N+1}")
    a("s_mov_b32 s35, 0x00020000")
    srd(a, 44, "s20", "s21", N * 256)
    srd(a, 48, "s18", "s19", 256)
    a("s_mov_b32 s70, 0")
    a("v_and_b32 v48, 16, v23")
    a("v_and_b32 v49, 4, v23")
    a("v_lshl_or_b32 v48, v49, 1, v48")
    a("v_and_b32 v49, 1, v23")
    a("v_lshl_or_b32 v48, v49, 2, v48")
    a("v_bfe_u32 v49, v23, 3, 1")
    a("v_lshl_or_b32 v48, v49, 1, v48")
    a("v_bfe_u32 v49, v23, 1, 1")
    a("v_or_b32 v48, v48, v49")
    a("s_lshl_b32 s57, s24, 12")
    a(f"s_add_u32 s57, s57, {PSLOT}")
    a("s_lshl_b32 s58, s25, 7")
    a("v_bfe_u32 v49, v48, 1, 3")
    a("v_xor_b32 v49, v49, v22")
    a("v_lshlrev_b32 v49, 4, v49")
    a(f"v_lshl_add_u32 v{aAP}, v48, 7, v49")
    a(f"v_add_u32 v{aAP}, s57, v{aAP}")
    for m in range(1, 4): a(f"v_xor_b32 v{aAP+m}, {m << 5}, v{aAP}")
    a("v_bfe_u32 v49, v48, 3, 1")
    a("v_xor_b32 v49, v49, v22")
    a("v_lshlrev_b32 v49, 4, v49")
    a(f"v_lshl_add_u32 v{aAE}, v48, 5, v49")
    a("s_lshl_b32 s59, s26, 13")
    a(f"v_add_u32 v{aAE}, s59, v{aAE}")
    a("s_lshl_b32 s66, s25, 10")
    a("s_add_u32 s59, s59, s66")
    a("v_lshlrev_b32 v49, 4, v22")
    a(f"v_lshl_add_u32 v{aAO}, v48, 5, v49")
    a("v_bfe_u32 v49, v1, 3, 1")
    a("v_lshlrev_b32 v50, 9, v49")
    a("v_lshl_add_u32 v50, v22, 8, v50")
    a("v_bfe_u32 v49, v1, 2, 1")
    a("v_lshl_add_u32 v50, v49, 7, v50")
    a("v_and_b32 v51, 3, v1")
    a("v_lshl_add_u32 v50, v51, 3, v50")
    a("s_mov_b32 s62, 0xffff\ns_mov_b32 s63, 0xffff\ns_mov_b32 s64, 0xffff0000\ns_mov_b32 s65, 0xffff0000")
    a(f"v_lshrrev_b32 v49, 3, v1")
    a(f"v_lshlrev_b32 v{aIDX}, 2, v49")
    a("v_lshrrev_b32 v49, 4, v1")
    a("v_xor_b32 v49, v49, v1")
    a(f"v_and_b32 v{eLane}, 1, v49")
    a(f"v_lshlrev_b32 v{eLane}, 4, v{eLane}")
    a("v_and_b32 v49, 7, v49")
    a(f"v_lshlrev_b32 v{IX[0]+1}, 4, v49")
    a(f"v_xor_b32 v{IX[1]+1}, 64, v{IX[0]+1}")
    a(f"v_mov_b32 v{IX[2]+1}, v{IX[0]+1}")
    a(f"v_mov_b32 v{IX[3]+1}, v{IX[1]+1}")
    a(f"v_lshrrev_b32 v49, 1, v1")
    a(f"v_lshlrev_b32 v{aEOFF}, 2, v49")
    a("v_and_b32 v49, 1, v1")
    a("v_lshlrev_b32 v49, 4, v49")
    a("v_mov_b32 v52, 0x3f80")
    a("v_lshlrev_b32 v52, v49, v52")
    a("v_lshrrev_b32 v49, 1, v23")
    a("v_lshlrev_b32 v53, 2, v22")
    a("v_sub_u32 v49, v49, v53")
    for mm in range(2):
        for rho in range(4):
            a(f"v_cmp_eq_u32 s[{74+2*(rho&1)}:{75+2*(rho&1)}], {8*mm+rho}, v49")
            if rho & 1:
                a("s_nop 0")
                a(f"v_cndmask_b32 v{ID[mm]+rho-1}, 0, v52, s[74:75]")
                a(f"v_cndmask_b32 v{ID[mm]+rho}, 0, v52, s[76:77]")
    a("s_mul_i32 s71, s26, 12")
    a("v_bfe_u32 v49, v1, 2, 2")
    a("v_lshl_add_u32 v49, v22, 3, v49")
    a("v_subrev_u32 v49, s71, v49")
    a("v_add_u32 v53, 4, v49")
    a("v_and_b32 v49, 15, v49")
    a("v_and_b32 v53, 15, v53")
    a("v_add_u32 v49, s71, v49")
    a("v_add_u32 v53, s71, v53")
    a("v_bfe_u32 v56, v1, 4, 1")
    a("v_lshlrev_b32 v56, 5, v56")
    a("v_lshl_add_u32 v56, v51, 3, v56")
    a("v_add_u32 v56, s58, v56")
    a("v_lshl_add_u32 v54, v49, 9, v56")
    a("v_lshl_add_u32 v55, v53, 9, v56")
    a(f"s_mov_b32 s66, {CHUNK*32}")
    for r in (16, 21):
        a(f"v_and_b32 v49, 15, v{r}")
        a(f"v_lshrrev_b32 v{r}, 4, v{r}")
        a(f"v_lshl_or_b32 v{r}, v49, 3, v{r}")
        a(f"v_mul_lo_u32 v{r}, s66, v{r}")
    a("v_mov_b32 v17, 1")
    a("v_mov_b32 v18, 0x3f80")
    a(f"v_lshlrev_b32 v19, 2, v1")
    a(f"v_add_u32 v19, {CNT}, v19")
    a(f"s_mov_b32 s78, {CNT}")
    a(f"s_mov_b32 s79, {IDX}")
    a(f"s_mov_b32 s80, {OH}")
    a(f"v_mov_b32 v{CHK}, 0\nv_mov_b32 v{CHK+1}, 0")
    for i in range(4): a(f"v_mov_b32 v{HQ+i}, 0")
    for i in range(4): a(f"v_mov_b32 v{S+i}, 0")
    a("s_mov_b32 s81, 0")
    a("s_waitcnt lgkmcnt(0)")
    stamp(a, opt, 1)
    a("s_barrier")
    a("s_waitcnt vmcnt(4)")
    stamp(a, opt, 2)
    def count(base, abase, rbase):
        for k in range(4):
            a(f"v_and_b32 v{abase+k}, 63, v{base+k}")
            a(f"v_lshl_add_u32 v{abase+k}, v{abase+k}, 2, s78")
        for k in range(4):
            a(f"v_cmpx_gt_u32 vcc, -2, v{base+k}")
            a(f"ds_add_rtn_u32 v{rbase+k}, v{abase+k}, v17")
        a("s_mov_b64 exec, -1")
    count(24, 32, 40)
    a("s_cmp_ge_u32 s24, 4")
    a("s_cbranch_scc1 K2_C1")
    a("v_cmp_ne_u32 vcc, -1, v28")
    a("s_nop 1")
    a("s_cbranch_vccz K2_C1")
    a("s_mov_b32 s81, 1")
    count(28, 36, 44)
    a(f"v_mov_b32 v57, {FLAG}")
    a("v_cmpx_eq_u32 vcc, -2, v31")
    a("ds_write_b32 v57, v17")
    a("s_mov_b64 exec, -1")
    a.label("K2_C1")
    a("s_waitcnt vmcnt(0) lgkmcnt(0)")
    a("s_barrier")
    stamp(a, opt, 3)
    a("ds_read_b32 v57, v19")
    a(f"v_mov_b32 v58, {FLAG}")
    a("ds_read_b32 v58, v58")
    for X in range(2):
        for e in range(2):
            a(f"ds_read_b64_tr_b16 {pr(BQ[X]+2*e)}, v{54+e} offset:{X*64}")
    for i in range(16): a(f"v_mov_b32 v{ACC+i}, 0")
    a("s_waitcnt lgkmcnt(4)")
    a("v_add_u32 v57, 3, v57")
    a("v_lshrrev_b32 v57, 2, v57")
    a("v_mov_b32 v59, v57")
    a("v_readfirstlane_b32 s82, v58")
    a("s_nop 0")
    for sh in (1, 2, 4, 8):
        a(f"v_add_u32_dpp v59, v59, v59 row_shr:{sh} row_mask:0xf bank_mask:0xf bound_ctrl:0")
        a("s_nop 1")
    a("v_add_u32_dpp v59, v59, v59 row_bcast:15 row_mask:0xa bank_mask:0xf")
    a("s_nop 1")
    a("v_add_u32_dpp v59, v59, v59 row_bcast:31 row_mask:0xc bank_mask:0xf")
    a("v_sub_u32 v60, v59, v57")
    a("v_lshlrev_b32 v61, 2, v60")
    a("v_readlane_b32 s83, v59, 63")
    SB = AP[0]
    for k in range(4): a(f"ds_bpermute_b32 v{SB+k}, v{32+k}, v61")
    a("v_readlane_b32 s84, v60, 12")
    a("v_readlane_b32 s85, v60, 16")
    a("v_readlane_b32 s86, v60, 24")
    a("v_readlane_b32 s87, v60, 28")
    a("s_add_u32 s83, s83, 7")
    a("s_lshr_b32 s83, s83, 3")
    a("s_add_u32 s84, s84, 7")
    a("s_lshr_b32 s84, s84, 3")
    a("s_lshr_b32 s85, s85, 3")
    a("s_add_u32 s86, s86, 7")
    a("s_lshr_b32 s86, s86, 3")
    a("s_lshr_b32 s87, s87, 3")
    a("s_cmp_lg_u32 s82, 0")
    a("s_cbranch_scc1 K2_SLOW")
    a(f"s_cmp_gt_u32 s83, {GCAP}")
    a("s_cbranch_scc1 K2_SLOW")
    a("s_cmp_gt_u32 s84, s85")
    a("s_cbranch_scc1 K2_SLOW")
    a("s_cmp_gt_u32 s86, s87")
    a("s_cbranch_scc1 K2_SLOW")
    if opt.get("force_slow"): a("s_branch K2_SLOW")
    a("s_add_u32 s88, s83, 2")
    a("s_mul_i32 s88, s88, 171")
    a("s_lshr_b32 s88, s88, 9")
    a("s_max_u32 s88, s88, s84")
    a("s_min_u32 s88, s88, s85")
    a("s_add_u32 s89, s83, s88")
    a("s_add_u32 s89, s89, 1")
    a("s_lshr_b32 s89, s89, 1")
    a("s_max_u32 s89, s89, s86")
    a("s_min_u32 s89, s89, s87")
    a("s_sub_u32 s90, s89, s88")
    a("s_sub_u32 s91, s83, s89")
    a("s_max_u32 s54, s88, s90")
    a("s_max_u32 s54, s54, s91")
    a("s_lshr_b32 s54, s54, 2")
    a("s_mov_b32 s52, 0")
    a("s_mov_b32 s53, s88")
    a("s_cmp_eq_u32 s26, 1")
    a("s_cselect_b32 s52, s88, s52")
    a("s_cselect_b32 s53, s90, s53")
    a("s_cmp_eq_u32 s26, 2")
    a("s_cselect_b32 s52, s89, s52")
    a("s_cselect_b32 s53, s91, s53")
    def scatter(base, rbase, cbase):
        T = AP[1]
        for k in range(4):
            a(f"v_lshrrev_b32 v{T+k}, 18, v{base+k}")
            a(f"v_bfe_u32 v{T+4+k}, v{base+k}, 6, 12")
            a(f"v_lshl_add_u32 v{T+4+k}, v{T+4+k}, 5, v{cbase}")
            a(f"v_and_b32 v{T+8+k}, 15, v{base+k}")
            a(f"v_lshl_add_u32 v{T+8+k}, v{T+8+k}, 1, s80")
        a("s_waitcnt lgkmcnt(0)")
        for k in range(4):
            a(f"v_add_u32 v{SB+k}, v{SB+k}, v{rbase+k}")
            a(f"v_lshl_add_u32 v{T+8+k}, v{SB+k}, 5, v{T+8+k}")
            a(f"v_lshl_add_u32 v{SB+k}, v{SB+k}, 2, s79")
        for k in range(4):
            a(f"v_cmpx_gt_u32 vcc, -2, v{base+k}")
            a(f"ds_write2st64_b32 v{SB+k}, v{T+k}, v{T+4+k} offset0:0 offset1:32")
            a(f"ds_write_b16 v{T+8+k}, v18")
        a("s_mov_b64 exec, -1")
    scatter(24, 40, 16)
    a("s_cmp_eq_u32 s81, 0")
    a("s_cbranch_scc1 K2_S1")
    a("s_waitcnt lgkmcnt(0)")
    for k in range(4): a(f"ds_bpermute_b32 v{SB+k}, v{36+k}, v61")
    scatter(28, 44, 21)
    a.label("K2_S1")
    a("s_lshl_b32 s66, s52, 10")
    a(f"s_add_u32 s66, s66, {OH}")
    a(f"v_add_u32 v{aAO}, s66, v{aAO}")
    a("v_add_u32 v50, s66, v50")
    a(f"v_mov_b32 v49, {ZERO}")
    a(f"v_cndmask_b32 v{aS1}, v49, v50, s[62:63]")
    a(f"v_cndmask_b32 v{aS2}, v49, v50, s[64:65]")
    a("s_lshl_b32 s66, s52, 7")
    a(f"s_add_u32 s67, s66, {IDX}")
    a(f"v_add_u32 v{aIDX}, s67, v{aIDX}")
    a("s_add_u32 s67, s67, s58")
    a(f"s_add_u32 s67, s67, {EOFF - IDX}")
    a(f"v_add_u32 v{aEOFF}, s67, v{aEOFF}")
    a("s_mov_b32 s61, s25")
    a("s_mov_b32 s55, 0")
    a("s_mov_b32 s56, 0")
    a("s_waitcnt lgkmcnt(0)")
    a("s_barrier")
    stamp(a, opt, 4)
    for k in range(4): a(f"ds_read_b32 v{IX[k]}, v{aIDX} offset:{k*32}")
    a(f"ds_read_b32 v{eVal}, v{aEOFF}")
    a(f"ds_read_b32 v16, v{aEOFF} offset:512")
    a("s_waitcnt lgkmcnt(2)")
    a("\n".join(p_dma()))
    a("s_waitcnt lgkmcnt(0)")
    a("\n".join(e_dma()))
    a(f"v_mov_b32 v{eVal}, v16")
    for k in range(4): a(f"ds_read_b32 v{IX[k]}, v{aIDX} offset:{128+k*32}")
    a(f"ds_read_b128 {q4(AO)}, v{aAO}")
    a("s_waitcnt vmcnt(1)")
    stamp(a, opt, 5)
    for m in range(4): a(f"ds_read_b128 {q4(AP[m])}, v{aAP+m}")
    a("s_waitcnt lgkmcnt(0)")
    a("\n".join(p_dma()))
    a("\n".join(e_dma()))
    a("s_waitcnt vmcnt(5)")
    a("s_barrier")
    stamp(a, opt, 6)
    stamp_clk(a, opt, 12)
    a("s_cmp_eq_u32 s53, 0")
    a("s_cbranch_scc1 K2_EXIT")
    a(f"ds_read_b128 {q4(AE)}, v{aAE}")
    a("s_waitcnt lgkmcnt(0)")
    a("\n".join(mf_tile(0)))
    a("s_nop 10")
    a(".p2align 6")
    a.label("K2_LOOP")
    loop_start = len(a.lines)
    for u in range(4):
        ex0 = {}
        ex0[1] = [f"ds_read_b32 v{IX[k]}, v{aIDX} offset:{(u+2)*128+k*32}" for k in range(4)]
        mid = [f"s_waitcnt vmcnt({1 if u == 0 else 0})"]
        if u == 3:
            mid += ["s_barrier", "s_add_u32 s56, s56, 1", f"v_xor_b32 v{aAE}, 4096, v{aAE}"]
            if opt.get("prio", 1): mid += ["s_setprio 3"]
        mid += [f"ds_read_b128 {q4(AP[m])}, v{aAP+m}" for m in range(4)]
        mid += [f"ds_read_b128 {q4(AE)}, v{aAE} offset:{((u+1)&3)*1024}",
                f"ds_read_b128 {q4(AO)}, v{aAO} offset:{(u+1)*1024}"]
        if u == 3: mid += [f"ds_read_b32 v{eVal}, v{aEOFF} offset:1024"]
        elif opt.get("prio", 1): mid += [f"s_setprio {2-u}"]
        exr = ["s_add_u32 s66, s55, 2", "s_cmp_ge_u32 s66, s53", "s_waitcnt lgkmcnt(0)", f"s_cbranch_scc1 K2_ND{u}"] + p_dma() + [f"K2_ND{u}:"]
        if u == 3: exr += e_dma()
        t0 = tile(0, mf_tile(1) + [SEGSUM], ex0, mid, exr)
        ex1 = {}
        ex1[1] = [f"ds_read_b64_tr_b16 {pr(S)}, v{aS1} offset:{u*1024}", f"ds_read_b64_tr_b16 {pr(S+2)}, v{aS2} offset:{u*1024}"]
        mid1 = []
        if u == 3:
            mid1 = [f"v_add_u32 v{aAO}, 4096, v{aAO}", f"v_add_u32 v{aIDX}, 512, v{aIDX}", f"v_add_u32 v{aEOFF}, 512, v{aEOFF}",
                    "s_mov_b64 exec, s[62:63]", f"v_add_u32 v{aS1}, 4096, v{aS1}", "s_mov_b64 exec, s[64:65]", f"v_add_u32 v{aS2}, 4096, v{aS2}", "s_mov_b64 exec, -1"]
        t1 = tile(1, mf_tile(0), ex1, mid1, ["s_waitcnt lgkmcnt(0)"])
        a("\n".join(t0 + t1))
        a("s_add_u32 s55, s55, 1")
        a("s_cmp_ge_u32 s55, s53")
        if u < 3: a("s_cbranch_scc1 K2_EXIT")
        else: a("s_cbranch_scc0 K2_LOOP")
    loop_end = len(a.lines)
    a.label("K2_EXIT")
    a(SEGSUM)
    stamp(a, opt, 7)
    stamp_clk(a, opt, 13)
    if opt.get("stamps"): a(f"v_writelane_b32 v{STAMPV}, s53, 14")
    a("s_setprio 0")
    a("v_and_b32 v2, 15, v1")
    a("v_subrev_u32 v2, s71, v2")
    a("v_and_b32 v2, 15, v2")
    a(f"v_mul_u32_u24 v2, {HSTR}, v2")
    a("v_bfe_u32 v3, v1, 4, 1")
    a("v_lshl_add_u32 v2, v3, 6, v2")
    a("v_lshrrev_b32 v3, 5, v1")
    a("v_lshl_add_u32 v2, v3, 3, v2")
    a("v_add_u32 v2, s57, v2")
    a("s_mov_b32 s66, 0x4e800000")
    a("s_mov_b32 s67, 0x4e800000")
    a(f"v_pk_mul_f32 {pr(CHK)}, {pr(CHK)}, s[66:67]")
    a("v_mov_b32 v4, 0x207")
    a("s_waitcnt vmcnt(0)")
    a("s_nop 0")
    for k in range(8):
        a(f"v_pk_fma_f32 {pr(CHK)}, {pr(ACC+2*k)}, 0, {pr(CHK)} op_sel_hi:[1,0,1]")
        a(f"v_cvt_pk_bf16_f32 v{EX+k}, v{ACC+2*k}, v{ACC+2*k+1}")
        if k & 1: a(f"ds_write_b64 v2, {pr(EX+k-1)} offset:{16*(k>>1)}")
    a(f"v_add_f32 v{CHK}, v{CHK}, v{CHK+1}")
    a(f"v_mov_b32 v5, {FLAG}")
    a("v_mov_b32 v6, 1")
    a(f"v_cmpx_class_f32 vcc, v{CHK}, v4")
    a("ds_write_b32 v5, v6")
    a("s_mov_b64 exec, -1")
    a.label("K2_RB")
    a("s_cmp_ge_u32 s56, s54")
    a("s_cbranch_scc1 K2_FIN")
    a("s_barrier")
    a("s_add_u32 s56, s56, 1")
    a("s_branch K2_RB")
    a.label("K2_FIN")
    WF = 16
    a("v_lshlrev_b32 v7, 4, v1")
    a("s_lshl_b32 s66, s24, 13")
    a(f"s_add_u32 s66, s66, {W2F_OFF - CELL_OFF}")
    a("s_cmp_lt_u32 s24, 8")
    a(f"s_cselect_b32 s66, s66, {KILL:#x}")
    a("s_add_u32 s67, s66, 4096")
    for sidx in range(8):
        a(f"buffer_load_dwordx4 {q4(WF+4*sidx)}, v7, s[40:43], s{66 + (sidx >> 2)} offen offset:{(sidx & 3)*1024}")
    a("v_lshrrev_b32 v8, 4, v1")
    a("v_lshlrev_b32 v9, 3, v8")
    a("s_lshl_b32 s68, s24, 5")
    a("buffer_load_dwordx2 v[10:11], v9, s[48:51], s68 offen")
    a("v_and_b32 v12, 15, v1")
    a(f"v_mul_u32_u24 v2, {HSTR}, v12")
    a("v_lshl_add_u32 v2, v8, 4, v2")
    a(f"v_add_u32 v2, {PSLOT}, v2")
    a("v_lshlrev_b32 v4, 2, v12")
    a(f"v_add_u32 v4, {CNT}, v4")
    a(f"v_mov_b32 v5, {FLAG}")
    a("v_lshl_add_u32 v13, v12, 16, v9")
    a(f"v_mov_b32 v3, {KILL:#x}")
    a("v_cmp_gt_u32 vcc, 4, v12")
    a("s_lshl_b32 s69, s2, 8")
    a("s_add_u32 s69, s69, s68")
    a("v_cndmask_b32 v14, v13, v3, vcc")
    a(f"s_add_u32 s72, s69, {12 << 16}")
    a(f"s_add_u32 s73, s69, {24 << 16}")
    a(f"s_mov_b32 s74, {NEGLN2:#x}")
    a("s_waitcnt lgkmcnt(0)")
    stamp(a, opt, 8)
    a("s_barrier")
    stamp(a, opt, 9)
    a("ds_read_b32 v6, v5")
    for mt in range(3): a(f"ds_read_b32 v{112+mt}, v4 offset:{mt*48}")
    HB = 48
    def hread(sidx):
        for mt in range(3):
            r = HB + (sidx & 3) * 12 + mt * 4
            a(f"ds_read_b128 {q4(r)}, v2 offset:{(4*mt + (sidx >> 1))*4096 + (sidx & 1)*64}")
    hread(0); hread(1); hread(2)
    a("s_waitcnt lgkmcnt(12)")
    a("v_readfirstlane_b32 s82, v6")
    a("s_nop 0")
    a("s_andn2_b32 s82, s82, s70")
    a("s_cmp_lg_u32 s82, 0")
    a("s_cbranch_scc1 K2_SLOW")
    a("s_cmp_ge_u32 s24, 8")
    a("s_cbranch_scc1 K2_END2")
    OD = 96
    for sidx in range(8):
        rem = min(7 - sidx, 2)
        a(f"s_waitcnt vmcnt({8 - sidx}) lgkmcnt({3*rem})")
        for mt in range(3):
            r = HB + (sidx & 3) * 12 + mt * 4
            c = "0" if sidx == 0 else q4(OD + 4*mt)
            a(f"v_mfma_f32_16x16x32_bf16 {q4(OD+4*mt)}, {q4(WF+4*sidx)}, {q4(r)}, {c}")
        if sidx + 3 < 8: hread(sidx + 3)
    a("s_waitcnt vmcnt(0)")
    a("v_lshlrev_b32 v116, 16, v10")
    a("v_and_b32 v117, 0xffff0000, v10")
    a("v_lshlrev_b32 v118, 16, v11")
    a("v_and_b32 v119, 0xffff0000, v11")
    for mt in range(3): a(f"v_cvt_f32_u32 v{112+mt}, v{112+mt}")
    a("s_nop 0")
    for mt in range(2):
        for i in range(4):
            a(f"v_add_f32_dpp v{OD+4*mt+i}, v{OD+4*mt+4+i}, v{OD+4*mt+i} row_shr:12 row_mask:0xf bank_mask:0xf bound_ctrl:0")
    for mt in range(3):
        for i in range(4):
            a(f"v_mul_f32 v{120+i}, v{112+mt}, v{116+i}")
            a(f"v_fma_f32 v{120+i}, v{OD+4*mt+i}, s74, v{120+i}")
        a(f"v_cvt_pk_bf16_f32 v{124+2*mt}, v120, v121")
        a(f"v_cvt_pk_bf16_f32 v{125+2*mt}, v122, v123")
        a(f"buffer_store_dwordx2 {pr(124+2*mt)}, v{13 if mt == 0 else 14}, s[44:47], s{(69,72,73)[mt]} offen")
    stamp(a, opt, 10)
    if opt.get("stamps"): a("s_waitcnt vmcnt(0)")
    stamp(a, opt, 11)
    a.label("K2_END2")
    stamp_out(a, opt, 22, 0xF80000, 24)
    a.label("K2_END")
    a("s_endpgm")
    a.label("K2_SLOW")
    a("s_setprio 0")
    a("s_mov_b32 s70, -1")
    a("s_waitcnt vmcnt(0) lgkmcnt(0)")
    a("s_barrier")
    a("v_lshlrev_b32 v2, 4, v0")
    a(f"v_add_u32 v2, {OH}, v2")
    for i in range(4): a(f"v_mov_b32 v{4+i}, 0")
    for i in range(4): a(f"ds_write_b128 v2, v[4:7] offset:{i*12288}")
    a("v_lshlrev_b32 v3, 2, v1")
    a(f"v_add_u32 v3, {CNT}, v3")
    a("ds_write_b32 v3, v4")
    srd(a, 84, "s8", "s9", E * 4)
    srd(a, 88, "s10", "s11", E * 4)
    srd(a, 92, "s22", "s23", N * 512)
    a("v_and_b32 v8, 31, v1")
    a("v_lshlrev_b32 v8, 4, v8")
    a("v_lshrrev_b32 v9, 5, v1")
    a("v_lshl_add_u32 v8, v9, 10, v8")
    a("s_lshl_b32 s72, s25, 11")
    a(f"s_add_u32 s72, s72, {WCF_OFF - CELL_OFF}")
    a("buffer_load_dwordx4 v[16:19], v8, s[40:43], s72 offen")
    a("buffer_load_dwordx4 v[20:23], v8, s[40:43], s72 offen offset:512")
    a("v_lshlrev_b32 v10, 1, v1")
    a("v_add_u32 v10, s58, v10")
    a("v_lshlrev_b32 v11, 1, v10")
    a(f"v_add_u32 v11, {OH}, v11")
    a("v_lshlrev_b32 v12, 2, v1")
    a("v_mov_b32 v13, 1")
    a("s_waitcnt vmcnt(0)")
    for k in range(8):
        a(f"v_lshlrev_b32 v{24+2*k}, 16, v{16+k}")
        a(f"v_and_b32 v{25+2*k}, 0xffff0000, v{16+k}")
    a("s_waitcnt lgkmcnt(0)")
    a("s_barrier")
    a("s_mov_b32 s66, s26")
    a.label("K2_SL_BLK")
    a("s_lshl_b32 s67, s66, 8")
    a("buffer_load_dword v40, v12, s[88:91], s67 offen")
    a("buffer_load_dword v41, v12, s[84:87], s67 offen")
    a("s_waitcnt vmcnt(0)")
    a("v_and_b32 v42, 255, v40")
    a("v_cmp_eq_u32 vcc, s2, v42")
    a("s_nop 1")
    a("s_mov_b64 s[68:69], vcc")
    a.label("K2_SL_E")
    a("s_cmp_eq_u64 s[68:69], 0")
    a("s_cbranch_scc1 K2_SL_NB")
    a("s_ff1_i32_b64 s72, s[68:69]")
    a("s_bitset0_b64 s[68:69], s72")
    a("v_readlane_b32 s73, v40, s72")
    a("v_readlane_b32 s74, v41, s72")
    a("s_lshl_b32 s75, s66, 6")
    a("s_add_u32 s75, s75, s72")
    a("s_lshl_b32 s75, s75, 5")
    a("s_load_dwordx8 s[76:83], s[6:7], s75")
    a("s_lshl_b32 s74, s74, 9")
    a("s_lshl_b32 s75, s73, 9")
    a("s_lshr_b32 s73, s73, 8")
    a("s_nop 2")
    a("buffer_load_ushort v43, v10, s[92:95], s74 offen")
    a("buffer_load_ushort v44, v10, s[36:39], s75 offen")
    a("s_waitcnt vmcnt(0) lgkmcnt(0)")
    a("v_lshlrev_b32 v43, 16, v43")
    a("v_lshlrev_b32 v44, 16, v44")
    a("v_add_f32 v43, v43, v44")
    for k in range(8):
        a(f"s_lshl_b32 s74, s{76+k}, 16")
        a(f"v_fmac_f32 v43, s74, v{24+2*k}")
        a(f"s_and_b32 s74, s{76+k}, 0xffff0000")
        a(f"v_fmac_f32 v43, s74, v{25+2*k}")
    a("v_exp_f32 v44, v43")
    a("s_lshl_b32 s74, s73, 10")
    a("v_add_f32 v44, 1.0, v44")
    a("v_rcp_f32 v44, v44")
    a("v_add_u32 v45, s74, v11")
    a("v_mul_f32 v43, v43, v44")
    a("ds_add_f32 v45, v43")
    a("s_cmp_lg_u32 s25, 0")
    a("s_cbranch_scc1 K2_SL_E")
    a("s_lshl_b32 s74, s73, 2")
    a(f"s_add_u32 s74, s74, {CNT}")
    a("v_mov_b32 v45, s74")
    a("s_mov_b64 exec, 1")
    a("ds_add_u32 v45, v13")
    a("s_mov_b64 exec, -1")
    a("s_branch K2_SL_E")
    a.label("K2_SL_NB")
    a("s_add_u32 s66, s66, 3")
    a(f"s_cmp_lt_u32 s66, {E // 64}")
    a("s_cbranch_scc1 K2_SL_BLK")
    a("s_waitcnt lgkmcnt(0)")
    a("s_barrier")
    a("v_and_b32 v2, 31, v1")
    a("v_lshrrev_b32 v3, 5, v1")
    a("s_mov_b32 s66, 0")
    a.label("K2_SL_CV")
    a("v_add_u32 v4, s66, v3")
    a("v_add_u32 v5, s71, v4")
    a("s_cmp_lt_u32 s66, 4")
    a("s_cselect_b32 s67, s26, 0")
    a("s_cmp_lg_u32 s67, 0")
    a("s_cbranch_scc0 K2_SL_NZ")
    a("v_mov_b32 v5, 47")
    a.label("K2_SL_NZ")
    a("v_lshlrev_b32 v5, 10, v5")
    a("v_lshl_add_u32 v5, v2, 3, v5")
    a("s_lshl_b32 s67, s58, 1")
    a(f"s_add_u32 s67, s67, {OH}")
    a("v_add_u32 v5, s67, v5")
    a("ds_read_b64 v[6:7], v5")
    a(f"v_mul_u32_u24 v4, {HSTR}, v4")
    a("v_lshl_add_u32 v4, v2, 2, v4")
    a("v_add_u32 v4, s57, v4")
    a("s_waitcnt lgkmcnt(0)")
    a("v_cvt_pk_bf16_f32 v6, v6, v7")
    a("ds_write_b32 v4, v6")
    a("s_add_u32 s66, s66, 2")
    a("s_cmp_lt_u32 s66, 16")
    a("s_cbranch_scc1 K2_SL_CV")
    a("s_branch K2_FIN")
    a.loop = (loop_start, loop_end)
    return a, (152 if opt.get('stamps') else NV2), (102 if opt.get('stamps') else 100)
```

```python
import sys, re
from asmlib import *
from k1 import *
from k2 import *

def gen_diag(code):
    kern = code // 1000; idx = (code % 1000) // 10; mx = code % 10
    off = 0xF00000 if kern == 1 else 0xF80000
    nwg = K1_WGS if kern == 1 else 256
    nw = 8
    a = Asm()
    a.label("mpnn_diag_kernel")
    a("s_cmp_ge_u32 s2, 1")
    a("s_cbranch_scc1 KD_END")
    a("s_load_dwordx2 s[4:5], s[0:1], 80")
    a("s_memrealtime s[6:7]")
    a("v_lshlrev_b32 v1, 10, v0")
    a("s_waitcnt lgkmcnt(0)")
    a(f"s_add_u32 s8, s4, {off}")
    a("s_addc_u32 s9, s5, 0")
    a(f"s_mov_b32 s10, {nwg*1024}")
    a("s_mov_b32 s11, 0x00020000")
    a(f"v_mov_b32 v2, {-1 if mx else 0}")
    for i in range((nwg + 63) // 64):
        a(f"s_mov_b32 s12, {i*65536}")
        for w in range(nw):
            a(f"buffer_load_dword v{8+w}, v1, s[8:11], s12 offen offset:{w*64+idx*4}")
        a("s_waitcnt vmcnt(0)")
        for w in range(nw):
            a(f"v_cmp_ne_u32 vcc, 0, v{8+w}")
            a(f"v_sub_u32 v3, s6, v{8+w}")
            a("s_nop 0")
            a(f"v_cndmask_b32 v3, v2, v3, vcc")
            a(f"v_{'min' if mx else 'max'}_u32 v2, v2, v3")
    a(f"s_mov_b32 s13, {-1 if mx else 0}")
    a("s_nop 1")
    for l in range(64):
        a(f"v_readlane_b32 s14, v2, {l}")
        a("s_nop 0")
        a(f"s_{'min' if mx else 'max'}_u32 s13, s13, s14")
    a("s_min_u32 s13, s13, 10000")
    a("s_sub_u32 s13, s6, s13")
    a.label("KD_SPIN")
    a("s_memrealtime s[6:7]")
    a("s_waitcnt lgkmcnt(0)")
    a("s_sub_u32 s14, s6, s13")
    a("s_cmp_lt_u32 s14, 10000")
    a("s_cbranch_scc1 KD_SPIN")
    a.label("KD_END")
    a("s_endpgm")
    return a, 24, 24

def build(opt):
    hdr = open("standalone__edge_featured_mpnn_mpnn__graph.s.ref").read().split("\n")
    hdr = [l for l in hdr if l.startswith(";")][:12]
    out = "\n".join(hdr) + "\n"
    for _ in range(opt.get("pre_empty", 0)):
        out += "; @launch kernel=mpnn_empty_kernel grid=(256,1,1) block=(64,1,1) lds=0\n"
    out += f"; @launch kernel=mpnn_pre_kernel grid=({K1_WGS},1,1) block=(512,1,1) lds={K1_LDS}\n"
    if not opt.get("k1only"):
        out += f"; @launch kernel=mpnn_main_kernel grid=(256,1,1) block=(768,1,1) lds={K2_LDS}\n"
    for _ in range(opt.get("post_empty", 0)):
        out += "; @launch kernel=mpnn_empty_kernel grid=(256,1,1) block=(64,1,1) lds=0\n"
    if "diag" in opt:
        out += "; @launch kernel=mpnn_diag_kernel grid=(1,1,1) block=(64,1,1) lds=0\n"
    out += '.amdgcn_target "amdgcn-amd-amdhsa--gfx950"\n.text\n'
    ks = [("mpnn_pre_kernel",) + gen_k1(opt), ("mpnn_main_kernel",) + gen_k2(opt)]
    if opt.get("pre_empty") or opt.get("post_empty"):
        e = Asm(); e.label("mpnn_empty_kernel"); e("s_endpgm")
        ks.append(("mpnn_empty_kernel", e, 8, 8))
    if "diag" in opt:
        ks.append(("mpnn_diag_kernel",) + gen_diag(opt["diag"]))
    errs = []
    for name, a, nv, ns in ks:
        errs += check_hazards(a.lines, name)
        if hasattr(a, "loop"):
            b = a.lines[a.loop[0]:a.loop[1]]
            errs += check_hazards(b[-40:] + b[:40], name + " backedge")
        out += f".globl {name}\n.p2align 8\n.type {name},@function\n" + a.text()
    out += '.section .rodata,"a"\n'
    for name, a, nv, ns in ks:
        out += f""".p2align 6
.amdhsa_kernel {name}
  .amdhsa_next_free_vgpr {nv}
  .amdhsa_next_free_sgpr {ns}
  .amdhsa_accum_offset {(nv + 3) // 4 * 4}
  .amdhsa_group_segment_fixed_size 0
  .amdhsa_kernarg_size 88
  .amdhsa_user_sgpr_count 2
  .amdhsa_user_sgpr_kernarg_segment_ptr 1
  .amdhsa_system_sgpr_workgroup_id_x 1
  .amdhsa_float_denorm_mode_32 3
.end_amdhsa_kernel
"""
    return out, errs

if __name__ == "__main__":
    opt = {}
    dst = "standalone__edge_featured_mpnn_mpnn__graph.s"
    for x in sys.argv[1:]:
        if x.endswith(".s"): dst = x
        else:
            k, _, val = x.partition("=")
            opt[k] = int(val) if val else 1
    out, errs = build(opt)
    for e in errs: print(e)
    open(dst, "w").write(out)
    print("wrote", dst, len(out), "bytes; hazards:", len(errs))
```

```python
from asmlib import *

N = 10000; E = 320000
P_OFF = 0
CELL_OFF = 0xA00000
W2F_OFF = 0xE00000
W1BF_OFF = 0xE10000
WCF_OFF = 0xE20000
FRAG_BYTES = 0x22000
NSORT = 128
CHUNK = 2500
NGEMM = 157
K1_WGS = NSORT + NGEMM
K1_LDS = 81920
NEGLOG2E = 0xBFB8AA3B
OVF = 0xFFFFFFFE

def srd(a, r, lo, hi, size):
    a(f"s_mov_b32 s{r}, {lo}")
    a(f"s_mov_b32 s{r+1}, {hi}")
    a(f"s_mov_b32 s{r+2}, {size}")
    a(f"s_mov_b32 s{r+3}, 0x00020000")

def srd_ws(a, r, wslo, off, size):
    a(f"s_add_u32 s{r}, s{wslo}, {off}")
    a(f"s_addc_u32 s{r+1}, s{wslo+1}, 0")
    a(f"s_mov_b32 s{r+2}, {size}")
    a(f"s_mov_b32 s{r+3}, 0x00020000")

STAMPV = 150
def stamp(a, opt, idx, vreg=STAMPV, sreg=96):
    if not opt.get("stamps"): return
    a(f"s_memrealtime s[{sreg}:{sreg+1}]")
    a("s_waitcnt lgkmcnt(0)")
    a(f"v_writelane_b32 v{vreg}, s{sreg}, {idx}")
def stamp_clk(a, opt, idx, vreg=STAMPV, sreg=96):
    if not opt.get("stamps"): return
    a(f"s_memtime s[{sreg}:{sreg+1}]")
    a("s_waitcnt lgkmcnt(0)")
    a(f"v_writelane_b32 v{vreg}, s{sreg}, {idx}")
def stamp_out(a, opt, wslo, off, wavereg, vreg=STAMPV, sreg=96, tmpv=151):
    if not opt.get("stamps"): return
    a(f"s_add_u32 s{sreg}, s{wslo}, {off}")
    a(f"s_addc_u32 s{sreg+1}, s{wslo+1}, 0")
    a(f"s_mov_b32 s{sreg+2}, 0x80000")
    a(f"s_mov_b32 s{sreg+3}, 0x00020000")
    a(f"s_lshl_b32 s100, s2, 4")
    a(f"s_add_u32 s100, s100, s{wavereg}")
    a(f"s_lshl_b32 s100, s100, 6")
    a(f"v_mbcnt_lo_u32_b32 v{tmpv}, -1, 0")
    a(f"v_lshlrev_b32 v{tmpv}, 2, v{tmpv}")
    a("s_mov_b64 exec, 0xffff")
    a(f"buffer_store_dword v{vreg}, v{tmpv}, s[{sreg}:{sreg+3}], s100 offen")
    a("s_mov_b64 exec, -1")

def stamp_out2(a, opt, wslo, off, wavereg, vreg, sreg=96, tmpv=151):
    a(f"s_add_u32 s{sreg}, s{wslo}, {off}")
    a(f"s_addc_u32 s{sreg+1}, s{wslo+1}, 0")
    a(f"s_lshl_b32 s100, s100, 1")
    a("s_mov_b64 exec, 0xffffffff")
    a(f"buffer_store_dword v{vreg}, v{tmpv}, s[{sreg}:{sreg+3}], s100 offen")
    a("s_mov_b64 exec, -1")

def gen_k1(opt=None):
    opt = opt or {}
    SV = 120
    SFD = {0: "", 1: " sc1", 2: " sc0 sc1", 3: " nt", 4: " nt sc1"}
    SF = SFD[opt.get("sf", 1)]
    SFG = SFD[opt.get("sfg", 0)]
    NT = " nt" if opt.get("knt", 1) else ""
    a = Asm()
    a.label("mpnn_pre_kernel")
    a(f"s_cmp_ge_u32 s2, {K1_WGS}")
    a("s_cbranch_scc1 K1_END")
    if opt.get("stamps"): a(f"v_mov_b32 v{SV}, 0")
    stamp(a, opt, 0, SV)
    a("s_load_dwordx16 s[4:19], s[0:1], 0")
    a("s_load_dwordx2 s[20:21], s[0:1], 80")
    a("v_lshrrev_b32 v1, 6, v0")
    a("v_and_b32 v2, 63, v0")
    a("v_readfirstlane_b32 s22, v1")
    a(f"s_cmp_lt_u32 s2, {NSORT}")
    a("s_cbranch_scc1 K1_SORT")
    XI = 65536
    a(f"s_sub_u32 s25, s2, {NSORT}")
    a("s_lshr_b32 s26, s22, 2")
    a("s_and_b32 s27, s22, 3")
    a("v_lshrrev_b32 v5, 5, v2")
    a("v_and_b32 v6, 31, v2")
    a("v_lshlrev_b32 v7, 2, v5")
    a("v_xor_b32 v7, v7, v6")
    a("v_lshlrev_b32 v7, 4, v7")
    a("v_lshl_add_u32 v3, v5, 9, v7")
    a("v_xor_b32 v4, 0x80, v3")
    a("v_lshrrev_b32 v10, 4, v2")
    a("s_lshl_b32 s44, s22, 3")
    a("v_add_u32 v10, s44, v10")
    a("v_xor_b32 v11, v10, v2")
    a("v_and_b32 v11, 15, v11")
    a("v_lshlrev_b32 v11, 4, v11")
    a("v_lshl_add_u32 v8, v10, 8, v11")
    a("v_xor_b32 v9, 64, v8")
    a("s_lshl_b32 s45, s22, 12")
    a("s_add_u32 s47, s45, 32768")
    a("s_lshl_b32 s48, s25, 14")
    a("s_lshl_b32 s49, s22, 11")
    a(f"s_add_u32 m0, s49, {XI}")
    a("s_waitcnt lgkmcnt(0)")
    srd(a, 32, "s4", "s5", N * 256)
    srd(a, 28, "s12", "s13", 272 * 512)
    a(f"buffer_load_dwordx4 v8, s[32:35], s48 offen{NT} lds")
    a(f"buffer_load_dwordx4 v9, s[32:35], s48 offen offset:1024{NT} lds")
    a("s_mov_b32 m0, s45")
    a("s_nop 0")
    for k in range(4):
        a(f"buffer_load_dwordx4 v{3 + (k & 1)}, s[28:31], s45 offen offset:{k*1024} lds")
    a("s_mov_b32 m0, s47")
    a("s_nop 0")
    for k in range(4):
        a(f"buffer_load_dwordx4 v{3 + (k & 1)}, s[28:31], s47 offen offset:{k*1024} lds")
    a("s_lshl_b32 s50, s27, 7")
    srd(a, 36, "s20", "s21", (N + 1) * 512)
    if opt.get("dupst"): srd_ws(a, 40, 20, opt["dupst"] << 20, (N + 1) * 512)
    a("v_and_b32 v17, 15, v2")
    a("v_xor_b32 v17, v17, v5")
    a("v_lshlrev_b32 v17, 4, v17")
    a("v_lshl_add_u32 v16, v6, 8, v17")
    a("s_lshl_b32 s51, s26, 13")
    a(f"s_add_u32 s51, s51, {XI}")
    a("v_add_u32 v16, s51, v16")
    for sidx in range(1, 8):
        a(f"v_xor_b32 v{16+sidx}, {sidx << 5}, v16")
    a("v_bfe_u32 v26, v2, 2, 2")
    a("v_lshl_add_u32 v27, v5, 3, v26")
    a("v_and_b32 v28, 3, v2")
    a("v_lshlrev_b32 v28, 3, v28")
    a("v_bfe_u32 v29, v2, 4, 1")
    a("v_lshl_add_u32 v28, v29, 5, v28")
    a("v_add_u32 v28, s50, v28")
    a("v_lshlrev_b32 v26, 6, v26")
    a("v_xor_b32 v28, v28, v26")
    a("v_lshl_add_u32 v24, v27, 9, v28")
    a("v_xor_b32 v25, 64, v24")
    a("v_lshlrev_b32 v13, 2, v6")
    a("v_lshl_add_u32 v13, v5, 11, v13")
    a("v_add_u32 v13, s50, v13")
    a("s_lshl_b32 s52, s25, 15")
    a("s_lshl_b32 s51, s26, 14")
    a("s_add_u32 s52, s52, s51")
    a("s_add_u32 s53, s52, 4096")
    a("s_add_u32 s54, s52, 8192")
    a("s_add_u32 s55, s52, 12288")
    a(f"s_mov_b32 s56, {NEGLOG2E:#x}")
    a(f"s_mov_b32 s57, {NEGLOG2E:#x}")
    stamp(a, opt, 1, SV)
    a("s_waitcnt vmcnt(4)")
    stamp(a, opt, 2, SV)
    a("s_barrier")
    AF = 32; BF = 48; DA = 80; DB = 96
    def reads(sidx):
        st = sidx & 3
        a(f"ds_read_b128 {v(AF+4*st,4)}, v{16+sidx}")
        for X in range(2):
            for e in range(2):
                a(f"ds_read_b64_tr_b16 {v(BF+8*st+4*X+2*e,2)}, v{24+X} offset:{sidx*8192+e*2048}")
    def mm(sidx):
        st = sidx & 3
        ca = "0" if sidx == 0 else v(DA, 16)
        cb = "0" if sidx == 0 else v(DB, 16)
        a(f"v_mfma_f32_32x32x16_bf16 {v(DA,16)}, {v(AF+4*st,4)}, {v(BF+8*st,4)}, {ca}")
        a(f"v_mfma_f32_32x32x16_bf16 {v(DB,16)}, {v(AF+4*st,4)}, {v(BF+8*st+4,4)}, {cb}")
    reads(0); reads(1); reads(2)
    a("s_waitcnt lgkmcnt(10)"); mm(0); reads(3)
    a("s_waitcnt lgkmcnt(10)"); mm(1)
    a("s_waitcnt vmcnt(0)")
    a("s_barrier")
    reads(4)
    a("s_waitcnt lgkmcnt(10)"); mm(2); reads(5)
    a("s_waitcnt lgkmcnt(10)"); mm(3); reads(6)
    a("s_waitcnt lgkmcnt(10)"); mm(4); reads(7)
    a("s_waitcnt lgkmcnt(10)"); mm(5)
    a("s_waitcnt lgkmcnt(5)"); mm(6)
    a("s_waitcnt lgkmcnt(0)"); mm(7)
    a("s_nop 10")
    stamp(a, opt, 3, SV)
    for r in range(0, 16, 2):
        a(f"v_pk_mul_f32 {v(DA+r,2)}, {v(DA+r,2)}, s[56:57]")
        a(f"v_pk_mul_f32 {v(DB+r,2)}, {v(DB+r,2)}, s[56:57]")
        for rr in (r, r + 1):
            a(f"v_cvt_pk_bf16_f32 v{AF+rr}, v{DA+rr}, v{DB+rr}")
            if opt.get("nogst"): continue
            a(f"buffer_store_dword v{AF+rr}, v13, s[36:39], s{52 + (rr >> 2)} offen offset:{(rr & 3)*512}{SFG}")
            if opt.get("dupst"): a(f"buffer_store_dword v{AF+rr}, v13, s[40:43], s{52 + (rr >> 2)} offen offset:{(rr & 3)*512}{SFG}")
    stamp(a, opt, 4, SV)
    if opt.get("stamps"): a("s_waitcnt vmcnt(0)")
    stamp(a, opt, 5, SV)
    stamp_out(a, opt, 20, 0xF00000, 22, SV, tmpv=121)
    a("s_endpgm")
    a.label("K1_SORT")
    CNT = 32768
    NX = (2 if opt.get("epf", 0) else 0) + (1 if opt.get("cpf", 1) else 0)
    a("v_lshlrev_b32 v3, 2, v0")
    a("v_add_u32 v4, 4096, v3")
    a("v_add_u32 v5, 8192, v3")
    a(f"s_mul_i32 s23, s2, {CHUNK*4}")
    a("s_add_u32 s59, s2, 128")
    a("s_cmp_lt_u32 s2, 8")
    a("s_cselect_b32 s59, s59, -1")
    a("s_cmp_eq_u32 s22, 1")
    a("s_cselect_b32 s58, s59, -1")
    a("s_cmp_eq_u32 s22, 0")
    a("s_cselect_b32 s58, s2, s58")
    a("s_cmp_eq_u32 s58, -1")
    a("s_waitcnt lgkmcnt(0)")
    srd(a, 28, "s8", "s9", E * 4)
    srd(a, 32, "s10", "s11", E * 4)
    a("s_cbranch_scc1 K1_NOPREP")
    a("s_cmp_ge_u32 s58, 64")
    a("s_cbranch_scc1 K1_PREP1")
    srd(a, 44, "s16", "s17", 256 * 256)
    a("v_and_b32 v40, 15, v2")
    a("v_lshlrev_b32 v40, 1, v40")
    a("v_lshrrev_b32 v41, 4, v2")
    a("v_lshl_add_u32 v40, v41, 10, v40")
    a("v_add_u32 v41, 8192, v40")
    a("s_bfe_u32 s24, s2, 0x20001")
    a("s_lshl_b32 s24, s24, 14")
    a("s_and_b32 s25, s2, 1")
    a("s_lshl_b32 s25, s25, 12")
    a("s_add_u32 s24, s24, s25")
    a("s_lshr_b32 s25, s2, 3")
    a("s_lshl_b32 s25, s25, 5")
    a("s_add_u32 s24, s24, s25")
    for e in range(8):
        a(f"buffer_load_ushort v{48+e}, v{40 + (e & 1)}, s[44:47], s24 offen offset:{(e >> 1)*256}")
    a("s_branch K1_NOPREP")
    a.label("K1_PREP1")
    srd(a, 44, "s12", "s13", 272 * 512)
    a("v_and_b32 v42, 1, v2")
    a("v_lshlrev_b32 v42, 6, v42")
    a("v_and_b32 v43, 30, v2")
    a("v_add_u32 v42, v42, v43")
    a("v_lshrrev_b32 v43, 5, v2")
    a("v_lshl_add_u32 v42, v43, 12, v42")
    a("s_bfe_u32 s26, s2, 0x30003")
    a("s_and_b32 s27, s2, 7")
    a("s_cmp_ge_u32 s58, 128")
    a("s_cselect_b32 s26, s27, s26")
    a("s_cselect_b32 s27, 8, s27")
    a("s_lshr_b32 s24, s26, 1")
    a("s_lshl_b32 s24, s24, 7")
    a("s_and_b32 s25, s26, 1")
    a("s_lshl_b32 s25, s25, 5")
    a("s_add_u32 s24, s24, s25")
    a("s_lshl_b32 s27, s27, 13")
    a("s_add_u32 s24, s24, s27")
    a(f"s_add_u32 s24, s24, {128*512}")
    for e in range(8):
        a(f"buffer_load_ushort v{48+e}, v42, s[44:47], s24 offen offset:{e*512}")
    a.label("K1_NOPREP")
    for i in range(5):
        a(f"buffer_load_dword v{10+i}, v{3 + (i >> 1)}, s[32:35], s23 offen offset:{(i & 1)*2048}{NT}")
    for i in range(5):
        a(f"buffer_load_dword v{16+i}, v{3 + (i >> 1)}, s[28:31], s23 offen offset:{(i & 1)*2048}{NT}")
    a("v_mov_b32 v24, -1\nv_mov_b32 v25, -1\nv_mov_b32 v26, -1\nv_mov_b32 v27, -1")
    a("v_mov_b32 v28, 0")
    a("v_lshlrev_b32 v6, 4, v0")
    for i in range(4):
        a(f"ds_write_b128 v6, v[24:27] offset:{i*8192}")
    a(f"ds_write_b32 v3, v28 offset:{CNT}")
    srd_ws(a, 36, 20, CELL_OFF, 256 * 128 * 128)
    srd_ws(a, 40, 20, W2F_OFF, FRAG_BYTES)
    a("v_mov_b32 v29, 1")
    a(f"v_mov_b32 v30, {OVF - (1 << 32)}")
    a("v_lshlrev_b32 v31, 6, v0")
    a("v_lshrrev_b32 v44, 3, v0")
    a("v_xor_b32 v45, v44, v0")
    a("v_and_b32 v45, 7, v45")
    a("v_lshlrev_b32 v45, 4, v45")
    a("v_lshl_add_u32 v45, v44, 7, v45")
    a("v_and_b32 v46, 7, v0")
    a("v_lshlrev_b32 v46, 4, v46")
    a("v_lshl_add_u32 v46, v44, 14, v46")
    a("s_and_b32 s24, s2, 7")
    a("s_lshl_b32 s24, s24, 4")
    a("s_lshr_b32 s25, s2, 3")
    a("s_or_b32 s24, s24, s25")
    a("s_lshl_b32 s24, s24, 7")
    for i in range(1, 4):
        a(f"s_add_u32 s{24+i}, s24, {i << 20}")
    for i in range(5):
        a(f"v_add_u32 v{84+i}, {i*32768}, v31")
    a(f"v_cmp_gt_u32 vcc, {CHUNK - 2048}, v0")
    a("s_waitcnt lgkmcnt(0)")
    a("s_mov_b64 s[52:53], vcc")
    stamp(a, opt, 1, SV)
    a("s_barrier")
    a("v_lshlrev_b32 v7, 7, v0")
    if opt.get("epf", 0):
        a(f"s_mul_i32 s57, s2, {CHUNK*32}")
        a("s_add_u32 s48, s6, s57")
        a("s_addc_u32 s49, s7, 0")
        a(f"s_mov_b32 s50, {CHUNK*32}")
        a("s_mov_b32 s51, 0x00020000")
        a("s_mov_b32 s57, 65536")
        a("buffer_load_dword v8, v7, s[48:51], 0 offen")
        a("buffer_load_dword v9, v7, s[48:51], s57 offen")
    if opt.get("cpf", 1):
        a("s_getpc_b64 s[60:61]")
        a.label("K1_PC")
        a("s_add_u32 s60, s60, mpnn_main_kernel-K1_PC")
        a("s_addc_u32 s61, s61, 0")
        a("s_mov_b32 s62, K2_REDO-mpnn_main_kernel")
        a("s_mov_b32 s63, 0x00020000")
        a("buffer_load_dword v22, v7, s[60:63], 0 offen")
    if opt.get("stamps"): a(f"s_waitcnt vmcnt({NX})")
    stamp(a, opt, 2, SV)
    for i in range(5):
        a(f"s_waitcnt vmcnt({9 - i + NX})")
        a(f"v_and_b32 v{32+i}, 255, v{10+i}")
        a(f"v_lshlrev_b32 v{32+i}, 2, v{32+i}")
        if i == 4: a("s_mov_b64 exec, s[52:53]")
        a(f"ds_add_rtn_u32 v{60+i}, v{32+i}, v29 offset:{CNT}")
        if i == 4: a("s_mov_b64 exec, -1")
    for i in range(5):
        a(f"s_waitcnt vmcnt({4 - i + NX})")
        a(f"v_lshrrev_b32 v{10+i}, 8, v{10+i}")
        a(f"v_lshl_or_b32 v{10+i}, v{16+i}, 18, v{10+i}")
        a(f"v_or_b32 v{10+i}, v{10+i}, v{84+i}")
        a(f"v_and_b32 v{16+i}, 28, v{32+i}")
        a(f"v_lshlrev_b32 v{32+i}, 3, v{32+i}")
    for i in range(5):
        a("s_waitcnt lgkmcnt(4)")
        a(f"v_cmp_lt_u32 vcc, 30, v{60+i}")
        a(f"v_min_u32 v{60+i}, 31, v{60+i}")
        a(f"v_xad_u32 v{60+i}, v{60+i}, v{16+i}, v{32+i}")
        a(f"v_cndmask_b32 v{10+i}, v{10+i}, v30, vcc")
        a(f"v_lshlrev_b32 v{60+i}, 2, v{60+i}")
        if i == 4: a("s_mov_b64 exec, s[52:53]")
        a(f"ds_write_b32 v{60+i}, v{10+i}")
        if i == 4: a("s_mov_b64 exec, -1")
    a("s_waitcnt lgkmcnt(0)")
    a("s_barrier")
    stamp(a, opt, 3, SV)
    for i in range(4):
        a(f"ds_read_b128 {v(64+4*i,4)}, v45 offset:{i*8192}")
    for i in range(4):
        a(f"s_waitcnt lgkmcnt({3 - i})")
        if opt.get("nocst"): continue
        a(f"buffer_store_dwordx4 {v(64+4*i,4)}, v46, s[36:39], s{24+i} offen{SF}")
    stamp(a, opt, 4, SV)
    if opt.get("stamps"): a("s_waitcnt vmcnt(0)")
    stamp(a, opt, 5, SV)
    stamp_out(a, opt, 20, 0xF00000, 22, SV, tmpv=121)
    a("s_cmp_eq_u32 s58, -1")
    a("s_cbranch_scc1 K1_END")
    a("v_lshlrev_b32 v6, 4, v2")
    a("s_lshl_b32 s24, s58, 10")
    a("s_cmp_ge_u32 s58, 128")
    a("s_cbranch_scc1 K1_FINC")
    for e in range(4):
        a(f"v_lshl_or_b32 v{56+e}, v{49+2*e}, 16, v{48+2*e}")
    a("buffer_store_dwordx4 v[56:59], v6, s[40:43], s24 offen")
    a("s_endpgm")
    a.label("K1_FINC")
    a(f"s_mov_b32 s25, {NEGLOG2E:#x}")
    for e in range(8):
        a(f"v_lshlrev_b32 v{48+e}, 16, v{48+e}")
        a(f"v_mul_f32 v{48+e}, s25, v{48+e}")
    for e in range(4):
        a(f"v_cvt_pk_bf16_f32 v{56+e}, v{48+2*e}, v{49+2*e}")
    a("buffer_store_dwordx4 v[56:59], v6, s[40:43], s24 offen")
    a.label("K1_END")
    a("s_endpgm")
    return a, (128 if opt.get('stamps') else 112), (102 if opt.get('stamps') else 64)
```

```python
from asmlib import *
from k1 import *

NW = 12
PSLOT = 0
EIM = 49152
OH = 98304
ZERO = 147456
CNT = ZERO + 256
FLAG = ZERO + 512
IDX = ZERO + 3328
EOFF = IDX + 6400
HSTR = 144
K2_LDS = 163840
assert EOFF + 6144 <= K2_LDS
GCAP = 48
KILL = 0x40000000
NEGLN2 = 0xBF317218
aAE = 1; aAP = 2; aAO = 7; aS1 = 8; aS2 = 9; aIDX = 10; aEI = 11; EI = 12; CHK = 14
D = [16, 32]; EX = 48; ACC = 64; BC = [80, 84]; BQ = [88, 92]; ID = [96, 100]
AE = 104; FV = 164; MG = 165; AO = 108; S = 112; AP = [116, 120, 124, 128]; HQ = 132; IX = [136, 138, 140, 142]
WP = 144
NV2 = 168

def pr(r): return v(r, 2)
def q4(r): return v(r, 4)
def x16(r): return v(r, 16)

def mf_tile(Y):
    d = D[Y]
    return [f"v_mfma_f32_32x32x16_bf16 {x16(d)}, {q4(AE)}, {q4(BC[Y])}, 0",
            f"v_mfma_f32_32x32x16_bf16 {x16(d)}, {q4(AO)}, {q4(BQ[Y])}, {x16(d)}",
            f"v_mfma_f32_32x32x16_bf16 {x16(d)}, {q4(AP[2*Y])}, {q4(ID[0])}, {x16(d)}",
            f"v_mfma_f32_32x32x16_bf16 {x16(d)}, {q4(AP[2*Y+1])}, {q4(ID[1])}, {x16(d)}"]
SEGSUM = f"v_mfma_f32_32x32x16_bf16 {x16(ACC)}, {q4(HQ)}, {q4(S)}, {x16(ACC)}"

def tile(X, mf, ex_exp, mid, ex_rcp):
    d = D[X]; out = []; mi = 0
    for i in range(16):
        if i % 3 == 0 and mi < len(mf):
            out.append(mf[mi]); mi += 1
        out.append(f"v_exp_f32 v{EX+i}, v{d+i}")
        out += ex_exp.get(i, [])
    out += mid
    NAB, NCD, DAB, DCD = d, d + 8, EX, EX + 8
    out.append(f"v_pk_add_f32 {pr(DAB)}, {pr(EX)}, 1.0 op_sel_hi:[1,0]")
    out.append(f"v_pk_add_f32 {pr(DCD)}, {pr(EX+8)}, 1.0 op_sel_hi:[1,0]")
    for k in range(1, 4):
        out.append(f"v_pk_fma_f32 {pr(NAB)}, {pr(NAB)}, {pr(EX+2*k)}, {pr(NAB)}")
        out.append(f"v_pk_fma_f32 {pr(NCD)}, {pr(NCD)}, {pr(EX+8+2*k)}, {pr(NCD)}")
        out.append(f"v_pk_fma_f32 {pr(NAB)}, {pr(d+2*k)}, {pr(DAB)}, {pr(NAB)}")
        out.append(f"v_pk_fma_f32 {pr(NCD)}, {pr(d+8+2*k)}, {pr(DCD)}, {pr(NCD)}")
        out.append(f"v_pk_fma_f32 {pr(DAB)}, {pr(DAB)}, {pr(EX+2*k)}, {pr(DAB)}")
        out.append(f"v_pk_fma_f32 {pr(DCD)}, {pr(DCD)}, {pr(EX+8+2*k)}, {pr(DCD)}")
    out.append(f"v_pk_fma_f32 {pr(CHK)}, {pr(DAB)}, {pr(DCD)}, {pr(CHK)}")
    out += ex_rcp
    for r in (DAB, DAB + 1, DCD, DCD + 1):
        out.append(f"v_rcp_f32 v{r}, v{r}")
    out.append(f"v_pk_mul_f32 {pr(NAB)}, {pr(NAB)}, {pr(DAB)}")
    out.append(f"v_pk_mul_f32 {pr(NCD)}, {pr(NCD)}, {pr(DCD)}")
    out.append(f"v_cvt_pk_bf16_f32 v{HQ+2*X}, v{NAB}, v{NAB+1}")
    out.append(f"v_cvt_pk_bf16_f32 v{HQ+2*X+1}, v{NCD}, v{NCD+1}")
    return out

def p_dma():
    out = []
    for k in range(4):
        out.append(f"s_add_u32 m0, s57, {k*1024}")
        out.append("s_nop 0")
        out.append(f"buffer_load_dwordx4 {pr(IX[k])}, s[32:35], s58 idxen offen lds")
    return out

EFL = [""]
def e_dma():
    return ["s_cmp_lt_u32 s61, s53",
            f"s_cselect_b32 s86, {E}, 0",
            f"s_cselect_b32 m0, s59, {K2_LDS:#x}",
            "s_add_u32 s61, s61, 4",
            f"buffer_load_dwordx4 {pr(EI)}, s[84:87], 0 idxen offen{EFL[0]} lds",
            "s_add_u32 s59, s59, 4096"]
NW2 = 5
def w2_pre(vaddr):
    return [f"buffer_load_dwordx4 {q4(WP+4*sidx)}, v{vaddr}, s[40:43], s{73 + (sidx >> 2)} offen offset:{(sidx & 3)*1024}" for sidx in range(NW2)]

def gen_k2(opt=None):
    opt = opt or {}
    EFL[0] = {0: "", 1: " nt", 2: " sc1"}[opt.get("efl", 0)]
    a = Asm()
    def stp(i):
        if opt.get("stamps"):
            a("s_memrealtime s[96:97]"); a("s_waitcnt lgkmcnt(0)"); a(f"v_writelane_b32 v0, s96, {i}")
    def stc(i):
        if opt.get("stamps"):
            a("s_memtime s[96:97]"); a("s_waitcnt lgkmcnt(0)"); a(f"v_writelane_b32 v0, s96, {i}")
    a.label("mpnn_main_kernel")
    a("s_cmp_ge_u32 s2, 256")
    a("s_cbranch_scc1 K2_END")
    a("s_mov_b32 s70, 0")
    a.label("K2_TOP")
    a("s_load_dwordx2 s[22:23], s[0:1], 80")
    a("s_load_dwordx16 s[4:19], s[0:1], 0")
    a("s_load_dwordx2 s[20:21], s[0:1], 64")
    if opt.get("stamps"): a("s_memrealtime s[98:99]")
    a("v_lshrrev_b32 v72, 6, v0")
    a("v_and_b32 v1, 63, v0")
    a("v_readfirstlane_b32 s24, v72")
    a("s_mov_b32 s66, 43691")
    a("v_mul_u32_u24 v72, s66, v0")
    a("v_lshrrev_b32 v72, 18, v72")
    a("v_lshlrev_b32 v24, 4, v0")
    a("v_lshl_add_u32 v25, v72, 5, v24")
    a("v_lshrrev_b32 v73, 1, v0")
    a("v_mul_u32_u24 v26, 96, v73")
    a("v_add_u32 v26, v26, v24")
    a("s_lshl_b32 s66, s2, 14")
    a("s_cmp_lt_u32 s24, 4")
    a(f"s_cselect_b32 s67, s66, {KILL:#x}")
    a("s_and_b32 s25, s24, 3")
    a("s_lshr_b32 s26, s24, 2")
    a("s_mul_i32 s71, s26, 12")
    a("v_lshrrev_b32 v77, 4, v1")
    a("s_lshl_b32 s68, s25, 2")
    a("v_add_u32 v77, s68, v77")
    a("v_xor_b32 v27, v77, v1")
    a("v_and_b32 v27, 15, v27")
    a("v_lshlrev_b32 v27, 4, v27")
    a("v_subrev_u32 v77, s71, v77")
    a("v_and_b32 v77, 15, v77")
    a("v_add_u32 v77, s71, v77")
    a("v_lshl_add_u32 v27, v77, 16, v27")
    a("s_lshl_b32 s68, s2, 8")
    a("s_lshl_b32 s56, s26, 14")
    a(f"s_add_u32 s56, s56, {EIM}")
    a("s_lshl_b32 s69, s25, 10")
    a("s_add_u32 s59, s56, s69")
    a("s_add_u32 m0, s59, 4096")
    a("v_lshlrev_b32 v28, 4, v1")
    a("s_waitcnt lgkmcnt(0)")
    srd_ws(a, 40, 22, CELL_OFF, (W2F_OFF - CELL_OFF) + FRAG_BYTES)
    a("buffer_load_dwordx4 v[16:19], v25, s[40:43], s66 offen")
    a("buffer_load_dwordx4 v[20:23], v26, s[40:43], s67 offen offset:96")
    srd(a, 36, "s4", "s5", N * 256)
    a("buffer_load_dwordx4 v27, s[36:39], s68 offen lds")
    a("s_lshl_b32 s66, s24, 13")
    a(f"s_add_u32 s73, s66, {W2F_OFF - CELL_OFF}")
    a(f"s_add_u32 s54, s66, {W1BF_OFF - CELL_OFF}")
    a("s_cmp_lt_u32 s24, 8")
    a(f"s_cselect_b32 s54, s54, {KILL:#x}")
    a(f"s_cselect_b32 s73, s73, {KILL:#x}")
    a("s_add_u32 s55, s54, 4096")
    a("s_add_u32 s74, s73, 4096")
    WB = 32
    L16 = 6
    a(f"v_mov_b32 v{L16}, v28")
    def wb_load(sidx):
        a(f"buffer_load_dwordx4 {q4(WB+4*sidx)}, v{L16}, s[40:43], s{54 + (sidx >> 2)} offen offset:{(sidx & 3)*1024}")
    a("s_lshl_b32 s72, s25, 11")
    a(f"s_add_u32 s72, s72, {WCF_OFF - CELL_OFF}")
    srd(a, 48, "s14", "s15", 512)
    a("v_and_b32 v29, 1, v1")
    a("v_and_b32 v30, 30, v1")
    a("v_lshl_add_u32 v29, v29, 6, v30")
    a("s_lshr_b32 s61, s24, 1")
    a("s_lshl_b32 s61, s61, 7")
    a("s_and_b32 s67, s24, 1")
    a("s_lshl_b32 s67, s67, 5")
    a("s_add_u32 s61, s61, s67")
    BIAS = 112
    a(f"v_add_u32 v156, {OH}, v24")
    for i in range(4): a(f"v_mov_b32 v{144+i}, 0")
    for i in range(4): a(f"ds_write_b128 v156, v[144:147] offset:{i*12288}")
    a(f"v_mov_b32 v31, {N}")
    a(f"v_mov_b32 v152, {E}")
    a(f"v_cmp_gt_u32 vcc, {IDX - ZERO}, v24")
    a(f"s_mov_b32 s66, {EOFF - ZERO}")
    a("v_cmp_le_u32 s[68:69], s66, v24")
    a("v_cndmask_b32 v148, v31, v144, vcc")
    a("v_mov_b32 v153, v152")
    a("v_cndmask_b32 v148, v148, v152, s[68:69]")
    a("v_mov_b32 v154, v152")
    a("v_mov_b32 v155, v152")
    for i in range(1, 4): a(f"v_mov_b32 v{148+i}, v148")
    a(f"ds_write_b128 v156, v[148:151] offset:{4*12288}")
    a("s_cmp_lt_u32 s24, 4")
    a("s_cbranch_scc0 K2_I1")
    a(f"ds_write_b128 v156, v[152:155] offset:{5*12288}")
    a.label("K2_I1")
    if opt.get("stamps"):
        a("v_mov_b32 v0, 0"); a("v_writelane_b32 v0, s98, 0")
    a("s_mov_b32 s28, s6")
    a("s_and_b32 s29, s7, 0xffff")
    a(f"s_or_b32 s29, s29, {32 << 16:#x}")
    a(f"s_mov_b32 s30, {E}")
    a("s_mov_b32 s31, 0x00020000")
    a("s_mov_b32 s32, s22")
    a("s_and_b32 s33, s23, 0xffff")
    a(f"s_or_b32 s33, s33, {512 << 16:#x}")
    a(f"s_mov_b32 s34, {N+1}")
    a("s_mov_b32 s35, 0x00020000")
    srd(a, 44, "s20", "s21", N * 256)
    H_, I_, T0, T1 = 77, 78, 105, 106
    a(f"v_lshrrev_b32 v{H_}, 5, v1")
    a(f"v_and_b32 v{I_}, 31, v1")
    a(f"v_and_b32 v{T0}, 16, v1")
    a(f"v_and_b32 v{T1}, 4, v1")
    a(f"v_lshl_or_b32 v{T0}, v{T1}, 1, v{T0}")
    a(f"v_and_b32 v{T1}, 1, v1")
    a(f"v_lshl_or_b32 v{T0}, v{T1}, 2, v{T0}")
    a(f"v_bfe_u32 v{T1}, v1, 3, 1")
    a(f"v_lshl_or_b32 v{T0}, v{T1}, 1, v{T0}")
    a(f"v_bfe_u32 v{T1}, v1, 1, 1")
    a(f"v_or_b32 v{T0}, v{T0}, v{T1}")
    a("s_lshl_b32 s57, s24, 12")
    a("s_lshl_b32 s58, s25, 7")
    a(f"v_bfe_u32 v{T1}, v{T0}, 1, 3")
    a(f"v_xor_b32 v{T1}, v{T1}, v{H_}")
    a(f"v_lshl_add_u32 v{T1}, v{T1}, 4, s57")
    a(f"v_lshl_add_u32 v{aAP}, v{T0}, 7, v{T1}")
    for m in range(1, 4): a(f"v_xor_b32 v{aAP+m}, {m << 5}, v{aAP}")
    a(f"v_bfe_u32 v{T1}, v{T0}, 3, 1")
    a(f"v_xor_b32 v{T1}, v{T1}, v{H_}")
    a(f"v_lshl_add_u32 v{T1}, v{T1}, 4, s56")
    a(f"v_lshl_add_u32 v113, v{T0}, 5, v{T1}")
    a(f"v_lshlrev_b32 v{T1}, 4, v{H_}")
    a(f"v_lshl_add_u32 v{aAO}, v{T0}, 5, v{T1}")
    a(f"v_and_b32 v{T1}, 62, v1")
    a(f"v_lshlrev_b32 v{aEI}, 1, v{T1}")
    SOFF = 104
    a(f"v_and_b32 v{T1}, 8, v1")
    a(f"v_lshlrev_b32 v{SOFF}, 6, v{T1}")
    a(f"v_lshl_add_u32 v{SOFF}, v{H_}, 8, v{SOFF}")
    a(f"v_and_b32 v{T1}, 4, v1")
    a(f"v_lshl_add_u32 v{SOFF}, v{T1}, 5, v{SOFF}")
    a(f"v_and_b32 v{T1}, 3, v1")
    a(f"v_lshl_add_u32 v{SOFF}, v{T1}, 3, v{SOFF}")
    a("s_mov_b32 s62, 0xffff\ns_mov_b32 s63, 0xffff\ns_mov_b32 s64, 0xffff0000\ns_mov_b32 s65, 0xffff0000")
    a(f"v_lshrrev_b32 v{T1}, 3, v1")
    a(f"v_lshlrev_b32 v{aIDX}, 2, v{T1}")
    a(f"v_lshrrev_b32 v{T1}, 4, v1")
    a(f"v_xor_b32 v{T1}, v{T1}, v1")
    a(f"v_and_b32 v{EI+1}, 1, v{T1}")
    a(f"v_lshlrev_b32 v{EI+1}, 4, v{EI+1}")
    a(f"v_and_b32 v{T1}, 7, v{T1}")
    a(f"v_lshlrev_b32 v{IX[0]+1}, 4, v{T1}")
    a(f"v_xor_b32 v{IX[1]+1}, 64, v{IX[0]+1}")
    a(f"v_mov_b32 v{IX[2]+1}, v{IX[0]+1}")
    a(f"v_mov_b32 v{IX[3]+1}, v{IX[1]+1}")
    a(f"v_and_b32 v{T1}, 1, v1")
    a(f"v_lshlrev_b32 v{T1}, 4, v{T1}")
    a("v_mov_b32 v75, 0x3f80")
    a(f"v_lshlrev_b32 v107, v{T1}, v75")
    a(f"v_lshrrev_b32 v{T1}, 1, v{I_}")
    a(f"v_lshlrev_b32 v{T0}, 2, v{H_}")
    a(f"v_sub_u32 v{T1}, v{T1}, v{T0}")
    for mm in range(2):
        for rho in range(4):
            a(f"v_cmp_eq_u32 s[{76+2*rho}:{77+2*rho}], {8*mm+rho}, v{T1}")
        for rho in range(4):
            a(f"v_cndmask_b32 v{ID[mm]+rho}, 0, v107, s[{76+2*rho}:{77+2*rho}]")
    XA = BQ[0]
    a(f"v_and_b32 v{T0}, 3, v1")
    a(f"v_and_b32 v{T1}, 4, v1")
    a(f"v_lshl_or_b32 v{T0}, v{T1}, 1, v{T0}")
    a(f"v_bfe_u32 v{T1}, v1, 3, 1")
    a(f"v_lshl_or_b32 v{T0}, v{T1}, 2, v{T0}")
    a(f"v_xor_b32 v{T1}, v{T0}, v{H_}")
    a(f"v_lshlrev_b32 v{T1}, 4, v{T1}")
    a(f"v_lshl_add_u32 v{XA}, v{T0}, 8, v{T1}")
    a(f"v_and_b32 v{T1}, 16, v1")
    a(f"v_lshl_add_u32 v{XA}, v{T1}, 10, v{XA}")
    a(f"v_add_u32 v{XA}, {EIM + 4096}, v{XA}")
    for sidx in range(1, 8): a(f"v_xor_b32 v{XA+sidx}, {sidx << 5}, v{XA}")
    a("s_lshl_b32 s66, s24, 10")
    a(f"s_add_u32 s67, s66, {EIM + 8192}")
    a("v_add_u32 v114, s67, v28")
    a("s_lshl_b32 s66, s25, 11")
    a("s_add_u32 s67, s56, s66")
    a("v_add_u32 v115, s67, v28")
    a(f"s_mov_b32 s66, {CHUNK}")
    for r in (72, 73):
        a(f"v_and_b32 v{T1}, 15, v{r}")
        a(f"v_lshrrev_b32 v{r}, 4, v{r}")
        a(f"v_lshl_or_b32 v{r}, v{T1}, 3, v{r}")
        a(f"v_mul_u32_u24 v{r}, s66, v{r}")
    a("v_mov_b32 v74, 1")
    a(f"s_mov_b32 s78, {CNT}")
    a("v_lshl_add_u32 v76, v1, 2, s78")
    a(f"s_mov_b32 s79, {IDX}")
    a(f"s_mov_b32 s80, {OH}")
    a("s_mov_b32 s81, 0")
    wb_load(0); wb_load(1)
    a(f"buffer_load_ushort v{BIAS}, v29, s[48:51], s61 offen")
    a("s_waitcnt lgkmcnt(0)")
    stp(1)
    a("s_barrier")
    a("s_waitcnt vmcnt(4)")
    stp(2)
    def count(base, abase, rbase):
        for k in range(4):
            a(f"v_and_b32 v{abase+k}, 63, v{base+k}")
            a(f"v_lshl_add_u32 v{abase+k}, v{abase+k}, 2, s78")
        for k in range(4):
            a(f"v_cmpx_gt_u32 vcc, -2, v{base+k}")
            a(f"ds_add_rtn_u32 v{rbase+k}, v{abase+k}, v74")
        a("s_mov_b64 exec, -1")
    SB = AP[0]; T = AP[1]
    def decode(base, cbase):
        for k in range(4):
            a(f"v_lshrrev_b32 v{T+k}, {18 + opt.get('pshift', 0)}, v{base+k}")
            a(f"v_bfe_u32 v{T+4+k}, v{base+k}, 6, 12")
            a(f"v_add_u32 v{T+4+k}, v{T+4+k}, v{cbase}")
            if opt.get("eshift"): a(f"v_lshrrev_b32 v{T+4+k}, {opt['eshift']}, v{T+4+k}")
            a(f"v_and_b32 v{T+8+k}, 15, v{base+k}")
            a(f"v_lshl_add_u32 v{T+8+k}, v{T+8+k}, 1, s80")
    def scatter(base, rbase):
        for k in range(4):
            a(f"v_add_u32 v{SB+k}, v{SB+k}, v{rbase+k}")
            a(f"v_lshl_add_u32 v{T+8+k}, v{SB+k}, 5, v{T+8+k}")
            a(f"v_lshl_add_u32 v{SB+k}, v{SB+k}, 2, s79")
        for k in range(4):
            a(f"v_cmpx_gt_u32 vcc, -2, v{base+k}")
            a(f"ds_write2st64_b32 v{SB+k}, v{T+k}, v{T+4+k} offset0:0 offset1:{(EOFF-IDX)//256}")
            a(f"ds_write_b16 v{T+8+k}, v75")
        a("s_mov_b64 exec, -1")
    count(16, 24, 28)
    for sidx in range(2, 6): wb_load(sidx)
    a("v_cmp_ne_u32 vcc, -1, v20")
    decode(16, 72)
    a("s_cmp_ge_u32 s24, 4")
    a("s_cbranch_scc1 K2_C1")
    a("s_cbranch_vccz K2_C1")
    a("s_mov_b32 s81, 1")
    count(20, 64, 68)
    a(f"v_mov_b32 v{T0}, {FLAG}")
    a("v_cmpx_eq_u32 vcc, -2, v23")
    a(f"ds_write_b32 v{T0}, v74")
    a("s_mov_b64 exec, -1")
    a.label("K2_C1")
    a("s_waitcnt lgkmcnt(0)")
    a("s_barrier")
    stp(3)
    a("ds_read_b32 v105, v76")
    a(f"ds_read_b32 v106, v76 offset:{FLAG - CNT}")
    a("s_waitcnt lgkmcnt(1)")
    a("v_add_u32 v105, 3, v105")
    a("v_and_b32 v105, -4, v105")
    a("s_nop 1")
    a("v_add_u32_dpp v107, v105, v105 row_shr:1 row_mask:0xf bank_mask:0xf bound_ctrl:0")
    a("s_nop 1")
    for sh in (2, 4, 8):
        a(f"v_add_u32_dpp v107, v107, v107 row_shr:{sh} row_mask:0xf bank_mask:0xf bound_ctrl:0")
        a("s_nop 1")
    a("v_add_u32_dpp v107, v107, v107 row_bcast:15 row_mask:0xa bank_mask:0xf")
    a("s_waitcnt lgkmcnt(0)")
    a("v_readfirstlane_b32 s82, v106")
    a("v_add_u32_dpp v107, v107, v107 row_bcast:31 row_mask:0xc bank_mask:0xf")
    a("v_sub_u32 v108, v107, v105")
    a("v_readlane_b32 s83, v107, 63")
    for k in range(4): a(f"ds_bpermute_b32 v{SB+k}, v{24+k}, v108")
    wb_load(6); wb_load(7)
    a(f"buffer_load_dwordx4 {q4(BC[0])}, v{L16}, s[40:43], s72 offen")
    a(f"buffer_load_dwordx4 {q4(BC[1])}, v{L16}, s[40:43], s72 offen offset:1024")
    a("s_sub_u32 s82, s82, s70")
    a("s_lshl_b32 s82, s82, 12")
    a("s_add_u32 s82, s82, s83")
    a(f"s_cmp_gt_u32 s82, {GCAP*32}")
    a("s_cbranch_scc1 K2_BAD")
    a("s_waitcnt lgkmcnt(0)")
    scatter(16, 28)
    a("s_cmp_eq_u32 s81, 0")
    a("s_cbranch_scc1 K2_S1")
    a("s_waitcnt lgkmcnt(0)")
    for k in range(4): a(f"ds_bpermute_b32 v{SB+k}, v{64+k}, v108")
    decode(20, 73)
    a("s_waitcnt lgkmcnt(0)")
    scatter(20, 68)
    a.label("K2_S1")
    a("s_add_u32 s83, s83, 31")
    a("s_lshr_b32 s83, s83, 5")
    a("s_add_u32 s88, s83, 2")
    a("s_mul_i32 s88, s88, 171")
    a("v_readlane_b32 s84, v108, 12")
    a("v_readlane_b32 s85, v108, 16")
    a("v_readlane_b32 s86, v108, 24")
    a("v_readlane_b32 s87, v108, 28")
    a("s_lshr_b32 s88, s88, 9")
    a("s_add_u32 s84, s84, 31")
    a("s_lshr_b32 s84, s84, 5")
    a("s_lshr_b32 s85, s85, 5")
    a("s_add_u32 s86, s86, 31")
    a("s_lshr_b32 s86, s86, 5")
    a("s_lshr_b32 s87, s87, 5")
    a("s_cmp_gt_u32 s84, s85")
    a("s_cbranch_scc1 K2_BAD")
    a("s_cmp_gt_u32 s86, s87")
    a("s_cbranch_scc1 K2_BAD")
    if opt.get("force_slow"): a("s_branch K2_BAD")
    a("s_max_u32 s88, s88, s84")
    a("s_min_u32 s88, s88, s85")
    a("s_add_u32 s89, s83, s88")
    a("s_add_u32 s89, s89, 1")
    a("s_lshr_b32 s89, s89, 1")
    a("s_max_u32 s89, s89, s86")
    a("s_min_u32 s89, s89, s87")
    a("s_sub_u32 s90, s89, s88")
    a("s_sub_u32 s91, s83, s89")
    a("s_max_u32 s90, s90, s88")
    a("s_max_u32 s90, s90, s91")
    a("s_cmp_gt_u32 s90, 16")
    a("s_cbranch_scc1 K2_BAD")
    a("s_cmp_eq_u32 s26, 1")
    a("s_cselect_b32 s52, s88, 0")
    a("s_cselect_b32 s53, s89, s88")
    a("s_cmp_eq_u32 s26, 2")
    a("s_cselect_b32 s52, s89, s52")
    a("s_cselect_b32 s53, s83, s53")
    a("s_lshl_b32 s66, s52, 7")
    a(f"s_add_u32 s67, s66, {IDX}")
    a(f"v_add_u32 v{aIDX}, s67, v{aIDX}")
    a(f"s_add_u32 s67, s67, {EOFF - IDX}")
    a(f"v_add_u32 v{aEI}, s67, v{aEI}")
    a("s_sub_u32 s53, s53, s52")
    a("s_waitcnt vmcnt(11) lgkmcnt(0)")
    a("s_barrier")
    stp(4)
    a(f"v_add_u32 v109, s58, v{aEI}")
    for k in range(4): a(f"ds_read_b32 v{IX[k]}, v{aIDX} offset:{k*32}")
    a(f"ds_read_b32 v{EI}, v109")
    a("s_lshl_b32 s66, s52, 10")
    a(f"s_add_u32 s66, s66, {OH}")
    a(f"v_add_u32 v{aAO}, s66, v{aAO}")
    a("s_mov_b32 s55, 0")
    a("s_mov_b32 s60, 0")
    a("s_mov_b32 s61, s25")
    a("s_mov_b32 s84, s28")
    a("s_mov_b32 s85, s29")
    a("s_mov_b32 s87, 0x00020000")
    nfl = [0]
    def first_loads():
        nfl[0] += 1
        a("s_cmp_ge_u32 s25, 2")
        a("s_waitcnt lgkmcnt(0)")
        a(f"s_cbranch_scc1 K2_FL{nfl[0]}")
        a("\n".join(e_dma()))
        a.label(f"K2_FL{nfl[0]}")
        a("\n".join(p_dma()))
    a.label("K2_QG")
    a("s_cmp_lt_u32 s24, 8")
    a("s_cbranch_scc1 K2_QG1")
    a("s_cmp_lg_u32 s70, 0")
    a("s_cbranch_scc1 K2_SLOW")
    first_loads()
    a("s_barrier")
    a("s_branch K2_QD")
    a.label("K2_QG1")
    QA, QB = D[0], ACC
    def xread(sidx):
        st_ = sidx % 3
        a(f"ds_read_b128 {q4(WP+8*st_)}, v{XA+sidx}")
        a(f"ds_read_b128 {q4(WP+8*st_+4)}, v{XA+sidx} offset:32768")
    xread(0); xread(1); xread(2)
    a(f"s_mov_b32 s68, {NEGLOG2E:#x}")
    a(f"s_mov_b32 s69, {NEGLOG2E:#x}")
    a("s_waitcnt vmcnt(2)")
    a(f"v_lshlrev_b32 v{BIAS}, 16, v{BIAS}")
    a(f"v_mul_f32 v{BIAS}, s68, v{BIAS}")
    for sidx in range(8):
        st_ = sidx % 3
        a(f"s_waitcnt lgkmcnt({2*min(2, 7-sidx)})")
        a(f"v_mfma_f32_32x32x16_bf16 {x16(QA)}, {q4(WP+8*st_)}, {q4(WB+4*sidx)}, {'0' if sidx == 0 else x16(QA)}")
        a(f"v_mfma_f32_32x32x16_bf16 {x16(QB)}, {q4(WP+8*st_+4)}, {q4(WB+4*sidx)}, {'0' if sidx == 0 else x16(QB)}")
        if sidx + 3 < 8: xread(sidx + 3)
    a("s_nop 10")
    for wi, base in enumerate((QA, QA + 8, QB)):
        for k in range(4):
            a(f"v_pk_fma_f32 {pr(base+2*k)}, {pr(base+2*k)}, s[68:69], {pr(BIAS)} op_sel_hi:[1,1,0]")
        for k in range(4):
            a(f"v_cvt_pk_bf16_f32 v{WB+4*wi+k}, v{base+2*k}, v{base+2*k+1}")
        a(f"ds_write_b128 v114, {q4(WB+4*wi)} offset:{wi*16384}")
    a("s_cmp_lg_u32 s70, 0")
    a("s_cbranch_scc1 K2_SLOW")
    a("s_waitcnt lgkmcnt(0)")
    a("s_barrier")
    first_loads()
    a.label("K2_QD")
    stp(5)
    for k in range(4): a(f"ds_read_b32 v{IX[k]}, v{aIDX} offset:{128+k*32}")
    a(f"v_mov_b32 v166, v109")
    a(f"ds_read_b128 {q4(AO)}, v{aAO}")
    a(f"ds_read_b128 {q4(BQ[0])}, v115 offset:8192")
    a(f"ds_read_b128 {q4(BQ[1])}, v115 offset:9216")
    a(f"v_mov_b32 v167, v{aEI}")
    a(f"v_mov_b32 v{aAE}, v113")
    a(f"v_mov_b32 v{MG}, -1")
    a("s_sub_u32 s68, 4, s25")
    a("s_and_b32 s68, s68, 3")
    a("s_lshl_b32 s69, s68, 10")
    a("s_sub_u32 s66, s66, s69")
    a(f"v_add_u32 v{SOFF}, s66, v{SOFF}")
    a(f"v_mov_b32 v{T0}, {ZERO}")
    a(f"v_cndmask_b32 v{aS1}, v{T0}, v{SOFF}, s[62:63]")
    a(f"v_cndmask_b32 v{aS2}, v{T0}, v{SOFF}, s[64:65]")
    a(f"v_subrev_u32 v{aAO}, s69, v{aAO}")
    a("s_lshl_b32 s67, s68, 7")
    a(f"v_subrev_u32 v{aIDX}, s67, v{aIDX}")
    a(f"v_subrev_u32 v{aEI}, s67, v{aEI}")
    for i in range(16): a(f"v_mov_b32 v{ACC+i}, 0")
    a(f"v_mov_b32 v{CHK}, 0\nv_mov_b32 v{CHK+1}, 0")
    for i in range(4): a(f"v_mov_b32 v{HQ+i}, 0")
    for i in range(4): a(f"v_mov_b32 v{S+i}, 0")
    a("s_min_u32 s67, s53, 2")
    a("s_cmp_ge_u32 s25, s67")
    a("s_waitcnt vmcnt(0)")
    a("s_cbranch_scc1 K2_NF")
    a(f"ds_write_b32 v166, v{MG}")
    a.label("K2_NF")
    for m in range(4): a(f"ds_read_b128 {q4(AP[m])}, v{aAP+m}")
    a("s_waitcnt lgkmcnt(0)")
    a("\n".join(p_dma()))
    a("s_cmp_lt_u32 s25, 2")
    a("s_cbranch_scc1 K2_F2")
    a("\n".join(e_dma()))
    a.label("K2_F2")
    a("s_cmp_eq_u32 s53, 0")
    a("s_cbranch_scc1 K2_EXIT")
    a.label("K2_W0")
    a(f"ds_read_b32 v{FV}, v167")
    a("s_waitcnt lgkmcnt(0)")
    a(f"v_readfirstlane_b32 s66, v{FV}")
    a("s_nop 0")
    a("s_cmp_eq_u32 s66, -1")
    a("s_cbranch_scc1 K2_W1")
    a("s_sleep 1")
    a("s_branch K2_W0")
    a.label("K2_W1")
    a(f"ds_read_b128 {q4(AE)}, v{aAE}")
    a(f"v_subrev_u32 v{aAE}, s69, v{aAE}")
    stp(6)
    stc(12)
    if opt.get("prio", 1): a("s_setprio 3")
    a("s_waitcnt lgkmcnt(0)")
    a("\n".join(mf_tile(0)))
    a("s_nop 8")
    a("s_cmp_eq_u32 s68, 1")
    a("s_cbranch_scc1 K2_U1")
    a("s_cmp_eq_u32 s68, 2")
    a("s_cbranch_scc1 K2_U2")
    a("s_cmp_eq_u32 s68, 3")
    a("s_cbranch_scc1 K2_U3")
    a(".p2align 6")
    loop_start = len(a.lines)
    for u in range(4):
        a.label(f"K2_U{u}")
        ex0 = {}
        ex0[1] = [f"ds_read_b32 v{FV}, v{aEI} offset:{(u+1)*128}"] + [f"ds_read_b32 v{IX[k]}, v{aIDX} offset:{(u+2)*128+k*32}" for k in range(4)]
        if u == 0: ex0[1] += [f"ds_read_b32 v{EI}, v{aEI} offset:512"]
        ex0[12] = ["s_waitcnt lgkmcnt(0)", f"v_readfirstlane_b32 s66, v{FV}"]
        mid = ["s_cmp_eq_u32 s66, -1", f"s_waitcnt vmcnt({1 if u == 1 else 0})"]
        mid += [f"ds_read_b128 {q4(AP[m])}, v{aAP+m}" for m in range(4)]
        mid += [f"ds_read_b128 {q4(AO)}, v{aAO} offset:{(u+1)*1024}"]
        mid += [f"s_cbranch_scc0 K2_FW{u}", f"K2_FR{u}:"]
        mid += [f"ds_read_b128 {q4(AE)}, v{aAE} offset:{(u+1)*1024}"]
        exr = ["s_add_u32 s66, s55, 2", "s_cmp_ge_u32 s66, s53", "s_waitcnt lgkmcnt(0)", f"s_cbranch_scc1 K2_ND{u}"]
        if u == 2: exr += [f"ds_write_b32 v{aEI}, v{MG} offset:512"]
        exr += p_dma() + [f"K2_ND{u}:"]
        if u == 0: exr += e_dma()
        t0 = tile(0, mf_tile(1) + [SEGSUM], ex0, mid, exr)
        ex1 = {}
        ex1[1] = [f"ds_read_b64_tr_b16 {pr(S)}, v{aS1} offset:{u*1024}", f"ds_read_b64_tr_b16 {pr(S+2)}, v{aS2} offset:{u*1024}"]
        mid1 = []
        if u == 3:
            mid1 = [f"v_add_u32 v{aAO}, 4096, v{aAO}", f"v_add_u32 v{aAE}, 4096, v{aAE}", f"v_add_u32 v{aIDX}, 512, v{aIDX}", f"v_add_u32 v{aEI}, 512, v{aEI}",
                    "s_mov_b64 exec, s[62:63]", f"v_add_u32 v{aS1}, 4096, v{aS1}", "s_mov_b64 exec, s[64:65]", f"v_add_u32 v{aS2}, 4096, v{aS2}", "s_mov_b64 exec, -1"]
        exr1 = ["s_waitcnt lgkmcnt(0)"]
        if opt.get("gstamps"):
            mid1 = mid1 + ["s_memrealtime s[96:97]", "s_add_u32 m0, s55, 16"]
            exr1 += ["v_writelane_b32 v0, s96, m0"]
        t1 = tile(1, mf_tile(0), ex1, mid1, exr1)
        a("\n".join(t0 + t1))
        a("s_add_u32 s55, s55, 1")
        a("s_cmp_ge_u32 s55, s53")
        a("s_cbranch_scc1 K2_EXIT")
    a("s_cmp_lt_u32 s55, 4")
    a("s_cbranch_scc1 K2_U0")
    a("s_cmp_lt_u32 s55, 8")
    a("s_cbranch_scc0 K2_B8")
    if opt.get("prio", 1): a("s_setprio 2")
    a("s_mov_b32 s60, 1")
    a("\n".join(w2_pre(L16)))
    a("s_branch K2_U0")
    a.label("K2_B8")
    if opt.get("prio", 1):
        a("s_setprio 1")
        a("s_cmp_lt_u32 s55, 12")
        a("s_cbranch_scc1 K2_U0")
        a("s_setprio 0")
    a("s_branch K2_U0")
    loop_end = len(a.lines)
    for u in range(4):
        a.label(f"K2_FW{u}")
        a("s_add_u32 s66, s55, 1")
        a("s_cmp_ge_u32 s66, s53")
        a(f"s_cbranch_scc1 K2_FR{u}")
        a(f"ds_read_b32 v{FV}, v{aEI} offset:{(u+1)*128}")
        a("s_waitcnt lgkmcnt(0)")
        a(f"v_readfirstlane_b32 s66, v{FV}")
        a("s_nop 0")
        a("s_cmp_eq_u32 s66, -1")
        a(f"s_cbranch_scc1 K2_FR{u}")
        a("s_sleep 1")
        a(f"s_branch K2_FW{u}")
    a.label("K2_EXIT")
    a(SEGSUM)
    stp(7)
    stc(13)
    if opt.get("stamps"): a("v_writelane_b32 v0, s53, 14")
    a("s_waitcnt vmcnt(0)")
    a(f"v_lshrrev_b32 v1, 4, v{L16}")
    a("s_cmp_lg_u32 s60, 0")
    a("s_cbranch_scc1 K2_X1")
    a("\n".join(w2_pre(L16)))
    a.label("K2_X1")
    a("v_subrev_u32 v2, s71, v1")
    a("v_and_b32 v2, 15, v2")
    a(f"v_mul_u32_u24 v2, {HSTR}, v2")
    a("v_and_b32 v3, 16, v1")
    a("v_lshl_add_u32 v2, v3, 2, v2")
    a("v_lshrrev_b32 v3, 5, v1")
    a("v_lshl_add_u32 v3, v3, 3, s57")
    a("v_add_u32 v2, v2, v3")
    a("s_mov_b32 s66, 0x4e800000")
    a("s_mov_b32 s67, 0x4e800000")
    a(f"v_pk_mul_f32 {pr(CHK)}, {pr(CHK)}, s[66:67]")
    a("v_mov_b32 v4, 0x207")
    a(f"v_mov_b32 v5, {FLAG}")
    a("v_mov_b32 v7, 1")
    a("s_waitcnt vmcnt(0)")
    for k in range(8):
        a(f"v_cvt_pk_bf16_f32 v{EX+k}, v{ACC+2*k}, v{ACC+2*k+1}")
        if k & 1: a(f"ds_write_b64 v2, {pr(EX+k-1)} offset:{16*(k>>1)}")
    for k in range(8):
        a(f"v_pk_fma_f32 {pr(CHK)}, {pr(ACC+2*k)}, 0, {pr(CHK)} op_sel_hi:[1,0,1]")
    a(f"v_add_f32 v{CHK}, v{CHK}, v{CHK+1}")
    a(f"v_cmpx_class_f32 vcc, v{CHK}, v4")
    a("ds_write_b32 v5, v7")
    a("s_mov_b64 exec, -1")
    a.label("K2_FIN")
    WL = 16
    a("v_lshlrev_b32 v7, 4, v1")
    srd(a, 48, "s18", "s19", 256)
    for sidx in range(NW2, 8):
        a(f"buffer_load_dwordx4 {q4(WL+4*(sidx-NW2))}, v7, s[40:43], s74 offen offset:{(sidx & 3)*1024}")
    a("v_lshrrev_b32 v8, 4, v1")
    a("v_lshlrev_b32 v9, 3, v8")
    a("s_lshl_b32 s68, s24, 5")
    a("buffer_load_dwordx2 v[10:11], v9, s[48:51], s68 offen")
    a("v_and_b32 v12, 15, v1")
    a(f"v_mul_u32_u24 v2, {HSTR}, v12")
    a("v_lshl_add_u32 v2, v8, 4, v2")
    a(f"s_mov_b32 s78, {CNT}")
    a("v_lshl_add_u32 v4, v12, 2, s78")
    a("v_lshl_add_u32 v13, v12, 16, v9")
    a(f"v_mov_b32 v3, {KILL:#x}")
    a("v_cmp_gt_u32 vcc, 4, v12")
    a("s_lshl_b32 s69, s2, 8")
    a("s_add_u32 s69, s69, s68")
    a("v_cndmask_b32 v14, v13, v3, vcc")
    a("s_waitcnt lgkmcnt(0)")
    stp(8)
    a("s_barrier")
    stp(9)
    HB = 48
    def hread(sidx):
        for mt in range(3):
            r = HB + (sidx & 3) * 12 + mt * 4
            a(f"ds_read_b128 {q4(r)}, v2 offset:{(4*mt + (sidx >> 1))*4096 + (sidx & 1)*64}")
    a(f"ds_read_b32 v6, v4 offset:{FLAG - CNT}")
    a("s_cmp_ge_u32 s24, 8")
    a("s_cbranch_scc1 K2_NOH")
    hread(0); hread(1); hread(2)
    for mt in range(3): a(f"ds_read_b32 v{112+mt}, v4 offset:{mt*48}")
    a(f"s_add_u32 s72, s69, {12 << 16}")
    a(f"s_add_u32 s75, s69, {24 << 16}")
    a(f"s_mov_b32 s76, {NEGLN2:#x}")
    a("s_waitcnt lgkmcnt(12)")
    a("s_branch K2_NOH2")
    a.label("K2_NOH")
    a("s_waitcnt lgkmcnt(0)")
    a.label("K2_NOH2")
    a("v_readfirstlane_b32 s82, v6")
    a("s_nop 0")
    a("s_andn2_b32 s82, s82, s70")
    a("s_cmp_lg_u32 s82, 0")
    a("s_cbranch_scc1 K2_REDO")
    a("s_cmp_ge_u32 s24, 8")
    a("s_cbranch_scc1 K2_END2")
    OD = 96
    for sidx in range(8):
        n = {0: 9, 1: 9, 2: 9, 3: 6, 4: 6, 5: 6, 6: 3, 7: 0}[sidx]
        wv = f" vmcnt({8 - sidx})" if sidx >= NW2 else ""
        a(f"s_waitcnt{wv} lgkmcnt({n})")
        wf = WP + 4*sidx if sidx < NW2 else WL + 4*(sidx - NW2)
        for mt in range(3):
            r = HB + (sidx & 3) * 12 + mt * 4
            c = "0" if sidx == 0 else q4(OD + 4*mt)
            a(f"v_mfma_f32_16x16x32_bf16 {q4(OD+4*mt)}, {q4(wf)}, {q4(r)}, {c}")
        if sidx + 3 < 8: hread(sidx + 3)
    a("s_waitcnt vmcnt(0)")
    a("v_lshlrev_b32 v116, 16, v10")
    a("v_and_b32 v117, 0xffff0000, v10")
    a("v_lshlrev_b32 v118, 16, v11")
    a("v_and_b32 v119, 0xffff0000, v11")
    for mt in range(3): a(f"v_cvt_f32_u32 v{112+mt}, v{112+mt}")
    for mt in range(3):
        for i in range(4):
            a(f"v_mul_f32 v{120+4*mt+i}, v{112+mt}, v{116+i}")
    for mt in range(2):
        for i in range(4):
            a(f"v_add_f32_dpp v{OD+4*mt+i}, v{OD+4*mt+4+i}, v{OD+4*mt+i} row_shr:12 row_mask:0xf bank_mask:0xf bound_ctrl:0")
    for mt in (2, 0, 1):
        for i in range(4):
            a(f"v_fma_f32 v{120+4*mt+i}, v{OD+4*mt+i}, s76, v{120+4*mt+i}")
        a(f"v_cvt_pk_bf16_f32 v{132+2*mt}, v{120+4*mt}, v{121+4*mt}")
        a(f"v_cvt_pk_bf16_f32 v{133+2*mt}, v{122+4*mt}, v{123+4*mt}")
        a(f"buffer_store_dwordx2 {pr(132+2*mt)}, v{13 if mt == 0 else 14}, s[44:47], s{(69,72,75)[mt]} offen")
    stp(10)
    if opt.get("stamps"): a("s_waitcnt vmcnt(0)")
    stp(11)
    a.label("K2_END2")
    stamp_out(a, opt, 22, 0xF80000, 24, 0, tmpv=2)
    if opt.get('gstamps'): stamp_out2(a, opt, 22, 0x1000000, 24, 0, tmpv=2)
    a.label("K2_END")
    a("s_endpgm")
    a.label("K2_REDO")
    a("s_setprio 0")
    a("s_mov_b32 s70, -1")
    a("s_lshl_b32 s66, s24, 6")
    a("v_add_u32 v0, s66, v1")
    a("s_waitcnt vmcnt(0) lgkmcnt(0)")
    a("s_barrier")
    a("s_branch K2_TOP")
    a.label("K2_BAD")
    a("s_mov_b32 s70, -1")
    a("s_waitcnt vmcnt(0) lgkmcnt(0)")
    a("s_barrier")
    a("s_branch K2_QG")
    a.label("K2_SLOW")
    a("s_setprio 0")
    a("s_mov_b32 s70, -1")
    a("s_waitcnt vmcnt(0) lgkmcnt(0)")
    a("s_barrier")
    a("s_lshl_b32 s66, s24, 10")
    a(f"s_add_u32 s66, s66, {OH}")
    a("v_lshl_add_u32 v2, v1, 4, s66")
    for i in range(4): a(f"v_mov_b32 v{4+i}, 0")
    for i in range(4): a(f"ds_write_b128 v2, v[4:7] offset:{i*12288}")
    a("v_lshlrev_b32 v12, 2, v1")
    a(f"v_add_u32 v3, {CNT}, v12")
    a("ds_write_b32 v3, v4")
    srd(a, 84, "s8", "s9", E * 4)
    srd(a, 88, "s10", "s11", E * 4)
    a("v_and_b32 v8, 31, v1")
    a("v_lshlrev_b32 v8, 4, v8")
    a("v_lshrrev_b32 v9, 5, v1")
    a("v_lshl_add_u32 v8, v9, 10, v8")
    a("s_lshl_b32 s72, s25, 11")
    a(f"s_add_u32 s66, s72, {WCF_OFF - CELL_OFF}")
    a("buffer_load_dwordx4 v[16:19], v8, s[40:43], s66 offen")
    a("buffer_load_dwordx4 v[20:23], v8, s[40:43], s66 offen offset:512")
    a(f"s_add_u32 s72, s72, {EIM + 8192}")
    a("v_add_u32 v8, s72, v8")
    a("v_lshlrev_b32 v7, 4, v1")
    a("\n".join(w2_pre(7)))
    srd(a, 92, "s22", "s23", N * 512)
    a("v_lshlrev_b32 v10, 1, v1")
    a("v_add_u32 v10, s58, v10")
    a("v_lshlrev_b32 v11, 1, v10")
    a(f"v_add_u32 v11, {OH}, v11")
    a("v_mov_b32 v13, 1")
    a("s_waitcnt vmcnt(0)")
    for k in range(8):
        a(f"v_lshlrev_b32 v{24+2*k}, 16, v{16+k}")
        a(f"v_and_b32 v{25+2*k}, 0xffff0000, v{16+k}")
    a("s_waitcnt lgkmcnt(0)")
    a("s_barrier")
    a("s_mov_b32 s66, s26")
    a.label("K2_SL_BLK")
    a("s_lshl_b32 s67, s66, 8")
    a("buffer_load_dword v40, v12, s[88:91], s67 offen")
    a("buffer_load_dword v41, v12, s[84:87], s67 offen")
    a("s_waitcnt vmcnt(0)")
    a("v_and_b32 v42, 255, v40")
    a("v_cmp_eq_u32 vcc, s2, v42")
    a("s_nop 1")
    a("s_mov_b64 s[68:69], vcc")
    a.label("K2_SL_E")
    a("s_cmp_eq_u64 s[68:69], 0")
    a("s_cbranch_scc1 K2_SL_NB")
    a("s_ff1_i32_b64 s72, s[68:69]")
    a("s_bitset0_b64 s[68:69], s72")
    a("v_readlane_b32 s52, v40, s72")
    a("v_readlane_b32 s53, v41, s72")
    a("s_lshl_b32 s75, s66, 6")
    a("s_add_u32 s75, s75, s72")
    a("s_lshl_b32 s75, s75, 5")
    a("s_load_dwordx8 s[76:83], s[6:7], s75")
    a("s_lshl_b32 s53, s53, 9")
    a("s_lshr_b32 s52, s52, 8")
    a("s_cmp_ge_u32 s52, 16")
    a("s_cselect_b32 s75, 16384, 0")
    a("s_cmp_ge_u32 s52, 28")
    a("s_cselect_b32 s75, 32768, s75")
    a("s_bfe_u32 s55, s52, 0x10003")
    a("s_lshl_b32 s55, s55, 9")
    a("s_add_u32 s75, s75, s55")
    a("s_and_b32 s55, s52, 7")
    a("s_lshl_b32 s55, s55, 1")
    a("s_add_u32 s75, s75, s55")
    a("v_add_u32 v45, s75, v8")
    a("buffer_load_ushort v43, v10, s[92:95], s53 offen")
    a("ds_read_u16 v44, v45")
    a("s_waitcnt vmcnt(0) lgkmcnt(0)")
    a("v_lshlrev_b32 v43, 16, v43")
    a("v_lshlrev_b32 v44, 16, v44")
    a("v_add_f32 v43, v43, v44")
    for k in range(8):
        a(f"s_lshl_b32 s53, s{76+k}, 16")
        a(f"v_fmac_f32 v43, s53, v{24+2*k}")
        a(f"s_and_b32 s53, s{76+k}, 0xffff0000")
        a(f"v_fmac_f32 v43, s53, v{25+2*k}")
    a("v_exp_f32 v44, v43")
    a("s_lshl_b32 s53, s52, 10")
    a("v_add_f32 v44, 1.0, v44")
    a("v_rcp_f32 v44, v44")
    a("v_add_u32 v45, s53, v11")
    a("v_mul_f32 v43, v43, v44")
    a("ds_add_f32 v45, v43")
    a("s_cmp_lg_u32 s25, 0")
    a("s_cbranch_scc1 K2_SL_E")
    a("s_lshl_b32 s53, s52, 2")
    a(f"s_add_u32 s53, s53, {CNT}")
    a("v_mov_b32 v45, s53")
    a("s_mov_b64 exec, 1")
    a("ds_add_u32 v45, v13")
    a("s_mov_b64 exec, -1")
    a("s_branch K2_SL_E")
    a.label("K2_SL_NB")
    a("s_add_u32 s66, s66, 3")
    a(f"s_cmp_lt_u32 s66, {E // 64}")
    a("s_cbranch_scc1 K2_SL_BLK")
    a("s_waitcnt lgkmcnt(0)")
    a("s_barrier")
    a("v_and_b32 v2, 31, v1")
    a("v_lshrrev_b32 v3, 5, v1")
    a("s_mov_b32 s66, 0")
    a.label("K2_SL_CV")
    a("v_add_u32 v4, s66, v3")
    a("v_add_u32 v5, s71, v4")
    a("s_cmp_lt_u32 s66, 4")
    a("s_cselect_b32 s67, s26, 0")
    a("s_cmp_lg_u32 s67, 0")
    a("s_cbranch_scc0 K2_SL_NZ")
    a("v_mov_b32 v5, 47")
    a.label("K2_SL_NZ")
    a("v_lshlrev_b32 v5, 10, v5")
    a("v_lshl_add_u32 v5, v2, 3, v5")
    a("s_lshl_b32 s67, s58, 1")
    a(f"s_add_u32 s67, s67, {OH}")
    a("v_add_u32 v5, s67, v5")
    a("ds_read_b64 v[6:7], v5")
    a(f"v_mul_u32_u24 v4, {HSTR}, v4")
    a("v_lshl_add_u32 v4, v2, 2, v4")
    a("v_add_u32 v4, s57, v4")
    a("s_waitcnt lgkmcnt(0)")
    a("v_cvt_pk_bf16_f32 v6, v6, v7")
    a("ds_write_b32 v4, v6")
    a("s_add_u32 s66, s66, 2")
    a("s_cmp_lt_u32 s66, 16")
    a("s_cbranch_scc1 K2_SL_CV")
    a("s_branch K2_FIN")
    a.loop = (loop_start, loop_end)
    return a, NV2, (102 if opt.get('stamps') else 96)
```

```python
import sys, re
from asmlib import *
from k1 import *
from k2 import *

def gen_diag(code):
    kern = code // 1000; idx = (code % 1000) // 10; mx = code % 10
    off = 0xF00000 if kern == 1 else 0xF80000
    nwg = (NGEMM + NSORTWG) if kern == 1 else 256
    nw = 8
    a = Asm()
    a.label("mpnn_diag_kernel")
    a("s_cmp_ge_u32 s2, 1")
    a("s_cbranch_scc1 KD_END")
    a("s_load_dwordx2 s[4:5], s[0:1], 80")
    a("s_memrealtime s[6:7]")
    a("v_lshlrev_b32 v1, 10, v0")
    a("s_waitcnt lgkmcnt(0)")
    a(f"s_add_u32 s8, s4, {off}")
    a("s_addc_u32 s9, s5, 0")
    a(f"s_mov_b32 s10, {nwg*1024}")
    a("s_mov_b32 s11, 0x00020000")
    a(f"v_mov_b32 v2, {-1 if mx else 0}")
    for i in range((nwg + 63) // 64):
        a(f"s_mov_b32 s12, {i*65536}")
        for w in range(nw):
            a(f"buffer_load_dword v{8+w}, v1, s[8:11], s12 offen offset:{w*64+idx*4}")
        a("s_waitcnt vmcnt(0)")
        for w in range(nw):
            a(f"v_cmp_ne_u32 vcc, 0, v{8+w}")
            a(f"v_sub_u32 v3, s6, v{8+w}")
            a("s_nop 0")
            a(f"v_cndmask_b32 v3, v2, v3, vcc")
            a(f"v_{'min' if mx else 'max'}_u32 v2, v2, v3")
    a(f"s_mov_b32 s13, {-1 if mx else 0}")
    a("s_nop 1")
    for l in range(64):
        a(f"v_readlane_b32 s14, v2, {l}")
        a("s_nop 0")
        a(f"s_{'min' if mx else 'max'}_u32 s13, s13, s14")
    a("s_min_u32 s13, s13, 10000")
    a("s_sub_u32 s13, s6, s13")
    a.label("KD_SPIN")
    a("s_memrealtime s[6:7]")
    a("s_waitcnt lgkmcnt(0)")
    a("s_sub_u32 s14, s6, s13")
    a("s_cmp_lt_u32 s14, 10000")
    a("s_cbranch_scc1 KD_SPIN")
    a.label("KD_END")
    a("s_endpgm")
    return a, 24, 24

def build(opt):
    hdr = open("standalone__edge_featured_mpnn_mpnn__graph.s.ref").read().split("\n")
    hdr = [l for l in hdr if l.startswith(";")][:12]
    out = "\n".join(hdr) + "\n"
    for _ in range(opt.get("pre_empty", 0)):
        out += "; @launch kernel=mpnn_empty_kernel grid=(256,1,1) block=(64,1,1) lds=0\n"
    out += f"; @launch kernel=mpnn_pre_kernel grid=({K1_WGS},1,1) block=({K1_BLOCK},1,1) lds={K1_LDS}\n"
    for _ in range(opt.get("mid_empty", 0)):
        out += "; @launch kernel=mpnn_empty_kernel grid=(256,1,1) block=(64,1,1) lds=0\n"
    for _ in range(opt.get("mid_big", 0)):
        out += "; @launch kernel=mpnn_empty_kernel grid=(256,1,1) block=(768,1,1) lds=163840\n"
    for _ in range(opt.get("k1x", 0)):
        out += f"; @launch kernel=mpnn_pre_kernel grid=({K1_WGS},1,1) block=({K1_BLOCK},1,1) lds={K1_LDS}\n"
    if not opt.get("k1only"):
        out += f"; @launch kernel=mpnn_main_kernel grid=(256,1,1) block=(768,1,1) lds={K2_LDS}\n"
    for _ in range(opt.get("post_empty", 0)):
        out += "; @launch kernel=mpnn_empty_kernel grid=(256,1,1) block=(64,1,1) lds=0\n"
    if "diag" in opt:
        out += "; @launch kernel=mpnn_diag_kernel grid=(1,1,1) block=(64,1,1) lds=0\n"
    out += '.amdgcn_target "amdgcn-amd-amdhsa--gfx950"\n.text\n'
    ks = [("mpnn_pre_kernel",) + gen_k1(opt), ("mpnn_main_kernel",) + gen_k2(opt)]
    if opt.get("pre_empty") or opt.get("post_empty") or opt.get("mid_empty") or opt.get("mid_big"):
        e = Asm(); e.label("mpnn_empty_kernel"); e("s_endpgm")
        ks.append(("mpnn_empty_kernel", e, 168 if opt.get("mid_big") else 8, 8))
    if "diag" in opt:
        ks.append(("mpnn_diag_kernel",) + gen_diag(opt["diag"]))
    errs = []
    for name, a, nv, ns in ks:
        errs += check_hazards(a.lines, name)
        if hasattr(a, "loop"):
            b = a.lines[a.loop[0]:a.loop[1]]
            errs += check_hazards(b[-40:] + b[:40], name + " backedge")
        out += f".globl {name}\n.p2align 8\n.type {name},@function\n" + a.text()
    out += '.section .rodata,"a"\n'
    for name, a, nv, ns in ks:
        out += f""".p2align 6
.amdhsa_kernel {name}
  .amdhsa_next_free_vgpr {nv}
  .amdhsa_next_free_sgpr {ns}
  .amdhsa_accum_offset {(nv + 3) // 4 * 4}
  .amdhsa_group_segment_fixed_size 0
  .amdhsa_kernarg_size 88
  .amdhsa_user_sgpr_count 2
  .amdhsa_user_sgpr_kernarg_segment_ptr 1
  .amdhsa_system_sgpr_workgroup_id_x 1
  .amdhsa_float_denorm_mode_32 3
.end_amdhsa_kernel
"""
    return out, errs

if __name__ == "__main__":
    opt = {}
    dst = "standalone__edge_featured_mpnn_mpnn__graph.s"
    for x in sys.argv[1:]:
        if x.endswith(".s"): dst = x
        else:
            k, _, val = x.partition("=")
            opt[k] = int(val) if val else 1
    out, errs = build(opt)
    for e in errs: print(e)
    open(dst, "w").write(out)
    print("wrote", dst, len(out), "bytes; hazards:", len(errs))
```

```python
from asmlib import *

N = 10000; E = 320000
P_OFF = 0
CELL_OFF = 0xA00000
W2F_OFF = 0xE00000
W1BF_OFF = 0xE10000
WCF_OFF = 0xE20000
FRAG_BYTES = 0x22000
NSORT = 128
CHUNK = 2500
NGEMM = 157
K1_WGS = NSORT + NGEMM
K1_LDS = 81920
NEGLOG2E = 0xBFB8AA3B
OVF = 0xFFFFFFFE

def srd(a, r, lo, hi, size):
    a(f"s_mov_b32 s{r}, {lo}")
    a(f"s_mov_b32 s{r+1}, {hi}")
    a(f"s_mov_b32 s{r+2}, {size}")
    a(f"s_mov_b32 s{r+3}, 0x00020000")

def srd_ws(a, r, wslo, off, size):
    a(f"s_add_u32 s{r}, s{wslo}, {off}")
    a(f"s_addc_u32 s{r+1}, s{wslo+1}, 0")
    a(f"s_mov_b32 s{r+2}, {size}")
    a(f"s_mov_b32 s{r+3}, 0x00020000")

STAMPV = 150
def stamp(a, opt, idx, vreg=STAMPV, sreg=96):
    if not opt.get("stamps"): return
    a(f"s_memrealtime s[{sreg}:{sreg+1}]")
    a("s_waitcnt lgkmcnt(0)")
    a(f"v_writelane_b32 v{vreg}, s{sreg}, {idx}")
def stamp_clk(a, opt, idx, vreg=STAMPV, sreg=96):
    if not opt.get("stamps"): return
    a(f"s_memtime s[{sreg}:{sreg+1}]")
    a("s_waitcnt lgkmcnt(0)")
    a(f"v_writelane_b32 v{vreg}, s{sreg}, {idx}")
def stamp_out(a, opt, wslo, off, wavereg, vreg=STAMPV, sreg=96, tmpv=151):
    if not opt.get("stamps"): return
    a(f"s_add_u32 s{sreg}, s{wslo}, {off}")
    a(f"s_addc_u32 s{sreg+1}, s{wslo+1}, 0")
    a(f"s_mov_b32 s{sreg+2}, 0x80000")
    a(f"s_mov_b32 s{sreg+3}, 0x00020000")
    a(f"s_lshl_b32 s100, s2, 4")
    a(f"s_add_u32 s100, s100, s{wavereg}")
    a(f"s_lshl_b32 s100, s100, 6")
    a(f"v_mbcnt_lo_u32_b32 v{tmpv}, -1, 0")
    a(f"v_lshlrev_b32 v{tmpv}, 2, v{tmpv}")
    a("s_mov_b64 exec, 0xffff")
    a(f"buffer_store_dword v{vreg}, v{tmpv}, s[{sreg}:{sreg+3}], s100 offen")
    a("s_mov_b64 exec, -1")

def stamp_out2(a, opt, wslo, off, wavereg, vreg, sreg=96, tmpv=151):
    a(f"s_add_u32 s{sreg}, s{wslo}, {off}")
    a(f"s_addc_u32 s{sreg+1}, s{wslo+1}, 0")
    a(f"s_lshl_b32 s100, s100, 1")
    a("s_mov_b64 exec, 0xffffffff")
    a(f"buffer_store_dword v{vreg}, v{tmpv}, s[{sreg}:{sreg+3}], s100 offen")
    a("s_mov_b64 exec, -1")

def gen_k1(opt=None):
    opt = opt or {}
    SV = 120
    SFD = {0: "", 1: " sc1", 2: " sc0 sc1", 3: " nt", 4: " nt sc1"}
    SF = SFD[opt.get("sf", 1)]
    SFG = SFD[opt.get("sfg", 0)]
    NT = " nt" if opt.get("knt", 1) else ""
    a = Asm()
    a.label("mpnn_pre_kernel")
    a(f"s_cmp_ge_u32 s2, {K1_WGS}")
    a("s_cbranch_scc1 K1_END")
    if opt.get("stamps"): a(f"v_mov_b32 v{SV}, 0")
    stamp(a, opt, 0, SV)
    a("s_load_dwordx16 s[4:19], s[0:1], 0")
    a("s_load_dwordx2 s[20:21], s[0:1], 80")
    a("v_lshrrev_b32 v1, 6, v0")
    a("v_and_b32 v2, 63, v0")
    a("v_readfirstlane_b32 s22, v1")
    a(f"s_cmp_lt_u32 s2, {NSORT}")
    a("s_cbranch_scc1 K1_SORT")
    XI = 65536
    a(f"s_sub_u32 s25, s2, {NSORT}")
    a("s_lshr_b32 s26, s22, 2")
    a("s_and_b32 s27, s22, 3")
    a("v_lshrrev_b32 v5, 5, v2")
    a("v_and_b32 v6, 31, v2")
    a("v_lshlrev_b32 v7, 2, v5")
    a("v_xor_b32 v7, v7, v6")
    a("v_lshlrev_b32 v7, 4, v7")
    a("v_lshl_add_u32 v3, v5, 9, v7")
    a("v_xor_b32 v4, 0x80, v3")
    a("v_lshrrev_b32 v10, 4, v2")
    a("s_lshl_b32 s44, s22, 3")
    a("v_add_u32 v10, s44, v10")
    a("v_xor_b32 v11, v10, v2")
    a("v_and_b32 v11, 15, v11")
    a("v_lshlrev_b32 v11, 4, v11")
    a("v_lshl_add_u32 v8, v10, 8, v11")
    a("v_xor_b32 v9, 64, v8")
    a("s_lshl_b32 s45, s22, 12")
    a("s_add_u32 s47, s45, 32768")
    a("s_lshl_b32 s48, s25, 14")
    a("s_lshl_b32 s49, s22, 11")
    a(f"s_add_u32 m0, s49, {XI}")
    a("s_waitcnt lgkmcnt(0)")
    srd(a, 32, "s4", "s5", N * 256)
    srd(a, 28, "s12", "s13", 272 * 512)
    a(f"buffer_load_dwordx4 v8, s[32:35], s48 offen{NT} lds")
    a(f"buffer_load_dwordx4 v9, s[32:35], s48 offen offset:1024{NT} lds")
    a("s_mov_b32 m0, s45")
    a("s_nop 0")
    for k in range(4):
        a(f"buffer_load_dwordx4 v{3 + (k & 1)}, s[28:31], s45 offen offset:{k*1024} lds")
    a("s_mov_b32 m0, s47")
    a("s_nop 0")
    for k in range(4):
        a(f"buffer_load_dwordx4 v{3 + (k & 1)}, s[28:31], s47 offen offset:{k*1024} lds")
    a("s_lshl_b32 s50, s27, 7")
    srd(a, 36, "s20", "s21", (N + 1) * 512)
    if opt.get("dupst"): srd_ws(a, 40, 20, opt["dupst"] << 20, (N + 1) * 512)
    PT = opt.get("pt", 0); NPT = 0
    if PT:
        a("s_lshl_b32 s58, s25, 15")
        if PT in (1, 2):
            a("v_lshlrev_b32 v30, 6, v0")
            if PT == 1: a("buffer_load_dword v31, v30, s[36:39], s58 offen")
            else: a("buffer_store_dword v30, v30, s[36:39], s58 offen sc1")
            NPT = 1
        else:
            a("v_lshlrev_b32 v30, 4, v0")
            for i in range(4):
                a(f"buffer_store_dwordx4 v[8:11], v30, s[36:39], s58 offen sc1")
                a("s_add_u32 s58, s58, 8192")
            NPT = 4
    a("v_and_b32 v17, 15, v2")
    a("v_xor_b32 v17, v17, v5")
    a("v_lshlrev_b32 v17, 4, v17")
    a("v_lshl_add_u32 v16, v6, 8, v17")
    a("s_lshl_b32 s51, s26, 13")
    a(f"s_add_u32 s51, s51, {XI}")
    a("v_add_u32 v16, s51, v16")
    for sidx in range(1, 8):
        a(f"v_xor_b32 v{16+sidx}, {sidx << 5}, v16")
    a("v_bfe_u32 v26, v2, 2, 2")
    a("v_lshl_add_u32 v27, v5, 3, v26")
    a("v_and_b32 v28, 3, v2")
    a("v_lshlrev_b32 v28, 3, v28")
    a("v_bfe_u32 v29, v2, 4, 1")
    a("v_lshl_add_u32 v28, v29, 5, v28")
    a("v_add_u32 v28, s50, v28")
    a("v_lshlrev_b32 v26, 6, v26")
    a("v_xor_b32 v28, v28, v26")
    a("v_lshl_add_u32 v24, v27, 9, v28")
    a("v_xor_b32 v25, 64, v24")
    a("v_lshlrev_b32 v13, 2, v6")
    a("v_lshl_add_u32 v13, v5, 11, v13")
    a("v_add_u32 v13, s50, v13")
    a("s_lshl_b32 s52, s25, 15")
    a("s_lshl_b32 s51, s26, 14")
    a("s_add_u32 s52, s52, s51")
    a("s_add_u32 s53, s52, 4096")
    a("s_add_u32 s54, s52, 8192")
    a("s_add_u32 s55, s52, 12288")
    a(f"s_mov_b32 s56, {NEGLOG2E:#x}")
    a(f"s_mov_b32 s57, {NEGLOG2E:#x}")
    stamp(a, opt, 1, SV)
    a(f"s_waitcnt vmcnt({4 + NPT})")
    stamp(a, opt, 2, SV)
    a("s_barrier")
    AF = 32; BF = 48; DA = 80; DB = 96
    def reads(sidx):
        st = sidx & 3
        a(f"ds_read_b128 {v(AF+4*st,4)}, v{16+sidx}")
        for X in range(2):
            for e in range(2):
                a(f"ds_read_b64_tr_b16 {v(BF+8*st+4*X+2*e,2)}, v{24+X} offset:{sidx*8192+e*2048}")
    def mm(sidx):
        st = sidx & 3
        ca = "0" if sidx == 0 else v(DA, 16)
        cb = "0" if sidx == 0 else v(DB, 16)
        a(f"v_mfma_f32_32x32x16_bf16 {v(DA,16)}, {v(AF+4*st,4)}, {v(BF+8*st,4)}, {ca}")
        a(f"v_mfma_f32_32x32x16_bf16 {v(DB,16)}, {v(AF+4*st,4)}, {v(BF+8*st+4,4)}, {cb}")
    reads(0); reads(1); reads(2)
    a("s_waitcnt lgkmcnt(10)"); mm(0); reads(3)
    a("s_waitcnt lgkmcnt(10)"); mm(1)
    a(f"s_waitcnt vmcnt({NPT})")
    a("s_barrier")
    reads(4)
    a("s_waitcnt lgkmcnt(10)"); mm(2); reads(5)
    a("s_waitcnt lgkmcnt(10)"); mm(3); reads(6)
    a("s_waitcnt lgkmcnt(10)"); mm(4); reads(7)
    a("s_waitcnt lgkmcnt(10)"); mm(5)
    a("s_waitcnt lgkmcnt(5)"); mm(6)
    a("s_waitcnt lgkmcnt(0)"); mm(7)
    a("s_nop 10")
    if PT >= 2:
        a("s_waitcnt vmcnt(0)")
        a("s_barrier")
    stamp(a, opt, 3, SV)
    for r in range(0, 16, 2):
        a(f"v_pk_mul_f32 {v(DA+r,2)}, {v(DA+r,2)}, s[56:57]")
        a(f"v_pk_mul_f32 {v(DB+r,2)}, {v(DB+r,2)}, s[56:57]")
        for rr in (r, r + 1):
            a(f"v_cvt_pk_bf16_f32 v{AF+rr}, v{DA+rr}, v{DB+rr}")
            if opt.get("nogst"): continue
            a(f"buffer_store_dword v{AF+rr}, v13, s[36:39], s{52 + (rr >> 2)} offen offset:{(rr & 3)*512}{SFG}")
            if opt.get("dupst"): a(f"buffer_store_dword v{AF+rr}, v13, s[40:43], s{52 + (rr >> 2)} offen offset:{(rr & 3)*512}{SFG}")
    stamp(a, opt, 4, SV)
    if opt.get("stamps"): a("s_waitcnt vmcnt(0)")
    stamp(a, opt, 5, SV)
    stamp_out(a, opt, 20, 0xF00000, 22, SV, tmpv=121)
    a("s_endpgm")
    a.label("K1_SORT")
    CNT = 32768
    NX = (2 if opt.get("epf", 0) else 0) + (1 if opt.get("cpf", 1) else 0)
    a("v_lshlrev_b32 v3, 2, v0")
    a("v_add_u32 v4, 4096, v3")
    a("v_add_u32 v5, 8192, v3")
    a(f"s_mul_i32 s23, s2, {CHUNK*4}")
    a("s_add_u32 s59, s2, 128")
    a("s_cmp_lt_u32 s2, 8")
    a("s_cselect_b32 s59, s59, -1")
    a("s_cmp_eq_u32 s22, 1")
    a("s_cselect_b32 s58, s59, -1")
    a("s_cmp_eq_u32 s22, 0")
    a("s_cselect_b32 s58, s2, s58")
    a("s_cmp_eq_u32 s58, -1")
    a("s_waitcnt lgkmcnt(0)")
    srd(a, 28, "s8", "s9", E * 4)
    srd(a, 32, "s10", "s11", E * 4)
    a("s_cbranch_scc1 K1_NOPREP")
    a("s_cmp_ge_u32 s58, 64")
    a("s_cbranch_scc1 K1_PREP1")
    srd(a, 44, "s16", "s17", 256 * 256)
    a("v_and_b32 v40, 15, v2")
    a("v_lshlrev_b32 v40, 1, v40")
    a("v_lshrrev_b32 v41, 4, v2")
    a("v_lshl_add_u32 v40, v41, 10, v40")
    a("v_add_u32 v41, 8192, v40")
    a("s_bfe_u32 s24, s2, 0x20001")
    a("s_lshl_b32 s24, s24, 14")
    a("s_and_b32 s25, s2, 1")
    a("s_lshl_b32 s25, s25, 12")
    a("s_add_u32 s24, s24, s25")
    a("s_lshr_b32 s25, s2, 3")
    a("s_lshl_b32 s25, s25, 5")
    a("s_add_u32 s24, s24, s25")
    for e in range(8):
        a(f"buffer_load_ushort v{48+e}, v{40 + (e & 1)}, s[44:47], s24 offen offset:{(e >> 1)*256}")
    a("s_branch K1_NOPREP")
    a.label("K1_PREP1")
    srd(a, 44, "s12", "s13", 272 * 512)
    a("v_and_b32 v42, 1, v2")
    a("v_lshlrev_b32 v42, 6, v42")
    a("v_and_b32 v43, 30, v2")
    a("v_add_u32 v42, v42, v43")
    a("v_lshrrev_b32 v43, 5, v2")
    a("v_lshl_add_u32 v42, v43, 12, v42")
    a("s_bfe_u32 s26, s2, 0x30003")
    a("s_and_b32 s27, s2, 7")
    a("s_cmp_ge_u32 s58, 128")
    a("s_cselect_b32 s26, s27, s26")
    a("s_cselect_b32 s27, 8, s27")
    a("s_lshr_b32 s24, s26, 1")
    a("s_lshl_b32 s24, s24, 7")
    a("s_and_b32 s25, s26, 1")
    a("s_lshl_b32 s25, s25, 5")
    a("s_add_u32 s24, s24, s25")
    a("s_lshl_b32 s27, s27, 13")
    a("s_add_u32 s24, s24, s27")
    a(f"s_add_u32 s24, s24, {128*512}")
    for e in range(8):
        a(f"buffer_load_ushort v{48+e}, v42, s[44:47], s24 offen offset:{e*512}")
    a.label("K1_NOPREP")
    for i in range(5):
        a(f"buffer_load_dword v{10+i}, v{3 + (i >> 1)}, s[32:35], s23 offen offset:{(i & 1)*2048}{NT}")
    for i in range(5):
        a(f"buffer_load_dword v{16+i}, v{3 + (i >> 1)}, s[28:31], s23 offen offset:{(i & 1)*2048}{NT}")
    a("v_mov_b32 v24, -1\nv_mov_b32 v25, -1\nv_mov_b32 v26, -1\nv_mov_b32 v27, -1")
    a("v_mov_b32 v28, 0")
    a("v_lshlrev_b32 v6, 4, v0")
    for i in range(4):
        a(f"ds_write_b128 v6, v[24:27] offset:{i*8192}")
    a(f"ds_write_b32 v3, v28 offset:{CNT}")
    srd_ws(a, 36, 20, CELL_OFF, 256 * 128 * 128)
    srd_ws(a, 40, 20, W2F_OFF, FRAG_BYTES)
    a("v_mov_b32 v29, 1")
    a(f"v_mov_b32 v30, {OVF - (1 << 32)}")
    a("v_lshlrev_b32 v31, 6, v0")
    a("v_lshrrev_b32 v44, 3, v0")
    a("v_xor_b32 v45, v44, v0")
    a("v_and_b32 v45, 7, v45")
    a("v_lshlrev_b32 v45, 4, v45")
    a("v_lshl_add_u32 v45, v44, 7, v45")
    a("v_and_b32 v46, 7, v0")
    a("v_lshlrev_b32 v46, 4, v46")
    a("v_lshl_add_u32 v46, v44, 14, v46")
    a("s_and_b32 s24, s2, 7")
    a("s_lshl_b32 s24, s24, 4")
    a("s_lshr_b32 s25, s2, 3")
    a("s_or_b32 s24, s24, s25")
    a("s_lshl_b32 s24, s24, 7")
    for i in range(1, 4):
        a(f"s_add_u32 s{24+i}, s24, {i << 20}")
    for i in range(5):
        a(f"v_add_u32 v{84+i}, {i*32768}, v31")
    a(f"v_cmp_gt_u32 vcc, {CHUNK - 2048}, v0")
    a("s_waitcnt lgkmcnt(0)")
    a("s_mov_b64 s[52:53], vcc")
    stamp(a, opt, 1, SV)
    a("s_barrier")
    a("v_lshlrev_b32 v7, 7, v0")
    if opt.get("epf", 0):
        a(f"s_mul_i32 s57, s2, {CHUNK*32}")
        a("s_add_u32 s48, s6, s57")
        a("s_addc_u32 s49, s7, 0")
        a(f"s_mov_b32 s50, {CHUNK*32}")
        a("s_mov_b32 s51, 0x00020000")
        a("s_mov_b32 s57, 65536")
        a("buffer_load_dword v8, v7, s[48:51], 0 offen")
        a("buffer_load_dword v9, v7, s[48:51], s57 offen")
    if opt.get("cpf", 1):
        a("s_getpc_b64 s[60:61]")
        a.label("K1_PC")
        a("s_add_u32 s60, s60, mpnn_main_kernel-K1_PC")
        a("s_addc_u32 s61, s61, 0")
        a("s_mov_b32 s62, K2_REDO-mpnn_main_kernel")
        a("s_mov_b32 s63, 0x00020000")
        a("buffer_load_dword v22, v7, s[60:63], 0 offen")
    if opt.get("stamps"): a(f"s_waitcnt vmcnt({NX})")
    stamp(a, opt, 2, SV)
    for i in range(5):
        a(f"s_waitcnt vmcnt({9 - i + NX})")
        a(f"v_and_b32 v{32+i}, 255, v{10+i}")
        a(f"v_lshlrev_b32 v{32+i}, 2, v{32+i}")
        if i == 4: a("s_mov_b64 exec, s[52:53]")
        a(f"ds_add_rtn_u32 v{60+i}, v{32+i}, v29 offset:{CNT}")
        if i == 4: a("s_mov_b64 exec, -1")
    for i in range(5):
        a(f"s_waitcnt vmcnt({4 - i + NX})")
        a(f"v_lshrrev_b32 v{10+i}, 8, v{10+i}")
        a(f"v_lshl_or_b32 v{10+i}, v{16+i}, 18, v{10+i}")
        a(f"v_or_b32 v{10+i}, v{10+i}, v{84+i}")
        a(f"v_and_b32 v{16+i}, 28, v{32+i}")
        a(f"v_lshlrev_b32 v{32+i}, 3, v{32+i}")
    for i in range(5):
        a("s_waitcnt lgkmcnt(4)")
        a(f"v_cmp_lt_u32 vcc, 30, v{60+i}")
        a(f"v_min_u32 v{60+i}, 31, v{60+i}")
        a(f"v_xad_u32 v{60+i}, v{60+i}, v{16+i}, v{32+i}")
        a(f"v_cndmask_b32 v{10+i}, v{10+i}, v30, vcc")
        a(f"v_lshlrev_b32 v{60+i}, 2, v{60+i}")
        if i == 4: a("s_mov_b64 exec, s[52:53]")
        a(f"ds_write_b32 v{60+i}, v{10+i}")
        if i == 4: a("s_mov_b64 exec, -1")
    a("s_waitcnt lgkmcnt(0)")
    a("s_barrier")
    stamp(a, opt, 3, SV)
    for i in range(4):
        a(f"ds_read_b128 {v(64+4*i,4)}, v45 offset:{i*8192}")
    for i in range(4):
        a(f"s_waitcnt lgkmcnt({3 - i})")
        if opt.get("nocst"): continue
        a(f"buffer_store_dwordx4 {v(64+4*i,4)}, v46, s[36:39], s{24+i} offen{SF}")
    stamp(a, opt, 4, SV)
    if opt.get("stamps"): a("s_waitcnt vmcnt(0)")
    stamp(a, opt, 5, SV)
    stamp_out(a, opt, 20, 0xF00000, 22, SV, tmpv=121)
    a("s_cmp_eq_u32 s58, -1")
    a("s_cbranch_scc1 K1_END")
    a("v_lshlrev_b32 v6, 4, v2")
    a("s_lshl_b32 s24, s58, 10")
    a("s_cmp_ge_u32 s58, 128")
    a("s_cbranch_scc1 K1_FINC")
    for e in range(4):
        a(f"v_lshl_or_b32 v{56+e}, v{49+2*e}, 16, v{48+2*e}")
    a("buffer_store_dwordx4 v[56:59], v6, s[40:43], s24 offen")
    a("s_endpgm")
    a.label("K1_FINC")
    a(f"s_mov_b32 s25, {NEGLOG2E:#x}")
    for e in range(8):
        a(f"v_lshlrev_b32 v{48+e}, 16, v{48+e}")
        a(f"v_mul_f32 v{48+e}, s25, v{48+e}")
    for e in range(4):
        a(f"v_cvt_pk_bf16_f32 v{56+e}, v{48+2*e}, v{49+2*e}")
    a("buffer_store_dwordx4 v[56:59], v6, s[40:43], s24 offen")
    a.label("K1_END")
    a("s_endpgm")
    return a, (128 if opt.get('stamps') else 112), (102 if opt.get('stamps') else 64)
```

```python
from asmlib import *

N = 10000; E = 320000
P_OFF = 0
CELL_OFF = 0xA00000
W2F_OFF = 0xE00000
W1BF_OFF = 0xE10000
WCF_OFF = 0xE20000
FRAG_BYTES = 0x22000
NSORT = 128
CHUNK = 2500
NGEMM = 157
K1_WGS = NSORT + NGEMM
K1_LDS = 81920
NEGLOG2E = 0xBFB8AA3B
OVF = 0xFFFFFFFE

def srd(a, r, lo, hi, size):
    a(f"s_mov_b32 s{r}, {lo}")
    a(f"s_mov_b32 s{r+1}, {hi}")
    a(f"s_mov_b32 s{r+2}, {size}")
    a(f"s_mov_b32 s{r+3}, 0x00020000")

def srd_ws(a, r, wslo, off, size):
    a(f"s_add_u32 s{r}, s{wslo}, {off}")
    a(f"s_addc_u32 s{r+1}, s{wslo+1}, 0")
    a(f"s_mov_b32 s{r+2}, {size}")
    a(f"s_mov_b32 s{r+3}, 0x00020000")

STAMPV = 150
def stamp(a, opt, idx, vreg=STAMPV, sreg=96):
    if not opt.get("stamps"): return
    a(f"s_memrealtime s[{sreg}:{sreg+1}]")
    a("s_waitcnt lgkmcnt(0)")
    a(f"v_writelane_b32 v{vreg}, s{sreg}, {idx}")
def stamp_clk(a, opt, idx, vreg=STAMPV, sreg=96):
    if not opt.get("stamps"): return
    a(f"s_memtime s[{sreg}:{sreg+1}]")
    a("s_waitcnt lgkmcnt(0)")
    a(f"v_writelane_b32 v{vreg}, s{sreg}, {idx}")
def stamp_out(a, opt, wslo, off, wavereg, vreg=STAMPV, sreg=96, tmpv=151):
    if not opt.get("stamps"): return
    a(f"s_add_u32 s{sreg}, s{wslo}, {off}")
    a(f"s_addc_u32 s{sreg+1}, s{wslo+1}, 0")
    a(f"s_mov_b32 s{sreg+2}, 0x80000")
    a(f"s_mov_b32 s{sreg+3}, 0x00020000")
    a(f"s_lshl_b32 s100, s2, 4")
    a(f"s_add_u32 s100, s100, s{wavereg}")
    a(f"s_lshl_b32 s100, s100, 6")
    a(f"v_mbcnt_lo_u32_b32 v{tmpv}, -1, 0")
    a(f"v_lshlrev_b32 v{tmpv}, 2, v{tmpv}")
    a("s_mov_b64 exec, 0xffff")
    a(f"buffer_store_dword v{vreg}, v{tmpv}, s[{sreg}:{sreg+3}], s100 offen")
    a("s_mov_b64 exec, -1")

def stamp_out2(a, opt, wslo, off, wavereg, vreg, sreg=96, tmpv=151):
    a(f"s_add_u32 s{sreg}, s{wslo}, {off}")
    a(f"s_addc_u32 s{sreg+1}, s{wslo+1}, 0")
    a(f"s_lshl_b32 s100, s100, 1")
    a("s_mov_b64 exec, 0xffffffff")
    a(f"buffer_store_dword v{vreg}, v{tmpv}, s[{sreg}:{sreg+3}], s100 offen")
    a("s_mov_b64 exec, -1")

def gen_k1(opt=None):
    opt = opt or {}
    SV = 120
    SFD = {0: "", 1: " sc1", 2: " sc0 sc1", 3: " nt", 4: " nt sc1"}
    SF = SFD[opt.get("sf", 1)]
    SFG = SFD[opt.get("sfg", 0)]
    NT = " nt" if opt.get("knt", 1) else ""
    a = Asm()
    a.label("mpnn_pre_kernel")
    a(f"s_cmp_ge_u32 s2, {K1_WGS}")
    a("s_cbranch_scc1 K1_END")
    if opt.get("stamps"): a(f"v_mov_b32 v{SV}, 0")
    stamp(a, opt, 0, SV)
    a("s_load_dwordx16 s[4:19], s[0:1], 0")
    a("s_load_dwordx2 s[20:21], s[0:1], 80")
    a("v_lshrrev_b32 v1, 6, v0")
    a("v_and_b32 v2, 63, v0")
    a("v_readfirstlane_b32 s22, v1")
    a(f"s_cmp_lt_u32 s2, {NSORT}")
    a("s_cbranch_scc1 K1_SORT")
    XI = 65536
    a(f"s_sub_u32 s25, s2, {NSORT}")
    a("s_lshr_b32 s26, s22, 2")
    a("s_and_b32 s27, s22, 3")
    a("v_lshrrev_b32 v5, 5, v2")
    a("v_and_b32 v6, 31, v2")
    a("v_lshlrev_b32 v7, 2, v5")
    a("v_xor_b32 v7, v7, v6")
    a("v_lshlrev_b32 v7, 4, v7")
    a("v_lshl_add_u32 v3, v5, 9, v7")
    a("v_xor_b32 v4, 0x80, v3")
    a("v_lshrrev_b32 v10, 4, v2")
    a("s_lshl_b32 s44, s22, 3")
    a("v_add_u32 v10, s44, v10")
    a("v_xor_b32 v11, v10, v2")
    a("v_and_b32 v11, 15, v11")
    a("v_lshlrev_b32 v11, 4, v11")
    a("v_lshl_add_u32 v8, v10, 8, v11")
    a("v_xor_b32 v9, 64, v8")
    a("s_lshl_b32 s45, s22, 12")
    a("s_add_u32 s47, s45, 32768")
    a("s_lshl_b32 s48, s25, 14")
    a("s_lshl_b32 s49, s22, 11")
    a(f"s_add_u32 m0, s49, {XI}")
    a("s_waitcnt lgkmcnt(0)")
    srd(a, 32, "s4", "s5", N * 256)
    srd(a, 28, "s12", "s13", 272 * 512)
    if opt.get("pt") == 4:
        srd(a, 36, "s20", "s21", (N + 1) * 512)
        a("s_lshl_b32 s58, s25, 15")
        a("v_mov_b32 v30, 0")
        a("buffer_load_dword v31, v30, s[36:39], s58 offen")
    a(f"buffer_load_dwordx4 v8, s[32:35], s48 offen{NT} lds")
    a(f"buffer_load_dwordx4 v9, s[32:35], s48 offen offset:1024{NT} lds")
    a("s_mov_b32 m0, s45")
    a("s_nop 0")
    for k in range(4):
        a(f"buffer_load_dwordx4 v{3 + (k & 1)}, s[28:31], s45 offen offset:{k*1024} lds")
    a("s_mov_b32 m0, s47")
    a("s_nop 0")
    for k in range(4):
        a(f"buffer_load_dwordx4 v{3 + (k & 1)}, s[28:31], s47 offen offset:{k*1024} lds")
    a("s_lshl_b32 s50, s27, 7")
    srd(a, 36, "s20", "s21", (N + 1) * 512)
    if opt.get("dupst"): srd_ws(a, 40, 20, opt["dupst"] << 20, (N + 1) * 512)
    PT = opt.get("pt", 0); NPT = 0
    if PT == 4: PT = 0
    if PT:
        a("s_lshl_b32 s58, s25, 15")
        if PT in (1, 2):
            a("v_lshlrev_b32 v30, 6, v0")
            if PT == 1: a("buffer_load_dword v31, v30, s[36:39], s58 offen")
            else: a("buffer_store_dword v30, v30, s[36:39], s58 offen sc1")
            NPT = 1
        else:
            a("v_lshlrev_b32 v30, 4, v0")
            for i in range(4):
                a(f"buffer_store_dwordx4 v[8:11], v30, s[36:39], s58 offen sc1")
                a("s_add_u32 s58, s58, 8192")
            NPT = 4
    a("v_and_b32 v17, 15, v2")
    a("v_xor_b32 v17, v17, v5")
    a("v_lshlrev_b32 v17, 4, v17")
    a("v_lshl_add_u32 v16, v6, 8, v17")
    a("s_lshl_b32 s51, s26, 13")
    a(f"s_add_u32 s51, s51, {XI}")
    a("v_add_u32 v16, s51, v16")
    for sidx in range(1, 8):
        a(f"v_xor_b32 v{16+sidx}, {sidx << 5}, v16")
    a("v_bfe_u32 v26, v2, 2, 2")
    a("v_lshl_add_u32 v27, v5, 3, v26")
    a("v_and_b32 v28, 3, v2")
    a("v_lshlrev_b32 v28, 3, v28")
    a("v_bfe_u32 v29, v2, 4, 1")
    a("v_lshl_add_u32 v28, v29, 5, v28")
    a("v_add_u32 v28, s50, v28")
    a("v_lshlrev_b32 v26, 6, v26")
    a("v_xor_b32 v28, v28, v26")
    a("v_lshl_add_u32 v24, v27, 9, v28")
    a("v_xor_b32 v25, 64, v24")
    a("v_lshlrev_b32 v13, 2, v6")
    a("v_lshl_add_u32 v13, v5, 11, v13")
    a("v_add_u32 v13, s50, v13")
    a("s_lshl_b32 s52, s25, 15")
    a("s_lshl_b32 s51, s26, 14")
    a("s_add_u32 s52, s52, s51")
    a("s_add_u32 s53, s52, 4096")
    a("s_add_u32 s54, s52, 8192")
    a("s_add_u32 s55, s52, 12288")
    a(f"s_mov_b32 s56, {NEGLOG2E:#x}")
    a(f"s_mov_b32 s57, {NEGLOG2E:#x}")
    stamp(a, opt, 1, SV)
    a(f"s_waitcnt vmcnt({4 + NPT})")
    stamp(a, opt, 2, SV)
    a("s_barrier")
    AF = 32; BF = 48; DA = 80; DB = 96
    def reads(sidx):
        st = sidx & 3
        a(f"ds_read_b128 {v(AF+4*st,4)}, v{16+sidx}")
        for X in range(2):
            for e in range(2):
                a(f"ds_read_b64_tr_b16 {v(BF+8*st+4*X+2*e,2)}, v{24+X} offset:{sidx*8192+e*2048}")
    def mm(sidx):
        st = sidx & 3
        ca = "0" if sidx == 0 else v(DA, 16)
        cb = "0" if sidx == 0 else v(DB, 16)
        a(f"v_mfma_f32_32x32x16_bf16 {v(DA,16)}, {v(AF+4*st,4)}, {v(BF+8*st,4)}, {ca}")
        a(f"v_mfma_f32_32x32x16_bf16 {v(DB,16)}, {v(AF+4*st,4)}, {v(BF+8*st+4,4)}, {cb}")
    reads(0); reads(1); reads(2)
    a("s_waitcnt lgkmcnt(10)"); mm(0); reads(3)
    a("s_waitcnt lgkmcnt(10)"); mm(1)
    a(f"s_waitcnt vmcnt({NPT})")
    a("s_barrier")
    reads(4)
    a("s_waitcnt lgkmcnt(10)"); mm(2); reads(5)
    a("s_waitcnt lgkmcnt(10)"); mm(3); reads(6)
    a("s_waitcnt lgkmcnt(10)"); mm(4); reads(7)
    a("s_waitcnt lgkmcnt(10)"); mm(5)
    a("s_waitcnt lgkmcnt(5)"); mm(6)
    a("s_waitcnt lgkmcnt(0)"); mm(7)
    a("s_nop 10")
    if PT >= 2:
        a("s_waitcnt vmcnt(0)")
        a("s_barrier")
    stamp(a, opt, 3, SV)
    for r in range(0, 16, 2):
        a(f"v_pk_mul_f32 {v(DA+r,2)}, {v(DA+r,2)}, s[56:57]")
        a(f"v_pk_mul_f32 {v(DB+r,2)}, {v(DB+r,2)}, s[56:57]")
        for rr in (r, r + 1):
            a(f"v_cvt_pk_bf16_f32 v{AF+rr}, v{DA+rr}, v{DB+rr}")
            if opt.get("nogst"): continue
            a(f"buffer_store_dword v{AF+rr}, v13, s[36:39], s{52 + (rr >> 2)} offen offset:{(rr & 3)*512}{SFG}")
            if opt.get("dupst"): a(f"buffer_store_dword v{AF+rr}, v13, s[40:43], s{52 + (rr >> 2)} offen offset:{(rr & 3)*512}{SFG}")
    stamp(a, opt, 4, SV)
    if opt.get("stamps"): a("s_waitcnt vmcnt(0)")
    stamp(a, opt, 5, SV)
    stamp_out(a, opt, 20, 0xF00000, 22, SV, tmpv=121)
    a("s_endpgm")
    a.label("K1_SORT")
    CNT = 32768
    ST = opt.get("st", 0)
    NX = (2 if opt.get("epf", 0) else 0) + (1 if opt.get("cpf", 1) else 0) + (1 if ST >= 1 else 0) + (2 if ST >= 2 else 0)
    a("v_lshlrev_b32 v3, 2, v0")
    a("v_add_u32 v4, 4096, v3")
    a("v_add_u32 v5, 8192, v3")
    a(f"s_mul_i32 s23, s2, {CHUNK*4}")
    a("s_add_u32 s59, s2, 128")
    a("s_cmp_lt_u32 s2, 8")
    a("s_cselect_b32 s59, s59, -1")
    a("s_cmp_eq_u32 s22, 1")
    a("s_cselect_b32 s58, s59, -1")
    a("s_cmp_eq_u32 s22, 0")
    a("s_cselect_b32 s58, s2, s58")
    a("s_cmp_eq_u32 s58, -1")
    a("s_waitcnt lgkmcnt(0)")
    srd(a, 28, "s8", "s9", E * 4)
    srd(a, 32, "s10", "s11", E * 4)
    a("s_cbranch_scc1 K1_NOPREP")
    a("s_cmp_ge_u32 s58, 64")
    a("s_cbranch_scc1 K1_PREP1")
    srd(a, 44, "s16", "s17", 256 * 256)
    a("v_and_b32 v40, 15, v2")
    a("v_lshlrev_b32 v40, 1, v40")
    a("v_lshrrev_b32 v41, 4, v2")
    a("v_lshl_add_u32 v40, v41, 10, v40")
    a("v_add_u32 v41, 8192, v40")
    a("s_bfe_u32 s24, s2, 0x20001")
    a("s_lshl_b32 s24, s24, 14")
    a("s_and_b32 s25, s2, 1")
    a("s_lshl_b32 s25, s25, 12")
    a("s_add_u32 s24, s24, s25")
    a("s_lshr_b32 s25, s2, 3")
    a("s_lshl_b32 s25, s25, 5")
    a("s_add_u32 s24, s24, s25")
    for e in range(8):
        a(f"buffer_load_ushort v{48+e}, v{40 + (e & 1)}, s[44:47], s24 offen offset:{(e >> 1)*256}")
    a("s_branch K1_NOPREP")
    a.label("K1_PREP1")
    srd(a, 44, "s12", "s13", 272 * 512)
    a("v_and_b32 v42, 1, v2")
    a("v_lshlrev_b32 v42, 6, v42")
    a("v_and_b32 v43, 30, v2")
    a("v_add_u32 v42, v42, v43")
    a("v_lshrrev_b32 v43, 5, v2")
    a("v_lshl_add_u32 v42, v43, 12, v42")
    a("s_bfe_u32 s26, s2, 0x30003")
    a("s_and_b32 s27, s2, 7")
    a("s_cmp_ge_u32 s58, 128")
    a("s_cselect_b32 s26, s27, s26")
    a("s_cselect_b32 s27, 8, s27")
    a("s_lshr_b32 s24, s26, 1")
    a("s_lshl_b32 s24, s24, 7")
    a("s_and_b32 s25, s26, 1")
    a("s_lshl_b32 s25, s25, 5")
    a("s_add_u32 s24, s24, s25")
    a("s_lshl_b32 s27, s27, 13")
    a("s_add_u32 s24, s24, s27")
    a(f"s_add_u32 s24, s24, {128*512}")
    for e in range(8):
        a(f"buffer_load_ushort v{48+e}, v42, s[44:47], s24 offen offset:{e*512}")
    a.label("K1_NOPREP")
    for i in range(5):
        a(f"buffer_load_dword v{10+i}, v{3 + (i >> 1)}, s[32:35], s23 offen offset:{(i & 1)*2048}{NT}")
    for i in range(5):
        a(f"buffer_load_dword v{16+i}, v{3 + (i >> 1)}, s[28:31], s23 offen offset:{(i & 1)*2048}{NT}")
    if ST >= 1:
        srd_ws(a, 48, 20, CELL_OFF, (W2F_OFF - CELL_OFF) + FRAG_BYTES)
        a(f"v_lshlrev_b32 v23, {opt.get('tsh', 21)}, v2")
        a("buffer_load_dword v21, v23, s[48:51], 0 offen")
    if ST >= 2:
        a("s_load_dwordx2 s[54:55], s[0:1], 64")
        srd(a, 48, "s6", "s7", E * 32)
        a("buffer_load_dword v21, v23, s[48:51], 0 offen")
        a("s_waitcnt lgkmcnt(0)")
        srd(a, 48, "s54", "s55", N * 256)
        a("buffer_load_dword v21, v23, s[48:51], 0 offen")
    a("v_mov_b32 v24, -1\nv_mov_b32 v25, -1\nv_mov_b32 v26, -1\nv_mov_b32 v27, -1")
    a("v_mov_b32 v28, 0")
    a("v_lshlrev_b32 v6, 4, v0")
    for i in range(4):
        a(f"ds_write_b128 v6, v[24:27] offset:{i*8192}")
    a(f"ds_write_b32 v3, v28 offset:{CNT}")
    srd_ws(a, 36, 20, CELL_OFF, 256 * 128 * 128)
    srd_ws(a, 40, 20, W2F_OFF, FRAG_BYTES)
    a("v_mov_b32 v29, 1")
    a(f"v_mov_b32 v30, {OVF - (1 << 32)}")
    a("v_lshlrev_b32 v31, 6, v0")
    a("v_lshrrev_b32 v44, 3, v0")
    a("v_xor_b32 v45, v44, v0")
    a("v_and_b32 v45, 7, v45")
    a("v_lshlrev_b32 v45, 4, v45")
    a("v_lshl_add_u32 v45, v44, 7, v45")
    a("v_and_b32 v46, 7, v0")
    a("v_lshlrev_b32 v46, 4, v46")
    a("v_lshl_add_u32 v46, v44, 14, v46")
    a("s_and_b32 s24, s2, 7")
    a("s_lshl_b32 s24, s24, 4")
    a("s_lshr_b32 s25, s2, 3")
    a("s_or_b32 s24, s24, s25")
    a("s_lshl_b32 s24, s24, 7")
    for i in range(1, 4):
        a(f"s_add_u32 s{24+i}, s24, {i << 20}")
    for i in range(5):
        a(f"v_add_u32 v{84+i}, {i*32768}, v31")
    a(f"v_cmp_gt_u32 vcc, {CHUNK - 2048}, v0")
    a("s_waitcnt lgkmcnt(0)")
    a("s_mov_b64 s[52:53], vcc")
    stamp(a, opt, 1, SV)
    a("s_barrier")
    a("v_lshlrev_b32 v7, 7, v0")
    if opt.get("epf", 0):
        a(f"s_mul_i32 s57, s2, {CHUNK*32}")
        a("s_add_u32 s48, s6, s57")
        a("s_addc_u32 s49, s7, 0")
        a(f"s_mov_b32 s50, {CHUNK*32}")
        a("s_mov_b32 s51, 0x00020000")
        a("s_mov_b32 s57, 65536")
        a("buffer_load_dword v8, v7, s[48:51], 0 offen")
        a("buffer_load_dword v9, v7, s[48:51], s57 offen")
    if opt.get("cpf", 1):
        a("s_getpc_b64 s[60:61]")
        a.label("K1_PC")
        a("s_add_u32 s60, s60, mpnn_main_kernel-K1_PC")
        a("s_addc_u32 s61, s61, 0")
        a("s_mov_b32 s62, K2_REDO-mpnn_main_kernel")
        a("s_mov_b32 s63, 0x00020000")
        a("buffer_load_dword v22, v7, s[60:63], 0 offen")
    if opt.get("stamps"): a(f"s_waitcnt vmcnt({NX})")
    stamp(a, opt, 2, SV)
    for i in range(5):
        a(f"s_waitcnt vmcnt({9 - i + NX})")
        a(f"v_and_b32 v{32+i}, 255, v{10+i}")
        a(f"v_lshlrev_b32 v{32+i}, 2, v{32+i}")
        if i == 4: a("s_mov_b64 exec, s[52:53]")
        a(f"ds_add_rtn_u32 v{60+i}, v{32+i}, v29 offset:{CNT}")
        if i == 4: a("s_mov_b64 exec, -1")
    for i in range(5):
        a(f"s_waitcnt vmcnt({4 - i + NX})")
        a(f"v_lshrrev_b32 v{10+i}, 8, v{10+i}")
        a(f"v_lshl_or_b32 v{10+i}, v{16+i}, 18, v{10+i}")
        a(f"v_or_b32 v{10+i}, v{10+i}, v{84+i}")
        a(f"v_and_b32 v{16+i}, 28, v{32+i}")
        a(f"v_lshlrev_b32 v{32+i}, 3, v{32+i}")
    for i in range(5):
        a("s_waitcnt lgkmcnt(4)")
        a(f"v_cmp_lt_u32 vcc, 30, v{60+i}")
        a(f"v_min_u32 v{60+i}, 31, v{60+i}")
        a(f"v_xad_u32 v{60+i}, v{60+i}, v{16+i}, v{32+i}")
        a(f"v_cndmask_b32 v{10+i}, v{10+i}, v30, vcc")
        a(f"v_lshlrev_b32 v{60+i}, 2, v{60+i}")
        if i == 4: a("s_mov_b64 exec, s[52:53]")
        a(f"ds_write_b32 v{60+i}, v{10+i}")
        if i == 4: a("s_mov_b64 exec, -1")
    a("s_waitcnt lgkmcnt(0)")
    a("s_barrier")
    stamp(a, opt, 3, SV)
    for i in range(4):
        a(f"ds_read_b128 {v(64+4*i,4)}, v45 offset:{i*8192}")
    for i in range(4):
        a(f"s_waitcnt lgkmcnt({3 - i})")
        if opt.get("nocst"): continue
        a(f"buffer_store_dwordx4 {v(64+4*i,4)}, v46, s[36:39], s{24+i} offen{SF}")
    stamp(a, opt, 4, SV)
    if opt.get("stamps"): a("s_waitcnt vmcnt(0)")
    stamp(a, opt, 5, SV)
    stamp_out(a, opt, 20, 0xF00000, 22, SV, tmpv=121)
    a("s_cmp_eq_u32 s58, -1")
    a("s_cbranch_scc1 K1_END")
    a("v_lshlrev_b32 v6, 4, v2")
    a("s_lshl_b32 s24, s58, 10")
    a("s_cmp_ge_u32 s58, 128")
    a("s_cbranch_scc1 K1_FINC")
    for e in range(4):
        a(f"v_lshl_or_b32 v{56+e}, v{49+2*e}, 16, v{48+2*e}")
    a("buffer_store_dwordx4 v[56:59], v6, s[40:43], s24 offen")
    a("s_endpgm")
    a.label("K1_FINC")
    a(f"s_mov_b32 s25, {NEGLOG2E:#x}")
    for e in range(8):
        a(f"v_lshlrev_b32 v{48+e}, 16, v{48+e}")
        a(f"v_mul_f32 v{48+e}, s25, v{48+e}")
    for e in range(4):
        a(f"v_cvt_pk_bf16_f32 v{56+e}, v{48+2*e}, v{49+2*e}")
    a("buffer_store_dwordx4 v[56:59], v6, s[40:43], s24 offen")
    a.label("K1_END")
    a("s_endpgm")
    return a, (128 if opt.get('stamps') else 112), (102 if opt.get('stamps') else 64)
```

```python
from asmlib import *

N = 10000; E = 320000
P_OFF = 0
CELL_OFF = 0xA00000
W2F_OFF = 0xE00000
W1BF_OFF = 0xE10000
WCF_OFF = 0xE20000
FRAG_BYTES = 0x22000
NSORT = 128
CHUNK = 2500
NGEMM = 157
K1_WGS = NSORT + NGEMM
K1_LDS = 81920
NEGLOG2E = 0xBFB8AA3B
OVF = 0xFFFFFFFE

def srd(a, r, lo, hi, size):
    a(f"s_mov_b32 s{r}, {lo}")
    a(f"s_mov_b32 s{r+1}, {hi}")
    a(f"s_mov_b32 s{r+2}, {size}")
    a(f"s_mov_b32 s{r+3}, 0x00020000")

def srd_ws(a, r, wslo, off, size):
    a(f"s_add_u32 s{r}, s{wslo}, {off}")
    a(f"s_addc_u32 s{r+1}, s{wslo+1}, 0")
    a(f"s_mov_b32 s{r+2}, {size}")
    a(f"s_mov_b32 s{r+3}, 0x00020000")

STAMPV = 150
def stamp(a, opt, idx, vreg=STAMPV, sreg=96):
    if not opt.get("stamps"): return
    a(f"s_memrealtime s[{sreg}:{sreg+1}]")
    a("s_waitcnt lgkmcnt(0)")
    a(f"v_writelane_b32 v{vreg}, s{sreg}, {idx}")
def stamp_clk(a, opt, idx, vreg=STAMPV, sreg=96):
    if not opt.get("stamps"): return
    a(f"s_memtime s[{sreg}:{sreg+1}]")
    a("s_waitcnt lgkmcnt(0)")
    a(f"v_writelane_b32 v{vreg}, s{sreg}, {idx}")
def stamp_out(a, opt, wslo, off, wavereg, vreg=STAMPV, sreg=96, tmpv=151):
    if not opt.get("stamps"): return
    a(f"s_add_u32 s{sreg}, s{wslo}, {off}")
    a(f"s_addc_u32 s{sreg+1}, s{wslo+1}, 0")
    a(f"s_mov_b32 s{sreg+2}, 0x80000")
    a(f"s_mov_b32 s{sreg+3}, 0x00020000")
    a(f"s_lshl_b32 s100, s2, 4")
    a(f"s_add_u32 s100, s100, s{wavereg}")
    a(f"s_lshl_b32 s100, s100, 6")
    a(f"v_mbcnt_lo_u32_b32 v{tmpv}, -1, 0")
    a(f"v_lshlrev_b32 v{tmpv}, 2, v{tmpv}")
    a("s_mov_b64 exec, 0xffff")
    a(f"buffer_store_dword v{vreg}, v{tmpv}, s[{sreg}:{sreg+3}], s100 offen")
    a("s_mov_b64 exec, -1")

def stamp_out2(a, opt, wslo, off, wavereg, vreg, sreg=96, tmpv=151):
    a(f"s_add_u32 s{sreg}, s{wslo}, {off}")
    a(f"s_addc_u32 s{sreg+1}, s{wslo+1}, 0")
    a(f"s_lshl_b32 s100, s100, 1")
    a("s_mov_b64 exec, 0xffffffff")
    a(f"buffer_store_dword v{vreg}, v{tmpv}, s[{sreg}:{sreg+3}], s100 offen")
    a("s_mov_b64 exec, -1")

def gen_k1(opt=None):
    opt = opt or {}
    SV = 120
    SFD = {0: "", 1: " sc1", 2: " sc0 sc1", 3: " nt", 4: " nt sc1"}
    SF = SFD[opt.get("sf", 1)]
    SFG = SFD[opt.get("sfg", 0)]
    NT = " nt" if opt.get("knt", 1) else ""
    a = Asm()
    a.label("mpnn_pre_kernel")
    a(f"s_cmp_ge_u32 s2, {K1_WGS}")
    a("s_cbranch_scc1 K1_END")
    if opt.get("stamps"): a(f"v_mov_b32 v{SV}, 0")
    stamp(a, opt, 0, SV)
    a("s_load_dwordx16 s[4:19], s[0:1], 0")
    a("s_load_dwordx2 s[20:21], s[0:1], 80")
    a("v_lshrrev_b32 v1, 6, v0")
    a("v_and_b32 v2, 63, v0")
    a("v_readfirstlane_b32 s22, v1")
    GF = opt.get("gfirst", 1)
    if GF:
        a(f"s_cmp_ge_u32 s2, {NGEMM}")
    else:
        a(f"s_cmp_lt_u32 s2, {NSORT}")
    a("s_cbranch_scc1 K1_SORT")
    XI = 65536
    a(f"s_sub_u32 s25, s2, {0 if GF else NSORT}")
    a("s_lshr_b32 s26, s22, 2")
    a("s_and_b32 s27, s22, 3")
    a("v_lshrrev_b32 v5, 5, v2")
    a("v_and_b32 v6, 31, v2")
    a("v_lshlrev_b32 v7, 2, v5")
    a("v_xor_b32 v7, v7, v6")
    a("v_lshlrev_b32 v7, 4, v7")
    a("v_lshl_add_u32 v3, v5, 9, v7")
    a("v_xor_b32 v4, 0x80, v3")
    a("v_lshrrev_b32 v10, 4, v2")
    a("s_lshl_b32 s44, s22, 3")
    a("v_add_u32 v10, s44, v10")
    a("v_xor_b32 v11, v10, v2")
    a("v_and_b32 v11, 15, v11")
    a("v_lshlrev_b32 v11, 4, v11")
    a("v_lshl_add_u32 v8, v10, 8, v11")
    a("v_xor_b32 v9, 64, v8")
    a("s_lshl_b32 s45, s22, 12")
    a("s_add_u32 s47, s45, 32768")
    a("s_lshl_b32 s48, s25, 14")
    a("s_lshl_b32 s49, s22, 11")
    a(f"s_add_u32 m0, s49, {XI}")
    a("s_waitcnt lgkmcnt(0)")
    srd(a, 32, "s4", "s5", N * 256)
    srd(a, 28, "s12", "s13", 272 * 512)
    if opt.get("pt") == 4:
        srd(a, 36, "s20", "s21", (N + 1) * 512)
        a("s_lshl_b32 s58, s25, 15")
        a("v_mov_b32 v30, 0")
        a("buffer_load_dword v31, v30, s[36:39], s58 offen")
    a(f"buffer_load_dwordx4 v8, s[32:35], s48 offen{NT} lds")
    a(f"buffer_load_dwordx4 v9, s[32:35], s48 offen offset:1024{NT} lds")
    a("s_mov_b32 m0, s45")
    a("s_nop 0")
    for k in range(4):
        a(f"buffer_load_dwordx4 v{3 + (k & 1)}, s[28:31], s45 offen offset:{k*1024} lds")
    a("s_mov_b32 m0, s47")
    a("s_nop 0")
    for k in range(4):
        a(f"buffer_load_dwordx4 v{3 + (k & 1)}, s[28:31], s47 offen offset:{k*1024} lds")
    a("s_lshl_b32 s50, s27, 7")
    srd(a, 36, "s20", "s21", (N + 1) * 512)
    if opt.get("dupst"): srd_ws(a, 40, 20, opt["dupst"] << 20, (N + 1) * 512)
    PT = opt.get("pt", 0); NPT = 0
    if PT == 4: PT = 0
    if PT:
        a("s_lshl_b32 s58, s25, 15")
        if PT in (1, 2):
            a("v_lshlrev_b32 v30, 6, v0")
            if PT == 1: a("buffer_load_dword v31, v30, s[36:39], s58 offen")
            else: a("buffer_store_dword v30, v30, s[36:39], s58 offen sc1")
            NPT = 1
        else:
            a("v_lshlrev_b32 v30, 4, v0")
            for i in range(4):
                a(f"buffer_store_dwordx4 v[8:11], v30, s[36:39], s58 offen sc1")
                a("s_add_u32 s58, s58, 8192")
            NPT = 4
    a("v_and_b32 v17, 15, v2")
    a("v_xor_b32 v17, v17, v5")
    a("v_lshlrev_b32 v17, 4, v17")
    a("v_lshl_add_u32 v16, v6, 8, v17")
    a("s_lshl_b32 s51, s26, 13")
    a(f"s_add_u32 s51, s51, {XI}")
    a("v_add_u32 v16, s51, v16")
    for sidx in range(1, 8):
        a(f"v_xor_b32 v{16+sidx}, {sidx << 5}, v16")
    a("v_bfe_u32 v26, v2, 2, 2")
    a("v_lshl_add_u32 v27, v5, 3, v26")
    a("v_and_b32 v28, 3, v2")
    a("v_lshlrev_b32 v28, 3, v28")
    a("v_bfe_u32 v29, v2, 4, 1")
    a("v_lshl_add_u32 v28, v29, 5, v28")
    a("v_add_u32 v28, s50, v28")
    a("v_lshlrev_b32 v26, 6, v26")
    a("v_xor_b32 v28, v28, v26")
    a("v_lshl_add_u32 v24, v27, 9, v28")
    a("v_xor_b32 v25, 64, v24")
    a("v_lshlrev_b32 v13, 2, v6")
    a("v_lshl_add_u32 v13, v5, 11, v13")
    a("v_add_u32 v13, s50, v13")
    a("s_lshl_b32 s52, s25, 15")
    a("s_lshl_b32 s51, s26, 14")
    a("s_add_u32 s52, s52, s51")
    a("s_add_u32 s53, s52, 4096")
    a("s_add_u32 s54, s52, 8192")
    a("s_add_u32 s55, s52, 12288")
    a(f"s_mov_b32 s56, {NEGLOG2E:#x}")
    a(f"s_mov_b32 s57, {NEGLOG2E:#x}")
    stamp(a, opt, 1, SV)
    a(f"s_waitcnt vmcnt({4 + NPT})")
    stamp(a, opt, 2, SV)
    a("s_barrier")
    AF = 32; BF = 48; DA = 80; DB = 96
    def reads(sidx):
        st = sidx & 3
        a(f"ds_read_b128 {v(AF+4*st,4)}, v{16+sidx}")
        for X in range(2):
            for e in range(2):
                a(f"ds_read_b64_tr_b16 {v(BF+8*st+4*X+2*e,2)}, v{24+X} offset:{sidx*8192+e*2048}")
    def mm(sidx):
        st = sidx & 3
        ca = "0" if sidx == 0 else v(DA, 16)
        cb = "0" if sidx == 0 else v(DB, 16)
        a(f"v_mfma_f32_32x32x16_bf16 {v(DA,16)}, {v(AF+4*st,4)}, {v(BF+8*st,4)}, {ca}")
        a(f"v_mfma_f32_32x32x16_bf16 {v(DB,16)}, {v(AF+4*st,4)}, {v(BF+8*st+4,4)}, {cb}")
    reads(0); reads(1); reads(2)
    a("s_waitcnt lgkmcnt(10)"); mm(0); reads(3)
    a("s_waitcnt lgkmcnt(10)"); mm(1)
    a(f"s_waitcnt vmcnt({NPT})")
    a("s_barrier")
    reads(4)
    a("s_waitcnt lgkmcnt(10)"); mm(2); reads(5)
    a("s_waitcnt lgkmcnt(10)"); mm(3); reads(6)
    a("s_waitcnt lgkmcnt(10)"); mm(4); reads(7)
    a("s_waitcnt lgkmcnt(10)"); mm(5)
    a("s_waitcnt lgkmcnt(5)"); mm(6)
    a("s_waitcnt lgkmcnt(0)"); mm(7)
    a("s_nop 10")
    if PT >= 2:
        a("s_waitcnt vmcnt(0)")
        a("s_barrier")
    stamp(a, opt, 3, SV)
    for r in range(0, 16, 2):
        a(f"v_pk_mul_f32 {v(DA+r,2)}, {v(DA+r,2)}, s[56:57]")
        a(f"v_pk_mul_f32 {v(DB+r,2)}, {v(DB+r,2)}, s[56:57]")
        for rr in (r, r + 1):
            a(f"v_cvt_pk_bf16_f32 v{AF+rr}, v{DA+rr}, v{DB+rr}")
            if opt.get("nogst"): continue
            a(f"buffer_store_dword v{AF+rr}, v13, s[36:39], s{52 + (rr >> 2)} offen offset:{(rr & 3)*512}{SFG}")
            if opt.get("dupst"): a(f"buffer_store_dword v{AF+rr}, v13, s[40:43], s{52 + (rr >> 2)} offen offset:{(rr & 3)*512}{SFG}")
    stamp(a, opt, 4, SV)
    if opt.get("stamps"): a("s_waitcnt vmcnt(0)")
    stamp(a, opt, 5, SV)
    stamp_out(a, opt, 20, 0xF00000, 22, SV, tmpv=121)
    a("s_endpgm")
    a.label("K1_SORT")
    CNT = 32768
    a(f"s_sub_u32 s3, s2, {NGEMM if GF else 0}")
    ST = opt.get("st", 0)
    NX = (2 if opt.get("epf", 0) else 0) + (1 if opt.get("cpf", 1) else 0) + (1 if ST >= 1 else 0) + (2 if ST >= 2 else 0)
    a("v_lshlrev_b32 v3, 2, v0")
    a("v_add_u32 v4, 4096, v3")
    a("v_add_u32 v5, 8192, v3")
    a(f"s_mul_i32 s23, s3, {CHUNK*4}")
    a("s_add_u32 s59, s3, 128")
    a("s_cmp_lt_u32 s3, 8")
    a("s_cselect_b32 s59, s59, -1")
    a("s_cmp_eq_u32 s22, 1")
    a("s_cselect_b32 s58, s59, -1")
    a("s_cmp_eq_u32 s22, 0")
    a("s_cselect_b32 s58, s3, s58")
    a("s_cmp_eq_u32 s58, -1")
    a("s_waitcnt lgkmcnt(0)")
    srd(a, 28, "s8", "s9", E * 4)
    srd(a, 32, "s10", "s11", E * 4)
    a("s_cbranch_scc1 K1_NOPREP")
    a("s_cmp_ge_u32 s58, 64")
    a("s_cbranch_scc1 K1_PREP1")
    srd(a, 44, "s16", "s17", 256 * 256)
    a("v_and_b32 v40, 15, v2")
    a("v_lshlrev_b32 v40, 1, v40")
    a("v_lshrrev_b32 v41, 4, v2")
    a("v_lshl_add_u32 v40, v41, 10, v40")
    a("v_add_u32 v41, 8192, v40")
    a("s_bfe_u32 s24, s3, 0x20001")
    a("s_lshl_b32 s24, s24, 14")
    a("s_and_b32 s25, s3, 1")
    a("s_lshl_b32 s25, s25, 12")
    a("s_add_u32 s24, s24, s25")
    a("s_lshr_b32 s25, s3, 3")
    a("s_lshl_b32 s25, s25, 5")
    a("s_add_u32 s24, s24, s25")
    for e in range(8):
        a(f"buffer_load_ushort v{48+e}, v{40 + (e & 1)}, s[44:47], s24 offen offset:{(e >> 1)*256}")
    a("s_branch K1_NOPREP")
    a.label("K1_PREP1")
    srd(a, 44, "s12", "s13", 272 * 512)
    a("v_and_b32 v42, 1, v2")
    a("v_lshlrev_b32 v42, 6, v42")
    a("v_and_b32 v43, 30, v2")
    a("v_add_u32 v42, v42, v43")
    a("v_lshrrev_b32 v43, 5, v2")
    a("v_lshl_add_u32 v42, v43, 12, v42")
    a("s_bfe_u32 s26, s3, 0x30003")
    a("s_and_b32 s27, s3, 7")
    a("s_cmp_ge_u32 s58, 128")
    a("s_cselect_b32 s26, s27, s26")
    a("s_cselect_b32 s27, 8, s27")
    a("s_lshr_b32 s24, s26, 1")
    a("s_lshl_b32 s24, s24, 7")
    a("s_and_b32 s25, s26, 1")
    a("s_lshl_b32 s25, s25, 5")
    a("s_add_u32 s24, s24, s25")
    a("s_lshl_b32 s27, s27, 13")
    a("s_add_u32 s24, s24, s27")
    a(f"s_add_u32 s24, s24, {128*512}")
    for e in range(8):
        a(f"buffer_load_ushort v{48+e}, v42, s[44:47], s24 offen offset:{e*512}")
    a.label("K1_NOPREP")
    for i in range(5):
        a(f"buffer_load_dword v{10+i}, v{3 + (i >> 1)}, s[32:35], s23 offen offset:{(i & 1)*2048}{NT}")
    for i in range(5):
        a(f"buffer_load_dword v{16+i}, v{3 + (i >> 1)}, s[28:31], s23 offen offset:{(i & 1)*2048}{NT}")
    if ST >= 1:
        srd_ws(a, 48, 20, CELL_OFF, (W2F_OFF - CELL_OFF) + FRAG_BYTES)
        a(f"v_lshlrev_b32 v23, {opt.get('tsh', 21)}, v2")
        a("buffer_load_dword v21, v23, s[48:51], 0 offen")
    if ST >= 2:
        a("s_load_dwordx2 s[54:55], s[0:1], 64")
        srd(a, 48, "s6", "s7", E * 32)
        a("buffer_load_dword v21, v23, s[48:51], 0 offen")
        a("s_waitcnt lgkmcnt(0)")
        srd(a, 48, "s54", "s55", N * 256)
        a("buffer_load_dword v21, v23, s[48:51], 0 offen")
    a("v_mov_b32 v24, -1\nv_mov_b32 v25, -1\nv_mov_b32 v26, -1\nv_mov_b32 v27, -1")
    a("v_mov_b32 v28, 0")
    a("v_lshlrev_b32 v6, 4, v0")
    for i in range(4):
        a(f"ds_write_b128 v6, v[24:27] offset:{i*8192}")
    a(f"ds_write_b32 v3, v28 offset:{CNT}")
    srd_ws(a, 36, 20, CELL_OFF, 256 * 128 * 128)
    srd_ws(a, 40, 20, W2F_OFF, FRAG_BYTES)
    a("v_mov_b32 v29, 1")
    a(f"v_mov_b32 v30, {OVF - (1 << 32)}")
    a("v_lshlrev_b32 v31, 6, v0")
    a("v_lshrrev_b32 v44, 3, v0")
    a("v_xor_b32 v45, v44, v0")
    a("v_and_b32 v45, 7, v45")
    a("v_lshlrev_b32 v45, 4, v45")
    a("v_lshl_add_u32 v45, v44, 7, v45")
    a("v_and_b32 v46, 7, v0")
    a("v_lshlrev_b32 v46, 4, v46")
    a("v_lshl_add_u32 v46, v44, 14, v46")
    a("s_and_b32 s24, s3, 7")
    a("s_lshl_b32 s24, s24, 4")
    a("s_lshr_b32 s25, s3, 3")
    a("s_or_b32 s24, s24, s25")
    a("s_lshl_b32 s24, s24, 7")
    for i in range(1, 4):
        a(f"s_add_u32 s{24+i}, s24, {i << 20}")
    for i in range(5):
        a(f"v_add_u32 v{84+i}, {i*32768}, v31")
    a(f"v_cmp_gt_u32 vcc, {CHUNK - 2048}, v0")
    a("s_waitcnt lgkmcnt(0)")
    a("s_mov_b64 s[52:53], vcc")
    stamp(a, opt, 1, SV)
    a("s_barrier")
    a("v_lshlrev_b32 v7, 7, v0")
    if opt.get("epf", 0):
        a(f"s_mul_i32 s57, s3, {CHUNK*32}")
        a("s_add_u32 s48, s6, s57")
        a("s_addc_u32 s49, s7, 0")
        a(f"s_mov_b32 s50, {CHUNK*32}")
        a("s_mov_b32 s51, 0x00020000")
        a("s_mov_b32 s57, 65536")
        a("buffer_load_dword v8, v7, s[48:51], 0 offen")
        a("buffer_load_dword v9, v7, s[48:51], s57 offen")
    if opt.get("cpf", 1):
        a("s_getpc_b64 s[60:61]")
        a.label("K1_PC")
        a("s_add_u32 s60, s60, mpnn_main_kernel-K1_PC")
        a("s_addc_u32 s61, s61, 0")
        a("s_mov_b32 s62, K2_REDO-mpnn_main_kernel")
        a("s_mov_b32 s63, 0x00020000")
        a("buffer_load_dword v22, v7, s[60:63], 0 offen")
    if opt.get("stamps"): a(f"s_waitcnt vmcnt({NX})")
    stamp(a, opt, 2, SV)
    for i in range(5):
        a(f"s_waitcnt vmcnt({9 - i + NX})")
        a(f"v_and_b32 v{32+i}, 255, v{10+i}")
        a(f"v_lshlrev_b32 v{32+i}, 2, v{32+i}")
        if i == 4: a("s_mov_b64 exec, s[52:53]")
        a(f"ds_add_rtn_u32 v{60+i}, v{32+i}, v29 offset:{CNT}")
        if i == 4: a("s_mov_b64 exec, -1")
    for i in range(5):
        a(f"s_waitcnt vmcnt({4 - i + NX})")
        a(f"v_lshrrev_b32 v{10+i}, 8, v{10+i}")
        a(f"v_lshl_or_b32 v{10+i}, v{16+i}, 18, v{10+i}")
        a(f"v_or_b32 v{10+i}, v{10+i}, v{84+i}")
        a(f"v_and_b32 v{16+i}, 28, v{32+i}")
        a(f"v_lshlrev_b32 v{32+i}, 3, v{32+i}")
    for i in range(5):
        a("s_waitcnt lgkmcnt(4)")
        a(f"v_cmp_lt_u32 vcc, 30, v{60+i}")
        a(f"v_min_u32 v{60+i}, 31, v{60+i}")
        a(f"v_xad_u32 v{60+i}, v{60+i}, v{16+i}, v{32+i}")
        a(f"v_cndmask_b32 v{10+i}, v{10+i}, v30, vcc")
        a(f"v_lshlrev_b32 v{60+i}, 2, v{60+i}")
        if i == 4: a("s_mov_b64 exec, s[52:53]")
        a(f"ds_write_b32 v{60+i}, v{10+i}")
        if i == 4: a("s_mov_b64 exec, -1")
    a("s_waitcnt lgkmcnt(0)")
    a("s_barrier")
    stamp(a, opt, 3, SV)
    for i in range(4):
        a(f"ds_read_b128 {v(64+4*i,4)}, v45 offset:{i*8192}")
    for i in range(4):
        a(f"s_waitcnt lgkmcnt({3 - i})")
        if opt.get("nocst"): continue
        a(f"buffer_store_dwordx4 {v(64+4*i,4)}, v46, s[36:39], s{24+i} offen{SF}")
    stamp(a, opt, 4, SV)
    if opt.get("stamps"): a("s_waitcnt vmcnt(0)")
    stamp(a, opt, 5, SV)
    stamp_out(a, opt, 20, 0xF00000, 22, SV, tmpv=121)
    a("s_cmp_eq_u32 s58, -1")
    a("s_cbranch_scc1 K1_END")
    a("v_lshlrev_b32 v6, 4, v2")
    a("s_lshl_b32 s24, s58, 10")
    a("s_cmp_ge_u32 s58, 128")
    a("s_cbranch_scc1 K1_FINC")
    for e in range(4):
        a(f"v_lshl_or_b32 v{56+e}, v{49+2*e}, 16, v{48+2*e}")
    a("buffer_store_dwordx4 v[56:59], v6, s[40:43], s24 offen")
    a("s_endpgm")
    a.label("K1_FINC")
    a(f"s_mov_b32 s25, {NEGLOG2E:#x}")
    for e in range(8):
        a(f"v_lshlrev_b32 v{48+e}, 16, v{48+e}")
        a(f"v_mul_f32 v{48+e}, s25, v{48+e}")
    for e in range(4):
        a(f"v_cvt_pk_bf16_f32 v{56+e}, v{48+2*e}, v{49+2*e}")
    a("buffer_store_dwordx4 v[56:59], v6, s[40:43], s24 offen")
    a.label("K1_END")
    a("s_endpgm")
    return a, (128 if opt.get('stamps') else 112), (102 if opt.get('stamps') else 64)
```

```python
from asmlib import *
from k1 import *

NW = 12
PSLOT = 0
EIM = 49152
OH = 98304
ZERO = 147456
CNT = ZERO + 256
FLAG = ZERO + 512
IDX = ZERO + 3328
EOFF = IDX + 6400
HSTR = 144
K2_LDS = 163840
assert EOFF + 6144 <= K2_LDS
GCAP = 48
KILL = 0x40000000
NEGLN2 = 0xBF317218
aAE = 1; aAP = 2; aAO = 7; aS1 = 8; aS2 = 9; aIDX = 10; aEI = 11; EI = 12; CHK = 14
D = [16, 32]; EX = 48; ACC = 64; BC = [80, 84]; BQ = [88, 92]; ID = [96, 100]
AE = 104; FV = 164; MG = 165; AO = 108; S = 112; AP = [116, 120, 124, 128]; HQ = 132; IX = [136, 138, 140, 142]
WP = 144
NV2 = 168

def pr(r): return v(r, 2)
def q4(r): return v(r, 4)
def x16(r): return v(r, 16)

def mf_tile(Y):
    d = D[Y]
    return [f"v_mfma_f32_32x32x16_bf16 {x16(d)}, {q4(AE)}, {q4(BC[Y])}, 0",
            f"v_mfma_f32_32x32x16_bf16 {x16(d)}, {q4(AO)}, {q4(BQ[Y])}, {x16(d)}",
            f"v_mfma_f32_32x32x16_bf16 {x16(d)}, {q4(AP[2*Y])}, {q4(ID[0])}, {x16(d)}",
            f"v_mfma_f32_32x32x16_bf16 {x16(d)}, {q4(AP[2*Y+1])}, {q4(ID[1])}, {x16(d)}"]
SEGSUM = f"v_mfma_f32_32x32x16_bf16 {x16(ACC)}, {q4(HQ)}, {q4(S)}, {x16(ACC)}"

def tile(X, mf, ex_exp, mid, ex_rcp):
    d = D[X]; out = []; mi = 0
    for i in range(16):
        if i % 3 == 0 and mi < len(mf):
            out.append(mf[mi]); mi += 1
        out.append(f"v_exp_f32 v{EX+i}, v{d+i}")
        out += ex_exp.get(i, [])
    out += mid
    NAB, NCD, DAB, DCD = d, d + 8, EX, EX + 8
    out.append(f"v_pk_add_f32 {pr(DAB)}, {pr(EX)}, 1.0 op_sel_hi:[1,0]")
    out.append(f"v_pk_add_f32 {pr(DCD)}, {pr(EX+8)}, 1.0 op_sel_hi:[1,0]")
    for k in range(1, 4):
        out.append(f"v_pk_fma_f32 {pr(NAB)}, {pr(NAB)}, {pr(EX+2*k)}, {pr(NAB)}")
        out.append(f"v_pk_fma_f32 {pr(NCD)}, {pr(NCD)}, {pr(EX+8+2*k)}, {pr(NCD)}")
        out.append(f"v_pk_fma_f32 {pr(NAB)}, {pr(d+2*k)}, {pr(DAB)}, {pr(NAB)}")
        out.append(f"v_pk_fma_f32 {pr(NCD)}, {pr(d+8+2*k)}, {pr(DCD)}, {pr(NCD)}")
        out.append(f"v_pk_fma_f32 {pr(DAB)}, {pr(DAB)}, {pr(EX+2*k)}, {pr(DAB)}")
        out.append(f"v_pk_fma_f32 {pr(DCD)}, {pr(DCD)}, {pr(EX+8+2*k)}, {pr(DCD)}")
    out.append(f"v_pk_fma_f32 {pr(CHK)}, {pr(DAB)}, {pr(DCD)}, {pr(CHK)}")
    out += ex_rcp
    for r in (DAB, DAB + 1, DCD, DCD + 1):
        out.append(f"v_rcp_f32 v{r}, v{r}")
    out.append(f"v_pk_mul_f32 {pr(NAB)}, {pr(NAB)}, {pr(DAB)}")
    out.append(f"v_pk_mul_f32 {pr(NCD)}, {pr(NCD)}, {pr(DCD)}")
    out.append(f"v_cvt_pk_bf16_f32 v{HQ+2*X}, v{NAB}, v{NAB+1}")
    out.append(f"v_cvt_pk_bf16_f32 v{HQ+2*X+1}, v{NCD}, v{NCD+1}")
    return out

def p_dma():
    out = []
    for k in range(4):
        out.append(f"s_add_u32 m0, s57, {k*1024}")
        out.append("s_nop 0")
        out.append(f"buffer_load_dwordx4 {pr(IX[k])}, s[32:35], s58 idxen offen lds")
    return out

EFL = [""]
def e_dma():
    return ["s_cmp_lt_u32 s61, s53",
            f"s_cselect_b32 s86, {E}, 0",
            f"s_cselect_b32 m0, s59, {K2_LDS:#x}",
            "s_add_u32 s61, s61, 4",
            f"buffer_load_dwordx4 {pr(EI)}, s[84:87], 0 idxen offen{EFL[0]} lds",
            "s_add_u32 s59, s59, 4096"]
NW2 = 5
def w2_pre(vaddr):
    return [f"buffer_load_dwordx4 {q4(WP+4*sidx)}, v{vaddr}, s[40:43], s{73 + (sidx >> 2)} offen offset:{(sidx & 3)*1024}" for sidx in range(NW2)]

def gen_k2(opt=None):
    opt = opt or {}
    EFL[0] = {0: "", 1: " nt", 2: " sc1"}[opt.get("efl", 0)]
    a = Asm()
    def stp(i):
        if opt.get("stamps"):
            a("s_memrealtime s[96:97]"); a("s_waitcnt lgkmcnt(0)"); a(f"v_writelane_b32 v0, s96, {i}")
    def stc(i):
        if opt.get("stamps"):
            a("s_memtime s[96:97]"); a("s_waitcnt lgkmcnt(0)"); a(f"v_writelane_b32 v0, s96, {i}")
    a.label("mpnn_main_kernel")
    a("s_cmp_ge_u32 s2, 256")
    a("s_cbranch_scc1 K2_END")
    a("s_mov_b32 s70, 0")
    a.label("K2_TOP")
    a("s_load_dwordx2 s[22:23], s[0:1], 80")
    a("s_load_dwordx16 s[4:19], s[0:1], 0")
    a("s_load_dwordx2 s[20:21], s[0:1], 64")
    if opt.get("stamps"): a("s_memrealtime s[98:99]")
    a("v_lshrrev_b32 v72, 6, v0")
    a("v_and_b32 v1, 63, v0")
    a("v_readfirstlane_b32 s24, v72")
    a("s_mov_b32 s66, 43691")
    a("v_mul_u32_u24 v72, s66, v0")
    a("v_lshrrev_b32 v72, 18, v72")
    a("v_lshlrev_b32 v24, 4, v0")
    a("v_lshl_add_u32 v25, v72, 5, v24")
    a("v_lshrrev_b32 v73, 1, v0")
    a("v_mul_u32_u24 v26, 96, v73")
    a("v_add_u32 v26, v26, v24")
    a("s_lshl_b32 s66, s2, 14")
    a("s_cmp_lt_u32 s24, 4")
    a(f"s_cselect_b32 s67, s66, {KILL:#x}")
    a("s_and_b32 s25, s24, 3")
    a("s_lshr_b32 s26, s24, 2")
    a("s_mul_i32 s71, s26, 12")
    a("v_lshrrev_b32 v77, 4, v1")
    a("s_lshl_b32 s68, s25, 2")
    a("v_add_u32 v77, s68, v77")
    a("v_xor_b32 v27, v77, v1")
    a("v_and_b32 v27, 15, v27")
    a("v_lshlrev_b32 v27, 4, v27")
    a("v_subrev_u32 v77, s71, v77")
    a("v_and_b32 v77, 15, v77")
    a("v_add_u32 v77, s71, v77")
    a("v_lshl_add_u32 v27, v77, 16, v27")
    a("s_lshl_b32 s68, s2, 8")
    a("s_lshl_b32 s56, s26, 14")
    a(f"s_add_u32 s56, s56, {EIM}")
    a("s_lshl_b32 s69, s25, 10")
    a("s_add_u32 s59, s56, s69")
    a("s_add_u32 m0, s59, 4096")
    a("v_lshlrev_b32 v28, 4, v1")
    a("s_waitcnt lgkmcnt(0)")
    srd_ws(a, 40, 22, CELL_OFF, (W2F_OFF - CELL_OFF) + FRAG_BYTES)
    a("buffer_load_dwordx4 v[16:19], v25, s[40:43], s66 offen")
    a("buffer_load_dwordx4 v[20:23], v26, s[40:43], s67 offen offset:96")
    srd(a, 36, "s4", "s5", N * 256)
    a("buffer_load_dwordx4 v27, s[36:39], s68 offen lds")
    NWU = opt.get("wu", 1)
    if NWU:
        a("s_lshr_b32 s66, s2, 3")
        a(f"s_mul_i32 s66, s66, {34*128}")
        a(f"s_add_u32 s66, s66, {W2F_OFF - CELL_OFF}")
        a("s_cmp_eq_u32 s24, 11")
        a(f"s_cselect_b32 s66, s66, {KILL:#x}")
        a("v_min_u32 v30, 33, v1")
        a("v_lshlrev_b32 v30, 7, v30")
        a("buffer_load_dword v113, v30, s[40:43], s66 offen")
    a("s_lshl_b32 s66, s24, 13")
    a(f"s_add_u32 s73, s66, {W2F_OFF - CELL_OFF}")
    a(f"s_add_u32 s54, s66, {W1BF_OFF - CELL_OFF}")
    a("s_cmp_lt_u32 s24, 8")
    a(f"s_cselect_b32 s54, s54, {KILL:#x}")
    a(f"s_cselect_b32 s73, s73, {KILL:#x}")
    a("s_add_u32 s55, s54, 4096")
    a("s_add_u32 s74, s73, 4096")
    WB = 32
    L16 = 6
    a(f"v_mov_b32 v{L16}, v28")
    def wb_load(sidx):
        a(f"buffer_load_dwordx4 {q4(WB+4*sidx)}, v{L16}, s[40:43], s{54 + (sidx >> 2)} offen offset:{(sidx & 3)*1024}")
    a("s_lshl_b32 s72, s25, 11")
    a(f"s_add_u32 s72, s72, {WCF_OFF - CELL_OFF}")
    srd(a, 48, "s14", "s15", 512)
    a("v_and_b32 v29, 1, v1")
    a("v_and_b32 v30, 30, v1")
    a("v_lshl_add_u32 v29, v29, 6, v30")
    a("s_lshr_b32 s61, s24, 1")
    a("s_lshl_b32 s61, s61, 7")
    a("s_and_b32 s67, s24, 1")
    a("s_lshl_b32 s67, s67, 5")
    a("s_add_u32 s61, s61, s67")
    BIAS = 112
    a(f"v_add_u32 v156, {OH}, v24")
    for i in range(4): a(f"v_mov_b32 v{144+i}, 0")
    for i in range(4): a(f"ds_write_b128 v156, v[144:147] offset:{i*12288}")
    a(f"v_mov_b32 v31, {N}")
    a(f"v_mov_b32 v152, {E}")
    a(f"v_cmp_gt_u32 vcc, {IDX - ZERO}, v24")
    a(f"s_mov_b32 s66, {EOFF - ZERO}")
    a("v_cmp_le_u32 s[68:69], s66, v24")
    a("v_cndmask_b32 v148, v31, v144, vcc")
    a("v_mov_b32 v153, v152")
    a("v_cndmask_b32 v148, v148, v152, s[68:69]")
    a("v_mov_b32 v154, v152")
    a("v_mov_b32 v155, v152")
    for i in range(1, 4): a(f"v_mov_b32 v{148+i}, v148")
    a(f"ds_write_b128 v156, v[148:151] offset:{4*12288}")
    a("s_cmp_lt_u32 s24, 4")
    a("s_cbranch_scc0 K2_I1")
    a(f"ds_write_b128 v156, v[152:155] offset:{5*12288}")
    a.label("K2_I1")
    if opt.get("stamps"):
        a("v_mov_b32 v0, 0"); a("v_writelane_b32 v0, s98, 0")
    a("s_mov_b32 s28, s6")
    a("s_and_b32 s29, s7, 0xffff")
    a(f"s_or_b32 s29, s29, {32 << 16:#x}")
    a(f"s_mov_b32 s30, {E}")
    a("s_mov_b32 s31, 0x00020000")
    a("s_mov_b32 s32, s22")
    a("s_and_b32 s33, s23, 0xffff")
    a(f"s_or_b32 s33, s33, {512 << 16:#x}")
    a(f"s_mov_b32 s34, {N+1}")
    a("s_mov_b32 s35, 0x00020000")
    srd(a, 44, "s20", "s21", N * 256)
    H_, I_, T0, T1 = 77, 78, 105, 106
    a(f"v_lshrrev_b32 v{H_}, 5, v1")
    a(f"v_and_b32 v{I_}, 31, v1")
    a(f"v_and_b32 v{T0}, 16, v1")
    a(f"v_and_b32 v{T1}, 4, v1")
    a(f"v_lshl_or_b32 v{T0}, v{T1}, 1, v{T0}")
    a(f"v_and_b32 v{T1}, 1, v1")
    a(f"v_lshl_or_b32 v{T0}, v{T1}, 2, v{T0}")
    a(f"v_bfe_u32 v{T1}, v1, 3, 1")
    a(f"v_lshl_or_b32 v{T0}, v{T1}, 1, v{T0}")
    a(f"v_bfe_u32 v{T1}, v1, 1, 1")
    a(f"v_or_b32 v{T0}, v{T0}, v{T1}")
    a("s_lshl_b32 s57, s24, 12")
    a("s_lshl_b32 s58, s25, 7")
    a(f"v_bfe_u32 v{T1}, v{T0}, 1, 3")
    a(f"v_xor_b32 v{T1}, v{T1}, v{H_}")
    a(f"v_lshl_add_u32 v{T1}, v{T1}, 4, s57")
    a(f"v_lshl_add_u32 v{aAP}, v{T0}, 7, v{T1}")
    for m in range(1, 4): a(f"v_xor_b32 v{aAP+m}, {m << 5}, v{aAP}")
    a(f"v_bfe_u32 v{T1}, v{T0}, 3, 1")
    a(f"v_xor_b32 v{T1}, v{T1}, v{H_}")
    a(f"v_lshl_add_u32 v{T1}, v{T1}, 4, s56")
    a(f"v_lshl_add_u32 v110, v{T0}, 5, v{T1}")
    a(f"v_lshlrev_b32 v{T1}, 4, v{H_}")
    a(f"v_lshl_add_u32 v{aAO}, v{T0}, 5, v{T1}")
    a(f"v_and_b32 v{T1}, 62, v1")
    a(f"v_lshlrev_b32 v{aEI}, 1, v{T1}")
    SOFF = 104
    a(f"v_and_b32 v{T1}, 8, v1")
    a(f"v_lshlrev_b32 v{SOFF}, 6, v{T1}")
    a(f"v_lshl_add_u32 v{SOFF}, v{H_}, 8, v{SOFF}")
    a(f"v_and_b32 v{T1}, 4, v1")
    a(f"v_lshl_add_u32 v{SOFF}, v{T1}, 5, v{SOFF}")
    a(f"v_and_b32 v{T1}, 3, v1")
    a(f"v_lshl_add_u32 v{SOFF}, v{T1}, 3, v{SOFF}")
    a("s_mov_b32 s62, 0xffff\ns_mov_b32 s63, 0xffff\ns_mov_b32 s64, 0xffff0000\ns_mov_b32 s65, 0xffff0000")
    a(f"v_lshrrev_b32 v{T1}, 3, v1")
    a(f"v_lshlrev_b32 v{aIDX}, 2, v{T1}")
    a(f"v_lshrrev_b32 v{T1}, 4, v1")
    a(f"v_xor_b32 v{T1}, v{T1}, v1")
    a(f"v_and_b32 v{EI+1}, 1, v{T1}")
    a(f"v_lshlrev_b32 v{EI+1}, 4, v{EI+1}")
    a(f"v_and_b32 v{T1}, 7, v{T1}")
    a(f"v_lshlrev_b32 v{IX[0]+1}, 4, v{T1}")
    a(f"v_xor_b32 v{IX[1]+1}, 64, v{IX[0]+1}")
    a(f"v_mov_b32 v{IX[2]+1}, v{IX[0]+1}")
    a(f"v_mov_b32 v{IX[3]+1}, v{IX[1]+1}")
    a(f"v_and_b32 v{T1}, 1, v1")
    a(f"v_lshlrev_b32 v{T1}, 4, v{T1}")
    a("v_mov_b32 v75, 0x3f80")
    a(f"v_lshlrev_b32 v107, v{T1}, v75")
    a(f"v_lshrrev_b32 v{T1}, 1, v{I_}")
    a(f"v_lshlrev_b32 v{T0}, 2, v{H_}")
    a(f"v_sub_u32 v{T1}, v{T1}, v{T0}")
    for mm in range(2):
        for rho in range(4):
            a(f"v_cmp_eq_u32 s[{76+2*rho}:{77+2*rho}], {8*mm+rho}, v{T1}")
        for rho in range(4):
            a(f"v_cndmask_b32 v{ID[mm]+rho}, 0, v107, s[{76+2*rho}:{77+2*rho}]")
    XA = BQ[0]
    a(f"v_and_b32 v{T0}, 3, v1")
    a(f"v_and_b32 v{T1}, 4, v1")
    a(f"v_lshl_or_b32 v{T0}, v{T1}, 1, v{T0}")
    a(f"v_bfe_u32 v{T1}, v1, 3, 1")
    a(f"v_lshl_or_b32 v{T0}, v{T1}, 2, v{T0}")
    a(f"v_xor_b32 v{T1}, v{T0}, v{H_}")
    a(f"v_lshlrev_b32 v{T1}, 4, v{T1}")
    a(f"v_lshl_add_u32 v{XA}, v{T0}, 8, v{T1}")
    a(f"v_and_b32 v{T1}, 16, v1")
    a(f"v_lshl_add_u32 v{XA}, v{T1}, 10, v{XA}")
    a(f"v_add_u32 v{XA}, {EIM + 4096}, v{XA}")
    for sidx in range(1, 8): a(f"v_xor_b32 v{XA+sidx}, {sidx << 5}, v{XA}")
    a("s_lshl_b32 s66, s24, 10")
    a(f"s_add_u32 s67, s66, {EIM + 8192}")
    a("v_add_u32 v114, s67, v28")
    a("s_lshl_b32 s66, s25, 11")
    a("s_add_u32 s67, s56, s66")
    a("v_add_u32 v115, s67, v28")
    a(f"s_mov_b32 s66, {CHUNK}")
    for r in (72, 73):
        a(f"v_and_b32 v{T1}, 15, v{r}")
        a(f"v_lshrrev_b32 v{r}, 4, v{r}")
        a(f"v_lshl_or_b32 v{r}, v{T1}, 3, v{r}")
        a(f"v_mul_u32_u24 v{r}, s66, v{r}")
    a("v_mov_b32 v74, 1")
    a(f"s_mov_b32 s78, {CNT}")
    a("v_lshl_add_u32 v76, v1, 2, s78")
    a(f"s_mov_b32 s79, {IDX}")
    a(f"s_mov_b32 s80, {OH}")
    a("s_mov_b32 s81, 0")
    wb_load(0); wb_load(1)
    a(f"buffer_load_ushort v{BIAS}, v29, s[48:51], s61 offen")
    a("s_waitcnt lgkmcnt(0)")
    stp(1)
    a("s_barrier")
    a(f"s_waitcnt vmcnt({4 + NWU})")
    stp(2)
    def count(base, abase, rbase):
        for k in range(4):
            a(f"v_and_b32 v{abase+k}, 63, v{base+k}")
            a(f"v_lshl_add_u32 v{abase+k}, v{abase+k}, 2, s78")
        for k in range(4):
            a(f"v_cmpx_gt_u32 vcc, -2, v{base+k}")
            a(f"ds_add_rtn_u32 v{rbase+k}, v{abase+k}, v74")
        a("s_mov_b64 exec, -1")
    SB = AP[0]; T = AP[1]
    def decode(base, cbase):
        for k in range(4):
            a(f"v_lshrrev_b32 v{T+k}, {18 + opt.get('pshift', 0)}, v{base+k}")
            a(f"v_bfe_u32 v{T+4+k}, v{base+k}, 6, 12")
            a(f"v_add_u32 v{T+4+k}, v{T+4+k}, v{cbase}")
            if opt.get("eshift"): a(f"v_lshrrev_b32 v{T+4+k}, {opt['eshift']}, v{T+4+k}")
            a(f"v_and_b32 v{T+8+k}, 15, v{base+k}")
            a(f"v_lshl_add_u32 v{T+8+k}, v{T+8+k}, 1, s80")
    def scatter(base, rbase):
        for k in range(4):
            a(f"v_add_u32 v{SB+k}, v{SB+k}, v{rbase+k}")
            a(f"v_lshl_add_u32 v{T+8+k}, v{SB+k}, 5, v{T+8+k}")
            a(f"v_lshl_add_u32 v{SB+k}, v{SB+k}, 2, s79")
        for k in range(4):
            a(f"v_cmpx_gt_u32 vcc, -2, v{base+k}")
            a(f"ds_write2st64_b32 v{SB+k}, v{T+k}, v{T+4+k} offset0:0 offset1:{(EOFF-IDX)//256}")
            a(f"ds_write_b16 v{T+8+k}, v75")
        a("s_mov_b64 exec, -1")
    count(16, 24, 28)
    for sidx in range(2, 6): wb_load(sidx)
    a("v_cmp_ne_u32 vcc, -1, v20")
    decode(16, 72)
    a("s_cmp_ge_u32 s24, 4")
    a("s_cbranch_scc1 K2_C1")
    a("s_cbranch_vccz K2_C1")
    a("s_mov_b32 s81, 1")
    count(20, 64, 68)
    a(f"v_mov_b32 v{T0}, {FLAG}")
    a("v_cmpx_eq_u32 vcc, -2, v23")
    a(f"ds_write_b32 v{T0}, v74")
    a("s_mov_b64 exec, -1")
    a.label("K2_C1")
    a("s_waitcnt lgkmcnt(0)")
    a("s_barrier")
    stp(3)
    a("ds_read_b32 v105, v76")
    a(f"ds_read_b32 v106, v76 offset:{FLAG - CNT}")
    a("s_waitcnt lgkmcnt(1)")
    a("v_add_u32 v105, 3, v105")
    a("v_and_b32 v105, -4, v105")
    a("s_nop 1")
    a("v_add_u32_dpp v107, v105, v105 row_shr:1 row_mask:0xf bank_mask:0xf bound_ctrl:0")
    a("s_nop 1")
    for sh in (2, 4, 8):
        a(f"v_add_u32_dpp v107, v107, v107 row_shr:{sh} row_mask:0xf bank_mask:0xf bound_ctrl:0")
        a("s_nop 1")
    a("v_add_u32_dpp v107, v107, v107 row_bcast:15 row_mask:0xa bank_mask:0xf")
    a("s_waitcnt lgkmcnt(0)")
    a("v_readfirstlane_b32 s82, v106")
    a("v_add_u32_dpp v107, v107, v107 row_bcast:31 row_mask:0xc bank_mask:0xf")
    a("v_sub_u32 v108, v107, v105")
    a("v_readlane_b32 s83, v107, 63")
    for k in range(4): a(f"ds_bpermute_b32 v{SB+k}, v{24+k}, v108")
    wb_load(6); wb_load(7)
    a(f"buffer_load_dwordx4 {q4(BC[0])}, v{L16}, s[40:43], s72 offen")
    a(f"buffer_load_dwordx4 {q4(BC[1])}, v{L16}, s[40:43], s72 offen offset:1024")
    a("s_sub_u32 s82, s82, s70")
    a("s_lshl_b32 s82, s82, 12")
    a("s_add_u32 s82, s82, s83")
    a(f"s_cmp_gt_u32 s82, {GCAP*32}")
    a("s_cbranch_scc1 K2_BAD")
    a("s_waitcnt lgkmcnt(0)")
    scatter(16, 28)
    a("s_cmp_eq_u32 s81, 0")
    a("s_cbranch_scc1 K2_S1")
    a("s_waitcnt lgkmcnt(0)")
    for k in range(4): a(f"ds_bpermute_b32 v{SB+k}, v{64+k}, v108")
    decode(20, 73)
    a("s_waitcnt lgkmcnt(0)")
    scatter(20, 68)
    a.label("K2_S1")
    a("s_add_u32 s83, s83, 31")
    a("s_lshr_b32 s83, s83, 5")
    a("s_add_u32 s88, s83, 2")
    a("s_mul_i32 s88, s88, 171")
    a("v_readlane_b32 s84, v108, 12")
    a("v_readlane_b32 s85, v108, 16")
    a("v_readlane_b32 s86, v108, 24")
    a("v_readlane_b32 s87, v108, 28")
    a("s_lshr_b32 s88, s88, 9")
    a("s_add_u32 s84, s84, 31")
    a("s_lshr_b32 s84, s84, 5")
    a("s_lshr_b32 s85, s85, 5")
    a("s_add_u32 s86, s86, 31")
    a("s_lshr_b32 s86, s86, 5")
    a("s_lshr_b32 s87, s87, 5")
    a("s_cmp_gt_u32 s84, s85")
    a("s_cbranch_scc1 K2_BAD")
    a("s_cmp_gt_u32 s86, s87")
    a("s_cbranch_scc1 K2_BAD")
    if opt.get("force_slow"): a("s_branch K2_BAD")
    a("s_max_u32 s88, s88, s84")
    a("s_min_u32 s88, s88, s85")
    a("s_add_u32 s89, s83, s88")
    a("s_add_u32 s89, s89, 1")
    a("s_lshr_b32 s89, s89, 1")
    a("s_max_u32 s89, s89, s86")
    a("s_min_u32 s89, s89, s87")
    a("s_sub_u32 s90, s89, s88")
    a("s_sub_u32 s91, s83, s89")
    a("s_max_u32 s90, s90, s88")
    a("s_max_u32 s90, s90, s91")
    a("s_cmp_gt_u32 s90, 16")
    a("s_cbranch_scc1 K2_BAD")
    a("s_cmp_eq_u32 s26, 1")
    a("s_cselect_b32 s52, s88, 0")
    a("s_cselect_b32 s53, s89, s88")
    a("s_cmp_eq_u32 s26, 2")
    a("s_cselect_b32 s52, s89, s52")
    a("s_cselect_b32 s53, s83, s53")
    a("s_lshl_b32 s66, s52, 7")
    a(f"s_add_u32 s67, s66, {IDX}")
    a(f"v_add_u32 v{aIDX}, s67, v{aIDX}")
    a(f"s_add_u32 s67, s67, {EOFF - IDX}")
    a(f"v_add_u32 v{aEI}, s67, v{aEI}")
    a("s_sub_u32 s53, s53, s52")
    a("s_waitcnt vmcnt(11) lgkmcnt(0)")
    a("s_barrier")
    stp(4)
    a(f"v_add_u32 v109, s58, v{aEI}")
    for k in range(4): a(f"ds_read_b32 v{IX[k]}, v{aIDX} offset:{k*32}")
    a(f"ds_read_b32 v{EI}, v109")
    a("s_lshl_b32 s66, s52, 10")
    a(f"s_add_u32 s66, s66, {OH}")
    a(f"v_add_u32 v{aAO}, s66, v{aAO}")
    a("s_mov_b32 s55, 0")
    a("s_mov_b32 s60, 0")
    a("s_mov_b32 s61, s25")
    a("s_mov_b32 s84, s28")
    a("s_mov_b32 s85, s29")
    a("s_mov_b32 s87, 0x00020000")
    nfl = [0]
    def first_loads():
        nfl[0] += 1
        a("s_cmp_lg_u32 s25, 0")
        a("s_waitcnt lgkmcnt(0)")
        a(f"s_cbranch_scc1 K2_FL{nfl[0]}")
        a("\n".join(e_dma()))
        a.label(f"K2_FL{nfl[0]}")
        a("\n".join(p_dma()))
    a.label("K2_QG")
    a("s_cmp_lt_u32 s24, 8")
    a("s_cbranch_scc1 K2_QG1")
    a("s_cmp_lg_u32 s70, 0")
    a("s_cbranch_scc1 K2_SLOW")
    first_loads()
    a("s_barrier")
    a("s_branch K2_QD")
    a.label("K2_QG1")
    QA, QB = D[0], ACC
    def xread(sidx):
        st_ = sidx % 3
        a(f"ds_read_b128 {q4(WP+8*st_)}, v{XA+sidx}")
        a(f"ds_read_b128 {q4(WP+8*st_+4)}, v{XA+sidx} offset:32768")
    xread(0); xread(1); xread(2)
    a(f"s_mov_b32 s68, {NEGLOG2E:#x}")
    a(f"s_mov_b32 s69, {NEGLOG2E:#x}")
    a("s_waitcnt vmcnt(2)")
    a(f"v_lshlrev_b32 v{BIAS}, 16, v{BIAS}")
    a(f"v_mul_f32 v{BIAS}, s68, v{BIAS}")
    for sidx in range(8):
        st_ = sidx % 3
        a(f"s_waitcnt lgkmcnt({2*min(2, 7-sidx)})")
        a(f"v_mfma_f32_32x32x16_bf16 {x16(QA)}, {q4(WP+8*st_)}, {q4(WB+4*sidx)}, {'0' if sidx == 0 else x16(QA)}")
        a(f"v_mfma_f32_32x32x16_bf16 {x16(QB)}, {q4(WP+8*st_+4)}, {q4(WB+4*sidx)}, {'0' if sidx == 0 else x16(QB)}")
        if sidx + 3 < 8: xread(sidx + 3)
    a("s_nop 10")
    for wi, base in enumerate((QA, QA + 8, QB)):
        for k in range(4):
            a(f"v_pk_fma_f32 {pr(base+2*k)}, {pr(base+2*k)}, s[68:69], {pr(BIAS)} op_sel_hi:[1,1,0]")
        for k in range(4):
            a(f"v_cvt_pk_bf16_f32 v{WB+4*wi+k}, v{base+2*k}, v{base+2*k+1}")
        a(f"ds_write_b128 v114, {q4(WB+4*wi)} offset:{wi*16384}")
    a("s_cmp_lg_u32 s70, 0")
    a("s_cbranch_scc1 K2_SLOW")
    a("s_waitcnt lgkmcnt(0)")
    a("s_barrier")
    first_loads()
    a.label("K2_QD")
    stp(5)
    for k in range(4): a(f"ds_read_b32 v{IX[k]}, v{aIDX} offset:{128+k*32}")
    a(f"v_mov_b32 v166, v109")
    a(f"v_mov_b32 v{aAE}, v110")
    a(f"ds_read_b128 {q4(AO)}, v{aAO}")
    a(f"ds_read_b128 {q4(BQ[0])}, v115 offset:8192")
    a(f"ds_read_b128 {q4(BQ[1])}, v115 offset:9216")
    a(f"v_mov_b32 v{MG}, -1")
    a(f"v_add_u32 v{SOFF}, s66, v{SOFF}")
    a(f"v_mov_b32 v{T0}, {ZERO}")
    a(f"v_cndmask_b32 v{aS1}, v{T0}, v{SOFF}, s[62:63]")
    a(f"v_cndmask_b32 v{aS2}, v{T0}, v{SOFF}, s[64:65]")
    for i in range(16): a(f"v_mov_b32 v{ACC+i}, 0")
    a(f"v_mov_b32 v{CHK}, 0\nv_mov_b32 v{CHK+1}, 0")
    for i in range(4): a(f"v_mov_b32 v{HQ+i}, 0")
    T3, T2, T1_ = opt.get("t3", 6), opt.get("t2", 3), opt.get("t1", 1)
    a(f"s_sub_u32 s90, s53, {T3}")
    a("s_max_i32 s90, s90, 2")
    a("s_mov_b32 s91, 0")
    a("s_min_u32 s67, s53, 1")
    a("s_cmp_ge_u32 s25, s67")
    a("s_waitcnt vmcnt(0)")
    for i in range(4): a(f"v_mov_b32 v{S+i}, 0")
    a("s_cbranch_scc1 K2_NF")
    a(f"ds_write_b32 v166, v{MG}")
    a(f"ds_read_b32 v{EI}, v{aEI} offset:512")
    a.label("K2_NF")
    for m in range(4): a(f"ds_read_b128 {q4(AP[m])}, v{aAP+m}")
    a("s_waitcnt lgkmcnt(0)")
    a("\n".join(p_dma()))
    a("s_sub_u32 s67, s25, 1")
    a("s_cmp_ge_u32 s67, 2")
    a("s_cbranch_scc1 K2_F2")
    a("\n".join(e_dma()))
    a.label("K2_F2")
    a("s_cmp_eq_u32 s53, 0")
    a("s_cbranch_scc1 K2_EXIT")
    def flag_wait(tag, off):
        a.label(f"K2_W{tag}")
        a(f"ds_read_b32 v{FV}, v{aEI} offset:{off}")
        a("s_waitcnt lgkmcnt(0)")
        a(f"v_readfirstlane_b32 s66, v{FV}")
        a("s_nop 0")
        a("s_cmp_eq_u32 s66, -1")
        a(f"s_cbranch_scc1 K2_X{tag}")
        a("s_sleep 1")
        a(f"s_branch K2_W{tag}")
        a.label(f"K2_X{tag}")
    flag_wait("A", 0)
    a(f"ds_read_b128 {q4(AE)}, v{aAE}")
    stp(6)
    stc(12)
    if opt.get("prio", 1): a("s_setprio 3")
    a("s_waitcnt lgkmcnt(0)")
    a("\n".join(mf_tile(0)))
    a("s_nop 10")
    ex0 = {1: [f"ds_read_b32 v{IX[k]}, v{aIDX} offset:{256+k*32}" for k in range(4)]}
    ex1 = {1: [f"ds_read_b64_tr_b16 {pr(S)}, v{aS1}", f"ds_read_b64_tr_b16 {pr(S+2)}, v{aS2}", f"ds_read_b128 {q4(AO)}, v{aAO} offset:1024"]}
    a("\n".join(tile(0, mf_tile(1), ex0, [], []) + tile(1, [], ex1, [], ["s_waitcnt lgkmcnt(0)"])))
    a("s_mov_b32 s55, 1")
    a("s_cmp_eq_u32 s53, 1")
    a("s_cbranch_scc1 K2_EXIT")
    a("s_cmp_ge_u32 s67, 2")
    a("s_cselect_b32 s66, 64, s25")
    a("s_cmp_ge_u32 s66, s53")
    a("s_waitcnt vmcnt(0)")
    a("s_cbranch_scc1 K2_NF2")
    a(f"ds_write_b32 v166, v{MG}")
    a.label("K2_NF2")
    for m in range(4): a(f"ds_read_b128 {q4(AP[m])}, v{aAP+m}")
    a("s_waitcnt lgkmcnt(0)")
    a("\n".join(p_dma()))
    a("s_cmp_lt_u32 s67, 2")
    a("s_cbranch_scc1 K2_F3")
    a("\n".join(e_dma()))
    a.label("K2_F3")
    flag_wait("B", 128)
    a(f"ds_read_b128 {q4(AE)}, v{aAE} offset:1024")
    a("s_sub_u32 s68, 1, s25")
    a("s_and_b32 s68, s68, 3")
    a("s_sub_u32 s69, 1, s68")
    a("s_lshl_b32 s67, s69, 7")
    a("s_lshl_b32 s69, s69, 10")
    a(f"v_add_u32 v{aAO}, s69, v{aAO}")
    a(f"v_add_u32 v{aAE}, s69, v{aAE}")
    a(f"v_add_u32 v{aIDX}, s67, v{aIDX}")
    a(f"v_add_u32 v{aEI}, s67, v{aEI}")
    a("s_mov_b64 exec, s[62:63]")
    a(f"v_add_u32 v{aS1}, s69, v{aS1}")
    a("s_mov_b64 exec, s[64:65]")
    a(f"v_add_u32 v{aS2}, s69, v{aS2}")
    a("s_mov_b64 exec, -1")
    a("s_waitcnt lgkmcnt(0)")
    a("\n".join(mf_tile(0)))
    a("s_nop 8")
    a("s_cmp_eq_u32 s68, 1")
    a("s_cbranch_scc1 K2_U1")
    a("s_cmp_eq_u32 s68, 2")
    a("s_cbranch_scc1 K2_U2")
    a("s_cmp_eq_u32 s68, 3")
    a("s_cbranch_scc1 K2_U3")
    a(".p2align 6")
    loop_start = len(a.lines)
    for u in range(4):
        a.label(f"K2_U{u}")
        ex0 = {}
        ex0[1] = [f"ds_read_b32 v{FV}, v{aEI} offset:{(u+1)*128}"] + [f"ds_read_b32 v{IX[k]}, v{aIDX} offset:{(u+2)*128+k*32}" for k in range(4)]
        if u == 0: ex0[1] += [f"ds_read_b32 v{EI}, v{aEI} offset:512"]
        ex0[12] = ["s_waitcnt lgkmcnt(0)", f"v_readfirstlane_b32 s66, v{FV}"]
        mid = ["s_cmp_eq_u32 s66, -1", f"s_waitcnt vmcnt({1 if u == 1 else 0})"]
        mid += [f"ds_read_b128 {q4(AP[m])}, v{aAP+m}" for m in range(4)]
        mid += [f"ds_read_b128 {q4(AO)}, v{aAO} offset:{(u+1)*1024}"]
        mid += [f"s_cbranch_scc0 K2_FW{u}", f"K2_FR{u}:"]
        mid += [f"ds_read_b128 {q4(AE)}, v{aAE} offset:{(u+1)*1024}"]
        exr = ["s_add_u32 s66, s55, 2", "s_cmp_ge_u32 s66, s53", "s_waitcnt lgkmcnt(0)", f"s_cbranch_scc1 K2_ND{u}"]
        if u == 2: exr += [f"ds_write_b32 v{aEI}, v{MG} offset:512"]
        exr += p_dma() + [f"K2_ND{u}:"]
        if u == 0: exr += e_dma()
        t0 = tile(0, mf_tile(1) + [SEGSUM], ex0, mid, exr)
        ex1 = {}
        ex1[1] = [f"ds_read_b64_tr_b16 {pr(S)}, v{aS1} offset:{u*1024}", f"ds_read_b64_tr_b16 {pr(S+2)}, v{aS2} offset:{u*1024}"]
        mid1 = []
        if u == 3:
            mid1 = [f"v_add_u32 v{aAO}, 4096, v{aAO}", f"v_add_u32 v{aAE}, 4096, v{aAE}", f"v_add_u32 v{aIDX}, 512, v{aIDX}", f"v_add_u32 v{aEI}, 512, v{aEI}",
                    "s_mov_b64 exec, s[62:63]", f"v_add_u32 v{aS1}, 4096, v{aS1}", "s_mov_b64 exec, s[64:65]", f"v_add_u32 v{aS2}, 4096, v{aS2}", "s_mov_b64 exec, -1"]
        exr1 = ["s_waitcnt lgkmcnt(0)"]
        if opt.get("gstamps"):
            mid1 = mid1 + ["s_memrealtime s[96:97]", "s_add_u32 m0, s55, 16"]
            exr1 += ["v_writelane_b32 v0, s96, m0"]
        t1 = tile(1, mf_tile(0), ex1, mid1, exr1)
        a("\n".join(t0 + t1))
        a("s_add_u32 s55, s55, 1")
        a("s_cmp_ge_u32 s55, s90")
        a(f"s_cbranch_scc1 K2_TH{u}")
        if u == 3: a("s_branch K2_U0")
    loop_end = len(a.lines)
    for u in range(4):
        a.label(f"K2_TH{u}")
        a(f"s_mov_b32 s92, {(u+1)&3}")
        if u < 3: a("s_branch K2_TH")
    a.label("K2_TH")
    a("s_cmp_ge_u32 s55, s53")
    a("s_cbranch_scc1 K2_EXIT")
    a("s_add_u32 s91, s91, 1")
    a("s_cmp_eq_u32 s91, 1")
    a("s_cbranch_scc0 K2_TH_2")
    if opt.get("prio", 1): a("s_setprio 2")
    a(f"s_sub_u32 s90, s53, {T2}")
    a("s_branch K2_TH_R")
    a.label("K2_TH_2")
    a("s_cmp_eq_u32 s91, 2")
    a("s_cbranch_scc0 K2_TH_3")
    if opt.get("prio", 1): a("s_setprio 1")
    a(f"s_sub_u32 s90, s53, {T1_}")
    a("s_branch K2_TH_R")
    a.label("K2_TH_3")
    if opt.get("prio", 1): a("s_setprio 0")
    a("s_mov_b32 s90, s53")
    a.label("K2_TH_R")
    a("s_max_i32 s90, s90, 0")
    a("s_cmp_eq_u32 s92, 1")
    a("s_cbranch_scc1 K2_U1")
    a("s_cmp_lg_u32 s60, 0")
    a("s_cbranch_scc1 K2_TH_J")
    a("s_mov_b32 s60, 1")
    a("\n".join(w2_pre(L16)))
    a.label("K2_TH_J")
    a("s_cmp_eq_u32 s92, 2")
    a("s_cbranch_scc1 K2_U2")
    a("s_cmp_eq_u32 s92, 3")
    a("s_cbranch_scc1 K2_U3")
    a("s_branch K2_U0")
    for u in range(4):
        a.label(f"K2_FW{u}")
        a("s_add_u32 s66, s55, 1")
        a("s_cmp_ge_u32 s66, s53")
        a(f"s_cbranch_scc1 K2_FR{u}")
        a(f"ds_read_b32 v{FV}, v{aEI} offset:{(u+1)*128}")
        a("s_waitcnt lgkmcnt(0)")
        a(f"v_readfirstlane_b32 s66, v{FV}")
        a("s_nop 0")
        a("s_cmp_eq_u32 s66, -1")
        a(f"s_cbranch_scc1 K2_FR{u}")
        a("s_sleep 1")
        a(f"s_branch K2_FW{u}")
    a.label("K2_EXIT")
    a(SEGSUM)
    stp(7)
    stc(13)
    if opt.get("stamps"): a("v_writelane_b32 v0, s53, 14")
    a("s_waitcnt vmcnt(0)")
    a(f"v_lshrrev_b32 v1, 4, v{L16}")
    a("s_cmp_lg_u32 s60, 0")
    a("s_cbranch_scc1 K2_X1")
    a("\n".join(w2_pre(L16)))
    a.label("K2_X1")
    a("v_subrev_u32 v2, s71, v1")
    a("v_and_b32 v2, 15, v2")
    a(f"v_mul_u32_u24 v2, {HSTR}, v2")
    a("v_and_b32 v3, 16, v1")
    a("v_lshl_add_u32 v2, v3, 2, v2")
    a("v_lshrrev_b32 v3, 5, v1")
    a("v_lshl_add_u32 v3, v3, 3, s57")
    a("v_add_u32 v2, v2, v3")
    a("s_mov_b32 s66, 0x4e800000")
    a("s_mov_b32 s67, 0x4e800000")
    a(f"v_pk_mul_f32 {pr(CHK)}, {pr(CHK)}, s[66:67]")
    a("v_mov_b32 v4, 0x207")
    a(f"v_mov_b32 v5, {FLAG}")
    a("v_mov_b32 v7, 1")
    a("s_waitcnt vmcnt(0)")
    for k in range(8):
        a(f"v_cvt_pk_bf16_f32 v{EX+k}, v{ACC+2*k}, v{ACC+2*k+1}")
        if k & 1: a(f"ds_write_b64 v2, {pr(EX+k-1)} offset:{16*(k>>1)}")
    for k in range(8):
        a(f"v_pk_fma_f32 {pr(CHK)}, {pr(ACC+2*k)}, 0, {pr(CHK)} op_sel_hi:[1,0,1]")
    a(f"v_add_f32 v{CHK}, v{CHK}, v{CHK+1}")
    a(f"v_cmpx_class_f32 vcc, v{CHK}, v4")
    a("ds_write_b32 v5, v7")
    a("s_mov_b64 exec, -1")
    a.label("K2_FIN")
    WL = 16
    a("v_lshlrev_b32 v7, 4, v1")
    srd(a, 48, "s18", "s19", 256)
    for sidx in range(NW2, 8):
        a(f"buffer_load_dwordx4 {q4(WL+4*(sidx-NW2))}, v7, s[40:43], s74 offen offset:{(sidx & 3)*1024}")
    a("v_lshrrev_b32 v8, 4, v1")
    a("v_lshlrev_b32 v9, 3, v8")
    a("s_lshl_b32 s68, s24, 5")
    a("buffer_load_dwordx2 v[10:11], v9, s[48:51], s68 offen")
    a("v_and_b32 v12, 15, v1")
    a(f"v_mul_u32_u24 v2, {HSTR}, v12")
    a("v_lshl_add_u32 v2, v8, 4, v2")
    a(f"s_mov_b32 s78, {CNT}")
    a("v_lshl_add_u32 v4, v12, 2, s78")
    a("v_lshl_add_u32 v13, v12, 16, v9")
    a(f"v_mov_b32 v3, {KILL:#x}")
    a("v_cmp_gt_u32 vcc, 4, v12")
    a("s_lshl_b32 s69, s2, 8")
    a("s_add_u32 s69, s69, s68")
    a("v_cndmask_b32 v14, v13, v3, vcc")
    a("s_waitcnt lgkmcnt(0)")
    stp(8)
    a("s_barrier")
    stp(9)
    HB = 48
    def hread(sidx):
        for mt in range(3):
            r = HB + (sidx & 3) * 12 + mt * 4
            a(f"ds_read_b128 {q4(r)}, v2 offset:{(4*mt + (sidx >> 1))*4096 + (sidx & 1)*64}")
    a(f"ds_read_b32 v6, v4 offset:{FLAG - CNT}")
    a("s_cmp_ge_u32 s24, 8")
    a("s_cbranch_scc1 K2_NOH")
    hread(0); hread(1); hread(2)
    for mt in range(3): a(f"ds_read_b32 v{112+mt}, v4 offset:{mt*48}")
    a(f"s_add_u32 s72, s69, {12 << 16}")
    a(f"s_add_u32 s75, s69, {24 << 16}")
    a(f"s_mov_b32 s76, {NEGLN2:#x}")
    a("s_waitcnt lgkmcnt(12)")
    a("s_branch K2_NOH2")
    a.label("K2_NOH")
    a("s_waitcnt lgkmcnt(0)")
    a.label("K2_NOH2")
    a("v_readfirstlane_b32 s82, v6")
    a("s_nop 0")
    a("s_andn2_b32 s82, s82, s70")
    a("s_cmp_lg_u32 s82, 0")
    a("s_cbranch_scc1 K2_REDO")
    a("s_cmp_ge_u32 s24, 8")
    a("s_cbranch_scc1 K2_END2")
    OD = 96
    for sidx in range(8):
        n = {0: 9, 1: 9, 2: 9, 3: 6, 4: 6, 5: 6, 6: 3, 7: 0}[sidx]
        wv = f" vmcnt({8 - sidx})" if sidx >= NW2 else ""
        a(f"s_waitcnt{wv} lgkmcnt({n})")
        wf = WP + 4*sidx if sidx < NW2 else WL + 4*(sidx - NW2)
        for mt in range(3):
            r = HB + (sidx & 3) * 12 + mt * 4
            c = "0" if sidx == 0 else q4(OD + 4*mt)
            a(f"v_mfma_f32_16x16x32_bf16 {q4(OD+4*mt)}, {q4(wf)}, {q4(r)}, {c}")
        if sidx + 3 < 8: hread(sidx + 3)
    a("s_waitcnt vmcnt(0)")
    a("v_lshlrev_b32 v116, 16, v10")
    a("v_and_b32 v117, 0xffff0000, v10")
    a("v_lshlrev_b32 v118, 16, v11")
    a("v_and_b32 v119, 0xffff0000, v11")
    for mt in range(3): a(f"v_cvt_f32_u32 v{112+mt}, v{112+mt}")
    for mt in range(3):
        for i in range(4):
            a(f"v_mul_f32 v{120+4*mt+i}, v{112+mt}, v{116+i}")
    for mt in range(2):
        for i in range(4):
            a(f"v_add_f32_dpp v{OD+4*mt+i}, v{OD+4*mt+4+i}, v{OD+4*mt+i} row_shr:12 row_mask:0xf bank_mask:0xf bound_ctrl:0")
    for mt in (2, 0, 1):
        for i in range(4):
            a(f"v_fma_f32 v{120+4*mt+i}, v{OD+4*mt+i}, s76, v{120+4*mt+i}")
        a(f"v_cvt_pk_bf16_f32 v{132+2*mt}, v{120+4*mt}, v{121+4*mt}")
        a(f"v_cvt_pk_bf16_f32 v{133+2*mt}, v{122+4*mt}, v{123+4*mt}")
        a(f"buffer_store_dwordx2 {pr(132+2*mt)}, v{13 if mt == 0 else 14}, s[44:47], s{(69,72,75)[mt]} offen")
    stp(10)
    if opt.get("stamps"): a("s_waitcnt vmcnt(0)")
    stp(11)
    a.label("K2_END2")
    stamp_out(a, opt, 22, 0xF80000, 24, 0, tmpv=2)
    if opt.get('gstamps'): stamp_out2(a, opt, 22, 0x1000000, 24, 0, tmpv=2)
    a.label("K2_END")
    a("s_endpgm")
    a.label("K2_REDO")
    a("s_setprio 0")
    a("s_mov_b32 s70, -1")
    a("s_lshl_b32 s66, s24, 6")
    a("v_add_u32 v0, s66, v1")
    a("s_waitcnt vmcnt(0) lgkmcnt(0)")
    a("s_barrier")
    a("s_branch K2_TOP")
    a.label("K2_BAD")
    a("s_mov_b32 s70, -1")
    a("s_waitcnt vmcnt(0) lgkmcnt(0)")
    a("s_barrier")
    a("s_branch K2_QG")
    a.label("K2_SLOW")
    a("s_setprio 0")
    a("s_mov_b32 s70, -1")
    a("s_waitcnt vmcnt(0) lgkmcnt(0)")
    a("s_barrier")
    a("s_lshl_b32 s66, s24, 10")
    a(f"s_add_u32 s66, s66, {OH}")
    a("v_lshl_add_u32 v2, v1, 4, s66")
    for i in range(4): a(f"v_mov_b32 v{4+i}, 0")
    for i in range(4): a(f"ds_write_b128 v2, v[4:7] offset:{i*12288}")
    a("v_lshlrev_b32 v12, 2, v1")
    a(f"v_add_u32 v3, {CNT}, v12")
    a("ds_write_b32 v3, v4")
    srd(a, 84, "s8", "s9", E * 4)
    srd(a, 88, "s10", "s11", E * 4)
    a("v_and_b32 v8, 31, v1")
    a("v_lshlrev_b32 v8, 4, v8")
    a("v_lshrrev_b32 v9, 5, v1")
    a("v_lshl_add_u32 v8, v9, 10, v8")
    a("s_lshl_b32 s72, s25, 11")
    a(f"s_add_u32 s66, s72, {WCF_OFF - CELL_OFF}")
    a("buffer_load_dwordx4 v[16:19], v8, s[40:43], s66 offen")
    a("buffer_load_dwordx4 v[20:23], v8, s[40:43], s66 offen offset:512")
    a(f"s_add_u32 s72, s72, {EIM + 8192}")
    a("v_add_u32 v8, s72, v8")
    a("v_lshlrev_b32 v7, 4, v1")
    a("\n".join(w2_pre(7)))
    srd(a, 92, "s22", "s23", N * 512)
    a("v_lshlrev_b32 v10, 1, v1")
    a("v_add_u32 v10, s58, v10")
    a("v_lshlrev_b32 v11, 1, v10")
    a(f"v_add_u32 v11, {OH}, v11")
    a("v_mov_b32 v13, 1")
    a("s_waitcnt vmcnt(0)")
    for k in range(8):
        a(f"v_lshlrev_b32 v{24+2*k}, 16, v{16+k}")
        a(f"v_and_b32 v{25+2*k}, 0xffff0000, v{16+k}")
    a("s_waitcnt lgkmcnt(0)")
    a("s_barrier")
    a("s_mov_b32 s66, s26")
    a.label("K2_SL_BLK")
    a("s_lshl_b32 s67, s66, 8")
    a("buffer_load_dword v40, v12, s[88:91], s67 offen")
    a("buffer_load_dword v41, v12, s[84:87], s67 offen")
    a("s_waitcnt vmcnt(0)")
    a("v_and_b32 v42, 255, v40")
    a("v_cmp_eq_u32 vcc, s2, v42")
    a("s_nop 1")
    a("s_mov_b64 s[68:69], vcc")
    a.label("K2_SL_E")
    a("s_cmp_eq_u64 s[68:69], 0")
    a("s_cbranch_scc1 K2_SL_NB")
    a("s_ff1_i32_b64 s72, s[68:69]")
    a("s_bitset0_b64 s[68:69], s72")
    a("v_readlane_b32 s52, v40, s72")
    a("v_readlane_b32 s53, v41, s72")
    a("s_lshl_b32 s75, s66, 6")
    a("s_add_u32 s75, s75, s72")
    a("s_lshl_b32 s75, s75, 5")
    a("s_load_dwordx8 s[76:83], s[6:7], s75")
    a("s_lshl_b32 s53, s53, 9")
    a("s_lshr_b32 s52, s52, 8")
    a("s_cmp_ge_u32 s52, 16")
    a("s_cselect_b32 s75, 16384, 0")
    a("s_cmp_ge_u32 s52, 28")
    a("s_cselect_b32 s75, 32768, s75")
    a("s_bfe_u32 s55, s52, 0x10003")
    a("s_lshl_b32 s55, s55, 9")
    a("s_add_u32 s75, s75, s55")
    a("s_and_b32 s55, s52, 7")
    a("s_lshl_b32 s55, s55, 1")
    a("s_add_u32 s75, s75, s55")
    a("v_add_u32 v45, s75, v8")
    a("buffer_load_ushort v43, v10, s[92:95], s53 offen")
    a("ds_read_u16 v44, v45")
    a("s_waitcnt vmcnt(0) lgkmcnt(0)")
    a("v_lshlrev_b32 v43, 16, v43")
    a("v_lshlrev_b32 v44, 16, v44")
    a("v_add_f32 v43, v43, v44")
    for k in range(8):
        a(f"s_lshl_b32 s53, s{76+k}, 16")
        a(f"v_fmac_f32 v43, s53, v{24+2*k}")
        a(f"s_and_b32 s53, s{76+k}, 0xffff0000")
        a(f"v_fmac_f32 v43, s53, v{25+2*k}")
    a("v_exp_f32 v44, v43")
    a("s_lshl_b32 s53, s52, 10")
    a("v_add_f32 v44, 1.0, v44")
    a("v_rcp_f32 v44, v44")
    a("v_add_u32 v45, s53, v11")
    a("v_mul_f32 v43, v43, v44")
    a("ds_add_f32 v45, v43")
    a("s_cmp_lg_u32 s25, 0")
    a("s_cbranch_scc1 K2_SL_E")
    a("s_lshl_b32 s53, s52, 2")
    a(f"s_add_u32 s53, s53, {CNT}")
    a("v_mov_b32 v45, s53")
    a("s_mov_b64 exec, 1")
    a("ds_add_u32 v45, v13")
    a("s_mov_b64 exec, -1")
    a("s_branch K2_SL_E")
    a.label("K2_SL_NB")
    a("s_add_u32 s66, s66, 3")
    a(f"s_cmp_lt_u32 s66, {E // 64}")
    a("s_cbranch_scc1 K2_SL_BLK")
    a("s_waitcnt lgkmcnt(0)")
    a("s_barrier")
    a("v_and_b32 v2, 31, v1")
    a("v_lshrrev_b32 v3, 5, v1")
    a("s_mov_b32 s66, 0")
    a.label("K2_SL_CV")
    a("v_add_u32 v4, s66, v3")
    a("v_add_u32 v5, s71, v4")
    a("s_cmp_lt_u32 s66, 4")
    a("s_cselect_b32 s67, s26, 0")
    a("s_cmp_lg_u32 s67, 0")
    a("s_cbranch_scc0 K2_SL_NZ")
    a("v_mov_b32 v5, 47")
    a.label("K2_SL_NZ")
    a("v_lshlrev_b32 v5, 10, v5")
    a("v_lshl_add_u32 v5, v2, 3, v5")
    a("s_lshl_b32 s67, s58, 1")
    a(f"s_add_u32 s67, s67, {OH}")
    a("v_add_u32 v5, s67, v5")
    a("ds_read_b64 v[6:7], v5")
    a(f"v_mul_u32_u24 v4, {HSTR}, v4")
    a("v_lshl_add_u32 v4, v2, 2, v4")
    a("v_add_u32 v4, s57, v4")
    a("s_waitcnt lgkmcnt(0)")
    a("v_cvt_pk_bf16_f32 v6, v6, v7")
    a("ds_write_b32 v4, v6")
    a("s_add_u32 s66, s66, 2")
    a("s_cmp_lt_u32 s66, 16")
    a("s_cbranch_scc1 K2_SL_CV")
    a("s_branch K2_FIN")
    a.loop = (loop_start, loop_end)
    return a, NV2, (102 if opt.get('stamps') else 96)
```

```python
from asmlib import *

N = 10000; E = 320000
P_OFF = 0
CELL_OFF = 0xA00000
W2F_OFF = 0xE00000
W1BF_OFF = 0xE10000
WCF_OFF = 0xE20000
FRAG_BYTES = 0x22000
NSORT = 128
CHUNK = 2500
GROWS = 64
NGEMM = 157
NSORTWG = 64
NPREP = 17
K1_WGS = NGEMM + NSORTWG + NPREP
K1_BLOCK = 1024
K1_LDS = 65536 + GROWS * 256
NEGLOG2E = 0xBFB8AA3B
OVF = 0xFFFFFFFE

def srd(a, r, lo, hi, size):
    a(f"s_mov_b32 s{r}, {lo}")
    a(f"s_mov_b32 s{r+1}, {hi}")
    a(f"s_mov_b32 s{r+2}, {size}")
    a(f"s_mov_b32 s{r+3}, 0x00020000")

def srd_ws(a, r, wslo, off, size):
    a(f"s_add_u32 s{r}, s{wslo}, {off}")
    a(f"s_addc_u32 s{r+1}, s{wslo+1}, 0")
    a(f"s_mov_b32 s{r+2}, {size}")
    a(f"s_mov_b32 s{r+3}, 0x00020000")

def stamp(a, opt, idx, vreg, sreg=96):
    if not opt.get("stamps"): return
    a(f"s_memrealtime s[{sreg}:{sreg+1}]")
    a("s_waitcnt lgkmcnt(0)")
    a(f"v_writelane_b32 v{vreg}, s{sreg}, {idx}")
def stamp_out(a, opt, wslo, off, wavereg, vreg, sreg=96, tmpv=151):
    if not opt.get("stamps"): return
    a(f"s_add_u32 s{sreg}, s{wslo}, {off}")
    a(f"s_addc_u32 s{sreg+1}, s{wslo+1}, 0")
    a(f"s_mov_b32 s{sreg+2}, 0x80000")
    a(f"s_mov_b32 s{sreg+3}, 0x00020000")
    a(f"s_lshl_b32 s100, s2, 4")
    a(f"s_add_u32 s100, s100, s{wavereg}")
    a(f"s_lshl_b32 s100, s100, 6")
    a(f"v_mbcnt_lo_u32_b32 v{tmpv}, -1, 0")
    a(f"v_lshlrev_b32 v{tmpv}, 2, v{tmpv}")
    a("s_mov_b64 exec, 0xffff")
    a(f"buffer_store_dword v{vreg}, v{tmpv}, s[{sreg}:{sreg+3}], s100 offen")
    a("s_mov_b64 exec, -1")
def stamp_out2(a, opt, wslo, off, wavereg, vreg, sreg=96, tmpv=151):
    a(f"s_add_u32 s{sreg}, s{wslo}, {off}")
    a(f"s_addc_u32 s{sreg+1}, s{wslo+1}, 0")
    a(f"s_lshl_b32 s100, s100, 1")
    a("s_mov_b64 exec, 0xffffffff")
    a(f"buffer_store_dword v{vreg}, v{tmpv}, s[{sreg}:{sreg+3}], s100 offen")
    a("s_mov_b64 exec, -1")

def gen_k1(opt=None):
    opt = opt or {}
    SV = 120
    SFD = {0: "", 1: " sc1", 2: " sc0 sc1", 3: " nt", 4: " nt sc1"}
    SF = SFD[opt.get("sf", 1)]
    SFG = SFD[opt.get("sfg", 0)]
    NT = " nt" if opt.get("knt", 1) else ""
    NTX = " nt" if opt.get("kntx", 1) else ""
    a = Asm()
    a.label("mpnn_pre_kernel")
    a(f"s_cmp_ge_u32 s2, {K1_WGS}")
    a("s_cbranch_scc1 K1_END")
    if opt.get("stamps"): a(f"v_mov_b32 v{SV}, 0")
    stamp(a, opt, 0, SV)
    a("s_load_dwordx16 s[4:19], s[0:1], 0")
    a("s_load_dwordx2 s[20:21], s[0:1], 80")
    a("v_lshrrev_b32 v1, 6, v0")
    a("v_and_b32 v2, 63, v0")
    a("v_readfirstlane_b32 s22, v1")
    a(f"s_cmp_ge_u32 s2, {NGEMM}")
    a("s_cbranch_scc1 K1_SORT")
    XI = 65536
    a("v_lshrrev_b32 v10, 4, v0")
    a("v_xor_b32 v11, v10, v2")
    a("v_and_b32 v11, 15, v11")
    a("v_lshlrev_b32 v11, 4, v11")
    a("v_lshl_add_u32 v8, v10, 8, v11")
    a("v_lshrrev_b32 v5, 5, v2")
    a("v_and_b32 v6, 31, v2")
    a("v_lshlrev_b32 v7, 2, v5")
    a("v_xor_b32 v7, v7, v6")
    a("v_lshlrev_b32 v7, 4, v7")
    a("v_lshl_add_u32 v3, v5, 9, v7")
    a("v_xor_b32 v4, 0x80, v3")
    a("s_lshl_b32 s45, s22, 11")
    a("s_add_u32 s47, s45, 32768")
    a(f"s_mul_i32 s48, s2, {GROWS*256}")
    a("s_lshl_b32 s49, s22, 10")
    a(f"s_add_u32 m0, s49, {XI}")
    a("s_waitcnt lgkmcnt(0)")
    srd(a, 32, "s4", "s5", N * 256)
    srd(a, 28, "s12", "s13", 272 * 512)
    a(f"buffer_load_dwordx4 v8, s[32:35], s48 offen{NTX} lds")
    a("s_mov_b32 m0, s45")
    a("s_cmp_ge_u32 s22, 8")
    for k in range(2):
        a(f"buffer_load_dwordx4 v{3 + (k & 1)}, s[28:31], s45 offen offset:{k*1024} lds")
    a("s_mov_b32 m0, s47")
    a("s_nop 0")
    for k in range(2):
        a(f"buffer_load_dwordx4 v{3 + (k & 1)}, s[28:31], s47 offen offset:{k*1024} lds")
    a("s_cbranch_scc0 K1_GC")
    a("s_waitcnt vmcnt(2)")
    a("s_barrier")
    a("s_waitcnt vmcnt(0)")
    a("s_barrier")
    a("s_endpgm")
    a.label("K1_GC")
    a("s_lshr_b32 s26, s22, 2")
    a("s_and_b32 s27, s22, 3")
    a("s_lshl_b32 s50, s27, 7")
    srd(a, 36, "s20", "s21", (N + 1) * 512)
    a("v_and_b32 v17, 15, v2")
    a("v_xor_b32 v17, v17, v5")
    a("s_lshl_b32 s51, s26, 13")
    a(f"s_add_u32 s51, s51, {XI}")
    a("v_lshl_add_u32 v17, v17, 4, s51")
    a("v_lshl_add_u32 v16, v6, 8, v17")
    for sidx in range(1, 8):
        a(f"v_xor_b32 v{16+sidx}, {sidx << 5}, v16")
    a("v_bfe_u32 v26, v2, 2, 2")
    a("v_lshl_add_u32 v27, v5, 3, v26")
    a("v_and_b32 v28, 3, v2")
    a("v_lshl_add_u32 v28, v28, 3, s50")
    a("v_bfe_u32 v29, v2, 4, 1")
    a("v_lshl_add_u32 v28, v29, 5, v28")
    a("v_lshlrev_b32 v26, 6, v26")
    a("v_xor_b32 v28, v28, v26")
    a("v_lshl_add_u32 v24, v27, 9, v28")
    a("v_xor_b32 v25, 64, v24")
    a("v_lshl_add_u32 v13, v6, 2, s50")
    a("v_lshl_add_u32 v13, v5, 11, v13")
    a(f"s_mul_i32 s52, s2, {GROWS*512}")
    a("s_lshl_b32 s51, s26, 14")
    a("s_add_u32 s52, s52, s51")
    a("s_add_u32 s53, s52, 4096")
    a("s_add_u32 s54, s52, 8192")
    a("s_add_u32 s55, s52, 12288")
    a(f"s_mov_b32 s56, {NEGLOG2E:#x}")
    a(f"s_mov_b32 s57, {NEGLOG2E:#x}")
    stamp(a, opt, 1, SV)
    a("s_waitcnt vmcnt(2)")
    stamp(a, opt, 2, SV)
    a("s_barrier")
    AF = 32; BF = 48; DA = 80; DB = 96
    def reads(sidx):
        st = sidx & 3
        a(f"ds_read_b128 {v(AF+4*st,4)}, v{16+sidx}")
        for X in range(2):
            for e in range(2):
                a(f"ds_read_b64_tr_b16 {v(BF+8*st+4*X+2*e,2)}, v{24+X} offset:{sidx*8192+e*2048}")
    def mm(sidx):
        st = sidx & 3
        ca = "0" if sidx == 0 else v(DA, 16)
        cb = "0" if sidx == 0 else v(DB, 16)
        a(f"v_mfma_f32_32x32x16_bf16 {v(DA,16)}, {v(AF+4*st,4)}, {v(BF+8*st,4)}, {ca}")
        a(f"v_mfma_f32_32x32x16_bf16 {v(DB,16)}, {v(AF+4*st,4)}, {v(BF+8*st+4,4)}, {cb}")
    reads(0); reads(1); reads(2)
    a("s_waitcnt lgkmcnt(10)"); mm(0); reads(3)
    a("s_waitcnt lgkmcnt(10)"); mm(1)
    a("s_waitcnt vmcnt(0)")
    a("s_barrier")
    reads(4)
    a("s_waitcnt lgkmcnt(10)"); mm(2); reads(5)
    a("s_waitcnt lgkmcnt(10)"); mm(3); reads(6)
    a("s_waitcnt lgkmcnt(10)"); mm(4); reads(7)
    a("s_waitcnt lgkmcnt(10)"); mm(5)
    a("s_waitcnt lgkmcnt(5)"); mm(6)
    a("s_waitcnt lgkmcnt(0)"); mm(7)
    a("s_nop 10")
    stamp(a, opt, 3, SV)
    for r in range(0, 16, 2):
        a(f"v_pk_mul_f32 {v(DA+r,2)}, {v(DA+r,2)}, s[56:57]")
        a(f"v_pk_mul_f32 {v(DB+r,2)}, {v(DB+r,2)}, s[56:57]")
        for rr in (r, r + 1):
            a(f"v_cvt_pk_bf16_f32 v{AF+rr}, v{DA+rr}, v{DB+rr}")
            a(f"buffer_store_dword v{AF+rr}, v13, s[36:39], s{52 + (rr >> 2)} offen offset:{(rr & 3)*512}{SFG}")
    stamp(a, opt, 4, SV)
    if opt.get("stamps"): a("s_waitcnt vmcnt(0)")
    stamp(a, opt, 5, SV)
    stamp_out(a, opt, 20, 0xF00000, 22, SV, tmpv=121)
    a("s_endpgm")
    a.label("K1_SORT")
    CNT = 32768
    HB = 36864
    a(f"s_sub_u32 s3, s2, {NGEMM}")
    a(f"s_cmp_ge_u32 s3, {NSORTWG}")
    a("s_cbranch_scc1 K1_HELP")
    a("s_and_b32 s24, s3, 7")
    a("s_lshl_b32 s24, s24, 4")
    a("s_lshr_b32 s25, s3, 3")
    a("s_lshl_b32 s25, s25, 1")
    a("s_add_u32 s24, s24, s25")
    a("s_lshr_b32 s25, s22, 3")
    a("s_add_u32 s3, s24, s25")
    a(f"s_mul_i32 s54, s25, {HB}")
    a("v_and_b32 v0, 511, v0")
    a("v_lshlrev_b32 v3, 2, v0")
    a("v_add_u32 v4, 4096, v3")
    a("v_add_u32 v5, 8192, v3")
    a(f"s_mul_i32 s23, s3, {CHUNK*4}")
    a("s_waitcnt lgkmcnt(0)")
    srd(a, 32, "s10", "s11", E * 4)
    for i in range(5):
        a(f"buffer_load_dword v{10+i}, v{3 + (i >> 1)}, s[32:35], s23 offen offset:{(i & 1)*2048}{NT}")
    srd(a, 28, "s8", "s9", E * 4)
    for i in range(5):
        a(f"buffer_load_dword v{16+i}, v{3 + (i >> 1)}, s[28:31], s23 offen offset:{(i & 1)*2048}{NT}")
    a("v_mov_b32 v24, -1\nv_mov_b32 v25, -1\nv_mov_b32 v26, -1\nv_mov_b32 v27, -1")
    a("v_mov_b32 v28, 0")
    a("v_lshl_add_u32 v6, v0, 4, s54")
    a("v_add_u32 v7, s54, v3")
    a(f"ds_write_b32 v7, v28 offset:{CNT}")
    for i in range(4):
        a(f"ds_write_b128 v6, v[24:27] offset:{i*8192}")
    srd_ws(a, 36, 20, CELL_OFF, 256 * 128 * 128)
    a("v_mov_b32 v29, 1")
    a(f"v_mov_b32 v30, {OVF - (1 << 32)}")
    a("v_lshlrev_b32 v31, 6, v0")
    a("v_lshrrev_b32 v44, 3, v0")
    a("v_xor_b32 v45, v44, v0")
    a("v_and_b32 v45, 7, v45")
    a("v_lshl_add_u32 v45, v45, 4, s54")
    a("v_lshl_add_u32 v45, v44, 7, v45")
    a("v_and_b32 v46, 7, v0")
    a("v_lshlrev_b32 v46, 4, v46")
    a("v_lshl_add_u32 v46, v44, 14, v46")
    a("s_lshl_b32 s24, s3, 7")
    for i in range(1, 4):
        a(f"s_add_u32 s{24+i}, s24, {i << 20}")
    for i in range(5):
        a(f"v_add_u32 v{84+i}, {i*32768}, v31")
    a(f"v_cmp_gt_u32 vcc, {CHUNK - 2048}, v0")
    a("s_waitcnt lgkmcnt(0)")
    a("s_mov_b64 s[52:53], vcc")
    stamp(a, opt, 1, SV)
    a("s_barrier")
    if opt.get("stamps"): a("s_waitcnt vmcnt(0)")
    stamp(a, opt, 2, SV)
    for i in range(5):
        a(f"s_waitcnt vmcnt({9 - i})")
        a(f"v_and_b32 v{32+i}, 255, v{10+i}")
        a(f"v_lshl_add_u32 v{37+i}, v{32+i}, 2, s54")
        if i == 4: a("s_mov_b64 exec, s[52:53]")
        a(f"ds_add_rtn_u32 v{60+i}, v{37+i}, v29 offset:{CNT}")
        if i == 4: a("s_mov_b64 exec, -1")
    for i in range(5):
        a(f"s_waitcnt vmcnt({4 - i})")
        a(f"v_lshrrev_b32 v{10+i}, 8, v{10+i}")
        a(f"v_lshl_or_b32 v{10+i}, v{16+i}, 18, v{10+i}")
        a(f"v_or_b32 v{10+i}, v{10+i}, v{84+i}")
        a(f"v_and_b32 v{16+i}, 28, v{37+i}")
        a(f"v_lshlrev_b32 v{32+i}, 5, v{32+i}")
    for i in range(5):
        a("s_waitcnt lgkmcnt(4)")
        a(f"v_cmp_lt_u32 vcc, 30, v{60+i}")
        a(f"v_min_u32 v{60+i}, 31, v{60+i}")
        a(f"v_lshl_or_b32 v{60+i}, v{60+i}, 5, v{60+i}")
        a(f"v_bfe_u32 v{60+i}, v{60+i}, 2, 5")
        a(f"v_xad_u32 v{60+i}, v{60+i}, v{16+i}, v{32+i}")
        a(f"v_cndmask_b32 v{10+i}, v{10+i}, v30, vcc")
        a(f"v_lshl_add_u32 v{60+i}, v{60+i}, 2, s54")
        if i == 4: a("s_mov_b64 exec, s[52:53]")
        a(f"ds_write_b32 v{60+i}, v{10+i}")
        if i == 4: a("s_mov_b64 exec, -1")
    a("s_waitcnt lgkmcnt(0)")
    a("s_barrier")
    stamp(a, opt, 3, SV)
    for i in range(4):
        a(f"ds_read_b128 {v(64+4*i,4)}, v45 offset:{i*8192}")
    for i in range(4):
        a(f"s_waitcnt lgkmcnt({3 - i})")
        a(f"buffer_store_dwordx4 {v(64+4*i,4)}, v46, s[36:39], s{24+i} offen{SF}")
    stamp(a, opt, 4, SV)
    if opt.get("stamps"): a("s_waitcnt vmcnt(0)")
    stamp(a, opt, 5, SV)
    stamp_out(a, opt, 20, 0xF00000, 22, SV, tmpv=121)
    a("s_endpgm")
    a.label("K1_HELP")
    a(f"s_sub_u32 s3, s3, {NSORTWG}")
    a("s_waitcnt lgkmcnt(0)")
    srd_ws(a, 40, 20, W2F_OFF, FRAG_BYTES)
    a("v_lshlrev_b32 v6, 4, v2")
    a("s_cmp_lt_u32 s22, 8")
    a("s_cbranch_scc1 K1_H8")
    a("s_cmp_lt_u32 s22, 10")
    a("s_cbranch_scc0 K1_END")
    a("s_getpc_b64 s[60:61]")
    a.label("K1_PC")
    a("s_add_u32 s60, s60, mpnn_main_kernel-K1_PC")
    a("s_addc_u32 s61, s61, 0")
    a("s_mov_b32 s62, K2_REDO-mpnn_main_kernel")
    a("s_mov_b32 s63, 0x00020000")
    a("v_subrev_u32 v7, 512, v0")
    a("v_lshlrev_b32 v7, 7, v7")
    a("buffer_load_dword v22, v7, s[60:63], 0 offen")
    a("s_endpgm")
    a.label("K1_H8")
    a("s_lshl_b32 s3, s3, 3")
    a("s_add_u32 s3, s3, s22")
    a("s_mov_b32 s58, s3")
    a("s_bfe_u32 s26, s3, 0x30003")
    a("s_and_b32 s27, s3, 7")
    a("s_cmp_ge_u32 s3, 128")
    a("s_cselect_b32 s26, s27, s26")
    a("s_cselect_b32 s27, 8, s27")
    a("s_cmp_ge_u32 s3, 64")
    a("s_cbranch_scc1 K1_PREP1")
    srd(a, 44, "s16", "s17", 256 * 256)
    a("v_and_b32 v40, 15, v2")
    a("v_lshlrev_b32 v40, 1, v40")
    a("v_lshrrev_b32 v41, 4, v2")
    a("v_lshl_add_u32 v40, v41, 10, v40")
    a("v_add_u32 v41, 8192, v40")
    a("s_bfe_u32 s24, s3, 0x20001")
    a("s_lshl_b32 s24, s24, 14")
    a("s_and_b32 s25, s3, 1")
    a("s_lshl_b32 s25, s25, 12")
    a("s_add_u32 s24, s24, s25")
    a("s_lshr_b32 s25, s3, 3")
    a("s_lshl_b32 s25, s25, 5")
    a("s_add_u32 s24, s24, s25")
    for e in range(8):
        a(f"buffer_load_ushort v{48+e}, v{40 + (e & 1)}, s[44:47], s24 offen offset:{(e >> 1)*256}")
    a("s_branch K1_PFIN")
    a.label("K1_PREP1")
    srd(a, 44, "s12", "s13", 272 * 512)
    a("v_and_b32 v42, 1, v2")
    a("v_lshlrev_b32 v42, 6, v42")
    a("v_and_b32 v43, 30, v2")
    a("v_add_u32 v42, v42, v43")
    a("v_lshrrev_b32 v43, 5, v2")
    a("v_lshl_add_u32 v42, v43, 12, v42")
    a("s_lshr_b32 s24, s26, 1")
    a("s_lshl_b32 s24, s24, 7")
    a("s_and_b32 s25, s26, 1")
    a("s_lshl_b32 s25, s25, 5")
    a("s_add_u32 s24, s24, s25")
    a("s_lshl_b32 s27, s27, 13")
    a("s_add_u32 s24, s24, s27")
    a(f"s_add_u32 s24, s24, {128*512}")
    for e in range(8):
        a(f"buffer_load_ushort v{48+e}, v42, s[44:47], s24 offen offset:{e*512}")
    a.label("K1_PFIN")
    a("s_lshl_b32 s24, s58, 10")
    a("s_cmp_ge_u32 s58, 128")
    a("s_waitcnt vmcnt(0)")
    a("s_cbranch_scc1 K1_FINC")
    for e in range(4):
        a(f"v_lshl_or_b32 v{56+e}, v{49+2*e}, 16, v{48+2*e}")
    a("buffer_store_dwordx4 v[56:59], v6, s[40:43], s24 offen")
    a("s_endpgm")
    a.label("K1_FINC")
    a(f"s_mov_b32 s25, {NEGLOG2E:#x}")
    for e in range(8):
        a(f"v_lshlrev_b32 v{48+e}, 16, v{48+e}")
        a(f"v_mul_f32 v{48+e}, s25, v{48+e}")
    for e in range(4):
        a(f"v_cvt_pk_bf16_f32 v{56+e}, v{48+2*e}, v{49+2*e}")
    a("buffer_store_dwordx4 v[56:59], v6, s[40:43], s24 offen")
    a.label("K1_END")
    a("s_endpgm")
    return a, (128 if opt.get('stamps') else 112), (102 if opt.get('stamps') else 64)
```

```python
from asmlib import *
from k1 import *

NW = 12
PSLOT = 0
EIM = 49152
OH = 98304
ZERO = 147456
CNT = ZERO + 256
FLAG = ZERO + 512
IDX = ZERO + 3328
EOFF = IDX + 6400
HSTR = 144
K2_LDS = 163840
assert EOFF + 6144 <= K2_LDS
GCAP = 48
KILL = 0x40000000
NEGLN2 = 0xBF317218
aAE = 1; aAP = 2; aAO = 7; aS1 = 8; aS2 = 9; aIDX = 10; aEI = 11; EI = 12; CHK = 14
D = [16, 32]; EX = 48; ACC = 64; BC = [80, 84]; BQ = [88, 92]; ID = [96, 100]
AE = 104; FV = 164; MG = 165; AO = 108; S = 112; AP = [116, 120, 124, 128]; HQ = 132; IX = [136, 138, 140, 142]
WP = 144
NV2 = 168

def pr(r): return v(r, 2)
def q4(r): return v(r, 4)
def x16(r): return v(r, 16)

def mf_tile(Y):
    d = D[Y]
    return [f"v_mfma_f32_32x32x16_bf16 {x16(d)}, {q4(AE)}, {q4(BC[Y])}, 0",
            f"v_mfma_f32_32x32x16_bf16 {x16(d)}, {q4(AO)}, {q4(BQ[Y])}, {x16(d)}",
            f"v_mfma_f32_32x32x16_bf16 {x16(d)}, {q4(AP[2*Y])}, {q4(ID[0])}, {x16(d)}",
            f"v_mfma_f32_32x32x16_bf16 {x16(d)}, {q4(AP[2*Y+1])}, {q4(ID[1])}, {x16(d)}"]
SEGSUM = f"v_mfma_f32_32x32x16_bf16 {x16(ACC)}, {q4(HQ)}, {q4(S)}, {x16(ACC)}"

def tile(X, mf, ex_exp, mid, ex_rcp):
    d = D[X]; out = []; mi = 0
    for i in range(16):
        if i % 3 == 0 and mi < len(mf):
            out.append(mf[mi]); mi += 1
        out.append(f"v_exp_f32 v{EX+i}, v{d+i}")
        out += ex_exp.get(i, [])
    out += mid
    NAB, NCD, DAB, DCD = d, d + 8, EX, EX + 8
    out.append(f"v_pk_add_f32 {pr(DAB)}, {pr(EX)}, 1.0 op_sel_hi:[1,0]")
    out.append(f"v_pk_add_f32 {pr(DCD)}, {pr(EX+8)}, 1.0 op_sel_hi:[1,0]")
    for k in range(1, 4):
        out.append(f"v_pk_fma_f32 {pr(NAB)}, {pr(NAB)}, {pr(EX+2*k)}, {pr(NAB)}")
        out.append(f"v_pk_fma_f32 {pr(NCD)}, {pr(NCD)}, {pr(EX+8+2*k)}, {pr(NCD)}")
        out.append(f"v_pk_fma_f32 {pr(NAB)}, {pr(d+2*k)}, {pr(DAB)}, {pr(NAB)}")
        out.append(f"v_pk_fma_f32 {pr(NCD)}, {pr(d+8+2*k)}, {pr(DCD)}, {pr(NCD)}")
        out.append(f"v_pk_fma_f32 {pr(DAB)}, {pr(DAB)}, {pr(EX+2*k)}, {pr(DAB)}")
        out.append(f"v_pk_fma_f32 {pr(DCD)}, {pr(DCD)}, {pr(EX+8+2*k)}, {pr(DCD)}")
    out.append(f"v_pk_fma_f32 {pr(CHK)}, {pr(DAB)}, {pr(DCD)}, {pr(CHK)}")
    out += ex_rcp
    for r in (DAB, DAB + 1, DCD, DCD + 1):
        out.append(f"v_rcp_f32 v{r}, v{r}")
    out.append(f"v_pk_mul_f32 {pr(NAB)}, {pr(NAB)}, {pr(DAB)}")
    out.append(f"v_pk_mul_f32 {pr(NCD)}, {pr(NCD)}, {pr(DCD)}")
    out.append(f"v_cvt_pk_bf16_f32 v{HQ+2*X}, v{NAB}, v{NAB+1}")
    out.append(f"v_cvt_pk_bf16_f32 v{HQ+2*X+1}, v{NCD}, v{NCD+1}")
    return out

def p_dma():
    out = []
    for k in range(4):
        out.append(f"s_add_u32 m0, s57, {k*1024}")
        out.append("s_nop 0")
        out.append(f"buffer_load_dwordx4 {pr(IX[k])}, s[32:35], s58 idxen offen lds")
    return out

EFL = [""]
def e_dma():
    return ["s_cmp_lt_u32 s61, s53",
            f"s_cselect_b32 s86, {E}, 0",
            f"s_cselect_b32 m0, s59, {K2_LDS:#x}",
            "s_add_u32 s61, s61, 4",
            f"buffer_load_dwordx4 {pr(EI)}, s[84:87], 0 idxen offen{EFL[0]} lds",
            "s_add_u32 s59, s59, 4096"]
NW2 = 5
def w2_pre(vaddr):
    return [f"buffer_load_dwordx4 {q4(WP+4*sidx)}, v{vaddr}, s[40:43], s{73 + (sidx >> 2)} offen offset:{(sidx & 3)*1024}" for sidx in range(NW2)]

def gen_k2(opt=None):
    opt = opt or {}
    EFL[0] = {0: "", 1: " nt", 2: " sc1"}[opt.get("efl", 0)]
    a = Asm()
    def stp(i):
        if opt.get("stamps"):
            a("s_memrealtime s[96:97]"); a("s_waitcnt lgkmcnt(0)"); a(f"v_writelane_b32 v0, s96, {i}")
    def stc(i):
        if opt.get("stamps"):
            a("s_memtime s[96:97]"); a("s_waitcnt lgkmcnt(0)"); a(f"v_writelane_b32 v0, s96, {i}")
    a.label("mpnn_main_kernel")
    a("s_cmp_ge_u32 s2, 256")
    a("s_cbranch_scc1 K2_END")
    a("s_mov_b32 s70, 0")
    a.label("K2_TOP")
    a("s_load_dwordx2 s[22:23], s[0:1], 80")
    a("s_load_dwordx16 s[4:19], s[0:1], 0")
    a("s_load_dwordx2 s[20:21], s[0:1], 64")
    if opt.get("stamps"): a("s_memrealtime s[98:99]")
    a("v_lshrrev_b32 v72, 6, v0")
    a("v_and_b32 v1, 63, v0")
    a("v_readfirstlane_b32 s24, v72")
    a("v_lshlrev_b32 v25, 5, v0")
    a("v_lshlrev_b32 v24, 4, v0")
    L16 = 6
    a(f"v_lshlrev_b32 v{L16}, 4, v1")
    a("s_lshl_b32 s66, s2, 14")
    a("s_and_b32 s25, s24, 3")
    a("s_lshr_b32 s26, s24, 2")
    a("s_cmp_ge_u32 s24, 8")
    a("s_cbranch_scc1 K2_HL")
    a("s_waitcnt lgkmcnt(0)")
    srd_ws(a, 40, 22, CELL_OFF, (W2F_OFF - CELL_OFF) + FRAG_BYTES)
    a("buffer_load_dwordx4 v[16:19], v25, s[40:43], s66 offen")
    a("buffer_load_dwordx4 v[20:23], v25, s[40:43], s66 offen offset:16")
    a("s_branch K2_CM")
    a.label("K2_HL")
    a("v_lshrrev_b32 v77, 4, v1")
    a("s_lshl_b32 s68, s25, 2")
    a("v_add_u32 v77, s68, v77")
    a("v_xor_b32 v27, v77, v1")
    a("v_and_b32 v27, 15, v27")
    a("v_lshlrev_b32 v27, 4, v27")
    a("v_lshl_add_u32 v26, v77, 16, v27")
    for win in (1, 2):
        a(f"v_subrev_u32 v78, {12*win}, v77")
        a("v_and_b32 v78, 15, v78")
        a(f"v_add_u32 v78, {12*win}, v78")
        a(f"v_lshl_add_u32 v{27+win}, v78, 16, v27")
    a("s_lshl_b32 s68, s2, 8")
    a("s_lshl_b32 s69, s25, 10")
    a(f"s_add_u32 m0, s69, {EIM + 4096}")
    a("s_waitcnt lgkmcnt(0)")
    srd(a, 36, "s4", "s5", N * 256)
    a("buffer_load_dwordx4 v26, s[36:39], s68 offen lds")
    a(f"s_add_u32 m0, s69, {EIM + 4096 + 16384}")
    srd_ws(a, 40, 22, CELL_OFF, (W2F_OFF - CELL_OFF) + FRAG_BYTES)
    a("buffer_load_dwordx4 v28, s[36:39], s68 offen lds")
    a(f"s_add_u32 m0, s69, {EIM + 4096 + 32768}")
    a("s_lshr_b32 s66, s2, 3")
    a("buffer_load_dwordx4 v29, s[36:39], s68 offen lds")
    a(f"s_mul_i32 s66, s66, {34*128}")
    a(f"s_mul_i32 s67, s25, {9*128}")
    a("s_add_u32 s66, s66, s67")
    a(f"s_add_u32 s66, s66, {W2F_OFF - CELL_OFF}")
    a("v_min_u32 v30, 8, v1")
    a("v_lshlrev_b32 v30, 7, v30")
    a("buffer_load_dword v134, v30, s[40:43], s66 offen")
    a.label("K2_CM")
    a("s_mul_i32 s71, s26, 12")
    a("s_lshl_b32 s56, s26, 14")
    a(f"s_add_u32 s56, s56, {EIM}")
    a("s_lshl_b32 s69, s25, 10")
    a("s_add_u32 s59, s56, s69")
    a("s_lshl_b32 s66, s24, 13")
    a(f"s_add_u32 s73, s66, {W2F_OFF - CELL_OFF}")
    a("s_cmp_lt_u32 s24, 8")
    a(f"s_cselect_b32 s73, s73, {KILL:#x}")
    a("s_add_u32 s74, s73, 4096")
    a("s_lshl_b32 s72, s25, 11")
    a(f"s_add_u32 s72, s72, {WCF_OFF - CELL_OFF}")
    a(f"v_add_u32 v156, {OH}, v24")
    for i in range(4): a(f"v_mov_b32 v{144+i}, 0")
    a(f"v_mov_b32 v31, {N}")
    a(f"v_mov_b32 v152, {E}")
    a(f"v_cmp_gt_u32 vcc, {IDX - ZERO}, v24")
    a(f"s_mov_b32 s66, {EOFF - ZERO}")
    a("v_cmp_le_u32 s[68:69], s66, v24")
    a("v_cndmask_b32 v148, v31, v144, vcc")
    a("v_mov_b32 v153, v152")
    a("v_cndmask_b32 v148, v148, v152, s[68:69]")
    a("v_mov_b32 v154, v152")
    a("v_mov_b32 v155, v152")
    for i in range(1, 4): a(f"v_mov_b32 v{148+i}, v148")
    a(f"ds_write_b128 v156, v[148:151] offset:{4*12288}")
    for i in range(4): a(f"ds_write_b128 v156, v[144:147] offset:{i*12288}")
    a("s_cmp_lt_u32 s24, 4")
    a("s_cbranch_scc0 K2_I1")
    a(f"ds_write_b128 v156, v[152:155] offset:{5*12288}")
    a.label("K2_I1")
    a("v_lshrrev_b32 v72, 2, v0")
    if opt.get("stamps"):
        a("v_mov_b32 v0, 0"); a("v_writelane_b32 v0, s98, 0")
    a("s_mov_b32 s84, s6")
    a("s_and_b32 s85, s7, 0xffff")
    a(f"s_or_b32 s85, s85, {32 << 16:#x}")
    a("s_mov_b32 s87, 0x00020000")
    a("s_mov_b32 s32, s22")
    a("s_and_b32 s33, s23, 0xffff")
    a(f"s_or_b32 s33, s33, {512 << 16:#x}")
    a(f"s_mov_b32 s34, {N+1}")
    a("s_mov_b32 s35, 0x00020000")
    srd(a, 44, "s20", "s21", N * 256)
    H_, I_, T0, T1 = 77, 78, 105, 106
    a(f"v_lshrrev_b32 v{H_}, 5, v1")
    a(f"v_and_b32 v{I_}, 31, v1")
    a(f"v_and_b32 v{T0}, 16, v1")
    a(f"v_and_b32 v{T1}, 4, v1")
    a(f"v_lshl_or_b32 v{T0}, v{T1}, 1, v{T0}")
    a(f"v_and_b32 v{T1}, 1, v1")
    a(f"v_lshl_or_b32 v{T0}, v{T1}, 2, v{T0}")
    a(f"v_bfe_u32 v{T1}, v1, 3, 1")
    a(f"v_lshl_or_b32 v{T0}, v{T1}, 1, v{T0}")
    a(f"v_bfe_u32 v{T1}, v1, 1, 1")
    a(f"v_or_b32 v{T0}, v{T0}, v{T1}")
    a("s_lshl_b32 s57, s24, 12")
    a("s_lshl_b32 s58, s25, 7")
    a(f"v_bfe_u32 v{T1}, v{T0}, 1, 3")
    a(f"v_xor_b32 v{T1}, v{T1}, v{H_}")
    a(f"v_lshl_add_u32 v{T1}, v{T1}, 4, s57")
    a(f"v_lshl_add_u32 v{aAP}, v{T0}, 7, v{T1}")
    for m in range(1, 4): a(f"v_xor_b32 v{aAP+m}, {m << 5}, v{aAP}")
    a(f"v_bfe_u32 v{T1}, v{T0}, 3, 1")
    a(f"v_xor_b32 v{T1}, v{T1}, v{H_}")
    a(f"v_lshl_add_u32 v{T1}, v{T1}, 4, s56")
    a(f"v_lshl_add_u32 v110, v{T0}, 5, v{T1}")
    a(f"v_lshlrev_b32 v{T1}, 4, v{H_}")
    a(f"v_lshl_add_u32 v{aAO}, v{T0}, 5, v{T1}")
    a(f"v_and_b32 v{T1}, 62, v1")
    a(f"v_lshlrev_b32 v{aEI}, 1, v{T1}")
    SOFF = 104
    a(f"v_and_b32 v{T1}, 8, v1")
    a(f"v_lshlrev_b32 v{SOFF}, 6, v{T1}")
    a(f"v_lshl_add_u32 v{SOFF}, v{H_}, 8, v{SOFF}")
    a(f"v_and_b32 v{T1}, 4, v1")
    a(f"v_lshl_add_u32 v{SOFF}, v{T1}, 5, v{SOFF}")
    a(f"v_and_b32 v{T1}, 3, v1")
    a(f"v_lshl_add_u32 v{SOFF}, v{T1}, 3, v{SOFF}")
    a("s_mov_b32 s62, 0xffff\ns_mov_b32 s63, 0xffff\ns_mov_b32 s64, 0xffff0000\ns_mov_b32 s65, 0xffff0000")
    a(f"v_lshrrev_b32 v{T1}, 3, v1")
    a(f"v_lshlrev_b32 v{aIDX}, 2, v{T1}")
    a(f"v_lshrrev_b32 v{T1}, 4, v1")
    a(f"v_xor_b32 v{T1}, v{T1}, v1")
    a(f"v_and_b32 v{EI+1}, 1, v{T1}")
    a(f"v_lshlrev_b32 v{EI+1}, 4, v{EI+1}")
    a(f"v_and_b32 v{T1}, 7, v{T1}")
    a(f"v_lshlrev_b32 v{IX[0]+1}, 4, v{T1}")
    a(f"v_xor_b32 v{IX[1]+1}, 64, v{IX[0]+1}")
    a(f"v_mov_b32 v{IX[2]+1}, v{IX[0]+1}")
    a(f"v_mov_b32 v{IX[3]+1}, v{IX[1]+1}")
    a(f"v_and_b32 v{T1}, 1, v1")
    a(f"v_lshlrev_b32 v{T1}, 4, v{T1}")
    a("v_mov_b32 v75, 0x3f80")
    a(f"v_lshlrev_b32 v107, v{T1}, v75")
    a(f"v_lshrrev_b32 v{T1}, 1, v{I_}")
    a(f"v_lshlrev_b32 v{T0}, 2, v{H_}")
    a(f"v_sub_u32 v{T1}, v{T1}, v{T0}")
    for mm in range(2):
        for rho in range(4):
            a(f"v_cmp_eq_u32 s[{76+2*rho}:{77+2*rho}], {8*mm+rho}, v{T1}")
        for rho in range(4):
            a(f"v_cndmask_b32 v{ID[mm]+rho}, 0, v107, s[{76+2*rho}:{77+2*rho}]")
    a("s_lshl_b32 s66, s25, 11")
    a("s_add_u32 s67, s56, s66")
    a(f"v_add_u32 v115, s67, v{L16}")
    a(f"v_mov_b32 v111, {FLAG}")
    a("v_mov_b32 v114, 1")
    a("s_mov_b32 s55, 0")
    a("s_mov_b32 s60, 0")
    a("s_mov_b32 s61, s25")
    a("s_cmp_ge_u32 s24, 8")
    a("s_cbranch_scc1 K2_HQ")
    a(f"s_mov_b32 s66, {CHUNK}")
    a("v_mul_u32_u24 v72, s66, v72")
    a(f"s_mov_b32 s78, {CNT}")
    a("v_lshl_add_u32 v76, v1, 2, s78")
    a(f"s_mov_b32 s79, {IDX}")
    a(f"s_mov_b32 s80, {OH}")
    a("s_mov_b32 s81, 0")
    a(f"buffer_load_dwordx4 {q4(BC[0])}, v{L16}, s[40:43], s72 offen")
    a(f"buffer_load_dwordx4 {q4(BC[1])}, v{L16}, s[40:43], s72 offen offset:1024")
    a("s_waitcnt lgkmcnt(0)")
    stp(1)
    a("s_barrier")
    a("s_waitcnt vmcnt(3)")
    stp(2)
    RA, RK = 32, 40
    SB = 48; T = 116
    TS, TE, TO = 116, 124, 56
    def count(ks):
        for k in ks:
            a(f"v_and_b32 v{RA+k}, 63, v{16+k}")
            a(f"v_lshl_add_u32 v{RA+k}, v{RA+k}, 2, s78")
        for k in ks:
            a(f"v_cmpx_gt_u32 vcc, -2, v{16+k}")
            a(f"ds_add_rtn_u32 v{RK+k}, v{RA+k}, v114")
        a("s_mov_b64 exec, -1")
    def decode(ks):
        for k in ks:
            a(f"v_lshrrev_b32 v{TS+k}, {18 + opt.get('pshift', 0)}, v{16+k}")
            a(f"v_bfe_u32 v{TE+k}, v{16+k}, 6, 12")
            a(f"v_add_u32 v{TE+k}, v{TE+k}, v72")
            if opt.get("eshift"): a(f"v_lshrrev_b32 v{TE+k}, {opt['eshift']}, v{TE+k}")
            a(f"v_and_b32 v{TO+k}, 15, v{16+k}")
            a(f"v_lshl_add_u32 v{TO+k}, v{TO+k}, 1, s80")
    def scatter(ks):
        for k in ks:
            a(f"v_add_u32 v{SB+k}, v{SB+k}, v{RK+k}")
            a(f"v_lshl_add_u32 v{TO+k}, v{SB+k}, 5, v{TO+k}")
            a(f"v_lshl_add_u32 v{SB+k}, v{SB+k}, 2, s79")
        for k in ks:
            a(f"v_cmpx_gt_u32 vcc, -2, v{16+k}")
            a(f"ds_write2st64_b32 v{SB+k}, v{TS+k}, v{TE+k} offset0:0 offset1:{(EOFF-IDX)//256}")
            a(f"ds_write_b16 v{TO+k}, v75")
        a("s_mov_b64 exec, -1")
    def arrive(off):
        a("s_mov_b64 exec, 1")
        a(f"ds_add_u32 v111, v114 offset:{off}")
        a("s_mov_b64 exec, -1")
    count(range(4))
    a("s_waitcnt vmcnt(2)")
    a("v_cmp_ne_u32 vcc, -1, v20")
    a("s_nop 1")
    a("s_cbranch_vccnz K2_CX")
    a.label("K2_C1")
    arrive(4)
    decode(range(4))
    a.label("K2_SB1")
    a("ds_read_b64 v[108:109], v111")
    a("ds_read_b32 v105, v76")
    a("s_waitcnt lgkmcnt(0)")
    a("v_readfirstlane_b32 s66, v109")
    a("v_add_u32 v105, 3, v105")
    a("s_cmp_lt_u32 s66, 8")
    a("s_cbranch_scc1 K2_SB1")
    stp(3)
    a("v_and_b32 v105, -4, v105")
    a("v_readfirstlane_b32 s82, v108")
    a("s_nop 0")
    a("v_add_u32_dpp v107, v105, v105 row_shr:1 row_mask:0xf bank_mask:0xf bound_ctrl:0")
    a("s_nop 1")
    for sh in (2, 4, 8):
        a(f"v_add_u32_dpp v107, v107, v107 row_shr:{sh} row_mask:0xf bank_mask:0xf bound_ctrl:0")
        a("s_nop 1")
    a("v_add_u32_dpp v107, v107, v107 row_bcast:15 row_mask:0xa bank_mask:0xf")
    a("s_sub_u32 s82, s82, s70")
    a("s_lshl_b32 s82, s82, 12")
    a("v_add_u32_dpp v107, v107, v107 row_bcast:31 row_mask:0xc bank_mask:0xf")
    a("v_sub_u32 v108, v107, v105")
    a("v_readlane_b32 s83, v107, 63")
    for k in range(4): a(f"ds_bpermute_b32 v{SB+k}, v{RA+k}, v108")
    a("s_add_u32 s82, s82, s83")
    a(f"s_cmp_gt_u32 s82, {GCAP*32}")
    a("s_cbranch_scc1 K2_BAD")
    a("s_waitcnt lgkmcnt(0)")
    scatter(range(4))
    a("s_cmp_lg_u32 s81, 0")
    a("s_cbranch_scc1 K2_SX")
    a.label("K2_S1")
    arrive(8)
    a("s_add_u32 s83, s83, 31")
    a("s_lshr_b32 s83, s83, 5")
    a("s_add_u32 s88, s83, 2")
    a("s_mul_i32 s88, s88, 171")
    a("v_readlane_b32 s76, v108, 12")
    a("v_readlane_b32 s77, v108, 16")
    a("v_readlane_b32 s78, v108, 24")
    a("v_readlane_b32 s79, v108, 28")
    a("s_lshr_b32 s88, s88, 9")
    a("s_add_u32 s76, s76, 31")
    a("s_lshr_b32 s76, s76, 5")
    a("s_lshr_b32 s77, s77, 5")
    a("s_add_u32 s78, s78, 31")
    a("s_lshr_b32 s78, s78, 5")
    a("s_lshr_b32 s79, s79, 5")
    a("s_cmp_gt_u32 s76, s77")
    a("s_cbranch_scc1 K2_BAD")
    a("s_cmp_gt_u32 s78, s79")
    a("s_cbranch_scc1 K2_BAD")
    if opt.get("force_slow"): a("s_branch K2_BAD")
    a("s_max_u32 s88, s88, s76")
    a("s_min_u32 s88, s88, s77")
    a("s_add_u32 s89, s83, s88")
    a("s_add_u32 s89, s89, 1")
    a("s_lshr_b32 s89, s89, 1")
    a("s_max_u32 s89, s89, s78")
    a("s_min_u32 s89, s89, s79")
    a("s_sub_u32 s90, s89, s88")
    a("s_sub_u32 s91, s83, s89")
    a("s_max_u32 s92, s90, s88")
    a("s_max_u32 s92, s92, s91")
    a("s_cmp_gt_u32 s92, 16")
    a("s_cbranch_scc1 K2_BAD")
    a("v_mov_b32 v108, s89")
    a("v_mov_b32 v109, s91")
    a("ds_write_b64 v111, v[108:109] offset:16")
    a("s_cmp_eq_u32 s26, 1")
    a("s_cselect_b32 s52, s88, 0")
    a("s_cselect_b32 s53, s90, s88")
    def g0_addr():
        a("s_lshl_b32 s66, s52, 7")
        a(f"s_add_u32 s67, s66, {IDX}")
        a(f"v_add_u32 v{aIDX}, s67, v{aIDX}")
        a(f"s_add_u32 s67, s67, {EOFF - IDX}")
        a(f"v_add_u32 v{aEI}, s67, v{aEI}")
        a(f"v_add_u32 v109, s58, v{aEI}")
    def first_reads():
        for k in range(4): a(f"ds_read_b32 v{IX[k]}, v{aIDX} offset:{k*32}")
        a(f"ds_read_b32 v{EI}, v109")
    nfl = [0]
    LATE = opt.get("late", 0)
    NE0 = 2 if LATE else 1
    def first_loads():
        nfl[0] += 1
        a(f"s_cmp_ge_u32 s25, {NE0}")
        a(f"s_cbranch_scc1 K2_FL{nfl[0]}")
        a("\n".join(e_dma()))
        a.label(f"K2_FL{nfl[0]}")
        a("\n".join(p_dma()))
    g0_addr()
    a.label("K2_SB2")
    a("ds_read_b32 v108, v111 offset:8")
    first_reads()
    a("s_waitcnt lgkmcnt(0)")
    a("v_readfirstlane_b32 s66, v108")
    a("s_nop 0")
    a("s_cmp_lt_u32 s66, 8")
    a("s_cbranch_scc1 K2_SB2")
    stp(4)
    first_loads()
    a("s_barrier")
    a("s_branch K2_QD")
    a.label("K2_HQ")
    WA, QA, QB, XA, BIAS = 32, 16, 116, 132, 112
    a(f"v_and_b32 v{T0}, 3, v1")
    a(f"v_and_b32 v{T1}, 4, v1")
    a(f"v_lshl_or_b32 v{T0}, v{T1}, 1, v{T0}")
    a(f"v_bfe_u32 v{T1}, v1, 3, 1")
    a(f"v_lshl_or_b32 v{T0}, v{T1}, 2, v{T0}")
    a(f"v_xor_b32 v{T1}, v{T0}, v{H_}")
    a(f"v_lshlrev_b32 v{T1}, 4, v{T1}")
    a(f"v_lshl_add_u32 v{XA}, v{T0}, 8, v{T1}")
    a(f"v_and_b32 v{T1}, 16, v1")
    a(f"v_lshl_add_u32 v{XA}, v{T1}, 10, v{XA}")
    a(f"v_add_u32 v{XA}, {EIM + 4096}, v{XA}")
    a(f"s_add_u32 s67, s66, {EIM + 8192}")
    a(f"v_add_u32 v107, s67, v{L16}")
    srd(a, 48, "s14", "s15", 512)
    a("v_and_b32 v108, 1, v1")
    a("v_and_b32 v109, 30, v1")
    a("v_lshl_add_u32 v108, v108, 6, v109")
    a("s_lshl_b32 s66, s25, 14")
    a(f"s_add_u32 s76, s66, {W1BF_OFF - CELL_OFF}")
    for i in range(1, 4): a(f"s_add_u32 s{76+i}, s76, {i*4096}")
    PFT = opt.get("pft", 0)
    if PFT:
        srd(a, 92, "s22", "s23", N * 512)
        a("s_lshr_b32 s80, s2, 3")
        a(f"s_mul_i32 s80, s80, {PFT*256*128}")
        a("s_lshl_b32 s81, s25, 13")
        a("s_add_u32 s80, s80, s81")
        a("v_lshlrev_b32 v109, 7, v1")
    a(f"s_mov_b32 s68, {NEGLOG2E:#x}")
    a(f"s_mov_b32 s69, {NEGLOG2E:#x}")
    a("s_waitcnt lgkmcnt(0)")
    stp(1)
    a("s_barrier")
    a(f"buffer_load_ushort v{BIAS}, v108, s[48:51], s58 offen")
    a(f"buffer_load_ushort v{BIAS+1}, v108, s[48:51], s58 offen offset:32")
    for i in range(16):
        a(f"buffer_load_dwordx4 {q4(WA+4*i)}, v{L16}, s[40:43], s{76 + (i >> 2)} offen offset:{(i & 3)*1024}")
        if i == 7:
            a("s_waitcnt vmcnt(10)")
            arrive(12)
    for i in range(PFT):
        a("buffer_load_dword v135, v109, s[92:95], s80 offen")
        a(f"s_add_u32 s80, s80, {256*128}")
    stp(2)
    a.label("K2_HS")
    a("ds_read_b32 v108, v111 offset:12")
    a("s_waitcnt lgkmcnt(0)")
    a("v_readfirstlane_b32 s66, v108")
    a("s_nop 0")
    a("s_cmp_lt_u32 s66, 4")
    a("s_cbranch_scc1 K2_HS")
    def xread(step):
        sidx = step & 7; st_ = step % 3
        if sidx: a(f"v_xor_b32 v{XA+1}, {sidx << 5}, v{XA}")
        r = XA + 1 if sidx else XA
        a(f"ds_read_b128 {q4(WP+8*st_)}, v{r}")
        a(f"ds_read_b128 {q4(WP+8*st_+4)}, v{r} offset:32768")
    xread(0); xread(1); xread(2)
    a(f"s_waitcnt vmcnt({16 + PFT})")
    a(f"v_lshlrev_b32 v{BIAS}, 16, v{BIAS}")
    a(f"v_lshlrev_b32 v{BIAS+1}, 16, v{BIAS+1}")
    a(f"v_pk_mul_f32 {pr(BIAS)}, {pr(BIAS)}, s[68:69]")
    for X in range(2):
        for sidx in range(8):
            step = 8*X + sidx; st_ = step % 3
            nl = 2*min(2, 15-step) + (3 if (X == 1 and sidx < 3) else 0)
            if X == 1 and sidx == 1: nl = 2 + 3 + 2
            a(f"s_waitcnt vmcnt({15 - step + PFT}) lgkmcnt({min(nl, 15)})")
            a(f"v_mfma_f32_32x32x16_bf16 {x16(QA)}, {q4(WP+8*st_)}, {q4(WA+4*step)}, {'0' if sidx == 0 else x16(QA)}")
            a(f"v_mfma_f32_32x32x16_bf16 {x16(QB)}, {q4(WP+8*st_+4)}, {q4(WA+4*step)}, {'0' if sidx == 0 else x16(QB)}")
            if step + 3 < 16: xread(step + 3)
        a("s_nop 10")
        for wi, base in enumerate((QA, QA + 8, QB)):
            for k in range(4):
                a(f"v_pk_fma_f32 {pr(base+2*k)}, {pr(base+2*k)}, s[68:69], {pr(BIAS)} op_sel:[0,0,{X}] op_sel_hi:[1,1,{X}]")
            for k in range(4):
                a(f"v_cvt_pk_bf16_f32 v{WA+4*wi+k+12*X}, v{base+2*k}, v{base+2*k+1}")
            a(f"ds_write_b128 v107, {q4(WA+4*wi+12*X)} offset:{wi*16384 + X*1024}")
    a("s_waitcnt lgkmcnt(0)")
    stp(3)
    a("s_barrier")
    a("ds_read_b64 v[108:109], v111 offset:16")
    a(f"buffer_load_dwordx4 {q4(BC[0])}, v{L16}, s[40:43], s72 offen")
    a(f"buffer_load_dwordx4 {q4(BC[1])}, v{L16}, s[40:43], s72 offen offset:1024")
    a("s_waitcnt lgkmcnt(0)")
    a("v_readfirstlane_b32 s52, v108")
    a("v_readfirstlane_b32 s53, v109")
    a("s_nop 0")
    a("s_cmp_eq_u32 s53, -1")
    a("s_cbranch_scc1 K2_SLOW")
    g0_addr()
    first_reads()
    a("s_waitcnt lgkmcnt(0)")
    stp(4)
    first_loads()
    a.label("K2_QD")
    stp(5)
    a("s_lshl_b32 s66, s52, 10")
    a(f"s_add_u32 s66, s66, {OH}")
    a(f"v_add_u32 v{aAO}, s66, v{aAO}")
    for k in range(4): a(f"ds_read_b32 v{IX[k]}, v{aIDX} offset:{128+k*32}")
    a(f"v_mov_b32 v166, v109")
    a(f"v_mov_b32 v{aAE}, v110")
    a(f"ds_read_b128 {q4(AO)}, v{aAO}")
    a(f"ds_read_b128 {q4(BQ[0])}, v115 offset:8192")
    a(f"ds_read_b128 {q4(BQ[1])}, v115 offset:9216")
    a(f"v_mov_b32 v{MG}, -1")
    a(f"v_add_u32 v{SOFF}, s66, v{SOFF}")
    a(f"v_mov_b32 v{T0}, {ZERO}")
    a(f"v_cndmask_b32 v{aS1}, v{T0}, v{SOFF}, s[62:63]")
    a(f"v_cndmask_b32 v{aS2}, v{T0}, v{SOFF}, s[64:65]")
    for i in range(16): a(f"v_mov_b32 v{ACC+i}, 0")
    a(f"v_mov_b32 v{CHK}, 0\nv_mov_b32 v{CHK+1}, 0")
    for i in range(4): a(f"v_mov_b32 v{S+i}, 0")
    T3, T2, T1_ = opt.get("t3", 6), opt.get("t2", 3), opt.get("t1", 1)
    a(f"s_sub_u32 s90, s53, {T3}")
    a("s_max_i32 s90, s90, 2")
    a("s_mov_b32 s91, 0")
    def flag_wait(tag, off):
        a.label(f"K2_W{tag}")
        a(f"ds_read_b32 v{FV}, v{aEI} offset:{off}")
        a("s_waitcnt lgkmcnt(0)")
        a(f"v_readfirstlane_b32 s66, v{FV}")
        a("s_nop 0")
        a("s_cmp_eq_u32 s66, -1")
        a(f"s_cbranch_scc1 K2_X{tag}")
        a("s_sleep 1")
        a(f"s_branch K2_W{tag}")
        a.label(f"K2_X{tag}")
    if LATE:
        a("s_max_i32 s90, s90, 1")
        a("s_min_u32 s90, s90, s53")
        a("s_min_u32 s67, s53, 2")
        a("s_cmp_ge_u32 s25, s67")
        a("s_waitcnt vmcnt(0)")
        a("s_cbranch_scc1 K2_NF")
        a(f"ds_write_b32 v166, v{MG}")
        a.label("K2_NF")
        for m in range(4): a(f"ds_read_b128 {q4(AP[m])}, v{aAP+m}")
        a("s_waitcnt lgkmcnt(0)")
        a("\n".join(p_dma()))
        a("s_cmp_lt_u32 s25, 2")
        a("s_cbranch_scc1 K2_F2")
        a("\n".join(e_dma()))
        a.label("K2_F2")
        for i in range(4): a(f"v_mov_b32 v{HQ+i}, 0")
        a("s_cmp_eq_u32 s53, 0")
        a("s_cbranch_scc1 K2_EXIT")
        flag_wait("A", 0)
        a(f"ds_read_b128 {q4(AE)}, v{aAE}")
        stp(6)
        stc(12)
        if opt.get("prio", 1): a("s_setprio 3")
        a("s_sub_u32 s68, 0, s25")
        a("s_and_b32 s68, s68, 3")
        a("s_lshl_b32 s67, s68, 7")
        a("s_lshl_b32 s69, s68, 10")
        a(f"v_subrev_u32 v{aAO}, s69, v{aAO}")
        a(f"v_subrev_u32 v{aAE}, s69, v{aAE}")
        a(f"v_subrev_u32 v{aIDX}, s67, v{aIDX}")
        a(f"v_subrev_u32 v{aEI}, s67, v{aEI}")
        a("s_mov_b64 exec, s[62:63]")
        a(f"v_subrev_u32 v{aS1}, s69, v{aS1}")
        a("s_mov_b64 exec, s[64:65]")
        a(f"v_subrev_u32 v{aS2}, s69, v{aS2}")
        a("s_mov_b64 exec, -1")
        a("s_waitcnt lgkmcnt(0)")
        a("\n".join(mf_tile(0)))
        a("s_nop 8")
        a("s_cmp_eq_u32 s68, 1")
        a("s_cbranch_scc1 K2_U1")
        a("s_cmp_eq_u32 s68, 2")
        a("s_cbranch_scc1 K2_U2")
        a("s_cmp_eq_u32 s68, 3")
        a("s_cbranch_scc1 K2_U3")
    else:
        a("s_min_u32 s67, s53, 1")
        a("s_cmp_ge_u32 s25, s67")
        a("s_waitcnt vmcnt(0)")
        a("s_cbranch_scc1 K2_NF")
        a(f"ds_write_b32 v166, v{MG}")
        a(f"ds_read_b32 v{EI}, v{aEI} offset:512")
        a.label("K2_NF")
        for m in range(4): a(f"ds_read_b128 {q4(AP[m])}, v{aAP+m}")
        a("s_waitcnt lgkmcnt(0)")
        a("\n".join(p_dma()))
        a("s_sub_u32 s67, s25, 1")
        a("s_cmp_ge_u32 s67, 2")
        a("s_cbranch_scc1 K2_F2")
        a("\n".join(e_dma()))
        a.label("K2_F2")
        for i in range(4): a(f"v_mov_b32 v{HQ+i}, 0")
        a("s_cmp_eq_u32 s53, 0")
        a("s_cbranch_scc1 K2_EXIT")
        def flag_wait(tag, off):
            a.label(f"K2_W{tag}")
            a(f"ds_read_b32 v{FV}, v{aEI} offset:{off}")
            a("s_waitcnt lgkmcnt(0)")
            a(f"v_readfirstlane_b32 s66, v{FV}")
            a("s_nop 0")
            a("s_cmp_eq_u32 s66, -1")
            a(f"s_cbranch_scc1 K2_X{tag}")
            a("s_sleep 1")
            a(f"s_branch K2_W{tag}")
            a.label(f"K2_X{tag}")
        flag_wait("A", 0)
        a(f"ds_read_b128 {q4(AE)}, v{aAE}")
        stp(6)
        stc(12)
        if opt.get("prio", 1): a("s_setprio 3")
        a("s_waitcnt lgkmcnt(0)")
        a("\n".join(mf_tile(0)))
        a("s_nop 10")
        ex0 = {1: [f"ds_read_b32 v{IX[k]}, v{aIDX} offset:{256+k*32}" for k in range(4)]}
        ex1 = {1: [f"ds_read_b64_tr_b16 {pr(S)}, v{aS1}", f"ds_read_b64_tr_b16 {pr(S+2)}, v{aS2}", f"ds_read_b128 {q4(AO)}, v{aAO} offset:1024"]}
        a("\n".join(tile(0, mf_tile(1), ex0, [], []) + tile(1, [], ex1, [], ["s_waitcnt lgkmcnt(0)"])))
        a("s_mov_b32 s55, 1")
        a("s_cmp_eq_u32 s53, 1")
        a("s_cbranch_scc1 K2_EXIT")
        a("s_cmp_ge_u32 s67, 2")
        a("s_cselect_b32 s66, 64, s25")
        a("s_cmp_ge_u32 s66, s53")
        a("s_waitcnt vmcnt(0)")
        a("s_cbranch_scc1 K2_NF2")
        a(f"ds_write_b32 v166, v{MG}")
        a.label("K2_NF2")
        for m in range(4): a(f"ds_read_b128 {q4(AP[m])}, v{aAP+m}")
        a("s_waitcnt lgkmcnt(0)")
        a("\n".join(p_dma()))
        a("s_cmp_lt_u32 s67, 2")
        a("s_cbranch_scc1 K2_F3")
        a("\n".join(e_dma()))
        a.label("K2_F3")
        flag_wait("B", 128)
        a(f"ds_read_b128 {q4(AE)}, v{aAE} offset:1024")
        a("s_sub_u32 s68, 1, s25")
        a("s_and_b32 s68, s68, 3")
        a("s_sub_u32 s69, 1, s68")
        a("s_lshl_b32 s67, s69, 7")
        a("s_lshl_b32 s69, s69, 10")
        a(f"v_add_u32 v{aAO}, s69, v{aAO}")
        a(f"v_add_u32 v{aAE}, s69, v{aAE}")
        a(f"v_add_u32 v{aIDX}, s67, v{aIDX}")
        a(f"v_add_u32 v{aEI}, s67, v{aEI}")
        a("s_mov_b64 exec, s[62:63]")
        a(f"v_add_u32 v{aS1}, s69, v{aS1}")
        a("s_mov_b64 exec, s[64:65]")
        a(f"v_add_u32 v{aS2}, s69, v{aS2}")
        a("s_mov_b64 exec, -1")
        a("s_waitcnt lgkmcnt(0)")
        a("\n".join(mf_tile(0)))
        a("s_nop 8")
        a("s_cmp_eq_u32 s68, 1")
        a("s_cbranch_scc1 K2_U1")
        a("s_cmp_eq_u32 s68, 2")
        a("s_cbranch_scc1 K2_U2")
        a("s_cmp_eq_u32 s68, 3")
        a("s_cbranch_scc1 K2_U3")
    a(".p2align 6")
    loop_start = len(a.lines)
    for u in range(4):
        a.label(f"K2_U{u}")
        if LATE:
            upd = []
            if u == 3:
                upd = [f"v_add_u32 v{aAO}, 4096, v{aAO}", f"v_add_u32 v{aAE}, 4096, v{aAE}", f"v_add_u32 v{aIDX}, 512, v{aIDX}", f"v_add_u32 v{aEI}, 512, v{aEI}",
                       "s_mov_b64 exec, s[62:63]", f"v_add_u32 v{aS1}, 4096, v{aS1}", "s_mov_b64 exec, s[64:65]", f"v_add_u32 v{aS2}, 4096, v{aS2}", "s_mov_b64 exec, -1"]
            mid0 = [f"ds_read_b64_tr_b16 {pr(S)}, v{aS1} offset:{u*1024}", f"ds_read_b64_tr_b16 {pr(S+2)}, v{aS2} offset:{u*1024}",
                    f"ds_read_b128 {q4(AO)}, v{aAO} offset:{(u+1)*1024}"]
            t0 = tile(0, mf_tile(1) + [SEGSUM], {}, mid0, [])
            ex1 = {}
            ex1[1] = [f"ds_read_b32 v{FV}, v{aEI} offset:{(u+1)*128}"] + [f"ds_read_b32 v{IX[k]}, v{aIDX} offset:{(u+2)*128+k*32}" for k in range(4)]
            if u == 0: ex1[1] += [f"ds_read_b32 v{EI}, v{aEI} offset:512"]
            ex1[12] = ["s_waitcnt lgkmcnt(0)", f"v_readfirstlane_b32 s66, v{FV}"]
            mid = ["s_cmp_eq_u32 s66, -1", f"s_waitcnt vmcnt({1 if u == 1 else 0})"]
            mid += [f"ds_read_b128 {q4(AP[m])}, v{aAP+m}" for m in range(4)]
            mid += [f"s_cbranch_scc0 K2_FW{u}", f"K2_FR{u}:"]
            mid += [f"ds_read_b128 {q4(AE)}, v{aAE} offset:{(u+1)*1024}"]
            if opt.get("gstamps"): mid += ["s_memrealtime s[96:97]", "s_add_u32 m0, s55, 16"]
            t1 = tile(1, [], ex1, mid, [])
            mf = mf_tile(0)
            post = ["s_add_u32 s66, s55, 2", "s_cmp_ge_u32 s66, s53", "s_waitcnt lgkmcnt(0)"]
            if opt.get("gstamps"): post += ["v_writelane_b32 v0, s96, m0"]
            post += [f"s_cbranch_scc1 K2_ND{u}"]
            if u == 2: post += [f"ds_write_b32 v{aEI}, v{MG} offset:512"]
            for k in range(4):
                post += [f"s_add_u32 m0, s57, {k*1024}", mf[k], f"buffer_load_dwordx4 {pr(IX[k])}, s[32:35], s58 idxen offen lds"]
            post += [f"K2_NR{u}:"]
            if u == 0: post += e_dma()
            post += upd
            nst = 1 + (6 if u == 0 else 0) + len(upd) + 3 + (1 if u == 3 else 0) + 1
            if nst - 1 < 12: post += [f"s_nop {12 - (nst - 1) - 1}"]
            a("\n".join(t0 + t1 + post))
        else:
            ex0 = {}
            ex0[1] = [f"ds_read_b32 v{FV}, v{aEI} offset:{(u+1)*128}"] + [f"ds_read_b32 v{IX[k]}, v{aIDX} offset:{(u+2)*128+k*32}" for k in range(4)]
            if u == 0: ex0[1] += [f"ds_read_b32 v{EI}, v{aEI} offset:512"]
            ex0[12] = ["s_waitcnt lgkmcnt(0)", f"v_readfirstlane_b32 s66, v{FV}"]
            mid = ["s_cmp_eq_u32 s66, -1", f"s_waitcnt vmcnt({1 if u == 1 else 0})"]
            mid += [f"ds_read_b128 {q4(AP[m])}, v{aAP+m}" for m in range(4)]
            mid += [f"ds_read_b128 {q4(AO)}, v{aAO} offset:{(u+1)*1024}"]
            mid += [f"s_cbranch_scc0 K2_FW{u}", f"K2_FR{u}:"]
            mid += [f"ds_read_b128 {q4(AE)}, v{aAE} offset:{(u+1)*1024}"]
            exr = ["s_add_u32 s66, s55, 2", "s_cmp_ge_u32 s66, s53", "s_waitcnt lgkmcnt(0)", f"s_cbranch_scc1 K2_ND{u}"]
            if u == 2: exr += [f"ds_write_b32 v{aEI}, v{MG} offset:512"]
            exr += p_dma() + [f"K2_ND{u}:"]
            if u == 0: exr += e_dma()
            t0 = tile(0, mf_tile(1) + [SEGSUM], ex0, mid, exr)
            ex1 = {}
            ex1[1] = [f"ds_read_b64_tr_b16 {pr(S)}, v{aS1} offset:{u*1024}", f"ds_read_b64_tr_b16 {pr(S+2)}, v{aS2} offset:{u*1024}"]
            mid1 = []
            if u == 3:
                mid1 = [f"v_add_u32 v{aAO}, 4096, v{aAO}", f"v_add_u32 v{aAE}, 4096, v{aAE}", f"v_add_u32 v{aIDX}, 512, v{aIDX}", f"v_add_u32 v{aEI}, 512, v{aEI}",
                        "s_mov_b64 exec, s[62:63]", f"v_add_u32 v{aS1}, 4096, v{aS1}", "s_mov_b64 exec, s[64:65]", f"v_add_u32 v{aS2}, 4096, v{aS2}", "s_mov_b64 exec, -1"]
            exr1 = ["s_waitcnt lgkmcnt(0)"]
            if opt.get("gstamps"):
                mid1 = mid1 + ["s_memrealtime s[96:97]", "s_add_u32 m0, s55, 16"]
                exr1 += ["v_writelane_b32 v0, s96, m0"]
            t1 = tile(1, mf_tile(0), ex1, mid1, exr1)
            a("\n".join(t0 + t1))
        a("s_add_u32 s55, s55, 1")
        a("s_cmp_ge_u32 s55, s90")
        a(f"s_cbranch_scc1 K2_TH{u}")
        if u == 3: a("s_branch K2_U0")
    loop_end = len(a.lines)
    for u in range(4):
        a.label(f"K2_TH{u}")
        a(f"s_mov_b32 s92, {(u+1)&3}")
        if u < 3: a("s_branch K2_TH")
    a.label("K2_TH")
    a("s_cmp_ge_u32 s55, s53")
    a("s_cbranch_scc1 K2_EXIT")
    a("s_add_u32 s91, s91, 1")
    a("s_cmp_eq_u32 s91, 1")
    a("s_cbranch_scc0 K2_TH_2")
    if opt.get("prio", 1): a("s_setprio 2")
    a(f"s_sub_u32 s90, s53, {T2}")
    a("s_branch K2_TH_R")
    a.label("K2_TH_2")
    a("s_cmp_eq_u32 s91, 2")
    a("s_cbranch_scc0 K2_TH_3")
    if opt.get("prio", 1): a("s_setprio 1")
    a(f"s_sub_u32 s90, s53, {T1_}")
    a("s_branch K2_TH_R")
    a.label("K2_TH_3")
    if opt.get("prio", 1): a("s_setprio 0")
    a("s_mov_b32 s90, s53")
    a.label("K2_TH_R")
    a("s_max_i32 s90, s90, 0")
    a("s_cmp_eq_u32 s92, 1")
    a("s_cbranch_scc1 K2_U1")
    a("s_cmp_lg_u32 s60, 0")
    a("s_cbranch_scc1 K2_TH_J")
    a("s_mov_b32 s60, 1")
    a("\n".join(w2_pre(L16)))
    a.label("K2_TH_J")
    a("s_cmp_eq_u32 s92, 2")
    a("s_cbranch_scc1 K2_U2")
    a("s_cmp_eq_u32 s92, 3")
    a("s_cbranch_scc1 K2_U3")
    a("s_branch K2_U0")
    if LATE:
        for u in range(4):
            a.label(f"K2_ND{u}")
            a("\n".join(mf_tile(0)))
            a(f"s_branch K2_NR{u}")
    for u in range(4):
        a.label(f"K2_FW{u}")
        a("s_add_u32 s66, s55, 1")
        a("s_cmp_ge_u32 s66, s53")
        a(f"s_cbranch_scc1 K2_FR{u}")
        a(f"ds_read_b32 v{FV}, v{aEI} offset:{(u+1)*128}")
        a("s_waitcnt lgkmcnt(0)")
        a(f"v_readfirstlane_b32 s66, v{FV}")
        a("s_nop 0")
        a("s_cmp_eq_u32 s66, -1")
        a(f"s_cbranch_scc1 K2_FR{u}")
        a("s_sleep 1")
        a(f"s_branch K2_FW{u}")
    a.label("K2_EXIT")
    a(SEGSUM)
    stp(7)
    stc(13)
    if opt.get("stamps"): a("v_writelane_b32 v0, s53, 14")
    a("s_waitcnt vmcnt(0)")
    a(f"v_lshrrev_b32 v1, 4, v{L16}")
    a("s_cmp_lg_u32 s60, 0")
    a("s_cbranch_scc1 K2_X1")
    a("\n".join(w2_pre(L16)))
    a.label("K2_X1")
    a("v_subrev_u32 v2, s71, v1")
    a("v_and_b32 v2, 15, v2")
    a(f"v_mul_u32_u24 v2, {HSTR}, v2")
    a("v_and_b32 v3, 16, v1")
    a("v_lshl_add_u32 v2, v3, 2, v2")
    a("v_lshrrev_b32 v3, 5, v1")
    a("v_lshl_add_u32 v3, v3, 3, s57")
    a("v_add_u32 v2, v2, v3")
    a("s_mov_b32 s66, 0x4e800000")
    a("s_mov_b32 s67, 0x4e800000")
    a(f"v_pk_mul_f32 {pr(CHK)}, {pr(CHK)}, s[66:67]")
    a("v_mov_b32 v4, 0x207")
    a(f"v_mov_b32 v5, {FLAG}")
    a("v_mov_b32 v7, 1")
    a("s_waitcnt vmcnt(0)")
    for k in range(8):
        a(f"v_cvt_pk_bf16_f32 v{EX+k}, v{ACC+2*k}, v{ACC+2*k+1}")
        if k & 1: a(f"ds_write_b64 v2, {pr(EX+k-1)} offset:{16*(k>>1)}")
    for k in range(8):
        a(f"v_pk_fma_f32 {pr(CHK)}, {pr(ACC+2*k)}, 0, {pr(CHK)} op_sel_hi:[1,0,1]")
    a(f"v_add_f32 v{CHK}, v{CHK}, v{CHK+1}")
    a(f"v_cmpx_class_f32 vcc, v{CHK}, v4")
    a("ds_write_b32 v5, v7")
    a("s_mov_b64 exec, -1")
    a.label("K2_FIN")
    WL = 16
    a("v_lshlrev_b32 v7, 4, v1")
    srd(a, 48, "s18", "s19", 256)
    for sidx in range(NW2, 8):
        a(f"buffer_load_dwordx4 {q4(WL+4*(sidx-NW2))}, v7, s[40:43], s74 offen offset:{(sidx & 3)*1024}")
    a("v_lshrrev_b32 v8, 4, v1")
    a("v_lshlrev_b32 v9, 3, v8")
    a("s_lshl_b32 s68, s24, 5")
    a("buffer_load_dwordx2 v[10:11], v9, s[48:51], s68 offen")
    a("v_and_b32 v12, 15, v1")
    a(f"v_mul_u32_u24 v2, {HSTR}, v12")
    a("v_lshl_add_u32 v2, v8, 4, v2")
    a(f"s_mov_b32 s78, {CNT}")
    a("v_lshl_add_u32 v4, v12, 2, s78")
    a("v_lshl_add_u32 v13, v12, 16, v9")
    a(f"v_mov_b32 v3, {KILL:#x}")
    a("v_cmp_gt_u32 vcc, 4, v12")
    a("s_lshl_b32 s69, s2, 8")
    a("s_add_u32 s69, s69, s68")
    a("v_cndmask_b32 v14, v13, v3, vcc")
    a("s_waitcnt lgkmcnt(0)")
    stp(8)
    a("s_barrier")
    stp(9)
    HB = 48
    def hread(sidx):
        for mt in range(3):
            r = HB + (sidx & 3) * 12 + mt * 4
            a(f"ds_read_b128 {q4(r)}, v2 offset:{(4*mt + (sidx >> 1))*4096 + (sidx & 1)*64}")
    a(f"ds_read_b32 v6, v4 offset:{FLAG - CNT}")
    a("s_cmp_ge_u32 s24, 8")
    a("s_cbranch_scc1 K2_NOH")
    hread(0); hread(1); hread(2)
    for mt in range(3): a(f"ds_read_b32 v{112+mt}, v4 offset:{mt*48}")
    a(f"s_add_u32 s72, s69, {12 << 16}")
    a(f"s_add_u32 s75, s69, {24 << 16}")
    a(f"s_mov_b32 s76, {NEGLN2:#x}")
    a("s_waitcnt lgkmcnt(12)")
    a("s_branch K2_NOH2")
    a.label("K2_NOH")
    a("s_waitcnt lgkmcnt(0)")
    a.label("K2_NOH2")
    a("v_readfirstlane_b32 s82, v6")
    a("s_nop 0")
    a("s_andn2_b32 s82, s82, s70")
    a("s_cmp_lg_u32 s82, 0")
    a("s_cbranch_scc1 K2_REDO")
    a("s_cmp_ge_u32 s24, 8")
    a("s_cbranch_scc1 K2_END2")
    OD = 96
    for sidx in range(8):
        n = {0: 9, 1: 9, 2: 9, 3: 6, 4: 6, 5: 6, 6: 3, 7: 0}[sidx]
        wv = f" vmcnt({8 - sidx})" if sidx >= NW2 else ""
        a(f"s_waitcnt{wv} lgkmcnt({n})")
        wf = WP + 4*sidx if sidx < NW2 else WL + 4*(sidx - NW2)
        for mt in range(3):
            r = HB + (sidx & 3) * 12 + mt * 4
            c = "0" if sidx == 0 else q4(OD + 4*mt)
            a(f"v_mfma_f32_16x16x32_bf16 {q4(OD+4*mt)}, {q4(wf)}, {q4(r)}, {c}")
        if sidx + 3 < 8: hread(sidx + 3)
    a("s_waitcnt vmcnt(0)")
    a("v_lshlrev_b32 v116, 16, v10")
    a("v_and_b32 v117, 0xffff0000, v10")
    a("v_lshlrev_b32 v118, 16, v11")
    a("v_and_b32 v119, 0xffff0000, v11")
    for mt in range(3): a(f"v_cvt_f32_u32 v{112+mt}, v{112+mt}")
    for mt in range(3):
        for i in range(4):
            a(f"v_mul_f32 v{120+4*mt+i}, v{112+mt}, v{116+i}")
    for mt in range(2):
        for i in range(4):
            a(f"v_add_f32_dpp v{OD+4*mt+i}, v{OD+4*mt+4+i}, v{OD+4*mt+i} row_shr:12 row_mask:0xf bank_mask:0xf bound_ctrl:0")
    for mt in (2, 0, 1):
        for i in range(4):
            a(f"v_fma_f32 v{120+4*mt+i}, v{OD+4*mt+i}, s76, v{120+4*mt+i}")
        a(f"v_cvt_pk_bf16_f32 v{132+2*mt}, v{120+4*mt}, v{121+4*mt}")
        a(f"v_cvt_pk_bf16_f32 v{133+2*mt}, v{122+4*mt}, v{123+4*mt}")
        a(f"buffer_store_dwordx2 {pr(132+2*mt)}, v{13 if mt == 0 else 14}, s[44:47], s{(69,72,75)[mt]} offen")
    stp(10)
    if opt.get("stamps"): a("s_waitcnt vmcnt(0)")
    stp(11)
    a.label("K2_END2")
    stamp_out(a, opt, 22, 0xF80000, 24, 0, tmpv=2)
    if opt.get('gstamps'): stamp_out2(a, opt, 22, 0x1000000, 24, 0, tmpv=2)
    a.label("K2_END")
    a("s_endpgm")
    a.label("K2_CX")
    a("s_mov_b32 s81, 1")
    count([4])
    decode([4])
    a("v_cmp_ne_u32 vcc, -1, v21")
    a("s_nop 1")
    a("s_cbranch_vccz K2_C1")
    a("s_mov_b32 s81, 2")
    count([5, 6, 7])
    decode([5, 6, 7])
    a("v_cmpx_eq_u32 vcc, -2, v23")
    a("ds_write_b32 v111, v114")
    a("s_mov_b64 exec, -1")
    a("s_branch K2_C1")
    a.label("K2_SX")
    a(f"ds_bpermute_b32 v{SB+4}, v{RA+4}, v108")
    a("s_waitcnt lgkmcnt(0)")
    scatter([4])
    a("s_cmp_eq_u32 s81, 1")
    a("s_cbranch_scc1 K2_S1")
    for k in (5, 6, 7): a(f"ds_bpermute_b32 v{SB+k}, v{RA+k}, v108")
    a("s_waitcnt lgkmcnt(0)")
    scatter([5, 6, 7])
    a("s_branch K2_S1")
    a.label("K2_REDO")
    a("s_setprio 0")
    a("s_mov_b32 s70, -1")
    a("s_lshl_b32 s66, s24, 6")
    a("v_add_u32 v0, s66, v1")
    a("s_waitcnt vmcnt(0) lgkmcnt(0)")
    a("s_barrier")
    a("s_branch K2_TOP")
    a.label("K2_BAD")
    a("v_mov_b32 v108, -1")
    a("v_mov_b32 v109, -1")
    a("ds_write_b64 v111, v[108:109] offset:16")
    a("s_waitcnt vmcnt(0) lgkmcnt(0)")
    a("s_barrier")
    a.label("K2_SLOW")
    a("s_setprio 0")
    a("s_mov_b32 s70, -1")
    a("s_waitcnt vmcnt(0) lgkmcnt(0)")
    a("s_barrier")
    a("s_lshl_b32 s66, s24, 10")
    a(f"s_add_u32 s66, s66, {OH}")
    a("v_lshl_add_u32 v2, v1, 4, s66")
    for i in range(4): a(f"v_mov_b32 v{4+i}, 0")
    for i in range(4): a(f"ds_write_b128 v2, v[4:7] offset:{i*12288}")
    a("v_lshlrev_b32 v12, 2, v1")
    a(f"v_add_u32 v3, {CNT}, v12")
    a("ds_write_b32 v3, v4")
    srd(a, 84, "s8", "s9", E * 4)
    srd(a, 88, "s10", "s11", E * 4)
    a("v_and_b32 v8, 31, v1")
    a("v_lshlrev_b32 v8, 4, v8")
    a("v_lshrrev_b32 v9, 5, v1")
    a("v_lshl_add_u32 v8, v9, 10, v8")
    a("s_lshl_b32 s72, s25, 11")
    a(f"s_add_u32 s66, s72, {WCF_OFF - CELL_OFF}")
    a("buffer_load_dwordx4 v[16:19], v8, s[40:43], s66 offen")
    a("buffer_load_dwordx4 v[20:23], v8, s[40:43], s66 offen offset:512")
    a(f"s_add_u32 s72, s72, {EIM + 8192}")
    a("v_add_u32 v8, s72, v8")
    a("v_lshlrev_b32 v7, 4, v1")
    a("\n".join(w2_pre(7)))
    srd(a, 92, "s22", "s23", N * 512)
    a("v_lshlrev_b32 v10, 1, v1")
    a("v_add_u32 v10, s58, v10")
    a("v_lshlrev_b32 v11, 1, v10")
    a(f"v_add_u32 v11, {OH}, v11")
    a("v_mov_b32 v13, 1")
    a("s_waitcnt vmcnt(0)")
    for k in range(8):
        a(f"v_lshlrev_b32 v{24+2*k}, 16, v{16+k}")
        a(f"v_and_b32 v{25+2*k}, 0xffff0000, v{16+k}")
    a("s_waitcnt lgkmcnt(0)")
    a("s_barrier")
    a("s_mov_b32 s66, s26")
    a.label("K2_SL_BLK")
    a("s_lshl_b32 s67, s66, 8")
    a("buffer_load_dword v40, v12, s[88:91], s67 offen")
    a("buffer_load_dword v41, v12, s[84:87], s67 offen")
    a("s_waitcnt vmcnt(0)")
    a("v_and_b32 v42, 255, v40")
    a("v_cmp_eq_u32 vcc, s2, v42")
    a("s_nop 1")
    a("s_mov_b64 s[68:69], vcc")
    a.label("K2_SL_E")
    a("s_cmp_eq_u64 s[68:69], 0")
    a("s_cbranch_scc1 K2_SL_NB")
    a("s_ff1_i32_b64 s72, s[68:69]")
    a("s_bitset0_b64 s[68:69], s72")
    a("v_readlane_b32 s52, v40, s72")
    a("v_readlane_b32 s53, v41, s72")
    a("s_lshl_b32 s75, s66, 6")
    a("s_add_u32 s75, s75, s72")
    a("s_lshl_b32 s75, s75, 5")
    a("s_load_dwordx8 s[76:83], s[6:7], s75")
    a("s_lshl_b32 s53, s53, 9")
    a("s_lshr_b32 s52, s52, 8")
    a("s_cmp_ge_u32 s52, 16")
    a("s_cselect_b32 s75, 16384, 0")
    a("s_cmp_ge_u32 s52, 28")
    a("s_cselect_b32 s75, 32768, s75")
    a("s_bfe_u32 s55, s52, 0x10003")
    a("s_lshl_b32 s55, s55, 9")
    a("s_add_u32 s75, s75, s55")
    a("s_and_b32 s55, s52, 7")
    a("s_lshl_b32 s55, s55, 1")
    a("s_add_u32 s75, s75, s55")
    a("v_add_u32 v45, s75, v8")
    a("buffer_load_ushort v43, v10, s[92:95], s53 offen")
    a("ds_read_u16 v44, v45")
    a("s_waitcnt vmcnt(0) lgkmcnt(0)")
    a("v_lshlrev_b32 v43, 16, v43")
    a("v_lshlrev_b32 v44, 16, v44")
    a("v_add_f32 v43, v43, v44")
    for k in range(8):
        a(f"s_lshl_b32 s53, s{76+k}, 16")
        a(f"v_fmac_f32 v43, s53, v{24+2*k}")
        a(f"s_and_b32 s53, s{76+k}, 0xffff0000")
        a(f"v_fmac_f32 v43, s53, v{25+2*k}")
    a("v_exp_f32 v44, v43")
    a("s_lshl_b32 s53, s52, 10")
    a("v_add_f32 v44, 1.0, v44")
    a("v_rcp_f32 v44, v44")
    a("v_add_u32 v45, s53, v11")
    a("v_mul_f32 v43, v43, v44")
    a("ds_add_f32 v45, v43")
    a("s_cmp_lg_u32 s25, 0")
    a("s_cbranch_scc1 K2_SL_E")
    a("s_lshl_b32 s53, s52, 2")
    a(f"s_add_u32 s53, s53, {CNT}")
    a("v_mov_b32 v45, s53")
    a("s_mov_b64 exec, 1")
    a("ds_add_u32 v45, v13")
    a("s_mov_b64 exec, -1")
    a("s_branch K2_SL_E")
    a.label("K2_SL_NB")
    a("s_add_u32 s66, s66, 3")
    a(f"s_cmp_lt_u32 s66, {E // 64}")
    a("s_cbranch_scc1 K2_SL_BLK")
    a("s_waitcnt lgkmcnt(0)")
    a("s_barrier")
    a("v_and_b32 v2, 31, v1")
    a("v_lshrrev_b32 v3, 5, v1")
    a("s_mov_b32 s66, 0")
    a.label("K2_SL_CV")
    a("v_add_u32 v4, s66, v3")
    a("v_add_u32 v5, s71, v4")
    a("s_cmp_lt_u32 s66, 4")
    a("s_cselect_b32 s67, s26, 0")
    a("s_cmp_lg_u32 s67, 0")
    a("s_cbranch_scc0 K2_SL_NZ")
    a("v_mov_b32 v5, 47")
    a.label("K2_SL_NZ")
    a("v_lshlrev_b32 v5, 10, v5")
    a("v_lshl_add_u32 v5, v2, 3, v5")
    a("s_lshl_b32 s67, s58, 1")
    a(f"s_add_u32 s67, s67, {OH}")
    a("v_add_u32 v5, s67, v5")
    a("ds_read_b64 v[6:7], v5")
    a(f"v_mul_u32_u24 v4, {HSTR}, v4")
    a("v_lshl_add_u32 v4, v2, 2, v4")
    a("v_add_u32 v4, s57, v4")
    a("s_waitcnt lgkmcnt(0)")
    a("v_cvt_pk_bf16_f32 v6, v6, v7")
    a("ds_write_b32 v4, v6")
    a("s_add_u32 s66, s66, 2")
    a("s_cmp_lt_u32 s66, 16")
    a("s_cbranch_scc1 K2_SL_CV")
    a("s_branch K2_FIN")
    a.loop = (loop_start, loop_end)
    return a, NV2, (102 if opt.get('stamps') else 96)
```

```python
from asmlib import *

N = 10000; E = 320000
P_OFF = 0
CELL_OFF = 0xA00000
W2F_OFF = 0xE00000
W1BF_OFF = 0xE10000
WCF_OFF = 0xE20000
FRAG_BYTES = 0x22000
NSORT = 128
CHUNK = 2500
GROWS = 64
NGEMM = 157
NSORTWG = 64
NPREP = 17
K1_WGS = NGEMM + NSORTWG + NPREP
K1_BLOCK = 1024
K1_LDS = 65536 + GROWS * 256
NEGLOG2E = 0xBFB8AA3B
OVF = 0xFFFFFFFE

def srd(a, r, lo, hi, size):
    a(f"s_mov_b32 s{r}, {lo}")
    a(f"s_mov_b32 s{r+1}, {hi}")
    a(f"s_mov_b32 s{r+2}, {size}")
    a(f"s_mov_b32 s{r+3}, 0x00020000")

def srd_ws(a, r, wslo, off, size):
    a(f"s_add_u32 s{r}, s{wslo}, {off}")
    a(f"s_addc_u32 s{r+1}, s{wslo+1}, 0")
    a(f"s_mov_b32 s{r+2}, {size}")
    a(f"s_mov_b32 s{r+3}, 0x00020000")

def stamp(a, opt, idx, vreg, sreg=96):
    if not opt.get("stamps"): return
    a(f"s_memrealtime s[{sreg}:{sreg+1}]")
    a("s_waitcnt lgkmcnt(0)")
    a(f"v_writelane_b32 v{vreg}, s{sreg}, {idx}")
def stamp_out(a, opt, wslo, off, wavereg, vreg, sreg=96, tmpv=151):
    if not opt.get("stamps"): return
    a(f"s_add_u32 s{sreg}, s{wslo}, {off}")
    a(f"s_addc_u32 s{sreg+1}, s{wslo+1}, 0")
    a(f"s_mov_b32 s{sreg+2}, 0x80000")
    a(f"s_mov_b32 s{sreg+3}, 0x00020000")
    a(f"s_lshl_b32 s100, s2, 4")
    a(f"s_add_u32 s100, s100, s{wavereg}")
    a(f"s_lshl_b32 s100, s100, 6")
    a(f"v_mbcnt_lo_u32_b32 v{tmpv}, -1, 0")
    a(f"v_lshlrev_b32 v{tmpv}, 2, v{tmpv}")
    a("s_mov_b64 exec, 0xffff")
    a(f"buffer_store_dword v{vreg}, v{tmpv}, s[{sreg}:{sreg+3}], s100 offen")
    a("s_mov_b64 exec, -1")
def stamp_out2(a, opt, wslo, off, wavereg, vreg, sreg=96, tmpv=151):
    a(f"s_add_u32 s{sreg}, s{wslo}, {off}")
    a(f"s_addc_u32 s{sreg+1}, s{wslo+1}, 0")
    a(f"s_lshl_b32 s100, s100, 1")
    a("s_mov_b64 exec, 0xffffffff")
    a(f"buffer_store_dword v{vreg}, v{tmpv}, s[{sreg}:{sreg+3}], s100 offen")
    a("s_mov_b64 exec, -1")

def gen_k1(opt=None):
    opt = opt or {}
    SV = 120
    SFD = {0: "", 1: " sc1", 2: " sc0 sc1", 3: " nt", 4: " nt sc1"}
    SF = SFD[opt.get("sf", 1)]
    SFG = SFD[opt.get("sfg", 1)]
    NT = " nt" if opt.get("knt", 1) else ""
    NTX = " nt" if opt.get("kntx", 1) else ""
    a = Asm()
    a.label("mpnn_pre_kernel")
    a(f"s_cmp_ge_u32 s2, {K1_WGS}")
    a("s_cbranch_scc1 K1_END")
    if opt.get("stamps"): a(f"v_mov_b32 v{SV}, 0")
    stamp(a, opt, 0, SV)
    a("s_load_dwordx16 s[4:19], s[0:1], 0")
    a("s_load_dwordx2 s[20:21], s[0:1], 80")
    a("v_lshrrev_b32 v1, 6, v0")
    a("v_and_b32 v2, 63, v0")
    a("v_readfirstlane_b32 s22, v1")
    a(f"s_cmp_ge_u32 s2, {NGEMM}")
    a("s_cbranch_scc1 K1_SORT")
    XI = 65536
    a("v_lshrrev_b32 v10, 4, v0")
    a("v_xor_b32 v11, v10, v2")
    a("v_and_b32 v11, 15, v11")
    a("v_lshlrev_b32 v11, 4, v11")
    a("v_lshl_add_u32 v8, v10, 8, v11")
    a("v_lshrrev_b32 v5, 5, v2")
    a("v_and_b32 v6, 31, v2")
    a("v_lshlrev_b32 v7, 2, v5")
    a("v_xor_b32 v7, v7, v6")
    a("v_lshlrev_b32 v7, 4, v7")
    a("v_lshl_add_u32 v3, v5, 9, v7")
    a("v_xor_b32 v4, 0x80, v3")
    a("s_lshl_b32 s45, s22, 11")
    a("s_add_u32 s47, s45, 32768")
    a(f"s_mul_i32 s48, s2, {GROWS*256}")
    a("s_lshl_b32 s49, s22, 10")
    a(f"s_add_u32 m0, s49, {XI}")
    a("s_waitcnt lgkmcnt(0)")
    srd(a, 32, "s4", "s5", N * 256)
    srd(a, 28, "s12", "s13", 272 * 512)
    if opt.get("wwu", 0):
        a("s_cmp_lg_u32 s22, 0")
        a("s_cbranch_scc1 K1_NWU")
        a("s_bfe_u32 s46, s2, 0x40003")
        a("s_lshl_b32 s46, s46, 12")
        a("v_lshlrev_b32 v12, 7, v6")
        a("buffer_load_dword v14, v12, s[28:31], s46 offen")
        a.label("K1_NWU")
    a(f"buffer_load_dwordx4 v8, s[32:35], s48 offen{NTX} lds")
    a("s_mov_b32 m0, s45")
    a("s_cmp_ge_u32 s22, 8")
    for k in range(2):
        a(f"buffer_load_dwordx4 v{3 + (k & 1)}, s[28:31], s45 offen offset:{k*1024} lds")
    a("s_mov_b32 m0, s47")
    a("s_nop 0")
    for k in range(2):
        a(f"buffer_load_dwordx4 v{3 + (k & 1)}, s[28:31], s47 offen offset:{k*1024} lds")
    a("s_cbranch_scc0 K1_GC")
    a("s_waitcnt vmcnt(2)")
    a("s_barrier")
    a("s_waitcnt vmcnt(0)")
    a("s_barrier")
    a("s_endpgm")
    a.label("K1_GC")
    a("s_lshr_b32 s26, s22, 2")
    a("s_and_b32 s27, s22, 3")
    a("s_lshl_b32 s50, s27, 7")
    srd(a, 36, "s20", "s21", (N + 1) * 512)
    a("v_and_b32 v17, 15, v2")
    a("v_xor_b32 v17, v17, v5")
    a("s_lshl_b32 s51, s26, 13")
    a(f"s_add_u32 s51, s51, {XI}")
    a("v_lshl_add_u32 v17, v17, 4, s51")
    a("v_lshl_add_u32 v16, v6, 8, v17")
    for sidx in range(1, 8):
        a(f"v_xor_b32 v{16+sidx}, {sidx << 5}, v16")
    a("v_bfe_u32 v26, v2, 2, 2")
    a("v_lshl_add_u32 v27, v5, 3, v26")
    a("v_and_b32 v28, 3, v2")
    a("v_lshl_add_u32 v28, v28, 3, s50")
    a("v_bfe_u32 v29, v2, 4, 1")
    a("v_lshl_add_u32 v28, v29, 5, v28")
    a("v_lshlrev_b32 v26, 6, v26")
    a("v_xor_b32 v28, v28, v26")
    a("v_lshl_add_u32 v24, v27, 9, v28")
    a("v_xor_b32 v25, 64, v24")
    a("v_lshl_add_u32 v13, v6, 2, s50")
    a("v_lshl_add_u32 v13, v5, 11, v13")
    a(f"s_mul_i32 s52, s2, {GROWS*512}")
    a("s_lshl_b32 s51, s26, 14")
    a("s_add_u32 s52, s52, s51")
    a("s_add_u32 s53, s52, 4096")
    a("s_add_u32 s54, s52, 8192")
    a("s_add_u32 s55, s52, 12288")
    a(f"s_mov_b32 s56, {NEGLOG2E:#x}")
    a(f"s_mov_b32 s57, {NEGLOG2E:#x}")
    stamp(a, opt, 1, SV)
    a("s_waitcnt vmcnt(2)")
    stamp(a, opt, 2, SV)
    a("s_barrier")
    AF = 32; BF = 48; DA = 80; DB = 96
    def reads(sidx):
        st = sidx & 3
        a(f"ds_read_b128 {v(AF+4*st,4)}, v{16+sidx}")
        for X in range(2):
            for e in range(2):
                a(f"ds_read_b64_tr_b16 {v(BF+8*st+4*X+2*e,2)}, v{24+X} offset:{sidx*8192+e*2048}")
    def mm(sidx):
        st = sidx & 3
        ca = "0" if sidx == 0 else v(DA, 16)
        cb = "0" if sidx == 0 else v(DB, 16)
        a(f"v_mfma_f32_32x32x16_bf16 {v(DA,16)}, {v(AF+4*st,4)}, {v(BF+8*st,4)}, {ca}")
        a(f"v_mfma_f32_32x32x16_bf16 {v(DB,16)}, {v(AF+4*st,4)}, {v(BF+8*st+4,4)}, {cb}")
    reads(0); reads(1); reads(2)
    a("s_waitcnt lgkmcnt(10)"); mm(0); reads(3)
    a("s_waitcnt lgkmcnt(10)"); mm(1)
    a("s_waitcnt vmcnt(0)")
    a("s_barrier")
    reads(4)
    a("s_waitcnt lgkmcnt(10)"); mm(2); reads(5)
    a("s_waitcnt lgkmcnt(10)"); mm(3); reads(6)
    a("s_waitcnt lgkmcnt(10)"); mm(4); reads(7)
    a("s_waitcnt lgkmcnt(10)"); mm(5)
    a("s_waitcnt lgkmcnt(5)"); mm(6)
    a("s_waitcnt lgkmcnt(0)"); mm(7)
    a("s_nop 10")
    stamp(a, opt, 3, SV)
    for r in range(0, 16, 2):
        a(f"v_pk_mul_f32 {v(DA+r,2)}, {v(DA+r,2)}, s[56:57]")
        a(f"v_pk_mul_f32 {v(DB+r,2)}, {v(DB+r,2)}, s[56:57]")
        for rr in (r, r + 1):
            a(f"v_cvt_pk_bf16_f32 v{AF+rr}, v{DA+rr}, v{DB+rr}")
            a(f"buffer_store_dword v{AF+rr}, v13, s[36:39], s{52 + (rr >> 2)} offen offset:{(rr & 3)*512}{SFG}")
    stamp(a, opt, 4, SV)
    if opt.get("stamps"): a("s_waitcnt vmcnt(0)")
    stamp(a, opt, 5, SV)
    stamp_out(a, opt, 20, 0xF00000, 22, SV, tmpv=121)
    a("s_endpgm")
    a.label("K1_SORT")
    CNT = 32768
    HB = 36864
    a(f"s_sub_u32 s3, s2, {NGEMM}")
    a(f"s_cmp_ge_u32 s3, {NSORTWG}")
    a("s_cbranch_scc1 K1_HELP")
    a("s_and_b32 s24, s3, 7")
    a("s_lshl_b32 s24, s24, 4")
    a("s_lshr_b32 s25, s3, 3")
    a("s_lshl_b32 s25, s25, 1")
    a("s_add_u32 s24, s24, s25")
    a("s_lshr_b32 s25, s22, 3")
    a("s_add_u32 s3, s24, s25")
    a(f"s_mul_i32 s54, s25, {HB}")
    a("v_and_b32 v0, 511, v0")
    a("v_lshlrev_b32 v3, 2, v0")
    a("v_add_u32 v4, 4096, v3")
    a("v_add_u32 v5, 8192, v3")
    a(f"s_mul_i32 s23, s3, {CHUNK*4}")
    a("s_waitcnt lgkmcnt(0)")
    srd(a, 32, "s10", "s11", E * 4)
    for i in range(5):
        a(f"buffer_load_dword v{10+i}, v{3 + (i >> 1)}, s[32:35], s23 offen offset:{(i & 1)*2048}{NT}")
    srd(a, 28, "s8", "s9", E * 4)
    for i in range(5):
        a(f"buffer_load_dword v{16+i}, v{3 + (i >> 1)}, s[28:31], s23 offen offset:{(i & 1)*2048}{NT}")
    a("v_mov_b32 v24, -1\nv_mov_b32 v25, -1\nv_mov_b32 v26, -1\nv_mov_b32 v27, -1")
    a("v_mov_b32 v28, 0")
    a("v_lshl_add_u32 v6, v0, 4, s54")
    a("v_add_u32 v7, s54, v3")
    a(f"ds_write_b32 v7, v28 offset:{CNT}")
    for i in range(4):
        a(f"ds_write_b128 v6, v[24:27] offset:{i*8192}")
    srd_ws(a, 36, 20, CELL_OFF, 256 * 128 * 128)
    a("v_mov_b32 v29, 1")
    a(f"v_mov_b32 v30, {OVF - (1 << 32)}")
    a("v_lshlrev_b32 v31, 6, v0")
    a("v_lshrrev_b32 v44, 3, v0")
    a("v_xor_b32 v45, v44, v0")
    a("v_and_b32 v45, 7, v45")
    a("v_lshl_add_u32 v45, v45, 4, s54")
    a("v_lshl_add_u32 v45, v44, 7, v45")
    a("v_and_b32 v46, 7, v0")
    a("v_lshlrev_b32 v46, 4, v46")
    a("v_lshl_add_u32 v46, v44, 14, v46")
    a("s_lshl_b32 s24, s3, 7")
    for i in range(1, 4):
        a(f"s_add_u32 s{24+i}, s24, {i << 20}")
    for i in range(5):
        a(f"v_add_u32 v{84+i}, {i*32768}, v31")
    a(f"v_cmp_gt_u32 vcc, {CHUNK - 2048}, v0")
    a("s_waitcnt lgkmcnt(0)")
    a("s_mov_b64 s[52:53], vcc")
    stamp(a, opt, 1, SV)
    a("s_barrier")
    if opt.get("stamps"): a("s_waitcnt vmcnt(0)")
    stamp(a, opt, 2, SV)
    for i in range(5):
        a(f"s_waitcnt vmcnt({9 - i})")
        a(f"v_and_b32 v{32+i}, 255, v{10+i}")
        a(f"v_lshl_add_u32 v{37+i}, v{32+i}, 2, s54")
        if i == 4: a("s_mov_b64 exec, s[52:53]")
        a(f"ds_add_rtn_u32 v{60+i}, v{37+i}, v29 offset:{CNT}")
        if i == 4: a("s_mov_b64 exec, -1")
    for i in range(5):
        a(f"s_waitcnt vmcnt({4 - i})")
        a(f"v_lshrrev_b32 v{10+i}, 8, v{10+i}")
        a(f"v_lshl_or_b32 v{10+i}, v{16+i}, 18, v{10+i}")
        a(f"v_or_b32 v{10+i}, v{10+i}, v{84+i}")
        a(f"v_and_b32 v{16+i}, 28, v{37+i}")
        a(f"v_lshlrev_b32 v{32+i}, 5, v{32+i}")
    for i in range(5):
        a("s_waitcnt lgkmcnt(4)")
        a(f"v_cmp_lt_u32 vcc, 30, v{60+i}")
        a(f"v_min_u32 v{60+i}, 31, v{60+i}")
        a(f"v_lshl_or_b32 v{60+i}, v{60+i}, 5, v{60+i}")
        a(f"v_bfe_u32 v{60+i}, v{60+i}, 2, 5")
        a(f"v_xad_u32 v{60+i}, v{60+i}, v{16+i}, v{32+i}")
        a(f"v_cndmask_b32 v{10+i}, v{10+i}, v30, vcc")
        a(f"v_lshl_add_u32 v{60+i}, v{60+i}, 2, s54")
        if i == 4: a("s_mov_b64 exec, s[52:53]")
        a(f"ds_write_b32 v{60+i}, v{10+i}")
        if i == 4: a("s_mov_b64 exec, -1")
    a("s_waitcnt lgkmcnt(0)")
    a("s_barrier")
    stamp(a, opt, 3, SV)
    for i in range(4):
        a(f"ds_read_b128 {v(64+4*i,4)}, v45 offset:{i*8192}")
    for i in range(4):
        a(f"s_waitcnt lgkmcnt({3 - i})")
        a(f"buffer_store_dwordx4 {v(64+4*i,4)}, v46, s[36:39], s{24+i} offen{SF}")
    stamp(a, opt, 4, SV)
    if opt.get("stamps"): a("s_waitcnt vmcnt(0)")
    stamp(a, opt, 5, SV)
    stamp_out(a, opt, 20, 0xF00000, 22, SV, tmpv=121)
    a("s_endpgm")
    a.label("K1_HELP")
    a(f"s_sub_u32 s3, s3, {NSORTWG}")
    a("s_waitcnt lgkmcnt(0)")
    srd_ws(a, 40, 20, W2F_OFF, FRAG_BYTES)
    a("v_lshlrev_b32 v6, 4, v2")
    a("s_cmp_lt_u32 s22, 8")
    a("s_cbranch_scc1 K1_H8")
    a("s_cmp_lt_u32 s22, 10")
    a("s_cbranch_scc0 K1_END")
    a("s_getpc_b64 s[60:61]")
    a.label("K1_PC")
    a("s_add_u32 s60, s60, mpnn_main_kernel-K1_PC")
    a("s_addc_u32 s61, s61, 0")
    a("s_mov_b32 s62, K2_REDO-mpnn_main_kernel")
    a("s_mov_b32 s63, 0x00020000")
    a("v_subrev_u32 v7, 512, v0")
    a("v_lshlrev_b32 v7, 7, v7")
    a("buffer_load_dword v22, v7, s[60:63], 0 offen")
    a("s_endpgm")
    a.label("K1_H8")
    a("s_lshl_b32 s3, s3, 3")
    a("s_add_u32 s3, s3, s22")
    a("s_mov_b32 s58, s3")
    a("s_bfe_u32 s26, s3, 0x30003")
    a("s_and_b32 s27, s3, 7")
    a("s_cmp_ge_u32 s3, 128")
    a("s_cselect_b32 s26, s27, s26")
    a("s_cselect_b32 s27, 8, s27")
    a("s_cmp_ge_u32 s3, 64")
    a("s_cbranch_scc1 K1_PREP1")
    srd(a, 44, "s16", "s17", 256 * 256)
    a("v_and_b32 v40, 15, v2")
    a("v_lshlrev_b32 v40, 1, v40")
    a("v_lshrrev_b32 v41, 4, v2")
    a("v_lshl_add_u32 v40, v41, 10, v40")
    a("v_add_u32 v41, 8192, v40")
    a("s_bfe_u32 s24, s3, 0x20001")
    a("s_lshl_b32 s24, s24, 14")
    a("s_and_b32 s25, s3, 1")
    a("s_lshl_b32 s25, s25, 12")
    a("s_add_u32 s24, s24, s25")
    a("s_lshr_b32 s25, s3, 3")
    a("s_lshl_b32 s25, s25, 5")
    a("s_add_u32 s24, s24, s25")
    for e in range(8):
        a(f"buffer_load_ushort v{48+e}, v{40 + (e & 1)}, s[44:47], s24 offen offset:{(e >> 1)*256}")
    a("s_branch K1_PFIN")
    a.label("K1_PREP1")
    srd(a, 44, "s12", "s13", 272 * 512)
    a("v_and_b32 v42, 1, v2")
    a("v_lshlrev_b32 v42, 6, v42")
    a("v_and_b32 v43, 30, v2")
    a("v_add_u32 v42, v42, v43")
    a("v_lshrrev_b32 v43, 5, v2")
    a("v_lshl_add_u32 v42, v43, 12, v42")
    a("s_lshr_b32 s24, s26, 1")
    a("s_lshl_b32 s24, s24, 7")
    a("s_and_b32 s25, s26, 1")
    a("s_lshl_b32 s25, s25, 5")
    a("s_add_u32 s24, s24, s25")
    a("s_lshl_b32 s27, s27, 13")
    a("s_add_u32 s24, s24, s27")
    a(f"s_add_u32 s24, s24, {128*512}")
    for e in range(8):
        a(f"buffer_load_ushort v{48+e}, v42, s[44:47], s24 offen offset:{e*512}")
    a.label("K1_PFIN")
    a("s_lshl_b32 s24, s58, 10")
    a("s_cmp_ge_u32 s58, 128")
    a("s_waitcnt vmcnt(0)")
    a("s_cbranch_scc1 K1_FINC")
    for e in range(4):
        a(f"v_lshl_or_b32 v{56+e}, v{49+2*e}, 16, v{48+2*e}")
    a("buffer_store_dwordx4 v[56:59], v6, s[40:43], s24 offen")
    a("s_endpgm")
    a.label("K1_FINC")
    a(f"s_mov_b32 s25, {NEGLOG2E:#x}")
    for e in range(8):
        a(f"v_lshlrev_b32 v{48+e}, 16, v{48+e}")
        a(f"v_mul_f32 v{48+e}, s25, v{48+e}")
    for e in range(4):
        a(f"v_cvt_pk_bf16_f32 v{56+e}, v{48+2*e}, v{49+2*e}")
    a("buffer_store_dwordx4 v[56:59], v6, s[40:43], s24 offen")
    a.label("K1_END")
    a("s_endpgm")
    return a, (128 if opt.get('stamps') else 112), (102 if opt.get('stamps') else 64)
```

```python
from asmlib import *
from k1 import *

NW = 12
PSLOT = 0
EIM = 49152
OH = 98304
ZERO = 147456
CNT = ZERO + 256
FLAG = ZERO + 512
IDX = ZERO + 3328
EOFF = IDX + 6400
HSTR = 144
K2_LDS = 163840
assert EOFF + 6144 <= K2_LDS
GCAP = 48
KILL = 0x40000000
NEGLN2 = 0xBF317218
aAE = 1; aAP = 2; aAO = 7; aS1 = 8; aS2 = 9; aIDX = 10; aEI = 11; EI = 12; CHK = 14
D = [16, 32]; EX = 48; ACC = 64; BC = [80, 84]; BQ = [88, 92]; ID = [96, 100]
AE = 104; FV = 164; MG = 165; AO = 108; S = 112; AP = [116, 120, 124, 128]; HQ = 132; IX = [136, 138, 140, 142]
WP = 144
NV2 = 168

def pr(r): return v(r, 2)
def q4(r): return v(r, 4)
def x16(r): return v(r, 16)

def mf_tile(Y):
    d = D[Y]
    return [f"v_mfma_f32_32x32x16_bf16 {x16(d)}, {q4(AE)}, {q4(BC[Y])}, 0",
            f"v_mfma_f32_32x32x16_bf16 {x16(d)}, {q4(AO)}, {q4(BQ[Y])}, {x16(d)}",
            f"v_mfma_f32_32x32x16_bf16 {x16(d)}, {q4(AP[2*Y])}, {q4(ID[0])}, {x16(d)}",
            f"v_mfma_f32_32x32x16_bf16 {x16(d)}, {q4(AP[2*Y+1])}, {q4(ID[1])}, {x16(d)}"]
SEGSUM = f"v_mfma_f32_32x32x16_bf16 {x16(ACC)}, {q4(HQ)}, {q4(S)}, {x16(ACC)}"

def tile(X, mf, ex_exp, mid, ex_rcp):
    d = D[X]; out = []; mi = 0
    for i in range(16):
        if i % 3 == 0 and mi < len(mf):
            out.append(mf[mi]); mi += 1
        out.append(f"v_exp_f32 v{EX+i}, v{d+i}")
        out += ex_exp.get(i, [])
    out += mid
    NAB, NCD, DAB, DCD = d, d + 8, EX, EX + 8
    out.append(f"v_pk_add_f32 {pr(DAB)}, {pr(EX)}, 1.0 op_sel_hi:[1,0]")
    out.append(f"v_pk_add_f32 {pr(DCD)}, {pr(EX+8)}, 1.0 op_sel_hi:[1,0]")
    for k in range(1, 4):
        out.append(f"v_pk_fma_f32 {pr(NAB)}, {pr(NAB)}, {pr(EX+2*k)}, {pr(NAB)}")
        out.append(f"v_pk_fma_f32 {pr(NCD)}, {pr(NCD)}, {pr(EX+8+2*k)}, {pr(NCD)}")
        out.append(f"v_pk_fma_f32 {pr(NAB)}, {pr(d+2*k)}, {pr(DAB)}, {pr(NAB)}")
        out.append(f"v_pk_fma_f32 {pr(NCD)}, {pr(d+8+2*k)}, {pr(DCD)}, {pr(NCD)}")
        out.append(f"v_pk_fma_f32 {pr(DAB)}, {pr(DAB)}, {pr(EX+2*k)}, {pr(DAB)}")
        out.append(f"v_pk_fma_f32 {pr(DCD)}, {pr(DCD)}, {pr(EX+8+2*k)}, {pr(DCD)}")
    out.append(f"v_pk_fma_f32 {pr(CHK)}, {pr(DAB)}, {pr(DCD)}, {pr(CHK)}")
    out += ex_rcp
    for r in (DAB, DAB + 1, DCD, DCD + 1):
        out.append(f"v_rcp_f32 v{r}, v{r}")
    out.append(f"v_pk_mul_f32 {pr(NAB)}, {pr(NAB)}, {pr(DAB)}")
    out.append(f"v_pk_mul_f32 {pr(NCD)}, {pr(NCD)}, {pr(DCD)}")
    out.append(f"v_cvt_pk_bf16_f32 v{HQ+2*X}, v{NAB}, v{NAB+1}")
    out.append(f"v_cvt_pk_bf16_f32 v{HQ+2*X+1}, v{NCD}, v{NCD+1}")
    return out

def p_dma():
    out = []
    for k in range(4):
        out.append(f"s_add_u32 m0, s57, {k*1024}")
        out.append("s_nop 0")
        out.append(f"buffer_load_dwordx4 {pr(IX[k])}, s[32:35], s58 idxen offen lds")
    return out

EFL = [""]
def e_dma():
    return ["s_cmp_lt_u32 s61, s53",
            f"s_cselect_b32 s86, {E}, 0",
            f"s_cselect_b32 m0, s59, {K2_LDS:#x}",
            "s_add_u32 s61, s61, 4",
            f"buffer_load_dwordx4 {pr(EI)}, s[84:87], 0 idxen offen{EFL[0]} lds",
            "s_add_u32 s59, s59, 4096"]
NW2 = 5
def w2_pre(vaddr):
    return [f"buffer_load_dwordx4 {q4(WP+4*sidx)}, v{vaddr}, s[40:43], s{73 + (sidx >> 2)} offen offset:{(sidx & 3)*1024}" for sidx in range(NW2)]

def gen_k2(opt=None):
    opt = opt or {}
    EFL[0] = {0: "", 1: " nt", 2: " sc1"}[opt.get("efl", 0)]
    a = Asm()
    def stp(i):
        if opt.get("stamps"):
            a("s_memrealtime s[96:97]"); a("s_waitcnt lgkmcnt(0)"); a(f"v_writelane_b32 v0, s96, {i}")
    def stc(i):
        if opt.get("stamps"):
            a("s_memtime s[96:97]"); a("s_waitcnt lgkmcnt(0)"); a(f"v_writelane_b32 v0, s96, {i}")
    a.label("mpnn_main_kernel")
    a("s_cmp_ge_u32 s2, 256")
    a("s_cbranch_scc1 K2_END")
    a("s_mov_b32 s70, 0")
    a.label("K2_TOP")
    a("s_load_dwordx2 s[22:23], s[0:1], 80")
    a("s_load_dwordx16 s[4:19], s[0:1], 0")
    a("s_load_dwordx2 s[20:21], s[0:1], 64")
    if opt.get("stamps"): a("s_memrealtime s[98:99]")
    a("v_lshrrev_b32 v72, 6, v0")
    a("v_and_b32 v1, 63, v0")
    a("v_readfirstlane_b32 s24, v72")
    a("v_lshlrev_b32 v25, 5, v0")
    a("v_lshlrev_b32 v24, 4, v0")
    L16 = 6
    a(f"v_lshlrev_b32 v{L16}, 4, v1")
    a("s_lshl_b32 s66, s2, 14")
    a("s_and_b32 s25, s24, 3")
    a("s_lshr_b32 s26, s24, 2")
    a("s_cmp_ge_u32 s24, 8")
    a("s_cbranch_scc1 K2_HL")
    a("s_waitcnt lgkmcnt(0)")
    srd_ws(a, 40, 22, CELL_OFF, (W2F_OFF - CELL_OFF) + FRAG_BYTES)
    CNTF = " nt" if opt.get("cnt_nt") else ""
    a(f"buffer_load_dwordx4 v[16:19], v25, s[40:43], s66 offen{CNTF}")
    a(f"buffer_load_dwordx4 v[20:23], v25, s[40:43], s66 offen offset:16{CNTF}")
    a("s_branch K2_CM")
    a.label("K2_HL")
    a("v_lshrrev_b32 v77, 4, v1")
    a("s_lshl_b32 s68, s25, 2")
    a("v_add_u32 v77, s68, v77")
    a("v_xor_b32 v27, v77, v1")
    a("v_and_b32 v27, 15, v27")
    a("v_lshlrev_b32 v27, 4, v27")
    a("v_lshl_add_u32 v26, v77, 16, v27")
    for win in (1, 2):
        a(f"v_subrev_u32 v78, {12*win}, v77")
        a("v_and_b32 v78, 15, v78")
        a(f"v_add_u32 v78, {12*win}, v78")
        a(f"v_lshl_add_u32 v{27+win}, v78, 16, v27")
    a("s_lshl_b32 s68, s2, 8")
    a("s_lshl_b32 s69, s25, 10")
    a(f"s_add_u32 m0, s69, {EIM + 4096}")
    a("s_waitcnt lgkmcnt(0)")
    srd(a, 36, "s4", "s5", N * 256)
    a("buffer_load_dwordx4 v26, s[36:39], s68 offen lds")
    a(f"s_add_u32 m0, s69, {EIM + 4096 + 16384}")
    srd_ws(a, 40, 22, CELL_OFF, (W2F_OFF - CELL_OFF) + FRAG_BYTES)
    a("buffer_load_dwordx4 v28, s[36:39], s68 offen lds")
    a(f"s_add_u32 m0, s69, {EIM + 4096 + 32768}")
    a("s_lshr_b32 s66, s2, 3")
    a("buffer_load_dwordx4 v29, s[36:39], s68 offen lds")
    a(f"s_mul_i32 s66, s66, {34*128}")
    a(f"s_mul_i32 s67, s25, {9*128}")
    a("s_add_u32 s66, s66, s67")
    a(f"s_add_u32 s66, s66, {W2F_OFF - CELL_OFF}")
    a("v_min_u32 v30, 8, v1")
    a("v_lshlrev_b32 v30, 7, v30")
    a("buffer_load_dword v134, v30, s[40:43], s66 offen")
    a.label("K2_CM")
    a("s_mul_i32 s71, s26, 12")
    a("s_lshl_b32 s56, s26, 14")
    a(f"s_add_u32 s56, s56, {EIM}")
    a("s_lshl_b32 s69, s25, 10")
    a("s_add_u32 s59, s56, s69")
    a("s_lshl_b32 s66, s24, 13")
    a(f"s_add_u32 s73, s66, {W2F_OFF - CELL_OFF}")
    a("s_cmp_lt_u32 s24, 8")
    a(f"s_cselect_b32 s73, s73, {KILL:#x}")
    a("s_add_u32 s74, s73, 4096")
    a("s_lshl_b32 s72, s25, 11")
    a(f"s_add_u32 s72, s72, {WCF_OFF - CELL_OFF}")
    a(f"v_add_u32 v156, {OH}, v24")
    for i in range(4): a(f"v_mov_b32 v{144+i}, 0")
    a(f"v_mov_b32 v31, {N}")
    a(f"v_mov_b32 v152, {E}")
    a(f"v_cmp_gt_u32 vcc, {IDX - ZERO}, v24")
    a(f"s_mov_b32 s66, {EOFF - ZERO}")
    a("v_cmp_le_u32 s[68:69], s66, v24")
    a("v_cndmask_b32 v148, v31, v144, vcc")
    a("v_mov_b32 v153, v152")
    a("v_cndmask_b32 v148, v148, v152, s[68:69]")
    a("v_mov_b32 v154, v152")
    a("v_mov_b32 v155, v152")
    for i in range(1, 4): a(f"v_mov_b32 v{148+i}, v148")
    a(f"ds_write_b128 v156, v[148:151] offset:{4*12288}")
    for i in range(4): a(f"ds_write_b128 v156, v[144:147] offset:{i*12288}")
    a("s_cmp_lt_u32 s24, 4")
    a("s_cbranch_scc0 K2_I1")
    a(f"ds_write_b128 v156, v[152:155] offset:{5*12288}")
    a.label("K2_I1")
    a("v_lshrrev_b32 v72, 2, v0")
    if opt.get("stamps"):
        a("v_mov_b32 v0, 0"); a("v_writelane_b32 v0, s98, 0")
    a("s_mov_b32 s84, s6")
    a("s_and_b32 s85, s7, 0xffff")
    a(f"s_or_b32 s85, s85, {32 << 16:#x}")
    a("s_mov_b32 s87, 0x00020000")
    a("s_mov_b32 s32, s22")
    a("s_and_b32 s33, s23, 0xffff")
    a(f"s_or_b32 s33, s33, {512 << 16:#x}")
    a(f"s_mov_b32 s34, {N+1}")
    a("s_mov_b32 s35, 0x00020000")
    srd(a, 44, "s20", "s21", N * 256)
    H_, I_, T0, T1 = 77, 78, 105, 106
    a(f"v_lshrrev_b32 v{H_}, 5, v1")
    a(f"v_and_b32 v{I_}, 31, v1")
    a(f"v_and_b32 v{T0}, 16, v1")
    a(f"v_and_b32 v{T1}, 4, v1")
    a(f"v_lshl_or_b32 v{T0}, v{T1}, 1, v{T0}")
    a(f"v_and_b32 v{T1}, 1, v1")
    a(f"v_lshl_or_b32 v{T0}, v{T1}, 2, v{T0}")
    a(f"v_bfe_u32 v{T1}, v1, 3, 1")
    a(f"v_lshl_or_b32 v{T0}, v{T1}, 1, v{T0}")
    a(f"v_bfe_u32 v{T1}, v1, 1, 1")
    a(f"v_or_b32 v{T0}, v{T0}, v{T1}")
    a("s_lshl_b32 s57, s24, 12")
    a("s_lshl_b32 s58, s25, 7")
    a(f"v_bfe_u32 v{T1}, v{T0}, 1, 3")
    a(f"v_xor_b32 v{T1}, v{T1}, v{H_}")
    a(f"v_lshl_add_u32 v{T1}, v{T1}, 4, s57")
    a(f"v_lshl_add_u32 v{aAP}, v{T0}, 7, v{T1}")
    for m in range(1, 4): a(f"v_xor_b32 v{aAP+m}, {m << 5}, v{aAP}")
    a(f"v_bfe_u32 v{T1}, v{T0}, 3, 1")
    a(f"v_xor_b32 v{T1}, v{T1}, v{H_}")
    a(f"v_lshl_add_u32 v{T1}, v{T1}, 4, s56")
    a(f"v_lshl_add_u32 v110, v{T0}, 5, v{T1}")
    a(f"v_lshlrev_b32 v{T1}, 4, v{H_}")
    a(f"v_lshl_add_u32 v{aAO}, v{T0}, 5, v{T1}")
    a(f"v_and_b32 v{T1}, 62, v1")
    a(f"v_lshlrev_b32 v{aEI}, 1, v{T1}")
    SOFF = 104
    a(f"v_and_b32 v{T1}, 8, v1")
    a(f"v_lshlrev_b32 v{SOFF}, 6, v{T1}")
    a(f"v_lshl_add_u32 v{SOFF}, v{H_}, 8, v{SOFF}")
    a(f"v_and_b32 v{T1}, 4, v1")
    a(f"v_lshl_add_u32 v{SOFF}, v{T1}, 5, v{SOFF}")
    a(f"v_and_b32 v{T1}, 3, v1")
    a(f"v_lshl_add_u32 v{SOFF}, v{T1}, 3, v{SOFF}")
    a("s_mov_b32 s62, 0xffff\ns_mov_b32 s63, 0xffff\ns_mov_b32 s64, 0xffff0000\ns_mov_b32 s65, 0xffff0000")
    a(f"v_lshrrev_b32 v{T1}, 3, v1")
    a(f"v_lshlrev_b32 v{aIDX}, 2, v{T1}")
    a(f"v_lshrrev_b32 v{T1}, 4, v1")
    a(f"v_xor_b32 v{T1}, v{T1}, v1")
    a(f"v_and_b32 v{EI+1}, 1, v{T1}")
    a(f"v_lshlrev_b32 v{EI+1}, 4, v{EI+1}")
    a(f"v_and_b32 v{T1}, 7, v{T1}")
    a(f"v_lshlrev_b32 v{IX[0]+1}, 4, v{T1}")
    a(f"v_xor_b32 v{IX[1]+1}, 64, v{IX[0]+1}")
    a(f"v_mov_b32 v{IX[2]+1}, v{IX[0]+1}")
    a(f"v_mov_b32 v{IX[3]+1}, v{IX[1]+1}")
    a(f"v_and_b32 v{T1}, 1, v1")
    a(f"v_lshlrev_b32 v{T1}, 4, v{T1}")
    a("v_mov_b32 v75, 0x3f80")
    a(f"v_lshlrev_b32 v107, v{T1}, v75")
    a(f"v_lshrrev_b32 v{T1}, 1, v{I_}")
    a(f"v_lshlrev_b32 v{T0}, 2, v{H_}")
    a(f"v_sub_u32 v{T1}, v{T1}, v{T0}")
    for mm in range(2):
        for rho in range(4):
            a(f"v_cmp_eq_u32 s[{76+2*rho}:{77+2*rho}], {8*mm+rho}, v{T1}")
        for rho in range(4):
            a(f"v_cndmask_b32 v{ID[mm]+rho}, 0, v107, s[{76+2*rho}:{77+2*rho}]")
    a("s_lshl_b32 s66, s25, 11")
    a("s_add_u32 s67, s56, s66")
    a(f"v_add_u32 v115, s67, v{L16}")
    a(f"v_mov_b32 v111, {FLAG}")
    a("v_mov_b32 v114, 1")
    a("s_mov_b32 s55, 0")
    a("s_mov_b32 s60, 0")
    a("s_mov_b32 s61, s25")
    a("s_cmp_ge_u32 s24, 8")
    a("s_cbranch_scc1 K2_HQ")
    a(f"s_mov_b32 s66, {CHUNK}")
    a("v_mul_u32_u24 v72, s66, v72")
    a(f"s_mov_b32 s78, {CNT}")
    a("v_lshl_add_u32 v76, v1, 2, s78")
    a(f"s_mov_b32 s79, {IDX}")
    a(f"s_mov_b32 s80, {OH}")
    a("s_mov_b32 s81, 0")
    a(f"buffer_load_dwordx4 {q4(BC[0])}, v{L16}, s[40:43], s72 offen")
    a(f"buffer_load_dwordx4 {q4(BC[1])}, v{L16}, s[40:43], s72 offen offset:1024")
    a("s_waitcnt lgkmcnt(0)")
    stp(1)
    a("s_barrier")
    a("s_waitcnt vmcnt(3)")
    stp(2)
    RA, RK = 32, 40
    SB = 48; T = 116
    TS, TE, TO = 116, 124, 56
    def count(ks):
        for k in ks:
            a(f"v_and_b32 v{RA+k}, 63, v{16+k}")
            a(f"v_lshl_add_u32 v{RA+k}, v{RA+k}, 2, s78")
        for k in ks:
            a(f"v_cmpx_gt_u32 vcc, -2, v{16+k}")
            a(f"ds_add_rtn_u32 v{RK+k}, v{RA+k}, v114")
        a("s_mov_b64 exec, -1")
    def decode(ks):
        for k in ks:
            a(f"v_lshrrev_b32 v{TS+k}, {18 + opt.get('pshift', 0)}, v{16+k}")
            a(f"v_bfe_u32 v{TE+k}, v{16+k}, 6, 12")
            a(f"v_add_u32 v{TE+k}, v{TE+k}, v72")
            if opt.get("eshift"): a(f"v_lshrrev_b32 v{TE+k}, {opt['eshift']}, v{TE+k}")
            a(f"v_and_b32 v{TO+k}, 15, v{16+k}")
            a(f"v_lshl_add_u32 v{TO+k}, v{TO+k}, 1, s80")
    def scatter(ks):
        for k in ks:
            a(f"v_add_u32 v{SB+k}, v{SB+k}, v{RK+k}")
            a(f"v_lshl_add_u32 v{TO+k}, v{SB+k}, 5, v{TO+k}")
            a(f"v_lshl_add_u32 v{SB+k}, v{SB+k}, 2, s79")
        for k in ks:
            a(f"v_cmpx_gt_u32 vcc, -2, v{16+k}")
            a(f"ds_write2st64_b32 v{SB+k}, v{TS+k}, v{TE+k} offset0:0 offset1:{(EOFF-IDX)//256}")
            a(f"ds_write_b16 v{TO+k}, v75")
        a("s_mov_b64 exec, -1")
    def arrive(off):
        a("s_mov_b64 exec, 1")
        a(f"ds_add_u32 v111, v114 offset:{off}")
        a("s_mov_b64 exec, -1")
    count(range(4))
    a("s_waitcnt vmcnt(2)")
    a("v_cmp_ne_u32 vcc, -1, v20")
    a("s_nop 1")
    a("s_cbranch_vccz K2_C1")
    a("s_mov_b32 s81, 1")
    count([4])
    a("v_cmp_ne_u32 vcc, -1, v21")
    decode([4])
    a("s_cbranch_vccnz K2_CX")
    a.label("K2_C1")
    arrive(4)
    decode(range(4))
    a.label("K2_SB1")
    a("ds_read_b64 v[108:109], v111")
    a("ds_read_b32 v105, v76")
    a("s_waitcnt lgkmcnt(0)")
    a("v_readfirstlane_b32 s66, v109")
    a("v_add_u32 v105, 3, v105")
    a("s_cmp_lt_u32 s66, 8")
    a("s_cbranch_scc1 K2_SB1")
    stp(3)
    a("v_and_b32 v105, -4, v105")
    a("v_readfirstlane_b32 s82, v108")
    a("s_nop 0")
    a("v_add_u32_dpp v107, v105, v105 row_shr:1 row_mask:0xf bank_mask:0xf bound_ctrl:0")
    a("s_nop 1")
    for sh in (2, 4, 8):
        a(f"v_add_u32_dpp v107, v107, v107 row_shr:{sh} row_mask:0xf bank_mask:0xf bound_ctrl:0")
        a("s_nop 1")
    a("v_add_u32_dpp v107, v107, v107 row_bcast:15 row_mask:0xa bank_mask:0xf")
    a("s_sub_u32 s82, s82, s70")
    a("s_lshl_b32 s82, s82, 12")
    a("v_add_u32_dpp v107, v107, v107 row_bcast:31 row_mask:0xc bank_mask:0xf")
    a("v_sub_u32 v108, v107, v105")
    a("v_readlane_b32 s83, v107, 63")
    for k in range(5): a(f"ds_bpermute_b32 v{SB+k}, v{RA+k}, v108")
    a("s_add_u32 s82, s82, s83")
    a(f"s_cmp_gt_u32 s82, {GCAP*32}")
    a("s_cbranch_scc1 K2_BAD")
    a("s_waitcnt lgkmcnt(0)")
    scatter(range(4))
    a("s_cmp_eq_u32 s81, 0")
    a("s_cbranch_scc1 K2_S1")
    scatter([4])
    a("s_cmp_lg_u32 s81, 1")
    a("s_cbranch_scc1 K2_SX")
    a.label("K2_S1")
    arrive(8)
    a("s_add_u32 s83, s83, 31")
    a("s_lshr_b32 s83, s83, 5")
    a("s_add_u32 s88, s83, 2")
    a("s_mul_i32 s88, s88, 171")
    a("v_readlane_b32 s76, v108, 12")
    a("v_readlane_b32 s77, v108, 16")
    a("v_readlane_b32 s78, v108, 24")
    a("v_readlane_b32 s79, v108, 28")
    a("s_lshr_b32 s88, s88, 9")
    a("s_add_u32 s76, s76, 31")
    a("s_lshr_b32 s76, s76, 5")
    a("s_lshr_b32 s77, s77, 5")
    a("s_add_u32 s78, s78, 31")
    a("s_lshr_b32 s78, s78, 5")
    a("s_lshr_b32 s79, s79, 5")
    a("s_cmp_gt_u32 s76, s77")
    a("s_cbranch_scc1 K2_BAD")
    a("s_cmp_gt_u32 s78, s79")
    a("s_cbranch_scc1 K2_BAD")
    if opt.get("force_slow"): a("s_branch K2_BAD")
    a("s_max_u32 s88, s88, s76")
    a("s_min_u32 s88, s88, s77")
    a("s_add_u32 s89, s83, s88")
    a("s_add_u32 s89, s89, 1")
    a("s_lshr_b32 s89, s89, 1")
    a("s_max_u32 s89, s89, s78")
    a("s_min_u32 s89, s89, s79")
    a("s_sub_u32 s90, s89, s88")
    a("s_sub_u32 s91, s83, s89")
    a("s_max_u32 s92, s90, s88")
    a("s_max_u32 s92, s92, s91")
    a("s_cmp_gt_u32 s92, 16")
    a("s_cbranch_scc1 K2_BAD")
    a("v_mov_b32 v108, s89")
    a("v_mov_b32 v109, s91")
    a("ds_write_b64 v111, v[108:109] offset:16")
    a("s_cmp_eq_u32 s26, 1")
    a("s_cselect_b32 s52, s88, 0")
    a("s_cselect_b32 s53, s90, s88")
    def g0_addr():
        a("s_lshl_b32 s66, s52, 7")
        a(f"s_add_u32 s67, s66, {IDX}")
        a(f"v_add_u32 v{aIDX}, s67, v{aIDX}")
        a(f"s_add_u32 s67, s67, {EOFF - IDX}")
        a(f"v_add_u32 v{aEI}, s67, v{aEI}")
        a(f"v_add_u32 v109, s58, v{aEI}")
    def first_reads():
        for k in range(4): a(f"ds_read_b32 v{IX[k]}, v{aIDX} offset:{k*32}")
        a(f"ds_read_b32 v{EI}, v109")
    nfl = [0]
    LATE = opt.get("late", 0)
    NE0 = 2 if LATE else 1
    def first_loads():
        nfl[0] += 1
        a(f"s_cmp_ge_u32 s25, {NE0}")
        a(f"s_cbranch_scc1 K2_FL{nfl[0]}")
        a("\n".join(e_dma()))
        a.label(f"K2_FL{nfl[0]}")
        a("\n".join(p_dma()))
    g0_addr()
    a.label("K2_SB2")
    a("ds_read_b32 v108, v111 offset:8")
    first_reads()
    a("s_waitcnt lgkmcnt(0)")
    a("v_readfirstlane_b32 s66, v108")
    a("s_nop 0")
    a("s_cmp_lt_u32 s66, 8")
    a("s_cbranch_scc1 K2_SB2")
    stp(4)
    first_loads()
    a("s_barrier")
    a("s_branch K2_QD")
    a.label("K2_HQ")
    WA, QA, QB, XA, BIAS = 32, 16, 116, 132, 112
    a(f"v_and_b32 v{T0}, 3, v1")
    a(f"v_and_b32 v{T1}, 4, v1")
    a(f"v_lshl_or_b32 v{T0}, v{T1}, 1, v{T0}")
    a(f"v_bfe_u32 v{T1}, v1, 3, 1")
    a(f"v_lshl_or_b32 v{T0}, v{T1}, 2, v{T0}")
    a(f"v_xor_b32 v{T1}, v{T0}, v{H_}")
    a(f"v_lshlrev_b32 v{T1}, 4, v{T1}")
    a(f"v_lshl_add_u32 v{XA}, v{T0}, 8, v{T1}")
    a(f"v_and_b32 v{T1}, 16, v1")
    a(f"v_lshl_add_u32 v{XA}, v{T1}, 10, v{XA}")
    a(f"v_add_u32 v{XA}, {EIM + 4096}, v{XA}")
    a(f"s_add_u32 s67, s66, {EIM + 8192}")
    a(f"v_add_u32 v107, s67, v{L16}")
    srd(a, 48, "s14", "s15", 512)
    a("v_and_b32 v108, 1, v1")
    a("v_and_b32 v109, 30, v1")
    a("v_lshl_add_u32 v108, v108, 6, v109")
    a("s_lshl_b32 s66, s25, 14")
    a(f"s_add_u32 s76, s66, {W1BF_OFF - CELL_OFF}")
    for i in range(1, 4): a(f"s_add_u32 s{76+i}, s76, {i*4096}")
    PFT = opt.get("pft", 0)
    if PFT:
        srd(a, 92, "s22", "s23", N * 512)
        a("s_lshr_b32 s80, s2, 3")
        a(f"s_mul_i32 s80, s80, {PFT*256*128}")
        a("s_lshl_b32 s81, s25, 13")
        a("s_add_u32 s80, s80, s81")
        a("v_lshlrev_b32 v109, 7, v1")
    a(f"s_mov_b32 s68, {NEGLOG2E:#x}")
    a(f"s_mov_b32 s69, {NEGLOG2E:#x}")
    a("s_waitcnt lgkmcnt(0)")
    stp(1)
    a("s_barrier")
    a(f"buffer_load_ushort v{BIAS}, v108, s[48:51], s58 offen")
    a(f"buffer_load_ushort v{BIAS+1}, v108, s[48:51], s58 offen offset:32")
    for i in range(16):
        a(f"buffer_load_dwordx4 {q4(WA+4*i)}, v{L16}, s[40:43], s{76 + (i >> 2)} offen offset:{(i & 3)*1024}")
        if i == 7:
            a("s_waitcnt vmcnt(10)")
            arrive(12)
    for i in range(PFT):
        a("buffer_load_dword v135, v109, s[92:95], s80 offen")
        a(f"s_add_u32 s80, s80, {256*128}")
    stp(2)
    a.label("K2_HS")
    a("ds_read_b32 v108, v111 offset:12")
    a("s_waitcnt lgkmcnt(0)")
    a("v_readfirstlane_b32 s66, v108")
    a("s_nop 0")
    a("s_cmp_lt_u32 s66, 4")
    a("s_cbranch_scc1 K2_HS")
    def xread(step):
        sidx = step & 7; st_ = step % 3
        if sidx: a(f"v_xor_b32 v{XA+1}, {sidx << 5}, v{XA}")
        r = XA + 1 if sidx else XA
        a(f"ds_read_b128 {q4(WP+8*st_)}, v{r}")
        a(f"ds_read_b128 {q4(WP+8*st_+4)}, v{r} offset:32768")
    xread(0); xread(1); xread(2)
    a(f"s_waitcnt vmcnt({16 + PFT})")
    a(f"v_lshlrev_b32 v{BIAS}, 16, v{BIAS}")
    a(f"v_lshlrev_b32 v{BIAS+1}, 16, v{BIAS+1}")
    a(f"v_pk_mul_f32 {pr(BIAS)}, {pr(BIAS)}, s[68:69]")
    for X in range(2):
        for sidx in range(8):
            step = 8*X + sidx; st_ = step % 3
            nl = 2*min(2, 15-step) + (3 if (X == 1 and sidx < 3) else 0)
            if X == 1 and sidx == 1: nl = 2 + 3 + 2
            a(f"s_waitcnt vmcnt({15 - step + PFT}) lgkmcnt({min(nl, 15)})")
            a(f"v_mfma_f32_32x32x16_bf16 {x16(QA)}, {q4(WP+8*st_)}, {q4(WA+4*step)}, {'0' if sidx == 0 else x16(QA)}")
            a(f"v_mfma_f32_32x32x16_bf16 {x16(QB)}, {q4(WP+8*st_+4)}, {q4(WA+4*step)}, {'0' if sidx == 0 else x16(QB)}")
            if step + 3 < 16: xread(step + 3)
        a("s_nop 10")
        for wi, base in enumerate((QA, QA + 8, QB)):
            for k in range(4):
                a(f"v_pk_fma_f32 {pr(base+2*k)}, {pr(base+2*k)}, s[68:69], {pr(BIAS)} op_sel:[0,0,{X}] op_sel_hi:[1,1,{X}]")
            for k in range(4):
                a(f"v_cvt_pk_bf16_f32 v{WA+4*wi+k+12*X}, v{base+2*k}, v{base+2*k+1}")
            a(f"ds_write_b128 v107, {q4(WA+4*wi+12*X)} offset:{wi*16384 + X*1024}")
    a("s_waitcnt lgkmcnt(0)")
    stp(3)
    a("s_barrier")
    a("ds_read_b64 v[108:109], v111 offset:16")
    a(f"buffer_load_dwordx4 {q4(BC[0])}, v{L16}, s[40:43], s72 offen")
    a(f"buffer_load_dwordx4 {q4(BC[1])}, v{L16}, s[40:43], s72 offen offset:1024")
    a("s_waitcnt lgkmcnt(0)")
    a("v_readfirstlane_b32 s52, v108")
    a("v_readfirstlane_b32 s53, v109")
    a("s_nop 0")
    a("s_cmp_eq_u32 s53, -1")
    a("s_cbranch_scc1 K2_SLOW")
    g0_addr()
    first_reads()
    a("s_waitcnt lgkmcnt(0)")
    stp(4)
    first_loads()
    a.label("K2_QD")
    stp(5)
    a("s_lshl_b32 s66, s52, 10")
    a(f"s_add_u32 s66, s66, {OH}")
    a(f"v_add_u32 v{aAO}, s66, v{aAO}")
    for k in range(4): a(f"ds_read_b32 v{IX[k]}, v{aIDX} offset:{128+k*32}")
    a(f"v_mov_b32 v166, v109")
    a(f"v_mov_b32 v{aAE}, v110")
    a(f"ds_read_b128 {q4(AO)}, v{aAO}")
    a(f"ds_read_b128 {q4(BQ[0])}, v115 offset:8192")
    a(f"ds_read_b128 {q4(BQ[1])}, v115 offset:9216")
    a(f"v_mov_b32 v{MG}, -1")
    a(f"v_add_u32 v{SOFF}, s66, v{SOFF}")
    a(f"v_mov_b32 v{T0}, {ZERO}")
    a(f"v_cndmask_b32 v{aS1}, v{T0}, v{SOFF}, s[62:63]")
    a(f"v_cndmask_b32 v{aS2}, v{T0}, v{SOFF}, s[64:65]")
    for i in range(16): a(f"v_mov_b32 v{ACC+i}, 0")
    a(f"v_mov_b32 v{CHK}, 0\nv_mov_b32 v{CHK+1}, 0")
    for i in range(4): a(f"v_mov_b32 v{S+i}, 0")
    T3, T2, T1_ = opt.get("t3", 6), opt.get("t2", 3), opt.get("t1", 1)
    a(f"s_sub_u32 s90, s53, {T3}")
    a("s_max_i32 s90, s90, 2")
    a("s_mov_b32 s91, 0")
    def flag_wait(tag, off):
        a.label(f"K2_W{tag}")
        a(f"ds_read_b32 v{FV}, v{aEI} offset:{off}")
        a("s_waitcnt lgkmcnt(0)")
        a(f"v_readfirstlane_b32 s66, v{FV}")
        a("s_nop 0")
        a("s_cmp_eq_u32 s66, -1")
        a(f"s_cbranch_scc1 K2_X{tag}")
        a("s_sleep 1")
        a(f"s_branch K2_W{tag}")
        a.label(f"K2_X{tag}")
    if LATE:
        a("s_max_i32 s90, s90, 1")
        a("s_min_u32 s90, s90, s53")
        a("s_min_u32 s67, s53, 2")
        a("s_cmp_ge_u32 s25, s67")
        a("s_waitcnt vmcnt(0)")
        a("s_cbranch_scc1 K2_NF")
        a(f"ds_write_b32 v166, v{MG}")
        a.label("K2_NF")
        for m in range(4): a(f"ds_read_b128 {q4(AP[m])}, v{aAP+m}")
        a("s_waitcnt lgkmcnt(0)")
        a("\n".join(p_dma()))
        a("s_cmp_lt_u32 s25, 2")
        a("s_cbranch_scc1 K2_F2")
        a("\n".join(e_dma()))
        a.label("K2_F2")
        for i in range(4): a(f"v_mov_b32 v{HQ+i}, 0")
        a("s_cmp_eq_u32 s53, 0")
        a("s_cbranch_scc1 K2_EXIT")
        flag_wait("A", 0)
        a(f"ds_read_b128 {q4(AE)}, v{aAE}")
        stp(6)
        stc(12)
        if opt.get("prio", 1): a("s_setprio 3")
        a("s_sub_u32 s68, 0, s25")
        a("s_and_b32 s68, s68, 3")
        a("s_lshl_b32 s67, s68, 7")
        a("s_lshl_b32 s69, s68, 10")
        a(f"v_subrev_u32 v{aAO}, s69, v{aAO}")
        a(f"v_subrev_u32 v{aAE}, s69, v{aAE}")
        a(f"v_subrev_u32 v{aIDX}, s67, v{aIDX}")
        a(f"v_subrev_u32 v{aEI}, s67, v{aEI}")
        a("s_mov_b64 exec, s[62:63]")
        a(f"v_subrev_u32 v{aS1}, s69, v{aS1}")
        a("s_mov_b64 exec, s[64:65]")
        a(f"v_subrev_u32 v{aS2}, s69, v{aS2}")
        a("s_mov_b64 exec, -1")
        a("s_waitcnt lgkmcnt(0)")
        a("\n".join(mf_tile(0)))
        a("s_nop 8")
        a("s_cmp_eq_u32 s68, 1")
        a("s_cbranch_scc1 K2_U1")
        a("s_cmp_eq_u32 s68, 2")
        a("s_cbranch_scc1 K2_U2")
        a("s_cmp_eq_u32 s68, 3")
        a("s_cbranch_scc1 K2_U3")
    else:
        a("s_min_u32 s67, s53, 1")
        a("s_cmp_ge_u32 s25, s67")
        a("s_waitcnt vmcnt(0)")
        a("s_cbranch_scc1 K2_NF")
        a(f"ds_write_b32 v166, v{MG}")
        a(f"ds_read_b32 v{EI}, v{aEI} offset:512")
        a.label("K2_NF")
        for m in range(4): a(f"ds_read_b128 {q4(AP[m])}, v{aAP+m}")
        a("s_waitcnt lgkmcnt(0)")
        a("\n".join(p_dma()))
        a("s_sub_u32 s67, s25, 1")
        a("s_cmp_ge_u32 s67, 2")
        a("s_cbranch_scc1 K2_F2")
        a("\n".join(e_dma()))
        a.label("K2_F2")
        for i in range(4): a(f"v_mov_b32 v{HQ+i}, 0")
        a("s_cmp_eq_u32 s53, 0")
        a("s_cbranch_scc1 K2_EXIT")
        def flag_wait(tag, off):
            a.label(f"K2_W{tag}")
            a(f"ds_read_b32 v{FV}, v{aEI} offset:{off}")
            a("s_waitcnt lgkmcnt(0)")
            a(f"v_readfirstlane_b32 s66, v{FV}")
            a("s_nop 0")
            a("s_cmp_eq_u32 s66, -1")
            a(f"s_cbranch_scc1 K2_X{tag}")
            a("s_sleep 1")
            a(f"s_branch K2_W{tag}")
            a.label(f"K2_X{tag}")
        flag_wait("A", 0)
        a(f"ds_read_b128 {q4(AE)}, v{aAE}")
        stp(6)
        stc(12)
        if opt.get("prio", 1): a("s_setprio 3")
        a("s_waitcnt lgkmcnt(0)")
        a("\n".join(mf_tile(0)))
        a("s_nop 10")
        ex0 = {1: [f"ds_read_b32 v{IX[k]}, v{aIDX} offset:{256+k*32}" for k in range(4)]}
        ex1 = {1: [f"ds_read_b64_tr_b16 {pr(S)}, v{aS1}", f"ds_read_b64_tr_b16 {pr(S+2)}, v{aS2}", f"ds_read_b128 {q4(AO)}, v{aAO} offset:1024"]}
        a("\n".join(tile(0, mf_tile(1), ex0, [], []) + tile(1, [], ex1, [], ["s_waitcnt lgkmcnt(0)"])))
        a("s_mov_b32 s55, 1")
        a("s_cmp_eq_u32 s53, 1")
        a("s_cbranch_scc1 K2_EXIT")
        a("s_cmp_ge_u32 s67, 2")
        a("s_cselect_b32 s66, 64, s25")
        a("s_cmp_ge_u32 s66, s53")
        a("s_waitcnt vmcnt(0)")
        a("s_cbranch_scc1 K2_NF2")
        a(f"ds_write_b32 v166, v{MG}")
        a.label("K2_NF2")
        for m in range(4): a(f"ds_read_b128 {q4(AP[m])}, v{aAP+m}")
        a("s_waitcnt lgkmcnt(0)")
        a("\n".join(p_dma()))
        a("s_cmp_lt_u32 s67, 2")
        a("s_cbranch_scc1 K2_F3")
        a("\n".join(e_dma()))
        a.label("K2_F3")
        flag_wait("B", 128)
        a(f"ds_read_b128 {q4(AE)}, v{aAE} offset:1024")
        a("s_sub_u32 s68, 1, s25")
        a("s_and_b32 s68, s68, 3")
        a("s_sub_u32 s69, 1, s68")
        a("s_lshl_b32 s67, s69, 7")
        a("s_lshl_b32 s69, s69, 10")
        a(f"v_add_u32 v{aAO}, s69, v{aAO}")
        a(f"v_add_u32 v{aAE}, s69, v{aAE}")
        a(f"v_add_u32 v{aIDX}, s67, v{aIDX}")
        a(f"v_add_u32 v{aEI}, s67, v{aEI}")
        a("s_mov_b64 exec, s[62:63]")
        a(f"v_add_u32 v{aS1}, s69, v{aS1}")
        a("s_mov_b64 exec, s[64:65]")
        a(f"v_add_u32 v{aS2}, s69, v{aS2}")
        a("s_mov_b64 exec, -1")
        a("s_waitcnt lgkmcnt(0)")
        a("\n".join(mf_tile(0)))
        a("s_nop 8")
        a("s_cmp_eq_u32 s68, 1")
        a("s_cbranch_scc1 K2_U1")
        a("s_cmp_eq_u32 s68, 2")
        a("s_cbranch_scc1 K2_U2")
        a("s_cmp_eq_u32 s68, 3")
        a("s_cbranch_scc1 K2_U3")
    a(".p2align 6")
    loop_start = len(a.lines)
    for u in range(4):
        a.label(f"K2_U{u}")
        if LATE:
            upd = []
            if u == 3:
                upd = [f"v_add_u32 v{aAO}, 4096, v{aAO}", f"v_add_u32 v{aAE}, 4096, v{aAE}", f"v_add_u32 v{aIDX}, 512, v{aIDX}", f"v_add_u32 v{aEI}, 512, v{aEI}",
                       "s_mov_b64 exec, s[62:63]", f"v_add_u32 v{aS1}, 4096, v{aS1}", "s_mov_b64 exec, s[64:65]", f"v_add_u32 v{aS2}, 4096, v{aS2}", "s_mov_b64 exec, -1"]
            mid0 = [f"ds_read_b64_tr_b16 {pr(S)}, v{aS1} offset:{u*1024}", f"ds_read_b64_tr_b16 {pr(S+2)}, v{aS2} offset:{u*1024}",
                    f"ds_read_b128 {q4(AO)}, v{aAO} offset:{(u+1)*1024}"]
            t0 = tile(0, mf_tile(1) + [SEGSUM], {}, mid0, [])
            ex1 = {}
            ex1[1] = [f"ds_read_b32 v{FV}, v{aEI} offset:{(u+1)*128}"] + [f"ds_read_b32 v{IX[k]}, v{aIDX} offset:{(u+2)*128+k*32}" for k in range(4)]
            if u == 0: ex1[1] += [f"ds_read_b32 v{EI}, v{aEI} offset:512"]
            ex1[12] = ["s_waitcnt lgkmcnt(0)", f"v_readfirstlane_b32 s66, v{FV}"]
            mid = ["s_cmp_eq_u32 s66, -1", f"s_waitcnt vmcnt({1 if u == 1 else 0})"]
            mid += [f"ds_read_b128 {q4(AP[m])}, v{aAP+m}" for m in range(4)]
            mid += [f"s_cbranch_scc0 K2_FW{u}", f"K2_FR{u}:"]
            mid += [f"ds_read_b128 {q4(AE)}, v{aAE} offset:{(u+1)*1024}"]
            if opt.get("gstamps"): mid += ["s_memrealtime s[96:97]", "s_add_u32 m0, s55, 16"]
            t1 = tile(1, [], ex1, mid, [])
            mf = mf_tile(0)
            post = ["s_add_u32 s66, s55, 2", "s_cmp_ge_u32 s66, s53", "s_waitcnt lgkmcnt(0)"]
            if opt.get("gstamps"): post += ["v_writelane_b32 v0, s96, m0"]
            post += [f"s_cbranch_scc1 K2_ND{u}"]
            if u == 2: post += [f"ds_write_b32 v{aEI}, v{MG} offset:512"]
            for k in range(4):
                post += [f"s_add_u32 m0, s57, {k*1024}", mf[k], f"buffer_load_dwordx4 {pr(IX[k])}, s[32:35], s58 idxen offen lds"]
            post += [f"K2_NR{u}:"]
            if u == 0: post += e_dma()
            post += upd
            nst = 1 + (6 if u == 0 else 0) + len(upd) + 3 + (1 if u == 3 else 0) + 1
            if nst - 1 < 12: post += [f"s_nop {12 - (nst - 1) - 1}"]
            a("\n".join(t0 + t1 + post))
        else:
            ex0 = {}
            ex0[1] = [f"ds_read_b32 v{FV}, v{aEI} offset:{(u+1)*128}"] + [f"ds_read_b32 v{IX[k]}, v{aIDX} offset:{(u+2)*128+k*32}" for k in range(4)]
            if u == 0: ex0[1] += [f"ds_read_b32 v{EI}, v{aEI} offset:512"]
            ex0[12] = ["s_waitcnt lgkmcnt(0)", f"v_readfirstlane_b32 s66, v{FV}"]
            mid = ["s_cmp_eq_u32 s66, -1", f"s_waitcnt vmcnt({1 if u == 1 else 0})"]
            mid += [f"ds_read_b128 {q4(AP[m])}, v{aAP+m}" for m in range(4)]
            mid += [f"ds_read_b128 {q4(AO)}, v{aAO} offset:{(u+1)*1024}"]
            mid += [f"s_cbranch_scc0 K2_FW{u}", f"K2_FR{u}:"]
            mid += [f"ds_read_b128 {q4(AE)}, v{aAE} offset:{(u+1)*1024}"]
            exr = ["s_add_u32 s66, s55, 2", "s_cmp_ge_u32 s66, s53", "s_waitcnt lgkmcnt(0)", f"s_cbranch_scc1 K2_ND{u}"]
            if u == 2: exr += [f"ds_write_b32 v{aEI}, v{MG} offset:512"]
            exr += p_dma() + [f"K2_ND{u}:"]
            if u == 0: exr += e_dma()
            t0 = tile(0, mf_tile(1) + [SEGSUM], ex0, mid, exr)
            ex1 = {}
            ex1[1] = [f"ds_read_b64_tr_b16 {pr(S)}, v{aS1} offset:{u*1024}", f"ds_read_b64_tr_b16 {pr(S+2)}, v{aS2} offset:{u*1024}"]
            mid1 = []
            if u == 3:
                mid1 = [f"v_add_u32 v{aAO}, 4096, v{aAO}", f"v_add_u32 v{aAE}, 4096, v{aAE}", f"v_add_u32 v{aIDX}, 512, v{aIDX}", f"v_add_u32 v{aEI}, 512, v{aEI}",
                        "s_mov_b64 exec, s[62:63]", f"v_add_u32 v{aS1}, 4096, v{aS1}", "s_mov_b64 exec, s[64:65]", f"v_add_u32 v{aS2}, 4096, v{aS2}", "s_mov_b64 exec, -1"]
            exr1 = ["s_waitcnt lgkmcnt(0)"]
            if opt.get("gstamps"):
                mid1 = mid1 + ["s_memrealtime s[96:97]", "s_add_u32 m0, s55, 16"]
                exr1 += ["v_writelane_b32 v0, s96, m0"]
            t1 = tile(1, mf_tile(0), ex1, mid1, exr1)
            a("\n".join(t0 + t1))
        a("s_add_u32 s55, s55, 1")
        a("s_cmp_ge_u32 s55, s90")
        a(f"s_cbranch_scc1 K2_TH{u}")
        if u == 3: a("s_branch K2_U0")
    loop_end = len(a.lines)
    for u in range(4):
        a.label(f"K2_TH{u}")
        a(f"s_mov_b32 s92, {(u+1)&3}")
        if u < 3: a("s_branch K2_TH")
    a.label("K2_TH")
    a("s_cmp_ge_u32 s55, s53")
    a("s_cbranch_scc1 K2_EXIT")
    a("s_add_u32 s91, s91, 1")
    a("s_cmp_eq_u32 s91, 1")
    a("s_cbranch_scc0 K2_TH_2")
    if opt.get("prio", 1): a("s_setprio 2")
    a(f"s_sub_u32 s90, s53, {T2}")
    a("s_branch K2_TH_R")
    a.label("K2_TH_2")
    a("s_cmp_eq_u32 s91, 2")
    a("s_cbranch_scc0 K2_TH_3")
    if opt.get("prio", 1): a("s_setprio 1")
    a(f"s_sub_u32 s90, s53, {T1_}")
    a("s_branch K2_TH_R")
    a.label("K2_TH_3")
    if opt.get("prio", 1): a("s_setprio 0")
    a("s_mov_b32 s90, s53")
    a.label("K2_TH_R")
    a("s_max_i32 s90, s90, 0")
    a("s_cmp_eq_u32 s92, 1")
    a("s_cbranch_scc1 K2_U1")
    a("s_cmp_lg_u32 s60, 0")
    a("s_cbranch_scc1 K2_TH_J")
    a("s_mov_b32 s60, 1")
    a("\n".join(w2_pre(L16)))
    a.label("K2_TH_J")
    a("s_cmp_eq_u32 s92, 2")
    a("s_cbranch_scc1 K2_U2")
    a("s_cmp_eq_u32 s92, 3")
    a("s_cbranch_scc1 K2_U3")
    a("s_branch K2_U0")
    if LATE:
        for u in range(4):
            a.label(f"K2_ND{u}")
            a("\n".join(mf_tile(0)))
            a(f"s_branch K2_NR{u}")
    for u in range(4):
        a.label(f"K2_FW{u}")
        a("s_add_u32 s66, s55, 1")
        a("s_cmp_ge_u32 s66, s53")
        a(f"s_cbranch_scc1 K2_FR{u}")
        a(f"ds_read_b32 v{FV}, v{aEI} offset:{(u+1)*128}")
        a("s_waitcnt lgkmcnt(0)")
        a(f"v_readfirstlane_b32 s66, v{FV}")
        a("s_nop 0")
        a("s_cmp_eq_u32 s66, -1")
        a(f"s_cbranch_scc1 K2_FR{u}")
        a("s_sleep 1")
        a(f"s_branch K2_FW{u}")
    a.label("K2_EXIT")
    a(SEGSUM)
    stp(7)
    stc(13)
    if opt.get("stamps"): a("v_writelane_b32 v0, s53, 14")
    a(f"v_lshrrev_b32 v1, 4, v{L16}")
    a("s_cmp_lg_u32 s60, 0")
    a("s_cbranch_scc1 K2_X1")
    a("\n".join(w2_pre(L16)))
    a.label("K2_X1")
    WL = 116
    def fin_loads(l16):
        srd(a, 48, "s18", "s19", 256)
        for sidx in range(NW2, 8):
            a(f"buffer_load_dwordx4 {q4(WL+4*(sidx-NW2))}, v{l16}, s[40:43], s74 offen offset:{(sidx & 3)*1024}")
        a("v_lshrrev_b32 v8, 4, v1")
        a("v_lshlrev_b32 v9, 3, v8")
        a("s_lshl_b32 s68, s24, 5")
        a("buffer_load_dwordx2 v[10:11], v9, s[48:51], s68 offen")
    fin_loads(L16)
    a("v_subrev_u32 v2, s71, v1")
    a("v_and_b32 v2, 15, v2")
    a(f"v_mul_u32_u24 v2, {HSTR}, v2")
    a("v_and_b32 v3, 16, v1")
    a("v_lshl_add_u32 v2, v3, 2, v2")
    a("v_lshrrev_b32 v3, 5, v1")
    a("v_lshl_add_u32 v3, v3, 3, s57")
    a("v_add_u32 v2, v2, v3")
    a(f"s_waitcnt vmcnt({9 - NW2})")
    for k in range(8):
        a(f"v_cvt_pk_bf16_f32 v{EX+k}, v{ACC+2*k}, v{ACC+2*k+1}")
        if k & 1: a(f"ds_write_b64 v2, {pr(EX+k-1)} offset:{16*(k>>1)}")
    a("s_mov_b32 s66, 0x4e800000")
    a("s_mov_b32 s67, 0x4e800000")
    a(f"v_pk_mul_f32 {pr(CHK)}, {pr(CHK)}, s[66:67]")
    for k in range(0, 8, 2):
        a(f"v_pk_add_f32 {pr(ACC+2*k)}, {pr(ACC+2*k)}, {pr(ACC+2*k+2)}")
    for k in range(0, 8, 2):
        a(f"v_pk_fma_f32 {pr(CHK)}, {pr(ACC+2*k)}, 0, {pr(CHK)} op_sel_hi:[1,0,1]")
    a("v_mov_b32 v4, 0x207")
    a(f"v_add_f32 v{CHK}, v{CHK}, v{CHK+1}")
    a(f"v_mov_b32 v5, {FLAG}")
    a("v_mov_b32 v7, 1")
    a(f"v_cmpx_class_f32 vcc, v{CHK}, v4")
    a("ds_write_b32 v5, v7")
    a("s_mov_b64 exec, -1")
    a.label("K2_FIN")
    a("s_cmp_ge_u32 s24, 8")
    a("s_cbranch_scc1 K2_HEND")
    a("s_mov_b64 exec, 1")
    a("ds_add_u32 v5, v7 offset:24")
    a("s_mov_b64 exec, -1")
    a("v_and_b32 v12, 15, v1")
    a(f"v_mul_u32_u24 v2, {HSTR}, v12")
    a("v_lshl_add_u32 v2, v8, 4, v2")
    a(f"s_mov_b32 s78, {CNT}")
    a("v_lshl_add_u32 v4, v12, 2, s78")
    for mt in range(3): a(f"ds_read_b32 v{112+mt}, v4 offset:{mt*48}")
    a("v_lshl_add_u32 v13, v12, 16, v9")
    a(f"v_mov_b32 v3, {KILL:#x}")
    a("v_cmp_gt_u32 vcc, 4, v12")
    a("s_lshl_b32 s69, s2, 8")
    a("s_add_u32 s69, s69, s68")
    a("v_cndmask_b32 v14, v13, v3, vcc")
    a(f"s_add_u32 s72, s69, {12 << 16}")
    a(f"s_add_u32 s75, s69, {24 << 16}")
    a(f"s_mov_b32 s76, {NEGLN2:#x}")
    a("s_waitcnt vmcnt(0) lgkmcnt(0)")
    RS = 80
    a("v_lshlrev_b32 v104, 16, v10")
    a("v_and_b32 v105, 0xffff0000, v10")
    a("v_lshlrev_b32 v106, 16, v11")
    a("v_and_b32 v107, 0xffff0000, v11")
    for mt in range(3): a(f"v_cvt_f32_u32 v{112+mt}, v{112+mt}")
    for mt in range(3):
        for i in range(4):
            a(f"v_mul_f32 v{RS+4*mt+i}, v{112+mt}, v{104+i}")
    a.label("K2_E1")
    a("ds_read_b32 v6, v5 offset:24")
    a("s_waitcnt lgkmcnt(0)")
    a("v_readfirstlane_b32 s66, v6")
    a("s_nop 0")
    a("s_cmp_ge_u32 s66, 8")
    a("s_cbranch_scc1 K2_E2")
    a("s_sleep 2")
    a("s_branch K2_E1")
    a.label("K2_E2")
    HB = 16
    OD = 92
    def wfrag(sidx): return WP + 4*sidx if sidx < NW2 else WL + 4*(sidx - NW2)
    def hoff(mt, sidx): return (4*mt + (sidx >> 1))*4096 + (sidx & 1)*64
    order = [(sidx, mt) for sidx in range(8) for mt in range(2)]
    for n, (sidx, mt) in enumerate(order[:14]):
        a(f"ds_read_b128 {q4(HB+4*n)}, v2 offset:{hoff(mt, sidx)}")
    for n, (sidx, mt) in enumerate(order):
        issued = min(16, 14 + n)
        a(f"s_waitcnt lgkmcnt({issued - n - 1})")
        a(f"v_mfma_f32_16x16x32_bf16 {q4(OD+4*mt)}, {q4(wfrag(sidx))}, {q4(HB+4*n)}, {'0' if sidx == 0 else q4(OD+4*mt)}")
        if n < 2: a(f"ds_read_b128 {q4(HB+4*(14+n))}, v2 offset:{hoff(order[14+n][1], order[14+n][0])}")
    a("s_nop 7")
    def fin_tile(mt):
        for i in range(4):
            a(f"v_fma_f32 v{RS+4*mt+i}, v{OD+4*mt+i}, s76, v{RS+4*mt+i}")
        a(f"v_cvt_pk_bf16_f32 v{132+2*mt}, v{RS+4*mt}, v{RS+4*mt+1}")
        a(f"v_cvt_pk_bf16_f32 v{133+2*mt}, v{RS+4*mt+2}, v{RS+4*mt+3}")
        a(f"buffer_store_dwordx2 {pr(132+2*mt)}, v{13 if mt == 0 else 14}, s[44:47], s{(69,72,75)[mt]} offen")
    def merge(mt):
        for i in range(4):
            a(f"v_add_f32_dpp v{OD+4*mt+i}, v{OD+4*mt+4+i}, v{OD+4*mt+i} row_shr:12 row_mask:0xf bank_mask:0xf bound_ctrl:0")
    merge(0)
    fin_tile(0)
    stp(8)
    a("s_barrier")
    stp(9)
    for sidx in range(8):
        a(f"ds_read_b128 {q4(HB+4*sidx)}, v2 offset:{hoff(2, sidx)}")
    a("ds_read_b32 v6, v5")
    for sidx in range(8):
        a(f"s_waitcnt lgkmcnt({8 - sidx})")
        a(f"v_mfma_f32_16x16x32_bf16 {q4(OD+8)}, {q4(wfrag(sidx))}, {q4(HB+4*sidx)}, {'0' if sidx == 0 else q4(OD+8)}")
    a("s_waitcnt lgkmcnt(0)")
    a("v_readfirstlane_b32 s82, v6")
    a("s_nop 1")
    a("s_andn2_b32 s82, s82, s70")
    a("s_cmp_lg_u32 s82, 0")
    a("s_cbranch_scc1 K2_REDO")
    a("s_nop 0")
    merge(1)
    fin_tile(2)
    fin_tile(1)
    stp(10)
    if opt.get("stamps"): a("s_waitcnt vmcnt(0)")
    stp(11)
    a.label("K2_END2")
    stamp_out(a, opt, 22, 0xF80000, 24, 0, tmpv=2)
    if opt.get('gstamps'): stamp_out2(a, opt, 22, 0x1000000, 24, 0, tmpv=2)
    a.label("K2_END")
    a("s_endpgm")
    a.label("K2_HEND")
    a("s_waitcnt lgkmcnt(0)")
    stp(8)
    a("s_barrier")
    a("ds_read_b32 v6, v5")
    a("s_waitcnt lgkmcnt(0)")
    a("v_readfirstlane_b32 s82, v6")
    a("s_nop 0")
    a("s_andn2_b32 s82, s82, s70")
    a("s_cmp_lg_u32 s82, 0")
    a("s_cbranch_scc1 K2_REDO")
    a("s_branch K2_END2")
    a.label("K2_CX")
    a("s_mov_b32 s81, 2")
    count([5, 6, 7])
    decode([5, 6, 7])
    a("v_cmpx_eq_u32 vcc, -2, v23")
    a("ds_write_b32 v111, v114")
    a("s_mov_b64 exec, -1")
    a("s_branch K2_C1")
    a.label("K2_SX")
    for k in (5, 6, 7): a(f"ds_bpermute_b32 v{SB+k}, v{RA+k}, v108")
    a("s_waitcnt lgkmcnt(0)")
    scatter([5, 6, 7])
    a("s_branch K2_S1")
    a.label("K2_REDO")
    a("s_setprio 0")
    a("s_mov_b32 s70, -1")
    a("s_lshl_b32 s66, s24, 6")
    a("v_add_u32 v0, s66, v1")
    a("s_waitcnt vmcnt(0) lgkmcnt(0)")
    a("s_barrier")
    a("s_branch K2_TOP")
    a.label("K2_BAD")
    a("v_mov_b32 v108, -1")
    a("v_mov_b32 v109, -1")
    a("ds_write_b64 v111, v[108:109] offset:16")
    a("s_waitcnt vmcnt(0) lgkmcnt(0)")
    a("s_barrier")
    a.label("K2_SLOW")
    a("s_setprio 0")
    a("s_mov_b32 s70, -1")
    a("s_waitcnt vmcnt(0) lgkmcnt(0)")
    a("s_barrier")
    a("s_lshl_b32 s66, s24, 10")
    a(f"s_add_u32 s66, s66, {OH}")
    a("v_lshl_add_u32 v2, v1, 4, s66")
    for i in range(4): a(f"v_mov_b32 v{4+i}, 0")
    for i in range(4): a(f"ds_write_b128 v2, v[4:7] offset:{i*12288}")
    a("v_lshlrev_b32 v12, 2, v1")
    a(f"v_add_u32 v3, {CNT}, v12")
    a("ds_write_b32 v3, v4")
    srd(a, 84, "s8", "s9", E * 4)
    srd(a, 88, "s10", "s11", E * 4)
    a("v_and_b32 v8, 31, v1")
    a("v_lshlrev_b32 v8, 4, v8")
    a("v_lshrrev_b32 v9, 5, v1")
    a("v_lshl_add_u32 v8, v9, 10, v8")
    a("s_lshl_b32 s72, s25, 11")
    a(f"s_add_u32 s66, s72, {WCF_OFF - CELL_OFF}")
    a("buffer_load_dwordx4 v[16:19], v8, s[40:43], s66 offen")
    a("buffer_load_dwordx4 v[20:23], v8, s[40:43], s66 offen offset:512")
    a(f"s_add_u32 s72, s72, {EIM + 8192}")
    a("v_add_u32 v8, s72, v8")
    a("v_lshlrev_b32 v7, 4, v1")
    a("\n".join(w2_pre(7)))
    srd(a, 92, "s22", "s23", N * 512)
    a("v_lshlrev_b32 v10, 1, v1")
    a("v_add_u32 v10, s58, v10")
    a("v_lshlrev_b32 v11, 1, v10")
    a(f"v_add_u32 v11, {OH}, v11")
    a("v_mov_b32 v13, 1")
    a("s_waitcnt vmcnt(0)")
    for k in range(8):
        a(f"v_lshlrev_b32 v{24+2*k}, 16, v{16+k}")
        a(f"v_and_b32 v{25+2*k}, 0xffff0000, v{16+k}")
    a("s_waitcnt lgkmcnt(0)")
    a("s_barrier")
    a("s_mov_b32 s66, s26")
    a.label("K2_SL_BLK")
    a("s_lshl_b32 s67, s66, 8")
    a("buffer_load_dword v40, v12, s[88:91], s67 offen")
    a("buffer_load_dword v41, v12, s[84:87], s67 offen")
    a("s_waitcnt vmcnt(0)")
    a("v_and_b32 v42, 255, v40")
    a("v_cmp_eq_u32 vcc, s2, v42")
    a("s_nop 1")
    a("s_mov_b64 s[68:69], vcc")
    a.label("K2_SL_E")
    a("s_cmp_eq_u64 s[68:69], 0")
    a("s_cbranch_scc1 K2_SL_NB")
    a("s_ff1_i32_b64 s72, s[68:69]")
    a("s_bitset0_b64 s[68:69], s72")
    a("v_readlane_b32 s52, v40, s72")
    a("v_readlane_b32 s53, v41, s72")
    a("s_lshl_b32 s75, s66, 6")
    a("s_add_u32 s75, s75, s72")
    a("s_lshl_b32 s75, s75, 5")
    a("s_load_dwordx8 s[76:83], s[6:7], s75")
    a("s_lshl_b32 s53, s53, 9")
    a("s_lshr_b32 s52, s52, 8")
    a("s_cmp_ge_u32 s52, 16")
    a("s_cselect_b32 s75, 16384, 0")
    a("s_cmp_ge_u32 s52, 28")
    a("s_cselect_b32 s75, 32768, s75")
    a("s_bfe_u32 s55, s52, 0x10003")
    a("s_lshl_b32 s55, s55, 9")
    a("s_add_u32 s75, s75, s55")
    a("s_and_b32 s55, s52, 7")
    a("s_lshl_b32 s55, s55, 1")
    a("s_add_u32 s75, s75, s55")
    a("v_add_u32 v45, s75, v8")
    a("buffer_load_ushort v43, v10, s[92:95], s53 offen")
    a("ds_read_u16 v44, v45")
    a("s_waitcnt vmcnt(0) lgkmcnt(0)")
    a("v_lshlrev_b32 v43, 16, v43")
    a("v_lshlrev_b32 v44, 16, v44")
    a("v_add_f32 v43, v43, v44")
    for k in range(8):
        a(f"s_lshl_b32 s53, s{76+k}, 16")
        a(f"v_fmac_f32 v43, s53, v{24+2*k}")
        a(f"s_and_b32 s53, s{76+k}, 0xffff0000")
        a(f"v_fmac_f32 v43, s53, v{25+2*k}")
    a("v_exp_f32 v44, v43")
    a("s_lshl_b32 s53, s52, 10")
    a("v_add_f32 v44, 1.0, v44")
    a("v_rcp_f32 v44, v44")
    a("v_add_u32 v45, s53, v11")
    a("v_mul_f32 v43, v43, v44")
    a("ds_add_f32 v45, v43")
    a("s_cmp_lg_u32 s25, 0")
    a("s_cbranch_scc1 K2_SL_E")
    a("s_lshl_b32 s53, s52, 2")
    a(f"s_add_u32 s53, s53, {CNT}")
    a("v_mov_b32 v45, s53")
    a("s_mov_b64 exec, 1")
    a("ds_add_u32 v45, v13")
    a("s_mov_b64 exec, -1")
    a("s_branch K2_SL_E")
    a.label("K2_SL_NB")
    a("s_add_u32 s66, s66, 3")
    a(f"s_cmp_lt_u32 s66, {E // 64}")
    a("s_cbranch_scc1 K2_SL_BLK")
    a("s_waitcnt lgkmcnt(0)")
    a("s_barrier")
    a("v_and_b32 v2, 31, v1")
    a("v_lshrrev_b32 v3, 5, v1")
    a("s_mov_b32 s66, 0")
    a.label("K2_SL_CV")
    a("v_add_u32 v4, s66, v3")
    a("v_add_u32 v5, s71, v4")
    a("s_cmp_lt_u32 s66, 4")
    a("s_cselect_b32 s67, s26, 0")
    a("s_cmp_lg_u32 s67, 0")
    a("s_cbranch_scc0 K2_SL_NZ")
    a("v_mov_b32 v5, 47")
    a.label("K2_SL_NZ")
    a("v_lshlrev_b32 v5, 10, v5")
    a("v_lshl_add_u32 v5, v2, 3, v5")
    a("s_lshl_b32 s67, s58, 1")
    a(f"s_add_u32 s67, s67, {OH}")
    a("v_add_u32 v5, s67, v5")
    a("ds_read_b64 v[6:7], v5")
    a(f"v_mul_u32_u24 v4, {HSTR}, v4")
    a("v_lshl_add_u32 v4, v2, 2, v4")
    a("v_add_u32 v4, s57, v4")
    a("s_waitcnt lgkmcnt(0)")
    a("v_cvt_pk_bf16_f32 v6, v6, v7")
    a("ds_write_b32 v4, v6")
    a("s_add_u32 s66, s66, 2")
    a("s_cmp_lt_u32 s66, 16")
    a("s_cbranch_scc1 K2_SL_CV")
    a("v_lshlrev_b32 v7, 4, v1")
    fin_loads(7)
    a(f"v_mov_b32 v5, {FLAG}")
    a("v_mov_b32 v7, 1")
    a("s_branch K2_FIN")
    a.loop = (loop_start, loop_end)
    return a, NV2, (102 if opt.get('stamps') else 96)
```

```python
from asmlib import *

N = 10000; E = 320000
P_OFF = 4096
CELL_OFF = 0xA00000
W2F_OFF = 0xE00000
W1BF_OFF = 0xE10000
WCF_OFF = 0xE20000
FRAG_BYTES = 0x22000
NSORT = 128
CHUNK = 2500
GROWS = 64
NGEMM = 157
NSORTWG = 64
NPREP = 17
K1_WGS = NGEMM + NSORTWG + NPREP
K1_BLOCK = 1024
K1_LDS = 65536 + GROWS * 256
NEGLOG2E = 0xBFB8AA3B
OVF = 0xFFFFFFFE

def srd(a, r, lo, hi, size):
    a(f"s_mov_b32 s{r}, {lo}")
    a(f"s_mov_b32 s{r+1}, {hi}")
    a(f"s_mov_b32 s{r+2}, {size}")
    a(f"s_mov_b32 s{r+3}, 0x00020000")

def srd_ws(a, r, wslo, off, size):
    a(f"s_add_u32 s{r}, s{wslo}, {off}")
    a(f"s_addc_u32 s{r+1}, s{wslo+1}, 0")
    a(f"s_mov_b32 s{r+2}, {size}")
    a(f"s_mov_b32 s{r+3}, 0x00020000")

def stamp(a, opt, idx, vreg, sreg=96):
    if not opt.get("stamps"): return
    a(f"s_memrealtime s[{sreg}:{sreg+1}]")
    a("s_waitcnt lgkmcnt(0)")
    a(f"v_writelane_b32 v{vreg}, s{sreg}, {idx}")
def stamp_out(a, opt, wslo, off, wavereg, vreg, sreg=96, tmpv=151):
    if not opt.get("stamps"): return
    a(f"s_add_u32 s{sreg}, s{wslo}, {off}")
    a(f"s_addc_u32 s{sreg+1}, s{wslo+1}, 0")
    a(f"s_mov_b32 s{sreg+2}, 0x80000")
    a(f"s_mov_b32 s{sreg+3}, 0x00020000")
    a(f"s_lshl_b32 s100, s2, 4")
    a(f"s_add_u32 s100, s100, s{wavereg}")
    a(f"s_lshl_b32 s100, s100, 6")
    a(f"v_mbcnt_lo_u32_b32 v{tmpv}, -1, 0")
    a(f"v_lshlrev_b32 v{tmpv}, 2, v{tmpv}")
    a("s_mov_b64 exec, 0xffff")
    a(f"buffer_store_dword v{vreg}, v{tmpv}, s[{sreg}:{sreg+3}], s100 offen")
    a("s_mov_b64 exec, -1")
def stamp_out2(a, opt, wslo, off, wavereg, vreg, sreg=96, tmpv=151):
    a(f"s_add_u32 s{sreg}, s{wslo}, {off}")
    a(f"s_addc_u32 s{sreg+1}, s{wslo+1}, 0")
    a(f"s_lshl_b32 s100, s100, 1")
    a("s_mov_b64 exec, 0xffffffff")
    a(f"buffer_store_dword v{vreg}, v{tmpv}, s[{sreg}:{sreg+3}], s100 offen")
    a("s_mov_b64 exec, -1")

def gen_k1(opt=None):
    opt = opt or {}
    SV = 120
    SFD = {0: "", 1: " sc1", 2: " sc0 sc1", 3: " nt", 4: " nt sc1"}
    SF = SFD[opt.get("sf", 1)]
    SFG = SFD[opt.get("sfg", 1)]
    NT = " nt" if opt.get("knt", 1) else ""
    NTX = " nt" if opt.get("kntx", 1) else ""
    a = Asm()
    a.label("mpnn_pre_kernel")
    a(f"s_cmp_ge_u32 s2, {K1_WGS}")
    a("s_cbranch_scc1 K1_END")
    if opt.get("stamps"): a(f"v_mov_b32 v{SV}, 0")
    stamp(a, opt, 0, SV)
    a("s_load_dwordx16 s[4:19], s[0:1], 0")
    a("s_load_dwordx2 s[20:21], s[0:1], 80")
    a("v_lshrrev_b32 v1, 6, v0")
    a("v_and_b32 v2, 63, v0")
    a("v_readfirstlane_b32 s22, v1")
    a(f"s_cmp_ge_u32 s2, {NGEMM}")
    a("s_cbranch_scc1 K1_SORT")
    XI = 65536
    a("v_lshrrev_b32 v10, 4, v0")
    a("v_xor_b32 v11, v10, v2")
    a("v_and_b32 v11, 15, v11")
    a("v_lshlrev_b32 v11, 4, v11")
    a("v_lshl_add_u32 v8, v10, 8, v11")
    a("v_lshrrev_b32 v5, 5, v2")
    a("v_and_b32 v6, 31, v2")
    a("v_lshlrev_b32 v7, 2, v5")
    a("v_xor_b32 v7, v7, v6")
    a("v_lshlrev_b32 v7, 4, v7")
    a("v_lshl_add_u32 v3, v5, 9, v7")
    a("v_xor_b32 v4, 0x80, v3")
    a("s_lshl_b32 s45, s22, 11")
    a("s_add_u32 s47, s45, 32768")
    a(f"s_mul_i32 s48, s2, {GROWS*256}")
    a("s_lshl_b32 s49, s22, 10")
    a(f"s_add_u32 m0, s49, {XI}")
    a("s_waitcnt lgkmcnt(0)")
    srd(a, 32, "s4", "s5", N * 256)
    srd(a, 28, "s12", "s13", 272 * 512)
    if opt.get("wwu", 0):
        a("s_cmp_lg_u32 s22, 0")
        a("s_cbranch_scc1 K1_NWU")
        a("s_bfe_u32 s46, s2, 0x40003")
        a("s_lshl_b32 s46, s46, 12")
        a("v_lshlrev_b32 v12, 7, v6")
        a("buffer_load_dword v14, v12, s[28:31], s46 offen")
        a.label("K1_NWU")
    DS = opt.get("ds", 0)
    def dma_set(sh):
        a(f"buffer_load_dwordx4 v8, s[32:35], s48 offen{NTX} lds")
        a("s_mov_b32 m0, s45")
        a("s_nop 0")
        for k in range(2):
            a(f"buffer_load_dwordx4 v{3 + (k & 1)}, s[28:31], s45 offen offset:{k*1024} lds")
    def dma_set2():
        a("s_mov_b32 m0, s47")
        a("s_nop 0")
        for k in range(2):
            a(f"buffer_load_dwordx4 v{3 + (k & 1)}, s[28:31], s47 offen offset:{k*1024} lds")
    if DS:
        a("s_cmp_lt_u32 s22, 12")
        a("s_cbranch_scc1 K1_G12")
        srd_ws(a, 36, 20, P_OFF, (N + 1) * 512)
        a(f"s_mul_i32 s52, s2, {GROWS*512}")
        a("v_subrev_u32 v12, 768, v0")
        if DS == 1:
            a("v_lshlrev_b32 v12, 7, v12")
            a("buffer_store_dword v12, v12, s[36:39], s52 offen sc1")
        else:
            a("v_lshlrev_b32 v12, 4, v12")
            for i in range(8):
                a("buffer_store_dwordx4 v[4:7], v12, s[36:39], s52 offen sc1")
                a("s_add_u32 s52, s52, 4096")
        a("s_barrier")
        a("s_barrier")
        a("s_waitcnt vmcnt(0)")
        a("s_barrier")
        a("s_endpgm")
        a.label("K1_G12")
    dma_set(0)
    if DS:
        a("s_cmp_lt_u32 s22, 8")
        a("s_cbranch_scc1 K1_G8")
        a(f"s_add_u32 m0, s49, {XI + 4096}")
        a("s_add_u32 s48, s48, 4096")
        a("s_add_u32 s45, s45, 8192")
        dma_set(4)
        dma_set2()
        a("s_add_u32 s47, s47, 8192")
        dma_set2()
        a("s_waitcnt vmcnt(4)")
        a("s_barrier")
        a("s_waitcnt vmcnt(0)")
        a("s_barrier")
        a("s_endpgm")
        a.label("K1_G8")
        dma_set2()
    else:
        dma_set2()
        a("s_cmp_lt_u32 s22, 8")
        a("s_cbranch_scc1 K1_GC")
        a("s_waitcnt vmcnt(2)")
        a("s_barrier")
        a("s_waitcnt vmcnt(0)")
        a("s_barrier")
        a("s_endpgm")
    a.label("K1_GC")
    a("s_lshr_b32 s26, s22, 2")
    a("s_and_b32 s27, s22, 3")
    a("s_lshl_b32 s50, s27, 7")
    srd_ws(a, 36, 20, P_OFF, (N + 1) * 512)
    a("v_and_b32 v17, 15, v2")
    a("v_xor_b32 v17, v17, v5")
    a("s_lshl_b32 s51, s26, 13")
    a(f"s_add_u32 s51, s51, {XI}")
    a("v_lshl_add_u32 v17, v17, 4, s51")
    a("v_lshl_add_u32 v16, v6, 8, v17")
    for sidx in range(1, 8):
        a(f"v_xor_b32 v{16+sidx}, {sidx << 5}, v16")
    a("v_bfe_u32 v26, v2, 2, 2")
    a("v_lshl_add_u32 v27, v5, 3, v26")
    a("v_and_b32 v28, 3, v2")
    a("v_lshl_add_u32 v28, v28, 3, s50")
    a("v_bfe_u32 v29, v2, 4, 1")
    a("v_lshl_add_u32 v28, v29, 5, v28")
    a("v_lshlrev_b32 v26, 6, v26")
    a("v_xor_b32 v28, v28, v26")
    a("v_lshl_add_u32 v24, v27, 9, v28")
    a("v_xor_b32 v25, 64, v24")
    a("v_lshl_add_u32 v13, v6, 2, s50")
    a("v_lshl_add_u32 v13, v5, 11, v13")
    a(f"s_mul_i32 s52, s2, {GROWS*512}")
    a("s_lshl_b32 s51, s26, 14")
    a("s_add_u32 s52, s52, s51")
    a("s_add_u32 s53, s52, 4096")
    a("s_add_u32 s54, s52, 8192")
    a("s_add_u32 s55, s52, 12288")
    a(f"s_mov_b32 s56, {NEGLOG2E:#x}")
    a(f"s_mov_b32 s57, {NEGLOG2E:#x}")
    stamp(a, opt, 1, SV)
    a("s_waitcnt vmcnt(2)")
    stamp(a, opt, 2, SV)
    a("s_barrier")
    AF = 32; BF = 48; DA = 80; DB = 96
    def reads(sidx):
        st = sidx & 3
        a(f"ds_read_b128 {v(AF+4*st,4)}, v{16+sidx}")
        for X in range(2):
            for e in range(2):
                a(f"ds_read_b64_tr_b16 {v(BF+8*st+4*X+2*e,2)}, v{24+X} offset:{sidx*8192+e*2048}")
    def mm(sidx):
        st = sidx & 3
        ca = "0" if sidx == 0 else v(DA, 16)
        cb = "0" if sidx == 0 else v(DB, 16)
        a(f"v_mfma_f32_32x32x16_bf16 {v(DA,16)}, {v(AF+4*st,4)}, {v(BF+8*st,4)}, {ca}")
        a(f"v_mfma_f32_32x32x16_bf16 {v(DB,16)}, {v(AF+4*st,4)}, {v(BF+8*st+4,4)}, {cb}")
    reads(0); reads(1); reads(2)
    a("s_waitcnt lgkmcnt(10)"); mm(0); reads(3)
    a("s_waitcnt lgkmcnt(10)"); mm(1)
    a("s_waitcnt vmcnt(0)")
    a("s_barrier")
    reads(4)
    a("s_waitcnt lgkmcnt(10)"); mm(2); reads(5)
    a("s_waitcnt lgkmcnt(10)"); mm(3); reads(6)
    a("s_waitcnt lgkmcnt(10)"); mm(4); reads(7)
    a("s_waitcnt lgkmcnt(10)"); mm(5)
    a("s_waitcnt lgkmcnt(5)"); mm(6)
    a("s_waitcnt lgkmcnt(0)"); mm(7)
    if DS: a("s_barrier")
    a("s_nop 10")
    stamp(a, opt, 3, SV)
    for r in range(0, 16, 2):
        a(f"v_pk_mul_f32 {v(DA+r,2)}, {v(DA+r,2)}, s[56:57]")
        a(f"v_pk_mul_f32 {v(DB+r,2)}, {v(DB+r,2)}, s[56:57]")
        for rr in (r, r + 1):
            a(f"v_cvt_pk_bf16_f32 v{AF+rr}, v{DA+rr}, v{DB+rr}")
            a(f"buffer_store_dword v{AF+rr}, v13, s[36:39], s{52 + (rr >> 2)} offen offset:{(rr & 3)*512}{SFG}")
    stamp(a, opt, 4, SV)
    if opt.get("stamps"): a("s_waitcnt vmcnt(0)")
    stamp(a, opt, 5, SV)
    stamp_out(a, opt, 20, 0xF00000, 22, SV, tmpv=121)
    a("s_endpgm")
    a.label("K1_SORT")
    CNT = 32768
    HB = 36864
    a(f"s_sub_u32 s3, s2, {NGEMM}")
    a(f"s_cmp_ge_u32 s3, {NSORTWG}")
    a("s_cbranch_scc1 K1_HELP")
    a("s_and_b32 s24, s3, 7")
    a("s_lshl_b32 s24, s24, 4")
    a("s_lshr_b32 s25, s3, 3")
    a("s_lshl_b32 s25, s25, 1")
    a("s_add_u32 s24, s24, s25")
    a("s_lshr_b32 s25, s22, 3")
    a("s_add_u32 s3, s24, s25")
    a(f"s_mul_i32 s54, s25, {HB}")
    a("v_and_b32 v0, 511, v0")
    a("v_lshlrev_b32 v3, 2, v0")
    a("v_add_u32 v4, 4096, v3")
    a("v_add_u32 v5, 8192, v3")
    a(f"s_mul_i32 s23, s3, {CHUNK*4}")
    a("s_waitcnt lgkmcnt(0)")
    srd(a, 32, "s10", "s11", E * 4)
    for i in range(5):
        a(f"buffer_load_dword v{10+i}, v{3 + (i >> 1)}, s[32:35], s23 offen offset:{(i & 1)*2048}{NT}")
    srd(a, 28, "s8", "s9", E * 4)
    for i in range(5):
        a(f"buffer_load_dword v{16+i}, v{3 + (i >> 1)}, s[28:31], s23 offen offset:{(i & 1)*2048}{NT}")
    a("v_mov_b32 v24, -1\nv_mov_b32 v25, -1\nv_mov_b32 v26, -1\nv_mov_b32 v27, -1")
    a("v_mov_b32 v28, 0")
    a("v_lshl_add_u32 v6, v0, 4, s54")
    a("v_add_u32 v7, s54, v3")
    a(f"ds_write_b32 v7, v28 offset:{CNT}")
    for i in range(4):
        a(f"ds_write_b128 v6, v[24:27] offset:{i*8192}")
    srd_ws(a, 36, 20, CELL_OFF, 256 * 128 * 128)
    a("v_mov_b32 v29, 1")
    a(f"v_mov_b32 v30, {OVF - (1 << 32)}")
    a("v_lshlrev_b32 v31, 6, v0")
    a("v_lshrrev_b32 v44, 3, v0")
    a("v_xor_b32 v45, v44, v0")
    a("v_and_b32 v45, 7, v45")
    a("v_lshl_add_u32 v45, v45, 4, s54")
    a("v_lshl_add_u32 v45, v44, 7, v45")
    a("v_and_b32 v46, 7, v0")
    a("v_lshlrev_b32 v46, 4, v46")
    a("v_lshl_add_u32 v46, v44, 14, v46")
    a("s_lshl_b32 s24, s3, 7")
    for i in range(1, 4):
        a(f"s_add_u32 s{24+i}, s24, {i << 20}")
    for i in range(5):
        a(f"v_add_u32 v{84+i}, {i*32768}, v31")
    a(f"v_cmp_gt_u32 vcc, {CHUNK - 2048}, v0")
    a("s_waitcnt lgkmcnt(0)")
    a("s_mov_b64 s[52:53], vcc")
    stamp(a, opt, 1, SV)
    a("s_barrier")
    if opt.get("stamps"): a("s_waitcnt vmcnt(0)")
    stamp(a, opt, 2, SV)
    for i in range(5):
        a(f"s_waitcnt vmcnt({9 - i})")
        a(f"v_and_b32 v{32+i}, 255, v{10+i}")
        a(f"v_lshl_add_u32 v{37+i}, v{32+i}, 2, s54")
        if i == 4: a("s_mov_b64 exec, s[52:53]")
        a(f"ds_add_rtn_u32 v{60+i}, v{37+i}, v29 offset:{CNT}")
        if i == 4: a("s_mov_b64 exec, -1")
    for i in range(5):
        a(f"s_waitcnt vmcnt({4 - i})")
        a(f"v_lshrrev_b32 v{10+i}, 8, v{10+i}")
        a(f"v_lshl_or_b32 v{10+i}, v{16+i}, 18, v{10+i}")
        a(f"v_or_b32 v{10+i}, v{10+i}, v{84+i}")
        a(f"v_and_b32 v{16+i}, 28, v{37+i}")
        a(f"v_lshlrev_b32 v{32+i}, 5, v{32+i}")
    for i in range(5):
        a("s_waitcnt lgkmcnt(4)")
        a(f"v_cmp_lt_u32 vcc, 30, v{60+i}")
        a(f"v_min_u32 v{60+i}, 31, v{60+i}")
        a(f"v_lshl_or_b32 v{60+i}, v{60+i}, 5, v{60+i}")
        a(f"v_bfe_u32 v{60+i}, v{60+i}, 2, 5")
        a(f"v_xad_u32 v{60+i}, v{60+i}, v{16+i}, v{32+i}")
        a(f"v_cndmask_b32 v{10+i}, v{10+i}, v30, vcc")
        a(f"v_lshl_add_u32 v{60+i}, v{60+i}, 2, s54")
        if i == 4: a("s_mov_b64 exec, s[52:53]")
        a(f"ds_write_b32 v{60+i}, v{10+i}")
        if i == 4: a("s_mov_b64 exec, -1")
    a("s_waitcnt lgkmcnt(0)")
    a("s_barrier")
    stamp(a, opt, 3, SV)
    for i in range(4):
        a(f"ds_read_b128 {v(64+4*i,4)}, v45 offset:{i*8192}")
    for i in range(4):
        a(f"s_waitcnt lgkmcnt({3 - i})")
        a(f"buffer_store_dwordx4 {v(64+4*i,4)}, v46, s[36:39], s{24+i} offen{SF}")
    stamp(a, opt, 4, SV)
    if opt.get("stamps"): a("s_waitcnt vmcnt(0)")
    stamp(a, opt, 5, SV)
    stamp_out(a, opt, 20, 0xF00000, 22, SV, tmpv=121)
    a("s_endpgm")
    a.label("K1_HELP")
    a(f"s_sub_u32 s3, s3, {NSORTWG}")
    a("s_waitcnt lgkmcnt(0)")
    srd_ws(a, 40, 20, W2F_OFF, FRAG_BYTES)
    a("v_lshlrev_b32 v6, 4, v2")
    a("s_cmp_lt_u32 s22, 8")
    a("s_cbranch_scc1 K1_H8")
    a("s_cmp_lt_u32 s22, 10")
    a("s_cbranch_scc0 K1_END")
    a("s_getpc_b64 s[60:61]")
    a.label("K1_PC")
    a("s_add_u32 s60, s60, mpnn_main_kernel-K1_PC")
    a("s_addc_u32 s61, s61, 0")
    a("s_mov_b32 s62, K2_REDO-mpnn_main_kernel")
    a("s_mov_b32 s63, 0x00020000")
    a("v_subrev_u32 v7, 512, v0")
    a("v_lshlrev_b32 v7, 7, v7")
    a("buffer_load_dword v22, v7, s[60:63], 0 offen")
    a("s_endpgm")
    a.label("K1_H8")
    a("s_lshl_b32 s3, s3, 3")
    a("s_add_u32 s3, s3, s22")
    a("s_mov_b32 s58, s3")
    a("s_bfe_u32 s26, s3, 0x30003")
    a("s_and_b32 s27, s3, 7")
    a("s_cmp_ge_u32 s3, 128")
    a("s_cselect_b32 s26, s27, s26")
    a("s_cselect_b32 s27, 8, s27")
    a("s_cmp_ge_u32 s3, 64")
    a("s_cbranch_scc1 K1_PREP1")
    srd(a, 44, "s16", "s17", 256 * 256)
    a("v_and_b32 v40, 15, v2")
    a("v_lshlrev_b32 v40, 1, v40")
    a("v_lshrrev_b32 v41, 4, v2")
    a("v_lshl_add_u32 v40, v41, 10, v40")
    a("v_add_u32 v41, 8192, v40")
    a("s_bfe_u32 s24, s3, 0x20001")
    a("s_lshl_b32 s24, s24, 14")
    a("s_and_b32 s25, s3, 1")
    a("s_lshl_b32 s25, s25, 12")
    a("s_add_u32 s24, s24, s25")
    a("s_lshr_b32 s25, s3, 3")
    a("s_lshl_b32 s25, s25, 5")
    a("s_add_u32 s24, s24, s25")
    for e in range(8):
        a(f"buffer_load_ushort v{48+e}, v{40 + (e & 1)}, s[44:47], s24 offen offset:{(e >> 1)*256}")
    a("s_branch K1_PFIN")
    a.label("K1_PREP1")
    srd(a, 44, "s12", "s13", 272 * 512)
    a("v_and_b32 v42, 1, v2")
    a("v_lshlrev_b32 v42, 6, v42")
    a("v_and_b32 v43, 30, v2")
    a("v_add_u32 v42, v42, v43")
    a("v_lshrrev_b32 v43, 5, v2")
    a("v_lshl_add_u32 v42, v43, 12, v42")
    a("s_lshr_b32 s24, s26, 1")
    a("s_lshl_b32 s24, s24, 7")
    a("s_and_b32 s25, s26, 1")
    a("s_lshl_b32 s25, s25, 5")
    a("s_add_u32 s24, s24, s25")
    a("s_lshl_b32 s27, s27, 13")
    a("s_add_u32 s24, s24, s27")
    a(f"s_add_u32 s24, s24, {128*512}")
    for e in range(8):
        a(f"buffer_load_ushort v{48+e}, v42, s[44:47], s24 offen offset:{e*512}")
    a.label("K1_PFIN")
    a("s_lshl_b32 s24, s58, 10")
    a("s_cmp_ge_u32 s58, 128")
    a("s_waitcnt vmcnt(0)")
    a("s_cbranch_scc1 K1_FINC")
    for e in range(4):
        a(f"v_lshl_or_b32 v{56+e}, v{49+2*e}, 16, v{48+2*e}")
    a("buffer_store_dwordx4 v[56:59], v6, s[40:43], s24 offen")
    a("s_endpgm")
    a.label("K1_FINC")
    a(f"s_mov_b32 s25, {NEGLOG2E:#x}")
    for e in range(8):
        a(f"v_lshlrev_b32 v{48+e}, 16, v{48+e}")
        a(f"v_mul_f32 v{48+e}, s25, v{48+e}")
    for e in range(4):
        a(f"v_cvt_pk_bf16_f32 v{56+e}, v{48+2*e}, v{49+2*e}")
    a("buffer_store_dwordx4 v[56:59], v6, s[40:43], s24 offen")
    a.label("K1_END")
    a("s_endpgm")
    return a, (128 if opt.get('stamps') else 112), (102 if opt.get('stamps') else 64)
```

```python
from asmlib import *
from k1 import *

NW = 12
PSLOT = 0
EIM = 49152
OH = 98304
ZERO = 147456
CNT = ZERO + 256
FLAG = ZERO + 512
IDX = ZERO + 3328
EOFF = IDX + 6400
HSTR = 144
K2_LDS = 163840
assert EOFF + 6144 <= K2_LDS
GCAP = 48
KILL = 0x40000000
NEGLN2 = 0xBF317218
aAE = 1; aAP = 2; aAO = 7; aS1 = 8; aS2 = 9; aIDX = 10; aEI = 11; EI = 12; CHK = 14
D = [16, 32]; EX = 48; ACC = 64; BC = [80, 84]; BQ = [88, 92]; ID = [96, 100]
AE = 104; FV = 164; MG = 165; AO = 108; S = 112; AP = [116, 120, 124, 128]; HQ = 132; IX = [136, 138, 140, 142]
WP = 144
NV2 = 168

def pr(r): return v(r, 2)
def q4(r): return v(r, 4)
def x16(r): return v(r, 16)

def mf_tile(Y):
    d = D[Y]
    return [f"v_mfma_f32_32x32x16_bf16 {x16(d)}, {q4(AE)}, {q4(BC[Y])}, 0",
            f"v_mfma_f32_32x32x16_bf16 {x16(d)}, {q4(AO)}, {q4(BQ[Y])}, {x16(d)}",
            f"v_mfma_f32_32x32x16_bf16 {x16(d)}, {q4(AP[2*Y])}, {q4(ID[0])}, {x16(d)}",
            f"v_mfma_f32_32x32x16_bf16 {x16(d)}, {q4(AP[2*Y+1])}, {q4(ID[1])}, {x16(d)}"]
SEGSUM = f"v_mfma_f32_32x32x16_bf16 {x16(ACC)}, {q4(HQ)}, {q4(S)}, {x16(ACC)}"

OCT = [0]
QTAILS = []
def tile(X, mf, ex_exp, mid, ex_rcp, tag=None):
    d = D[X]; out = []; mi = 0
    for i in range(16):
        if i % 3 == 0 and mi < len(mf):
            out.append(mf[mi]); mi += 1
        out.append(f"v_exp_f32 v{EX+i}, v{d+i}")
        out += ex_exp.get(i, [])
    out += mid
    NAB, NCD, DAB, DCD = d, d + 8, EX, EX + 8
    out.append(f"v_pk_add_f32 {pr(DAB)}, {pr(EX)}, 1.0 op_sel_hi:[1,0]")
    out.append(f"v_pk_add_f32 {pr(DCD)}, {pr(EX+8)}, 1.0 op_sel_hi:[1,0]")
    for k in range(1, 4):
        out.append(f"v_pk_fma_f32 {pr(NAB)}, {pr(NAB)}, {pr(EX+2*k)}, {pr(NAB)}")
        out.append(f"v_pk_fma_f32 {pr(NCD)}, {pr(NCD)}, {pr(EX+8+2*k)}, {pr(NCD)}")
        out.append(f"v_pk_fma_f32 {pr(NAB)}, {pr(d+2*k)}, {pr(DAB)}, {pr(NAB)}")
        out.append(f"v_pk_fma_f32 {pr(NCD)}, {pr(d+8+2*k)}, {pr(DCD)}, {pr(NCD)}")
        out.append(f"v_pk_fma_f32 {pr(DAB)}, {pr(DAB)}, {pr(EX+2*k)}, {pr(DAB)}")
        out.append(f"v_pk_fma_f32 {pr(DCD)}, {pr(DCD)}, {pr(EX+8+2*k)}, {pr(DCD)}")
    qt = [f"v_pk_fma_f32 {pr(CHK)}, {pr(DAB)}, {pr(DCD)}, {pr(CHK)}"]
    for r in (DAB, DAB + 1, DCD, DCD + 1):
        qt.append(f"v_rcp_f32 v{r}, v{r}")
    qt.append(f"v_pk_mul_f32 {pr(NAB)}, {pr(NAB)}, {pr(DAB)}")
    qt.append(f"v_pk_mul_f32 {pr(NCD)}, {pr(NCD)}, {pr(DCD)}")
    qt.append(f"v_cvt_pk_bf16_f32 v{HQ+2*X}, v{NAB}, v{NAB+1}")
    qt.append(f"v_cvt_pk_bf16_f32 v{HQ+2*X+1}, v{NCD}, v{NCD+1}")
    out += ex_rcp
    if not OCT[0] or tag is None:
        return out + qt
    DM = EX + 2
    out += ["s_bitcmp1_b32 s95, s55", f"s_cbranch_scc1 K2_QT{tag}",
            f"v_pk_mul_f32 {pr(DM)}, {pr(DAB)}, {pr(DCD)}",
            f"v_pk_mul_f32 {pr(NAB)}, {pr(NAB)}, {pr(DCD)}",
            "s_bitcmp0_b32 s54, s55",
            f"v_rcp_f32 v{DM+2}, v{DM}",
            f"v_rcp_f32 v{DM+3}, v{DM+1}",
            f"v_pk_fma_f32 {pr(NAB)}, {pr(NCD)}, {pr(DAB)}, {pr(NAB)}",
            f"v_pk_add_f32 {pr(CHK)}, {pr(CHK)}, {pr(DM)}",
            f"v_pk_mul_f32 {pr(NAB)}, {pr(NAB)}, {pr(DM+2)}",
            f"s_cbranch_scc1 K2_OZ{tag}",
            f"v_mov_b32 v{HQ+2*X+1}, 0",
            f"K2_OZ{tag}:",
            f"v_cvt_pk_bf16_f32 v{HQ+2*X}, v{NAB}, v{NAB+1}",
            f"K2_QR{tag}:"]
    QTAILS.append([f"K2_QT{tag}:"] + qt + [f"s_branch K2_QR{tag}"])
    return out

PFL = [""]
def p_dma():
    return [f"buffer_load_dwordx4 {pr(IX[k])}, s[32:35], s{28+k} idxen offen offset:{k*1024}{PFL[0]} lds" for k in range(4)]

EFL = [""]
def e_dma():
    return ["s_cmp_lt_u32 s61, s53",
            f"s_cselect_b32 s86, {E}, 0",
            f"s_cselect_b32 m0, s59, {K2_LDS:#x}",
            "s_add_u32 s61, s61, 4",
            f"buffer_load_dwordx4 {pr(EI)}, s[84:87], 0 idxen offen{EFL[0]} lds",
            "s_mov_b32 m0, s57",
            "s_add_u32 s59, s59, 4096"]
NW2 = 5
def w2_pre(vaddr):
    return [f"buffer_load_dwordx4 {q4(WP+4*sidx)}, v{vaddr}, s[40:43], s{73 + (sidx >> 2)} offen offset:{(sidx & 3)*1024}" for sidx in range(NW2)]

def gen_k2(opt=None):
    opt = opt or {}
    EFL[0] = {0: "", 1: " nt", 2: " sc1"}[opt.get("efl", 0)]
    OCT[0] = opt.get("oct", 0)
    QTAILS.clear()
    PFL[0] = {0: "", 1: " sc1", 2: " sc0 sc1", 3: " sc0"}[opt.get("pfl", 0)]
    a = Asm()
    def stp(i):
        if opt.get("stamps"):
            a("s_memrealtime s[96:97]"); a("s_waitcnt lgkmcnt(0)"); a(f"v_writelane_b32 v0, s96, {i}")
    def stc(i):
        if opt.get("stamps"):
            a("s_memtime s[96:97]"); a("s_waitcnt lgkmcnt(0)"); a(f"v_writelane_b32 v0, s96, {i}")
    a.label("mpnn_main_kernel")
    a("s_cmp_ge_u32 s2, 256")
    a("s_cbranch_scc1 K2_END")
    a("s_mov_b32 s70, 0")
    a.label("K2_TOP")
    a("s_load_dwordx2 s[22:23], s[0:1], 80")
    a("s_load_dwordx16 s[4:19], s[0:1], 0")
    a("s_load_dwordx2 s[20:21], s[0:1], 64")
    if opt.get("stamps"): a("s_memrealtime s[98:99]")
    a("v_lshrrev_b32 v72, 6, v0")
    a("v_and_b32 v1, 63, v0")
    a("v_readfirstlane_b32 s24, v72")
    a("v_lshlrev_b32 v25, 5, v0")
    a("v_lshlrev_b32 v24, 4, v0")
    L16 = 6
    a(f"v_lshlrev_b32 v{L16}, 4, v1")
    a("s_lshl_b32 s66, s2, 14")
    a("s_and_b32 s25, s24, 3")
    a("s_lshr_b32 s26, s24, 2")
    a("s_cmp_ge_u32 s24, 8")
    a("s_cbranch_scc1 K2_HL")
    a("s_waitcnt lgkmcnt(0)")
    srd_ws(a, 40, 22, CELL_OFF, (W2F_OFF - CELL_OFF) + FRAG_BYTES)
    CNTF = " nt" if opt.get("cnt_nt") else ""
    a(f"buffer_load_dwordx4 v[16:19], v25, s[40:43], s66 offen{CNTF}")
    a(f"buffer_load_dwordx4 v[20:23], v25, s[40:43], s66 offen offset:16{CNTF}")
    a("s_branch K2_CM")
    a.label("K2_HL")
    a("v_lshrrev_b32 v77, 4, v1")
    a("s_lshl_b32 s68, s25, 2")
    a("v_add_u32 v77, s68, v77")
    a("v_xor_b32 v27, v77, v1")
    a("v_and_b32 v27, 15, v27")
    a("v_lshlrev_b32 v27, 4, v27")
    a("v_lshl_add_u32 v26, v77, 16, v27")
    for win in (1, 2):
        a(f"v_subrev_u32 v78, {12*win}, v77")
        a("v_and_b32 v78, 15, v78")
        a(f"v_add_u32 v78, {12*win}, v78")
        a(f"v_lshl_add_u32 v{27+win}, v78, 16, v27")
    a("s_lshl_b32 s68, s2, 8")
    a("s_lshl_b32 s69, s25, 10")
    a(f"s_add_u32 m0, s69, {EIM + 4096}")
    a("s_waitcnt lgkmcnt(0)")
    srd(a, 36, "s4", "s5", N * 256)
    a("buffer_load_dwordx4 v26, s[36:39], s68 offen lds")
    a(f"s_add_u32 m0, s69, {EIM + 4096 + 16384}")
    srd_ws(a, 40, 22, CELL_OFF, (W2F_OFF - CELL_OFF) + FRAG_BYTES)
    a("buffer_load_dwordx4 v28, s[36:39], s68 offen lds")
    a(f"s_add_u32 m0, s69, {EIM + 4096 + 32768}")
    a("s_lshr_b32 s66, s2, 3")
    a("buffer_load_dwordx4 v29, s[36:39], s68 offen lds")
    a(f"s_mul_i32 s66, s66, {34*128}")
    a(f"s_mul_i32 s67, s25, {9*128}")
    a("s_add_u32 s66, s66, s67")
    a(f"s_add_u32 s66, s66, {W2F_OFF - CELL_OFF}")
    a("v_min_u32 v30, 8, v1")
    a("v_lshlrev_b32 v30, 7, v30")
    a("buffer_load_dword v134, v30, s[40:43], s66 offen")
    a.label("K2_CM")
    a("s_mul_i32 s71, s26, 12")
    a("s_lshl_b32 s56, s26, 14")
    a(f"s_add_u32 s56, s56, {EIM}")
    a("s_lshl_b32 s69, s25, 10")
    a("s_add_u32 s59, s56, s69")
    a("s_lshl_b32 s66, s24, 13")
    a(f"s_add_u32 s73, s66, {W2F_OFF - CELL_OFF}")
    a("s_cmp_lt_u32 s24, 8")
    a(f"s_cselect_b32 s73, s73, {KILL:#x}")
    a("s_add_u32 s74, s73, 4096")
    a("s_lshl_b32 s72, s25, 11")
    a(f"s_add_u32 s72, s72, {WCF_OFF - CELL_OFF}")
    a(f"v_add_u32 v156, {OH}, v24")
    for i in range(4): a(f"v_mov_b32 v{144+i}, 0")
    a(f"v_mov_b32 v31, {N}")
    a(f"v_mov_b32 v152, {E}")
    a(f"v_cmp_gt_u32 vcc, {IDX - ZERO}, v24")
    a(f"s_mov_b32 s66, {EOFF - ZERO}")
    a("v_cmp_le_u32 s[68:69], s66, v24")
    a("v_cndmask_b32 v148, v31, v144, vcc")
    a("v_mov_b32 v153, v152")
    a("v_cndmask_b32 v148, v148, v152, s[68:69]")
    a("v_mov_b32 v154, v152")
    a("v_mov_b32 v155, v152")
    for i in range(1, 4): a(f"v_mov_b32 v{148+i}, v148")
    a(f"ds_write_b128 v156, v[148:151] offset:{4*12288}")
    for i in range(4): a(f"ds_write_b128 v156, v[144:147] offset:{i*12288}")
    a("s_cmp_lt_u32 s24, 4")
    a("s_cbranch_scc0 K2_I1")
    a(f"ds_write_b128 v156, v[152:155] offset:{5*12288}")
    a.label("K2_I1")
    a("v_lshrrev_b32 v72, 2, v0")
    if opt.get("stamps"):
        a("v_mov_b32 v0, 0"); a("v_writelane_b32 v0, s98, 0")
    a("s_mov_b32 s84, s6")
    a("s_and_b32 s85, s7, 0xffff")
    a(f"s_or_b32 s85, s85, {32 << 16:#x}")
    a("s_mov_b32 s87, 0x00020000")
    a(f"s_add_u32 s32, s22, {P_OFF - 3072}")
    a("s_addc_u32 s33, s23, 0")
    a("s_and_b32 s33, s33, 0xffff")
    a(f"s_or_b32 s33, s33, {512 << 16:#x}")
    a(f"s_mov_b32 s34, {N+1}")
    a("s_mov_b32 s35, 0x00020000")
    srd(a, 44, "s20", "s21", N * 256)
    H_, I_, T0, T1 = 77, 78, 105, 106
    a(f"v_lshrrev_b32 v{H_}, 5, v1")
    a(f"v_and_b32 v{I_}, 31, v1")
    a(f"v_bfe_u32 v{T0}, v1, 3, 2")
    a(f"v_bfe_u32 v{T1}, v1, 1, 1")
    a(f"v_lshl_or_b32 v{T0}, v{T0}, 1, v{T1}")
    a(f"v_and_b32 v{T1}, 1, v1")
    a(f"v_lshl_or_b32 v{T0}, v{T1}, 3, v{T0}")
    a(f"v_and_b32 v{T1}, 4, v1")
    a(f"v_lshl_or_b32 v{T0}, v{T1}, 2, v{T0}")
    a("s_lshl_b32 s57, s24, 12")
    a("s_lshl_b32 s58, s25, 7")
    a("s_mov_b32 m0, s57")
    for k in range(4): a(f"s_add_u32 s{28+k}, s58, {(3-k)*1024}")
    a(f"v_bfe_u32 v{T1}, v{T0}, 1, 3")
    a(f"v_xor_b32 v{T1}, v{T1}, v{H_}")
    a(f"v_lshl_add_u32 v{T1}, v{T1}, 4, s57")
    a(f"v_lshl_add_u32 v{aAP}, v{T0}, 7, v{T1}")
    for m in range(1, 4): a(f"v_xor_b32 v{aAP+m}, {m << 5}, v{aAP}")
    a(f"v_bfe_u32 v{T1}, v{T0}, 3, 1")
    a(f"v_xor_b32 v{T1}, v{T1}, v{H_}")
    a(f"v_lshl_add_u32 v{T1}, v{T1}, 4, s56")
    a(f"v_lshl_add_u32 v110, v{T0}, 5, v{T1}")
    a(f"v_lshlrev_b32 v{T1}, 4, v{H_}")
    a(f"v_lshl_add_u32 v{aAO}, v{T0}, 5, v{T1}")
    a(f"v_and_b32 v{T1}, 62, v1")
    a(f"v_lshlrev_b32 v{aEI}, 1, v{T1}")
    SOFF = 104
    a(f"v_and_b32 v{T1}, 8, v1")
    a(f"v_lshlrev_b32 v{SOFF}, 4, v{T1}")
    a(f"v_lshl_add_u32 v{SOFF}, v{H_}, 9, v{SOFF}")
    a(f"v_and_b32 v{T1}, 4, v1")
    a(f"v_lshl_add_u32 v{SOFF}, v{T1}, 6, v{SOFF}")
    a(f"v_and_b32 v{T1}, 3, v1")
    a(f"v_lshl_add_u32 v{SOFF}, v{T1}, 3, v{SOFF}")
    a("s_mov_b32 s62, 0xffff\ns_mov_b32 s63, 0xffff\ns_mov_b32 s64, 0xffff0000\ns_mov_b32 s65, 0xffff0000")
    a(f"v_lshrrev_b32 v{T1}, 3, v1")
    a(f"v_lshlrev_b32 v{aIDX}, 2, v{T1}")
    a(f"v_lshrrev_b32 v{T1}, 4, v1")
    a(f"v_xor_b32 v{T1}, v{T1}, v1")
    a(f"v_and_b32 v{EI+1}, 1, v{T1}")
    a(f"v_lshlrev_b32 v{EI+1}, 4, v{EI+1}")
    a(f"v_and_b32 v{T1}, 7, v{T1}")
    a(f"v_lshlrev_b32 v{IX[0]+1}, 4, v{T1}")
    a(f"v_xor_b32 v{IX[1]+1}, 64, v{IX[0]+1}")
    a(f"v_mov_b32 v{IX[2]+1}, v{IX[0]+1}")
    a(f"v_mov_b32 v{IX[3]+1}, v{IX[1]+1}")
    a(f"v_and_b32 v{T1}, 1, v1")
    a(f"v_lshlrev_b32 v{T1}, 4, v{T1}")
    a("v_mov_b32 v75, 0x3f80")
    a(f"v_lshlrev_b32 v107, v{T1}, v75")
    a(f"v_lshrrev_b32 v{T1}, 1, v{I_}")
    a(f"v_lshlrev_b32 v{T0}, 2, v{H_}")
    a(f"v_sub_u32 v{T1}, v{T1}, v{T0}")
    for mm in range(2):
        for rho in range(4):
            a(f"v_cmp_eq_u32 s[{76+2*rho}:{77+2*rho}], {8*mm+rho}, v{T1}")
        for rho in range(4):
            a(f"v_cndmask_b32 v{ID[mm]+rho}, 0, v107, s[{76+2*rho}:{77+2*rho}]")
    a("s_lshl_b32 s66, s25, 11")
    a("s_add_u32 s67, s56, s66")
    a(f"v_add_u32 v115, s67, v{L16}")
    a(f"v_mov_b32 v111, {FLAG}")
    a("v_mov_b32 v114, 1")
    a("s_mov_b32 s55, 0")
    a("s_mov_b32 s60, 0")
    a("s_mov_b32 s61, s25")
    a("s_cmp_ge_u32 s24, 8")
    a("s_cbranch_scc1 K2_HQ")
    a(f"s_mov_b32 s66, {CHUNK}")
    a("v_mul_u32_u24 v72, s66, v72")
    a(f"s_mov_b32 s78, {CNT}")
    a("v_lshl_add_u32 v76, v1, 2, s78")
    a(f"s_mov_b32 s79, {IDX}")
    a(f"s_mov_b32 s80, {OH}")
    a("s_mov_b32 s81, 0")
    a(f"buffer_load_dwordx4 {q4(BC[0])}, v{L16}, s[40:43], s72 offen")
    a(f"buffer_load_dwordx4 {q4(BC[1])}, v{L16}, s[40:43], s72 offen offset:1024")
    a("s_waitcnt lgkmcnt(0)")
    stp(1)
    a("s_barrier")
    a("s_waitcnt vmcnt(3)")
    stp(2)
    RA, RK = 32, 40
    SB = 48; T = 116
    TS, TE, TO = 116, 124, 56
    def count(ks):
        for k in ks:
            a(f"v_and_b32 v{RA+k}, 63, v{16+k}")
            a(f"v_lshl_add_u32 v{RA+k}, v{RA+k}, 2, s78")
        for k in ks:
            a(f"v_cmpx_gt_u32 vcc, -2, v{16+k}")
            a(f"ds_add_rtn_u32 v{RK+k}, v{RA+k}, v114")
        a("s_mov_b64 exec, -1")
    def decode(ks):
        for k in ks:
            a(f"v_lshrrev_b32 v{TS+k}, {18 + opt.get('pshift', 0)}, v{16+k}")
            a(f"v_bfe_u32 v{TE+k}, v{16+k}, 6, 12")
            a(f"v_add_u32 v{TE+k}, v{TE+k}, v72")
            if opt.get("eshift"): a(f"v_lshrrev_b32 v{TE+k}, {opt['eshift']}, v{TE+k}")
            a(f"v_and_b32 v{TO+k}, 15, v{16+k}")
            a(f"v_lshl_add_u32 v{TO+k}, v{TO+k}, 1, s80")
    def scatter(ks):
        for k in ks:
            a(f"v_add_u32 v{SB+k}, v{SB+k}, v{RK+k}")
            a(f"v_lshl_add_u32 v{TO+k}, v{SB+k}, 5, v{TO+k}")
            a(f"v_lshl_add_u32 v{SB+k}, v{SB+k}, 2, s79")
        for k in ks:
            a(f"v_cmpx_gt_u32 vcc, -2, v{16+k}")
            a(f"ds_write2st64_b32 v{SB+k}, v{TS+k}, v{TE+k} offset0:0 offset1:{(EOFF-IDX)//256}")
            a(f"ds_write_b16 v{TO+k}, v75")
        a("s_mov_b64 exec, -1")
    def arrive(off):
        a("s_mov_b64 exec, 1")
        a(f"ds_add_u32 v111, v114 offset:{off}")
        a("s_mov_b64 exec, -1")
    count(range(4))
    a("s_waitcnt vmcnt(2)")
    a("v_cmp_ne_u32 vcc, -1, v20")
    a("s_nop 1")
    a("s_cbranch_vccz K2_C1")
    a("s_mov_b32 s81, 1")
    count([4])
    a("v_cmp_ne_u32 vcc, -1, v21")
    decode([4])
    a("s_cbranch_vccnz K2_CX")
    a.label("K2_C1")
    arrive(4)
    decode(range(4))
    a.label("K2_SB1")
    a("ds_read_b64 v[108:109], v111")
    a("ds_read_b32 v105, v76")
    a("s_waitcnt lgkmcnt(0)")
    a("v_readfirstlane_b32 s66, v109")
    a("v_add_u32 v105, 3, v105")
    a("s_cmp_lt_u32 s66, 8")
    a("s_cbranch_scc1 K2_SB1")
    stp(3)
    a("v_and_b32 v105, -4, v105")
    a("v_readfirstlane_b32 s82, v108")
    a("s_nop 0")
    a("v_add_u32_dpp v107, v105, v105 row_shr:1 row_mask:0xf bank_mask:0xf bound_ctrl:0")
    a("s_nop 1")
    for sh in (2, 4, 8):
        a(f"v_add_u32_dpp v107, v107, v107 row_shr:{sh} row_mask:0xf bank_mask:0xf bound_ctrl:0")
        a("s_nop 1")
    a("v_add_u32_dpp v107, v107, v107 row_bcast:15 row_mask:0xa bank_mask:0xf")
    a("s_sub_u32 s82, s82, s70")
    a("s_lshl_b32 s82, s82, 12")
    a("v_add_u32_dpp v107, v107, v107 row_bcast:31 row_mask:0xc bank_mask:0xf")
    a("v_sub_u32 v108, v107, v105")
    a("v_readlane_b32 s83, v107, 63")
    for k in range(5): a(f"ds_bpermute_b32 v{SB+k}, v{RA+k}, v108")
    a("s_add_u32 s82, s82, s83")
    a(f"s_cmp_gt_u32 s82, {GCAP*32}")
    a("s_cbranch_scc1 K2_BAD")
    a("s_waitcnt lgkmcnt(0)")
    scatter(range(4))
    a("s_cmp_eq_u32 s81, 0")
    a("s_cbranch_scc1 K2_S1")
    scatter([4])
    a("s_cmp_lg_u32 s81, 1")
    a("s_cbranch_scc1 K2_SX")
    a.label("K2_S1")
    arrive(8)
    a("s_add_u32 s83, s83, 31")
    a("s_lshr_b32 s83, s83, 5")
    LB = opt.get("lb", 0)
    a(f"s_add_u32 s88, s83, {(2, 0, 4)[LB]}")
    a("s_mul_i32 s88, s88, 171")
    a("v_readlane_b32 s76, v108, 12")
    a("v_readlane_b32 s77, v108, 16")
    a("v_readlane_b32 s78, v108, 24")
    a("v_readlane_b32 s79, v108, 28")
    a("s_lshr_b32 s88, s88, 9")
    a("s_add_u32 s76, s76, 31")
    a("s_lshr_b32 s76, s76, 5")
    a("s_lshr_b32 s77, s77, 5")
    a("s_add_u32 s78, s78, 31")
    a("s_lshr_b32 s78, s78, 5")
    a("s_lshr_b32 s79, s79, 5")
    a("s_cmp_gt_u32 s76, s77")
    a("s_cbranch_scc1 K2_BAD")
    a("s_cmp_gt_u32 s78, s79")
    a("s_cbranch_scc1 K2_BAD")
    if opt.get("force_slow"): a("s_branch K2_BAD")
    a("s_max_u32 s88, s88, s76")
    a("s_min_u32 s88, s88, s77")
    a("s_add_u32 s89, s83, s88")
    a(f"s_add_u32 s89, s89, {(1, 0, 2)[LB]}")
    a("s_lshr_b32 s89, s89, 1")
    a("s_max_u32 s89, s89, s78")
    a("s_min_u32 s89, s89, s79")
    a("s_sub_u32 s90, s89, s88")
    a("s_sub_u32 s91, s83, s89")
    a("s_max_u32 s92, s90, s88")
    a("s_max_u32 s92, s92, s91")
    a("s_cmp_gt_u32 s92, 16")
    a("s_cbranch_scc1 K2_BAD")
    a("v_mov_b32 v106, s89")
    a("v_mov_b32 v107, s91")
    a("ds_write_b64 v111, v[106:107] offset:16")
    a("v_mov_b32 v105, v108")
    a("s_cmp_eq_u32 s26, 1")
    a("s_cselect_b32 s52, s88, 0")
    a("s_cselect_b32 s53, s90, s88")
    def g0_addr():
        a("s_lshl_b32 s66, s52, 7")
        a(f"s_add_u32 s67, s66, {IDX}")
        a(f"v_add_u32 v{aIDX}, s67, v{aIDX}")
        a(f"s_add_u32 s67, s67, {EOFF - IDX}")
        a(f"v_add_u32 v{aEI}, s67, v{aEI}")
        a(f"v_add_u32 v109, s58, v{aEI}")
    def first_reads():
        for k in range(4): a(f"ds_read_b32 v{IX[k]}, v{aIDX} offset:{k*32}")
        a(f"ds_read_b32 v{EI}, v109")
    nfl = [0]
    LATE = opt.get("late", 0)
    NE0 = 2 if LATE else 1
    def first_loads():
        nfl[0] += 1
        a(f"s_cmp_ge_u32 s25, {NE0}")
        a(f"s_cbranch_scc1 K2_FL{nfl[0]}")
        a("\n".join(e_dma()))
        a.label(f"K2_FL{nfl[0]}")
        a("\n".join(p_dma()))
    g0_addr()
    a.label("K2_SB2")
    a("ds_read_b32 v108, v111 offset:8")
    first_reads()
    a("s_waitcnt lgkmcnt(0)")
    a("v_readfirstlane_b32 s66, v108")
    a("s_nop 0")
    a("s_cmp_lt_u32 s66, 8")
    a("s_cbranch_scc1 K2_SB2")
    stp(4)
    first_loads()
    if OCT[0]:
        a("s_cmp_lg_u32 s24, 0")
        a("s_cbranch_scc1 K2_NM")
        a("v_readlane_b32 s66, v105, 63")
        a("v_lshrrev_b32 v106, 5, v105")
        a("v_lshlrev_b64 v[106:107], v106, 1")
        a("v_and_b32 v108, 4, v105")
        a("v_cmpx_gt_u32 vcc, s66, v105")
        a("v_cmpx_ne_u32 vcc, 0, v108")
        a("ds_or_b64 v111, v[106:107] offset:32")
        a("s_mov_b64 exec, -1")
        a("s_waitcnt lgkmcnt(0)")
        a.label("K2_NM")
    a("s_barrier")
    a("s_branch K2_QD")
    a.label("K2_HQ")
    WA, QA, QB, XA, BIAS = 32, 16, 116, 132, 112
    a(f"v_and_b32 v{T0}, 3, v1")
    a(f"v_and_b32 v{T1}, 4, v1")
    a(f"v_lshl_or_b32 v{T0}, v{T1}, 1, v{T0}")
    a(f"v_bfe_u32 v{T1}, v1, 3, 1")
    a(f"v_lshl_or_b32 v{T0}, v{T1}, 2, v{T0}")
    a(f"v_xor_b32 v{T1}, v{T0}, v{H_}")
    a(f"v_lshlrev_b32 v{T1}, 4, v{T1}")
    a(f"v_lshl_add_u32 v{XA}, v{T0}, 8, v{T1}")
    a(f"v_and_b32 v{T1}, 16, v1")
    a(f"v_lshl_add_u32 v{XA}, v{T1}, 10, v{XA}")
    a(f"v_add_u32 v{XA}, {EIM + 4096}, v{XA}")
    a(f"s_add_u32 s67, s66, {EIM + 8192}")
    a(f"v_add_u32 v107, s67, v{L16}")
    srd(a, 48, "s14", "s15", 512)
    a("v_and_b32 v108, 1, v1")
    a("v_and_b32 v109, 30, v1")
    a("v_lshl_add_u32 v108, v108, 6, v109")
    a("s_lshl_b32 s66, s25, 14")
    a(f"s_add_u32 s76, s66, {W1BF_OFF - CELL_OFF}")
    for i in range(1, 4): a(f"s_add_u32 s{76+i}, s76, {i*4096}")
    PFT = opt.get("pft", 0)
    if PFT:
        srd_ws(a, 92, 22, P_OFF, N * 512)
        a("s_lshr_b32 s80, s2, 3")
        a(f"s_mul_i32 s80, s80, {PFT*256*128}")
        a("s_lshl_b32 s81, s25, 13")
        a("s_add_u32 s80, s80, s81")
        a("v_lshlrev_b32 v109, 7, v1")
    a(f"s_mov_b32 s68, {NEGLOG2E:#x}")
    a(f"s_mov_b32 s69, {NEGLOG2E:#x}")
    a("s_waitcnt lgkmcnt(0)")
    stp(1)
    a("s_barrier")
    a(f"buffer_load_ushort v{BIAS}, v108, s[48:51], s58 offen")
    a(f"buffer_load_ushort v{BIAS+1}, v108, s[48:51], s58 offen offset:32")
    for i in range(16):
        a(f"buffer_load_dwordx4 {q4(WA+4*i)}, v{L16}, s[40:43], s{76 + (i >> 2)} offen offset:{(i & 3)*1024}")
        if i == 7:
            a("s_waitcnt vmcnt(10)")
            arrive(12)
    for i in range(PFT):
        a("buffer_load_dword v135, v109, s[92:95], s80 offen")
        a(f"s_add_u32 s80, s80, {256*128}")
    stp(2)
    a.label("K2_HS")
    a("ds_read_b32 v108, v111 offset:12")
    a("s_waitcnt lgkmcnt(0)")
    a("v_readfirstlane_b32 s66, v108")
    a("s_nop 0")
    a("s_cmp_lt_u32 s66, 4")
    a("s_cbranch_scc1 K2_HS")
    def xread(step):
        sidx = step & 7; st_ = step % 3
        if sidx: a(f"v_xor_b32 v{XA+1}, {sidx << 5}, v{XA}")
        r = XA + 1 if sidx else XA
        a(f"ds_read_b128 {q4(WP+8*st_)}, v{r}")
        a(f"ds_read_b128 {q4(WP+8*st_+4)}, v{r} offset:32768")
    xread(0); xread(1); xread(2)
    a(f"s_waitcnt vmcnt({16 + PFT})")
    a(f"v_lshlrev_b32 v{BIAS}, 16, v{BIAS}")
    a(f"v_lshlrev_b32 v{BIAS+1}, 16, v{BIAS+1}")
    a(f"v_pk_mul_f32 {pr(BIAS)}, {pr(BIAS)}, s[68:69]")
    for X in range(2):
        for sidx in range(8):
            step = 8*X + sidx; st_ = step % 3
            nl = 2*min(2, 15-step) + (3 if (X == 1 and sidx < 3) else 0)
            if X == 1 and sidx == 1: nl = 2 + 3 + 2
            a(f"s_waitcnt vmcnt({15 - step + PFT}) lgkmcnt({min(nl, 15)})")
            a(f"v_mfma_f32_32x32x16_bf16 {x16(QA)}, {q4(WP+8*st_)}, {q4(WA+4*step)}, {'0' if sidx == 0 else x16(QA)}")
            a(f"v_mfma_f32_32x32x16_bf16 {x16(QB)}, {q4(WP+8*st_+4)}, {q4(WA+4*step)}, {'0' if sidx == 0 else x16(QB)}")
            if step + 3 < 16: xread(step + 3)
        a("s_nop 10")
        for wi, base in enumerate((QA, QA + 8, QB)):
            for k in range(4):
                a(f"v_pk_fma_f32 {pr(base+2*k)}, {pr(base+2*k)}, s[68:69], {pr(BIAS)} op_sel:[0,0,{X}] op_sel_hi:[1,1,{X}]")
            for k in range(4):
                a(f"v_cvt_pk_bf16_f32 v{WA+4*wi+k+12*X}, v{base+2*k}, v{base+2*k+1}")
            a(f"ds_write_b128 v107, {q4(WA+4*wi+12*X)} offset:{wi*16384 + X*1024}")
    a("s_waitcnt lgkmcnt(0)")
    stp(3)
    a("s_barrier")
    a("ds_read_b64 v[108:109], v111 offset:16")
    a(f"buffer_load_dwordx4 {q4(BC[0])}, v{L16}, s[40:43], s72 offen")
    a(f"buffer_load_dwordx4 {q4(BC[1])}, v{L16}, s[40:43], s72 offen offset:1024")
    a("s_waitcnt lgkmcnt(0)")
    a("v_readfirstlane_b32 s52, v108")
    a("v_readfirstlane_b32 s53, v109")
    a("s_nop 0")
    a("s_cmp_eq_u32 s53, -1")
    a("s_cbranch_scc1 K2_SLOW")
    g0_addr()
    first_reads()
    a("s_waitcnt lgkmcnt(0)")
    stp(4)
    first_loads()
    a.label("K2_QD")
    stp(5)
    a("s_lshl_b32 s66, s52, 10")
    a(f"s_add_u32 s66, s66, {OH}")
    a(f"v_add_u32 v{aAO}, s66, v{aAO}")
    for k in range(4): a(f"ds_read_b32 v{IX[k]}, v{aIDX} offset:{128+k*32}")
    if OCT[0]: a("ds_read_b64 v[106:107], v111 offset:32")
    a(f"v_mov_b32 v166, v109")
    a(f"v_mov_b32 v{aAE}, v110")
    a(f"ds_read_b128 {q4(AO)}, v{aAO}")
    a(f"ds_read_b128 {q4(BQ[0])}, v115 offset:8192")
    a(f"ds_read_b128 {q4(BQ[1])}, v115 offset:9216")
    a(f"v_mov_b32 v{MG}, -1")
    a(f"v_add_u32 v{SOFF}, s66, v{SOFF}")
    a(f"v_mov_b32 v{T0}, {ZERO}")
    a(f"v_cndmask_b32 v{aS1}, v{T0}, v{SOFF}, s[62:63]")
    a(f"v_cndmask_b32 v{aS2}, v{T0}, v{SOFF}, s[64:65]")
    for i in range(16): a(f"v_mov_b32 v{ACC+i}, 0")
    a(f"v_mov_b32 v{CHK}, 0\nv_mov_b32 v{CHK+1}, 0")
    for i in range(4): a(f"v_mov_b32 v{S+i}, 0")
    T3, T2, T1_ = opt.get("t3", 6), opt.get("t2", 3), opt.get("t1", 1)
    a("s_cmp_eq_u32 s26, 2")
    a(f"s_cselect_b32 s94, {opt.get('r2lag', 0)}, 0")
    a("s_sub_u32 s94, s53, s94")
    a(f"s_sub_u32 s90, s94, {T3}")
    a("s_max_i32 s90, s90, 2")
    a("s_mov_b32 s91, 0")
    a("s_sub_u32 s93, s53, 2")
    if OCT[0]:
        a("s_waitcnt lgkmcnt(3)")
        a("v_readfirstlane_b32 s66, v106")
        a("v_readfirstlane_b32 s67, v107")
        a("s_nop 0")
        a("s_lshr_b64 s[66:67], s[66:67], s52")
        if opt.get("allq"): a("s_mov_b32 s66, -1")
        a("s_mov_b32 s95, s66")
        a("s_lshl_b32 s54, s66, 1")
    def flag_wait(tag, off):
        a.label(f"K2_W{tag}")
        a(f"ds_read_b32 v{FV}, v{aEI} offset:{off}")
        a("s_waitcnt lgkmcnt(0)")
        a(f"v_readfirstlane_b32 s66, v{FV}")
        a("s_nop 0")
        a("s_cmp_eq_u32 s66, -1")
        a(f"s_cbranch_scc1 K2_X{tag}")
        a("s_sleep 1")
        a(f"s_branch K2_W{tag}")
        a.label(f"K2_X{tag}")
    if LATE:
        a("s_max_i32 s90, s90, 1")
        a("s_min_u32 s90, s90, s53")
        a("s_min_u32 s67, s53, 2")
        a("s_cmp_ge_u32 s25, s67")
        a("s_waitcnt vmcnt(0)")
        a("s_cbranch_scc1 K2_NF")
        a(f"ds_write_b32 v166, v{MG}")
        a.label("K2_NF")
        for m in range(4): a(f"ds_read_b128 {q4(AP[m])}, v{aAP+m}")
        a("s_waitcnt lgkmcnt(0)")
        a("\n".join(p_dma()))
        a("s_cmp_lt_u32 s25, 2")
        a("s_cbranch_scc1 K2_F2")
        a("\n".join(e_dma()))
        a.label("K2_F2")
        for i in range(4): a(f"v_mov_b32 v{HQ+i}, 0")
        a("s_cmp_eq_u32 s53, 0")
        a("s_cbranch_scc1 K2_EXIT")
        flag_wait("A", 0)
        a(f"ds_read_b128 {q4(AE)}, v{aAE}")
        stp(6)
        stc(12)
        if opt.get("prio", 1): a("s_setprio 3")
        a("s_sub_u32 s68, 0, s25")
        a("s_and_b32 s68, s68, 3")
        a("s_lshl_b32 s67, s68, 7")
        a("s_lshl_b32 s69, s68, 10")
        a(f"v_subrev_u32 v{aAO}, s69, v{aAO}")
        a(f"v_subrev_u32 v{aAE}, s69, v{aAE}")
        a(f"v_subrev_u32 v{aIDX}, s67, v{aIDX}")
        a(f"v_subrev_u32 v{aEI}, s67, v{aEI}")
        a("s_mov_b64 exec, s[62:63]")
        a(f"v_subrev_u32 v{aS1}, s69, v{aS1}")
        a("s_mov_b64 exec, s[64:65]")
        a(f"v_subrev_u32 v{aS2}, s69, v{aS2}")
        a("s_mov_b64 exec, -1")
        a("s_waitcnt lgkmcnt(0)")
        a("\n".join(mf_tile(0)))
        a("s_nop 8")
        a("s_cmp_eq_u32 s68, 1")
        a("s_cbranch_scc1 K2_U1")
        a("s_cmp_eq_u32 s68, 2")
        a("s_cbranch_scc1 K2_U2")
        a("s_cmp_eq_u32 s68, 3")
        a("s_cbranch_scc1 K2_U3")
    else:
        a("s_min_u32 s67, s53, 1")
        a("s_cmp_ge_u32 s25, s67")
        a("s_waitcnt vmcnt(0)")
        a("s_cbranch_scc1 K2_NF")
        a(f"ds_write_b32 v166, v{MG}")
        a(f"ds_read_b32 v{EI}, v{aEI} offset:512")
        a.label("K2_NF")
        for m in range(4): a(f"ds_read_b128 {q4(AP[m])}, v{aAP+m}")
        a("s_waitcnt lgkmcnt(0)")
        a("\n".join(p_dma()))
        a("s_sub_u32 s67, s25, 1")
        a("s_cmp_ge_u32 s67, 2")
        a("s_cbranch_scc1 K2_F2")
        a("\n".join(e_dma()))
        a.label("K2_F2")
        for i in range(4): a(f"v_mov_b32 v{HQ+i}, 0")
        a("s_cmp_eq_u32 s53, 0")
        a("s_cbranch_scc1 K2_EXIT")
        def flag_wait(tag, off):
            a.label(f"K2_W{tag}")
            a(f"ds_read_b32 v{FV}, v{aEI} offset:{off}")
            a("s_waitcnt lgkmcnt(0)")
            a(f"v_readfirstlane_b32 s66, v{FV}")
            a("s_nop 0")
            a("s_cmp_eq_u32 s66, -1")
            a(f"s_cbranch_scc1 K2_X{tag}")
            a("s_sleep 1")
            a(f"s_branch K2_W{tag}")
            a.label(f"K2_X{tag}")
        flag_wait("A", 0)
        a(f"ds_read_b128 {q4(AE)}, v{aAE}")
        stp(6)
        stc(12)
        if opt.get("prio", 1): a("s_setprio 3")
        a("s_waitcnt lgkmcnt(0)")
        a("\n".join(mf_tile(0)))
        a("s_nop 10")
        ex0 = {1: [f"ds_read_b32 v{IX[k]}, v{aIDX} offset:{256+k*32}" for k in range(4)]}
        ex1 = {1: [f"ds_read_b64_tr_b16 {pr(S)}, v{aS1}", f"ds_read_b64_tr_b16 {pr(S+2)}, v{aS2}", f"ds_read_b128 {q4(AO)}, v{aAO} offset:1024"]}
        a("\n".join(tile(0, mf_tile(1), ex0, [], [], "P0") + tile(1, [], ex1, [], ["s_waitcnt lgkmcnt(0)"], "P1")))
        a("s_mov_b32 s55, 1")
        a("s_cmp_eq_u32 s53, 1")
        a("s_cbranch_scc1 K2_EXIT")
        a("s_cmp_ge_u32 s67, 2")
        a("s_cselect_b32 s66, 64, s25")
        a("s_cmp_ge_u32 s66, s53")
        a("s_waitcnt vmcnt(0)")
        a("s_cbranch_scc1 K2_NF2")
        a(f"ds_write_b32 v166, v{MG}")
        a.label("K2_NF2")
        for m in range(4): a(f"ds_read_b128 {q4(AP[m])}, v{aAP+m}")
        a("s_waitcnt lgkmcnt(0)")
        a("\n".join(p_dma()))
        a("s_cmp_lt_u32 s67, 2")
        a("s_cbranch_scc1 K2_F3")
        a("\n".join(e_dma()))
        a.label("K2_F3")
        flag_wait("B", 128)
        a(f"ds_read_b128 {q4(AE)}, v{aAE} offset:1024")
        a("s_sub_u32 s68, 1, s25")
        a("s_and_b32 s68, s68, 3")
        a("s_sub_u32 s69, 1, s68")
        a("s_lshl_b32 s67, s69, 7")
        a("s_lshl_b32 s69, s69, 10")
        a(f"v_add_u32 v{aAO}, s69, v{aAO}")
        a(f"v_add_u32 v{aAE}, s69, v{aAE}")
        a(f"v_add_u32 v{aIDX}, s67, v{aIDX}")
        a(f"v_add_u32 v{aEI}, s67, v{aEI}")
        a("s_mov_b64 exec, s[62:63]")
        a(f"v_add_u32 v{aS1}, s69, v{aS1}")
        a("s_mov_b64 exec, s[64:65]")
        a(f"v_add_u32 v{aS2}, s69, v{aS2}")
        a("s_mov_b64 exec, -1")
        a("s_waitcnt lgkmcnt(0)")
        a("\n".join(mf_tile(0)))
        a("s_nop 8")
        a("s_cmp_eq_u32 s68, 1")
        a("s_cbranch_scc1 K2_U1")
        a("s_cmp_eq_u32 s68, 2")
        a("s_cbranch_scc1 K2_U2")
        a("s_cmp_eq_u32 s68, 3")
        a("s_cbranch_scc1 K2_U3")
    a(".p2align 6")
    loop_start = len(a.lines)
    for u in range(4):
        a.label(f"K2_U{u}")
        if LATE:
            upd = []
            if u == 3:
                upd = [f"v_add_u32 v{aAO}, 4096, v{aAO}", f"v_add_u32 v{aAE}, 4096, v{aAE}", f"v_add_u32 v{aIDX}, 512, v{aIDX}", f"v_add_u32 v{aEI}, 512, v{aEI}",
                       "s_mov_b64 exec, s[62:63]", f"v_add_u32 v{aS1}, 4096, v{aS1}", "s_mov_b64 exec, s[64:65]", f"v_add_u32 v{aS2}, 4096, v{aS2}", "s_mov_b64 exec, -1"]
            mid0 = [f"ds_read_b64_tr_b16 {pr(S)}, v{aS1} offset:{u*1024}", f"ds_read_b64_tr_b16 {pr(S+2)}, v{aS2} offset:{u*1024}",
                    f"ds_read_b128 {q4(AO)}, v{aAO} offset:{(u+1)*1024}"]
            t0 = tile(0, mf_tile(1) + [SEGSUM], {}, mid0, [])
            ex1 = {}
            ex1[1] = [f"ds_read_b32 v{FV}, v{aEI} offset:{(u+1)*128}"] + [f"ds_read_b32 v{IX[k]}, v{aIDX} offset:{(u+2)*128+k*32}" for k in range(4)]
            if u == 0: ex1[1] += [f"ds_read_b32 v{EI}, v{aEI} offset:512"]
            ex1[12] = ["s_waitcnt lgkmcnt(0)", f"v_readfirstlane_b32 s66, v{FV}"]
            mid = ["s_cmp_eq_u32 s66, -1", f"s_waitcnt vmcnt({1 if u == 1 else 0})"]
            mid += [f"ds_read_b128 {q4(AP[m])}, v{aAP+m}" for m in range(4)]
            mid += [f"s_cbranch_scc0 K2_FW{u}", f"K2_FR{u}:"]
            mid += [f"ds_read_b128 {q4(AE)}, v{aAE} offset:{(u+1)*1024}"]
            if opt.get("gstamps"): mid += ["s_memrealtime s[96:97]", "s_add_u32 m0, s55, 16"]
            t1 = tile(1, [], ex1, mid, [])
            mf = mf_tile(0)
            post = ["s_add_u32 s66, s55, 2", "s_cmp_ge_u32 s66, s53", "s_waitcnt lgkmcnt(0)"]
            if opt.get("gstamps"): post += ["v_writelane_b32 v0, s96, m0"]
            post += [f"s_cbranch_scc1 K2_ND{u}"]
            if u == 2: post += [f"ds_write_b32 v{aEI}, v{MG} offset:512"]
            for k in range(4):
                post += [f"s_add_u32 m0, s57, {k*1024}", mf[k], f"buffer_load_dwordx4 {pr(IX[k])}, s[32:35], s58 idxen offen{PFL[0]} lds"]
            post += [f"K2_NR{u}:"]
            if u == 0: post += e_dma()
            post += upd
            nst = 1 + (6 if u == 0 else 0) + len(upd) + 3 + (1 if u == 3 else 0) + 1
            if nst - 1 < 12: post += [f"s_nop {12 - (nst - 1) - 1}"]
            a("\n".join(t0 + t1 + post))
        else:
            ex0 = {}
            ex0[1] = [f"ds_read_b32 v{FV}, v{aEI} offset:{(u+1)*128}"] + [f"ds_read_b32 v{IX[k]}, v{aIDX} offset:{(u+2)*128+k*32}" for k in range(4)]
            if u == 0: ex0[1] += [f"ds_read_b32 v{EI}, v{aEI} offset:512"]
            ex0[12] = ["s_waitcnt lgkmcnt(0)", f"v_readfirstlane_b32 s66, v{FV}"]
            mid = ["s_cmp_eq_u32 s66, -1", f"s_waitcnt vmcnt({1 if u == 1 else 0})"]
            mid += [f"ds_read_b128 {q4(AP[m])}, v{aAP+m}" for m in range(4)]
            mid += [f"ds_read_b128 {q4(AO)}, v{aAO} offset:{(u+1)*1024}"]
            mid += [f"s_cbranch_scc0 K2_FW{u}", f"K2_FR{u}:"]
            mid += [f"ds_read_b128 {q4(AE)}, v{aAE} offset:{(u+1)*1024}"]
            exr = ["s_cmp_ge_i32 s55, s93", "s_waitcnt lgkmcnt(0)", f"s_cbranch_scc1 K2_ND{u}"]
            if u == 2: exr += [f"ds_write_b32 v{aEI}, v{MG} offset:512"]
            exr += p_dma() + [f"K2_ND{u}:"]
            if u == 0: exr += e_dma()
            t0 = tile(0, mf_tile(1) + [SEGSUM], ex0, mid, exr, f"A{u}")
            ex1 = {}
            ex1[1] = [f"ds_read_b64_tr_b16 {pr(S)}, v{aS1} offset:{u*1024}", f"ds_read_b64_tr_b16 {pr(S+2)}, v{aS2} offset:{u*1024}"]
            mid1 = []
            if u == 3:
                mid1 = [f"v_add_u32 v{aAO}, 4096, v{aAO}", f"v_add_u32 v{aAE}, 4096, v{aAE}", f"v_add_u32 v{aIDX}, 512, v{aIDX}", f"v_add_u32 v{aEI}, 512, v{aEI}",
                        "s_mov_b64 exec, s[62:63]", f"v_add_u32 v{aS1}, 4096, v{aS1}", "s_mov_b64 exec, s[64:65]", f"v_add_u32 v{aS2}, 4096, v{aS2}", "s_mov_b64 exec, -1"]
            exr1 = ["s_waitcnt lgkmcnt(0)"]
            if opt.get("gstamps"):
                mid1 = mid1 + ["s_memrealtime s[96:97]", "s_add_u32 m0, s55, 16"]
                exr1 += ["v_writelane_b32 v0, s96, m0", "s_mov_b32 m0, s57"]
            t1 = tile(1, mf_tile(0), ex1, mid1, exr1, f"B{u}")
            a("\n".join(t0 + t1))
        a("s_add_u32 s55, s55, 1")
        a("s_cmp_ge_u32 s55, s90")
        a(f"s_cbranch_scc1 K2_TH{u}")
        if u == 3: a("s_branch K2_U0")
    loop_end = len(a.lines)
    for qtl in QTAILS: a("\n".join(qtl))
    for u in range(4):
        a.label(f"K2_TH{u}")
        a(f"s_mov_b32 s92, {(u+1)&3}")
        if u < 3: a("s_branch K2_TH")
    a.label("K2_TH")
    a("s_cmp_ge_u32 s55, s53")
    a("s_cbranch_scc1 K2_EXIT")
    a("s_add_u32 s91, s91, 1")
    a("s_cmp_eq_u32 s91, 1")
    a("s_cbranch_scc0 K2_TH_2")
    if opt.get("prio", 1): a("s_setprio 2")
    a(f"s_sub_u32 s90, s94, {T2}")
    a("s_branch K2_TH_R")
    a.label("K2_TH_2")
    a("s_cmp_eq_u32 s91, 2")
    a("s_cbranch_scc0 K2_TH_3")
    if opt.get("prio", 1): a("s_setprio 1")
    a(f"s_sub_u32 s90, s94, {T1_}")
    a("s_branch K2_TH_R")
    a.label("K2_TH_3")
    if opt.get("prio", 1): a("s_setprio 0")
    a("s_mov_b32 s90, s53")
    a.label("K2_TH_R")
    a("s_max_i32 s90, s90, 0")
    a("s_cmp_eq_u32 s92, 1")
    a("s_cbranch_scc1 K2_U1")
    a("s_cmp_lg_u32 s60, 0")
    a("s_cbranch_scc1 K2_TH_J")
    a("s_mov_b32 s60, 1")
    a("\n".join(w2_pre(L16)))
    a.label("K2_TH_J")
    a("s_cmp_eq_u32 s92, 2")
    a("s_cbranch_scc1 K2_U2")
    a("s_cmp_eq_u32 s92, 3")
    a("s_cbranch_scc1 K2_U3")
    a("s_branch K2_U0")
    if LATE:
        for u in range(4):
            a.label(f"K2_ND{u}")
            a("\n".join(mf_tile(0)))
            a(f"s_branch K2_NR{u}")
    for u in range(4):
        a.label(f"K2_FW{u}")
        a("s_add_u32 s66, s55, 1")
        a("s_cmp_ge_u32 s66, s53")
        a(f"s_cbranch_scc1 K2_FR{u}")
        a(f"ds_read_b32 v{FV}, v{aEI} offset:{(u+1)*128}")
        a("s_waitcnt lgkmcnt(0)")
        a(f"v_readfirstlane_b32 s66, v{FV}")
        a("s_nop 0")
        a("s_cmp_eq_u32 s66, -1")
        a(f"s_cbranch_scc1 K2_FR{u}")
        a("s_sleep 1")
        a(f"s_branch K2_FW{u}")
    a.label("K2_EXIT")
    a(SEGSUM)
    stp(7)
    stc(13)
    if opt.get("stamps"): a("v_writelane_b32 v0, s53, 14")
    a(f"v_lshrrev_b32 v1, 4, v{L16}")
    a("s_cmp_lg_u32 s60, 0")
    a("s_cbranch_scc1 K2_X1")
    a("\n".join(w2_pre(L16)))
    a.label("K2_X1")
    WL = 116
    def fin_loads(l16):
        srd(a, 48, "s18", "s19", 256)
        for sidx in range(NW2, 8):
            a(f"buffer_load_dwordx4 {q4(WL+4*(sidx-NW2))}, v{l16}, s[40:43], s74 offen offset:{(sidx & 3)*1024}")
        a("v_lshrrev_b32 v8, 4, v1")
        a("v_lshlrev_b32 v9, 3, v8")
        a("s_lshl_b32 s68, s24, 5")
        a("buffer_load_dwordx2 v[10:11], v9, s[48:51], s68 offen")
    fin_loads(L16)
    a("v_subrev_u32 v2, s71, v1")
    a("v_and_b32 v2, 15, v2")
    a(f"v_mul_u32_u24 v2, {HSTR}, v2")
    a("v_and_b32 v3, 16, v1")
    a("v_lshl_add_u32 v2, v3, 2, v2")
    a("v_lshrrev_b32 v3, 5, v1")
    a("v_lshl_add_u32 v3, v3, 3, s57")
    a("v_add_u32 v2, v2, v3")
    a(f"s_waitcnt vmcnt({9 - NW2})")
    for k in range(8):
        a(f"v_cvt_pk_bf16_f32 v{EX+k}, v{ACC+2*k}, v{ACC+2*k+1}")
        if k & 1: a(f"ds_write_b64 v2, {pr(EX+k-1)} offset:{16*(k>>1)}")
    a("s_mov_b32 s66, 0x41800000")
    a("s_mov_b32 s67, 0x41800000")
    a(f"v_pk_mul_f32 {pr(CHK)}, {pr(CHK)}, s[66:67]")
    for k in range(0, 8, 2):
        a(f"v_pk_add_f32 {pr(ACC+2*k)}, {pr(ACC+2*k)}, {pr(ACC+2*k+2)}")
    for k in range(0, 8, 2):
        a(f"v_pk_fma_f32 {pr(CHK)}, {pr(ACC+2*k)}, 0, {pr(CHK)} op_sel_hi:[1,0,1]")
    a("v_mov_b32 v4, 0x207")
    a(f"v_add_f32 v{CHK}, v{CHK}, v{CHK+1}")
    a(f"v_mov_b32 v5, {FLAG}")
    a("v_mov_b32 v7, 1")
    a(f"v_cmpx_class_f32 vcc, v{CHK}, v4")
    a("ds_write_b32 v5, v7")
    a("s_mov_b64 exec, -1")
    a.label("K2_FIN")
    a("s_cmp_ge_u32 s24, 8")
    a("s_cbranch_scc1 K2_HEND")
    a("s_mov_b64 exec, 1")
    a("ds_add_u32 v5, v7 offset:24")
    a("s_mov_b64 exec, -1")
    a("v_and_b32 v12, 15, v1")
    a(f"v_mul_u32_u24 v2, {HSTR}, v12")
    a("v_lshl_add_u32 v2, v8, 4, v2")
    a(f"s_mov_b32 s78, {CNT}")
    a("v_lshl_add_u32 v4, v12, 2, s78")
    for mt in range(3): a(f"ds_read_b32 v{112+mt}, v4 offset:{mt*48}")
    a("v_lshl_add_u32 v13, v12, 16, v9")
    a(f"v_mov_b32 v3, {KILL:#x}")
    a("v_cmp_gt_u32 vcc, 4, v12")
    a("s_lshl_b32 s69, s2, 8")
    a("s_add_u32 s69, s69, s68")
    a("v_cndmask_b32 v14, v13, v3, vcc")
    a(f"s_add_u32 s72, s69, {12 << 16}")
    a(f"s_add_u32 s75, s69, {24 << 16}")
    a(f"s_mov_b32 s76, {NEGLN2:#x}")
    RS = 80
    a.label("K2_E1")
    a("ds_read_b32 v6, v5 offset:24")
    a("s_waitcnt lgkmcnt(0)")
    a("v_readfirstlane_b32 s66, v6")
    a("s_nop 0")
    a("s_cmp_ge_u32 s66, 8")
    a("s_cbranch_scc1 K2_E2")
    a("s_sleep 2")
    a("s_branch K2_E1")
    a.label("K2_E2")
    HB = 16
    OD = 92
    def wfrag(sidx): return WP + 4*sidx if sidx < NW2 else WL + 4*(sidx - NW2)
    def hoff(mt, sidx): return (4*mt + (sidx >> 1))*4096 + (sidx & 1)*64
    order = [(sidx, mt) for sidx in range(8) for mt in range(2)]
    for n, (sidx, mt) in enumerate(order[:14]):
        a(f"ds_read_b128 {q4(HB+4*n)}, v2 offset:{hoff(mt, sidx)}")
    for n, (sidx, mt) in enumerate(order):
        issued = min(16, 14 + n)
        wv = f" vmcnt({8 - sidx})" if (sidx >= NW2 and mt == 0) else ""
        a(f"s_waitcnt{wv} lgkmcnt({issued - n - 1})")
        a(f"v_mfma_f32_16x16x32_bf16 {q4(OD+4*mt)}, {q4(wfrag(sidx))}, {q4(HB+4*n)}, {'0' if sidx == 0 else q4(OD+4*mt)}")
        if n < 2: a(f"ds_read_b128 {q4(HB+4*(14+n))}, v2 offset:{hoff(order[14+n][1], order[14+n][0])}")
    a("s_waitcnt vmcnt(0)")
    a("v_lshlrev_b32 v104, 16, v10")
    a("v_and_b32 v105, 0xffff0000, v10")
    a("v_lshlrev_b32 v106, 16, v11")
    a("v_and_b32 v107, 0xffff0000, v11")
    for mt in range(3): a(f"v_cvt_f32_u32 v{108+2*mt}, v{112+mt}" if mt < 2 else f"v_cvt_f32_u32 v112, v114")
    for mt in range(3):
        for i in range(2):
            a(f"v_pk_mul_f32 {pr(RS+4*mt+2*i)}, {pr(104+2*i)}, {pr(108+2*mt)} op_sel_hi:[1,0]")
    def fin_tile(mt):
        for i in range(4):
            a(f"v_fma_f32 v{RS+4*mt+i}, v{OD+4*mt+i}, s76, v{RS+4*mt+i}")
        a(f"v_cvt_pk_bf16_f32 v{132+2*mt}, v{RS+4*mt}, v{RS+4*mt+1}")
        a(f"v_cvt_pk_bf16_f32 v{133+2*mt}, v{RS+4*mt+2}, v{RS+4*mt+3}")
        a(f"buffer_store_dwordx2 {pr(132+2*mt)}, v{13 if mt == 0 else 14}, s[44:47], s{(69,72,75)[mt]} offen")
    def merge(mt):
        for i in range(4):
            a(f"v_add_f32_dpp v{OD+4*mt+i}, v{OD+4*mt+4+i}, v{OD+4*mt+i} row_shr:12 row_mask:0xf bank_mask:0xf bound_ctrl:0")
    merge(0)
    fin_tile(0)
    stp(8)
    a("s_barrier")
    stp(9)
    for sidx in range(8):
        a(f"ds_read_b128 {q4(HB+4*sidx)}, v2 offset:{hoff(2, sidx)}")
    a("ds_read_b32 v6, v5")
    for sidx in range(8):
        a(f"s_waitcnt lgkmcnt({8 - sidx})")
        a(f"v_mfma_f32_16x16x32_bf16 {q4(OD+8)}, {q4(wfrag(sidx))}, {q4(HB+4*sidx)}, {'0' if sidx == 0 else q4(OD+8)}")
    a("s_waitcnt lgkmcnt(0)")
    a("v_readfirstlane_b32 s82, v6")
    a("s_nop 1")
    a("s_andn2_b32 s82, s82, s70")
    a("s_cmp_lg_u32 s82, 0")
    a("s_cbranch_scc1 K2_REDO")
    a("s_nop 0")
    merge(1)
    fin_tile(2)
    fin_tile(1)
    stp(10)
    if opt.get("stamps"): a("s_waitcnt vmcnt(0)")
    stp(11)
    a.label("K2_END2")
    stamp_out(a, opt, 22, 0xF80000, 24, 0, tmpv=2)
    if opt.get('gstamps'): stamp_out2(a, opt, 22, 0x1000000, 24, 0, tmpv=2)
    a.label("K2_END")
    a("s_endpgm")
    a.label("K2_HEND")
    a("s_waitcnt lgkmcnt(0)")
    stp(8)
    a("s_barrier")
    a("ds_read_b32 v6, v5")
    a("s_waitcnt lgkmcnt(0)")
    a("v_readfirstlane_b32 s82, v6")
    a("s_nop 0")
    a("s_andn2_b32 s82, s82, s70")
    a("s_cmp_lg_u32 s82, 0")
    a("s_cbranch_scc1 K2_REDO")
    a("s_branch K2_END2")
    a.label("K2_CX")
    a("s_mov_b32 s81, 2")
    count([5, 6, 7])
    decode([5, 6, 7])
    a("v_cmpx_eq_u32 vcc, -2, v23")
    a("ds_write_b32 v111, v114")
    a("s_mov_b64 exec, -1")
    a("s_branch K2_C1")
    a.label("K2_SX")
    for k in (5, 6, 7): a(f"ds_bpermute_b32 v{SB+k}, v{RA+k}, v108")
    a("s_waitcnt lgkmcnt(0)")
    scatter([5, 6, 7])
    a("s_branch K2_S1")
    a.label("K2_REDO")
    a("s_setprio 0")
    a("s_mov_b32 s70, -1")
    a("s_lshl_b32 s66, s24, 6")
    a("v_add_u32 v0, s66, v1")
    a("s_waitcnt vmcnt(0) lgkmcnt(0)")
    a("s_barrier")
    a("s_branch K2_TOP")
    a.label("K2_BAD")
    a("v_mov_b32 v108, -1")
    a("v_mov_b32 v109, -1")
    a("ds_write_b64 v111, v[108:109] offset:16")
    a("s_waitcnt vmcnt(0) lgkmcnt(0)")
    a("s_barrier")
    a.label("K2_SLOW")
    a("s_setprio 0")
    a("s_mov_b32 s70, -1")
    a("s_waitcnt vmcnt(0) lgkmcnt(0)")
    a("s_barrier")
    a("s_lshl_b32 s66, s24, 10")
    a(f"s_add_u32 s66, s66, {OH}")
    a("v_lshl_add_u32 v2, v1, 4, s66")
    for i in range(4): a(f"v_mov_b32 v{4+i}, 0")
    for i in range(4): a(f"ds_write_b128 v2, v[4:7] offset:{i*12288}")
    a("v_lshlrev_b32 v12, 2, v1")
    a(f"v_add_u32 v3, {CNT}, v12")
    a("ds_write_b32 v3, v4")
    srd(a, 84, "s8", "s9", E * 4)
    srd(a, 88, "s10", "s11", E * 4)
    a("v_and_b32 v8, 31, v1")
    a("v_lshlrev_b32 v8, 4, v8")
    a("v_lshrrev_b32 v9, 5, v1")
    a("v_lshl_add_u32 v8, v9, 10, v8")
    a("s_lshl_b32 s72, s25, 11")
    a(f"s_add_u32 s66, s72, {WCF_OFF - CELL_OFF}")
    a("buffer_load_dwordx4 v[16:19], v8, s[40:43], s66 offen")
    a("buffer_load_dwordx4 v[20:23], v8, s[40:43], s66 offen offset:512")
    a(f"s_add_u32 s72, s72, {EIM + 8192}")
    a("v_add_u32 v8, s72, v8")
    a("v_lshlrev_b32 v7, 4, v1")
    a("\n".join(w2_pre(7)))
    srd_ws(a, 92, 22, P_OFF, N * 512)
    a("v_lshlrev_b32 v10, 1, v1")
    a("v_add_u32 v10, s58, v10")
    a("v_lshlrev_b32 v11, 1, v10")
    a(f"v_add_u32 v11, {OH}, v11")
    a("v_mov_b32 v13, 1")
    a("s_waitcnt vmcnt(0)")
    for k in range(8):
        a(f"v_lshlrev_b32 v{24+2*k}, 16, v{16+k}")
        a(f"v_and_b32 v{25+2*k}, 0xffff0000, v{16+k}")
    a("s_waitcnt lgkmcnt(0)")
    a("s_barrier")
    a("s_mov_b32 s66, s26")
    a.label("K2_SL_BLK")
    a("s_lshl_b32 s67, s66, 8")
    a("buffer_load_dword v40, v12, s[88:91], s67 offen")
    a("buffer_load_dword v41, v12, s[84:87], s67 offen")
    a("s_waitcnt vmcnt(0)")
    a("v_and_b32 v42, 255, v40")
    a("v_cmp_eq_u32 vcc, s2, v42")
    a("s_nop 1")
    a("s_mov_b64 s[68:69], vcc")
    a.label("K2_SL_E")
    a("s_cmp_eq_u64 s[68:69], 0")
    a("s_cbranch_scc1 K2_SL_NB")
    a("s_ff1_i32_b64 s72, s[68:69]")
    a("s_bitset0_b64 s[68:69], s72")
    a("v_readlane_b32 s52, v40, s72")
    a("v_readlane_b32 s53, v41, s72")
    a("s_lshl_b32 s75, s66, 6")
    a("s_add_u32 s75, s75, s72")
    a("s_lshl_b32 s75, s75, 5")
    a("s_load_dwordx8 s[76:83], s[6:7], s75")
    a("s_lshl_b32 s53, s53, 9")
    a("s_lshr_b32 s52, s52, 8")
    a("s_cmp_ge_u32 s52, 16")
    a("s_cselect_b32 s75, 16384, 0")
    a("s_cmp_ge_u32 s52, 28")
    a("s_cselect_b32 s75, 32768, s75")
    a("s_bfe_u32 s55, s52, 0x10003")
    a("s_lshl_b32 s55, s55, 9")
    a("s_add_u32 s75, s75, s55")
    a("s_and_b32 s55, s52, 7")
    a("s_lshl_b32 s55, s55, 1")
    a("s_add_u32 s75, s75, s55")
    a("v_add_u32 v45, s75, v8")
    a("buffer_load_ushort v43, v10, s[92:95], s53 offen")
    a("ds_read_u16 v44, v45")
    a("s_waitcnt vmcnt(0) lgkmcnt(0)")
    a("v_lshlrev_b32 v43, 16, v43")
    a("v_lshlrev_b32 v44, 16, v44")
    a("v_add_f32 v43, v43, v44")
    for k in range(8):
        a(f"s_lshl_b32 s53, s{76+k}, 16")
        a(f"v_fmac_f32 v43, s53, v{24+2*k}")
        a(f"s_and_b32 s53, s{76+k}, 0xffff0000")
        a(f"v_fmac_f32 v43, s53, v{25+2*k}")
    a("v_exp_f32 v44, v43")
    a("s_lshl_b32 s53, s52, 10")
    a("v_add_f32 v44, 1.0, v44")
    a("v_rcp_f32 v44, v44")
    a("v_add_u32 v45, s53, v11")
    a("v_mul_f32 v43, v43, v44")
    a("ds_add_f32 v45, v43")
    a("s_cmp_lg_u32 s25, 0")
    a("s_cbranch_scc1 K2_SL_E")
    a("s_lshl_b32 s53, s52, 2")
    a(f"s_add_u32 s53, s53, {CNT}")
    a("v_mov_b32 v45, s53")
    a("s_mov_b64 exec, 1")
    a("ds_add_u32 v45, v13")
    a("s_mov_b64 exec, -1")
    a("s_branch K2_SL_E")
    a.label("K2_SL_NB")
    a("s_add_u32 s66, s66, 3")
    a(f"s_cmp_lt_u32 s66, {E // 64}")
    a("s_cbranch_scc1 K2_SL_BLK")
    a("s_waitcnt lgkmcnt(0)")
    a("s_barrier")
    a("v_and_b32 v2, 31, v1")
    a("v_lshrrev_b32 v3, 5, v1")
    a("s_mov_b32 s66, 0")
    a.label("K2_SL_CV")
    a("v_add_u32 v4, s66, v3")
    a("v_add_u32 v5, s71, v4")
    a("s_cmp_lt_u32 s66, 4")
    a("s_cselect_b32 s67, s26, 0")
    a("s_cmp_lg_u32 s67, 0")
    a("s_cbranch_scc0 K2_SL_NZ")
    a("v_mov_b32 v5, 47")
    a.label("K2_SL_NZ")
    a("v_lshlrev_b32 v5, 10, v5")
    a("v_lshl_add_u32 v5, v2, 3, v5")
    a("s_lshl_b32 s67, s58, 1")
    a(f"s_add_u32 s67, s67, {OH}")
    a("v_add_u32 v5, s67, v5")
    a("ds_read_b64 v[6:7], v5")
    a(f"v_mul_u32_u24 v4, {HSTR}, v4")
    a("v_lshl_add_u32 v4, v2, 2, v4")
    a("v_add_u32 v4, s57, v4")
    a("s_waitcnt lgkmcnt(0)")
    a("v_cvt_pk_bf16_f32 v6, v6, v7")
    a("ds_write_b32 v4, v6")
    a("s_add_u32 s66, s66, 2")
    a("s_cmp_lt_u32 s66, 16")
    a("s_cbranch_scc1 K2_SL_CV")
    a("v_lshlrev_b32 v7, 4, v1")
    fin_loads(7)
    a(f"v_mov_b32 v5, {FLAG}")
    a("v_mov_b32 v7, 1")
    a("s_branch K2_FIN")
    a.loop = (loop_start, loop_end)
    return a, NV2, (102 if opt.get('stamps') else 96)
```

```python
from asmlib import *

N = 10000; E = 320000
P_OFF = 4096
CELL_OFF = 0xA00000
W2F_OFF = 0xE00000
W1BF_OFF = 0xE10000
WCF_OFF = 0xE20000
FRAG_BYTES = 0x22000
NSORT = 128
CHUNK = 2500
GROWS = 64
NGEMM = 157
NSORTWG = 64
NPREP = 17
K1_WGS = NGEMM + NSORTWG + NPREP
K1_BLOCK = 1024
K1_LDS = 65536 + GROWS * 256 + GROWS * 512
NEGLOG2E = 0xBFB8AA3B
OVF = 0xFFFFFFFE

def srd(a, r, lo, hi, size):
    a(f"s_mov_b32 s{r}, {lo}")
    a(f"s_mov_b32 s{r+1}, {hi}")
    a(f"s_mov_b32 s{r+2}, {size}")
    a(f"s_mov_b32 s{r+3}, 0x00020000")

def srd_ws(a, r, wslo, off, size):
    a(f"s_add_u32 s{r}, s{wslo}, {off}")
    a(f"s_addc_u32 s{r+1}, s{wslo+1}, 0")
    a(f"s_mov_b32 s{r+2}, {size}")
    a(f"s_mov_b32 s{r+3}, 0x00020000")

def stamp(a, opt, idx, vreg, sreg=96):
    if not opt.get("stamps"): return
    a(f"s_memrealtime s[{sreg}:{sreg+1}]")
    a("s_waitcnt lgkmcnt(0)")
    a(f"v_writelane_b32 v{vreg}, s{sreg}, {idx}")
def stamp_out(a, opt, wslo, off, wavereg, vreg, sreg=96, tmpv=151):
    if not opt.get("stamps"): return
    a(f"s_add_u32 s{sreg}, s{wslo}, {off}")
    a(f"s_addc_u32 s{sreg+1}, s{wslo+1}, 0")
    a(f"s_mov_b32 s{sreg+2}, 0x80000")
    a(f"s_mov_b32 s{sreg+3}, 0x00020000")
    a(f"s_lshl_b32 s100, s2, 4")
    a(f"s_add_u32 s100, s100, s{wavereg}")
    a(f"s_lshl_b32 s100, s100, 6")
    a(f"v_mbcnt_lo_u32_b32 v{tmpv}, -1, 0")
    a(f"v_lshlrev_b32 v{tmpv}, 2, v{tmpv}")
    a("s_mov_b64 exec, 0xffff")
    a(f"buffer_store_dword v{vreg}, v{tmpv}, s[{sreg}:{sreg+3}], s100 offen")
    a("s_mov_b64 exec, -1")
def stamp_out2(a, opt, wslo, off, wavereg, vreg, sreg=96, tmpv=151):
    a(f"s_add_u32 s{sreg}, s{wslo}, {off}")
    a(f"s_addc_u32 s{sreg+1}, s{wslo+1}, 0")
    a(f"s_lshl_b32 s100, s100, 1")
    a("s_mov_b64 exec, 0xffffffff")
    a(f"buffer_store_dword v{vreg}, v{tmpv}, s[{sreg}:{sreg+3}], s100 offen")
    a("s_mov_b64 exec, -1")

def gen_k1(opt=None):
    opt = opt or {}
    SV = 120
    SFD = {0: "", 1: " sc1", 2: " sc0 sc1", 3: " nt", 4: " nt sc1"}
    SF = SFD[opt.get("sf", 1)]
    SFG = SFD[opt.get("sfg", 1)]
    NT = " nt" if opt.get("knt", 1) else ""
    NTX = " nt" if opt.get("kntx", 1) else ""
    a = Asm()
    a.label("mpnn_pre_kernel")
    a(f"s_cmp_ge_u32 s2, {K1_WGS}")
    a("s_cbranch_scc1 K1_END")
    if opt.get("stamps"): a(f"v_mov_b32 v{SV}, 0")
    stamp(a, opt, 0, SV)
    a("s_load_dwordx16 s[4:19], s[0:1], 0")
    a("s_load_dwordx2 s[20:21], s[0:1], 80")
    a("v_lshrrev_b32 v1, 6, v0")
    a("v_and_b32 v2, 63, v0")
    a("v_readfirstlane_b32 s22, v1")
    a(f"s_cmp_ge_u32 s2, {NGEMM}")
    a("s_cbranch_scc1 K1_SORT")
    XI = 65536
    a("v_lshrrev_b32 v10, 4, v0")
    a("v_xor_b32 v11, v10, v2")
    a("v_and_b32 v11, 15, v11")
    a("v_lshlrev_b32 v11, 4, v11")
    a("v_lshl_add_u32 v8, v10, 8, v11")
    a("v_lshrrev_b32 v5, 5, v2")
    a("v_and_b32 v6, 31, v2")
    a("v_lshlrev_b32 v7, 2, v5")
    a("v_xor_b32 v7, v7, v6")
    a("v_lshlrev_b32 v7, 4, v7")
    a("v_lshl_add_u32 v3, v5, 9, v7")
    a("v_xor_b32 v4, 0x80, v3")
    a("s_lshl_b32 s45, s22, 11")
    a("s_add_u32 s47, s45, 32768")
    a(f"s_mul_i32 s48, s2, {GROWS*256}")
    a("s_lshl_b32 s49, s22, 10")
    a(f"s_add_u32 m0, s49, {XI}")
    a("s_waitcnt lgkmcnt(0)")
    srd(a, 32, "s4", "s5", N * 256)
    srd(a, 28, "s12", "s13", 272 * 512)
    if opt.get("wwu", 1):
        a("s_cmp_lg_u32 s22, 0")
        a("s_cbranch_scc1 K1_NWU")
        a("s_bfe_u32 s46, s2, 0x40003")
        a("s_lshl_b32 s46, s46, 12")
        a("v_lshlrev_b32 v12, 7, v6")
        a("buffer_load_dword v31, v12, s[28:31], s46 offen")
        a.label("K1_NWU")
    DS = opt.get("ds", 0)
    def dma_set(sh):
        a(f"buffer_load_dwordx4 v8, s[32:35], s48 offen{NTX} lds")
        a("s_mov_b32 m0, s45")
        a("s_barrier" if opt.get("gb", 1) & 1 else "s_nop 0")
        for k in range(2):
            a(f"buffer_load_dwordx4 v{3 + (k & 1)}, s[28:31], s45 offen offset:{k*1024} lds")
    def dma_set2():
        a("s_mov_b32 m0, s47")
        a("s_barrier" if opt.get("gb", 1) & 2 else "s_nop 0")
        for k in range(2):
            a(f"buffer_load_dwordx4 v{3 + (k & 1)}, s[28:31], s47 offen offset:{k*1024} lds")
    if DS:
        a("s_cmp_lt_u32 s22, 12")
        a("s_cbranch_scc1 K1_G12")
        srd_ws(a, 36, 20, P_OFF, (N + 1) * 512)
        a(f"s_mul_i32 s52, s2, {GROWS*512}")
        a("v_subrev_u32 v12, 768, v0")
        if DS == 1:
            a("v_lshlrev_b32 v12, 7, v12")
            a("buffer_store_dword v12, v12, s[36:39], s52 offen sc1")
        else:
            a("v_lshlrev_b32 v12, 4, v12")
            for i in range(8):
                a("buffer_store_dwordx4 v[4:7], v12, s[36:39], s52 offen sc1")
                a("s_add_u32 s52, s52, 4096")
        a("s_barrier")
        a("s_barrier")
        a("s_waitcnt vmcnt(0)")
        a("s_barrier")
        a("s_endpgm")
        a.label("K1_G12")
    dma_set(0)
    if DS:
        a("s_cmp_lt_u32 s22, 8")
        a("s_cbranch_scc1 K1_G8")
        a(f"s_add_u32 m0, s49, {XI + 4096}")
        a("s_add_u32 s48, s48, 4096")
        a("s_add_u32 s45, s45, 8192")
        dma_set(4)
        dma_set2()
        a("s_add_u32 s47, s47, 8192")
        dma_set2()
        a("s_waitcnt vmcnt(4)")
        a("s_barrier")
        a("s_waitcnt vmcnt(0)")
        a("s_barrier")
        a("s_endpgm")
        a.label("K1_G8")
        dma_set2()
    else:
        dma_set2()
        a("s_cmp_lt_u32 s22, 8")
        a("s_cbranch_scc1 K1_GC")
        a("s_waitcnt vmcnt(2)")
        a("s_barrier")
        a("s_waitcnt vmcnt(0)")
        a("s_barrier")
        a("s_endpgm")
    a.label("K1_GC")
    a("s_lshr_b32 s26, s22, 2")
    a("s_and_b32 s27, s22, 3")
    a("s_lshl_b32 s50, s27, 7")
    srd_ws(a, 36, 20, P_OFF, (N + 1) * 512)
    a("v_and_b32 v17, 15, v2")
    a("v_xor_b32 v17, v17, v5")
    a("s_lshl_b32 s51, s26, 13")
    a(f"s_add_u32 s51, s51, {XI}")
    a("v_lshl_add_u32 v17, v17, 4, s51")
    a("v_lshl_add_u32 v16, v6, 8, v17")
    for sidx in range(1, 8):
        a(f"v_xor_b32 v{16+sidx}, {sidx << 5}, v16")
    a("v_bfe_u32 v26, v2, 2, 2")
    a("v_lshl_add_u32 v27, v5, 3, v26")
    a("v_and_b32 v28, 3, v2")
    a("v_lshl_add_u32 v28, v28, 3, s50")
    a("v_bfe_u32 v29, v2, 4, 1")
    a("v_lshl_add_u32 v28, v29, 5, v28")
    a("v_lshlrev_b32 v26, 6, v26")
    a("v_xor_b32 v28, v28, v26")
    a("v_lshl_add_u32 v24, v27, 9, v28")
    a("v_xor_b32 v25, 64, v24")
    a("v_lshl_add_u32 v13, v6, 2, s50")
    a("v_lshl_add_u32 v13, v5, 11, v13")
    a(f"s_mul_i32 s52, s2, {GROWS*512}")
    a("s_lshl_b32 s51, s26, 14")
    a("s_add_u32 s52, s52, s51")
    a("s_add_u32 s53, s52, 4096")
    a("s_add_u32 s54, s52, 8192")
    a("s_add_u32 s55, s52, 12288")
    a(f"s_mov_b32 s56, {NEGLOG2E:#x}")
    a(f"s_mov_b32 s57, {NEGLOG2E:#x}")
    TI = 65536 + GROWS * 256
    a(f"s_add_u32 s51, s51, {TI}")
    a("v_add_u32 v14, s51, v13")
    a("v_lshlrev_b32 v12, 4, v2")
    a("s_lshl_b32 s59, s22, 12")
    a(f"s_mul_i32 s58, s2, {GROWS*512}")
    a("s_add_u32 s58, s58, s59")
    a(f"s_add_u32 s59, s59, {TI}")
    a("v_add_u32 v15, s59, v12")
    stamp(a, opt, 1, SV)
    a("s_waitcnt vmcnt(2)")
    stamp(a, opt, 2, SV)
    a("s_barrier")
    stamp(a, opt, 6, SV)
    AF = 32; BF = 48; DA = 80; DB = 96
    def reads(sidx):
        st = sidx & 3
        a(f"ds_read_b128 {v(AF+4*st,4)}, v{16+sidx}")
        for X in range(2):
            for e in range(2):
                a(f"ds_read_b64_tr_b16 {v(BF+8*st+4*X+2*e,2)}, v{24+X} offset:{sidx*8192+e*2048}")
    def mm(sidx):
        st = sidx & 3
        ca = "0" if sidx == 0 else v(DA, 16)
        cb = "0" if sidx == 0 else v(DB, 16)
        a(f"v_mfma_f32_32x32x16_bf16 {v(DA,16)}, {v(AF+4*st,4)}, {v(BF+8*st,4)}, {ca}")
        a(f"v_mfma_f32_32x32x16_bf16 {v(DB,16)}, {v(AF+4*st,4)}, {v(BF+8*st+4,4)}, {cb}")
    reads(0); reads(1); reads(2)
    a("s_waitcnt lgkmcnt(10)"); mm(0); reads(3)
    a("s_waitcnt lgkmcnt(10)"); mm(1)
    a("s_waitcnt vmcnt(0)")
    stamp(a, opt, 7, SV)
    a("s_barrier")
    stamp(a, opt, 8, SV)
    reads(4)
    a("s_waitcnt lgkmcnt(10)"); mm(2); reads(5)
    a("s_waitcnt lgkmcnt(10)"); mm(3); reads(6)
    a("s_waitcnt lgkmcnt(10)"); mm(4); reads(7)
    a("s_waitcnt lgkmcnt(10)"); mm(5)
    a("s_waitcnt lgkmcnt(5)"); mm(6)
    a("s_waitcnt lgkmcnt(0)"); mm(7)
    if DS: a("s_barrier")
    a("s_nop 10")
    stamp(a, opt, 3, SV)
    X4 = opt.get("x4", 0)
    for r in range(0, 16, 2):
        a(f"v_pk_mul_f32 {v(DA+r,2)}, {v(DA+r,2)}, s[56:57]")
        a(f"v_pk_mul_f32 {v(DB+r,2)}, {v(DB+r,2)}, s[56:57]")
        for rr in (r, r + 1):
            a(f"v_cvt_pk_bf16_f32 v{AF+rr}, v{DA+rr}, v{DB+rr}")
            if not X4:
                a(f"buffer_store_dword v{AF+rr}, v13, s[36:39], s{52 + (rr >> 2)} offen offset:{(rr & 3)*512}{SFG}")
        if X4:
            o = ((r >> 2) * 8 + (r & 3)) * 2
            a(f"ds_write2st64_b32 v14, v{AF+r}, v{AF+r+1} offset0:{o} offset1:{o+2}")
    if X4:
        a("s_waitcnt lgkmcnt(0)")
        a("s_barrier")
        for i in range(4): a(f"ds_read_b128 {v(BF+4*i,4)}, v15 offset:{i*1024}")
        for i in range(4):
            a(f"s_waitcnt lgkmcnt({3-i})")
            a(f"buffer_store_dwordx4 {v(BF+4*i,4)}, v12, s[36:39], s58 offen offset:{i*1024}{SFG}")
    stamp(a, opt, 4, SV)
    if opt.get("stamps"): a("s_waitcnt vmcnt(0)")
    stamp(a, opt, 5, SV)
    stamp_out(a, opt, 20, 0xF00000, 22, SV, tmpv=121)
    a("s_endpgm")
    a.label("K1_SORT")
    CNT = 32768
    HB = 36864
    a(f"s_sub_u32 s3, s2, {NGEMM}")
    a(f"s_cmp_ge_u32 s3, {NSORTWG}")
    a("s_cbranch_scc1 K1_HELP")
    a("s_and_b32 s24, s3, 7")
    a("s_lshl_b32 s24, s24, 4")
    a("s_lshr_b32 s25, s3, 3")
    a("s_lshl_b32 s25, s25, 1")
    a("s_add_u32 s24, s24, s25")
    a("s_lshr_b32 s25, s22, 3")
    a("s_add_u32 s3, s24, s25")
    a(f"s_mul_i32 s54, s25, {HB}")
    a("v_mov_b32 v47, v0")
    a("v_and_b32 v0, 511, v0")
    a("v_lshlrev_b32 v3, 2, v0")
    a("v_add_u32 v4, 4096, v3")
    a("v_add_u32 v5, 8192, v3")
    a(f"s_mul_i32 s23, s3, {CHUNK*4}")
    a("s_waitcnt lgkmcnt(0)")
    srd(a, 32, "s10", "s11", E * 4)
    for i in range(5):
        a(f"buffer_load_dword v{10+i}, v{3 + (i >> 1)}, s[32:35], s23 offen offset:{(i & 1)*2048}{NT}")
    srd(a, 28, "s8", "s9", E * 4)
    if opt.get("sb", 1): a("s_barrier")
    for i in range(5):
        a(f"buffer_load_dword v{16+i}, v{3 + (i >> 1)}, s[28:31], s23 offen offset:{(i & 1)*2048}{NT}")
    a("v_mov_b32 v24, -1\nv_mov_b32 v25, -1\nv_mov_b32 v26, -1\nv_mov_b32 v27, -1")
    a("v_mov_b32 v28, 0")
    a("v_lshl_add_u32 v6, v0, 4, s54")
    a("v_add_u32 v7, s54, v3")
    a(f"ds_write_b32 v7, v28 offset:{CNT}")
    for i in range(4):
        a(f"ds_write_b128 v6, v[24:27] offset:{i*8192}")
    srd_ws(a, 36, 20, CELL_OFF, 256 * 128 * 128)
    a("v_mov_b32 v29, 1")
    a(f"v_mov_b32 v30, {OVF - (1 << 32)}")
    a("v_lshlrev_b32 v31, 6, v0")
    a("v_lshrrev_b32 v44, 3, v47")
    a("v_and_b32 v45, 3, v47")
    a("v_lshlrev_b32 v45, 1, v45")
    a("v_xor_b32 v45, v45, v44")
    a("v_and_b32 v45, 7, v45")
    a("v_lshlrev_b32 v45, 4, v45")
    a("v_lshl_add_u32 v45, v44, 7, v45")
    a("v_bfe_u32 v43, v47, 2, 1")
    a(f"v_mul_u32_u24 v43, {HB}, v43")
    a("v_add_u32 v45, v45, v43")
    a("v_xor_b32 v42, 16, v45")
    a("v_lshl_add_u32 v43, v44, 2, v43")
    a("v_and_b32 v46, 7, v47")
    a("v_lshlrev_b32 v46, 4, v46")
    a("v_lshl_add_u32 v46, v44, 13, v46")
    a("s_lshr_b32 s24, s3, 1")
    a("s_lshl_b32 s24, s24, 7")
    for i in range(1, 4):
        a(f"s_add_u32 s{24+i}, s24, {i << 20}")
    for i in range(5):
        a(f"v_add_u32 v{84+i}, {i*32768}, v31")
    a(f"v_cmp_gt_u32 vcc, {CHUNK - 2048}, v0")
    a("s_waitcnt lgkmcnt(0)")
    a("s_mov_b64 s[52:53], vcc")
    stamp(a, opt, 1, SV)
    a("s_barrier")
    if opt.get("stamps"): a("s_waitcnt vmcnt(5)")
    stamp(a, opt, 2, SV)
    for i in range(5):
        a(f"s_waitcnt vmcnt({9 - i})")
        a(f"v_and_b32 v{32+i}, 255, v{10+i}")
        a(f"v_lshl_add_u32 v{37+i}, v{32+i}, 2, s54")
        if i == 4: a("s_mov_b64 exec, s[52:53]")
        a(f"ds_add_rtn_u32 v{60+i}, v{37+i}, v29 offset:{CNT}")
        if i == 4: a("s_mov_b64 exec, -1")
    for i in range(5):
        a(f"s_waitcnt vmcnt({4 - i})")
        a(f"v_lshrrev_b32 v{10+i}, 8, v{10+i}")
        a(f"v_lshl_or_b32 v{10+i}, v{16+i}, 18, v{10+i}")
        a(f"v_or_b32 v{10+i}, v{10+i}, v{84+i}")
        a(f"v_and_b32 v{16+i}, 28, v{37+i}")
        a(f"v_lshlrev_b32 v{32+i}, 5, v{32+i}")
    for i in range(5):
        a("s_waitcnt lgkmcnt(4)")
        a(f"v_cmp_lt_u32 vcc, 30, v{60+i}")
        a(f"v_min_u32 v{60+i}, 31, v{60+i}")
        a(f"v_lshl_or_b32 v{60+i}, v{60+i}, 5, v{60+i}")
        a(f"v_bfe_u32 v{60+i}, v{60+i}, 2, 5")
        a(f"v_xad_u32 v{60+i}, v{60+i}, v{16+i}, v{32+i}")
        a(f"v_cndmask_b32 v{10+i}, v{10+i}, v30, vcc")
        a(f"v_lshl_add_u32 v{60+i}, v{60+i}, 2, s54")
        if i == 4: a("s_mov_b64 exec, s[52:53]")
        a(f"ds_write_b32 v{60+i}, v{10+i}")
        if i == 4: a("s_mov_b64 exec, -1")
    a("s_waitcnt lgkmcnt(0)")
    a("s_barrier")
    stamp(a, opt, 3, SV)
    for i in range(2):
        a(f"ds_read_b128 {v(64+4*i,4)}, v45 offset:{i*16384}")
    for i in range(2):
        a(f"ds_read_b32 v{80+i}, v43 offset:{CNT + i*512}")
        a(f"ds_read_b128 {v(72+4*i,4)}, v42 offset:{i*16384}")
    for i in range(2):
        a(f"s_waitcnt lgkmcnt({5 - i})")
        a(f"buffer_store_dwordx4 {v(64+4*i,4)}, v46, s[36:39], s{24+i} offen{SF}")
    for i in range(2):
        a(f"s_waitcnt lgkmcnt({2 - 2*i})")
        a(f"v_cmp_lt_u32 vcc, 15, v{80+i}")
        a("s_and_saveexec_b64 s[52:53], vcc")
        a(f"s_cbranch_execz K1_NB{i}")
        a(f"buffer_store_dwordx4 {v(72+4*i,4)}, v46, s[36:39], s{26+i} offen{SF}")
        a.label(f"K1_NB{i}")
        a("s_mov_b64 exec, -1")
    stamp(a, opt, 4, SV)
    if opt.get("stamps"): a("s_waitcnt vmcnt(0)")
    stamp(a, opt, 5, SV)
    stamp_out(a, opt, 20, 0xF00000, 22, SV, tmpv=121)
    a("s_endpgm")
    a.label("K1_HELP")
    a(f"s_sub_u32 s3, s3, {NSORTWG}")
    a("s_waitcnt lgkmcnt(0)")
    srd_ws(a, 40, 20, W2F_OFF, FRAG_BYTES)
    a("v_lshlrev_b32 v6, 4, v2")
    a("s_cmp_lt_u32 s22, 8")
    a("s_cbranch_scc1 K1_H8")
    a("s_cmp_lt_u32 s22, 10")
    a("s_cbranch_scc0 K1_END")
    a("s_getpc_b64 s[60:61]")
    a.label("K1_PC")
    a("s_add_u32 s60, s60, mpnn_main_kernel-K1_PC")
    a("s_addc_u32 s61, s61, 0")
    a("s_mov_b32 s62, K2_REDO-mpnn_main_kernel")
    a("s_mov_b32 s63, 0x00020000")
    a("v_subrev_u32 v7, 512, v0")
    a("v_lshlrev_b32 v7, 7, v7")
    a("buffer_load_dword v22, v7, s[60:63], 0 offen")
    a("s_endpgm")
    a.label("K1_H8")
    a("s_lshl_b32 s3, s3, 3")
    a("s_add_u32 s3, s3, s22")
    a("s_mov_b32 s58, s3")
    a("s_bfe_u32 s26, s3, 0x30003")
    a("s_and_b32 s27, s3, 7")
    a("s_cmp_ge_u32 s3, 128")
    a("s_cselect_b32 s26, s27, s26")
    a("s_cselect_b32 s27, 8, s27")
    a("s_cmp_ge_u32 s3, 64")
    a("s_cbranch_scc1 K1_PREP1")
    srd(a, 44, "s16", "s17", 256 * 256)
    a("v_and_b32 v40, 15, v2")
    a("v_lshlrev_b32 v40, 1, v40")
    a("v_lshrrev_b32 v41, 4, v2")
    a("v_lshl_add_u32 v40, v41, 10, v40")
    a("v_add_u32 v41, 8192, v40")
    a("s_bfe_u32 s24, s3, 0x20001")
    a("s_lshl_b32 s24, s24, 14")
    a("s_and_b32 s25, s3, 1")
    a("s_lshl_b32 s25, s25, 12")
    a("s_add_u32 s24, s24, s25")
    a("s_lshr_b32 s25, s3, 3")
    a("s_lshl_b32 s25, s25, 5")
    a("s_add_u32 s24, s24, s25")
    for e in range(8):
        a(f"buffer_load_ushort v{48+e}, v{40 + (e & 1)}, s[44:47], s24 offen offset:{(e >> 1)*256}")
    a("s_branch K1_PFIN")
    a.label("K1_PREP1")
    srd(a, 44, "s12", "s13", 272 * 512)
    a("v_and_b32 v42, 1, v2")
    a("v_lshlrev_b32 v42, 6, v42")
    a("v_and_b32 v43, 30, v2")
    a("v_add_u32 v42, v42, v43")
    a("v_lshrrev_b32 v43, 5, v2")
    a("v_lshl_add_u32 v42, v43, 12, v42")
    a("s_lshr_b32 s24, s26, 1")
    a("s_lshl_b32 s24, s24, 7")
    a("s_and_b32 s25, s26, 1")
    a("s_lshl_b32 s25, s25, 5")
    a("s_add_u32 s24, s24, s25")
    a("s_lshl_b32 s27, s27, 13")
    a("s_add_u32 s24, s24, s27")
    a(f"s_add_u32 s24, s24, {128*512}")
    for e in range(8):
        a(f"buffer_load_ushort v{48+e}, v42, s[44:47], s24 offen offset:{e*512}")
    a.label("K1_PFIN")
    a("s_lshl_b32 s24, s58, 10")
    a("s_cmp_ge_u32 s58, 128")
    a("s_waitcnt vmcnt(0)")
    a("s_cbranch_scc1 K1_FINC")
    for e in range(4):
        a(f"v_lshl_or_b32 v{56+e}, v{49+2*e}, 16, v{48+2*e}")
    a("buffer_store_dwordx4 v[56:59], v6, s[40:43], s24 offen")
    a("s_endpgm")
    a.label("K1_FINC")
    a(f"s_mov_b32 s25, {NEGLOG2E:#x}")
    for e in range(8):
        a(f"v_lshlrev_b32 v{48+e}, 16, v{48+e}")
        a(f"v_mul_f32 v{48+e}, s25, v{48+e}")
    for e in range(4):
        a(f"v_cvt_pk_bf16_f32 v{56+e}, v{48+2*e}, v{49+2*e}")
    a("buffer_store_dwordx4 v[56:59], v6, s[40:43], s24 offen")
    a.label("K1_END")
    a("s_endpgm")
    return a, (128 if opt.get('stamps') else 112), (102 if opt.get('stamps') else 64)
```

```python
from asmlib import *
from k1 import *

NW = 12
PSLOT = 0
EIM = 49152
OH = 98304
ZERO = 147456
CNT = ZERO + 256
FLAG = ZERO + 512
IDX = ZERO + 3328
EOFF = IDX + 6400
HSTR = 144
K2_LDS = 163840
assert EOFF + 6144 <= K2_LDS
GCAP = 48
KILL = 0x40000000
NEGLN2 = 0xBF317218
aAE = 1; aAP = 2; aAO = 7; aS1 = 8; aS2 = 9; aIDX = 10; aEI = 11; EI = 12; CHK = 14
D = [16, 32]; EX = 48; ACC = 64; BC = [80, 84]; BQ = [88, 92]; ID = [96, 100]
AE = 104; FV = 164; MG = 165; AO = 108; S = 112; AP = [116, 120, 124, 128]; HQ = 132; IX = [136, 138, 140, 142]
WP = 144
NV2 = 168

def pr(r): return v(r, 2)
def q4(r): return v(r, 4)
def x16(r): return v(r, 16)

def mf_tile(Y):
    d = D[Y]
    return [f"v_mfma_f32_32x32x16_bf16 {x16(d)}, {q4(AE)}, {q4(BC[Y])}, 0",
            f"v_mfma_f32_32x32x16_bf16 {x16(d)}, {q4(AO)}, {q4(BQ[Y])}, {x16(d)}",
            f"v_mfma_f32_32x32x16_bf16 {x16(d)}, {q4(AP[2*Y])}, {q4(ID[0])}, {x16(d)}",
            f"v_mfma_f32_32x32x16_bf16 {x16(d)}, {q4(AP[2*Y+1])}, {q4(ID[1])}, {x16(d)}"]
SEGSUM = f"v_mfma_f32_32x32x16_bf16 {x16(ACC)}, {q4(HQ)}, {q4(S)}, {x16(ACC)}"

OCT = [0]
QTAILS = []
def tile(X, mf, ex_exp, mid, ex_rcp, tag=None):
    d = D[X]; out = []; mi = 0
    for i in range(16):
        if i % 3 == 0 and mi < len(mf):
            out.append(mf[mi]); mi += 1
        out.append(f"v_exp_f32 v{EX+i}, v{d+i}")
        out += ex_exp.get(i, [])
    out += mid
    NAB, NCD, DAB, DCD = d, d + 8, EX, EX + 8
    out.append(f"v_pk_add_f32 {pr(DAB)}, {pr(EX)}, 1.0 op_sel_hi:[1,0]")
    out.append(f"v_pk_add_f32 {pr(DCD)}, {pr(EX+8)}, 1.0 op_sel_hi:[1,0]")
    for k in range(1, 4):
        out.append(f"v_pk_fma_f32 {pr(NAB)}, {pr(NAB)}, {pr(EX+2*k)}, {pr(NAB)}")
        out.append(f"v_pk_fma_f32 {pr(NCD)}, {pr(NCD)}, {pr(EX+8+2*k)}, {pr(NCD)}")
        out.append(f"v_pk_fma_f32 {pr(NAB)}, {pr(d+2*k)}, {pr(DAB)}, {pr(NAB)}")
        out.append(f"v_pk_fma_f32 {pr(NCD)}, {pr(d+8+2*k)}, {pr(DCD)}, {pr(NCD)}")
        out.append(f"v_pk_fma_f32 {pr(DAB)}, {pr(DAB)}, {pr(EX+2*k)}, {pr(DAB)}")
        out.append(f"v_pk_fma_f32 {pr(DCD)}, {pr(DCD)}, {pr(EX+8+2*k)}, {pr(DCD)}")
    qt = [f"v_pk_fma_f32 {pr(CHK)}, {pr(DAB)}, {pr(DCD)}, {pr(CHK)}"]
    for r in (DAB, DAB + 1, DCD, DCD + 1):
        qt.append(f"v_rcp_f32 v{r}, v{r}")
    qt.append(f"v_pk_mul_f32 {pr(NAB)}, {pr(NAB)}, {pr(DAB)}")
    qt.append(f"v_pk_mul_f32 {pr(NCD)}, {pr(NCD)}, {pr(DCD)}")
    qt.append(f"v_cvt_pk_bf16_f32 v{HQ+2*X}, v{NAB}, v{NAB+1}")
    qt.append(f"v_cvt_pk_bf16_f32 v{HQ+2*X+1}, v{NCD}, v{NCD+1}")
    out += ex_rcp
    if not OCT[0] or tag is None:
        return out + qt
    DM = EX + 2
    out += ["s_bitcmp1_b32 s95, s55", f"s_cbranch_scc1 K2_QT{tag}",
            f"v_pk_mul_f32 {pr(DM)}, {pr(DAB)}, {pr(DCD)}",
            f"v_pk_mul_f32 {pr(NAB)}, {pr(NAB)}, {pr(DCD)}",
            "s_bitcmp0_b32 s54, s55",
            f"v_rcp_f32 v{DM+2}, v{DM}",
            f"v_rcp_f32 v{DM+3}, v{DM+1}",
            f"v_pk_fma_f32 {pr(NAB)}, {pr(NCD)}, {pr(DAB)}, {pr(NAB)}",
            f"v_pk_add_f32 {pr(CHK)}, {pr(CHK)}, {pr(DM)}",
            f"v_pk_mul_f32 {pr(NAB)}, {pr(NAB)}, {pr(DM+2)}",
            f"s_cbranch_scc1 K2_OZ{tag}",
            f"v_mov_b32 v{HQ+2*X+1}, 0",
            f"K2_OZ{tag}:",
            f"v_cvt_pk_bf16_f32 v{HQ+2*X}, v{NAB}, v{NAB+1}",
            f"K2_QR{tag}:"]
    QTAILS.append([f"K2_QT{tag}:"] + qt + [f"s_branch K2_QR{tag}"])
    return out

PFL = [""]
def p_dma():
    return [f"buffer_load_dwordx4 {pr(IX[k])}, s[32:35], s{28+k} idxen offen offset:{k*1024}{PFL[0]} lds" for k in range(4)]

EFL = [""]
def e_dma():
    return ["s_cmp_lt_u32 s61, s53",
            f"s_cselect_b32 s86, {E}, 0",
            f"s_cselect_b32 m0, s59, {K2_LDS:#x}",
            "s_add_u32 s61, s61, 4",
            f"buffer_load_dwordx4 {pr(EI)}, s[84:87], 0 idxen offen{EFL[0]} lds",
            "s_mov_b32 m0, s57",
            "s_add_u32 s59, s59, 4096"]
NW2 = 5
def w2_pre(vaddr):
    return [f"buffer_load_dwordx4 {q4(WP+4*sidx)}, v{vaddr}, s[40:43], s{73 + (sidx >> 2)} offen offset:{(sidx & 3)*1024}" for sidx in range(NW2)]

def gen_k2(opt=None):
    opt = opt or {}
    EFL[0] = {0: "", 1: " nt", 2: " sc1"}[opt.get("efl", 0)]
    OCT[0] = opt.get("oct", 0)
    QTAILS.clear()
    PFL[0] = {0: "", 1: " sc1", 2: " sc0 sc1", 3: " sc0"}[opt.get("pfl", 0)]
    a = Asm()
    def stp(i):
        if opt.get("stamps"):
            a("s_memrealtime s[96:97]"); a("s_waitcnt lgkmcnt(0)"); a(f"v_writelane_b32 v0, s96, {i}")
    def stc(i):
        if opt.get("stamps"):
            a("s_memtime s[96:97]"); a("s_waitcnt lgkmcnt(0)"); a(f"v_writelane_b32 v0, s96, {i}")
    a.label("mpnn_main_kernel")
    a("s_cmp_ge_u32 s2, 256")
    a("s_cbranch_scc1 K2_END")
    a("s_mov_b32 s70, 0")
    a.label("K2_TOP")
    a("s_load_dwordx2 s[22:23], s[0:1], 80")
    a("s_load_dwordx16 s[4:19], s[0:1], 0")
    a("s_load_dwordx2 s[20:21], s[0:1], 64")
    if opt.get("stamps"): a("s_memrealtime s[98:99]")
    a("v_lshrrev_b32 v72, 6, v0")
    a("v_and_b32 v1, 63, v0")
    a("v_readfirstlane_b32 s24, v72")
    a("v_lshlrev_b32 v24, 4, v0")
    L16 = 6
    a(f"v_lshlrev_b32 v{L16}, 4, v1")
    a("s_lshl_b32 s66, s2, 13")
    a(f"s_add_u32 s67, s66, {1 << 21}")
    a("s_and_b32 s25, s24, 3")
    a("s_lshr_b32 s26, s24, 2")
    a("s_cmp_ge_u32 s24, 8")
    a("s_cbranch_scc1 K2_HL")
    a("s_waitcnt lgkmcnt(0)")
    srd_ws(a, 40, 22, CELL_OFF, (W2F_OFF - CELL_OFF) + FRAG_BYTES)
    a("buffer_load_dwordx4 v[16:19], v24, s[40:43], s66 offen")
    a(f"buffer_load_dwordx4 v[20:23], v24, s[40:43], s67 offen{' nt' if opt.get('bnt', 1) else ''}")
    a("s_branch K2_CM")
    a.label("K2_HL")
    a("v_lshrrev_b32 v77, 4, v1")
    a("s_lshl_b32 s68, s25, 2")
    a("v_add_u32 v77, s68, v77")
    a("v_xor_b32 v27, v77, v1")
    a("v_and_b32 v27, 15, v27")
    a("v_lshlrev_b32 v27, 4, v27")
    a("v_lshl_add_u32 v26, v77, 16, v27")
    for win in (1, 2):
        a(f"v_subrev_u32 v78, {12*win}, v77")
        a("v_and_b32 v78, 15, v78")
        a(f"v_add_u32 v78, {12*win}, v78")
        a(f"v_lshl_add_u32 v{27+win}, v78, 16, v27")
    a("s_lshl_b32 s68, s2, 8")
    a("s_lshl_b32 s69, s25, 10")
    a(f"s_add_u32 m0, s69, {EIM + 4096}")
    a("s_waitcnt lgkmcnt(0)")
    srd(a, 36, "s4", "s5", N * 256)
    a("buffer_load_dwordx4 v26, s[36:39], s68 offen lds")
    a(f"s_add_u32 m0, s69, {EIM + 4096 + 16384}")
    srd_ws(a, 40, 22, CELL_OFF, (W2F_OFF - CELL_OFF) + FRAG_BYTES)
    a("buffer_load_dwordx4 v28, s[36:39], s68 offen lds")
    a(f"s_add_u32 m0, s69, {EIM + 4096 + 32768}")
    a("s_lshr_b32 s66, s2, 3")
    a("buffer_load_dwordx4 v29, s[36:39], s68 offen lds")
    a(f"s_mul_i32 s66, s66, {34*128}")
    a(f"s_mul_i32 s67, s25, {9*128}")
    a("s_add_u32 s66, s66, s67")
    a(f"s_add_u32 s66, s66, {W2F_OFF - CELL_OFF}")
    a("v_min_u32 v30, 8, v1")
    a("v_lshlrev_b32 v30, 7, v30")
    a("buffer_load_dword v134, v30, s[40:43], s66 offen")
    a.label("K2_CM")
    a("s_mul_i32 s71, s26, 12")
    a("s_lshl_b32 s56, s26, 14")
    a(f"s_add_u32 s56, s56, {EIM}")
    a("s_lshl_b32 s69, s25, 10")
    a("s_add_u32 s59, s56, s69")
    a("s_lshl_b32 s66, s24, 13")
    a(f"s_add_u32 s73, s66, {W2F_OFF - CELL_OFF}")
    a("s_cmp_lt_u32 s24, 8")
    a(f"s_cselect_b32 s73, s73, {KILL:#x}")
    a("s_add_u32 s74, s73, 4096")
    a("s_lshl_b32 s72, s25, 11")
    a(f"s_add_u32 s72, s72, {WCF_OFF - CELL_OFF}")
    a(f"v_add_u32 v156, {OH}, v24")
    for i in range(4): a(f"v_mov_b32 v{144+i}, 0")
    a(f"v_mov_b32 v31, {N}")
    a(f"v_mov_b32 v152, {E}")
    a(f"v_cmp_gt_u32 vcc, {IDX - ZERO}, v24")
    a(f"s_mov_b32 s66, {EOFF - ZERO}")
    a("v_cmp_le_u32 s[68:69], s66, v24")
    a("v_cndmask_b32 v148, v31, v144, vcc")
    a("v_mov_b32 v153, v152")
    a("v_cndmask_b32 v148, v148, v152, s[68:69]")
    a("v_mov_b32 v154, v152")
    a("v_mov_b32 v155, v152")
    for i in range(1, 4): a(f"v_mov_b32 v{148+i}, v148")
    a(f"ds_write_b128 v156, v[148:151] offset:{4*12288}")
    for i in range(4): a(f"ds_write_b128 v156, v[144:147] offset:{i*12288}")
    a("s_cmp_lt_u32 s24, 4")
    a("s_cbranch_scc0 K2_I1")
    a(f"ds_write_b128 v156, v[152:155] offset:{5*12288}")
    a.label("K2_I1")
    a("v_lshrrev_b32 v72, 2, v0")
    if opt.get("stamps"):
        a("v_mov_b32 v0, 0"); a("v_writelane_b32 v0, s98, 0")
    a("s_mov_b32 s84, s6")
    a("s_and_b32 s85, s7, 0xffff")
    a(f"s_or_b32 s85, s85, {32 << 16:#x}")
    a("s_mov_b32 s87, 0x00020000")
    a(f"s_add_u32 s32, s22, {P_OFF - 3072}")
    a("s_addc_u32 s33, s23, 0")
    a("s_and_b32 s33, s33, 0xffff")
    a(f"s_or_b32 s33, s33, {512 << 16:#x}")
    a(f"s_mov_b32 s34, {N+1}")
    a("s_mov_b32 s35, 0x00020000")
    srd(a, 44, "s20", "s21", N * 256)
    H_, I_, T0, T1 = 77, 78, 105, 106
    a(f"v_lshrrev_b32 v{H_}, 5, v1")
    a(f"v_and_b32 v{I_}, 31, v1")
    a(f"v_bfe_u32 v{T0}, v1, 3, 2")
    a(f"v_bfe_u32 v{T1}, v1, 1, 1")
    a(f"v_lshl_or_b32 v{T0}, v{T0}, 1, v{T1}")
    a(f"v_and_b32 v{T1}, 1, v1")
    a(f"v_lshl_or_b32 v{T0}, v{T1}, 3, v{T0}")
    a(f"v_and_b32 v{T1}, 4, v1")
    a(f"v_lshl_or_b32 v{T0}, v{T1}, 2, v{T0}")
    a("s_lshl_b32 s57, s24, 12")
    a("s_lshl_b32 s58, s25, 7")
    a("s_mov_b32 m0, s57")
    for k in range(4): a(f"s_add_u32 s{28+k}, s58, {(3-k)*1024}")
    a(f"v_bfe_u32 v{T1}, v{T0}, 1, 3")
    a(f"v_xor_b32 v{T1}, v{T1}, v{H_}")
    a(f"v_lshl_add_u32 v{T1}, v{T1}, 4, s57")
    a(f"v_lshl_add_u32 v{aAP}, v{T0}, 7, v{T1}")
    for m in range(1, 4): a(f"v_xor_b32 v{aAP+m}, {m << 5}, v{aAP}")
    a(f"v_bfe_u32 v{T1}, v{T0}, 3, 1")
    a(f"v_xor_b32 v{T1}, v{T1}, v{H_}")
    a(f"v_lshl_add_u32 v{T1}, v{T1}, 4, s56")
    a(f"v_lshl_add_u32 v110, v{T0}, 5, v{T1}")
    a(f"v_lshlrev_b32 v{T1}, 4, v{H_}")
    a(f"v_lshl_add_u32 v{aAO}, v{T0}, 5, v{T1}")
    a(f"v_and_b32 v{T1}, 62, v1")
    a(f"v_lshlrev_b32 v{aEI}, 1, v{T1}")
    SOFF = 104
    a(f"v_and_b32 v{T1}, 8, v1")
    a(f"v_lshlrev_b32 v{SOFF}, 4, v{T1}")
    a(f"v_lshl_add_u32 v{SOFF}, v{H_}, 9, v{SOFF}")
    a(f"v_and_b32 v{T1}, 4, v1")
    a(f"v_lshl_add_u32 v{SOFF}, v{T1}, 6, v{SOFF}")
    a(f"v_and_b32 v{T1}, 3, v1")
    a(f"v_lshl_add_u32 v{SOFF}, v{T1}, 3, v{SOFF}")
    a("s_mov_b32 s62, 0xffff\ns_mov_b32 s63, 0xffff\ns_mov_b32 s64, 0xffff0000\ns_mov_b32 s65, 0xffff0000")
    a(f"v_lshrrev_b32 v{T1}, 3, v1")
    a(f"v_lshlrev_b32 v{aIDX}, 2, v{T1}")
    a(f"v_lshrrev_b32 v{T1}, 4, v1")
    a(f"v_xor_b32 v{T1}, v{T1}, v1")
    a(f"v_and_b32 v{EI+1}, 1, v{T1}")
    a(f"v_lshlrev_b32 v{EI+1}, 4, v{EI+1}")
    a(f"v_and_b32 v{T1}, 7, v{T1}")
    a(f"v_lshlrev_b32 v{IX[0]+1}, 4, v{T1}")
    a(f"v_xor_b32 v{IX[1]+1}, 64, v{IX[0]+1}")
    a(f"v_mov_b32 v{IX[2]+1}, v{IX[0]+1}")
    a(f"v_mov_b32 v{IX[3]+1}, v{IX[1]+1}")
    a(f"v_and_b32 v{T1}, 1, v1")
    a(f"v_lshlrev_b32 v{T1}, 4, v{T1}")
    a("v_mov_b32 v75, 0x3f80")
    a(f"v_lshlrev_b32 v107, v{T1}, v75")
    a(f"v_lshrrev_b32 v{T1}, 1, v{I_}")
    a(f"v_lshlrev_b32 v{T0}, 2, v{H_}")
    a(f"v_sub_u32 v{T1}, v{T1}, v{T0}")
    for mm in range(2):
        for rho in range(4):
            a(f"v_cmp_eq_u32 s[{76+2*rho}:{77+2*rho}], {8*mm+rho}, v{T1}")
        for rho in range(4):
            a(f"v_cndmask_b32 v{ID[mm]+rho}, 0, v107, s[{76+2*rho}:{77+2*rho}]")
    a("s_lshl_b32 s66, s25, 11")
    a("s_add_u32 s67, s56, s66")
    a(f"v_add_u32 v115, s67, v{L16}")
    a(f"v_mov_b32 v111, {FLAG}")
    a("v_mov_b32 v114, 1")
    a("s_mov_b32 s55, 0")
    a("s_mov_b32 s60, 0")
    a("s_mov_b32 s61, s25")
    a("s_cmp_ge_u32 s24, 8")
    a("s_cbranch_scc1 K2_HQ")
    a(f"s_mov_b32 s66, {CHUNK}")
    a("v_mul_u32_u24 v72, s66, v72")
    a(f"s_mov_b32 s78, {CNT}")
    a("v_lshl_add_u32 v76, v1, 2, s78")
    a(f"s_mov_b32 s79, {IDX}")
    a(f"s_mov_b32 s80, {OH}")
    a("s_mov_b32 s81, 0")
    a(f"buffer_load_dwordx4 {q4(BC[0])}, v{L16}, s[40:43], s72 offen")
    a(f"buffer_load_dwordx4 {q4(BC[1])}, v{L16}, s[40:43], s72 offen offset:1024")
    a("s_waitcnt lgkmcnt(0)")
    stp(1)
    a("s_barrier")
    a("s_waitcnt vmcnt(3)")
    stp(2)
    RA, RK = 32, 40
    SB = 48; T = 116
    TS, TE, TO = 116, 124, 56
    def count(ks):
        for k in ks:
            a(f"v_and_b32 v{RA+k}, 63, v{16+k}")
            a(f"v_lshl_add_u32 v{RA+k}, v{RA+k}, 2, s78")
        for k in ks:
            a(f"v_cmpx_gt_u32 vcc, -2, v{16+k}")
            a(f"ds_add_rtn_u32 v{RK+k}, v{RA+k}, v114")
        a("s_mov_b64 exec, -1")
    def decode(ks):
        for k in ks:
            a(f"v_lshrrev_b32 v{TS+k}, {18 + opt.get('pshift', 0)}, v{16+k}")
            a(f"v_bfe_u32 v{TE+k}, v{16+k}, 6, 12")
            a(f"v_add_u32 v{TE+k}, v{TE+k}, v72")
            if opt.get("eshift"): a(f"v_lshrrev_b32 v{TE+k}, {opt['eshift']}, v{TE+k}")
            a(f"v_and_b32 v{TO+k}, 15, v{16+k}")
            a(f"v_lshl_add_u32 v{TO+k}, v{TO+k}, 1, s80")
    def scatter(ks):
        for k in ks:
            a(f"v_add_u32 v{SB+k}, v{SB+k}, v{RK+k}")
            a(f"v_lshl_add_u32 v{TO+k}, v{SB+k}, 5, v{TO+k}")
            a(f"v_lshl_add_u32 v{SB+k}, v{SB+k}, 2, s79")
        for k in ks:
            a(f"v_cmpx_gt_u32 vcc, -2, v{16+k}")
            a(f"ds_write2st64_b32 v{SB+k}, v{TS+k}, v{TE+k} offset0:0 offset1:{(EOFF-IDX)//256}")
            a(f"ds_write_b16 v{TO+k}, v75")
        a("s_mov_b64 exec, -1")
    def arrive(off):
        a("s_mov_b64 exec, 1")
        a(f"ds_add_u32 v111, v114 offset:{off}")
        a("s_mov_b64 exec, -1")
    a("v_mov_b32_dpp v25, v19 quad_perm:[3,3,3,3] row_mask:0xf bank_mask:0xf")
    count(range(4))
    a("v_cmp_ne_u32 vcc, -1, v25")
    a("s_nop 1")
    a("s_cbranch_vccz K2_C1")
    a("s_waitcnt vmcnt(2)")
    for k in range(4): a(f"v_cndmask_b32 v{20+k}, -1, v{20+k}, vcc")
    a("s_mov_b32 s81, 1")
    count([4])
    a("v_cmp_ne_u32 vcc, -1, v21")
    decode([4])
    a("s_cbranch_vccnz K2_CX")
    a.label("K2_C1")
    arrive(4)
    decode(range(4))
    a.label("K2_SB1")
    a("ds_read_b64 v[108:109], v111")
    a("ds_read_b32 v105, v76")
    a("s_waitcnt lgkmcnt(0)")
    a("v_readfirstlane_b32 s66, v109")
    a("v_add_u32 v105, 3, v105")
    a("s_cmp_lt_u32 s66, 8")
    a("s_cbranch_scc1 K2_SB1")
    stp(3)
    a("v_and_b32 v105, -4, v105")
    a("v_readfirstlane_b32 s82, v108")
    a("s_nop 0")
    a("v_add_u32_dpp v107, v105, v105 row_shr:1 row_mask:0xf bank_mask:0xf bound_ctrl:0")
    a("s_nop 1")
    for sh in (2, 4, 8):
        a(f"v_add_u32_dpp v107, v107, v107 row_shr:{sh} row_mask:0xf bank_mask:0xf bound_ctrl:0")
        a("s_nop 1")
    a("v_add_u32_dpp v107, v107, v107 row_bcast:15 row_mask:0xa bank_mask:0xf")
    a("s_sub_u32 s82, s82, s70")
    a("s_lshl_b32 s82, s82, 12")
    a("v_add_u32_dpp v107, v107, v107 row_bcast:31 row_mask:0xc bank_mask:0xf")
    a("v_sub_u32 v108, v107, v105")
    a("v_readlane_b32 s83, v107, 63")
    for k in range(5): a(f"ds_bpermute_b32 v{SB+k}, v{RA+k}, v108")
    a("s_add_u32 s82, s82, s83")
    a(f"s_cmp_gt_u32 s82, {GCAP*32}")
    a("s_cbranch_scc1 K2_BAD")
    a("s_waitcnt lgkmcnt(0)")
    scatter(range(4))
    a("s_cmp_eq_u32 s81, 0")
    a("s_cbranch_scc1 K2_S1")
    scatter([4])
    a("s_cmp_lg_u32 s81, 1")
    a("s_cbranch_scc1 K2_SX")
    a.label("K2_S1")
    arrive(8)
    a("s_add_u32 s83, s83, 31")
    a("s_lshr_b32 s83, s83, 5")
    LB = opt.get("lb", 0)
    a(f"s_add_u32 s88, s83, {(2, 0, 4)[LB]}")
    a("s_mul_i32 s88, s88, 171")
    a("v_readlane_b32 s76, v108, 12")
    a("v_readlane_b32 s77, v108, 16")
    a("v_readlane_b32 s78, v108, 24")
    a("v_readlane_b32 s79, v108, 28")
    a("s_lshr_b32 s88, s88, 9")
    a("s_add_u32 s76, s76, 31")
    a("s_lshr_b32 s76, s76, 5")
    a("s_lshr_b32 s77, s77, 5")
    a("s_add_u32 s78, s78, 31")
    a("s_lshr_b32 s78, s78, 5")
    a("s_lshr_b32 s79, s79, 5")
    a("s_cmp_gt_u32 s76, s77")
    a("s_cbranch_scc1 K2_BAD")
    a("s_cmp_gt_u32 s78, s79")
    a("s_cbranch_scc1 K2_BAD")
    if opt.get("force_slow"): a("s_branch K2_BAD")
    a("s_max_u32 s88, s88, s76")
    a("s_min_u32 s88, s88, s77")
    a("s_add_u32 s89, s83, s88")
    a(f"s_add_u32 s89, s89, {(1, 0, 2)[LB]}")
    a("s_lshr_b32 s89, s89, 1")
    a("s_max_u32 s89, s89, s78")
    a("s_min_u32 s89, s89, s79")
    a("s_sub_u32 s90, s89, s88")
    a("s_sub_u32 s91, s83, s89")
    a("s_max_u32 s92, s90, s88")
    a("s_max_u32 s92, s92, s91")
    a("s_cmp_gt_u32 s92, 16")
    a("s_cbranch_scc1 K2_BAD")
    a("v_mov_b32 v106, s89")
    a("v_mov_b32 v107, s91")
    a("ds_write_b64 v111, v[106:107] offset:16")
    a("v_mov_b32 v105, v108")
    a("s_cmp_eq_u32 s26, 1")
    a("s_cselect_b32 s52, s88, 0")
    a("s_cselect_b32 s53, s90, s88")
    def g0_addr():
        a("s_lshl_b32 s66, s52, 7")
        a(f"s_add_u32 s67, s66, {IDX}")
        a(f"v_add_u32 v{aIDX}, s67, v{aIDX}")
        a(f"s_add_u32 s67, s67, {EOFF - IDX}")
        a(f"v_add_u32 v{aEI}, s67, v{aEI}")
        a(f"v_add_u32 v109, s58, v{aEI}")
    def first_reads():
        for k in range(4): a(f"ds_read_b32 v{IX[k]}, v{aIDX} offset:{k*32}")
        a(f"ds_read_b32 v{EI}, v109")
    nfl = [0]
    LATE = opt.get("late", 0)
    NE0 = 2 if LATE else 1
    def first_loads():
        nfl[0] += 1
        a(f"s_cmp_ge_u32 s25, {NE0}")
        a(f"s_cbranch_scc1 K2_FL{nfl[0]}")
        a("\n".join(e_dma()))
        a.label(f"K2_FL{nfl[0]}")
        a("\n".join(p_dma()))
    g0_addr()
    a.label("K2_SB2")
    a("ds_read_b32 v108, v111 offset:8")
    first_reads()
    a("s_waitcnt lgkmcnt(0)")
    a("v_readfirstlane_b32 s66, v108")
    a("s_nop 0")
    a("s_cmp_lt_u32 s66, 8")
    a("s_cbranch_scc1 K2_SB2")
    stp(4)
    first_loads()
    if OCT[0]:
        a("s_cmp_lg_u32 s24, 0")
        a("s_cbranch_scc1 K2_NM")
        a("v_readlane_b32 s66, v105, 63")
        a("v_lshrrev_b32 v106, 5, v105")
        a("v_lshlrev_b64 v[106:107], v106, 1")
        a("v_and_b32 v108, 4, v105")
        a("v_cmpx_gt_u32 vcc, s66, v105")
        a("v_cmpx_ne_u32 vcc, 0, v108")
        a("ds_or_b64 v111, v[106:107] offset:32")
        a("s_mov_b64 exec, -1")
        a("s_waitcnt lgkmcnt(0)")
        a.label("K2_NM")
    a("s_barrier")
    a("s_branch K2_QD")
    a.label("K2_HQ")
    WA, QA, QB, XA, BIAS = 32, 16, 116, 132, 112
    a(f"v_and_b32 v{T0}, 3, v1")
    a(f"v_and_b32 v{T1}, 4, v1")
    a(f"v_lshl_or_b32 v{T0}, v{T1}, 1, v{T0}")
    a(f"v_bfe_u32 v{T1}, v1, 3, 1")
    a(f"v_lshl_or_b32 v{T0}, v{T1}, 2, v{T0}")
    a(f"v_xor_b32 v{T1}, v{T0}, v{H_}")
    a(f"v_lshlrev_b32 v{T1}, 4, v{T1}")
    a(f"v_lshl_add_u32 v{XA}, v{T0}, 8, v{T1}")
    a(f"v_and_b32 v{T1}, 16, v1")
    a(f"v_lshl_add_u32 v{XA}, v{T1}, 10, v{XA}")
    a(f"v_add_u32 v{XA}, {EIM + 4096}, v{XA}")
    a(f"s_add_u32 s67, s66, {EIM + 8192}")
    a(f"v_add_u32 v107, s67, v{L16}")
    srd(a, 48, "s14", "s15", 512)
    a("v_and_b32 v108, 1, v1")
    a("v_and_b32 v109, 30, v1")
    a("v_lshl_add_u32 v108, v108, 6, v109")
    a("s_lshl_b32 s66, s25, 14")
    a(f"s_add_u32 s76, s66, {W1BF_OFF - CELL_OFF}")
    for i in range(1, 4): a(f"s_add_u32 s{76+i}, s76, {i*4096}")
    PFT = opt.get("pft", 0)
    if PFT:
        srd_ws(a, 92, 22, P_OFF, N * 512)
        a("s_lshr_b32 s80, s2, 3")
        a(f"s_mul_i32 s80, s80, {PFT*256*128}")
        a("s_lshl_b32 s81, s25, 13")
        a("s_add_u32 s80, s80, s81")
        a("v_lshlrev_b32 v109, 7, v1")
    a(f"s_mov_b32 s68, {NEGLOG2E:#x}")
    a(f"s_mov_b32 s69, {NEGLOG2E:#x}")
    a("s_waitcnt lgkmcnt(0)")
    stp(1)
    a("s_barrier")
    a(f"buffer_load_ushort v{BIAS}, v108, s[48:51], s58 offen")
    a(f"buffer_load_ushort v{BIAS+1}, v108, s[48:51], s58 offen offset:32")
    for i in range(16):
        a(f"buffer_load_dwordx4 {q4(WA+4*i)}, v{L16}, s[40:43], s{76 + (i >> 2)} offen offset:{(i & 3)*1024}")
        if i == 7:
            a("s_waitcnt vmcnt(10)")
            arrive(12)
    for i in range(PFT):
        a("buffer_load_dword v135, v109, s[92:95], s80 offen")
        a(f"s_add_u32 s80, s80, {256*128}")
    stp(2)
    a.label("K2_HS")
    a("ds_read_b32 v108, v111 offset:12")
    a("s_waitcnt lgkmcnt(0)")
    a("v_readfirstlane_b32 s66, v108")
    a("s_nop 0")
    a("s_cmp_lt_u32 s66, 4")
    a("s_cbranch_scc1 K2_HS")
    def xread(step):
        sidx = step & 7; st_ = step % 3
        if sidx: a(f"v_xor_b32 v{XA+1}, {sidx << 5}, v{XA}")
        r = XA + 1 if sidx else XA
        a(f"ds_read_b128 {q4(WP+8*st_)}, v{r}")
        a(f"ds_read_b128 {q4(WP+8*st_+4)}, v{r} offset:32768")
    xread(0); xread(1); xread(2)
    a(f"s_waitcnt vmcnt({16 + PFT})")
    a(f"v_lshlrev_b32 v{BIAS}, 16, v{BIAS}")
    a(f"v_lshlrev_b32 v{BIAS+1}, 16, v{BIAS+1}")
    a(f"v_pk_mul_f32 {pr(BIAS)}, {pr(BIAS)}, s[68:69]")
    for X in range(2):
        for sidx in range(8):
            step = 8*X + sidx; st_ = step % 3
            nl = 2*min(2, 15-step) + (3 if (X == 1 and sidx < 3) else 0)
            if X == 1 and sidx == 1: nl = 2 + 3 + 2
            a(f"s_waitcnt vmcnt({15 - step + PFT}) lgkmcnt({min(nl, 15)})")
            a(f"v_mfma_f32_32x32x16_bf16 {x16(QA)}, {q4(WP+8*st_)}, {q4(WA+4*step)}, {'0' if sidx == 0 else x16(QA)}")
            a(f"v_mfma_f32_32x32x16_bf16 {x16(QB)}, {q4(WP+8*st_+4)}, {q4(WA+4*step)}, {'0' if sidx == 0 else x16(QB)}")
            if step + 3 < 16: xread(step + 3)
        a("s_nop 10")
        for wi, base in enumerate((QA, QA + 8, QB)):
            for k in range(4):
                a(f"v_pk_fma_f32 {pr(base+2*k)}, {pr(base+2*k)}, s[68:69], {pr(BIAS)} op_sel:[0,0,{X}] op_sel_hi:[1,1,{X}]")
            for k in range(4):
                a(f"v_cvt_pk_bf16_f32 v{WA+4*wi+k+12*X}, v{base+2*k}, v{base+2*k+1}")
            a(f"ds_write_b128 v107, {q4(WA+4*wi+12*X)} offset:{wi*16384 + X*1024}")
    a("s_waitcnt lgkmcnt(0)")
    stp(3)
    a("s_barrier")
    a("ds_read_b64 v[108:109], v111 offset:16")
    a(f"buffer_load_dwordx4 {q4(BC[0])}, v{L16}, s[40:43], s72 offen")
    a(f"buffer_load_dwordx4 {q4(BC[1])}, v{L16}, s[40:43], s72 offen offset:1024")
    a("s_waitcnt lgkmcnt(0)")
    a("v_readfirstlane_b32 s52, v108")
    a("v_readfirstlane_b32 s53, v109")
    a("s_nop 0")
    a("s_cmp_eq_u32 s53, -1")
    a("s_cbranch_scc1 K2_SLOW")
    g0_addr()
    first_reads()
    a("s_waitcnt lgkmcnt(0)")
    stp(4)
    first_loads()
    a.label("K2_QD")
    stp(5)
    a("s_lshl_b32 s66, s52, 10")
    a(f"s_add_u32 s66, s66, {OH}")
    a(f"v_add_u32 v{aAO}, s66, v{aAO}")
    for k in range(4): a(f"ds_read_b32 v{IX[k]}, v{aIDX} offset:{128+k*32}")
    if OCT[0]: a("ds_read_b64 v[106:107], v111 offset:32")
    a(f"v_mov_b32 v166, v109")
    a(f"v_mov_b32 v{aAE}, v110")
    a(f"ds_read_b128 {q4(AO)}, v{aAO}")
    a(f"ds_read_b128 {q4(BQ[0])}, v115 offset:8192")
    a(f"ds_read_b128 {q4(BQ[1])}, v115 offset:9216")
    a(f"v_mov_b32 v{MG}, -1")
    a(f"v_add_u32 v{SOFF}, s66, v{SOFF}")
    a(f"v_mov_b32 v{T0}, {ZERO}")
    a(f"v_cndmask_b32 v{aS1}, v{T0}, v{SOFF}, s[62:63]")
    a(f"v_cndmask_b32 v{aS2}, v{T0}, v{SOFF}, s[64:65]")
    for i in range(16): a(f"v_mov_b32 v{ACC+i}, 0")
    a(f"v_mov_b32 v{CHK}, 0\nv_mov_b32 v{CHK+1}, 0")
    for i in range(4): a(f"v_mov_b32 v{S+i}, 0")
    T3, T2, T1_ = opt.get("t3", 6), opt.get("t2", 3), opt.get("t1", 1)
    a("s_cmp_eq_u32 s26, 2")
    a(f"s_cselect_b32 s94, {opt.get('r2lag', 0)}, 0")
    a("s_sub_u32 s94, s53, s94")
    a(f"s_sub_u32 s90, s94, {T3}")
    a("s_max_i32 s90, s90, 2")
    a("s_mov_b32 s91, 0")
    a("s_sub_u32 s93, s53, 2")
    if OCT[0]:
        a("s_waitcnt lgkmcnt(3)")
        a("v_readfirstlane_b32 s66, v106")
        a("v_readfirstlane_b32 s67, v107")
        a("s_nop 0")
        a("s_lshr_b64 s[66:67], s[66:67], s52")
        if opt.get("allq"): a("s_mov_b32 s66, -1")
        a("s_mov_b32 s95, s66")
        a("s_lshl_b32 s54, s66, 1")
    def flag_wait(tag, off):
        a.label(f"K2_W{tag}")
        a(f"ds_read_b32 v{FV}, v{aEI} offset:{off}")
        a("s_waitcnt lgkmcnt(0)")
        a(f"v_readfirstlane_b32 s66, v{FV}")
        a("s_nop 0")
        a("s_cmp_eq_u32 s66, -1")
        a(f"s_cbranch_scc1 K2_X{tag}")
        a("s_sleep 1")
        a(f"s_branch K2_W{tag}")
        a.label(f"K2_X{tag}")
    if LATE:
        a("s_max_i32 s90, s90, 1")
        a("s_min_u32 s90, s90, s53")
        a("s_min_u32 s67, s53, 2")
        a("s_cmp_ge_u32 s25, s67")
        a("s_waitcnt vmcnt(0)")
        a("s_cbranch_scc1 K2_NF")
        a(f"ds_write_b32 v166, v{MG}")
        a.label("K2_NF")
        for m in range(4): a(f"ds_read_b128 {q4(AP[m])}, v{aAP+m}")
        a("s_waitcnt lgkmcnt(0)")
        a("\n".join(p_dma()))
        a("s_cmp_lt_u32 s25, 2")
        a("s_cbranch_scc1 K2_F2")
        a("\n".join(e_dma()))
        a.label("K2_F2")
        for i in range(4): a(f"v_mov_b32 v{HQ+i}, 0")
        a("s_cmp_eq_u32 s53, 0")
        a("s_cbranch_scc1 K2_EXIT")
        flag_wait("A", 0)
        a(f"ds_read_b128 {q4(AE)}, v{aAE}")
        stp(6)
        stc(12)
        if opt.get("prio", 1): a("s_setprio 3")
        a("s_sub_u32 s68, 0, s25")
        a("s_and_b32 s68, s68, 3")
        a("s_lshl_b32 s67, s68, 7")
        a("s_lshl_b32 s69, s68, 10")
        a(f"v_subrev_u32 v{aAO}, s69, v{aAO}")
        a(f"v_subrev_u32 v{aAE}, s69, v{aAE}")
        a(f"v_subrev_u32 v{aIDX}, s67, v{aIDX}")
        a(f"v_subrev_u32 v{aEI}, s67, v{aEI}")
        a("s_mov_b64 exec, s[62:63]")
        a(f"v_subrev_u32 v{aS1}, s69, v{aS1}")
        a("s_mov_b64 exec, s[64:65]")
        a(f"v_subrev_u32 v{aS2}, s69, v{aS2}")
        a("s_mov_b64 exec, -1")
        a("s_waitcnt lgkmcnt(0)")
        a("\n".join(mf_tile(0)))
        a("s_nop 8")
        a("s_cmp_eq_u32 s68, 1")
        a("s_cbranch_scc1 K2_U1")
        a("s_cmp_eq_u32 s68, 2")
        a("s_cbranch_scc1 K2_U2")
        a("s_cmp_eq_u32 s68, 3")
        a("s_cbranch_scc1 K2_U3")
    else:
        a("s_min_u32 s67, s53, 1")
        a("s_cmp_ge_u32 s25, s67")
        a("s_waitcnt vmcnt(0)")
        a("s_cbranch_scc1 K2_NF")
        a(f"ds_write_b32 v166, v{MG}")
        a(f"ds_read_b32 v{EI}, v{aEI} offset:512")
        a.label("K2_NF")
        for m in range(4): a(f"ds_read_b128 {q4(AP[m])}, v{aAP+m}")
        a("s_waitcnt lgkmcnt(0)")
        a("\n".join(p_dma()))
        a("s_sub_u32 s67, s25, 1")
        a("s_cmp_ge_u32 s67, 2")
        a("s_cbranch_scc1 K2_F2")
        a("\n".join(e_dma()))
        a.label("K2_F2")
        for i in range(4): a(f"v_mov_b32 v{HQ+i}, 0")
        a("s_cmp_eq_u32 s53, 0")
        a("s_cbranch_scc1 K2_EXIT")
        def flag_wait(tag, off):
            a.label(f"K2_W{tag}")
            a(f"ds_read_b32 v{FV}, v{aEI} offset:{off}")
            a("s_waitcnt lgkmcnt(0)")
            a(f"v_readfirstlane_b32 s66, v{FV}")
            a("s_nop 0")
            a("s_cmp_eq_u32 s66, -1")
            a(f"s_cbranch_scc1 K2_X{tag}")
            a("s_sleep 1")
            a(f"s_branch K2_W{tag}")
            a.label(f"K2_X{tag}")
        flag_wait("A", 0)
        a(f"ds_read_b128 {q4(AE)}, v{aAE}")
        stp(6)
        stc(12)
        if opt.get("prio", 1): a("s_setprio 3")
        a("s_waitcnt lgkmcnt(0)")
        a("\n".join(mf_tile(0)))
        a("s_nop 10")
        ex0 = {1: [f"ds_read_b32 v{IX[k]}, v{aIDX} offset:{256+k*32}" for k in range(4)]}
        ex1 = {1: [f"ds_read_b64_tr_b16 {pr(S)}, v{aS1}", f"ds_read_b64_tr_b16 {pr(S+2)}, v{aS2}", f"ds_read_b128 {q4(AO)}, v{aAO} offset:1024"]}
        a("\n".join(tile(0, mf_tile(1), ex0, [], [], "P0") + tile(1, [], ex1, [], ["s_waitcnt lgkmcnt(0)"], "P1")))
        a("s_mov_b32 s55, 1")
        a("s_cmp_eq_u32 s53, 1")
        a("s_cbranch_scc1 K2_EXIT")
        a("s_cmp_ge_u32 s67, 2")
        a("s_cselect_b32 s66, 64, s25")
        a("s_cmp_ge_u32 s66, s53")
        a("s_waitcnt vmcnt(0)")
        a("s_cbranch_scc1 K2_NF2")
        a(f"ds_write_b32 v166, v{MG}")
        a.label("K2_NF2")
        for m in range(4): a(f"ds_read_b128 {q4(AP[m])}, v{aAP+m}")
        a("s_waitcnt lgkmcnt(0)")
        a("\n".join(p_dma()))
        a("s_cmp_lt_u32 s67, 2")
        a("s_cbranch_scc1 K2_F3")
        a("\n".join(e_dma()))
        a.label("K2_F3")
        flag_wait("B", 128)
        a(f"ds_read_b128 {q4(AE)}, v{aAE} offset:1024")
        a("s_sub_u32 s68, 1, s25")
        a("s_and_b32 s68, s68, 3")
        a("s_sub_u32 s69, 1, s68")
        a("s_lshl_b32 s67, s69, 7")
        a("s_lshl_b32 s69, s69, 10")
        a(f"v_add_u32 v{aAO}, s69, v{aAO}")
        a(f"v_add_u32 v{aAE}, s69, v{aAE}")
        a(f"v_add_u32 v{aIDX}, s67, v{aIDX}")
        a(f"v_add_u32 v{aEI}, s67, v{aEI}")
        a("s_mov_b64 exec, s[62:63]")
        a(f"v_add_u32 v{aS1}, s69, v{aS1}")
        a("s_mov_b64 exec, s[64:65]")
        a(f"v_add_u32 v{aS2}, s69, v{aS2}")
        a("s_mov_b64 exec, -1")
        a("s_waitcnt lgkmcnt(0)")
        a("\n".join(mf_tile(0)))
        a("s_nop 8")
        a("s_cmp_eq_u32 s68, 1")
        a("s_cbranch_scc1 K2_U1")
        a("s_cmp_eq_u32 s68, 2")
        a("s_cbranch_scc1 K2_U2")
        a("s_cmp_eq_u32 s68, 3")
        a("s_cbranch_scc1 K2_U3")
    a(".p2align 6")
    loop_start = len(a.lines)
    for u in range(4):
        a.label(f"K2_U{u}")
        if LATE:
            upd = []
            if u == 3:
                upd = [f"v_add_u32 v{aAO}, 4096, v{aAO}", f"v_add_u32 v{aAE}, 4096, v{aAE}", f"v_add_u32 v{aIDX}, 512, v{aIDX}", f"v_add_u32 v{aEI}, 512, v{aEI}",
                       "s_mov_b64 exec, s[62:63]", f"v_add_u32 v{aS1}, 4096, v{aS1}", "s_mov_b64 exec, s[64:65]", f"v_add_u32 v{aS2}, 4096, v{aS2}", "s_mov_b64 exec, -1"]
            mid0 = [f"ds_read_b64_tr_b16 {pr(S)}, v{aS1} offset:{u*1024}", f"ds_read_b64_tr_b16 {pr(S+2)}, v{aS2} offset:{u*1024}",
                    f"ds_read_b128 {q4(AO)}, v{aAO} offset:{(u+1)*1024}"]
            t0 = tile(0, mf_tile(1) + [SEGSUM], {}, mid0, [])
            ex1 = {}
            ex1[1] = [f"ds_read_b32 v{FV}, v{aEI} offset:{(u+1)*128}"] + [f"ds_read_b32 v{IX[k]}, v{aIDX} offset:{(u+2)*128+k*32}" for k in range(4)]
            if u == 0: ex1[1] += [f"ds_read_b32 v{EI}, v{aEI} offset:512"]
            ex1[12] = ["s_waitcnt lgkmcnt(0)", f"v_readfirstlane_b32 s66, v{FV}"]
            mid = ["s_cmp_eq_u32 s66, -1", f"s_waitcnt vmcnt({1 if u == 1 else 0})"]
            mid += [f"ds_read_b128 {q4(AP[m])}, v{aAP+m}" for m in range(4)]
            mid += [f"s_cbranch_scc0 K2_FW{u}", f"K2_FR{u}:"]
            mid += [f"ds_read_b128 {q4(AE)}, v{aAE} offset:{(u+1)*1024}"]
            if opt.get("gstamps"): mid += ["s_memrealtime s[96:97]", "s_add_u32 m0, s55, 16"]
            t1 = tile(1, [], ex1, mid, [])
            mf = mf_tile(0)
            post = ["s_add_u32 s66, s55, 2", "s_cmp_ge_u32 s66, s53", "s_waitcnt lgkmcnt(0)"]
            if opt.get("gstamps"): post += ["v_writelane_b32 v0, s96, m0"]
            post += [f"s_cbranch_scc1 K2_ND{u}"]
            if u == 2: post += [f"ds_write_b32 v{aEI}, v{MG} offset:512"]
            for k in range(4):
                post += [f"s_add_u32 m0, s57, {k*1024}", mf[k], f"buffer_load_dwordx4 {pr(IX[k])}, s[32:35], s58 idxen offen{PFL[0]} lds"]
            post += [f"K2_NR{u}:"]
            if u == 0: post += e_dma()
            post += upd
            nst = 1 + (6 if u == 0 else 0) + len(upd) + 3 + (1 if u == 3 else 0) + 1
            if nst - 1 < 12: post += [f"s_nop {12 - (nst - 1) - 1}"]
            a("\n".join(t0 + t1 + post))
        else:
            ex0 = {}
            ex0[1] = [f"ds_read_b32 v{FV}, v{aEI} offset:{(u+1)*128}"] + [f"ds_read_b32 v{IX[k]}, v{aIDX} offset:{(u+2)*128+k*32}" for k in range(4)]
            if u == 0: ex0[1] += [f"ds_read_b32 v{EI}, v{aEI} offset:512"]
            ex0[12] = ["s_waitcnt lgkmcnt(0)", f"v_readfirstlane_b32 s66, v{FV}"]
            mid = ["s_cmp_eq_u32 s66, -1", f"s_waitcnt vmcnt({1 if u == 1 else 0})"]
            mid += [f"ds_read_b128 {q4(AP[m])}, v{aAP+m}" for m in range(4)]
            mid += [f"ds_read_b128 {q4(AO)}, v{aAO} offset:{(u+1)*1024}"]
            mid += [f"s_cbranch_scc0 K2_FW{u}", f"K2_FR{u}:"]
            mid += [f"ds_read_b128 {q4(AE)}, v{aAE} offset:{(u+1)*1024}"]
            exr = ["s_cmp_ge_i32 s55, s93", "s_waitcnt lgkmcnt(0)", f"s_cbranch_scc1 K2_ND{u}"]
            if u == 2: exr += [f"ds_write_b32 v{aEI}, v{MG} offset:512"]
            exr += p_dma() + [f"K2_ND{u}:"]
            if u == 0: exr += e_dma()
            t0 = tile(0, mf_tile(1) + [SEGSUM], ex0, mid, exr, f"A{u}")
            ex1 = {}
            ex1[1] = [f"ds_read_b64_tr_b16 {pr(S)}, v{aS1} offset:{u*1024}", f"ds_read_b64_tr_b16 {pr(S+2)}, v{aS2} offset:{u*1024}"]
            mid1 = []
            if u == 3:
                mid1 = [f"v_add_u32 v{aAO}, 4096, v{aAO}", f"v_add_u32 v{aAE}, 4096, v{aAE}", f"v_add_u32 v{aIDX}, 512, v{aIDX}", f"v_add_u32 v{aEI}, 512, v{aEI}",
                        "s_mov_b64 exec, s[62:63]", f"v_add_u32 v{aS1}, 4096, v{aS1}", "s_mov_b64 exec, s[64:65]", f"v_add_u32 v{aS2}, 4096, v{aS2}", "s_mov_b64 exec, -1"]
            exr1 = ["s_waitcnt lgkmcnt(0)"]
            if opt.get("gstamps"):
                mid1 = mid1 + ["s_memrealtime s[96:97]", "s_add_u32 m0, s55, 16"]
                exr1 += ["v_writelane_b32 v0, s96, m0", "s_mov_b32 m0, s57"]
            t1 = tile(1, mf_tile(0), ex1, mid1, exr1, f"B{u}")
            a("\n".join(t0 + t1))
        a("s_add_u32 s55, s55, 1")
        a("s_cmp_ge_u32 s55, s90")
        a(f"s_cbranch_scc1 K2_TH{u}")
        if u == 3: a("s_branch K2_U0")
    loop_end = len(a.lines)
    for qtl in QTAILS: a("\n".join(qtl))
    for u in range(4):
        a.label(f"K2_TH{u}")
        a(f"s_mov_b32 s92, {(u+1)&3}")
        if u < 3: a("s_branch K2_TH")
    a.label("K2_TH")
    a("s_cmp_ge_u32 s55, s53")
    a("s_cbranch_scc1 K2_EXIT")
    a("s_add_u32 s91, s91, 1")
    a("s_cmp_eq_u32 s91, 1")
    a("s_cbranch_scc0 K2_TH_2")
    if opt.get("prio", 1): a("s_setprio 2")
    a(f"s_sub_u32 s90, s94, {T2}")
    a("s_branch K2_TH_R")
    a.label("K2_TH_2")
    a("s_cmp_eq_u32 s91, 2")
    a("s_cbranch_scc0 K2_TH_3")
    if opt.get("prio", 1): a("s_setprio 1")
    a(f"s_sub_u32 s90, s94, {T1_}")
    a("s_branch K2_TH_R")
    a.label("K2_TH_3")
    if opt.get("prio", 1): a("s_setprio 0")
    a("s_mov_b32 s90, s53")
    a.label("K2_TH_R")
    a("s_max_i32 s90, s90, 0")
    a("s_cmp_eq_u32 s92, 1")
    a("s_cbranch_scc1 K2_U1")
    a("s_cmp_lg_u32 s60, 0")
    a("s_cbranch_scc1 K2_TH_J")
    a("s_mov_b32 s60, 1")
    a("\n".join(w2_pre(L16)))
    a.label("K2_TH_J")
    a("s_cmp_eq_u32 s92, 2")
    a("s_cbranch_scc1 K2_U2")
    a("s_cmp_eq_u32 s92, 3")
    a("s_cbranch_scc1 K2_U3")
    a("s_branch K2_U0")
    if LATE:
        for u in range(4):
            a.label(f"K2_ND{u}")
            a("\n".join(mf_tile(0)))
            a(f"s_branch K2_NR{u}")
    for u in range(4):
        a.label(f"K2_FW{u}")
        a("s_add_u32 s66, s55, 1")
        a("s_cmp_ge_u32 s66, s53")
        a(f"s_cbranch_scc1 K2_FR{u}")
        a(f"ds_read_b32 v{FV}, v{aEI} offset:{(u+1)*128}")
        a("s_waitcnt lgkmcnt(0)")
        a(f"v_readfirstlane_b32 s66, v{FV}")
        a("s_nop 0")
        a("s_cmp_eq_u32 s66, -1")
        a(f"s_cbranch_scc1 K2_FR{u}")
        a("s_sleep 1")
        a(f"s_branch K2_FW{u}")
    a.label("K2_EXIT")
    a(SEGSUM)
    stp(7)
    stc(13)
    if opt.get("stamps"): a("v_writelane_b32 v0, s53, 14")
    a(f"v_lshrrev_b32 v1, 4, v{L16}")
    a("s_cmp_lg_u32 s60, 0")
    a("s_cbranch_scc1 K2_X1")
    a("\n".join(w2_pre(L16)))
    a.label("K2_X1")
    WL = 116
    def fin_loads(l16):
        srd(a, 48, "s18", "s19", 256)
        for sidx in range(NW2, 8):
            a(f"buffer_load_dwordx4 {q4(WL+4*(sidx-NW2))}, v{l16}, s[40:43], s74 offen offset:{(sidx & 3)*1024}")
        a("v_lshrrev_b32 v8, 4, v1")
        a("v_lshlrev_b32 v9, 3, v8")
        a("s_lshl_b32 s68, s24, 5")
        a("buffer_load_dwordx2 v[10:11], v9, s[48:51], s68 offen")
    fin_loads(L16)
    a("v_subrev_u32 v2, s71, v1")
    a("v_and_b32 v2, 15, v2")
    a(f"v_mul_u32_u24 v2, {HSTR}, v2")
    a("v_and_b32 v3, 16, v1")
    a("v_lshl_add_u32 v2, v3, 2, v2")
    a("v_lshrrev_b32 v3, 5, v1")
    a("v_lshl_add_u32 v3, v3, 3, s57")
    a("v_add_u32 v2, v2, v3")
    a(f"s_waitcnt vmcnt({9 - NW2})")
    for k in range(8):
        a(f"v_cvt_pk_bf16_f32 v{EX+k}, v{ACC+2*k}, v{ACC+2*k+1}")
        if k & 1: a(f"ds_write_b64 v2, {pr(EX+k-1)} offset:{16*(k>>1)}")
    a("s_mov_b32 s66, 0x41800000")
    a("s_mov_b32 s67, 0x41800000")
    a(f"v_pk_mul_f32 {pr(CHK)}, {pr(CHK)}, s[66:67]")
    for k in range(0, 8, 2):
        a(f"v_pk_add_f32 {pr(ACC+2*k)}, {pr(ACC+2*k)}, {pr(ACC+2*k+2)}")
    for k in range(0, 8, 2):
        a(f"v_pk_fma_f32 {pr(CHK)}, {pr(ACC+2*k)}, 0, {pr(CHK)} op_sel_hi:[1,0,1]")
    a("v_mov_b32 v4, 0x207")
    a(f"v_add_f32 v{CHK}, v{CHK}, v{CHK+1}")
    a(f"v_mov_b32 v5, {FLAG}")
    a("v_mov_b32 v7, 1")
    a(f"v_cmpx_class_f32 vcc, v{CHK}, v4")
    a("ds_write_b32 v5, v7")
    a("s_mov_b64 exec, -1")
    a.label("K2_FIN")
    a("s_cmp_ge_u32 s24, 8")
    a("s_cbranch_scc1 K2_HEND")
    a("s_mov_b64 exec, 1")
    a("ds_add_u32 v5, v7 offset:24")
    a("s_mov_b64 exec, -1")
    a("v_and_b32 v12, 15, v1")
    a(f"v_mul_u32_u24 v2, {HSTR}, v12")
    a("v_lshl_add_u32 v2, v8, 4, v2")
    a(f"s_mov_b32 s78, {CNT}")
    a("v_lshl_add_u32 v4, v12, 2, s78")
    for mt in range(3): a(f"ds_read_b32 v{112+mt}, v4 offset:{mt*48}")
    a("v_lshl_add_u32 v13, v12, 16, v9")
    a(f"v_mov_b32 v3, {KILL:#x}")
    a("v_cmp_gt_u32 vcc, 4, v12")
    a("s_lshl_b32 s69, s2, 8")
    a("s_add_u32 s69, s69, s68")
    a("v_cndmask_b32 v14, v13, v3, vcc")
    a(f"s_add_u32 s72, s69, {12 << 16}")
    a(f"s_add_u32 s75, s69, {24 << 16}")
    a(f"s_mov_b32 s76, {NEGLN2:#x}")
    RS = 80
    a.label("K2_E1")
    a("ds_read_b32 v6, v5 offset:24")
    a("s_waitcnt lgkmcnt(0)")
    a("v_readfirstlane_b32 s66, v6")
    a("s_nop 0")
    a("s_cmp_ge_u32 s66, 8")
    a("s_cbranch_scc1 K2_E2")
    a("s_sleep 2")
    a("s_branch K2_E1")
    a.label("K2_E2")
    HB = 16
    OD = 92
    def wfrag(sidx): return WP + 4*sidx if sidx < NW2 else WL + 4*(sidx - NW2)
    def hoff(mt, sidx): return (4*mt + (sidx >> 1))*4096 + (sidx & 1)*64
    order = [(sidx, mt) for sidx in range(8) for mt in range(2)]
    for n, (sidx, mt) in enumerate(order[:14]):
        a(f"ds_read_b128 {q4(HB+4*n)}, v2 offset:{hoff(mt, sidx)}")
    for n, (sidx, mt) in enumerate(order):
        issued = min(16, 14 + n)
        wv = f" vmcnt({8 - sidx})" if (sidx >= NW2 and mt == 0) else ""
        a(f"s_waitcnt{wv} lgkmcnt({issued - n - 1})")
        a(f"v_mfma_f32_16x16x32_bf16 {q4(OD+4*mt)}, {q4(wfrag(sidx))}, {q4(HB+4*n)}, {'0' if sidx == 0 else q4(OD+4*mt)}")
        if n < 2: a(f"ds_read_b128 {q4(HB+4*(14+n))}, v2 offset:{hoff(order[14+n][1], order[14+n][0])}")
    a("s_waitcnt vmcnt(0)")
    a("v_lshlrev_b32 v104, 16, v10")
    a("v_and_b32 v105, 0xffff0000, v10")
    a("v_lshlrev_b32 v106, 16, v11")
    a("v_and_b32 v107, 0xffff0000, v11")
    for mt in range(3): a(f"v_cvt_f32_u32 v{108+2*mt}, v{112+mt}" if mt < 2 else f"v_cvt_f32_u32 v112, v114")
    for mt in range(3):
        for i in range(2):
            a(f"v_pk_mul_f32 {pr(RS+4*mt+2*i)}, {pr(104+2*i)}, {pr(108+2*mt)} op_sel_hi:[1,0]")
    def fin_tile(mt):
        for i in range(4):
            a(f"v_fma_f32 v{RS+4*mt+i}, v{OD+4*mt+i}, s76, v{RS+4*mt+i}")
        a(f"v_cvt_pk_bf16_f32 v{132+2*mt}, v{RS+4*mt}, v{RS+4*mt+1}")
        a(f"v_cvt_pk_bf16_f32 v{133+2*mt}, v{RS+4*mt+2}, v{RS+4*mt+3}")
        a(f"buffer_store_dwordx2 {pr(132+2*mt)}, v{13 if mt == 0 else 14}, s[44:47], s{(69,72,75)[mt]} offen{('', ' sc1', ' nt')[opt.get('osc', 0)]}")
    def merge(mt):
        for i in range(4):
            a(f"v_add_f32_dpp v{OD+4*mt+i}, v{OD+4*mt+4+i}, v{OD+4*mt+i} row_shr:12 row_mask:0xf bank_mask:0xf bound_ctrl:0")
    merge(0)
    fin_tile(0)
    stp(8)
    a("s_barrier")
    stp(9)
    for sidx in range(8):
        a(f"ds_read_b128 {q4(HB+4*sidx)}, v2 offset:{hoff(2, sidx)}")
    a("ds_read_b32 v6, v5")
    for sidx in range(8):
        a(f"s_waitcnt lgkmcnt({8 - sidx})")
        a(f"v_mfma_f32_16x16x32_bf16 {q4(OD+8)}, {q4(wfrag(sidx))}, {q4(HB+4*sidx)}, {'0' if sidx == 0 else q4(OD+8)}")
    a("s_waitcnt lgkmcnt(0)")
    a("v_readfirstlane_b32 s82, v6")
    a("s_nop 1")
    a("s_andn2_b32 s82, s82, s70")
    a("s_cmp_lg_u32 s82, 0")
    a("s_cbranch_scc1 K2_REDO")
    a("s_nop 0")
    merge(1)
    fin_tile(2)
    fin_tile(1)
    stp(10)
    if opt.get("stamps"): a("s_waitcnt vmcnt(0)")
    stp(11)
    a.label("K2_END2")
    stamp_out(a, opt, 22, 0xF80000, 24, 0, tmpv=2)
    if opt.get('gstamps'): stamp_out2(a, opt, 22, 0x1000000, 24, 0, tmpv=2)
    a.label("K2_END")
    a("s_endpgm")
    a.label("K2_HEND")
    a("s_waitcnt lgkmcnt(0)")
    stp(8)
    a("s_barrier")
    a("ds_read_b32 v6, v5")
    a("s_waitcnt lgkmcnt(0)")
    a("v_readfirstlane_b32 s82, v6")
    a("s_nop 0")
    a("s_andn2_b32 s82, s82, s70")
    a("s_cmp_lg_u32 s82, 0")
    a("s_cbranch_scc1 K2_REDO")
    a("s_branch K2_END2")
    a.label("K2_CX")
    a("s_mov_b32 s81, 2")
    count([5, 6, 7])
    decode([5, 6, 7])
    a("v_cmpx_eq_u32 vcc, -2, v23")
    a("ds_write_b32 v111, v114")
    a("s_mov_b64 exec, -1")
    a("s_branch K2_C1")
    a.label("K2_SX")
    for k in (5, 6, 7): a(f"ds_bpermute_b32 v{SB+k}, v{RA+k}, v108")
    a("s_waitcnt lgkmcnt(0)")
    scatter([5, 6, 7])
    a("s_branch K2_S1")
    a.label("K2_REDO")
    a("s_setprio 0")
    a("s_mov_b32 s70, -1")
    a("s_lshl_b32 s66, s24, 6")
    a("v_add_u32 v0, s66, v1")
    a("s_waitcnt vmcnt(0) lgkmcnt(0)")
    a("s_barrier")
    a("s_branch K2_TOP")
    a.label("K2_BAD")
    a("v_mov_b32 v108, -1")
    a("v_mov_b32 v109, -1")
    a("ds_write_b64 v111, v[108:109] offset:16")
    a("s_waitcnt vmcnt(0) lgkmcnt(0)")
    a("s_barrier")
    a.label("K2_SLOW")
    a("s_setprio 0")
    a("s_mov_b32 s70, -1")
    a("s_waitcnt vmcnt(0) lgkmcnt(0)")
    a("s_barrier")
    a("s_lshl_b32 s66, s24, 10")
    a(f"s_add_u32 s66, s66, {OH}")
    a("v_lshl_add_u32 v2, v1, 4, s66")
    for i in range(4): a(f"v_mov_b32 v{4+i}, 0")
    for i in range(4): a(f"ds_write_b128 v2, v[4:7] offset:{i*12288}")
    a("v_lshlrev_b32 v12, 2, v1")
    a(f"v_add_u32 v3, {CNT}, v12")
    a("ds_write_b32 v3, v4")
    srd(a, 84, "s8", "s9", E * 4)
    srd(a, 88, "s10", "s11", E * 4)
    a("v_and_b32 v8, 31, v1")
    a("v_lshlrev_b32 v8, 4, v8")
    a("v_lshrrev_b32 v9, 5, v1")
    a("v_lshl_add_u32 v8, v9, 10, v8")
    a("s_lshl_b32 s72, s25, 11")
    a(f"s_add_u32 s66, s72, {WCF_OFF - CELL_OFF}")
    a("buffer_load_dwordx4 v[16:19], v8, s[40:43], s66 offen")
    a("buffer_load_dwordx4 v[20:23], v8, s[40:43], s66 offen offset:512")
    a(f"s_add_u32 s72, s72, {EIM + 8192}")
    a("v_add_u32 v8, s72, v8")
    a("v_lshlrev_b32 v7, 4, v1")
    a("\n".join(w2_pre(7)))
    srd_ws(a, 92, 22, P_OFF, N * 512)
    a("v_lshlrev_b32 v10, 1, v1")
    a("v_add_u32 v10, s58, v10")
    a("v_lshlrev_b32 v11, 1, v10")
    a(f"v_add_u32 v11, {OH}, v11")
    a("v_mov_b32 v13, 1")
    a("s_waitcnt vmcnt(0)")
    for k in range(8):
        a(f"v_lshlrev_b32 v{24+2*k}, 16, v{16+k}")
        a(f"v_and_b32 v{25+2*k}, 0xffff0000, v{16+k}")
    a("s_waitcnt lgkmcnt(0)")
    a("s_barrier")
    a("s_mov_b32 s66, s26")
    a.label("K2_SL_BLK")
    a("s_lshl_b32 s67, s66, 8")
    a("buffer_load_dword v40, v12, s[88:91], s67 offen")
    a("buffer_load_dword v41, v12, s[84:87], s67 offen")
    a("s_waitcnt vmcnt(0)")
    a("v_and_b32 v42, 255, v40")
    a("v_cmp_eq_u32 vcc, s2, v42")
    a("s_nop 1")
    a("s_mov_b64 s[68:69], vcc")
    a.label("K2_SL_E")
    a("s_cmp_eq_u64 s[68:69], 0")
    a("s_cbranch_scc1 K2_SL_NB")
    a("s_ff1_i32_b64 s72, s[68:69]")
    a("s_bitset0_b64 s[68:69], s72")
    a("v_readlane_b32 s52, v40, s72")
    a("v_readlane_b32 s53, v41, s72")
    a("s_lshl_b32 s75, s66, 6")
    a("s_add_u32 s75, s75, s72")
    a("s_lshl_b32 s75, s75, 5")
    a("s_load_dwordx8 s[76:83], s[6:7], s75")
    a("s_lshl_b32 s53, s53, 9")
    a("s_lshr_b32 s52, s52, 8")
    a("s_cmp_ge_u32 s52, 16")
    a("s_cselect_b32 s75, 16384, 0")
    a("s_cmp_ge_u32 s52, 28")
    a("s_cselect_b32 s75, 32768, s75")
    a("s_bfe_u32 s55, s52, 0x10003")
    a("s_lshl_b32 s55, s55, 9")
    a("s_add_u32 s75, s75, s55")
    a("s_and_b32 s55, s52, 7")
    a("s_lshl_b32 s55, s55, 1")
    a("s_add_u32 s75, s75, s55")
    a("v_add_u32 v45, s75, v8")
    a("buffer_load_ushort v43, v10, s[92:95], s53 offen")
    a("ds_read_u16 v44, v45")
    a("s_waitcnt vmcnt(0) lgkmcnt(0)")
    a("v_lshlrev_b32 v43, 16, v43")
    a("v_lshlrev_b32 v44, 16, v44")
    a("v_add_f32 v43, v43, v44")
    for k in range(8):
        a(f"s_lshl_b32 s53, s{76+k}, 16")
        a(f"v_fmac_f32 v43, s53, v{24+2*k}")
        a(f"s_and_b32 s53, s{76+k}, 0xffff0000")
        a(f"v_fmac_f32 v43, s53, v{25+2*k}")
    a("v_exp_f32 v44, v43")
    a("s_lshl_b32 s53, s52, 10")
    a("v_add_f32 v44, 1.0, v44")
    a("v_rcp_f32 v44, v44")
    a("v_add_u32 v45, s53, v11")
    a("v_mul_f32 v43, v43, v44")
    a("ds_add_f32 v45, v43")
    a("s_cmp_lg_u32 s25, 0")
    a("s_cbranch_scc1 K2_SL_E")
    a("s_lshl_b32 s53, s52, 2")
    a(f"s_add_u32 s53, s53, {CNT}")
    a("v_mov_b32 v45, s53")
    a("s_mov_b64 exec, 1")
    a("ds_add_u32 v45, v13")
    a("s_mov_b64 exec, -1")
    a("s_branch K2_SL_E")
    a.label("K2_SL_NB")
    a("s_add_u32 s66, s66, 3")
    a(f"s_cmp_lt_u32 s66, {E // 64}")
    a("s_cbranch_scc1 K2_SL_BLK")
    a("s_waitcnt lgkmcnt(0)")
    a("s_barrier")
    a("v_and_b32 v2, 31, v1")
    a("v_lshrrev_b32 v3, 5, v1")
    a("s_mov_b32 s66, 0")
    a.label("K2_SL_CV")
    a("v_add_u32 v4, s66, v3")
    a("v_add_u32 v5, s71, v4")
    a("s_cmp_lt_u32 s66, 4")
    a("s_cselect_b32 s67, s26, 0")
    a("s_cmp_lg_u32 s67, 0")
    a("s_cbranch_scc0 K2_SL_NZ")
    a("v_mov_b32 v5, 47")
    a.label("K2_SL_NZ")
    a("v_lshlrev_b32 v5, 10, v5")
    a("v_lshl_add_u32 v5, v2, 3, v5")
    a("s_lshl_b32 s67, s58, 1")
    a(f"s_add_u32 s67, s67, {OH}")
    a("v_add_u32 v5, s67, v5")
    a("ds_read_b64 v[6:7], v5")
    a(f"v_mul_u32_u24 v4, {HSTR}, v4")
    a("v_lshl_add_u32 v4, v2, 2, v4")
    a("v_add_u32 v4, s57, v4")
    a("s_waitcnt lgkmcnt(0)")
    a("v_cvt_pk_bf16_f32 v6, v6, v7")
    a("ds_write_b32 v4, v6")
    a("s_add_u32 s66, s66, 2")
    a("s_cmp_lt_u32 s66, 16")
    a("s_cbranch_scc1 K2_SL_CV")
    a("v_lshlrev_b32 v7, 4, v1")
    fin_loads(7)
    a(f"v_mov_b32 v5, {FLAG}")
    a("v_mov_b32 v7, 1")
    a("s_branch K2_FIN")
    a.loop = (loop_start, loop_end)
    return a, NV2, (102 if opt.get('stamps') else 96)
```

```python
from asmlib import *
from k1 import *

NW = 12
PSLOT = 0
EIM = 49152
OH = 98304
ZERO = 147456
CNT = ZERO + 256
FLAG = ZERO + 512
IDX = ZERO + 3328
EOFF = IDX + 6400
HSTR = 144
K2_LDS = 163840
assert EOFF + 6144 <= K2_LDS
GCAP = 48
KILL = 0x40000000
NEGLN2 = 0xBF317218
aAE = 1; aAP = 2; aAO = 7; aS1 = 8; aS2 = 9; aIDX = 10; aEI = 11; EI = 12; CHK = 14
D = [16, 32]; EX = 48; ACC = 64; BC = [80, 84]; BQ = [88, 92]; ID = [96, 100]
AE = 104; FV = 164; MG = 165; AO = 108; S = 112; AP = [116, 120, 124, 128]; HQ = 132; IX = [136, 138, 140, 142]
WP = 144
NV2 = 168

def pr(r): return v(r, 2)
def q4(r): return v(r, 4)
def x16(r): return v(r, 16)

def mf_tile(Y):
    d = D[Y]
    return [f"v_mfma_f32_32x32x16_bf16 {x16(d)}, {q4(AE)}, {q4(BC[Y])}, 0",
            f"v_mfma_f32_32x32x16_bf16 {x16(d)}, {q4(AO)}, {q4(BQ[Y])}, {x16(d)}",
            f"v_mfma_f32_32x32x16_bf16 {x16(d)}, {q4(AP[2*Y])}, {q4(ID[0])}, {x16(d)}",
            f"v_mfma_f32_32x32x16_bf16 {x16(d)}, {q4(AP[2*Y+1])}, {q4(ID[1])}, {x16(d)}"]
SEGSUM = f"v_mfma_f32_32x32x16_bf16 {x16(ACC)}, {q4(HQ)}, {q4(S)}, {x16(ACC)}"

OCT = [0]
QTAILS = []
def tile(X, mf, ex_exp, mid, ex_rcp, tag=None):
    d = D[X]; out = []; mi = 0
    for i in range(16):
        if i % 3 == 0 and mi < len(mf):
            out.append(mf[mi]); mi += 1
        out.append(f"v_exp_f32 v{EX+i}, v{d+i}")
        out += ex_exp.get(i, [])
    out += mid
    NAB, NCD, DAB, DCD = d, d + 8, EX, EX + 8
    out.append(f"v_pk_add_f32 {pr(DAB)}, {pr(EX)}, 1.0 op_sel_hi:[1,0]")
    out.append(f"v_pk_add_f32 {pr(DCD)}, {pr(EX+8)}, 1.0 op_sel_hi:[1,0]")
    for k in range(1, 4):
        out.append(f"v_pk_fma_f32 {pr(NAB)}, {pr(NAB)}, {pr(EX+2*k)}, {pr(NAB)}")
        out.append(f"v_pk_fma_f32 {pr(NCD)}, {pr(NCD)}, {pr(EX+8+2*k)}, {pr(NCD)}")
        out.append(f"v_pk_fma_f32 {pr(NAB)}, {pr(d+2*k)}, {pr(DAB)}, {pr(NAB)}")
        out.append(f"v_pk_fma_f32 {pr(NCD)}, {pr(d+8+2*k)}, {pr(DCD)}, {pr(NCD)}")
        out.append(f"v_pk_fma_f32 {pr(DAB)}, {pr(DAB)}, {pr(EX+2*k)}, {pr(DAB)}")
        out.append(f"v_pk_fma_f32 {pr(DCD)}, {pr(DCD)}, {pr(EX+8+2*k)}, {pr(DCD)}")
    qt = [f"v_pk_fma_f32 {pr(CHK)}, {pr(DAB)}, {pr(DCD)}, {pr(CHK)}"]
    for r in (DAB, DAB + 1, DCD, DCD + 1):
        qt.append(f"v_rcp_f32 v{r}, v{r}")
    qt.append(f"v_pk_mul_f32 {pr(NAB)}, {pr(NAB)}, {pr(DAB)}")
    qt.append(f"v_pk_mul_f32 {pr(NCD)}, {pr(NCD)}, {pr(DCD)}")
    qt.append(f"v_cvt_pk_bf16_f32 v{HQ+2*X}, v{NAB}, v{NAB+1}")
    qt.append(f"v_cvt_pk_bf16_f32 v{HQ+2*X+1}, v{NCD}, v{NCD+1}")
    out += ex_rcp
    if not OCT[0] or tag is None:
        return out + qt
    DM = EX + 2
    out += ["s_bitcmp1_b32 s95, s55", f"s_cbranch_scc1 K2_QT{tag}",
            f"v_pk_mul_f32 {pr(DM)}, {pr(DAB)}, {pr(DCD)}",
            f"v_pk_mul_f32 {pr(NAB)}, {pr(NAB)}, {pr(DCD)}",
            "s_bitcmp0_b32 s54, s55",
            f"v_rcp_f32 v{DM+2}, v{DM}",
            f"v_rcp_f32 v{DM+3}, v{DM+1}",
            f"v_pk_fma_f32 {pr(NAB)}, {pr(NCD)}, {pr(DAB)}, {pr(NAB)}",
            f"v_pk_add_f32 {pr(CHK)}, {pr(CHK)}, {pr(DM)}",
            f"v_pk_mul_f32 {pr(NAB)}, {pr(NAB)}, {pr(DM+2)}",
            f"s_cbranch_scc1 K2_OZ{tag}",
            f"v_mov_b32 v{HQ+2*X+1}, 0",
            f"K2_OZ{tag}:",
            f"v_cvt_pk_bf16_f32 v{HQ+2*X}, v{NAB}, v{NAB+1}",
            f"K2_QR{tag}:"]
    QTAILS.append([f"K2_QT{tag}:"] + qt + [f"s_branch K2_QR{tag}"])
    return out

PFL = [""]
def p_dma():
    return [f"buffer_load_dwordx4 {pr(IX[k])}, s[32:35], s{28+k} idxen offen offset:{k*1024}{PFL[0]} lds" for k in range(4)]

EFL = [""]
def e_dma():
    return ["s_cmp_lt_u32 s61, s53",
            f"s_cselect_b32 s86, {E}, 0",
            f"s_cselect_b32 m0, s59, {K2_LDS:#x}",
            "s_add_u32 s61, s61, 4",
            f"buffer_load_dwordx4 {pr(EI)}, s[84:87], 0 idxen offen{EFL[0]} lds",
            "s_mov_b32 m0, s57",
            "s_add_u32 s59, s59, 4096"]
NW2 = 5
def w2_pre(vaddr):
    return [f"buffer_load_dwordx4 {q4(WP+4*sidx)}, v{vaddr}, s[40:43], s{73 + (sidx >> 2)} offen offset:{(sidx & 3)*1024} sc1" for sidx in range(NW2)]

NG3 = 105; GR3 = 96; NP3 = 17
KNAME = "standalone__edge_featured_mpnn_mpnn__graph_kernel"
def gen_k3(opt=None):
    opt = opt or {}
    EFL[0] = {0: "", 1: " nt", 2: " sc1"}[opt.get("efl", 0)]
    OCT[0] = opt.get("oct", 0)
    QTAILS.clear()
    PFL[0] = {0: "", 1: " sc1", 2: " sc0 sc1", 3: " sc0"}[opt.get("pfl", 1)]
    a = Asm()
    def stp(i):
        if opt.get("stamps"):
            a("s_memrealtime s[96:97]"); a("s_waitcnt lgkmcnt(0)"); a(f"v_writelane_b32 v0, s96, {i}")
    def stc(i):
        if opt.get("stamps"):
            a("s_memtime s[96:97]"); a("s_waitcnt lgkmcnt(0)"); a(f"v_writelane_b32 v0, s96, {i}")
    NT = " nt" if opt.get("knt", 1) else ""
    NTX = " nt" if opt.get("kntx", 0) else ""
    TID = 167
    L16 = 6
    XI = 65536
    AW = EOFF + 6144
    MF = opt.get("mf", 0)
    PSL = opt.get("psl", 1)
    def arrive(off, va=111):
        a("s_mov_b64 exec, 1")
        a(f"ds_add_u32 v{va}, v114 offset:{off}")
        a("s_mov_b64 exec, -1")
    npub = [0]
    def publish(nw, cnt_off, total, go_off, vm=0):
        npub[0] += 1; t = npub[0]
        a(f"s_waitcnt vmcnt({vm})")
        a("s_mov_b64 exec, 1")
        a(f"v_mov_b32 v106, {AW}")
        a("ds_add_rtn_u32 v105, v106, v114 offset:4")
        a("v_mov_b32 v106, 0")
        a("v_mov_b32 v109, 1")
        a("s_waitcnt lgkmcnt(0)")
        a("v_readfirstlane_b32 s66, v105")
        a("s_nop 0")
        a(f"s_cmp_lg_u32 s66, {nw-1}")
        a(f"s_cbranch_scc1 PUB{t}")
        a(f"buffer_atomic_add v109, v106, s[36:39], 0 offen offset:{cnt_off} sc0")
        a("s_waitcnt vmcnt(0)")
        a("v_readfirstlane_b32 s66, v109")
        a("s_nop 0")
        a(f"s_cmp_lg_u32 s66, {total-1}")
        a(f"s_cbranch_scc1 PUB{t}")
        a(f"buffer_store_dword v114, v106, s[36:39], 0 offen offset:{go_off} sc0 sc1")
        a.label(f"PUB{t}")
        a("s_mov_b64 exec, -1")
    ngp = [0]
    def gpoll(go_off, vz=106, vt=105):
        ngp[0] += 1; t = ngp[0]
        a(f"v_mov_b32 v{vz}, 0")
        a("s_mov_b32 s67, 0x200000")
        a.label(f"GP{t}")
        a(f"buffer_load_dword v{vt}, v{vz}, s[36:39], 0 offen offset:{go_off} sc1")
        a("s_sub_u32 s67, s67, 1")
        a("s_waitcnt vmcnt(0)")
        a(f"v_readfirstlane_b32 s66, v{vt}")
        a("s_cmp_eq_u32 s67, 0")
        a(f"s_cbranch_scc1 GX{t}")
        a("s_cmp_lg_u32 s66, 0")
        a(f"s_cbranch_scc1 GX{t}")
        a(f"s_sleep {PSL}")
        a(f"s_branch GP{t}")
        a.label(f"GX{t}")
    nlw = [0]
    def lwait(off, n, sleep=1, va=111):
        nlw[0] += 1; t = nlw[0]
        a.label(f"LW{t}")
        a(f"ds_read_b32 v105, v{va} offset:{off}")
        a("s_waitcnt lgkmcnt(0)")
        a("v_readfirstlane_b32 s66, v105")
        a("s_nop 0")
        a(f"s_cmp_ge_u32 s66, {n}")
        a(f"s_cbranch_scc1 LX{t}")
        if sleep: a(f"s_sleep {sleep}")
        a(f"s_branch LW{t}")
        a.label(f"LX{t}")
    a.label(KNAME)
    a("s_cmp_ge_u32 s2, 256")
    a("s_cbranch_scc1 K2_END")
    a("s_load_dwordx16 s[4:19], s[0:1], 0")
    a("s_load_dwordx2 s[22:23], s[0:1], 80")
    a("s_load_dwordx2 s[20:21], s[0:1], 64")
    a("s_load_dwordx2 s[36:37], s[0:1], 72")
    if opt.get("stamps"): a("s_memrealtime s[98:99]")
    a("s_mov_b32 s70, 0")
    a("v_lshrrev_b32 v72, 6, v0")
    a("v_and_b32 v1, 63, v0")
    a("v_readfirstlane_b32 s24, v72")
    a(f"v_mov_b32 v106, {AW}")
    a("v_mov_b32 v108, 0")
    a("v_mov_b32 v109, 0")
    a("v_mov_b32 v114, 1")
    a("ds_write_b64 v106, v[108:109]")
    a(f"v_lshlrev_b32 v{L16}, 4, v1")
    a("s_mov_b32 s38, 256")
    a("s_mov_b32 s39, 0x00020000")
    a(f"s_cmp_ge_u32 s2, {NG3}")
    a("s_cbranch_scc1 A_NG")
    a("v_lshrrev_b32 v20, 4, v1")
    a("s_lshl_b32 s66, s24, 3")
    a("v_add_u32 v20, s66, v20")
    a("v_xor_b32 v21, v20, v1")
    a("v_and_b32 v21, 15, v21")
    a("v_lshlrev_b32 v21, 4, v21")
    a("v_lshl_add_u32 v18, v20, 8, v21")
    a("v_xor_b32 v19, 64, v18")
    a("v_lshrrev_b32 v20, 5, v1")
    a("v_and_b32 v21, 31, v1")
    a("v_lshlrev_b32 v22, 2, v20")
    a("v_xor_b32 v22, v22, v21")
    a("v_lshlrev_b32 v22, 4, v22")
    a("v_lshl_add_u32 v16, v20, 9, v22")
    a("v_xor_b32 v17, 0x80, v16")
    a("s_lshl_b32 s67, s24, 12")
    a("s_add_u32 s68, s67, 32768")
    a(f"s_mul_i32 s69, s2, {GR3*256}")
    a("s_lshl_b32 s66, s24, 11")
    a(f"s_add_u32 m0, s66, {XI}")
    a("s_waitcnt lgkmcnt(0)")
    srd(a, 76, "s4", "s5", N * 256)
    srd(a, 80, "s12", "s13", 272 * 512)
    a(f"buffer_load_dwordx4 v18, s[76:79], s69 offen{NTX} lds")
    a(f"buffer_load_dwordx4 v19, s[76:79], s69 offen offset:1024{NTX} lds")
    a("s_mov_b32 m0, s67")
    a("s_cmp_ge_u32 s24, 8")
    a("s_barrier")
    a("s_cbranch_scc1 K2_TOP")
    for k in range(4):
        a(f"buffer_load_dwordx4 v{16 + (k & 1)}, s[80:83], s67 offen offset:{k*1024} lds")
    a("s_mov_b32 m0, s68")
    a("s_nop 0")
    for k in range(4):
        a(f"buffer_load_dwordx4 v{16 + (k & 1)}, s[80:83], s68 offen offset:{k*1024} lds")
    a("s_branch K2_TOP")
    a.label("A_NG")
    a(f"s_sub_u32 s3, s2, {NG3}")
    a("s_cmp_ge_u32 s24, 8")
    a("s_cbranch_scc1 A_W")
    a(f"s_cmp_ge_u32 s3, {NSORT}")
    a("s_cbranch_scc1 A_NS")
    a("v_lshlrev_b32 v16, 2, v0")
    a("v_add_u32 v17, 4096, v16")
    a("v_add_u32 v18, 8192, v16")
    a(f"s_mul_i32 s66, s3, {CHUNK*4}")
    a("s_waitcnt lgkmcnt(0)")
    srd(a, 76, "s10", "s11", E * 4)
    for i in range(5):
        a(f"buffer_load_dword v{32+i}, v{16 + (i >> 1)}, s[76:79], s66 offen offset:{(i & 1)*2048}{NT}")
    srd(a, 80, "s8", "s9", E * 4)
    for i in range(5):
        a(f"buffer_load_dword v{37+i}, v{16 + (i >> 1)}, s[80:83], s66 offen offset:{(i & 1)*2048}{NT}")
    for i in range(4): a(f"v_mov_b32 v{20+i}, -1")
    a("v_mov_b32 v19, 0")
    a("v_lshlrev_b32 v24, 4, v0")
    a("ds_write_b32 v16, v19 offset:32768")
    for i in range(4): a(f"ds_write_b128 v24, v[20:23] offset:{i*8192}")
    a("s_waitcnt lgkmcnt(0)")
    srd_ws(a, 40, 22, CELL_OFF, (W2F_OFF - CELL_OFF) + FRAG_BYTES)
    a(f"v_mov_b32 v30, {OVF - (1 << 32)}")
    a(f"v_lshlrev_b32 v31, 6, v0")
    a(f"v_lshrrev_b32 v27, 3, v0")
    a(f"v_xor_b32 v28, v27, v0")
    a("v_and_b32 v28, 7, v28")
    a("v_lshlrev_b32 v28, 4, v28")
    a("v_lshl_add_u32 v28, v27, 7, v28")
    a(f"v_and_b32 v29, 7, v0")
    a("v_lshlrev_b32 v29, 4, v29")
    a("v_lshl_add_u32 v29, v27, 14, v29")
    a("s_lshl_b32 s76, s3, 7")
    for i in range(1, 4): a(f"s_add_u32 s{76+i}, s76, {i << 20}")
    for i in range(5): a(f"v_add_u32 v{16+i}, {i*32768}, v31")
    a(f"v_cmp_gt_u32 vcc, {CHUNK - 2048}, v0")
    a("s_waitcnt lgkmcnt(0)")
    a("s_mov_b64 s[80:81], vcc")
    a("s_barrier")

    for i in range(5):
        a(f"s_waitcnt vmcnt({9 - i})")
        a(f"v_and_b32 v{42+i}, 255, v{32+i}")
        a(f"v_lshlrev_b32 v{47+i}, 2, v{42+i}")
        if i == 4: a("s_mov_b64 exec, s[80:81]")
        a(f"ds_add_rtn_u32 v{52+i}, v{47+i}, v114 offset:32768")
        if i == 4: a("s_mov_b64 exec, -1")
    for i in range(5):
        a(f"s_waitcnt vmcnt({4 - i})")
        a(f"v_lshrrev_b32 v{32+i}, 8, v{32+i}")
        a(f"v_lshl_or_b32 v{32+i}, v{37+i}, 18, v{32+i}")
        a(f"v_or_b32 v{32+i}, v{32+i}, v{16+i}")
        a(f"v_and_b32 v{37+i}, 28, v{47+i}")
        a(f"v_lshlrev_b32 v{42+i}, 5, v{42+i}")
    for i in range(5):
        a("s_waitcnt lgkmcnt(4)")
        a(f"v_cmp_lt_u32 vcc, 30, v{52+i}")
        a(f"v_min_u32 v{52+i}, 31, v{52+i}")
        a(f"v_lshl_or_b32 v{52+i}, v{52+i}, 5, v{52+i}")
        a(f"v_bfe_u32 v{52+i}, v{52+i}, 2, 5")
        a(f"v_xad_u32 v{52+i}, v{52+i}, v{37+i}, v{42+i}")
        a(f"v_cndmask_b32 v{32+i}, v{32+i}, v30, vcc")
        a(f"v_lshlrev_b32 v{52+i}, 2, v{52+i}")
        if i == 4: a("s_mov_b64 exec, s[80:81]")
        a(f"ds_write_b32 v{52+i}, v{32+i}")
        if i == 4: a("s_mov_b64 exec, -1")
    arrive(0, 106)
    lwait(0, 8, sleep=0, va=106)
    for i in range(4): a(f"ds_read_b128 {q4(56+4*i)}, v28 offset:{i*8192}")
    for i in range(4):
        a(f"s_waitcnt lgkmcnt({3 - i})")
        a(f"buffer_store_dwordx4 {q4(56+4*i)}, v29, s[40:43], s{76+i} offen sc1")
    if opt.get("stamps"): a("s_waitcnt vmcnt(0)\ns_memrealtime s[96:97]\ns_waitcnt lgkmcnt(0)\ns_mov_b32 s99, s96")
    publish(8, 0, NSORT + (NP3 if MF else 0), 128)
    if opt.get("stamps"): a("s_memrealtime s[96:97]\ns_waitcnt lgkmcnt(0)\ns_mov_b32 s101, s96\ns_waitcnt vmcnt(0)\ns_memrealtime s[96:97]\ns_waitcnt lgkmcnt(0)\ns_mov_b32 s100, s96")
    a("s_branch K2_TOP")
    a.label("A_NS")
    a(f"s_sub_u32 s3, s3, {NSORT}")
    a(f"s_cmp_ge_u32 s3, {NP3}")
    a("s_cbranch_scc1 A_W")
    a("s_lshl_b32 s3, s3, 3")
    a("s_add_u32 s3, s3, s24")
    a("s_waitcnt lgkmcnt(0)")
    a("s_cmp_ge_u32 s3, 64")
    a("s_cbranch_scc1 A_P1")
    srd(a, 76, "s16", "s17", 256 * 256)
    a("v_and_b32 v16, 15, v1")
    a("v_lshlrev_b32 v16, 1, v16")
    a("v_lshrrev_b32 v17, 4, v1")
    a("v_lshl_add_u32 v16, v17, 10, v16")
    a("v_add_u32 v17, 8192, v16")
    a("s_bfe_u32 s66, s3, 0x20001")
    a("s_lshl_b32 s66, s66, 14")
    a("s_and_b32 s67, s3, 1")
    a("s_lshl_b32 s67, s67, 12")
    a("s_add_u32 s66, s66, s67")
    a("s_lshr_b32 s67, s3, 3")
    a("s_lshl_b32 s67, s67, 5")
    a("s_add_u32 s66, s66, s67")
    for e in range(8):
        a(f"buffer_load_ushort v{32+e}, v{16 + (e & 1)}, s[76:79], s66 offen offset:{(e >> 1)*256}")
    a("s_branch A_PF")
    a.label("A_P1")
    a("s_bfe_u32 s68, s3, 0x30003")
    a("s_and_b32 s69, s3, 7")
    a("s_cmp_ge_u32 s3, 128")
    a("s_cselect_b32 s68, s69, s68")
    a("s_cselect_b32 s69, 8, s69")
    srd(a, 76, "s12", "s13", 272 * 512)
    a("v_and_b32 v16, 1, v1")
    a("v_and_b32 v17, 30, v1")
    a("v_lshl_add_u32 v16, v16, 6, v17")
    a("v_lshrrev_b32 v17, 5, v1")
    a("v_lshl_add_u32 v16, v17, 12, v16")
    a("s_lshr_b32 s66, s68, 1")
    a("s_lshl_b32 s66, s66, 7")
    a("s_and_b32 s67, s68, 1")
    a("s_lshl_b32 s67, s67, 5")
    a("s_add_u32 s66, s66, s67")
    a("s_lshl_b32 s69, s69, 13")
    a("s_add_u32 s66, s66, s69")
    a(f"s_add_u32 s66, s66, {128*512}")
    for e in range(8):
        a(f"buffer_load_ushort v{32+e}, v16, s[76:79], s66 offen offset:{e*512}")
    a.label("A_PF")
    srd_ws(a, 40, 22, CELL_OFF, (W2F_OFF - CELL_OFF) + FRAG_BYTES)
    a("s_waitcnt lgkmcnt(0)")
    a("s_barrier")
    a("s_lshl_b32 s76, s3, 10")
    a(f"s_add_u32 s76, s76, {W2F_OFF - CELL_OFF}")
    a("s_cmp_ge_u32 s3, 128")
    a("s_waitcnt vmcnt(0)")
    a("s_cbranch_scc1 B_PC")
    for e in range(4): a(f"v_lshl_or_b32 v{40+e}, v{33+2*e}, 16, v{32+2*e}")
    a("s_branch B_PS")
    a.label("B_PC")
    a(f"s_mov_b32 s77, {NEGLOG2E:#x}")
    for e in range(8):
        a(f"v_lshlrev_b32 v{32+e}, 16, v{32+e}")
        a(f"v_mul_f32 v{32+e}, s77, v{32+e}")
    for e in range(4): a(f"v_cvt_pk_bf16_f32 v{40+e}, v{32+2*e}, v{33+2*e}")
    a.label("B_PS")
    a(f"buffer_store_dwordx4 v[40:43], v{L16}, s[40:43], s76 offen sc1")
    if MF: publish(8, 0, NSORT + NP3, 128)
    else: publish(8, 32, NP3, 132)
    a("s_branch K2_TOP")
    a.label("A_W")
    if opt.get("cpf", 1):
        a(f"s_cmp_lt_u32 s2, {NG3 + NSORT}")
        a("s_cbranch_scc1 A_W2")
        a("s_getpc_b64 s[76:77]")
        a.label("A_PC")
        a(f"s_sub_u32 s76, s76, A_PC-{KNAME}")
        a("s_subb_u32 s77, s77, 0")
        a(f"s_mov_b32 s78, K2_REDO-{KNAME}")
        a("s_mov_b32 s79, 0x00020000")
        a("v_and_b32 v16, 255, v0")
        a("v_lshlrev_b32 v16, 7, v16")
        a("buffer_load_dword v134, v16, s[76:79], 0 offen")
        a.label("A_W2")
    a("s_waitcnt lgkmcnt(0)")
    a("s_barrier")
    a.label("K2_TOP")
    a(f"v_mov_b32 v{TID}, v0")
    a("v_lshlrev_b32 v24, 4, v0")
    a(f"v_lshlrev_b32 v{L16}, 4, v1")
    a("s_and_b32 s25, s24, 3")
    a("s_lshr_b32 s26, s24, 2")
    srd_ws(a, 40, 22, CELL_OFF, (W2F_OFF - CELL_OFF) + FRAG_BYTES)
    a.label("K2_CM")
    a("s_mul_i32 s71, s26, 12")
    a("s_lshl_b32 s56, s26, 14")
    a(f"s_add_u32 s56, s56, {EIM}")
    a("s_lshl_b32 s69, s25, 10")
    a("s_add_u32 s59, s56, s69")
    a("s_lshl_b32 s66, s24, 13")
    a(f"s_add_u32 s73, s66, {W2F_OFF - CELL_OFF}")
    a("s_cmp_lt_u32 s24, 8")
    a(f"s_cselect_b32 s73, s73, {KILL:#x}")
    a("s_add_u32 s74, s73, 4096")
    a("s_lshl_b32 s72, s25, 11")
    a(f"s_add_u32 s72, s72, {WCF_OFF - CELL_OFF}")
    a(f"v_add_u32 v156, {OH}, v24")
    for i in range(4): a(f"v_mov_b32 v{144+i}, 0")
    a(f"v_mov_b32 v31, {N}")
    a(f"v_mov_b32 v152, {E}")
    a(f"v_cmp_gt_u32 vcc, {IDX - ZERO}, v24")
    a(f"s_mov_b32 s66, {EOFF - ZERO}")
    a("v_cmp_le_u32 s[68:69], s66, v24")
    a("v_cndmask_b32 v148, v31, v144, vcc")
    a("v_mov_b32 v153, v152")
    a("v_cndmask_b32 v148, v148, v152, s[68:69]")
    a("v_mov_b32 v154, v152")
    a("v_mov_b32 v155, v152")
    for i in range(1, 4): a(f"v_mov_b32 v{148+i}, v148")
    a(f"ds_write_b128 v156, v[148:151] offset:{4*12288}")
    for i in range(4): a(f"ds_write_b128 v156, v[144:147] offset:{i*12288}")
    a(f"v_cmpx_gt_u32 vcc, {AW - (OH + 5*12288)}, v24")
    a(f"ds_write_b128 v156, v[152:155] offset:{5*12288}")
    a("s_mov_b64 exec, -1")
    if opt.get("stamps"):
        a("v_mov_b32 v0, 0"); a("v_writelane_b32 v0, s98, 0")
        a("v_writelane_b32 v0, s99, 16"); a("v_writelane_b32 v0, s100, 30"); a("v_writelane_b32 v0, s101, 31")
    a("s_mov_b32 s84, s6")
    a("s_and_b32 s85, s7, 0xffff")
    a(f"s_or_b32 s85, s85, {32 << 16:#x}")
    a("s_mov_b32 s87, 0x00020000")
    a(f"s_add_u32 s32, s22, {P_OFF - 3072}")
    a("s_addc_u32 s33, s23, 0")
    a("s_and_b32 s33, s33, 0xffff")
    a(f"s_or_b32 s33, s33, {512 << 16:#x}")
    a(f"s_mov_b32 s34, {N+1}")
    a("s_mov_b32 s35, 0x00020000")
    srd(a, 44, "s20", "s21", N * 256)
    H_, I_, T0, T1 = 77, 78, 105, 106
    a(f"v_lshrrev_b32 v{H_}, 5, v1")
    a(f"v_and_b32 v{I_}, 31, v1")
    a(f"v_bfe_u32 v{T0}, v1, 3, 2")
    a(f"v_bfe_u32 v{T1}, v1, 1, 1")
    a(f"v_lshl_or_b32 v{T0}, v{T0}, 1, v{T1}")
    a(f"v_and_b32 v{T1}, 1, v1")
    a(f"v_lshl_or_b32 v{T0}, v{T1}, 3, v{T0}")
    a(f"v_and_b32 v{T1}, 4, v1")
    a(f"v_lshl_or_b32 v{T0}, v{T1}, 2, v{T0}")
    a("s_lshl_b32 s57, s24, 12")
    a("s_lshl_b32 s58, s25, 7")
    a("s_mov_b32 m0, s57")
    for k in range(4): a(f"s_add_u32 s{28+k}, s58, {(3-k)*1024}")
    a(f"v_bfe_u32 v{T1}, v{T0}, 1, 3")
    a(f"v_xor_b32 v{T1}, v{T1}, v{H_}")
    a(f"v_lshl_add_u32 v{T1}, v{T1}, 4, s57")
    a(f"v_lshl_add_u32 v{aAP}, v{T0}, 7, v{T1}")
    for m in range(1, 4): a(f"v_xor_b32 v{aAP+m}, {m << 5}, v{aAP}")
    a(f"v_bfe_u32 v{T1}, v{T0}, 3, 1")
    a(f"v_xor_b32 v{T1}, v{T1}, v{H_}")
    a(f"v_lshl_add_u32 v{T1}, v{T1}, 4, s56")
    a(f"v_lshl_add_u32 v110, v{T0}, 5, v{T1}")
    a(f"v_lshlrev_b32 v{T1}, 4, v{H_}")
    a(f"v_lshl_add_u32 v{aAO}, v{T0}, 5, v{T1}")
    a(f"v_and_b32 v{T1}, 62, v1")
    a(f"v_lshlrev_b32 v{aEI}, 1, v{T1}")
    SOFF = 104
    a(f"v_and_b32 v{T1}, 8, v1")
    a(f"v_lshlrev_b32 v{SOFF}, 4, v{T1}")
    a(f"v_lshl_add_u32 v{SOFF}, v{H_}, 9, v{SOFF}")
    a(f"v_and_b32 v{T1}, 4, v1")
    a(f"v_lshl_add_u32 v{SOFF}, v{T1}, 6, v{SOFF}")
    a(f"v_and_b32 v{T1}, 3, v1")
    a(f"v_lshl_add_u32 v{SOFF}, v{T1}, 3, v{SOFF}")
    a("s_mov_b32 s62, 0xffff\ns_mov_b32 s63, 0xffff\ns_mov_b32 s64, 0xffff0000\ns_mov_b32 s65, 0xffff0000")
    a(f"v_lshrrev_b32 v{T1}, 3, v1")
    a(f"v_lshlrev_b32 v{aIDX}, 2, v{T1}")
    a(f"v_lshrrev_b32 v{T1}, 4, v1")
    a(f"v_xor_b32 v{T1}, v{T1}, v1")
    a(f"v_and_b32 v{EI+1}, 1, v{T1}")
    a(f"v_lshlrev_b32 v{EI+1}, 4, v{EI+1}")
    a(f"v_and_b32 v{T1}, 7, v{T1}")
    a(f"v_lshlrev_b32 v{IX[0]+1}, 4, v{T1}")
    a(f"v_xor_b32 v{IX[1]+1}, 64, v{IX[0]+1}")
    a(f"v_mov_b32 v{IX[2]+1}, v{IX[0]+1}")
    a(f"v_mov_b32 v{IX[3]+1}, v{IX[1]+1}")
    a(f"v_and_b32 v{T1}, 1, v1")
    a(f"v_lshlrev_b32 v{T1}, 4, v{T1}")
    a("v_mov_b32 v75, 0x3f80")
    a(f"v_lshlrev_b32 v107, v{T1}, v75")
    a(f"v_lshrrev_b32 v{T1}, 1, v{I_}")
    a(f"v_lshlrev_b32 v{T0}, 2, v{H_}")
    a(f"v_sub_u32 v{T1}, v{T1}, v{T0}")
    for mm in range(2):
        for rho in range(4):
            a(f"v_cmp_eq_u32 s[{76+2*rho}:{77+2*rho}], {8*mm+rho}, v{T1}")
        for rho in range(4):
            a(f"v_cndmask_b32 v{ID[mm]+rho}, 0, v107, s[{76+2*rho}:{77+2*rho}]")
    a("s_lshl_b32 s66, s25, 11")
    a("s_add_u32 s67, s56, s66")
    a(f"v_add_u32 v115, s67, v{L16}")
    a(f"v_mov_b32 v111, {FLAG}")
    a("v_mov_b32 v114, 1")
    a("s_mov_b32 s55, 0")
    a("s_mov_b32 s60, 0")
    a("s_mov_b32 s61, s25")
    a("s_mov_b32 s27, 0")
    a("s_cmp_lg_u32 s70, 0")
    a("s_cbranch_scc1 B_IDLE")
    a(f"s_cmp_ge_u32 s2, {NG3}")
    a("s_cbranch_scc1 B_IDLE")
    GA, GB_ = 144, 152
    DA, DB = 16, 32
    BFs = [48, 56, 64, 80]; AFs = [88, 92, 116, 120]
    a("s_waitcnt lgkmcnt(0)")
    a(f"v_and_b32 v154, 15, v1")
    a(f"v_xor_b32 v154, v154, v{H_}")
    a("s_lshl_b32 s66, s26, 13")
    a(f"s_add_u32 s66, s66, {XI}")
    a("v_lshl_add_u32 v154, v154, 4, s66")
    a(f"v_lshl_add_u32 v{GA}, v{I_}, 8, v154")
    for sidx in range(1, 8): a(f"v_xor_b32 v{GA+sidx}, {sidx << 5}, v{GA}")
    a("v_bfe_u32 v154, v1, 2, 2")
    a(f"v_lshl_add_u32 v155, v{H_}, 3, v154")
    a("v_and_b32 v156, 3, v1")
    a("v_lshl_add_u32 v156, v156, 3, s58")
    a("v_bfe_u32 v157, v1, 4, 1")
    a("v_lshl_add_u32 v156, v157, 5, v156")
    a("v_lshlrev_b32 v154, 6, v154")
    a("v_xor_b32 v156, v156, v154")
    a(f"v_lshl_add_u32 v{GB_}, v155, 9, v156")
    a(f"v_xor_b32 v{GB_+1}, 64, v{GB_}")
    a("s_lshl_b32 s66, s26, 14")
    a("s_add_u32 s66, s66, s58")
    a(f"v_lshl_add_u32 v158, v{I_}, 2, s66")
    a(f"v_lshl_add_u32 v158, v{H_}, 11, v158")
    a(f"s_mov_b32 s68, {NEGLOG2E:#x}")
    a(f"s_mov_b32 s69, {NEGLOG2E:#x}")
    a("s_cmp_lt_u32 s24, 8")
    a("s_cbranch_scc1 B_G4")
    a("s_waitcnt vmcnt(0)")
    a.label("B_G4")
    a("s_waitcnt vmcnt(4)")
    a("s_barrier")
    def reads(sidx):
        st = sidx & 3
        a(f"ds_read_b128 {q4(AFs[st])}, v{GA+sidx}")
        for X in range(2):
            for e in range(2):
                a(f"ds_read_b64_tr_b16 {pr(BFs[st]+4*X+2*e)}, v{GB_+X} offset:{sidx*8192+e*2048}")
    def mm(sidx):
        st = sidx & 3
        a(f"v_mfma_f32_32x32x16_bf16 {x16(DA)}, {q4(AFs[st])}, {q4(BFs[st])}, {'0' if sidx == 0 else x16(DA)}")
        a(f"v_mfma_f32_32x32x16_bf16 {x16(DB)}, {q4(AFs[st])}, {q4(BFs[st]+4)}, {'0' if sidx == 0 else x16(DB)}")
    reads(0); reads(1); reads(2)
    a("s_waitcnt lgkmcnt(10)"); mm(0); reads(3)
    a("s_waitcnt lgkmcnt(10)"); mm(1)
    a("s_waitcnt vmcnt(0)")
    a("s_barrier")
    reads(4)
    a("s_waitcnt lgkmcnt(10)"); mm(2); reads(5)
    a("s_waitcnt lgkmcnt(10)"); mm(3); reads(6)
    a("s_waitcnt lgkmcnt(10)"); mm(4); reads(7)
    a("s_waitcnt lgkmcnt(10)"); mm(5)
    a("s_waitcnt lgkmcnt(5)"); mm(6)
    a("s_waitcnt lgkmcnt(0)"); mm(7)
    a("s_barrier")
    a("s_nop 9")
    for r in range(0, 16, 2):
        a(f"v_pk_mul_f32 {pr(DA+r)}, {pr(DA+r)}, s[68:69]")
        a(f"v_pk_mul_f32 {pr(DB+r)}, {pr(DB+r)}, s[68:69]")
        for rr in (r, r + 1): a(f"v_cvt_pk_bf16_f32 v{48+rr}, v{DA+rr}, v{DB+rr}")
        o = ((r >> 2) * 8 + (r & 3)) * 2
        a(f"ds_write2st64_b32 v158, v{48+r}, v{49+r} offset0:{o} offset1:{o+2}")
    a("s_waitcnt lgkmcnt(0)")
    a("s_barrier")
    a("s_cmp_eq_u32 s26, 2")
    a("s_cbranch_scc1 K2_HQ")
    a("s_cmp_eq_u32 s26, 0")
    a("s_cbranch_scc1 K2_SW")
    srd_ws(a, 76, 22, P_OFF, (N + 1) * 512)
    a("s_mul_i32 s66, s25, 12288")
    a(f"v_add_u32 v154, s66, v{L16}")
    a(f"s_mul_i32 s67, s2, {GR3*512}")
    a("s_add_u32 s80, s66, s67")
    a("s_add_u32 s81, s80, 4096")
    a("s_add_u32 s82, s80, 8192")
    for i in range(12): a(f"ds_read_b128 {q4(28+4*i if i < 11 else 88)}, v154 offset:{i*1024}")
    for i in range(12):
        a(f"s_waitcnt lgkmcnt({11-i})")
        a(f"buffer_store_dwordx4 {q4(28+4*i if i < 11 else 88)}, v{L16}, s[76:79], s{80 + (i >> 2)} offen offset:{(i & 3)*1024} sc1")
    a("s_mov_b32 s27, 1")
    a("s_branch K2_SW")
    a.label("B_IDLE")
    a("s_waitcnt lgkmcnt(0)")
    a("s_barrier")
    a("s_cmp_ge_u32 s24, 8")
    a("s_cbranch_scc1 K2_HQ")
    a.label("K2_SW")
    stp(1)
    a(f"s_mov_b32 s66, {CHUNK}")
    a(f"v_lshrrev_b32 v72, 2, v{TID}")
    a("v_mul_u32_u24 v72, s66, v72")
    a(f"v_lshlrev_b32 v25, 5, v{TID}")
    a(f"s_mov_b32 s78, {CNT}")
    a("v_lshl_add_u32 v76, v1, 2, s78")
    a(f"s_mov_b32 s79, {IDX}")
    a(f"s_mov_b32 s80, {OH}")
    a("s_mov_b32 s81, 0")
    a("s_lshl_b32 s77, s2, 14")
    a("s_cmp_lg_u32 s24, 0")
    a("s_cbranch_scc1 K2_SWW")
    if not MF:
        gpoll(132)
        a("ds_write_b32 v111, v114 offset:36")
    gpoll(128)
    a("ds_write_b32 v111, v114 offset:32")
    a("s_branch K2_SWG")
    a.label("K2_SWW")
    lwait(32, 1)
    a.label("K2_SWG")
    a("buffer_load_dwordx4 v[16:19], v25, s[40:43], s77 offen sc1")
    a("buffer_load_dwordx4 v[20:23], v25, s[40:43], s77 offen offset:16 sc1")
    a(f"buffer_load_dwordx4 {q4(BC[0])}, v{L16}, s[40:43], s72 offen sc1")
    a(f"buffer_load_dwordx4 {q4(BC[1])}, v{L16}, s[40:43], s72 offen offset:1024 sc1")
    stp(15)
    a("s_cmp_eq_u32 s27, 0")
    a("s_cbranch_scc1 K2_NP")
    publish(4, 64, NG3, 136, vm=4)
    a.label("K2_NP")
    a("s_waitcnt vmcnt(3)")
    stp(2)
    RA, RK = 32, 40
    SB = 48; T = 116
    TS, TE, TO = 116, 124, 56
    def count(ks):
        for k in ks:
            a(f"v_and_b32 v{RA+k}, 63, v{16+k}")
            a(f"v_lshl_add_u32 v{RA+k}, v{RA+k}, 2, s78")
        for k in ks:
            a(f"v_cmpx_gt_u32 vcc, -2, v{16+k}")
            a(f"ds_add_rtn_u32 v{RK+k}, v{RA+k}, v114")
        a("s_mov_b64 exec, -1")
    def decode(ks):
        for k in ks:
            a(f"v_lshrrev_b32 v{TS+k}, {18 + opt.get('pshift', 0)}, v{16+k}")
            a(f"v_bfe_u32 v{TE+k}, v{16+k}, 6, 12")
            a(f"v_add_u32 v{TE+k}, v{TE+k}, v72")
            if opt.get("eshift"): a(f"v_lshrrev_b32 v{TE+k}, {opt['eshift']}, v{TE+k}")
            a(f"v_and_b32 v{TO+k}, 15, v{16+k}")
            a(f"v_lshl_add_u32 v{TO+k}, v{TO+k}, 1, s80")
    def scatter(ks):
        for k in ks:
            a(f"v_add_u32 v{SB+k}, v{SB+k}, v{RK+k}")
            a(f"v_lshl_add_u32 v{TO+k}, v{SB+k}, 5, v{TO+k}")
            a(f"v_lshl_add_u32 v{SB+k}, v{SB+k}, 2, s79")
        for k in ks:
            a(f"v_cmpx_gt_u32 vcc, -2, v{16+k}")
            a(f"ds_write2st64_b32 v{SB+k}, v{TS+k}, v{TE+k} offset0:0 offset1:{(EOFF-IDX)//256}")
            a(f"ds_write_b16 v{TO+k}, v75")
        a("s_mov_b64 exec, -1")
    count(range(4))
    a("s_waitcnt vmcnt(2)")
    a("v_cmp_ne_u32 vcc, -1, v20")
    a("s_nop 1")
    a("s_cbranch_vccz K2_C1")
    a("s_mov_b32 s81, 1")
    count([4])
    a("v_cmp_ne_u32 vcc, -1, v21")
    decode([4])
    a("s_cbranch_vccnz K2_CX")
    a.label("K2_C1")
    arrive(4)
    decode(range(4))
    a.label("K2_SB1")
    a("ds_read_b64 v[108:109], v111")
    a("ds_read_b32 v105, v76")
    a("s_waitcnt lgkmcnt(0)")
    a("v_readfirstlane_b32 s66, v109")
    a("v_add_u32 v105, 3, v105")
    a("s_cmp_lt_u32 s66, 8")
    a("s_cbranch_scc1 K2_SB1")
    stp(3)
    a("v_and_b32 v105, -4, v105")
    a("v_readfirstlane_b32 s82, v108")
    a("s_nop 0")
    a("v_add_u32_dpp v107, v105, v105 row_shr:1 row_mask:0xf bank_mask:0xf bound_ctrl:0")
    a("s_nop 1")
    for sh in (2, 4, 8):
        a(f"v_add_u32_dpp v107, v107, v107 row_shr:{sh} row_mask:0xf bank_mask:0xf bound_ctrl:0")
        a("s_nop 1")
    a("v_add_u32_dpp v107, v107, v107 row_bcast:15 row_mask:0xa bank_mask:0xf")
    a("s_sub_u32 s82, s82, s70")
    a("s_lshl_b32 s82, s82, 12")
    a("v_add_u32_dpp v107, v107, v107 row_bcast:31 row_mask:0xc bank_mask:0xf")
    a("v_sub_u32 v108, v107, v105")
    a("v_readlane_b32 s83, v107, 63")
    for k in range(5): a(f"ds_bpermute_b32 v{SB+k}, v{RA+k}, v108")
    a("s_add_u32 s82, s82, s83")
    a(f"s_cmp_gt_u32 s82, {GCAP*32}")
    a("s_cbranch_scc1 K2_BAD")
    a("s_waitcnt lgkmcnt(0)")
    scatter(range(4))
    a("s_cmp_eq_u32 s81, 0")
    a("s_cbranch_scc1 K2_S1")
    scatter([4])
    a("s_cmp_lg_u32 s81, 1")
    a("s_cbranch_scc1 K2_SX")
    a.label("K2_S1")
    a("s_add_u32 s83, s83, 31")
    a("s_lshr_b32 s83, s83, 5")
    LB = opt.get("lb", 0)
    a(f"s_add_u32 s88, s83, {(2, 0, 4)[LB]}")
    a("s_mul_i32 s88, s88, 171")
    a("v_readlane_b32 s76, v108, 12")
    a("v_readlane_b32 s77, v108, 16")
    a("v_readlane_b32 s78, v108, 24")
    a("v_readlane_b32 s79, v108, 28")
    a("s_lshr_b32 s88, s88, 9")
    a("s_add_u32 s76, s76, 31")
    a("s_lshr_b32 s76, s76, 5")
    a("s_lshr_b32 s77, s77, 5")
    a("s_add_u32 s78, s78, 31")
    a("s_lshr_b32 s78, s78, 5")
    a("s_lshr_b32 s79, s79, 5")
    a("s_cmp_gt_u32 s76, s77")
    a("s_cbranch_scc1 K2_BAD")
    a("s_cmp_gt_u32 s78, s79")
    a("s_cbranch_scc1 K2_BAD")
    if opt.get("force_slow"): a("s_branch K2_BAD")
    a("s_max_u32 s88, s88, s76")
    a("s_min_u32 s88, s88, s77")
    a("s_add_u32 s89, s83, s88")
    a(f"s_add_u32 s89, s89, {(1, 0, 2)[LB]}")
    a("s_lshr_b32 s89, s89, 1")
    a("s_max_u32 s89, s89, s78")
    a("s_min_u32 s89, s89, s79")
    a("s_sub_u32 s90, s89, s88")
    a("s_sub_u32 s91, s83, s89")
    a("s_max_u32 s92, s90, s88")
    a("s_max_u32 s92, s92, s91")
    a("s_cmp_gt_u32 s92, 16")
    a("s_cbranch_scc1 K2_BAD")
    a("v_mov_b32 v106, s89")
    a("v_mov_b32 v107, s91")
    a("ds_write_b64 v111, v[106:107] offset:16")
    a("v_mov_b32 v105, v108")
    a("s_cmp_eq_u32 s26, 1")
    a("s_cselect_b32 s52, s88, 0")
    a("s_cselect_b32 s53, s90, s88")
    def g0_addr():
        a("s_lshl_b32 s66, s52, 7")
        a(f"s_add_u32 s67, s66, {IDX}")
        a(f"v_add_u32 v{aIDX}, s67, v{aIDX}")
        a(f"s_add_u32 s67, s67, {EOFF - IDX}")
        a(f"v_add_u32 v{aEI}, s67, v{aEI}")
        a(f"v_add_u32 v109, s58, v{aEI}")
    def first_reads():
        for k in range(4): a(f"ds_read_b32 v{IX[k]}, v{aIDX} offset:{k*32}")
        a(f"ds_read_b32 v{EI}, v109")
    LATE = 0
    a("s_waitcnt lgkmcnt(0)")
    stp(4)
    a("s_barrier")
    a("s_branch K2_QD")
    a.label("K2_HQ")
    stp(1)
    a("v_lshrrev_b32 v144, 4, v1")
    a("s_lshl_b32 s68, s25, 2")
    a("v_add_u32 v144, s68, v144")
    a("v_xor_b32 v145, v144, v1")
    a("v_and_b32 v145, 15, v145")
    a("v_lshlrev_b32 v145, 4, v145")
    a("v_lshl_add_u32 v146, v144, 16, v145")
    for win in (1, 2):
        a(f"v_subrev_u32 v149, {12*win}, v144")
        a("v_and_b32 v149, 15, v149")
        a(f"v_add_u32 v149, {12*win}, v149")
        a(f"v_lshl_add_u32 v{146+win}, v149, 16, v145")
    a("s_lshl_b32 s68, s2, 8")
    a("s_lshl_b32 s69, s25, 10")
    srd(a, 48, "s4", "s5", N * 256)
    for win in range(3):
        a(f"s_add_u32 m0, s69, {EIM + 4096 + win*16384}")
        a("s_nop 0")
        a(f"buffer_load_dwordx4 v{146+win}, s[48:51], s68 offen lds")
    a("s_mov_b32 m0, s57")
    a(f"v_lshrrev_b32 v{H_}, 5, v1")
    a("s_lshl_b32 s66, s25, 11")
    WA, QA, QB, XA, BIAS = 32, 16, 116, 132, 112
    a(f"v_and_b32 v{T0}, 3, v1")
    a(f"v_and_b32 v{T1}, 4, v1")
    a(f"v_lshl_or_b32 v{T0}, v{T1}, 1, v{T0}")
    a(f"v_bfe_u32 v{T1}, v1, 3, 1")
    a(f"v_lshl_or_b32 v{T0}, v{T1}, 2, v{T0}")
    a(f"v_xor_b32 v{T1}, v{T0}, v{H_}")
    a(f"v_lshlrev_b32 v{T1}, 4, v{T1}")
    a(f"v_lshl_add_u32 v{XA}, v{T0}, 8, v{T1}")
    a(f"v_and_b32 v{T1}, 16, v1")
    a(f"v_lshl_add_u32 v{XA}, v{T1}, 10, v{XA}")
    a(f"v_add_u32 v{XA}, {EIM + 4096}, v{XA}")
    a(f"s_add_u32 s67, s66, {EIM + 8192}")
    a(f"v_add_u32 v107, s67, v{L16}")
    srd(a, 48, "s14", "s15", 512)
    a("v_and_b32 v108, 1, v1")
    a("v_and_b32 v109, 30, v1")
    a("v_lshl_add_u32 v108, v108, 6, v109")
    a("s_lshl_b32 s66, s25, 14")
    a(f"s_add_u32 s76, s66, {W1BF_OFF - CELL_OFF}")
    for i in range(1, 4): a(f"s_add_u32 s{76+i}, s76, {i*4096}")
    PFT = 0
    a(f"s_mov_b32 s68, {NEGLOG2E:#x}")
    a(f"s_mov_b32 s69, {NEGLOG2E:#x}")
    a(f"buffer_load_ushort v{BIAS}, v108, s[48:51], s58 offen")
    a(f"buffer_load_ushort v{BIAS+1}, v108, s[48:51], s58 offen offset:32")
    lwait(32 if MF else 36, 1)
    worder = list(range(8, 16)) + list(range(8))
    for n, i in enumerate(worder):
        a(f"buffer_load_dwordx4 {q4(WA+4*i)}, v{L16}, s[40:43], s{76 + (i >> 2)} offen offset:{(i & 3)*1024} sc1")
        if n == 7:
            a("s_waitcnt vmcnt(10)")
            arrive(12)
    stp(2)
    lwait(12, 4, sleep=0)
    def xread(step):
        sidx = step & 7; st_ = step % 3
        if sidx: a(f"v_xor_b32 v{XA+1}, {sidx << 5}, v{XA}")
        r = XA + 1 if sidx else XA
        a(f"ds_read_b128 {q4(WP+8*st_)}, v{r}")
        a(f"ds_read_b128 {q4(WP+8*st_+4)}, v{r} offset:32768")
    xread(0); xread(1); xread(2)
    a(f"s_waitcnt vmcnt({16 + PFT})")
    a(f"v_lshlrev_b32 v{BIAS}, 16, v{BIAS}")
    a(f"v_lshlrev_b32 v{BIAS+1}, 16, v{BIAS+1}")
    a(f"v_pk_mul_f32 {pr(BIAS)}, {pr(BIAS)}, s[68:69]")
    for Xi in range(2):
        X = 1 - Xi
        for sidx in range(8):
            step = 8*Xi + sidx; st_ = step % 3
            nl = 2*min(2, 15-step) + (3 if (Xi == 1 and sidx < 3) else 0)
            a(f"s_waitcnt vmcnt({15 - step}) lgkmcnt({min(nl, 15)})")
            a(f"v_mfma_f32_32x32x16_bf16 {x16(QA)}, {q4(WP+8*st_)}, {q4(WA+32*X+4*sidx)}, {'0' if sidx == 0 else x16(QA)}")
            a(f"v_mfma_f32_32x32x16_bf16 {x16(QB)}, {q4(WP+8*st_+4)}, {q4(WA+32*X+4*sidx)}, {'0' if sidx == 0 else x16(QB)}")
            if step + 3 < 16: xread(step + 3)
        a("s_nop 10")
        for wi, base in enumerate((QA, QA + 8, QB)):
            for k in range(4):
                a(f"v_pk_fma_f32 {pr(base+2*k)}, {pr(base+2*k)}, s[68:69], {pr(BIAS)} op_sel:[0,0,{X}] op_sel_hi:[1,1,{X}]")
            for k in range(4):
                a(f"v_cvt_pk_bf16_f32 v{WA+32*X+4*wi+k}, v{base+2*k}, v{base+2*k+1}")
            a(f"ds_write_b128 v107, {q4(WA+32*X+4*wi)} offset:{wi*16384 + X*1024}")
    stp(3)
    a("s_cmp_lg_u32 s24, 8")
    a("s_cbranch_scc1 K2_NPG")
    gpoll(136)
    a.label("K2_NPG")
    a("s_waitcnt lgkmcnt(0)")
    stp(4)
    a("s_barrier")
    a("ds_read_b64 v[108:109], v111 offset:16")
    a(f"buffer_load_dwordx4 {q4(BC[0])}, v{L16}, s[40:43], s72 offen sc1")
    a(f"buffer_load_dwordx4 {q4(BC[1])}, v{L16}, s[40:43], s72 offen offset:1024 sc1")
    a("s_waitcnt lgkmcnt(0)")
    a("v_readfirstlane_b32 s52, v108")
    a("v_readfirstlane_b32 s53, v109")
    a("s_nop 0")
    a("s_cmp_eq_u32 s53, -1")
    a("s_cbranch_scc1 K2_SLOW")
    a.label("K2_QD")
    g0_addr()
    first_reads()
    a("s_lshl_b32 s75, s52, 10")
    a(f"s_add_u32 s75, s75, {OH}")
    a(f"v_add_u32 v{aAO}, s75, v{aAO}")
    a("s_cmp_lg_u32 s25, 0")
    a("s_waitcnt lgkmcnt(0)")
    stp(5)
    a("s_cbranch_scc1 K2_FL1")
    a("\n".join(e_dma()))
    a.label("K2_FL1")
    a("\n".join(p_dma()))
    for k in range(4): a(f"ds_read_b32 v{IX[k]}, v{aIDX} offset:{128+k*32}")
    a(f"v_mov_b32 v166, v109")
    a(f"v_mov_b32 v{aAE}, v110")
    a(f"ds_read_b128 {q4(AO)}, v{aAO}")
    a(f"ds_read_b128 {q4(BQ[0])}, v115 offset:8192")
    a(f"ds_read_b128 {q4(BQ[1])}, v115 offset:9216")
    a(f"v_mov_b32 v{MG}, -1")
    a(f"v_add_u32 v{SOFF}, s75, v{SOFF}")
    a(f"v_mov_b32 v{T0}, {ZERO}")
    a(f"v_cndmask_b32 v{aS1}, v{T0}, v{SOFF}, s[62:63]")
    a(f"v_cndmask_b32 v{aS2}, v{T0}, v{SOFF}, s[64:65]")
    for i in range(16): a(f"v_mov_b32 v{ACC+i}, 0")
    a(f"v_mov_b32 v{CHK}, 0\nv_mov_b32 v{CHK+1}, 0")
    for i in range(4): a(f"v_mov_b32 v{S+i}, 0")
    T3, T2, T1_ = opt.get("t3", 6), opt.get("t2", 3), opt.get("t1", 1)
    a("s_cmp_eq_u32 s26, 2")
    a(f"s_cselect_b32 s94, {opt.get('r2lag', 0)}, 0")
    a("s_sub_u32 s94, s53, s94")
    a(f"s_sub_u32 s90, s94, {T3}")
    a("s_max_i32 s90, s90, 2")
    a("s_mov_b32 s91, 0")
    a("s_sub_u32 s93, s53, 2")
    if OCT[0]:
        a("s_waitcnt lgkmcnt(3)")
        a("v_readfirstlane_b32 s66, v106")
        a("v_readfirstlane_b32 s67, v107")
        a("s_nop 0")
        a("s_lshr_b64 s[66:67], s[66:67], s52")
        if opt.get("allq"): a("s_mov_b32 s66, -1")
        a("s_mov_b32 s95, s66")
        a("s_lshl_b32 s54, s66, 1")
    def flag_wait(tag, off):
        a.label(f"K2_W{tag}")
        a(f"ds_read_b32 v{FV}, v{aEI} offset:{off}")
        a("s_waitcnt lgkmcnt(0)")
        a(f"v_readfirstlane_b32 s66, v{FV}")
        a("s_nop 0")
        a("s_cmp_eq_u32 s66, -1")
        a(f"s_cbranch_scc1 K2_X{tag}")
        a("s_sleep 1")
        a(f"s_branch K2_W{tag}")
        a.label(f"K2_X{tag}")
    if True:
        a("s_min_u32 s67, s53, 1")
        a("s_cmp_ge_u32 s25, s67")
        a("s_waitcnt vmcnt(0)")
        a("s_cbranch_scc1 K2_NF")
        a(f"ds_write_b32 v166, v{MG}")
        a(f"ds_read_b32 v{EI}, v{aEI} offset:512")
        a.label("K2_NF")
        for m in range(4): a(f"ds_read_b128 {q4(AP[m])}, v{aAP+m}")
        a("s_waitcnt lgkmcnt(0)")
        a("\n".join(p_dma()))
        a("s_sub_u32 s67, s25, 1")
        a("s_cmp_ge_u32 s67, 2")
        a("s_cbranch_scc1 K2_F2")
        a("\n".join(e_dma()))
        a.label("K2_F2")
        for i in range(4): a(f"v_mov_b32 v{HQ+i}, 0")
        a("s_cmp_eq_u32 s53, 0")
        a("s_cbranch_scc1 K2_EXIT")
        def flag_wait(tag, off):
            a.label(f"K2_W{tag}")
            a(f"ds_read_b32 v{FV}, v{aEI} offset:{off}")
            a("s_waitcnt lgkmcnt(0)")
            a(f"v_readfirstlane_b32 s66, v{FV}")
            a("s_nop 0")
            a("s_cmp_eq_u32 s66, -1")
            a(f"s_cbranch_scc1 K2_X{tag}")
            a("s_sleep 1")
            a(f"s_branch K2_W{tag}")
            a.label(f"K2_X{tag}")
        flag_wait("A", 0)
        a(f"ds_read_b128 {q4(AE)}, v{aAE}")
        stp(6)
        stc(12)
        if opt.get("prio", 1): a("s_setprio 3")
        a("s_waitcnt lgkmcnt(0)")
        a("\n".join(mf_tile(0)))
        a("s_nop 10")
        ex0 = {1: [f"ds_read_b32 v{IX[k]}, v{aIDX} offset:{256+k*32}" for k in range(4)]}
        ex1 = {1: [f"ds_read_b64_tr_b16 {pr(S)}, v{aS1}", f"ds_read_b64_tr_b16 {pr(S+2)}, v{aS2}", f"ds_read_b128 {q4(AO)}, v{aAO} offset:1024"]}
        a("\n".join(tile(0, mf_tile(1), ex0, [], [], "P0") + tile(1, [], ex1, [], ["s_waitcnt lgkmcnt(0)"], "P1")))
        a("s_mov_b32 s55, 1")
        a("s_cmp_eq_u32 s53, 1")
        a("s_cbranch_scc1 K2_EXIT")
        a("s_cmp_ge_u32 s67, 2")
        a("s_cselect_b32 s66, 64, s25")
        a("s_cmp_ge_u32 s66, s53")
        a("s_waitcnt vmcnt(0)")
        a("s_cbranch_scc1 K2_NF2")
        a(f"ds_write_b32 v166, v{MG}")
        a.label("K2_NF2")
        for m in range(4): a(f"ds_read_b128 {q4(AP[m])}, v{aAP+m}")
        a("s_waitcnt lgkmcnt(0)")
        a("\n".join(p_dma()))
        a("s_cmp_lt_u32 s67, 2")
        a("s_cbranch_scc1 K2_F3")
        a("\n".join(e_dma()))
        a.label("K2_F3")
        flag_wait("B", 128)
        a(f"ds_read_b128 {q4(AE)}, v{aAE} offset:1024")
        a("s_sub_u32 s68, 1, s25")
        a("s_and_b32 s68, s68, 3")
        a("s_sub_u32 s69, 1, s68")
        a("s_lshl_b32 s67, s69, 7")
        a("s_lshl_b32 s69, s69, 10")
        a(f"v_add_u32 v{aAO}, s69, v{aAO}")
        a(f"v_add_u32 v{aAE}, s69, v{aAE}")
        a(f"v_add_u32 v{aIDX}, s67, v{aIDX}")
        a(f"v_add_u32 v{aEI}, s67, v{aEI}")
        a("s_mov_b64 exec, s[62:63]")
        a(f"v_add_u32 v{aS1}, s69, v{aS1}")
        a("s_mov_b64 exec, s[64:65]")
        a(f"v_add_u32 v{aS2}, s69, v{aS2}")
        a("s_mov_b64 exec, -1")
        a("s_waitcnt lgkmcnt(0)")
        a("\n".join(mf_tile(0)))
        a("s_nop 8")
        a("s_cmp_eq_u32 s68, 1")
        a("s_cbranch_scc1 K2_U1")
        a("s_cmp_eq_u32 s68, 2")
        a("s_cbranch_scc1 K2_U2")
        a("s_cmp_eq_u32 s68, 3")
        a("s_cbranch_scc1 K2_U3")
    a(".p2align 6")
    loop_start = len(a.lines)
    for u in range(4):
        a.label(f"K2_U{u}")
        if LATE:
            upd = []
            if u == 3:
                upd = [f"v_add_u32 v{aAO}, 4096, v{aAO}", f"v_add_u32 v{aAE}, 4096, v{aAE}", f"v_add_u32 v{aIDX}, 512, v{aIDX}", f"v_add_u32 v{aEI}, 512, v{aEI}",
                       "s_mov_b64 exec, s[62:63]", f"v_add_u32 v{aS1}, 4096, v{aS1}", "s_mov_b64 exec, s[64:65]", f"v_add_u32 v{aS2}, 4096, v{aS2}", "s_mov_b64 exec, -1"]
            mid0 = [f"ds_read_b64_tr_b16 {pr(S)}, v{aS1} offset:{u*1024}", f"ds_read_b64_tr_b16 {pr(S+2)}, v{aS2} offset:{u*1024}",
                    f"ds_read_b128 {q4(AO)}, v{aAO} offset:{(u+1)*1024}"]
            t0 = tile(0, mf_tile(1) + [SEGSUM], {}, mid0, [])
            ex1 = {}
            ex1[1] = [f"ds_read_b32 v{FV}, v{aEI} offset:{(u+1)*128}"] + [f"ds_read_b32 v{IX[k]}, v{aIDX} offset:{(u+2)*128+k*32}" for k in range(4)]
            if u == 0: ex1[1] += [f"ds_read_b32 v{EI}, v{aEI} offset:512"]
            ex1[12] = ["s_waitcnt lgkmcnt(0)", f"v_readfirstlane_b32 s66, v{FV}"]
            mid = ["s_cmp_eq_u32 s66, -1", f"s_waitcnt vmcnt({1 if u == 1 else 0})"]
            mid += [f"ds_read_b128 {q4(AP[m])}, v{aAP+m}" for m in range(4)]
            mid += [f"s_cbranch_scc0 K2_FW{u}", f"K2_FR{u}:"]
            mid += [f"ds_read_b128 {q4(AE)}, v{aAE} offset:{(u+1)*1024}"]
            if opt.get("gstamps"): mid += ["s_memrealtime s[96:97]", "s_add_u32 m0, s55, 16"]
            t1 = tile(1, [], ex1, mid, [])
            mf = mf_tile(0)
            post = ["s_add_u32 s66, s55, 2", "s_cmp_ge_u32 s66, s53", "s_waitcnt lgkmcnt(0)"]
            if opt.get("gstamps"): post += ["v_writelane_b32 v0, s96, m0"]
            post += [f"s_cbranch_scc1 K2_ND{u}"]
            if u == 2: post += [f"ds_write_b32 v{aEI}, v{MG} offset:512"]
            for k in range(4):
                post += [f"s_add_u32 m0, s57, {k*1024}", mf[k], f"buffer_load_dwordx4 {pr(IX[k])}, s[32:35], s58 idxen offen{PFL[0]} lds"]
            post += [f"K2_NR{u}:"]
            if u == 0: post += e_dma()
            post += upd
            nst = 1 + (6 if u == 0 else 0) + len(upd) + 3 + (1 if u == 3 else 0) + 1
            if nst - 1 < 12: post += [f"s_nop {12 - (nst - 1) - 1}"]
            a("\n".join(t0 + t1 + post))
        else:
            ex0 = {}
            ex0[1] = [f"ds_read_b32 v{FV}, v{aEI} offset:{(u+1)*128}"] + [f"ds_read_b32 v{IX[k]}, v{aIDX} offset:{(u+2)*128+k*32}" for k in range(4)]
            if u == 0: ex0[1] += [f"ds_read_b32 v{EI}, v{aEI} offset:512"]
            ex0[12] = ["s_waitcnt lgkmcnt(0)", f"v_readfirstlane_b32 s66, v{FV}"]
            mid = ["s_cmp_eq_u32 s66, -1", f"s_waitcnt vmcnt({1 if u == 1 else 0})"]
            mid += [f"ds_read_b128 {q4(AP[m])}, v{aAP+m}" for m in range(4)]
            mid += [f"ds_read_b128 {q4(AO)}, v{aAO} offset:{(u+1)*1024}"]
            mid += [f"s_cbranch_scc0 K2_FW{u}", f"K2_FR{u}:"]
            mid += [f"ds_read_b128 {q4(AE)}, v{aAE} offset:{(u+1)*1024}"]
            exr = ["s_cmp_ge_i32 s55, s93", "s_waitcnt lgkmcnt(0)", f"s_cbranch_scc1 K2_ND{u}"]
            if u == 2: exr += [f"ds_write_b32 v{aEI}, v{MG} offset:512"]
            exr += p_dma() + [f"K2_ND{u}:"]
            if u == 0: exr += e_dma()
            t0 = tile(0, mf_tile(1) + [SEGSUM], ex0, mid, exr, f"A{u}")
            ex1 = {}
            ex1[1] = [f"ds_read_b64_tr_b16 {pr(S)}, v{aS1} offset:{u*1024}", f"ds_read_b64_tr_b16 {pr(S+2)}, v{aS2} offset:{u*1024}"]
            mid1 = []
            if u == 3:
                mid1 = [f"v_add_u32 v{aAO}, 4096, v{aAO}", f"v_add_u32 v{aAE}, 4096, v{aAE}", f"v_add_u32 v{aIDX}, 512, v{aIDX}", f"v_add_u32 v{aEI}, 512, v{aEI}",
                        "s_mov_b64 exec, s[62:63]", f"v_add_u32 v{aS1}, 4096, v{aS1}", "s_mov_b64 exec, s[64:65]", f"v_add_u32 v{aS2}, 4096, v{aS2}", "s_mov_b64 exec, -1"]
            exr1 = ["s_waitcnt lgkmcnt(0)"]
            if opt.get("gstamps"):
                mid1 = mid1 + ["s_memrealtime s[96:97]", "s_add_u32 m0, s55, 16"]
                exr1 += ["v_writelane_b32 v0, s96, m0", "s_mov_b32 m0, s57"]
            t1 = tile(1, mf_tile(0), ex1, mid1, exr1, f"B{u}")
            a("\n".join(t0 + t1))
        a("s_add_u32 s55, s55, 1")
        a("s_cmp_ge_u32 s55, s90")
        a(f"s_cbranch_scc1 K2_TH{u}")
        if u == 3: a("s_branch K2_U0")
    loop_end = len(a.lines)
    for qtl in QTAILS: a("\n".join(qtl))
    for u in range(4):
        a.label(f"K2_TH{u}")
        a(f"s_mov_b32 s92, {(u+1)&3}")
        if u < 3: a("s_branch K2_TH")
    a.label("K2_TH")
    a("s_cmp_ge_u32 s55, s53")
    a("s_cbranch_scc1 K2_EXIT")
    a("s_add_u32 s91, s91, 1")
    a("s_cmp_eq_u32 s91, 1")
    a("s_cbranch_scc0 K2_TH_2")
    if opt.get("prio", 1): a("s_setprio 2")
    a(f"s_sub_u32 s90, s94, {T2}")
    a("s_branch K2_TH_R")
    a.label("K2_TH_2")
    a("s_cmp_eq_u32 s91, 2")
    a("s_cbranch_scc0 K2_TH_3")
    if opt.get("prio", 1): a("s_setprio 1")
    a(f"s_sub_u32 s90, s94, {T1_}")
    a("s_branch K2_TH_R")
    a.label("K2_TH_3")
    if opt.get("prio", 1): a("s_setprio 0")
    a("s_mov_b32 s90, s53")
    a.label("K2_TH_R")
    a("s_max_i32 s90, s90, 0")
    a("s_cmp_eq_u32 s92, 1")
    a("s_cbranch_scc1 K2_U1")
    a("s_cmp_lg_u32 s60, 0")
    a("s_cbranch_scc1 K2_TH_J")
    a("s_mov_b32 s60, 1")
    a("\n".join(w2_pre(L16)))
    a.label("K2_TH_J")
    a("s_cmp_eq_u32 s92, 2")
    a("s_cbranch_scc1 K2_U2")
    a("s_cmp_eq_u32 s92, 3")
    a("s_cbranch_scc1 K2_U3")
    a("s_branch K2_U0")
    if LATE:
        for u in range(4):
            a.label(f"K2_ND{u}")
            a("\n".join(mf_tile(0)))
            a(f"s_branch K2_NR{u}")
    for u in range(4):
        a.label(f"K2_FW{u}")
        a("s_add_u32 s66, s55, 1")
        a("s_cmp_ge_u32 s66, s53")
        a(f"s_cbranch_scc1 K2_FR{u}")
        a(f"ds_read_b32 v{FV}, v{aEI} offset:{(u+1)*128}")
        a("s_waitcnt lgkmcnt(0)")
        a(f"v_readfirstlane_b32 s66, v{FV}")
        a("s_nop 0")
        a("s_cmp_eq_u32 s66, -1")
        a(f"s_cbranch_scc1 K2_FR{u}")
        a("s_sleep 1")
        a(f"s_branch K2_FW{u}")
    a.label("K2_EXIT")
    a(SEGSUM)
    stp(7)
    stc(13)
    if opt.get("stamps"): a("v_writelane_b32 v0, s53, 14")
    a(f"v_lshrrev_b32 v1, 4, v{L16}")
    a("s_cmp_lg_u32 s60, 0")
    a("s_cbranch_scc1 K2_X1")
    a("\n".join(w2_pre(L16)))
    a.label("K2_X1")
    WL = 116
    def fin_loads(l16):
        srd(a, 48, "s18", "s19", 256)
        for sidx in range(NW2, 8):
            a(f"buffer_load_dwordx4 {q4(WL+4*(sidx-NW2))}, v{l16}, s[40:43], s74 offen offset:{(sidx & 3)*1024} sc1")
        a("v_lshrrev_b32 v8, 4, v1")
        a("v_lshlrev_b32 v9, 3, v8")
        a("s_lshl_b32 s68, s24, 5")
        a("buffer_load_dwordx2 v[10:11], v9, s[48:51], s68 offen")
    fin_loads(L16)
    a("v_subrev_u32 v2, s71, v1")
    a("v_and_b32 v2, 15, v2")
    a(f"v_mul_u32_u24 v2, {HSTR}, v2")
    a("v_and_b32 v3, 16, v1")
    a("v_lshl_add_u32 v2, v3, 2, v2")
    a("v_lshrrev_b32 v3, 5, v1")
    a("v_lshl_add_u32 v3, v3, 3, s57")
    a("v_add_u32 v2, v2, v3")
    a(f"s_waitcnt vmcnt({9 - NW2})")
    for k in range(8):
        a(f"v_cvt_pk_bf16_f32 v{EX+k}, v{ACC+2*k}, v{ACC+2*k+1}")
        if k & 1: a(f"ds_write_b64 v2, {pr(EX+k-1)} offset:{16*(k>>1)}")
    a("s_mov_b32 s66, 0x41800000")
    a("s_mov_b32 s67, 0x41800000")
    a(f"v_pk_mul_f32 {pr(CHK)}, {pr(CHK)}, s[66:67]")
    for k in range(0, 8, 2):
        a(f"v_pk_add_f32 {pr(ACC+2*k)}, {pr(ACC+2*k)}, {pr(ACC+2*k+2)}")
    for k in range(0, 8, 2):
        a(f"v_pk_fma_f32 {pr(CHK)}, {pr(ACC+2*k)}, 0, {pr(CHK)} op_sel_hi:[1,0,1]")
    a("v_mov_b32 v4, 0x207")
    a(f"v_add_f32 v{CHK}, v{CHK}, v{CHK+1}")
    a(f"v_mov_b32 v5, {FLAG}")
    a("v_mov_b32 v7, 1")
    a(f"v_cmpx_class_f32 vcc, v{CHK}, v4")
    a("ds_write_b32 v5, v7")
    a("s_mov_b64 exec, -1")
    a.label("K2_FIN")
    a("s_cmp_ge_u32 s24, 8")
    a("s_cbranch_scc1 K2_HEND")
    a("s_mov_b64 exec, 1")
    a("ds_add_u32 v5, v7 offset:24")
    a("s_mov_b64 exec, -1")
    a("v_and_b32 v12, 15, v1")
    a(f"v_mul_u32_u24 v2, {HSTR}, v12")
    a("v_lshl_add_u32 v2, v8, 4, v2")
    a(f"s_mov_b32 s78, {CNT}")
    a("v_lshl_add_u32 v4, v12, 2, s78")
    for mt in range(3): a(f"ds_read_b32 v{112+mt}, v4 offset:{mt*48}")
    a("v_lshl_add_u32 v13, v12, 16, v9")
    a(f"v_mov_b32 v3, {KILL:#x}")
    a("v_cmp_gt_u32 vcc, 4, v12")
    a("s_lshl_b32 s69, s2, 8")
    a("s_add_u32 s69, s69, s68")
    a("v_cndmask_b32 v14, v13, v3, vcc")
    a(f"s_add_u32 s72, s69, {12 << 16}")
    a(f"s_add_u32 s75, s69, {24 << 16}")
    a(f"s_mov_b32 s76, {NEGLN2:#x}")
    RS = 80
    a.label("K2_E1")
    a("ds_read_b32 v6, v5 offset:24")
    a("s_waitcnt lgkmcnt(0)")
    a("v_readfirstlane_b32 s66, v6")
    a("s_nop 0")
    a("s_cmp_ge_u32 s66, 8")
    a("s_cbranch_scc1 K2_E2")
    a("s_sleep 2")
    a("s_branch K2_E1")
    a.label("K2_E2")
    HB = 16
    OD = 92
    def wfrag(sidx): return WP + 4*sidx if sidx < NW2 else WL + 4*(sidx - NW2)
    def hoff(mt, sidx): return (4*mt + (sidx >> 1))*4096 + (sidx & 1)*64
    order = [(sidx, mt) for sidx in range(8) for mt in range(2)]
    for n, (sidx, mt) in enumerate(order[:14]):
        a(f"ds_read_b128 {q4(HB+4*n)}, v2 offset:{hoff(mt, sidx)}")
    for n, (sidx, mt) in enumerate(order):
        issued = min(16, 14 + n)
        wv = f" vmcnt({8 - sidx})" if (sidx >= NW2 and mt == 0) else ""
        a(f"s_waitcnt{wv} lgkmcnt({issued - n - 1})")
        a(f"v_mfma_f32_16x16x32_bf16 {q4(OD+4*mt)}, {q4(wfrag(sidx))}, {q4(HB+4*n)}, {'0' if sidx == 0 else q4(OD+4*mt)}")
        if n < 2: a(f"ds_read_b128 {q4(HB+4*(14+n))}, v2 offset:{hoff(order[14+n][1], order[14+n][0])}")
    a("s_waitcnt vmcnt(0)")
    a("v_lshlrev_b32 v104, 16, v10")
    a("v_and_b32 v105, 0xffff0000, v10")
    a("v_lshlrev_b32 v106, 16, v11")
    a("v_and_b32 v107, 0xffff0000, v11")
    for mt in range(3): a(f"v_cvt_f32_u32 v{108+2*mt}, v{112+mt}" if mt < 2 else f"v_cvt_f32_u32 v112, v114")
    for mt in range(3):
        for i in range(2):
            a(f"v_pk_mul_f32 {pr(RS+4*mt+2*i)}, {pr(104+2*i)}, {pr(108+2*mt)} op_sel_hi:[1,0]")
    def fin_tile(mt):
        for i in range(4):
            a(f"v_fma_f32 v{RS+4*mt+i}, v{OD+4*mt+i}, s76, v{RS+4*mt+i}")
        a(f"v_cvt_pk_bf16_f32 v{132+2*mt}, v{RS+4*mt}, v{RS+4*mt+1}")
        a(f"v_cvt_pk_bf16_f32 v{133+2*mt}, v{RS+4*mt+2}, v{RS+4*mt+3}")
        a(f"buffer_store_dwordx2 {pr(132+2*mt)}, v{13 if mt == 0 else 14}, s[44:47], s{(69,72,75)[mt]} offen")
    def merge(mt):
        for i in range(4):
            a(f"v_add_f32_dpp v{OD+4*mt+i}, v{OD+4*mt+4+i}, v{OD+4*mt+i} row_shr:12 row_mask:0xf bank_mask:0xf bound_ctrl:0")
    merge(0)
    fin_tile(0)
    stp(8)
    a("s_barrier")
    stp(9)
    for sidx in range(8):
        a(f"ds_read_b128 {q4(HB+4*sidx)}, v2 offset:{hoff(2, sidx)}")
    a("ds_read_b32 v6, v5")
    for sidx in range(8):
        a(f"s_waitcnt lgkmcnt({8 - sidx})")
        a(f"v_mfma_f32_16x16x32_bf16 {q4(OD+8)}, {q4(wfrag(sidx))}, {q4(HB+4*sidx)}, {'0' if sidx == 0 else q4(OD+8)}")
    a("s_waitcnt lgkmcnt(0)")
    a("v_readfirstlane_b32 s82, v6")
    a("s_nop 1")
    a("s_andn2_b32 s82, s82, s70")
    a("s_cmp_lg_u32 s82, 0")
    a("s_cbranch_scc1 K2_REDO")
    a("s_nop 0")
    merge(1)
    fin_tile(2)
    fin_tile(1)
    stp(10)
    if opt.get("stamps"): a("s_waitcnt vmcnt(0)")
    stp(11)
    a.label("K2_END2")
    stamp_out(a, opt, 22, 0xF80000, 24, 0, tmpv=2)
    if opt.get('gstamps'): stamp_out2(a, opt, 22, 0x1000000, 24, 0, tmpv=2)
    a.label("K2_END")
    a("s_endpgm")
    a.label("K2_HEND")
    a("s_waitcnt lgkmcnt(0)")
    stp(8)
    a("s_barrier")
    a("ds_read_b32 v6, v5")
    a("s_waitcnt lgkmcnt(0)")
    a("v_readfirstlane_b32 s82, v6")
    a("s_nop 0")
    a("s_andn2_b32 s82, s82, s70")
    a("s_cmp_lg_u32 s82, 0")
    a("s_cbranch_scc1 K2_REDO")
    a("s_branch K2_END2")
    a.label("K2_CX")
    a("s_mov_b32 s81, 2")
    count([5, 6, 7])
    decode([5, 6, 7])
    a("v_cmpx_eq_u32 vcc, -2, v23")
    a("ds_write_b32 v111, v114")
    a("s_mov_b64 exec, -1")
    a("s_branch K2_C1")
    a.label("K2_SX")
    for k in (5, 6, 7): a(f"ds_bpermute_b32 v{SB+k}, v{RA+k}, v108")
    a("s_waitcnt lgkmcnt(0)")
    scatter([5, 6, 7])
    a("s_branch K2_S1")
    a.label("K2_REDO")
    a("s_setprio 0")
    a("s_mov_b32 s70, -1")
    a("s_lshl_b32 s66, s24, 6")
    a("v_add_u32 v0, s66, v1")
    a("s_waitcnt vmcnt(0) lgkmcnt(0)")
    a("s_barrier")
    a("s_branch K2_TOP")
    a.label("K2_BAD")
    a("v_mov_b32 v108, -1")
    a("v_mov_b32 v109, -1")
    a("ds_write_b64 v111, v[108:109] offset:16")
    a("s_waitcnt vmcnt(0) lgkmcnt(0)")
    a("s_barrier")
    a.label("K2_SLOW")
    a("s_setprio 0")
    a("s_mov_b32 s70, -1")

    a("s_waitcnt vmcnt(0) lgkmcnt(0)")
    a("s_barrier")
    a("s_lshl_b32 s66, s24, 10")
    a(f"s_add_u32 s66, s66, {OH}")
    a("v_lshl_add_u32 v2, v1, 4, s66")
    for i in range(4): a(f"v_mov_b32 v{4+i}, 0")
    for i in range(4): a(f"ds_write_b128 v2, v[4:7] offset:{i*12288}")
    a("v_lshlrev_b32 v12, 2, v1")
    a(f"v_add_u32 v3, {CNT}, v12")
    a("ds_write_b32 v3, v4")
    srd(a, 84, "s8", "s9", E * 4)
    srd(a, 88, "s10", "s11", E * 4)
    a("v_and_b32 v8, 31, v1")
    a("v_lshlrev_b32 v8, 4, v8")
    a("v_lshrrev_b32 v9, 5, v1")
    a("v_lshl_add_u32 v8, v9, 10, v8")
    a("s_lshl_b32 s72, s25, 11")
    a(f"s_add_u32 s66, s72, {WCF_OFF - CELL_OFF}")
    a("buffer_load_dwordx4 v[16:19], v8, s[40:43], s66 offen sc1")
    a("buffer_load_dwordx4 v[20:23], v8, s[40:43], s66 offen offset:512 sc1")
    a(f"s_add_u32 s72, s72, {EIM + 8192}")
    a("v_add_u32 v8, s72, v8")
    a("v_lshlrev_b32 v7, 4, v1")
    a("\n".join(w2_pre(7)))
    srd_ws(a, 92, 22, P_OFF, N * 512)
    a("v_lshlrev_b32 v10, 1, v1")
    a("v_add_u32 v10, s58, v10")
    a("v_lshlrev_b32 v11, 1, v10")
    a(f"v_add_u32 v11, {OH}, v11")
    a("v_mov_b32 v13, 1")
    a("s_waitcnt vmcnt(0)")
    for k in range(8):
        a(f"v_lshlrev_b32 v{24+2*k}, 16, v{16+k}")
        a(f"v_and_b32 v{25+2*k}, 0xffff0000, v{16+k}")
    a("s_waitcnt lgkmcnt(0)")
    a("s_barrier")
    a("s_mov_b32 s66, s26")
    a.label("K2_SL_BLK")
    a("s_lshl_b32 s67, s66, 8")
    a("buffer_load_dword v40, v12, s[88:91], s67 offen")
    a("buffer_load_dword v41, v12, s[84:87], s67 offen")
    a("s_waitcnt vmcnt(0)")
    a("v_and_b32 v42, 255, v40")
    a("v_cmp_eq_u32 vcc, s2, v42")
    a("s_nop 1")
    a("s_mov_b64 s[68:69], vcc")
    a.label("K2_SL_E")
    a("s_cmp_eq_u64 s[68:69], 0")
    a("s_cbranch_scc1 K2_SL_NB")
    a("s_ff1_i32_b64 s72, s[68:69]")
    a("s_bitset0_b64 s[68:69], s72")
    a("v_readlane_b32 s52, v40, s72")
    a("v_readlane_b32 s53, v41, s72")
    a("s_lshl_b32 s75, s66, 6")
    a("s_add_u32 s75, s75, s72")
    a("s_lshl_b32 s75, s75, 5")
    a("s_load_dwordx8 s[76:83], s[6:7], s75")
    a("s_lshl_b32 s53, s53, 9")
    a("s_lshr_b32 s52, s52, 8")
    a("s_cmp_ge_u32 s52, 16")
    a("s_cselect_b32 s75, 16384, 0")
    a("s_cmp_ge_u32 s52, 28")
    a("s_cselect_b32 s75, 32768, s75")
    a("s_bfe_u32 s55, s52, 0x10003")
    a("s_lshl_b32 s55, s55, 9")
    a("s_add_u32 s75, s75, s55")
    a("s_and_b32 s55, s52, 7")
    a("s_lshl_b32 s55, s55, 1")
    a("s_add_u32 s75, s75, s55")
    a("v_add_u32 v45, s75, v8")
    a("buffer_load_ushort v43, v10, s[92:95], s53 offen sc1")
    a("ds_read_u16 v44, v45")
    a("s_waitcnt vmcnt(0) lgkmcnt(0)")
    a("v_lshlrev_b32 v43, 16, v43")
    a("v_lshlrev_b32 v44, 16, v44")
    a("v_add_f32 v43, v43, v44")
    for k in range(8):
        a(f"s_lshl_b32 s53, s{76+k}, 16")
        a(f"v_fmac_f32 v43, s53, v{24+2*k}")
        a(f"s_and_b32 s53, s{76+k}, 0xffff0000")
        a(f"v_fmac_f32 v43, s53, v{25+2*k}")
    a("v_exp_f32 v44, v43")
    a("s_lshl_b32 s53, s52, 10")
    a("v_add_f32 v44, 1.0, v44")
    a("v_rcp_f32 v44, v44")
    a("v_add_u32 v45, s53, v11")
    a("v_mul_f32 v43, v43, v44")
    a("ds_add_f32 v45, v43")
    a("s_cmp_lg_u32 s25, 0")
    a("s_cbranch_scc1 K2_SL_E")
    a("s_lshl_b32 s53, s52, 2")
    a(f"s_add_u32 s53, s53, {CNT}")
    a("v_mov_b32 v45, s53")
    a("s_mov_b64 exec, 1")
    a("ds_add_u32 v45, v13")
    a("s_mov_b64 exec, -1")
    a("s_branch K2_SL_E")
    a.label("K2_SL_NB")
    a("s_add_u32 s66, s66, 3")
    a(f"s_cmp_lt_u32 s66, {E // 64}")
    a("s_cbranch_scc1 K2_SL_BLK")
    a("s_waitcnt lgkmcnt(0)")
    a("s_barrier")
    a("v_and_b32 v2, 31, v1")
    a("v_lshrrev_b32 v3, 5, v1")
    a("s_mov_b32 s66, 0")
    a.label("K2_SL_CV")
    a("v_add_u32 v4, s66, v3")
    a("v_add_u32 v5, s71, v4")
    a("s_cmp_lt_u32 s66, 4")
    a("s_cselect_b32 s67, s26, 0")
    a("s_cmp_lg_u32 s67, 0")
    a("s_cbranch_scc0 K2_SL_NZ")
    a("v_mov_b32 v5, 47")
    a.label("K2_SL_NZ")
    a("v_lshlrev_b32 v5, 10, v5")
    a("v_lshl_add_u32 v5, v2, 3, v5")
    a("s_lshl_b32 s67, s58, 1")
    a(f"s_add_u32 s67, s67, {OH}")
    a("v_add_u32 v5, s67, v5")
    a("ds_read_b64 v[6:7], v5")
    a(f"v_mul_u32_u24 v4, {HSTR}, v4")
    a("v_lshl_add_u32 v4, v2, 2, v4")
    a("v_add_u32 v4, s57, v4")
    a("s_waitcnt lgkmcnt(0)")
    a("v_cvt_pk_bf16_f32 v6, v6, v7")
    a("ds_write_b32 v4, v6")
    a("s_add_u32 s66, s66, 2")
    a("s_cmp_lt_u32 s66, 16")
    a("s_cbranch_scc1 K2_SL_CV")
    a("v_lshlrev_b32 v7, 4, v1")
    fin_loads(7)
    a(f"v_mov_b32 v5, {FLAG}")
    a("v_mov_b32 v7, 1")
    a("s_branch K2_FIN")
    a.loop = (loop_start, loop_end)
    return a, NV2, (102 if opt.get('stamps') else 96)
```

```python
import sys, re
from asmlib import *
from k1 import *
from k2 import *
import k3

def gen_diag(code):
    kern = code // 1000; idx = (code % 1000) // 10; mx = code % 10
    off = 0xF00000 if kern == 1 else 0xF80000
    nwg = (NGEMM + NSORTWG) if kern == 1 else 256
    nw = 8
    a = Asm()
    a.label("mpnn_diag_kernel")
    a("s_cmp_ge_u32 s2, 1")
    a("s_cbranch_scc1 KD_END")
    a("s_load_dwordx2 s[4:5], s[0:1], 80")
    a("s_memrealtime s[6:7]")
    a("v_lshlrev_b32 v1, 10, v0")
    a("s_waitcnt lgkmcnt(0)")
    a(f"s_add_u32 s8, s4, {off}")
    a("s_addc_u32 s9, s5, 0")
    a(f"s_mov_b32 s10, {nwg*1024}")
    a("s_mov_b32 s11, 0x00020000")
    a(f"v_mov_b32 v2, {-1 if mx else 0}")
    for i in range((nwg + 63) // 64):
        a(f"s_mov_b32 s12, {i*65536}")
        for w in range(nw):
            a(f"buffer_load_dword v{8+w}, v1, s[8:11], s12 offen offset:{w*64+idx*4}")
        a("s_waitcnt vmcnt(0)")
        for w in range(nw):
            a(f"v_cmp_ne_u32 vcc, 0, v{8+w}")
            a(f"v_sub_u32 v3, s6, v{8+w}")
            a("s_nop 0")
            a(f"v_cndmask_b32 v3, v2, v3, vcc")
            a(f"v_{'min' if mx else 'max'}_u32 v2, v2, v3")
    a(f"s_mov_b32 s13, {-1 if mx else 0}")
    a("s_nop 1")
    for l in range(64):
        a(f"v_readlane_b32 s14, v2, {l}")
        a("s_nop 0")
        a(f"s_{'min' if mx else 'max'}_u32 s13, s13, s14")
    a("s_min_u32 s13, s13, 10000")
    a("s_sub_u32 s13, s6, s13")
    a.label("KD_SPIN")
    a("s_memrealtime s[6:7]")
    a("s_waitcnt lgkmcnt(0)")
    a("s_sub_u32 s14, s6, s13")
    a("s_cmp_lt_u32 s14, 10000")
    a("s_cbranch_scc1 KD_SPIN")
    a.label("KD_END")
    a("s_endpgm")
    return a, 24, 24

def build3(opt):
    hdr = open("standalone__edge_featured_mpnn_mpnn__graph.s.ref").read().split("\n")
    hdr = [l for l in hdr if l.startswith(";")][:12]
    out = "\n".join(hdr) + "\n"
    if opt.get("single"):
        out += f"; @launch grid=(256,1,1) block=(768,1,1) lds={K2_LDS}\n"
    else:
        out += f"; @launch kernel={k3.KNAME} grid=(256,1,1) block=(768,1,1) lds={K2_LDS}\n"
    if "diag" in opt:
        out += "; @launch kernel=mpnn_diag_kernel grid=(1,1,1) block=(64,1,1) lds=0\n"
    out += '.amdgcn_target "amdgcn-amd-amdhsa--gfx950"\n.text\n'
    ks = [(k3.KNAME,) + k3.gen_k3(opt)]
    if "diag" in opt:
        ks.append(("mpnn_diag_kernel",) + gen_diag(opt["diag"]))
    return finish(out, ks)

def build(opt):
    if opt.get("fused"): return build3(opt)
    hdr = open("standalone__edge_featured_mpnn_mpnn__graph.s.ref").read().split("\n")
    hdr = [l for l in hdr if l.startswith(";")][:12]
    out = "\n".join(hdr) + "\n"
    for _ in range(opt.get("pre_empty", 0)):
        out += "; @launch kernel=mpnn_empty_kernel grid=(256,1,1) block=(64,1,1) lds=0\n"
    out += f"; @launch kernel=mpnn_pre_kernel grid=({K1_WGS},1,1) block=({K1_BLOCK},1,1) lds={K1_LDS}\n"
    for _ in range(opt.get("mid_empty", 0)):
        out += "; @launch kernel=mpnn_empty_kernel grid=(256,1,1) block=(64,1,1) lds=0\n"
    for _ in range(opt.get("mid_big", 0)):
        out += "; @launch kernel=mpnn_empty_kernel grid=(256,1,1) block=(768,1,1) lds=163840\n"
    for _ in range(opt.get("k1x", 0)):
        out += f"; @launch kernel=mpnn_pre_kernel grid=({K1_WGS},1,1) block=({K1_BLOCK},1,1) lds={K1_LDS}\n"
    if not opt.get("k1only"):
        out += f"; @launch kernel=mpnn_main_kernel grid=(256,1,1) block=(768,1,1) lds={K2_LDS}\n"
    for _ in range(opt.get("post_empty", 0)):
        out += "; @launch kernel=mpnn_empty_kernel grid=(256,1,1) block=(64,1,1) lds=0\n"
    if "diag" in opt:
        out += "; @launch kernel=mpnn_diag_kernel grid=(1,1,1) block=(64,1,1) lds=0\n"
    out += '.amdgcn_target "amdgcn-amd-amdhsa--gfx950"\n.text\n'
    ks = [("mpnn_pre_kernel",) + gen_k1(opt), ("mpnn_main_kernel",) + gen_k2(opt)]
    if opt.get("pre_empty") or opt.get("post_empty") or opt.get("mid_empty") or opt.get("mid_big"):
        e = Asm(); e.label("mpnn_empty_kernel"); e("s_endpgm")
        ks.append(("mpnn_empty_kernel", e, 168 if opt.get("mid_big") else 8, 8))
    if "diag" in opt:
        ks.append(("mpnn_diag_kernel",) + gen_diag(opt["diag"]))
    return finish(out, ks)

def finish(out, ks):
    errs = []
    for name, a, nv, ns in ks:
        errs += check_hazards(a.lines, name)
        if hasattr(a, "loop"):
            b = a.lines[a.loop[0]:a.loop[1]]
            errs += check_hazards(b[-40:] + b[:40], name + " backedge")
        out += f".globl {name}\n.p2align 8\n.type {name},@function\n" + a.text()
    out += '.section .rodata,"a"\n'
    for name, a, nv, ns in ks:
        out += f""".p2align 6
.amdhsa_kernel {name}
  .amdhsa_next_free_vgpr {nv}
  .amdhsa_next_free_sgpr {ns}
  .amdhsa_accum_offset {(nv + 3) // 4 * 4}
  .amdhsa_group_segment_fixed_size 0
  .amdhsa_kernarg_size 88
  .amdhsa_user_sgpr_count 2
  .amdhsa_user_sgpr_kernarg_segment_ptr 1
  .amdhsa_system_sgpr_workgroup_id_x 1
  .amdhsa_float_denorm_mode_32 3
.end_amdhsa_kernel
"""
    return out, errs

if __name__ == "__main__":
    opt = {}
    dst = "standalone__edge_featured_mpnn_mpnn__graph.s"
    for x in sys.argv[1:]:
        if x.endswith(".s"): dst = x
        else:
            k, _, val = x.partition("=")
            opt[k] = int(val) if val else 1
    out, errs = build(opt)
    for e in errs: print(e)
    open(dst, "w").write(out)
    print("wrote", dst, len(out), "bytes; hazards:", len(errs))
```

```python
from asmlib import *

N = 10000; E = 320000
P_OFF = 4096
CELL_OFF = 0xA00000
W2F_OFF = 0xE00000
W1BF_OFF = 0xE10000
WCF_OFF = 0xE20000
FRAG_BYTES = 0x22000
NSORT = 128
CHUNK = 2500
GROWS = 64
NGEMM = 157
NSORTWG = 64
NPREP = 17
K1_WGS = NGEMM + NSORTWG + NPREP
K1_BLOCK = 1024
K1_LDS = 65536 + GROWS * 256 + 256
NEGLOG2E = 0xBFB8AA3B
OVF = 0xFFFFFFFE

def srd(a, r, lo, hi, size):
    a(f"s_mov_b32 s{r}, {lo}")
    a(f"s_mov_b32 s{r+1}, {hi}")
    a(f"s_mov_b32 s{r+2}, {size}")
    a(f"s_mov_b32 s{r+3}, 0x00020000")

def srd_ws(a, r, wslo, off, size):
    a(f"s_add_u32 s{r}, s{wslo}, {off}")
    a(f"s_addc_u32 s{r+1}, s{wslo+1}, 0")
    a(f"s_mov_b32 s{r+2}, {size}")
    a(f"s_mov_b32 s{r+3}, 0x00020000")

def stamp(a, opt, idx, vreg, sreg=96):
    if not opt.get("stamps"): return
    a(f"s_memrealtime s[{sreg}:{sreg+1}]")
    a("s_waitcnt lgkmcnt(0)")
    a(f"v_writelane_b32 v{vreg}, s{sreg}, {idx}")
def stamp_out(a, opt, wslo, off, wavereg, vreg, sreg=96, tmpv=151):
    if not opt.get("stamps"): return
    a(f"s_add_u32 s{sreg}, s{wslo}, {off}")
    a(f"s_addc_u32 s{sreg+1}, s{wslo+1}, 0")
    a(f"s_mov_b32 s{sreg+2}, 0x80000")
    a(f"s_mov_b32 s{sreg+3}, 0x00020000")
    a(f"s_lshl_b32 s100, s2, 4")
    a(f"s_add_u32 s100, s100, s{wavereg}")
    a(f"s_lshl_b32 s100, s100, 6")
    a(f"v_mbcnt_lo_u32_b32 v{tmpv}, -1, 0")
    a(f"v_lshlrev_b32 v{tmpv}, 2, v{tmpv}")
    a("s_mov_b64 exec, 0xffff")
    a(f"buffer_store_dword v{vreg}, v{tmpv}, s[{sreg}:{sreg+3}], s100 offen")
    a("s_mov_b64 exec, -1")
def stamp_out2(a, opt, wslo, off, wavereg, vreg, sreg=96, tmpv=151):
    a(f"s_add_u32 s{sreg}, s{wslo}, {off}")
    a(f"s_addc_u32 s{sreg+1}, s{wslo+1}, 0")
    a(f"s_lshl_b32 s100, s100, 1")
    a("s_mov_b64 exec, 0xffffffff")
    a(f"buffer_store_dword v{vreg}, v{tmpv}, s[{sreg}:{sreg+3}], s100 offen")
    a("s_mov_b64 exec, -1")

def gen_k1(opt=None):
    opt = opt or {}
    SV = 120
    SFD = {0: "", 1: " sc1", 2: " sc0 sc1", 3: " nt", 4: " nt sc1"}
    SF = SFD[opt.get("sf", 1)]
    SFG = SFD[opt.get("sfg", 1)]
    NT = " nt" if opt.get("knt", 1) else ""
    NTX = " nt" if opt.get("kntx", 1) else ""
    a = Asm()
    a.label("mpnn_pre_kernel")
    a(f"s_cmp_ge_u32 s2, {K1_WGS}")
    a("s_cbranch_scc1 K1_END")
    if opt.get("stamps"): a(f"v_mov_b32 v{SV}, 0")
    stamp(a, opt, 0, SV)
    a("s_load_dwordx16 s[4:19], s[0:1], 0")
    a("s_load_dwordx2 s[20:21], s[0:1], 80")
    a("v_lshrrev_b32 v1, 6, v0")
    a("v_and_b32 v2, 63, v0")
    a("v_readfirstlane_b32 s22, v1")
    a(f"s_cmp_ge_u32 s2, {NGEMM}")
    a("s_cbranch_scc1 K1_SORT")
    XI = 65536
    SW = XI + GROWS * 256
    a("v_lshrrev_b32 v10, 4, v0")
    a("v_xor_b32 v11, v10, v2")
    a("v_and_b32 v11, 15, v11")
    a("v_lshlrev_b32 v11, 4, v11")
    a("v_lshl_add_u32 v8, v10, 8, v11")
    a("v_lshrrev_b32 v4, 4, v2")
    a("v_lshlrev_b32 v7, 2, v4")
    a("v_xor_b32 v7, v7, v2")
    a("v_and_b32 v7, 15, v7")
    a("v_lshlrev_b32 v7, 4, v7")
    a("v_lshl_add_u32 v3, v4, 9, v7")
    a(f"v_mov_b32 v14, {SW}")
    a("v_mov_b32 v15, 0")
    a("ds_write_b32 v14, v15")
    a("s_and_b32 s44, s22, 7")
    a("s_lshl_b32 s45, s44, 13")
    a("s_lshr_b32 s46, s22, 3")
    a("s_lshl_b32 s47, s46, 8")
    a("s_add_u32 s45, s45, s47")
    a("s_lshl_b32 s47, s22, 12")
    a(f"s_mul_i32 s48, s2, {GROWS*256}")
    a("s_lshl_b32 s49, s22, 10")
    a(f"s_add_u32 m0, s49, {XI}")
    a("s_waitcnt lgkmcnt(0)")
    srd(a, 32, "s4", "s5", N * 256)
    srd(a, 28, "s12", "s13", 272 * 512)
    if opt.get("wwu", 1):
        a("s_cmp_lg_u32 s22, 0")
        a("s_cbranch_scc1 K1_NWU")
        a("s_bfe_u32 s50, s2, 0x40003")
        a("s_lshl_b32 s50, s50, 12")
        a("v_and_b32 v12, 31, v2")
        a("v_lshlrev_b32 v12, 7, v12")
        a("buffer_load_dword v31, v12, s[28:31], s50 offen")
        a.label("K1_NWU")
    a(f"buffer_load_dwordx4 v8, s[32:35], s48 offen{NTX} lds")
    a("s_mov_b32 m0, s47")
    a("s_cmp_lt_u32 s22, 8")
    a("s_barrier")
    a("s_cbranch_scc1 K1_GA")
    if opt.get("gb", 1) & 2: a("s_barrier")
    a.label("K1_GA")
    for k in range(4):
        a(f"buffer_load_dwordx4 v3, s[28:31], s45 offen offset:{k*1024} lds")
        a("s_add_u32 s45, s45, 1024")
    a("s_cmp_lt_u32 s22, 8")
    a("s_cbranch_scc1 K1_GC")
    a("s_waitcnt vmcnt(4)")
    a("s_barrier")
    a("v_mov_b32 v15, 1")
    a("s_waitcnt vmcnt(0)")
    a("s_mov_b64 exec, 1")
    a("ds_add_u32 v14, v15")
    a("s_endpgm")
    a.label("K1_GC")
    if opt.get("gb", 1) & 2: a("s_barrier")
    a("v_lshrrev_b32 v5, 5, v2")
    a("v_and_b32 v6, 31, v2")
    a("s_bfe_u32 s26, s22, 0x10001")
    a("s_lshr_b32 s27, s22, 2")
    a("s_and_b32 s50, s22, 1")
    a("s_lshl_b32 s50, s50, 7")
    srd_ws(a, 36, 20, P_OFF, (N + 1) * 512)
    a("v_and_b32 v17, 15, v2")
    a("v_xor_b32 v17, v17, v5")
    a("s_lshl_b32 s51, s26, 13")
    a(f"s_add_u32 s51, s51, {XI}")
    a("v_lshl_add_u32 v17, v17, 4, s51")
    a("v_lshl_add_u32 v16, v6, 8, v17")
    for sidx in range(1, 8):
        a(f"v_xor_b32 v{16+sidx}, {sidx << 5}, v16")
    a("v_bfe_u32 v26, v2, 2, 2")
    a("v_lshl_add_u32 v27, v5, 3, v26")
    a("v_and_b32 v28, 3, v2")
    a("v_lshl_add_u32 v28, v28, 3, s50")
    a("v_bfe_u32 v29, v2, 4, 1")
    a("v_lshl_add_u32 v28, v29, 5, v28")
    a("v_lshlrev_b32 v26, 6, v26")
    a("v_xor_b32 v28, v28, v26")
    a("s_lshl_b32 s51, s27, 15")
    a("v_add_u32 v28, s51, v28")
    a("v_lshl_add_u32 v24, v27, 8, v28")
    a("v_xor_b32 v25, 64, v24")
    a("s_lshl_b32 s51, s27, 8")
    a("s_add_u32 s51, s51, s50")
    a("v_lshl_add_u32 v13, v6, 2, s51")
    a("v_lshl_add_u32 v13, v5, 11, v13")
    a(f"s_mul_i32 s52, s2, {GROWS*512}")
    a("s_lshl_b32 s51, s26, 14")
    a("s_add_u32 s52, s52, s51")
    a("s_add_u32 s53, s52, 4096")
    a("s_add_u32 s54, s52, 8192")
    a("s_add_u32 s55, s52, 12288")
    a(f"s_mov_b32 s56, {NEGLOG2E:#x}")
    a(f"s_mov_b32 s57, {NEGLOG2E:#x}")
    stamp(a, opt, 1, SV)
    a("s_waitcnt vmcnt(0)")
    stamp(a, opt, 2, SV)
    a("s_barrier")
    stamp(a, opt, 6, SV)
    a("s_cmp_eq_u32 s27, 0")
    a("s_cbranch_scc1 K1_GO")
    a.label("K1_GW")
    a("ds_read_b32 v15, v14")
    a("s_waitcnt lgkmcnt(0)")
    a("v_readfirstlane_b32 s51, v15")
    a("s_nop 0")
    a("s_cmp_lt_u32 s51, 8")
    a("s_cbranch_scc1 K1_GW")
    a.label("K1_GO")
    stamp(a, opt, 8, SV)
    AF = 32; BF = 48; DA = 80; DB = 96
    def reads(sidx):
        st = sidx & 3
        a(f"ds_read_b128 {v(AF+4*st,4)}, v{16+sidx}")
        for X in range(2):
            for e in range(2):
                a(f"ds_read_b64_tr_b16 {v(BF+8*st+4*X+2*e,2)}, v{24+X} offset:{sidx*4096+e*1024}")
    def mm(sidx):
        st = sidx & 3
        ca = "0" if sidx == 0 else v(DA, 16)
        cb = "0" if sidx == 0 else v(DB, 16)
        a(f"v_mfma_f32_32x32x16_bf16 {v(DA,16)}, {v(AF+4*st,4)}, {v(BF+8*st,4)}, {ca}")
        a(f"v_mfma_f32_32x32x16_bf16 {v(DB,16)}, {v(AF+4*st,4)}, {v(BF+8*st+4,4)}, {cb}")
    reads(0); reads(1); reads(2)
    for sidx in range(8):
        a(f"s_waitcnt lgkmcnt({5*min(2, 7-sidx)})"); mm(sidx)
        if sidx + 3 < 8: reads(sidx + 3)
    a("s_nop 10")
    stamp(a, opt, 3, SV)
    for r in range(0, 16, 2):
        a(f"v_pk_mul_f32 {v(DA+r,2)}, {v(DA+r,2)}, s[56:57]")
        a(f"v_pk_mul_f32 {v(DB+r,2)}, {v(DB+r,2)}, s[56:57]")
        for rr in (r, r + 1):
            a(f"v_cvt_pk_bf16_f32 v{AF+rr}, v{DA+rr}, v{DB+rr}")
            a(f"buffer_store_dword v{AF+rr}, v13, s[36:39], s{52 + (rr >> 2)} offen offset:{(rr & 3)*512}{SFG}")
    stamp(a, opt, 4, SV)
    if opt.get("stamps"): a("s_waitcnt vmcnt(0)")
    stamp(a, opt, 5, SV)
    stamp_out(a, opt, 20, 0xF00000, 22, SV, tmpv=121)
    a("s_endpgm")
    a.label("K1_SORT")
    CNT = 32768
    HB = 36864
    a(f"s_sub_u32 s3, s2, {NGEMM}")
    a(f"s_cmp_ge_u32 s3, {NSORTWG}")
    a("s_cbranch_scc1 K1_HELP")
    a("s_and_b32 s24, s3, 7")
    a("s_lshl_b32 s24, s24, 4")
    a("s_lshr_b32 s25, s3, 3")
    a("s_lshl_b32 s25, s25, 1")
    a("s_add_u32 s24, s24, s25")
    a("s_lshr_b32 s25, s22, 3")
    a("s_add_u32 s3, s24, s25")
    a(f"s_mul_i32 s54, s25, {HB}")
    a("v_mov_b32 v47, v0")
    a("v_and_b32 v0, 511, v0")
    a("v_lshlrev_b32 v3, 2, v0")
    a("v_add_u32 v4, 4096, v3")
    a("v_add_u32 v5, 8192, v3")
    a(f"s_mul_i32 s23, s3, {CHUNK*4}")
    a("s_waitcnt lgkmcnt(0)")
    srd(a, 32, "s10", "s11", E * 4)
    for i in range(5):
        a(f"buffer_load_dword v{10+i}, v{3 + (i >> 1)}, s[32:35], s23 offen offset:{(i & 1)*2048}{NT}")
    srd(a, 28, "s8", "s9", E * 4)
    if opt.get("sb", 1): a("s_barrier")
    for i in range(5):
        a(f"buffer_load_dword v{16+i}, v{3 + (i >> 1)}, s[28:31], s23 offen offset:{(i & 1)*2048}{NT}")
    a("v_mov_b32 v24, -1\nv_mov_b32 v25, -1\nv_mov_b32 v26, -1\nv_mov_b32 v27, -1")
    a("v_mov_b32 v28, 0")
    a("v_lshl_add_u32 v6, v0, 4, s54")
    a("v_add_u32 v7, s54, v3")
    a(f"ds_write_b32 v7, v28 offset:{CNT}")
    for i in range(4):
        a(f"ds_write_b128 v6, v[24:27] offset:{i*8192}")
    srd_ws(a, 36, 20, CELL_OFF, 256 * 128 * 128)
    a("v_mov_b32 v29, 1")
    a(f"v_mov_b32 v30, {OVF - (1 << 32)}")
    a("v_lshlrev_b32 v31, 6, v0")
    a("v_lshrrev_b32 v44, 3, v47")
    a("v_and_b32 v45, 3, v47")
    a("v_lshlrev_b32 v45, 1, v45")
    a("v_xor_b32 v45, v45, v44")
    a("v_and_b32 v45, 7, v45")
    a("v_lshlrev_b32 v45, 4, v45")
    a("v_lshl_add_u32 v45, v44, 7, v45")
    a("v_bfe_u32 v43, v47, 2, 1")
    a(f"v_mul_u32_u24 v43, {HB}, v43")
    a("v_add_u32 v45, v45, v43")
    a("v_xor_b32 v42, 16, v45")
    a("v_lshl_add_u32 v43, v44, 2, v43")
    a("v_and_b32 v46, 7, v47")
    a("v_lshlrev_b32 v46, 4, v46")
    a("v_lshl_add_u32 v46, v44, 13, v46")
    a("s_lshr_b32 s24, s3, 1")
    a("s_lshl_b32 s24, s24, 7")
    for i in range(1, 4):
        a(f"s_add_u32 s{24+i}, s24, {i << 20}")
    for i in range(5):
        a(f"v_add_u32 v{84+i}, {i*32768}, v31")
    a(f"v_cmp_gt_u32 vcc, {CHUNK - 2048}, v0")
    a("s_waitcnt lgkmcnt(0)")
    a("s_mov_b64 s[52:53], vcc")
    stamp(a, opt, 1, SV)
    a("s_barrier")
    if opt.get("stamps"): a("s_waitcnt vmcnt(5)")
    stamp(a, opt, 2, SV)
    for i in range(5):
        a(f"s_waitcnt vmcnt({9 - i})")
        a(f"v_and_b32 v{32+i}, 255, v{10+i}")
        a(f"v_lshl_add_u32 v{37+i}, v{32+i}, 2, s54")
        if i == 4: a("s_mov_b64 exec, s[52:53]")
        a(f"ds_add_rtn_u32 v{60+i}, v{37+i}, v29 offset:{CNT}")
        if i == 4: a("s_mov_b64 exec, -1")
    for i in range(5):
        a(f"s_waitcnt vmcnt({4 - i})")
        a(f"v_lshrrev_b32 v{10+i}, 8, v{10+i}")
        a(f"v_lshl_or_b32 v{10+i}, v{16+i}, 18, v{10+i}")
        a(f"v_or_b32 v{10+i}, v{10+i}, v{84+i}")
        a(f"v_and_b32 v{16+i}, 28, v{37+i}")
        a(f"v_lshlrev_b32 v{32+i}, 5, v{32+i}")
    for i in range(5):
        a("s_waitcnt lgkmcnt(4)")
        a(f"v_cmp_lt_u32 vcc, 30, v{60+i}")
        a(f"v_min_u32 v{60+i}, 31, v{60+i}")
        a(f"v_lshl_or_b32 v{60+i}, v{60+i}, 5, v{60+i}")
        a(f"v_bfe_u32 v{60+i}, v{60+i}, 2, 5")
        a(f"v_xad_u32 v{60+i}, v{60+i}, v{16+i}, v{32+i}")
        a(f"v_cndmask_b32 v{10+i}, v{10+i}, v30, vcc")
        a(f"v_lshl_add_u32 v{60+i}, v{60+i}, 2, s54")
        if i == 4: a("s_mov_b64 exec, s[52:53]")
        a(f"ds_write_b32 v{60+i}, v{10+i}")
        if i == 4: a("s_mov_b64 exec, -1")
    a("s_waitcnt lgkmcnt(0)")
    a("s_barrier")
    stamp(a, opt, 3, SV)
    for i in range(2):
        a(f"ds_read_b128 {v(64+4*i,4)}, v45 offset:{i*16384}")
    for i in range(2):
        a(f"ds_read_b32 v{80+i}, v43 offset:{CNT + i*512}")
        a(f"ds_read_b128 {v(72+4*i,4)}, v42 offset:{i*16384}")
    for i in range(2):
        a(f"s_waitcnt lgkmcnt({5 - i})")
        a(f"buffer_store_dwordx4 {v(64+4*i,4)}, v46, s[36:39], s{24+i} offen{SF}")
    for i in range(2):
        a(f"s_waitcnt lgkmcnt({2 - 2*i})")
        a(f"v_cmp_lt_u32 vcc, 15, v{80+i}")
        a("s_and_saveexec_b64 s[52:53], vcc")
        a(f"s_cbranch_execz K1_NB{i}")
        a(f"buffer_store_dwordx4 {v(72+4*i,4)}, v46, s[36:39], s{26+i} offen{SF}")
        a.label(f"K1_NB{i}")
        a("s_mov_b64 exec, -1")
    stamp(a, opt, 4, SV)
    if opt.get("stamps"): a("s_waitcnt vmcnt(0)")
    stamp(a, opt, 5, SV)
    stamp_out(a, opt, 20, 0xF00000, 22, SV, tmpv=121)
    a("s_endpgm")
    a.label("K1_HELP")
    a(f"s_sub_u32 s3, s3, {NSORTWG}")
    a("s_waitcnt lgkmcnt(0)")
    srd_ws(a, 40, 20, W2F_OFF, FRAG_BYTES)
    a("v_lshlrev_b32 v6, 4, v2")
    a("s_cmp_lt_u32 s22, 8")
    a("s_cbranch_scc1 K1_H8")
    a("s_cmp_lt_u32 s22, 10")
    a("s_cbranch_scc0 K1_END")
    a("s_getpc_b64 s[60:61]")
    a.label("K1_PC")
    a("s_add_u32 s60, s60, mpnn_main_kernel-K1_PC")
    a("s_addc_u32 s61, s61, 0")
    a("s_mov_b32 s62, K2_REDO-mpnn_main_kernel")
    a("s_mov_b32 s63, 0x00020000")
    a("v_subrev_u32 v7, 512, v0")
    a("v_lshlrev_b32 v7, 7, v7")
    a("buffer_load_dword v22, v7, s[60:63], 0 offen")
    a("s_endpgm")
    a.label("K1_H8")
    a("s_lshl_b32 s3, s3, 3")
    a("s_add_u32 s3, s3, s22")
    a("s_mov_b32 s58, s3")
    a("s_bfe_u32 s26, s3, 0x30003")
    a("s_and_b32 s27, s3, 7")
    a("s_cmp_ge_u32 s3, 128")
    a("s_cselect_b32 s26, s27, s26")
    a("s_cselect_b32 s27, 8, s27")
    a("s_cmp_ge_u32 s3, 64")
    a("s_cbranch_scc1 K1_PREP1")
    srd(a, 44, "s16", "s17", 256 * 256)
    a("v_and_b32 v40, 15, v2")
    a("v_lshlrev_b32 v40, 1, v40")
    a("v_lshrrev_b32 v41, 4, v2")
    a("v_lshl_add_u32 v40, v41, 10, v40")
    a("v_add_u32 v41, 8192, v40")
    a("s_bfe_u32 s24, s3, 0x20001")
    a("s_lshl_b32 s24, s24, 14")
    a("s_and_b32 s25, s3, 1")
    a("s_lshl_b32 s25, s25, 12")
    a("s_add_u32 s24, s24, s25")
    a("s_lshr_b32 s25, s3, 3")
    a("s_lshl_b32 s25, s25, 5")
    a("s_add_u32 s24, s24, s25")
    for e in range(8):
        a(f"buffer_load_ushort v{48+e}, v{40 + (e & 1)}, s[44:47], s24 offen offset:{(e >> 1)*256}")
    a("s_branch K1_PFIN")
    a.label("K1_PREP1")
    srd(a, 44, "s12", "s13", 272 * 512)
    a("v_and_b32 v42, 1, v2")
    a("v_lshlrev_b32 v42, 6, v42")
    a("v_and_b32 v43, 30, v2")
    a("v_add_u32 v42, v42, v43")
    a("v_lshrrev_b32 v43, 5, v2")
    a("v_lshl_add_u32 v42, v43, 12, v42")
    a("s_lshr_b32 s24, s26, 1")
    a("s_lshl_b32 s24, s24, 7")
    a("s_and_b32 s25, s26, 1")
    a("s_lshl_b32 s25, s25, 5")
    a("s_add_u32 s24, s24, s25")
    a("s_lshl_b32 s27, s27, 13")
    a("s_add_u32 s24, s24, s27")
    a(f"s_add_u32 s24, s24, {128*512}")
    for e in range(8):
        a(f"buffer_load_ushort v{48+e}, v42, s[44:47], s24 offen offset:{e*512}")
    a.label("K1_PFIN")
    a("s_lshl_b32 s24, s58, 10")
    a("s_cmp_ge_u32 s58, 128")
    a("s_waitcnt vmcnt(0)")
    a("s_cbranch_scc1 K1_FINC")
    for e in range(4):
        a(f"v_lshl_or_b32 v{56+e}, v{49+2*e}, 16, v{48+2*e}")
    a("buffer_store_dwordx4 v[56:59], v6, s[40:43], s24 offen")
    a("s_endpgm")
    a.label("K1_FINC")
    a(f"s_mov_b32 s25, {NEGLOG2E:#x}")
    for e in range(8):
        a(f"v_lshlrev_b32 v{48+e}, 16, v{48+e}")
        a(f"v_mul_f32 v{48+e}, s25, v{48+e}")
    for e in range(4):
        a(f"v_cvt_pk_bf16_f32 v{56+e}, v{48+2*e}, v{49+2*e}")
    a("buffer_store_dwordx4 v[56:59], v6, s[40:43], s24 offen")
    a.label("K1_END")
    a("s_endpgm")
    return a, (128 if opt.get('stamps') else 112), (102 if opt.get('stamps') else 64)
```

```python
from asmlib import *
from k1 import *

NW = 12
PSLOT = 0
EIM = 49152
OH = 98304
ZERO = 147456
CNT = ZERO + 256
FLAG = ZERO + 512
IDX = ZERO + 3328
EOFF = IDX + 6400
HSTR = 144
K2_LDS = 163840
assert EOFF + 6144 <= K2_LDS
GCAP = 48
KILL = 0x40000000
NEGLN2 = 0xBF317218
aAE = 1; aAP = 2; aAO = 7; aS1 = 8; aS2 = 9; aIDX = 10; aEI = 11; EI = 12; CHK = 14
D = [16, 32]; EX = 48; ACC = 64; BC = [80, 84]; BQ = [88, 92]; ID = [96, 100]
AE = 104; FV = 164; MG = 165; AO = 108; S = 112; AP = [116, 120, 124, 128]; HQ = 132; IX = [136, 138, 140, 142]
WP = 144
NV2 = 168

def pr(r): return v(r, 2)
def q4(r): return v(r, 4)
def x16(r): return v(r, 16)

def mf_tile(Y):
    d = D[Y]
    return [f"v_mfma_f32_32x32x16_bf16 {x16(d)}, {q4(AE)}, {q4(BC[Y])}, 0",
            f"v_mfma_f32_32x32x16_bf16 {x16(d)}, {q4(AO)}, {q4(BQ[Y])}, {x16(d)}",
            f"v_mfma_f32_32x32x16_bf16 {x16(d)}, {q4(AP[2*Y])}, {q4(ID[0])}, {x16(d)}",
            f"v_mfma_f32_32x32x16_bf16 {x16(d)}, {q4(AP[2*Y+1])}, {q4(ID[1])}, {x16(d)}"]
SEGSUM = f"v_mfma_f32_32x32x16_bf16 {x16(ACC)}, {q4(HQ)}, {q4(S)}, {x16(ACC)}"

OCT = [0]
QTAILS = []
def tile(X, mf, ex_exp, mid, ex_rcp, tag=None):
    d = D[X]; out = []; mi = 0
    for i in range(16):
        if i % 3 == 0 and mi < len(mf):
            out.append(mf[mi]); mi += 1
        out.append(f"v_exp_f32 v{EX+i}, v{d+i}")
        out += ex_exp.get(i, [])
    out += mid
    NAB, NCD, DAB, DCD = d, d + 8, EX, EX + 8
    out.append(f"v_pk_add_f32 {pr(DAB)}, {pr(EX)}, 1.0 op_sel_hi:[1,0]")
    out.append(f"v_pk_add_f32 {pr(DCD)}, {pr(EX+8)}, 1.0 op_sel_hi:[1,0]")
    for k in range(1, 4):
        out.append(f"v_pk_fma_f32 {pr(NAB)}, {pr(NAB)}, {pr(EX+2*k)}, {pr(NAB)}")
        out.append(f"v_pk_fma_f32 {pr(NCD)}, {pr(NCD)}, {pr(EX+8+2*k)}, {pr(NCD)}")
        out.append(f"v_pk_fma_f32 {pr(NAB)}, {pr(d+2*k)}, {pr(DAB)}, {pr(NAB)}")
        out.append(f"v_pk_fma_f32 {pr(NCD)}, {pr(d+8+2*k)}, {pr(DCD)}, {pr(NCD)}")
        out.append(f"v_pk_fma_f32 {pr(DAB)}, {pr(DAB)}, {pr(EX+2*k)}, {pr(DAB)}")
        out.append(f"v_pk_fma_f32 {pr(DCD)}, {pr(DCD)}, {pr(EX+8+2*k)}, {pr(DCD)}")
    qt = [f"v_pk_fma_f32 {pr(CHK)}, {pr(DAB)}, {pr(DCD)}, {pr(CHK)}"]
    for r in (DAB, DAB + 1, DCD, DCD + 1):
        qt.append(f"v_rcp_f32 v{r}, v{r}")
    qt.append(f"v_pk_mul_f32 {pr(NAB)}, {pr(NAB)}, {pr(DAB)}")
    qt.append(f"v_pk_mul_f32 {pr(NCD)}, {pr(NCD)}, {pr(DCD)}")
    qt.append(f"v_cvt_pk_bf16_f32 v{HQ+2*X}, v{NAB}, v{NAB+1}")
    qt.append(f"v_cvt_pk_bf16_f32 v{HQ+2*X+1}, v{NCD}, v{NCD+1}")
    out += ex_rcp
    if not OCT[0] or tag is None:
        return out + qt
    DM = EX + 2
    out += ["s_bitcmp1_b32 s95, s55", f"s_cbranch_scc1 K2_QT{tag}",
            f"v_pk_mul_f32 {pr(DM)}, {pr(DAB)}, {pr(DCD)}",
            f"v_pk_mul_f32 {pr(NAB)}, {pr(NAB)}, {pr(DCD)}",
            "s_bitcmp0_b32 s54, s55",
            f"v_rcp_f32 v{DM+2}, v{DM}",
            f"v_rcp_f32 v{DM+3}, v{DM+1}",
            f"v_pk_fma_f32 {pr(NAB)}, {pr(NCD)}, {pr(DAB)}, {pr(NAB)}",
            f"v_pk_add_f32 {pr(CHK)}, {pr(CHK)}, {pr(DM)}",
            f"v_pk_mul_f32 {pr(NAB)}, {pr(NAB)}, {pr(DM+2)}",
            f"s_cbranch_scc1 K2_OZ{tag}",
            f"v_mov_b32 v{HQ+2*X+1}, 0",
            f"K2_OZ{tag}:",
            f"v_cvt_pk_bf16_f32 v{HQ+2*X}, v{NAB}, v{NAB+1}",
            f"K2_QR{tag}:"]
    QTAILS.append([f"K2_QT{tag}:"] + qt + [f"s_branch K2_QR{tag}"])
    return out

PFL = [""]
def p_dma():
    return [f"buffer_load_dwordx4 {pr(IX[k])}, s[32:35], s{28+k} idxen offen offset:{k*1024}{PFL[0]} lds" for k in range(4)]

EFL = [""]
def e_dma():
    return ["s_cmp_lt_u32 s61, s53",
            f"s_cselect_b32 s86, {E}, 0",
            f"s_cselect_b32 m0, s59, {K2_LDS:#x}",
            "s_add_u32 s61, s61, 4",
            f"buffer_load_dwordx4 {pr(EI)}, s[84:87], 0 idxen offen{EFL[0]} lds",
            "s_mov_b32 m0, s57",
            "s_add_u32 s59, s59, 4096"]
NW2 = 5
def w2_pre(vaddr):
    return [f"buffer_load_dwordx4 {q4(WP+4*sidx)}, v{vaddr}, s[40:43], s{73 + (sidx >> 2)} offen offset:{(sidx & 3)*1024} sc1" for sidx in range(NW2)]

NG3 = 105; GR3 = 96; NP3 = 17
KNAME = "standalone__edge_featured_mpnn_mpnn__graph_kernel"
def gen_k3(opt=None):
    opt = opt or {}
    EFL[0] = {0: "", 1: " nt", 2: " sc1"}[opt.get("efl", 0)]
    OCT[0] = opt.get("oct", 0)
    QTAILS.clear()
    PFL[0] = {0: "", 1: " sc1", 2: " sc0 sc1", 3: " sc0"}[opt.get("pfl", 1)]
    a = Asm()
    def stp(i):
        if opt.get("stamps"):
            a("s_memrealtime s[96:97]"); a("s_waitcnt lgkmcnt(0)"); a(f"v_writelane_b32 v0, s96, {i}")
    def stc(i):
        if opt.get("stamps"):
            a("s_memtime s[96:97]"); a("s_waitcnt lgkmcnt(0)"); a(f"v_writelane_b32 v0, s96, {i}")
    NT = " nt" if opt.get("knt", 1) else ""
    NTX = " nt" if opt.get("kntx", 0) else ""
    TID = 167
    L16 = 6
    XI = 65536
    AW = EOFF + 6144
    MF = opt.get("mf", 0)
    PSL = opt.get("psl", 4)
    def arrive(off, va=111):
        a("s_mov_b64 exec, 1")
        a(f"ds_add_u32 v{va}, v114 offset:{off}")
        a("s_mov_b64 exec, -1")
    npub = [0]
    def publish(nw, cnt_off, tot0, tot1, go_off, vm=0):
        npub[0] += 1; t = npub[0]
        a(f"s_waitcnt vmcnt({vm})")
        a("s_mov_b64 exec, 1")
        a(f"v_mov_b32 v106, {AW}")
        a("ds_add_rtn_u32 v105, v106, v114 offset:4")
        a("v_mov_b32 v106, 0")
        a("v_mov_b32 v109, 1")
        if tot1:
            a("s_and_b32 s67, s2, 1")
            a(f"s_cselect_b32 s68, {tot1-1}, {tot0-1}")
            a("s_lshl_b32 s69, s67, 6")
            a("s_lshl_b32 s67, s67, 2")
        else:
            a(f"s_mov_b32 s68, {tot0-1}\ns_mov_b32 s69, 0\ns_mov_b32 s67, 0")
        a("s_waitcnt lgkmcnt(0)")
        a("v_readfirstlane_b32 s66, v105")
        a("s_nop 0")
        a(f"s_cmp_lg_u32 s66, {nw-1}")
        a(f"s_cbranch_scc1 PUB{t}")
        a(f"buffer_atomic_add v109, v106, s[36:39], s69 offen offset:{cnt_off} sc0")
        a("s_waitcnt vmcnt(0)")
        a("v_readfirstlane_b32 s66, v109")
        a("s_nop 0")
        a("s_cmp_lg_u32 s66, s68")
        a(f"s_cbranch_scc1 PUB{t}")
        a(f"buffer_store_dword v114, v106, s[36:39], s67 offen offset:{go_off} sc0 sc1")
        a.label(f"PUB{t}")
        a("s_mov_b64 exec, -1")
    ngp = [0]
    def gpoll(go_off, two, sl=None):
        ngp[0] += 1; t = ngp[0]
        a("v_mov_b32 v105, 0")
        a("s_mov_b32 s67, 0x100000")
        a.label(f"GP{t}")
        a(f"buffer_load_dwordx2 v[108:109], v105, s[36:39], 0 offen offset:{go_off} sc1")
        a("s_sub_u32 s67, s67, 1")
        a("s_waitcnt vmcnt(0)")
        if two: a("v_and_b32 v108, v108, v109\ns_nop 0")
        a("v_readfirstlane_b32 s66, v108")
        a("s_cmp_eq_u32 s67, 0")
        a(f"s_cbranch_scc1 GX{t}")
        a("s_cmp_lg_u32 s66, 0")
        a(f"s_cbranch_scc1 GX{t}")
        a(f"s_sleep {sl or PSL}")
        a(f"s_branch GP{t}")
        a.label(f"GX{t}")
    nlw = [0]
    def lwait(off, n, sleep=1, va=111):
        nlw[0] += 1; t = nlw[0]
        a.label(f"LW{t}")
        a(f"ds_read_b32 v105, v{va} offset:{off}")
        a("s_waitcnt lgkmcnt(0)")
        a("v_readfirstlane_b32 s66, v105")
        a("s_nop 0")
        a(f"s_cmp_ge_u32 s66, {n}")
        a(f"s_cbranch_scc1 LX{t}")
        if sleep: a(f"s_sleep {sleep}")
        a(f"s_branch LW{t}")
        a.label(f"LX{t}")
    a.label(KNAME)
    a("s_cmp_ge_u32 s2, 256")
    a("s_cbranch_scc1 K2_END")
    a("s_load_dwordx16 s[4:19], s[0:1], 0")
    a("s_load_dwordx2 s[22:23], s[0:1], 80")
    a("s_load_dwordx2 s[20:21], s[0:1], 64")
    a("s_load_dwordx2 s[36:37], s[0:1], 72")
    if opt.get("stamps"): a("s_memrealtime s[98:99]")
    a("s_mov_b32 s70, 0")
    a("v_lshrrev_b32 v72, 6, v0")
    a("v_and_b32 v1, 63, v0")
    a("v_readfirstlane_b32 s24, v72")
    a(f"v_mov_b32 v106, {AW}")
    for i in range(4): a(f"v_mov_b32 v{108+i}, 0")
    a("v_mov_b32 v114, 1")
    a("ds_write_b128 v106, v[108:111]")
    a("ds_write_b128 v106, v[108:111] offset:16")
    a(f"v_lshlrev_b32 v{L16}, 4, v1")
    a("s_mov_b32 s38, 256")
    a("s_mov_b32 s39, 0x00020000")
    a(f"s_cmp_ge_u32 s2, {NG3}")
    a("s_cbranch_scc1 A_NG")
    a("v_lshrrev_b32 v20, 4, v1")
    a("s_lshl_b32 s66, s24, 3")
    a("v_add_u32 v20, s66, v20")
    a("v_xor_b32 v21, v20, v1")
    a("v_and_b32 v21, 15, v21")
    a("v_lshlrev_b32 v21, 4, v21")
    a("v_lshl_add_u32 v18, v20, 8, v21")
    a("v_xor_b32 v19, 64, v18")
    a("v_lshrrev_b32 v20, 5, v1")
    a("v_and_b32 v21, 31, v1")
    a("v_lshlrev_b32 v22, 2, v20")
    a("v_xor_b32 v22, v22, v21")
    a("v_lshlrev_b32 v22, 4, v22")
    a("v_lshl_add_u32 v16, v20, 9, v22")
    a("v_xor_b32 v17, 0x80, v16")
    a("s_lshl_b32 s67, s24, 12")
    a("s_add_u32 s68, s67, 32768")
    a(f"s_mul_i32 s69, s2, {GR3*256}")
    a("s_lshl_b32 s66, s24, 11")
    a(f"s_add_u32 m0, s66, {XI}")
    a("s_waitcnt lgkmcnt(0)")
    srd(a, 76, "s4", "s5", N * 256)
    srd(a, 80, "s12", "s13", 272 * 512)
    a(f"buffer_load_dwordx4 v18, s[76:79], s69 offen{NTX} lds")
    a(f"buffer_load_dwordx4 v19, s[76:79], s69 offen offset:1024{NTX} lds")
    a("s_mov_b32 m0, s67")
    a("s_cmp_ge_u32 s24, 8")
    a("s_barrier")
    a("s_cbranch_scc1 K2_TOP")
    for k in range(4):
        a(f"buffer_load_dwordx4 v{16 + (k & 1)}, s[80:83], s67 offen offset:{k*1024} lds")
    a("s_mov_b32 m0, s68")
    a("s_nop 0")
    for k in range(4):
        a(f"buffer_load_dwordx4 v{16 + (k & 1)}, s[80:83], s68 offen offset:{k*1024} lds")
    a("s_branch K2_TOP")
    a.label("A_NG")
    a(f"s_sub_u32 s3, s2, {NG3}")
    a("s_cmp_ge_u32 s24, 8")
    a("s_cbranch_scc1 A_W")
    a(f"s_cmp_ge_u32 s3, {NSORT}")
    a("s_cbranch_scc1 A_NS")
    a("v_lshlrev_b32 v16, 2, v0")
    a("v_add_u32 v17, 4096, v16")
    a("v_add_u32 v18, 8192, v16")
    a(f"s_mul_i32 s66, s3, {CHUNK*4}")
    a("s_waitcnt lgkmcnt(0)")
    srd(a, 76, "s10", "s11", E * 4)
    for i in range(5):
        a(f"buffer_load_dword v{32+i}, v{16 + (i >> 1)}, s[76:79], s66 offen offset:{(i & 1)*2048}{NT}")
    srd(a, 80, "s8", "s9", E * 4)
    for i in range(5):
        a(f"buffer_load_dword v{37+i}, v{16 + (i >> 1)}, s[80:83], s66 offen offset:{(i & 1)*2048}{NT}")
    for i in range(4): a(f"v_mov_b32 v{20+i}, -1")
    a("v_mov_b32 v19, 0")
    a("v_lshlrev_b32 v24, 4, v0")
    a("ds_write_b32 v16, v19 offset:32768")
    for i in range(4): a(f"ds_write_b128 v24, v[20:23] offset:{i*8192}")
    a("s_waitcnt lgkmcnt(0)")
    srd_ws(a, 40, 22, CELL_OFF, (W2F_OFF - CELL_OFF) + FRAG_BYTES)
    a(f"v_mov_b32 v30, {OVF - (1 << 32)}")
    a(f"v_lshlrev_b32 v31, 6, v0")
    a(f"v_lshrrev_b32 v27, 3, v0")
    a(f"v_xor_b32 v28, v27, v0")
    a("v_and_b32 v28, 7, v28")
    a("v_lshlrev_b32 v28, 4, v28")
    a("v_lshl_add_u32 v28, v27, 7, v28")
    a(f"v_and_b32 v29, 7, v0")
    a("v_lshlrev_b32 v29, 4, v29")
    a("v_lshl_add_u32 v29, v27, 14, v29")
    a("s_lshl_b32 s76, s3, 7")
    for i in range(1, 4): a(f"s_add_u32 s{76+i}, s76, {i << 20}")
    for i in range(5): a(f"v_add_u32 v{16+i}, {i*32768}, v31")
    a(f"v_cmp_gt_u32 vcc, {CHUNK - 2048}, v0")
    a("s_waitcnt lgkmcnt(0)")
    a("s_mov_b64 s[80:81], vcc")
    a("s_barrier")

    for i in range(5):
        a(f"s_waitcnt vmcnt({9 - i})")
        a(f"v_and_b32 v{42+i}, 255, v{32+i}")
        a(f"v_lshlrev_b32 v{47+i}, 2, v{42+i}")
        if i == 4: a("s_mov_b64 exec, s[80:81]")
        a(f"ds_add_rtn_u32 v{52+i}, v{47+i}, v114 offset:32768")
        if i == 4: a("s_mov_b64 exec, -1")
    for i in range(5):
        a(f"s_waitcnt vmcnt({4 - i})")
        a(f"v_lshrrev_b32 v{32+i}, 8, v{32+i}")
        a(f"v_lshl_or_b32 v{32+i}, v{37+i}, 18, v{32+i}")
        a(f"v_or_b32 v{32+i}, v{32+i}, v{16+i}")
        a(f"v_and_b32 v{37+i}, 28, v{47+i}")
        a(f"v_lshlrev_b32 v{42+i}, 5, v{42+i}")
    for i in range(5):
        a("s_waitcnt lgkmcnt(4)")
        a(f"v_cmp_lt_u32 vcc, 30, v{52+i}")
        a(f"v_min_u32 v{52+i}, 31, v{52+i}")
        a(f"v_lshl_or_b32 v{52+i}, v{52+i}, 5, v{52+i}")
        a(f"v_bfe_u32 v{52+i}, v{52+i}, 2, 5")
        a(f"v_xad_u32 v{52+i}, v{52+i}, v{37+i}, v{42+i}")
        a(f"v_cndmask_b32 v{32+i}, v{32+i}, v30, vcc")
        a(f"v_lshlrev_b32 v{52+i}, 2, v{52+i}")
        if i == 4: a("s_mov_b64 exec, s[80:81]")
        a(f"ds_write_b32 v{52+i}, v{32+i}")
        if i == 4: a("s_mov_b64 exec, -1")
    arrive(0, 106)
    lwait(0, 8, sleep=0, va=106)
    for i in range(4): a(f"ds_read_b128 {q4(56+4*i)}, v28 offset:{i*8192}")
    for i in range(4):
        a(f"s_waitcnt lgkmcnt({3 - i})")
        a(f"buffer_store_dwordx4 {q4(56+4*i)}, v29, s[40:43], s{76+i} offen sc1")
    if opt.get("stamps"): a("s_waitcnt vmcnt(0)\ns_memrealtime s[96:97]\ns_waitcnt lgkmcnt(0)\ns_mov_b32 s99, s96")
    publish(8, 0, 64, 64, 128)
    if opt.get("stamps"): a("s_memrealtime s[96:97]\ns_waitcnt lgkmcnt(0)\ns_mov_b32 s101, s96\ns_waitcnt vmcnt(0)\ns_memrealtime s[96:97]\ns_waitcnt lgkmcnt(0)\ns_mov_b32 s100, s96")
    a("s_branch K2_TOP")
    a.label("A_NS")
    a(f"s_sub_u32 s3, s3, {NSORT}")
    a(f"s_cmp_ge_u32 s3, {NP3}")
    a("s_cbranch_scc1 A_W")
    a("s_lshl_b32 s3, s3, 3")
    a("s_add_u32 s3, s3, s24")
    a("s_waitcnt lgkmcnt(0)")
    a("s_cmp_ge_u32 s3, 64")
    a("s_cbranch_scc1 A_P1")
    srd(a, 76, "s16", "s17", 256 * 256)
    a("v_and_b32 v16, 15, v1")
    a("v_lshlrev_b32 v16, 1, v16")
    a("v_lshrrev_b32 v17, 4, v1")
    a("v_lshl_add_u32 v16, v17, 10, v16")
    a("v_add_u32 v17, 8192, v16")
    a("s_bfe_u32 s66, s3, 0x20001")
    a("s_lshl_b32 s66, s66, 14")
    a("s_and_b32 s67, s3, 1")
    a("s_lshl_b32 s67, s67, 12")
    a("s_add_u32 s66, s66, s67")
    a("s_lshr_b32 s67, s3, 3")
    a("s_lshl_b32 s67, s67, 5")
    a("s_add_u32 s66, s66, s67")
    for e in range(8):
        a(f"buffer_load_ushort v{32+e}, v{16 + (e & 1)}, s[76:79], s66 offen offset:{(e >> 1)*256}")
    a("s_branch A_PF")
    a.label("A_P1")
    a("s_bfe_u32 s68, s3, 0x30003")
    a("s_and_b32 s69, s3, 7")
    a("s_cmp_ge_u32 s3, 128")
    a("s_cselect_b32 s68, s69, s68")
    a("s_cselect_b32 s69, 8, s69")
    srd(a, 76, "s12", "s13", 272 * 512)
    a("v_and_b32 v16, 1, v1")
    a("v_and_b32 v17, 30, v1")
    a("v_lshl_add_u32 v16, v16, 6, v17")
    a("v_lshrrev_b32 v17, 5, v1")
    a("v_lshl_add_u32 v16, v17, 12, v16")
    a("s_lshr_b32 s66, s68, 1")
    a("s_lshl_b32 s66, s66, 7")
    a("s_and_b32 s67, s68, 1")
    a("s_lshl_b32 s67, s67, 5")
    a("s_add_u32 s66, s66, s67")
    a("s_lshl_b32 s69, s69, 13")
    a("s_add_u32 s66, s66, s69")
    a(f"s_add_u32 s66, s66, {128*512}")
    for e in range(8):
        a(f"buffer_load_ushort v{32+e}, v16, s[76:79], s66 offen offset:{e*512}")
    a.label("A_PF")
    srd_ws(a, 40, 22, CELL_OFF, (W2F_OFF - CELL_OFF) + FRAG_BYTES)
    a("s_waitcnt lgkmcnt(0)")
    a("s_barrier")
    a("s_lshl_b32 s76, s3, 10")
    a(f"s_add_u32 s76, s76, {W2F_OFF - CELL_OFF}")
    a("s_cmp_ge_u32 s3, 128")
    a("s_waitcnt vmcnt(0)")
    a("s_cbranch_scc1 B_PC")
    for e in range(4): a(f"v_lshl_or_b32 v{40+e}, v{33+2*e}, 16, v{32+2*e}")
    a("s_branch B_PS")
    a.label("B_PC")
    a(f"s_mov_b32 s77, {NEGLOG2E:#x}")
    for e in range(8):
        a(f"v_lshlrev_b32 v{32+e}, 16, v{32+e}")
        a(f"v_mul_f32 v{32+e}, s77, v{32+e}")
    for e in range(4): a(f"v_cvt_pk_bf16_f32 v{40+e}, v{32+2*e}, v{33+2*e}")
    a.label("B_PS")
    a(f"buffer_store_dwordx4 v[40:43], v{L16}, s[40:43], s76 offen sc1")
    publish(8, 4, NP3, 0, 192)
    a("s_branch K2_TOP")
    a.label("A_W")
    if opt.get("cpf", 1):
        a(f"s_cmp_lt_u32 s2, {248 if opt.get('cpf', 1) == 1 else NG3 + NSORT}")
        a("s_cbranch_scc1 A_W2")
        a("s_getpc_b64 s[76:77]")
        a.label("A_PC")
        a(f"s_sub_u32 s76, s76, A_PC-{KNAME}")
        a("s_subb_u32 s77, s77, 0")
        a(f"s_mov_b32 s78, K2_REDO-{KNAME}")
        a("s_mov_b32 s79, 0x00020000")
        a("v_and_b32 v16, 255, v0")
        a("v_lshlrev_b32 v16, 7, v16")
        a("buffer_load_dword v134, v16, s[76:79], 0 offen")
        a.label("A_W2")
    a("s_waitcnt lgkmcnt(0)")
    a("s_barrier")
    a.label("K2_TOP")
    a(f"v_mov_b32 v{TID}, v0")
    a("v_lshlrev_b32 v24, 4, v0")
    a(f"v_lshlrev_b32 v{L16}, 4, v1")
    a("s_and_b32 s25, s24, 3")
    a("s_lshr_b32 s26, s24, 2")
    srd_ws(a, 40, 22, CELL_OFF, (W2F_OFF - CELL_OFF) + FRAG_BYTES)
    a.label("K2_CM")
    a("s_mul_i32 s71, s26, 12")
    a("s_lshl_b32 s56, s26, 14")
    a(f"s_add_u32 s56, s56, {EIM}")
    a("s_lshl_b32 s69, s25, 10")
    a("s_add_u32 s59, s56, s69")
    a("s_lshl_b32 s66, s24, 13")
    a(f"s_add_u32 s73, s66, {W2F_OFF - CELL_OFF}")
    a("s_cmp_lt_u32 s24, 8")
    a(f"s_cselect_b32 s73, s73, {KILL:#x}")
    a("s_add_u32 s74, s73, 4096")
    a("s_lshl_b32 s72, s25, 11")
    a(f"s_add_u32 s72, s72, {WCF_OFF - CELL_OFF}")
    a(f"v_add_u32 v156, {OH}, v24")
    for i in range(4): a(f"v_mov_b32 v{144+i}, 0")
    a(f"v_mov_b32 v31, {N}")
    a(f"v_mov_b32 v152, {E}")
    a(f"v_cmp_gt_u32 vcc, {IDX - ZERO}, v24")
    a(f"s_mov_b32 s66, {EOFF - ZERO}")
    a("v_cmp_le_u32 s[68:69], s66, v24")
    a("v_cndmask_b32 v148, v31, v144, vcc")
    a("v_mov_b32 v153, v152")
    a("v_cndmask_b32 v148, v148, v152, s[68:69]")
    a("v_mov_b32 v154, v152")
    a("v_mov_b32 v155, v152")
    for i in range(1, 4): a(f"v_mov_b32 v{148+i}, v148")
    a(f"ds_write_b128 v156, v[148:151] offset:{4*12288}")
    for i in range(4): a(f"ds_write_b128 v156, v[144:147] offset:{i*12288}")
    a(f"v_cmpx_gt_u32 vcc, {AW - (OH + 5*12288)}, v24")
    a(f"ds_write_b128 v156, v[152:155] offset:{5*12288}")
    a("s_mov_b64 exec, -1")
    if opt.get("stamps"):
        a("v_mov_b32 v0, 0"); a("v_writelane_b32 v0, s98, 0")
        a("v_writelane_b32 v0, s99, 16"); a("v_writelane_b32 v0, s100, 30"); a("v_writelane_b32 v0, s101, 31")
    a("s_mov_b32 s84, s6")
    a("s_and_b32 s85, s7, 0xffff")
    a(f"s_or_b32 s85, s85, {32 << 16:#x}")
    a("s_mov_b32 s87, 0x00020000")
    a(f"s_add_u32 s32, s22, {P_OFF - 3072}")
    a("s_addc_u32 s33, s23, 0")
    a("s_and_b32 s33, s33, 0xffff")
    a(f"s_or_b32 s33, s33, {512 << 16:#x}")
    a(f"s_mov_b32 s34, {N+1}")
    a("s_mov_b32 s35, 0x00020000")
    srd(a, 44, "s20", "s21", N * 256)
    H_, I_, T0, T1 = 77, 78, 105, 106
    a(f"v_lshrrev_b32 v{H_}, 5, v1")
    a(f"v_and_b32 v{I_}, 31, v1")
    a(f"v_bfe_u32 v{T0}, v1, 3, 2")
    a(f"v_bfe_u32 v{T1}, v1, 1, 1")
    a(f"v_lshl_or_b32 v{T0}, v{T0}, 1, v{T1}")
    a(f"v_and_b32 v{T1}, 1, v1")
    a(f"v_lshl_or_b32 v{T0}, v{T1}, 3, v{T0}")
    a(f"v_and_b32 v{T1}, 4, v1")
    a(f"v_lshl_or_b32 v{T0}, v{T1}, 2, v{T0}")
    a("s_lshl_b32 s57, s24, 12")
    a("s_lshl_b32 s58, s25, 7")
    a("s_mov_b32 m0, s57")
    for k in range(4): a(f"s_add_u32 s{28+k}, s58, {(3-k)*1024}")
    a(f"v_bfe_u32 v{T1}, v{T0}, 1, 3")
    a(f"v_xor_b32 v{T1}, v{T1}, v{H_}")
    a(f"v_lshl_add_u32 v{T1}, v{T1}, 4, s57")
    a(f"v_lshl_add_u32 v{aAP}, v{T0}, 7, v{T1}")
    for m in range(1, 4): a(f"v_xor_b32 v{aAP+m}, {m << 5}, v{aAP}")
    a(f"v_bfe_u32 v{T1}, v{T0}, 3, 1")
    a(f"v_xor_b32 v{T1}, v{T1}, v{H_}")
    a(f"v_lshl_add_u32 v{T1}, v{T1}, 4, s56")
    a(f"v_lshl_add_u32 v110, v{T0}, 5, v{T1}")
    a(f"v_lshlrev_b32 v{T1}, 4, v{H_}")
    a(f"v_lshl_add_u32 v{aAO}, v{T0}, 5, v{T1}")
    a(f"v_and_b32 v{T1}, 62, v1")
    a(f"v_lshlrev_b32 v{aEI}, 1, v{T1}")
    SOFF = 104
    a(f"v_and_b32 v{T1}, 8, v1")
    a(f"v_lshlrev_b32 v{SOFF}, 4, v{T1}")
    a(f"v_lshl_add_u32 v{SOFF}, v{H_}, 9, v{SOFF}")
    a(f"v_and_b32 v{T1}, 4, v1")
    a(f"v_lshl_add_u32 v{SOFF}, v{T1}, 6, v{SOFF}")
    a(f"v_and_b32 v{T1}, 3, v1")
    a(f"v_lshl_add_u32 v{SOFF}, v{T1}, 3, v{SOFF}")
    a("s_mov_b32 s62, 0xffff\ns_mov_b32 s63, 0xffff\ns_mov_b32 s64, 0xffff0000\ns_mov_b32 s65, 0xffff0000")
    a(f"v_lshrrev_b32 v{T1}, 3, v1")
    a(f"v_lshlrev_b32 v{aIDX}, 2, v{T1}")
    a(f"v_lshrrev_b32 v{T1}, 4, v1")
    a(f"v_xor_b32 v{T1}, v{T1}, v1")
    a(f"v_and_b32 v{EI+1}, 1, v{T1}")
    a(f"v_lshlrev_b32 v{EI+1}, 4, v{EI+1}")
    a(f"v_and_b32 v{T1}, 7, v{T1}")
    a(f"v_lshlrev_b32 v{IX[0]+1}, 4, v{T1}")
    a(f"v_xor_b32 v{IX[1]+1}, 64, v{IX[0]+1}")
    a(f"v_mov_b32 v{IX[2]+1}, v{IX[0]+1}")
    a(f"v_mov_b32 v{IX[3]+1}, v{IX[1]+1}")
    a(f"v_and_b32 v{T1}, 1, v1")
    a(f"v_lshlrev_b32 v{T1}, 4, v{T1}")
    a("v_mov_b32 v75, 0x3f80")
    a(f"v_lshlrev_b32 v107, v{T1}, v75")
    a(f"v_lshrrev_b32 v{T1}, 1, v{I_}")
    a(f"v_lshlrev_b32 v{T0}, 2, v{H_}")
    a(f"v_sub_u32 v{T1}, v{T1}, v{T0}")
    for mm in range(2):
        for rho in range(4):
            a(f"v_cmp_eq_u32 s[{76+2*rho}:{77+2*rho}], {8*mm+rho}, v{T1}")
        for rho in range(4):
            a(f"v_cndmask_b32 v{ID[mm]+rho}, 0, v107, s[{76+2*rho}:{77+2*rho}]")
    a("s_lshl_b32 s66, s25, 11")
    a("s_add_u32 s67, s56, s66")
    a(f"v_add_u32 v115, s67, v{L16}")
    a(f"v_mov_b32 v111, {FLAG}")
    a("v_mov_b32 v114, 1")
    a("s_mov_b32 s55, 0")
    a("s_mov_b32 s60, 0")
    a("s_mov_b32 s61, s25")
    a("s_mov_b32 s27, 0")
    a("s_cmp_lg_u32 s70, 0")
    a("s_cbranch_scc1 B_IDLE")
    a(f"s_cmp_ge_u32 s2, {NG3}")
    a("s_cbranch_scc1 B_IDLE")
    GA, GB_ = 144, 152
    DA, DB = 16, 32
    BFs = [48, 56, 64, 80]; AFs = [88, 92, 116, 120]
    a("s_waitcnt lgkmcnt(0)")
    a(f"v_and_b32 v154, 15, v1")
    a(f"v_xor_b32 v154, v154, v{H_}")
    a("s_lshl_b32 s66, s26, 13")
    a(f"s_add_u32 s66, s66, {XI}")
    a("v_lshl_add_u32 v154, v154, 4, s66")
    a(f"v_lshl_add_u32 v{GA}, v{I_}, 8, v154")
    for sidx in range(1, 8): a(f"v_xor_b32 v{GA+sidx}, {sidx << 5}, v{GA}")
    a("v_bfe_u32 v154, v1, 2, 2")
    a(f"v_lshl_add_u32 v155, v{H_}, 3, v154")
    a("v_and_b32 v156, 3, v1")
    a("v_lshl_add_u32 v156, v156, 3, s58")
    a("v_bfe_u32 v157, v1, 4, 1")
    a("v_lshl_add_u32 v156, v157, 5, v156")
    a("v_lshlrev_b32 v154, 6, v154")
    a("v_xor_b32 v156, v156, v154")
    a(f"v_lshl_add_u32 v{GB_}, v155, 9, v156")
    a(f"v_xor_b32 v{GB_+1}, 64, v{GB_}")
    a("s_lshl_b32 s66, s26, 14")
    a("s_add_u32 s66, s66, s58")
    a(f"v_lshl_add_u32 v158, v{I_}, 2, s66")
    a(f"v_lshl_add_u32 v158, v{H_}, 11, v158")
    a(f"s_mov_b32 s68, {NEGLOG2E:#x}")
    a(f"s_mov_b32 s69, {NEGLOG2E:#x}")
    a("s_cmp_lt_u32 s24, 8")
    a("s_cbranch_scc1 B_G4")
    a("s_waitcnt vmcnt(0)")
    a.label("B_G4")
    a("s_waitcnt vmcnt(4)")
    a("s_barrier")
    def reads(sidx):
        st = sidx & 3
        a(f"ds_read_b128 {q4(AFs[st])}, v{GA+sidx}")
        for X in range(2):
            for e in range(2):
                a(f"ds_read_b64_tr_b16 {pr(BFs[st]+4*X+2*e)}, v{GB_+X} offset:{sidx*8192+e*2048}")
    def mm(sidx):
        st = sidx & 3
        a(f"v_mfma_f32_32x32x16_bf16 {x16(DA)}, {q4(AFs[st])}, {q4(BFs[st])}, {'0' if sidx == 0 else x16(DA)}")
        a(f"v_mfma_f32_32x32x16_bf16 {x16(DB)}, {q4(AFs[st])}, {q4(BFs[st]+4)}, {'0' if sidx == 0 else x16(DB)}")
    reads(0); reads(1); reads(2)
    a("s_waitcnt lgkmcnt(10)"); mm(0); reads(3)
    a("s_waitcnt lgkmcnt(10)"); mm(1)
    a("s_waitcnt vmcnt(0)")
    a("s_barrier")
    reads(4)
    a("s_waitcnt lgkmcnt(10)"); mm(2); reads(5)
    a("s_waitcnt lgkmcnt(10)"); mm(3); reads(6)
    a("s_waitcnt lgkmcnt(10)"); mm(4); reads(7)
    a("s_waitcnt lgkmcnt(10)"); mm(5)
    a("s_waitcnt lgkmcnt(5)"); mm(6)
    a("s_waitcnt lgkmcnt(0)"); mm(7)
    a("s_barrier")
    a("s_nop 9")
    for r in range(0, 16, 2):
        a(f"v_pk_mul_f32 {pr(DA+r)}, {pr(DA+r)}, s[68:69]")
        a(f"v_pk_mul_f32 {pr(DB+r)}, {pr(DB+r)}, s[68:69]")
        for rr in (r, r + 1): a(f"v_cvt_pk_bf16_f32 v{48+rr}, v{DA+rr}, v{DB+rr}")
        o = ((r >> 2) * 8 + (r & 3)) * 2
        a(f"ds_write2st64_b32 v158, v{48+r}, v{49+r} offset0:{o} offset1:{o+2}")
    a("s_waitcnt lgkmcnt(0)")
    a("s_barrier")
    HST = opt.get("hst", 1)
    if HST:
        a("s_cmp_lg_u32 s26, 2")
        a("s_cbranch_scc1 K2_SW")
    else:
        a("s_cmp_eq_u32 s26, 2")
        a("s_cbranch_scc1 K2_HQ")
        a("s_cmp_eq_u32 s26, 0")
        a("s_cbranch_scc1 K2_SW")
    srd_ws(a, 76, 22, P_OFF, (N + 1) * 512)
    a("s_mul_i32 s66, s25, 12288")
    a(f"v_add_u32 v154, s66, v{L16}")
    a(f"s_mul_i32 s67, s2, {GR3*512}")
    a("s_add_u32 s80, s66, s67")
    a("s_add_u32 s81, s80, 4096")
    a("s_add_u32 s82, s80, 8192")
    for i in range(12): a(f"ds_read_b128 {q4(28+4*i if i < 11 else 88)}, v154 offset:{i*1024}")
    for i in range(12):
        a(f"s_waitcnt lgkmcnt({11-i})")
        a(f"buffer_store_dwordx4 {q4(28+4*i if i < 11 else 88)}, v{L16}, s[76:79], s{80 + (i >> 2)} offen offset:{(i & 3)*1024} sc1")
    a("s_mov_b32 s27, 1")
    a("s_branch K2_HQ" if HST else "s_branch K2_SW")
    a.label("B_IDLE")
    arrive(AW - FLAG + 8)
    a("s_cmp_ge_u32 s24, 8")
    a("s_cbranch_scc1 K2_HQ")
    lwait(AW - FLAG + 8, 12)
    a.label("K2_SW")
    stp(1)
    a(f"s_mov_b32 s66, {CHUNK}")
    a(f"v_lshrrev_b32 v72, 2, v{TID}")
    a("v_mul_u32_u24 v72, s66, v72")
    a(f"v_lshlrev_b32 v25, 5, v{TID}")
    a(f"s_mov_b32 s78, {CNT}")
    a("v_lshl_add_u32 v76, v1, 2, s78")
    a(f"s_mov_b32 s79, {IDX}")
    a(f"s_mov_b32 s80, {OH}")
    a("s_mov_b32 s81, 0")
    a("s_lshl_b32 s77, s2, 14")
    a("s_cmp_lg_u32 s24, 0")
    a("s_cbranch_scc1 K2_SWW")
    gpoll(128, 1)
    a("ds_write_b32 v111, v114 offset:32")
    a("s_branch K2_SWG")
    a.label("K2_SWW")
    lwait(32, 1)
    a.label("K2_SWG")
    a("buffer_load_dwordx4 v[16:19], v25, s[40:43], s77 offen sc1")
    a("buffer_load_dwordx4 v[20:23], v25, s[40:43], s77 offen offset:16 sc1")
    arrive(AW - FLAG + 20)
    stp(15)
    if not HST:
        a("s_cmp_eq_u32 s27, 0")
        a("s_cbranch_scc1 K2_NP")
        publish(4, 8, (NG3 + 1) // 2, NG3 // 2, 136, vm=2)
        a.label("K2_NP")
    a("s_waitcnt vmcnt(1)")
    stp(2)
    RA, RK = 32, 40
    SB = 48; T = 116
    TS, TE, TO = 116, 124, 56
    def count(ks):
        for k in ks:
            a(f"v_and_b32 v{RA+k}, 63, v{16+k}")
            a(f"v_lshl_add_u32 v{RA+k}, v{RA+k}, 2, s78")
        for k in ks:
            a(f"v_cmpx_gt_u32 vcc, -2, v{16+k}")
            a(f"ds_add_rtn_u32 v{RK+k}, v{RA+k}, v114")
        a("s_mov_b64 exec, -1")
    def decode(ks):
        for k in ks:
            a(f"v_lshrrev_b32 v{TS+k}, {18 + opt.get('pshift', 0)}, v{16+k}")
            a(f"v_bfe_u32 v{TE+k}, v{16+k}, 6, 12")
            a(f"v_add_u32 v{TE+k}, v{TE+k}, v72")
            if opt.get("eshift"): a(f"v_lshrrev_b32 v{TE+k}, {opt['eshift']}, v{TE+k}")
            a(f"v_and_b32 v{TO+k}, 15, v{16+k}")
            a(f"v_lshl_add_u32 v{TO+k}, v{TO+k}, 1, s80")
    def scatter(ks):
        for k in ks:
            a(f"v_add_u32 v{SB+k}, v{SB+k}, v{RK+k}")
            a(f"v_lshl_add_u32 v{TO+k}, v{SB+k}, 5, v{TO+k}")
            a(f"v_lshl_add_u32 v{SB+k}, v{SB+k}, 2, s79")
        for k in ks:
            a(f"v_cmpx_gt_u32 vcc, -2, v{16+k}")
            a(f"ds_write2st64_b32 v{SB+k}, v{TS+k}, v{TE+k} offset0:0 offset1:{(EOFF-IDX)//256}")
            a(f"ds_write_b16 v{TO+k}, v75")
        a("s_mov_b64 exec, -1")
    count(range(4))
    a("s_waitcnt vmcnt(0)")
    a("v_cmp_ne_u32 vcc, -1, v20")
    a("s_nop 1")
    a("s_cbranch_vccz K2_C1")
    a("s_mov_b32 s81, 1")
    count([4])
    a("v_cmp_ne_u32 vcc, -1, v21")
    decode([4])
    a("s_cbranch_vccnz K2_CX")
    a.label("K2_C1")
    arrive(4)
    decode(range(4))
    a.label("K2_SB1")
    a("ds_read_b64 v[108:109], v111")
    a("ds_read_b32 v105, v76")
    a("s_waitcnt lgkmcnt(0)")
    a("v_readfirstlane_b32 s66, v109")
    a("v_add_u32 v105, 3, v105")
    a("s_cmp_lt_u32 s66, 8")
    a("s_cbranch_scc1 K2_SB1")
    stp(3)
    a("v_and_b32 v105, -4, v105")
    a("v_readfirstlane_b32 s82, v108")
    a("s_nop 0")
    a("v_add_u32_dpp v107, v105, v105 row_shr:1 row_mask:0xf bank_mask:0xf bound_ctrl:0")
    a("s_nop 1")
    for sh in (2, 4, 8):
        a(f"v_add_u32_dpp v107, v107, v107 row_shr:{sh} row_mask:0xf bank_mask:0xf bound_ctrl:0")
        a("s_nop 1")
    a("v_add_u32_dpp v107, v107, v107 row_bcast:15 row_mask:0xa bank_mask:0xf")
    a("s_sub_u32 s82, s82, s70")
    a("s_lshl_b32 s82, s82, 12")
    a("v_add_u32_dpp v107, v107, v107 row_bcast:31 row_mask:0xc bank_mask:0xf")
    a("v_sub_u32 v108, v107, v105")
    a("v_readlane_b32 s83, v107, 63")
    for k in range(5): a(f"ds_bpermute_b32 v{SB+k}, v{RA+k}, v108")
    a("s_add_u32 s82, s82, s83")
    a(f"s_cmp_gt_u32 s82, {GCAP*32}")
    a("s_cbranch_scc1 K2_BAD")
    a("s_waitcnt lgkmcnt(0)")
    scatter(range(4))
    a("s_cmp_eq_u32 s81, 0")
    a("s_cbranch_scc1 K2_S1")
    scatter([4])
    a("s_cmp_lg_u32 s81, 1")
    a("s_cbranch_scc1 K2_SX")
    a.label("K2_S1")
    a("s_add_u32 s83, s83, 31")
    a("s_lshr_b32 s83, s83, 5")
    LB = opt.get("lb", 0)
    a(f"s_add_u32 s88, s83, {(2, 0, 4)[LB]}")
    a("s_mul_i32 s88, s88, 171")
    a("v_readlane_b32 s76, v108, 12")
    a("v_readlane_b32 s77, v108, 16")
    a("v_readlane_b32 s78, v108, 24")
    a("v_readlane_b32 s79, v108, 28")
    a("s_lshr_b32 s88, s88, 9")
    a("s_add_u32 s76, s76, 31")
    a("s_lshr_b32 s76, s76, 5")
    a("s_lshr_b32 s77, s77, 5")
    a("s_add_u32 s78, s78, 31")
    a("s_lshr_b32 s78, s78, 5")
    a("s_lshr_b32 s79, s79, 5")
    a("s_cmp_gt_u32 s76, s77")
    a("s_cbranch_scc1 K2_BAD")
    a("s_cmp_gt_u32 s78, s79")
    a("s_cbranch_scc1 K2_BAD")
    if opt.get("force_slow"): a("s_branch K2_BAD")
    a("s_max_u32 s88, s88, s76")
    a("s_min_u32 s88, s88, s77")
    a("s_add_u32 s89, s83, s88")
    a(f"s_add_u32 s89, s89, {(1, 0, 2)[LB]}")
    a("s_lshr_b32 s89, s89, 1")
    a("s_max_u32 s89, s89, s78")
    a("s_min_u32 s89, s89, s79")
    a("s_sub_u32 s90, s89, s88")
    a("s_sub_u32 s91, s83, s89")
    a("s_max_u32 s92, s90, s88")
    a("s_max_u32 s92, s92, s91")
    a("s_cmp_gt_u32 s92, 16")
    a("s_cbranch_scc1 K2_BAD")
    a("v_mov_b32 v106, s89")
    a("v_mov_b32 v107, s91")
    a("ds_write_b64 v111, v[106:107] offset:16")
    a("v_mov_b32 v105, v108")
    a("s_cmp_eq_u32 s26, 1")
    a("s_cselect_b32 s52, s88, 0")
    a("s_cselect_b32 s53, s90, s88")
    def g0_addr():
        a("s_lshl_b32 s66, s52, 7")
        a(f"s_add_u32 s67, s66, {IDX}")
        a(f"v_add_u32 v{aIDX}, s67, v{aIDX}")
        a(f"s_add_u32 s67, s67, {EOFF - IDX}")
        a(f"v_add_u32 v{aEI}, s67, v{aEI}")
        a(f"v_add_u32 v109, s58, v{aEI}")
    def first_reads():
        for k in range(4): a(f"ds_read_b32 v{IX[k]}, v{aIDX} offset:{k*32}")
        a(f"ds_read_b32 v{EI}, v109")
    LATE = 0
    a("s_waitcnt lgkmcnt(0)")
    stp(4)
    a("s_barrier")
    a("s_branch K2_QD")
    a.label("K2_HQ")
    a("s_waitcnt lgkmcnt(0)")
    stp(1)
    a("v_lshrrev_b32 v144, 4, v1")
    a("s_lshl_b32 s68, s25, 2")
    a("v_add_u32 v144, s68, v144")
    a("v_xor_b32 v145, v144, v1")
    a("v_and_b32 v145, 15, v145")
    a("v_lshlrev_b32 v145, 4, v145")
    a("v_lshl_add_u32 v146, v144, 16, v145")
    for win in (1, 2):
        a(f"v_subrev_u32 v149, {12*win}, v144")
        a("v_and_b32 v149, 15, v149")
        a(f"v_add_u32 v149, {12*win}, v149")
        a(f"v_lshl_add_u32 v{146+win}, v149, 16, v145")
    a("s_lshl_b32 s68, s2, 8")
    a("s_lshl_b32 s69, s25, 10")
    srd(a, 48, "s4", "s5", N * 256)
    for win in range(3):
        a(f"s_add_u32 m0, s69, {EIM + 4096 + win*16384}")
        a("s_nop 0")
        a(f"buffer_load_dwordx4 v{146+win}, s[48:51], s68 offen lds")
    a("s_mov_b32 m0, s57")
    a(f"v_lshrrev_b32 v{H_}, 5, v1")
    a("s_lshl_b32 s66, s25, 11")
    WA, QA, QB, XA, BIAS = 32, 16, 116, 132, 112
    a(f"v_and_b32 v{T0}, 3, v1")
    a(f"v_and_b32 v{T1}, 4, v1")
    a(f"v_lshl_or_b32 v{T0}, v{T1}, 1, v{T0}")
    a(f"v_bfe_u32 v{T1}, v1, 3, 1")
    a(f"v_lshl_or_b32 v{T0}, v{T1}, 2, v{T0}")
    a(f"v_xor_b32 v{T1}, v{T0}, v{H_}")
    a(f"v_lshlrev_b32 v{T1}, 4, v{T1}")
    a(f"v_lshl_add_u32 v{XA}, v{T0}, 8, v{T1}")
    a(f"v_and_b32 v{T1}, 16, v1")
    a(f"v_lshl_add_u32 v{XA}, v{T1}, 10, v{XA}")
    a(f"v_add_u32 v{XA}, {EIM + 4096}, v{XA}")
    a(f"s_add_u32 s67, s66, {EIM + 8192}")
    a(f"v_add_u32 v107, s67, v{L16}")
    srd(a, 48, "s14", "s15", 512)
    a("v_and_b32 v108, 1, v1")
    a("v_and_b32 v109, 30, v1")
    a("v_lshl_add_u32 v108, v108, 6, v109")
    a("s_lshl_b32 s66, s25, 14")
    a(f"s_add_u32 s76, s66, {W1BF_OFF - CELL_OFF}")
    for i in range(1, 4): a(f"s_add_u32 s{76+i}, s76, {i*4096}")
    PFT = 0
    a(f"buffer_load_ushort v{BIAS}, v108, s[48:51], s58 offen")
    a(f"buffer_load_ushort v{BIAS+1}, v108, s[48:51], s58 offen offset:32")
    if HST:
        a("s_cmp_eq_u32 s27, 0")
        a("s_cbranch_scc1 K2_NP")
        publish(4, 8, (NG3 + 1) // 2, NG3 // 2, 136, vm=5)
        stp(15)
        a.label("K2_NP")
    a(f"s_mov_b32 s68, {NEGLOG2E:#x}")
    a(f"s_mov_b32 s69, {NEGLOG2E:#x}")
    a("s_cmp_lg_u32 s24, 8")
    a("s_cbranch_scc1 K2_HW")
    gpoll(192, 0, opt.get('fsl', 12))
    a(f"ds_write_b32 v111, v114 offset:{AW - FLAG + 16}")
    a.label("K2_HW")
    lwait(AW - FLAG + 16, 1)
    if opt.get("gate", 0):
        a(f"s_cmp_ge_u32 s2, {NG3}")
        a("s_cbranch_scc1 K2_HW2")
        lwait(AW - FLAG + 20, 8)
        a.label("K2_HW2")
    worder = list(range(8, 16)) + list(range(8))
    for n, i in enumerate(worder):
        a(f"buffer_load_dwordx4 {q4(WA+4*i)}, v{L16}, s[40:43], s{76 + (i >> 2)} offen offset:{(i & 3)*1024} sc1")
        if n == 7:
            a("s_waitcnt vmcnt(10)")
            arrive(AW - FLAG + 12)
    stp(2)
    lwait(AW - FLAG + 12, 4, sleep=0)
    def xread(step):
        sidx = step & 7; st_ = step % 3
        if sidx: a(f"v_xor_b32 v{XA+1}, {sidx << 5}, v{XA}")
        r = XA + 1 if sidx else XA
        a(f"ds_read_b128 {q4(WP+8*st_)}, v{r}")
        a(f"ds_read_b128 {q4(WP+8*st_+4)}, v{r} offset:32768")
    xread(0); xread(1); xread(2)
    a(f"s_waitcnt vmcnt({16 + PFT})")
    a(f"v_lshlrev_b32 v{BIAS}, 16, v{BIAS}")
    a(f"v_lshlrev_b32 v{BIAS+1}, 16, v{BIAS+1}")
    a(f"v_pk_mul_f32 {pr(BIAS)}, {pr(BIAS)}, s[68:69]")
    for Xi in range(2):
        X = 1 - Xi
        for sidx in range(8):
            step = 8*Xi + sidx; st_ = step % 3
            nl = 2*min(2, 15-step) + (3 if (Xi == 1 and sidx < 3) else 0)
            a(f"s_waitcnt vmcnt({15 - step}) lgkmcnt({min(nl, 15)})")
            a(f"v_mfma_f32_32x32x16_bf16 {x16(QA)}, {q4(WP+8*st_)}, {q4(WA+32*X+4*sidx)}, {'0' if sidx == 0 else x16(QA)}")
            a(f"v_mfma_f32_32x32x16_bf16 {x16(QB)}, {q4(WP+8*st_+4)}, {q4(WA+32*X+4*sidx)}, {'0' if sidx == 0 else x16(QB)}")
            if step + 3 < 16: xread(step + 3)
        a("s_nop 10")
        for wi, base in enumerate((QA, QA + 8, QB)):
            for k in range(4):
                a(f"v_pk_fma_f32 {pr(base+2*k)}, {pr(base+2*k)}, s[68:69], {pr(BIAS)} op_sel:[0,0,{X}] op_sel_hi:[1,1,{X}]")
            for k in range(4):
                a(f"v_cvt_pk_bf16_f32 v{WA+32*X+4*wi+k}, v{base+2*k}, v{base+2*k+1}")
            a(f"ds_write_b128 v107, {q4(WA+32*X+4*wi)} offset:{wi*16384 + X*1024}")
    stp(3)
    a("s_cmp_lg_u32 s24, 8")
    a("s_cbranch_scc1 K2_NPG")
    gpoll(136, 1)
    a.label("K2_NPG")
    a("s_waitcnt lgkmcnt(0)")
    stp(4)
    a("s_barrier")
    a("ds_read_b64 v[108:109], v111 offset:16")
    a("s_waitcnt lgkmcnt(0)")
    a("v_readfirstlane_b32 s52, v108")
    a("v_readfirstlane_b32 s53, v109")
    a("s_nop 0")
    a("s_cmp_eq_u32 s53, -1")
    a("s_cbranch_scc1 K2_SLOW")
    a.label("K2_QD")
    g0_addr()
    first_reads()
    a("s_lshl_b32 s75, s52, 10")
    a(f"s_add_u32 s75, s75, {OH}")
    a(f"v_add_u32 v{aAO}, s75, v{aAO}")
    a("s_cmp_lg_u32 s25, 0")
    a("s_waitcnt lgkmcnt(0)")
    stp(5)
    a("s_cbranch_scc1 K2_FL1")
    a("\n".join(e_dma()))
    a.label("K2_FL1")
    a("\n".join(p_dma()))
    a(f"buffer_load_dwordx4 {q4(BC[0])}, v{L16}, s[40:43], s72 offen sc1")
    a(f"buffer_load_dwordx4 {q4(BC[1])}, v{L16}, s[40:43], s72 offen offset:1024 sc1")
    for k in range(4): a(f"ds_read_b32 v{IX[k]}, v{aIDX} offset:{128+k*32}")
    a(f"v_mov_b32 v166, v109")
    a(f"v_mov_b32 v{aAE}, v110")
    a(f"ds_read_b128 {q4(AO)}, v{aAO}")
    a(f"ds_read_b128 {q4(BQ[0])}, v115 offset:8192")
    a(f"ds_read_b128 {q4(BQ[1])}, v115 offset:9216")
    a(f"v_mov_b32 v{MG}, -1")
    a(f"v_add_u32 v{SOFF}, s75, v{SOFF}")
    a(f"v_mov_b32 v{T0}, {ZERO}")
    a(f"v_cndmask_b32 v{aS1}, v{T0}, v{SOFF}, s[62:63]")
    a(f"v_cndmask_b32 v{aS2}, v{T0}, v{SOFF}, s[64:65]")
    for i in range(16): a(f"v_mov_b32 v{ACC+i}, 0")
    a(f"v_mov_b32 v{CHK}, 0\nv_mov_b32 v{CHK+1}, 0")
    for i in range(4): a(f"v_mov_b32 v{S+i}, 0")
    T3, T2, T1_ = opt.get("t3", 6), opt.get("t2", 3), opt.get("t1", 1)
    a("s_cmp_eq_u32 s26, 2")
    a(f"s_cselect_b32 s94, {opt.get('r2lag', 0)}, 0")
    a("s_sub_u32 s94, s53, s94")
    a(f"s_sub_u32 s90, s94, {T3}")
    a("s_max_i32 s90, s90, 2")
    a("s_mov_b32 s91, 0")
    a("s_sub_u32 s93, s53, 2")
    if OCT[0]:
        a("s_waitcnt lgkmcnt(3)")
        a("v_readfirstlane_b32 s66, v106")
        a("v_readfirstlane_b32 s67, v107")
        a("s_nop 0")
        a("s_lshr_b64 s[66:67], s[66:67], s52")
        if opt.get("allq"): a("s_mov_b32 s66, -1")
        a("s_mov_b32 s95, s66")
        a("s_lshl_b32 s54, s66, 1")
    def flag_wait(tag, off):
        a.label(f"K2_W{tag}")
        a(f"ds_read_b32 v{FV}, v{aEI} offset:{off}")
        a("s_waitcnt lgkmcnt(0)")
        a(f"v_readfirstlane_b32 s66, v{FV}")
        a("s_nop 0")
        a("s_cmp_eq_u32 s66, -1")
        a(f"s_cbranch_scc1 K2_X{tag}")
        a("s_sleep 1")
        a(f"s_branch K2_W{tag}")
        a.label(f"K2_X{tag}")
    if True:
        a("s_min_u32 s67, s53, 1")
        a("s_cmp_ge_u32 s25, s67")
        a("s_waitcnt vmcnt(0)")
        a("s_cbranch_scc1 K2_NF")
        a(f"ds_write_b32 v166, v{MG}")
        a(f"ds_read_b32 v{EI}, v{aEI} offset:512")
        a.label("K2_NF")
        for m in range(4): a(f"ds_read_b128 {q4(AP[m])}, v{aAP+m}")
        a("s_waitcnt lgkmcnt(0)")
        a("\n".join(p_dma()))
        a("s_sub_u32 s67, s25, 1")
        a("s_cmp_ge_u32 s67, 2")
        a("s_cbranch_scc1 K2_F2")
        a("\n".join(e_dma()))
        a.label("K2_F2")
        for i in range(4): a(f"v_mov_b32 v{HQ+i}, 0")
        a("s_cmp_eq_u32 s53, 0")
        a("s_cbranch_scc1 K2_EXIT")
        def flag_wait(tag, off):
            a.label(f"K2_W{tag}")
            a(f"ds_read_b32 v{FV}, v{aEI} offset:{off}")
            a("s_waitcnt lgkmcnt(0)")
            a(f"v_readfirstlane_b32 s66, v{FV}")
            a("s_nop 0")
            a("s_cmp_eq_u32 s66, -1")
            a(f"s_cbranch_scc1 K2_X{tag}")
            a("s_sleep 1")
            a(f"s_branch K2_W{tag}")
            a.label(f"K2_X{tag}")
        flag_wait("A", 0)
        a(f"ds_read_b128 {q4(AE)}, v{aAE}")
        stp(6)
        stc(12)
        if opt.get("prio", 1): a("s_setprio 3")
        a("s_waitcnt lgkmcnt(0)")
        a("\n".join(mf_tile(0)))
        a("s_nop 10")
        ex0 = {1: [f"ds_read_b32 v{IX[k]}, v{aIDX} offset:{256+k*32}" for k in range(4)]}
        ex1 = {1: [f"ds_read_b64_tr_b16 {pr(S)}, v{aS1}", f"ds_read_b64_tr_b16 {pr(S+2)}, v{aS2}", f"ds_read_b128 {q4(AO)}, v{aAO} offset:1024"]}
        a("\n".join(tile(0, mf_tile(1), ex0, [], [], "P0") + tile(1, [], ex1, [], ["s_waitcnt lgkmcnt(0)"], "P1")))
        a("s_mov_b32 s55, 1")
        a("s_cmp_eq_u32 s53, 1")
        a("s_cbranch_scc1 K2_EXIT")
        a("s_cmp_ge_u32 s67, 2")
        a("s_cselect_b32 s66, 64, s25")
        a("s_cmp_ge_u32 s66, s53")
        a("s_waitcnt vmcnt(0)")
        a("s_cbranch_scc1 K2_NF2")
        a(f"ds_write_b32 v166, v{MG}")
        a.label("K2_NF2")
        for m in range(4): a(f"ds_read_b128 {q4(AP[m])}, v{aAP+m}")
        a("s_waitcnt lgkmcnt(0)")
        a("\n".join(p_dma()))
        a("s_cmp_lt_u32 s67, 2")
        a("s_cbranch_scc1 K2_F3")
        a("\n".join(e_dma()))
        a.label("K2_F3")
        flag_wait("B", 128)
        a(f"ds_read_b128 {q4(AE)}, v{aAE} offset:1024")
        a("s_sub_u32 s68, 1, s25")
        a("s_and_b32 s68, s68, 3")
        a("s_sub_u32 s69, 1, s68")
        a("s_lshl_b32 s67, s69, 7")
        a("s_lshl_b32 s69, s69, 10")
        a(f"v_add_u32 v{aAO}, s69, v{aAO}")
        a(f"v_add_u32 v{aAE}, s69, v{aAE}")
        a(f"v_add_u32 v{aIDX}, s67, v{aIDX}")
        a(f"v_add_u32 v{aEI}, s67, v{aEI}")
        a("s_mov_b64 exec, s[62:63]")
        a(f"v_add_u32 v{aS1}, s69, v{aS1}")
        a("s_mov_b64 exec, s[64:65]")
        a(f"v_add_u32 v{aS2}, s69, v{aS2}")
        a("s_mov_b64 exec, -1")
        a("s_waitcnt lgkmcnt(0)")
        a("\n".join(mf_tile(0)))
        a("s_nop 8")
        a("s_cmp_eq_u32 s68, 1")
        a("s_cbranch_scc1 K2_U1")
        a("s_cmp_eq_u32 s68, 2")
        a("s_cbranch_scc1 K2_U2")
        a("s_cmp_eq_u32 s68, 3")
        a("s_cbranch_scc1 K2_U3")
    a(".p2align 6")
    loop_start = len(a.lines)
    for u in range(4):
        a.label(f"K2_U{u}")
        if LATE:
            upd = []
            if u == 3:
                upd = [f"v_add_u32 v{aAO}, 4096, v{aAO}", f"v_add_u32 v{aAE}, 4096, v{aAE}", f"v_add_u32 v{aIDX}, 512, v{aIDX}", f"v_add_u32 v{aEI}, 512, v{aEI}",
                       "s_mov_b64 exec, s[62:63]", f"v_add_u32 v{aS1}, 4096, v{aS1}", "s_mov_b64 exec, s[64:65]", f"v_add_u32 v{aS2}, 4096, v{aS2}", "s_mov_b64 exec, -1"]
            mid0 = [f"ds_read_b64_tr_b16 {pr(S)}, v{aS1} offset:{u*1024}", f"ds_read_b64_tr_b16 {pr(S+2)}, v{aS2} offset:{u*1024}",
                    f"ds_read_b128 {q4(AO)}, v{aAO} offset:{(u+1)*1024}"]
            t0 = tile(0, mf_tile(1) + [SEGSUM], {}, mid0, [])
            ex1 = {}
            ex1[1] = [f"ds_read_b32 v{FV}, v{aEI} offset:{(u+1)*128}"] + [f"ds_read_b32 v{IX[k]}, v{aIDX} offset:{(u+2)*128+k*32}" for k in range(4)]
            if u == 0: ex1[1] += [f"ds_read_b32 v{EI}, v{aEI} offset:512"]
            ex1[12] = ["s_waitcnt lgkmcnt(0)", f"v_readfirstlane_b32 s66, v{FV}"]
            mid = ["s_cmp_eq_u32 s66, -1", f"s_waitcnt vmcnt({1 if u == 1 else 0})"]
            mid += [f"ds_read_b128 {q4(AP[m])}, v{aAP+m}" for m in range(4)]
            mid += [f"s_cbranch_scc0 K2_FW{u}", f"K2_FR{u}:"]
            mid += [f"ds_read_b128 {q4(AE)}, v{aAE} offset:{(u+1)*1024}"]
            if opt.get("gstamps"): mid += ["s_memrealtime s[96:97]", "s_add_u32 m0, s55, 16"]
            t1 = tile(1, [], ex1, mid, [])
            mf = mf_tile(0)
            post = ["s_add_u32 s66, s55, 2", "s_cmp_ge_u32 s66, s53", "s_waitcnt lgkmcnt(0)"]
            if opt.get("gstamps"): post += ["v_writelane_b32 v0, s96, m0"]
            post += [f"s_cbranch_scc1 K2_ND{u}"]
            if u == 2: post += [f"ds_write_b32 v{aEI}, v{MG} offset:512"]
            for k in range(4):
                post += [f"s_add_u32 m0, s57, {k*1024}", mf[k], f"buffer_load_dwordx4 {pr(IX[k])}, s[32:35], s58 idxen offen{PFL[0]} lds"]
            post += [f"K2_NR{u}:"]
            if u == 0: post += e_dma()
            post += upd
            nst = 1 + (6 if u == 0 else 0) + len(upd) + 3 + (1 if u == 3 else 0) + 1
            if nst - 1 < 12: post += [f"s_nop {12 - (nst - 1) - 1}"]
            a("\n".join(t0 + t1 + post))
        else:
            ex0 = {}
            ex0[1] = [f"ds_read_b32 v{FV}, v{aEI} offset:{(u+1)*128}"] + [f"ds_read_b32 v{IX[k]}, v{aIDX} offset:{(u+2)*128+k*32}" for k in range(4)]
            if u == 0: ex0[1] += [f"ds_read_b32 v{EI}, v{aEI} offset:512"]
            ex0[12] = ["s_waitcnt lgkmcnt(0)", f"v_readfirstlane_b32 s66, v{FV}"]
            mid = ["s_cmp_eq_u32 s66, -1", f"s_waitcnt vmcnt({1 if u == 1 else 0})"]
            mid += [f"ds_read_b128 {q4(AP[m])}, v{aAP+m}" for m in range(4)]
            mid += [f"ds_read_b128 {q4(AO)}, v{aAO} offset:{(u+1)*1024}"]
            mid += [f"s_cbranch_scc0 K2_FW{u}", f"K2_FR{u}:"]
            mid += [f"ds_read_b128 {q4(AE)}, v{aAE} offset:{(u+1)*1024}"]
            exr = ["s_cmp_ge_i32 s55, s93", "s_waitcnt lgkmcnt(0)", f"s_cbranch_scc1 K2_ND{u}"]
            if u == 2: exr += [f"ds_write_b32 v{aEI}, v{MG} offset:512"]
            exr += p_dma() + [f"K2_ND{u}:"]
            if u == 0: exr += e_dma()
            t0 = tile(0, mf_tile(1) + [SEGSUM], ex0, mid, exr, f"A{u}")
            ex1 = {}
            ex1[1] = [f"ds_read_b64_tr_b16 {pr(S)}, v{aS1} offset:{u*1024}", f"ds_read_b64_tr_b16 {pr(S+2)}, v{aS2} offset:{u*1024}"]
            mid1 = []
            if u == 3:
                mid1 = [f"v_add_u32 v{aAO}, 4096, v{aAO}", f"v_add_u32 v{aAE}, 4096, v{aAE}", f"v_add_u32 v{aIDX}, 512, v{aIDX}", f"v_add_u32 v{aEI}, 512, v{aEI}",
                        "s_mov_b64 exec, s[62:63]", f"v_add_u32 v{aS1}, 4096, v{aS1}", "s_mov_b64 exec, s[64:65]", f"v_add_u32 v{aS2}, 4096, v{aS2}", "s_mov_b64 exec, -1"]
            exr1 = ["s_waitcnt lgkmcnt(0)"]
            if opt.get("gstamps"):
                mid1 = mid1 + ["s_memrealtime s[96:97]", "s_add_u32 m0, s55, 16"]
                exr1 += ["v_writelane_b32 v0, s96, m0", "s_mov_b32 m0, s57"]
            t1 = tile(1, mf_tile(0), ex1, mid1, exr1, f"B{u}")
            a("\n".join(t0 + t1))
        a("s_add_u32 s55, s55, 1")
        a("s_cmp_ge_u32 s55, s90")
        a(f"s_cbranch_scc1 K2_TH{u}")
        if u == 3: a("s_branch K2_U0")
    loop_end = len(a.lines)
    for qtl in QTAILS: a("\n".join(qtl))
    for u in range(4):
        a.label(f"K2_TH{u}")
        a(f"s_mov_b32 s92, {(u+1)&3}")
        if u < 3: a("s_branch K2_TH")
    a.label("K2_TH")
    a("s_cmp_ge_u32 s55, s53")
    a("s_cbranch_scc1 K2_EXIT")
    a("s_add_u32 s91, s91, 1")
    a("s_cmp_eq_u32 s91, 1")
    a("s_cbranch_scc0 K2_TH_2")
    if opt.get("prio", 1): a("s_setprio 2")
    a(f"s_sub_u32 s90, s94, {T2}")
    a("s_branch K2_TH_R")
    a.label("K2_TH_2")
    a("s_cmp_eq_u32 s91, 2")
    a("s_cbranch_scc0 K2_TH_3")
    if opt.get("prio", 1): a("s_setprio 1")
    a(f"s_sub_u32 s90, s94, {T1_}")
    a("s_branch K2_TH_R")
    a.label("K2_TH_3")
    if opt.get("prio", 1): a("s_setprio 0")
    a("s_mov_b32 s90, s53")
    a.label("K2_TH_R")
    a("s_max_i32 s90, s90, 0")
    a("s_cmp_eq_u32 s92, 1")
    a("s_cbranch_scc1 K2_U1")
    a("s_cmp_lg_u32 s60, 0")
    a("s_cbranch_scc1 K2_TH_J")
    a("s_mov_b32 s60, 1")
    a("\n".join(w2_pre(L16)))
    a.label("K2_TH_J")
    a("s_cmp_eq_u32 s92, 2")
    a("s_cbranch_scc1 K2_U2")
    a("s_cmp_eq_u32 s92, 3")
    a("s_cbranch_scc1 K2_U3")
    a("s_branch K2_U0")
    if LATE:
        for u in range(4):
            a.label(f"K2_ND{u}")
            a("\n".join(mf_tile(0)))
            a(f"s_branch K2_NR{u}")
    for u in range(4):
        a.label(f"K2_FW{u}")
        a("s_add_u32 s66, s55, 1")
        a("s_cmp_ge_u32 s66, s53")
        a(f"s_cbranch_scc1 K2_FR{u}")
        a(f"ds_read_b32 v{FV}, v{aEI} offset:{(u+1)*128}")
        a("s_waitcnt lgkmcnt(0)")
        a(f"v_readfirstlane_b32 s66, v{FV}")
        a("s_nop 0")
        a("s_cmp_eq_u32 s66, -1")
        a(f"s_cbranch_scc1 K2_FR{u}")
        a("s_sleep 1")
        a(f"s_branch K2_FW{u}")
    a.label("K2_EXIT")
    a(SEGSUM)
    stp(7)
    stc(13)
    if opt.get("stamps"): a("v_writelane_b32 v0, s53, 14")
    a(f"v_lshrrev_b32 v1, 4, v{L16}")
    a("s_cmp_lg_u32 s60, 0")
    a("s_cbranch_scc1 K2_X1")
    a("\n".join(w2_pre(L16)))
    a.label("K2_X1")
    WL = 116
    def fin_loads(l16):
        srd(a, 48, "s18", "s19", 256)
        for sidx in range(NW2, 8):
            a(f"buffer_load_dwordx4 {q4(WL+4*(sidx-NW2))}, v{l16}, s[40:43], s74 offen offset:{(sidx & 3)*1024} sc1")
        a("v_lshrrev_b32 v8, 4, v1")
        a("v_lshlrev_b32 v9, 3, v8")
        a("s_lshl_b32 s68, s24, 5")
        a("buffer_load_dwordx2 v[10:11], v9, s[48:51], s68 offen")
    fin_loads(L16)
    a("v_subrev_u32 v2, s71, v1")
    a("v_and_b32 v2, 15, v2")
    a(f"v_mul_u32_u24 v2, {HSTR}, v2")
    a("v_and_b32 v3, 16, v1")
    a("v_lshl_add_u32 v2, v3, 2, v2")
    a("v_lshrrev_b32 v3, 5, v1")
    a("v_lshl_add_u32 v3, v3, 3, s57")
    a("v_add_u32 v2, v2, v3")
    a(f"s_waitcnt vmcnt({9 - NW2})")
    for k in range(8):
        a(f"v_cvt_pk_bf16_f32 v{EX+k}, v{ACC+2*k}, v{ACC+2*k+1}")
        if k & 1: a(f"ds_write_b64 v2, {pr(EX+k-1)} offset:{16*(k>>1)}")
    a("s_mov_b32 s66, 0x41800000")
    a("s_mov_b32 s67, 0x41800000")
    a(f"v_pk_mul_f32 {pr(CHK)}, {pr(CHK)}, s[66:67]")
    for k in range(0, 8, 2):
        a(f"v_pk_add_f32 {pr(ACC+2*k)}, {pr(ACC+2*k)}, {pr(ACC+2*k+2)}")
    for k in range(0, 8, 2):
        a(f"v_pk_fma_f32 {pr(CHK)}, {pr(ACC+2*k)}, 0, {pr(CHK)} op_sel_hi:[1,0,1]")
    a("v_mov_b32 v4, 0x207")
    a(f"v_add_f32 v{CHK}, v{CHK}, v{CHK+1}")
    a(f"v_mov_b32 v5, {FLAG}")
    a("v_mov_b32 v7, 1")
    a(f"v_cmpx_class_f32 vcc, v{CHK}, v4")
    a("ds_write_b32 v5, v7")
    a("s_mov_b64 exec, -1")
    a.label("K2_FIN")
    a("s_cmp_ge_u32 s24, 8")
    a("s_cbranch_scc1 K2_HEND")
    a("s_mov_b64 exec, 1")
    a("ds_add_u32 v5, v7 offset:24")
    a("s_mov_b64 exec, -1")
    a("v_and_b32 v12, 15, v1")
    a(f"v_mul_u32_u24 v2, {HSTR}, v12")
    a("v_lshl_add_u32 v2, v8, 4, v2")
    a(f"s_mov_b32 s78, {CNT}")
    a("v_lshl_add_u32 v4, v12, 2, s78")
    for mt in range(3): a(f"ds_read_b32 v{112+mt}, v4 offset:{mt*48}")
    a("v_lshl_add_u32 v13, v12, 16, v9")
    a(f"v_mov_b32 v3, {KILL:#x}")
    a("v_cmp_gt_u32 vcc, 4, v12")
    a("s_lshl_b32 s69, s2, 8")
    a("s_add_u32 s69, s69, s68")
    a("v_cndmask_b32 v14, v13, v3, vcc")
    a(f"s_add_u32 s72, s69, {12 << 16}")
    a(f"s_add_u32 s75, s69, {24 << 16}")
    a(f"s_mov_b32 s76, {NEGLN2:#x}")
    RS = 80
    a.label("K2_E1")
    a("ds_read_b32 v6, v5 offset:24")
    a("s_waitcnt lgkmcnt(0)")
    a("v_readfirstlane_b32 s66, v6")
    a("s_nop 0")
    a("s_cmp_ge_u32 s66, 8")
    a("s_cbranch_scc1 K2_E2")
    a("s_sleep 2")
    a("s_branch K2_E1")
    a.label("K2_E2")
    HB = 16
    OD = 92
    def wfrag(sidx): return WP + 4*sidx if sidx < NW2 else WL + 4*(sidx - NW2)
    def hoff(mt, sidx): return (4*mt + (sidx >> 1))*4096 + (sidx & 1)*64
    order = [(sidx, mt) for sidx in range(8) for mt in range(2)]
    for n, (sidx, mt) in enumerate(order[:14]):
        a(f"ds_read_b128 {q4(HB+4*n)}, v2 offset:{hoff(mt, sidx)}")
    for n, (sidx, mt) in enumerate(order):
        issued = min(16, 14 + n)
        wv = f" vmcnt({8 - sidx})" if (sidx >= NW2 and mt == 0) else ""
        a(f"s_waitcnt{wv} lgkmcnt({issued - n - 1})")
        a(f"v_mfma_f32_16x16x32_bf16 {q4(OD+4*mt)}, {q4(wfrag(sidx))}, {q4(HB+4*n)}, {'0' if sidx == 0 else q4(OD+4*mt)}")
        if n < 2: a(f"ds_read_b128 {q4(HB+4*(14+n))}, v2 offset:{hoff(order[14+n][1], order[14+n][0])}")
    a("s_waitcnt vmcnt(0)")
    a("v_lshlrev_b32 v104, 16, v10")
    a("v_and_b32 v105, 0xffff0000, v10")
    a("v_lshlrev_b32 v106, 16, v11")
    a("v_and_b32 v107, 0xffff0000, v11")
    for mt in range(3): a(f"v_cvt_f32_u32 v{108+2*mt}, v{112+mt}" if mt < 2 else f"v_cvt_f32_u32 v112, v114")
    for mt in range(3):
        for i in range(2):
            a(f"v_pk_mul_f32 {pr(RS+4*mt+2*i)}, {pr(104+2*i)}, {pr(108+2*mt)} op_sel_hi:[1,0]")
    def fin_tile(mt):
        for i in range(4):
            a(f"v_fma_f32 v{RS+4*mt+i}, v{OD+4*mt+i}, s76, v{RS+4*mt+i}")
        a(f"v_cvt_pk_bf16_f32 v{132+2*mt}, v{RS+4*mt}, v{RS+4*mt+1}")
        a(f"v_cvt_pk_bf16_f32 v{133+2*mt}, v{RS+4*mt+2}, v{RS+4*mt+3}")
        a(f"buffer_store_dwordx2 {pr(132+2*mt)}, v{13 if mt == 0 else 14}, s[44:47], s{(69,72,75)[mt]} offen")
    def merge(mt):
        for i in range(4):
            a(f"v_add_f32_dpp v{OD+4*mt+i}, v{OD+4*mt+4+i}, v{OD+4*mt+i} row_shr:12 row_mask:0xf bank_mask:0xf bound_ctrl:0")
    merge(0)
    fin_tile(0)
    stp(8)
    a("s_barrier")
    stp(9)
    for sidx in range(8):
        a(f"ds_read_b128 {q4(HB+4*sidx)}, v2 offset:{hoff(2, sidx)}")
    a("ds_read_b32 v6, v5")
    for sidx in range(8):
        a(f"s_waitcnt lgkmcnt({8 - sidx})")
        a(f"v_mfma_f32_16x16x32_bf16 {q4(OD+8)}, {q4(wfrag(sidx))}, {q4(HB+4*sidx)}, {'0' if sidx == 0 else q4(OD+8)}")
    a("s_waitcnt lgkmcnt(0)")
    a("v_readfirstlane_b32 s82, v6")
    a("s_nop 1")
    a("s_andn2_b32 s82, s82, s70")
    a("s_cmp_lg_u32 s82, 0")
    a("s_cbranch_scc1 K2_REDO")
    a("s_nop 0")
    merge(1)
    fin_tile(2)
    fin_tile(1)
    stp(10)
    if opt.get("stamps"): a("s_waitcnt vmcnt(0)")
    stp(11)
    a.label("K2_END2")
    stamp_out(a, opt, 22, 0xF80000, 24, 0, tmpv=2)
    if opt.get('gstamps'): stamp_out2(a, opt, 22, 0x1000000, 24, 0, tmpv=2)
    a.label("K2_END")
    a("s_endpgm")
    a.label("K2_HEND")
    a("s_waitcnt lgkmcnt(0)")
    stp(8)
    a("s_barrier")
    a("ds_read_b32 v6, v5")
    a("s_waitcnt lgkmcnt(0)")
    a("v_readfirstlane_b32 s82, v6")
    a("s_nop 0")
    a("s_andn2_b32 s82, s82, s70")
    a("s_cmp_lg_u32 s82, 0")
    a("s_cbranch_scc1 K2_REDO")
    a("s_branch K2_END2")
    a.label("K2_CX")
    a("s_mov_b32 s81, 2")
    count([5, 6, 7])
    decode([5, 6, 7])
    a("v_cmpx_eq_u32 vcc, -2, v23")
    a("ds_write_b32 v111, v114")
    a("s_mov_b64 exec, -1")
    a("s_branch K2_C1")
    a.label("K2_SX")
    for k in (5, 6, 7): a(f"ds_bpermute_b32 v{SB+k}, v{RA+k}, v108")
    a("s_waitcnt lgkmcnt(0)")
    scatter([5, 6, 7])
    a("s_branch K2_S1")
    a.label("K2_REDO")
    a("s_setprio 0")
    a("s_mov_b32 s70, -1")
    a("s_lshl_b32 s66, s24, 6")
    a("v_add_u32 v0, s66, v1")
    a(f"v_mov_b32 v106, {AW}")
    for i in range(4): a(f"v_mov_b32 v{108+i}, 0")
    a("ds_write_b128 v106, v[108:111]")
    a("ds_write_b128 v106, v[108:111] offset:16")
    a("s_waitcnt vmcnt(0) lgkmcnt(0)")
    a("s_barrier")
    a("s_branch K2_TOP")
    a.label("K2_BAD")
    a("v_mov_b32 v108, -1")
    a("v_mov_b32 v109, -1")
    a("ds_write_b64 v111, v[108:109] offset:16")
    a("s_waitcnt vmcnt(0) lgkmcnt(0)")
    a("s_barrier")
    a.label("K2_SLOW")
    a("s_setprio 0")
    a("s_mov_b32 s70, -1")

    a("s_waitcnt vmcnt(0) lgkmcnt(0)")
    a("s_barrier")
    a("s_lshl_b32 s66, s24, 10")
    a(f"s_add_u32 s66, s66, {OH}")
    a("v_lshl_add_u32 v2, v1, 4, s66")
    for i in range(4): a(f"v_mov_b32 v{4+i}, 0")
    for i in range(4): a(f"ds_write_b128 v2, v[4:7] offset:{i*12288}")
    a("v_lshlrev_b32 v12, 2, v1")
    a(f"v_add_u32 v3, {CNT}, v12")
    a("ds_write_b32 v3, v4")
    srd(a, 84, "s8", "s9", E * 4)
    srd(a, 88, "s10", "s11", E * 4)
    a("v_and_b32 v8, 31, v1")
    a("v_lshlrev_b32 v8, 4, v8")
    a("v_lshrrev_b32 v9, 5, v1")
    a("v_lshl_add_u32 v8, v9, 10, v8")
    a("s_lshl_b32 s72, s25, 11")
    a(f"s_add_u32 s66, s72, {WCF_OFF - CELL_OFF}")
    a("buffer_load_dwordx4 v[16:19], v8, s[40:43], s66 offen sc1")
    a("buffer_load_dwordx4 v[20:23], v8, s[40:43], s66 offen offset:512 sc1")
    a(f"s_add_u32 s72, s72, {EIM + 8192}")
    a("v_add_u32 v8, s72, v8")
    a("v_lshlrev_b32 v7, 4, v1")
    a("\n".join(w2_pre(7)))
    srd_ws(a, 92, 22, P_OFF, N * 512)
    a("v_lshlrev_b32 v10, 1, v1")
    a("v_add_u32 v10, s58, v10")
    a("v_lshlrev_b32 v11, 1, v10")
    a(f"v_add_u32 v11, {OH}, v11")
    a("v_mov_b32 v13, 1")
    a("s_waitcnt vmcnt(0)")
    for k in range(8):
        a(f"v_lshlrev_b32 v{24+2*k}, 16, v{16+k}")
        a(f"v_and_b32 v{25+2*k}, 0xffff0000, v{16+k}")
    a("s_waitcnt lgkmcnt(0)")
    a("s_barrier")
    a("s_mov_b32 s66, s26")
    a.label("K2_SL_BLK")
    a("s_lshl_b32 s67, s66, 8")
    a("buffer_load_dword v40, v12, s[88:91], s67 offen")
    a("buffer_load_dword v41, v12, s[84:87], s67 offen")
    a("s_waitcnt vmcnt(0)")
    a("v_and_b32 v42, 255, v40")
    a("v_cmp_eq_u32 vcc, s2, v42")
    a("s_nop 1")
    a("s_mov_b64 s[68:69], vcc")
    a.label("K2_SL_E")
    a("s_cmp_eq_u64 s[68:69], 0")
    a("s_cbranch_scc1 K2_SL_NB")
    a("s_ff1_i32_b64 s72, s[68:69]")
    a("s_bitset0_b64 s[68:69], s72")
    a("v_readlane_b32 s52, v40, s72")
    a("v_readlane_b32 s53, v41, s72")
    a("s_lshl_b32 s75, s66, 6")
    a("s_add_u32 s75, s75, s72")
    a("s_lshl_b32 s75, s75, 5")
    a("s_load_dwordx8 s[76:83], s[6:7], s75")
    a("s_lshl_b32 s53, s53, 9")
    a("s_lshr_b32 s52, s52, 8")
    a("s_cmp_ge_u32 s52, 16")
    a("s_cselect_b32 s75, 16384, 0")
    a("s_cmp_ge_u32 s52, 28")
    a("s_cselect_b32 s75, 32768, s75")
    a("s_bfe_u32 s55, s52, 0x10003")
    a("s_lshl_b32 s55, s55, 9")
    a("s_add_u32 s75, s75, s55")
    a("s_and_b32 s55, s52, 7")
    a("s_lshl_b32 s55, s55, 1")
    a("s_add_u32 s75, s75, s55")
    a("v_add_u32 v45, s75, v8")
    a("buffer_load_ushort v43, v10, s[92:95], s53 offen sc1")
    a("ds_read_u16 v44, v45")
    a("s_waitcnt vmcnt(0) lgkmcnt(0)")
    a("v_lshlrev_b32 v43, 16, v43")
    a("v_lshlrev_b32 v44, 16, v44")
    a("v_add_f32 v43, v43, v44")
    for k in range(8):
        a(f"s_lshl_b32 s53, s{76+k}, 16")
        a(f"v_fmac_f32 v43, s53, v{24+2*k}")
        a(f"s_and_b32 s53, s{76+k}, 0xffff0000")
        a(f"v_fmac_f32 v43, s53, v{25+2*k}")
    a("v_exp_f32 v44, v43")
    a("s_lshl_b32 s53, s52, 10")
    a("v_add_f32 v44, 1.0, v44")
    a("v_rcp_f32 v44, v44")
    a("v_add_u32 v45, s53, v11")
    a("v_mul_f32 v43, v43, v44")
    a("ds_add_f32 v45, v43")
    a("s_cmp_lg_u32 s25, 0")
    a("s_cbranch_scc1 K2_SL_E")
    a("s_lshl_b32 s53, s52, 2")
    a(f"s_add_u32 s53, s53, {CNT}")
    a("v_mov_b32 v45, s53")
    a("s_mov_b64 exec, 1")
    a("ds_add_u32 v45, v13")
    a("s_mov_b64 exec, -1")
    a("s_branch K2_SL_E")
    a.label("K2_SL_NB")
    a("s_add_u32 s66, s66, 3")
    a(f"s_cmp_lt_u32 s66, {E // 64}")
    a("s_cbranch_scc1 K2_SL_BLK")
    a("s_waitcnt lgkmcnt(0)")
    a("s_barrier")
    a("v_and_b32 v2, 31, v1")
    a("v_lshrrev_b32 v3, 5, v1")
    a("s_mov_b32 s66, 0")
    a.label("K2_SL_CV")
    a("v_add_u32 v4, s66, v3")
    a("v_add_u32 v5, s71, v4")
    a("s_cmp_lt_u32 s66, 4")
    a("s_cselect_b32 s67, s26, 0")
    a("s_cmp_lg_u32 s67, 0")
    a("s_cbranch_scc0 K2_SL_NZ")
    a("v_mov_b32 v5, 47")
    a.label("K2_SL_NZ")
    a("v_lshlrev_b32 v5, 10, v5")
    a("v_lshl_add_u32 v5, v2, 3, v5")
    a("s_lshl_b32 s67, s58, 1")
    a(f"s_add_u32 s67, s67, {OH}")
    a("v_add_u32 v5, s67, v5")
    a("ds_read_b64 v[6:7], v5")
    a(f"v_mul_u32_u24 v4, {HSTR}, v4")
    a("v_lshl_add_u32 v4, v2, 2, v4")
    a("v_add_u32 v4, s57, v4")
    a("s_waitcnt lgkmcnt(0)")
    a("v_cvt_pk_bf16_f32 v6, v6, v7")
    a("ds_write_b32 v4, v6")
    a("s_add_u32 s66, s66, 2")
    a("s_cmp_lt_u32 s66, 16")
    a("s_cbranch_scc1 K2_SL_CV")
    a("v_lshlrev_b32 v7, 4, v1")
    fin_loads(7)
    a(f"v_mov_b32 v5, {FLAG}")
    a("v_mov_b32 v7, 1")
    a("s_branch K2_FIN")
    a.loop = (loop_start, loop_end)
    return a, NV2, (102 if opt.get('stamps') else 96)
```

```python
from asmlib import *

N = 10000; E = 320000
import os
WSB = int(os.environ.get('WSB', '0')) << 20
P_OFF = WSB + 4096
CELL_OFF = WSB + 0xA00000
W2F_OFF = WSB + 0xE00000
W1BF_OFF = WSB + 0xE10000
WCF_OFF = WSB + 0xE20000
FRAG_BYTES = 0x22000
NSORT = 128
CHUNK = 2500
GROWS = 64
NGEMM = 157
NSORTWG = 64
NPREP = 17
K1_WGS = NGEMM + NSORTWG + NPREP
K1_BLOCK = 1024
K1_LDS = 65536 + GROWS * 256 + 256
NEGLOG2E = 0xBFB8AA3B
OVF = 0xFFFFFFFE

def srd(a, r, lo, hi, size):
    a(f"s_mov_b32 s{r}, {lo}")
    a(f"s_mov_b32 s{r+1}, {hi}")
    a(f"s_mov_b32 s{r+2}, {size}")
    a(f"s_mov_b32 s{r+3}, 0x00020000")

def srd_ws(a, r, wslo, off, size):
    a(f"s_add_u32 s{r}, s{wslo}, {off}")
    a(f"s_addc_u32 s{r+1}, s{wslo+1}, 0")
    a(f"s_mov_b32 s{r+2}, {size}")
    a(f"s_mov_b32 s{r+3}, 0x00020000")

def stamp(a, opt, idx, vreg, sreg=96):
    if not opt.get("stamps"): return
    a(f"s_memrealtime s[{sreg}:{sreg+1}]")
    a("s_waitcnt lgkmcnt(0)")
    a(f"v_writelane_b32 v{vreg}, s{sreg}, {idx}")
def stamp_out(a, opt, wslo, off, wavereg, vreg, sreg=96, tmpv=151):
    if not opt.get("stamps"): return
    a(f"s_add_u32 s{sreg}, s{wslo}, {off}")
    a(f"s_addc_u32 s{sreg+1}, s{wslo+1}, 0")
    a(f"s_mov_b32 s{sreg+2}, 0x80000")
    a(f"s_mov_b32 s{sreg+3}, 0x00020000")
    a(f"s_lshl_b32 s100, s2, 4")
    a(f"s_add_u32 s100, s100, s{wavereg}")
    a(f"s_lshl_b32 s100, s100, 6")
    a(f"v_mbcnt_lo_u32_b32 v{tmpv}, -1, 0")
    a(f"v_lshlrev_b32 v{tmpv}, 2, v{tmpv}")
    a("s_mov_b64 exec, 0xffff")
    a(f"buffer_store_dword v{vreg}, v{tmpv}, s[{sreg}:{sreg+3}], s100 offen")
    a("s_mov_b64 exec, -1")
def stamp_out2(a, opt, wslo, off, wavereg, vreg, sreg=96, tmpv=151):
    a(f"s_add_u32 s{sreg}, s{wslo}, {off}")
    a(f"s_addc_u32 s{sreg+1}, s{wslo+1}, 0")
    a(f"s_lshl_b32 s100, s100, 1")
    a("s_mov_b64 exec, 0xffffffff")
    a(f"buffer_store_dword v{vreg}, v{tmpv}, s[{sreg}:{sreg+3}], s100 offen")
    a("s_mov_b64 exec, -1")

def gen_k1(opt=None):
    opt = opt or {}
    SV = 120
    SFD = {0: "", 1: " sc1", 2: " sc0 sc1", 3: " nt", 4: " nt sc1"}
    SF = SFD[opt.get("sf", 1)]
    SFG = SFD[opt.get("sfg", 1)]
    NT = " nt" if opt.get("knt", 1) else ""
    NTX = " nt" if opt.get("kntx", 1) else ""
    a = Asm()
    a.label("mpnn_pre_kernel")
    a(f"s_cmp_ge_u32 s2, {K1_WGS}")
    a("s_cbranch_scc1 K1_END")
    if opt.get("stamps"): a(f"v_mov_b32 v{SV}, 0")
    stamp(a, opt, 0, SV)
    a("s_load_dwordx16 s[4:19], s[0:1], 0")
    a("s_load_dwordx2 s[20:21], s[0:1], 80")
    a("v_lshrrev_b32 v1, 6, v0")
    a("v_and_b32 v2, 63, v0")
    a("v_readfirstlane_b32 s22, v1")
    a(f"s_cmp_ge_u32 s2, {NGEMM}")
    a("s_cbranch_scc1 K1_SORT")
    XI = 65536
    SW = XI + GROWS * 256
    a("v_lshrrev_b32 v10, 4, v0")
    a("v_xor_b32 v11, v10, v2")
    a("v_and_b32 v11, 15, v11")
    a("v_lshlrev_b32 v11, 4, v11")
    a("v_lshl_add_u32 v8, v10, 8, v11")
    a("v_lshrrev_b32 v4, 4, v2")
    a("v_lshlrev_b32 v7, 2, v4")
    a("v_xor_b32 v7, v7, v2")
    a("v_and_b32 v7, 15, v7")
    a("v_lshlrev_b32 v7, 4, v7")
    a("v_lshl_add_u32 v3, v4, 9, v7")
    a(f"v_mov_b32 v14, {SW}")
    a("v_mov_b32 v15, 0")
    a("ds_write_b32 v14, v15")
    a("s_and_b32 s44, s22, 7")
    a("s_lshl_b32 s45, s44, 13")
    a("s_lshr_b32 s46, s22, 3")
    a("s_lshl_b32 s47, s46, 8")
    a("s_add_u32 s45, s45, s47")
    a("s_lshl_b32 s47, s22, 12")
    a(f"s_mul_i32 s48, s2, {GROWS*256}")
    a("s_lshl_b32 s49, s22, 10")
    a(f"s_add_u32 m0, s49, {XI}")
    a("s_waitcnt lgkmcnt(0)")
    srd(a, 32, "s4", "s5", N * 256)
    srd(a, 28, "s12", "s13", 272 * 512)
    if opt.get("wwu", 1):
        a("s_cmp_lg_u32 s22, 0")
        a("s_cbranch_scc1 K1_NWU")
        a("s_bfe_u32 s50, s2, 0x40003")
        a("s_lshl_b32 s50, s50, 12")
        a("v_and_b32 v12, 31, v2")
        a("v_lshlrev_b32 v12, 7, v12")
        a("buffer_load_dword v31, v12, s[28:31], s50 offen")
        a.label("K1_NWU")
    a(f"buffer_load_dwordx4 v8, s[32:35], s48 offen{NTX} lds")
    a("s_mov_b32 m0, s47")
    a("s_cmp_lt_u32 s22, 8")
    a("s_barrier")
    a("s_cbranch_scc1 K1_GA")
    if opt.get("gb", 1) & 2: a("s_barrier")
    a.label("K1_GA")
    for k in range(4):
        a(f"buffer_load_dwordx4 v3, s[28:31], s45 offen offset:{k*1024} lds")
        a("s_add_u32 s45, s45, 1024")
    a("s_cmp_lt_u32 s22, 8")
    a("s_cbranch_scc1 K1_GC")
    a("s_waitcnt vmcnt(4)")
    a("s_barrier")
    a("v_mov_b32 v15, 1")
    a("s_waitcnt vmcnt(0)")
    a("s_mov_b64 exec, 1")
    a("ds_add_u32 v14, v15")
    a("s_endpgm")
    a.label("K1_GC")
    if opt.get("gb", 1) & 2: a("s_barrier")
    a("v_lshrrev_b32 v5, 5, v2")
    a("v_and_b32 v6, 31, v2")
    a("s_bfe_u32 s26, s22, 0x10001")
    a("s_lshr_b32 s27, s22, 2")
    a("s_and_b32 s50, s22, 1")
    a("s_lshl_b32 s50, s50, 7")
    srd_ws(a, 36, 20, P_OFF, (N + 1) * 512)
    a("v_and_b32 v17, 15, v2")
    a("v_xor_b32 v17, v17, v5")
    a("s_lshl_b32 s51, s26, 13")
    a(f"s_add_u32 s51, s51, {XI}")
    a("v_lshl_add_u32 v17, v17, 4, s51")
    a("v_lshl_add_u32 v16, v6, 8, v17")
    for sidx in range(1, 8):
        a(f"v_xor_b32 v{16+sidx}, {sidx << 5}, v16")
    a("v_bfe_u32 v26, v2, 2, 2")
    a("v_lshl_add_u32 v27, v5, 3, v26")
    a("v_and_b32 v28, 3, v2")
    a("v_lshl_add_u32 v28, v28, 3, s50")
    a("v_bfe_u32 v29, v2, 4, 1")
    a("v_lshl_add_u32 v28, v29, 5, v28")
    a("v_lshlrev_b32 v26, 6, v26")
    a("v_xor_b32 v28, v28, v26")
    a("s_lshl_b32 s51, s27, 15")
    a("v_add_u32 v28, s51, v28")
    a("v_lshl_add_u32 v24, v27, 8, v28")
    a("v_xor_b32 v25, 64, v24")
    a("s_lshl_b32 s51, s27, 8")
    a("s_add_u32 s51, s51, s50")
    a("v_lshl_add_u32 v13, v6, 2, s51")
    a("v_lshl_add_u32 v13, v5, 11, v13")
    a(f"s_mul_i32 s52, s2, {GROWS*512}")
    a("s_lshl_b32 s51, s26, 14")
    a("s_add_u32 s52, s52, s51")
    a("s_add_u32 s53, s52, 4096")
    a("s_add_u32 s54, s52, 8192")
    a("s_add_u32 s55, s52, 12288")
    a(f"s_mov_b32 s56, {NEGLOG2E:#x}")
    a(f"s_mov_b32 s57, {NEGLOG2E:#x}")
    stamp(a, opt, 1, SV)
    a("s_waitcnt vmcnt(0)")
    stamp(a, opt, 2, SV)
    a("s_barrier")
    stamp(a, opt, 6, SV)
    a("s_cmp_eq_u32 s27, 0")
    a("s_cbranch_scc1 K1_GO")
    a.label("K1_GW")
    a("ds_read_b32 v15, v14")
    a("s_waitcnt lgkmcnt(0)")
    a("v_readfirstlane_b32 s51, v15")
    a("s_nop 0")
    a("s_cmp_lt_u32 s51, 8")
    a("s_cbranch_scc1 K1_GW")
    a.label("K1_GO")
    stamp(a, opt, 8, SV)
    AF = 32; BF = 48; DA = 80; DB = 96
    def reads(sidx):
        st = sidx & 3
        a(f"ds_read_b128 {v(AF+4*st,4)}, v{16+sidx}")
        for X in range(2):
            for e in range(2):
                a(f"ds_read_b64_tr_b16 {v(BF+8*st+4*X+2*e,2)}, v{24+X} offset:{sidx*4096+e*1024}")
    def mm(sidx):
        st = sidx & 3
        ca = "0" if sidx == 0 else v(DA, 16)
        cb = "0" if sidx == 0 else v(DB, 16)
        a(f"v_mfma_f32_32x32x16_bf16 {v(DA,16)}, {v(AF+4*st,4)}, {v(BF+8*st,4)}, {ca}")
        a(f"v_mfma_f32_32x32x16_bf16 {v(DB,16)}, {v(AF+4*st,4)}, {v(BF+8*st+4,4)}, {cb}")
    reads(0); reads(1); reads(2)
    for sidx in range(8):
        a(f"s_waitcnt lgkmcnt({5*min(2, 7-sidx)})"); mm(sidx)
        if sidx + 3 < 8: reads(sidx + 3)
    a("s_nop 10")
    stamp(a, opt, 3, SV)
    for r in range(0, 16, 2):
        a(f"v_pk_mul_f32 {v(DA+r,2)}, {v(DA+r,2)}, s[56:57]")
        a(f"v_pk_mul_f32 {v(DB+r,2)}, {v(DB+r,2)}, s[56:57]")
        for rr in (r, r + 1):
            a(f"v_cvt_pk_bf16_f32 v{AF+rr}, v{DA+rr}, v{DB+rr}")
            a(f"buffer_store_dword v{AF+rr}, v13, s[36:39], s{52 + (rr >> 2)} offen offset:{(rr & 3)*512}{SFG}")
    stamp(a, opt, 4, SV)
    if opt.get("stamps"): a("s_waitcnt vmcnt(0)")
    stamp(a, opt, 5, SV)
    stamp_out(a, opt, 20, 0xF00000, 22, SV, tmpv=121)
    a("s_endpgm")
    a.label("K1_SORT")
    CNT = 32768
    HB = 36864
    a(f"s_sub_u32 s3, s2, {NGEMM}")
    a(f"s_cmp_ge_u32 s3, {NSORTWG}")
    a("s_cbranch_scc1 K1_HELP")
    a("s_and_b32 s24, s3, 7")
    a("s_lshl_b32 s24, s24, 4")
    a("s_lshr_b32 s25, s3, 3")
    a("s_lshl_b32 s25, s25, 1")
    a("s_add_u32 s24, s24, s25")
    a("s_lshr_b32 s25, s22, 3")
    a("s_add_u32 s3, s24, s25")
    a(f"s_mul_i32 s54, s25, {HB}")
    a("v_mov_b32 v47, v0")
    a("v_and_b32 v0, 511, v0")
    a("v_lshlrev_b32 v3, 2, v0")
    a("v_add_u32 v4, 4096, v3")
    a("v_add_u32 v5, 8192, v3")
    a(f"s_mul_i32 s23, s3, {CHUNK*4}")
    a("s_waitcnt lgkmcnt(0)")
    srd(a, 32, "s10", "s11", E * 4)
    for i in range(5):
        a(f"buffer_load_dword v{10+i}, v{3 + (i >> 1)}, s[32:35], s23 offen offset:{(i & 1)*2048}{NT}")
    srd(a, 28, "s8", "s9", E * 4)
    if opt.get("sb", 1): a("s_barrier")
    for i in range(5):
        a(f"buffer_load_dword v{16+i}, v{3 + (i >> 1)}, s[28:31], s23 offen offset:{(i & 1)*2048}{NT}")
    a("v_mov_b32 v24, -1\nv_mov_b32 v25, -1\nv_mov_b32 v26, -1\nv_mov_b32 v27, -1")
    a("v_mov_b32 v28, 0")
    a("v_lshl_add_u32 v6, v0, 4, s54")
    a("v_add_u32 v7, s54, v3")
    a(f"ds_write_b32 v7, v28 offset:{CNT}")
    for i in range(4):
        a(f"ds_write_b128 v6, v[24:27] offset:{i*8192}")
    srd_ws(a, 36, 20, CELL_OFF, 256 * 128 * 128)
    a("v_mov_b32 v29, 1")
    a(f"v_mov_b32 v30, {OVF - (1 << 32)}")
    a("v_lshlrev_b32 v31, 6, v0")
    a("v_lshrrev_b32 v44, 3, v47")
    a("v_and_b32 v45, 3, v47")
    a("v_lshlrev_b32 v45, 1, v45")
    a("v_xor_b32 v45, v45, v44")
    a("v_and_b32 v45, 7, v45")
    a("v_lshlrev_b32 v45, 4, v45")
    a("v_lshl_add_u32 v45, v44, 7, v45")
    a("v_bfe_u32 v43, v47, 2, 1")
    a(f"v_mul_u32_u24 v43, {HB}, v43")
    a("v_add_u32 v45, v45, v43")
    a("v_xor_b32 v42, 16, v45")
    a("v_lshl_add_u32 v43, v44, 2, v43")
    a("v_and_b32 v46, 7, v47")
    a("v_lshlrev_b32 v46, 4, v46")
    a("v_lshl_add_u32 v46, v44, 13, v46")
    a("s_lshr_b32 s24, s3, 1")
    a("s_lshl_b32 s24, s24, 7")
    for i in range(1, 4):
        a(f"s_add_u32 s{24+i}, s24, {i << 20}")
    for i in range(5):
        a(f"v_add_u32 v{84+i}, {i*32768}, v31")
    a(f"v_cmp_gt_u32 vcc, {CHUNK - 2048}, v0")
    a("s_waitcnt lgkmcnt(0)")
    a("s_mov_b64 s[52:53], vcc")
    stamp(a, opt, 1, SV)
    a("s_barrier")
    if opt.get("stamps"): a("s_waitcnt vmcnt(5)")
    stamp(a, opt, 2, SV)
    for i in range(5):
        a(f"s_waitcnt vmcnt({9 - i})")
        a(f"v_and_b32 v{32+i}, 255, v{10+i}")
        a(f"v_lshl_add_u32 v{37+i}, v{32+i}, 2, s54")
        if i == 4: a("s_mov_b64 exec, s[52:53]")
        a(f"ds_add_rtn_u32 v{60+i}, v{37+i}, v29 offset:{CNT}")
        if i == 4: a("s_mov_b64 exec, -1")
    for i in range(5):
        a(f"s_waitcnt vmcnt({4 - i})")
        a(f"v_lshrrev_b32 v{10+i}, 8, v{10+i}")
        a(f"v_lshl_or_b32 v{10+i}, v{16+i}, 18, v{10+i}")
        a(f"v_or_b32 v{10+i}, v{10+i}, v{84+i}")
        a(f"v_and_b32 v{16+i}, 28, v{37+i}")
        a(f"v_lshlrev_b32 v{32+i}, 5, v{32+i}")
    for i in range(5):
        a("s_waitcnt lgkmcnt(4)")
        a(f"v_cmp_lt_u32 vcc, 30, v{60+i}")
        a(f"v_min_u32 v{60+i}, 31, v{60+i}")
        a(f"v_lshl_or_b32 v{60+i}, v{60+i}, 5, v{60+i}")
        a(f"v_bfe_u32 v{60+i}, v{60+i}, 2, 5")
        a(f"v_xad_u32 v{60+i}, v{60+i}, v{16+i}, v{32+i}")
        a(f"v_cndmask_b32 v{10+i}, v{10+i}, v30, vcc")
        a(f"v_lshl_add_u32 v{60+i}, v{60+i}, 2, s54")
        if i == 4: a("s_mov_b64 exec, s[52:53]")
        a(f"ds_write_b32 v{60+i}, v{10+i}")
        if i == 4: a("s_mov_b64 exec, -1")
    a("s_waitcnt lgkmcnt(0)")
    a("s_barrier")
    stamp(a, opt, 3, SV)
    for i in range(2):
        a(f"ds_read_b128 {v(64+4*i,4)}, v45 offset:{i*16384}")
    for i in range(2):
        a(f"ds_read_b32 v{80+i}, v43 offset:{CNT + i*512}")
        a(f"ds_read_b128 {v(72+4*i,4)}, v42 offset:{i*16384}")
    for i in range(2):
        a(f"s_waitcnt lgkmcnt({5 - i})")
        a(f"buffer_store_dwordx4 {v(64+4*i,4)}, v46, s[36:39], s{24+i} offen{SF}")
    for i in range(2):
        a(f"s_waitcnt lgkmcnt({2 - 2*i})")
        a(f"v_cmp_lt_u32 vcc, 15, v{80+i}")
        a("s_and_saveexec_b64 s[52:53], vcc")
        a(f"s_cbranch_execz K1_NB{i}")
        a(f"buffer_store_dwordx4 {v(72+4*i,4)}, v46, s[36:39], s{26+i} offen{SF}")
        a.label(f"K1_NB{i}")
        a("s_mov_b64 exec, -1")
    stamp(a, opt, 4, SV)
    if opt.get("stamps"): a("s_waitcnt vmcnt(0)")
    stamp(a, opt, 5, SV)
    stamp_out(a, opt, 20, 0xF00000, 22, SV, tmpv=121)
    a("s_endpgm")
    a.label("K1_HELP")
    a(f"s_sub_u32 s3, s3, {NSORTWG}")
    a("s_waitcnt lgkmcnt(0)")
    srd_ws(a, 40, 20, W2F_OFF, FRAG_BYTES)
    a("v_lshlrev_b32 v6, 4, v2")
    a("s_cmp_lt_u32 s22, 8")
    a("s_cbranch_scc1 K1_H8")
    a("s_cmp_lt_u32 s22, 10")
    a("s_cbranch_scc0 K1_END")
    a("s_getpc_b64 s[60:61]")
    a.label("K1_PC")
    a("s_add_u32 s60, s60, mpnn_main_kernel-K1_PC")
    a("s_addc_u32 s61, s61, 0")
    a("s_mov_b32 s62, K2_REDO-mpnn_main_kernel")
    a("s_mov_b32 s63, 0x00020000")
    a("v_subrev_u32 v7, 512, v0")
    a("v_lshlrev_b32 v7, 7, v7")
    a("buffer_load_dword v22, v7, s[60:63], 0 offen")
    a("s_endpgm")
    a.label("K1_H8")
    a("s_lshl_b32 s3, s3, 3")
    a("s_add_u32 s3, s3, s22")
    a("s_mov_b32 s58, s3")
    a("s_bfe_u32 s26, s3, 0x30003")
    a("s_and_b32 s27, s3, 7")
    a("s_cmp_ge_u32 s3, 128")
    a("s_cselect_b32 s26, s27, s26")
    a("s_cselect_b32 s27, 8, s27")
    a("s_cmp_ge_u32 s3, 64")
    a("s_cbranch_scc1 K1_PREP1")
    srd(a, 44, "s16", "s17", 256 * 256)
    a("v_and_b32 v40, 15, v2")
    a("v_lshlrev_b32 v40, 1, v40")
    a("v_lshrrev_b32 v41, 4, v2")
    a("v_lshl_add_u32 v40, v41, 10, v40")
    a("v_add_u32 v41, 8192, v40")
    a("s_bfe_u32 s24, s3, 0x20001")
    a("s_lshl_b32 s24, s24, 14")
    a("s_and_b32 s25, s3, 1")
    a("s_lshl_b32 s25, s25, 12")
    a("s_add_u32 s24, s24, s25")
    a("s_lshr_b32 s25, s3, 3")
    a("s_lshl_b32 s25, s25, 5")
    a("s_add_u32 s24, s24, s25")
    for e in range(8):
        a(f"buffer_load_ushort v{48+e}, v{40 + (e & 1)}, s[44:47], s24 offen offset:{(e >> 1)*256}")
    a("s_branch K1_PFIN")
    a.label("K1_PREP1")
    srd(a, 44, "s12", "s13", 272 * 512)
    a("v_and_b32 v42, 1, v2")
    a("v_lshlrev_b32 v42, 6, v42")
    a("v_and_b32 v43, 30, v2")
    a("v_add_u32 v42, v42, v43")
    a("v_lshrrev_b32 v43, 5, v2")
    a("v_lshl_add_u32 v42, v43, 12, v42")
    a("s_lshr_b32 s24, s26, 1")
    a("s_lshl_b32 s24, s24, 7")
    a("s_and_b32 s25, s26, 1")
    a("s_lshl_b32 s25, s25, 5")
    a("s_add_u32 s24, s24, s25")
    a("s_lshl_b32 s27, s27, 13")
    a("s_add_u32 s24, s24, s27")
    a(f"s_add_u32 s24, s24, {128*512}")
    for e in range(8):
        a(f"buffer_load_ushort v{48+e}, v42, s[44:47], s24 offen offset:{e*512}")
    a.label("K1_PFIN")
    a("s_lshl_b32 s24, s58, 10")
    a("s_cmp_ge_u32 s58, 128")
    a("s_waitcnt vmcnt(0)")
    a("s_cbranch_scc1 K1_FINC")
    for e in range(4):
        a(f"v_lshl_or_b32 v{56+e}, v{49+2*e}, 16, v{48+2*e}")
    a("buffer_store_dwordx4 v[56:59], v6, s[40:43], s24 offen")
    a("s_endpgm")
    a.label("K1_FINC")
    a(f"s_mov_b32 s25, {NEGLOG2E:#x}")
    for e in range(8):
        a(f"v_lshlrev_b32 v{48+e}, 16, v{48+e}")
        a(f"v_mul_f32 v{48+e}, s25, v{48+e}")
    for e in range(4):
        a(f"v_cvt_pk_bf16_f32 v{56+e}, v{48+2*e}, v{49+2*e}")
    a("buffer_store_dwordx4 v[56:59], v6, s[40:43], s24 offen")
    a.label("K1_END")
    a("s_endpgm")
    return a, (128 if opt.get('stamps') else 112), (102 if opt.get('stamps') else 64)
```

```python
from asmlib import *

N = 10000; E = 320000
import os
WSB = int(os.environ.get('WSB', '0')) << 20
P_OFF = WSB + 4096
CELL_OFF = WSB + 0xA00000
W2F_OFF = WSB + 0xE00000
W1BF_OFF = WSB + 0xE10000
WCF_OFF = WSB + 0xE20000
FRAG_BYTES = 0x22000
NSORT = 128
CHUNK = 2500
GROWS = 64
NGEMM = 157
NSORTWG = 64
NPREP = 17
K1_WGS = NGEMM + NSORTWG + NPREP
K1_BLOCK = 1024
K1_LDS = 65536 + GROWS * 256 + 256
NEGLOG2E = 0xBFB8AA3B
OVF = 0xFFFFFFFE

def srd(a, r, lo, hi, size):
    a(f"s_mov_b32 s{r}, {lo}")
    a(f"s_mov_b32 s{r+1}, {hi}")
    a(f"s_mov_b32 s{r+2}, {size}")
    a(f"s_mov_b32 s{r+3}, 0x00020000")

def srd_ws(a, r, wslo, off, size):
    a(f"s_add_u32 s{r}, s{wslo}, {off}")
    a(f"s_addc_u32 s{r+1}, s{wslo+1}, 0")
    a(f"s_mov_b32 s{r+2}, {size}")
    a(f"s_mov_b32 s{r+3}, 0x00020000")

def stamp(a, opt, idx, vreg, sreg=96):
    if not opt.get("stamps"): return
    a(f"s_memrealtime s[{sreg}:{sreg+1}]")
    a("s_waitcnt lgkmcnt(0)")
    a(f"v_writelane_b32 v{vreg}, s{sreg}, {idx}")
def stamp_out(a, opt, wslo, off, wavereg, vreg, sreg=96, tmpv=151):
    if not opt.get("stamps"): return
    a(f"s_add_u32 s{sreg}, s{wslo}, {off}")
    a(f"s_addc_u32 s{sreg+1}, s{wslo+1}, 0")
    a(f"s_mov_b32 s{sreg+2}, 0x80000")
    a(f"s_mov_b32 s{sreg+3}, 0x00020000")
    a(f"s_lshl_b32 s100, s2, 4")
    a(f"s_add_u32 s100, s100, s{wavereg}")
    a(f"s_lshl_b32 s100, s100, 6")
    a(f"v_mbcnt_lo_u32_b32 v{tmpv}, -1, 0")
    a(f"v_lshlrev_b32 v{tmpv}, 2, v{tmpv}")
    a("s_mov_b64 exec, 0xffff")
    a(f"buffer_store_dword v{vreg}, v{tmpv}, s[{sreg}:{sreg+3}], s100 offen")
    a("s_mov_b64 exec, -1")
def stamp_out2(a, opt, wslo, off, wavereg, vreg, sreg=96, tmpv=151):
    a(f"s_add_u32 s{sreg}, s{wslo}, {off}")
    a(f"s_addc_u32 s{sreg+1}, s{wslo+1}, 0")
    a(f"s_lshl_b32 s100, s100, 1")
    a("s_mov_b64 exec, 0xffffffff")
    a(f"buffer_store_dword v{vreg}, v{tmpv}, s[{sreg}:{sreg+3}], s100 offen")
    a("s_mov_b64 exec, -1")

def gen_k1(opt=None):
    opt = opt or {}
    SV = 120
    SFD = {0: "", 1: " sc1", 2: " sc0 sc1", 3: " nt", 4: " nt sc1"}
    SF = SFD[opt.get("sf", 1)]
    SFG = SFD[opt.get("sfg", 1)]
    NT = " nt" if opt.get("knt", 1) else ""
    NTX = " nt" if opt.get("kntx", 1) else ""
    a = Asm()
    a.label("mpnn_pre_kernel")
    a(f"s_cmp_ge_u32 s2, {K1_WGS}")
    a("s_cbranch_scc1 K1_END")
    if opt.get("stamps"): a(f"v_mov_b32 v{SV}, 0")
    stamp(a, opt, 0, SV)
    a("s_load_dwordx16 s[4:19], s[0:1], 0")
    a("s_load_dwordx2 s[20:21], s[0:1], 80")
    a("v_lshrrev_b32 v1, 6, v0")
    a("v_and_b32 v2, 63, v0")
    a("v_readfirstlane_b32 s22, v1")
    a(f"s_cmp_ge_u32 s2, {NGEMM}")
    a("s_cbranch_scc1 K1_SORT")
    XI = 65536
    SW = XI + GROWS * 256
    a("v_lshrrev_b32 v10, 4, v0")
    a("v_xor_b32 v11, v10, v2")
    a("v_and_b32 v11, 15, v11")
    a("v_lshlrev_b32 v11, 4, v11")
    a("v_lshl_add_u32 v8, v10, 8, v11")
    a("v_lshrrev_b32 v4, 4, v2")
    a("v_lshlrev_b32 v7, 2, v4")
    a("v_xor_b32 v7, v7, v2")
    a("v_and_b32 v7, 15, v7")
    a("v_lshlrev_b32 v7, 4, v7")
    a("v_lshl_add_u32 v3, v4, 9, v7")
    a(f"v_mov_b32 v14, {SW}")
    a("v_mov_b32 v15, 0")
    a("ds_write_b32 v14, v15")
    a("s_and_b32 s44, s22, 7")
    a("s_lshl_b32 s45, s44, 13")
    a("s_lshr_b32 s46, s22, 3")
    a("s_lshl_b32 s47, s46, 8")
    a("s_add_u32 s45, s45, s47")
    a("s_lshl_b32 s47, s22, 12")
    a(f"s_mul_i32 s48, s2, {GROWS*256}")
    a("s_lshl_b32 s49, s22, 10")
    a(f"s_add_u32 m0, s49, {XI}")
    a("s_waitcnt lgkmcnt(0)")
    srd(a, 32, "s4", "s5", N * 256)
    srd(a, 28, "s12", "s13", 272 * 512)
    if opt.get("wwu", 1):
        a("s_cmp_lg_u32 s22, 0")
        a("s_cbranch_scc1 K1_NWU")
        a("s_bfe_u32 s50, s2, 0x40003")
        a("s_lshl_b32 s50, s50, 12")
        a("v_and_b32 v12, 31, v2")
        a("v_lshlrev_b32 v12, 7, v12")
        a("buffer_load_dword v31, v12, s[28:31], s50 offen")
        a.label("K1_NWU")
    a(f"buffer_load_dwordx4 v8, s[32:35], s48 offen{NTX} lds")
    a("s_mov_b32 m0, s47")
    a("s_cmp_lt_u32 s22, 8")
    a("s_barrier")
    a("s_cbranch_scc1 K1_GA")
    if opt.get("gb", 1) & 2: a("s_barrier")
    a.label("K1_GA")
    for k in range(4):
        a(f"buffer_load_dwordx4 v3, s[28:31], s45 offen offset:{k*1024} lds")
        a("s_add_u32 s45, s45, 1024")
    a("s_cmp_lt_u32 s22, 8")
    a("s_cbranch_scc1 K1_GC")
    a("s_waitcnt vmcnt(4)")
    a("s_barrier")
    a("v_mov_b32 v15, 1")
    a("s_waitcnt vmcnt(0)")
    a("s_mov_b64 exec, 1")
    a("ds_add_u32 v14, v15")
    a("s_endpgm")
    a.label("K1_GC")
    if opt.get("gb", 1) & 2: a("s_barrier")
    a("v_lshrrev_b32 v5, 5, v2")
    a("v_and_b32 v6, 31, v2")
    a("s_bfe_u32 s26, s22, 0x10001")
    a("s_lshr_b32 s27, s22, 2")
    a("s_and_b32 s50, s22, 1")
    a("s_lshl_b32 s50, s50, 7")
    srd_ws(a, 36, 20, P_OFF, (N + 1) * 512)
    a("v_and_b32 v17, 15, v2")
    a("v_xor_b32 v17, v17, v5")
    a("s_lshl_b32 s51, s26, 13")
    a(f"s_add_u32 s51, s51, {XI}")
    a("v_lshl_add_u32 v17, v17, 4, s51")
    a("v_lshl_add_u32 v16, v6, 8, v17")
    for sidx in range(1, 8):
        a(f"v_xor_b32 v{16+sidx}, {sidx << 5}, v16")
    a("v_bfe_u32 v26, v2, 2, 2")
    a("v_lshl_add_u32 v27, v5, 3, v26")
    a("v_and_b32 v28, 3, v2")
    a("v_lshl_add_u32 v28, v28, 3, s50")
    a("v_bfe_u32 v29, v2, 4, 1")
    a("v_lshl_add_u32 v28, v29, 5, v28")
    a("v_lshlrev_b32 v26, 6, v26")
    a("v_xor_b32 v28, v28, v26")
    a("s_lshl_b32 s51, s27, 15")
    a("v_add_u32 v28, s51, v28")
    a("v_lshl_add_u32 v24, v27, 8, v28")
    a("v_xor_b32 v25, 64, v24")
    a("s_lshl_b32 s51, s27, 8")
    a("s_add_u32 s51, s51, s50")
    a("v_lshl_add_u32 v13, v6, 2, s51")
    a("v_lshl_add_u32 v13, v5, 11, v13")
    a(f"s_mul_i32 s52, s2, {GROWS*512}")
    a("s_lshl_b32 s51, s26, 14")
    a("s_add_u32 s52, s52, s51")
    a("s_add_u32 s53, s52, 4096")
    a("s_add_u32 s54, s52, 8192")
    a("s_add_u32 s55, s52, 12288")
    import struct
    PS = struct.unpack("<I", struct.pack("<f", -1.4426950408889634 * (1 - opt.get("pcomp", 20) * 1e-4)))[0]
    a(f"s_mov_b32 s56, {PS:#x}")
    a(f"s_mov_b32 s57, {PS:#x}")
    stamp(a, opt, 1, SV)
    a("s_waitcnt vmcnt(0)")
    stamp(a, opt, 2, SV)
    a("s_barrier")
    stamp(a, opt, 6, SV)
    a("s_cmp_eq_u32 s27, 0")
    a("s_cbranch_scc1 K1_GO")
    a.label("K1_GW")
    a("ds_read_b32 v15, v14")
    a("s_waitcnt lgkmcnt(0)")
    a("v_readfirstlane_b32 s51, v15")
    a("s_nop 0")
    a("s_cmp_lt_u32 s51, 8")
    a("s_cbranch_scc1 K1_GW")
    a.label("K1_GO")
    stamp(a, opt, 8, SV)
    AF = 32; BF = 48; DA = 80; DB = 96
    def reads(sidx):
        st = sidx & 3
        a(f"ds_read_b128 {v(AF+4*st,4)}, v{16+sidx}")
        for X in range(2):
            for e in range(2):
                a(f"ds_read_b64_tr_b16 {v(BF+8*st+4*X+2*e,2)}, v{24+X} offset:{sidx*4096+e*1024}")
    def mm(sidx):
        st = sidx & 3
        ca = "0" if sidx == 0 else v(DA, 16)
        cb = "0" if sidx == 0 else v(DB, 16)
        a(f"v_mfma_f32_32x32x16_bf16 {v(DA,16)}, {v(AF+4*st,4)}, {v(BF+8*st,4)}, {ca}")
        a(f"v_mfma_f32_32x32x16_bf16 {v(DB,16)}, {v(AF+4*st,4)}, {v(BF+8*st+4,4)}, {cb}")
    reads(0); reads(1); reads(2)
    for sidx in range(8):
        a(f"s_waitcnt lgkmcnt({5*min(2, 7-sidx)})"); mm(sidx)
        if sidx + 3 < 8: reads(sidx + 3)
    a("s_nop 10")
    stamp(a, opt, 3, SV)
    for r in range(0, 16, 2):
        a(f"v_pk_mul_f32 {v(DA+r,2)}, {v(DA+r,2)}, s[56:57]")
        a(f"v_pk_mul_f32 {v(DB+r,2)}, {v(DB+r,2)}, s[56:57]")
        for rr in (r, r + 1):
            a(f"v_cvt_pk_bf16_f32 v{AF+rr}, v{DA+rr}, v{DB+rr}")
            a(f"buffer_store_dword v{AF+rr}, v13, s[36:39], s{52 + (rr >> 2)} offen offset:{(rr & 3)*512}{SFG}")
    stamp(a, opt, 4, SV)
    if opt.get("stamps"): a("s_waitcnt vmcnt(0)")
    stamp(a, opt, 5, SV)
    stamp_out(a, opt, 20, 0xF00000, 22, SV, tmpv=121)
    a("s_endpgm")
    a.label("K1_SORT")
    CNT = 32768
    HB = 36864
    a(f"s_sub_u32 s3, s2, {NGEMM}")
    a(f"s_cmp_ge_u32 s3, {NSORTWG}")
    a("s_cbranch_scc1 K1_HELP")
    a("s_and_b32 s24, s3, 7")
    a("s_lshl_b32 s24, s24, 4")
    a("s_lshr_b32 s25, s3, 3")
    a("s_lshl_b32 s25, s25, 1")
    a("s_add_u32 s24, s24, s25")
    a("s_lshr_b32 s25, s22, 3")
    a("s_add_u32 s3, s24, s25")
    a(f"s_mul_i32 s54, s25, {HB}")
    a("v_mov_b32 v47, v0")
    a("v_and_b32 v0, 511, v0")
    a("v_lshlrev_b32 v3, 2, v0")
    a("v_add_u32 v4, 4096, v3")
    a("v_add_u32 v5, 8192, v3")
    a(f"s_mul_i32 s23, s3, {CHUNK*4}")
    a("s_waitcnt lgkmcnt(0)")
    srd(a, 32, "s10", "s11", E * 4)
    for i in range(5):
        a(f"buffer_load_dword v{10+i}, v{3 + (i >> 1)}, s[32:35], s23 offen offset:{(i & 1)*2048}{NT}")
    srd(a, 28, "s8", "s9", E * 4)
    if opt.get("sb", 1): a("s_barrier")
    for i in range(5):
        a(f"buffer_load_dword v{16+i}, v{3 + (i >> 1)}, s[28:31], s23 offen offset:{(i & 1)*2048}{NT}")
    a("v_mov_b32 v24, -1\nv_mov_b32 v25, -1\nv_mov_b32 v26, -1\nv_mov_b32 v27, -1")
    a("v_mov_b32 v28, 0")
    a("v_lshl_add_u32 v6, v0, 4, s54")
    a("v_add_u32 v7, s54, v3")
    a(f"ds_write_b32 v7, v28 offset:{CNT}")
    for i in range(4):
        a(f"ds_write_b128 v6, v[24:27] offset:{i*8192}")
    srd_ws(a, 36, 20, CELL_OFF, 256 * 128 * 128)
    a("v_mov_b32 v29, 1")
    a(f"v_mov_b32 v30, {OVF - (1 << 32)}")
    a("v_lshlrev_b32 v31, 6, v0")
    a("v_lshrrev_b32 v44, 3, v47")
    a("v_and_b32 v45, 3, v47")
    a("v_lshlrev_b32 v45, 1, v45")
    a("v_xor_b32 v45, v45, v44")
    a("v_and_b32 v45, 7, v45")
    a("v_lshlrev_b32 v45, 4, v45")
    a("v_lshl_add_u32 v45, v44, 7, v45")
    a("v_bfe_u32 v43, v47, 2, 1")
    a(f"v_mul_u32_u24 v43, {HB}, v43")
    a("v_add_u32 v45, v45, v43")
    a("v_xor_b32 v42, 16, v45")
    a("v_lshl_add_u32 v43, v44, 2, v43")
    a("v_and_b32 v46, 7, v47")
    a("v_lshlrev_b32 v46, 4, v46")
    a("v_lshl_add_u32 v46, v44, 13, v46")
    a("s_lshr_b32 s24, s3, 1")
    a("s_lshl_b32 s24, s24, 7")
    for i in range(1, 4):
        a(f"s_add_u32 s{24+i}, s24, {i << 20}")
    for i in range(5):
        a(f"v_add_u32 v{84+i}, {i*32768}, v31")
    a(f"v_cmp_gt_u32 vcc, {CHUNK - 2048}, v0")
    a("s_waitcnt lgkmcnt(0)")
    a("s_mov_b64 s[52:53], vcc")
    stamp(a, opt, 1, SV)
    a("s_barrier")
    if opt.get("stamps"): a("s_waitcnt vmcnt(5)")
    stamp(a, opt, 2, SV)
    for i in range(5):
        a(f"s_waitcnt vmcnt({9 - i})")
        a(f"v_and_b32 v{32+i}, 255, v{10+i}")
        a(f"v_lshl_add_u32 v{37+i}, v{32+i}, 2, s54")
        if i == 4: a("s_mov_b64 exec, s[52:53]")
        a(f"ds_add_rtn_u32 v{60+i}, v{37+i}, v29 offset:{CNT}")
        if i == 4: a("s_mov_b64 exec, -1")
    for i in range(5):
        a(f"s_waitcnt vmcnt({4 - i})")
        a(f"v_lshrrev_b32 v{10+i}, 8, v{10+i}")
        a(f"v_lshl_or_b32 v{10+i}, v{16+i}, 18, v{10+i}")
        a(f"v_or_b32 v{10+i}, v{10+i}, v{84+i}")
        a(f"v_and_b32 v{16+i}, 28, v{37+i}")
        a(f"v_lshlrev_b32 v{32+i}, 5, v{32+i}")
    for i in range(5):
        a("s_waitcnt lgkmcnt(4)")
        a(f"v_cmp_lt_u32 vcc, 30, v{60+i}")
        a(f"v_min_u32 v{60+i}, 31, v{60+i}")
        a(f"v_lshl_or_b32 v{60+i}, v{60+i}, 5, v{60+i}")
        a(f"v_bfe_u32 v{60+i}, v{60+i}, 2, 5")
        a(f"v_xad_u32 v{60+i}, v{60+i}, v{16+i}, v{32+i}")
        a(f"v_cndmask_b32 v{10+i}, v{10+i}, v30, vcc")
        a(f"v_lshl_add_u32 v{60+i}, v{60+i}, 2, s54")
        if i == 4: a("s_mov_b64 exec, s[52:53]")
        a(f"ds_write_b32 v{60+i}, v{10+i}")
        if i == 4: a("s_mov_b64 exec, -1")
    a("s_waitcnt lgkmcnt(0)")
    a("s_barrier")
    stamp(a, opt, 3, SV)
    for i in range(2):
        a(f"ds_read_b128 {v(64+4*i,4)}, v45 offset:{i*16384}")
    for i in range(2):
        a(f"ds_read_b32 v{80+i}, v43 offset:{CNT + i*512}")
        a(f"ds_read_b128 {v(72+4*i,4)}, v42 offset:{i*16384}")
    for i in range(2):
        a(f"s_waitcnt lgkmcnt({5 - i})")
        a(f"buffer_store_dwordx4 {v(64+4*i,4)}, v46, s[36:39], s{24+i} offen{SF}")
    for i in range(2):
        a(f"s_waitcnt lgkmcnt({2 - 2*i})")
        a(f"v_cmp_lt_u32 vcc, 15, v{80+i}")
        a("s_and_saveexec_b64 s[52:53], vcc")
        a(f"s_cbranch_execz K1_NB{i}")
        a(f"buffer_store_dwordx4 {v(72+4*i,4)}, v46, s[36:39], s{26+i} offen{SF}")
        a.label(f"K1_NB{i}")
        a("s_mov_b64 exec, -1")
    stamp(a, opt, 4, SV)
    if opt.get("stamps"): a("s_waitcnt vmcnt(0)")
    stamp(a, opt, 5, SV)
    stamp_out(a, opt, 20, 0xF00000, 22, SV, tmpv=121)
    a("s_endpgm")
    a.label("K1_HELP")
    a(f"s_sub_u32 s3, s3, {NSORTWG}")
    a("s_waitcnt lgkmcnt(0)")
    srd_ws(a, 40, 20, W2F_OFF, FRAG_BYTES)
    a("v_lshlrev_b32 v6, 4, v2")
    a("s_cmp_lt_u32 s22, 8")
    a("s_cbranch_scc1 K1_H8")
    a("s_cmp_lt_u32 s22, 10")
    a("s_cbranch_scc0 K1_END")
    a("s_getpc_b64 s[60:61]")
    a.label("K1_PC")
    a("s_add_u32 s60, s60, mpnn_main_kernel-K1_PC")
    a("s_addc_u32 s61, s61, 0")
    a("s_mov_b32 s62, K2_REDO-mpnn_main_kernel")
    a("s_mov_b32 s63, 0x00020000")
    a("v_subrev_u32 v7, 512, v0")
    a("v_lshlrev_b32 v7, 7, v7")
    a("buffer_load_dword v22, v7, s[60:63], 0 offen")
    a("s_endpgm")
    a.label("K1_H8")
    a("s_lshl_b32 s3, s3, 3")
    a("s_add_u32 s3, s3, s22")
    a("s_mov_b32 s58, s3")
    a("s_bfe_u32 s26, s3, 0x30003")
    a("s_and_b32 s27, s3, 7")
    a("s_cmp_ge_u32 s3, 128")
    a("s_cselect_b32 s26, s27, s26")
    a("s_cselect_b32 s27, 8, s27")
    a("s_cmp_ge_u32 s3, 64")
    a("s_cbranch_scc1 K1_PREP1")
    srd(a, 44, "s16", "s17", 256 * 256)
    a("v_and_b32 v40, 15, v2")
    a("v_lshlrev_b32 v40, 1, v40")
    a("v_lshrrev_b32 v41, 4, v2")
    a("v_lshl_add_u32 v40, v41, 10, v40")
    a("v_add_u32 v41, 8192, v40")
    a("s_bfe_u32 s24, s3, 0x20001")
    a("s_lshl_b32 s24, s24, 14")
    a("s_and_b32 s25, s3, 1")
    a("s_lshl_b32 s25, s25, 12")
    a("s_add_u32 s24, s24, s25")
    a("s_lshr_b32 s25, s3, 3")
    a("s_lshl_b32 s25, s25, 5")
    a("s_add_u32 s24, s24, s25")
    for e in range(8):
        a(f"buffer_load_ushort v{48+e}, v{40 + (e & 1)}, s[44:47], s24 offen offset:{(e >> 1)*256}")
    a("s_branch K1_PFIN")
    a.label("K1_PREP1")
    srd(a, 44, "s12", "s13", 272 * 512)
    a("v_and_b32 v42, 1, v2")
    a("v_lshlrev_b32 v42, 6, v42")
    a("v_and_b32 v43, 30, v2")
    a("v_add_u32 v42, v42, v43")
    a("v_lshrrev_b32 v43, 5, v2")
    a("v_lshl_add_u32 v42, v43, 12, v42")
    a("s_lshr_b32 s24, s26, 1")
    a("s_lshl_b32 s24, s24, 7")
    a("s_and_b32 s25, s26, 1")
    a("s_lshl_b32 s25, s25, 5")
    a("s_add_u32 s24, s24, s25")
    a("s_lshl_b32 s27, s27, 13")
    a("s_add_u32 s24, s24, s27")
    a(f"s_add_u32 s24, s24, {128*512}")
    for e in range(8):
        a(f"buffer_load_ushort v{48+e}, v42, s[44:47], s24 offen offset:{e*512}")
    a.label("K1_PFIN")
    a("s_lshl_b32 s24, s58, 10")
    a("s_cmp_ge_u32 s58, 128")
    a("s_waitcnt vmcnt(0)")
    a("s_cbranch_scc1 K1_FINC")
    for e in range(4):
        a(f"v_lshl_or_b32 v{56+e}, v{49+2*e}, 16, v{48+2*e}")
    a("buffer_store_dwordx4 v[56:59], v6, s[40:43], s24 offen" + (" sc1" if opt.get("fsc", 1) else ""))
    a("s_endpgm")
    a.label("K1_FINC")
    a(f"s_mov_b32 s25, {NEGLOG2E:#x}")
    for e in range(8):
        a(f"v_lshlrev_b32 v{48+e}, 16, v{48+e}")
        a(f"v_mul_f32 v{48+e}, s25, v{48+e}")
    for e in range(4):
        a(f"v_cvt_pk_bf16_f32 v{56+e}, v{48+2*e}, v{49+2*e}")
    a("buffer_store_dwordx4 v[56:59], v6, s[40:43], s24 offen" + (" sc1" if opt.get("fsc", 1) else ""))
    a.label("K1_END")
    a("s_endpgm")
    return a, (128 if opt.get('stamps') else 112), (102 if opt.get('stamps') else 64)
```

```python
from asmlib import *
from k1 import *

NW = 12
PSLOT = 0
EIM = 49152
OH = 98304
ZERO = 147456
CNT = ZERO + 256
FLAG = ZERO + 512
IDX = ZERO + 3328
EOFF = IDX + 6400
HSTR = 144
K2_LDS = 163840
assert EOFF + 6144 <= K2_LDS
GCAP = 48
KILL = 0x40000000
NEGLN2 = 0xBF317218
aAE = 1; aAP = 2; aAO = 7; aS1 = 8; aS2 = 9; aIDX = 10; aEI = 11; EI = 12; CHK = 14
D = [16, 32]; EX = 48; ACC = 64; BC = [80, 84]; BQ = [88, 92]; ID = [96, 100]
AE = 104; FV = 164; MG = 165; AO = 108; S = 112; AP = [116, 120, 124, 128]; HQ = 132; IX = [136, 138, 140, 142]
WP = 144
NV2 = 168

def pr(r): return v(r, 2)
def q4(r): return v(r, 4)
def x16(r): return v(r, 16)

C1 = 116
def mf_tile(Y):
    d = D[Y]
    return [f"v_mfma_f32_32x32x16_bf16 {x16(d)}, {q4(AE)}, {q4(BC[Y])}, {x16(C1 if Y else d)}",
            f"v_mfma_f32_32x32x16_bf16 {x16(d)}, {q4(AO)}, {q4(BQ[Y])}, {x16(d)}"]
def p_reads():
    return [f"ds_read_b64_tr_b16 {pr((C1 if X else D[0])+4*j)}, v{aAP+X} offset:{j*256}" for X in range(2) for j in range(4)]
def p_shift(X):
    b = C1 if X else D[0]
    return [f"v_lshlrev_b64 {pr(b+4*j+2)}, 16, {pr(b+4*j)}" for j in range(4)]
SEGSUM = f"v_mfma_f32_32x32x16_bf16 {x16(ACC)}, {q4(HQ)}, {q4(S)}, {x16(ACC)}"

OCT = [0]
QTAILS = []
def tile(X, mf, ex_exp, mid, ex_rcp, tag=None, mpos=(0, 3, 6, 9, 12), pre=()):
    d = D[X]; out = list(pre); mi = 0
    for i in range(16):
        if i in mpos and mi < len(mf):
            out.append(mf[mi]); mi += 1
        out.append(f"v_exp_f32 v{EX+i}, v{d+i}")
        out += ex_exp.get(i, [])
    out += mid
    NAB, NCD, DAB, DCD = d, d + 8, EX, EX + 8
    out.append(f"v_pk_add_f32 {pr(DAB)}, {pr(EX)}, 1.0 op_sel_hi:[1,0]")
    out.append(f"v_pk_add_f32 {pr(DCD)}, {pr(EX+8)}, 1.0 op_sel_hi:[1,0]")
    for k in range(1, 4):
        out.append(f"v_pk_fma_f32 {pr(NAB)}, {pr(NAB)}, {pr(EX+2*k)}, {pr(NAB)}")
        out.append(f"v_pk_fma_f32 {pr(NCD)}, {pr(NCD)}, {pr(EX+8+2*k)}, {pr(NCD)}")
        out.append(f"v_pk_fma_f32 {pr(NAB)}, {pr(d+2*k)}, {pr(DAB)}, {pr(NAB)}")
        out.append(f"v_pk_fma_f32 {pr(NCD)}, {pr(d+8+2*k)}, {pr(DCD)}, {pr(NCD)}")
        out.append(f"v_pk_fma_f32 {pr(DAB)}, {pr(DAB)}, {pr(EX+2*k)}, {pr(DAB)}")
        out.append(f"v_pk_fma_f32 {pr(DCD)}, {pr(DCD)}, {pr(EX+8+2*k)}, {pr(DCD)}")
    qt = [f"v_pk_fma_f32 {pr(CHK)}, {pr(DAB)}, {pr(DCD)}, {pr(CHK)}"]
    for r in (DAB, DAB + 1, DCD, DCD + 1):
        qt.append(f"v_rcp_f32 v{r}, v{r}")
    qt.append(f"v_pk_mul_f32 {pr(NAB)}, {pr(NAB)}, {pr(DAB)}")
    qt.append(f"v_pk_mul_f32 {pr(NCD)}, {pr(NCD)}, {pr(DCD)}")
    qt.append(f"v_cvt_pk_bf16_f32 v{HQ+2*X}, v{NAB}, v{NAB+1}")
    qt.append(f"v_cvt_pk_bf16_f32 v{HQ+2*X+1}, v{NCD}, v{NCD+1}")
    out += ex_rcp
    if not OCT[0] or tag is None:
        return out + qt
    DM = EX + 2
    out += ["s_bitcmp1_b32 s95, s55", f"s_cbranch_scc1 K2_QT{tag}",
            f"v_pk_mul_f32 {pr(DM)}, {pr(DAB)}, {pr(DCD)}",
            f"v_pk_mul_f32 {pr(NAB)}, {pr(NAB)}, {pr(DCD)}",
            "s_bitcmp0_b32 s54, s55",
            f"v_rcp_f32 v{DM+2}, v{DM}",
            f"v_rcp_f32 v{DM+3}, v{DM+1}",
            f"v_pk_fma_f32 {pr(NAB)}, {pr(NCD)}, {pr(DAB)}, {pr(NAB)}",
            f"v_pk_add_f32 {pr(CHK)}, {pr(CHK)}, {pr(DM)}",
            f"v_pk_mul_f32 {pr(NAB)}, {pr(NAB)}, {pr(DM+2)}",
            f"s_cbranch_scc1 K2_OZ{tag}",
            f"v_mov_b32 v{HQ+2*X+1}, 0",
            f"K2_OZ{tag}:",
            f"v_cvt_pk_bf16_f32 v{HQ+2*X}, v{NAB}, v{NAB+1}",
            f"K2_QR{tag}:"]
    QTAILS.append([f"K2_QT{tag}:"] + qt + [f"s_branch K2_QR{tag}"])
    return out

PFL = [""]
def p_dma():
    return [f"buffer_load_dwordx4 {pr(IX[k])}, s[32:35], s{28+k} idxen offen offset:{k*1024}{PFL[0]} lds" for k in range(4)]

EFL = [""]
def e_dma():
    return ["s_cmp_lt_u32 s61, s53",
            f"s_cselect_b32 s86, {E}, 0",
            f"s_cselect_b32 m0, s59, {K2_LDS:#x}",
            "s_add_u32 s61, s61, 4",
            f"buffer_load_dwordx4 {pr(EI)}, s[84:87], 0 idxen offen{EFL[0]} lds",
            "s_mov_b32 m0, s57",
            "s_add_u32 s59, s59, 4096"]
NW2 = 7
WREG = [144, 148, 152, 156, 160, 96, 100]
def w2_pre(vaddr):
    return [f"buffer_load_dwordx4 {q4(WREG[sidx])}, v{vaddr}, s[40:43], s{73 + (sidx >> 2)} offen offset:{(sidx & 3)*1024}" for sidx in range(NW2)]

def gen_k2(opt=None):
    opt = opt or {}
    EFL[0] = {0: "", 1: " nt", 2: " sc1"}[opt.get("efl", 0)]
    OCT[0] = opt.get("oct", 0)
    QTAILS.clear()
    PFL[0] = {0: "", 1: " sc1", 2: " sc0 sc1", 3: " sc0"}[opt.get("pfl", 0)]
    a = Asm()
    def stp(i):
        if opt.get("stamps"):
            a("s_memrealtime s[96:97]"); a("s_waitcnt lgkmcnt(0)"); a(f"v_writelane_b32 v0, s96, {i}")
    def stc(i):
        if opt.get("stamps"):
            a("s_memtime s[96:97]"); a("s_waitcnt lgkmcnt(0)"); a(f"v_writelane_b32 v0, s96, {i}")
    a.label("mpnn_main_kernel")
    a("s_cmp_ge_u32 s2, 256")
    a("s_cbranch_scc1 K2_END")
    a("s_mov_b32 s70, 0")
    a.label("K2_TOP")
    a("s_load_dwordx2 s[22:23], s[0:1], 80")
    a("s_load_dwordx16 s[4:19], s[0:1], 0")
    a("s_load_dwordx2 s[20:21], s[0:1], 64")
    if opt.get("stamps"): a("s_memrealtime s[98:99]")
    a("v_lshrrev_b32 v72, 6, v0")
    a("v_and_b32 v1, 63, v0")
    a("v_readfirstlane_b32 s24, v72")
    a("v_lshlrev_b32 v24, 4, v0")
    L16 = 6
    a(f"v_lshlrev_b32 v{L16}, 4, v1")
    a("s_lshl_b32 s66, s2, 13")
    a(f"s_add_u32 s67, s66, {1 << 21}")
    a("s_and_b32 s25, s24, 3")
    a("s_lshr_b32 s26, s24, 2")
    a("s_cmp_ge_u32 s24, 8")
    a("s_cbranch_scc1 K2_HL")
    a("s_waitcnt lgkmcnt(0)")
    srd_ws(a, 40, 22, CELL_OFF, (W2F_OFF - CELL_OFF) + FRAG_BYTES)
    a("buffer_load_dwordx4 v[16:19], v24, s[40:43], s66 offen")
    a(f"buffer_load_dwordx4 v[20:23], v24, s[40:43], s67 offen{' nt' if opt.get('bnt', 1) else ''}")
    a("s_branch K2_CM")
    a.label("K2_HL")
    a("v_lshrrev_b32 v77, 4, v1")
    a("s_lshl_b32 s68, s25, 2")
    a("v_add_u32 v77, s68, v77")
    a("v_xor_b32 v27, v77, v1")
    a("v_and_b32 v27, 15, v27")
    a("v_lshlrev_b32 v27, 4, v27")
    a("v_lshl_add_u32 v26, v77, 16, v27")
    for win in (1, 2):
        a(f"v_subrev_u32 v78, {12*win}, v77")
        a("v_and_b32 v78, 15, v78")
        a(f"v_add_u32 v78, {12*win}, v78")
        a(f"v_lshl_add_u32 v{27+win}, v78, 16, v27")
    a("s_lshl_b32 s68, s2, 8")
    a("s_lshl_b32 s69, s25, 10")
    a(f"s_add_u32 m0, s69, {EIM + 4096}")
    a("s_waitcnt lgkmcnt(0)")
    srd(a, 36, "s4", "s5", N * 256)
    a("buffer_load_dwordx4 v26, s[36:39], s68 offen lds")
    a(f"s_add_u32 m0, s69, {EIM + 4096 + 16384}")
    srd_ws(a, 40, 22, CELL_OFF, (W2F_OFF - CELL_OFF) + FRAG_BYTES)
    a("buffer_load_dwordx4 v28, s[36:39], s68 offen lds")
    a(f"s_add_u32 m0, s69, {EIM + 4096 + 32768}")
    a("s_lshr_b32 s66, s2, 3")
    a("buffer_load_dwordx4 v29, s[36:39], s68 offen lds")
    a(f"s_mul_i32 s66, s66, {34*128}")
    a(f"s_mul_i32 s67, s25, {9*128}")
    a("s_add_u32 s66, s66, s67")
    a(f"s_add_u32 s66, s66, {W2F_OFF - CELL_OFF}")
    a("v_min_u32 v30, 8, v1")
    a("v_lshlrev_b32 v30, 7, v30")
    a("buffer_load_dword v134, v30, s[40:43], s66 offen")
    a.label("K2_CM")
    a("s_mul_i32 s71, s26, 12")
    a("s_lshl_b32 s56, s26, 14")
    a(f"s_add_u32 s56, s56, {EIM}")
    a("s_lshl_b32 s69, s25, 10")
    a("s_add_u32 s59, s56, s69")
    a("s_lshl_b32 s66, s24, 13")
    a(f"s_add_u32 s73, s66, {W2F_OFF - CELL_OFF}")
    a("s_cmp_lt_u32 s24, 8")
    a(f"s_cselect_b32 s73, s73, {KILL:#x}")
    a("s_add_u32 s74, s73, 4096")
    a("s_lshl_b32 s72, s25, 11")
    a(f"s_add_u32 s72, s72, {WCF_OFF - CELL_OFF}")
    a(f"v_add_u32 v156, {OH}, v24")
    for i in range(4): a(f"v_mov_b32 v{144+i}, 0")
    a(f"v_mov_b32 v31, {N}")
    a(f"v_mov_b32 v152, {E}")
    a(f"v_cmp_gt_u32 vcc, {IDX - ZERO}, v24")
    a(f"s_mov_b32 s66, {EOFF - ZERO}")
    a("v_cmp_le_u32 s[68:69], s66, v24")
    a("v_cndmask_b32 v148, v31, v144, vcc")
    a("v_mov_b32 v153, v152")
    a("v_cndmask_b32 v148, v148, v152, s[68:69]")
    a("v_mov_b32 v154, v152")
    a("v_mov_b32 v155, v152")
    for i in range(1, 4): a(f"v_mov_b32 v{148+i}, v148")
    a(f"ds_write_b128 v156, v[148:151] offset:{4*12288}")
    for i in range(4): a(f"ds_write_b128 v156, v[144:147] offset:{i*12288}")
    a("s_cmp_lt_u32 s24, 4")
    a("s_cbranch_scc0 K2_I1")
    a(f"ds_write_b128 v156, v[152:155] offset:{5*12288}")
    a.label("K2_I1")
    a("v_lshrrev_b32 v72, 2, v0")
    if opt.get("stamps"):
        a("v_mov_b32 v0, 0"); a("v_writelane_b32 v0, s98, 0")
    a("s_mov_b32 s84, s6")
    a("s_and_b32 s85, s7, 0xffff")
    a(f"s_or_b32 s85, s85, {32 << 16:#x}")
    a("s_mov_b32 s87, 0x00020000")
    a(f"s_add_u32 s32, s22, {P_OFF - 3072}")
    a("s_addc_u32 s33, s23, 0")
    a("s_and_b32 s33, s33, 0xffff")
    a(f"s_or_b32 s33, s33, {512 << 16:#x}")
    a(f"s_mov_b32 s34, {N+1}")
    a("s_mov_b32 s35, 0x00020000")
    srd(a, 44, "s20", "s21", N * 256)
    H_, I_, T0, T1 = 77, 78, 105, 106
    a(f"v_lshrrev_b32 v{H_}, 5, v1")
    a(f"v_and_b32 v{I_}, 31, v1")
    a(f"v_bfe_u32 v{T0}, v1, 3, 2")
    a(f"v_bfe_u32 v{T1}, v1, 1, 1")
    a(f"v_lshl_or_b32 v{T0}, v{T0}, 1, v{T1}")
    a(f"v_and_b32 v{T1}, 1, v1")
    a(f"v_lshl_or_b32 v{T0}, v{T1}, 3, v{T0}")
    a(f"v_and_b32 v{T1}, 4, v1")
    a(f"v_lshl_or_b32 v{T0}, v{T1}, 2, v{T0}")
    a("s_lshl_b32 s57, s24, 12")
    a("s_lshl_b32 s58, s25, 7")
    a("s_mov_b32 m0, s57")
    for k in range(4): a(f"s_add_u32 s{28+k}, s58, {(3-k)*1024}")
    a(f"v_and_b32 v{T1}, 3, v1")
    a(f"v_lshl_add_u32 v{aAP}, v{T1}, 3, s57")
    a(f"v_and_b32 v{T1}, 16, v1")
    a(f"v_lshl_add_u32 v{aAP}, v{T1}, 1, v{aAP}")
    a(f"v_lshl_add_u32 v{aAP}, v{H_}, 11, v{aAP}")
    a(f"v_and_b32 v{T1}, 8, v1")
    a(f"v_mul_u32_u24 v{T1}, {(1024 + 64) // 8}, v{T1}")
    a(f"v_add_u32 v{aAP}, v{aAP}, v{T1}")
    a(f"v_not_b32 v{T1}, v1")
    a(f"v_and_b32 v{T1}, 4, v{T1}")
    a(f"v_lshl_add_u32 v{aAP}, v{T1}, 5, v{aAP}")
    a(f"v_xor_b32 v{aAP+1}, 64, v{aAP}")
    a(f"v_bfe_u32 v{T1}, v{T0}, 3, 1")
    a(f"v_xor_b32 v{T1}, v{T1}, v{H_}")
    a(f"v_lshl_add_u32 v{T1}, v{T1}, 4, s56")
    a(f"v_lshl_add_u32 v110, v{T0}, 5, v{T1}")
    a(f"v_lshlrev_b32 v{T1}, 4, v{H_}")
    a(f"v_lshl_add_u32 v{aAO}, v{T0}, 5, v{T1}")
    a(f"v_and_b32 v{T1}, 62, v1")
    a(f"v_lshlrev_b32 v{aEI}, 1, v{T1}")
    SOFF = 104
    a(f"v_and_b32 v{T1}, 8, v1")
    a(f"v_lshlrev_b32 v{SOFF}, 4, v{T1}")
    a(f"v_lshl_add_u32 v{SOFF}, v{H_}, 9, v{SOFF}")
    a(f"v_and_b32 v{T1}, 4, v1")
    a(f"v_lshl_add_u32 v{SOFF}, v{T1}, 6, v{SOFF}")
    a(f"v_and_b32 v{T1}, 3, v1")
    a(f"v_lshl_add_u32 v{SOFF}, v{T1}, 3, v{SOFF}")
    a("s_mov_b32 s62, 0xffff\ns_mov_b32 s63, 0xffff\ns_mov_b32 s64, 0xffff0000\ns_mov_b32 s65, 0xffff0000")
    a(f"v_lshrrev_b32 v{T1}, 3, v1")
    a(f"v_lshlrev_b32 v{aIDX}, 2, v{T1}")
    a(f"v_lshrrev_b32 v{T1}, 4, v1")
    a(f"v_xor_b32 v{T1}, v{T1}, v1")
    a(f"v_and_b32 v{EI+1}, 1, v{T1}")
    a(f"v_lshlrev_b32 v{EI+1}, 4, v{EI+1}")
    a(f"v_and_b32 v{T1}, 7, v1")
    a(f"v_lshlrev_b32 v{IX[0]+1}, 4, v{T1}")
    a(f"v_xor_b32 v{IX[1]+1}, 64, v{IX[0]+1}")
    a(f"v_mov_b32 v{IX[2]+1}, v{IX[0]+1}")
    a(f"v_mov_b32 v{IX[3]+1}, v{IX[1]+1}")
    a("v_mov_b32 v75, 0x3f80")
    a("s_lshl_b32 s66, s25, 11")
    a("s_add_u32 s67, s56, s66")
    a(f"v_add_u32 v115, s67, v{L16}")
    a(f"v_mov_b32 v111, {FLAG}")
    a("v_mov_b32 v114, 1")
    a("s_mov_b32 s55, 0")
    a("s_mov_b32 s60, 0")
    a("s_mov_b32 s61, s25")
    a("s_cmp_ge_u32 s24, 8")
    a("s_cbranch_scc1 K2_HQ")
    a(f"s_mov_b32 s66, {CHUNK}")
    a("v_mul_u32_u24 v72, s66, v72")
    a(f"s_mov_b32 s78, {CNT}")
    a("v_lshl_add_u32 v76, v1, 2, s78")
    a(f"s_mov_b32 s79, {IDX}")
    a(f"s_mov_b32 s80, {OH}")
    a("s_mov_b32 s81, 0")
    a(f"buffer_load_dwordx4 {q4(BC[0])}, v{L16}, s[40:43], s72 offen")
    a(f"buffer_load_dwordx4 {q4(BC[1])}, v{L16}, s[40:43], s72 offen offset:1024")
    a("s_waitcnt lgkmcnt(0)")
    stp(1)
    a("s_barrier")
    a("s_waitcnt vmcnt(3)")
    stp(2)
    RA, RK = 32, 40
    SB = 48; T = 116
    TS, TE, TO = 116, 124, 56
    def count(ks):
        for k in ks:
            a(f"v_and_b32 v{RA+k}, 63, v{16+k}")
            a(f"v_lshl_add_u32 v{RA+k}, v{RA+k}, 2, s78")
        for k in ks:
            a(f"v_cmpx_gt_u32 vcc, -2, v{16+k}")
            a(f"ds_add_rtn_u32 v{RK+k}, v{RA+k}, v114")
        a("s_mov_b64 exec, -1")
    def decode(ks):
        for k in ks:
            a(f"v_lshrrev_b32 v{TS+k}, {18 + opt.get('pshift', 0)}, v{16+k}")
            a(f"v_bfe_u32 v{TE+k}, v{16+k}, 6, 12")
            a(f"v_add_u32 v{TE+k}, v{TE+k}, v72")
            if opt.get("eshift"): a(f"v_lshrrev_b32 v{TE+k}, {opt['eshift']}, v{TE+k}")
            a(f"v_and_b32 v{TO+k}, 15, v{16+k}")
            a(f"v_lshl_add_u32 v{TO+k}, v{TO+k}, 1, s80")
    def scatter(ks):
        for k in ks:
            a(f"v_add_u32 v{SB+k}, v{SB+k}, v{RK+k}")
            a(f"v_lshl_add_u32 v{TO+k}, v{SB+k}, 5, v{TO+k}")
            a(f"v_lshl_add_u32 v{SB+k}, v{SB+k}, 2, s79")
        for k in ks:
            a(f"v_cmpx_gt_u32 vcc, -2, v{16+k}")
            a(f"ds_write2st64_b32 v{SB+k}, v{TS+k}, v{TE+k} offset0:0 offset1:{(EOFF-IDX)//256}")
            a(f"ds_write_b16 v{TO+k}, v75")
        a("s_mov_b64 exec, -1")
    def arrive(off):
        a("s_mov_b64 exec, 1")
        a(f"ds_add_u32 v111, v114 offset:{off}")
        a("s_mov_b64 exec, -1")
    a("v_mov_b32_dpp v25, v19 quad_perm:[3,3,3,3] row_mask:0xf bank_mask:0xf")
    count(range(4))
    a("v_cmp_ne_u32 vcc, -1, v25")
    a("s_nop 1")
    a("s_cbranch_vccz K2_C1")
    a("s_waitcnt vmcnt(2)")
    for k in range(4): a(f"v_cndmask_b32 v{20+k}, -1, v{20+k}, vcc")
    a("s_mov_b32 s81, 1")
    count([4])
    a("v_cmp_ne_u32 vcc, -1, v21")
    decode([4])
    a("s_cbranch_vccnz K2_CX")
    a.label("K2_C1")
    arrive(4)
    decode(range(4))
    a.label("K2_SB1")
    a("ds_read_b64 v[108:109], v111")
    a("ds_read_b32 v105, v76")
    a("s_waitcnt lgkmcnt(0)")
    a("v_readfirstlane_b32 s66, v109")
    a("v_add_u32 v105, 3, v105")
    a("s_cmp_lt_u32 s66, 8")
    a("s_cbranch_scc1 K2_SB1")
    stp(3)
    a("v_and_b32 v105, -4, v105")
    a("v_readfirstlane_b32 s82, v108")
    a("s_nop 0")
    a("v_add_u32_dpp v107, v105, v105 row_shr:1 row_mask:0xf bank_mask:0xf bound_ctrl:0")
    a("s_nop 1")
    for sh in (2, 4, 8):
        a(f"v_add_u32_dpp v107, v107, v107 row_shr:{sh} row_mask:0xf bank_mask:0xf bound_ctrl:0")
        a("s_nop 1")
    a("v_add_u32_dpp v107, v107, v107 row_bcast:15 row_mask:0xa bank_mask:0xf")
    a("s_sub_u32 s82, s82, s70")
    a("s_lshl_b32 s82, s82, 12")
    a("v_add_u32_dpp v107, v107, v107 row_bcast:31 row_mask:0xc bank_mask:0xf")
    a("v_sub_u32 v108, v107, v105")
    a("v_readlane_b32 s83, v107, 63")
    for k in range(5): a(f"ds_bpermute_b32 v{SB+k}, v{RA+k}, v108")
    a("s_add_u32 s82, s82, s83")
    a(f"s_cmp_gt_u32 s82, {GCAP*32}")
    a("s_cbranch_scc1 K2_BAD")
    a("s_waitcnt lgkmcnt(0)")
    scatter(range(4))
    a("s_cmp_eq_u32 s81, 0")
    a("s_cbranch_scc1 K2_S1")
    scatter([4])
    a("s_cmp_lg_u32 s81, 1")
    a("s_cbranch_scc1 K2_SX")
    a.label("K2_S1")
    arrive(8)
    a("s_add_u32 s83, s83, 31")
    a("s_lshr_b32 s83, s83, 5")
    LB = opt.get("lb", 0)
    a(f"s_add_u32 s88, s83, {(2, 0, 4)[LB]}")
    a("s_mul_i32 s88, s88, 171")
    a("v_readlane_b32 s76, v108, 12")
    a("v_readlane_b32 s77, v108, 16")
    a("v_readlane_b32 s78, v108, 24")
    a("v_readlane_b32 s79, v108, 28")
    a("s_lshr_b32 s88, s88, 9")
    a("s_add_u32 s76, s76, 31")
    a("s_lshr_b32 s76, s76, 5")
    a("s_lshr_b32 s77, s77, 5")
    a("s_add_u32 s78, s78, 31")
    a("s_lshr_b32 s78, s78, 5")
    a("s_lshr_b32 s79, s79, 5")
    a("s_cmp_gt_u32 s76, s77")
    a("s_cbranch_scc1 K2_BAD")
    a("s_cmp_gt_u32 s78, s79")
    a("s_cbranch_scc1 K2_BAD")
    if opt.get("force_slow"): a("s_branch K2_BAD")
    a("s_max_u32 s88, s88, s76")
    a("s_min_u32 s88, s88, s77")
    a("s_add_u32 s89, s83, s88")
    a(f"s_add_u32 s89, s89, {(1, 0, 2)[LB]}")
    a("s_lshr_b32 s89, s89, 1")
    a("s_max_u32 s89, s89, s78")
    a("s_min_u32 s89, s89, s79")
    a("s_sub_u32 s90, s89, s88")
    a("s_sub_u32 s91, s83, s89")
    a("s_max_u32 s92, s90, s88")
    a("s_max_u32 s92, s92, s91")
    a("s_cmp_gt_u32 s92, 16")
    a("s_cbranch_scc1 K2_BAD")
    a("v_mov_b32 v106, s89")
    a("v_mov_b32 v107, s91")
    a("ds_write_b64 v111, v[106:107] offset:16")
    a("v_mov_b32 v105, v108")
    a("s_cmp_eq_u32 s26, 1")
    a("s_cselect_b32 s52, s88, 0")
    a("s_cselect_b32 s53, s90, s88")
    def g0_addr():
        a("s_lshl_b32 s66, s52, 7")
        a(f"s_add_u32 s67, s66, {IDX}")
        a(f"v_add_u32 v{aIDX}, s67, v{aIDX}")
        a(f"s_add_u32 s67, s67, {EOFF - IDX}")
        a(f"v_add_u32 v{aEI}, s67, v{aEI}")
        a(f"v_add_u32 v109, s58, v{aEI}")
    def first_reads():
        for k in range(4): a(f"ds_read_b32 v{IX[k]}, v{aIDX} offset:{k*32}")
        a(f"ds_read_b32 v{EI}, v109")
    nfl = [0]
    LATE = opt.get("late", 0)
    NE0 = 2 if LATE else 1
    def first_loads():
        nfl[0] += 1
        a(f"s_cmp_ge_u32 s25, {NE0}")
        a(f"s_cbranch_scc1 K2_FL{nfl[0]}")
        a("\n".join(e_dma()))
        a.label(f"K2_FL{nfl[0]}")
        a("\n".join(p_dma()))
    g0_addr()
    a.label("K2_SB2")
    a("ds_read_b32 v108, v111 offset:8")
    first_reads()
    a("s_waitcnt lgkmcnt(0)")
    a("v_readfirstlane_b32 s66, v108")
    a("s_nop 0")
    a("s_cmp_lt_u32 s66, 8")
    a("s_cbranch_scc1 K2_SB2")
    stp(4)
    first_loads()
    if OCT[0]:
        a("s_cmp_lg_u32 s24, 0")
        a("s_cbranch_scc1 K2_NM")
        a("v_readlane_b32 s66, v105, 63")
        a("v_lshrrev_b32 v106, 5, v105")
        a("v_lshlrev_b64 v[106:107], v106, 1")
        a("v_and_b32 v108, 4, v105")
        a("v_cmpx_gt_u32 vcc, s66, v105")
        a("v_cmpx_ne_u32 vcc, 0, v108")
        a("ds_or_b64 v111, v[106:107] offset:32")
        a("s_mov_b64 exec, -1")
        a("s_waitcnt lgkmcnt(0)")
        a.label("K2_NM")
    a("s_barrier")
    a("s_branch K2_QD")
    a.label("K2_HQ")
    WA, QA, QB, XA, BIAS = 32, 16, 116, 132, 112
    a(f"v_and_b32 v{T0}, 3, v1")
    a(f"v_and_b32 v{T1}, 4, v1")
    a(f"v_lshl_or_b32 v{T0}, v{T1}, 1, v{T0}")
    a(f"v_bfe_u32 v{T1}, v1, 3, 1")
    a(f"v_lshl_or_b32 v{T0}, v{T1}, 2, v{T0}")
    a(f"v_xor_b32 v{T1}, v{T0}, v{H_}")
    a(f"v_lshlrev_b32 v{T1}, 4, v{T1}")
    a(f"v_lshl_add_u32 v{XA}, v{T0}, 8, v{T1}")
    a(f"v_and_b32 v{T1}, 16, v1")
    a(f"v_lshl_add_u32 v{XA}, v{T1}, 10, v{XA}")
    a(f"v_add_u32 v{XA}, {EIM + 4096}, v{XA}")
    a(f"s_add_u32 s67, s66, {EIM + 8192}")
    a(f"v_add_u32 v107, s67, v{L16}")
    srd(a, 48, "s14", "s15", 512)
    a("v_and_b32 v108, 1, v1")
    a("v_and_b32 v109, 30, v1")
    a("v_lshl_add_u32 v108, v108, 6, v109")
    a("s_lshl_b32 s66, s25, 14")
    a(f"s_add_u32 s76, s66, {W1BF_OFF - CELL_OFF}")
    for i in range(1, 4): a(f"s_add_u32 s{76+i}, s76, {i*4096}")
    PFT = opt.get("pft", 0)
    if PFT:
        srd_ws(a, 92, 22, P_OFF, N * 512)
        a("s_lshr_b32 s80, s2, 3")
        a(f"s_mul_i32 s80, s80, {PFT*256*128}")
        a("s_lshl_b32 s81, s25, 13")
        a("s_add_u32 s80, s80, s81")
        a("v_lshlrev_b32 v109, 7, v1")
    a(f"s_mov_b32 s68, {NEGLOG2E:#x}")
    a(f"s_mov_b32 s69, {NEGLOG2E:#x}")
    a("s_waitcnt lgkmcnt(0)")
    stp(1)
    a("s_barrier")
    a(f"buffer_load_ushort v{BIAS}, v108, s[48:51], s58 offen")
    a(f"buffer_load_ushort v{BIAS+1}, v108, s[48:51], s58 offen offset:32")
    for i in range(16):
        a(f"buffer_load_dwordx4 {q4(WA+4*i)}, v{L16}, s[40:43], s{76 + (i >> 2)} offen offset:{(i & 3)*1024}")
        if i == 7:
            a("s_waitcnt vmcnt(10)")
            arrive(12)
    for i in range(PFT):
        a("buffer_load_dword v135, v109, s[92:95], s80 offen")
        a(f"s_add_u32 s80, s80, {256*128}")
    stp(2)
    a.label("K2_HS")
    a("ds_read_b32 v108, v111 offset:12")
    a("s_waitcnt lgkmcnt(0)")
    a("v_readfirstlane_b32 s66, v108")
    a("s_nop 0")
    a("s_cmp_lt_u32 s66, 4")
    a("s_cbranch_scc1 K2_HS")
    def xread(step):
        sidx = step & 7; st_ = step % 3
        if sidx: a(f"v_xor_b32 v{XA+1}, {sidx << 5}, v{XA}")
        r = XA + 1 if sidx else XA
        a(f"ds_read_b128 {q4(WP+8*st_)}, v{r}")
        a(f"ds_read_b128 {q4(WP+8*st_+4)}, v{r} offset:32768")
    xread(0); xread(1); xread(2)
    a(f"s_waitcnt vmcnt({16 + PFT})")
    a(f"v_lshlrev_b32 v{BIAS}, 16, v{BIAS}")
    a(f"v_lshlrev_b32 v{BIAS+1}, 16, v{BIAS+1}")
    a(f"v_pk_mul_f32 {pr(BIAS)}, {pr(BIAS)}, s[68:69]")
    for X in range(2):
        for sidx in range(8):
            step = 8*X + sidx; st_ = step % 3
            nl = 2*min(2, 15-step) + (3 if (X == 1 and sidx < 3) else 0)
            if X == 1 and sidx == 1: nl = 2 + 3 + 2
            a(f"s_waitcnt vmcnt({15 - step + PFT}) lgkmcnt({min(nl, 15)})")
            a(f"v_mfma_f32_32x32x16_bf16 {x16(QA)}, {q4(WP+8*st_)}, {q4(WA+4*step)}, {'0' if sidx == 0 else x16(QA)}")
            a(f"v_mfma_f32_32x32x16_bf16 {x16(QB)}, {q4(WP+8*st_+4)}, {q4(WA+4*step)}, {'0' if sidx == 0 else x16(QB)}")
            if step + 3 < 16: xread(step + 3)
        a("s_nop 10")
        for wi, base in enumerate((QA, QA + 8, QB)):
            for k in range(4):
                a(f"v_pk_fma_f32 {pr(base+2*k)}, {pr(base+2*k)}, s[68:69], {pr(BIAS)} op_sel:[0,0,{X}] op_sel_hi:[1,1,{X}]")
            for k in range(4):
                a(f"v_cvt_pk_bf16_f32 v{WA+4*wi+k+12*X}, v{base+2*k}, v{base+2*k+1}")
            a(f"ds_write_b128 v107, {q4(WA+4*wi+12*X)} offset:{wi*16384 + X*1024}")
    a("s_waitcnt lgkmcnt(0)")
    stp(3)
    a("s_barrier")
    a("ds_read_b64 v[108:109], v111 offset:16")
    a(f"buffer_load_dwordx4 {q4(BC[0])}, v{L16}, s[40:43], s72 offen")
    a(f"buffer_load_dwordx4 {q4(BC[1])}, v{L16}, s[40:43], s72 offen offset:1024")
    a("s_waitcnt lgkmcnt(0)")
    a("v_readfirstlane_b32 s52, v108")
    a("v_readfirstlane_b32 s53, v109")
    a("s_nop 0")
    a("s_cmp_eq_u32 s53, -1")
    a("s_cbranch_scc1 K2_SLOW")
    g0_addr()
    first_reads()
    a("s_waitcnt lgkmcnt(0)")
    stp(4)
    first_loads()
    a.label("K2_QD")
    stp(5)
    a("s_lshl_b32 s66, s52, 10")
    a(f"s_add_u32 s66, s66, {OH}")
    a(f"v_add_u32 v{aAO}, s66, v{aAO}")
    for k in range(4): a(f"ds_read_b32 v{IX[k]}, v{aIDX} offset:{128+k*32}")
    if OCT[0]: a("ds_read_b64 v[106:107], v111 offset:32")
    a(f"v_mov_b32 v166, v109")
    a(f"v_mov_b32 v{aAE}, v110")
    a(f"ds_read_b128 {q4(AO)}, v{aAO}")
    a(f"ds_read_b128 {q4(BQ[0])}, v115 offset:8192")
    a(f"ds_read_b128 {q4(BQ[1])}, v115 offset:9216")
    a(f"v_mov_b32 v{MG}, -1")
    a(f"v_add_u32 v{SOFF}, s66, v{SOFF}")
    a(f"v_mov_b32 v{T0}, {ZERO}")
    a(f"v_cndmask_b32 v{aS1}, v{T0}, v{SOFF}, s[62:63]")
    a(f"v_cndmask_b32 v{aS2}, v{T0}, v{SOFF}, s[64:65]")
    for i in range(16): a(f"v_mov_b32 v{ACC+i}, 0")
    a(f"v_mov_b32 v{CHK}, 0\nv_mov_b32 v{CHK+1}, 0")
    for i in range(4): a(f"v_mov_b32 v{S+i}, 0")
    T3, T2, T1_ = opt.get("t3", 6), opt.get("t2", 3), opt.get("t1", 1)
    a("s_cmp_eq_u32 s26, 2")
    a(f"s_cselect_b32 s94, {opt.get('r2lag', 0)}, 0")
    a("s_sub_u32 s94, s53, s94")
    a(f"s_sub_u32 s90, s94, {T3}")
    a("s_max_i32 s90, s90, 2")
    a("s_mov_b32 s91, 0")
    a("s_sub_u32 s93, s53, 2")
    if OCT[0]:
        a("s_waitcnt lgkmcnt(3)")
        a("v_readfirstlane_b32 s66, v106")
        a("v_readfirstlane_b32 s67, v107")
        a("s_nop 0")
        a("s_lshr_b64 s[66:67], s[66:67], s52")
        if opt.get("allq"): a("s_mov_b32 s66, -1")
        a("s_mov_b32 s95, s66")
        a("s_lshl_b32 s54, s66, 1")
    def flag_wait(tag, off):
        a.label(f"K2_W{tag}")
        a(f"ds_read_b32 v{FV}, v{aEI} offset:{off}")
        a("s_waitcnt lgkmcnt(0)")
        a(f"v_readfirstlane_b32 s66, v{FV}")
        a("s_nop 0")
        a("s_cmp_eq_u32 s66, -1")
        a(f"s_cbranch_scc1 K2_X{tag}")
        a("s_sleep 1")
        a(f"s_branch K2_W{tag}")
        a.label(f"K2_X{tag}")
    if LATE:
        a("s_max_i32 s90, s90, 1")
        a("s_min_u32 s90, s90, s53")
        a("s_min_u32 s67, s53, 2")
        a("s_cmp_ge_u32 s25, s67")
        a("s_waitcnt vmcnt(0)")
        a("s_cbranch_scc1 K2_NF")
        a(f"ds_write_b32 v166, v{MG}")
        a.label("K2_NF")
        for m in range(4): a(f"ds_read_b128 {q4(AP[m])}, v{aAP+m}")
        a("s_waitcnt lgkmcnt(0)")
        a("\n".join(p_dma()))
        a("s_cmp_lt_u32 s25, 2")
        a("s_cbranch_scc1 K2_F2")
        a("\n".join(e_dma()))
        a.label("K2_F2")
        for i in range(4): a(f"v_mov_b32 v{HQ+i}, 0")
        a("s_cmp_eq_u32 s53, 0")
        a("s_cbranch_scc1 K2_EXIT")
        flag_wait("A", 0)
        a(f"ds_read_b128 {q4(AE)}, v{aAE}")
        stp(6)
        stc(12)
        if opt.get("prio", 1): a("s_setprio 3")
        a("s_sub_u32 s68, 0, s25")
        a("s_and_b32 s68, s68, 3")
        a("s_lshl_b32 s67, s68, 7")
        a("s_lshl_b32 s69, s68, 10")
        a(f"v_subrev_u32 v{aAO}, s69, v{aAO}")
        a(f"v_subrev_u32 v{aAE}, s69, v{aAE}")
        a(f"v_subrev_u32 v{aIDX}, s67, v{aIDX}")
        a(f"v_subrev_u32 v{aEI}, s67, v{aEI}")
        a("s_mov_b64 exec, s[62:63]")
        a(f"v_subrev_u32 v{aS1}, s69, v{aS1}")
        a("s_mov_b64 exec, s[64:65]")
        a(f"v_subrev_u32 v{aS2}, s69, v{aS2}")
        a("s_mov_b64 exec, -1")
        a("s_waitcnt lgkmcnt(0)")
        a("\n".join(mf_tile(0)))
        a("s_nop 8")
        a("s_cmp_eq_u32 s68, 1")
        a("s_cbranch_scc1 K2_U1")
        a("s_cmp_eq_u32 s68, 2")
        a("s_cbranch_scc1 K2_U2")
        a("s_cmp_eq_u32 s68, 3")
        a("s_cbranch_scc1 K2_U3")
    else:
        a("s_min_u32 s67, s53, 1")
        a("s_cmp_ge_u32 s25, s67")
        a("s_waitcnt vmcnt(0)")
        a("s_cbranch_scc1 K2_NF")
        a(f"ds_write_b32 v166, v{MG}")
        a(f"ds_read_b32 v{EI}, v{aEI} offset:512")
        a.label("K2_NF")
        a("\n".join(p_reads()))
        a("s_waitcnt lgkmcnt(0)")
        a("\n".join(p_dma()))
        a("\n".join(p_shift(0) + p_shift(1)))
        a("s_sub_u32 s67, s25, 1")
        a("s_cmp_ge_u32 s67, 2")
        a("s_cbranch_scc1 K2_F2")
        a("\n".join(e_dma()))
        a.label("K2_F2")
        for i in range(4): a(f"v_mov_b32 v{HQ+i}, 0")
        a("s_cmp_eq_u32 s53, 0")
        a("s_cbranch_scc1 K2_EXIT")
        def flag_wait(tag, off):
            a.label(f"K2_W{tag}")
            a(f"ds_read_b32 v{FV}, v{aEI} offset:{off}")
            a("s_waitcnt lgkmcnt(0)")
            a(f"v_readfirstlane_b32 s66, v{FV}")
            a("s_nop 0")
            a("s_cmp_eq_u32 s66, -1")
            a(f"s_cbranch_scc1 K2_X{tag}")
            a("s_sleep 1")
            a(f"s_branch K2_W{tag}")
            a.label(f"K2_X{tag}")
        flag_wait("A", 0)
        a(f"ds_read_b128 {q4(AE)}, v{aAE}")
        stp(6)
        stc(12)
        if opt.get("prio", 1): a("s_setprio 3")
        a("s_waitcnt lgkmcnt(0)")
        a("\n".join(mf_tile(0)))
        a("s_nop 10")
        ex0 = {1: [f"ds_read_b32 v{IX[k]}, v{aIDX} offset:{256+k*32}" for k in range(4)]}
        ex1 = {1: [f"ds_read_b64_tr_b16 {pr(S)}, v{aS1}", f"ds_read_b64_tr_b16 {pr(S+2)}, v{aS2}", f"ds_read_b128 {q4(AO)}, v{aAO} offset:1024"]}
        a("\n".join(tile(0, mf_tile(1), ex0, [], [], "P0") + tile(1, [], ex1, [], ["s_waitcnt lgkmcnt(0)"], "P1")))
        a("s_mov_b32 s55, 1")
        a("s_cmp_eq_u32 s53, 1")
        a("s_cbranch_scc1 K2_EXIT")
        a("s_cmp_ge_u32 s67, 2")
        a("s_cselect_b32 s66, 64, s25")
        a("s_cmp_ge_u32 s66, s53")
        a("s_waitcnt vmcnt(0)")
        a("s_cbranch_scc1 K2_NF2")
        a(f"ds_write_b32 v166, v{MG}")
        a.label("K2_NF2")
        a("\n".join(p_reads()))
        a("s_waitcnt lgkmcnt(0)")
        a("\n".join(p_dma()))
        a("\n".join(p_shift(0) + p_shift(1)))
        a("s_cmp_lt_u32 s67, 2")
        a("s_cbranch_scc1 K2_F3")
        a("\n".join(e_dma()))
        a.label("K2_F3")
        flag_wait("B", 128)
        a(f"ds_read_b128 {q4(AE)}, v{aAE} offset:1024")
        a("s_sub_u32 s68, 1, s25")
        a("s_and_b32 s68, s68, 3")
        a("s_sub_u32 s69, 1, s68")
        a("s_lshl_b32 s67, s69, 7")
        a("s_lshl_b32 s69, s69, 10")
        a(f"v_add_u32 v{aAO}, s69, v{aAO}")
        a(f"v_add_u32 v{aAE}, s69, v{aAE}")
        a(f"v_add_u32 v{aIDX}, s67, v{aIDX}")
        a(f"v_add_u32 v{aEI}, s67, v{aEI}")
        a("s_mov_b64 exec, s[62:63]")
        a(f"v_add_u32 v{aS1}, s69, v{aS1}")
        a("s_mov_b64 exec, s[64:65]")
        a(f"v_add_u32 v{aS2}, s69, v{aS2}")
        a("s_mov_b64 exec, -1")
        a("s_waitcnt lgkmcnt(0)")
        a("\n".join(mf_tile(0)))
        a("s_nop 8")
        a("s_cmp_eq_u32 s68, 1")
        a("s_cbranch_scc1 K2_U1")
        a("s_cmp_eq_u32 s68, 2")
        a("s_cbranch_scc1 K2_U2")
        a("s_cmp_eq_u32 s68, 3")
        a("s_cbranch_scc1 K2_U3")
    WPOS = opt.get("wpos", 5)
    MP0 = {0: (0, 3, 6), 1: (0, 4, 8), 2: (2, 6, 10)}[opt.get("mp0", 0)]
    a(".p2align 6")
    for _ in range(opt.get("shift", 0)): a("s_nop 0")
    loop_start = len(a.lines)
    for u in range(4):
        a.label(f"K2_U{u}")
        if LATE:
            upd = []
            if u == 3:
                upd = [f"v_add_u32 v{aAO}, 4096, v{aAO}", f"v_add_u32 v{aAE}, 4096, v{aAE}", f"v_add_u32 v{aIDX}, 512, v{aIDX}", f"v_add_u32 v{aEI}, 512, v{aEI}",
                       "s_mov_b64 exec, s[62:63]", f"v_add_u32 v{aS1}, 4096, v{aS1}", "s_mov_b64 exec, s[64:65]", f"v_add_u32 v{aS2}, 4096, v{aS2}", "s_mov_b64 exec, -1"]
            mid0 = [f"ds_read_b64_tr_b16 {pr(S)}, v{aS1} offset:{u*1024}", f"ds_read_b64_tr_b16 {pr(S+2)}, v{aS2} offset:{u*1024}",
                    f"ds_read_b128 {q4(AO)}, v{aAO} offset:{(u+1)*1024}"]
            t0 = tile(0, mf_tile(1) + [SEGSUM], {}, mid0, [])
            ex1 = {}
            ex1[1] = [f"ds_read_b32 v{FV}, v{aEI} offset:{(u+1)*128}"] + [f"ds_read_b32 v{IX[k]}, v{aIDX} offset:{(u+2)*128+k*32}" for k in range(4)]
            if u == 0: ex1[1] += [f"ds_read_b32 v{EI}, v{aEI} offset:512"]
            ex1[12] = ["s_waitcnt lgkmcnt(0)", f"v_readfirstlane_b32 s66, v{FV}"]
            mid = ["s_cmp_eq_u32 s66, -1", f"s_waitcnt vmcnt({1 if u == 1 else 0})"]
            mid += [f"ds_read_b128 {q4(AP[m])}, v{aAP+m}" for m in range(4)]
            mid += [f"s_cbranch_scc0 K2_FW{u}", f"K2_FR{u}:"]
            mid += [f"ds_read_b128 {q4(AE)}, v{aAE} offset:{(u+1)*1024}"]
            if opt.get("gstamps"): mid += ["s_memrealtime s[96:97]", "s_add_u32 m0, s55, 16"]
            t1 = tile(1, [], ex1, mid, [])
            mf = mf_tile(0)
            post = ["s_add_u32 s66, s55, 2", "s_cmp_ge_u32 s66, s53", "s_waitcnt lgkmcnt(0)"]
            if opt.get("gstamps"): post += ["v_writelane_b32 v0, s96, m0"]
            post += [f"s_cbranch_scc1 K2_ND{u}"]
            if u == 2: post += [f"ds_write_b32 v{aEI}, v{MG} offset:512"]
            for k in range(4):
                post += [f"s_add_u32 m0, s57, {k*1024}", mf[k], f"buffer_load_dwordx4 {pr(IX[k])}, s[32:35], s58 idxen offen{PFL[0]} lds"]
            post += [f"K2_NR{u}:"]
            if u == 0: post += e_dma()
            post += upd
            nst = 1 + (6 if u == 0 else 0) + len(upd) + 3 + (1 if u == 3 else 0) + 1
            if nst - 1 < 12: post += [f"s_nop {12 - (nst - 1) - 1}"]
            a("\n".join(t0 + t1 + post))
        else:
            ex0 = {}
            ex0[1] = [f"ds_read_b32 v{FV}, v{aEI} offset:{(u+1)*128}"] + [f"ds_read_b32 v{IX[k]}, v{aIDX} offset:{(u+2)*128+k*32}" for k in range(4)]
            if u == 0: ex0[1] += [f"ds_read_b32 v{EI}, v{aEI} offset:512"]
            ex0[12] = ["s_waitcnt lgkmcnt(0)", f"v_readfirstlane_b32 s66, v{FV}"]
            mid = ["s_cmp_eq_u32 s66, -1"]
            mid += [f"ds_read_b128 {q4(AO)}, v{aAO} offset:{(u+1)*1024}"]
            mid += [f"ds_read_b64_tr_b16 {pr(S)}, v{aS1} offset:{u*1024}", f"ds_read_b64_tr_b16 {pr(S+2)}, v{aS2} offset:{u*1024}"]
            mid += [f"s_cbranch_scc0 K2_FW{u}", f"K2_FR{u}:"]
            mid += [f"ds_read_b128 {q4(AE)}, v{aAE} offset:{(u+1)*1024}"]
            t0 = tile(0, mf_tile(1) + [SEGSUM], ex0, mid, [], f"A{u}", mpos=MP0)
            pre = [f"s_waitcnt vmcnt({1 if u == 1 else 0})"] + p_reads()
            blk = ["s_cmp_ge_i32 s55, s93", "s_waitcnt lgkmcnt(0)"] + p_shift(0) + [f"s_cbranch_scc1 K2_ND{u}"]
            if u == 2: blk += [f"ds_write_b32 v{aEI}, v{MG} offset:512"]
            blk += p_dma() + [f"K2_ND{u}:"]
            if u == 0: blk += e_dma()
            ex1 = {WPOS: blk}
            mid1 = p_shift(1)
            if u == 3:
                mid1 += [f"v_add_u32 v{aAO}, 4096, v{aAO}", f"v_add_u32 v{aAE}, 4096, v{aAE}", f"v_add_u32 v{aIDX}, 512, v{aIDX}", f"v_add_u32 v{aEI}, 512, v{aEI}",
                        "s_mov_b64 exec, s[62:63]", f"v_add_u32 v{aS1}, 4096, v{aS1}", "s_mov_b64 exec, s[64:65]", f"v_add_u32 v{aS2}, 4096, v{aS2}", "s_mov_b64 exec, -1"]
            exr1 = []
            if opt.get("gstamps"):
                mid1 = mid1 + ["s_memrealtime s[96:97]", "s_add_u32 m0, s55, 16"]
                exr1 += ["s_waitcnt lgkmcnt(0)", "v_writelane_b32 v0, s96, m0", "s_mov_b32 m0, s57"]
            t1 = tile(1, mf_tile(0), ex1, mid1, exr1, f"B{u}", mpos=(WPOS + 2, WPOS + 5), pre=pre)
            a("\n".join(t0 + t1))
        a("s_add_u32 s55, s55, 1")
        a("s_cmp_ge_u32 s55, s90")
        a(f"s_cbranch_scc1 K2_TH{u}")
        if u == 3: a("s_branch K2_U0")
    loop_end = len(a.lines)
    for qtl in QTAILS: a("\n".join(qtl))
    for u in range(4):
        a.label(f"K2_TH{u}")
        a(f"s_mov_b32 s92, {(u+1)&3}")
        if u < 3: a("s_branch K2_TH")
    a.label("K2_TH")
    a("s_cmp_ge_u32 s55, s53")
    a("s_cbranch_scc1 K2_EXIT")
    a("s_add_u32 s91, s91, 1")
    a("s_cmp_eq_u32 s91, 1")
    a("s_cbranch_scc0 K2_TH_2")
    if opt.get("prio", 1): a("s_setprio 2")
    a(f"s_sub_u32 s90, s94, {T2}")
    a("s_branch K2_TH_R")
    a.label("K2_TH_2")
    a("s_cmp_eq_u32 s91, 2")
    a("s_cbranch_scc0 K2_TH_3")
    if opt.get("prio", 1): a("s_setprio 1")
    a(f"s_sub_u32 s90, s94, {T1_}")
    a("s_branch K2_TH_R")
    a.label("K2_TH_3")
    if opt.get("prio", 1): a("s_setprio 0")
    a("s_mov_b32 s90, s53")
    a.label("K2_TH_R")
    a("s_max_i32 s90, s90, 0")
    a("s_cmp_eq_u32 s92, 1")
    a("s_cbranch_scc1 K2_U1")
    a("s_cmp_lg_u32 s60, 0")
    a("s_cbranch_scc1 K2_TH_J")
    a("s_mov_b32 s60, 1")
    a("\n".join(w2_pre(L16)))
    a.label("K2_TH_J")
    a("s_cmp_eq_u32 s92, 2")
    a("s_cbranch_scc1 K2_U2")
    a("s_cmp_eq_u32 s92, 3")
    a("s_cbranch_scc1 K2_U3")
    a("s_branch K2_U0")
    if LATE:
        for u in range(4):
            a.label(f"K2_ND{u}")
            a("\n".join(mf_tile(0)))
            a(f"s_branch K2_NR{u}")
    for u in range(4):
        a.label(f"K2_FW{u}")
        a("s_add_u32 s66, s55, 1")
        a("s_cmp_ge_u32 s66, s53")
        a(f"s_cbranch_scc1 K2_FR{u}")
        a(f"ds_read_b32 v{FV}, v{aEI} offset:{(u+1)*128}")
        a("s_waitcnt lgkmcnt(0)")
        a(f"v_readfirstlane_b32 s66, v{FV}")
        a("s_nop 0")
        a("s_cmp_eq_u32 s66, -1")
        a(f"s_cbranch_scc1 K2_FR{u}")
        a("s_sleep 1")
        a(f"s_branch K2_FW{u}")
    a.label("K2_EXIT")
    a(SEGSUM)
    stp(7)
    stc(13)
    if opt.get("stamps"): a("v_writelane_b32 v0, s53, 14")
    a(f"v_lshrrev_b32 v1, 4, v{L16}")
    a("s_cmp_lg_u32 s60, 0")
    a("s_cbranch_scc1 K2_X1")
    a("\n".join(w2_pre(L16)))
    a.label("K2_X1")
    WL = 116
    def fin_loads(l16):
        srd(a, 48, "s18", "s19", 256)
        for sidx in range(NW2, 8):
            a(f"buffer_load_dwordx4 {q4(WL+4*(sidx-NW2))}, v{l16}, s[40:43], s74 offen offset:{(sidx & 3)*1024}")
        a("v_lshrrev_b32 v8, 4, v1")
        a("v_lshlrev_b32 v9, 3, v8")
        a("s_lshl_b32 s68, s24, 5")
        a("buffer_load_dwordx2 v[10:11], v9, s[48:51], s68 offen")
    fin_loads(L16)
    a("v_subrev_u32 v2, s71, v1")
    a("v_and_b32 v2, 15, v2")
    a(f"v_mul_u32_u24 v2, {HSTR}, v2")
    a("v_and_b32 v3, 16, v1")
    a("v_lshl_add_u32 v2, v3, 2, v2")
    a("v_lshrrev_b32 v3, 5, v1")
    a("v_lshl_add_u32 v3, v3, 3, s57")
    a("v_add_u32 v2, v2, v3")
    a(f"s_waitcnt vmcnt({9 - NW2})")
    for k in range(8):
        a(f"v_cvt_pk_bf16_f32 v{EX+k}, v{ACC+2*k}, v{ACC+2*k+1}")
        if k & 1: a(f"ds_write_b64 v2, {pr(EX+k-1)} offset:{16*(k>>1)}")
    a("s_mov_b32 s66, 0x41800000")
    a("s_mov_b32 s67, 0x41800000")
    a(f"v_pk_mul_f32 {pr(CHK)}, {pr(CHK)}, s[66:67]")
    for k in range(0, 8, 2):
        a(f"v_pk_add_f32 {pr(ACC+2*k)}, {pr(ACC+2*k)}, {pr(ACC+2*k+2)}")
    for k in range(0, 8, 2):
        a(f"v_pk_fma_f32 {pr(CHK)}, {pr(ACC+2*k)}, 0, {pr(CHK)} op_sel_hi:[1,0,1]")
    a("v_mov_b32 v4, 0x207")
    a(f"v_add_f32 v{CHK}, v{CHK}, v{CHK+1}")
    a(f"v_mov_b32 v5, {FLAG}")
    a("v_mov_b32 v7, 1")
    a(f"v_cmpx_class_f32 vcc, v{CHK}, v4")
    a("ds_write_b32 v5, v7")
    a("s_mov_b64 exec, -1")
    a.label("K2_FIN")
    a("s_cmp_ge_u32 s24, 8")
    a("s_cbranch_scc1 K2_HEND")
    a("s_mov_b64 exec, 1")
    a("ds_add_u32 v5, v7 offset:24")
    a("s_mov_b64 exec, -1")
    a("v_and_b32 v12, 15, v1")
    a(f"v_mul_u32_u24 v2, {HSTR}, v12")
    a("v_lshl_add_u32 v2, v8, 4, v2")
    a(f"s_mov_b32 s78, {CNT}")
    a("v_lshl_add_u32 v4, v12, 2, s78")
    for mt in range(3): a(f"ds_read_b32 v{112+mt}, v4 offset:{mt*48}")
    a("v_lshl_add_u32 v13, v12, 16, v9")
    a(f"v_mov_b32 v3, {KILL:#x}")
    a("v_cmp_gt_u32 vcc, 4, v12")
    a("s_lshl_b32 s69, s2, 8")
    a("s_add_u32 s69, s69, s68")
    a("v_cndmask_b32 v14, v13, v3, vcc")
    a(f"s_add_u32 s72, s69, {12 << 16}")
    a(f"s_add_u32 s75, s69, {24 << 16}")
    a(f"s_mov_b32 s76, {NEGLN2:#x}")
    RS = 80
    a.label("K2_E1")
    a("ds_read_b32 v6, v5 offset:24")
    a("s_waitcnt lgkmcnt(0)")
    a("v_readfirstlane_b32 s66, v6")
    a("s_nop 0")
    a("s_cmp_ge_u32 s66, 8")
    a("s_cbranch_scc1 K2_E2")
    a("s_sleep 2")
    a("s_branch K2_E1")
    a.label("K2_E2")
    HB = 16
    OD = 120
    def wfrag(sidx): return WREG[sidx] if sidx < NW2 else WL + 4*(sidx - NW2)
    def hoff(mt, sidx): return (4*mt + (sidx >> 1))*4096 + (sidx & 1)*64
    order = [(sidx, mt) for sidx in range(8) for mt in range(2)]
    for n, (sidx, mt) in enumerate(order[:14]):
        a(f"ds_read_b128 {q4(HB+4*n)}, v2 offset:{hoff(mt, sidx)}")
    for n, (sidx, mt) in enumerate(order):
        issued = min(16, 14 + n)
        wv = f" vmcnt({8 - sidx})" if (sidx >= NW2 and mt == 0) else ""
        a(f"s_waitcnt{wv} lgkmcnt({issued - n - 1})")
        a(f"v_mfma_f32_16x16x32_bf16 {q4(OD+4*mt)}, {q4(wfrag(sidx))}, {q4(HB+4*n)}, {'0' if sidx == 0 else q4(OD+4*mt)}")
        if n < 2: a(f"ds_read_b128 {q4(HB+4*(14+n))}, v2 offset:{hoff(order[14+n][1], order[14+n][0])}")
    a("s_waitcnt vmcnt(0)")
    a("v_lshlrev_b32 v104, 16, v10")
    a("v_and_b32 v105, 0xffff0000, v10")
    a("v_lshlrev_b32 v106, 16, v11")
    a("v_and_b32 v107, 0xffff0000, v11")
    for mt in range(3): a(f"v_cvt_f32_u32 v{108+2*mt}, v{112+mt}" if mt < 2 else f"v_cvt_f32_u32 v112, v114")
    for mt in range(3):
        for i in range(2):
            a(f"v_pk_mul_f32 {pr(RS+4*mt+2*i)}, {pr(104+2*i)}, {pr(108+2*mt)} op_sel_hi:[1,0]")
    def fin_tile(mt):
        for i in range(4):
            a(f"v_fma_f32 v{RS+4*mt+i}, v{OD+4*mt+i}, s76, v{RS+4*mt+i}")
        a(f"v_cvt_pk_bf16_f32 v{132+2*mt}, v{RS+4*mt}, v{RS+4*mt+1}")
        a(f"v_cvt_pk_bf16_f32 v{133+2*mt}, v{RS+4*mt+2}, v{RS+4*mt+3}")
        a(f"buffer_store_dwordx2 {pr(132+2*mt)}, v{13 if mt == 0 else 14}, s[44:47], s{(69,72,75)[mt]} offen{('', ' sc1', ' nt')[opt.get('osc', 1)]}")
    def merge(mt):
        for i in range(4):
            a(f"v_add_f32_dpp v{OD+4*mt+i}, v{OD+4*mt+4+i}, v{OD+4*mt+i} row_shr:12 row_mask:0xf bank_mask:0xf bound_ctrl:0")
    merge(0)
    fin_tile(0)
    stp(8)
    a("s_barrier")
    stp(9)
    for sidx in range(8):
        a(f"ds_read_b128 {q4(HB+4*sidx)}, v2 offset:{hoff(2, sidx)}")
    a("ds_read_b32 v6, v5")
    for sidx in range(8):
        a(f"s_waitcnt lgkmcnt({8 - sidx})")
        a(f"v_mfma_f32_16x16x32_bf16 {q4(OD+8)}, {q4(wfrag(sidx))}, {q4(HB+4*sidx)}, {'0' if sidx == 0 else q4(OD+8)}")
    a("s_waitcnt lgkmcnt(0)")
    a("v_readfirstlane_b32 s82, v6")
    a("s_nop 1")
    a("s_andn2_b32 s82, s82, s70")
    a("s_cmp_lg_u32 s82, 0")
    a("s_cbranch_scc1 K2_REDO")
    a("s_nop 0")
    merge(1)
    fin_tile(2)
    fin_tile(1)
    stp(10)
    if opt.get("stamps"): a("s_waitcnt vmcnt(0)")
    stp(11)
    a.label("K2_END2")
    stamp_out(a, opt, 22, 0xF80000, 24, 0, tmpv=2)
    if opt.get('gstamps'): stamp_out2(a, opt, 22, 0x1000000, 24, 0, tmpv=2)
    a.label("K2_END")
    a("s_endpgm")
    a.label("K2_HEND")
    a("s_waitcnt lgkmcnt(0)")
    stp(8)
    a("s_barrier")
    a("ds_read_b32 v6, v5")
    a("s_waitcnt lgkmcnt(0)")
    a("v_readfirstlane_b32 s82, v6")
    a("s_nop 0")
    a("s_andn2_b32 s82, s82, s70")
    a("s_cmp_lg_u32 s82, 0")
    a("s_cbranch_scc1 K2_REDO")
    a("s_branch K2_END2")
    a.label("K2_CX")
    a("s_mov_b32 s81, 2")
    count([5, 6, 7])
    decode([5, 6, 7])
    a("v_cmpx_eq_u32 vcc, -2, v23")
    a("ds_write_b32 v111, v114")
    a("s_mov_b64 exec, -1")
    a("s_branch K2_C1")
    a.label("K2_SX")
    for k in (5, 6, 7): a(f"ds_bpermute_b32 v{SB+k}, v{RA+k}, v108")
    a("s_waitcnt lgkmcnt(0)")
    scatter([5, 6, 7])
    a("s_branch K2_S1")
    a.label("K2_REDO")
    a("s_setprio 0")
    a("s_mov_b32 s70, -1")
    a("s_lshl_b32 s66, s24, 6")
    a("v_add_u32 v0, s66, v1")
    a("s_waitcnt vmcnt(0) lgkmcnt(0)")
    a("s_barrier")
    a("s_branch K2_TOP")
    a.label("K2_BAD")
    a("v_mov_b32 v108, -1")
    a("v_mov_b32 v109, -1")
    a("ds_write_b64 v111, v[108:109] offset:16")
    a("s_waitcnt vmcnt(0) lgkmcnt(0)")
    a("s_barrier")
    a.label("K2_SLOW")
    a("s_setprio 0")
    a("s_mov_b32 s70, -1")
    a("s_waitcnt vmcnt(0) lgkmcnt(0)")
    a("s_barrier")
    a("s_lshl_b32 s66, s24, 10")
    a(f"s_add_u32 s66, s66, {OH}")
    a("v_lshl_add_u32 v2, v1, 4, s66")
    for i in range(4): a(f"v_mov_b32 v{4+i}, 0")
    for i in range(4): a(f"ds_write_b128 v2, v[4:7] offset:{i*12288}")
    a("v_lshlrev_b32 v12, 2, v1")
    a(f"v_add_u32 v3, {CNT}, v12")
    a("ds_write_b32 v3, v4")
    srd(a, 84, "s8", "s9", E * 4)
    srd(a, 88, "s10", "s11", E * 4)
    a("v_and_b32 v8, 31, v1")
    a("v_lshlrev_b32 v8, 4, v8")
    a("v_lshrrev_b32 v9, 5, v1")
    a("v_lshl_add_u32 v8, v9, 10, v8")
    a("s_lshl_b32 s72, s25, 11")
    a(f"s_add_u32 s66, s72, {WCF_OFF - CELL_OFF}")
    a("buffer_load_dwordx4 v[16:19], v8, s[40:43], s66 offen")
    a("buffer_load_dwordx4 v[20:23], v8, s[40:43], s66 offen offset:512")
    a(f"s_add_u32 s72, s72, {EIM + 8192}")
    a("v_add_u32 v8, s72, v8")
    a("v_lshlrev_b32 v7, 4, v1")
    a("\n".join(w2_pre(7)))
    srd_ws(a, 92, 22, P_OFF, N * 512)
    a("v_lshlrev_b32 v10, 1, v1")
    a("v_add_u32 v10, s58, v10")
    a("v_lshlrev_b32 v11, 1, v10")
    a(f"v_add_u32 v11, {OH}, v11")
    a("v_mov_b32 v13, 1")
    a("s_waitcnt vmcnt(0)")
    for k in range(8):
        a(f"v_lshlrev_b32 v{24+2*k}, 16, v{16+k}")
        a(f"v_and_b32 v{25+2*k}, 0xffff0000, v{16+k}")
    a("s_waitcnt lgkmcnt(0)")
    a("s_barrier")
    a("s_mov_b32 s66, s26")
    a.label("K2_SL_BLK")
    a("s_lshl_b32 s67, s66, 8")
    a("buffer_load_dword v40, v12, s[88:91], s67 offen")
    a("buffer_load_dword v41, v12, s[84:87], s67 offen")
    a("s_waitcnt vmcnt(0)")
    a("v_and_b32 v42, 255, v40")
    a("v_cmp_eq_u32 vcc, s2, v42")
    a("s_nop 1")
    a("s_mov_b64 s[68:69], vcc")
    a.label("K2_SL_E")
    a("s_cmp_eq_u64 s[68:69], 0")
    a("s_cbranch_scc1 K2_SL_NB")
    a("s_ff1_i32_b64 s72, s[68:69]")
    a("s_bitset0_b64 s[68:69], s72")
    a("v_readlane_b32 s52, v40, s72")
    a("v_readlane_b32 s53, v41, s72")
    a("s_lshl_b32 s75, s66, 6")
    a("s_add_u32 s75, s75, s72")
    a("s_lshl_b32 s75, s75, 5")
    a("s_load_dwordx8 s[76:83], s[6:7], s75")
    a("s_lshl_b32 s53, s53, 9")
    a("s_lshr_b32 s52, s52, 8")
    a("s_cmp_ge_u32 s52, 16")
    a("s_cselect_b32 s75, 16384, 0")
    a("s_cmp_ge_u32 s52, 28")
    a("s_cselect_b32 s75, 32768, s75")
    a("s_bfe_u32 s55, s52, 0x10003")
    a("s_lshl_b32 s55, s55, 9")
    a("s_add_u32 s75, s75, s55")
    a("s_and_b32 s55, s52, 7")
    a("s_lshl_b32 s55, s55, 1")
    a("s_add_u32 s75, s75, s55")
    a("v_add_u32 v45, s75, v8")
    a("buffer_load_ushort v43, v10, s[92:95], s53 offen")
    a("ds_read_u16 v44, v45")
    a("s_waitcnt vmcnt(0) lgkmcnt(0)")
    a("v_lshlrev_b32 v43, 16, v43")
    a("v_lshlrev_b32 v44, 16, v44")
    import struct
    PC = struct.unpack("<I", struct.pack("<f", 1.0 / (1 - opt.get("pcomp", 20) * 1e-4)))[0]
    a(f"v_mul_f32 v43, {PC:#x}, v43")
    a("v_add_f32 v43, v43, v44")
    for k in range(8):
        a(f"s_lshl_b32 s53, s{76+k}, 16")
        a(f"v_fmac_f32 v43, s53, v{24+2*k}")
        a(f"s_and_b32 s53, s{76+k}, 0xffff0000")
        a(f"v_fmac_f32 v43, s53, v{25+2*k}")
    a("v_exp_f32 v44, v43")
    a("s_lshl_b32 s53, s52, 10")
    a("v_add_f32 v44, 1.0, v44")
    a("v_rcp_f32 v44, v44")
    a("v_add_u32 v45, s53, v11")
    a("v_mul_f32 v43, v43, v44")
    a("ds_add_f32 v45, v43")
    a("s_cmp_lg_u32 s25, 0")
    a("s_cbranch_scc1 K2_SL_E")
    a("s_lshl_b32 s53, s52, 2")
    a(f"s_add_u32 s53, s53, {CNT}")
    a("v_mov_b32 v45, s53")
    a("s_mov_b64 exec, 1")
    a("ds_add_u32 v45, v13")
    a("s_mov_b64 exec, -1")
    a("s_branch K2_SL_E")
    a.label("K2_SL_NB")
    a("s_add_u32 s66, s66, 3")
    a(f"s_cmp_lt_u32 s66, {E // 64}")
    a("s_cbranch_scc1 K2_SL_BLK")
    a("s_waitcnt lgkmcnt(0)")
    a("s_barrier")
    a("v_and_b32 v2, 31, v1")
    a("v_lshrrev_b32 v3, 5, v1")
    a("s_mov_b32 s66, 0")
    a.label("K2_SL_CV")
    a("v_add_u32 v4, s66, v3")
    a("v_add_u32 v5, s71, v4")
    a("s_cmp_lt_u32 s66, 4")
    a("s_cselect_b32 s67, s26, 0")
    a("s_cmp_lg_u32 s67, 0")
    a("s_cbranch_scc0 K2_SL_NZ")
    a("v_mov_b32 v5, 47")
    a.label("K2_SL_NZ")
    a("v_lshlrev_b32 v5, 10, v5")
    a("v_lshl_add_u32 v5, v2, 3, v5")
    a("s_lshl_b32 s67, s58, 1")
    a(f"s_add_u32 s67, s67, {OH}")
    a("v_add_u32 v5, s67, v5")
    a("ds_read_b64 v[6:7], v5")
    a(f"v_mul_u32_u24 v4, {HSTR}, v4")
    a("v_lshl_add_u32 v4, v2, 2, v4")
    a("v_add_u32 v4, s57, v4")
    a("s_waitcnt lgkmcnt(0)")
    a("v_cvt_pk_bf16_f32 v6, v6, v7")
    a("ds_write_b32 v4, v6")
    a("s_add_u32 s66, s66, 2")
    a("s_cmp_lt_u32 s66, 16")
    a("s_cbranch_scc1 K2_SL_CV")
    a("v_lshlrev_b32 v7, 4, v1")
    fin_loads(7)
    a(f"v_mov_b32 v5, {FLAG}")
    a("v_mov_b32 v7, 1")
    a("s_branch K2_FIN")
    if opt.get("e64"):
        for i in range(loop_start, loop_end):
            l = a.lines[i]
            if l.startswith("v_exp_f32 ") or l.startswith("v_rcp_f32 "): a.lines[i] = l.replace("_f32 ", "_f32_e64 ", 1)
    a.loop = (loop_start, loop_end)
    return a, NV2, (102 if opt.get('stamps') else 96)
```

```python
import sys, re
from asmlib import *
from k1 import *
from k2 import *
import k3

CLK = [0]
def gen_diag(code):
    kern = code // 1000; idx = (code % 1000) // 10; mx = code % 10
    off = {1: 0xF00000, 2: 0xF80000, 3: 0xF00000, 4: 0xF00000 + NGEMM * 1024}[kern]
    nwg = {1: NGEMM + NSORTWG, 2: 256, 3: NGEMM, 4: NSORTWG}[kern]
    nw = 8
    a = Asm()
    a.label("mpnn_diag_kernel")
    a("s_cmp_ge_u32 s2, 1")
    a("s_cbranch_scc1 KD_END")
    a("s_load_dwordx2 s[4:5], s[0:1], 80")
    a("s_memrealtime s[6:7]")
    a("v_lshlrev_b32 v1, 10, v0")
    a("s_waitcnt lgkmcnt(0)")
    a(f"s_add_u32 s8, s4, {off}")
    a("s_addc_u32 s9, s5, 0")
    a(f"s_mov_b32 s10, {nwg*1024}")
    a("s_mov_b32 s11, 0x00020000")
    a(f"v_mov_b32 v2, {-1 if mx else 0}")
    for i in range((nwg + 63) // 64):
        a(f"s_mov_b32 s12, {i*65536}")
        for w in range(nw):
            a(f"buffer_load_dword v{8+w}, v1, s[8:11], s12 offen offset:{w*64+idx*4}")
        a("s_waitcnt vmcnt(0)")
        for w in range(nw):
            a(f"v_cmp_ne_u32 vcc, 0, v{8+w}")
            a(f"v_sub_u32 v3, s6, v{8+w}")
            a("s_nop 0")
            a(f"v_cndmask_b32 v3, v2, v3, vcc")
            a(f"v_{'min' if mx else 'max'}_u32 v2, v2, v3")
    a(f"s_mov_b32 s13, {-1 if mx else 0}")
    a("s_nop 1")
    for l in range(64):
        a(f"v_readlane_b32 s14, v2, {l}")
        a("s_nop 0")
        a(f"s_{'min' if mx else 'max'}_u32 s13, s13, s14")
    a("s_min_u32 s13, s13, 10000")
    a("s_sub_u32 s13, s6, s13")
    if CLK[0]:
        a(f"s_add_u32 s8, s4, {0xF80000}")
        a("s_addc_u32 s9, s5, 0")
        a("s_mov_b32 s10, 0x40000")
        for n, o in enumerate((6, 7, 12, 13)):
            a(f"buffer_load_dword v{8+n}, v1, s[8:11], 0 offen offset:{64 + o*4}")
        a("s_waitcnt vmcnt(0)")
        a("v_sub_u32 v8, v9, v8")
        a("v_sub_u32 v10, v11, v10")
        a("v_cvt_f32_u32 v8, v8")
        a("v_cvt_f32_u32 v10, v10")
        a("v_rcp_f32 v8, v8")
        a("s_nop 0")
        a("v_mul_f32 v8, v8, v10")
        a("v_mul_f32 v8, 0x42c80000, v8")
        a("v_cvt_u32_f32 v8, v8")
        a("s_mov_b32 s15, 0")
        a("s_nop 0")
        for l in range(64):
            a(f"v_readlane_b32 s14, v8, {l}")
            a("s_nop 0")
            a("s_add_u32 s15, s15, s14")
        a("s_lshr_b32 s15, s15, 6")
        a("s_min_u32 s15, s15, 3000")
        a("s_add_u32 s13, s13, s15")
    a.label("KD_SPIN")
    a("s_memrealtime s[6:7]")
    a("s_waitcnt lgkmcnt(0)")
    a("s_sub_u32 s14, s6, s13")
    a("s_cmp_lt_i32 s14, 10000")
    a("s_cbranch_scc1 KD_SPIN")
    a.label("KD_END")
    a("s_endpgm")
    return a, 24, 24

def build3(opt):
    hdr = open("standalone__edge_featured_mpnn_mpnn__graph.s.ref").read().split("\n")
    hdr = [l for l in hdr if l.startswith(";")][:12]
    out = "\n".join(hdr) + "\n"
    if opt.get("single"):
        out += f"; @launch grid=(256,1,1) block=(768,1,1) lds={K2_LDS}\n"
    else:
        out += f"; @launch kernel={k3.KNAME} grid=(256,1,1) block=(768,1,1) lds={K2_LDS}\n"
    if "diag" in opt:
        out += "; @launch kernel=mpnn_diag_kernel grid=(1,1,1) block=(64,1,1) lds=0\n"
    out += '.amdgcn_target "amdgcn-amd-amdhsa--gfx950"\n.text\n'
    ks = [(k3.KNAME,) + k3.gen_k3(opt)]
    if "diag" in opt:
        ks.append(("mpnn_diag_kernel",) + gen_diag(opt["diag"]))
    return finish(out, ks)

def build(opt):
    CLK[0] = opt.get("clk", 0)
    if opt.get("fused"): return build3(opt)
    hdr = open("standalone__edge_featured_mpnn_mpnn__graph.s.ref").read().split("\n")
    hdr = [l for l in hdr if l.startswith(";")][:12]
    out = "\n".join(hdr) + "\n"
    for _ in range(opt.get("pre_empty", 0)):
        out += "; @launch kernel=mpnn_empty_kernel grid=(256,1,1) block=(64,1,1) lds=0\n"
    out += f"; @launch kernel=mpnn_pre_kernel grid=({K1_WGS},1,1) block=({K1_BLOCK},1,1) lds={K1_LDS}\n"
    for _ in range(opt.get("mid_empty", 0)):
        out += "; @launch kernel=mpnn_empty_kernel grid=(256,1,1) block=(64,1,1) lds=0\n"
    for _ in range(opt.get("mid_big", 0)):
        out += "; @launch kernel=mpnn_empty_kernel grid=(256,1,1) block=(768,1,1) lds=163840\n"
    for _ in range(opt.get("k1x", 0)):
        out += f"; @launch kernel=mpnn_pre_kernel grid=({K1_WGS},1,1) block=({K1_BLOCK},1,1) lds={K1_LDS}\n"
    if not opt.get("k1only"):
        out += f"; @launch kernel=mpnn_main_kernel grid=(256,1,1) block=(768,1,1) lds={K2_LDS}\n"
    for _ in range(opt.get("post_empty", 0)):
        out += "; @launch kernel=mpnn_empty_kernel grid=(256,1,1) block=(64,1,1) lds=0\n"
    if "diag" in opt:
        out += "; @launch kernel=mpnn_diag_kernel grid=(1,1,1) block=(64,1,1) lds=0\n"
    out += '.amdgcn_target "amdgcn-amd-amdhsa--gfx950"\n.text\n'
    ks = [("mpnn_pre_kernel",) + gen_k1(opt), ("mpnn_main_kernel",) + gen_k2(opt)]
    if opt.get("pre_empty") or opt.get("post_empty") or opt.get("mid_empty") or opt.get("mid_big"):
        e = Asm(); e.label("mpnn_empty_kernel"); e("s_endpgm")
        ks.append(("mpnn_empty_kernel", e, 168 if opt.get("mid_big") else 8, 8))
    if "diag" in opt:
        ks.append(("mpnn_diag_kernel",) + gen_diag(opt["diag"]))
    return finish(out, ks)

def finish(out, ks):
    errs = []
    for name, a, nv, ns in ks:
        errs += check_hazards(a.lines, name)
        if hasattr(a, "loop"):
            b = a.lines[a.loop[0]:a.loop[1]]
            errs += check_hazards(b[-40:] + b[:40], name + " backedge")
        out += f".globl {name}\n.p2align 8\n.type {name},@function\n" + a.text()
    out += '.section .rodata,"a"\n'
    for name, a, nv, ns in ks:
        out += f""".p2align 6
.amdhsa_kernel {name}
  .amdhsa_next_free_vgpr {nv}
  .amdhsa_next_free_sgpr {ns}
  .amdhsa_accum_offset {(nv + 3) // 4 * 4}
  .amdhsa_group_segment_fixed_size 0
  .amdhsa_kernarg_size 88
  .amdhsa_user_sgpr_count 2
  .amdhsa_user_sgpr_kernarg_segment_ptr 1
  .amdhsa_system_sgpr_workgroup_id_x 1
  .amdhsa_float_denorm_mode_32 3
.end_amdhsa_kernel
"""
    return out, errs

if __name__ == "__main__":
    opt = {}
    dst = "standalone__edge_featured_mpnn_mpnn__graph.s"
    for x in sys.argv[1:]:
        if x.endswith(".s"): dst = x
        else:
            k, _, val = x.partition("=")
            opt[k] = int(val) if val else 1
    out, errs = build(opt)
    for e in errs: print(e)
    open(dst, "w").write(out)
    print("wrote", dst, len(out), "bytes; hazards:", len(errs))
```

```python
from asmlib import *
from k1 import *

NW = 12
PSLOT = 0
EIM = 49152
OH = 98304
ZERO = 147456
CNT = ZERO + 256
FLAG = ZERO + 512
DEG = ZERO + 1536
IDX = ZERO + 3328
EOFF = IDX + 6400
HSTR = 144
K2_LDS = 163840
assert EOFF + 6144 <= K2_LDS
GCAP = 48
KILL = 0x40000000
NEGLN2 = 0xBF317218
aAE = 1; aAP = 2; aAO = 7; aS1 = 8; aS2 = 9; aIDX = 10; aEI = 11; EI = 12; CHK = 14
D = [16, 32]; EX = 48; ACC = 64; BC = [80, 84]; BQ = [88, 92]; ID = [96, 100]
AE = 104; FV = 164; MG = 165; AO = 108; S = 112; AP = [116, 120, 124, 128]; HQ = 132; IX = [136, 138, 140, 142]
WP = 144
NV2 = 168

def pr(r): return v(r, 2)
def q4(r): return v(r, 4)
def x16(r): return v(r, 16)

C1 = 116
def mf_tile(Y):
    d = D[Y]
    return [f"v_mfma_f32_32x32x16_bf16 {x16(d)}, {q4(AE)}, {q4(BC[Y])}, {x16(C1 if Y else d)}",
            f"v_mfma_f32_32x32x16_bf16 {x16(d)}, {q4(AO)}, {q4(BQ[Y])}, {x16(d)}"]
def p_reads():
    return [f"ds_read_b64_tr_b16 {pr((C1 if X else D[0])+4*j)}, v{aAP+X} offset:{j*256}" for X in range(2) for j in range(4)]
def p_shift(X):
    b = C1 if X else D[0]
    return [f"v_lshlrev_b64 {pr(b+4*j+2)}, 16, {pr(b+4*j)}" for j in range(4)]
SEGSUM = f"v_mfma_f32_32x32x16_bf16 {x16(ACC)}, {q4(HQ)}, {q4(S)}, {x16(ACC)}"

OCT = [0]
QTAILS = []
def tile(X, mf, ex_exp, mid, ex_rcp, tag=None, mpos=(0, 3, 6, 9, 12), pre=()):
    d = D[X]; out = list(pre); mi = 0
    for i in range(16):
        if i in mpos and mi < len(mf):
            out.append(mf[mi]); mi += 1
        out.append(f"v_exp_f32 v{EX+i}, v{d+i}")
        out += ex_exp.get(i, [])
    out += mid
    NAB, NCD, DAB, DCD = d, d + 8, EX, EX + 8
    out.append(f"v_pk_add_f32 {pr(DAB)}, {pr(EX)}, 1.0 op_sel_hi:[1,0]")
    out.append(f"v_pk_add_f32 {pr(DCD)}, {pr(EX+8)}, 1.0 op_sel_hi:[1,0]")
    for k in range(1, 4):
        out.append(f"v_pk_fma_f32 {pr(NAB)}, {pr(NAB)}, {pr(EX+2*k)}, {pr(NAB)}")
        out.append(f"v_pk_fma_f32 {pr(NCD)}, {pr(NCD)}, {pr(EX+8+2*k)}, {pr(NCD)}")
        out.append(f"v_pk_fma_f32 {pr(NAB)}, {pr(d+2*k)}, {pr(DAB)}, {pr(NAB)}")
        out.append(f"v_pk_fma_f32 {pr(NCD)}, {pr(d+8+2*k)}, {pr(DCD)}, {pr(NCD)}")
        out.append(f"v_pk_fma_f32 {pr(DAB)}, {pr(DAB)}, {pr(EX+2*k)}, {pr(DAB)}")
        out.append(f"v_pk_fma_f32 {pr(DCD)}, {pr(DCD)}, {pr(EX+8+2*k)}, {pr(DCD)}")
    qt = [f"v_pk_fma_f32 {pr(CHK)}, {pr(DAB)}, {pr(DCD)}, {pr(CHK)}"]
    for r in (DAB, DAB + 1, DCD, DCD + 1):
        qt.append(f"v_rcp_f32 v{r}, v{r}")
    qt.append(f"v_pk_mul_f32 {pr(NAB)}, {pr(NAB)}, {pr(DAB)}")
    qt.append(f"v_pk_mul_f32 {pr(NCD)}, {pr(NCD)}, {pr(DCD)}")
    qt.append(f"v_cvt_pk_bf16_f32 v{HQ+2*X}, v{NAB}, v{NAB+1}")
    qt.append(f"v_cvt_pk_bf16_f32 v{HQ+2*X+1}, v{NCD}, v{NCD+1}")
    out += ex_rcp
    if not OCT[0] or tag is None:
        return out + qt
    DM = EX + 2
    out += ["s_bitcmp1_b32 s95, s55", f"s_cbranch_scc1 K2_QT{tag}",
            f"v_pk_mul_f32 {pr(DM)}, {pr(DAB)}, {pr(DCD)}",
            f"v_pk_mul_f32 {pr(NAB)}, {pr(NAB)}, {pr(DCD)}",
            "s_bitcmp0_b32 s54, s55",
            f"v_rcp_f32 v{DM+2}, v{DM}",
            f"v_rcp_f32 v{DM+3}, v{DM+1}",
            f"v_pk_fma_f32 {pr(NAB)}, {pr(NCD)}, {pr(DAB)}, {pr(NAB)}",
            f"v_pk_add_f32 {pr(CHK)}, {pr(CHK)}, {pr(DM)}",
            f"v_pk_mul_f32 {pr(NAB)}, {pr(NAB)}, {pr(DM+2)}",
            f"s_cbranch_scc1 K2_OZ{tag}",
            f"v_mov_b32 v{HQ+2*X+1}, 0",
            f"K2_OZ{tag}:",
            f"v_cvt_pk_bf16_f32 v{HQ+2*X}, v{NAB}, v{NAB+1}",
            f"K2_QR{tag}:"]
    QTAILS.append([f"K2_QT{tag}:"] + qt + [f"s_branch K2_QR{tag}"])
    return out

PFL = [""]
def p_dma():
    return [f"buffer_load_dwordx4 {pr(IX[k])}, s[32:35], s{28+k} idxen offen offset:{k*1024}{PFL[0]} lds" for k in range(4)]

EFL = [""]
def e_dma():
    return ["s_cmp_lt_u32 s61, s53",
            f"s_cselect_b32 s86, {E}, 0",
            f"s_cselect_b32 m0, s59, {K2_LDS:#x}",
            "s_add_u32 s61, s61, 4",
            f"buffer_load_dwordx4 {pr(EI)}, s[84:87], 0 idxen offen{EFL[0]} lds",
            "s_mov_b32 m0, s57",
            "s_add_u32 s59, s59, 4096"]
NW2 = 7
WREG = [144, 148, 152, 156, 160, 96, 100]
def w2_pre(vaddr):
    return [f"buffer_load_dwordx4 {q4(WREG[sidx])}, v{vaddr}, s[40:43], s{73 + (sidx >> 2)} offen offset:{(sidx & 3)*1024}" for sidx in range(NW2)]

def gen_k2(opt=None):
    opt = opt or {}
    EFL[0] = {0: "", 1: " nt", 2: " sc1"}[opt.get("efl", 0)]
    OCT[0] = opt.get("oct", 0)
    QTAILS.clear()
    PFL[0] = {0: "", 1: " sc1", 2: " sc0 sc1", 3: " sc0"}[opt.get("pfl", 0)]
    a = Asm()
    def stp(i):
        if opt.get("stamps"):
            a("s_memrealtime s[96:97]"); a("s_waitcnt lgkmcnt(0)"); a(f"v_writelane_b32 v0, s96, {i}")
    def stc(i):
        if opt.get("stamps"):
            a("s_memtime s[96:97]"); a("s_waitcnt lgkmcnt(0)"); a(f"v_writelane_b32 v0, s96, {i}")
    a.label("mpnn_main_kernel")
    a("s_cmp_ge_u32 s2, 256")
    a("s_cbranch_scc1 K2_END")
    a("s_mov_b32 s70, 0")
    a.label("K2_TOP")
    a("s_load_dwordx2 s[22:23], s[0:1], 80")
    a("s_load_dwordx16 s[4:19], s[0:1], 0")
    a("s_load_dwordx2 s[20:21], s[0:1], 64")
    if opt.get("stamps"): a("s_memrealtime s[98:99]")
    a("v_lshrrev_b32 v72, 6, v0")
    a("v_and_b32 v1, 63, v0")
    a("v_readfirstlane_b32 s24, v72")
    a("v_lshlrev_b32 v24, 4, v0")
    L16 = 6
    a(f"v_lshlrev_b32 v{L16}, 4, v1")
    a("s_lshl_b32 s66, s2, 13")
    a(f"s_add_u32 s67, s66, {1 << 21}")
    a("s_and_b32 s25, s24, 3")
    a("s_lshr_b32 s26, s24, 2")
    a("s_cmp_ge_u32 s24, 8")
    a("s_cbranch_scc1 K2_HL")
    a("s_waitcnt lgkmcnt(0)")
    srd_ws(a, 40, 22, CELL_OFF, (W2F_OFF - CELL_OFF) + FRAG_BYTES)
    a("buffer_load_dwordx4 v[16:19], v24, s[40:43], s66 offen")
    a(f"buffer_load_dwordx4 v[20:23], v24, s[40:43], s67 offen{' nt' if opt.get('bnt', 1) else ''}")
    a("s_branch K2_CM")
    a.label("K2_HL")
    if opt.get("hp", 0): a("s_setprio 3")
    a("v_lshrrev_b32 v77, 4, v1")
    a("s_lshl_b32 s68, s25, 2")
    a("v_add_u32 v77, s68, v77")
    a("v_xor_b32 v27, v77, v1")
    a("v_and_b32 v27, 15, v27")
    a("v_lshlrev_b32 v27, 4, v27")
    a("v_lshl_add_u32 v26, v77, 16, v27")
    for win in (1, 2):
        a(f"v_subrev_u32 v78, {12*win}, v77")
        a("v_and_b32 v78, 15, v78")
        a(f"v_add_u32 v78, {12*win}, v78")
        a(f"v_lshl_add_u32 v{27+win}, v78, 16, v27")
    a("s_lshl_b32 s68, s2, 8")
    a("s_lshl_b32 s69, s25, 10")
    a(f"s_add_u32 m0, s69, {EIM + 4096}")
    a("s_waitcnt lgkmcnt(0)")
    srd(a, 36, "s4", "s5", N * 256)
    a("buffer_load_dwordx4 v26, s[36:39], s68 offen lds")
    a(f"s_add_u32 m0, s69, {EIM + 4096 + 16384}")
    srd_ws(a, 40, 22, CELL_OFF, (W2F_OFF - CELL_OFF) + FRAG_BYTES)
    a("buffer_load_dwordx4 v28, s[36:39], s68 offen lds")
    a(f"s_add_u32 m0, s69, {EIM + 4096 + 32768}")
    a("s_lshr_b32 s66, s2, 3")
    a("buffer_load_dwordx4 v29, s[36:39], s68 offen lds")
    a(f"s_mul_i32 s66, s66, {34*128}")
    a(f"s_mul_i32 s67, s25, {9*128}")
    a("s_add_u32 s66, s66, s67")
    a(f"s_add_u32 s66, s66, {W2F_OFF - CELL_OFF}")
    a("v_min_u32 v30, 8, v1")
    a("v_lshlrev_b32 v30, 7, v30")
    a("buffer_load_dword v134, v30, s[40:43], s66 offen")
    a.label("K2_CM")
    a("s_mul_i32 s71, s26, 12")
    a("s_lshl_b32 s56, s26, 14")
    a(f"s_add_u32 s56, s56, {EIM}")
    a("s_lshl_b32 s69, s25, 10")
    a("s_add_u32 s59, s56, s69")
    a("s_lshl_b32 s66, s24, 13")
    a(f"s_add_u32 s73, s66, {W2F_OFF - CELL_OFF}")
    a("s_cmp_lt_u32 s24, 8")
    a(f"s_cselect_b32 s73, s73, {KILL:#x}")
    a("s_add_u32 s74, s73, 4096")
    a("s_lshl_b32 s72, s25, 11")
    a(f"s_add_u32 s72, s72, {WCF_OFF - CELL_OFF}")
    a(f"v_add_u32 v156, {OH}, v24")
    for i in range(4): a(f"v_mov_b32 v{144+i}, 0")
    a(f"v_mov_b32 v31, {N}")
    a(f"v_mov_b32 v152, {E}")
    a(f"v_cmp_gt_u32 vcc, {EOFF - ZERO}, v24")
    a("v_mov_b32 v153, v152")
    a("v_mov_b32 v154, v152")
    a("v_cndmask_b32 v148, v152, v31, vcc")
    a("v_mov_b32 v155, v152")
    for i in range(1, 4): a(f"v_mov_b32 v{148+i}, v148")
    a(f"v_cmpx_le_u32 vcc, {IDX - ZERO}, v24")
    a(f"ds_write_b128 v156, v[148:151] offset:{4*12288}")
    a("s_mov_b64 exec, -1")
    a("s_cmp_lg_u32 s24, 0")
    a("s_cbranch_scc1 K2_I0")
    for i in range(3): a(f"ds_write_b128 v156, v[144:147] offset:{4*12288 + i*1024}")
    a("s_mov_b64 exec, 0xffff")
    a(f"ds_write_b128 v156, v[144:147] offset:{4*12288 + 3072}")
    a("s_mov_b64 exec, -1")
    a.label("K2_I0")
    for i in range(4): a(f"ds_write_b128 v156, v[144:147] offset:{i*12288}")
    a("s_cmp_lt_u32 s24, 4")
    a("s_cbranch_scc0 K2_I1")
    a(f"ds_write_b128 v156, v[152:155] offset:{5*12288}")
    a.label("K2_I1")
    a("v_lshrrev_b32 v72, 2, v0")
    if opt.get("stamps"):
        a("v_mov_b32 v0, 0"); a("v_writelane_b32 v0, s98, 0")
    a(f"v_mov_b32 v111, {FLAG}")
    a("v_mov_b32 v114, 1")
    a("s_lshl_b32 s57, s24, 12")
    a("s_lshl_b32 s58, s25, 7")
    if opt.get("hs", 1):
        a("s_cmp_ge_u32 s24, 8")
        a("s_cbranch_scc1 K2_HQ")
    a.label("K2_SET")
    a("s_mov_b32 s84, s6")
    a("s_and_b32 s85, s7, 0xffff")
    a(f"s_or_b32 s85, s85, {32 << 16:#x}")
    a("s_mov_b32 s87, 0x00020000")
    a(f"s_add_u32 s32, s22, {P_OFF - 3072}")
    a("s_addc_u32 s33, s23, 0")
    a("s_and_b32 s33, s33, 0xffff")
    a(f"s_or_b32 s33, s33, {512 << 16:#x}")
    a(f"s_mov_b32 s34, {N+1}")
    a("s_mov_b32 s35, 0x00020000")
    srd(a, 44, "s20", "s21", N * 256)
    H_, I_, T0, T1 = 77, 78, 105, 106
    a(f"v_lshrrev_b32 v{H_}, 5, v1")
    a(f"v_and_b32 v{I_}, 31, v1")
    a(f"v_bfe_u32 v{T0}, v1, 3, 2")
    a(f"v_bfe_u32 v{T1}, v1, 1, 1")
    a(f"v_lshl_or_b32 v{T0}, v{T0}, 1, v{T1}")
    a(f"v_and_b32 v{T1}, 1, v1")
    a(f"v_lshl_or_b32 v{T0}, v{T1}, 3, v{T0}")
    a(f"v_and_b32 v{T1}, 4, v1")
    a(f"v_lshl_or_b32 v{T0}, v{T1}, 2, v{T0}")
    a("s_mov_b32 m0, s57")
    for k in range(4): a(f"s_add_u32 s{28+k}, s58, {(3-k)*1024}")
    a(f"v_and_b32 v{T1}, 3, v1")
    a(f"v_lshl_add_u32 v{aAP}, v{T1}, 3, s57")
    a(f"v_and_b32 v{T1}, 16, v1")
    a(f"v_lshl_add_u32 v{aAP}, v{T1}, 1, v{aAP}")
    a(f"v_lshl_add_u32 v{aAP}, v{H_}, 11, v{aAP}")
    a(f"v_and_b32 v{T1}, 8, v1")
    a(f"v_mul_u32_u24 v{T1}, {(1024 + 64) // 8}, v{T1}")
    a(f"v_add_u32 v{aAP}, v{aAP}, v{T1}")
    a(f"v_not_b32 v{T1}, v1")
    a(f"v_and_b32 v{T1}, 4, v{T1}")
    a(f"v_lshl_add_u32 v{aAP}, v{T1}, 5, v{aAP}")
    a(f"v_xor_b32 v{aAP+1}, 64, v{aAP}")
    a(f"v_bfe_u32 v{T1}, v{T0}, 3, 1")
    a(f"v_xor_b32 v{T1}, v{T1}, v{H_}")
    a(f"v_lshl_add_u32 v{T1}, v{T1}, 4, s56")
    a(f"v_lshl_add_u32 v110, v{T0}, 5, v{T1}")
    a(f"s_add_u32 s52, s56, {OH - EIM}")
    a(f"v_lshl_add_u32 v{T1}, v{H_}, 4, s52")
    a(f"v_lshl_add_u32 v{aAO}, v{T0}, 5, v{T1}")
    a("s_lshl_b32 s66, s26, 11")
    a(f"s_add_u32 s67, s66, {EOFF}")
    a(f"s_add_u32 s66, s66, {IDX}")
    a(f"v_and_b32 v{T1}, 62, v1")
    a(f"v_lshl_add_u32 v{aEI}, v{T1}, 1, s67")
    a(f"v_lshrrev_b32 v{T1}, 3, v1")
    a(f"v_lshl_add_u32 v{aIDX}, v{T1}, 2, s66")
    a(f"v_add_u32 v4, s58, v{aEI}")
    SOFF = 104
    a(f"v_and_b32 v{T1}, 8, v1")
    a(f"v_lshl_add_u32 v{SOFF}, v{T1}, 4, s52")
    a(f"v_lshl_add_u32 v{SOFF}, v{H_}, 9, v{SOFF}")
    a(f"v_and_b32 v{T1}, 4, v1")
    a(f"v_lshl_add_u32 v{SOFF}, v{T1}, 6, v{SOFF}")
    a(f"v_and_b32 v{T1}, 3, v1")
    a(f"v_lshl_add_u32 v{SOFF}, v{T1}, 3, v{SOFF}")
    a("s_mov_b32 s62, 0xffff\ns_mov_b32 s63, 0xffff\ns_mov_b32 s64, 0xffff0000\ns_mov_b32 s65, 0xffff0000")
    a(f"v_mov_b32 v{T0}, {ZERO}")
    a(f"v_cndmask_b32 v{aS1}, v{T0}, v{SOFF}, s[62:63]")
    a(f"v_cndmask_b32 v{aS2}, v{T0}, v{SOFF}, s[64:65]")
    a(f"v_lshrrev_b32 v{T1}, 4, v1")
    a(f"v_xor_b32 v{T1}, v{T1}, v1")
    a(f"v_mov_b32 v{EI}, -1")
    a(f"v_and_b32 v{EI+1}, 1, v{T1}")
    a(f"v_lshlrev_b32 v{EI+1}, 4, v{EI+1}")
    a(f"v_and_b32 v{T1}, 7, v1")
    a(f"v_lshlrev_b32 v{IX[0]+1}, 4, v{T1}")
    a(f"v_xor_b32 v{IX[1]+1}, 64, v{IX[0]+1}")
    a(f"v_mov_b32 v{IX[2]+1}, v{IX[0]+1}")
    a(f"v_mov_b32 v{IX[3]+1}, v{IX[1]+1}")
    a("v_mov_b32 v75, 0x3f80")
    a("s_lshl_b32 s66, s25, 11")
    a("s_add_u32 s67, s56, s66")
    a(f"v_add_u32 v115, s67, v{L16}")
    a("s_mov_b32 s55, 0")
    a("s_mov_b32 s60, 0")
    a("s_mov_b32 s61, s25")
    a("s_cmp_ge_u32 s24, 8")
    a("s_cbranch_scc1 K2_HP" if opt.get("hs", 1) else "s_cbranch_scc1 K2_HQ")
    RA, RK = 32, 40
    SB, TO, TW = 48, 56, 64
    TS, TE, TF, TP = 116, 124, 88, 96
    DYN = (1 << 13) | (1 << 25) | (1 << 26) | (1 << 39)
    a(f"s_mov_b32 s66, {CHUNK}")
    a("v_mul_u32_u24 v72, s66, v72")
    a(f"s_mov_b32 s78, {CNT}")
    a("v_lshl_add_u32 v76, v1, 2, s78")
    a(f"s_mov_b32 s79, {IDX}")
    a(f"s_mov_b32 s80, {OH}")
    a("s_mov_b32 s81, 0")
    a(f"s_mov_b32 s68, {DYN & 0xffffffff:#x}")
    a(f"s_mov_b32 s69, {DYN >> 32:#x}")
    for k in range(8): a(f"v_mov_b32 v{RK+k}, -1")
    a("v_mov_b32 v73, -24")
    a("v_mov_b32 v74, 88")
    a("v_cndmask_b32 v73, 0, v73, s[68:69]")
    a("s_cmp_lg_u32 s24, 0")
    a("s_cbranch_scc1 K2_NCI")
    a("v_lshlrev_b32 v105, 19, v1")
    a(f"s_mov_b64 exec, {1 << 12:#x}")
    a(f"v_add_u32 v105, {(512 - 96) << 16:#x}, v105")
    a(f"s_mov_b64 exec, {(1 << 25) - (1 << 14):#x}")
    a(f"v_add_u32 v105, {(512 - 104) << 16:#x}, v105")
    a("s_mov_b32 exec_lo, 0xf8000000")
    a("s_mov_b32 exec_hi, 0x7f")
    a(f"v_add_u32 v105, {(1024 - 216) << 16:#x}, v105")
    a("s_mov_b64 exec, s[68:69]")
    a("v_mov_b32 v105, 24")
    a("s_mov_b32 exec_lo, -1")
    a("s_mov_b32 exec_hi, 0xff")
    for c in range(5): a(f"ds_write_b32 v76, v105 offset:{c*512}")
    a("s_mov_b64 exec, -1")
    a.label("K2_NCI")
    a(f"buffer_load_dwordx4 {q4(BC[0])}, v{L16}, s[40:43], s72 offen")
    a(f"buffer_load_dwordx4 {q4(BC[1])}, v{L16}, s[40:43], s72 offen offset:1024")
    a("s_waitcnt lgkmcnt(0)")
    stp(1)
    a("s_barrier")
    a("s_waitcnt vmcnt(3)")
    stp(2)
    NOCL = opt.get("nocl", 0)
    def count(ks):
        for k in ks:
            a(f"v_and_b32 v{RA+k}, 63, v{16+k}")
            a(f"v_lshrrev_b32 v{TF+k}, 29, v{16+k}" if not NOCL else f"v_mov_b32 v{TF+k}, 0")
            a(f"v_lshl_add_u32 v{RA+k}, v{RA+k}, 2, s78")
            a(f"v_lshl_add_u32 v{RA+k}, v{TF+k}, 9, v{RA+k}")
        for k in ks:
            a(f"v_cmpx_gt_u32 vcc, -2, v{16+k}")
            a(f"ds_add_rtn_u32 v{RK+k}, v{RA+k}, v114")
        a("s_mov_b64 exec, -1")
    def decode(ks):
        for k in ks:
            a(f"v_lshrrev_b32 v{TS+k}, {18 + opt.get('pshift', 0)}, v{16+k}")
            a(f"v_bfe_u32 v{TE+k}, v{16+k}, 6, 12")
            a(f"v_add_u32 v{TE+k}, v{TE+k}, v72")
            if opt.get("eshift"): a(f"v_lshrrev_b32 v{TE+k}, {opt['eshift']}, v{TE+k}")
            a(f"v_and_b32 v{TO+k}, 15, v{16+k}")
            a(f"v_lshl_add_u32 v{TO+k}, v{TO+k}, 1, s80")
            a(f"v_mad_i32_i24 v{TF+k}, v{TF+k}, -7, 28")
    SD = "dst_sel:DWORD dst_unused:UNUSED_PAD"
    def pos_ops(k):
        return [f"v_bfe_u32 v{TP+k}, v{TP+k}, v{TF+k}, 7",
                f"v_add_u32_sdwa v{TP+k}, v{TP+k}, v{RK+k} {SD} src0_sel:DWORD src1_sel:WORD_0",
                f"v_add_u32_sdwa v{TF+k}, v{TP+k}, v{RK+k} {SD} src0_sel:DWORD src1_sel:WORD_1",
                f"v_lshrrev_b32 v{TW+k}, 3, v{TP+k}",
                f"v_mad_u32_u24 v{TF+k}, v{TW+k}, v74, v{TF+k}"]
    def scatter(ks):
        for k in ks:
            a(f"v_add_u32 v{SB+k}, v{SB+k}, v{TP+k}")
        for k in ks:
            a(f"v_cmp_gt_u32 vcc, s76, v{SB+k}")
            a(f"v_cmp_gt_u32 s[68:69], s77, v{SB+k}")
            a(f"v_cmp_gt_u32 s[82:83], 24, v{TP+k}")
            a(f"s_nop 0")
            a(f"v_cndmask_b32 v{TW+k}, v107, v106, s[68:69]")
            a(f"v_cndmask_b32 v{TW+k}, v{TW+k}, v105, vcc")
            a(f"v_add_u32 v{SB+k}, v{SB+k}, v{TW+k}")
            a(f"v_cndmask_b32 v{SB+k}, v{SB+k}, v{TF+k}, s[82:83]")
            a(f"v_lshl_add_u32 v{TO+k}, v{SB+k}, 5, v{TO+k}")
            a(f"v_lshl_add_u32 v{SB+k}, v{SB+k}, 2, s79")
        for k in ks:
            a(f"v_cmpx_gt_u32 vcc, -2, v{16+k}")
            a(f"ds_write2st64_b32 v{SB+k}, v{TS+k}, v{TE+k} offset0:0 offset1:{(EOFF-IDX)//256}")
            a(f"ds_write_b16 v{TO+k}, v75")
        a("s_mov_b64 exec, -1")
    def arrive(off):
        a("s_mov_b64 exec, 1")
        a(f"ds_add_u32 v111, v114 offset:{off}")
        a("s_mov_b64 exec, -1")
    a("v_mov_b32_dpp v25, v19 quad_perm:[3,3,3,3] row_mask:0xf bank_mask:0xf")
    count(range(4))
    a("v_cmp_ne_u32 vcc, -1, v25")
    a("s_nop 1")
    a("s_cbranch_vccz K2_C1")
    a("s_waitcnt vmcnt(2)")
    for k in range(4): a(f"v_cndmask_b32 v{20+k}, -1, v{20+k}, vcc")
    a("s_mov_b32 s81, 1")
    count([4])
    a("v_cmp_ne_u32 vcc, -1, v21")
    decode([4])
    a("s_cbranch_vccnz K2_CX")
    a.label("K2_C1")
    arrive(4)
    decode(range(4))
    a.label("K2_SB1")
    a("ds_read_b64 v[108:109], v111")
    for c in range(5): a(f"ds_read_u16 v{26+c}, v76 offset:{c*512}")
    a("s_waitcnt lgkmcnt(0)")
    a("v_readfirstlane_b32 s66, v109")
    a("v_add_u32 v26, v26, v73")
    a("s_cmp_lt_u32 s66, 8")
    a("s_cbranch_scc1 K2_SB1")
    stp(3)
    a("v_add3_u32 v27, v26, v27, v73")
    a("v_add3_u32 v28, v27, v28, v73")
    a("v_lshl_or_b32 v31, v26, 7, v27")
    a("v_add3_u32 v29, v28, v29, v73")
    a("v_lshl_or_b32 v31, v31, 7, v28")
    a("v_readfirstlane_b32 s82, v108")
    a("v_lshl_or_b32 v31, v31, 7, v29")
    for k in range(5): a(f"ds_bpermute_b32 v{TP+k}, v{RA+k}, v31")
    a("v_add_u32 v30, v29, v30")
    a("v_cmp_lt_u32 vcc, 0x7f, v29")
    a("v_max_u32 v105, 24, v30")
    a("v_add_u32 v105, -21, v105")
    a("v_and_b32 v105, -4, v105")
    a("s_or_b32 s82, s82, s70")
    a("s_or_b32 s82, s82, vcc_lo")
    a("v_add_u32_dpp v107, v105, v105 row_shr:1 row_mask:0xf bank_mask:0xf bound_ctrl:0")
    a("s_or_b32 s82, s82, vcc_hi")
    a("v_add_u32 v30, v30, v73")
    a("v_add_u32_dpp v107, v107, v107 row_shr:2 row_mask:0xf bank_mask:0xf bound_ctrl:0")
    a("s_cmp_lg_u32 s82, 0")
    a("s_cbranch_scc1 K2_BAD")
    a("v_add_u32_dpp v107, v107, v107 row_shr:4 row_mask:0xf bank_mask:0xf bound_ctrl:0")
    a("s_waitcnt lgkmcnt(0)")
    def stat(ks):
        for k in ks:
            a("\n".join(pos_ops(k)))
            a(f"v_lshl_add_u32 v{TW+k}, v{TF+k}, 5, v{TO+k}")
            a(f"v_lshl_add_u32 v{TF+k}, v{TF+k}, 2, s79")
            a(f"v_cmpx_gt_u32 vcc, 24, v{TP+k}")
            a(f"ds_write2st64_b32 v{TF+k}, v{TS+k}, v{TE+k} offset0:0 offset1:{(EOFF-IDX)//256}")
            a(f"ds_write_b16 v{TW+k}, v75")
            a("s_mov_b64 exec, -1")
    def late(ks):
        for k in ks:
            a(f"v_add_u32 v{SB+k}, v{SB+k}, v{TP+k}")
            a(f"v_cmp_gt_u32 vcc, s76, v{SB+k}")
            a(f"v_cmp_gt_u32 s[68:69], s77, v{SB+k}")
            a(f"v_cmpx_le_u32 s[82:83], 24, v{TP+k}")
            a(f"v_cmpx_gt_u32 s[82:83], -2, v{16+k}")
            a(f"v_cndmask_b32 v{TW+k}, v107, v106, s[68:69]")
            a(f"v_cndmask_b32 v{TW+k}, v{TW+k}, v105, vcc")
            a(f"v_add_u32 v{SB+k}, v{SB+k}, v{TW+k}")
            a(f"v_lshl_add_u32 v{TO+k}, v{SB+k}, 5, v{TO+k}")
            a(f"v_lshl_add_u32 v{SB+k}, v{SB+k}, 2, s79")
            a(f"ds_write2st64_b32 v{SB+k}, v{TS+k}, v{TE+k} offset0:0 offset1:{(EOFF-IDX)//256}")
            a(f"ds_write_b16 v{TO+k}, v75")
            a("s_mov_b64 exec, -1")
    stat(range(4))
    a("s_cmp_eq_u32 s81, 0")
    a("s_cbranch_scc1 K2_S0")
    stat([4])
    a("s_cmp_lg_u32 s81, 1")
    a("s_cbranch_scc1 K2_SY")
    a.label("K2_S0")
    arrive(8)
    def g0_addr(): pass
    def first_reads():
        for k in range(4): a(f"ds_read_b32 v{IX[k]}, v{aIDX} offset:{k*32}")
        a(f"ds_read_b32 v{EI}, v4")
    nfl = [0]
    LATE = 0
    def first_loads():
        nfl[0] += 1
        a("s_cmp_lg_u32 s25, 0")
        a(f"s_cbranch_scc1 K2_FL{nfl[0]}")
        a("\n".join(e_dma()))
        a.label(f"K2_FL{nfl[0]}")
        a("\n".join(p_dma()))
    def sb2(tag):
        a.label(f"K2_SB2{tag}")
        a("ds_read_b32 v109, v111 offset:8")
        first_reads()
        a("s_waitcnt lgkmcnt(0)")
        a("v_readfirstlane_b32 s66, v109")
        a("s_nop 0")
        a("s_cmp_lt_u32 s66, 8")
        a(f"s_cbranch_scc1 K2_SB2{tag}")
        stp(4)
        first_loads()
    a(f"ds_write_b32 v76, v30 offset:{DEG - CNT}")
    a("v_add_u32_dpp v107, v107, v107 row_shr:8 row_mask:0xf bank_mask:0xf bound_ctrl:0")
    a("s_mov_b32 s53, 9")
    a("s_nop 0")
    a("v_add_u32_dpp v107, v107, v107 row_bcast:15 row_mask:0xa bank_mask:0xf")
    a("s_nop 1")
    a("v_add_u32_dpp v107, v107, v107 row_bcast:31 row_mask:0xc bank_mask:0xf")
    a("v_sub_u32 v108, v107, v105")
    a("v_readlane_b32 s83, v107, 63")
    for k in range(5): a(f"ds_bpermute_b32 v{SB+k}, v{RA+k}, v108")
    R1L = opt.get("r1l", 1)
    if R1L:
        a("s_cmp_lg_u32 s26, 0")
        a("s_cbranch_scc1 K2_NE1")
    sb2("a")
    if R1L: a.label("K2_NE1")
    a("v_readlane_b32 s76, v108, 12")
    a("v_readlane_b32 s77, v108, 16")
    a("v_readlane_b32 s68, v108, 24")
    a("v_readlane_b32 s69, v108, 28")
    sal = ["s_add_u32 s88, s83, 95", "s_lshr_b32 s88, s88, 5", "s_mul_i32 s88, s88, 171", "s_lshr_b32 s88, s88, 9",
           "s_add_u32 s89, s76, 31", "s_lshr_b32 s89, s89, 5", "s_max_u32 s88, s88, s89", "s_lshr_b32 s89, s77, 5", "s_min_u32 s88, s88, s89",
           "s_lshl_b32 s88, s88, 5", "s_max_u32 s76, s88, s76",
           "s_sub_u32 s88, s83, s76", "s_add_u32 s88, s88, 63", "s_lshr_b32 s88, s88, 6",
           "s_sub_u32 s89, s68, s76", "s_add_u32 s89, s89, 31", "s_lshr_b32 s89, s89, 5", "s_max_u32 s88, s88, s89",
           "s_sub_u32 s89, s69, s76", "s_lshr_b32 s89, s89, 5", "s_min_u32 s88, s88, s89",
           "s_lshl_b32 s88, s88, 5", "s_add_u32 s88, s88, s76", "s_max_u32 s77, s88, s68",
           "s_sub_u32 s88, s83, 224", "s_max_i32 s77, s77, s88", "s_min_u32 s77, s77, s69",
           f"s_add_u32 s53, s76, {288+31}", "s_lshr_b32 s53, s53, 5",
           "s_sub_u32 s90, s77, s76", f"s_add_u32 s90, s90, {288+31}", "s_lshr_b32 s90, s90, 5",
           "s_sub_u32 s91, s83, s77", f"s_add_u32 s91, s91, {288+31}", "s_lshr_b32 s91, s91, 5",
           f"s_sub_u32 s88, {512+288-24}, s76", f"s_sub_u32 s89, {1024+288-24}, s77",
           "s_add_u32 s76, s76, 24", "s_add_u32 s77, s77, 24",
           "s_max_u32 s92, s90, s53", "s_max_u32 s92, s92, s91"]
    a("\n".join(sal))
    a("s_cmp_gt_u32 s92, 16")
    a("s_cbranch_scc1 K2_BAD")
    if opt.get("force_slow"): a("s_branch K2_BAD")
    a("v_mov_b32 v106, s91")
    a("ds_write_b32 v111, v106 offset:16")
    a("s_cmp_eq_u32 s26, 1")
    a("s_cselect_b32 s53, s90, s53")
    a(f"v_mov_b32 v105, {288-24}")
    a("s_waitcnt lgkmcnt(0)")
    a("v_mov_b32 v106, s88")
    a("v_mov_b32 v107, s89")
    late(range(4))
    a("s_cmp_eq_u32 s81, 0")
    a("s_cbranch_scc1 K2_S1")
    late([4])
    a("s_cmp_lg_u32 s81, 1")
    a("s_cbranch_scc1 K2_SX")
    a.label("K2_S1")
    if R1L:
        a("s_cmp_eq_u32 s26, 0")
        a("s_cbranch_scc1 K2_NE2")
        sb2("b")
        a.label("K2_NE2")
    a("s_waitcnt lgkmcnt(0)")
    a("s_barrier")
    a("s_branch K2_QD")
    a.label("K2_HQ")
    WA, QA, QB, XA, BIAS = 32, 16, 116, 132, 112
    a(f"v_lshrrev_b32 v{H_}, 5, v1")
    a("s_lshl_b32 s66, s25, 11")
    a(f"v_and_b32 v{T0}, 3, v1")
    a(f"v_and_b32 v{T1}, 4, v1")
    a(f"v_lshl_or_b32 v{T0}, v{T1}, 1, v{T0}")
    a(f"v_bfe_u32 v{T1}, v1, 3, 1")
    a(f"v_lshl_or_b32 v{T0}, v{T1}, 2, v{T0}")
    a(f"v_xor_b32 v{T1}, v{T0}, v{H_}")
    a(f"v_lshlrev_b32 v{T1}, 4, v{T1}")
    a(f"v_lshl_add_u32 v{XA}, v{T0}, 8, v{T1}")
    a(f"v_and_b32 v{T1}, 16, v1")
    a(f"v_lshl_add_u32 v{XA}, v{T1}, 10, v{XA}")
    a(f"v_add_u32 v{XA}, {EIM + 4096}, v{XA}")
    a(f"s_add_u32 s67, s66, {EIM + 8192}")
    a(f"v_add_u32 v107, s67, v{L16}")
    srd(a, 48, "s14", "s15", 512)
    a("v_and_b32 v108, 1, v1")
    a("v_and_b32 v109, 30, v1")
    a("v_lshl_add_u32 v108, v108, 6, v109")
    a("s_lshl_b32 s66, s25, 14")
    a(f"s_add_u32 s76, s66, {W1BF_OFF - CELL_OFF}")
    for i in range(1, 4): a(f"s_add_u32 s{76+i}, s76, {i*4096}")
    PFT = opt.get("pft", 0)
    if PFT:
        srd_ws(a, 92, 22, P_OFF, N * 512)
        a("s_lshr_b32 s80, s2, 3")
        a(f"s_mul_i32 s80, s80, {PFT*256*128}")
        a("s_lshl_b32 s81, s25, 13")
        a("s_add_u32 s80, s80, s81")
        a("v_lshlrev_b32 v109, 7, v1")
    a(f"s_mov_b32 s68, {NEGLOG2E:#x}")
    a(f"s_mov_b32 s69, {NEGLOG2E:#x}")
    a(f"buffer_load_ushort v{BIAS}, v108, s[48:51], s58 offen")
    a(f"buffer_load_ushort v{BIAS+1}, v108, s[48:51], s58 offen offset:32")
    for i in range(16):
        if i == opt.get("hw", 0):
            a("s_waitcnt lgkmcnt(0)")
            stp(1)
            a("s_barrier")
        a(f"buffer_load_dwordx4 {q4(WA+4*i)}, v{L16}, s[40:43], s{76 + (i >> 2)} offen offset:{(i & 3)*1024}")
        if i == 7:
            a("s_waitcnt vmcnt(10)")
            arrive(12)
    for i in range(PFT):
        a("buffer_load_dword v135, v109, s[92:95], s80 offen")
        a(f"s_add_u32 s80, s80, {256*128}")
    stp(2)
    a.label("K2_HS")
    a("ds_read_b32 v108, v111 offset:12")
    a("s_waitcnt lgkmcnt(0)")
    a("v_readfirstlane_b32 s66, v108")
    a("s_nop 0")
    a("s_cmp_lt_u32 s66, 4")
    a("s_cbranch_scc1 K2_HS")
    def xread(step):
        sidx = step & 7; st_ = step % 3
        if sidx: a(f"v_xor_b32 v{XA+1}, {sidx << 5}, v{XA}")
        r = XA + 1 if sidx else XA
        a(f"ds_read_b128 {q4(WP+8*st_)}, v{r}")
        a(f"ds_read_b128 {q4(WP+8*st_+4)}, v{r} offset:32768")
    xread(0); xread(1); xread(2)
    a(f"s_waitcnt vmcnt({16 + PFT})")
    a(f"v_lshlrev_b32 v{BIAS}, 16, v{BIAS}")
    a(f"v_lshlrev_b32 v{BIAS+1}, 16, v{BIAS+1}")
    a(f"v_pk_mul_f32 {pr(BIAS)}, {pr(BIAS)}, s[68:69]")
    for X in range(2):
        for sidx in range(8):
            step = 8*X + sidx; st_ = step % 3
            nl = 2*min(2, 15-step) + (3 if (X == 1 and sidx < 3) else 0)
            if X == 1 and sidx == 1: nl = 2 + 3 + 2
            a(f"s_waitcnt vmcnt({15 - step + PFT}) lgkmcnt({min(nl, 15)})")
            a(f"v_mfma_f32_32x32x16_bf16 {x16(QA)}, {q4(WP+8*st_)}, {q4(WA+4*step)}, {'0' if sidx == 0 else x16(QA)}")
            a(f"v_mfma_f32_32x32x16_bf16 {x16(QB)}, {q4(WP+8*st_+4)}, {q4(WA+4*step)}, {'0' if sidx == 0 else x16(QB)}")
            if step + 3 < 16: xread(step + 3)
        a("s_nop 10")
        for wi, base in enumerate((QA, QA + 8, QB)):
            for k in range(4):
                a(f"v_pk_fma_f32 {pr(base+2*k)}, {pr(base+2*k)}, s[68:69], {pr(BIAS)} op_sel:[0,0,{X}] op_sel_hi:[1,1,{X}]")
            for k in range(4):
                a(f"v_cvt_pk_bf16_f32 v{WA+4*wi+k+12*X}, v{base+2*k}, v{base+2*k+1}")
            a(f"ds_write_b128 v107, {q4(WA+4*wi+12*X)} offset:{wi*16384 + X*1024}")
    a("s_waitcnt lgkmcnt(0)")
    stp(3)
    a("s_barrier")
    a("ds_read_b32 v109, v111 offset:16")
    a(f"buffer_load_dwordx4 {q4(BC[0])}, v{L16}, s[40:43], s72 offen")
    a(f"buffer_load_dwordx4 {q4(BC[1])}, v{L16}, s[40:43], s72 offen offset:1024")
    a("s_waitcnt lgkmcnt(0)")
    a("v_readfirstlane_b32 s53, v109")
    a("s_nop 0")
    if opt.get("hp", 0): a("s_setprio 0")
    if opt.get("hs", 1):
        a("s_branch K2_SET")
        a.label("K2_HP")
    a("s_cmp_eq_u32 s53, -1")
    a("s_cbranch_scc1 K2_SLOW")
    g0_addr()
    first_reads()
    a("s_waitcnt lgkmcnt(0)")
    stp(4)
    first_loads()
    a.label("K2_QD")
    stp(5)
    for k in range(4): a(f"ds_read_b32 v{IX[k]}, v{aIDX} offset:{128+k*32}")
    a(f"v_mov_b32 v166, v4")
    a(f"v_mov_b32 v{aAE}, v110")
    a(f"ds_read_b128 {q4(AO)}, v{aAO}")
    a(f"ds_read_b128 {q4(BQ[0])}, v115 offset:8192")
    a(f"ds_read_b128 {q4(BQ[1])}, v115 offset:9216")
    a(f"v_mov_b32 v{MG}, -1")
    for i in range(16): a(f"v_mov_b32 v{ACC+i}, 0")
    a(f"v_mov_b32 v{CHK}, 0\nv_mov_b32 v{CHK+1}, 0")
    for i in range(4): a(f"v_mov_b32 v{S+i}, 0")
    T3, T2, T1_ = opt.get("t3", 6), opt.get("t2", 3), opt.get("t1", 1)
    a("s_cmp_eq_u32 s26, 2")
    a(f"s_cselect_b32 s94, {opt.get('r2lag', 0)}, 0")
    a("s_sub_u32 s94, s53, s94")
    a(f"s_sub_u32 s90, s94, {T3}")
    a("s_max_i32 s90, s90, 2")
    a("s_mov_b32 s91, 0")
    a("s_sub_u32 s93, s53, 2")
    if OCT[0]:
        a("s_waitcnt lgkmcnt(3)")
        a("v_readfirstlane_b32 s66, v106")
        a("v_readfirstlane_b32 s67, v107")
        a("s_nop 0")
        a("s_lshr_b64 s[66:67], s[66:67], s52")
        if opt.get("allq"): a("s_mov_b32 s66, -1")
        a("s_mov_b32 s95, s66")
        a("s_lshl_b32 s54, s66, 1")
    def flag_wait(tag, off):
        a.label(f"K2_W{tag}")
        a(f"ds_read_b32 v{FV}, v{aEI} offset:{off}")
        a("s_waitcnt lgkmcnt(0)")
        a(f"v_readfirstlane_b32 s66, v{FV}")
        a("s_nop 0")
        a("s_cmp_eq_u32 s66, -1")
        a(f"s_cbranch_scc1 K2_X{tag}")
        a("s_sleep 1")
        a(f"s_branch K2_W{tag}")
        a.label(f"K2_X{tag}")
    if LATE:
        a("s_max_i32 s90, s90, 1")
        a("s_min_u32 s90, s90, s53")
        a("s_min_u32 s67, s53, 2")
        a("s_cmp_ge_u32 s25, s67")
        a("s_waitcnt vmcnt(0)")
        a("s_cbranch_scc1 K2_NF")
        a(f"ds_write_b32 v166, v{MG}")
        a.label("K2_NF")
        for m in range(4): a(f"ds_read_b128 {q4(AP[m])}, v{aAP+m}")
        a("s_waitcnt lgkmcnt(0)")
        a("\n".join(p_dma()))
        a("s_cmp_lt_u32 s25, 2")
        a("s_cbranch_scc1 K2_F2")
        a("\n".join(e_dma()))
        a.label("K2_F2")
        for i in range(4): a(f"v_mov_b32 v{HQ+i}, 0")
        a("s_cmp_eq_u32 s53, 0")
        a("s_cbranch_scc1 K2_EXIT")
        flag_wait("A", 0)
        a(f"ds_read_b128 {q4(AE)}, v{aAE}")
        stp(6)
        stc(12)
        if opt.get("prio", 1): a("s_setprio 3")
        a("s_sub_u32 s68, 0, s25")
        a("s_and_b32 s68, s68, 3")
        a("s_lshl_b32 s67, s68, 7")
        a("s_lshl_b32 s69, s68, 10")
        a(f"v_subrev_u32 v{aAO}, s69, v{aAO}")
        a(f"v_subrev_u32 v{aAE}, s69, v{aAE}")
        a(f"v_subrev_u32 v{aIDX}, s67, v{aIDX}")
        a(f"v_subrev_u32 v{aEI}, s67, v{aEI}")
        a("s_mov_b64 exec, s[62:63]")
        a(f"v_subrev_u32 v{aS1}, s69, v{aS1}")
        a("s_mov_b64 exec, s[64:65]")
        a(f"v_subrev_u32 v{aS2}, s69, v{aS2}")
        a("s_mov_b64 exec, -1")
        a("s_waitcnt lgkmcnt(0)")
        a("\n".join(mf_tile(0)))
        a("s_nop 8")
        a("s_cmp_eq_u32 s68, 1")
        a("s_cbranch_scc1 K2_U1")
        a("s_cmp_eq_u32 s68, 2")
        a("s_cbranch_scc1 K2_U2")
        a("s_cmp_eq_u32 s68, 3")
        a("s_cbranch_scc1 K2_U3")
    else:
        a("s_min_u32 s67, s53, 1")
        a("s_cmp_ge_u32 s25, s67")
        a("s_waitcnt vmcnt(0)")
        a("s_cbranch_scc1 K2_NF")
        a(f"ds_write_b32 v166, v{MG}")
        a(f"ds_read_b32 v{EI}, v{aEI} offset:512")
        a.label("K2_NF")
        a("\n".join(p_reads()))
        a("s_waitcnt lgkmcnt(0)")
        a("\n".join(p_dma()))
        a("\n".join(p_shift(0) + p_shift(1)))
        a("s_sub_u32 s67, s25, 1")
        a("s_cmp_ge_u32 s67, 2")
        a("s_cbranch_scc1 K2_F2")
        a("\n".join(e_dma()))
        a.label("K2_F2")
        for i in range(4): a(f"v_mov_b32 v{HQ+i}, 0")
        a("s_cmp_eq_u32 s53, 0")
        a("s_cbranch_scc1 K2_EXIT")
        def flag_wait(tag, off):
            a.label(f"K2_W{tag}")
            a(f"ds_read_b32 v{FV}, v{aEI} offset:{off}")
            a("s_waitcnt lgkmcnt(0)")
            a(f"v_readfirstlane_b32 s66, v{FV}")
            a("s_nop 0")
            a("s_cmp_eq_u32 s66, -1")
            a(f"s_cbranch_scc1 K2_X{tag}")
            a("s_sleep 1")
            a(f"s_branch K2_W{tag}")
            a.label(f"K2_X{tag}")
        flag_wait("A", 0)
        a(f"ds_read_b128 {q4(AE)}, v{aAE}")
        stp(6)
        stc(12)
        if opt.get("prio", 1): a("s_setprio 3")
        a("s_waitcnt lgkmcnt(0)")
        a("\n".join(mf_tile(0)))
        a("s_nop 10")
        ex0 = {1: [f"ds_read_b32 v{IX[k]}, v{aIDX} offset:{256+k*32}" for k in range(4)]}
        ex1 = {1: [f"ds_read_b64_tr_b16 {pr(S)}, v{aS1}", f"ds_read_b64_tr_b16 {pr(S+2)}, v{aS2}", f"ds_read_b128 {q4(AO)}, v{aAO} offset:1024"]}
        a("\n".join(tile(0, mf_tile(1), ex0, [], [], "P0") + tile(1, [], ex1, [], ["s_waitcnt lgkmcnt(0)"], "P1")))
        a("s_mov_b32 s55, 1")
        a("s_cmp_eq_u32 s53, 1")
        a("s_cbranch_scc1 K2_EXIT")
        a("s_cmp_ge_u32 s67, 2")
        a("s_cselect_b32 s66, 64, s25")
        a("s_cmp_ge_u32 s66, s53")
        a("s_waitcnt vmcnt(0)")
        a("s_cbranch_scc1 K2_NF2")
        a(f"ds_write_b32 v166, v{MG}")
        a.label("K2_NF2")
        a("\n".join(p_reads()))
        a("s_waitcnt lgkmcnt(0)")
        a("\n".join(p_dma()))
        a("\n".join(p_shift(0) + p_shift(1)))
        a("s_cmp_lt_u32 s67, 2")
        a("s_cbranch_scc1 K2_F3")
        a("\n".join(e_dma()))
        a.label("K2_F3")
        flag_wait("B", 128)
        a(f"ds_read_b128 {q4(AE)}, v{aAE} offset:1024")
        a("s_sub_u32 s68, 1, s25")
        a("s_and_b32 s68, s68, 3")
        a("s_sub_u32 s69, 1, s68")
        a("s_lshl_b32 s67, s69, 7")
        a("s_lshl_b32 s69, s69, 10")
        a(f"v_add_u32 v{aAO}, s69, v{aAO}")
        a(f"v_add_u32 v{aAE}, s69, v{aAE}")
        a(f"v_add_u32 v{aIDX}, s67, v{aIDX}")
        a(f"v_add_u32 v{aEI}, s67, v{aEI}")
        a("s_mov_b64 exec, s[62:63]")
        a(f"v_add_u32 v{aS1}, s69, v{aS1}")
        a("s_mov_b64 exec, s[64:65]")
        a(f"v_add_u32 v{aS2}, s69, v{aS2}")
        a("s_mov_b64 exec, -1")
        a("s_waitcnt lgkmcnt(0)")
        a("\n".join(mf_tile(0)))
        a("s_nop 8")
        a("s_cmp_eq_u32 s68, 1")
        a("s_cbranch_scc1 K2_U1")
        a("s_cmp_eq_u32 s68, 2")
        a("s_cbranch_scc1 K2_U2")
        a("s_cmp_eq_u32 s68, 3")
        a("s_cbranch_scc1 K2_U3")
    WPOS = opt.get("wpos", 5)
    MP0 = {0: (0, 3, 6), 1: (0, 4, 8), 2: (2, 6, 10)}[opt.get("mp0", 0)]
    a(".p2align 6")
    for _ in range(opt.get("shift", 0)): a("s_nop 0")
    loop_start = len(a.lines)
    for u in range(4):
        a.label(f"K2_U{u}")
        if LATE:
            upd = []
            if u == 3:
                upd = [f"v_add_u32 v{aAO}, 4096, v{aAO}", f"v_add_u32 v{aAE}, 4096, v{aAE}", f"v_add_u32 v{aIDX}, 512, v{aIDX}", f"v_add_u32 v{aEI}, 512, v{aEI}",
                       "s_mov_b64 exec, s[62:63]", f"v_add_u32 v{aS1}, 4096, v{aS1}", "s_mov_b64 exec, s[64:65]", f"v_add_u32 v{aS2}, 4096, v{aS2}", "s_mov_b64 exec, -1"]
            mid0 = [f"ds_read_b64_tr_b16 {pr(S)}, v{aS1} offset:{u*1024}", f"ds_read_b64_tr_b16 {pr(S+2)}, v{aS2} offset:{u*1024}",
                    f"ds_read_b128 {q4(AO)}, v{aAO} offset:{(u+1)*1024}"]
            t0 = tile(0, mf_tile(1) + [SEGSUM], {}, mid0, [])
            ex1 = {}
            ex1[1] = [f"ds_read_b32 v{FV}, v{aEI} offset:{(u+1)*128}"] + [f"ds_read_b32 v{IX[k]}, v{aIDX} offset:{(u+2)*128+k*32}" for k in range(4)]
            if u == 0: ex1[1] += [f"ds_read_b32 v{EI}, v{aEI} offset:512"]
            ex1[12] = ["s_waitcnt lgkmcnt(0)", f"v_readfirstlane_b32 s66, v{FV}"]
            mid = ["s_cmp_eq_u32 s66, -1", f"s_waitcnt vmcnt({1 if u == 1 else 0})"]
            mid += [f"ds_read_b128 {q4(AP[m])}, v{aAP+m}" for m in range(4)]
            mid += [f"s_cbranch_scc0 K2_FW{u}", f"K2_FR{u}:"]
            mid += [f"ds_read_b128 {q4(AE)}, v{aAE} offset:{(u+1)*1024}"]
            if opt.get("gstamps"): mid += ["s_memrealtime s[96:97]", "s_add_u32 m0, s55, 16"]
            t1 = tile(1, [], ex1, mid, [])
            mf = mf_tile(0)
            post = ["s_add_u32 s66, s55, 2", "s_cmp_ge_u32 s66, s53", "s_waitcnt lgkmcnt(0)"]
            if opt.get("gstamps"): post += ["v_writelane_b32 v0, s96, m0"]
            post += [f"s_cbranch_scc1 K2_ND{u}"]
            if u == 2: post += [f"ds_write_b32 v{aEI}, v{MG} offset:512"]
            for k in range(4):
                post += [f"s_add_u32 m0, s57, {k*1024}", mf[k], f"buffer_load_dwordx4 {pr(IX[k])}, s[32:35], s58 idxen offen{PFL[0]} lds"]
            post += [f"K2_NR{u}:"]
            if u == 0: post += e_dma()
            post += upd
            nst = 1 + (6 if u == 0 else 0) + len(upd) + 3 + (1 if u == 3 else 0) + 1
            if nst - 1 < 12: post += [f"s_nop {12 - (nst - 1) - 1}"]
            a("\n".join(t0 + t1 + post))
        else:
            ex0 = {}
            ex0[1] = [f"ds_read_b32 v{FV}, v{aEI} offset:{(u+1)*128}"] + [f"ds_read_b32 v{IX[k]}, v{aIDX} offset:{(u+2)*128+k*32}" for k in range(4)]
            if u == 0: ex0[1] += [f"ds_read_b32 v{EI}, v{aEI} offset:512"]
            ex0[12] = ["s_waitcnt lgkmcnt(0)", f"v_readfirstlane_b32 s66, v{FV}"]
            mid = ["s_cmp_eq_u32 s66, -1"]
            mid += [f"ds_read_b128 {q4(AO)}, v{aAO} offset:{(u+1)*1024}"]
            mid += [f"ds_read_b64_tr_b16 {pr(S)}, v{aS1} offset:{u*1024}", f"ds_read_b64_tr_b16 {pr(S+2)}, v{aS2} offset:{u*1024}"]
            mid += [f"s_cbranch_scc0 K2_FW{u}", f"K2_FR{u}:"]
            mid += [f"ds_read_b128 {q4(AE)}, v{aAE} offset:{(u+1)*1024}"]
            t0 = tile(0, mf_tile(1) + [SEGSUM], ex0, mid, [], f"A{u}", mpos=MP0)
            pre = [f"s_waitcnt vmcnt({1 if u == 1 else 0})"] + p_reads()
            blk = ["s_cmp_ge_i32 s55, s93", "s_waitcnt lgkmcnt(0)"] + p_shift(0) + [f"s_cbranch_scc1 K2_ND{u}"]
            if u == 2: blk += [f"ds_write_b32 v{aEI}, v{MG} offset:512"]
            blk += p_dma() + [f"K2_ND{u}:"]
            if u == 0: blk += e_dma()
            ex1 = {WPOS: blk}
            mid1 = p_shift(1)
            if u == 3:
                mid1 += [f"v_add_u32 v{aAO}, 4096, v{aAO}", f"v_add_u32 v{aAE}, 4096, v{aAE}", f"v_add_u32 v{aIDX}, 512, v{aIDX}", f"v_add_u32 v{aEI}, 512, v{aEI}",
                        "s_mov_b64 exec, s[62:63]", f"v_add_u32 v{aS1}, 4096, v{aS1}", "s_mov_b64 exec, s[64:65]", f"v_add_u32 v{aS2}, 4096, v{aS2}", "s_mov_b64 exec, -1"]
            exr1 = []
            if opt.get("gstamps"):
                mid1 = mid1 + ["s_memrealtime s[96:97]", "s_add_u32 m0, s55, 16"]
                exr1 += ["s_waitcnt lgkmcnt(0)", "v_writelane_b32 v0, s96, m0", "s_mov_b32 m0, s57"]
            t1 = tile(1, mf_tile(0), ex1, mid1, exr1, f"B{u}", mpos=(WPOS + 2, WPOS + 5), pre=pre)
            a("\n".join(t0 + t1))
        a("s_add_u32 s55, s55, 1")
        a("s_cmp_ge_u32 s55, s90")
        a(f"s_cbranch_scc1 K2_TH{u}")
        if u == 3: a("s_branch K2_U0")
    loop_end = len(a.lines)
    for qtl in QTAILS: a("\n".join(qtl))
    for u in range(4):
        a.label(f"K2_TH{u}")
        a(f"s_mov_b32 s92, {(u+1)&3}")
        if u < 3: a("s_branch K2_TH")
    a.label("K2_TH")
    a("s_cmp_ge_u32 s55, s53")
    a("s_cbranch_scc1 K2_EXIT")
    a("s_add_u32 s91, s91, 1")
    a("s_cmp_eq_u32 s91, 1")
    a("s_cbranch_scc0 K2_TH_2")
    if opt.get("prio", 1): a("s_setprio 2")
    a(f"s_sub_u32 s90, s94, {T2}")
    a("s_branch K2_TH_R")
    a.label("K2_TH_2")
    a("s_cmp_eq_u32 s91, 2")
    a("s_cbranch_scc0 K2_TH_3")
    if opt.get("prio", 1): a("s_setprio 1")
    a(f"s_sub_u32 s90, s94, {T1_}")
    a("s_branch K2_TH_R")
    a.label("K2_TH_3")
    if opt.get("prio", 1): a("s_setprio 0")
    a("s_mov_b32 s90, s53")
    a.label("K2_TH_R")
    a("s_max_i32 s90, s90, 0")
    a("s_cmp_eq_u32 s92, 1")
    a("s_cbranch_scc1 K2_U1")
    a("s_cmp_lg_u32 s60, 0")
    a("s_cbranch_scc1 K2_TH_J")
    a("s_mov_b32 s60, 1")
    a("\n".join(w2_pre(L16)))
    a.label("K2_TH_J")
    a("s_cmp_eq_u32 s92, 2")
    a("s_cbranch_scc1 K2_U2")
    a("s_cmp_eq_u32 s92, 3")
    a("s_cbranch_scc1 K2_U3")
    a("s_branch K2_U0")
    if LATE:
        for u in range(4):
            a.label(f"K2_ND{u}")
            a("\n".join(mf_tile(0)))
            a(f"s_branch K2_NR{u}")
    for u in range(4):
        a.label(f"K2_FW{u}")
        a("s_add_u32 s66, s55, 1")
        a("s_cmp_ge_u32 s66, s53")
        a(f"s_cbranch_scc1 K2_FR{u}")
        a(f"ds_read_b32 v{FV}, v{aEI} offset:{(u+1)*128}")
        a("s_waitcnt lgkmcnt(0)")
        a(f"v_readfirstlane_b32 s66, v{FV}")
        a("s_nop 0")
        a("s_cmp_eq_u32 s66, -1")
        a(f"s_cbranch_scc1 K2_FR{u}")
        a("s_sleep 1")
        a(f"s_branch K2_FW{u}")
    a.label("K2_EXIT")
    a(SEGSUM)
    stp(7)
    stc(13)
    if opt.get("stamps"): a("v_writelane_b32 v0, s53, 14")
    a(f"v_lshrrev_b32 v1, 4, v{L16}")
    a("s_cmp_lg_u32 s60, 0")
    a("s_cbranch_scc1 K2_X1")
    a("\n".join(w2_pre(L16)))
    a.label("K2_X1")
    WL = 116
    def fin_loads(l16):
        srd(a, 48, "s18", "s19", 256)
        for sidx in range(NW2, 8):
            a(f"buffer_load_dwordx4 {q4(WL+4*(sidx-NW2))}, v{l16}, s[40:43], s74 offen offset:{(sidx & 3)*1024}")
        a("v_lshrrev_b32 v8, 4, v1")
        a("v_lshlrev_b32 v9, 3, v8")
        a("s_lshl_b32 s68, s24, 5")
        a("buffer_load_dwordx2 v[10:11], v9, s[48:51], s68 offen")
    fin_loads(L16)
    a("v_subrev_u32 v2, s71, v1")
    a("v_and_b32 v2, 15, v2")
    a(f"v_mul_u32_u24 v2, {HSTR}, v2")
    a("v_and_b32 v3, 16, v1")
    a("v_lshl_add_u32 v2, v3, 2, v2")
    a("v_lshrrev_b32 v3, 5, v1")
    a("v_lshl_add_u32 v3, v3, 3, s57")
    a("v_add_u32 v2, v2, v3")
    a(f"s_waitcnt vmcnt({9 - NW2})")
    for k in range(8):
        a(f"v_cvt_pk_bf16_f32 v{EX+k}, v{ACC+2*k}, v{ACC+2*k+1}")
        if k & 1: a(f"ds_write_b64 v2, {pr(EX+k-1)} offset:{16*(k>>1)}")
    a("s_mov_b32 s66, 0x41800000")
    a("s_mov_b32 s67, 0x41800000")
    a(f"v_pk_mul_f32 {pr(CHK)}, {pr(CHK)}, s[66:67]")
    for k in range(0, 8, 2):
        a(f"v_pk_add_f32 {pr(ACC+2*k)}, {pr(ACC+2*k)}, {pr(ACC+2*k+2)}")
    for k in range(0, 8, 2):
        a(f"v_pk_fma_f32 {pr(CHK)}, {pr(ACC+2*k)}, 0, {pr(CHK)} op_sel_hi:[1,0,1]")
    a("v_mov_b32 v4, 0x207")
    a(f"v_add_f32 v{CHK}, v{CHK}, v{CHK+1}")
    a(f"v_mov_b32 v5, {FLAG}")
    a("v_mov_b32 v7, 1")
    a(f"v_cmpx_class_f32 vcc, v{CHK}, v4")
    a("ds_write_b32 v5, v7")
    a("s_mov_b64 exec, -1")
    a.label("K2_FIN")
    a("s_cmp_ge_u32 s24, 8")
    a("s_cbranch_scc1 K2_HEND")
    a("s_mov_b64 exec, 1")
    a("ds_add_u32 v5, v7 offset:24")
    a("s_mov_b64 exec, -1")
    a("v_and_b32 v12, 15, v1")
    a(f"v_mul_u32_u24 v2, {HSTR}, v12")
    a("v_lshl_add_u32 v2, v8, 4, v2")
    a(f"s_mov_b32 s78, {DEG}")
    a("v_lshl_add_u32 v4, v12, 2, s78")
    for mt in range(3): a(f"ds_read_b32 v{112+mt}, v4 offset:{mt*48}")
    a("v_lshl_add_u32 v13, v12, 16, v9")
    a(f"v_mov_b32 v3, {KILL:#x}")
    a("v_cmp_gt_u32 vcc, 4, v12")
    a("s_lshl_b32 s69, s2, 8")
    a("s_add_u32 s69, s69, s68")
    a("v_cndmask_b32 v14, v13, v3, vcc")
    a(f"s_add_u32 s72, s69, {12 << 16}")
    a(f"s_add_u32 s75, s69, {24 << 16}")
    a(f"s_mov_b32 s76, {NEGLN2:#x}")
    RS = 80
    a.label("K2_E1")
    a("ds_read_b32 v6, v5 offset:24")
    a("s_waitcnt lgkmcnt(0)")
    a("v_readfirstlane_b32 s66, v6")
    a("s_nop 0")
    a("s_cmp_ge_u32 s66, 8")
    a("s_cbranch_scc1 K2_E2")
    a("s_sleep 2")
    a("s_branch K2_E1")
    a.label("K2_E2")
    HB = 16
    OD = 120
    def wfrag(sidx): return WREG[sidx] if sidx < NW2 else WL + 4*(sidx - NW2)
    def hoff(mt, sidx): return (4*mt + (sidx >> 1))*4096 + (sidx & 1)*64
    order = [(sidx, mt) for sidx in range(8) for mt in range(2)]
    for n, (sidx, mt) in enumerate(order[:14]):
        a(f"ds_read_b128 {q4(HB+4*n)}, v2 offset:{hoff(mt, sidx)}")
    for n, (sidx, mt) in enumerate(order):
        issued = min(16, 14 + n)
        wv = f" vmcnt({8 - sidx})" if (sidx >= NW2 and mt == 0) else ""
        a(f"s_waitcnt{wv} lgkmcnt({issued - n - 1})")
        a(f"v_mfma_f32_16x16x32_bf16 {q4(OD+4*mt)}, {q4(wfrag(sidx))}, {q4(HB+4*n)}, {'0' if sidx == 0 else q4(OD+4*mt)}")
        if n < 2: a(f"ds_read_b128 {q4(HB+4*(14+n))}, v2 offset:{hoff(order[14+n][1], order[14+n][0])}")
    a("s_waitcnt vmcnt(0)")
    a("v_lshlrev_b32 v104, 16, v10")
    a("v_and_b32 v105, 0xffff0000, v10")
    a("v_lshlrev_b32 v106, 16, v11")
    a("v_and_b32 v107, 0xffff0000, v11")
    for mt in range(3): a(f"v_cvt_f32_u32 v{108+2*mt}, v{112+mt}" if mt < 2 else f"v_cvt_f32_u32 v112, v114")
    for mt in range(3):
        for i in range(2):
            a(f"v_pk_mul_f32 {pr(RS+4*mt+2*i)}, {pr(104+2*i)}, {pr(108+2*mt)} op_sel_hi:[1,0]")
    def fin_tile(mt):
        for i in range(4):
            a(f"v_fma_f32 v{RS+4*mt+i}, v{OD+4*mt+i}, s76, v{RS+4*mt+i}")
        a(f"v_cvt_pk_bf16_f32 v{132+2*mt}, v{RS+4*mt}, v{RS+4*mt+1}")
        a(f"v_cvt_pk_bf16_f32 v{133+2*mt}, v{RS+4*mt+2}, v{RS+4*mt+3}")
        a(f"buffer_store_dwordx2 {pr(132+2*mt)}, v{13 if mt == 0 else 14}, s[44:47], s{(69,72,75)[mt]} offen{('', ' sc1', ' nt')[opt.get('osc', 1)]}")
    def merge(mt):
        for i in range(4):
            a(f"v_add_f32_dpp v{OD+4*mt+i}, v{OD+4*mt+4+i}, v{OD+4*mt+i} row_shr:12 row_mask:0xf bank_mask:0xf bound_ctrl:0")
    merge(0)
    fin_tile(0)
    stp(8)
    a("s_barrier")
    stp(9)
    for sidx in range(8):
        a(f"ds_read_b128 {q4(HB+4*sidx)}, v2 offset:{hoff(2, sidx)}")
    a("ds_read_b32 v6, v5")
    for sidx in range(8):
        a(f"s_waitcnt lgkmcnt({8 - sidx})")
        a(f"v_mfma_f32_16x16x32_bf16 {q4(OD+8)}, {q4(wfrag(sidx))}, {q4(HB+4*sidx)}, {'0' if sidx == 0 else q4(OD+8)}")
    a("s_waitcnt lgkmcnt(0)")
    a("v_readfirstlane_b32 s82, v6")
    a("s_nop 1")
    a("s_andn2_b32 s82, s82, s70")
    a("s_cmp_lg_u32 s82, 0")
    a("s_cbranch_scc1 K2_REDO")
    a("s_nop 0")
    merge(1)
    fin_tile(2)
    fin_tile(1)
    stp(10)
    if opt.get("stamps"): a("s_waitcnt vmcnt(0)")
    stp(11)
    a.label("K2_END2")
    stamp_out(a, opt, 22, 0xF80000, 24, 0, tmpv=2)
    if opt.get('gstamps'): stamp_out2(a, opt, 22, 0x1000000, 24, 0, tmpv=2)
    a.label("K2_END")
    a("s_endpgm")
    a.label("K2_HEND")
    a("s_waitcnt lgkmcnt(0)")
    stp(8)
    a("s_barrier")
    a("ds_read_b32 v6, v5")
    a("s_waitcnt lgkmcnt(0)")
    a("v_readfirstlane_b32 s82, v6")
    a("s_nop 0")
    a("s_andn2_b32 s82, s82, s70")
    a("s_cmp_lg_u32 s82, 0")
    a("s_cbranch_scc1 K2_REDO")
    a("s_branch K2_END2")
    a.label("K2_CX")
    a("s_mov_b32 s81, 2")
    count([5, 6, 7])
    decode([5, 6, 7])
    a("v_cmpx_eq_u32 vcc, -2, v23")
    a("ds_write_b32 v111, v114")
    a("s_mov_b64 exec, -1")
    a("s_branch K2_C1")
    a.label("K2_SY")
    for k in (5, 6, 7): a(f"ds_bpermute_b32 v{TP+k}, v{RA+k}, v31")
    a("s_waitcnt lgkmcnt(0)")
    stat([5, 6, 7])
    a("s_branch K2_S0")
    a.label("K2_SX")
    for k in (5, 6, 7): a(f"ds_bpermute_b32 v{SB+k}, v{RA+k}, v108")
    a("s_waitcnt lgkmcnt(0)")
    late([5, 6, 7])
    a("s_branch K2_S1")
    a.label("K2_REDO")
    a("s_setprio 0")
    a("s_mov_b32 s70, -1")
    a("s_lshl_b32 s66, s24, 6")
    a("v_add_u32 v0, s66, v1")
    a("s_waitcnt vmcnt(0) lgkmcnt(0)")
    a("s_barrier")
    a("s_branch K2_TOP")
    a.label("K2_BAD")
    a("v_mov_b32 v109, -1")
    a("ds_write_b32 v111, v109 offset:16")
    a("s_waitcnt vmcnt(0) lgkmcnt(0)")
    a("s_barrier")
    a.label("K2_SLOW")
    a("s_setprio 0")
    a("s_mov_b32 s70, -1")
    a("s_waitcnt vmcnt(0) lgkmcnt(0)")
    a("s_barrier")
    a("s_lshl_b32 s66, s24, 10")
    a(f"s_add_u32 s66, s66, {OH}")
    a("v_lshl_add_u32 v2, v1, 4, s66")
    for i in range(4): a(f"v_mov_b32 v{4+i}, 0")
    for i in range(4): a(f"ds_write_b128 v2, v[4:7] offset:{i*12288}")
    a("v_lshlrev_b32 v12, 2, v1")
    a(f"v_add_u32 v3, {DEG}, v12")
    a("ds_write_b32 v3, v4")
    srd(a, 84, "s8", "s9", E * 4)
    srd(a, 88, "s10", "s11", E * 4)
    a("v_and_b32 v8, 31, v1")
    a("v_lshlrev_b32 v8, 4, v8")
    a("v_lshrrev_b32 v9, 5, v1")
    a("v_lshl_add_u32 v8, v9, 10, v8")
    a("s_lshl_b32 s72, s25, 11")
    a(f"s_add_u32 s66, s72, {WCF_OFF - CELL_OFF}")
    a("buffer_load_dwordx4 v[16:19], v8, s[40:43], s66 offen")
    a("buffer_load_dwordx4 v[20:23], v8, s[40:43], s66 offen offset:512")
    a(f"s_add_u32 s72, s72, {EIM + 8192}")
    a("v_add_u32 v8, s72, v8")
    a("v_lshlrev_b32 v7, 4, v1")
    a("\n".join(w2_pre(7)))
    srd_ws(a, 92, 22, P_OFF, N * 512)
    a("v_lshlrev_b32 v10, 1, v1")
    a("v_add_u32 v10, s58, v10")
    a("v_lshlrev_b32 v11, 1, v10")
    a(f"v_add_u32 v11, {OH}, v11")
    a("v_mov_b32 v13, 1")
    a("s_waitcnt vmcnt(0)")
    for k in range(8):
        a(f"v_lshlrev_b32 v{24+2*k}, 16, v{16+k}")
        a(f"v_and_b32 v{25+2*k}, 0xffff0000, v{16+k}")
    a("s_waitcnt lgkmcnt(0)")
    a("s_barrier")
    a("s_mov_b32 s66, s26")
    a.label("K2_SL_BLK")
    a("s_lshl_b32 s67, s66, 8")
    a("buffer_load_dword v40, v12, s[88:91], s67 offen")
    a("buffer_load_dword v41, v12, s[84:87], s67 offen")
    a("s_waitcnt vmcnt(0)")
    a("v_and_b32 v42, 255, v40")
    a("v_cmp_eq_u32 vcc, s2, v42")
    a("s_nop 1")
    a("s_mov_b64 s[68:69], vcc")
    a.label("K2_SL_E")
    a("s_cmp_eq_u64 s[68:69], 0")
    a("s_cbranch_scc1 K2_SL_NB")
    a("s_ff1_i32_b64 s72, s[68:69]")
    a("s_bitset0_b64 s[68:69], s72")
    a("v_readlane_b32 s52, v40, s72")
    a("v_readlane_b32 s53, v41, s72")
    a("s_lshl_b32 s75, s66, 6")
    a("s_add_u32 s75, s75, s72")
    a("s_lshl_b32 s75, s75, 5")
    a("s_load_dwordx8 s[76:83], s[6:7], s75")
    a("s_lshl_b32 s53, s53, 9")
    a("s_lshr_b32 s52, s52, 8")
    a("s_cmp_ge_u32 s52, 16")
    a("s_cselect_b32 s75, 16384, 0")
    a("s_cmp_ge_u32 s52, 28")
    a("s_cselect_b32 s75, 32768, s75")
    a("s_bfe_u32 s55, s52, 0x10003")
    a("s_lshl_b32 s55, s55, 9")
    a("s_add_u32 s75, s75, s55")
    a("s_and_b32 s55, s52, 7")
    a("s_lshl_b32 s55, s55, 1")
    a("s_add_u32 s75, s75, s55")
    a("v_add_u32 v45, s75, v8")
    a("buffer_load_ushort v43, v10, s[92:95], s53 offen")
    a("ds_read_u16 v44, v45")
    a("s_waitcnt vmcnt(0) lgkmcnt(0)")
    a("v_lshlrev_b32 v43, 16, v43")
    a("v_lshlrev_b32 v44, 16, v44")
    import struct
    PC = struct.unpack("<I", struct.pack("<f", 1.0 / (1 - opt.get("pcomp", 20) * 1e-4)))[0]
    a(f"v_mul_f32 v43, {PC:#x}, v43")
    a("v_add_f32 v43, v43, v44")
    for k in range(8):
        a(f"s_lshl_b32 s53, s{76+k}, 16")
        a(f"v_fmac_f32 v43, s53, v{24+2*k}")
        a(f"s_and_b32 s53, s{76+k}, 0xffff0000")
        a(f"v_fmac_f32 v43, s53, v{25+2*k}")
    a("v_exp_f32 v44, v43")
    a("s_lshl_b32 s53, s52, 10")
    a("v_add_f32 v44, 1.0, v44")
    a("v_rcp_f32 v44, v44")
    a("v_add_u32 v45, s53, v11")
    a("v_mul_f32 v43, v43, v44")
    a("ds_add_f32 v45, v43")
    a("s_cmp_lg_u32 s25, 0")
    a("s_cbranch_scc1 K2_SL_E")
    a("s_lshl_b32 s53, s52, 2")
    a(f"s_add_u32 s53, s53, {DEG}")
    a("v_mov_b32 v45, s53")
    a("s_mov_b64 exec, 1")
    a("ds_add_u32 v45, v13")
    a("s_mov_b64 exec, -1")
    a("s_branch K2_SL_E")
    a.label("K2_SL_NB")
    a("s_add_u32 s66, s66, 3")
    a(f"s_cmp_lt_u32 s66, {E // 64}")
    a("s_cbranch_scc1 K2_SL_BLK")
    a("s_waitcnt lgkmcnt(0)")
    a("s_barrier")
    a("v_and_b32 v2, 31, v1")
    a("v_lshrrev_b32 v3, 5, v1")
    a("s_mov_b32 s66, 0")
    a.label("K2_SL_CV")
    a("v_add_u32 v4, s66, v3")
    a("v_add_u32 v5, s71, v4")
    a("s_cmp_lt_u32 s66, 4")
    a("s_cselect_b32 s67, s26, 0")
    a("s_cmp_lg_u32 s67, 0")
    a("s_cbranch_scc0 K2_SL_NZ")
    a("v_mov_b32 v5, 47")
    a.label("K2_SL_NZ")
    a("v_lshlrev_b32 v5, 10, v5")
    a("v_lshl_add_u32 v5, v2, 3, v5")
    a("s_lshl_b32 s67, s58, 1")
    a(f"s_add_u32 s67, s67, {OH}")
    a("v_add_u32 v5, s67, v5")
    a("ds_read_b64 v[6:7], v5")
    a(f"v_mul_u32_u24 v4, {HSTR}, v4")
    a("v_lshl_add_u32 v4, v2, 2, v4")
    a("v_add_u32 v4, s57, v4")
    a("s_waitcnt lgkmcnt(0)")
    a("v_cvt_pk_bf16_f32 v6, v6, v7")
    a("ds_write_b32 v4, v6")
    a("s_add_u32 s66, s66, 2")
    a("s_cmp_lt_u32 s66, 16")
    a("s_cbranch_scc1 K2_SL_CV")
    a("v_lshlrev_b32 v7, 4, v1")
    fin_loads(7)
    a(f"v_mov_b32 v5, {FLAG}")
    a("v_mov_b32 v7, 1")
    a("s_branch K2_FIN")
    if opt.get("e64"):
        for i in range(loop_start, loop_end):
            l = a.lines[i]
            if l.startswith("v_exp_f32 ") or l.startswith("v_rcp_f32 "): a.lines[i] = l.replace("_f32 ", "_f32_e64 ", 1)
    a.loop = (loop_start, loop_end)
    return a, NV2, (102 if opt.get('stamps') else 96)
```

```python
from asmlib import *

N = 10000; E = 320000
import os
WSB = int(os.environ.get('WSB', '0')) << 20
P_OFF = WSB + 4096
CELL_OFF = WSB + 0xA00000
W2F_OFF = WSB + 0xE00000
W1BF_OFF = WSB + 0xE10000
WCF_OFF = WSB + 0xE20000
FRAG_BYTES = 0x22000
NSORT = 128
CHUNK = 2500
GROWS = 64
NGEMM = 157
NSORTWG = 64
NPREP = 17
EPF = int(os.environ.get('EPF', '0'))
K1_WGS = 256 if EPF else NGEMM + NSORTWG + NPREP
K1_BLOCK = 1024
K1_LDS = 65536 + GROWS * 256 + 256
NEGLOG2E = 0xBFB8AA3B
OVF = 0xFFFFFFFE

def srd(a, r, lo, hi, size):
    a(f"s_mov_b32 s{r}, {lo}")
    a(f"s_mov_b32 s{r+1}, {hi}")
    a(f"s_mov_b32 s{r+2}, {size}")
    a(f"s_mov_b32 s{r+3}, 0x00020000")

def srd_ws(a, r, wslo, off, size):
    a(f"s_add_u32 s{r}, s{wslo}, {off}")
    a(f"s_addc_u32 s{r+1}, s{wslo+1}, 0")
    a(f"s_mov_b32 s{r+2}, {size}")
    a(f"s_mov_b32 s{r+3}, 0x00020000")

def stamp(a, opt, idx, vreg, sreg=96):
    if not opt.get("stamps"): return
    a(f"s_memrealtime s[{sreg}:{sreg+1}]")
    a("s_waitcnt lgkmcnt(0)")
    a(f"v_writelane_b32 v{vreg}, s{sreg}, {idx}")
def stamp_out(a, opt, wslo, off, wavereg, vreg, sreg=96, tmpv=151):
    if not opt.get("stamps"): return
    a(f"s_add_u32 s{sreg}, s{wslo}, {off}")
    a(f"s_addc_u32 s{sreg+1}, s{wslo+1}, 0")
    a(f"s_mov_b32 s{sreg+2}, 0x80000")
    a(f"s_mov_b32 s{sreg+3}, 0x00020000")
    a(f"s_lshl_b32 s100, s2, 4")
    a(f"s_add_u32 s100, s100, s{wavereg}")
    a(f"s_lshl_b32 s100, s100, 6")
    a(f"v_mbcnt_lo_u32_b32 v{tmpv}, -1, 0")
    a(f"v_lshlrev_b32 v{tmpv}, 2, v{tmpv}")
    a("s_mov_b64 exec, 0xffff")
    a(f"buffer_store_dword v{vreg}, v{tmpv}, s[{sreg}:{sreg+3}], s100 offen")
    a("s_mov_b64 exec, -1")
def stamp_out2(a, opt, wslo, off, wavereg, vreg, sreg=96, tmpv=151):
    a(f"s_add_u32 s{sreg}, s{wslo}, {off}")
    a(f"s_addc_u32 s{sreg+1}, s{wslo+1}, 0")
    a(f"s_lshl_b32 s100, s100, 1")
    a("s_mov_b64 exec, 0xffffffff")
    a(f"buffer_store_dword v{vreg}, v{tmpv}, s[{sreg}:{sreg+3}], s100 offen")
    a("s_mov_b64 exec, -1")

def gen_k1(opt=None):
    opt = opt or {}
    SV = 120
    SFD = {0: "", 1: " sc1", 2: " sc0 sc1", 3: " nt", 4: " nt sc1"}
    SF = SFD[opt.get("sf", 1)]
    SFG = SFD[opt.get("sfg", 1)]
    NT = " nt" if opt.get("knt", 1) else ""
    NTX = " nt" if opt.get("kntx", 1) else ""
    a = Asm()
    a.label("mpnn_pre_kernel")
    a(f"s_cmp_ge_u32 s2, {K1_WGS}")
    a("s_cbranch_scc1 K1_END")
    if opt.get("stamps"): a(f"v_mov_b32 v{SV}, 0")
    stamp(a, opt, 0, SV)
    if opt.get("stamps"):
        a("s_getreg_b32 s96, hwreg(HW_REG_XCC_ID)")
        a(f"v_writelane_b32 v{SV}, s96, 9")
    a("s_load_dwordx16 s[4:19], s[0:1], 0")
    a("s_load_dwordx2 s[20:21], s[0:1], 80")
    a("v_lshrrev_b32 v1, 6, v0")
    a("v_and_b32 v2, 63, v0")
    a("v_readfirstlane_b32 s22, v1")
    a(f"s_cmp_ge_u32 s2, {NGEMM}")
    a("s_cbranch_scc1 K1_SORT")
    XI = 65536
    SW = XI + GROWS * 256
    a("v_lshrrev_b32 v10, 4, v0")
    a("v_xor_b32 v11, v10, v2")
    a("v_and_b32 v11, 15, v11")
    a("v_lshlrev_b32 v11, 4, v11")
    a("v_lshl_add_u32 v8, v10, 8, v11")
    a("v_lshrrev_b32 v4, 4, v2")
    a("v_lshlrev_b32 v7, 2, v4")
    a("v_xor_b32 v7, v7, v2")
    a("v_and_b32 v7, 15, v7")
    a("v_lshlrev_b32 v7, 4, v7")
    a("v_lshl_add_u32 v3, v4, 9, v7")
    a(f"v_mov_b32 v14, {SW}")
    a("v_mov_b32 v15, 0")
    a("ds_write_b32 v14, v15")
    a("s_and_b32 s44, s22, 7")
    a("s_lshl_b32 s45, s44, 13")
    a("s_lshr_b32 s46, s22, 3")
    a("s_lshl_b32 s47, s46, 8")
    a("s_add_u32 s45, s45, s47")
    a("s_lshl_b32 s47, s22, 12")
    a(f"s_mul_i32 s48, s2, {GROWS*256}")
    a("s_lshl_b32 s49, s22, 10")
    a(f"s_add_u32 m0, s49, {XI}")
    a("s_waitcnt lgkmcnt(0)")
    srd(a, 32, "s4", "s5", N * 256)
    srd(a, 28, "s12", "s13", 272 * 512)
    if opt.get("wwu", 1):
        a("s_cmp_lg_u32 s22, 0")
        a("s_cbranch_scc1 K1_NWU")
        a("s_bfe_u32 s50, s2, 0x40003")
        a("s_lshl_b32 s50, s50, 12")
        a("v_and_b32 v12, 31, v2")
        a("v_lshlrev_b32 v12, 7, v12")
        a("buffer_load_dword v31, v12, s[28:31], s50 offen")
        a.label("K1_NWU")
    a(f"buffer_load_dwordx4 v8, s[32:35], s48 offen{NTX} lds")
    a("s_mov_b32 m0, s47")
    a("s_cmp_lt_u32 s22, 8")
    a("s_barrier")
    a("s_cbranch_scc1 K1_GA")
    if opt.get("gb", 1) & 2: a("s_barrier")
    a.label("K1_GA")
    for k in range(4):
        a(f"buffer_load_dwordx4 v3, s[28:31], s45 offen offset:{k*1024} lds")
        a("s_add_u32 s45, s45, 1024")
    a("s_cmp_lt_u32 s22, 8")
    a("s_cbranch_scc1 K1_GC")
    a("s_waitcnt vmcnt(4)")
    a("s_barrier")
    a("v_mov_b32 v15, 1")
    a("s_waitcnt vmcnt(0)")
    a("s_mov_b64 exec, 1")
    a("ds_add_u32 v14, v15")
    a("s_endpgm")
    a.label("K1_GC")
    if opt.get("gb", 1) & 2: a("s_barrier")
    a("v_lshrrev_b32 v5, 5, v2")
    a("v_and_b32 v6, 31, v2")
    a("s_bfe_u32 s26, s22, 0x10001")
    a("s_lshr_b32 s27, s22, 2")
    a("s_and_b32 s50, s22, 1")
    a("s_lshl_b32 s50, s50, 7")
    srd_ws(a, 36, 20, P_OFF, (N + 1) * 512)
    a("v_and_b32 v17, 15, v2")
    a("v_xor_b32 v17, v17, v5")
    a("s_lshl_b32 s51, s26, 13")
    a(f"s_add_u32 s51, s51, {XI}")
    a("v_lshl_add_u32 v17, v17, 4, s51")
    a("v_lshl_add_u32 v16, v6, 8, v17")
    for sidx in range(1, 8):
        a(f"v_xor_b32 v{16+sidx}, {sidx << 5}, v16")
    a("v_bfe_u32 v26, v2, 2, 2")
    a("v_lshl_add_u32 v27, v5, 3, v26")
    a("v_and_b32 v28, 3, v2")
    a("v_lshl_add_u32 v28, v28, 3, s50")
    a("v_bfe_u32 v29, v2, 4, 1")
    a("v_lshl_add_u32 v28, v29, 5, v28")
    a("v_lshlrev_b32 v26, 6, v26")
    a("v_xor_b32 v28, v28, v26")
    a("s_lshl_b32 s51, s27, 15")
    a("v_add_u32 v28, s51, v28")
    a("v_lshl_add_u32 v24, v27, 8, v28")
    a("v_xor_b32 v25, 64, v24")
    a("s_lshl_b32 s51, s27, 8")
    a("s_add_u32 s51, s51, s50")
    a("v_lshl_add_u32 v13, v6, 2, s51")
    a("v_lshl_add_u32 v13, v5, 11, v13")
    a(f"s_mul_i32 s52, s2, {GROWS*512}")
    a("s_lshl_b32 s51, s26, 14")
    a("s_add_u32 s52, s52, s51")
    a("s_add_u32 s53, s52, 4096")
    a("s_add_u32 s54, s52, 8192")
    a("s_add_u32 s55, s52, 12288")
    import struct
    PS = struct.unpack("<I", struct.pack("<f", -1.4426950408889634 * (1 - opt.get("pcomp", 20) * 1e-4)))[0]
    a(f"s_mov_b32 s56, {PS:#x}")
    a(f"s_mov_b32 s57, {PS:#x}")
    stamp(a, opt, 1, SV)
    a("s_waitcnt vmcnt(0)")
    stamp(a, opt, 2, SV)
    a("s_barrier")
    stamp(a, opt, 6, SV)
    a("s_cmp_eq_u32 s27, 0")
    a("s_cbranch_scc1 K1_GO")
    a.label("K1_GW")
    a("ds_read_b32 v15, v14")
    a("s_waitcnt lgkmcnt(0)")
    a("v_readfirstlane_b32 s51, v15")
    a("s_nop 0")
    a("s_cmp_lt_u32 s51, 8")
    a("s_cbranch_scc1 K1_GW")
    a.label("K1_GO")
    stamp(a, opt, 8, SV)
    AF = 32; BF = 48; DA = 80; DB = 96
    def reads(sidx):
        st = sidx & 3
        a(f"ds_read_b128 {v(AF+4*st,4)}, v{16+sidx}")
        for X in range(2):
            for e in range(2):
                a(f"ds_read_b64_tr_b16 {v(BF+8*st+4*X+2*e,2)}, v{24+X} offset:{sidx*4096+e*1024}")
    def mm(sidx):
        st = sidx & 3
        ca = "0" if sidx == 0 else v(DA, 16)
        cb = "0" if sidx == 0 else v(DB, 16)
        a(f"v_mfma_f32_32x32x16_bf16 {v(DA,16)}, {v(AF+4*st,4)}, {v(BF+8*st,4)}, {ca}")
        a(f"v_mfma_f32_32x32x16_bf16 {v(DB,16)}, {v(AF+4*st,4)}, {v(BF+8*st+4,4)}, {cb}")
    reads(0); reads(1); reads(2)
    for sidx in range(8):
        a(f"s_waitcnt lgkmcnt({5*min(2, 7-sidx)})"); mm(sidx)
        if sidx + 3 < 8: reads(sidx + 3)
    a("s_nop 10")
    stamp(a, opt, 3, SV)
    for r in range(0, 16, 2):
        a(f"v_pk_mul_f32 {v(DA+r,2)}, {v(DA+r,2)}, s[56:57]")
        a(f"v_pk_mul_f32 {v(DB+r,2)}, {v(DB+r,2)}, s[56:57]")
        for rr in (r, r + 1):
            a(f"v_cvt_pk_bf16_f32 v{AF+rr}, v{DA+rr}, v{DB+rr}")
            a(f"buffer_store_dword v{AF+rr}, v13, s[36:39], s{52 + (rr >> 2)} offen offset:{(rr & 3)*512}{SFG}")
    stamp(a, opt, 4, SV)
    if opt.get("stamps"): a("s_waitcnt vmcnt(0)")
    stamp(a, opt, 5, SV)
    stamp_out(a, opt, 20, 0xF00000, 22, SV, tmpv=121)
    a("s_endpgm")
    a.label("K1_SORT")
    CNT = 32768
    HB = 36864
    a(f"s_sub_u32 s3, s2, {NGEMM}")
    a(f"s_cmp_ge_u32 s3, {NSORTWG}")
    a("s_cbranch_scc1 K1_HELP")
    a("s_and_b32 s24, s3, 7")
    a("s_lshl_b32 s24, s24, 4")
    a("s_lshr_b32 s25, s3, 3")
    a("s_lshl_b32 s25, s25, 1")
    a("s_add_u32 s24, s24, s25")
    a("s_lshr_b32 s25, s22, 3")
    a("s_add_u32 s3, s24, s25")
    a(f"s_mul_i32 s54, s25, {HB}")
    a("v_mov_b32 v47, v0")
    a("v_and_b32 v0, 511, v0")
    a("v_lshlrev_b32 v3, 2, v0")
    a("v_add_u32 v4, 4096, v3")
    a("v_add_u32 v5, 8192, v3")
    a(f"s_mul_i32 s23, s3, {CHUNK*4}")
    a("s_waitcnt lgkmcnt(0)")
    srd(a, 32, "s10", "s11", E * 4)
    for i in range(5):
        a(f"buffer_load_dword v{10+i}, v{3 + (i >> 1)}, s[32:35], s23 offen offset:{(i & 1)*2048}{NT}")
    srd(a, 28, "s8", "s9", E * 4)
    if opt.get("sb", 1): a("s_barrier")
    for i in range(5):
        a(f"buffer_load_dword v{16+i}, v{3 + (i >> 1)}, s[28:31], s23 offen offset:{(i & 1)*2048}{NT}")
    a("v_mov_b32 v24, -1\nv_mov_b32 v25, -1\nv_mov_b32 v26, -1\nv_mov_b32 v27, -1")
    a("v_mov_b32 v28, 0")
    a("v_lshl_add_u32 v6, v0, 4, s54")
    a("v_add_u32 v7, s54, v3")
    a(f"ds_write_b32 v7, v28 offset:{CNT}")
    for i in range(4):
        a(f"ds_write_b128 v6, v[24:27] offset:{i*8192}")
    srd_ws(a, 36, 20, CELL_OFF, 256 * 128 * 128)
    a("v_mov_b32 v29, 1")
    a(f"v_mov_b32 v30, {OVF - (1 << 32)}")
    a("v_lshlrev_b32 v31, 6, v0")
    a("v_lshrrev_b32 v44, 3, v47")
    a("v_and_b32 v45, 3, v47")
    a("v_lshlrev_b32 v45, 1, v45")
    a("v_xor_b32 v45, v45, v44")
    a("v_and_b32 v45, 7, v45")
    a("v_lshlrev_b32 v45, 4, v45")
    a("v_lshl_add_u32 v45, v44, 7, v45")
    a("v_bfe_u32 v43, v47, 2, 1")
    a(f"v_mul_u32_u24 v43, {HB}, v43")
    a("v_add_u32 v45, v45, v43")
    a("v_xor_b32 v42, 16, v45")
    a("v_lshl_add_u32 v43, v44, 2, v43")
    a("v_and_b32 v46, 7, v47")
    a("v_lshlrev_b32 v46, 4, v46")
    a("v_lshl_add_u32 v46, v44, 13, v46")
    a("s_lshr_b32 s24, s3, 1")
    a("s_lshl_b32 s24, s24, 7")
    for i in range(1, 4):
        a(f"s_add_u32 s{24+i}, s24, {i << 20}")
    for i in range(5):
        a(f"v_add_u32 v{84+i}, {i*32768}, v31")
    a(f"v_cmp_gt_u32 vcc, {CHUNK - 2048}, v0")
    a("s_waitcnt lgkmcnt(0)")
    a("s_mov_b64 s[52:53], vcc")
    stamp(a, opt, 1, SV)
    a("s_barrier")
    if opt.get("stamps"): a("s_waitcnt vmcnt(5)")
    stamp(a, opt, 2, SV)
    for i in range(5):
        a(f"s_waitcnt vmcnt({9 - i})")
        a(f"v_and_b32 v{32+i}, 255, v{10+i}")
        a(f"v_lshl_add_u32 v{37+i}, v{32+i}, 2, s54")
        if i == 4: a("s_mov_b64 exec, s[52:53]")
        a(f"ds_add_rtn_u32 v{60+i}, v{37+i}, v29 offset:{CNT}")
        if i == 4: a("s_mov_b64 exec, -1")
    for i in range(5):
        a(f"s_waitcnt vmcnt({4 - i})")
        a(f"v_lshrrev_b32 v{10+i}, 8, v{10+i}")
        a(f"v_lshl_or_b32 v{10+i}, v{16+i}, 18, v{10+i}")
        a(f"v_or_b32 v{10+i}, v{10+i}, v{84+i}")
        a(f"v_and_b32 v{16+i}, 28, v{37+i}")
        a(f"v_lshlrev_b32 v{32+i}, 5, v{32+i}")
    for i in range(5):
        a("s_waitcnt lgkmcnt(4)")
        a(f"v_cmp_lt_u32 vcc, 30, v{60+i}")
        a(f"v_min_u32 v{60+i}, 31, v{60+i}")
        a(f"v_lshl_or_b32 v{60+i}, v{60+i}, 5, v{60+i}")
        a(f"v_bfe_u32 v{60+i}, v{60+i}, 2, 5")
        a(f"v_xad_u32 v{60+i}, v{60+i}, v{16+i}, v{32+i}")
        a(f"v_cndmask_b32 v{10+i}, v{10+i}, v30, vcc")
        a(f"v_lshl_add_u32 v{60+i}, v{60+i}, 2, s54")
        if i == 4: a("s_mov_b64 exec, s[52:53]")
        a(f"ds_write_b32 v{60+i}, v{10+i}")
        if i == 4: a("s_mov_b64 exec, -1")
    a("s_waitcnt lgkmcnt(0)")
    a("s_barrier")
    stamp(a, opt, 3, SV)
    for i in range(2):
        a(f"ds_read_b128 {v(64+4*i,4)}, v45 offset:{i*16384}")
    for i in range(2):
        a(f"ds_read_b32 v{80+i}, v43 offset:{CNT + i*512}")
        a(f"ds_read_b128 {v(72+4*i,4)}, v42 offset:{i*16384}")
    for i in range(2):
        a(f"s_waitcnt lgkmcnt({5 - i})")
        a(f"buffer_store_dwordx4 {v(64+4*i,4)}, v46, s[36:39], s{24+i} offen{SF}")
    for i in range(2):
        a(f"s_waitcnt lgkmcnt({2 - 2*i})")
        a(f"v_cmp_lt_u32 vcc, 15, v{80+i}")
        a("s_and_saveexec_b64 s[52:53], vcc")
        a(f"s_cbranch_execz K1_NB{i}")
        a(f"buffer_store_dwordx4 {v(72+4*i,4)}, v46, s[36:39], s{26+i} offen{SF}")
        a.label(f"K1_NB{i}")
        a("s_mov_b64 exec, -1")
    stamp(a, opt, 4, SV)
    if opt.get("stamps"): a("s_waitcnt vmcnt(0)")
    stamp(a, opt, 5, SV)
    stamp_out(a, opt, 20, 0xF00000, 22, SV, tmpv=121)
    a("s_endpgm")
    a.label("K1_HELP")
    a(f"s_sub_u32 s3, s3, {NSORTWG}")
    a("s_waitcnt lgkmcnt(0)")
    srd_ws(a, 40, 20, W2F_OFF, FRAG_BYTES)
    a("v_lshlrev_b32 v6, 4, v2")
    if EPF:
        a("s_cmp_lt_u32 s22, 10")
        a("s_cbranch_scc1 K1_NPF")
        srd(a, 44, "s6", "s7", E * 32)
        a(f"s_mul_i32 s24, s3, {384*EPF*128}")
        a("v_subrev_u32 v7, 640, v0")
        a("v_lshlrev_b32 v7, 7, v7")
        for i in range(EPF):
            a("buffer_load_dword v22, v7, s[44:47], s24 offen")
            a(f"s_add_u32 s24, s24, {384*128}")
        a("s_endpgm")
        a.label("K1_NPF")
        a(f"s_cmp_ge_u32 s3, {NPREP}")
        a("s_cbranch_scc1 K1_END")
    a("s_cmp_lt_u32 s22, 8")
    a("s_cbranch_scc1 K1_H8")
    a("s_cmp_lt_u32 s22, 10")
    a("s_cbranch_scc0 K1_END")
    a("s_getpc_b64 s[60:61]")
    a.label("K1_PC")
    a("s_add_u32 s60, s60, mpnn_main_kernel-K1_PC")
    a("s_addc_u32 s61, s61, 0")
    a("s_mov_b32 s62, K2_REDO-mpnn_main_kernel")
    a("s_mov_b32 s63, 0x00020000")
    a("v_subrev_u32 v7, 512, v0")
    a("v_lshlrev_b32 v7, 7, v7")
    a("buffer_load_dword v22, v7, s[60:63], 0 offen")
    a("s_endpgm")
    a.label("K1_H8")
    a("s_lshl_b32 s3, s3, 3")
    a("s_add_u32 s3, s3, s22")
    a("s_mov_b32 s58, s3")
    a("s_bfe_u32 s26, s3, 0x30003")
    a("s_and_b32 s27, s3, 7")
    a("s_cmp_ge_u32 s3, 128")
    a("s_cselect_b32 s26, s27, s26")
    a("s_cselect_b32 s27, 8, s27")
    a("s_cmp_ge_u32 s3, 64")
    a("s_cbranch_scc1 K1_PREP1")
    srd(a, 44, "s16", "s17", 256 * 256)
    a("v_and_b32 v40, 15, v2")
    a("v_lshlrev_b32 v40, 1, v40")
    a("v_lshrrev_b32 v41, 4, v2")
    a("v_lshl_add_u32 v40, v41, 10, v40")
    a("v_add_u32 v41, 8192, v40")
    a("s_bfe_u32 s24, s3, 0x20001")
    a("s_lshl_b32 s24, s24, 14")
    a("s_and_b32 s25, s3, 1")
    a("s_lshl_b32 s25, s25, 12")
    a("s_add_u32 s24, s24, s25")
    a("s_lshr_b32 s25, s3, 3")
    a("s_lshl_b32 s25, s25, 5")
    a("s_add_u32 s24, s24, s25")
    for e in range(8):
        a(f"buffer_load_ushort v{48+e}, v{40 + (e & 1)}, s[44:47], s24 offen offset:{(e >> 1)*256}")
    a("s_branch K1_PFIN")
    a.label("K1_PREP1")
    srd(a, 44, "s12", "s13", 272 * 512)
    a("v_and_b32 v42, 1, v2")
    a("v_lshlrev_b32 v42, 6, v42")
    a("v_and_b32 v43, 30, v2")
    a("v_add_u32 v42, v42, v43")
    a("v_lshrrev_b32 v43, 5, v2")
    a("v_lshl_add_u32 v42, v43, 12, v42")
    a("s_lshr_b32 s24, s26, 1")
    a("s_lshl_b32 s24, s24, 7")
    a("s_and_b32 s25, s26, 1")
    a("s_lshl_b32 s25, s25, 5")
    a("s_add_u32 s24, s24, s25")
    a("s_lshl_b32 s27, s27, 13")
    a("s_add_u32 s24, s24, s27")
    a(f"s_add_u32 s24, s24, {128*512}")
    for e in range(8):
        a(f"buffer_load_ushort v{48+e}, v42, s[44:47], s24 offen offset:{e*512}")
    a.label("K1_PFIN")
    a("s_lshl_b32 s24, s58, 10")
    a("s_cmp_ge_u32 s58, 128")
    a("s_waitcnt vmcnt(0)")
    a("s_cbranch_scc1 K1_FINC")
    for e in range(4):
        a(f"v_lshl_or_b32 v{56+e}, v{49+2*e}, 16, v{48+2*e}")
    a("buffer_store_dwordx4 v[56:59], v6, s[40:43], s24 offen" + (" sc1" if opt.get("fsc", 1) else ""))
    a("s_endpgm")
    a.label("K1_FINC")
    a(f"s_mov_b32 s25, {NEGLOG2E:#x}")
    for e in range(8):
        a(f"v_lshlrev_b32 v{48+e}, 16, v{48+e}")
        a(f"v_mul_f32 v{48+e}, s25, v{48+e}")
    for e in range(4):
        a(f"v_cvt_pk_bf16_f32 v{56+e}, v{48+2*e}, v{49+2*e}")
    a("buffer_store_dwordx4 v[56:59], v6, s[40:43], s24 offen" + (" sc1" if opt.get("fsc", 1) else ""))
    a.label("K1_END")
    a("s_endpgm")
    return a, (128 if opt.get('stamps') else 112), (102 if opt.get('stamps') else 64)
```

```python
from asmlib import *
from k1 import *

NW = 12
PSLOT = 0
EIM = 49152
OH = 98304
ZERO = 147456
CNT = ZERO + 256
FLAG = ZERO + 512
DEG = ZERO + 1536
IDX = ZERO + 3328
EOFF = IDX + 6400
HSTR = 144
K2_LDS = 163840
assert EOFF + 6144 <= K2_LDS
GCAP = 48
KILL = 0x40000000
NEGLN2 = 0xBF317218
aAE = 1; aAP = 2; aAO = 7; aS1 = 8; aS2 = 9; aIDX = 10; aEI = 11; EI = 12; CHK = 14
D = [16, 32]; EX = 48; ACC = 64; BC = [80, 84]; BQ = [88, 92]; ID = [96, 100]
AE = 104; FV = 164; MG = 165; AO = 108; S = 112; AP = [116, 120, 124, 128]; HQ = 132; IX = [136, 138, 140, 142]
WP = 144
NV2 = 168

def pr(r): return v(r, 2)
def q4(r): return v(r, 4)
def x16(r): return v(r, 16)

C1 = 116
def mf_tile(Y):
    d = D[Y]
    return [f"v_mfma_f32_32x32x16_bf16 {x16(d)}, {q4(AE)}, {q4(BC[Y])}, {x16(C1 if Y else d)}",
            f"v_mfma_f32_32x32x16_bf16 {x16(d)}, {q4(AO)}, {q4(BQ[Y])}, {x16(d)}"]
def p_reads():
    return [f"ds_read_b64_tr_b16 {pr((C1 if X else D[0])+4*j)}, v{aAP+X} offset:{j*256}" for X in range(2) for j in range(4)]
def p_shift(X):
    b = C1 if X else D[0]
    return [f"v_lshlrev_b64 {pr(b+4*j+2)}, 16, {pr(b+4*j)}" for j in range(4)]
SEGSUM = f"v_mfma_f32_32x32x16_bf16 {x16(ACC)}, {q4(HQ)}, {q4(S)}, {x16(ACC)}"

OCT = [0]
QTAILS = []
def tile(X, mf, ex_exp, mid, ex_rcp, tag=None, mpos=(0, 3, 6, 9, 12), pre=()):
    d = D[X]; out = list(pre); mi = 0
    for i in range(16):
        if i in mpos and mi < len(mf):
            out.append(mf[mi]); mi += 1
        out.append(f"v_exp_f32 v{EX+i}, v{d+i}")
        out += ex_exp.get(i, [])
    out += mid
    NAB, NCD, DAB, DCD = d, d + 8, EX, EX + 8
    out.append(f"v_pk_add_f32 {pr(DAB)}, {pr(EX)}, 1.0 op_sel_hi:[1,0]")
    out.append(f"v_pk_add_f32 {pr(DCD)}, {pr(EX+8)}, 1.0 op_sel_hi:[1,0]")
    for k in range(1, 4):
        out.append(f"v_pk_fma_f32 {pr(NAB)}, {pr(NAB)}, {pr(EX+2*k)}, {pr(NAB)}")
        out.append(f"v_pk_fma_f32 {pr(NCD)}, {pr(NCD)}, {pr(EX+8+2*k)}, {pr(NCD)}")
        out.append(f"v_pk_fma_f32 {pr(NAB)}, {pr(d+2*k)}, {pr(DAB)}, {pr(NAB)}")
        out.append(f"v_pk_fma_f32 {pr(NCD)}, {pr(d+8+2*k)}, {pr(DCD)}, {pr(NCD)}")
        out.append(f"v_pk_fma_f32 {pr(DAB)}, {pr(DAB)}, {pr(EX+2*k)}, {pr(DAB)}")
        out.append(f"v_pk_fma_f32 {pr(DCD)}, {pr(DCD)}, {pr(EX+8+2*k)}, {pr(DCD)}")
    qt = [f"v_pk_fma_f32 {pr(CHK)}, {pr(DAB)}, {pr(DCD)}, {pr(CHK)}"]
    for r in (DAB, DAB + 1, DCD, DCD + 1):
        qt.append(f"v_rcp_f32 v{r}, v{r}")
    qt.append(f"v_pk_mul_f32 {pr(NAB)}, {pr(NAB)}, {pr(DAB)}")
    qt.append(f"v_pk_mul_f32 {pr(NCD)}, {pr(NCD)}, {pr(DCD)}")
    qt.append(f"v_cvt_pk_bf16_f32 v{HQ+2*X}, v{NAB}, v{NAB+1}")
    qt.append(f"v_cvt_pk_bf16_f32 v{HQ+2*X+1}, v{NCD}, v{NCD+1}")
    out += ex_rcp
    if not OCT[0] or tag is None:
        return out + qt
    DM = EX + 2
    out += ["s_bitcmp1_b32 s95, s55", f"s_cbranch_scc1 K2_QT{tag}",
            f"v_pk_mul_f32 {pr(DM)}, {pr(DAB)}, {pr(DCD)}",
            f"v_pk_mul_f32 {pr(NAB)}, {pr(NAB)}, {pr(DCD)}",
            "s_bitcmp0_b32 s54, s55",
            f"v_rcp_f32 v{DM+2}, v{DM}",
            f"v_rcp_f32 v{DM+3}, v{DM+1}",
            f"v_pk_fma_f32 {pr(NAB)}, {pr(NCD)}, {pr(DAB)}, {pr(NAB)}",
            f"v_pk_add_f32 {pr(CHK)}, {pr(CHK)}, {pr(DM)}",
            f"v_pk_mul_f32 {pr(NAB)}, {pr(NAB)}, {pr(DM+2)}",
            f"s_cbranch_scc1 K2_OZ{tag}",
            f"v_mov_b32 v{HQ+2*X+1}, 0",
            f"K2_OZ{tag}:",
            f"v_cvt_pk_bf16_f32 v{HQ+2*X}, v{NAB}, v{NAB+1}",
            f"K2_QR{tag}:"]
    QTAILS.append([f"K2_QT{tag}:"] + qt + [f"s_branch K2_QR{tag}"])
    return out

PFL = [""]
def p_dma():
    return [f"buffer_load_dwordx4 {pr(IX[k])}, s[32:35], s{28+k} idxen offen offset:{k*1024}{PFL[0]} lds" for k in range(4)]

EFL = [""]
def e_dma():
    return ["s_cmp_lt_u32 s61, s53",
            f"s_cselect_b32 s86, {E}, 0",
            f"s_cselect_b32 m0, s59, {K2_LDS:#x}",
            "s_add_u32 s61, s61, 4",
            f"buffer_load_dwordx4 {pr(EI)}, s[84:87], 0 idxen offen{EFL[0]} lds",
            "s_mov_b32 m0, s57",
            "s_add_u32 s59, s59, 4096"]
NW2 = 7
WREG = [144, 148, 152, 156, 160, 96, 100]
def w2_pre(vaddr):
    return [f"buffer_load_dwordx4 {q4(WREG[sidx])}, v{vaddr}, s[40:43], s{73 + (sidx >> 2)} offen offset:{(sidx & 3)*1024}" for sidx in range(NW2)]

def gen_k2(opt=None):
    opt = opt or {}
    EFL[0] = " nt" if opt.get("e0nt", 0) else ""
    OCT[0] = opt.get("oct", 0)
    QTAILS.clear()
    PFL[0] = {0: "", 1: " sc1", 2: " sc0 sc1", 3: " sc0"}[opt.get("pfl", 0)]
    a = Asm()
    def stp(i):
        if opt.get("stamps"):
            a("s_memrealtime s[96:97]"); a("s_waitcnt lgkmcnt(0)"); a(f"v_writelane_b32 v0, s96, {i}")
    def stc(i):
        if opt.get("stamps"):
            a("s_memtime s[96:97]"); a("s_waitcnt lgkmcnt(0)"); a(f"v_writelane_b32 v0, s96, {i}")
    a.label("mpnn_main_kernel")
    a("s_cmp_ge_u32 s2, 256")
    a("s_cbranch_scc1 K2_END")
    a("s_mov_b32 s70, 0")
    a.label("K2_TOP")
    a("s_load_dwordx2 s[22:23], s[0:1], 80")
    a("s_load_dwordx16 s[4:19], s[0:1], 0")
    a("s_load_dwordx2 s[20:21], s[0:1], 64")
    if opt.get("stamps"): a("s_memrealtime s[98:99]")
    a("v_lshrrev_b32 v72, 6, v0")
    a("v_and_b32 v1, 63, v0")
    a("v_readfirstlane_b32 s24, v72")
    a("v_lshlrev_b32 v24, 4, v0")
    L16 = 6
    a(f"v_lshlrev_b32 v{L16}, 4, v1")
    a("s_lshl_b32 s66, s2, 13")
    a(f"s_add_u32 s67, s66, {1 << 21}")
    a("s_and_b32 s25, s24, 3")
    a("s_lshr_b32 s26, s24, 2")
    a("s_cmp_ge_u32 s24, 8")
    a("s_cbranch_scc1 K2_HL")
    a("s_waitcnt lgkmcnt(0)")
    srd_ws(a, 40, 22, CELL_OFF, (W2F_OFF - CELL_OFF) + FRAG_BYTES)
    a("buffer_load_dwordx4 v[16:19], v24, s[40:43], s66 offen")
    a(f"buffer_load_dwordx4 v[20:23], v24, s[40:43], s67 offen{' nt' if opt.get('bnt', 1) else ''}")
    a("s_branch K2_CM")
    a.label("K2_HL")
    if opt.get("hp", 0): a("s_setprio 3")
    a("v_lshrrev_b32 v77, 4, v1")
    a("s_lshl_b32 s68, s25, 2")
    a("v_add_u32 v77, s68, v77")
    a("v_xor_b32 v27, v77, v1")
    a("v_and_b32 v27, 15, v27")
    a("v_lshlrev_b32 v27, 4, v27")
    a("v_lshl_add_u32 v26, v77, 16, v27")
    for win in (1, 2):
        a(f"v_subrev_u32 v78, {12*win}, v77")
        a("v_and_b32 v78, 15, v78")
        a(f"v_add_u32 v78, {12*win}, v78")
        a(f"v_lshl_add_u32 v{27+win}, v78, 16, v27")
    a("s_lshl_b32 s68, s2, 8")
    a("s_lshl_b32 s69, s25, 10")
    a(f"s_add_u32 m0, s69, {EIM + 4096}")
    a("s_waitcnt lgkmcnt(0)")
    srd(a, 36, "s4", "s5", N * 256)
    a("buffer_load_dwordx4 v26, s[36:39], s68 offen lds")
    a(f"s_add_u32 m0, s69, {EIM + 4096 + 16384}")
    srd_ws(a, 40, 22, CELL_OFF, (W2F_OFF - CELL_OFF) + FRAG_BYTES)
    a("buffer_load_dwordx4 v28, s[36:39], s68 offen lds")
    a(f"s_add_u32 m0, s69, {EIM + 4096 + 32768}")
    a("s_lshr_b32 s66, s2, 3")
    a("buffer_load_dwordx4 v29, s[36:39], s68 offen lds")
    a(f"s_mul_i32 s66, s66, {34*128}")
    a(f"s_mul_i32 s67, s25, {9*128}")
    a("s_add_u32 s66, s66, s67")
    a(f"s_add_u32 s66, s66, {W2F_OFF - CELL_OFF}")
    a("v_min_u32 v30, 8, v1")
    a("v_lshlrev_b32 v30, 7, v30")
    a("buffer_load_dword v134, v30, s[40:43], s66 offen")
    a.label("K2_CM")
    a("s_mul_i32 s71, s26, 12")
    a("s_lshl_b32 s56, s26, 14")
    a(f"s_add_u32 s56, s56, {EIM}")
    a("s_lshl_b32 s69, s25, 10")
    a("s_add_u32 s59, s56, s69")
    a("s_lshl_b32 s66, s24, 13")
    a(f"s_add_u32 s73, s66, {W2F_OFF - CELL_OFF}")
    a("s_cmp_lt_u32 s24, 8")
    a(f"s_cselect_b32 s73, s73, {KILL:#x}")
    a("s_add_u32 s74, s73, 4096")
    a("s_lshl_b32 s72, s25, 11")
    a(f"s_add_u32 s72, s72, {WCF_OFF - CELL_OFF}")
    a(f"v_add_u32 v156, {OH}, v24")
    for i in range(4): a(f"v_mov_b32 v{144+i}, 0")
    a(f"v_mov_b32 v31, {N}")
    a(f"v_mov_b32 v152, {E}")
    a(f"v_cmp_gt_u32 vcc, {EOFF - ZERO}, v24")
    a("v_mov_b32 v153, v152")
    a("v_mov_b32 v154, v152")
    a("v_cndmask_b32 v148, v152, v31, vcc")
    a("v_mov_b32 v155, v152")
    for i in range(1, 4): a(f"v_mov_b32 v{148+i}, v148")
    a(f"v_cmpx_le_u32 vcc, {IDX - ZERO}, v24")
    a(f"ds_write_b128 v156, v[148:151] offset:{4*12288}")
    a("s_mov_b64 exec, -1")
    a("s_cmp_lg_u32 s24, 0")
    a("s_cbranch_scc1 K2_I0")
    for i in range(3): a(f"ds_write_b128 v156, v[144:147] offset:{4*12288 + i*1024}")
    a("s_mov_b64 exec, 0xffff")
    a(f"ds_write_b128 v156, v[144:147] offset:{4*12288 + 3072}")
    a("s_mov_b64 exec, -1")
    a.label("K2_I0")
    for i in range(4): a(f"ds_write_b128 v156, v[144:147] offset:{i*12288}")
    a("s_cmp_lt_u32 s24, 4")
    a("s_cbranch_scc0 K2_I1")
    a(f"ds_write_b128 v156, v[152:155] offset:{5*12288}")
    a.label("K2_I1")
    a("v_lshrrev_b32 v72, 2, v0")
    if opt.get("stamps"):
        a("v_mov_b32 v0, 0"); a("v_writelane_b32 v0, s98, 0")
        a("s_getreg_b32 s96, hwreg(HW_REG_XCC_ID)"); a("v_writelane_b32 v0, s96, 15")
    a(f"v_mov_b32 v111, {FLAG}")
    a("v_mov_b32 v114, 1")
    a("s_lshl_b32 s57, s24, 12")
    a("s_lshl_b32 s58, s25, 7")
    if opt.get("hs", 0):
        a("s_cmp_ge_u32 s24, 8")
        a("s_cbranch_scc1 K2_HQ")
    a.label("K2_SET")
    a("s_mov_b32 s84, s6")
    a("s_and_b32 s85, s7, 0xffff")
    a(f"s_or_b32 s85, s85, {32 << 16:#x}")
    a("s_mov_b32 s87, 0x00020000")
    a(f"s_add_u32 s32, s22, {P_OFF - 3072}")
    a("s_addc_u32 s33, s23, 0")
    a("s_and_b32 s33, s33, 0xffff")
    a(f"s_or_b32 s33, s33, {512 << 16:#x}")
    a(f"s_mov_b32 s34, {N+1}")
    a("s_mov_b32 s35, 0x00020000")
    srd(a, 44, "s20", "s21", N * 256)
    H_, I_, T0, T1 = 77, 78, 105, 106
    a(f"v_lshrrev_b32 v{H_}, 5, v1")
    a(f"v_and_b32 v{I_}, 31, v1")
    a(f"v_bfe_u32 v{T0}, v1, 3, 2")
    a(f"v_bfe_u32 v{T1}, v1, 1, 1")
    a(f"v_lshl_or_b32 v{T0}, v{T0}, 1, v{T1}")
    a(f"v_and_b32 v{T1}, 1, v1")
    a(f"v_lshl_or_b32 v{T0}, v{T1}, 3, v{T0}")
    a(f"v_and_b32 v{T1}, 4, v1")
    a(f"v_lshl_or_b32 v{T0}, v{T1}, 2, v{T0}")
    a("s_mov_b32 m0, s57")
    for k in range(4): a(f"s_add_u32 s{28+k}, s58, {(3-k)*1024}")
    a(f"v_and_b32 v{T1}, 3, v1")
    a(f"v_lshl_add_u32 v{aAP}, v{T1}, 3, s57")
    a(f"v_and_b32 v{T1}, 16, v1")
    a(f"v_lshl_add_u32 v{aAP}, v{T1}, 1, v{aAP}")
    a(f"v_lshl_add_u32 v{aAP}, v{H_}, 11, v{aAP}")
    a(f"v_and_b32 v{T1}, 8, v1")
    a(f"v_mul_u32_u24 v{T1}, {(1024 + 64) // 8}, v{T1}")
    a(f"v_add_u32 v{aAP}, v{aAP}, v{T1}")
    a(f"v_not_b32 v{T1}, v1")
    a(f"v_and_b32 v{T1}, 4, v{T1}")
    a(f"v_lshl_add_u32 v{aAP}, v{T1}, 5, v{aAP}")
    a(f"v_xor_b32 v{aAP+1}, 64, v{aAP}")
    a(f"v_bfe_u32 v{T1}, v{T0}, 3, 1")
    a(f"v_xor_b32 v{T1}, v{T1}, v{H_}")
    a(f"v_lshl_add_u32 v{T1}, v{T1}, 4, s56")
    a(f"v_lshl_add_u32 v110, v{T0}, 5, v{T1}")
    a(f"s_add_u32 s52, s56, {OH - EIM}")
    a(f"v_lshl_add_u32 v{T1}, v{H_}, 4, s52")
    a(f"v_lshl_add_u32 v{aAO}, v{T0}, 5, v{T1}")
    a("s_lshl_b32 s66, s26, 11")
    a(f"s_add_u32 s67, s66, {EOFF}")
    a(f"s_add_u32 s66, s66, {IDX}")
    a(f"v_and_b32 v{T1}, 62, v1")
    a(f"v_lshl_add_u32 v{aEI}, v{T1}, 1, s67")
    a(f"v_lshrrev_b32 v{T1}, 3, v1")
    a(f"v_lshl_add_u32 v{aIDX}, v{T1}, 2, s66")
    a(f"v_add_u32 v4, s58, v{aEI}")
    SOFF = 104
    a(f"v_and_b32 v{T1}, 8, v1")
    a(f"v_lshl_add_u32 v{SOFF}, v{T1}, 4, s52")
    a(f"v_lshl_add_u32 v{SOFF}, v{H_}, 9, v{SOFF}")
    a(f"v_and_b32 v{T1}, 4, v1")
    a(f"v_lshl_add_u32 v{SOFF}, v{T1}, 6, v{SOFF}")
    a(f"v_and_b32 v{T1}, 3, v1")
    a(f"v_lshl_add_u32 v{SOFF}, v{T1}, 3, v{SOFF}")
    a("s_mov_b32 s62, 0xffff\ns_mov_b32 s63, 0xffff\ns_mov_b32 s64, 0xffff0000\ns_mov_b32 s65, 0xffff0000")
    a(f"v_mov_b32 v{T0}, {ZERO}")
    a(f"v_cndmask_b32 v{aS1}, v{T0}, v{SOFF}, s[62:63]")
    a(f"v_cndmask_b32 v{aS2}, v{T0}, v{SOFF}, s[64:65]")
    a(f"v_lshrrev_b32 v{T1}, 4, v1")
    a(f"v_xor_b32 v{T1}, v{T1}, v1")
    a(f"v_mov_b32 v{EI}, -1")
    a(f"v_and_b32 v{EI+1}, 1, v{T1}")
    a(f"v_lshlrev_b32 v{EI+1}, 4, v{EI+1}")
    a(f"v_and_b32 v{T1}, 7, v1")
    a(f"v_lshlrev_b32 v{IX[0]+1}, 4, v{T1}")
    a(f"v_xor_b32 v{IX[1]+1}, 64, v{IX[0]+1}")
    a(f"v_mov_b32 v{IX[2]+1}, v{IX[0]+1}")
    a(f"v_mov_b32 v{IX[3]+1}, v{IX[1]+1}")
    a("v_mov_b32 v75, 0x3f80")
    a("s_lshl_b32 s66, s25, 11")
    a("s_add_u32 s67, s56, s66")
    a(f"v_add_u32 v115, s67, v{L16}")
    a("s_mov_b32 s55, 0")
    a("s_mov_b32 s60, 0")
    a("s_mov_b32 s61, s25")
    a("s_cmp_ge_u32 s24, 8")
    a("s_cbranch_scc1 K2_HP" if opt.get("hs", 0) else "s_cbranch_scc1 K2_HQ")
    RA, RK = 32, 40
    SB, TO, TW = 48, 56, 64
    TS, TE, TF, TP = 116, 124, 88, 96
    DYN = (1 << 13) | (1 << 25) | (1 << 26) | (1 << 39)
    a(f"s_mov_b32 s66, {CHUNK}")
    a("v_mul_u32_u24 v72, s66, v72")
    a(f"s_mov_b32 s78, {CNT}")
    a("v_lshl_add_u32 v76, v1, 2, s78")
    a(f"s_mov_b32 s79, {IDX}")
    a(f"s_mov_b32 s80, {OH}")
    a("s_mov_b32 s81, 0")
    a(f"s_mov_b32 s68, {DYN & 0xffffffff:#x}")
    a(f"s_mov_b32 s69, {DYN >> 32:#x}")
    for k in range(8): a(f"v_mov_b32 v{RK+k}, -1")
    a("v_mov_b32 v73, -24")
    a("v_mov_b32 v74, 88")
    a("v_cndmask_b32 v73, 0, v73, s[68:69]")
    a("s_cmp_lg_u32 s24, 0")
    a("s_cbranch_scc1 K2_NCI")
    a("v_lshlrev_b32 v105, 19, v1")
    a(f"s_mov_b64 exec, {1 << 12:#x}")
    a(f"v_add_u32 v105, {(512 - 96) << 16:#x}, v105")
    a(f"s_mov_b64 exec, {(1 << 25) - (1 << 14):#x}")
    a(f"v_add_u32 v105, {(512 - 104) << 16:#x}, v105")
    a("s_mov_b32 exec_lo, 0xf8000000")
    a("s_mov_b32 exec_hi, 0x7f")
    a(f"v_add_u32 v105, {(1024 - 216) << 16:#x}, v105")
    a("s_mov_b64 exec, s[68:69]")
    a("v_mov_b32 v105, 24")
    a("s_mov_b32 exec_lo, -1")
    a("s_mov_b32 exec_hi, 0xff")
    for c in range(5): a(f"ds_write_b32 v76, v105 offset:{c*512}")
    a("s_mov_b64 exec, -1")
    a.label("K2_NCI")
    a(f"buffer_load_dwordx4 {q4(BC[0])}, v{L16}, s[40:43], s72 offen")
    a(f"buffer_load_dwordx4 {q4(BC[1])}, v{L16}, s[40:43], s72 offen offset:1024")
    a("s_waitcnt lgkmcnt(0)")
    stp(1)
    a("s_barrier")
    a("s_waitcnt vmcnt(3)")
    stp(2)
    NOCL = opt.get("nocl", 0)
    def count(ks):
        for k in ks:
            a(f"v_and_b32 v{RA+k}, 63, v{16+k}")
            a(f"v_lshrrev_b32 v{TF+k}, 29, v{16+k}" if not NOCL else f"v_mov_b32 v{TF+k}, 0")
            a(f"v_lshl_add_u32 v{RA+k}, v{RA+k}, 2, s78")
            a(f"v_lshl_add_u32 v{RA+k}, v{TF+k}, 9, v{RA+k}")
        for k in ks:
            a(f"v_cmpx_gt_u32 vcc, -2, v{16+k}")
            a(f"ds_add_rtn_u32 v{RK+k}, v{RA+k}, v114")
        a("s_mov_b64 exec, -1")
    def decode(ks):
        for k in ks:
            a(f"v_lshrrev_b32 v{TS+k}, {18 + opt.get('pshift', 0)}, v{16+k}")
            a(f"v_bfe_u32 v{TE+k}, v{16+k}, 6, 12")
            a(f"v_add_u32 v{TE+k}, v{TE+k}, v72")
            if opt.get("eshift"): a(f"v_lshrrev_b32 v{TE+k}, {opt['eshift']}, v{TE+k}")
            a(f"v_and_b32 v{TO+k}, 15, v{16+k}")
            a(f"v_lshl_add_u32 v{TO+k}, v{TO+k}, 1, s80")
            a(f"v_mad_i32_i24 v{TF+k}, v{TF+k}, -7, 28")
    SD = "dst_sel:DWORD dst_unused:UNUSED_PAD"
    def pos_ops(k):
        return [f"v_bfe_u32 v{TP+k}, v{TP+k}, v{TF+k}, 7",
                f"v_add_u32_sdwa v{TP+k}, v{TP+k}, v{RK+k} {SD} src0_sel:DWORD src1_sel:WORD_0",
                f"v_add_u32_sdwa v{TF+k}, v{TP+k}, v{RK+k} {SD} src0_sel:DWORD src1_sel:WORD_1",
                f"v_lshrrev_b32 v{TW+k}, 3, v{TP+k}",
                f"v_mad_u32_u24 v{TF+k}, v{TW+k}, v74, v{TF+k}"]
    def scatter(ks):
        for k in ks:
            a(f"v_add_u32 v{SB+k}, v{SB+k}, v{TP+k}")
        for k in ks:
            a(f"v_cmp_gt_u32 vcc, s76, v{SB+k}")
            a(f"v_cmp_gt_u32 s[68:69], s77, v{SB+k}")
            a(f"v_cmp_gt_u32 s[82:83], 24, v{TP+k}")
            a(f"s_nop 0")
            a(f"v_cndmask_b32 v{TW+k}, v107, v106, s[68:69]")
            a(f"v_cndmask_b32 v{TW+k}, v{TW+k}, v105, vcc")
            a(f"v_add_u32 v{SB+k}, v{SB+k}, v{TW+k}")
            a(f"v_cndmask_b32 v{SB+k}, v{SB+k}, v{TF+k}, s[82:83]")
            a(f"v_lshl_add_u32 v{TO+k}, v{SB+k}, 5, v{TO+k}")
            a(f"v_lshl_add_u32 v{SB+k}, v{SB+k}, 2, s79")
        for k in ks:
            a(f"v_cmpx_gt_u32 vcc, -2, v{16+k}")
            a(f"ds_write2st64_b32 v{SB+k}, v{TS+k}, v{TE+k} offset0:0 offset1:{(EOFF-IDX)//256}")
            a(f"ds_write_b16 v{TO+k}, v75")
        a("s_mov_b64 exec, -1")
    def arrive(off):
        a("s_mov_b64 exec, 1")
        a(f"ds_add_u32 v111, v114 offset:{off}")
        a("s_mov_b64 exec, -1")
    a("v_mov_b32_dpp v25, v19 quad_perm:[3,3,3,3] row_mask:0xf bank_mask:0xf")
    count(range(4))
    a("v_cmp_ne_u32 vcc, -1, v25")
    a("s_nop 1")
    a("s_cbranch_vccz K2_C1")
    a("s_waitcnt vmcnt(2)")
    for k in range(4): a(f"v_cndmask_b32 v{20+k}, -1, v{20+k}, vcc")
    a("s_mov_b32 s81, 1")
    count([4])
    a("v_cmp_ne_u32 vcc, -1, v21")
    decode([4])
    a("s_cbranch_vccnz K2_CX")
    a.label("K2_C1")
    arrive(4)
    decode(range(4))
    a.label("K2_SB1")
    a("ds_read_b64 v[108:109], v111")
    for c in range(5): a(f"ds_read_u16 v{26+c}, v76 offset:{c*512}")
    a("s_waitcnt lgkmcnt(0)")
    a("v_readfirstlane_b32 s66, v109")
    a("v_add_u32 v26, v26, v73")
    a("s_cmp_lt_u32 s66, 8")
    a("s_cbranch_scc1 K2_SB1")
    stp(3)
    a("v_add3_u32 v27, v26, v27, v73")
    a("v_add3_u32 v28, v27, v28, v73")
    a("v_lshl_or_b32 v31, v26, 7, v27")
    a("v_add3_u32 v29, v28, v29, v73")
    a("v_lshl_or_b32 v31, v31, 7, v28")
    a("v_readfirstlane_b32 s82, v108")
    a("v_lshl_or_b32 v31, v31, 7, v29")
    for k in range(5): a(f"ds_bpermute_b32 v{TP+k}, v{RA+k}, v31")
    a("v_add_u32 v30, v29, v30")
    a("v_cmp_lt_u32 vcc, 0x7f, v29")
    a("v_max_u32 v105, 24, v30")
    a("v_add_u32 v105, -21, v105")
    a("v_and_b32 v105, -4, v105")
    a("s_or_b32 s82, s82, s70")
    a("s_or_b32 s82, s82, vcc_lo")
    a("v_add_u32_dpp v107, v105, v105 row_shr:1 row_mask:0xf bank_mask:0xf bound_ctrl:0")
    a("s_or_b32 s82, s82, vcc_hi")
    a("v_add_u32 v30, v30, v73")
    a("v_add_u32_dpp v107, v107, v107 row_shr:2 row_mask:0xf bank_mask:0xf bound_ctrl:0")
    a("s_cmp_lg_u32 s82, 0")
    a("s_cbranch_scc1 K2_BAD")
    a("v_add_u32_dpp v107, v107, v107 row_shr:4 row_mask:0xf bank_mask:0xf bound_ctrl:0")
    a("s_waitcnt lgkmcnt(0)")
    def stat(ks):
        for k in ks:
            a("\n".join(pos_ops(k)))
            a(f"v_lshl_add_u32 v{TW+k}, v{TF+k}, 5, v{TO+k}")
            a(f"v_lshl_add_u32 v{TF+k}, v{TF+k}, 2, s79")
            a(f"v_cmpx_gt_u32 vcc, 24, v{TP+k}")
            a(f"ds_write2st64_b32 v{TF+k}, v{TS+k}, v{TE+k} offset0:0 offset1:{(EOFF-IDX)//256}")
            a(f"ds_write_b16 v{TW+k}, v75")
            a("s_mov_b64 exec, -1")
    def late(ks):
        for k in ks:
            a(f"v_add_u32 v{SB+k}, v{SB+k}, v{TP+k}")
            a(f"v_cmp_gt_u32 vcc, s76, v{SB+k}")
            a(f"v_cmp_gt_u32 s[68:69], s77, v{SB+k}")
            a(f"v_cmpx_le_u32 s[82:83], 24, v{TP+k}")
            a(f"v_cmpx_gt_u32 s[82:83], -2, v{16+k}")
            a(f"v_cndmask_b32 v{TW+k}, v107, v106, s[68:69]")
            a(f"v_cndmask_b32 v{TW+k}, v{TW+k}, v105, vcc")
            a(f"v_add_u32 v{SB+k}, v{SB+k}, v{TW+k}")
            a(f"v_lshl_add_u32 v{TO+k}, v{SB+k}, 5, v{TO+k}")
            a(f"v_lshl_add_u32 v{SB+k}, v{SB+k}, 2, s79")
            a(f"ds_write2st64_b32 v{SB+k}, v{TS+k}, v{TE+k} offset0:0 offset1:{(EOFF-IDX)//256}")
            a(f"ds_write_b16 v{TO+k}, v75")
            a("s_mov_b64 exec, -1")
    stat(range(4))
    a("s_cmp_eq_u32 s81, 0")
    a("s_cbranch_scc1 K2_S0")
    stat([4])
    a("s_cmp_lg_u32 s81, 1")
    a("s_cbranch_scc1 K2_SY")
    a.label("K2_S0")
    arrive(8)
    nlw = [0]
    def lwait(off, n, vt=109, va=111, extra=None, sleep=1):
        nlw[0] += 1; t = nlw[0]
        a.label(f"LW{t}")
        a(f"ds_read_b32 v{vt}, v{va} offset:{off}")
        if extra: extra()
        a("s_waitcnt lgkmcnt(0)")
        a(f"v_readfirstlane_b32 s66, v{vt}")
        a("s_nop 0")
        a(f"s_cmp_ge_u32 s66, {n}")
        a(f"s_cbranch_scc1 LX{t}")
        if sleep: a(f"s_sleep {sleep}")
        a(f"s_branch LW{t}")
        a.label(f"LX{t}")
    def g0_addr(): pass
    def first_reads():
        for k in range(4): a(f"ds_read_b32 v{IX[k]}, v{aIDX} offset:{k*32}")
        a(f"ds_read_b32 v{EI}, v4")
    nfl = [0]
    LATE = 0
    EA = opt.get("ea", 0)
    def first_loads():
        nfl[0] += 1
        a("s_cmp_lg_u32 s25, 0")
        a(f"s_cbranch_scc1 K2_FL{nfl[0]}")
        a("\n".join(e_dma()))
        a.label(f"K2_FL{nfl[0]}")
        a("\n".join(p_dma()))
        if EA:
            a("s_cmp_eq_u32 s25, 0")
            a(f"s_cbranch_scc1 K2_FM{nfl[0]}")
            a("\n".join(e_dma()))
            a.label(f"K2_FM{nfl[0]}")
    def sb2(tag):
        a.label(f"K2_SB2{tag}")
        a("ds_read_b32 v109, v111 offset:8")
        first_reads()
        a("s_waitcnt lgkmcnt(0)")
        a("v_readfirstlane_b32 s66, v109")
        a("s_nop 0")
        a("s_cmp_lt_u32 s66, 8")
        a(f"s_cbranch_scc1 K2_SB2{tag}")
        stp(4)
        first_loads()
    a(f"ds_write_b32 v76, v30 offset:{DEG - CNT}")
    a("v_add_u32_dpp v107, v107, v107 row_shr:8 row_mask:0xf bank_mask:0xf bound_ctrl:0")
    a("s_mov_b32 s53, 9")
    a("s_nop 0")
    a("v_add_u32_dpp v107, v107, v107 row_bcast:15 row_mask:0xa bank_mask:0xf")
    a("s_nop 1")
    a("v_add_u32_dpp v107, v107, v107 row_bcast:31 row_mask:0xc bank_mask:0xf")
    a("v_sub_u32 v108, v107, v105")
    a("v_readlane_b32 s83, v107, 63")
    for k in range(5): a(f"ds_bpermute_b32 v{SB+k}, v{RA+k}, v108")
    R1L = opt.get("r1l", 1)
    if R1L:
        a("s_cmp_lg_u32 s26, 0")
        a("s_cbranch_scc1 K2_NE1")
    sb2("a")
    if R1L: a.label("K2_NE1")
    a("v_readlane_b32 s76, v108, 12")
    a("v_readlane_b32 s77, v108, 16")
    a("v_readlane_b32 s68, v108, 24")
    a("v_readlane_b32 s69, v108, 28")
    sal = ["s_add_u32 s88, s83, 95", "s_lshr_b32 s88, s88, 5", "s_mul_i32 s88, s88, 171", "s_lshr_b32 s88, s88, 9",
           "s_add_u32 s89, s76, 31", "s_lshr_b32 s89, s89, 5", "s_max_u32 s88, s88, s89", "s_lshr_b32 s89, s77, 5", "s_min_u32 s88, s88, s89",
           "s_lshl_b32 s88, s88, 5", "s_max_u32 s76, s88, s76",
           "s_sub_u32 s88, s83, s76", "s_add_u32 s88, s88, 63", "s_lshr_b32 s88, s88, 6",
           "s_sub_u32 s89, s68, s76", "s_add_u32 s89, s89, 31", "s_lshr_b32 s89, s89, 5", "s_max_u32 s88, s88, s89",
           "s_sub_u32 s89, s69, s76", "s_lshr_b32 s89, s89, 5", "s_min_u32 s88, s88, s89",
           "s_lshl_b32 s88, s88, 5", "s_add_u32 s88, s88, s76", "s_max_u32 s77, s88, s68",
           "s_sub_u32 s88, s83, 224", "s_max_i32 s77, s77, s88", "s_min_u32 s77, s77, s69",
           f"s_add_u32 s53, s76, {288+31}", "s_lshr_b32 s53, s53, 5",
           "s_sub_u32 s90, s77, s76", f"s_add_u32 s90, s90, {288+31}", "s_lshr_b32 s90, s90, 5",
           "s_sub_u32 s91, s83, s77", f"s_add_u32 s91, s91, {288+31}", "s_lshr_b32 s91, s91, 5",
           f"s_sub_u32 s88, {512+288-24}, s76", f"s_sub_u32 s89, {1024+288-24}, s77",
           "s_add_u32 s76, s76, 24", "s_add_u32 s77, s77, 24",
           "s_max_u32 s92, s90, s53", "s_max_u32 s92, s92, s91"]
    a("\n".join(sal))
    a("s_cmp_gt_u32 s92, 16")
    a("s_cbranch_scc1 K2_BAD")
    if opt.get("force_slow"): a("s_branch K2_BAD")
    a("v_mov_b32 v106, s91")
    a("ds_write_b32 v111, v106 offset:16")
    a("s_cmp_eq_u32 s26, 1")
    a("s_cselect_b32 s53, s90, s53")
    a(f"v_mov_b32 v105, {288-24}")
    a("s_waitcnt lgkmcnt(0)")
    a("v_mov_b32 v106, s88")
    a("v_mov_b32 v107, s89")
    late(range(4))
    a("s_cmp_eq_u32 s81, 0")
    a("s_cbranch_scc1 K2_S1")
    late([4])
    a("s_cmp_lg_u32 s81, 1")
    a("s_cbranch_scc1 K2_SX")
    a.label("K2_S1")
    arrive(40)
    if R1L:
        a("s_cmp_eq_u32 s26, 0")
        a("s_cbranch_scc1 K2_NE2")
        sb2("b")
        a.label("K2_NE2")
    a("s_branch K2_QD")
    a.label("K2_HQ")
    WA, QA, QB, XA, BIAS = 32, 16, 116, 132, 112
    a(f"v_lshrrev_b32 v{H_}, 5, v1")
    a("s_lshl_b32 s66, s25, 11")
    a(f"v_and_b32 v{T0}, 3, v1")
    a(f"v_and_b32 v{T1}, 4, v1")
    a(f"v_lshl_or_b32 v{T0}, v{T1}, 1, v{T0}")
    a(f"v_bfe_u32 v{T1}, v1, 3, 1")
    a(f"v_lshl_or_b32 v{T0}, v{T1}, 2, v{T0}")
    a(f"v_xor_b32 v{T1}, v{T0}, v{H_}")
    a(f"v_lshlrev_b32 v{T1}, 4, v{T1}")
    a(f"v_lshl_add_u32 v{XA}, v{T0}, 8, v{T1}")
    a(f"v_and_b32 v{T1}, 16, v1")
    a(f"v_lshl_add_u32 v{XA}, v{T1}, 10, v{XA}")
    a(f"v_add_u32 v{XA}, {EIM + 4096}, v{XA}")
    a(f"s_add_u32 s67, s66, {EIM + 8192}")
    a(f"v_add_u32 v107, s67, v{L16}")
    srd(a, 48, "s14", "s15", 512)
    a("v_and_b32 v108, 1, v1")
    a("v_and_b32 v109, 30, v1")
    a("v_lshl_add_u32 v108, v108, 6, v109")
    a("s_lshl_b32 s66, s25, 14")
    a(f"s_add_u32 s76, s66, {W1BF_OFF - CELL_OFF}")
    for i in range(1, 4): a(f"s_add_u32 s{76+i}, s76, {i*4096}")
    PFT = opt.get("pft", 0)
    if PFT:
        srd_ws(a, 92, 22, P_OFF, N * 512)
        a("s_lshr_b32 s80, s2, 3")
        a(f"s_mul_i32 s80, s80, {PFT*256*128}")
        a("s_lshl_b32 s81, s25, 13")
        a("s_add_u32 s80, s80, s81")
        a("v_lshlrev_b32 v109, 7, v1")
    a(f"s_mov_b32 s68, {NEGLOG2E:#x}")
    a(f"s_mov_b32 s69, {NEGLOG2E:#x}")
    a(f"buffer_load_ushort v{BIAS}, v108, s[48:51], s58 offen")
    a(f"buffer_load_ushort v{BIAS+1}, v108, s[48:51], s58 offen offset:32")
    a(f"buffer_load_dwordx4 {q4(BC[0])}, v{L16}, s[40:43], s72 offen")
    a(f"buffer_load_dwordx4 {q4(BC[1])}, v{L16}, s[40:43], s72 offen offset:1024")
    a("s_mov_b32 s53, 9")
    def wr(i): return WA + 4*i if i not in (12, 13) else 96 + 4*(i - 12)
    for i in range(16):
        if i == opt.get("hw", 0):
            a("s_waitcnt lgkmcnt(0)")
            stp(1)
            a("s_barrier")
        a(f"buffer_load_dwordx4 {q4(wr(i))}, v{L16}, s[40:43], s{76 + (i >> 2)} offen offset:{(i & 3)*1024}")
        if i == 7:
            a("s_waitcnt vmcnt(12)")
            arrive(12)
    for i in range(PFT):
        a("buffer_load_dword v135, v109, s[92:95], s80 offen")
        a(f"s_add_u32 s80, s80, {256*128}")
    stp(2)
    a.label("K2_HS")
    a("ds_read_b32 v108, v111 offset:12")
    a("s_waitcnt lgkmcnt(0)")
    a("v_readfirstlane_b32 s66, v108")
    a("s_nop 0")
    a("s_cmp_lt_u32 s66, 4")
    a("s_cbranch_scc1 K2_HS")
    def xread(step):
        sidx = step & 7; st_ = step % 3
        if sidx: a(f"v_xor_b32 v{XA+1}, {sidx << 5}, v{XA}")
        r = XA + 1 if sidx else XA
        a(f"ds_read_b128 {q4(WP+8*st_)}, v{r}")
        a(f"ds_read_b128 {q4(WP+8*st_+4)}, v{r} offset:32768")
    xread(0); xread(1); xread(2)
    a(f"s_waitcnt vmcnt({16 + PFT})")
    a(f"v_lshlrev_b32 v{BIAS}, 16, v{BIAS}")
    a(f"v_lshlrev_b32 v{BIAS+1}, 16, v{BIAS+1}")
    a(f"v_pk_mul_f32 {pr(BIAS)}, {pr(BIAS)}, s[68:69]")
    HM = opt.get("hm", 0)
    for X in range(2):
        for sidx in range(8):
            step = 8*X + sidx; st_ = step % 3
            nl = 2*min(2, 15-step) + (3 if (X == 1 and sidx < 3) else 0)
            if X == 0 or not HM: a(f"s_waitcnt vmcnt({15 - step + PFT}) lgkmcnt({min(nl, 15)})")
            elif sidx >= 3: a(f"s_waitcnt lgkmcnt({nl})")
            a(f"v_mfma_f32_32x32x16_bf16 {x16(QA)}, {q4(WP+8*st_)}, {q4(wr(step))}, {'0' if sidx == 0 else x16(QA)}")
            a(f"v_mfma_f32_32x32x16_bf16 {x16(QB)}, {q4(WP+8*st_+4)}, {q4(wr(step))}, {'0' if sidx == 0 else x16(QB)}")
            if step + 3 < 16: xread(step + 3)
        a("s_nop 10")
        for wi, base in enumerate((QA, QA + 8, QB)):
            for k in range(4):
                a(f"v_pk_fma_f32 {pr(base+2*k)}, {pr(base+2*k)}, s[68:69], {pr(BIAS)} op_sel:[0,0,{X}] op_sel_hi:[1,1,{X}]")
            for k in range(4):
                a(f"v_cvt_pk_bf16_f32 v{WA+4*wi+k+12*X}, v{base+2*k}, v{base+2*k+1}")
            a(f"ds_write_b128 v107, {q4(WA+4*wi+12*X)} offset:{wi*16384 + X*1024}")
        if X == 0 and HM:
            a("s_waitcnt vmcnt(0)")
            sb2("h")
    arrive(36)
    stp(3)
    if not HM: sb2("h")
    a.label("K2_QD")
    a("v_mov_b32 v167, v111")
    a(f"v_mov_b32 v166, v4")
    a(f"v_mov_b32 v{aAE}, v110")
    a(f"v_mov_b32 v{MG}, -1")
    for k in range(4): a(f"ds_read_b32 v{IX[k]}, v{aIDX} offset:{128+k*32}")
    a(f"ds_read_b128 {q4(AO)}, v{aAO}")
    def bq_reads():
        a(f"ds_read_b128 {q4(BQ[0])}, v115 offset:8192")
        a(f"ds_read_b128 {q4(BQ[1])}, v115 offset:9216")
    stp(5)
    for i in range(16): a(f"v_mov_b32 v{ACC+i}, 0")
    a(f"v_mov_b32 v{CHK}, 0\nv_mov_b32 v{CHK+1}, 0")
    T3, T2, T1_ = opt.get("t3", 6), opt.get("t2", 3), opt.get("t1", 1)
    if OCT[0]:
        a("s_waitcnt lgkmcnt(3)")
        a("v_readfirstlane_b32 s66, v106")
        a("v_readfirstlane_b32 s67, v107")
        a("s_nop 0")
        a("s_lshr_b64 s[66:67], s[66:67], s52")
        if opt.get("allq"): a("s_mov_b32 s66, -1")
        a("s_mov_b32 s95, s66")
        a("s_lshl_b32 s54, s66, 1")
    def flag_wait(tag, off):
        a.label(f"K2_W{tag}")
        a(f"ds_read_b32 v{FV}, v{aEI} offset:{off}")
        a("s_waitcnt lgkmcnt(0)")
        a(f"v_readfirstlane_b32 s66, v{FV}")
        a("s_nop 0")
        a("s_cmp_eq_u32 s66, -1")
        a(f"s_cbranch_scc1 K2_X{tag}")
        a("s_sleep 1")
        a(f"s_branch K2_W{tag}")
        a.label(f"K2_X{tag}")
    if LATE:
        a("s_max_i32 s90, s90, 1")
        a("s_min_u32 s90, s90, s53")
        a("s_min_u32 s67, s53, 2")
        a("s_cmp_ge_u32 s25, s67")
        a("s_waitcnt vmcnt(0)")
        a("s_cbranch_scc1 K2_NF")
        a(f"ds_write_b32 v166, v{MG}")
        a.label("K2_NF")
        for m in range(4): a(f"ds_read_b128 {q4(AP[m])}, v{aAP+m}")
        a("s_waitcnt lgkmcnt(0)")
        a("\n".join(p_dma()))
        a("s_cmp_lt_u32 s25, 2")
        a("s_cbranch_scc1 K2_F2")
        a("\n".join(e_dma()))
        a.label("K2_F2")
        for i in range(4): a(f"v_mov_b32 v{HQ+i}, 0")
        a("s_cmp_eq_u32 s53, 0")
        a("s_cbranch_scc1 K2_EXIT")
        flag_wait("A", 0)
        a(f"ds_read_b128 {q4(AE)}, v{aAE}")
        stp(6)
        stc(12)
        if opt.get("prio", 1): a("s_setprio 3")
        a("s_sub_u32 s68, 0, s25")
        a("s_and_b32 s68, s68, 3")
        a("s_lshl_b32 s67, s68, 7")
        a("s_lshl_b32 s69, s68, 10")
        a(f"v_subrev_u32 v{aAO}, s69, v{aAO}")
        a(f"v_subrev_u32 v{aAE}, s69, v{aAE}")
        a(f"v_subrev_u32 v{aIDX}, s67, v{aIDX}")
        a(f"v_subrev_u32 v{aEI}, s67, v{aEI}")
        a("s_mov_b64 exec, s[62:63]")
        a(f"v_subrev_u32 v{aS1}, s69, v{aS1}")
        a("s_mov_b64 exec, s[64:65]")
        a(f"v_subrev_u32 v{aS2}, s69, v{aS2}")
        a("s_mov_b64 exec, -1")
        a("s_waitcnt lgkmcnt(0)")
        a("\n".join(mf_tile(0)))
        a("s_nop 8")
        a("s_cmp_eq_u32 s68, 1")
        a("s_cbranch_scc1 K2_U1")
        a("s_cmp_eq_u32 s68, 2")
        a("s_cbranch_scc1 K2_U2")
        a("s_cmp_eq_u32 s68, 3")
        a("s_cbranch_scc1 K2_U3")
    else:
        a("s_cmp_lg_u32 s25, 0")
        a(f"s_waitcnt vmcnt({1 if EA else 0})")
        a("s_cbranch_scc1 K2_NF")
        a("s_waitcnt vmcnt(0)")
        a(f"ds_write_b32 v166, v{MG}")
        a(f"ds_read_b32 v{EI}, v{aEI} offset:512")
        a.label("K2_NF")
        a("\n".join(p_reads()))
        a("s_waitcnt lgkmcnt(0)")
        a("\n".join(p_dma()))
        a("\n".join(p_shift(0) + p_shift(1)))
        a("s_sub_u32 s67, s25, 1")
        if not EA:
            a("s_cmp_ge_u32 s67, 2")
            a("s_cbranch_scc1 K2_F2")
            a("\n".join(e_dma()))
        a.label("K2_F2")
        lwait(36, 4, vt=FV, va=167, extra=bq_reads)
        def flag_wait(tag, off):
            a.label(f"K2_W{tag}")
            a(f"ds_read_b32 v{FV}, v{aEI} offset:{off}")
            a("s_waitcnt lgkmcnt(0)")
            a(f"v_readfirstlane_b32 s66, v{FV}")
            a("s_nop 0")
            a("s_cmp_eq_u32 s66, -1")
            a(f"s_cbranch_scc1 K2_X{tag}")
            a("s_sleep 1")
            a(f"s_branch K2_W{tag}")
            a.label(f"K2_X{tag}")
        flag_wait("A", 0)
        a(f"ds_read_b128 {q4(AE)}, v{aAE}")
        stp(6)
        stc(12)
        if opt.get("prio", 1): a("s_setprio 3")
        a("s_waitcnt lgkmcnt(0)")
        a("\n".join(mf_tile(0)))
        a("s_nop 10")
        ex0 = {1: [f"ds_read_b32 v{IX[k]}, v{aIDX} offset:{256+k*32}" for k in range(4)]}
        ex1 = {1: [f"ds_read_b64_tr_b16 {pr(S)}, v{aS1}", f"ds_read_b64_tr_b16 {pr(S+2)}, v{aS2}", f"ds_read_b128 {q4(AO)}, v{aAO} offset:1024"]}
        a("\n".join(tile(0, mf_tile(1), ex0, [], [], "P0") + tile(1, [], ex1, [], ["s_waitcnt lgkmcnt(0)"], "P1")))
        a("s_mov_b32 s55, 1")
        lwait(40, 8, vt=FV, va=167, extra=lambda: a("ds_read_b32 v5, v167 offset:16"))
        a("v_readfirstlane_b32 s66, v5")
        a("s_cmp_eq_u32 s26, 2")
        a("s_cselect_b32 s53, s66, s53")
        a("s_cmp_eq_u32 s53, -1")
        a("s_cbranch_scc1 K2_SLOW")
        a("s_cmp_eq_u32 s26, 2")
        a(f"s_cselect_b32 s94, {opt.get('r2lag', 0)}, 0")
        a("s_sub_u32 s94, s53, s94")
        a(f"s_sub_u32 s90, s94, {T3}")
        a("s_max_i32 s90, s90, 2")
        a("s_mov_b32 s91, 0")
        a("s_sub_u32 s93, s53, 2")
        a(f"s_cmp_ge_u32 s67, {3 if EA else 2}")
        a("s_waitcnt vmcnt(0)")
        a("s_cbranch_scc1 K2_NF2")
        a(f"ds_write_b32 v166, v{MG}")
        a.label("K2_NF2")
        a("\n".join(p_reads()))
        a("s_waitcnt lgkmcnt(0)")
        a("\n".join(p_dma()))
        a("\n".join(p_shift(0) + p_shift(1)))
        a(f"s_cmp_lt_u32 s67, {3 if EA else 2}")
        a("s_cbranch_scc1 K2_F3")
        a("\n".join(e_dma()))
        a.label("K2_F3")
        flag_wait("B", 128)
        a(f"ds_read_b128 {q4(AE)}, v{aAE} offset:1024")
        a("s_sub_u32 s68, 1, s25")
        a("s_and_b32 s68, s68, 3")
        a("s_sub_u32 s69, 1, s68")
        a("s_lshl_b32 s67, s69, 7")
        a("s_lshl_b32 s69, s69, 10")
        a(f"v_add_u32 v{aAO}, s69, v{aAO}")
        a(f"v_add_u32 v{aAE}, s69, v{aAE}")
        a(f"v_add_u32 v{aIDX}, s67, v{aIDX}")
        a(f"v_add_u32 v{aEI}, s67, v{aEI}")
        a("s_mov_b64 exec, s[62:63]")
        a(f"v_add_u32 v{aS1}, s69, v{aS1}")
        a("s_mov_b64 exec, s[64:65]")
        a(f"v_add_u32 v{aS2}, s69, v{aS2}")
        a("s_mov_b64 exec, -1")
        a("s_waitcnt lgkmcnt(0)")
        a("\n".join(mf_tile(0)))
        a("s_nop 8")
        a("s_cmp_eq_u32 s68, 1")
        a("s_cbranch_scc1 K2_U1")
        a("s_cmp_eq_u32 s68, 2")
        a("s_cbranch_scc1 K2_U2")
        a("s_cmp_eq_u32 s68, 3")
        a("s_cbranch_scc1 K2_U3")
    EFL[0] = {0: "", 1: " nt", 2: " sc1"}[opt.get("efl", 0)]
    WPOS = opt.get("wpos", 5)
    MP0 = {0: (0, 3, 6), 1: (0, 4, 8), 2: (2, 6, 10)}[opt.get("mp0", 0)]
    a(".p2align 6")
    for _ in range(opt.get("shift", 0)): a("s_nop 0")
    loop_start = len(a.lines)
    for u in range(4):
        a.label(f"K2_U{u}")
        if LATE:
            upd = []
            if u == 3:
                upd = [f"v_add_u32 v{aAO}, 4096, v{aAO}", f"v_add_u32 v{aAE}, 4096, v{aAE}", f"v_add_u32 v{aIDX}, 512, v{aIDX}", f"v_add_u32 v{aEI}, 512, v{aEI}",
                       "s_mov_b64 exec, s[62:63]", f"v_add_u32 v{aS1}, 4096, v{aS1}", "s_mov_b64 exec, s[64:65]", f"v_add_u32 v{aS2}, 4096, v{aS2}", "s_mov_b64 exec, -1"]
            mid0 = [f"ds_read_b64_tr_b16 {pr(S)}, v{aS1} offset:{u*1024}", f"ds_read_b64_tr_b16 {pr(S+2)}, v{aS2} offset:{u*1024}",
                    f"ds_read_b128 {q4(AO)}, v{aAO} offset:{(u+1)*1024}"]
            t0 = tile(0, mf_tile(1) + [SEGSUM], {}, mid0, [])
            ex1 = {}
            ex1[1] = [f"ds_read_b32 v{FV}, v{aEI} offset:{(u+1)*128}"] + [f"ds_read_b32 v{IX[k]}, v{aIDX} offset:{(u+2)*128+k*32}" for k in range(4)]
            if u == 0: ex1[1] += [f"ds_read_b32 v{EI}, v{aEI} offset:512"]
            ex1[12] = ["s_waitcnt lgkmcnt(0)", f"v_readfirstlane_b32 s66, v{FV}"]
            mid = ["s_cmp_eq_u32 s66, -1", f"s_waitcnt vmcnt({1 if u == 1 else 0})"]
            mid += [f"ds_read_b128 {q4(AP[m])}, v{aAP+m}" for m in range(4)]
            mid += [f"s_cbranch_scc0 K2_FW{u}", f"K2_FR{u}:"]
            mid += [f"ds_read_b128 {q4(AE)}, v{aAE} offset:{(u+1)*1024}"]
            if opt.get("gstamps"): mid += ["s_memrealtime s[96:97]", "s_add_u32 m0, s55, 16"]
            t1 = tile(1, [], ex1, mid, [])
            mf = mf_tile(0)
            post = ["s_add_u32 s66, s55, 2", "s_cmp_ge_u32 s66, s53", "s_waitcnt lgkmcnt(0)"]
            if opt.get("gstamps"): post += ["v_writelane_b32 v0, s96, m0"]
            post += [f"s_cbranch_scc1 K2_ND{u}"]
            if u == 2: post += [f"ds_write_b32 v{aEI}, v{MG} offset:512"]
            for k in range(4):
                post += [f"s_add_u32 m0, s57, {k*1024}", mf[k], f"buffer_load_dwordx4 {pr(IX[k])}, s[32:35], s58 idxen offen{PFL[0]} lds"]
            post += [f"K2_NR{u}:"]
            if u == 0: post += e_dma()
            post += upd
            nst = 1 + (6 if u == 0 else 0) + len(upd) + 3 + (1 if u == 3 else 0) + 1
            if nst - 1 < 12: post += [f"s_nop {12 - (nst - 1) - 1}"]
            a("\n".join(t0 + t1 + post))
        else:
            ex0 = {}
            ex0[1] = [f"ds_read_b32 v{FV}, v{aEI} offset:{(u+1)*128}"] + [f"ds_read_b32 v{IX[k]}, v{aIDX} offset:{(u+2)*128+k*32}" for k in range(4)]
            if u == 0: ex0[1] += [f"ds_read_b32 v{EI}, v{aEI} offset:512"]
            ex0[12] = ["s_waitcnt lgkmcnt(0)", f"v_readfirstlane_b32 s66, v{FV}"]
            mid = ["s_cmp_eq_u32 s66, -1"]
            mid += [f"ds_read_b128 {q4(AO)}, v{aAO} offset:{(u+1)*1024}"]
            mid += [f"ds_read_b64_tr_b16 {pr(S)}, v{aS1} offset:{u*1024}", f"ds_read_b64_tr_b16 {pr(S+2)}, v{aS2} offset:{u*1024}"]
            mid += [f"s_cbranch_scc0 K2_FW{u}", f"K2_FR{u}:"]
            mid += [f"ds_read_b128 {q4(AE)}, v{aAE} offset:{(u+1)*1024}"]
            t0 = tile(0, mf_tile(1) + [SEGSUM], ex0, mid, [], f"A{u}", mpos=MP0)
            pre = [f"s_waitcnt vmcnt({1 if u == 1 else 0})"] + p_reads()
            blk = ["s_cmp_ge_i32 s55, s93", "s_waitcnt lgkmcnt(0)"] + p_shift(0) + [f"s_cbranch_scc1 K2_ND{u}"]
            if u == 2: blk += [f"ds_write_b32 v{aEI}, v{MG} offset:512"]
            blk += p_dma() + [f"K2_ND{u}:"]
            if u == 0:
                ed = e_dma()
                if opt.get("e0nt", 0) > 1:
                    k = [i for i, l in enumerate(ed) if l.startswith("buffer_load")][0]
                    ed = ed[:k] + [f"s_cmp_ge_u32 s55, {opt['e0nt']}", "s_cbranch_scc1 K2_EN1", ed[k].replace(" lds", " nt lds"), "s_branch K2_EN2", "K2_EN1:", ed[k], "K2_EN2:"] + ed[k+1:]
                blk += ed
            ex1 = {WPOS: blk}
            mid1 = p_shift(1)
            if u == 3:
                mid1 += [f"v_add_u32 v{aAO}, 4096, v{aAO}", f"v_add_u32 v{aAE}, 4096, v{aAE}", f"v_add_u32 v{aIDX}, 512, v{aIDX}", f"v_add_u32 v{aEI}, 512, v{aEI}",
                        "s_mov_b64 exec, s[62:63]", f"v_add_u32 v{aS1}, 4096, v{aS1}", "s_mov_b64 exec, s[64:65]", f"v_add_u32 v{aS2}, 4096, v{aS2}", "s_mov_b64 exec, -1"]
            exr1 = []
            if opt.get("gstamps"):
                mid1 = mid1 + ["s_memrealtime s[96:97]", "s_add_u32 m0, s55, 16"]
                exr1 += ["s_waitcnt lgkmcnt(0)", "v_writelane_b32 v0, s96, m0", "s_mov_b32 m0, s57"]
            t1 = tile(1, mf_tile(0), ex1, mid1, exr1, f"B{u}", mpos=(WPOS + 2, WPOS + 5), pre=pre)
            a("\n".join(t0 + t1))
        a("s_add_u32 s55, s55, 1")
        a("s_cmp_ge_u32 s55, s90")
        a(f"s_cbranch_scc1 K2_TH{u}")
        if u == 3: a("s_branch K2_U0")
    loop_end = len(a.lines)
    for qtl in QTAILS: a("\n".join(qtl))
    for u in range(4):
        a.label(f"K2_TH{u}")
        a(f"s_mov_b32 s92, {(u+1)&3}")
        if u < 3: a("s_branch K2_TH")
    a.label("K2_TH")
    a("s_cmp_ge_u32 s55, s53")
    a("s_cbranch_scc1 K2_EXIT")
    a("s_add_u32 s91, s91, 1")
    a("s_cmp_eq_u32 s91, 1")
    a("s_cbranch_scc0 K2_TH_2")
    if opt.get("prio", 1): a("s_setprio 2")
    a(f"s_sub_u32 s90, s94, {T2}")
    a("s_branch K2_TH_R")
    a.label("K2_TH_2")
    a("s_cmp_eq_u32 s91, 2")
    a("s_cbranch_scc0 K2_TH_3")
    if opt.get("prio", 1): a("s_setprio 1")
    a(f"s_sub_u32 s90, s94, {T1_}")
    a("s_branch K2_TH_R")
    a.label("K2_TH_3")
    if opt.get("prio", 1): a("s_setprio 0")
    a("s_mov_b32 s90, s53")
    a.label("K2_TH_R")
    a("s_max_i32 s90, s90, 0")
    a("s_cmp_eq_u32 s92, 1")
    a("s_cbranch_scc1 K2_U1")
    a("s_cmp_lg_u32 s60, 0")
    a("s_cbranch_scc1 K2_TH_J")
    a("s_mov_b32 s60, 1")
    a("\n".join(w2_pre(L16)))
    a.label("K2_TH_J")
    a("s_cmp_eq_u32 s92, 2")
    a("s_cbranch_scc1 K2_U2")
    a("s_cmp_eq_u32 s92, 3")
    a("s_cbranch_scc1 K2_U3")
    a("s_branch K2_U0")
    if LATE:
        for u in range(4):
            a.label(f"K2_ND{u}")
            a("\n".join(mf_tile(0)))
            a(f"s_branch K2_NR{u}")
    for u in range(4):
        a.label(f"K2_FW{u}")
        a("s_add_u32 s66, s55, 1")
        a("s_cmp_ge_u32 s66, s53")
        a(f"s_cbranch_scc1 K2_FR{u}")
        a(f"ds_read_b32 v{FV}, v{aEI} offset:{(u+1)*128}")
        a("s_waitcnt lgkmcnt(0)")
        a(f"v_readfirstlane_b32 s66, v{FV}")
        a("s_nop 0")
        a("s_cmp_eq_u32 s66, -1")
        a(f"s_cbranch_scc1 K2_FR{u}")
        a("s_sleep 1")
        a(f"s_branch K2_FW{u}")
    a.label("K2_EXIT")
    a(SEGSUM)
    stp(7)
    stc(13)
    if opt.get("stamps"): a("v_writelane_b32 v0, s53, 14")
    a(f"v_lshrrev_b32 v1, 4, v{L16}")
    a("s_cmp_lg_u32 s60, 0")
    a("s_cbranch_scc1 K2_X1")
    a("\n".join(w2_pre(L16)))
    a.label("K2_X1")
    WL = 116
    def fin_loads(l16):
        srd(a, 48, "s18", "s19", 256)
        for sidx in range(NW2, 8):
            a(f"buffer_load_dwordx4 {q4(WL+4*(sidx-NW2))}, v{l16}, s[40:43], s74 offen offset:{(sidx & 3)*1024}")
        a("v_lshrrev_b32 v8, 4, v1")
        a("v_lshlrev_b32 v9, 3, v8")
        a("s_lshl_b32 s68, s24, 5")
        a("buffer_load_dwordx2 v[10:11], v9, s[48:51], s68 offen")
    fin_loads(L16)
    a("v_subrev_u32 v2, s71, v1")
    a("v_and_b32 v2, 15, v2")
    a(f"v_mul_u32_u24 v2, {HSTR}, v2")
    a("v_and_b32 v3, 16, v1")
    a("v_lshl_add_u32 v2, v3, 2, v2")
    a("v_lshrrev_b32 v3, 5, v1")
    a("v_lshl_add_u32 v3, v3, 3, s57")
    a("v_add_u32 v2, v2, v3")
    a(f"s_waitcnt vmcnt({9 - NW2})")
    for k in range(8):
        a(f"v_cvt_pk_bf16_f32 v{EX+k}, v{ACC+2*k}, v{ACC+2*k+1}")
        if k & 1: a(f"ds_write_b64 v2, {pr(EX+k-1)} offset:{16*(k>>1)}")
    a("s_mov_b32 s66, 0x41800000")
    a("s_mov_b32 s67, 0x41800000")
    a(f"v_pk_mul_f32 {pr(CHK)}, {pr(CHK)}, s[66:67]")
    for k in range(0, 8, 2):
        a(f"v_pk_add_f32 {pr(ACC+2*k)}, {pr(ACC+2*k)}, {pr(ACC+2*k+2)}")
    for k in range(0, 8, 2):
        a(f"v_pk_fma_f32 {pr(CHK)}, {pr(ACC+2*k)}, 0, {pr(CHK)} op_sel_hi:[1,0,1]")
    a("v_mov_b32 v4, 0x207")
    a(f"v_add_f32 v{CHK}, v{CHK}, v{CHK+1}")
    a(f"v_mov_b32 v5, {FLAG}")
    a("v_mov_b32 v7, 1")
    a(f"v_cmpx_class_f32 vcc, v{CHK}, v4")
    a("ds_write_b32 v5, v7")
    a("s_mov_b64 exec, -1")
    a.label("K2_FIN")
    a("s_cmp_ge_u32 s24, 8")
    a("s_cbranch_scc1 K2_HEND")
    a("s_mov_b64 exec, 1")
    a("ds_add_u32 v5, v7 offset:24")
    a("s_mov_b64 exec, -1")
    a("v_and_b32 v12, 15, v1")
    a(f"v_mul_u32_u24 v2, {HSTR}, v12")
    a("v_lshl_add_u32 v2, v8, 4, v2")
    a(f"s_mov_b32 s78, {DEG}")
    a("v_lshl_add_u32 v4, v12, 2, s78")
    for mt in range(3): a(f"ds_read_b32 v{112+mt}, v4 offset:{mt*48}")
    a("v_lshl_add_u32 v13, v12, 16, v9")
    a(f"v_mov_b32 v3, {KILL:#x}")
    a("v_cmp_gt_u32 vcc, 4, v12")
    a("s_lshl_b32 s69, s2, 8")
    a("s_add_u32 s69, s69, s68")
    a("v_cndmask_b32 v14, v13, v3, vcc")
    a(f"s_add_u32 s72, s69, {12 << 16}")
    a(f"s_add_u32 s75, s69, {24 << 16}")
    a(f"s_mov_b32 s76, {NEGLN2:#x}")
    RS = 80
    a.label("K2_E1")
    a("ds_read_b32 v6, v5 offset:24")
    a("s_waitcnt lgkmcnt(0)")
    a("v_readfirstlane_b32 s66, v6")
    a("s_nop 0")
    a("s_cmp_ge_u32 s66, 8")
    a("s_cbranch_scc1 K2_E2")
    a("s_sleep 2")
    a("s_branch K2_E1")
    a.label("K2_E2")
    HB = 16
    OD = 120
    def wfrag(sidx): return WREG[sidx] if sidx < NW2 else WL + 4*(sidx - NW2)
    def hoff(mt, sidx): return (4*mt + (sidx >> 1))*4096 + (sidx & 1)*64
    order = [(sidx, mt) for sidx in range(8) for mt in range(2)]
    for n, (sidx, mt) in enumerate(order[:14]):
        a(f"ds_read_b128 {q4(HB+4*n)}, v2 offset:{hoff(mt, sidx)}")
    for n, (sidx, mt) in enumerate(order):
        issued = min(16, 14 + n)
        wv = f" vmcnt({8 - sidx})" if (sidx >= NW2 and mt == 0) else ""
        a(f"s_waitcnt{wv} lgkmcnt({issued - n - 1})")
        a(f"v_mfma_f32_16x16x32_bf16 {q4(OD+4*mt)}, {q4(wfrag(sidx))}, {q4(HB+4*n)}, {'0' if sidx == 0 else q4(OD+4*mt)}")
        if n < 2: a(f"ds_read_b128 {q4(HB+4*(14+n))}, v2 offset:{hoff(order[14+n][1], order[14+n][0])}")
    a("s_waitcnt vmcnt(0)")
    a("v_lshlrev_b32 v104, 16, v10")
    a("v_and_b32 v105, 0xffff0000, v10")
    a("v_lshlrev_b32 v106, 16, v11")
    a("v_and_b32 v107, 0xffff0000, v11")
    for mt in range(3): a(f"v_cvt_f32_u32 v{108+2*mt}, v{112+mt}" if mt < 2 else f"v_cvt_f32_u32 v112, v114")
    for mt in range(3):
        for i in range(2):
            a(f"v_pk_mul_f32 {pr(RS+4*mt+2*i)}, {pr(104+2*i)}, {pr(108+2*mt)} op_sel_hi:[1,0]")
    def fin_tile(mt):
        for i in range(4):
            a(f"v_fma_f32 v{RS+4*mt+i}, v{OD+4*mt+i}, s76, v{RS+4*mt+i}")
        a(f"v_cvt_pk_bf16_f32 v{132+2*mt}, v{RS+4*mt}, v{RS+4*mt+1}")
        a(f"v_cvt_pk_bf16_f32 v{133+2*mt}, v{RS+4*mt+2}, v{RS+4*mt+3}")
        a(f"buffer_store_dwordx2 {pr(132+2*mt)}, v{13 if mt == 0 else 14}, s[44:47], s{(69,72,75)[mt]} offen{('', ' sc1', ' nt')[opt.get('osc', 1)]}")
    def merge(mt):
        for i in range(4):
            a(f"v_add_f32_dpp v{OD+4*mt+i}, v{OD+4*mt+4+i}, v{OD+4*mt+i} row_shr:12 row_mask:0xf bank_mask:0xf bound_ctrl:0")
    merge(0)
    fin_tile(0)
    stp(8)
    a("s_barrier")
    stp(9)
    for sidx in range(8):
        a(f"ds_read_b128 {q4(HB+4*sidx)}, v2 offset:{hoff(2, sidx)}")
    a("ds_read_b32 v6, v5")
    for sidx in range(8):
        a(f"s_waitcnt lgkmcnt({8 - sidx})")
        a(f"v_mfma_f32_16x16x32_bf16 {q4(OD+8)}, {q4(wfrag(sidx))}, {q4(HB+4*sidx)}, {'0' if sidx == 0 else q4(OD+8)}")
    a("s_waitcnt lgkmcnt(0)")
    a("v_readfirstlane_b32 s82, v6")
    a("s_nop 1")
    a("s_andn2_b32 s82, s82, s70")
    a("s_cmp_lg_u32 s82, 0")
    a("s_cbranch_scc1 K2_REDO")
    a("s_nop 0")
    merge(1)
    fin_tile(2)
    fin_tile(1)
    stp(10)
    if opt.get("stamps"): a("s_waitcnt vmcnt(0)")
    stp(11)
    a.label("K2_END2")
    stamp_out(a, opt, 22, 0xF80000, 24, 0, tmpv=2)
    if opt.get('gstamps'): stamp_out2(a, opt, 22, 0x1000000, 24, 0, tmpv=2)
    a.label("K2_END")
    a("s_endpgm")
    a.label("K2_HEND")
    a("s_waitcnt lgkmcnt(0)")
    stp(8)
    a("s_barrier")
    a("ds_read_b32 v6, v5")
    a("s_waitcnt lgkmcnt(0)")
    a("v_readfirstlane_b32 s82, v6")
    a("s_nop 0")
    a("s_andn2_b32 s82, s82, s70")
    a("s_cmp_lg_u32 s82, 0")
    a("s_cbranch_scc1 K2_REDO")
    a("s_branch K2_END2")
    a.label("K2_CX")
    a("s_mov_b32 s81, 2")
    count([5, 6, 7])
    decode([5, 6, 7])
    a("v_cmpx_eq_u32 vcc, -2, v23")
    a("ds_write_b32 v111, v114")
    a("s_mov_b64 exec, -1")
    a("s_branch K2_C1")
    a.label("K2_SY")
    for k in (5, 6, 7): a(f"ds_bpermute_b32 v{TP+k}, v{RA+k}, v31")
    a("s_waitcnt lgkmcnt(0)")
    stat([5, 6, 7])
    a("s_branch K2_S0")
    a.label("K2_SX")
    for k in (5, 6, 7): a(f"ds_bpermute_b32 v{SB+k}, v{RA+k}, v108")
    a("s_waitcnt lgkmcnt(0)")
    late([5, 6, 7])
    a("s_branch K2_S1")
    a.label("K2_REDO")
    a("s_setprio 0")
    a("s_mov_b32 s70, -1")
    a("s_lshl_b32 s66, s24, 6")
    a("v_add_u32 v0, s66, v1")
    a("s_waitcnt vmcnt(0) lgkmcnt(0)")
    a("s_barrier")
    a("s_branch K2_TOP")
    a.label("K2_BAD")
    arrive(8)
    a("v_mov_b32 v109, -1")
    a("ds_write_b32 v111, v109 offset:16")
    arrive(40)
    a.label("K2_SLOW")
    a(f"v_lshrrev_b32 v1, 4, v{L16}")
    a("s_setprio 0")
    a("s_mov_b32 s70, -1")
    a("s_waitcnt vmcnt(0) lgkmcnt(0)")
    a("s_barrier")
    a("s_lshl_b32 s66, s24, 10")
    a(f"s_add_u32 s66, s66, {OH}")
    a("v_lshl_add_u32 v2, v1, 4, s66")
    for i in range(4): a(f"v_mov_b32 v{4+i}, 0")
    for i in range(4): a(f"ds_write_b128 v2, v[4:7] offset:{i*12288}")
    a("v_lshlrev_b32 v12, 2, v1")
    a(f"v_add_u32 v3, {DEG}, v12")
    a("ds_write_b32 v3, v4")
    srd(a, 84, "s8", "s9", E * 4)
    srd(a, 88, "s10", "s11", E * 4)
    a("v_and_b32 v8, 31, v1")
    a("v_lshlrev_b32 v8, 4, v8")
    a("v_lshrrev_b32 v9, 5, v1")
    a("v_lshl_add_u32 v8, v9, 10, v8")
    a("s_lshl_b32 s72, s25, 11")
    a(f"s_add_u32 s66, s72, {WCF_OFF - CELL_OFF}")
    a("buffer_load_dwordx4 v[16:19], v8, s[40:43], s66 offen")
    a("buffer_load_dwordx4 v[20:23], v8, s[40:43], s66 offen offset:512")
    a(f"s_add_u32 s72, s72, {EIM + 8192}")
    a("v_add_u32 v8, s72, v8")
    a("v_lshlrev_b32 v7, 4, v1")
    a("\n".join(w2_pre(7)))
    srd_ws(a, 92, 22, P_OFF, N * 512)
    a("v_lshlrev_b32 v10, 1, v1")
    a("v_add_u32 v10, s58, v10")
    a("v_lshlrev_b32 v11, 1, v10")
    a(f"v_add_u32 v11, {OH}, v11")
    a("v_mov_b32 v13, 1")
    a("s_waitcnt vmcnt(0)")
    for k in range(8):
        a(f"v_lshlrev_b32 v{24+2*k}, 16, v{16+k}")
        a(f"v_and_b32 v{25+2*k}, 0xffff0000, v{16+k}")
    a("s_waitcnt lgkmcnt(0)")
    a("s_barrier")
    a("s_mov_b32 s66, s26")
    a.label("K2_SL_BLK")
    a("s_lshl_b32 s67, s66, 8")
    a("buffer_load_dword v40, v12, s[88:91], s67 offen")
    a("buffer_load_dword v41, v12, s[84:87], s67 offen")
    a("s_waitcnt vmcnt(0)")
    a("v_and_b32 v42, 255, v40")
    a("v_cmp_eq_u32 vcc, s2, v42")
    a("s_nop 1")
    a("s_mov_b64 s[68:69], vcc")
    a.label("K2_SL_E")
    a("s_cmp_eq_u64 s[68:69], 0")
    a("s_cbranch_scc1 K2_SL_NB")
    a("s_ff1_i32_b64 s72, s[68:69]")
    a("s_bitset0_b64 s[68:69], s72")
    a("v_readlane_b32 s52, v40, s72")
    a("v_readlane_b32 s53, v41, s72")
    a("s_lshl_b32 s75, s66, 6")
    a("s_add_u32 s75, s75, s72")
    a("s_lshl_b32 s75, s75, 5")
    a("s_load_dwordx8 s[76:83], s[6:7], s75")
    a("s_lshl_b32 s53, s53, 9")
    a("s_lshr_b32 s52, s52, 8")
    a("s_cmp_ge_u32 s52, 16")
    a("s_cselect_b32 s75, 16384, 0")
    a("s_cmp_ge_u32 s52, 28")
    a("s_cselect_b32 s75, 32768, s75")
    a("s_bfe_u32 s55, s52, 0x10003")
    a("s_lshl_b32 s55, s55, 9")
    a("s_add_u32 s75, s75, s55")
    a("s_and_b32 s55, s52, 7")
    a("s_lshl_b32 s55, s55, 1")
    a("s_add_u32 s75, s75, s55")
    a("v_add_u32 v45, s75, v8")
    a("buffer_load_ushort v43, v10, s[92:95], s53 offen")
    a("ds_read_u16 v44, v45")
    a("s_waitcnt vmcnt(0) lgkmcnt(0)")
    a("v_lshlrev_b32 v43, 16, v43")
    a("v_lshlrev_b32 v44, 16, v44")
    import struct
    PC = struct.unpack("<I", struct.pack("<f", 1.0 / (1 - opt.get("pcomp", 20) * 1e-4)))[0]
    a(f"v_mul_f32 v43, {PC:#x}, v43")
    a("v_add_f32 v43, v43, v44")
    for k in range(8):
        a(f"s_lshl_b32 s53, s{76+k}, 16")
        a(f"v_fmac_f32 v43, s53, v{24+2*k}")
        a(f"s_and_b32 s53, s{76+k}, 0xffff0000")
        a(f"v_fmac_f32 v43, s53, v{25+2*k}")
    a("v_exp_f32 v44, v43")
    a("s_lshl_b32 s53, s52, 10")
    a("v_add_f32 v44, 1.0, v44")
    a("v_rcp_f32 v44, v44")
    a("v_add_u32 v45, s53, v11")
    a("v_mul_f32 v43, v43, v44")
    a("ds_add_f32 v45, v43")
    a("s_cmp_lg_u32 s25, 0")
    a("s_cbranch_scc1 K2_SL_E")
    a("s_lshl_b32 s53, s52, 2")
    a(f"s_add_u32 s53, s53, {DEG}")
    a("v_mov_b32 v45, s53")
    a("s_mov_b64 exec, 1")
    a("ds_add_u32 v45, v13")
    a("s_mov_b64 exec, -1")
    a("s_branch K2_SL_E")
    a.label("K2_SL_NB")
    a("s_add_u32 s66, s66, 3")
    a(f"s_cmp_lt_u32 s66, {E // 64}")
    a("s_cbranch_scc1 K2_SL_BLK")
    a("s_waitcnt lgkmcnt(0)")
    a("s_barrier")
    a("v_and_b32 v2, 31, v1")
    a("v_lshrrev_b32 v3, 5, v1")
    a("s_mov_b32 s66, 0")
    a.label("K2_SL_CV")
    a("v_add_u32 v4, s66, v3")
    a("v_add_u32 v5, s71, v4")
    a("s_cmp_lt_u32 s66, 4")
    a("s_cselect_b32 s67, s26, 0")
    a("s_cmp_lg_u32 s67, 0")
    a("s_cbranch_scc0 K2_SL_NZ")
    a("v_mov_b32 v5, 47")
    a.label("K2_SL_NZ")
    a("v_lshlrev_b32 v5, 10, v5")
    a("v_lshl_add_u32 v5, v2, 3, v5")
    a("s_lshl_b32 s67, s58, 1")
    a(f"s_add_u32 s67, s67, {OH}")
    a("v_add_u32 v5, s67, v5")
    a("ds_read_b64 v[6:7], v5")
    a(f"v_mul_u32_u24 v4, {HSTR}, v4")
    a("v_lshl_add_u32 v4, v2, 2, v4")
    a("v_add_u32 v4, s57, v4")
    a("s_waitcnt lgkmcnt(0)")
    a("v_cvt_pk_bf16_f32 v6, v6, v7")
    a("ds_write_b32 v4, v6")
    a("s_add_u32 s66, s66, 2")
    a("s_cmp_lt_u32 s66, 16")
    a("s_cbranch_scc1 K2_SL_CV")
    a("v_lshlrev_b32 v7, 4, v1")
    fin_loads(7)
    a(f"v_mov_b32 v5, {FLAG}")
    a("v_mov_b32 v7, 1")
    a("s_branch K2_FIN")
    if opt.get("e64"):
        for i in range(loop_start, loop_end):
            l = a.lines[i]
            if l.startswith("v_exp_f32 ") or l.startswith("v_rcp_f32 "): a.lines[i] = l.replace("_f32 ", "_f32_e64 ", 1)
    a.loop = (loop_start, loop_end)
    return a, NV2, (102 if opt.get('stamps') else 96)
```

```python
from asmlib import *

N = 10000; E = 320000
import os
WSB = int(os.environ.get('WSB', '0')) << 20
P_OFF = WSB + 4096
CELL_OFF = WSB + 0xA00000
W2F_OFF = WSB + 0xE00000
W1BF_OFF = WSB + 0xE10000
WCF_OFF = WSB + 0xE20000
FRAG_BYTES = 0x22000
NSORT = 128
CHUNK = 2500
GROWS = 64
NGEMM = 157
NSORTWG = 64
NPREP = 17
EPF = int(os.environ.get('EPF', '0'))
K1_WGS = 256 if EPF else NGEMM + NSORTWG + NPREP
K1_BLOCK = 1024
K1_LDS = 65536 + GROWS * 256 + 256
NEGLOG2E = 0xBFB8AA3B
OVF = 0xFFFFFFFE

def srd(a, r, lo, hi, size):
    a(f"s_mov_b32 s{r}, {lo}")
    a(f"s_mov_b32 s{r+1}, {hi}")
    a(f"s_mov_b32 s{r+2}, {size}")
    a(f"s_mov_b32 s{r+3}, 0x00020000")

def srd_ws(a, r, wslo, off, size):
    a(f"s_add_u32 s{r}, s{wslo}, {off}")
    a(f"s_addc_u32 s{r+1}, s{wslo+1}, 0")
    a(f"s_mov_b32 s{r+2}, {size}")
    a(f"s_mov_b32 s{r+3}, 0x00020000")

def stamp(a, opt, idx, vreg, sreg=96):
    if not opt.get("stamps"): return
    a(f"s_memrealtime s[{sreg}:{sreg+1}]")
    a("s_waitcnt lgkmcnt(0)")
    a(f"v_writelane_b32 v{vreg}, s{sreg}, {idx}")
def stamp_out(a, opt, wslo, off, wavereg, vreg, sreg=96, tmpv=151):
    if not opt.get("stamps"): return
    a(f"s_add_u32 s{sreg}, s{wslo}, {off}")
    a(f"s_addc_u32 s{sreg+1}, s{wslo+1}, 0")
    a(f"s_mov_b32 s{sreg+2}, 0x80000")
    a(f"s_mov_b32 s{sreg+3}, 0x00020000")
    a(f"s_lshl_b32 s100, s2, 4")
    a(f"s_add_u32 s100, s100, s{wavereg}")
    a(f"s_lshl_b32 s100, s100, 6")
    a(f"v_mbcnt_lo_u32_b32 v{tmpv}, -1, 0")
    a(f"v_lshlrev_b32 v{tmpv}, 2, v{tmpv}")
    a("s_mov_b64 exec, 0xffff")
    a(f"buffer_store_dword v{vreg}, v{tmpv}, s[{sreg}:{sreg+3}], s100 offen")
    a("s_mov_b64 exec, -1")
def stamp_out2(a, opt, wslo, off, wavereg, vreg, sreg=96, tmpv=151):
    a(f"s_add_u32 s{sreg}, s{wslo}, {off}")
    a(f"s_addc_u32 s{sreg+1}, s{wslo+1}, 0")
    a(f"s_lshl_b32 s100, s100, 1")
    a("s_mov_b64 exec, 0xffffffff")
    a(f"buffer_store_dword v{vreg}, v{tmpv}, s[{sreg}:{sreg+3}], s100 offen")
    a("s_mov_b64 exec, -1")

def gen_k1(opt=None):
    opt = opt or {}
    SV = 120
    SFD = {0: "", 1: " sc1", 2: " sc0 sc1", 3: " nt", 4: " nt sc1"}
    SF = SFD[opt.get("sf", 1)]
    SFG = SFD[opt.get("sfg", 1)]
    NT = " nt" if opt.get("knt", 1) else ""
    NTX = " nt" if opt.get("kntx", 1) else ""
    a = Asm()
    a.label("mpnn_pre_kernel")
    a(f"s_cmp_ge_u32 s2, {K1_WGS}")
    a("s_cbranch_scc1 K1_END")
    if opt.get("stamps"): a(f"v_mov_b32 v{SV}, 0")
    stamp(a, opt, 0, SV)
    if opt.get("stamps"):
        a("s_getreg_b32 s96, hwreg(HW_REG_XCC_ID)")
        a(f"v_writelane_b32 v{SV}, s96, 9")
    a("s_load_dwordx16 s[4:19], s[0:1], 0")
    a("s_load_dwordx2 s[20:21], s[0:1], 80")
    a("v_lshrrev_b32 v1, 6, v0")
    a("v_and_b32 v2, 63, v0")
    a("v_readfirstlane_b32 s22, v1")
    a(f"s_cmp_ge_u32 s2, {NGEMM}")
    a("s_cbranch_scc1 K1_SORT")
    XI = 65536
    SW = XI + GROWS * 256
    a("v_lshrrev_b32 v10, 4, v0")
    a("v_xor_b32 v11, v10, v2")
    a("v_and_b32 v11, 15, v11")
    a("v_lshlrev_b32 v11, 4, v11")
    a("v_lshl_add_u32 v8, v10, 8, v11")
    a("v_lshrrev_b32 v4, 4, v2")
    a("v_lshlrev_b32 v7, 2, v4")
    a("v_xor_b32 v7, v7, v2")
    a("v_and_b32 v7, 15, v7")
    a("v_lshlrev_b32 v7, 4, v7")
    a("v_lshl_add_u32 v3, v4, 9, v7")
    a(f"v_mov_b32 v14, {SW}")
    a("v_mov_b32 v15, 0")
    a("ds_write_b32 v14, v15")
    a("s_and_b32 s44, s22, 7")
    a("s_lshl_b32 s45, s44, 13")
    a("s_lshr_b32 s46, s22, 3")
    a("s_lshl_b32 s47, s46, 8")
    a("s_add_u32 s45, s45, s47")
    a("s_lshl_b32 s47, s22, 12")
    a(f"s_mul_i32 s48, s2, {GROWS*256}")
    a("s_lshl_b32 s49, s22, 10")
    a(f"s_add_u32 m0, s49, {XI}")
    a("s_waitcnt lgkmcnt(0)")
    srd(a, 32, "s4", "s5", N * 256)
    srd(a, 28, "s12", "s13", 272 * 512)
    if opt.get("wwu", 1):
        a("s_cmp_lg_u32 s22, 0")
        a("s_cbranch_scc1 K1_NWU")
        a("s_bfe_u32 s50, s2, 0x40003")
        a("s_lshl_b32 s50, s50, 12")
        a("v_and_b32 v12, 31, v2")
        a("v_lshlrev_b32 v12, 7, v12")
        a("buffer_load_dword v31, v12, s[28:31], s50 offen")
        a.label("K1_NWU")
    a(f"buffer_load_dwordx4 v8, s[32:35], s48 offen{NTX} lds")
    a("s_mov_b32 m0, s47")
    a("s_cmp_lt_u32 s22, 8")
    a("s_barrier")
    a("s_cbranch_scc1 K1_GA")
    if opt.get("gb", 1) & 2: a("s_barrier")
    a.label("K1_GA")
    for k in range(4):
        a(f"buffer_load_dwordx4 v3, s[28:31], s45 offen offset:{k*1024} lds")
        a("s_add_u32 s45, s45, 1024")
    a("s_cmp_lt_u32 s22, 8")
    a("s_cbranch_scc1 K1_GC")
    a("s_waitcnt vmcnt(4)")
    a("s_barrier")
    a("v_mov_b32 v15, 1")
    a("s_waitcnt vmcnt(0)")
    a("s_mov_b64 exec, 1")
    a("ds_add_u32 v14, v15")
    a("s_endpgm")
    a.label("K1_GC")
    if opt.get("gb", 1) & 2: a("s_barrier")
    a("v_lshrrev_b32 v5, 5, v2")
    a("v_and_b32 v6, 31, v2")
    a("s_bfe_u32 s26, s22, 0x10001")
    a("s_lshr_b32 s27, s22, 2")
    a("s_and_b32 s50, s22, 1")
    a("s_lshl_b32 s50, s50, 7")
    srd_ws(a, 36, 20, P_OFF, (N + 1) * 512)
    a("v_and_b32 v17, 15, v2")
    a("v_xor_b32 v17, v17, v5")
    a("s_lshl_b32 s51, s26, 13")
    a(f"s_add_u32 s51, s51, {XI}")
    a("v_lshl_add_u32 v17, v17, 4, s51")
    a("v_lshl_add_u32 v16, v6, 8, v17")
    for sidx in range(1, 8):
        a(f"v_xor_b32 v{16+sidx}, {sidx << 5}, v16")
    a("v_bfe_u32 v26, v2, 2, 2")
    a("v_lshl_add_u32 v27, v5, 3, v26")
    a("v_and_b32 v28, 3, v2")
    a("v_lshl_add_u32 v28, v28, 3, s50")
    a("v_bfe_u32 v29, v2, 4, 1")
    a("v_lshl_add_u32 v28, v29, 5, v28")
    a("v_lshlrev_b32 v26, 6, v26")
    a("v_xor_b32 v28, v28, v26")
    a("s_lshl_b32 s51, s27, 15")
    a("v_add_u32 v28, s51, v28")
    a("v_lshl_add_u32 v24, v27, 8, v28")
    a("v_xor_b32 v25, 64, v24")
    a("s_lshl_b32 s51, s27, 8")
    a("s_add_u32 s51, s51, s50")
    a("v_lshl_add_u32 v13, v6, 2, s51")
    a("v_lshl_add_u32 v13, v5, 11, v13")
    a(f"s_mul_i32 s52, s2, {GROWS*512}")
    a("s_lshl_b32 s51, s26, 14")
    a("s_add_u32 s52, s52, s51")
    a("s_add_u32 s53, s52, 4096")
    a("s_add_u32 s54, s52, 8192")
    a("s_add_u32 s55, s52, 12288")
    import struct
    PS = struct.unpack("<I", struct.pack("<f", -1.4426950408889634 * (1 - opt.get("pcomp", 20) * 1e-4)))[0]
    a(f"s_mov_b32 s56, {PS:#x}")
    a(f"s_mov_b32 s57, {PS:#x}")
    stamp(a, opt, 1, SV)
    a("s_waitcnt vmcnt(0)")
    stamp(a, opt, 2, SV)
    a("s_barrier")
    stamp(a, opt, 6, SV)
    a("s_cmp_eq_u32 s27, 0")
    a("s_cbranch_scc1 K1_GO")
    a.label("K1_GW")
    a("ds_read_b32 v15, v14")
    a("s_waitcnt lgkmcnt(0)")
    a("v_readfirstlane_b32 s51, v15")
    a("s_nop 0")
    a("s_cmp_lt_u32 s51, 8")
    a("s_cbranch_scc1 K1_GW")
    a.label("K1_GO")
    stamp(a, opt, 8, SV)
    AF = 32; BF = 48; DA = 80; DB = 96
    def reads(sidx):
        st = sidx & 3
        a(f"ds_read_b128 {v(AF+4*st,4)}, v{16+sidx}")
        for X in range(2):
            for e in range(2):
                a(f"ds_read_b64_tr_b16 {v(BF+8*st+4*X+2*e,2)}, v{24+X} offset:{sidx*4096+e*1024}")
    def mm(sidx):
        st = sidx & 3
        ca = "0" if sidx == 0 else v(DA, 16)
        cb = "0" if sidx == 0 else v(DB, 16)
        a(f"v_mfma_f32_32x32x16_bf16 {v(DA,16)}, {v(AF+4*st,4)}, {v(BF+8*st,4)}, {ca}")
        a(f"v_mfma_f32_32x32x16_bf16 {v(DB,16)}, {v(AF+4*st,4)}, {v(BF+8*st+4,4)}, {cb}")
    reads(0); reads(1); reads(2)
    for sidx in range(8):
        a(f"s_waitcnt lgkmcnt({5*min(2, 7-sidx)})"); mm(sidx)
        if sidx + 3 < 8: reads(sidx + 3)
    a("s_nop 10")
    stamp(a, opt, 3, SV)
    DUP = opt.get("dup", 0)
    if DUP: srd_ws(a, 40, 20, 100 << 20, (N + 1) * 512)
    S1, S2 = ("s[40:43]", "s[36:39]") if DUP == 1 else ("s[36:39]", "s[40:43]")
    for r in range(0, 16, 2):
        a(f"v_pk_mul_f32 {v(DA+r,2)}, {v(DA+r,2)}, s[56:57]")
        a(f"v_pk_mul_f32 {v(DB+r,2)}, {v(DB+r,2)}, s[56:57]")
        for rr in (r, r + 1):
            a(f"v_cvt_pk_bf16_f32 v{AF+rr}, v{DA+rr}, v{DB+rr}")
            a(f"buffer_store_dword v{AF+rr}, v13, {S1}, s{52 + (rr >> 2)} offen offset:{(rr & 3)*512}{SFG}")
    if DUP:
        a("s_waitcnt vmcnt(0)")
        stamp(a, opt, 7, SV)
        a("s_sleep 127"); a("s_sleep 127")
        for rr in range(16):
            a(f"buffer_store_dword v{AF+rr}, v13, {S2}, s{52 + (rr >> 2)} offen offset:{(rr & 3)*512}{SFG}")
    stamp(a, opt, 4, SV)
    if opt.get("stamps"): a("s_waitcnt vmcnt(0)")
    stamp(a, opt, 5, SV)
    stamp_out(a, opt, 20, 0xF00000, 22, SV, tmpv=121)
    a("s_endpgm")
    a.label("K1_SORT")
    CNT = 32768
    HB = 36864
    a(f"s_sub_u32 s3, s2, {NGEMM}")
    a(f"s_cmp_ge_u32 s3, {NSORTWG}")
    a("s_cbranch_scc1 K1_HELP")
    a("s_and_b32 s24, s3, 7")
    a("s_lshl_b32 s24, s24, 4")
    a("s_lshr_b32 s25, s3, 3")
    a("s_lshl_b32 s25, s25, 1")
    a("s_add_u32 s24, s24, s25")
    a("s_lshr_b32 s25, s22, 3")
    a("s_add_u32 s3, s24, s25")
    a(f"s_mul_i32 s54, s25, {HB}")
    a("v_mov_b32 v47, v0")
    a("v_and_b32 v0, 511, v0")
    a("v_lshlrev_b32 v3, 2, v0")
    a("v_add_u32 v4, 4096, v3")
    a("v_add_u32 v5, 8192, v3")
    a(f"s_mul_i32 s23, s3, {CHUNK*4}")
    a("s_waitcnt lgkmcnt(0)")
    srd(a, 32, "s10", "s11", E * 4)
    for i in range(5):
        a(f"buffer_load_dword v{10+i}, v{3 + (i >> 1)}, s[32:35], s23 offen offset:{(i & 1)*2048}{NT}")
    srd(a, 28, "s8", "s9", E * 4)
    if opt.get("sb", 1): a("s_barrier")
    for i in range(5):
        a(f"buffer_load_dword v{16+i}, v{3 + (i >> 1)}, s[28:31], s23 offen offset:{(i & 1)*2048}{NT}")
    a("v_mov_b32 v24, -1\nv_mov_b32 v25, -1\nv_mov_b32 v26, -1\nv_mov_b32 v27, -1")
    a("v_mov_b32 v28, 0")
    a("v_lshl_add_u32 v6, v0, 4, s54")
    a("v_add_u32 v7, s54, v3")
    a(f"ds_write_b32 v7, v28 offset:{CNT}")
    for i in range(4):
        a(f"ds_write_b128 v6, v[24:27] offset:{i*8192}")
    srd_ws(a, 36, 20, CELL_OFF, 256 * 128 * 128)
    a("v_mov_b32 v29, 1")
    a(f"v_mov_b32 v30, {OVF - (1 << 32)}")
    a("v_lshlrev_b32 v31, 6, v0")
    a("v_lshrrev_b32 v44, 3, v47")
    a("v_and_b32 v45, 3, v47")
    a("v_lshlrev_b32 v45, 1, v45")
    a("v_xor_b32 v45, v45, v44")
    a("v_and_b32 v45, 7, v45")
    a("v_lshlrev_b32 v45, 4, v45")
    a("v_lshl_add_u32 v45, v44, 7, v45")
    a("v_bfe_u32 v43, v47, 2, 1")
    a(f"v_mul_u32_u24 v43, {HB}, v43")
    a("v_add_u32 v45, v45, v43")
    a("v_xor_b32 v42, 16, v45")
    a("v_lshl_add_u32 v43, v44, 2, v43")
    a("v_and_b32 v46, 7, v47")
    a("v_lshlrev_b32 v46, 4, v46")
    a("v_lshl_add_u32 v46, v44, 13, v46")
    a("s_lshr_b32 s24, s3, 1")
    a("s_lshl_b32 s24, s24, 7")
    for i in range(1, 4):
        a(f"s_add_u32 s{24+i}, s24, {i << 20}")
    for i in range(5):
        a(f"v_add_u32 v{84+i}, {i*32768}, v31")
    a(f"v_cmp_gt_u32 vcc, {CHUNK - 2048}, v0")
    a("s_waitcnt lgkmcnt(0)")
    a("s_mov_b64 s[52:53], vcc")
    stamp(a, opt, 1, SV)
    a("s_barrier")
    if opt.get("stamps"): a("s_waitcnt vmcnt(5)")
    stamp(a, opt, 2, SV)
    for i in range(5):
        a(f"s_waitcnt vmcnt({9 - i})")
        a(f"v_and_b32 v{32+i}, 255, v{10+i}")
        a(f"v_lshl_add_u32 v{37+i}, v{32+i}, 2, s54")
        if i == 4: a("s_mov_b64 exec, s[52:53]")
        a(f"ds_add_rtn_u32 v{60+i}, v{37+i}, v29 offset:{CNT}")
        if i == 4: a("s_mov_b64 exec, -1")
    for i in range(5):
        a(f"s_waitcnt vmcnt({4 - i})")
        a(f"v_lshrrev_b32 v{10+i}, 8, v{10+i}")
        a(f"v_lshl_or_b32 v{10+i}, v{16+i}, 18, v{10+i}")
        a(f"v_or_b32 v{10+i}, v{10+i}, v{84+i}")
        a(f"v_and_b32 v{16+i}, 28, v{37+i}")
        a(f"v_lshlrev_b32 v{32+i}, 5, v{32+i}")
    for i in range(5):
        a("s_waitcnt lgkmcnt(4)")
        a(f"v_cmp_lt_u32 vcc, 30, v{60+i}")
        a(f"v_min_u32 v{60+i}, 31, v{60+i}")
        a(f"v_lshl_or_b32 v{60+i}, v{60+i}, 5, v{60+i}")
        a(f"v_bfe_u32 v{60+i}, v{60+i}, 2, 5")
        a(f"v_xad_u32 v{60+i}, v{60+i}, v{16+i}, v{32+i}")
        a(f"v_cndmask_b32 v{10+i}, v{10+i}, v30, vcc")
        a(f"v_lshl_add_u32 v{60+i}, v{60+i}, 2, s54")
        if i == 4: a("s_mov_b64 exec, s[52:53]")
        a(f"ds_write_b32 v{60+i}, v{10+i}")
        if i == 4: a("s_mov_b64 exec, -1")
    a("s_waitcnt lgkmcnt(0)")
    a("s_barrier")
    stamp(a, opt, 3, SV)
    for i in range(2):
        a(f"ds_read_b128 {v(64+4*i,4)}, v45 offset:{i*16384}")
    for i in range(2):
        a(f"ds_read_b32 v{80+i}, v43 offset:{CNT + i*512}")
        a(f"ds_read_b128 {v(72+4*i,4)}, v42 offset:{i*16384}")
    for i in range(2):
        a(f"s_waitcnt lgkmcnt({5 - i})")
        a(f"buffer_store_dwordx4 {v(64+4*i,4)}, v46, s[36:39], s{24+i} offen{SF}")
    for i in range(2):
        a(f"s_waitcnt lgkmcnt({2 - 2*i})")
        a(f"v_cmp_lt_u32 vcc, 15, v{80+i}")
        a("s_and_saveexec_b64 s[52:53], vcc")
        a(f"s_cbranch_execz K1_NB{i}")
        a(f"buffer_store_dwordx4 {v(72+4*i,4)}, v46, s[36:39], s{26+i} offen{SF}")
        a.label(f"K1_NB{i}")
        a("s_mov_b64 exec, -1")
    stamp(a, opt, 4, SV)
    if opt.get("stamps"): a("s_waitcnt vmcnt(0)")
    stamp(a, opt, 5, SV)
    stamp_out(a, opt, 20, 0xF00000, 22, SV, tmpv=121)
    a("s_endpgm")
    a.label("K1_HELP")
    a(f"s_sub_u32 s3, s3, {NSORTWG}")
    a("s_waitcnt lgkmcnt(0)")
    srd_ws(a, 40, 20, W2F_OFF, FRAG_BYTES)
    a("v_lshlrev_b32 v6, 4, v2")
    if EPF:
        a("s_cmp_lt_u32 s22, 10")
        a("s_cbranch_scc1 K1_NPF")
        srd(a, 44, "s6", "s7", E * 32)
        a(f"s_mul_i32 s24, s3, {384*EPF*128}")
        a("v_subrev_u32 v7, 640, v0")
        a("v_lshlrev_b32 v7, 7, v7")
        for i in range(EPF):
            a("buffer_load_dword v22, v7, s[44:47], s24 offen")
            a(f"s_add_u32 s24, s24, {384*128}")
        a("s_endpgm")
        a.label("K1_NPF")
        a(f"s_cmp_ge_u32 s3, {NPREP}")
        a("s_cbranch_scc1 K1_END")
    a("s_cmp_lt_u32 s22, 8")
    a("s_cbranch_scc1 K1_H8")
    a("s_cmp_lt_u32 s22, 10")
    a("s_cbranch_scc0 K1_END")
    a("s_getpc_b64 s[60:61]")
    a.label("K1_PC")
    a("s_add_u32 s60, s60, mpnn_main_kernel-K1_PC")
    a("s_addc_u32 s61, s61, 0")
    a("s_mov_b32 s62, K2_REDO-mpnn_main_kernel")
    a("s_mov_b32 s63, 0x00020000")
    a("v_subrev_u32 v7, 512, v0")
    a("v_lshlrev_b32 v7, 7, v7")
    a("buffer_load_dword v22, v7, s[60:63], 0 offen")
    a("s_endpgm")
    a.label("K1_H8")
    a("s_lshl_b32 s3, s3, 3")
    a("s_add_u32 s3, s3, s22")
    a("s_mov_b32 s58, s3")
    a("s_bfe_u32 s26, s3, 0x30003")
    a("s_and_b32 s27, s3, 7")
    a("s_cmp_ge_u32 s3, 128")
    a("s_cselect_b32 s26, s27, s26")
    a("s_cselect_b32 s27, 8, s27")
    a("s_cmp_ge_u32 s3, 64")
    a("s_cbranch_scc1 K1_PREP1")
    srd(a, 44, "s16", "s17", 256 * 256)
    a("v_and_b32 v40, 15, v2")
    a("v_lshlrev_b32 v40, 1, v40")
    a("v_lshrrev_b32 v41, 4, v2")
    a("v_lshl_add_u32 v40, v41, 10, v40")
    a("v_add_u32 v41, 8192, v40")
    a("s_bfe_u32 s24, s3, 0x20001")
    a("s_lshl_b32 s24, s24, 14")
    a("s_and_b32 s25, s3, 1")
    a("s_lshl_b32 s25, s25, 12")
    a("s_add_u32 s24, s24, s25")
    a("s_lshr_b32 s25, s3, 3")
    a("s_lshl_b32 s25, s25, 5")
    a("s_add_u32 s24, s24, s25")
    for e in range(8):
        a(f"buffer_load_ushort v{48+e}, v{40 + (e & 1)}, s[44:47], s24 offen offset:{(e >> 1)*256}")
    a("s_branch K1_PFIN")
    a.label("K1_PREP1")
    srd(a, 44, "s12", "s13", 272 * 512)
    a("v_and_b32 v42, 1, v2")
    a("v_lshlrev_b32 v42, 6, v42")
    a("v_and_b32 v43, 30, v2")
    a("v_add_u32 v42, v42, v43")
    a("v_lshrrev_b32 v43, 5, v2")
    a("v_lshl_add_u32 v42, v43, 12, v42")
    a("s_lshr_b32 s24, s26, 1")
    a("s_lshl_b32 s24, s24, 7")
    a("s_and_b32 s25, s26, 1")
    a("s_lshl_b32 s25, s25, 5")
    a("s_add_u32 s24, s24, s25")
    a("s_lshl_b32 s27, s27, 13")
    a("s_add_u32 s24, s24, s27")
    a(f"s_add_u32 s24, s24, {128*512}")
    for e in range(8):
        a(f"buffer_load_ushort v{48+e}, v42, s[44:47], s24 offen offset:{e*512}")
    a.label("K1_PFIN")
    a("s_lshl_b32 s24, s58, 10")
    a("s_cmp_ge_u32 s58, 128")
    a("s_waitcnt vmcnt(0)")
    a("s_cbranch_scc1 K1_FINC")
    for e in range(4):
        a(f"v_lshl_or_b32 v{56+e}, v{49+2*e}, 16, v{48+2*e}")
    a("buffer_store_dwordx4 v[56:59], v6, s[40:43], s24 offen" + (" sc1" if opt.get("fsc", 1) else ""))
    a("s_endpgm")
    a.label("K1_FINC")
    a(f"s_mov_b32 s25, {NEGLOG2E:#x}")
    for e in range(8):
        a(f"v_lshlrev_b32 v{48+e}, 16, v{48+e}")
        a(f"v_mul_f32 v{48+e}, s25, v{48+e}")
    for e in range(4):
        a(f"v_cvt_pk_bf16_f32 v{56+e}, v{48+2*e}, v{49+2*e}")
    a("buffer_store_dwordx4 v[56:59], v6, s[40:43], s24 offen" + (" sc1" if opt.get("fsc", 1) else ""))
    a.label("K1_END")
    a("s_endpgm")
    return a, (128 if opt.get('stamps') else 112), (102 if opt.get('stamps') else 64)
```

```python
from asmlib import *

N = 10000; E = 320000
import os
WSB = int(os.environ.get('WSB', '0')) << 20
P_OFF = WSB + 4096
CELL_OFF = WSB + 0xA00000
W2F_OFF = WSB + 0xE00000
W1BF_OFF = WSB + 0xE10000
WCF_OFF = WSB + 0xE20000
FRAG_BYTES = 0x22000
NSORT = 128
CHUNK = 2500
GROWS = 64
NGEMM = 157
NSORTWG = 64
NPREP = 17
EPF = int(os.environ.get('EPF', '0'))
K1_WGS = 256 if EPF else NGEMM + NSORTWG + NPREP
K1_BLOCK = 1024
K1_LDS = 65536 + GROWS * 256 + 256
NEGLOG2E = 0xBFB8AA3B
OVF = 0xFFFFFFFE

def srd(a, r, lo, hi, size):
    a(f"s_mov_b32 s{r}, {lo}")
    a(f"s_mov_b32 s{r+1}, {hi}")
    a(f"s_mov_b32 s{r+2}, {size}")
    a(f"s_mov_b32 s{r+3}, 0x00020000")

def srd_ws(a, r, wslo, off, size):
    a(f"s_add_u32 s{r}, s{wslo}, {off}")
    a(f"s_addc_u32 s{r+1}, s{wslo+1}, 0")
    a(f"s_mov_b32 s{r+2}, {size}")
    a(f"s_mov_b32 s{r+3}, 0x00020000")

def stamp(a, opt, idx, vreg, sreg=96):
    if not opt.get("stamps"): return
    a(f"s_memrealtime s[{sreg}:{sreg+1}]")
    a("s_waitcnt lgkmcnt(0)")
    a(f"v_writelane_b32 v{vreg}, s{sreg}, {idx}")
def stamp_out(a, opt, wslo, off, wavereg, vreg, sreg=96, tmpv=151):
    if not opt.get("stamps"): return
    a(f"s_add_u32 s{sreg}, s{wslo}, {off}")
    a(f"s_addc_u32 s{sreg+1}, s{wslo+1}, 0")
    a(f"s_mov_b32 s{sreg+2}, 0x80000")
    a(f"s_mov_b32 s{sreg+3}, 0x00020000")
    a(f"s_lshl_b32 s100, s2, 4")
    a(f"s_add_u32 s100, s100, s{wavereg}")
    a(f"s_lshl_b32 s100, s100, 6")
    a(f"v_mbcnt_lo_u32_b32 v{tmpv}, -1, 0")
    a(f"v_lshlrev_b32 v{tmpv}, 2, v{tmpv}")
    a("s_mov_b64 exec, 0xffff")
    a(f"buffer_store_dword v{vreg}, v{tmpv}, s[{sreg}:{sreg+3}], s100 offen")
    a("s_mov_b64 exec, -1")
def stamp_out2(a, opt, wslo, off, wavereg, vreg, sreg=96, tmpv=151):
    a(f"s_add_u32 s{sreg}, s{wslo}, {off}")
    a(f"s_addc_u32 s{sreg+1}, s{wslo+1}, 0")
    a(f"s_lshl_b32 s100, s100, 1")
    a("s_mov_b64 exec, 0xffffffff")
    a(f"buffer_store_dword v{vreg}, v{tmpv}, s[{sreg}:{sreg+3}], s100 offen")
    a("s_mov_b64 exec, -1")

def gen_k1(opt=None):
    opt = opt or {}
    SV = 120
    SFD = {0: "", 1: " sc1", 2: " sc0 sc1", 3: " nt", 4: " nt sc1"}
    SF = SFD[opt.get("sf", 1)]
    SFG = SFD[opt.get("sfg", 1)]
    NT = " nt" if opt.get("knt", 1) else ""
    NTX = " nt" if opt.get("kntx", 1) else ""
    a = Asm()
    a.label("mpnn_pre_kernel")
    a(f"s_cmp_ge_u32 s2, {K1_WGS}")
    a("s_cbranch_scc1 K1_END")
    if opt.get("stamps"): a(f"v_mov_b32 v{SV}, 0")
    stamp(a, opt, 0, SV)
    if opt.get("stamps"):
        a("s_getreg_b32 s96, hwreg(HW_REG_XCC_ID)")
        a(f"v_writelane_b32 v{SV}, s96, 9")
    a("s_load_dwordx16 s[4:19], s[0:1], 0")
    a("s_load_dwordx2 s[20:21], s[0:1], 80")
    a("v_lshrrev_b32 v1, 6, v0")
    a("v_and_b32 v2, 63, v0")
    a("v_readfirstlane_b32 s22, v1")
    a(f"s_cmp_ge_u32 s2, {NGEMM}")
    a("s_cbranch_scc1 K1_SORT")
    XI = 65536
    SW = XI + GROWS * 256
    a("v_lshrrev_b32 v10, 4, v0")
    a("v_xor_b32 v11, v10, v2")
    a("v_and_b32 v11, 15, v11")
    a("v_lshlrev_b32 v11, 4, v11")
    a("v_lshl_add_u32 v8, v10, 8, v11")
    a("v_lshrrev_b32 v4, 4, v2")
    a("v_lshlrev_b32 v7, 2, v4")
    a("v_xor_b32 v7, v7, v2")
    a("v_and_b32 v7, 15, v7")
    a("v_lshlrev_b32 v7, 4, v7")
    a("v_lshl_add_u32 v3, v4, 9, v7")
    a(f"v_mov_b32 v14, {SW}")
    a("v_mov_b32 v15, 0")
    a("ds_write_b32 v14, v15")
    OWN = opt.get("own", 0)
    if OWN:
        a("s_cmp_lt_u32 s22, 8")
        a("s_cbranch_scc1 K1_GC")
        a("s_and_b32 s44, s22, 7")
        a("v_lshrrev_b32 v10, 4, v2")
        a("s_lshl_b32 s45, s44, 3")
        a("v_add_u32 v10, s45, v10")
        a("v_xor_b32 v11, v10, v2")
        a("v_and_b32 v11, 15, v11")
        a("v_lshlrev_b32 v11, 4, v11")
        a("v_lshl_add_u32 v8, v10, 8, v11")
        a("v_xor_b32 v9, 64, v8")
        a("s_lshl_b32 s45, s44, 13")
        a("s_add_u32 s46, s45, 256")
        a("s_lshl_b32 s47, s44, 12")
        a(f"s_mul_i32 s48, s2, {GROWS*256}")
        a("s_lshl_b32 s49, s44, 11")
        a(f"s_add_u32 m0, s49, {XI}")
        a("s_waitcnt lgkmcnt(0)")
        srd(a, 32, "s4", "s5", N * 256)
        srd(a, 28, "s12", "s13", 272 * 512)
        a(f"buffer_load_dwordx4 v8, s[32:35], s48 offen{NTX} lds")
        a(f"buffer_load_dwordx4 v9, s[32:35], s48 offen offset:1024{NTX} lds")
        a("s_mov_b32 m0, s47")
        a("s_barrier")
        for k in range(4):
            a(f"buffer_load_dwordx4 v3, s[28:31], s45 offen offset:{k*1024} lds")
            a("s_add_u32 s45, s45, 1024")
        a("s_add_u32 m0, s47, 32768")
        a("s_barrier")
        for k in range(4):
            a(f"buffer_load_dwordx4 v3, s[28:31], s46 offen offset:{k*1024} lds")
            a("s_add_u32 s46, s46, 1024")
        a("s_waitcnt vmcnt(4)")
        a("s_barrier")
        a("v_mov_b32 v15, 1")
        a("s_waitcnt vmcnt(0)")
        a("s_mov_b64 exec, 1")
        a("ds_add_u32 v14, v15")
        a("s_endpgm")
        a.label("K1_GC")
        a("s_bfe_u32 s26, s22, 0x10001")
        a("s_lshr_b32 s27, s22, 2")
        a("s_and_b32 s50, s22, 1")
        a("s_lshl_b32 s50, s50, 7")
        a("s_lshl_b32 s51, s27, 8")
        a("s_add_u32 s51, s51, s50")
        a(f"s_mul_i32 s52, s2, {GROWS*512}")
        a("s_add_u32 s51, s51, s52")
        a("s_lshl_b32 s52, s26, 14")
        a("s_add_u32 s51, s51, s52")
        if OWN == 1:
            a("v_lshrrev_b32 v12, 1, v2")
            a("v_and_b32 v13, 1, v2")
            a("v_lshlrev_b32 v13, 6, v13")
            a("v_lshl_add_u32 v12, v12, 9, v13")
        else:
            a("v_and_b32 v12, 31, v2")
            a("v_lshlrev_b32 v12, 9, v12")
        a("s_waitcnt lgkmcnt(0)")
        srd_ws(a, 36, 20, P_OFF, (N + 1) * 512)
        if OWN < 3: a(f"buffer_store_dword v15, v12, s[36:39], s51 offen{SFG}")
        a("s_barrier")
        a("s_barrier")
    else:
        a("s_and_b32 s44, s22, 7")
        a("s_lshl_b32 s45, s44, 13")
        a("s_lshr_b32 s46, s22, 3")
        a("s_lshl_b32 s47, s46, 8")
        a("s_add_u32 s45, s45, s47")
        a("s_lshl_b32 s47, s22, 12")
        a(f"s_mul_i32 s48, s2, {GROWS*256}")
        a("s_lshl_b32 s49, s22, 10")
        a(f"s_add_u32 m0, s49, {XI}")
        a("s_waitcnt lgkmcnt(0)")
        srd(a, 32, "s4", "s5", N * 256)
        srd(a, 28, "s12", "s13", 272 * 512)
        if opt.get("wwu", 1):
            a("s_cmp_lg_u32 s22, 0")
            a("s_cbranch_scc1 K1_NWU")
            a("s_bfe_u32 s50, s2, 0x40003")
            a("s_lshl_b32 s50, s50, 12")
            a("v_and_b32 v12, 31, v2")
            a("v_lshlrev_b32 v12, 7, v12")
            a("buffer_load_dword v31, v12, s[28:31], s50 offen")
            a.label("K1_NWU")
        a(f"buffer_load_dwordx4 v8, s[32:35], s48 offen{NTX} lds")
        a("s_mov_b32 m0, s47")
        a("s_cmp_lt_u32 s22, 8")
        a("s_barrier")
        a("s_cbranch_scc1 K1_GA")
        if opt.get("gb", 1) & 2: a("s_barrier")
        a.label("K1_GA")
        for k in range(4):
            a(f"buffer_load_dwordx4 v3, s[28:31], s45 offen offset:{k*1024} lds")
            a("s_add_u32 s45, s45, 1024")
        a("s_cmp_lt_u32 s22, 8")
        a("s_cbranch_scc1 K1_GC")
        a("s_waitcnt vmcnt(4)")
        a("s_barrier")
        a("v_mov_b32 v15, 1")
        a("s_waitcnt vmcnt(0)")
        a("s_mov_b64 exec, 1")
        a("ds_add_u32 v14, v15")
        a("s_endpgm")
        a.label("K1_GC")
        if opt.get("gb", 1) & 2: a("s_barrier")
    a("v_lshrrev_b32 v5, 5, v2")
    a("v_and_b32 v6, 31, v2")
    a("s_bfe_u32 s26, s22, 0x10001")
    a("s_lshr_b32 s27, s22, 2")
    a("s_and_b32 s50, s22, 1")
    a("s_lshl_b32 s50, s50, 7")
    srd_ws(a, 36, 20, P_OFF, (N + 1) * 512)
    a("v_and_b32 v17, 15, v2")
    a("v_xor_b32 v17, v17, v5")
    a("s_lshl_b32 s51, s26, 13")
    a(f"s_add_u32 s51, s51, {XI}")
    a("v_lshl_add_u32 v17, v17, 4, s51")
    a("v_lshl_add_u32 v16, v6, 8, v17")
    for sidx in range(1, 8):
        a(f"v_xor_b32 v{16+sidx}, {sidx << 5}, v16")
    a("v_bfe_u32 v26, v2, 2, 2")
    a("v_lshl_add_u32 v27, v5, 3, v26")
    a("v_and_b32 v28, 3, v2")
    a("v_lshl_add_u32 v28, v28, 3, s50")
    a("v_bfe_u32 v29, v2, 4, 1")
    a("v_lshl_add_u32 v28, v29, 5, v28")
    a("v_lshlrev_b32 v26, 6, v26")
    a("v_xor_b32 v28, v28, v26")
    a("s_lshl_b32 s51, s27, 15")
    a("v_add_u32 v28, s51, v28")
    a("v_lshl_add_u32 v24, v27, 8, v28")
    a("v_xor_b32 v25, 64, v24")
    a("s_lshl_b32 s51, s27, 8")
    a("s_add_u32 s51, s51, s50")
    a("v_lshl_add_u32 v13, v6, 2, s51")
    a("v_lshl_add_u32 v13, v5, 11, v13")
    if opt.get("own2", 0): a("v_lshl_add_u32 v12, v6, 9, s51")
    a(f"s_mul_i32 s52, s2, {GROWS*512}")
    a("s_lshl_b32 s51, s26, 14")
    a("s_add_u32 s52, s52, s51")
    a("s_add_u32 s53, s52, 4096")
    a("s_add_u32 s54, s52, 8192")
    a("s_add_u32 s55, s52, 12288")
    import struct
    PS = struct.unpack("<I", struct.pack("<f", -1.4426950408889634 * (1 - opt.get("pcomp", 20) * 1e-4)))[0]
    a(f"s_mov_b32 s56, {PS:#x}")
    a(f"s_mov_b32 s57, {PS:#x}")
    stamp(a, opt, 1, SV)
    if not OWN: a("s_waitcnt vmcnt(0)")
    stamp(a, opt, 2, SV)
    a("s_barrier")
    stamp(a, opt, 6, SV)
    if opt.get("own2", 0) == 1:
        a(f"buffer_store_dword v15, v12, s[36:39], s52 offen{SFG}")
    a("s_cmp_eq_u32 s27, 0")
    a("s_cbranch_scc1 K1_GO")
    a.label("K1_GW")
    a("ds_read_b32 v15, v14")
    a("s_waitcnt lgkmcnt(0)")
    a("v_readfirstlane_b32 s51, v15")
    a("s_nop 0")
    a("s_cmp_lt_u32 s51, 8")
    a("s_cbranch_scc1 K1_GW")
    a.label("K1_GO")
    if opt.get("own2", 0) == 2:
        a(f"buffer_store_dword v15, v12, s[36:39], s52 offen{SFG}")
    stamp(a, opt, 8, SV)
    AF = 32; BF = 48; DA = 80; DB = 96
    def reads(sidx):
        st = sidx & 3
        a(f"ds_read_b128 {v(AF+4*st,4)}, v{16+sidx}")
        for X in range(2):
            for e in range(2):
                a(f"ds_read_b64_tr_b16 {v(BF+8*st+4*X+2*e,2)}, v{24+X} offset:{sidx*4096+e*1024}")
    def mm(sidx):
        st = sidx & 3
        ca = "0" if sidx == 0 else v(DA, 16)
        cb = "0" if sidx == 0 else v(DB, 16)
        a(f"v_mfma_f32_32x32x16_bf16 {v(DA,16)}, {v(AF+4*st,4)}, {v(BF+8*st,4)}, {ca}")
        a(f"v_mfma_f32_32x32x16_bf16 {v(DB,16)}, {v(AF+4*st,4)}, {v(BF+8*st+4,4)}, {cb}")
    reads(0); reads(1); reads(2)
    for sidx in range(8):
        a(f"s_waitcnt lgkmcnt({5*min(2, 7-sidx)})"); mm(sidx)
        if sidx + 3 < 8: reads(sidx + 3)
    a("s_nop 10")
    stamp(a, opt, 3, SV)
    DUP = opt.get("dup", 0)
    if DUP: srd_ws(a, 40, 20, 100 << 20, (N + 1) * 512)
    S1, S2 = ("s[40:43]", "s[36:39]") if DUP == 1 else ("s[36:39]", "s[40:43]")
    for r in range(0, 16, 2):
        a(f"v_pk_mul_f32 {v(DA+r,2)}, {v(DA+r,2)}, s[56:57]")
        a(f"v_pk_mul_f32 {v(DB+r,2)}, {v(DB+r,2)}, s[56:57]")
        for rr in (r, r + 1):
            a(f"v_cvt_pk_bf16_f32 v{AF+rr}, v{DA+rr}, v{DB+rr}")
            a(f"buffer_store_dword v{AF+rr}, v13, {S1}, s{52 + (rr >> 2)} offen offset:{(rr & 3)*512}{SFG}")
    if DUP:
        a("s_waitcnt vmcnt(0)")
        stamp(a, opt, 7, SV)
        a("s_sleep 127"); a("s_sleep 127")
        for rr in range(16):
            a(f"buffer_store_dword v{AF+rr}, v13, {S2}, s{52 + (rr >> 2)} offen offset:{(rr & 3)*512}{SFG}")
    stamp(a, opt, 4, SV)
    if opt.get("stamps"): a("s_waitcnt vmcnt(0)")
    stamp(a, opt, 5, SV)
    stamp_out(a, opt, 20, 0xF00000, 22, SV, tmpv=121)
    a("s_endpgm")
    a.label("K1_SORT")
    CNT = 32768
    HB = 36864
    a(f"s_sub_u32 s3, s2, {NGEMM}")
    a(f"s_cmp_ge_u32 s3, {NSORTWG}")
    a("s_cbranch_scc1 K1_HELP")
    a("s_and_b32 s24, s3, 7")
    a("s_lshl_b32 s24, s24, 4")
    a("s_lshr_b32 s25, s3, 3")
    a("s_lshl_b32 s25, s25, 1")
    a("s_add_u32 s24, s24, s25")
    a("s_lshr_b32 s25, s22, 3")
    a("s_add_u32 s3, s24, s25")
    a(f"s_mul_i32 s54, s25, {HB}")
    a("v_mov_b32 v47, v0")
    a("v_and_b32 v0, 511, v0")
    a("v_lshlrev_b32 v3, 2, v0")
    a("v_add_u32 v4, 4096, v3")
    a("v_add_u32 v5, 8192, v3")
    a(f"s_mul_i32 s23, s3, {CHUNK*4}")
    a("s_waitcnt lgkmcnt(0)")
    srd(a, 32, "s10", "s11", E * 4)
    for i in range(5):
        a(f"buffer_load_dword v{10+i}, v{3 + (i >> 1)}, s[32:35], s23 offen offset:{(i & 1)*2048}{NT}")
    srd(a, 28, "s8", "s9", E * 4)
    if opt.get("sb", 1): a("s_barrier")
    for i in range(5):
        a(f"buffer_load_dword v{16+i}, v{3 + (i >> 1)}, s[28:31], s23 offen offset:{(i & 1)*2048}{NT}")
    a("v_mov_b32 v24, -1\nv_mov_b32 v25, -1\nv_mov_b32 v26, -1\nv_mov_b32 v27, -1")
    a("v_mov_b32 v28, 0")
    a("v_lshl_add_u32 v6, v0, 4, s54")
    a("v_add_u32 v7, s54, v3")
    a(f"ds_write_b32 v7, v28 offset:{CNT}")
    for i in range(4):
        a(f"ds_write_b128 v6, v[24:27] offset:{i*8192}")
    srd_ws(a, 36, 20, CELL_OFF, 256 * 128 * 128)
    a("v_mov_b32 v29, 1")
    a(f"v_mov_b32 v30, {OVF - (1 << 32)}")
    a("v_lshlrev_b32 v31, 6, v0")
    a("v_lshrrev_b32 v44, 3, v47")
    a("v_and_b32 v45, 3, v47")
    a("v_lshlrev_b32 v45, 1, v45")
    a("v_xor_b32 v45, v45, v44")
    a("v_and_b32 v45, 7, v45")
    a("v_lshlrev_b32 v45, 4, v45")
    a("v_lshl_add_u32 v45, v44, 7, v45")
    a("v_bfe_u32 v43, v47, 2, 1")
    a(f"v_mul_u32_u24 v43, {HB}, v43")
    a("v_add_u32 v45, v45, v43")
    a("v_xor_b32 v42, 16, v45")
    a("v_lshl_add_u32 v43, v44, 2, v43")
    a("v_and_b32 v46, 7, v47")
    a("v_lshlrev_b32 v46, 4, v46")
    a("v_lshl_add_u32 v46, v44, 13, v46")
    a("s_lshr_b32 s24, s3, 1")
    a("s_lshl_b32 s24, s24, 7")
    for i in range(1, 4):
        a(f"s_add_u32 s{24+i}, s24, {i << 20}")
    for i in range(5):
        a(f"v_add_u32 v{84+i}, {i*32768}, v31")
    a(f"v_cmp_gt_u32 vcc, {CHUNK - 2048}, v0")
    a("s_waitcnt lgkmcnt(0)")
    a("s_mov_b64 s[52:53], vcc")
    stamp(a, opt, 1, SV)
    a("s_barrier")
    if opt.get("stamps"): a("s_waitcnt vmcnt(5)")
    stamp(a, opt, 2, SV)
    for i in range(5):
        a(f"s_waitcnt vmcnt({9 - i})")
        a(f"v_and_b32 v{32+i}, 255, v{10+i}")
        a(f"v_lshl_add_u32 v{37+i}, v{32+i}, 2, s54")
        if i == 4: a("s_mov_b64 exec, s[52:53]")
        a(f"ds_add_rtn_u32 v{60+i}, v{37+i}, v29 offset:{CNT}")
        if i == 4: a("s_mov_b64 exec, -1")
    for i in range(5):
        a(f"s_waitcnt vmcnt({4 - i})")
        a(f"v_lshrrev_b32 v{10+i}, 8, v{10+i}")
        a(f"v_lshl_or_b32 v{10+i}, v{16+i}, 18, v{10+i}")
        a(f"v_or_b32 v{10+i}, v{10+i}, v{84+i}")
        a(f"v_and_b32 v{16+i}, 28, v{37+i}")
        a(f"v_lshlrev_b32 v{32+i}, 5, v{32+i}")
    for i in range(5):
        a("s_waitcnt lgkmcnt(4)")
        a(f"v_cmp_lt_u32 vcc, 30, v{60+i}")
        a(f"v_min_u32 v{60+i}, 31, v{60+i}")
        a(f"v_lshl_or_b32 v{60+i}, v{60+i}, 5, v{60+i}")
        a(f"v_bfe_u32 v{60+i}, v{60+i}, 2, 5")
        a(f"v_xad_u32 v{60+i}, v{60+i}, v{16+i}, v{32+i}")
        a(f"v_cndmask_b32 v{10+i}, v{10+i}, v30, vcc")
        a(f"v_lshl_add_u32 v{60+i}, v{60+i}, 2, s54")
        if i == 4: a("s_mov_b64 exec, s[52:53]")
        a(f"ds_write_b32 v{60+i}, v{10+i}")
        if i == 4: a("s_mov_b64 exec, -1")
    a("s_waitcnt lgkmcnt(0)")
    a("s_barrier")
    stamp(a, opt, 3, SV)
    for i in range(2):
        a(f"ds_read_b128 {v(64+4*i,4)}, v45 offset:{i*16384}")
    for i in range(2):
        a(f"ds_read_b32 v{80+i}, v43 offset:{CNT + i*512}")
        a(f"ds_read_b128 {v(72+4*i,4)}, v42 offset:{i*16384}")
    for i in range(2):
        a(f"s_waitcnt lgkmcnt({5 - i})")
        a(f"buffer_store_dwordx4 {v(64+4*i,4)}, v46, s[36:39], s{24+i} offen{SF}")
    for i in range(2):
        a(f"s_waitcnt lgkmcnt({2 - 2*i})")
        a(f"v_cmp_lt_u32 vcc, 15, v{80+i}")
        a("s_and_saveexec_b64 s[52:53], vcc")
        a(f"s_cbranch_execz K1_NB{i}")
        a(f"buffer_store_dwordx4 {v(72+4*i,4)}, v46, s[36:39], s{26+i} offen{SF}")
        a.label(f"K1_NB{i}")
        a("s_mov_b64 exec, -1")
    stamp(a, opt, 4, SV)
    if opt.get("stamps"): a("s_waitcnt vmcnt(0)")
    stamp(a, opt, 5, SV)
    stamp_out(a, opt, 20, 0xF00000, 22, SV, tmpv=121)
    a("s_endpgm")
    a.label("K1_HELP")
    a(f"s_sub_u32 s3, s3, {NSORTWG}")
    a("s_waitcnt lgkmcnt(0)")
    srd_ws(a, 40, 20, W2F_OFF, FRAG_BYTES)
    a("v_lshlrev_b32 v6, 4, v2")
    if EPF:
        a("s_cmp_lt_u32 s22, 10")
        a("s_cbranch_scc1 K1_NPF")
        srd(a, 44, "s6", "s7", E * 32)
        a(f"s_mul_i32 s24, s3, {384*EPF*128}")
        a("v_subrev_u32 v7, 640, v0")
        a("v_lshlrev_b32 v7, 7, v7")
        for i in range(EPF):
            a("buffer_load_dword v22, v7, s[44:47], s24 offen")
            a(f"s_add_u32 s24, s24, {384*128}")
        a("s_endpgm")
        a.label("K1_NPF")
        a(f"s_cmp_ge_u32 s3, {NPREP}")
        a("s_cbranch_scc1 K1_END")
    a("s_cmp_lt_u32 s22, 8")
    a("s_cbranch_scc1 K1_H8")
    a("s_cmp_lt_u32 s22, 10")
    a("s_cbranch_scc0 K1_END")
    a("s_getpc_b64 s[60:61]")
    a.label("K1_PC")
    a("s_add_u32 s60, s60, mpnn_main_kernel-K1_PC")
    a("s_addc_u32 s61, s61, 0")
    a("s_mov_b32 s62, K2_REDO-mpnn_main_kernel")
    a("s_mov_b32 s63, 0x00020000")
    a("v_subrev_u32 v7, 512, v0")
    a("v_lshlrev_b32 v7, 7, v7")
    a("buffer_load_dword v22, v7, s[60:63], 0 offen")
    a("s_endpgm")
    a.label("K1_H8")
    a("s_lshl_b32 s3, s3, 3")
    a("s_add_u32 s3, s3, s22")
    a("s_mov_b32 s58, s3")
    a("s_bfe_u32 s26, s3, 0x30003")
    a("s_and_b32 s27, s3, 7")
    a("s_cmp_ge_u32 s3, 128")
    a("s_cselect_b32 s26, s27, s26")
    a("s_cselect_b32 s27, 8, s27")
    a("s_cmp_ge_u32 s3, 64")
    a("s_cbranch_scc1 K1_PREP1")
    srd(a, 44, "s16", "s17", 256 * 256)
    a("v_and_b32 v40, 15, v2")
    a("v_lshlrev_b32 v40, 1, v40")
    a("v_lshrrev_b32 v41, 4, v2")
    a("v_lshl_add_u32 v40, v41, 10, v40")
    a("v_add_u32 v41, 8192, v40")
    a("s_bfe_u32 s24, s3, 0x20001")
    a("s_lshl_b32 s24, s24, 14")
    a("s_and_b32 s25, s3, 1")
    a("s_lshl_b32 s25, s25, 12")
    a("s_add_u32 s24, s24, s25")
    a("s_lshr_b32 s25, s3, 3")
    a("s_lshl_b32 s25, s25, 5")
    a("s_add_u32 s24, s24, s25")
    for e in range(8):
        a(f"buffer_load_ushort v{48+e}, v{40 + (e & 1)}, s[44:47], s24 offen offset:{(e >> 1)*256}")
    a("s_branch K1_PFIN")
    a.label("K1_PREP1")
    srd(a, 44, "s12", "s13", 272 * 512)
    a("v_and_b32 v42, 1, v2")
    a("v_lshlrev_b32 v42, 6, v42")
    a("v_and_b32 v43, 30, v2")
    a("v_add_u32 v42, v42, v43")
    a("v_lshrrev_b32 v43, 5, v2")
    a("v_lshl_add_u32 v42, v43, 12, v42")
    a("s_lshr_b32 s24, s26, 1")
    a("s_lshl_b32 s24, s24, 7")
    a("s_and_b32 s25, s26, 1")
    a("s_lshl_b32 s25, s25, 5")
    a("s_add_u32 s24, s24, s25")
    a("s_lshl_b32 s27, s27, 13")
    a("s_add_u32 s24, s24, s27")
    a(f"s_add_u32 s24, s24, {128*512}")
    for e in range(8):
        a(f"buffer_load_ushort v{48+e}, v42, s[44:47], s24 offen offset:{e*512}")
    a.label("K1_PFIN")
    a("s_lshl_b32 s24, s58, 10")
    a("s_cmp_ge_u32 s58, 128")
    a("s_waitcnt vmcnt(0)")
    a("s_cbranch_scc1 K1_FINC")
    for e in range(4):
        a(f"v_lshl_or_b32 v{56+e}, v{49+2*e}, 16, v{48+2*e}")
    a("buffer_store_dwordx4 v[56:59], v6, s[40:43], s24 offen" + (" sc1" if opt.get("fsc", 1) else ""))
    a("s_endpgm")
    a.label("K1_FINC")
    a(f"s_mov_b32 s25, {NEGLOG2E:#x}")
    for e in range(8):
        a(f"v_lshlrev_b32 v{48+e}, 16, v{48+e}")
        a(f"v_mul_f32 v{48+e}, s25, v{48+e}")
    for e in range(4):
        a(f"v_cvt_pk_bf16_f32 v{56+e}, v{48+2*e}, v{49+2*e}")
    a("buffer_store_dwordx4 v[56:59], v6, s[40:43], s24 offen" + (" sc1" if opt.get("fsc", 1) else ""))
    a.label("K1_END")
    a("s_endpgm")
    return a, (128 if opt.get('stamps') else 112), (102 if opt.get('stamps') else 64)
```

```python
from asmlib import *
from k1 import *

NW = 12
PSLOT = 0
EIM = 49152
OH = 98304
ZERO = 147456
CNT = ZERO + 256
FLAG = ZERO + 512
DEG = ZERO + 1536
IDX = ZERO + 3328
EOFF = IDX + 6400
HSTR = 160
K2_LDS = 163840
assert EOFF + 6144 <= K2_LDS
GCAP = 48
KILL = 0x40000000
NEGLN2 = 0xBF317218
aAE = 1; aAP = 2; aAO = 7; aS1 = 8; aS2 = 9; aIDX = 10; aEI = 11; EI = 12; CHK = 14
D = [16, 32]; EX = 48; ACC = 64; BC = [80, 84]; BQ = [88, 92]; ID = [96, 100]
AE = 104; FV = 164; MG = 165; AO = 108; S = 112; AP = [116, 120, 124, 128]; HQ = 132; IX = [136, 138, 140, 142]
WP = 144
NV2 = 168

def pr(r): return v(r, 2)
def q4(r): return v(r, 4)
def x16(r): return v(r, 16)

C1 = 116
def mf_tile(Y):
    d = D[Y]
    return [f"v_mfma_f32_32x32x16_bf16 {x16(d)}, {q4(AE)}, {q4(BC[Y])}, {x16(C1 if Y else d)}",
            f"v_mfma_f32_32x32x16_bf16 {x16(d)}, {q4(AO)}, {q4(BQ[Y])}, {x16(d)}"]
def p_reads():
    return [f"ds_read_b64_tr_b16 {pr((C1 if X else D[0])+4*j)}, v{aAP+X} offset:{j*256}" for X in range(2) for j in range(4)]
def p_shift(X):
    b = C1 if X else D[0]
    return [f"v_lshlrev_b64 {pr(b+4*j+2)}, 16, {pr(b+4*j)}" for j in range(4)]
SEGSUM = f"v_mfma_f32_32x32x16_bf16 {x16(ACC)}, {q4(HQ)}, {q4(S)}, {x16(ACC)}"

OCT = [0]
QTAILS = []
def tile(X, mf, ex_exp, mid, ex_rcp, tag=None, mpos=(0, 3, 6, 9, 12), pre=()):
    d = D[X]; out = list(pre); mi = 0
    for i in range(16):
        if i in mpos and mi < len(mf):
            out.append(mf[mi]); mi += 1
        out.append(f"v_exp_f32 v{EX+i}, v{d+i}")
        out += ex_exp.get(i, [])
    out += mid
    NAB, NCD, DAB, DCD = d, d + 8, EX, EX + 8
    out.append(f"v_pk_add_f32 {pr(DAB)}, {pr(EX)}, 1.0 op_sel_hi:[1,0]")
    out.append(f"v_pk_add_f32 {pr(DCD)}, {pr(EX+8)}, 1.0 op_sel_hi:[1,0]")
    for k in range(1, 4):
        out.append(f"v_pk_fma_f32 {pr(NAB)}, {pr(NAB)}, {pr(EX+2*k)}, {pr(NAB)}")
        out.append(f"v_pk_fma_f32 {pr(NCD)}, {pr(NCD)}, {pr(EX+8+2*k)}, {pr(NCD)}")
        out.append(f"v_pk_fma_f32 {pr(NAB)}, {pr(d+2*k)}, {pr(DAB)}, {pr(NAB)}")
        out.append(f"v_pk_fma_f32 {pr(NCD)}, {pr(d+8+2*k)}, {pr(DCD)}, {pr(NCD)}")
        out.append(f"v_pk_fma_f32 {pr(DAB)}, {pr(DAB)}, {pr(EX+2*k)}, {pr(DAB)}")
        out.append(f"v_pk_fma_f32 {pr(DCD)}, {pr(DCD)}, {pr(EX+8+2*k)}, {pr(DCD)}")
    qt = [f"v_pk_fma_f32 {pr(CHK)}, {pr(DAB)}, {pr(DCD)}, {pr(CHK)}"]
    for r in (DAB, DAB + 1, DCD, DCD + 1):
        qt.append(f"v_rcp_f32 v{r}, v{r}")
    qt.append(f"v_pk_mul_f32 {pr(NAB)}, {pr(NAB)}, {pr(DAB)}")
    qt.append(f"v_pk_mul_f32 {pr(NCD)}, {pr(NCD)}, {pr(DCD)}")
    qt.append(f"v_cvt_pk_bf16_f32 v{HQ+2*X}, v{NAB}, v{NAB+1}")
    qt.append(f"v_cvt_pk_bf16_f32 v{HQ+2*X+1}, v{NCD}, v{NCD+1}")
    out += ex_rcp
    if not OCT[0] or tag is None:
        return out + qt
    DM = EX + 2
    if tag[0] != "P": out += ["s_cmp_ge_u32 s55, 9", f"s_cbranch_scc1 K2_QT{tag}"]
    out += [f"v_pk_mul_f32 {pr(DM)}, {pr(DAB)}, {pr(DCD)}",
            f"v_pk_mul_f32 {pr(NAB)}, {pr(NAB)}, {pr(DCD)}",
            f"v_rcp_f32 v{DM+2}, v{DM}",
            f"v_rcp_f32 v{DM+3}, v{DM+1}",
            f"v_pk_fma_f32 {pr(NAB)}, {pr(NCD)}, {pr(DAB)}, {pr(NAB)}",
            f"v_pk_add_f32 {pr(CHK)}, {pr(CHK)}, {pr(DM)}",
            f"v_pk_mul_f32 {pr(NAB)}, {pr(NAB)}, {pr(DM+2)}",
            f"v_cvt_pk_bf16_f32 v{HQ+2*X}, v{NAB}, v{NAB+1}"]
    if tag[0] == "P": return out + [f"v_mov_b32 v{HQ+2*X+1}, 0"]
    out += [f"K2_QR{tag}:"]
    QTAILS.append([f"K2_QT{tag}:"] + qt + [f"s_branch K2_QR{tag}"])
    return out

PFL = [""]
def p_dma():
    return [f"buffer_load_dwordx4 {pr(IX[k])}, s[32:35], s{28+k} idxen offen offset:{k*1024}{PFL[0]} lds" for k in range(4)]

EFL = [""]
def e_dma():
    return ["s_cmp_lt_u32 s61, s53",
            f"s_cselect_b32 s86, {E}, 0",
            f"s_cselect_b32 m0, s59, {K2_LDS:#x}",
            "s_add_u32 s61, s61, 4",
            f"buffer_load_dwordx4 {pr(EI)}, s[84:87], 0 idxen offen{EFL[0]} lds",
            "s_mov_b32 m0, s57",
            "s_add_u32 s59, s59, 4096"]
NW2 = 7
WREG = [144, 148, 152, 156, 160, 96, 100]
def w2_pre(vaddr):
    return [f"buffer_load_dwordx4 {q4(WREG[sidx])}, v{vaddr}, s[40:43], s{73 + (sidx >> 2)} offen offset:{(sidx & 3)*1024}" for sidx in range(NW2)]

def gen_k2(opt=None):
    opt = opt or {}
    EFL[0] = " nt" if opt.get("e0nt", 0) else ""
    OCT[0] = opt.get("oct", 0)
    QTAILS.clear()
    PFL[0] = {0: "", 1: " sc1", 2: " sc0 sc1", 3: " sc0"}[opt.get("pfl", 0)]
    a = Asm()
    def stp(i):
        if opt.get("stamps"):
            a("s_memrealtime s[96:97]"); a("s_waitcnt lgkmcnt(0)"); a(f"v_writelane_b32 v0, s96, {i}")
    def stc(i):
        if opt.get("stamps"):
            a("s_memtime s[96:97]"); a("s_waitcnt lgkmcnt(0)"); a(f"v_writelane_b32 v0, s96, {i}")
    a.label("mpnn_main_kernel")
    a("s_cmp_ge_u32 s2, 256")
    a("s_cbranch_scc1 K2_END")
    a("s_mov_b32 s70, 0")
    a.label("K2_TOP")
    a("s_load_dwordx2 s[22:23], s[0:1], 80")
    a("s_load_dwordx16 s[4:19], s[0:1], 0")
    a("s_load_dwordx2 s[20:21], s[0:1], 64")
    if opt.get("stamps"): a("s_memrealtime s[98:99]")
    a("v_lshrrev_b32 v72, 6, v0")
    a("v_and_b32 v1, 63, v0")
    a("v_readfirstlane_b32 s24, v72")
    a("v_lshlrev_b32 v24, 4, v0")
    L16 = 6
    a(f"v_lshlrev_b32 v{L16}, 4, v1")
    a("s_lshl_b32 s66, s2, 13")
    a(f"s_add_u32 s67, s66, {1 << 21}")
    a("s_and_b32 s25, s24, 3")
    a("s_lshr_b32 s26, s24, 2")
    a("s_cmp_ge_u32 s24, 8")
    a("s_cbranch_scc1 K2_HL")
    a("s_waitcnt lgkmcnt(0)")
    srd_ws(a, 40, 22, CELL_OFF, (W2F_OFF - CELL_OFF) + FRAG_BYTES)
    a("buffer_load_dwordx4 v[16:19], v24, s[40:43], s66 offen")
    a(f"buffer_load_dwordx4 v[20:23], v24, s[40:43], s67 offen{' nt' if opt.get('bnt', 1) else ''}")
    a("s_branch K2_CM")
    a.label("K2_HL")
    if opt.get("hp", 0): a("s_setprio 3")
    a("v_lshrrev_b32 v77, 4, v1")
    a("s_lshl_b32 s68, s25, 2")
    a("v_add_u32 v77, s68, v77")
    a("v_xor_b32 v27, v77, v1")
    a("v_and_b32 v27, 15, v27")
    a("v_lshlrev_b32 v27, 4, v27")
    a("v_lshl_add_u32 v26, v77, 16, v27")
    for win in (1, 2):
        a(f"v_subrev_u32 v78, {12*win}, v77")
        a("v_and_b32 v78, 15, v78")
        a(f"v_add_u32 v78, {12*win}, v78")
        a(f"v_lshl_add_u32 v{27+win}, v78, 16, v27")
    a("s_lshl_b32 s68, s2, 8")
    a("s_lshl_b32 s69, s25, 10")
    a(f"s_add_u32 m0, s69, {EIM + 4096}")
    a("s_waitcnt lgkmcnt(0)")
    srd(a, 36, "s4", "s5", N * 256)
    a("buffer_load_dwordx4 v26, s[36:39], s68 offen lds")
    a(f"s_add_u32 m0, s69, {EIM + 4096 + 16384}")
    srd_ws(a, 40, 22, CELL_OFF, (W2F_OFF - CELL_OFF) + FRAG_BYTES)
    a("buffer_load_dwordx4 v28, s[36:39], s68 offen lds")
    a(f"s_add_u32 m0, s69, {EIM + 4096 + 32768}")
    a("s_lshr_b32 s66, s2, 3")
    a("buffer_load_dwordx4 v29, s[36:39], s68 offen lds")
    a(f"s_mul_i32 s66, s66, {34*128}")
    a(f"s_mul_i32 s67, s25, {9*128}")
    a("s_add_u32 s66, s66, s67")
    a(f"s_add_u32 s66, s66, {W2F_OFF - CELL_OFF}")
    a("v_min_u32 v30, 8, v1")
    a("v_lshlrev_b32 v30, 7, v30")
    a("buffer_load_dword v134, v30, s[40:43], s66 offen")
    a.label("K2_CM")
    a("s_mul_i32 s71, s26, 12")
    a("s_lshl_b32 s56, s26, 14")
    a(f"s_add_u32 s56, s56, {EIM}")
    a("s_lshl_b32 s69, s25, 10")
    a("s_add_u32 s59, s56, s69")
    a("s_lshl_b32 s66, s24, 13")
    a(f"s_add_u32 s73, s66, {W2F_OFF - CELL_OFF}")
    a("s_cmp_lt_u32 s24, 8")
    a(f"s_cselect_b32 s73, s73, {KILL:#x}")
    a("s_add_u32 s74, s73, 4096")
    a("s_lshl_b32 s72, s25, 11")
    a(f"s_add_u32 s72, s72, {WCF_OFF - CELL_OFF}")
    a(f"v_add_u32 v156, {OH}, v24")
    for i in range(4): a(f"v_mov_b32 v{144+i}, 0")
    a(f"v_mov_b32 v31, {N}")
    a(f"v_mov_b32 v152, {E}")
    a(f"v_cmp_gt_u32 vcc, {EOFF - ZERO}, v24")
    a("v_mov_b32 v153, v152")
    a("v_mov_b32 v154, v152")
    a("v_cndmask_b32 v148, v152, v31, vcc")
    a("v_mov_b32 v155, v152")
    for i in range(1, 4): a(f"v_mov_b32 v{148+i}, v148")
    a(f"v_cmpx_le_u32 vcc, {IDX - ZERO}, v24")
    a(f"ds_write_b128 v156, v[148:151] offset:{4*12288}")
    a("s_mov_b64 exec, -1")
    a("s_cmp_lg_u32 s24, 0")
    a("s_cbranch_scc1 K2_I0")
    for i in range(3): a(f"ds_write_b128 v156, v[144:147] offset:{4*12288 + i*1024}")
    a("s_mov_b64 exec, 0xffff")
    a(f"ds_write_b128 v156, v[144:147] offset:{4*12288 + 3072}")
    a("s_mov_b64 exec, -1")
    a.label("K2_I0")
    for i in range(4): a(f"ds_write_b128 v156, v[144:147] offset:{i*12288}")
    a("s_cmp_lt_u32 s24, 4")
    a("s_cbranch_scc0 K2_I1")
    a(f"ds_write_b128 v156, v[152:155] offset:{5*12288}")
    a.label("K2_I1")
    a("v_lshrrev_b32 v72, 2, v0")
    if opt.get("stamps"):
        a("v_mov_b32 v0, 0"); a("v_writelane_b32 v0, s98, 0")
        a("s_getreg_b32 s96, hwreg(HW_REG_XCC_ID)"); a("v_writelane_b32 v0, s96, 15")
    a(f"v_mov_b32 v111, {FLAG}")
    a("v_mov_b32 v114, 1")
    a("s_lshl_b32 s57, s24, 12")
    a("s_lshl_b32 s58, s25, 7")
    if opt.get("hs", 0):
        a("s_cmp_ge_u32 s24, 8")
        a("s_cbranch_scc1 K2_HQ")
    a.label("K2_SET")
    a("s_mov_b32 s84, s6")
    a("s_and_b32 s85, s7, 0xffff")
    a(f"s_or_b32 s85, s85, {32 << 16:#x}")
    a("s_mov_b32 s87, 0x00020000")
    a(f"s_add_u32 s32, s22, {P_OFF - 3072}")
    a("s_addc_u32 s33, s23, 0")
    a("s_and_b32 s33, s33, 0xffff")
    a(f"s_or_b32 s33, s33, {512 << 16:#x}")
    a(f"s_mov_b32 s34, {N+1}")
    a("s_mov_b32 s35, 0x00020000")
    srd(a, 44, "s20", "s21", N * 256)
    H_, I_, T0, T1 = 77, 78, 105, 106
    a(f"v_lshrrev_b32 v{H_}, 5, v1")
    a(f"v_and_b32 v{I_}, 31, v1")
    a(f"v_bfe_u32 v{T0}, v1, 3, 2")
    a(f"v_bfe_u32 v{T1}, v1, 1, 1")
    a(f"v_lshl_or_b32 v{T0}, v{T0}, 1, v{T1}")
    a(f"v_and_b32 v{T1}, 1, v1")
    a(f"v_lshl_or_b32 v{T0}, v{T1}, 3, v{T0}")
    a(f"v_and_b32 v{T1}, 4, v1")
    a(f"v_lshl_or_b32 v{T0}, v{T1}, 2, v{T0}")
    a("s_mov_b32 m0, s57")
    for k in range(4): a(f"s_add_u32 s{28+k}, s58, {(3-k)*1024}")
    a(f"v_and_b32 v{T1}, 3, v1")
    a(f"v_lshl_add_u32 v{aAP}, v{T1}, 3, s57")
    a(f"v_and_b32 v{T1}, 16, v1")
    a(f"v_lshl_add_u32 v{aAP}, v{T1}, 1, v{aAP}")
    a(f"v_lshl_add_u32 v{aAP}, v{H_}, 11, v{aAP}")
    a(f"v_and_b32 v{T1}, 8, v1")
    a(f"v_mul_u32_u24 v{T1}, {(1024 + 64) // 8}, v{T1}")
    a(f"v_add_u32 v{aAP}, v{aAP}, v{T1}")
    a(f"v_not_b32 v{T1}, v1")
    a(f"v_and_b32 v{T1}, 4, v{T1}")
    a(f"v_lshl_add_u32 v{aAP}, v{T1}, 5, v{aAP}")
    a(f"v_xor_b32 v{aAP+1}, 64, v{aAP}")
    a(f"v_bfe_u32 v{T1}, v{T0}, 3, 1")
    a(f"v_xor_b32 v{T1}, v{T1}, v{H_}")
    a(f"v_lshl_add_u32 v{T1}, v{T1}, 4, s56")
    a(f"v_lshl_add_u32 v110, v{T0}, 5, v{T1}")
    a(f"s_add_u32 s52, s56, {OH - EIM}")
    a(f"v_lshl_add_u32 v{T1}, v{H_}, 4, s52")
    a(f"v_lshl_add_u32 v{aAO}, v{T0}, 5, v{T1}")
    a("s_lshl_b32 s66, s26, 11")
    a(f"s_add_u32 s67, s66, {EOFF}")
    a(f"s_add_u32 s66, s66, {IDX}")
    a(f"v_and_b32 v{T1}, 62, v1")
    a(f"v_lshl_add_u32 v{aEI}, v{T1}, 1, s67")
    a(f"v_lshrrev_b32 v{T1}, 3, v1")
    a(f"v_lshl_add_u32 v{aIDX}, v{T1}, 2, s66")
    a(f"v_add_u32 v4, s58, v{aEI}")
    SOFF = 104
    a(f"v_and_b32 v{T1}, 8, v1")
    a(f"v_lshl_add_u32 v{SOFF}, v{T1}, 4, s52")
    a(f"v_lshl_add_u32 v{SOFF}, v{H_}, 9, v{SOFF}")
    a(f"v_and_b32 v{T1}, 4, v1")
    a(f"v_lshl_add_u32 v{SOFF}, v{T1}, 6, v{SOFF}")
    a(f"v_and_b32 v{T1}, 3, v1")
    a(f"v_lshl_add_u32 v{SOFF}, v{T1}, 3, v{SOFF}")
    a("s_mov_b32 s62, 0xffff\ns_mov_b32 s63, 0xffff\ns_mov_b32 s64, 0xffff0000\ns_mov_b32 s65, 0xffff0000")
    a(f"v_mov_b32 v{T0}, {ZERO}")
    a(f"v_cndmask_b32 v{aS1}, v{T0}, v{SOFF}, s[62:63]")
    a(f"v_cndmask_b32 v{aS2}, v{T0}, v{SOFF}, s[64:65]")
    a(f"v_lshrrev_b32 v{T1}, 4, v1")
    a(f"v_xor_b32 v{T1}, v{T1}, v1")
    a(f"v_mov_b32 v{EI}, -1")
    a(f"v_and_b32 v{EI+1}, 1, v{T1}")
    a(f"v_lshlrev_b32 v{EI+1}, 4, v{EI+1}")
    a(f"v_and_b32 v{T1}, 7, v1")
    a(f"v_lshlrev_b32 v{IX[0]+1}, 4, v{T1}")
    a(f"v_xor_b32 v{IX[1]+1}, 64, v{IX[0]+1}")
    a(f"v_mov_b32 v{IX[2]+1}, v{IX[0]+1}")
    a(f"v_mov_b32 v{IX[3]+1}, v{IX[1]+1}")
    a("v_mov_b32 v75, 0x3f80")
    a("s_lshl_b32 s66, s25, 11")
    a("s_add_u32 s67, s56, s66")
    a(f"v_add_u32 v115, s67, v{L16}")
    a("s_mov_b32 s55, 0")
    a("s_mov_b32 s60, 0")
    a("s_mov_b32 s61, s25")
    a("s_cmp_ge_u32 s24, 8")
    a("s_cbranch_scc1 K2_HP" if opt.get("hs", 0) else "s_cbranch_scc1 K2_HQ")
    RA, RK = 32, 40
    SB, TO, TW = 48, 56, 64
    TS, TE, TF, TP = 116, 124, 88, 96
    DYN = (1 << 13) | (1 << 25) | (1 << 26) | (1 << 39)
    a(f"s_mov_b32 s66, {CHUNK}")
    a("v_mul_u32_u24 v72, s66, v72")
    a(f"s_mov_b32 s78, {CNT}")
    a("v_lshl_add_u32 v76, v1, 2, s78")
    a(f"s_mov_b32 s79, {IDX}")
    a(f"s_mov_b32 s80, {OH}")
    a("s_mov_b32 s81, 0")
    a(f"s_mov_b32 s68, {DYN & 0xffffffff:#x}")
    a(f"s_mov_b32 s69, {DYN >> 32:#x}")
    for k in range(8): a(f"v_mov_b32 v{RK+k}, -1")
    if opt.get("cls", 0) >= 4:
        mp = {4: [0,1,2,2,3,3,3,4,4,4], 5: [0,1,1,2,2,3,3,4,4,4], 6: [0,1,2,3,3,4,4,4,4,4]}[opt["cls"]]
        a(f"s_mov_b32 s75, {sum(c << (3*i) for i, c in enumerate(mp)):#x}")
    if opt.get("cls") in (1, 3):
        a("v_mov_b32 v77, s26")
        a("v_sub_u32 v78, 3, v77")
    if opt.get("cls") == 2:
        a("s_lshr_b32 s66, s24, 1")
        a("v_mov_b32 v77, s66")
    a("v_mov_b32 v73, -24")
    QM = opt.get("qm", 1)
    U = 4 if QM else 8
    a(f"v_mov_b32 v74, {11*U}")
    a("v_cndmask_b32 v73, 0, v73, s[68:69]")
    a("s_cmp_lg_u32 s24, 0")
    a("s_cbranch_scc1 K2_NCI")
    a(f"v_lshlrev_b32 v105, {18 if QM else 19}, v1")
    a(f"s_mov_b64 exec, {1 << 12:#x}")
    a(f"v_add_u32 v105, {(512 - 12*U) << 16:#x}, v105")
    a(f"s_mov_b64 exec, {(1 << 25) - (1 << 14):#x}")
    a(f"v_add_u32 v105, {(512 - 13*U) << 16:#x}, v105")
    a("s_mov_b32 exec_lo, 0xf8000000")
    a("s_mov_b32 exec_hi, 0x7f")
    a(f"v_add_u32 v105, {(1024 - 27*U) << 16:#x}, v105")
    a("s_mov_b64 exec, s[68:69]")
    a("v_mov_b32 v105, 24")
    a("s_mov_b32 exec_lo, -1")
    a("s_mov_b32 exec_hi, 0xff")
    for c in range(5): a(f"ds_write_b32 v76, v105 offset:{c*512}")
    a("s_mov_b64 exec, -1")
    a.label("K2_NCI")
    a(f"buffer_load_dwordx4 {q4(BC[0])}, v{L16}, s[40:43], s72 offen")
    a(f"buffer_load_dwordx4 {q4(BC[1])}, v{L16}, s[40:43], s72 offen offset:1024")
    a("s_waitcnt lgkmcnt(0)")
    stp(1)
    a("s_barrier")
    a("s_waitcnt vmcnt(3)")
    stp(2)
    NOCL = opt.get("nocl", 0)
    def count(ks):
        for k in ks:
            a(f"v_and_b32 v{RA+k}, 63, v{16+k}")
            CLS = opt.get("cls", 0)
            if CLS == 1:
                a(f"v_cmp_lt_u32 vcc, {5000 << 18:#x}, v{16+k}")
                a("s_nop 1")
                a(f"v_cndmask_b32 v{TF+k}, v77, v78, vcc")
            elif CLS >= 4:
                a(f"v_lshrrev_b32 v{TF+k}, 28, v{16+k}")
                a(f"v_lshl_add_u32 v{TF+k}, v{TF+k}, 1, v{TF+k}")
                a(f"v_bfe_u32 v{TF+k}, s75, v{TF+k}, 3")
            elif CLS == 2: a(f"v_mov_b32 v{TF+k}, v77")
            elif CLS == 3:
                a(f"v_lshrrev_b32 v{TF+k}, 30, v{16+k}")
                a(f"v_cmp_eq_u32 vcc, 0, v{TF+k}")
                a(f"v_add_u32 v{TF+k}, 1, v{TF+k}")
                a("s_nop 0")
                a(f"v_cndmask_b32 v{TF+k}, v{TF+k}, v77, vcc")
            else: a(f"v_lshrrev_b32 v{TF+k}, 29, v{16+k}" if not NOCL else f"v_mov_b32 v{TF+k}, 0")
            a(f"v_lshl_add_u32 v{RA+k}, v{RA+k}, 2, s78")
            a(f"v_lshl_add_u32 v{RA+k}, v{TF+k}, 9, v{RA+k}")
        for k in ks:
            a(f"v_cmpx_gt_u32 vcc, -2, v{16+k}")
            a(f"ds_add_rtn_u32 v{RK+k}, v{RA+k}, v114")
        a("s_mov_b64 exec, -1")
    def decode(ks):
        for k in ks:
            a(f"v_lshrrev_b32 v{TS+k}, {18 + opt.get('pshift', 0)}, v{16+k}")
            a(f"v_bfe_u32 v{TE+k}, v{16+k}, 6, 12")
            a(f"v_add_u32 v{TE+k}, v{TE+k}, v72")
            if opt.get("eshift"): a(f"v_lshrrev_b32 v{TE+k}, {opt['eshift']}, v{TE+k}")
            a(f"v_and_b32 v{TO+k}, 15, v{16+k}")
            a(f"v_lshl_add_u32 v{TO+k}, v{TO+k}, 1, s80")
            a(f"v_mad_i32_i24 v{TF+k}, v{TF+k}, -7, 28")
    SD = "dst_sel:DWORD dst_unused:UNUSED_PAD"
    def pos_ops(k):
        return [f"v_bfe_u32 v{TP+k}, v{TP+k}, v{TF+k}, 7",
                f"v_add_u32_sdwa v{TP+k}, v{TP+k}, v{RK+k} {SD} src0_sel:DWORD src1_sel:WORD_0",
                f"v_add_u32_sdwa v{TF+k}, v{TP+k}, v{RK+k} {SD} src0_sel:DWORD src1_sel:WORD_1",
                f"v_lshrrev_b32 v{TW+k}, {2 if QM else 3}, v{TP+k}",
                f"v_mad_u32_u24 v{TF+k}, v{TW+k}, v74, v{TF+k}"]
    def scatter(ks):
        for k in ks:
            a(f"v_add_u32 v{SB+k}, v{SB+k}, v{TP+k}")
        for k in ks:
            a(f"v_cmp_gt_u32 vcc, s76, v{SB+k}")
            a(f"v_cmp_gt_u32 s[68:69], s77, v{SB+k}")
            a(f"v_cmp_gt_u32 s[82:83], 24, v{TP+k}")
            a(f"s_nop 0")
            a(f"v_cndmask_b32 v{TW+k}, v107, v106, s[68:69]")
            a(f"v_cndmask_b32 v{TW+k}, v{TW+k}, v105, vcc")
            a(f"v_add_u32 v{SB+k}, v{SB+k}, v{TW+k}")
            a(f"v_cndmask_b32 v{SB+k}, v{SB+k}, v{TF+k}, s[82:83]")
            a(f"v_lshl_add_u32 v{TO+k}, v{SB+k}, 5, v{TO+k}")
            a(f"v_lshl_add_u32 v{SB+k}, v{SB+k}, 2, s79")
        for k in ks:
            a(f"v_cmpx_gt_u32 vcc, -2, v{16+k}")
            a(f"ds_write2st64_b32 v{SB+k}, v{TS+k}, v{TE+k} offset0:0 offset1:{(EOFF-IDX)//256}")
            a(f"ds_write_b16 v{TO+k}, v75")
        a("s_mov_b64 exec, -1")
    def arrive(off):
        a("s_mov_b64 exec, 1")
        a(f"ds_add_u32 v111, v114 offset:{off}")
        a("s_mov_b64 exec, -1")
    a("v_mov_b32_dpp v25, v19 quad_perm:[3,3,3,3] row_mask:0xf bank_mask:0xf")
    count(range(4))
    a("v_cmp_ne_u32 vcc, -1, v25")
    a("s_nop 1")
    a("s_cbranch_vccz K2_C1")
    a("s_waitcnt vmcnt(2)")
    for k in range(4): a(f"v_cndmask_b32 v{20+k}, -1, v{20+k}, vcc")
    a("s_mov_b32 s81, 1")
    count([4])
    a("v_cmp_ne_u32 vcc, -1, v21")
    decode([4])
    a("s_cbranch_vccnz K2_CX")
    a.label("K2_C1")
    arrive(4)
    decode(range(4))
    a.label("K2_SB1")
    a("ds_read_b64 v[108:109], v111")
    for c in range(5): a(f"ds_read_u16 v{26+c}, v76 offset:{c*512}")
    a("s_waitcnt lgkmcnt(0)")
    a("v_readfirstlane_b32 s66, v109")
    a("v_add_u32 v26, v26, v73")
    a("s_cmp_lt_u32 s66, 8")
    a("s_cbranch_scc1 K2_SB1")
    stp(3)
    a("v_add3_u32 v27, v26, v27, v73")
    a("v_add3_u32 v28, v27, v28, v73")
    a("v_lshl_or_b32 v31, v26, 7, v27")
    a("v_add3_u32 v29, v28, v29, v73")
    a("v_lshl_or_b32 v31, v31, 7, v28")
    a("v_readfirstlane_b32 s82, v108")
    a("v_lshl_or_b32 v31, v31, 7, v29")
    for k in range(5): a(f"ds_bpermute_b32 v{TP+k}, v{RA+k}, v31")
    a("v_add_u32 v30, v29, v30")
    a("v_cmp_lt_u32 vcc, 0x7f, v29")
    a("v_max_u32 v105, 24, v30")
    a("v_add_u32 v105, -21, v105")
    a("v_and_b32 v105, -4, v105")
    a("s_or_b32 s82, s82, s70")
    a("s_or_b32 s82, s82, vcc_lo")
    a("v_add_u32_dpp v107, v105, v105 row_shr:1 row_mask:0xf bank_mask:0xf bound_ctrl:0")
    a("s_or_b32 s82, s82, vcc_hi")
    a("v_add_u32 v30, v30, v73")
    a("v_add_u32_dpp v107, v107, v107 row_shr:2 row_mask:0xf bank_mask:0xf bound_ctrl:0")
    a("s_cmp_lg_u32 s82, 0")
    a("s_cbranch_scc1 K2_BAD")
    a("v_add_u32_dpp v107, v107, v107 row_shr:4 row_mask:0xf bank_mask:0xf bound_ctrl:0")
    a("s_waitcnt lgkmcnt(0)")
    def stat(ks):
        for k in ks:
            a("\n".join(pos_ops(k)))
            a(f"v_lshl_add_u32 v{TW+k}, v{TF+k}, 5, v{TO+k}")
            a(f"v_lshl_add_u32 v{TF+k}, v{TF+k}, 2, s79")
            a(f"v_cmpx_gt_u32 vcc, 24, v{TP+k}")
            a(f"ds_write2st64_b32 v{TF+k}, v{TS+k}, v{TE+k} offset0:0 offset1:{(EOFF-IDX)//256}")
            a(f"ds_write_b16 v{TW+k}, v75")
            a("s_mov_b64 exec, -1")
    def late(ks):
        for k in ks:
            a(f"v_add_u32 v{SB+k}, v{SB+k}, v{TP+k}")
            a(f"v_cmp_gt_u32 vcc, s76, v{SB+k}")
            a(f"v_cmp_gt_u32 s[68:69], s77, v{SB+k}")
            a(f"v_cmpx_le_u32 s[82:83], 24, v{TP+k}")
            a(f"v_cmpx_gt_u32 s[82:83], -2, v{16+k}")
            a(f"v_cndmask_b32 v{TW+k}, v107, v106, s[68:69]")
            a(f"v_cndmask_b32 v{TW+k}, v{TW+k}, v105, vcc")
            a(f"v_add_u32 v{SB+k}, v{SB+k}, v{TW+k}")
            a(f"v_lshl_add_u32 v{TO+k}, v{SB+k}, 5, v{TO+k}")
            a(f"v_lshl_add_u32 v{SB+k}, v{SB+k}, 2, s79")
            a(f"ds_write2st64_b32 v{SB+k}, v{TS+k}, v{TE+k} offset0:0 offset1:{(EOFF-IDX)//256}")
            a(f"ds_write_b16 v{TO+k}, v75")
            a("s_mov_b64 exec, -1")
    stat(range(4))
    a("s_cmp_eq_u32 s81, 0")
    a("s_cbranch_scc1 K2_S0")
    stat([4])
    a("s_cmp_lg_u32 s81, 1")
    a("s_cbranch_scc1 K2_SY")
    a.label("K2_S0")
    arrive(8)
    nlw = [0]
    def lwait(off, n, vt=109, va=111, extra=None, sleep=1):
        nlw[0] += 1; t = nlw[0]
        a.label(f"LW{t}")
        a(f"ds_read_b32 v{vt}, v{va} offset:{off}")
        if extra: extra()
        a("s_waitcnt lgkmcnt(0)")
        a(f"v_readfirstlane_b32 s66, v{vt}")
        a("s_nop 0")
        a(f"s_cmp_ge_u32 s66, {n}")
        a(f"s_cbranch_scc1 LX{t}")
        if sleep: a(f"s_sleep {sleep}")
        a(f"s_branch LW{t}")
        a.label(f"LX{t}")
    def g0_addr(): pass
    def first_reads():
        for k in range(4): a(f"ds_read_b32 v{IX[k]}, v{aIDX} offset:{k*32}")
        a(f"ds_read_b32 v{EI}, v4")
    nfl = [0]
    LATE = 0
    EA = opt.get("ea", 0)
    def first_loads():
        nfl[0] += 1
        a("s_cmp_lg_u32 s25, 0")
        a(f"s_cbranch_scc1 K2_FL{nfl[0]}")
        a("\n".join(e_dma()))
        a.label(f"K2_FL{nfl[0]}")
        a("\n".join(p_dma()))
        if EA:
            a("s_cmp_eq_u32 s25, 0")
            a(f"s_cbranch_scc1 K2_FM{nfl[0]}")
            a("\n".join(e_dma()))
            a.label(f"K2_FM{nfl[0]}")
    def sb2(tag):
        a.label(f"K2_SB2{tag}")
        a("ds_read_b32 v109, v111 offset:8")
        first_reads()
        a("s_waitcnt lgkmcnt(0)")
        a("v_readfirstlane_b32 s66, v109")
        a("s_nop 0")
        a("s_cmp_lt_u32 s66, 8")
        a(f"s_cbranch_scc1 K2_SB2{tag}")
        stp(4)
        first_loads()
    a(f"ds_write_b32 v76, v30 offset:{DEG - CNT}")
    a("v_add_u32_dpp v107, v107, v107 row_shr:8 row_mask:0xf bank_mask:0xf bound_ctrl:0")
    a("s_mov_b32 s53, 9")
    a("s_nop 0")
    a("v_add_u32_dpp v107, v107, v107 row_bcast:15 row_mask:0xa bank_mask:0xf")
    a("s_nop 1")
    a("v_add_u32_dpp v107, v107, v107 row_bcast:31 row_mask:0xc bank_mask:0xf")
    a("v_sub_u32 v108, v107, v105")
    a("v_readlane_b32 s83, v107, 63")
    for k in range(5): a(f"ds_bpermute_b32 v{SB+k}, v{RA+k}, v108")
    R1L = opt.get("r1l", 1)
    if R1L:
        a("s_cmp_lg_u32 s26, 0")
        a("s_cbranch_scc1 K2_NE1")
    sb2("a")
    if R1L: a.label("K2_NE1")
    a("v_readlane_b32 s76, v108, 12")
    a("v_readlane_b32 s77, v108, 16")
    a("v_readlane_b32 s68, v108, 24")
    a("v_readlane_b32 s69, v108, 28")
    sal = ["s_add_u32 s88, s83, 95", "s_lshr_b32 s88, s88, 5", "s_mul_i32 s88, s88, 171", "s_lshr_b32 s88, s88, 9",
           "s_add_u32 s89, s76, 31", "s_lshr_b32 s89, s89, 5", "s_max_u32 s88, s88, s89", "s_lshr_b32 s89, s77, 5", "s_min_u32 s88, s88, s89",
           "s_lshl_b32 s88, s88, 5", "s_max_u32 s76, s88, s76",
           "s_sub_u32 s88, s83, s76", "s_add_u32 s88, s88, 63", "s_lshr_b32 s88, s88, 6",
           "s_sub_u32 s89, s68, s76", "s_add_u32 s89, s89, 31", "s_lshr_b32 s89, s89, 5", "s_max_u32 s88, s88, s89",
           "s_sub_u32 s89, s69, s76", "s_lshr_b32 s89, s89, 5", "s_min_u32 s88, s88, s89",
           "s_lshl_b32 s88, s88, 5", "s_add_u32 s88, s88, s76", "s_max_u32 s77, s88, s68",
           "s_sub_u32 s88, s83, 224", "s_max_i32 s77, s77, s88", "s_min_u32 s77, s77, s69",
           f"s_add_u32 s53, s76, {288+31}", "s_lshr_b32 s53, s53, 5",
           "s_sub_u32 s90, s77, s76", f"s_add_u32 s90, s90, {288+31}", "s_lshr_b32 s90, s90, 5",
           "s_sub_u32 s91, s83, s77", f"s_add_u32 s91, s91, {288+31}", "s_lshr_b32 s91, s91, 5",
           f"s_sub_u32 s88, {512+288-24}, s76", f"s_sub_u32 s89, {1024+288-24}, s77",
           "s_add_u32 s76, s76, 24", "s_add_u32 s77, s77, 24",
           "s_max_u32 s92, s90, s53", "s_max_u32 s92, s92, s91"]
    a("\n".join(sal))
    a("s_cmp_gt_u32 s92, 16")
    a("s_cbranch_scc1 K2_BAD")
    if opt.get("force_slow"): a("s_branch K2_BAD")
    a("v_mov_b32 v106, s91")
    a("ds_write_b32 v111, v106 offset:16")
    a("s_cmp_eq_u32 s26, 1")
    a("s_cselect_b32 s53, s90, s53")
    a(f"v_mov_b32 v105, {288-24}")
    a("s_waitcnt lgkmcnt(0)")
    a("v_mov_b32 v106, s88")
    a("v_mov_b32 v107, s89")
    late(range(4))
    a("s_cmp_eq_u32 s81, 0")
    a("s_cbranch_scc1 K2_S1")
    late([4])
    a("s_cmp_lg_u32 s81, 1")
    a("s_cbranch_scc1 K2_SX")
    a.label("K2_S1")
    arrive(40)
    if R1L:
        a("s_cmp_eq_u32 s26, 0")
        a("s_cbranch_scc1 K2_NE2")
        sb2("b")
        a.label("K2_NE2")
    a("s_branch K2_QD")
    a.label("K2_HQ")
    WA, QA, QB, XA, BIAS = 32, 16, 116, 132, 112
    a(f"v_lshrrev_b32 v{H_}, 5, v1")
    a("s_lshl_b32 s66, s25, 11")
    a(f"v_and_b32 v{T0}, 3, v1")
    a(f"v_and_b32 v{T1}, 4, v1")
    a(f"v_lshl_or_b32 v{T0}, v{T1}, 1, v{T0}")
    a(f"v_bfe_u32 v{T1}, v1, 3, 1")
    a(f"v_lshl_or_b32 v{T0}, v{T1}, 2, v{T0}")
    a(f"v_xor_b32 v{T1}, v{T0}, v{H_}")
    a(f"v_lshlrev_b32 v{T1}, 4, v{T1}")
    a(f"v_lshl_add_u32 v{XA}, v{T0}, 8, v{T1}")
    a(f"v_and_b32 v{T1}, 16, v1")
    a(f"v_lshl_add_u32 v{XA}, v{T1}, 10, v{XA}")
    a(f"v_add_u32 v{XA}, {EIM + 4096}, v{XA}")
    a(f"s_add_u32 s67, s66, {EIM + 8192}")
    a(f"v_add_u32 v107, s67, v{L16}")
    srd(a, 48, "s14", "s15", 512)
    a("v_and_b32 v108, 1, v1")
    a("v_and_b32 v109, 30, v1")
    a("v_lshl_add_u32 v108, v108, 6, v109")
    a("s_lshl_b32 s66, s25, 14")
    a(f"s_add_u32 s76, s66, {W1BF_OFF - CELL_OFF}")
    for i in range(1, 4): a(f"s_add_u32 s{76+i}, s76, {i*4096}")
    PFT = opt.get("pft", 0)
    if PFT:
        srd_ws(a, 92, 22, P_OFF, N * 512)
        a("s_lshr_b32 s80, s2, 3")
        a(f"s_mul_i32 s80, s80, {PFT*256*128}")
        a("s_lshl_b32 s81, s25, 13")
        a("s_add_u32 s80, s80, s81")
        a("v_lshlrev_b32 v109, 7, v1")
    a(f"s_mov_b32 s68, {NEGLOG2E:#x}")
    a(f"s_mov_b32 s69, {NEGLOG2E:#x}")
    a(f"buffer_load_ushort v{BIAS}, v108, s[48:51], s58 offen")
    a(f"buffer_load_ushort v{BIAS+1}, v108, s[48:51], s58 offen offset:32")
    a(f"buffer_load_dwordx4 {q4(BC[0])}, v{L16}, s[40:43], s72 offen")
    a(f"buffer_load_dwordx4 {q4(BC[1])}, v{L16}, s[40:43], s72 offen offset:1024")
    a("s_mov_b32 s53, 9")
    def wr(i): return WA + 4*i if i not in (12, 13) else 96 + 4*(i - 12)
    for i in range(16):
        if i == opt.get("hw", 0):
            a("s_waitcnt lgkmcnt(0)")
            stp(1)
            a("s_barrier")
        a(f"buffer_load_dwordx4 {q4(wr(i))}, v{L16}, s[40:43], s{76 + (i >> 2)} offen offset:{(i & 3)*1024}")
        if i == 7:
            a("s_waitcnt vmcnt(12)")
            arrive(12)
    for i in range(PFT):
        a("buffer_load_dword v135, v109, s[92:95], s80 offen")
        a(f"s_add_u32 s80, s80, {256*128}")
    stp(2)
    a.label("K2_HS")
    a("ds_read_b32 v108, v111 offset:12")
    a("s_waitcnt lgkmcnt(0)")
    a("v_readfirstlane_b32 s66, v108")
    a("s_nop 0")
    a("s_cmp_lt_u32 s66, 4")
    a("s_cbranch_scc1 K2_HS")
    def xread(step):
        sidx = step & 7; st_ = step % 3
        if sidx: a(f"v_xor_b32 v{XA+1}, {sidx << 5}, v{XA}")
        r = XA + 1 if sidx else XA
        a(f"ds_read_b128 {q4(WP+8*st_)}, v{r}")
        a(f"ds_read_b128 {q4(WP+8*st_+4)}, v{r} offset:32768")
    xread(0); xread(1); xread(2)
    a(f"s_waitcnt vmcnt({16 + PFT})")
    a(f"v_lshlrev_b32 v{BIAS}, 16, v{BIAS}")
    a(f"v_lshlrev_b32 v{BIAS+1}, 16, v{BIAS+1}")
    a(f"v_pk_mul_f32 {pr(BIAS)}, {pr(BIAS)}, s[68:69]")
    HM = opt.get("hm", 0)
    for X in range(2):
        for sidx in range(8):
            step = 8*X + sidx; st_ = step % 3
            nl = 2*min(2, 15-step) + (3 if (X == 1 and sidx < 3) else 0)
            if X == 0 or not HM: a(f"s_waitcnt vmcnt({15 - step + PFT}) lgkmcnt({min(nl, 15)})")
            elif sidx >= 3: a(f"s_waitcnt lgkmcnt({nl})")
            a(f"v_mfma_f32_32x32x16_bf16 {x16(QA)}, {q4(WP+8*st_)}, {q4(wr(step))}, {'0' if sidx == 0 else x16(QA)}")
            a(f"v_mfma_f32_32x32x16_bf16 {x16(QB)}, {q4(WP+8*st_+4)}, {q4(wr(step))}, {'0' if sidx == 0 else x16(QB)}")
            if step + 3 < 16: xread(step + 3)
        a("s_nop 10")
        for wi, base in enumerate((QA, QA + 8, QB)):
            for k in range(4):
                a(f"v_pk_fma_f32 {pr(base+2*k)}, {pr(base+2*k)}, s[68:69], {pr(BIAS)} op_sel:[0,0,{X}] op_sel_hi:[1,1,{X}]")
            for k in range(4):
                a(f"v_cvt_pk_bf16_f32 v{WA+4*wi+k+12*X}, v{base+2*k}, v{base+2*k+1}")
            a(f"ds_write_b128 v107, {q4(WA+4*wi+12*X)} offset:{wi*16384 + X*1024}")
        if X == 0 and HM:
            a("s_waitcnt vmcnt(0)")
            sb2("h")
    arrive(36)
    stp(3)
    if not HM: sb2("h")
    a.label("K2_QD")
    a("v_mov_b32 v167, v111")
    a(f"v_mov_b32 v166, v4")
    a(f"v_mov_b32 v{aAE}, v110")
    a(f"v_mov_b32 v{MG}, -1")
    for k in range(4): a(f"ds_read_b32 v{IX[k]}, v{aIDX} offset:{128+k*32}")
    a(f"ds_read_b128 {q4(AO)}, v{aAO}")
    def bq_reads():
        a(f"ds_read_b128 {q4(BQ[0])}, v115 offset:8192")
        a(f"ds_read_b128 {q4(BQ[1])}, v115 offset:9216")
    stp(5)
    for i in range(16): a(f"v_mov_b32 v{ACC+i}, 0")
    a(f"v_mov_b32 v{CHK}, 0\nv_mov_b32 v{CHK+1}, 0")
    T3, T2, T1_ = opt.get("t3", 6), opt.get("t2", 3), opt.get("t1", 1)
    if OCT[0]:
        a(f"v_mov_b32 v{HQ+1}, 0")
    def flag_wait(tag, off):
        a.label(f"K2_W{tag}")
        a(f"ds_read_b32 v{FV}, v{aEI} offset:{off}")
        a("s_waitcnt lgkmcnt(0)")
        a(f"v_readfirstlane_b32 s66, v{FV}")
        a("s_nop 0")
        a("s_cmp_eq_u32 s66, -1")
        a(f"s_cbranch_scc1 K2_X{tag}")
        a("s_sleep 1")
        a(f"s_branch K2_W{tag}")
        a.label(f"K2_X{tag}")
    if LATE:
        a("s_max_i32 s90, s90, 1")
        a("s_min_u32 s90, s90, s53")
        a("s_min_u32 s67, s53, 2")
        a("s_cmp_ge_u32 s25, s67")
        a("s_waitcnt vmcnt(0)")
        a("s_cbranch_scc1 K2_NF")
        a(f"ds_write_b32 v166, v{MG}")
        a.label("K2_NF")
        for m in range(4): a(f"ds_read_b128 {q4(AP[m])}, v{aAP+m}")
        a("s_waitcnt lgkmcnt(0)")
        a("\n".join(p_dma()))
        a("s_cmp_lt_u32 s25, 2")
        a("s_cbranch_scc1 K2_F2")
        a("\n".join(e_dma()))
        a.label("K2_F2")
        for i in range(4): a(f"v_mov_b32 v{HQ+i}, 0")
        a("s_cmp_eq_u32 s53, 0")
        a("s_cbranch_scc1 K2_EXIT")
        flag_wait("A", 0)
        a(f"ds_read_b128 {q4(AE)}, v{aAE}")
        stp(6)
        stc(12)
        if opt.get("prio", 1): a("s_setprio 3")
        a("s_sub_u32 s68, 0, s25")
        a("s_and_b32 s68, s68, 3")
        a("s_lshl_b32 s67, s68, 7")
        a("s_lshl_b32 s69, s68, 10")
        a(f"v_subrev_u32 v{aAO}, s69, v{aAO}")
        a(f"v_subrev_u32 v{aAE}, s69, v{aAE}")
        a(f"v_subrev_u32 v{aIDX}, s67, v{aIDX}")
        a(f"v_subrev_u32 v{aEI}, s67, v{aEI}")
        a("s_mov_b64 exec, s[62:63]")
        a(f"v_subrev_u32 v{aS1}, s69, v{aS1}")
        a("s_mov_b64 exec, s[64:65]")
        a(f"v_subrev_u32 v{aS2}, s69, v{aS2}")
        a("s_mov_b64 exec, -1")
        a("s_waitcnt lgkmcnt(0)")
        a("\n".join(mf_tile(0)))
        a("s_nop 8")
        a("s_cmp_eq_u32 s68, 1")
        a("s_cbranch_scc1 K2_U1")
        a("s_cmp_eq_u32 s68, 2")
        a("s_cbranch_scc1 K2_U2")
        a("s_cmp_eq_u32 s68, 3")
        a("s_cbranch_scc1 K2_U3")
    else:
        a("s_cmp_lg_u32 s25, 0")
        a(f"s_waitcnt vmcnt({1 if EA else 0})")
        a("s_cbranch_scc1 K2_NF")
        a("s_waitcnt vmcnt(0)")
        a(f"ds_write_b32 v166, v{MG}")
        a(f"ds_read_b32 v{EI}, v{aEI} offset:512")
        a.label("K2_NF")
        a("\n".join(p_reads()))
        a("s_waitcnt lgkmcnt(0)")
        a("\n".join(p_dma()))
        a("\n".join(p_shift(0) + p_shift(1)))
        a("s_sub_u32 s67, s25, 1")
        if not EA:
            a("s_cmp_ge_u32 s67, 2")
            a("s_cbranch_scc1 K2_F2")
            a("\n".join(e_dma()))
        a.label("K2_F2")
        lwait(36, 4, vt=FV, va=167, extra=bq_reads)
        def flag_wait(tag, off):
            a.label(f"K2_W{tag}")
            a(f"ds_read_b32 v{FV}, v{aEI} offset:{off}")
            a("s_waitcnt lgkmcnt(0)")
            a(f"v_readfirstlane_b32 s66, v{FV}")
            a("s_nop 0")
            a("s_cmp_eq_u32 s66, -1")
            a(f"s_cbranch_scc1 K2_X{tag}")
            a("s_sleep 1")
            a(f"s_branch K2_W{tag}")
            a.label(f"K2_X{tag}")
        flag_wait("A", 0)
        a(f"ds_read_b128 {q4(AE)}, v{aAE}")
        stp(6)
        stc(12)
        if opt.get("prio", 1): a("s_setprio 3")
        a("s_waitcnt lgkmcnt(0)")
        a("\n".join(mf_tile(0)))
        a("s_nop 10")
        ex0 = {1: [f"ds_read_b32 v{IX[k]}, v{aIDX} offset:{256+k*32}" for k in range(4)]}
        ex1 = {1: [f"ds_read_b64_tr_b16 {pr(S)}, v{aS1}", f"ds_read_b64_tr_b16 {pr(S+2)}, v{aS2}", f"ds_read_b128 {q4(AO)}, v{aAO} offset:1024"]}
        a("\n".join(tile(0, mf_tile(1), ex0, [], [], "P0") + tile(1, [], ex1, [], ["s_waitcnt lgkmcnt(0)"], "P1")))
        a("s_mov_b32 s55, 1")
        lwait(40, 8, vt=FV, va=167, extra=lambda: a("ds_read_b32 v5, v167 offset:16"))
        a("v_readfirstlane_b32 s66, v5")
        a("s_cmp_eq_u32 s26, 2")
        a("s_cselect_b32 s53, s66, s53")
        a("s_cmp_eq_u32 s53, -1")
        a("s_cbranch_scc1 K2_SLOW")
        a("s_cmp_eq_u32 s26, 2")
        a(f"s_cselect_b32 s94, {opt.get('r2lag', 0)}, 0")
        a("s_sub_u32 s94, s53, s94")
        a(f"s_sub_u32 s90, s94, {T3}")
        a("s_max_i32 s90, s90, 2")
        a("s_mov_b32 s91, 0")
        a("s_sub_u32 s93, s53, 2")
        a(f"s_cmp_ge_u32 s67, {3 if EA else 2}")
        a("s_waitcnt vmcnt(0)")
        a("s_cbranch_scc1 K2_NF2")
        a(f"ds_write_b32 v166, v{MG}")
        a.label("K2_NF2")
        a("\n".join(p_reads()))
        a("s_waitcnt lgkmcnt(0)")
        a("\n".join(p_dma()))
        a("\n".join(p_shift(0) + p_shift(1)))
        a(f"s_cmp_lt_u32 s67, {3 if EA else 2}")
        a("s_cbranch_scc1 K2_F3")
        a("\n".join(e_dma()))
        a.label("K2_F3")
        flag_wait("B", 128)
        a(f"ds_read_b128 {q4(AE)}, v{aAE} offset:1024")
        a("s_sub_u32 s68, 1, s25")
        a("s_and_b32 s68, s68, 3")
        a("s_sub_u32 s69, 1, s68")
        a("s_lshl_b32 s67, s69, 7")
        a("s_lshl_b32 s69, s69, 10")
        a(f"v_add_u32 v{aAO}, s69, v{aAO}")
        a(f"v_add_u32 v{aAE}, s69, v{aAE}")
        a(f"v_add_u32 v{aIDX}, s67, v{aIDX}")
        a(f"v_add_u32 v{aEI}, s67, v{aEI}")
        a("s_mov_b64 exec, s[62:63]")
        a(f"v_add_u32 v{aS1}, s69, v{aS1}")
        a("s_mov_b64 exec, s[64:65]")
        a(f"v_add_u32 v{aS2}, s69, v{aS2}")
        a("s_mov_b64 exec, -1")
        a("s_waitcnt lgkmcnt(0)")
        a("\n".join(mf_tile(0)))
        a("s_nop 8")
        a("s_cmp_eq_u32 s68, 1")
        a("s_cbranch_scc1 K2_U1")
        a("s_cmp_eq_u32 s68, 2")
        a("s_cbranch_scc1 K2_U2")
        a("s_cmp_eq_u32 s68, 3")
        a("s_cbranch_scc1 K2_U3")
    EFL[0] = {0: "", 1: " nt", 2: " sc1"}[opt.get("efl", 0)]
    WPOS = opt.get("wpos", 5)
    MP0 = {0: (0, 3, 6), 1: (0, 4, 8), 2: (2, 6, 10)}[opt.get("mp0", 0)]
    a(".p2align 6")
    for _ in range(opt.get("shift", 0)): a("s_nop 0")
    loop_start = len(a.lines)
    for u in range(4):
        a.label(f"K2_U{u}")
        if LATE:
            upd = []
            if u == 3:
                upd = [f"v_add_u32 v{aAO}, 4096, v{aAO}", f"v_add_u32 v{aAE}, 4096, v{aAE}", f"v_add_u32 v{aIDX}, 512, v{aIDX}", f"v_add_u32 v{aEI}, 512, v{aEI}",
                       "s_mov_b64 exec, s[62:63]", f"v_add_u32 v{aS1}, 4096, v{aS1}", "s_mov_b64 exec, s[64:65]", f"v_add_u32 v{aS2}, 4096, v{aS2}", "s_mov_b64 exec, -1"]
            mid0 = [f"ds_read_b64_tr_b16 {pr(S)}, v{aS1} offset:{u*1024}", f"ds_read_b64_tr_b16 {pr(S+2)}, v{aS2} offset:{u*1024}",
                    f"ds_read_b128 {q4(AO)}, v{aAO} offset:{(u+1)*1024}"]
            t0 = tile(0, mf_tile(1) + [SEGSUM], {}, mid0, [])
            ex1 = {}
            ex1[1] = [f"ds_read_b32 v{FV}, v{aEI} offset:{(u+1)*128}"] + [f"ds_read_b32 v{IX[k]}, v{aIDX} offset:{(u+2)*128+k*32}" for k in range(4)]
            if u == 0: ex1[1] += [f"ds_read_b32 v{EI}, v{aEI} offset:512"]
            ex1[12] = ["s_waitcnt lgkmcnt(0)", f"v_readfirstlane_b32 s66, v{FV}"]
            mid = ["s_cmp_eq_u32 s66, -1", f"s_waitcnt vmcnt({1 if u == 1 else 0})"]
            mid += [f"ds_read_b128 {q4(AP[m])}, v{aAP+m}" for m in range(4)]
            mid += [f"s_cbranch_scc0 K2_FW{u}", f"K2_FR{u}:"]
            mid += [f"ds_read_b128 {q4(AE)}, v{aAE} offset:{(u+1)*1024}"]
            if opt.get("gstamps"): mid += ["s_memrealtime s[96:97]", "s_add_u32 m0, s55, 16"]
            t1 = tile(1, [], ex1, mid, [])
            mf = mf_tile(0)
            post = ["s_add_u32 s66, s55, 2", "s_cmp_ge_u32 s66, s53", "s_waitcnt lgkmcnt(0)"]
            if opt.get("gstamps"): post += ["v_writelane_b32 v0, s96, m0"]
            post += [f"s_cbranch_scc1 K2_ND{u}"]
            if u == 2: post += [f"ds_write_b32 v{aEI}, v{MG} offset:512"]
            for k in range(4):
                post += [f"s_add_u32 m0, s57, {k*1024}", mf[k], f"buffer_load_dwordx4 {pr(IX[k])}, s[32:35], s58 idxen offen{PFL[0]} lds"]
            post += [f"K2_NR{u}:"]
            if u == 0: post += e_dma()
            post += upd
            nst = 1 + (6 if u == 0 else 0) + len(upd) + 3 + (1 if u == 3 else 0) + 1
            if nst - 1 < 12: post += [f"s_nop {12 - (nst - 1) - 1}"]
            a("\n".join(t0 + t1 + post))
        else:
            ex0 = {}
            ex0[1] = [f"ds_read_b32 v{FV}, v{aEI} offset:{(u+1)*128}"] + [f"ds_read_b32 v{IX[k]}, v{aIDX} offset:{(u+2)*128+k*32}" for k in range(4)]
            if u == 0: ex0[1] += [f"ds_read_b32 v{EI}, v{aEI} offset:512"]
            ex0[12] = ["s_waitcnt lgkmcnt(0)", f"v_readfirstlane_b32 s66, v{FV}"]
            mid = ["s_cmp_eq_u32 s66, -1"]
            mid += [f"ds_read_b128 {q4(AO)}, v{aAO} offset:{(u+1)*1024}"]
            mid += [f"ds_read_b64_tr_b16 {pr(S)}, v{aS1} offset:{u*1024}", f"ds_read_b64_tr_b16 {pr(S+2)}, v{aS2} offset:{u*1024}"]
            mid += [f"s_cbranch_scc0 K2_FW{u}", f"K2_FR{u}:"]
            mid += [f"ds_read_b128 {q4(AE)}, v{aAE} offset:{(u+1)*1024}"]
            t0 = tile(0, mf_tile(1) + [SEGSUM], ex0, mid, [], f"A{u}", mpos=MP0)
            pre = [f"s_waitcnt vmcnt({1 if u == 1 else 0})"] + p_reads()
            blk = ["s_cmp_ge_i32 s55, s93", "s_waitcnt lgkmcnt(0)"] + p_shift(0) + [f"s_cbranch_scc1 K2_ND{u}"]
            if u == 2: blk += [f"ds_write_b32 v{aEI}, v{MG} offset:512"]
            blk += p_dma() + [f"K2_ND{u}:"]
            if u == 0:
                ed = e_dma()
                if opt.get("e0nt", 0) > 1:
                    k = [i for i, l in enumerate(ed) if l.startswith("buffer_load")][0]
                    ed = ed[:k] + [f"s_cmp_ge_u32 s55, {opt['e0nt']}", "s_cbranch_scc1 K2_EN1", ed[k].replace(" lds", " nt lds"), "s_branch K2_EN2", "K2_EN1:", ed[k], "K2_EN2:"] + ed[k+1:]
                blk += ed
            ex1 = {WPOS: blk}
            mid1 = p_shift(1)
            if u == 3:
                mid1 += [f"v_add_u32 v{aAO}, 4096, v{aAO}", f"v_add_u32 v{aAE}, 4096, v{aAE}", f"v_add_u32 v{aIDX}, 512, v{aIDX}", f"v_add_u32 v{aEI}, 512, v{aEI}",
                        "s_mov_b64 exec, s[62:63]", f"v_add_u32 v{aS1}, 4096, v{aS1}", "s_mov_b64 exec, s[64:65]", f"v_add_u32 v{aS2}, 4096, v{aS2}", "s_mov_b64 exec, -1"]
            exr1 = []
            if opt.get("gstamps"):
                mid1 = mid1 + ["s_memrealtime s[96:97]", "s_add_u32 m0, s55, 16"]
                exr1 += ["s_waitcnt lgkmcnt(0)", "v_writelane_b32 v0, s96, m0", "s_mov_b32 m0, s57"]
            t1 = tile(1, mf_tile(0), ex1, mid1, exr1, f"B{u}", mpos=(WPOS + 2, WPOS + 5), pre=pre)
            a("\n".join(t0 + t1))
        a("s_add_u32 s55, s55, 1")
        a("s_cmp_ge_u32 s55, s90")
        a(f"s_cbranch_scc1 K2_TH{u}")
        if u == 3: a("s_branch K2_U0")
    loop_end = len(a.lines)
    for qtl in QTAILS: a("\n".join(qtl))
    for u in range(4):
        a.label(f"K2_TH{u}")
        a(f"s_mov_b32 s92, {(u+1)&3}")
        if u < 3: a("s_branch K2_TH")
    a.label("K2_TH")
    a("s_cmp_ge_u32 s55, s53")
    a("s_cbranch_scc1 K2_EXIT")
    a("s_add_u32 s91, s91, 1")
    a("s_cmp_eq_u32 s91, 1")
    a("s_cbranch_scc0 K2_TH_2")
    if opt.get("prio", 1): a("s_setprio 2")
    a(f"s_sub_u32 s90, s94, {T2}")
    a("s_branch K2_TH_R")
    a.label("K2_TH_2")
    a("s_cmp_eq_u32 s91, 2")
    a("s_cbranch_scc0 K2_TH_3")
    if opt.get("prio", 1): a("s_setprio 1")
    a(f"s_sub_u32 s90, s94, {T1_}")
    a("s_branch K2_TH_R")
    a.label("K2_TH_3")
    if opt.get("prio", 1): a("s_setprio 0")
    a("s_mov_b32 s90, s53")
    a.label("K2_TH_R")
    a("s_max_i32 s90, s90, 0")
    a("s_cmp_eq_u32 s92, 1")
    a("s_cbranch_scc1 K2_U1")
    a("s_cmp_lg_u32 s60, 0")
    a("s_cbranch_scc1 K2_TH_J")
    a("s_mov_b32 s60, 1")
    a("\n".join(w2_pre(L16)))
    a.label("K2_TH_J")
    a("s_cmp_eq_u32 s92, 2")
    a("s_cbranch_scc1 K2_U2")
    a("s_cmp_eq_u32 s92, 3")
    a("s_cbranch_scc1 K2_U3")
    a("s_branch K2_U0")
    if LATE:
        for u in range(4):
            a.label(f"K2_ND{u}")
            a("\n".join(mf_tile(0)))
            a(f"s_branch K2_NR{u}")
    for u in range(4):
        a.label(f"K2_FW{u}")
        a("s_add_u32 s66, s55, 1")
        a("s_cmp_ge_u32 s66, s53")
        a(f"s_cbranch_scc1 K2_FR{u}")
        a(f"ds_read_b32 v{FV}, v{aEI} offset:{(u+1)*128}")
        a("s_waitcnt lgkmcnt(0)")
        a(f"v_readfirstlane_b32 s66, v{FV}")
        a("s_nop 0")
        a("s_cmp_eq_u32 s66, -1")
        a(f"s_cbranch_scc1 K2_FR{u}")
        a("s_sleep 1")
        a(f"s_branch K2_FW{u}")
    a.label("K2_EXIT")
    a(SEGSUM)
    stp(7)
    stc(13)
    if opt.get("stamps"): a("v_writelane_b32 v0, s53, 14")
    a(f"v_lshrrev_b32 v1, 4, v{L16}")
    a("s_cmp_lg_u32 s60, 0")
    a("s_cbranch_scc1 K2_X1")
    a("\n".join(w2_pre(L16)))
    a.label("K2_X1")
    WL = 116
    def fin_loads(l16):
        srd(a, 48, "s18", "s19", 256)
        for sidx in range(NW2, 8):
            a(f"buffer_load_dwordx4 {q4(WL+4*(sidx-NW2))}, v{l16}, s[40:43], s74 offen offset:{(sidx & 3)*1024}")
        a("v_lshrrev_b32 v8, 4, v1")
        a("v_lshlrev_b32 v9, 3, v8")
        a("s_lshl_b32 s68, s24, 5")
        a("buffer_load_dwordx2 v[10:11], v9, s[48:51], s68 offen")
    fin_loads(L16)
    a("v_subrev_u32 v2, s71, v1")
    a("v_and_b32 v2, 15, v2")
    a(f"v_mul_u32_u24 v2, {HSTR}, v2")
    a("v_and_b32 v3, 16, v1")
    a("v_lshl_add_u32 v2, v3, 2, v2")
    a("v_lshrrev_b32 v3, 5, v1")
    a("v_lshl_add_u32 v3, v3, 3, s57")
    a("v_add_u32 v2, v2, v3")
    a(f"s_waitcnt vmcnt({9 - NW2})")
    for k in range(8):
        a(f"v_cvt_pk_bf16_f32 v{EX+k}, v{ACC+2*k}, v{ACC+2*k+1}")
        if k & 1: a(f"ds_write_b64 v2, {pr(EX+k-1)} offset:{16*(k>>1)}")
    a("s_mov_b32 s66, 0x41800000")
    a("s_mov_b32 s67, 0x41800000")
    a(f"v_pk_mul_f32 {pr(CHK)}, {pr(CHK)}, s[66:67]")
    for k in range(0, 8, 2):
        a(f"v_pk_add_f32 {pr(ACC+2*k)}, {pr(ACC+2*k)}, {pr(ACC+2*k+2)}")
    for k in range(0, 8, 2):
        a(f"v_pk_fma_f32 {pr(CHK)}, {pr(ACC+2*k)}, 0, {pr(CHK)} op_sel_hi:[1,0,1]")
    a("v_mov_b32 v4, 0x207")
    a(f"v_add_f32 v{CHK}, v{CHK}, v{CHK+1}")
    a(f"v_mov_b32 v5, {FLAG}")
    a("v_mov_b32 v7, 1")
    a(f"v_cmpx_class_f32 vcc, v{CHK}, v4")
    a("ds_write_b32 v5, v7")
    a("s_mov_b64 exec, -1")
    a.label("K2_FIN")
    a("s_cmp_ge_u32 s24, 8")
    a("s_cbranch_scc1 K2_HEND")
    a("s_mov_b64 exec, 1")
    a("ds_add_u32 v5, v7 offset:24")
    a("s_mov_b64 exec, -1")
    a("v_and_b32 v12, 15, v1")
    a(f"v_mul_u32_u24 v2, {HSTR}, v12")
    a("v_lshl_add_u32 v2, v8, 4, v2")
    a(f"s_mov_b32 s78, {DEG}")
    a("v_lshl_add_u32 v4, v12, 2, s78")
    for mt in range(3): a(f"ds_read_b32 v{112+mt}, v4 offset:{mt*48}")
    a("v_lshl_add_u32 v13, v12, 16, v9")
    a(f"v_mov_b32 v3, {KILL:#x}")
    a("v_cmp_gt_u32 vcc, 4, v12")
    a("s_lshl_b32 s69, s2, 8")
    a("s_add_u32 s69, s69, s68")
    a("v_cndmask_b32 v14, v13, v3, vcc")
    a(f"s_add_u32 s72, s69, {12 << 16}")
    a(f"s_add_u32 s75, s69, {24 << 16}")
    a(f"s_mov_b32 s76, {NEGLN2:#x}")
    RS = 80
    a.label("K2_E1")
    a("ds_read_b32 v6, v5 offset:24")
    a("s_waitcnt lgkmcnt(0)")
    a("v_readfirstlane_b32 s66, v6")
    a("s_nop 0")
    a("s_cmp_ge_u32 s66, 8")
    a("s_cbranch_scc1 K2_E2")
    a("s_sleep 2")
    a("s_branch K2_E1")
    a.label("K2_E2")
    HB = 16
    OD = 120
    def wfrag(sidx): return WREG[sidx] if sidx < NW2 else WL + 4*(sidx - NW2)
    def hoff(mt, sidx): return (4*mt + (sidx >> 1))*4096 + (sidx & 1)*64
    order = [(sidx, mt) for sidx in range(8) for mt in range(2)]
    for n, (sidx, mt) in enumerate(order[:14]):
        a(f"ds_read_b128 {q4(HB+4*n)}, v2 offset:{hoff(mt, sidx)}")
    for n, (sidx, mt) in enumerate(order):
        issued = min(16, 14 + n)
        wv = f" vmcnt({8 - sidx})" if (sidx >= NW2 and mt == 0) else ""
        a(f"s_waitcnt{wv} lgkmcnt({issued - n - 1})")
        a(f"v_mfma_f32_16x16x32_bf16 {q4(OD+4*mt)}, {q4(wfrag(sidx))}, {q4(HB+4*n)}, {'0' if sidx == 0 else q4(OD+4*mt)}")
        if n < 2: a(f"ds_read_b128 {q4(HB+4*(14+n))}, v2 offset:{hoff(order[14+n][1], order[14+n][0])}")
    a("s_waitcnt vmcnt(0)")
    a("v_lshlrev_b32 v104, 16, v10")
    a("v_and_b32 v105, 0xffff0000, v10")
    a("v_lshlrev_b32 v106, 16, v11")
    a("v_and_b32 v107, 0xffff0000, v11")
    for mt in range(3): a(f"v_cvt_f32_u32 v{108+2*mt}, v{112+mt}" if mt < 2 else f"v_cvt_f32_u32 v112, v114")
    for mt in range(3):
        for i in range(2):
            a(f"v_pk_mul_f32 {pr(RS+4*mt+2*i)}, {pr(104+2*i)}, {pr(108+2*mt)} op_sel_hi:[1,0]")
    def fin_tile(mt):
        for i in range(4):
            a(f"v_fma_f32 v{RS+4*mt+i}, v{OD+4*mt+i}, s76, v{RS+4*mt+i}")
        a(f"v_cvt_pk_bf16_f32 v{132+2*mt}, v{RS+4*mt}, v{RS+4*mt+1}")
        a(f"v_cvt_pk_bf16_f32 v{133+2*mt}, v{RS+4*mt+2}, v{RS+4*mt+3}")
        a(f"buffer_store_dwordx2 {pr(132+2*mt)}, v{13 if mt == 0 else 14}, s[44:47], s{(69,72,75)[mt]} offen{('', ' sc1', ' nt')[opt.get('osc', 1)]}")
    def merge(mt):
        for i in range(4):
            a(f"v_add_f32_dpp v{OD+4*mt+i}, v{OD+4*mt+4+i}, v{OD+4*mt+i} row_shr:12 row_mask:0xf bank_mask:0xf bound_ctrl:0")
    merge(0)
    fin_tile(0)
    stp(8)
    a("s_barrier")
    stp(9)
    for sidx in range(8):
        a(f"ds_read_b128 {q4(HB+4*sidx)}, v2 offset:{hoff(2, sidx)}")
    a("ds_read_b32 v6, v5")
    for sidx in range(8):
        a(f"s_waitcnt lgkmcnt({8 - sidx})")
        a(f"v_mfma_f32_16x16x32_bf16 {q4(OD+8)}, {q4(wfrag(sidx))}, {q4(HB+4*sidx)}, {'0' if sidx == 0 else q4(OD+8)}")
    a("s_waitcnt lgkmcnt(0)")
    a("v_readfirstlane_b32 s82, v6")
    a("s_nop 1")
    a("s_andn2_b32 s82, s82, s70")
    a("s_cmp_lg_u32 s82, 0")
    a("s_cbranch_scc1 K2_REDO")
    a("s_nop 0")
    merge(1)
    fin_tile(2)
    fin_tile(1)
    stp(10)
    if opt.get("stamps"): a("s_waitcnt vmcnt(0)")
    stp(11)
    a.label("K2_END2")
    stamp_out(a, opt, 22, 0xF80000, 24, 0, tmpv=2)
    if opt.get('gstamps'): stamp_out2(a, opt, 22, 0x1000000, 24, 0, tmpv=2)
    a.label("K2_END")
    a("s_endpgm")
    a.label("K2_HEND")
    a("s_waitcnt lgkmcnt(0)")
    stp(8)
    a("s_barrier")
    a("ds_read_b32 v6, v5")
    a("s_waitcnt lgkmcnt(0)")
    a("v_readfirstlane_b32 s82, v6")
    a("s_nop 0")
    a("s_andn2_b32 s82, s82, s70")
    a("s_cmp_lg_u32 s82, 0")
    a("s_cbranch_scc1 K2_REDO")
    a("s_branch K2_END2")
    a.label("K2_CX")
    a("s_mov_b32 s81, 2")
    count([5, 6, 7])
    decode([5, 6, 7])
    a("v_cmpx_eq_u32 vcc, -2, v23")
    a("ds_write_b32 v111, v114")
    a("s_mov_b64 exec, -1")
    a("s_branch K2_C1")
    a.label("K2_SY")
    for k in (5, 6, 7): a(f"ds_bpermute_b32 v{TP+k}, v{RA+k}, v31")
    a("s_waitcnt lgkmcnt(0)")
    stat([5, 6, 7])
    a("s_branch K2_S0")
    a.label("K2_SX")
    for k in (5, 6, 7): a(f"ds_bpermute_b32 v{SB+k}, v{RA+k}, v108")
    a("s_waitcnt lgkmcnt(0)")
    late([5, 6, 7])
    a("s_branch K2_S1")
    a.label("K2_REDO")
    a("s_setprio 0")
    a("s_mov_b32 s70, -1")
    a("s_lshl_b32 s66, s24, 6")
    a("v_add_u32 v0, s66, v1")
    a("s_waitcnt vmcnt(0) lgkmcnt(0)")
    a("s_barrier")
    a("s_branch K2_TOP")
    a.label("K2_BAD")
    arrive(8)
    a("v_mov_b32 v109, -1")
    a("ds_write_b32 v111, v109 offset:16")
    arrive(40)
    a.label("K2_SLOW")
    a(f"v_lshrrev_b32 v1, 4, v{L16}")
    a("s_setprio 0")
    a("s_mov_b32 s70, -1")
    a("s_waitcnt vmcnt(0) lgkmcnt(0)")
    a("s_barrier")
    a("s_lshl_b32 s66, s24, 10")
    a(f"s_add_u32 s66, s66, {OH}")
    a("v_lshl_add_u32 v2, v1, 4, s66")
    for i in range(4): a(f"v_mov_b32 v{4+i}, 0")
    for i in range(4): a(f"ds_write_b128 v2, v[4:7] offset:{i*12288}")
    a("v_lshlrev_b32 v12, 2, v1")
    a(f"v_add_u32 v3, {DEG}, v12")
    a("ds_write_b32 v3, v4")
    srd(a, 84, "s8", "s9", E * 4)
    srd(a, 88, "s10", "s11", E * 4)
    a("v_and_b32 v8, 31, v1")
    a("v_lshlrev_b32 v8, 4, v8")
    a("v_lshrrev_b32 v9, 5, v1")
    a("v_lshl_add_u32 v8, v9, 10, v8")
    a("s_lshl_b32 s72, s25, 11")
    a(f"s_add_u32 s66, s72, {WCF_OFF - CELL_OFF}")
    a("buffer_load_dwordx4 v[16:19], v8, s[40:43], s66 offen")
    a("buffer_load_dwordx4 v[20:23], v8, s[40:43], s66 offen offset:512")
    a(f"s_add_u32 s72, s72, {EIM + 8192}")
    a("v_add_u32 v8, s72, v8")
    a("v_lshlrev_b32 v7, 4, v1")
    a("\n".join(w2_pre(7)))
    srd_ws(a, 92, 22, P_OFF, N * 512)
    a("v_lshlrev_b32 v10, 1, v1")
    a("v_add_u32 v10, s58, v10")
    a("v_lshlrev_b32 v11, 1, v10")
    a(f"v_add_u32 v11, {OH}, v11")
    a("v_mov_b32 v13, 1")
    a("s_waitcnt vmcnt(0)")
    for k in range(8):
        a(f"v_lshlrev_b32 v{24+2*k}, 16, v{16+k}")
        a(f"v_and_b32 v{25+2*k}, 0xffff0000, v{16+k}")
    a("s_waitcnt lgkmcnt(0)")
    a("s_barrier")
    a("s_mov_b32 s66, s26")
    a.label("K2_SL_BLK")
    a("s_lshl_b32 s67, s66, 8")
    a("buffer_load_dword v40, v12, s[88:91], s67 offen")
    a("buffer_load_dword v41, v12, s[84:87], s67 offen")
    a("s_waitcnt vmcnt(0)")
    a("v_and_b32 v42, 255, v40")
    a("v_cmp_eq_u32 vcc, s2, v42")
    a("s_nop 1")
    a("s_mov_b64 s[68:69], vcc")
    a.label("K2_SL_E")
    a("s_cmp_eq_u64 s[68:69], 0")
    a("s_cbranch_scc1 K2_SL_NB")
    a("s_ff1_i32_b64 s72, s[68:69]")
    a("s_bitset0_b64 s[68:69], s72")
    a("v_readlane_b32 s52, v40, s72")
    a("v_readlane_b32 s53, v41, s72")
    a("s_lshl_b32 s75, s66, 6")
    a("s_add_u32 s75, s75, s72")
    a("s_lshl_b32 s75, s75, 5")
    a("s_load_dwordx8 s[76:83], s[6:7], s75")
    a("s_lshl_b32 s53, s53, 9")
    a("s_lshr_b32 s52, s52, 8")
    a("s_cmp_ge_u32 s52, 16")
    a("s_cselect_b32 s75, 16384, 0")
    a("s_cmp_ge_u32 s52, 28")
    a("s_cselect_b32 s75, 32768, s75")
    a("s_bfe_u32 s55, s52, 0x10003")
    a("s_lshl_b32 s55, s55, 9")
    a("s_add_u32 s75, s75, s55")
    a("s_and_b32 s55, s52, 7")
    a("s_lshl_b32 s55, s55, 1")
    a("s_add_u32 s75, s75, s55")
    a("v_add_u32 v45, s75, v8")
    a("buffer_load_ushort v43, v10, s[92:95], s53 offen")
    a("ds_read_u16 v44, v45")
    a("s_waitcnt vmcnt(0) lgkmcnt(0)")
    a("v_lshlrev_b32 v43, 16, v43")
    a("v_lshlrev_b32 v44, 16, v44")
    import struct
    PC = struct.unpack("<I", struct.pack("<f", 1.0 / (1 - opt.get("pcomp", 20) * 1e-4)))[0]
    a(f"v_mul_f32 v43, {PC:#x}, v43")
    a("v_add_f32 v43, v43, v44")
    for k in range(8):
        a(f"s_lshl_b32 s53, s{76+k}, 16")
        a(f"v_fmac_f32 v43, s53, v{24+2*k}")
        a(f"s_and_b32 s53, s{76+k}, 0xffff0000")
        a(f"v_fmac_f32 v43, s53, v{25+2*k}")
    a("v_exp_f32 v44, v43")
    a("s_lshl_b32 s53, s52, 10")
    a("v_add_f32 v44, 1.0, v44")
    a("v_rcp_f32 v44, v44")
    a("v_add_u32 v45, s53, v11")
    a("v_mul_f32 v43, v43, v44")
    a("ds_add_f32 v45, v43")
    a("s_cmp_lg_u32 s25, 0")
    a("s_cbranch_scc1 K2_SL_E")
    a("s_lshl_b32 s53, s52, 2")
    a(f"s_add_u32 s53, s53, {DEG}")
    a("v_mov_b32 v45, s53")
    a("s_mov_b64 exec, 1")
    a("ds_add_u32 v45, v13")
    a("s_mov_b64 exec, -1")
    a("s_branch K2_SL_E")
    a.label("K2_SL_NB")
    a("s_add_u32 s66, s66, 3")
    a(f"s_cmp_lt_u32 s66, {E // 64}")
    a("s_cbranch_scc1 K2_SL_BLK")
    a("s_waitcnt lgkmcnt(0)")
    a("s_barrier")
    a("v_and_b32 v2, 31, v1")
    a("v_lshrrev_b32 v3, 5, v1")
    a("s_mov_b32 s66, 0")
    a.label("K2_SL_CV")
    a("v_add_u32 v4, s66, v3")
    a("v_add_u32 v5, s71, v4")
    a("s_cmp_lt_u32 s66, 4")
    a("s_cselect_b32 s67, s26, 0")
    a("s_cmp_lg_u32 s67, 0")
    a("s_cbranch_scc0 K2_SL_NZ")
    a("v_mov_b32 v5, 47")
    a.label("K2_SL_NZ")
    a("v_lshlrev_b32 v5, 10, v5")
    a("v_lshl_add_u32 v5, v2, 3, v5")
    a("s_lshl_b32 s67, s58, 1")
    a(f"s_add_u32 s67, s67, {OH}")
    a("v_add_u32 v5, s67, v5")
    a("ds_read_b64 v[6:7], v5")
    a(f"v_mul_u32_u24 v4, {HSTR}, v4")
    a("v_lshl_add_u32 v4, v2, 2, v4")
    a("v_add_u32 v4, s57, v4")
    a("s_waitcnt lgkmcnt(0)")
    a("v_cvt_pk_bf16_f32 v6, v6, v7")
    a("ds_write_b32 v4, v6")
    a("s_add_u32 s66, s66, 2")
    a("s_cmp_lt_u32 s66, 16")
    a("s_cbranch_scc1 K2_SL_CV")
    a("v_lshlrev_b32 v7, 4, v1")
    fin_loads(7)
    a(f"v_mov_b32 v5, {FLAG}")
    a("v_mov_b32 v7, 1")
    a("s_branch K2_FIN")
    if opt.get("e64"):
        for i in range(loop_start, loop_end):
            l = a.lines[i]
            if l.startswith("v_exp_f32 ") or l.startswith("v_rcp_f32 "): a.lines[i] = l.replace("_f32 ", "_f32_e64 ", 1)
    a.loop = (loop_start, loop_end)
    return a, NV2, (102 if opt.get('stamps') else 96)
```

```python
from asmlib import *

N = 10000; E = 320000
import os
WSB = int(os.environ.get('WSB', '0')) << 20
P_OFF = WSB + 4096
CELL_OFF = WSB + 0xA00000
W2F_OFF = WSB + 0xE00000
W1BF_OFF = WSB + 0xE10000
WCF_OFF = WSB + 0xE20000
FRAG_BYTES = 0x22000
NSORT = 128
CHUNK = 2500
GROWS = 64
NGEMM = 157
NSORTWG = 64
NPREP = 17
EPF = int(os.environ.get('EPF', '0'))
K1_WGS = 256 if EPF else NGEMM + NSORTWG + NPREP
K1_BLOCK = 1024
K1_LDS = 65536 + GROWS * 256 + 256
NEGLOG2E = 0xBFB8AA3B
OVF = 0xFFFFFFFE

def srd(a, r, lo, hi, size):
    a(f"s_mov_b32 s{r}, {lo}")
    a(f"s_mov_b32 s{r+1}, {hi}")
    a(f"s_mov_b32 s{r+2}, {size}")
    a(f"s_mov_b32 s{r+3}, 0x00020000")

def srd_ws(a, r, wslo, off, size):
    a(f"s_add_u32 s{r}, s{wslo}, {off}")
    a(f"s_addc_u32 s{r+1}, s{wslo+1}, 0")
    a(f"s_mov_b32 s{r+2}, {size}")
    a(f"s_mov_b32 s{r+3}, 0x00020000")

def stamp(a, opt, idx, vreg, sreg=96):
    if not opt.get("stamps"): return
    a(f"s_memrealtime s[{sreg}:{sreg+1}]")
    a("s_waitcnt lgkmcnt(0)")
    a(f"v_writelane_b32 v{vreg}, s{sreg}, {idx}")
def stamp_out(a, opt, wslo, off, wavereg, vreg, sreg=96, tmpv=151):
    if not opt.get("stamps"): return
    a(f"s_add_u32 s{sreg}, s{wslo}, {off}")
    a(f"s_addc_u32 s{sreg+1}, s{wslo+1}, 0")
    a(f"s_mov_b32 s{sreg+2}, 0x80000")
    a(f"s_mov_b32 s{sreg+3}, 0x00020000")
    a(f"s_lshl_b32 s100, s2, 4")
    a(f"s_add_u32 s100, s100, s{wavereg}")
    a(f"s_lshl_b32 s100, s100, 6")
    a(f"v_mbcnt_lo_u32_b32 v{tmpv}, -1, 0")
    a(f"v_lshlrev_b32 v{tmpv}, 2, v{tmpv}")
    a("s_mov_b64 exec, 0xffff")
    a(f"buffer_store_dword v{vreg}, v{tmpv}, s[{sreg}:{sreg+3}], s100 offen")
    a("s_mov_b64 exec, -1")
def stamp_out2(a, opt, wslo, off, wavereg, vreg, sreg=96, tmpv=151):
    a(f"s_add_u32 s{sreg}, s{wslo}, {off}")
    a(f"s_addc_u32 s{sreg+1}, s{wslo+1}, 0")
    a(f"s_lshl_b32 s100, s100, 1")
    a("s_mov_b64 exec, 0xffffffff")
    a(f"buffer_store_dword v{vreg}, v{tmpv}, s[{sreg}:{sreg+3}], s100 offen")
    a("s_mov_b64 exec, -1")

def gen_k1(opt=None):
    opt = opt or {}
    SV = 120
    SFD = {0: "", 1: " sc1", 2: " sc0 sc1", 3: " nt", 4: " nt sc1"}
    SF = SFD[opt.get("sf", 1)]
    SFG = SFD[opt.get("sfg", 1)]
    NT = " nt" if opt.get("knt", 1) else ""
    NTX = " nt" if opt.get("kntx", 1) else ""
    a = Asm()
    a.label("mpnn_pre_kernel")
    a(f"s_cmp_ge_u32 s2, {K1_WGS}")
    a("s_cbranch_scc1 K1_END")
    if opt.get("stamps"): a(f"v_mov_b32 v{SV}, 0")
    stamp(a, opt, 0, SV)
    if opt.get("stamps"):
        a("s_getreg_b32 s96, hwreg(HW_REG_XCC_ID)")
        a(f"v_writelane_b32 v{SV}, s96, 9")
    a("s_load_dwordx16 s[4:19], s[0:1], 0")
    a("s_load_dwordx2 s[20:21], s[0:1], 80")
    a("v_lshrrev_b32 v1, 6, v0")
    a("v_and_b32 v2, 63, v0")
    a("v_readfirstlane_b32 s22, v1")
    a(f"s_cmp_ge_u32 s2, {NGEMM}")
    a("s_cbranch_scc1 K1_SORT")
    XI = 65536
    SW = XI + GROWS * 256
    a("v_lshrrev_b32 v10, 4, v0")
    a("v_xor_b32 v11, v10, v2")
    a("v_and_b32 v11, 15, v11")
    a("v_lshlrev_b32 v11, 4, v11")
    a("v_lshl_add_u32 v8, v10, 8, v11")
    a("v_lshrrev_b32 v4, 4, v2")
    a("v_lshlrev_b32 v7, 2, v4")
    a("v_xor_b32 v7, v7, v2")
    a("v_and_b32 v7, 15, v7")
    a("v_lshlrev_b32 v7, 4, v7")
    a("v_lshl_add_u32 v3, v4, 9, v7")
    a(f"v_mov_b32 v14, {SW}")
    a("v_mov_b32 v15, 0")
    a("ds_write_b32 v14, v15")
    OWN = opt.get("own", 0)
    if OWN:
        a("s_cmp_lt_u32 s22, 8")
        a("s_cbranch_scc1 K1_GC")
        a("s_and_b32 s44, s22, 7")
        a("v_lshrrev_b32 v10, 4, v2")
        a("s_lshl_b32 s45, s44, 3")
        a("v_add_u32 v10, s45, v10")
        a("v_xor_b32 v11, v10, v2")
        a("v_and_b32 v11, 15, v11")
        a("v_lshlrev_b32 v11, 4, v11")
        a("v_lshl_add_u32 v8, v10, 8, v11")
        a("v_xor_b32 v9, 64, v8")
        a("s_lshl_b32 s45, s44, 13")
        a("s_add_u32 s46, s45, 256")
        a("s_lshl_b32 s47, s44, 12")
        a(f"s_mul_i32 s48, s2, {GROWS*256}")
        a("s_lshl_b32 s49, s44, 11")
        a(f"s_add_u32 m0, s49, {XI}")
        a("s_waitcnt lgkmcnt(0)")
        srd(a, 32, "s4", "s5", N * 256)
        srd(a, 28, "s12", "s13", 272 * 512)
        a(f"buffer_load_dwordx4 v8, s[32:35], s48 offen{NTX} lds")
        a(f"buffer_load_dwordx4 v9, s[32:35], s48 offen offset:1024{NTX} lds")
        a("s_mov_b32 m0, s47")
        a("s_barrier")
        for k in range(4):
            a(f"buffer_load_dwordx4 v3, s[28:31], s45 offen offset:{k*1024} lds")
            a("s_add_u32 s45, s45, 1024")
        a("s_add_u32 m0, s47, 32768")
        a("s_barrier")
        for k in range(4):
            a(f"buffer_load_dwordx4 v3, s[28:31], s46 offen offset:{k*1024} lds")
            a("s_add_u32 s46, s46, 1024")
        a("s_waitcnt vmcnt(4)")
        a("s_barrier")
        a("v_mov_b32 v15, 1")
        a("s_waitcnt vmcnt(0)")
        a("s_mov_b64 exec, 1")
        a("ds_add_u32 v14, v15")
        a("s_endpgm")
        a.label("K1_GC")
        a("s_bfe_u32 s26, s22, 0x10001")
        a("s_lshr_b32 s27, s22, 2")
        a("s_and_b32 s50, s22, 1")
        a("s_lshl_b32 s50, s50, 7")
        a("s_lshl_b32 s51, s27, 8")
        a("s_add_u32 s51, s51, s50")
        a(f"s_mul_i32 s52, s2, {GROWS*512}")
        a("s_add_u32 s51, s51, s52")
        a("s_lshl_b32 s52, s26, 14")
        a("s_add_u32 s51, s51, s52")
        if OWN == 1:
            a("v_lshrrev_b32 v12, 1, v2")
            a("v_and_b32 v13, 1, v2")
            a("v_lshlrev_b32 v13, 6, v13")
            a("v_lshl_add_u32 v12, v12, 9, v13")
        else:
            a("v_and_b32 v12, 31, v2")
            a("v_lshlrev_b32 v12, 9, v12")
        a("s_waitcnt lgkmcnt(0)")
        srd_ws(a, 36, 20, P_OFF, (N + 1) * 512)
        if OWN < 3: a(f"buffer_store_dword v15, v12, s[36:39], s51 offen{SFG}")
        a("s_barrier")
        a("s_barrier")
    else:
        a("s_and_b32 s44, s22, 7")
        a("s_lshl_b32 s45, s44, 13")
        a("s_lshr_b32 s46, s22, 3")
        a("s_lshl_b32 s47, s46, 8")
        a("s_add_u32 s45, s45, s47")
        a("s_lshl_b32 s47, s22, 12")
        a(f"s_mul_i32 s48, s2, {GROWS*256}")
        a("s_lshl_b32 s49, s22, 10")
        a(f"s_add_u32 m0, s49, {XI}")
        a("s_waitcnt lgkmcnt(0)")
        srd(a, 32, "s4", "s5", N * 256)
        srd(a, 28, "s12", "s13", 272 * 512)
        if opt.get("wwu", 1):
            a("s_cmp_lg_u32 s22, 0")
            a("s_cbranch_scc1 K1_NWU")
            a("s_bfe_u32 s50, s2, 0x40003")
            a("s_lshl_b32 s50, s50, 12")
            a("v_and_b32 v12, 31, v2")
            a("v_lshlrev_b32 v12, 7, v12")
            a("buffer_load_dword v31, v12, s[28:31], s50 offen")
            a.label("K1_NWU")
        a(f"buffer_load_dwordx4 v8, s[32:35], s48 offen{NTX} lds")
        a("s_mov_b32 m0, s47")
        a("s_cmp_lt_u32 s22, 8")
        a("s_barrier")
        a("s_cbranch_scc1 K1_GA")
        if opt.get("gb", 1) & 2: a("s_barrier")
        a.label("K1_GA")
        for k in range(4):
            a(f"buffer_load_dwordx4 v3, s[28:31], s45 offen offset:{k*1024} lds")
            a("s_add_u32 s45, s45, 1024")
        a("s_cmp_lt_u32 s22, 8")
        a("s_cbranch_scc1 K1_GC")
        a("s_waitcnt vmcnt(4)")
        a("s_barrier")
        a("v_mov_b32 v15, 1")
        a("s_waitcnt vmcnt(0)")
        a("s_mov_b64 exec, 1")
        a("ds_add_u32 v14, v15")
        a("s_endpgm")
        a.label("K1_GC")
        if opt.get("gb", 1) & 2: a("s_barrier")
    a("v_lshrrev_b32 v5, 5, v2")
    a("v_and_b32 v6, 31, v2")
    a("s_bfe_u32 s26, s22, 0x10001")
    a("s_lshr_b32 s27, s22, 2")
    a("s_and_b32 s50, s22, 1")
    a("s_lshl_b32 s50, s50, 7")
    srd_ws(a, 36, 20, P_OFF, (N + 1) * 512)
    a("v_and_b32 v17, 15, v2")
    a("v_xor_b32 v17, v17, v5")
    a("s_lshl_b32 s51, s26, 13")
    a(f"s_add_u32 s51, s51, {XI}")
    a("v_lshl_add_u32 v17, v17, 4, s51")
    a("v_lshl_add_u32 v16, v6, 8, v17")
    for sidx in range(1, 8):
        a(f"v_xor_b32 v{16+sidx}, {sidx << 5}, v16")
    a("v_bfe_u32 v26, v2, 2, 2")
    a("v_lshl_add_u32 v27, v5, 3, v26")
    a("v_and_b32 v28, 3, v2")
    a("v_lshl_add_u32 v28, v28, 3, s50")
    a("v_bfe_u32 v29, v2, 4, 1")
    a("v_lshl_add_u32 v28, v29, 5, v28")
    a("v_lshlrev_b32 v26, 6, v26")
    a("v_xor_b32 v28, v28, v26")
    a("s_lshl_b32 s51, s27, 15")
    a("v_add_u32 v28, s51, v28")
    a("v_lshl_add_u32 v24, v27, 8, v28")
    a("v_xor_b32 v25, 64, v24")
    a("s_lshl_b32 s51, s27, 8")
    a("s_add_u32 s51, s51, s50")
    a("v_lshl_add_u32 v13, v6, 2, s51")
    a("v_lshl_add_u32 v13, v5, 11, v13")
    a(f"s_mul_i32 s52, s2, {GROWS*512}")
    a("s_lshl_b32 s51, s26, 14")
    a("s_add_u32 s52, s52, s51")
    a("s_add_u32 s53, s52, 4096")
    a("s_add_u32 s54, s52, 8192")
    a("s_add_u32 s55, s52, 12288")
    import struct
    PS = struct.unpack("<I", struct.pack("<f", -1.4426950408889634 * (1 - opt.get("pcomp", 20) * 1e-4)))[0]
    a(f"s_mov_b32 s56, {PS:#x}")
    a(f"s_mov_b32 s57, {PS:#x}")
    stamp(a, opt, 1, SV)
    if not OWN: a("s_waitcnt vmcnt(0)")
    stamp(a, opt, 2, SV)
    a("s_barrier")
    stamp(a, opt, 6, SV)
    a("s_cmp_eq_u32 s27, 0")
    a("s_cbranch_scc1 K1_GO")
    a.label("K1_GW")
    a("ds_read_b32 v15, v14")
    a("s_waitcnt lgkmcnt(0)")
    a("v_readfirstlane_b32 s51, v15")
    a("s_nop 0")
    a("s_cmp_lt_u32 s51, 8")
    a("s_cbranch_scc1 K1_GW")
    a.label("K1_GO")
    stamp(a, opt, 8, SV)
    AF = 32; BF = 48; DA = 80; DB = 96
    def reads(sidx):
        st = sidx & 3
        a(f"ds_read_b128 {v(AF+4*st,4)}, v{16+sidx}")
        for X in range(2):
            for e in range(2):
                a(f"ds_read_b64_tr_b16 {v(BF+8*st+4*X+2*e,2)}, v{24+X} offset:{sidx*4096+e*1024}")
    def mm(sidx):
        st = sidx & 3
        ca = "0" if sidx == 0 else v(DA, 16)
        cb = "0" if sidx == 0 else v(DB, 16)
        a(f"v_mfma_f32_32x32x16_bf16 {v(DA,16)}, {v(AF+4*st,4)}, {v(BF+8*st,4)}, {ca}")
        a(f"v_mfma_f32_32x32x16_bf16 {v(DB,16)}, {v(AF+4*st,4)}, {v(BF+8*st+4,4)}, {cb}")
    reads(0); reads(1); reads(2)
    for sidx in range(8):
        a(f"s_waitcnt lgkmcnt({5*min(2, 7-sidx)})"); mm(sidx)
        if sidx + 3 < 8: reads(sidx + 3)
    a("s_nop 10")
    stamp(a, opt, 3, SV)
    DUP = opt.get("dup", 0)
    if DUP: srd_ws(a, 40, 20, 100 << 20, (N + 1) * 512)
    S1, S2 = ("s[40:43]", "s[36:39]") if DUP == 1 else ("s[36:39]", "s[40:43]")
    for r in range(0, 16, 2):
        a(f"v_pk_mul_f32 {v(DA+r,2)}, {v(DA+r,2)}, s[56:57]")
        a(f"v_pk_mul_f32 {v(DB+r,2)}, {v(DB+r,2)}, s[56:57]")
        for rr in (r, r + 1):
            a(f"v_cvt_pk_bf16_f32 v{AF+rr}, v{DA+rr}, v{DB+rr}")
            a(f"buffer_store_dword v{AF+rr}, v13, {S1}, s{52 + (rr >> 2)} offen offset:{(rr & 3)*512}{SFG}")
    if DUP:
        a("s_waitcnt vmcnt(0)")
        stamp(a, opt, 7, SV)
        a("s_sleep 127"); a("s_sleep 127")
        for rr in range(16):
            a(f"buffer_store_dword v{AF+rr}, v13, {S2}, s{52 + (rr >> 2)} offen offset:{(rr & 3)*512}{SFG}")
    stamp(a, opt, 4, SV)
    if opt.get("stamps"): a("s_waitcnt vmcnt(0)")
    stamp(a, opt, 5, SV)
    stamp_out(a, opt, 20, 0xF00000, 22, SV, tmpv=121)
    a("s_endpgm")
    a.label("K1_SORT")
    CNT = 32768
    HB = 36864
    a(f"s_sub_u32 s3, s2, {NGEMM}")
    a(f"s_cmp_ge_u32 s3, {NSORTWG}")
    a("s_cbranch_scc1 K1_HELP")
    a("s_and_b32 s24, s3, 7")
    a("s_lshl_b32 s24, s24, 4")
    a("s_lshr_b32 s25, s3, 3")
    a("s_lshl_b32 s25, s25, 1")
    a("s_add_u32 s24, s24, s25")
    a("s_lshr_b32 s25, s22, 3")
    a("s_add_u32 s3, s24, s25")
    a(f"s_mul_i32 s54, s25, {HB}")
    a("v_mov_b32 v47, v0")
    a("v_and_b32 v0, 511, v0")
    a("v_lshlrev_b32 v3, 2, v0")
    a("v_add_u32 v4, 4096, v3")
    a("v_add_u32 v5, 8192, v3")
    a(f"s_mul_i32 s23, s3, {CHUNK*4}")
    a("s_waitcnt lgkmcnt(0)")
    srd(a, 32, "s10", "s11", E * 4)
    for i in range(5):
        a(f"buffer_load_dword v{10+i}, v{3 + (i >> 1)}, s[32:35], s23 offen offset:{(i & 1)*2048}{NT}")
    srd(a, 28, "s8", "s9", E * 4)
    if opt.get("sb", 1): a("s_barrier")
    for i in range(5):
        a(f"buffer_load_dword v{16+i}, v{3 + (i >> 1)}, s[28:31], s23 offen offset:{(i & 1)*2048}{NT}")
    a("v_mov_b32 v24, -1\nv_mov_b32 v25, -1\nv_mov_b32 v26, -1\nv_mov_b32 v27, -1")
    a("v_mov_b32 v28, 0")
    a("v_lshl_add_u32 v6, v0, 4, s54")
    a("v_add_u32 v7, s54, v3")
    a(f"ds_write_b32 v7, v28 offset:{CNT}")
    for i in range(4):
        a(f"ds_write_b128 v6, v[24:27] offset:{i*8192}")
    srd_ws(a, 36, 20, CELL_OFF, 256 * 128 * 128)
    a("v_mov_b32 v29, 1")
    a(f"v_mov_b32 v30, {OVF - (1 << 32)}")
    a("v_lshlrev_b32 v31, 6, v0")
    a("v_lshrrev_b32 v44, 3, v47")
    a("v_and_b32 v45, 3, v47")
    a("v_lshlrev_b32 v45, 1, v45")
    a("v_xor_b32 v45, v45, v44")
    a("v_and_b32 v45, 7, v45")
    a("v_lshlrev_b32 v45, 4, v45")
    a("v_lshl_add_u32 v45, v44, 7, v45")
    a("v_bfe_u32 v43, v47, 2, 1")
    a(f"v_mul_u32_u24 v43, {HB}, v43")
    a("v_add_u32 v45, v45, v43")
    a("v_xor_b32 v42, 16, v45")
    a("v_lshl_add_u32 v43, v44, 2, v43")
    a("v_and_b32 v46, 7, v47")
    a("v_lshlrev_b32 v46, 4, v46")
    a("v_lshl_add_u32 v46, v44, 13, v46")
    a("s_lshr_b32 s24, s3, 1")
    a("s_lshl_b32 s24, s24, 7")
    for i in range(1, 4):
        a(f"s_add_u32 s{24+i}, s24, {i << 20}")
    for i in range(5):
        a(f"v_add_u32 v{84+i}, {i*32768}, v31")
    a(f"v_cmp_gt_u32 vcc, {CHUNK - 2048}, v0")
    a("s_waitcnt lgkmcnt(0)")
    a("s_mov_b64 s[52:53], vcc")
    stamp(a, opt, 1, SV)
    a("s_barrier")
    if opt.get("stamps"): a("s_waitcnt vmcnt(5)")
    stamp(a, opt, 2, SV)
    for i in range(5):
        a(f"s_waitcnt vmcnt({9 - i})")
        a(f"v_and_b32 v{32+i}, 255, v{10+i}")
        a(f"v_lshl_add_u32 v{37+i}, v{32+i}, 2, s54")
        if i == 4: a("s_mov_b64 exec, s[52:53]")
        a(f"ds_add_rtn_u32 v{60+i}, v{37+i}, v29 offset:{CNT}")
        if i == 4: a("s_mov_b64 exec, -1")
    for i in range(5):
        a(f"s_waitcnt vmcnt({4 - i})")
        a(f"v_lshrrev_b32 v{10+i}, 8, v{10+i}")
        a(f"v_lshl_or_b32 v{10+i}, v{16+i}, 18, v{10+i}")
        a(f"v_or_b32 v{10+i}, v{10+i}, v{84+i}")
        a(f"v_and_b32 v{16+i}, 28, v{37+i}")
        a(f"v_lshlrev_b32 v{32+i}, 5, v{32+i}")
    for i in range(5):
        a("s_waitcnt lgkmcnt(4)")
        a(f"v_cmp_lt_u32 vcc, 30, v{60+i}")
        a(f"v_min_u32 v{60+i}, 31, v{60+i}")
        a(f"v_lshl_or_b32 v{60+i}, v{60+i}, 5, v{60+i}")
        a(f"v_bfe_u32 v{60+i}, v{60+i}, 2, 5")
        a(f"v_xad_u32 v{60+i}, v{60+i}, v{16+i}, v{32+i}")
        a(f"v_cndmask_b32 v{10+i}, v{10+i}, v30, vcc")
        a(f"v_lshl_add_u32 v{60+i}, v{60+i}, 2, s54")
        if i == 4: a("s_mov_b64 exec, s[52:53]")
        a(f"ds_write_b32 v{60+i}, v{10+i}")
        if i == 4: a("s_mov_b64 exec, -1")
    a("s_waitcnt lgkmcnt(0)")
    a("s_barrier")
    stamp(a, opt, 3, SV)
    for i in range(2):
        a(f"ds_read_b128 {v(64+4*i,4)}, v45 offset:{i*16384}")
    for i in range(2):
        a(f"ds_read_b32 v{80+i}, v43 offset:{CNT + i*512}")
        a(f"ds_read_b128 {v(72+4*i,4)}, v42 offset:{i*16384}")
    for i in range(2):
        a(f"s_waitcnt lgkmcnt({5 - i})")
        a(f"buffer_store_dwordx4 {v(64+4*i,4)}, v46, s[36:39], s{24+i} offen{SF}")
    for i in range(2):
        a(f"s_waitcnt lgkmcnt({2 - 2*i})")
        a(f"v_cmp_lt_u32 vcc, 15, v{80+i}")
        a("s_and_saveexec_b64 s[52:53], vcc")
        a(f"s_cbranch_execz K1_NB{i}")
        a(f"buffer_store_dwordx4 {v(72+4*i,4)}, v46, s[36:39], s{26+i} offen{SF}")
        a.label(f"K1_NB{i}")
        a("s_mov_b64 exec, -1")
    stamp(a, opt, 4, SV)
    if opt.get("stamps"): a("s_waitcnt vmcnt(0)")
    stamp(a, opt, 5, SV)
    stamp_out(a, opt, 20, 0xF00000, 22, SV, tmpv=121)
    a("s_endpgm")
    a.label("K1_HELP")
    a(f"s_sub_u32 s3, s3, {NSORTWG}")
    a("s_waitcnt lgkmcnt(0)")
    srd_ws(a, 40, 20, W2F_OFF, FRAG_BYTES)
    a("v_lshlrev_b32 v6, 4, v2")
    if EPF:
        a("s_cmp_lt_u32 s22, 10")
        a("s_cbranch_scc1 K1_NPF")
        srd(a, 44, "s6", "s7", E * 32)
        a(f"s_mul_i32 s24, s3, {384*EPF*128}")
        a("v_subrev_u32 v7, 640, v0")
        a("v_lshlrev_b32 v7, 7, v7")
        for i in range(EPF):
            a("buffer_load_dword v22, v7, s[44:47], s24 offen")
            a(f"s_add_u32 s24, s24, {384*128}")
        a("s_endpgm")
        a.label("K1_NPF")
        a(f"s_cmp_ge_u32 s3, {NPREP}")
        a("s_cbranch_scc1 K1_END")
    a("s_cmp_lt_u32 s22, 8")
    a("s_cbranch_scc1 K1_H8")
    a("s_cmp_lt_u32 s22, 10")
    a("s_cbranch_scc0 K1_END")
    a("s_getpc_b64 s[60:61]")
    a.label("K1_PC")
    a("s_add_u32 s60, s60, mpnn_main_kernel-K1_PC")
    a("s_addc_u32 s61, s61, 0")
    a("s_mov_b32 s62, K2_REDO-mpnn_main_kernel")
    a("s_mov_b32 s63, 0x00020000")
    a("v_subrev_u32 v7, 512, v0")
    a("v_lshlrev_b32 v7, 7, v7")
    a("buffer_load_dword v22, v7, s[60:63], 0 offen")
    a("s_endpgm")
    a.label("K1_H8")
    a("s_lshl_b32 s3, s3, 3")
    a("s_add_u32 s3, s3, s22")
    a("s_mov_b32 s58, s3")
    a("s_bfe_u32 s26, s3, 0x30003")
    a("s_and_b32 s27, s3, 7")
    a("s_cmp_ge_u32 s3, 128")
    a("s_cselect_b32 s26, s27, s26")
    a("s_cselect_b32 s27, 8, s27")
    a("s_cmp_ge_u32 s3, 64")
    a("s_cbranch_scc1 K1_PREP1")
    srd(a, 44, "s16", "s17", 256 * 256)
    a("v_and_b32 v40, 15, v2")
    a("v_lshlrev_b32 v40, 1, v40")
    a("v_lshrrev_b32 v41, 4, v2")
    a("v_lshl_add_u32 v40, v41, 10, v40")
    a("v_add_u32 v41, 8192, v40")
    a("s_bfe_u32 s24, s3, 0x20001")
    a("s_lshl_b32 s24, s24, 14")
    a("s_and_b32 s25, s3, 1")
    a("s_lshl_b32 s25, s25, 12")
    a("s_add_u32 s24, s24, s25")
    a("s_lshr_b32 s25, s3, 3")
    a("s_lshl_b32 s25, s25, 5")
    a("s_add_u32 s24, s24, s25")
    for e in range(8):
        a(f"buffer_load_ushort v{48+e}, v{40 + (e & 1)}, s[44:47], s24 offen offset:{(e >> 1)*256}")
    a("s_branch K1_PFIN")
    a.label("K1_PREP1")
    srd(a, 44, "s12", "s13", 272 * 512)
    a("v_and_b32 v42, 1, v2")
    a("v_lshlrev_b32 v42, 6, v42")
    a("v_and_b32 v43, 30, v2")
    a("v_add_u32 v42, v42, v43")
    a("v_lshrrev_b32 v43, 5, v2")
    a("v_lshl_add_u32 v42, v43, 12, v42")
    a("s_lshr_b32 s24, s26, 1")
    a("s_lshl_b32 s24, s24, 7")
    a("s_and_b32 s25, s26, 1")
    a("s_lshl_b32 s25, s25, 5")
    a("s_add_u32 s24, s24, s25")
    a("s_lshl_b32 s27, s27, 13")
    a("s_add_u32 s24, s24, s27")
    a(f"s_add_u32 s24, s24, {128*512}")
    for e in range(8):
        a(f"buffer_load_ushort v{48+e}, v42, s[44:47], s24 offen offset:{e*512}")
    a.label("K1_PFIN")
    a("s_lshl_b32 s24, s58, 10")
    a("s_cmp_ge_u32 s58, 128")
    a("s_waitcnt vmcnt(0)")
    a("s_cbranch_scc1 K1_FINC")
    for e in range(4):
        a(f"v_lshl_or_b32 v{56+e}, v{49+2*e}, 16, v{48+2*e}")
    a("buffer_store_dwordx4 v[56:59], v6, s[40:43], s24 offen" + (" sc1" if opt.get("fsc", 1) else ""))
    a("s_endpgm")
    a.label("K1_FINC")
    a(f"s_mov_b32 s25, {NEGLOG2E:#x}")
    for e in range(8):
        a(f"v_lshlrev_b32 v{48+e}, 16, v{48+e}")
        a(f"v_mul_f32 v{48+e}, s25, v{48+e}")
    for e in range(4):
        a(f"v_cvt_pk_bf16_f32 v{56+e}, v{48+2*e}, v{49+2*e}")
    a("buffer_store_dwordx4 v[56:59], v6, s[40:43], s24 offen" + (" sc1" if opt.get("fsc", 1) else ""))
    a.label("K1_END")
    a("s_endpgm")
    return a, (128 if opt.get('stamps') else 112), (102 if opt.get('stamps') else 64)
```

```python
from asmlib import *
from k1 import *

NW = 12
PSLOT = 0
EIM = 49152
OH = 98304
ZERO = 147456
CNT = ZERO + 256
FLAG = ZERO + 512
DEG = ZERO + 1536
IDX = ZERO + 3328
EOFF = IDX + 6400
HSTR = 160
K2_LDS = 163840
assert EOFF + 6144 <= K2_LDS
GCAP = 48
KILL = 0x40000000
NEGLN2 = 0xBF317218
aAE = 1; aAP = 2; aAO = 7; aS1 = 8; aS2 = 9; aIDX = 10; aEI = 11; EI = 12; CHK = 14
D = [16, 32]; EX = 48; ACC = 64; BC = [80, 84]; BQ = [88, 92]; ID = [96, 100]
AE = 104; FV = 164; MG = 165; AO = 108; S = 112; AP = [116, 120, 124, 128]; HQ = 132; IX = [136, 138, 140, 142]
WP = 144
NV2 = 168

def pr(r): return v(r, 2)
def q4(r): return v(r, 4)
def x16(r): return v(r, 16)

C1 = 116
def mf_tile(Y):
    d = D[Y]
    return [f"v_mfma_f32_32x32x16_bf16 {x16(d)}, {q4(AE)}, {q4(BC[Y])}, {x16(C1 if Y else d)}",
            f"v_mfma_f32_32x32x16_bf16 {x16(d)}, {q4(AO)}, {q4(BQ[Y])}, {x16(d)}"]
def p_reads():
    return [f"ds_read_b64_tr_b16 {pr((C1 if X else D[0])+4*j)}, v{aAP+X} offset:{j*256}" for X in range(2) for j in range(4)]
def p_shift(X):
    b = C1 if X else D[0]
    return [f"v_lshlrev_b64 {pr(b+4*j+2)}, 16, {pr(b+4*j)}" for j in range(4)]
SEGSUM = f"v_mfma_f32_32x32x16_bf16 {x16(ACC)}, {q4(HQ)}, {q4(S)}, {x16(ACC)}"

OCT = [0]
QTAILS = []
def tile(X, mf, ex_exp, mid, ex_rcp, tag=None, mpos=(0, 3, 6, 9, 12), pre=()):
    d = D[X]; out = list(pre); mi = 0
    for i in range(16):
        if i in mpos and mi < len(mf):
            out.append(mf[mi]); mi += 1
        out.append(f"v_exp_f32 v{EX+i}, v{d+i}")
        out += ex_exp.get(i, [])
    out += mid
    NAB, NCD, DAB, DCD = d, d + 8, EX, EX + 8
    out.append(f"v_pk_add_f32 {pr(DAB)}, {pr(EX)}, 1.0 op_sel_hi:[1,0]")
    out.append(f"v_pk_add_f32 {pr(DCD)}, {pr(EX+8)}, 1.0 op_sel_hi:[1,0]")
    for k in range(1, 4):
        out.append(f"v_pk_fma_f32 {pr(NAB)}, {pr(NAB)}, {pr(EX+2*k)}, {pr(NAB)}")
        out.append(f"v_pk_fma_f32 {pr(NCD)}, {pr(NCD)}, {pr(EX+8+2*k)}, {pr(NCD)}")
        out.append(f"v_pk_fma_f32 {pr(NAB)}, {pr(d+2*k)}, {pr(DAB)}, {pr(NAB)}")
        out.append(f"v_pk_fma_f32 {pr(NCD)}, {pr(d+8+2*k)}, {pr(DCD)}, {pr(NCD)}")
        out.append(f"v_pk_fma_f32 {pr(DAB)}, {pr(DAB)}, {pr(EX+2*k)}, {pr(DAB)}")
        out.append(f"v_pk_fma_f32 {pr(DCD)}, {pr(DCD)}, {pr(EX+8+2*k)}, {pr(DCD)}")
    qt = [f"v_pk_fma_f32 {pr(CHK)}, {pr(DAB)}, {pr(DCD)}, {pr(CHK)}"]
    for r in (DAB, DAB + 1, DCD, DCD + 1):
        qt.append(f"v_rcp_f32 v{r}, v{r}")
    qt.append(f"v_pk_mul_f32 {pr(NAB)}, {pr(NAB)}, {pr(DAB)}")
    qt.append(f"v_pk_mul_f32 {pr(NCD)}, {pr(NCD)}, {pr(DCD)}")
    qt.append(f"v_cvt_pk_bf16_f32 v{HQ+2*X}, v{NAB}, v{NAB+1}")
    qt.append(f"v_cvt_pk_bf16_f32 v{HQ+2*X+1}, v{NCD}, v{NCD+1}")
    out += ex_rcp
    if not OCT[0] or tag is None:
        return out + qt
    DM = EX + 2
    if tag[0] != "P": out += ["s_cmp_ge_u32 s55, 9", f"s_cbranch_scc1 K2_QT{tag}"]
    out += [f"v_pk_mul_f32 {pr(DM)}, {pr(DAB)}, {pr(DCD)}",
            f"v_pk_mul_f32 {pr(NAB)}, {pr(NAB)}, {pr(DCD)}",
            f"v_rcp_f32 v{DM+2}, v{DM}",
            f"v_rcp_f32 v{DM+3}, v{DM+1}",
            f"v_pk_fma_f32 {pr(NAB)}, {pr(NCD)}, {pr(DAB)}, {pr(NAB)}",
            f"v_pk_add_f32 {pr(CHK)}, {pr(CHK)}, {pr(DM)}",
            f"v_pk_mul_f32 {pr(NAB)}, {pr(NAB)}, {pr(DM+2)}",
            f"v_cvt_pk_bf16_f32 v{HQ+2*X}, v{NAB}, v{NAB+1}"]
    if tag[0] == "P": return out + [f"v_mov_b32 v{HQ+2*X+1}, 0"]
    out += [f"K2_QR{tag}:"]
    QTAILS.append([f"K2_QT{tag}:"] + qt + [f"s_branch K2_QR{tag}"])
    return out

PFL = [""]
def p_dma():
    return [f"buffer_load_dwordx4 {pr(IX[k])}, s[32:35], s{28+k} idxen offen offset:{k*1024}{PFL[0]} lds" for k in range(4)]

EFL = [""]
def e_dma():
    return ["s_cmp_lt_u32 s61, s53",
            f"s_cselect_b32 s86, {E}, 0",
            f"s_cselect_b32 m0, s59, {K2_LDS:#x}",
            "s_add_u32 s61, s61, 4",
            f"buffer_load_dwordx4 {pr(EI)}, s[84:87], 0 idxen offen{EFL[0]} lds",
            "s_mov_b32 m0, s57",
            "s_add_u32 s59, s59, 4096"]
NW2 = 7
WREG = [144, 148, 152, 156, 160, 96, 100]
def w2_pre(vaddr):
    return [f"buffer_load_dwordx4 {q4(WREG[sidx])}, v{vaddr}, s[40:43], s{73 + (sidx >> 2)} offen offset:{(sidx & 3)*1024}" for sidx in range(NW2)]

def gen_k2(opt=None):
    opt = opt or {}
    EFL[0] = " nt" if opt.get("e0nt", 0) else ""
    OCT[0] = opt.get("oct", 0)
    QTAILS.clear()
    PFL[0] = {0: "", 1: " sc1", 2: " sc0 sc1", 3: " sc0"}[opt.get("pfl", 0)]
    a = Asm()
    def stp(i):
        if opt.get("stamps"):
            a("s_memrealtime s[96:97]"); a("s_waitcnt lgkmcnt(0)"); a(f"v_writelane_b32 v0, s96, {i}")
    def stc(i):
        if opt.get("stamps"):
            a("s_memtime s[96:97]"); a("s_waitcnt lgkmcnt(0)"); a(f"v_writelane_b32 v0, s96, {i}")
    a.label("mpnn_main_kernel")
    a("s_cmp_ge_u32 s2, 256")
    a("s_cbranch_scc1 K2_END")
    a("s_mov_b32 s70, 0")
    a.label("K2_TOP")
    a("s_load_dwordx2 s[22:23], s[0:1], 80")
    a("s_load_dwordx16 s[4:19], s[0:1], 0")
    a("s_load_dwordx2 s[20:21], s[0:1], 64")
    if opt.get("stamps"): a("s_memrealtime s[98:99]")
    a("v_lshrrev_b32 v72, 6, v0")
    a("v_and_b32 v1, 63, v0")
    a("v_readfirstlane_b32 s24, v72")
    a("v_lshlrev_b32 v24, 4, v0")
    L16 = 6
    a(f"v_lshlrev_b32 v{L16}, 4, v1")
    a("s_lshl_b32 s66, s2, 13")
    a(f"s_add_u32 s67, s66, {1 << 21}")
    a("s_and_b32 s25, s24, 3")
    a("s_lshr_b32 s26, s24, 2")
    a("s_cmp_ge_u32 s24, 8")
    a("s_cbranch_scc1 K2_HL")
    a("s_waitcnt lgkmcnt(0)")
    srd_ws(a, 40, 22, CELL_OFF, (W2F_OFF - CELL_OFF) + FRAG_BYTES)
    a("buffer_load_dwordx4 v[16:19], v24, s[40:43], s66 offen")
    a(f"buffer_load_dwordx4 v[20:23], v24, s[40:43], s67 offen{' nt' if opt.get('bnt', 1) else ''}")
    a("s_branch K2_CM")
    a.label("K2_HL")
    if opt.get("hp", 0): a("s_setprio 3")
    a("v_lshrrev_b32 v77, 4, v1")
    a("s_lshl_b32 s68, s25, 2")
    a("v_add_u32 v77, s68, v77")
    a("v_xor_b32 v27, v77, v1")
    a("v_and_b32 v27, 15, v27")
    a("v_lshlrev_b32 v27, 4, v27")
    a("v_lshl_add_u32 v26, v77, 16, v27")
    for win in (1, 2):
        a(f"v_subrev_u32 v78, {12*win}, v77")
        a("v_and_b32 v78, 15, v78")
        a(f"v_add_u32 v78, {12*win}, v78")
        a(f"v_lshl_add_u32 v{27+win}, v78, 16, v27")
    a("s_lshl_b32 s68, s2, 8")
    a("s_lshl_b32 s69, s25, 10")
    a(f"s_add_u32 m0, s69, {EIM + 4096}")
    a("s_waitcnt lgkmcnt(0)")
    srd(a, 36, "s4", "s5", N * 256)
    a("buffer_load_dwordx4 v26, s[36:39], s68 offen lds")
    a(f"s_add_u32 m0, s69, {EIM + 4096 + 16384}")
    srd_ws(a, 40, 22, CELL_OFF, (W2F_OFF - CELL_OFF) + FRAG_BYTES)
    a("buffer_load_dwordx4 v28, s[36:39], s68 offen lds")
    a(f"s_add_u32 m0, s69, {EIM + 4096 + 32768}")
    a("s_lshr_b32 s66, s2, 3")
    a("buffer_load_dwordx4 v29, s[36:39], s68 offen lds")
    a(f"s_mul_i32 s66, s66, {34*128}")
    a(f"s_mul_i32 s67, s25, {9*128}")
    a("s_add_u32 s66, s66, s67")
    a(f"s_add_u32 s66, s66, {W2F_OFF - CELL_OFF}")
    a("v_min_u32 v30, 8, v1")
    a("v_lshlrev_b32 v30, 7, v30")
    a("buffer_load_dword v134, v30, s[40:43], s66 offen")
    a.label("K2_CM")
    a("s_mul_i32 s71, s26, 12")
    a("s_lshl_b32 s56, s26, 14")
    a(f"s_add_u32 s56, s56, {EIM}")
    a("s_lshl_b32 s69, s25, 10")
    a("s_add_u32 s59, s56, s69")
    a("s_lshl_b32 s66, s24, 13")
    a(f"s_add_u32 s73, s66, {W2F_OFF - CELL_OFF}")
    a("s_cmp_lt_u32 s24, 8")
    a(f"s_cselect_b32 s73, s73, {KILL:#x}")
    a("s_add_u32 s74, s73, 4096")
    a("s_lshl_b32 s72, s25, 11")
    a(f"s_add_u32 s72, s72, {WCF_OFF - CELL_OFF}")
    a(f"v_add_u32 v156, {OH}, v24")
    for i in range(4): a(f"v_mov_b32 v{144+i}, 0")
    a(f"v_mov_b32 v31, {N}")
    a(f"v_mov_b32 v152, {E}")
    a(f"v_cmp_gt_u32 vcc, {EOFF - ZERO}, v24")
    a("v_mov_b32 v153, v152")
    a("v_mov_b32 v154, v152")
    a("v_cndmask_b32 v148, v152, v31, vcc")
    a("v_mov_b32 v155, v152")
    for i in range(1, 4): a(f"v_mov_b32 v{148+i}, v148")
    a(f"v_cmpx_le_u32 vcc, {IDX - ZERO}, v24")
    a(f"ds_write_b128 v156, v[148:151] offset:{4*12288}")
    a("s_mov_b64 exec, -1")
    a("s_cmp_lg_u32 s24, 0")
    a("s_cbranch_scc1 K2_I0")
    for i in range(3): a(f"ds_write_b128 v156, v[144:147] offset:{4*12288 + i*1024}")
    a("s_mov_b64 exec, 0xffff")
    a(f"ds_write_b128 v156, v[144:147] offset:{4*12288 + 3072}")
    a("s_mov_b64 exec, -1")
    a.label("K2_I0")
    for i in range(4): a(f"ds_write_b128 v156, v[144:147] offset:{i*12288}")
    a("s_cmp_lt_u32 s24, 4")
    a("s_cbranch_scc0 K2_I1")
    a(f"ds_write_b128 v156, v[152:155] offset:{5*12288}")
    a.label("K2_I1")
    a("v_lshrrev_b32 v72, 2, v0")
    if opt.get("stamps"):
        a("v_mov_b32 v0, 0"); a("v_writelane_b32 v0, s98, 0")
        a("s_getreg_b32 s96, hwreg(HW_REG_XCC_ID)"); a("v_writelane_b32 v0, s96, 15")
    a(f"v_mov_b32 v111, {FLAG}")
    a("v_mov_b32 v114, 1")
    a("s_lshl_b32 s57, s24, 12")
    a("s_lshl_b32 s58, s25, 7")
    if opt.get("hs", 0):
        a("s_cmp_ge_u32 s24, 8")
        a("s_cbranch_scc1 K2_HQ")
    a.label("K2_SET")
    a("s_mov_b32 s84, s6")
    a("s_and_b32 s85, s7, 0xffff")
    a(f"s_or_b32 s85, s85, {32 << 16:#x}")
    a("s_mov_b32 s87, 0x00020000")
    a(f"s_add_u32 s32, s22, {P_OFF - 3072}")
    a("s_addc_u32 s33, s23, 0")
    a("s_and_b32 s33, s33, 0xffff")
    a(f"s_or_b32 s33, s33, {512 << 16:#x}")
    a(f"s_mov_b32 s34, {N+1}")
    a("s_mov_b32 s35, 0x00020000")
    srd(a, 44, "s20", "s21", N * 256)
    H_, I_, T0, T1 = 77, 78, 105, 106
    a(f"v_lshrrev_b32 v{H_}, 5, v1")
    a(f"v_and_b32 v{I_}, 31, v1")
    a(f"v_bfe_u32 v{T0}, v1, 3, 2")
    a(f"v_bfe_u32 v{T1}, v1, 1, 1")
    a(f"v_lshl_or_b32 v{T0}, v{T0}, 1, v{T1}")
    a(f"v_and_b32 v{T1}, 1, v1")
    a(f"v_lshl_or_b32 v{T0}, v{T1}, 3, v{T0}")
    a(f"v_and_b32 v{T1}, 4, v1")
    a(f"v_lshl_or_b32 v{T0}, v{T1}, 2, v{T0}")
    a("s_mov_b32 m0, s57")
    for k in range(4): a(f"s_add_u32 s{28+k}, s58, {(3-k)*1024}")
    a(f"v_and_b32 v{T1}, 3, v1")
    a(f"v_lshl_add_u32 v{aAP}, v{T1}, 3, s57")
    a(f"v_and_b32 v{T1}, 16, v1")
    a(f"v_lshl_add_u32 v{aAP}, v{T1}, 1, v{aAP}")
    a(f"v_lshl_add_u32 v{aAP}, v{H_}, 11, v{aAP}")
    a(f"v_and_b32 v{T1}, 8, v1")
    a(f"v_mul_u32_u24 v{T1}, {(1024 + 64) // 8}, v{T1}")
    a(f"v_add_u32 v{aAP}, v{aAP}, v{T1}")
    a(f"v_not_b32 v{T1}, v1")
    a(f"v_and_b32 v{T1}, 4, v{T1}")
    a(f"v_lshl_add_u32 v{aAP}, v{T1}, 5, v{aAP}")
    a(f"v_xor_b32 v{aAP+1}, 64, v{aAP}")
    a(f"v_bfe_u32 v{T1}, v{T0}, 3, 1")
    a(f"v_xor_b32 v{T1}, v{T1}, v{H_}")
    a(f"v_lshl_add_u32 v{T1}, v{T1}, 4, s56")
    a(f"v_lshl_add_u32 v110, v{T0}, 5, v{T1}")
    a(f"s_add_u32 s52, s56, {OH - EIM}")
    a(f"v_lshl_add_u32 v{T1}, v{H_}, 4, s52")
    a(f"v_lshl_add_u32 v{aAO}, v{T0}, 5, v{T1}")
    a("s_lshl_b32 s66, s26, 11")
    a(f"s_add_u32 s67, s66, {EOFF}")
    a(f"s_add_u32 s66, s66, {IDX}")
    a(f"v_and_b32 v{T1}, 62, v1")
    a(f"v_lshl_add_u32 v{aEI}, v{T1}, 1, s67")
    a(f"v_lshrrev_b32 v{T1}, 3, v1")
    a(f"v_lshl_add_u32 v{aIDX}, v{T1}, 2, s66")
    a(f"v_add_u32 v4, s58, v{aEI}")
    SOFF = 104
    a(f"v_and_b32 v{T1}, 8, v1")
    a(f"v_lshl_add_u32 v{SOFF}, v{T1}, 4, s52")
    a(f"v_lshl_add_u32 v{SOFF}, v{H_}, 9, v{SOFF}")
    a(f"v_and_b32 v{T1}, 4, v1")
    a(f"v_lshl_add_u32 v{SOFF}, v{T1}, 6, v{SOFF}")
    a(f"v_and_b32 v{T1}, 3, v1")
    a(f"v_lshl_add_u32 v{SOFF}, v{T1}, 3, v{SOFF}")
    a("s_mov_b32 s62, 0xffff\ns_mov_b32 s63, 0xffff\ns_mov_b32 s64, 0xffff0000\ns_mov_b32 s65, 0xffff0000")
    a(f"v_mov_b32 v{T0}, {ZERO}")
    a(f"v_cndmask_b32 v{aS1}, v{T0}, v{SOFF}, s[62:63]")
    a(f"v_cndmask_b32 v{aS2}, v{T0}, v{SOFF}, s[64:65]")
    a(f"v_lshrrev_b32 v{T1}, 4, v1")
    a(f"v_xor_b32 v{T1}, v{T1}, v1")
    a(f"v_mov_b32 v{EI}, -1")
    a(f"v_and_b32 v{EI+1}, 1, v{T1}")
    a(f"v_lshlrev_b32 v{EI+1}, 4, v{EI+1}")
    a(f"v_and_b32 v{T1}, 7, v1")
    a(f"v_lshlrev_b32 v{IX[0]+1}, 4, v{T1}")
    a(f"v_xor_b32 v{IX[1]+1}, 64, v{IX[0]+1}")
    a(f"v_mov_b32 v{IX[2]+1}, v{IX[0]+1}")
    a(f"v_mov_b32 v{IX[3]+1}, v{IX[1]+1}")
    a("v_mov_b32 v75, 0x3f80")
    a("s_lshl_b32 s66, s25, 11")
    a("s_add_u32 s67, s56, s66")
    a(f"v_add_u32 v115, s67, v{L16}")
    a("s_mov_b32 s55, 0")
    a("s_mov_b32 s60, 0")
    a("s_mov_b32 s61, s25")
    a("s_cmp_ge_u32 s24, 8")
    a("s_cbranch_scc1 K2_HP" if opt.get("hs", 0) else "s_cbranch_scc1 K2_HQ")
    RA, RK = 32, 40
    SB, TO, TW = 48, 56, 64
    TS, TE, TF, TP = 116, 124, 88, 96
    DYN = (1 << 13) | (1 << 25) | (1 << 26) | (1 << 39)
    a(f"s_mov_b32 s66, {CHUNK}")
    a("v_mul_u32_u24 v72, s66, v72")
    a(f"s_mov_b32 s78, {CNT}")
    a("v_lshl_add_u32 v76, v1, 2, s78")
    a(f"s_mov_b32 s79, {IDX}")
    a(f"s_mov_b32 s80, {OH}")
    a("s_mov_b32 s81, 0")
    a(f"s_mov_b32 s68, {DYN & 0xffffffff:#x}")
    a(f"s_mov_b32 s69, {DYN >> 32:#x}")
    for k in range(8): a(f"v_mov_b32 v{RK+k}, -1")
    if opt.get("cls") in (1, 3):
        a("v_mov_b32 v77, s26")
        a("v_sub_u32 v78, 3, v77")
    if opt.get("cls") == 2:
        a("s_lshr_b32 s66, s24, 1")
        a("v_mov_b32 v77, s66")
    a("v_mov_b32 v73, -24")
    QM = opt.get("qm", 1)
    U = 4 if QM else 8
    a(f"v_mov_b32 v74, {11*U}")
    a("v_cndmask_b32 v73, 0, v73, s[68:69]")
    a("s_cmp_lg_u32 s24, 0")
    a("s_cbranch_scc1 K2_NCI")
    a(f"v_lshlrev_b32 v105, {18 if QM else 19}, v1")
    a(f"s_mov_b64 exec, {1 << 12:#x}")
    a(f"v_add_u32 v105, {(512 - 12*U) << 16:#x}, v105")
    a(f"s_mov_b64 exec, {(1 << 25) - (1 << 14):#x}")
    a(f"v_add_u32 v105, {(512 - 13*U) << 16:#x}, v105")
    a("s_mov_b32 exec_lo, 0xf8000000")
    a("s_mov_b32 exec_hi, 0x7f")
    a(f"v_add_u32 v105, {(1024 - 27*U) << 16:#x}, v105")
    a("s_mov_b64 exec, s[68:69]")
    a("v_mov_b32 v105, 24")
    a("s_mov_b32 exec_lo, -1")
    a("s_mov_b32 exec_hi, 0xff")
    for c in range(5): a(f"ds_write_b32 v76, v105 offset:{c*512}")
    a("s_mov_b64 exec, -1")
    a.label("K2_NCI")
    a(f"buffer_load_dwordx4 {q4(BC[0])}, v{L16}, s[40:43], s72 offen")
    a(f"buffer_load_dwordx4 {q4(BC[1])}, v{L16}, s[40:43], s72 offen offset:1024")
    a("s_waitcnt lgkmcnt(0)")
    stp(1)
    a("s_barrier")
    a("s_waitcnt vmcnt(3)")
    stp(2)
    NOCL = opt.get("nocl", 0)
    def count(ks):
        for k in ks:
            a(f"v_and_b32 v{RA+k}, 63, v{16+k}")
            CLS = opt.get("cls", 0)
            if CLS == 1:
                a(f"v_cmp_lt_u32 vcc, {5000 << 18:#x}, v{16+k}")
                a("s_nop 1")
                a(f"v_cndmask_b32 v{TF+k}, v77, v78, vcc")
            elif CLS == 2: a(f"v_mov_b32 v{TF+k}, v77")
            elif CLS == 3:
                a(f"v_lshrrev_b32 v{TF+k}, 30, v{16+k}")
                a(f"v_cmp_eq_u32 vcc, 0, v{TF+k}")
                a(f"v_add_u32 v{TF+k}, 1, v{TF+k}")
                a("s_nop 0")
                a(f"v_cndmask_b32 v{TF+k}, v{TF+k}, v77, vcc")
            else: a(f"v_lshrrev_b32 v{TF+k}, 29, v{16+k}" if not NOCL else f"v_mov_b32 v{TF+k}, 0")
            a(f"v_lshl_add_u32 v{RA+k}, v{RA+k}, 2, s78")
            a(f"v_lshl_add_u32 v{RA+k}, v{TF+k}, 9, v{RA+k}")
        for k in ks:
            a(f"v_cmpx_gt_u32 vcc, -2, v{16+k}")
            a(f"ds_add_rtn_u32 v{RK+k}, v{RA+k}, v114")
        a("s_mov_b64 exec, -1")
    def decode(ks):
        for k in ks:
            a(f"v_lshrrev_b32 v{TS+k}, {18 + opt.get('pshift', 0)}, v{16+k}")
            a(f"v_bfe_u32 v{TE+k}, v{16+k}, 6, 12")
            a(f"v_add_u32 v{TE+k}, v{TE+k}, v72")
            if opt.get("eshift"): a(f"v_lshrrev_b32 v{TE+k}, {opt['eshift']}, v{TE+k}")
            a(f"v_and_b32 v{TO+k}, 15, v{16+k}")
            a(f"v_lshl_add_u32 v{TO+k}, v{TO+k}, 1, s80")
            a(f"v_mad_i32_i24 v{TF+k}, v{TF+k}, -7, 28")
    SD = "dst_sel:DWORD dst_unused:UNUSED_PAD"
    def pos_ops(k):
        return [f"v_bfe_u32 v{TP+k}, v{TP+k}, v{TF+k}, 7",
                f"v_add_u32_sdwa v{TP+k}, v{TP+k}, v{RK+k} {SD} src0_sel:DWORD src1_sel:WORD_0",
                f"v_add_u32_sdwa v{TF+k}, v{TP+k}, v{RK+k} {SD} src0_sel:DWORD src1_sel:WORD_1",
                f"v_lshrrev_b32 v{TW+k}, {2 if QM else 3}, v{TP+k}",
                f"v_mad_u32_u24 v{TF+k}, v{TW+k}, v74, v{TF+k}"]
    def scatter(ks):
        for k in ks:
            a(f"v_add_u32 v{SB+k}, v{SB+k}, v{TP+k}")
        for k in ks:
            a(f"v_cmp_gt_u32 vcc, s76, v{SB+k}")
            a(f"v_cmp_gt_u32 s[68:69], s77, v{SB+k}")
            a(f"v_cmp_gt_u32 s[82:83], 24, v{TP+k}")
            a(f"s_nop 0")
            a(f"v_cndmask_b32 v{TW+k}, v107, v106, s[68:69]")
            a(f"v_cndmask_b32 v{TW+k}, v{TW+k}, v105, vcc")
            a(f"v_add_u32 v{SB+k}, v{SB+k}, v{TW+k}")
            a(f"v_cndmask_b32 v{SB+k}, v{SB+k}, v{TF+k}, s[82:83]")
            a(f"v_lshl_add_u32 v{TO+k}, v{SB+k}, 5, v{TO+k}")
            a(f"v_lshl_add_u32 v{SB+k}, v{SB+k}, 2, s79")
        for k in ks:
            a(f"v_cmpx_gt_u32 vcc, -2, v{16+k}")
            a(f"ds_write2st64_b32 v{SB+k}, v{TS+k}, v{TE+k} offset0:0 offset1:{(EOFF-IDX)//256}")
            a(f"ds_write_b16 v{TO+k}, v75")
        a("s_mov_b64 exec, -1")
    def arrive(off):
        a("s_mov_b64 exec, 1")
        a(f"ds_add_u32 v111, v114 offset:{off}")
        a("s_mov_b64 exec, -1")
    a("v_mov_b32_dpp v25, v19 quad_perm:[3,3,3,3] row_mask:0xf bank_mask:0xf")
    count(range(4))
    a("v_cmp_ne_u32 vcc, -1, v25")
    a("s_nop 1")
    a("s_cbranch_vccz K2_C1")
    a("s_waitcnt vmcnt(2)")
    for k in range(4): a(f"v_cndmask_b32 v{20+k}, -1, v{20+k}, vcc")
    a("s_mov_b32 s81, 1")
    count([4])
    a("v_cmp_ne_u32 vcc, -1, v21")
    decode([4])
    a("s_cbranch_vccnz K2_CX")
    a.label("K2_C1")
    arrive(4)
    decode(range(4))
    a.label("K2_SB1")
    a("ds_read_b64 v[108:109], v111")
    for c in range(5): a(f"ds_read_u16 v{26+c}, v76 offset:{c*512}")
    a("s_waitcnt lgkmcnt(0)")
    a("v_readfirstlane_b32 s66, v109")
    a("v_add_u32 v26, v26, v73")
    a("s_cmp_lt_u32 s66, 8")
    a("s_cbranch_scc1 K2_SB1")
    stp(3)
    a("v_add3_u32 v27, v26, v27, v73")
    a("v_add3_u32 v28, v27, v28, v73")
    a("v_lshl_or_b32 v31, v26, 7, v27")
    a("v_add3_u32 v29, v28, v29, v73")
    a("v_lshl_or_b32 v31, v31, 7, v28")
    a("v_readfirstlane_b32 s82, v108")
    a("v_lshl_or_b32 v31, v31, 7, v29")
    for k in range(5): a(f"ds_bpermute_b32 v{TP+k}, v{RA+k}, v31")
    a("v_add_u32 v30, v29, v30")
    a("v_cmp_lt_u32 vcc, 0x7f, v29")
    a("v_max_u32 v105, 24, v30")
    a("v_add_u32 v105, -21, v105")
    a("v_and_b32 v105, -4, v105")
    a("s_or_b32 s82, s82, s70")
    a("s_or_b32 s82, s82, vcc_lo")
    a("v_add_u32_dpp v107, v105, v105 row_shr:1 row_mask:0xf bank_mask:0xf bound_ctrl:0")
    a("s_or_b32 s82, s82, vcc_hi")
    a("v_add_u32 v30, v30, v73")
    a("v_add_u32_dpp v107, v107, v107 row_shr:2 row_mask:0xf bank_mask:0xf bound_ctrl:0")
    a("s_cmp_lg_u32 s82, 0")
    a("s_cbranch_scc1 K2_BAD")
    a("v_add_u32_dpp v107, v107, v107 row_shr:4 row_mask:0xf bank_mask:0xf bound_ctrl:0")
    a("s_waitcnt lgkmcnt(0)")
    def stat(ks):
        for k in ks:
            a("\n".join(pos_ops(k)))
            a(f"v_lshl_add_u32 v{TW+k}, v{TF+k}, 5, v{TO+k}")
            a(f"v_lshl_add_u32 v{TF+k}, v{TF+k}, 2, s79")
            a(f"v_cmpx_gt_u32 vcc, 24, v{TP+k}")
            a(f"ds_write2st64_b32 v{TF+k}, v{TS+k}, v{TE+k} offset0:0 offset1:{(EOFF-IDX)//256}")
            a(f"ds_write_b16 v{TW+k}, v75")
            a("s_mov_b64 exec, -1")
    def late(ks):
        for k in ks:
            a(f"v_add_u32 v{SB+k}, v{SB+k}, v{TP+k}")
            a(f"v_cmp_gt_u32 vcc, s76, v{SB+k}")
            a(f"v_cmp_gt_u32 s[68:69], s77, v{SB+k}")
            a(f"v_cmpx_le_u32 s[82:83], 24, v{TP+k}")
            a(f"v_cmpx_gt_u32 s[82:83], -2, v{16+k}")
            a(f"v_cndmask_b32 v{TW+k}, v107, v106, s[68:69]")
            a(f"v_cndmask_b32 v{TW+k}, v{TW+k}, v105, vcc")
            a(f"v_add_u32 v{SB+k}, v{SB+k}, v{TW+k}")
            a(f"v_lshl_add_u32 v{TO+k}, v{SB+k}, 5, v{TO+k}")
            a(f"v_lshl_add_u32 v{SB+k}, v{SB+k}, 2, s79")
            a(f"ds_write2st64_b32 v{SB+k}, v{TS+k}, v{TE+k} offset0:0 offset1:{(EOFF-IDX)//256}")
            a(f"ds_write_b16 v{TO+k}, v75")
            a("s_mov_b64 exec, -1")
    stat(range(4))
    a("s_cmp_eq_u32 s81, 0")
    a("s_cbranch_scc1 K2_S0")
    stat([4])
    a("s_cmp_lg_u32 s81, 1")
    a("s_cbranch_scc1 K2_SY")
    a.label("K2_S0")
    arrive(8)
    nlw = [0]
    def lwait(off, n, vt=109, va=111, extra=None, sleep=1):
        nlw[0] += 1; t = nlw[0]
        a.label(f"LW{t}")
        a(f"ds_read_b32 v{vt}, v{va} offset:{off}")
        if extra: extra()
        a("s_waitcnt lgkmcnt(0)")
        a(f"v_readfirstlane_b32 s66, v{vt}")
        a("s_nop 0")
        a(f"s_cmp_ge_u32 s66, {n}")
        a(f"s_cbranch_scc1 LX{t}")
        if sleep: a(f"s_sleep {sleep}")
        a(f"s_branch LW{t}")
        a.label(f"LX{t}")
    def g0_addr(): pass
    def first_reads():
        for k in range(4): a(f"ds_read_b32 v{IX[k]}, v{aIDX} offset:{k*32}")
        a(f"ds_read_b32 v{EI}, v4")
    nfl = [0]
    LATE = 0
    EA = opt.get("ea", 0)
    def first_loads():
        nfl[0] += 1
        a("s_cmp_lg_u32 s25, 0")
        a(f"s_cbranch_scc1 K2_FL{nfl[0]}")
        a("\n".join(e_dma()))
        a.label(f"K2_FL{nfl[0]}")
        a("\n".join(p_dma()))
        if EA:
            a("s_cmp_eq_u32 s25, 0")
            a(f"s_cbranch_scc1 K2_FM{nfl[0]}")
            a("\n".join(e_dma()))
            a.label(f"K2_FM{nfl[0]}")
    def sb2(tag):
        a.label(f"K2_SB2{tag}")
        a("ds_read_b32 v109, v111 offset:8")
        first_reads()
        a("s_waitcnt lgkmcnt(0)")
        a("v_readfirstlane_b32 s66, v109")
        a("s_nop 0")
        a("s_cmp_lt_u32 s66, 8")
        a(f"s_cbranch_scc1 K2_SB2{tag}")
        stp(4)
        first_loads()
    a(f"ds_write_b32 v76, v30 offset:{DEG - CNT}")
    a("v_add_u32_dpp v107, v107, v107 row_shr:8 row_mask:0xf bank_mask:0xf bound_ctrl:0")
    a("s_mov_b32 s53, 9")
    a("s_nop 0")
    a("v_add_u32_dpp v107, v107, v107 row_bcast:15 row_mask:0xa bank_mask:0xf")
    a("s_nop 1")
    a("v_add_u32_dpp v107, v107, v107 row_bcast:31 row_mask:0xc bank_mask:0xf")
    a("v_sub_u32 v108, v107, v105")
    a("v_readlane_b32 s83, v107, 63")
    for k in range(5): a(f"ds_bpermute_b32 v{SB+k}, v{RA+k}, v108")
    R1L = opt.get("r1l", 1)
    if R1L:
        a("s_cmp_lg_u32 s26, 0")
        a("s_cbranch_scc1 K2_NE1")
    sb2("a")
    if R1L: a.label("K2_NE1")
    a("v_readlane_b32 s76, v108, 12")
    a("v_readlane_b32 s77, v108, 16")
    a("v_readlane_b32 s68, v108, 24")
    a("v_readlane_b32 s69, v108, 28")
    sal = ["s_add_u32 s88, s83, 95", "s_lshr_b32 s88, s88, 5", "s_mul_i32 s88, s88, 171", "s_lshr_b32 s88, s88, 9",
           "s_add_u32 s89, s76, 31", "s_lshr_b32 s89, s89, 5", "s_max_u32 s88, s88, s89", "s_lshr_b32 s89, s77, 5", "s_min_u32 s88, s88, s89",
           "s_lshl_b32 s88, s88, 5", "s_max_u32 s76, s88, s76",
           "s_sub_u32 s88, s83, s76", "s_add_u32 s88, s88, 63", "s_lshr_b32 s88, s88, 6",
           "s_sub_u32 s89, s68, s76", "s_add_u32 s89, s89, 31", "s_lshr_b32 s89, s89, 5", "s_max_u32 s88, s88, s89",
           "s_sub_u32 s89, s69, s76", "s_lshr_b32 s89, s89, 5", "s_min_u32 s88, s88, s89",
           "s_lshl_b32 s88, s88, 5", "s_add_u32 s88, s88, s76", "s_max_u32 s77, s88, s68",
           "s_sub_u32 s88, s83, 224", "s_max_i32 s77, s77, s88", "s_min_u32 s77, s77, s69",
           f"s_add_u32 s53, s76, {288+31}", "s_lshr_b32 s53, s53, 5",
           "s_sub_u32 s90, s77, s76", f"s_add_u32 s90, s90, {288+31}", "s_lshr_b32 s90, s90, 5",
           "s_sub_u32 s91, s83, s77", f"s_add_u32 s91, s91, {288+31}", "s_lshr_b32 s91, s91, 5",
           f"s_sub_u32 s88, {512+288-24}, s76", f"s_sub_u32 s89, {1024+288-24}, s77",
           "s_add_u32 s76, s76, 24", "s_add_u32 s77, s77, 24",
           "s_max_u32 s92, s90, s53", "s_max_u32 s92, s92, s91"]
    a("\n".join(sal))
    a("s_cmp_gt_u32 s92, 16")
    a("s_cbranch_scc1 K2_BAD")
    if opt.get("force_slow"): a("s_branch K2_BAD")
    a("v_mov_b32 v106, s91")
    a("ds_write_b32 v111, v106 offset:16")
    a("s_cmp_eq_u32 s26, 1")
    a("s_cselect_b32 s53, s90, s53")
    a(f"v_mov_b32 v105, {288-24}")
    a("s_waitcnt lgkmcnt(0)")
    a("v_mov_b32 v106, s88")
    a("v_mov_b32 v107, s89")
    late(range(4))
    a("s_cmp_eq_u32 s81, 0")
    a("s_cbranch_scc1 K2_S1")
    late([4])
    a("s_cmp_lg_u32 s81, 1")
    a("s_cbranch_scc1 K2_SX")
    a.label("K2_S1")
    arrive(40)
    if R1L:
        a("s_cmp_eq_u32 s26, 0")
        a("s_cbranch_scc1 K2_NE2")
        sb2("b")
        a.label("K2_NE2")
    a("s_branch K2_QD")
    a.label("K2_HQ")
    WA, QA, QB, XA, BIAS = 32, 16, 116, 132, 112
    a(f"v_lshrrev_b32 v{H_}, 5, v1")
    a("s_lshl_b32 s66, s25, 11")
    a(f"v_and_b32 v{T0}, 3, v1")
    a(f"v_and_b32 v{T1}, 4, v1")
    a(f"v_lshl_or_b32 v{T0}, v{T1}, 1, v{T0}")
    a(f"v_bfe_u32 v{T1}, v1, 3, 1")
    a(f"v_lshl_or_b32 v{T0}, v{T1}, 2, v{T0}")
    a(f"v_xor_b32 v{T1}, v{T0}, v{H_}")
    a(f"v_lshlrev_b32 v{T1}, 4, v{T1}")
    a(f"v_lshl_add_u32 v{XA}, v{T0}, 8, v{T1}")
    a(f"v_and_b32 v{T1}, 16, v1")
    a(f"v_lshl_add_u32 v{XA}, v{T1}, 10, v{XA}")
    a(f"v_add_u32 v{XA}, {EIM + 4096}, v{XA}")
    a(f"s_add_u32 s67, s66, {EIM + 8192}")
    a(f"v_add_u32 v107, s67, v{L16}")
    srd(a, 48, "s14", "s15", 512)
    a("v_and_b32 v108, 1, v1")
    a("v_and_b32 v109, 30, v1")
    a("v_lshl_add_u32 v108, v108, 6, v109")
    a("s_lshl_b32 s66, s25, 14")
    a(f"s_add_u32 s76, s66, {W1BF_OFF - CELL_OFF}")
    for i in range(1, 4): a(f"s_add_u32 s{76+i}, s76, {i*4096}")
    PFT = opt.get("pft", 0)
    if PFT:
        srd_ws(a, 92, 22, P_OFF, N * 512)
        a("s_lshr_b32 s80, s2, 3")
        a(f"s_mul_i32 s80, s80, {PFT*256*128}")
        a("s_lshl_b32 s81, s25, 13")
        a("s_add_u32 s80, s80, s81")
        a("v_lshlrev_b32 v109, 7, v1")
    a(f"s_mov_b32 s68, {NEGLOG2E:#x}")
    a(f"s_mov_b32 s69, {NEGLOG2E:#x}")
    a(f"buffer_load_ushort v{BIAS}, v108, s[48:51], s58 offen")
    a(f"buffer_load_ushort v{BIAS+1}, v108, s[48:51], s58 offen offset:32")
    a(f"buffer_load_dwordx4 {q4(BC[0])}, v{L16}, s[40:43], s72 offen")
    a(f"buffer_load_dwordx4 {q4(BC[1])}, v{L16}, s[40:43], s72 offen offset:1024")
    a("s_mov_b32 s53, 9")
    def wr(i): return WA + 4*i if i not in (12, 13) else 96 + 4*(i - 12)
    for i in range(16):
        if i == opt.get("hw", 0):
            a("s_waitcnt lgkmcnt(0)")
            stp(1)
            a("s_barrier")
        a(f"buffer_load_dwordx4 {q4(wr(i))}, v{L16}, s[40:43], s{76 + (i >> 2)} offen offset:{(i & 3)*1024}")
        if i == 7:
            a("s_waitcnt vmcnt(12)")
            arrive(12)
    for i in range(PFT):
        a("buffer_load_dword v135, v109, s[92:95], s80 offen")
        a(f"s_add_u32 s80, s80, {256*128}")
    stp(2)
    a.label("K2_HS")
    a("ds_read_b32 v108, v111 offset:12")
    a("s_waitcnt lgkmcnt(0)")
    a("v_readfirstlane_b32 s66, v108")
    a("s_nop 0")
    a("s_cmp_lt_u32 s66, 4")
    a("s_cbranch_scc1 K2_HS")
    def xread(step):
        sidx = step & 7; st_ = step % 3
        if sidx: a(f"v_xor_b32 v{XA+1}, {sidx << 5}, v{XA}")
        r = XA + 1 if sidx else XA
        a(f"ds_read_b128 {q4(WP+8*st_)}, v{r}")
        a(f"ds_read_b128 {q4(WP+8*st_+4)}, v{r} offset:32768")
    xread(0); xread(1); xread(2)
    a(f"s_waitcnt vmcnt({16 + PFT})")
    a(f"v_lshlrev_b32 v{BIAS}, 16, v{BIAS}")
    a(f"v_lshlrev_b32 v{BIAS+1}, 16, v{BIAS+1}")
    a(f"v_pk_mul_f32 {pr(BIAS)}, {pr(BIAS)}, s[68:69]")
    HM = opt.get("hm", 0)
    for X in range(2):
        for sidx in range(8):
            step = 8*X + sidx; st_ = step % 3
            nl = 2*min(2, 15-step) + (3 if (X == 1 and sidx < 3) else 0)
            if X == 0 or not HM: a(f"s_waitcnt vmcnt({15 - step + PFT}) lgkmcnt({min(nl, 15)})")
            elif sidx >= 3: a(f"s_waitcnt lgkmcnt({nl})")
            a(f"v_mfma_f32_32x32x16_bf16 {x16(QA)}, {q4(WP+8*st_)}, {q4(wr(step))}, {'0' if sidx == 0 else x16(QA)}")
            a(f"v_mfma_f32_32x32x16_bf16 {x16(QB)}, {q4(WP+8*st_+4)}, {q4(wr(step))}, {'0' if sidx == 0 else x16(QB)}")
            if step + 3 < 16: xread(step + 3)
        a("s_nop 10")
        for wi, base in enumerate((QA, QA + 8, QB)):
            for k in range(4):
                a(f"v_pk_fma_f32 {pr(base+2*k)}, {pr(base+2*k)}, s[68:69], {pr(BIAS)} op_sel:[0,0,{X}] op_sel_hi:[1,1,{X}]")
            for k in range(4):
                a(f"v_cvt_pk_bf16_f32 v{WA+4*wi+k+12*X}, v{base+2*k}, v{base+2*k+1}")
            a(f"ds_write_b128 v107, {q4(WA+4*wi+12*X)} offset:{wi*16384 + X*1024}")
        if X == 0 and HM:
            a("s_waitcnt vmcnt(0)")
            sb2("h")
    arrive(36)
    stp(3)
    if not HM: sb2("h")
    a.label("K2_QD")
    a("v_mov_b32 v167, v111")
    a(f"v_mov_b32 v166, v4")
    a(f"v_mov_b32 v{aAE}, v110")
    a(f"v_mov_b32 v{MG}, -1")
    for k in range(4): a(f"ds_read_b32 v{IX[k]}, v{aIDX} offset:{128+k*32}")
    a(f"ds_read_b128 {q4(AO)}, v{aAO}")
    def bq_reads():
        a(f"ds_read_b128 {q4(BQ[0])}, v115 offset:8192")
        a(f"ds_read_b128 {q4(BQ[1])}, v115 offset:9216")
    stp(5)
    for i in range(16): a(f"v_mov_b32 v{ACC+i}, 0")
    a(f"v_mov_b32 v{CHK}, 0\nv_mov_b32 v{CHK+1}, 0")
    T3, T2, T1_ = opt.get("t3", 6), opt.get("t2", 3), opt.get("t1", 1)
    if OCT[0]:
        a(f"v_mov_b32 v{HQ+1}, 0")
    def flag_wait(tag, off):
        a.label(f"K2_W{tag}")
        a(f"ds_read_b32 v{FV}, v{aEI} offset:{off}")
        a("s_waitcnt lgkmcnt(0)")
        a(f"v_readfirstlane_b32 s66, v{FV}")
        a("s_nop 0")
        a("s_cmp_eq_u32 s66, -1")
        a(f"s_cbranch_scc1 K2_X{tag}")
        a("s_sleep 1")
        a(f"s_branch K2_W{tag}")
        a.label(f"K2_X{tag}")
    if LATE:
        a("s_max_i32 s90, s90, 1")
        a("s_min_u32 s90, s90, s53")
        a("s_min_u32 s67, s53, 2")
        a("s_cmp_ge_u32 s25, s67")
        a("s_waitcnt vmcnt(0)")
        a("s_cbranch_scc1 K2_NF")
        a(f"ds_write_b32 v166, v{MG}")
        a.label("K2_NF")
        for m in range(4): a(f"ds_read_b128 {q4(AP[m])}, v{aAP+m}")
        a("s_waitcnt lgkmcnt(0)")
        a("\n".join(p_dma()))
        a("s_cmp_lt_u32 s25, 2")
        a("s_cbranch_scc1 K2_F2")
        a("\n".join(e_dma()))
        a.label("K2_F2")
        for i in range(4): a(f"v_mov_b32 v{HQ+i}, 0")
        a("s_cmp_eq_u32 s53, 0")
        a("s_cbranch_scc1 K2_EXIT")
        flag_wait("A", 0)
        a(f"ds_read_b128 {q4(AE)}, v{aAE}")
        stp(6)
        stc(12)
        if opt.get("prio", 1): a("s_setprio 3")
        a("s_sub_u32 s68, 0, s25")
        a("s_and_b32 s68, s68, 3")
        a("s_lshl_b32 s67, s68, 7")
        a("s_lshl_b32 s69, s68, 10")
        a(f"v_subrev_u32 v{aAO}, s69, v{aAO}")
        a(f"v_subrev_u32 v{aAE}, s69, v{aAE}")
        a(f"v_subrev_u32 v{aIDX}, s67, v{aIDX}")
        a(f"v_subrev_u32 v{aEI}, s67, v{aEI}")
        a("s_mov_b64 exec, s[62:63]")
        a(f"v_subrev_u32 v{aS1}, s69, v{aS1}")
        a("s_mov_b64 exec, s[64:65]")
        a(f"v_subrev_u32 v{aS2}, s69, v{aS2}")
        a("s_mov_b64 exec, -1")
        a("s_waitcnt lgkmcnt(0)")
        a("\n".join(mf_tile(0)))
        a("s_nop 8")
        a("s_cmp_eq_u32 s68, 1")
        a("s_cbranch_scc1 K2_U1")
        a("s_cmp_eq_u32 s68, 2")
        a("s_cbranch_scc1 K2_U2")
        a("s_cmp_eq_u32 s68, 3")
        a("s_cbranch_scc1 K2_U3")
    else:
        a("s_cmp_lg_u32 s25, 0")
        a(f"s_waitcnt vmcnt({1 if EA else 0})")
        a("s_cbranch_scc1 K2_NF")
        a("s_waitcnt vmcnt(0)")
        a(f"ds_write_b32 v166, v{MG}")
        a(f"ds_read_b32 v{EI}, v{aEI} offset:512")
        a.label("K2_NF")
        a("\n".join(p_reads()))
        a("s_waitcnt lgkmcnt(0)")
        a("\n".join(p_dma()))
        a("\n".join(p_shift(0) + p_shift(1)))
        a("s_sub_u32 s67, s25, 1")
        if not EA:
            a("s_cmp_ge_u32 s67, 2")
            a("s_cbranch_scc1 K2_F2")
            a("\n".join(e_dma()))
        a.label("K2_F2")
        lwait(36, 4, vt=FV, va=167, extra=bq_reads)
        def flag_wait(tag, off):
            a.label(f"K2_W{tag}")
            a(f"ds_read_b32 v{FV}, v{aEI} offset:{off}")
            a("s_waitcnt lgkmcnt(0)")
            a(f"v_readfirstlane_b32 s66, v{FV}")
            a("s_nop 0")
            a("s_cmp_eq_u32 s66, -1")
            a(f"s_cbranch_scc1 K2_X{tag}")
            a("s_sleep 1")
            a(f"s_branch K2_W{tag}")
            a.label(f"K2_X{tag}")
        flag_wait("A", 0)
        a(f"ds_read_b128 {q4(AE)}, v{aAE}")
        stp(6)
        stc(12)
        if opt.get("prio", 1): a("s_setprio 3")
        a("s_waitcnt lgkmcnt(0)")
        a("\n".join(mf_tile(0)))
        a("s_nop 10")
        ex0 = {1: [f"ds_read_b32 v{IX[k]}, v{aIDX} offset:{256+k*32}" for k in range(4)]}
        ex1 = {1: [f"ds_read_b64_tr_b16 {pr(S)}, v{aS1}", f"ds_read_b64_tr_b16 {pr(S+2)}, v{aS2}", f"ds_read_b128 {q4(AO)}, v{aAO} offset:1024"]}
        a("\n".join(tile(0, mf_tile(1), ex0, [], [], "P0") + tile(1, [], ex1, [], ["s_waitcnt lgkmcnt(0)"], "P1")))
        a("s_mov_b32 s55, 1")
        lwait(40, 8, vt=FV, va=167, extra=lambda: a("ds_read_b32 v5, v167 offset:16"))
        a("v_readfirstlane_b32 s66, v5")
        a("s_cmp_eq_u32 s26, 2")
        a("s_cselect_b32 s53, s66, s53")
        a("s_cmp_eq_u32 s53, -1")
        a("s_cbranch_scc1 K2_SLOW")
        a("s_cmp_eq_u32 s26, 2")
        a(f"s_cselect_b32 s94, {opt.get('r2lag', 0)}, 0")
        a("s_sub_u32 s94, s53, s94")
        a(f"s_sub_u32 s90, s94, {T3}")
        a("s_max_i32 s90, s90, 2")
        a("s_mov_b32 s91, 0")
        a("s_sub_u32 s93, s53, 2")
        a(f"s_cmp_ge_u32 s67, {3 if EA else 2}")
        a("s_waitcnt vmcnt(0)")
        a("s_cbranch_scc1 K2_NF2")
        a(f"ds_write_b32 v166, v{MG}")
        a.label("K2_NF2")
        a("\n".join(p_reads()))
        a("s_waitcnt lgkmcnt(0)")
        a("\n".join(p_dma()))
        a("\n".join(p_shift(0) + p_shift(1)))
        a(f"s_cmp_lt_u32 s67, {3 if EA else 2}")
        a("s_cbranch_scc1 K2_F3")
        a("\n".join(e_dma()))
        a.label("K2_F3")
        flag_wait("B", 128)
        a(f"ds_read_b128 {q4(AE)}, v{aAE} offset:1024")
        a("s_sub_u32 s68, 1, s25")
        a("s_and_b32 s68, s68, 3")
        a("s_sub_u32 s69, 1, s68")
        a("s_lshl_b32 s67, s69, 7")
        a("s_lshl_b32 s69, s69, 10")
        a(f"v_add_u32 v{aAO}, s69, v{aAO}")
        a(f"v_add_u32 v{aAE}, s69, v{aAE}")
        a(f"v_add_u32 v{aIDX}, s67, v{aIDX}")
        a(f"v_add_u32 v{aEI}, s67, v{aEI}")
        a("s_mov_b64 exec, s[62:63]")
        a(f"v_add_u32 v{aS1}, s69, v{aS1}")
        a("s_mov_b64 exec, s[64:65]")
        a(f"v_add_u32 v{aS2}, s69, v{aS2}")
        a("s_mov_b64 exec, -1")
        a("s_waitcnt lgkmcnt(0)")
        a("\n".join(mf_tile(0)))
        a("s_nop 8")
        a("s_cmp_eq_u32 s68, 1")
        a("s_cbranch_scc1 K2_U1")
        a("s_cmp_eq_u32 s68, 2")
        a("s_cbranch_scc1 K2_U2")
        a("s_cmp_eq_u32 s68, 3")
        a("s_cbranch_scc1 K2_U3")
    EFL[0] = {0: "", 1: " nt", 2: " sc1"}[opt.get("efl", 0)]
    WPOS = opt.get("wpos", 5)
    MP0 = {0: (0, 3, 6), 1: (0, 4, 8), 2: (2, 6, 10)}[opt.get("mp0", 0)]
    a(".p2align 6")
    for _ in range(opt.get("shift", 0)): a("s_nop 0")
    loop_start = len(a.lines)
    for u in range(4):
        a.label(f"K2_U{u}")
        if LATE:
            upd = []
            if u == 3:
                upd = [f"v_add_u32 v{aAO}, 4096, v{aAO}", f"v_add_u32 v{aAE}, 4096, v{aAE}", f"v_add_u32 v{aIDX}, 512, v{aIDX}", f"v_add_u32 v{aEI}, 512, v{aEI}",
                       "s_mov_b64 exec, s[62:63]", f"v_add_u32 v{aS1}, 4096, v{aS1}", "s_mov_b64 exec, s[64:65]", f"v_add_u32 v{aS2}, 4096, v{aS2}", "s_mov_b64 exec, -1"]
            mid0 = [f"ds_read_b64_tr_b16 {pr(S)}, v{aS1} offset:{u*1024}", f"ds_read_b64_tr_b16 {pr(S+2)}, v{aS2} offset:{u*1024}",
                    f"ds_read_b128 {q4(AO)}, v{aAO} offset:{(u+1)*1024}"]
            t0 = tile(0, mf_tile(1) + [SEGSUM], {}, mid0, [])
            ex1 = {}
            ex1[1] = [f"ds_read_b32 v{FV}, v{aEI} offset:{(u+1)*128}"] + [f"ds_read_b32 v{IX[k]}, v{aIDX} offset:{(u+2)*128+k*32}" for k in range(4)]
            if u == 0: ex1[1] += [f"ds_read_b32 v{EI}, v{aEI} offset:512"]
            ex1[12] = ["s_waitcnt lgkmcnt(0)", f"v_readfirstlane_b32 s66, v{FV}"]
            mid = ["s_cmp_eq_u32 s66, -1", f"s_waitcnt vmcnt({1 if u == 1 else 0})"]
            mid += [f"ds_read_b128 {q4(AP[m])}, v{aAP+m}" for m in range(4)]
            mid += [f"s_cbranch_scc0 K2_FW{u}", f"K2_FR{u}:"]
            mid += [f"ds_read_b128 {q4(AE)}, v{aAE} offset:{(u+1)*1024}"]
            if opt.get("gstamps"): mid += ["s_memrealtime s[96:97]", "s_add_u32 m0, s55, 16"]
            t1 = tile(1, [], ex1, mid, [])
            mf = mf_tile(0)
            post = ["s_add_u32 s66, s55, 2", "s_cmp_ge_u32 s66, s53", "s_waitcnt lgkmcnt(0)"]
            if opt.get("gstamps"): post += ["v_writelane_b32 v0, s96, m0"]
            post += [f"s_cbranch_scc1 K2_ND{u}"]
            if u == 2: post += [f"ds_write_b32 v{aEI}, v{MG} offset:512"]
            for k in range(4):
                post += [f"s_add_u32 m0, s57, {k*1024}", mf[k], f"buffer_load_dwordx4 {pr(IX[k])}, s[32:35], s58 idxen offen{PFL[0]} lds"]
            post += [f"K2_NR{u}:"]
            if u == 0: post += e_dma()
            post += upd
            nst = 1 + (6 if u == 0 else 0) + len(upd) + 3 + (1 if u == 3 else 0) + 1
            if nst - 1 < 12: post += [f"s_nop {12 - (nst - 1) - 1}"]
            a("\n".join(t0 + t1 + post))
        else:
            ex0 = {}
            ex0[1] = [f"ds_read_b32 v{FV}, v{aEI} offset:{(u+1)*128}"] + [f"ds_read_b32 v{IX[k]}, v{aIDX} offset:{(u+2)*128+k*32}" for k in range(4)]
            if u == 0: ex0[1] += [f"ds_read_b32 v{EI}, v{aEI} offset:512"]
            ex0[12] = ["s_waitcnt lgkmcnt(0)", f"v_readfirstlane_b32 s66, v{FV}"]
            mid = ["s_cmp_eq_u32 s66, -1"]
            mid += [f"ds_read_b128 {q4(AO)}, v{aAO} offset:{(u+1)*1024}"]
            mid += [f"ds_read_b64_tr_b16 {pr(S)}, v{aS1} offset:{u*1024}", f"ds_read_b64_tr_b16 {pr(S+2)}, v{aS2} offset:{u*1024}"]
            mid += [f"s_cbranch_scc0 K2_FW{u}", f"K2_FR{u}:"]
            mid += [f"ds_read_b128 {q4(AE)}, v{aAE} offset:{(u+1)*1024}"]
            t0 = tile(0, mf_tile(1) + [SEGSUM], ex0, mid, [], f"A{u}", mpos=MP0)
            pre = [f"s_waitcnt vmcnt({1 if u == 1 else 0})"] + p_reads()
            blk = ["s_cmp_ge_i32 s55, s93", "s_waitcnt lgkmcnt(0)"] + p_shift(0) + [f"s_cbranch_scc1 K2_ND{u}"]
            if u == 2: blk += [f"ds_write_b32 v{aEI}, v{MG} offset:512"]
            blk += p_dma() + [f"K2_ND{u}:"]
            if u == 0:
                ed = e_dma()
                if opt.get("e0nt", 0) > 1:
                    k = [i for i, l in enumerate(ed) if l.startswith("buffer_load")][0]
                    ed = ed[:k] + [f"s_cmp_ge_u32 s55, {opt['e0nt']}", "s_cbranch_scc1 K2_EN1", ed[k].replace(" lds", " nt lds"), "s_branch K2_EN2", "K2_EN1:", ed[k], "K2_EN2:"] + ed[k+1:]
                blk += ed
            ex1 = {WPOS: blk}
            mid1 = p_shift(1)
            if u == 3:
                mid1 += [f"v_add_u32 v{aAO}, 4096, v{aAO}", f"v_add_u32 v{aAE}, 4096, v{aAE}", f"v_add_u32 v{aIDX}, 512, v{aIDX}", f"v_add_u32 v{aEI}, 512, v{aEI}",
                        "s_mov_b64 exec, s[62:63]", f"v_add_u32 v{aS1}, 4096, v{aS1}", "s_mov_b64 exec, s[64:65]", f"v_add_u32 v{aS2}, 4096, v{aS2}", "s_mov_b64 exec, -1"]
            exr1 = []
            if opt.get("gstamps"):
                mid1 = mid1 + ["s_memrealtime s[96:97]", "s_add_u32 m0, s55, 16"]
                exr1 += ["s_waitcnt lgkmcnt(0)", "v_writelane_b32 v0, s96, m0", "s_mov_b32 m0, s57"]
            t1 = tile(1, mf_tile(0), ex1, mid1, exr1, f"B{u}", mpos=(WPOS + 2, WPOS + 5), pre=pre)
            a("\n".join(t0 + t1))
        a("s_add_u32 s55, s55, 1")
        a("s_cmp_ge_u32 s55, s90")
        a(f"s_cbranch_scc1 K2_TH{u}")
        if u == 3: a("s_branch K2_U0")
    loop_end = len(a.lines)
    for qtl in QTAILS: a("\n".join(qtl))
    for u in range(4):
        a.label(f"K2_TH{u}")
        a(f"s_mov_b32 s92, {(u+1)&3}")
        if u < 3: a("s_branch K2_TH")
    a.label("K2_TH")
    a("s_cmp_ge_u32 s55, s53")
    a("s_cbranch_scc1 K2_EXIT")
    a("s_add_u32 s91, s91, 1")
    a("s_cmp_eq_u32 s91, 1")
    a("s_cbranch_scc0 K2_TH_2")
    if opt.get("prio", 1): a("s_setprio 2")
    a(f"s_sub_u32 s90, s94, {T2}")
    a("s_branch K2_TH_R")
    a.label("K2_TH_2")
    a("s_cmp_eq_u32 s91, 2")
    a("s_cbranch_scc0 K2_TH_3")
    if opt.get("prio", 1): a("s_setprio 1")
    a(f"s_sub_u32 s90, s94, {T1_}")
    a("s_branch K2_TH_R")
    a.label("K2_TH_3")
    if opt.get("prio", 1): a("s_setprio 0")
    a("s_mov_b32 s90, s53")
    a.label("K2_TH_R")
    a("s_max_i32 s90, s90, 0")
    a("s_cmp_eq_u32 s92, 1")
    a("s_cbranch_scc1 K2_U1")
    a("s_cmp_lg_u32 s60, 0")
    a("s_cbranch_scc1 K2_TH_J")
    a("s_mov_b32 s60, 1")
    a("\n".join(w2_pre(L16)))
    a.label("K2_TH_J")
    a("s_cmp_eq_u32 s92, 2")
    a("s_cbranch_scc1 K2_U2")
    a("s_cmp_eq_u32 s92, 3")
    a("s_cbranch_scc1 K2_U3")
    a("s_branch K2_U0")
    if LATE:
        for u in range(4):
            a.label(f"K2_ND{u}")
            a("\n".join(mf_tile(0)))
            a(f"s_branch K2_NR{u}")
    for u in range(4):
        a.label(f"K2_FW{u}")
        a("s_add_u32 s66, s55, 1")
        a("s_cmp_ge_u32 s66, s53")
        a(f"s_cbranch_scc1 K2_FR{u}")
        a(f"ds_read_b32 v{FV}, v{aEI} offset:{(u+1)*128}")
        a("s_waitcnt lgkmcnt(0)")
        a(f"v_readfirstlane_b32 s66, v{FV}")
        a("s_nop 0")
        a("s_cmp_eq_u32 s66, -1")
        a(f"s_cbranch_scc1 K2_FR{u}")
        a("s_sleep 1")
        a(f"s_branch K2_FW{u}")
    a.label("K2_EXIT")
    a(SEGSUM)
    stp(7)
    stc(13)
    if opt.get("stamps"): a("v_writelane_b32 v0, s53, 14")
    a(f"v_lshrrev_b32 v1, 4, v{L16}")
    a("s_cmp_lg_u32 s60, 0")
    a("s_cbranch_scc1 K2_X1")
    a("\n".join(w2_pre(L16)))
    a.label("K2_X1")
    WL = 116
    def fin_loads(l16):
        srd(a, 48, "s18", "s19", 256)
        for sidx in range(NW2, 8):
            a(f"buffer_load_dwordx4 {q4(WL+4*(sidx-NW2))}, v{l16}, s[40:43], s74 offen offset:{(sidx & 3)*1024}")
        a("v_lshrrev_b32 v8, 4, v1")
        a("v_lshlrev_b32 v9, 3, v8")
        a("s_lshl_b32 s68, s24, 5")
        a("buffer_load_dwordx2 v[10:11], v9, s[48:51], s68 offen")
    fin_loads(L16)
    a("v_subrev_u32 v2, s71, v1")
    a("v_and_b32 v2, 15, v2")
    a(f"v_mul_u32_u24 v2, {HSTR}, v2")
    a("v_and_b32 v3, 16, v1")
    a("v_lshl_add_u32 v2, v3, 2, v2")
    a("v_lshrrev_b32 v3, 5, v1")
    a("v_lshl_add_u32 v3, v3, 3, s57")
    a("v_add_u32 v2, v2, v3")
    a(f"s_waitcnt vmcnt({9 - NW2})")
    for k in range(8):
        a(f"v_cvt_pk_bf16_f32 v{EX+k}, v{ACC+2*k}, v{ACC+2*k+1}")
        if k & 1: a(f"ds_write_b64 v2, {pr(EX+k-1)} offset:{16*(k>>1)}")
    a("s_mov_b32 s66, 0x41800000")
    a("s_mov_b32 s67, 0x41800000")
    a(f"v_pk_mul_f32 {pr(CHK)}, {pr(CHK)}, s[66:67]")
    for k in range(0, 8, 2):
        a(f"v_pk_add_f32 {pr(ACC+2*k)}, {pr(ACC+2*k)}, {pr(ACC+2*k+2)}")
    for k in range(0, 8, 2):
        a(f"v_pk_fma_f32 {pr(CHK)}, {pr(ACC+2*k)}, 0, {pr(CHK)} op_sel_hi:[1,0,1]")
    a("v_mov_b32 v4, 0x207")
    a(f"v_add_f32 v{CHK}, v{CHK}, v{CHK+1}")
    a(f"v_mov_b32 v5, {FLAG}")
    a("v_mov_b32 v7, 1")
    a(f"v_cmpx_class_f32 vcc, v{CHK}, v4")
    a("ds_write_b32 v5, v7")
    a("s_mov_b64 exec, -1")
    a.label("K2_FIN")
    a("s_cmp_ge_u32 s24, 8")
    a("s_cbranch_scc1 K2_HEND")
    a("s_mov_b64 exec, 1")
    a("ds_add_u32 v5, v7 offset:24")
    a("s_mov_b64 exec, -1")
    a("v_and_b32 v12, 15, v1")
    a(f"v_mul_u32_u24 v2, {HSTR}, v12")
    a("v_lshl_add_u32 v2, v8, 4, v2")
    a(f"s_mov_b32 s78, {DEG}")
    a("v_lshl_add_u32 v4, v12, 2, s78")
    for mt in range(3): a(f"ds_read_b32 v{112+mt}, v4 offset:{mt*48}")
    a("v_lshl_add_u32 v13, v12, 16, v9")
    a(f"v_mov_b32 v3, {KILL:#x}")
    a("v_cmp_gt_u32 vcc, 4, v12")
    a("s_lshl_b32 s69, s2, 8")
    a("s_add_u32 s69, s69, s68")
    a("v_cndmask_b32 v14, v13, v3, vcc")
    a(f"s_add_u32 s72, s69, {12 << 16}")
    a(f"s_add_u32 s75, s69, {24 << 16}")
    a(f"s_mov_b32 s76, {NEGLN2:#x}")
    RS = 80
    a.label("K2_E1")
    a("ds_read_b32 v6, v5 offset:24")
    a("s_waitcnt lgkmcnt(0)")
    a("v_readfirstlane_b32 s66, v6")
    a("s_nop 0")
    a("s_cmp_ge_u32 s66, 8")
    a("s_cbranch_scc1 K2_E2")
    a("s_sleep 2")
    a("s_branch K2_E1")
    a.label("K2_E2")
    HB = 16
    OD = 120
    def wfrag(sidx): return WREG[sidx] if sidx < NW2 else WL + 4*(sidx - NW2)
    def hoff(mt, sidx): return (4*mt + (sidx >> 1))*4096 + (sidx & 1)*64
    order = [(sidx, mt) for sidx in range(8) for mt in range(2)]
    for n, (sidx, mt) in enumerate(order[:14]):
        a(f"ds_read_b128 {q4(HB+4*n)}, v2 offset:{hoff(mt, sidx)}")
    for n, (sidx, mt) in enumerate(order):
        issued = min(16, 14 + n)
        wv = f" vmcnt({8 - sidx})" if (sidx >= NW2 and mt == 0) else ""
        a(f"s_waitcnt{wv} lgkmcnt({issued - n - 1})")
        a(f"v_mfma_f32_16x16x32_bf16 {q4(OD+4*mt)}, {q4(wfrag(sidx))}, {q4(HB+4*n)}, {'0' if sidx == 0 else q4(OD+4*mt)}")
        if n < 2: a(f"ds_read_b128 {q4(HB+4*(14+n))}, v2 offset:{hoff(order[14+n][1], order[14+n][0])}")
    a("s_waitcnt vmcnt(0)")
    a("v_lshlrev_b32 v104, 16, v10")
    a("v_and_b32 v105, 0xffff0000, v10")
    a("v_lshlrev_b32 v106, 16, v11")
    a("v_and_b32 v107, 0xffff0000, v11")
    for mt in range(3): a(f"v_cvt_f32_u32 v{108+2*mt}, v{112+mt}" if mt < 2 else f"v_cvt_f32_u32 v112, v114")
    for mt in range(3):
        for i in range(2):
            a(f"v_pk_mul_f32 {pr(RS+4*mt+2*i)}, {pr(104+2*i)}, {pr(108+2*mt)} op_sel_hi:[1,0]")
    def fin_tile(mt):
        for i in range(4):
            a(f"v_fma_f32 v{RS+4*mt+i}, v{OD+4*mt+i}, s76, v{RS+4*mt+i}")
        a(f"v_cvt_pk_bf16_f32 v{132+2*mt}, v{RS+4*mt}, v{RS+4*mt+1}")
        a(f"v_cvt_pk_bf16_f32 v{133+2*mt}, v{RS+4*mt+2}, v{RS+4*mt+3}")
        a(f"buffer_store_dwordx2 {pr(132+2*mt)}, v{13 if mt == 0 else 14}, s[44:47], s{(69,72,75)[mt]} offen{('', ' sc1', ' nt')[opt.get('osc', 1)]}")
    def merge(mt):
        for i in range(4):
            a(f"v_add_f32_dpp v{OD+4*mt+i}, v{OD+4*mt+4+i}, v{OD+4*mt+i} row_shr:12 row_mask:0xf bank_mask:0xf bound_ctrl:0")
    merge(0)
    fin_tile(0)
    stp(8)
    a("s_barrier")
    stp(9)
    for sidx in range(8):
        a(f"ds_read_b128 {q4(HB+4*sidx)}, v2 offset:{hoff(2, sidx)}")
    a("ds_read_b32 v6, v5")
    for sidx in range(8):
        a(f"s_waitcnt lgkmcnt({8 - sidx})")
        a(f"v_mfma_f32_16x16x32_bf16 {q4(OD+8)}, {q4(wfrag(sidx))}, {q4(HB+4*sidx)}, {'0' if sidx == 0 else q4(OD+8)}")
    a("s_waitcnt lgkmcnt(0)")
    a("v_readfirstlane_b32 s82, v6")
    a("s_nop 1")
    a("s_andn2_b32 s82, s82, s70")
    a("s_cmp_lg_u32 s82, 0")
    a("s_cbranch_scc1 K2_REDO")
    a("s_nop 0")
    merge(1)
    fin_tile(2)
    fin_tile(1)
    stp(10)
    if opt.get("stamps"): a("s_waitcnt vmcnt(0)")
    stp(11)
    a.label("K2_END2")
    stamp_out(a, opt, 22, 0xF80000, 24, 0, tmpv=2)
    if opt.get('gstamps'): stamp_out2(a, opt, 22, 0x1000000, 24, 0, tmpv=2)
    a.label("K2_END")
    a("s_endpgm")
    a.label("K2_HEND")
    a("s_waitcnt lgkmcnt(0)")
    stp(8)
    a("s_barrier")
    a("ds_read_b32 v6, v5")
    a("s_waitcnt lgkmcnt(0)")
    a("v_readfirstlane_b32 s82, v6")
    a("s_nop 0")
    a("s_andn2_b32 s82, s82, s70")
    a("s_cmp_lg_u32 s82, 0")
    a("s_cbranch_scc1 K2_REDO")
    a("s_branch K2_END2")
    a.label("K2_CX")
    a("s_mov_b32 s81, 2")
    count([5, 6, 7])
    decode([5, 6, 7])
    a("v_cmpx_eq_u32 vcc, -2, v23")
    a("ds_write_b32 v111, v114")
    a("s_mov_b64 exec, -1")
    a("s_branch K2_C1")
    a.label("K2_SY")
    for k in (5, 6, 7): a(f"ds_bpermute_b32 v{TP+k}, v{RA+k}, v31")
    a("s_waitcnt lgkmcnt(0)")
    stat([5, 6, 7])
    a("s_branch K2_S0")
    a.label("K2_SX")
    for k in (5, 6, 7): a(f"ds_bpermute_b32 v{SB+k}, v{RA+k}, v108")
    a("s_waitcnt lgkmcnt(0)")
    late([5, 6, 7])
    a("s_branch K2_S1")
    a.label("K2_REDO")
    a("s_setprio 0")
    a("s_mov_b32 s70, -1")
    a("s_lshl_b32 s66, s24, 6")
    a("v_add_u32 v0, s66, v1")
    a("s_waitcnt vmcnt(0) lgkmcnt(0)")
    a("s_barrier")
    a("s_branch K2_TOP")
    a.label("K2_BAD")
    arrive(8)
    a("v_mov_b32 v109, -1")
    a("ds_write_b32 v111, v109 offset:16")
    arrive(40)
    a.label("K2_SLOW")
    a(f"v_lshrrev_b32 v1, 4, v{L16}")
    a("s_setprio 0")
    a("s_mov_b32 s70, -1")
    a("s_waitcnt vmcnt(0) lgkmcnt(0)")
    a("s_barrier")
    a("s_lshl_b32 s66, s24, 10")
    a(f"s_add_u32 s66, s66, {OH}")
    a("v_lshl_add_u32 v2, v1, 4, s66")
    for i in range(4): a(f"v_mov_b32 v{4+i}, 0")
    for i in range(4): a(f"ds_write_b128 v2, v[4:7] offset:{i*12288}")
    a("v_lshlrev_b32 v12, 2, v1")
    a(f"v_add_u32 v3, {DEG}, v12")
    a("ds_write_b32 v3, v4")
    srd(a, 84, "s8", "s9", E * 4)
    srd(a, 88, "s10", "s11", E * 4)
    a("v_and_b32 v8, 31, v1")
    a("v_lshlrev_b32 v8, 4, v8")
    a("v_lshrrev_b32 v9, 5, v1")
    a("v_lshl_add_u32 v8, v9, 10, v8")
    a("s_lshl_b32 s72, s25, 11")
    a(f"s_add_u32 s66, s72, {WCF_OFF - CELL_OFF}")
    a("buffer_load_dwordx4 v[16:19], v8, s[40:43], s66 offen")
    a("buffer_load_dwordx4 v[20:23], v8, s[40:43], s66 offen offset:512")
    a(f"s_add_u32 s72, s72, {EIM + 8192}")
    a("v_add_u32 v8, s72, v8")
    a("v_lshlrev_b32 v7, 4, v1")
    a("\n".join(w2_pre(7)))
    srd_ws(a, 92, 22, P_OFF, N * 512)
    a("v_lshlrev_b32 v10, 1, v1")
    a("v_add_u32 v10, s58, v10")
    a("v_lshlrev_b32 v11, 1, v10")
    a(f"v_add_u32 v11, {OH}, v11")
    a("v_mov_b32 v13, 1")
    a("s_waitcnt vmcnt(0)")
    for k in range(8):
        a(f"v_lshlrev_b32 v{24+2*k}, 16, v{16+k}")
        a(f"v_and_b32 v{25+2*k}, 0xffff0000, v{16+k}")
    a("s_waitcnt lgkmcnt(0)")
    a("s_barrier")
    a("s_mov_b32 s66, s26")
    a.label("K2_SL_BLK")
    a("s_lshl_b32 s67, s66, 8")
    a("buffer_load_dword v40, v12, s[88:91], s67 offen")
    a("buffer_load_dword v41, v12, s[84:87], s67 offen")
    a("s_waitcnt vmcnt(0)")
    a("v_and_b32 v42, 255, v40")
    a("v_cmp_eq_u32 vcc, s2, v42")
    a("s_nop 1")
    a("s_mov_b64 s[68:69], vcc")
    a.label("K2_SL_E")
    a("s_cmp_eq_u64 s[68:69], 0")
    a("s_cbranch_scc1 K2_SL_NB")
    a("s_ff1_i32_b64 s72, s[68:69]")
    a("s_bitset0_b64 s[68:69], s72")
    a("v_readlane_b32 s52, v40, s72")
    a("v_readlane_b32 s53, v41, s72")
    a("s_lshl_b32 s75, s66, 6")
    a("s_add_u32 s75, s75, s72")
    a("s_lshl_b32 s75, s75, 5")
    a("s_load_dwordx8 s[76:83], s[6:7], s75")
    a("s_lshl_b32 s53, s53, 9")
    a("s_lshr_b32 s52, s52, 8")
    a("s_cmp_ge_u32 s52, 16")
    a("s_cselect_b32 s75, 16384, 0")
    a("s_cmp_ge_u32 s52, 28")
    a("s_cselect_b32 s75, 32768, s75")
    a("s_bfe_u32 s55, s52, 0x10003")
    a("s_lshl_b32 s55, s55, 9")
    a("s_add_u32 s75, s75, s55")
    a("s_and_b32 s55, s52, 7")
    a("s_lshl_b32 s55, s55, 1")
    a("s_add_u32 s75, s75, s55")
    a("v_add_u32 v45, s75, v8")
    a("buffer_load_ushort v43, v10, s[92:95], s53 offen")
    a("ds_read_u16 v44, v45")
    a("s_waitcnt vmcnt(0) lgkmcnt(0)")
    a("v_lshlrev_b32 v43, 16, v43")
    a("v_lshlrev_b32 v44, 16, v44")
    import struct
    PC = struct.unpack("<I", struct.pack("<f", 1.0 / (1 - opt.get("pcomp", 20) * 1e-4)))[0]
    a(f"v_mul_f32 v43, {PC:#x}, v43")
    a("v_add_f32 v43, v43, v44")
    for k in range(8):
        a(f"s_lshl_b32 s53, s{76+k}, 16")
        a(f"v_fmac_f32 v43, s53, v{24+2*k}")
        a(f"s_and_b32 s53, s{76+k}, 0xffff0000")
        a(f"v_fmac_f32 v43, s53, v{25+2*k}")
    a("v_exp_f32 v44, v43")
    a("s_lshl_b32 s53, s52, 10")
    a("v_add_f32 v44, 1.0, v44")
    a("v_rcp_f32 v44, v44")
    a("v_add_u32 v45, s53, v11")
    a("v_mul_f32 v43, v43, v44")
    a("ds_add_f32 v45, v43")
    a("s_cmp_lg_u32 s25, 0")
    a("s_cbranch_scc1 K2_SL_E")
    a("s_lshl_b32 s53, s52, 2")
    a(f"s_add_u32 s53, s53, {DEG}")
    a("v_mov_b32 v45, s53")
    a("s_mov_b64 exec, 1")
    a("ds_add_u32 v45, v13")
    a("s_mov_b64 exec, -1")
    a("s_branch K2_SL_E")
    a.label("K2_SL_NB")
    a("s_add_u32 s66, s66, 3")
    a(f"s_cmp_lt_u32 s66, {E // 64}")
    a("s_cbranch_scc1 K2_SL_BLK")
    a("s_waitcnt lgkmcnt(0)")
    a("s_barrier")
    a("v_and_b32 v2, 31, v1")
    a("v_lshrrev_b32 v3, 5, v1")
    a("s_mov_b32 s66, 0")
    a.label("K2_SL_CV")
    a("v_add_u32 v4, s66, v3")
    a("v_add_u32 v5, s71, v4")
    a("s_cmp_lt_u32 s66, 4")
    a("s_cselect_b32 s67, s26, 0")
    a("s_cmp_lg_u32 s67, 0")
    a("s_cbranch_scc0 K2_SL_NZ")
    a("v_mov_b32 v5, 47")
    a.label("K2_SL_NZ")
    a("v_lshlrev_b32 v5, 10, v5")
    a("v_lshl_add_u32 v5, v2, 3, v5")
    a("s_lshl_b32 s67, s58, 1")
    a(f"s_add_u32 s67, s67, {OH}")
    a("v_add_u32 v5, s67, v5")
    a("ds_read_b64 v[6:7], v5")
    a(f"v_mul_u32_u24 v4, {HSTR}, v4")
    a("v_lshl_add_u32 v4, v2, 2, v4")
    a("v_add_u32 v4, s57, v4")
    a("s_waitcnt lgkmcnt(0)")
    a("v_cvt_pk_bf16_f32 v6, v6, v7")
    a("ds_write_b32 v4, v6")
    a("s_add_u32 s66, s66, 2")
    a("s_cmp_lt_u32 s66, 16")
    a("s_cbranch_scc1 K2_SL_CV")
    a("v_lshlrev_b32 v7, 4, v1")
    fin_loads(7)
    a(f"v_mov_b32 v5, {FLAG}")
    a("v_mov_b32 v7, 1")
    a("s_branch K2_FIN")
    if opt.get("e64"):
        for i in range(loop_start, loop_end):
            l = a.lines[i]
            if l.startswith("v_exp_f32 ") or l.startswith("v_rcp_f32 "): a.lines[i] = l.replace("_f32 ", "_f32_e64 ", 1)
    a.loop = (loop_start, loop_end)
    return a, NV2, (102 if opt.get('stamps') else 96)
```

```python
from asmlib import *
from k1 import *

NW = 12
PSLOT = 0
EIM = 49152
OH = 98304
ZERO = 147456
CNT = ZERO + 256
FLAG = ZERO + 512
DEG = ZERO + 1536
IDX = ZERO + 3328
EOFF = IDX + 6400
HSTR = 160
K2_LDS = 163840
assert EOFF + 6144 <= K2_LDS
GCAP = 48
KILL = 0x40000000
NEGLN2 = 0xBF317218
aAE = 1; aAP = 2; aAO = 7; aS1 = 8; aS2 = 9; aIDX = 10; aEI = 11; EI = 12; CHK = 14
D = [16, 32]; EX = 48; ACC = 64; BC = [80, 84]; BQ = [88, 92]; ID = [96, 100]
AE = 104; FV = 164; MG = 165; AO = 108; S = 112; AP = [116, 120, 124, 128]; HQ = 132; IX = [136, 138, 140, 142]
WP = 144
NV2 = 168

def pr(r): return v(r, 2)
def q4(r): return v(r, 4)
def x16(r): return v(r, 16)

C1 = 116
def mf_tile(Y):
    d = D[Y]
    return [f"v_mfma_f32_32x32x16_bf16 {x16(d)}, {q4(AE)}, {q4(BC[Y])}, {x16(C1 if Y else d)}",
            f"v_mfma_f32_32x32x16_bf16 {x16(d)}, {q4(AO)}, {q4(BQ[Y])}, {x16(d)}"]
def p_reads():
    return [f"ds_read_b64_tr_b16 {pr((C1 if X else D[0])+4*j)}, v{aAP+X} offset:{j*256}" for X in range(2) for j in range(4)]
def p_shift(X):
    b = C1 if X else D[0]
    return [f"v_lshlrev_b64 {pr(b+4*j+2)}, 16, {pr(b+4*j)}" for j in range(4)]
SEGSUM = f"v_mfma_f32_32x32x16_bf16 {x16(ACC)}, {q4(HQ)}, {q4(S)}, {x16(ACC)}"

OCT = [0]
QTAILS = []
def tile(X, mf, ex_exp, mid, ex_rcp, tag=None, mpos=(0, 3, 6, 9, 12), pre=()):
    d = D[X]; out = list(pre); mi = 0
    for i in range(16):
        if i in mpos and mi < len(mf):
            out.append(mf[mi]); mi += 1
        out.append(f"v_exp_f32 v{EX+i}, v{d+i}")
        out += ex_exp.get(i, [])
    out += mid
    NAB, NCD, DAB, DCD = d, d + 8, EX, EX + 8
    out.append(f"v_pk_add_f32 {pr(DAB)}, {pr(EX)}, 1.0 op_sel_hi:[1,0]")
    out.append(f"v_pk_add_f32 {pr(DCD)}, {pr(EX+8)}, 1.0 op_sel_hi:[1,0]")
    for k in range(1, 4):
        out.append(f"v_pk_fma_f32 {pr(NAB)}, {pr(NAB)}, {pr(EX+2*k)}, {pr(NAB)}")
        out.append(f"v_pk_fma_f32 {pr(NCD)}, {pr(NCD)}, {pr(EX+8+2*k)}, {pr(NCD)}")
        out.append(f"v_pk_fma_f32 {pr(NAB)}, {pr(d+2*k)}, {pr(DAB)}, {pr(NAB)}")
        out.append(f"v_pk_fma_f32 {pr(NCD)}, {pr(d+8+2*k)}, {pr(DCD)}, {pr(NCD)}")
        out.append(f"v_pk_fma_f32 {pr(DAB)}, {pr(DAB)}, {pr(EX+2*k)}, {pr(DAB)}")
        out.append(f"v_pk_fma_f32 {pr(DCD)}, {pr(DCD)}, {pr(EX+8+2*k)}, {pr(DCD)}")
    qt = [f"v_pk_fma_f32 {pr(CHK)}, {pr(DAB)}, {pr(DCD)}, {pr(CHK)}"]
    for r in (DAB, DAB + 1, DCD, DCD + 1):
        qt.append(f"v_rcp_f32 v{r}, v{r}")
    qt.append(f"v_pk_mul_f32 {pr(NAB)}, {pr(NAB)}, {pr(DAB)}")
    qt.append(f"v_pk_mul_f32 {pr(NCD)}, {pr(NCD)}, {pr(DCD)}")
    qt.append(f"v_cvt_pk_bf16_f32 v{HQ+2*X}, v{NAB}, v{NAB+1}")
    qt.append(f"v_cvt_pk_bf16_f32 v{HQ+2*X+1}, v{NCD}, v{NCD+1}")
    out += ex_rcp
    if not OCT[0] or tag is None:
        return out + qt
    DM = EX + 2
    if tag[0] != "P": out += ["s_cmp_ge_u32 s55, 9", f"s_cbranch_scc1 K2_QT{tag}"]
    out += [f"v_pk_mul_f32 {pr(DM)}, {pr(DAB)}, {pr(DCD)}",
            f"v_pk_mul_f32 {pr(NAB)}, {pr(NAB)}, {pr(DCD)}",
            f"v_rcp_f32 v{DM+2}, v{DM}",
            f"v_rcp_f32 v{DM+3}, v{DM+1}",
            f"v_pk_fma_f32 {pr(NAB)}, {pr(NCD)}, {pr(DAB)}, {pr(NAB)}",
            f"v_pk_add_f32 {pr(CHK)}, {pr(CHK)}, {pr(DM)}",
            f"v_pk_mul_f32 {pr(NAB)}, {pr(NAB)}, {pr(DM+2)}",
            f"v_cvt_pk_bf16_f32 v{HQ+2*X}, v{NAB}, v{NAB+1}"]
    if tag[0] == "P": return out + [f"v_mov_b32 v{HQ+2*X+1}, 0"]
    out += [f"K2_QR{tag}:"]
    QTAILS.append([f"K2_QT{tag}:"] + qt + [f"s_branch K2_QR{tag}"])
    return out

PFL = [""]
def p_dma():
    return [f"buffer_load_dwordx4 {pr(IX[k])}, s[32:35], s{28+k} idxen offen offset:{k*1024}{PFL[0]} lds" for k in range(4)]

EFL = [""]
def e_dma():
    return ["s_cmp_lt_u32 s61, s53",
            f"s_cselect_b32 s86, {E}, 0",
            f"s_cselect_b32 m0, s59, {K2_LDS:#x}",
            "s_add_u32 s61, s61, 4",
            f"buffer_load_dwordx4 {pr(EI)}, s[84:87], 0 idxen offen{EFL[0]} lds",
            "s_mov_b32 m0, s57",
            "s_add_u32 s59, s59, 4096"]
NW2 = 7
WREG = [144, 148, 152, 156, 160, 96, 100]
def w2_pre(vaddr):
    return [f"buffer_load_dwordx4 {q4(WREG[sidx])}, v{vaddr}, s[40:43], s{73 + (sidx >> 2)} offen offset:{(sidx & 3)*1024}" for sidx in range(NW2)]

def gen_k2(opt=None):
    opt = opt or {}
    EFL[0] = " nt" if opt.get("e0nt", 0) else ""
    OCT[0] = opt.get("oct", 0)
    QTAILS.clear()
    PFL[0] = {0: "", 1: " sc1", 2: " sc0 sc1", 3: " sc0"}[opt.get("pfl", 0)]
    a = Asm()
    def stp(i):
        if opt.get("stamps"):
            a("s_memrealtime s[96:97]"); a("s_waitcnt lgkmcnt(0)"); a(f"v_writelane_b32 v0, s96, {i}")
    def stc(i):
        if opt.get("stamps"):
            a("s_memtime s[96:97]"); a("s_waitcnt lgkmcnt(0)"); a(f"v_writelane_b32 v0, s96, {i}")
    a.label("mpnn_main_kernel")
    a("s_cmp_ge_u32 s2, 256")
    a("s_cbranch_scc1 K2_END")
    a("s_mov_b32 s70, 0")
    a.label("K2_TOP")
    a("s_load_dwordx2 s[22:23], s[0:1], 80")
    a("s_load_dwordx16 s[4:19], s[0:1], 0")
    a("s_load_dwordx2 s[20:21], s[0:1], 64")
    if opt.get("stamps"): a("s_memrealtime s[98:99]")
    a("v_lshrrev_b32 v72, 6, v0")
    a("v_and_b32 v1, 63, v0")
    a("v_readfirstlane_b32 s24, v72")
    a("v_lshlrev_b32 v24, 4, v0")
    L16 = 6
    a(f"v_lshlrev_b32 v{L16}, 4, v1")
    a("s_lshl_b32 s66, s2, 13")
    a(f"s_add_u32 s67, s66, {1 << 21}")
    a("s_and_b32 s25, s24, 3")
    a("s_lshr_b32 s26, s24, 2")
    a("s_cmp_ge_u32 s24, 8")
    a("s_cbranch_scc1 K2_HL")
    a("s_waitcnt lgkmcnt(0)")
    srd_ws(a, 40, 22, CELL_OFF, (W2F_OFF - CELL_OFF) + FRAG_BYTES)
    a("buffer_load_dwordx4 v[16:19], v24, s[40:43], s66 offen")
    a(f"buffer_load_dwordx4 v[20:23], v24, s[40:43], s67 offen{' nt' if opt.get('bnt', 1) else ''}")
    a("s_branch K2_CM")
    a.label("K2_HL")
    if opt.get("hp", 0): a("s_setprio 3")
    a("v_lshrrev_b32 v77, 4, v1")
    a("s_lshl_b32 s68, s25, 2")
    a("v_add_u32 v77, s68, v77")
    a("v_xor_b32 v27, v77, v1")
    a("v_and_b32 v27, 15, v27")
    a("v_lshlrev_b32 v27, 4, v27")
    a("v_lshl_add_u32 v26, v77, 16, v27")
    for win in (1, 2):
        a(f"v_subrev_u32 v78, {12*win}, v77")
        a("v_and_b32 v78, 15, v78")
        a(f"v_add_u32 v78, {12*win}, v78")
        a(f"v_lshl_add_u32 v{27+win}, v78, 16, v27")
    a("s_lshl_b32 s68, s2, 8")
    a("s_lshl_b32 s69, s25, 10")
    a(f"s_add_u32 m0, s69, {EIM + 4096}")
    a("s_waitcnt lgkmcnt(0)")
    srd(a, 36, "s4", "s5", N * 256)
    a("buffer_load_dwordx4 v26, s[36:39], s68 offen lds")
    a(f"s_add_u32 m0, s69, {EIM + 4096 + 16384}")
    srd_ws(a, 40, 22, CELL_OFF, (W2F_OFF - CELL_OFF) + FRAG_BYTES)
    a("buffer_load_dwordx4 v28, s[36:39], s68 offen lds")
    a(f"s_add_u32 m0, s69, {EIM + 4096 + 32768}")
    a("s_lshr_b32 s66, s2, 3")
    a("buffer_load_dwordx4 v29, s[36:39], s68 offen lds")
    a(f"s_mul_i32 s66, s66, {34*128}")
    a(f"s_mul_i32 s67, s25, {9*128}")
    a("s_add_u32 s66, s66, s67")
    a(f"s_add_u32 s66, s66, {W2F_OFF - CELL_OFF}")
    a("v_min_u32 v30, 8, v1")
    a("v_lshlrev_b32 v30, 7, v30")
    a("buffer_load_dword v134, v30, s[40:43], s66 offen")
    a.label("K2_CM")
    a("s_mul_i32 s71, s26, 12")
    a("s_lshl_b32 s56, s26, 14")
    a(f"s_add_u32 s56, s56, {EIM}")
    a("s_lshl_b32 s69, s25, 10")
    a("s_add_u32 s59, s56, s69")
    a("s_lshl_b32 s66, s24, 13")
    a(f"s_add_u32 s73, s66, {W2F_OFF - CELL_OFF}")
    a("s_cmp_lt_u32 s24, 8")
    a(f"s_cselect_b32 s73, s73, {KILL:#x}")
    a("s_add_u32 s74, s73, 4096")
    a("s_lshl_b32 s72, s25, 11")
    a(f"s_add_u32 s72, s72, {WCF_OFF - CELL_OFF}")
    a(f"v_add_u32 v156, {OH}, v24")
    for i in range(4): a(f"v_mov_b32 v{144+i}, 0")
    a(f"v_mov_b32 v31, {N}")
    a(f"v_mov_b32 v152, {E}")
    a(f"v_cmp_gt_u32 vcc, {EOFF - ZERO}, v24")
    a("v_mov_b32 v153, v152")
    a("v_mov_b32 v154, v152")
    a("v_cndmask_b32 v148, v152, v31, vcc")
    a("v_mov_b32 v155, v152")
    for i in range(1, 4): a(f"v_mov_b32 v{148+i}, v148")
    a(f"v_cmpx_le_u32 vcc, {IDX - ZERO}, v24")
    a(f"ds_write_b128 v156, v[148:151] offset:{4*12288}")
    a("s_mov_b64 exec, -1")
    a("s_cmp_lg_u32 s24, 0")
    a("s_cbranch_scc1 K2_I0")
    for i in range(3): a(f"ds_write_b128 v156, v[144:147] offset:{4*12288 + i*1024}")
    a("s_mov_b64 exec, 0xffff")
    a(f"ds_write_b128 v156, v[144:147] offset:{4*12288 + 3072}")
    a("s_mov_b64 exec, -1")
    a.label("K2_I0")
    for i in range(4): a(f"ds_write_b128 v156, v[144:147] offset:{i*12288}")
    a("s_cmp_lt_u32 s24, 4")
    a("s_cbranch_scc0 K2_I1")
    a(f"ds_write_b128 v156, v[152:155] offset:{5*12288}")
    a.label("K2_I1")
    a("v_lshrrev_b32 v72, 2, v0")
    if opt.get("stamps"):
        a("v_mov_b32 v0, 0"); a("v_writelane_b32 v0, s98, 0")
        a("s_getreg_b32 s96, hwreg(HW_REG_XCC_ID)"); a("v_writelane_b32 v0, s96, 15")
    a(f"v_mov_b32 v111, {FLAG}")
    a("v_mov_b32 v114, 1")
    a("s_lshl_b32 s57, s24, 12")
    a("s_lshl_b32 s58, s25, 7")
    if opt.get("hs", 0):
        a("s_cmp_ge_u32 s24, 8")
        a("s_cbranch_scc1 K2_HQ")
    a.label("K2_SET")
    a("s_mov_b32 s84, s6")
    a("s_and_b32 s85, s7, 0xffff")
    a(f"s_or_b32 s85, s85, {32 << 16:#x}")
    a("s_mov_b32 s87, 0x00020000")
    a(f"s_add_u32 s32, s22, {P_OFF - 3072}")
    a("s_addc_u32 s33, s23, 0")
    a("s_and_b32 s33, s33, 0xffff")
    a(f"s_or_b32 s33, s33, {512 << 16:#x}")
    a(f"s_mov_b32 s34, {N+1}")
    a("s_mov_b32 s35, 0x00020000")
    srd(a, 44, "s20", "s21", N * 256)
    H_, I_, T0, T1 = 77, 78, 105, 106
    a(f"v_lshrrev_b32 v{H_}, 5, v1")
    a(f"v_and_b32 v{I_}, 31, v1")
    a(f"v_bfe_u32 v{T0}, v1, 3, 2")
    a(f"v_bfe_u32 v{T1}, v1, 1, 1")
    a(f"v_lshl_or_b32 v{T0}, v{T0}, 1, v{T1}")
    a(f"v_and_b32 v{T1}, 1, v1")
    a(f"v_lshl_or_b32 v{T0}, v{T1}, 3, v{T0}")
    a(f"v_and_b32 v{T1}, 4, v1")
    a(f"v_lshl_or_b32 v{T0}, v{T1}, 2, v{T0}")
    a("s_mov_b32 m0, s57")
    for k in range(4): a(f"s_add_u32 s{28+k}, s58, {(3-k)*1024}")
    a(f"v_and_b32 v{T1}, 3, v1")
    a(f"v_lshl_add_u32 v{aAP}, v{T1}, 3, s57")
    a(f"v_and_b32 v{T1}, 16, v1")
    a(f"v_lshl_add_u32 v{aAP}, v{T1}, 1, v{aAP}")
    a(f"v_lshl_add_u32 v{aAP}, v{H_}, 11, v{aAP}")
    a(f"v_and_b32 v{T1}, 8, v1")
    a(f"v_mul_u32_u24 v{T1}, {(1024 + 64) // 8}, v{T1}")
    a(f"v_add_u32 v{aAP}, v{aAP}, v{T1}")
    a(f"v_not_b32 v{T1}, v1")
    a(f"v_and_b32 v{T1}, 4, v{T1}")
    a(f"v_lshl_add_u32 v{aAP}, v{T1}, 5, v{aAP}")
    a(f"v_xor_b32 v{aAP+1}, 64, v{aAP}")
    a(f"v_bfe_u32 v{T1}, v{T0}, 3, 1")
    a(f"v_xor_b32 v{T1}, v{T1}, v{H_}")
    a(f"v_lshl_add_u32 v{T1}, v{T1}, 4, s56")
    a(f"v_lshl_add_u32 v110, v{T0}, 5, v{T1}")
    a(f"s_add_u32 s52, s56, {OH - EIM}")
    a(f"v_lshl_add_u32 v{T1}, v{H_}, 4, s52")
    a(f"v_lshl_add_u32 v{aAO}, v{T0}, 5, v{T1}")
    a("s_lshl_b32 s66, s26, 11")
    a(f"s_add_u32 s67, s66, {EOFF}")
    a(f"s_add_u32 s66, s66, {IDX}")
    a(f"v_and_b32 v{T1}, 62, v1")
    a(f"v_lshl_add_u32 v{aEI}, v{T1}, 1, s67")
    a(f"v_lshrrev_b32 v{T1}, 3, v1")
    a(f"v_lshl_add_u32 v{aIDX}, v{T1}, 2, s66")
    a(f"v_add_u32 v4, s58, v{aEI}")
    SOFF = 104
    a(f"v_and_b32 v{T1}, 8, v1")
    a(f"v_lshl_add_u32 v{SOFF}, v{T1}, 4, s52")
    a(f"v_lshl_add_u32 v{SOFF}, v{H_}, 9, v{SOFF}")
    a(f"v_and_b32 v{T1}, 4, v1")
    a(f"v_lshl_add_u32 v{SOFF}, v{T1}, 6, v{SOFF}")
    a(f"v_and_b32 v{T1}, 3, v1")
    a(f"v_lshl_add_u32 v{SOFF}, v{T1}, 3, v{SOFF}")
    a("s_mov_b32 s62, 0xffff\ns_mov_b32 s63, 0xffff\ns_mov_b32 s64, 0xffff0000\ns_mov_b32 s65, 0xffff0000")
    a(f"v_mov_b32 v{T0}, {ZERO}")
    a(f"v_cndmask_b32 v{aS1}, v{T0}, v{SOFF}, s[62:63]")
    a(f"v_cndmask_b32 v{aS2}, v{T0}, v{SOFF}, s[64:65]")
    a(f"v_lshrrev_b32 v{T1}, 4, v1")
    a(f"v_xor_b32 v{T1}, v{T1}, v1")
    a(f"v_mov_b32 v{EI}, -1")
    a(f"v_and_b32 v{EI+1}, 1, v{T1}")
    a(f"v_lshlrev_b32 v{EI+1}, 4, v{EI+1}")
    a(f"v_and_b32 v{T1}, 7, v1")
    a(f"v_lshlrev_b32 v{IX[0]+1}, 4, v{T1}")
    a(f"v_xor_b32 v{IX[1]+1}, 64, v{IX[0]+1}")
    a(f"v_mov_b32 v{IX[2]+1}, v{IX[0]+1}")
    a(f"v_mov_b32 v{IX[3]+1}, v{IX[1]+1}")
    a("v_mov_b32 v75, 0x3f80")
    a("s_lshl_b32 s66, s25, 11")
    a("s_add_u32 s67, s56, s66")
    a(f"v_add_u32 v115, s67, v{L16}")
    a("s_mov_b32 s55, 0")
    a("s_mov_b32 s60, 0")
    a("s_mov_b32 s61, s25")
    a("s_cmp_ge_u32 s24, 8")
    a("s_cbranch_scc1 K2_HP" if opt.get("hs", 0) else "s_cbranch_scc1 K2_HQ")
    RA, RK = 32, 40
    SB, TO, TW = 48, 56, 64
    TS, TE, TF, TP = 116, 124, 88, 96
    DYN = (1 << 13) | (1 << 25) | (1 << 26) | (1 << 39)
    a(f"s_mov_b32 s66, {CHUNK}")
    a("v_mul_u32_u24 v72, s66, v72")
    a(f"s_mov_b32 s78, {CNT}")
    a("v_lshl_add_u32 v76, v1, 2, s78")
    a(f"s_mov_b32 s79, {IDX}")
    a(f"s_mov_b32 s80, {OH}")
    a("s_mov_b32 s81, 0")
    a(f"s_mov_b32 s68, {DYN & 0xffffffff:#x}")
    a(f"s_mov_b32 s69, {DYN >> 32:#x}")
    for k in range(8): a(f"v_mov_b32 v{RK+k}, -1")
    if opt.get("cls", 0) >= 4:
        mp = {4: [0,1,2,2,3,3,3,4,4,4], 5: [0,1,1,2,2,3,3,4,4,4], 6: [0,1,2,3,3,4,4,4,4,4]}[opt["cls"]]
        a(f"s_mov_b32 s75, {sum(c << (3*i) for i, c in enumerate(mp)):#x}")
    if opt.get("cls") in (1, 3):
        a("v_mov_b32 v77, s26")
        a("v_sub_u32 v78, 3, v77")
    if opt.get("cls") == 2:
        a("s_lshr_b32 s66, s24, 1")
        a("v_mov_b32 v77, s66")
    a("v_mov_b32 v73, -24")
    QM = opt.get("qm", 1)
    U = 4 if QM else 8
    a(f"v_mov_b32 v74, {11*U}")
    a("v_cndmask_b32 v73, 0, v73, s[68:69]")
    a("s_cmp_lg_u32 s24, 0")
    a("s_cbranch_scc1 K2_NCI")
    a(f"v_lshlrev_b32 v105, {18 if QM else 19}, v1")
    a(f"s_mov_b64 exec, {1 << 12:#x}")
    a(f"v_add_u32 v105, {(512 - 12*U) << 16:#x}, v105")
    a(f"s_mov_b64 exec, {(1 << 25) - (1 << 14):#x}")
    a(f"v_add_u32 v105, {(512 - 13*U) << 16:#x}, v105")
    a("s_mov_b32 exec_lo, 0xf8000000")
    a("s_mov_b32 exec_hi, 0x7f")
    a(f"v_add_u32 v105, {(1024 - 27*U) << 16:#x}, v105")
    a("s_mov_b64 exec, s[68:69]")
    a("v_mov_b32 v105, 24")
    a("s_mov_b32 exec_lo, -1")
    a("s_mov_b32 exec_hi, 0xff")
    for c in range(5): a(f"ds_write_b32 v76, v105 offset:{c*512}")
    a("s_mov_b64 exec, -1")
    a.label("K2_NCI")
    a(f"buffer_load_dwordx4 {q4(BC[0])}, v{L16}, s[40:43], s72 offen")
    a(f"buffer_load_dwordx4 {q4(BC[1])}, v{L16}, s[40:43], s72 offen offset:1024")
    a("s_waitcnt lgkmcnt(0)")
    stp(1)
    a("s_barrier")
    a("s_waitcnt vmcnt(3)")
    stp(2)
    NOCL = opt.get("nocl", 0)
    def count(ks):
        for k in ks:
            a(f"v_and_b32 v{RA+k}, 63, v{16+k}")
            CLS = opt.get("cls", 0)
            if CLS == 1:
                a(f"v_cmp_lt_u32 vcc, {5000 << 18:#x}, v{16+k}")
                a("s_nop 1")
                a(f"v_cndmask_b32 v{TF+k}, v77, v78, vcc")
            elif CLS >= 4:
                a(f"v_lshrrev_b32 v{TF+k}, 28, v{16+k}")
                a(f"v_lshl_add_u32 v{TF+k}, v{TF+k}, 1, v{TF+k}")
                a(f"v_bfe_u32 v{TF+k}, s75, v{TF+k}, 3")
            elif CLS == 2: a(f"v_mov_b32 v{TF+k}, v77")
            elif CLS == 3:
                a(f"v_lshrrev_b32 v{TF+k}, 30, v{16+k}")
                a(f"v_cmp_eq_u32 vcc, 0, v{TF+k}")
                a(f"v_add_u32 v{TF+k}, 1, v{TF+k}")
                a("s_nop 0")
                a(f"v_cndmask_b32 v{TF+k}, v{TF+k}, v77, vcc")
            else: a(f"v_lshrrev_b32 v{TF+k}, 29, v{16+k}" if not NOCL else f"v_mov_b32 v{TF+k}, 0")
            a(f"v_lshl_add_u32 v{RA+k}, v{RA+k}, 2, s78")
            a(f"v_lshl_add_u32 v{RA+k}, v{TF+k}, 9, v{RA+k}")
        for k in ks:
            a(f"v_cmpx_gt_u32 vcc, -2, v{16+k}")
            a(f"ds_add_rtn_u32 v{RK+k}, v{RA+k}, v114")
        a("s_mov_b64 exec, -1")
    def decode(ks):
        for k in ks:
            a(f"v_lshrrev_b32 v{TS+k}, {18 + opt.get('pshift', 0)}, v{16+k}")
            a(f"v_bfe_u32 v{TE+k}, v{16+k}, 6, 12")
            a(f"v_add_u32 v{TE+k}, v{TE+k}, v72")
            if opt.get("eshift"): a(f"v_lshrrev_b32 v{TE+k}, {opt['eshift']}, v{TE+k}")
            a(f"v_and_b32 v{TO+k}, 15, v{16+k}")
            a(f"v_lshl_add_u32 v{TO+k}, v{TO+k}, 1, s80")
            a(f"v_mad_i32_i24 v{TF+k}, v{TF+k}, -7, 28")
    SD = "dst_sel:DWORD dst_unused:UNUSED_PAD"
    def pos_ops(k):
        return [f"v_bfe_u32 v{TP+k}, v{TP+k}, v{TF+k}, 7",
                f"v_add_u32_sdwa v{TP+k}, v{TP+k}, v{RK+k} {SD} src0_sel:DWORD src1_sel:WORD_0",
                f"v_add_u32_sdwa v{TF+k}, v{TP+k}, v{RK+k} {SD} src0_sel:DWORD src1_sel:WORD_1",
                f"v_lshrrev_b32 v{TW+k}, {2 if QM else 3}, v{TP+k}",
                f"v_mad_u32_u24 v{TF+k}, v{TW+k}, v74, v{TF+k}"]
    def scatter(ks):
        for k in ks:
            a(f"v_add_u32 v{SB+k}, v{SB+k}, v{TP+k}")
        for k in ks:
            a(f"v_cmp_gt_u32 vcc, s76, v{SB+k}")
            a(f"v_cmp_gt_u32 s[68:69], s77, v{SB+k}")
            a(f"v_cmp_gt_u32 s[82:83], 24, v{TP+k}")
            a(f"s_nop 0")
            a(f"v_cndmask_b32 v{TW+k}, v107, v106, s[68:69]")
            a(f"v_cndmask_b32 v{TW+k}, v{TW+k}, v105, vcc")
            a(f"v_add_u32 v{SB+k}, v{SB+k}, v{TW+k}")
            a(f"v_cndmask_b32 v{SB+k}, v{SB+k}, v{TF+k}, s[82:83]")
            a(f"v_lshl_add_u32 v{TO+k}, v{SB+k}, 5, v{TO+k}")
            a(f"v_lshl_add_u32 v{SB+k}, v{SB+k}, 2, s79")
        for k in ks:
            a(f"v_cmpx_gt_u32 vcc, -2, v{16+k}")
            a(f"ds_write2st64_b32 v{SB+k}, v{TS+k}, v{TE+k} offset0:0 offset1:{(EOFF-IDX)//256}")
            a(f"ds_write_b16 v{TO+k}, v75")
        a("s_mov_b64 exec, -1")
    def arrive(off):
        a("s_mov_b64 exec, 1")
        a(f"ds_add_u32 v111, v114 offset:{off}")
        a("s_mov_b64 exec, -1")
    a("v_mov_b32_dpp v25, v19 quad_perm:[3,3,3,3] row_mask:0xf bank_mask:0xf")
    count(range(4))
    a("v_cmp_ne_u32 vcc, -1, v25")
    a("s_nop 1")
    a("s_cbranch_vccz K2_C1")
    a("s_waitcnt vmcnt(2)")
    for k in range(4): a(f"v_cndmask_b32 v{20+k}, -1, v{20+k}, vcc")
    a("s_mov_b32 s81, 1")
    count([4])
    a("v_cmp_ne_u32 vcc, -1, v21")
    decode([4])
    a("s_cbranch_vccnz K2_CX")
    a.label("K2_C1")
    arrive(4)
    decode(range(4))
    a.label("K2_SB1")
    a("ds_read_b64 v[108:109], v111")
    for c in range(5): a(f"ds_read_u16 v{26+c}, v76 offset:{c*512}")
    a("s_waitcnt lgkmcnt(0)")
    a("v_readfirstlane_b32 s66, v109")
    a("v_add_u32 v26, v26, v73")
    a("s_cmp_lt_u32 s66, 8")
    a("s_cbranch_scc1 K2_SB1")
    stp(3)
    a("v_add3_u32 v27, v26, v27, v73")
    a("v_add3_u32 v28, v27, v28, v73")
    a("v_lshl_or_b32 v31, v26, 7, v27")
    a("v_add3_u32 v29, v28, v29, v73")
    a("v_lshl_or_b32 v31, v31, 7, v28")
    a("v_readfirstlane_b32 s82, v108")
    a("v_lshl_or_b32 v31, v31, 7, v29")
    for k in range(5): a(f"ds_bpermute_b32 v{TP+k}, v{RA+k}, v31")
    a("v_add_u32 v30, v29, v30")
    a("v_cmp_lt_u32 vcc, 0x7f, v29")
    a("v_max_u32 v105, 24, v30")
    a("v_add_u32 v105, -21, v105")
    a("v_and_b32 v105, -4, v105")
    a("s_or_b32 s82, s82, s70")
    a("s_or_b32 s82, s82, vcc_lo")
    a("v_add_u32_dpp v107, v105, v105 row_shr:1 row_mask:0xf bank_mask:0xf bound_ctrl:0")
    a("s_or_b32 s82, s82, vcc_hi")
    a("v_add_u32 v30, v30, v73")
    a("v_add_u32_dpp v107, v107, v107 row_shr:2 row_mask:0xf bank_mask:0xf bound_ctrl:0")
    a("s_cmp_lg_u32 s82, 0")
    a("s_cbranch_scc1 K2_BAD")
    a("v_add_u32_dpp v107, v107, v107 row_shr:4 row_mask:0xf bank_mask:0xf bound_ctrl:0")
    a("s_waitcnt lgkmcnt(0)")
    def stat(ks):
        for k in ks:
            a("\n".join(pos_ops(k)))
            a(f"v_lshl_add_u32 v{TW+k}, v{TF+k}, 5, v{TO+k}")
            a(f"v_lshl_add_u32 v{TF+k}, v{TF+k}, 2, s79")
            a(f"v_cmpx_gt_u32 vcc, 24, v{TP+k}")
            a(f"ds_write2st64_b32 v{TF+k}, v{TS+k}, v{TE+k} offset0:0 offset1:{(EOFF-IDX)//256}")
            a(f"ds_write_b16 v{TW+k}, v75")
            a("s_mov_b64 exec, -1")
    def late(ks):
        for k in ks:
            a(f"v_add_u32 v{SB+k}, v{SB+k}, v{TP+k}")
            a(f"v_cmp_gt_u32 vcc, s76, v{SB+k}")
            a(f"v_cmp_gt_u32 s[68:69], s77, v{SB+k}")
            a(f"v_cmpx_le_u32 s[82:83], 24, v{TP+k}")
            a(f"v_cmpx_gt_u32 s[82:83], -2, v{16+k}")
            a(f"v_cndmask_b32 v{TW+k}, v107, v106, s[68:69]")
            a(f"v_cndmask_b32 v{TW+k}, v{TW+k}, v105, vcc")
            a(f"v_add_u32 v{SB+k}, v{SB+k}, v{TW+k}")
            a(f"v_lshl_add_u32 v{TO+k}, v{SB+k}, 5, v{TO+k}")
            a(f"v_lshl_add_u32 v{SB+k}, v{SB+k}, 2, s79")
            a(f"ds_write2st64_b32 v{SB+k}, v{TS+k}, v{TE+k} offset0:0 offset1:{(EOFF-IDX)//256}")
            a(f"ds_write_b16 v{TO+k}, v75")
            a("s_mov_b64 exec, -1")
    stat(range(4))
    a("s_cmp_eq_u32 s81, 0")
    a("s_cbranch_scc1 K2_S0")
    stat([4])
    a("s_cmp_lg_u32 s81, 1")
    a("s_cbranch_scc1 K2_SY")
    a.label("K2_S0")
    arrive(8)
    nlw = [0]
    def lwait(off, n, vt=109, va=111, extra=None, sleep=1):
        nlw[0] += 1; t = nlw[0]
        a.label(f"LW{t}")
        a(f"ds_read_b32 v{vt}, v{va} offset:{off}")
        if extra: extra()
        a("s_waitcnt lgkmcnt(0)")
        a(f"v_readfirstlane_b32 s66, v{vt}")
        a("s_nop 0")
        a(f"s_cmp_ge_u32 s66, {n}")
        a(f"s_cbranch_scc1 LX{t}")
        if sleep: a(f"s_sleep {sleep}")
        a(f"s_branch LW{t}")
        a.label(f"LX{t}")
    def g0_addr(): pass
    def first_reads():
        for k in range(4): a(f"ds_read_b32 v{IX[k]}, v{aIDX} offset:{k*32}")
        a(f"ds_read_b32 v{EI}, v4")
    nfl = [0]
    LATE = 0
    EA = opt.get("ea", 0)
    def first_loads():
        nfl[0] += 1
        a("s_cmp_lg_u32 s25, 0")
        a(f"s_cbranch_scc1 K2_FL{nfl[0]}")
        a("\n".join(e_dma()))
        a.label(f"K2_FL{nfl[0]}")
        a("\n".join(p_dma()))
        if EA:
            a("s_cmp_eq_u32 s25, 0")
            a(f"s_cbranch_scc1 K2_FM{nfl[0]}")
            a("\n".join(e_dma()))
            a.label(f"K2_FM{nfl[0]}")
    def sb2(tag):
        a.label(f"K2_SB2{tag}")
        a("ds_read_b32 v109, v111 offset:8")
        first_reads()
        a("s_waitcnt lgkmcnt(0)")
        a("v_readfirstlane_b32 s66, v109")
        a("s_nop 0")
        a(f"s_cmp_lt_u32 s66, {12 if opt.get('wg', 1) else 8}")
        a(f"s_cbranch_scc1 K2_SB2{tag}")
        stp(4)
        first_loads()
    a(f"ds_write_b32 v76, v30 offset:{DEG - CNT}")
    a("v_add_u32_dpp v107, v107, v107 row_shr:8 row_mask:0xf bank_mask:0xf bound_ctrl:0")
    a("s_mov_b32 s53, 9")
    a("s_nop 0")
    a("v_add_u32_dpp v107, v107, v107 row_bcast:15 row_mask:0xa bank_mask:0xf")
    a("s_nop 1")
    a("v_add_u32_dpp v107, v107, v107 row_bcast:31 row_mask:0xc bank_mask:0xf")
    a("v_sub_u32 v108, v107, v105")
    a("v_readlane_b32 s83, v107, 63")
    for k in range(5): a(f"ds_bpermute_b32 v{SB+k}, v{RA+k}, v108")
    R1L = opt.get("r1l", 1)
    if R1L:
        a("s_cmp_lg_u32 s26, 0")
        a("s_cbranch_scc1 K2_NE1")
    sb2("a")
    if R1L: a.label("K2_NE1")
    a("v_readlane_b32 s76, v108, 12")
    a("v_readlane_b32 s77, v108, 16")
    a("v_readlane_b32 s68, v108, 24")
    a("v_readlane_b32 s69, v108, 28")
    sal = ["s_add_u32 s88, s83, 95", "s_lshr_b32 s88, s88, 5", "s_mul_i32 s88, s88, 171", "s_lshr_b32 s88, s88, 9",
           "s_add_u32 s89, s76, 31", "s_lshr_b32 s89, s89, 5", "s_max_u32 s88, s88, s89", "s_lshr_b32 s89, s77, 5", "s_min_u32 s88, s88, s89",
           "s_lshl_b32 s88, s88, 5", "s_max_u32 s76, s88, s76",
           "s_sub_u32 s88, s83, s76", "s_add_u32 s88, s88, 63", "s_lshr_b32 s88, s88, 6",
           "s_sub_u32 s89, s68, s76", "s_add_u32 s89, s89, 31", "s_lshr_b32 s89, s89, 5", "s_max_u32 s88, s88, s89",
           "s_sub_u32 s89, s69, s76", "s_lshr_b32 s89, s89, 5", "s_min_u32 s88, s88, s89",
           "s_lshl_b32 s88, s88, 5", "s_add_u32 s88, s88, s76", "s_max_u32 s77, s88, s68",
           "s_sub_u32 s88, s83, 224", "s_max_i32 s77, s77, s88", "s_min_u32 s77, s77, s69",
           f"s_add_u32 s53, s76, {288+31}", "s_lshr_b32 s53, s53, 5",
           "s_sub_u32 s90, s77, s76", f"s_add_u32 s90, s90, {288+31}", "s_lshr_b32 s90, s90, 5",
           "s_sub_u32 s91, s83, s77", f"s_add_u32 s91, s91, {288+31}", "s_lshr_b32 s91, s91, 5",
           f"s_sub_u32 s88, {512+288-24}, s76", f"s_sub_u32 s89, {1024+288-24}, s77",
           "s_add_u32 s76, s76, 24", "s_add_u32 s77, s77, 24",
           "s_max_u32 s92, s90, s53", "s_max_u32 s92, s92, s91"]
    a("\n".join(sal))
    a("s_cmp_gt_u32 s92, 16")
    a("s_cbranch_scc1 K2_BAD")
    if opt.get("force_slow"): a("s_branch K2_BAD")
    a("v_mov_b32 v106, s91")
    a("ds_write_b32 v111, v106 offset:16")
    a("s_cmp_eq_u32 s26, 1")
    a("s_cselect_b32 s53, s90, s53")
    a(f"v_mov_b32 v105, {288-24}")
    a("s_waitcnt lgkmcnt(0)")
    a("v_mov_b32 v106, s88")
    a("v_mov_b32 v107, s89")
    late(range(4))
    a("s_cmp_eq_u32 s81, 0")
    a("s_cbranch_scc1 K2_S1")
    late([4])
    a("s_cmp_lg_u32 s81, 1")
    a("s_cbranch_scc1 K2_SX")
    a.label("K2_S1")
    arrive(40)
    if R1L:
        a("s_cmp_eq_u32 s26, 0")
        a("s_cbranch_scc1 K2_NE2")
        sb2("b")
        a.label("K2_NE2")
    a("s_branch K2_QD")
    a.label("K2_HQ")
    WA, QA, QB, XA, BIAS = 32, 16, 116, 132, 112
    a(f"v_lshrrev_b32 v{H_}, 5, v1")
    a("s_lshl_b32 s66, s25, 11")
    a(f"v_and_b32 v{T0}, 3, v1")
    a(f"v_and_b32 v{T1}, 4, v1")
    a(f"v_lshl_or_b32 v{T0}, v{T1}, 1, v{T0}")
    a(f"v_bfe_u32 v{T1}, v1, 3, 1")
    a(f"v_lshl_or_b32 v{T0}, v{T1}, 2, v{T0}")
    a(f"v_xor_b32 v{T1}, v{T0}, v{H_}")
    a(f"v_lshlrev_b32 v{T1}, 4, v{T1}")
    a(f"v_lshl_add_u32 v{XA}, v{T0}, 8, v{T1}")
    a(f"v_and_b32 v{T1}, 16, v1")
    a(f"v_lshl_add_u32 v{XA}, v{T1}, 10, v{XA}")
    a(f"v_add_u32 v{XA}, {EIM + 4096}, v{XA}")
    a(f"s_add_u32 s67, s66, {EIM + 8192}")
    a(f"v_add_u32 v107, s67, v{L16}")
    srd(a, 48, "s14", "s15", 512)
    a("v_and_b32 v108, 1, v1")
    a("v_and_b32 v109, 30, v1")
    a("v_lshl_add_u32 v108, v108, 6, v109")
    a("s_lshl_b32 s66, s25, 14")
    a(f"s_add_u32 s76, s66, {W1BF_OFF - CELL_OFF}")
    for i in range(1, 4): a(f"s_add_u32 s{76+i}, s76, {i*4096}")
    PFT = opt.get("pft", 0)
    if PFT:
        srd_ws(a, 92, 22, P_OFF, N * 512)
        a("s_lshr_b32 s80, s2, 3")
        a(f"s_mul_i32 s80, s80, {PFT*256*128}")
        a("s_lshl_b32 s81, s25, 13")
        a("s_add_u32 s80, s80, s81")
        a("v_lshlrev_b32 v109, 7, v1")
    a(f"s_mov_b32 s68, {NEGLOG2E:#x}")
    a(f"s_mov_b32 s69, {NEGLOG2E:#x}")
    a(f"buffer_load_ushort v{BIAS}, v108, s[48:51], s58 offen")
    a(f"buffer_load_ushort v{BIAS+1}, v108, s[48:51], s58 offen offset:32")
    a(f"buffer_load_dwordx4 {q4(BC[0])}, v{L16}, s[40:43], s72 offen")
    a(f"buffer_load_dwordx4 {q4(BC[1])}, v{L16}, s[40:43], s72 offen offset:1024")
    a("s_mov_b32 s53, 9")
    def wr(i): return WA + 4*i if i not in (12, 13) else 96 + 4*(i - 12)
    a("s_waitcnt lgkmcnt(0)")
    stp(1)
    a("s_barrier")
    for i in [x for k in range(8) for x in (k, 8 + k)]:
        a(f"buffer_load_dwordx4 {q4(wr(i))}, v{L16}, s[40:43], s{76 + (i >> 2)} offen offset:{(i & 3)*1024}")
        if i == 15:
            if opt.get("wg", 1): arrive(8)
            a("s_waitcnt vmcnt(20)")
            arrive(12)
    for i in range(PFT):
        a("buffer_load_dword v135, v109, s[92:95], s80 offen")
        a(f"s_add_u32 s80, s80, {256*128}")
    stp(2)
    a.label("K2_HS")
    a("ds_read_b32 v108, v111 offset:12")
    a("s_waitcnt lgkmcnt(0)")
    a("v_readfirstlane_b32 s66, v108")
    a("s_nop 0")
    a("s_cmp_lt_u32 s66, 4")
    a("s_cbranch_scc1 K2_HS")
    def xread(step):
        sidx = step & 7; st_ = step % 4
        if sidx: a(f"v_xor_b32 v{XA+1}, {sidx << 5}, v{XA}")
        r = XA + 1 if sidx else XA
        a(f"ds_read_b128 {q4(WP+4*st_)}, v{r} offset:{32768 if step >= 8 else 0}")
    for st in range(4): xread(st)
    if opt.get("qp", 1): a("s_setprio 3")
    a(f"s_waitcnt vmcnt({16 + PFT})")
    a(f"v_lshlrev_b32 v{BIAS}, 16, v{BIAS}")
    a(f"v_lshlrev_b32 v{BIAS+1}, 16, v{BIAS+1}")
    a(f"v_mul_f32 v{BIAS}, s68, v{BIAS}")
    a(f"v_mul_f32 v{BIAS+1}, s68, v{BIAS+1}")
    CV = 160
    for P_ in range(2):
        for sidx in range(8):
            step = 8*P_ + sidx; st_ = step % 4
            if P_ == 0: a(f"s_waitcnt vmcnt({14 - 2*sidx + PFT}) lgkmcnt(3)")
            elif sidx >= 4: a(f"s_waitcnt lgkmcnt({min(3, 15 - step)})")
            a(f"v_mfma_f32_32x32x16_bf16 {x16(QA)}, {q4(WP+4*st_)}, {q4(wr(sidx))}, {'0' if sidx == 0 else x16(QA)}")
            a(f"v_mfma_f32_32x32x16_bf16 {x16(QB)}, {q4(WP+4*st_)}, {q4(wr(8+sidx))}, {'0' if sidx == 0 else x16(QB)}")
            if step + 4 < 16: xread(step + 4)
        a("s_nop 10")
        n = 0
        for wi in range(2 if P_ == 0 else 1):
            for X, base in enumerate((QA, QB)):
                b = base + 8*wi
                dstr = (CV + 4*(n & 1)) if P_ == 0 else BQ[X]
                for k in range(8):
                    a(f"v_fma_f32 v{b+k}, v{b+k}, s68, v{BIAS+X}")
                if P_ == 0 and n == 2: a("s_waitcnt lgkmcnt(0)")
                for k in range(4):
                    a(f"v_cvt_pk_bf16_f32 v{dstr+k}, v{b+2*k}, v{b+2*k+1}")
                a(f"ds_write_b128 v107, {q4(dstr)} offset:{(wi + 2*P_)*16384 + X*1024}")
                n += 1
        if P_ == 0:
            arrive(36)
            if opt.get("qp", 1): a("s_setprio 0")
            stp(3)
            sb2("h")
    arrive(44)
    a.label("K2_QD")
    a("v_mov_b32 v167, v111")
    a(f"v_mov_b32 v166, v4")
    a(f"v_mov_b32 v{aAE}, v110")
    a(f"v_mov_b32 v{MG}, -1")
    for k in range(4): a(f"ds_read_b32 v{IX[k]}, v{aIDX} offset:{128+k*32}")
    a(f"ds_read_b128 {q4(AO)}, v{aAO}")
    def bq_reads():
        a(f"ds_read_b128 {q4(BQ[0])}, v115 offset:8192")
        a(f"ds_read_b128 {q4(BQ[1])}, v115 offset:9216")
    stp(5)
    for i in range(16): a(f"v_mov_b32 v{ACC+i}, 0")
    a(f"v_mov_b32 v{CHK}, 0\nv_mov_b32 v{CHK+1}, 0")
    T3, T2, T1_ = opt.get("t3", 6), opt.get("t2", 3), opt.get("t1", 1)
    if OCT[0]:
        a(f"v_mov_b32 v{HQ+1}, 0")
    def flag_wait(tag, off):
        a.label(f"K2_W{tag}")
        a(f"ds_read_b32 v{FV}, v{aEI} offset:{off}")
        a("s_waitcnt lgkmcnt(0)")
        a(f"v_readfirstlane_b32 s66, v{FV}")
        a("s_nop 0")
        a("s_cmp_eq_u32 s66, -1")
        a(f"s_cbranch_scc1 K2_X{tag}")
        a("s_sleep 1")
        a(f"s_branch K2_W{tag}")
        a.label(f"K2_X{tag}")
    if LATE:
        a("s_max_i32 s90, s90, 1")
        a("s_min_u32 s90, s90, s53")
        a("s_min_u32 s67, s53, 2")
        a("s_cmp_ge_u32 s25, s67")
        a("s_waitcnt vmcnt(0)")
        a("s_cbranch_scc1 K2_NF")
        a(f"ds_write_b32 v166, v{MG}")
        a.label("K2_NF")
        for m in range(4): a(f"ds_read_b128 {q4(AP[m])}, v{aAP+m}")
        a("s_waitcnt lgkmcnt(0)")
        a("\n".join(p_dma()))
        a("s_cmp_lt_u32 s25, 2")
        a("s_cbranch_scc1 K2_F2")
        a("\n".join(e_dma()))
        a.label("K2_F2")
        for i in range(4): a(f"v_mov_b32 v{HQ+i}, 0")
        a("s_cmp_eq_u32 s53, 0")
        a("s_cbranch_scc1 K2_EXIT")
        flag_wait("A", 0)
        a(f"ds_read_b128 {q4(AE)}, v{aAE}")
        stp(6)
        stc(12)
        if opt.get("prio", 1): a("s_setprio 3")
        a("s_sub_u32 s68, 0, s25")
        a("s_and_b32 s68, s68, 3")
        a("s_lshl_b32 s67, s68, 7")
        a("s_lshl_b32 s69, s68, 10")
        a(f"v_subrev_u32 v{aAO}, s69, v{aAO}")
        a(f"v_subrev_u32 v{aAE}, s69, v{aAE}")
        a(f"v_subrev_u32 v{aIDX}, s67, v{aIDX}")
        a(f"v_subrev_u32 v{aEI}, s67, v{aEI}")
        a("s_mov_b64 exec, s[62:63]")
        a(f"v_subrev_u32 v{aS1}, s69, v{aS1}")
        a("s_mov_b64 exec, s[64:65]")
        a(f"v_subrev_u32 v{aS2}, s69, v{aS2}")
        a("s_mov_b64 exec, -1")
        a("s_waitcnt lgkmcnt(0)")
        a("\n".join(mf_tile(0)))
        a("s_nop 8")
        a("s_cmp_eq_u32 s68, 1")
        a("s_cbranch_scc1 K2_U1")
        a("s_cmp_eq_u32 s68, 2")
        a("s_cbranch_scc1 K2_U2")
        a("s_cmp_eq_u32 s68, 3")
        a("s_cbranch_scc1 K2_U3")
    else:
        a("s_cmp_lg_u32 s25, 0")
        a(f"s_waitcnt vmcnt({1 if EA else 0})")
        a("s_cbranch_scc1 K2_NF")
        a("s_waitcnt vmcnt(0)")
        a(f"ds_write_b32 v166, v{MG}")
        a(f"ds_read_b32 v{EI}, v{aEI} offset:512")
        a.label("K2_NF")
        a("\n".join(p_reads()))
        a("s_waitcnt lgkmcnt(0)")
        a("\n".join(p_dma()))
        a("\n".join(p_shift(0) + p_shift(1)))
        a("s_sub_u32 s67, s25, 1")
        if not EA:
            a("s_cmp_ge_u32 s67, 2")
            a("s_cbranch_scc1 K2_F2")
            a("\n".join(e_dma()))
        a.label("K2_F2")
        a("s_cmp_eq_u32 s26, 2")
        a("s_cbranch_scc1 K2_NBQ")
        lwait(36, 4, vt=FV, va=167, extra=bq_reads)
        a.label("K2_NBQ")
        def flag_wait(tag, off):
            a.label(f"K2_W{tag}")
            a(f"ds_read_b32 v{FV}, v{aEI} offset:{off}")
            a("s_waitcnt lgkmcnt(0)")
            a(f"v_readfirstlane_b32 s66, v{FV}")
            a("s_nop 0")
            a("s_cmp_eq_u32 s66, -1")
            a(f"s_cbranch_scc1 K2_X{tag}")
            a("s_sleep 1")
            a(f"s_branch K2_W{tag}")
            a.label(f"K2_X{tag}")
        flag_wait("A", 0)
        a(f"ds_read_b128 {q4(AE)}, v{aAE}")
        stp(6)
        stc(12)
        if opt.get("prio", 1): a("s_setprio 3")
        a("s_waitcnt lgkmcnt(0)")
        a("\n".join(mf_tile(0)))
        a("s_nop 10")
        ex0 = {1: [f"ds_read_b32 v{IX[k]}, v{aIDX} offset:{256+k*32}" for k in range(4)]}
        ex1 = {1: [f"ds_read_b64_tr_b16 {pr(S)}, v{aS1}", f"ds_read_b64_tr_b16 {pr(S+2)}, v{aS2}", f"ds_read_b128 {q4(AO)}, v{aAO} offset:1024"]}
        a("\n".join(tile(0, mf_tile(1), ex0, [], [], "P0") + tile(1, [], ex1, [], ["s_waitcnt lgkmcnt(0)"], "P1")))
        a("s_mov_b32 s55, 1")
        a("s_cmp_lg_u32 s26, 2")
        a("s_cbranch_scc1 K2_NX2")
        lwait(44, 4, vt=FV, va=167)
        a.label("K2_NX2")
        lwait(40, 8, vt=FV, va=167, extra=lambda: a("ds_read_b32 v5, v167 offset:16"))
        a("v_readfirstlane_b32 s66, v5")
        a("s_cmp_eq_u32 s26, 2")
        a("s_cselect_b32 s53, s66, s53")
        a("s_cmp_eq_u32 s53, -1")
        a("s_cbranch_scc1 K2_SLOW")
        a("s_cmp_eq_u32 s26, 2")
        a(f"s_cselect_b32 s94, {opt.get('r2lag', 0)}, 0")
        a("s_sub_u32 s94, s53, s94")
        a(f"s_sub_u32 s90, s94, {T3}")
        a("s_max_i32 s90, s90, 2")
        a("s_mov_b32 s91, 0")
        a("s_sub_u32 s93, s53, 2")
        a(f"s_cmp_ge_u32 s67, {3 if EA else 2}")
        a("s_waitcnt vmcnt(0)")
        a("s_cbranch_scc1 K2_NF2")
        a(f"ds_write_b32 v166, v{MG}")
        a.label("K2_NF2")
        a("\n".join(p_reads()))
        a("s_waitcnt lgkmcnt(0)")
        a("\n".join(p_dma()))
        a("\n".join(p_shift(0) + p_shift(1)))
        a(f"s_cmp_lt_u32 s67, {3 if EA else 2}")
        a("s_cbranch_scc1 K2_F3")
        a("\n".join(e_dma()))
        a.label("K2_F3")
        flag_wait("B", 128)
        a(f"ds_read_b128 {q4(AE)}, v{aAE} offset:1024")
        a("s_sub_u32 s68, 1, s25")
        a("s_and_b32 s68, s68, 3")
        a("s_sub_u32 s69, 1, s68")
        a("s_lshl_b32 s67, s69, 7")
        a("s_lshl_b32 s69, s69, 10")
        a(f"v_add_u32 v{aAO}, s69, v{aAO}")
        a(f"v_add_u32 v{aAE}, s69, v{aAE}")
        a(f"v_add_u32 v{aIDX}, s67, v{aIDX}")
        a(f"v_add_u32 v{aEI}, s67, v{aEI}")
        a("s_mov_b64 exec, s[62:63]")
        a(f"v_add_u32 v{aS1}, s69, v{aS1}")
        a("s_mov_b64 exec, s[64:65]")
        a(f"v_add_u32 v{aS2}, s69, v{aS2}")
        a("s_mov_b64 exec, -1")
        a("s_waitcnt lgkmcnt(0)")
        a("\n".join(mf_tile(0)))
        a("s_nop 8")
        a("s_cmp_eq_u32 s68, 1")
        a("s_cbranch_scc1 K2_U1")
        a("s_cmp_eq_u32 s68, 2")
        a("s_cbranch_scc1 K2_U2")
        a("s_cmp_eq_u32 s68, 3")
        a("s_cbranch_scc1 K2_U3")
    EFL[0] = {0: "", 1: " nt", 2: " sc1"}[opt.get("efl", 0)]
    WPOS = opt.get("wpos", 5)
    MP0 = {0: (0, 3, 6), 1: (0, 4, 8), 2: (2, 6, 10)}[opt.get("mp0", 0)]
    a(".p2align 6")
    for _ in range(opt.get("shift", 0)): a("s_nop 0")
    loop_start = len(a.lines)
    for u in range(4):
        a.label(f"K2_U{u}")
        if LATE:
            upd = []
            if u == 3:
                upd = [f"v_add_u32 v{aAO}, 4096, v{aAO}", f"v_add_u32 v{aAE}, 4096, v{aAE}", f"v_add_u32 v{aIDX}, 512, v{aIDX}", f"v_add_u32 v{aEI}, 512, v{aEI}",
                       "s_mov_b64 exec, s[62:63]", f"v_add_u32 v{aS1}, 4096, v{aS1}", "s_mov_b64 exec, s[64:65]", f"v_add_u32 v{aS2}, 4096, v{aS2}", "s_mov_b64 exec, -1"]
            mid0 = [f"ds_read_b64_tr_b16 {pr(S)}, v{aS1} offset:{u*1024}", f"ds_read_b64_tr_b16 {pr(S+2)}, v{aS2} offset:{u*1024}",
                    f"ds_read_b128 {q4(AO)}, v{aAO} offset:{(u+1)*1024}"]
            t0 = tile(0, mf_tile(1) + [SEGSUM], {}, mid0, [])
            ex1 = {}
            ex1[1] = [f"ds_read_b32 v{FV}, v{aEI} offset:{(u+1)*128}"] + [f"ds_read_b32 v{IX[k]}, v{aIDX} offset:{(u+2)*128+k*32}" for k in range(4)]
            if u == 0: ex1[1] += [f"ds_read_b32 v{EI}, v{aEI} offset:512"]
            ex1[12] = ["s_waitcnt lgkmcnt(0)", f"v_readfirstlane_b32 s66, v{FV}"]
            mid = ["s_cmp_eq_u32 s66, -1", f"s_waitcnt vmcnt({1 if u == 1 else 0})"]
            mid += [f"ds_read_b128 {q4(AP[m])}, v{aAP+m}" for m in range(4)]
            mid += [f"s_cbranch_scc0 K2_FW{u}", f"K2_FR{u}:"]
            mid += [f"ds_read_b128 {q4(AE)}, v{aAE} offset:{(u+1)*1024}"]
            if opt.get("gstamps"): mid += ["s_memrealtime s[96:97]", "s_add_u32 m0, s55, 16"]
            t1 = tile(1, [], ex1, mid, [])
            mf = mf_tile(0)
            post = ["s_add_u32 s66, s55, 2", "s_cmp_ge_u32 s66, s53", "s_waitcnt lgkmcnt(0)"]
            if opt.get("gstamps"): post += ["v_writelane_b32 v0, s96, m0"]
            post += [f"s_cbranch_scc1 K2_ND{u}"]
            if u == 2: post += [f"ds_write_b32 v{aEI}, v{MG} offset:512"]
            for k in range(4):
                post += [f"s_add_u32 m0, s57, {k*1024}", mf[k], f"buffer_load_dwordx4 {pr(IX[k])}, s[32:35], s58 idxen offen{PFL[0]} lds"]
            post += [f"K2_NR{u}:"]
            if u == 0: post += e_dma()
            post += upd
            nst = 1 + (6 if u == 0 else 0) + len(upd) + 3 + (1 if u == 3 else 0) + 1
            if nst - 1 < 12: post += [f"s_nop {12 - (nst - 1) - 1}"]
            a("\n".join(t0 + t1 + post))
        else:
            ex0 = {}
            ex0[1] = [f"ds_read_b32 v{FV}, v{aEI} offset:{(u+1)*128}"] + [f"ds_read_b32 v{IX[k]}, v{aIDX} offset:{(u+2)*128+k*32}" for k in range(4)]
            if u == 0: ex0[1] += [f"ds_read_b32 v{EI}, v{aEI} offset:512"]
            ex0[12] = ["s_waitcnt lgkmcnt(0)", f"v_readfirstlane_b32 s66, v{FV}"]
            mid = ["s_cmp_eq_u32 s66, -1"]
            mid += [f"ds_read_b128 {q4(AO)}, v{aAO} offset:{(u+1)*1024}"]
            mid += [f"ds_read_b64_tr_b16 {pr(S)}, v{aS1} offset:{u*1024}", f"ds_read_b64_tr_b16 {pr(S+2)}, v{aS2} offset:{u*1024}"]
            mid += [f"s_cbranch_scc0 K2_FW{u}", f"K2_FR{u}:"]
            mid += [f"ds_read_b128 {q4(AE)}, v{aAE} offset:{(u+1)*1024}"]
            t0 = tile(0, mf_tile(1) + [SEGSUM], ex0, mid, [], f"A{u}", mpos=MP0)
            pre = [f"s_waitcnt vmcnt({1 if u == 1 else 0})"] + p_reads()
            blk = ["s_cmp_ge_i32 s55, s93", "s_waitcnt lgkmcnt(0)"] + p_shift(0) + [f"s_cbranch_scc1 K2_ND{u}"]
            if u == 2: blk += [f"ds_write_b32 v{aEI}, v{MG} offset:512"]
            blk += p_dma() + [f"K2_ND{u}:"]
            if u == 0:
                ed = e_dma()
                if opt.get("e0nt", 0) > 1:
                    k = [i for i, l in enumerate(ed) if l.startswith("buffer_load")][0]
                    ed = ed[:k] + [f"s_cmp_ge_u32 s55, {opt['e0nt']}", "s_cbranch_scc1 K2_EN1", ed[k].replace(" lds", " nt lds"), "s_branch K2_EN2", "K2_EN1:", ed[k], "K2_EN2:"] + ed[k+1:]
                blk += ed
            ex1 = {WPOS: blk}
            mid1 = p_shift(1)
            if u == 3:
                mid1 += [f"v_add_u32 v{aAO}, 4096, v{aAO}", f"v_add_u32 v{aAE}, 4096, v{aAE}", f"v_add_u32 v{aIDX}, 512, v{aIDX}", f"v_add_u32 v{aEI}, 512, v{aEI}",
                        "s_mov_b64 exec, s[62:63]", f"v_add_u32 v{aS1}, 4096, v{aS1}", "s_mov_b64 exec, s[64:65]", f"v_add_u32 v{aS2}, 4096, v{aS2}", "s_mov_b64 exec, -1"]
            exr1 = []
            if opt.get("gstamps"):
                mid1 = mid1 + ["s_memrealtime s[96:97]", "s_add_u32 m0, s55, 16"]
                exr1 += ["s_waitcnt lgkmcnt(0)", "v_writelane_b32 v0, s96, m0", "s_mov_b32 m0, s57"]
            t1 = tile(1, mf_tile(0), ex1, mid1, exr1, f"B{u}", mpos=(WPOS + 2, WPOS + 5), pre=pre)
            a("\n".join(t0 + t1))
        a("s_add_u32 s55, s55, 1")
        a("s_cmp_ge_u32 s55, s90")
        a(f"s_cbranch_scc1 K2_TH{u}")
        if u == 3: a("s_branch K2_U0")
    loop_end = len(a.lines)
    for qtl in QTAILS: a("\n".join(qtl))
    for u in range(4):
        a.label(f"K2_TH{u}")
        a(f"s_mov_b32 s92, {(u+1)&3}")
        if u < 3: a("s_branch K2_TH")
    a.label("K2_TH")
    a("s_cmp_ge_u32 s55, s53")
    a("s_cbranch_scc1 K2_EXIT")
    a("s_add_u32 s91, s91, 1")
    a("s_cmp_eq_u32 s91, 1")
    a("s_cbranch_scc0 K2_TH_2")
    if opt.get("prio", 1): a("s_setprio 2")
    a(f"s_sub_u32 s90, s94, {T2}")
    a("s_branch K2_TH_R")
    a.label("K2_TH_2")
    a("s_cmp_eq_u32 s91, 2")
    a("s_cbranch_scc0 K2_TH_3")
    if opt.get("prio", 1): a("s_setprio 1")
    a(f"s_sub_u32 s90, s94, {T1_}")
    a("s_branch K2_TH_R")
    a.label("K2_TH_3")
    if opt.get("prio", 1): a("s_setprio 0")
    a("s_mov_b32 s90, s53")
    a.label("K2_TH_R")
    a("s_max_i32 s90, s90, 0")
    a("s_cmp_eq_u32 s92, 1")
    a("s_cbranch_scc1 K2_U1")
    a("s_cmp_lg_u32 s60, 0")
    a("s_cbranch_scc1 K2_TH_J")
    a("s_mov_b32 s60, 1")
    a("\n".join(w2_pre(L16)))
    a.label("K2_TH_J")
    a("s_cmp_eq_u32 s92, 2")
    a("s_cbranch_scc1 K2_U2")
    a("s_cmp_eq_u32 s92, 3")
    a("s_cbranch_scc1 K2_U3")
    a("s_branch K2_U0")
    if LATE:
        for u in range(4):
            a.label(f"K2_ND{u}")
            a("\n".join(mf_tile(0)))
            a(f"s_branch K2_NR{u}")
    for u in range(4):
        a.label(f"K2_FW{u}")
        a("s_add_u32 s66, s55, 1")
        a("s_cmp_ge_u32 s66, s53")
        a(f"s_cbranch_scc1 K2_FR{u}")
        a(f"ds_read_b32 v{FV}, v{aEI} offset:{(u+1)*128}")
        a("s_waitcnt lgkmcnt(0)")
        a(f"v_readfirstlane_b32 s66, v{FV}")
        a("s_nop 0")
        a("s_cmp_eq_u32 s66, -1")
        a(f"s_cbranch_scc1 K2_FR{u}")
        a("s_sleep 1")
        a(f"s_branch K2_FW{u}")
    a.label("K2_EXIT")
    a(SEGSUM)
    stp(7)
    stc(13)
    if opt.get("stamps"): a("v_writelane_b32 v0, s53, 14")
    a(f"v_lshrrev_b32 v1, 4, v{L16}")
    a("s_cmp_lg_u32 s60, 0")
    a("s_cbranch_scc1 K2_X1")
    a("\n".join(w2_pre(L16)))
    a.label("K2_X1")
    WL = 116
    def fin_loads(l16):
        srd(a, 48, "s18", "s19", 256)
        for sidx in range(NW2, 8):
            a(f"buffer_load_dwordx4 {q4(WL+4*(sidx-NW2))}, v{l16}, s[40:43], s74 offen offset:{(sidx & 3)*1024}")
        a("v_lshrrev_b32 v8, 4, v1")
        a("v_lshlrev_b32 v9, 3, v8")
        a("s_lshl_b32 s68, s24, 5")
        a("buffer_load_dwordx2 v[10:11], v9, s[48:51], s68 offen")
    fin_loads(L16)
    a("v_subrev_u32 v2, s71, v1")
    a("v_and_b32 v2, 15, v2")
    a(f"v_mul_u32_u24 v2, {HSTR}, v2")
    a("v_and_b32 v3, 16, v1")
    a("v_lshl_add_u32 v2, v3, 2, v2")
    a("v_lshrrev_b32 v3, 5, v1")
    a("v_lshl_add_u32 v3, v3, 3, s57")
    a("v_add_u32 v2, v2, v3")
    a(f"s_waitcnt vmcnt({9 - NW2})")
    for k in range(8):
        a(f"v_cvt_pk_bf16_f32 v{EX+k}, v{ACC+2*k}, v{ACC+2*k+1}")
        if k & 1: a(f"ds_write_b64 v2, {pr(EX+k-1)} offset:{16*(k>>1)}")
    for k in range(0, 8, 2):
        a(f"v_pk_add_f32 {pr(ACC+2*k)}, {pr(ACC+2*k)}, {pr(ACC+2*k+2)}")
    a(f"v_pk_add_f32 {pr(ACC)}, {pr(ACC)}, {pr(ACC+4)}")
    a(f"v_pk_add_f32 {pr(ACC+8)}, {pr(ACC+8)}, {pr(ACC+12)}")
    a(f"v_add_f32 v{CHK}, v{CHK}, v{CHK+1}")
    a(f"v_pk_add_f32 {pr(ACC)}, {pr(ACC)}, {pr(ACC+8)}")
    a(f"v_mul_f32 v{CHK}, 0x41800000, v{CHK}")
    a(f"v_add_f32 v{CHK+1}, v{ACC}, v{ACC+1}")
    a(f"v_mul_f32 v{CHK+1}, 0, v{CHK+1}")
    a("v_mov_b32 v4, 0x207")
    a(f"v_add_f32 v{CHK}, v{CHK}, v{CHK+1}")
    a(f"v_mov_b32 v5, {FLAG}")
    a("v_mov_b32 v7, 1")
    a(f"v_cmpx_class_f32 vcc, v{CHK}, v4")
    a("ds_write_b32 v5, v7")
    a("s_mov_b64 exec, -1")
    a.label("K2_FIN")
    a("s_cmp_ge_u32 s24, 8")
    a("s_cbranch_scc1 K2_HEND")
    a("s_mov_b64 exec, 1")
    a("ds_add_u32 v5, v7 offset:24")
    a("s_mov_b64 exec, -1")
    a("v_and_b32 v12, 15, v1")
    a(f"v_mul_u32_u24 v2, {HSTR}, v12")
    a("v_lshl_add_u32 v2, v8, 4, v2")
    a(f"s_mov_b32 s78, {DEG}")
    a("v_lshl_add_u32 v4, v12, 2, s78")
    for mt in range(3): a(f"ds_read_b32 v{112+mt}, v4 offset:{mt*48}")
    a("v_lshl_add_u32 v13, v12, 16, v9")
    a(f"v_mov_b32 v3, {KILL:#x}")
    a("v_cmp_gt_u32 vcc, 4, v12")
    a("s_lshl_b32 s69, s2, 8")
    a("s_add_u32 s69, s69, s68")
    a("v_cndmask_b32 v14, v13, v3, vcc")
    a(f"s_add_u32 s72, s69, {12 << 16}")
    a(f"s_add_u32 s75, s69, {24 << 16}")
    a(f"s_mov_b32 s76, {NEGLN2:#x}")
    RS = 80
    a.label("K2_E1")
    a("ds_read_b32 v6, v5 offset:24")
    a("s_waitcnt lgkmcnt(0)")
    a("v_readfirstlane_b32 s66, v6")
    a("s_nop 0")
    a("s_cmp_ge_u32 s66, 8")
    a("s_cbranch_scc1 K2_E2")
    a("s_sleep 2")
    a("s_branch K2_E1")
    a.label("K2_E2")
    HB = 16
    OD = 120
    def wfrag(sidx): return WREG[sidx] if sidx < NW2 else WL + 4*(sidx - NW2)
    def hoff(mt, sidx): return (4*mt + (sidx >> 1))*4096 + (sidx & 1)*64
    order = [(sidx, mt) for sidx in range(8) for mt in range(2)]
    for n, (sidx, mt) in enumerate(order[:14]):
        a(f"ds_read_b128 {q4(HB+4*n)}, v2 offset:{hoff(mt, sidx)}")
    for n, (sidx, mt) in enumerate(order):
        issued = min(16, 14 + n)
        wv = f" vmcnt({8 - sidx})" if (sidx >= NW2 and mt == 0) else ""
        a(f"s_waitcnt{wv} lgkmcnt({issued - n - 1})")
        a(f"v_mfma_f32_16x16x32_bf16 {q4(OD+4*mt)}, {q4(wfrag(sidx))}, {q4(HB+4*n)}, {'0' if sidx == 0 else q4(OD+4*mt)}")
        if n < 2: a(f"ds_read_b128 {q4(HB+4*(14+n))}, v2 offset:{hoff(order[14+n][1], order[14+n][0])}")
    a("s_waitcnt vmcnt(0)")
    a("v_lshlrev_b32 v104, 16, v10")
    a("v_and_b32 v105, 0xffff0000, v10")
    a("v_lshlrev_b32 v106, 16, v11")
    a("v_and_b32 v107, 0xffff0000, v11")
    for mt in range(3): a(f"v_cvt_f32_u32 v{112+mt}, v{112+mt}")
    for mt in range(3):
        for i in range(4):
            a(f"v_mul_f32 v{RS+4*mt+i}, v{112+mt}, v{104+i}")
    def fin_tile(mt):
        for i in range(4):
            a(f"v_fma_f32 v{RS+4*mt+i}, v{OD+4*mt+i}, s76, v{RS+4*mt+i}")
        a(f"v_cvt_pk_bf16_f32 v{132+2*mt}, v{RS+4*mt}, v{RS+4*mt+1}")
        a(f"v_cvt_pk_bf16_f32 v{133+2*mt}, v{RS+4*mt+2}, v{RS+4*mt+3}")
        a(f"buffer_store_dwordx2 {pr(132+2*mt)}, v{13 if mt == 0 else 14}, s[44:47], s{(69,72,75)[mt]} offen{('', ' sc1', ' nt')[opt.get('osc', 1)]}")
    def merge(mt):
        for i in range(4):
            a(f"v_add_f32_dpp v{OD+4*mt+i}, v{OD+4*mt+4+i}, v{OD+4*mt+i} row_shr:12 row_mask:0xf bank_mask:0xf bound_ctrl:0")
    merge(0)
    fin_tile(0)
    stp(8)
    a("s_barrier")
    stp(9)
    for sidx in range(8):
        a(f"ds_read_b128 {q4(HB+4*sidx)}, v2 offset:{hoff(2, sidx)}")
    a("ds_read_b32 v6, v5")
    for sidx in range(8):
        a(f"s_waitcnt lgkmcnt({8 - sidx})")
        a(f"v_mfma_f32_16x16x32_bf16 {q4(OD+8)}, {q4(wfrag(sidx))}, {q4(HB+4*sidx)}, {'0' if sidx == 0 else q4(OD+8)}")
    a("s_waitcnt lgkmcnt(0)")
    a("v_readfirstlane_b32 s82, v6")
    a("s_nop 1")
    a("s_andn2_b32 s82, s82, s70")
    a("s_cmp_lg_u32 s82, 0")
    a("s_cbranch_scc1 K2_REDO")
    a("s_nop 0")
    merge(1)
    fin_tile(2)
    fin_tile(1)
    stp(10)
    if opt.get("stamps"): a("s_waitcnt vmcnt(0)")
    stp(11)
    a.label("K2_END2")
    stamp_out(a, opt, 22, 0xF80000, 24, 0, tmpv=2)
    if opt.get('gstamps'): stamp_out2(a, opt, 22, 0x1000000, 24, 0, tmpv=2)
    a.label("K2_END")
    a("s_endpgm")
    a.label("K2_HEND")
    a("s_waitcnt lgkmcnt(0)")
    stp(8)
    a("s_barrier")
    a("ds_read_b32 v6, v5")
    a("s_waitcnt lgkmcnt(0)")
    a("v_readfirstlane_b32 s82, v6")
    a("s_nop 0")
    a("s_andn2_b32 s82, s82, s70")
    a("s_cmp_lg_u32 s82, 0")
    a("s_cbranch_scc1 K2_REDO")
    a("s_branch K2_END2")
    a.label("K2_CX")
    a("s_mov_b32 s81, 2")
    count([5, 6, 7])
    decode([5, 6, 7])
    a("v_cmpx_eq_u32 vcc, -2, v23")
    a("ds_write_b32 v111, v114")
    a("s_mov_b64 exec, -1")
    a("s_branch K2_C1")
    a.label("K2_SY")
    for k in (5, 6, 7): a(f"ds_bpermute_b32 v{TP+k}, v{RA+k}, v31")
    a("s_waitcnt lgkmcnt(0)")
    stat([5, 6, 7])
    a("s_branch K2_S0")
    a.label("K2_SX")
    for k in (5, 6, 7): a(f"ds_bpermute_b32 v{SB+k}, v{RA+k}, v108")
    a("s_waitcnt lgkmcnt(0)")
    late([5, 6, 7])
    a("s_branch K2_S1")
    a.label("K2_REDO")
    a("s_setprio 0")
    a("s_mov_b32 s70, -1")
    a("s_lshl_b32 s66, s24, 6")
    a("v_add_u32 v0, s66, v1")
    a("s_waitcnt vmcnt(0) lgkmcnt(0)")
    a("s_barrier")
    a("s_branch K2_TOP")
    a.label("K2_BAD")
    arrive(8)
    a("v_mov_b32 v109, -1")
    a("ds_write_b32 v111, v109 offset:16")
    arrive(40)
    a.label("K2_SLOW")
    a(f"v_lshrrev_b32 v1, 4, v{L16}")
    a("s_setprio 0")
    a("s_mov_b32 s70, -1")
    a("s_waitcnt vmcnt(0) lgkmcnt(0)")
    a("s_barrier")
    a("s_lshl_b32 s66, s24, 10")
    a(f"s_add_u32 s66, s66, {OH}")
    a("v_lshl_add_u32 v2, v1, 4, s66")
    for i in range(4): a(f"v_mov_b32 v{4+i}, 0")
    for i in range(4): a(f"ds_write_b128 v2, v[4:7] offset:{i*12288}")
    a("v_lshlrev_b32 v12, 2, v1")
    a(f"v_add_u32 v3, {DEG}, v12")
    a("ds_write_b32 v3, v4")
    srd(a, 84, "s8", "s9", E * 4)
    srd(a, 88, "s10", "s11", E * 4)
    a("v_and_b32 v8, 31, v1")
    a("v_lshlrev_b32 v8, 4, v8")
    a("v_lshrrev_b32 v9, 5, v1")
    a("v_lshl_add_u32 v8, v9, 10, v8")
    a("s_lshl_b32 s72, s25, 11")
    a(f"s_add_u32 s66, s72, {WCF_OFF - CELL_OFF}")
    a("buffer_load_dwordx4 v[16:19], v8, s[40:43], s66 offen")
    a("buffer_load_dwordx4 v[20:23], v8, s[40:43], s66 offen offset:512")
    a(f"s_add_u32 s72, s72, {EIM + 8192}")
    a("v_add_u32 v8, s72, v8")
    a("v_lshlrev_b32 v7, 4, v1")
    a("\n".join(w2_pre(7)))
    srd_ws(a, 92, 22, P_OFF, N * 512)
    a("v_lshlrev_b32 v10, 1, v1")
    a("v_add_u32 v10, s58, v10")
    a("v_lshlrev_b32 v11, 1, v10")
    a(f"v_add_u32 v11, {OH}, v11")
    a("v_mov_b32 v13, 1")
    a("s_waitcnt vmcnt(0)")
    for k in range(8):
        a(f"v_lshlrev_b32 v{24+2*k}, 16, v{16+k}")
        a(f"v_and_b32 v{25+2*k}, 0xffff0000, v{16+k}")
    a("s_waitcnt lgkmcnt(0)")
    a("s_barrier")
    a("s_mov_b32 s66, s26")
    a.label("K2_SL_BLK")
    a("s_lshl_b32 s67, s66, 8")
    a("buffer_load_dword v40, v12, s[88:91], s67 offen")
    a("buffer_load_dword v41, v12, s[84:87], s67 offen")
    a("s_waitcnt vmcnt(0)")
    a("v_and_b32 v42, 255, v40")
    a("v_cmp_eq_u32 vcc, s2, v42")
    a("s_nop 1")
    a("s_mov_b64 s[68:69], vcc")
    a.label("K2_SL_E")
    a("s_cmp_eq_u64 s[68:69], 0")
    a("s_cbranch_scc1 K2_SL_NB")
    a("s_ff1_i32_b64 s72, s[68:69]")
    a("s_bitset0_b64 s[68:69], s72")
    a("v_readlane_b32 s52, v40, s72")
    a("v_readlane_b32 s53, v41, s72")
    a("s_lshl_b32 s75, s66, 6")
    a("s_add_u32 s75, s75, s72")
    a("s_lshl_b32 s75, s75, 5")
    a("s_load_dwordx8 s[76:83], s[6:7], s75")
    a("s_lshl_b32 s53, s53, 9")
    a("s_lshr_b32 s52, s52, 8")
    a("s_cmp_ge_u32 s52, 16")
    a("s_cselect_b32 s75, 16384, 0")
    a("s_cmp_ge_u32 s52, 28")
    a("s_cselect_b32 s75, 32768, s75")
    a("s_bfe_u32 s55, s52, 0x10003")
    a("s_lshl_b32 s55, s55, 9")
    a("s_add_u32 s75, s75, s55")
    a("s_and_b32 s55, s52, 7")
    a("s_lshl_b32 s55, s55, 1")
    a("s_add_u32 s75, s75, s55")
    a("v_add_u32 v45, s75, v8")
    a("buffer_load_ushort v43, v10, s[92:95], s53 offen")
    a("ds_read_u16 v44, v45")
    a("s_waitcnt vmcnt(0) lgkmcnt(0)")
    a("v_lshlrev_b32 v43, 16, v43")
    a("v_lshlrev_b32 v44, 16, v44")
    import struct
    PC = struct.unpack("<I", struct.pack("<f", 1.0 / (1 - opt.get("pcomp", 20) * 1e-4)))[0]
    a(f"v_mul_f32 v43, {PC:#x}, v43")
    a("v_add_f32 v43, v43, v44")
    for k in range(8):
        a(f"s_lshl_b32 s53, s{76+k}, 16")
        a(f"v_fmac_f32 v43, s53, v{24+2*k}")
        a(f"s_and_b32 s53, s{76+k}, 0xffff0000")
        a(f"v_fmac_f32 v43, s53, v{25+2*k}")
    a("v_exp_f32 v44, v43")
    a("s_lshl_b32 s53, s52, 10")
    a("v_add_f32 v44, 1.0, v44")
    a("v_rcp_f32 v44, v44")
    a("v_add_u32 v45, s53, v11")
    a("v_mul_f32 v43, v43, v44")
    a("ds_add_f32 v45, v43")
    a("s_cmp_lg_u32 s25, 0")
    a("s_cbranch_scc1 K2_SL_E")
    a("s_lshl_b32 s53, s52, 2")
    a(f"s_add_u32 s53, s53, {DEG}")
    a("v_mov_b32 v45, s53")
    a("s_mov_b64 exec, 1")
    a("ds_add_u32 v45, v13")
    a("s_mov_b64 exec, -1")
    a("s_branch K2_SL_E")
    a.label("K2_SL_NB")
    a("s_add_u32 s66, s66, 3")
    a(f"s_cmp_lt_u32 s66, {E // 64}")
    a("s_cbranch_scc1 K2_SL_BLK")
    a("s_waitcnt lgkmcnt(0)")
    a("s_barrier")
    a("v_and_b32 v2, 31, v1")
    a("v_lshrrev_b32 v3, 5, v1")
    a("s_mov_b32 s66, 0")
    a.label("K2_SL_CV")
    a("v_add_u32 v4, s66, v3")
    a("v_add_u32 v5, s71, v4")
    a("s_cmp_lt_u32 s66, 4")
    a("s_cselect_b32 s67, s26, 0")
    a("s_cmp_lg_u32 s67, 0")
    a("s_cbranch_scc0 K2_SL_NZ")
    a("v_mov_b32 v5, 47")
    a.label("K2_SL_NZ")
    a("v_lshlrev_b32 v5, 10, v5")
    a("v_lshl_add_u32 v5, v2, 3, v5")
    a("s_lshl_b32 s67, s58, 1")
    a(f"s_add_u32 s67, s67, {OH}")
    a("v_add_u32 v5, s67, v5")
    a("ds_read_b64 v[6:7], v5")
    a(f"v_mul_u32_u24 v4, {HSTR}, v4")
    a("v_lshl_add_u32 v4, v2, 2, v4")
    a("v_add_u32 v4, s57, v4")
    a("s_waitcnt lgkmcnt(0)")
    a("v_cvt_pk_bf16_f32 v6, v6, v7")
    a("ds_write_b32 v4, v6")
    a("s_add_u32 s66, s66, 2")
    a("s_cmp_lt_u32 s66, 16")
    a("s_cbranch_scc1 K2_SL_CV")
    a("v_lshlrev_b32 v7, 4, v1")
    fin_loads(7)
    a(f"v_mov_b32 v5, {FLAG}")
    a("v_mov_b32 v7, 1")
    a("s_branch K2_FIN")
    if opt.get("e64"):
        for i in range(loop_start, loop_end):
            l = a.lines[i]
            if l.startswith("v_exp_f32 ") or l.startswith("v_rcp_f32 "): a.lines[i] = l.replace("_f32 ", "_f32_e64 ", 1)
    a.loop = (loop_start, loop_end)
    return a, NV2, (102 if opt.get('stamps') else 96)
```

```python
from asmlib import *

N = 10000; E = 320000
import os
WSB = int(os.environ.get('WSB', '0')) << 20
P_OFF = WSB + 4096
CELL_OFF = WSB + 0xA00000
W2F_OFF = WSB + 0xE00000
W1BF_OFF = WSB + 0xE10000
WCF_OFF = WSB + 0xE20000
FRAG_BYTES = 0x22000
NSORT = 128
CHUNK = 2500
GROWS = 64
NGEMM = 157
NSORTWG = 64
NPREP = 17
EPF = int(os.environ.get('EPF', '0'))
K1_WGS = 256 if EPF else NGEMM + NSORTWG + NPREP
K1_BLOCK = 1024
K1_LDS = 65536 + GROWS * 256 + 256
NEGLOG2E = 0xBFB8AA3B
OVF = 0xFFFFFFFE

def srd(a, r, lo, hi, size):
    a(f"s_mov_b32 s{r}, {lo}")
    a(f"s_mov_b32 s{r+1}, {hi}")
    a(f"s_mov_b32 s{r+2}, {size}")
    a(f"s_mov_b32 s{r+3}, 0x00020000")

def srd_ws(a, r, wslo, off, size):
    a(f"s_add_u32 s{r}, s{wslo}, {off}")
    a(f"s_addc_u32 s{r+1}, s{wslo+1}, 0")
    a(f"s_mov_b32 s{r+2}, {size}")
    a(f"s_mov_b32 s{r+3}, 0x00020000")

def stamp(a, opt, idx, vreg, sreg=96):
    if not opt.get("stamps"): return
    a(f"s_memrealtime s[{sreg}:{sreg+1}]")
    a("s_waitcnt lgkmcnt(0)")
    a(f"v_writelane_b32 v{vreg}, s{sreg}, {idx}")
def stamp_out(a, opt, wslo, off, wavereg, vreg, sreg=96, tmpv=151):
    if not opt.get("stamps"): return
    a(f"s_add_u32 s{sreg}, s{wslo}, {off}")
    a(f"s_addc_u32 s{sreg+1}, s{wslo+1}, 0")
    a(f"s_mov_b32 s{sreg+2}, 0x80000")
    a(f"s_mov_b32 s{sreg+3}, 0x00020000")
    a(f"s_lshl_b32 s100, s2, 4")
    a(f"s_add_u32 s100, s100, s{wavereg}")
    a(f"s_lshl_b32 s100, s100, 6")
    a(f"v_mbcnt_lo_u32_b32 v{tmpv}, -1, 0")
    a(f"v_lshlrev_b32 v{tmpv}, 2, v{tmpv}")
    a("s_mov_b64 exec, 0xffff")
    a(f"buffer_store_dword v{vreg}, v{tmpv}, s[{sreg}:{sreg+3}], s100 offen")
    a("s_mov_b64 exec, -1")
def stamp_out2(a, opt, wslo, off, wavereg, vreg, sreg=96, tmpv=151):
    a(f"s_add_u32 s{sreg}, s{wslo}, {off}")
    a(f"s_addc_u32 s{sreg+1}, s{wslo+1}, 0")
    a(f"s_lshl_b32 s100, s100, 1")
    a("s_mov_b64 exec, 0xffffffff")
    a(f"buffer_store_dword v{vreg}, v{tmpv}, s[{sreg}:{sreg+3}], s100 offen")
    a("s_mov_b64 exec, -1")

def gen_k1(opt=None):
    opt = opt or {}
    SV = 120
    SFD = {0: "", 1: " sc1", 2: " sc0 sc1", 3: " nt", 4: " nt sc1"}
    SF = SFD[opt.get("sf", 1)]
    SFG = SFD[opt.get("sfg", 1)]
    NT = " nt" if opt.get("knt", 1) else ""
    NTX = " nt" if opt.get("kntx", 1) else ""
    a = Asm()
    a.label("mpnn_pre_kernel")
    a(f"s_cmp_ge_u32 s2, {K1_WGS}")
    a("s_cbranch_scc1 K1_END")
    if opt.get("stamps"): a(f"v_mov_b32 v{SV}, 0")
    stamp(a, opt, 0, SV)
    if opt.get("stamps"):
        a("s_getreg_b32 s96, hwreg(HW_REG_XCC_ID)")
        a(f"v_writelane_b32 v{SV}, s96, 9")
    a("s_load_dwordx16 s[4:19], s[0:1], 0")
    a("s_load_dwordx2 s[20:21], s[0:1], 80")
    a("v_lshrrev_b32 v1, 6, v0")
    a("v_and_b32 v2, 63, v0")
    a("v_readfirstlane_b32 s22, v1")
    a(f"s_cmp_ge_u32 s2, {NGEMM}")
    a("s_cbranch_scc1 K1_SORT")
    XI = 65536
    SW = XI + GROWS * 256
    a("v_lshrrev_b32 v10, 4, v0")
    a("v_xor_b32 v11, v10, v2")
    a("v_and_b32 v11, 15, v11")
    a("v_lshlrev_b32 v11, 4, v11")
    a("v_lshl_add_u32 v8, v10, 8, v11")
    a("v_lshrrev_b32 v4, 4, v2")
    a("v_lshlrev_b32 v7, 2, v4")
    a("v_xor_b32 v7, v7, v2")
    a("v_and_b32 v7, 15, v7")
    a("v_lshlrev_b32 v7, 4, v7")
    a("v_lshl_add_u32 v3, v4, 9, v7")
    a(f"v_mov_b32 v14, {SW}")
    a("v_mov_b32 v15, 0")
    a("ds_write_b32 v14, v15")
    OWN = opt.get("own", 0)
    if OWN:
        a("s_cmp_lt_u32 s22, 8")
        a("s_cbranch_scc1 K1_GC")
        a("s_and_b32 s44, s22, 7")
        a("v_lshrrev_b32 v10, 4, v2")
        a("s_lshl_b32 s45, s44, 3")
        a("v_add_u32 v10, s45, v10")
        a("v_xor_b32 v11, v10, v2")
        a("v_and_b32 v11, 15, v11")
        a("v_lshlrev_b32 v11, 4, v11")
        a("v_lshl_add_u32 v8, v10, 8, v11")
        a("v_xor_b32 v9, 64, v8")
        a("s_lshl_b32 s45, s44, 13")
        a("s_add_u32 s46, s45, 256")
        a("s_lshl_b32 s47, s44, 12")
        a(f"s_mul_i32 s48, s2, {GROWS*256}")
        a("s_lshl_b32 s49, s44, 11")
        a(f"s_add_u32 m0, s49, {XI}")
        a("s_waitcnt lgkmcnt(0)")
        srd(a, 32, "s4", "s5", N * 256)
        srd(a, 28, "s12", "s13", 272 * 512)
        a(f"buffer_load_dwordx4 v8, s[32:35], s48 offen{NTX} lds")
        a(f"buffer_load_dwordx4 v9, s[32:35], s48 offen offset:1024{NTX} lds")
        a("s_mov_b32 m0, s47")
        a("s_barrier")
        for k in range(4):
            a(f"buffer_load_dwordx4 v3, s[28:31], s45 offen offset:{k*1024} lds")
            a("s_add_u32 s45, s45, 1024")
        a("s_add_u32 m0, s47, 32768")
        a("s_barrier")
        for k in range(4):
            a(f"buffer_load_dwordx4 v3, s[28:31], s46 offen offset:{k*1024} lds")
            a("s_add_u32 s46, s46, 1024")
        a("s_waitcnt vmcnt(4)")
        a("s_barrier")
        a("v_mov_b32 v15, 1")
        a("s_waitcnt vmcnt(0)")
        a("s_mov_b64 exec, 1")
        a("ds_add_u32 v14, v15")
        a("s_endpgm")
        a.label("K1_GC")
        a("s_bfe_u32 s26, s22, 0x10001")
        a("s_lshr_b32 s27, s22, 2")
        a("s_and_b32 s50, s22, 1")
        a("s_lshl_b32 s50, s50, 7")
        a("s_lshl_b32 s51, s27, 8")
        a("s_add_u32 s51, s51, s50")
        a(f"s_mul_i32 s52, s2, {GROWS*512}")
        a("s_add_u32 s51, s51, s52")
        a("s_lshl_b32 s52, s26, 14")
        a("s_add_u32 s51, s51, s52")
        if OWN == 1:
            a("v_lshrrev_b32 v12, 1, v2")
            a("v_and_b32 v13, 1, v2")
            a("v_lshlrev_b32 v13, 6, v13")
            a("v_lshl_add_u32 v12, v12, 9, v13")
        else:
            a("v_and_b32 v12, 31, v2")
            a("v_lshlrev_b32 v12, 9, v12")
        a("s_waitcnt lgkmcnt(0)")
        srd_ws(a, 36, 20, P_OFF, (N + 1) * 512)
        if OWN < 3: a(f"buffer_store_dword v15, v12, s[36:39], s51 offen{SFG}")
        a("s_barrier")
        a("s_barrier")
    else:
        a("s_and_b32 s44, s22, 7")
        a("s_lshl_b32 s45, s44, 13")
        a("s_lshr_b32 s46, s22, 3")
        a("s_lshl_b32 s47, s46, 8")
        a("s_add_u32 s45, s45, s47")
        a("s_lshl_b32 s47, s22, 12")
        a(f"s_mul_i32 s48, s2, {GROWS*256}")
        a("s_lshl_b32 s49, s22, 10")
        a(f"s_add_u32 m0, s49, {XI}")
        a("s_waitcnt lgkmcnt(0)")
        srd(a, 32, "s4", "s5", N * 256)
        srd(a, 28, "s12", "s13", 272 * 512)
        if opt.get("wwu", 1):
            a("s_cmp_lg_u32 s22, 0")
            a("s_cbranch_scc1 K1_NWU")
            a("s_bfe_u32 s50, s2, 0x40003")
            a("s_lshl_b32 s50, s50, 12")
            a("v_and_b32 v12, 31, v2")
            a("v_lshlrev_b32 v12, 7, v12")
            a("buffer_load_dword v31, v12, s[28:31], s50 offen")
            a.label("K1_NWU")
        a(f"buffer_load_dwordx4 v8, s[32:35], s48 offen{NTX} lds")
        a("s_mov_b32 m0, s47")
        a("s_cmp_lt_u32 s22, 8")
        a("s_barrier")
        a("s_cbranch_scc1 K1_GA")
        if opt.get("gb", 1) & 2: a("s_barrier")
        a.label("K1_GA")
        for k in range(4):
            a(f"buffer_load_dwordx4 v3, s[28:31], s45 offen offset:{k*1024} lds")
            a("s_add_u32 s45, s45, 1024")
        a("s_cmp_lt_u32 s22, 8")
        a("s_cbranch_scc1 K1_GC")
        a("s_waitcnt vmcnt(4)")
        a("s_barrier")
        a("v_mov_b32 v15, 1")
        a("s_waitcnt vmcnt(0)")
        a("s_mov_b64 exec, 1")
        a("ds_add_u32 v14, v15")
        a("s_endpgm")
        a.label("K1_GC")
        if opt.get("gb", 1) & 2: a("s_barrier")
    a("v_lshrrev_b32 v5, 5, v2")
    a("v_and_b32 v6, 31, v2")
    a("s_bfe_u32 s26, s22, 0x10001")
    a("s_lshr_b32 s27, s22, 2")
    a("s_and_b32 s50, s22, 1")
    a("s_lshl_b32 s50, s50, 7")
    srd_ws(a, 36, 20, P_OFF, (N + 1) * 512)
    a("v_and_b32 v17, 15, v2")
    a("v_xor_b32 v17, v17, v5")
    a("s_lshl_b32 s51, s26, 13")
    a(f"s_add_u32 s51, s51, {XI}")
    a("v_lshl_add_u32 v17, v17, 4, s51")
    a("v_lshl_add_u32 v16, v6, 8, v17")
    for sidx in range(1, 8):
        a(f"v_xor_b32 v{16+sidx}, {sidx << 5}, v16")
    a("v_bfe_u32 v26, v2, 2, 2")
    a("v_lshl_add_u32 v27, v5, 3, v26")
    a("v_and_b32 v28, 3, v2")
    a("v_lshl_add_u32 v28, v28, 3, s50")
    a("v_bfe_u32 v29, v2, 4, 1")
    a("v_lshl_add_u32 v28, v29, 5, v28")
    a("v_lshlrev_b32 v26, 6, v26")
    a("v_xor_b32 v28, v28, v26")
    a("s_lshl_b32 s51, s27, 15")
    a("v_add_u32 v28, s51, v28")
    a("v_lshl_add_u32 v24, v27, 8, v28")
    a("v_xor_b32 v25, 64, v24")
    a("s_lshl_b32 s51, s27, 8")
    a("s_add_u32 s51, s51, s50")
    a("v_lshl_add_u32 v13, v6, 2, s51")
    a("v_lshl_add_u32 v13, v5, 11, v13")
    if opt.get("own2", 0): a("v_lshl_add_u32 v12, v6, 9, s51")
    a(f"s_mul_i32 s52, s2, {GROWS*512}")
    a("s_lshl_b32 s51, s26, 14")
    a("s_add_u32 s52, s52, s51")
    a("s_add_u32 s53, s52, 4096")
    a("s_add_u32 s54, s52, 8192")
    a("s_add_u32 s55, s52, 12288")
    import struct
    PS = struct.unpack("<I", struct.pack("<f", -1.4426950408889634 * (1 - opt.get("pcomp", 0) * 1e-4)))[0]
    a(f"s_mov_b32 s56, {PS:#x}")
    a(f"s_mov_b32 s57, {PS:#x}")
    stamp(a, opt, 1, SV)
    if not OWN: a("s_waitcnt vmcnt(0)")
    stamp(a, opt, 2, SV)
    a("s_barrier")
    stamp(a, opt, 6, SV)
    if opt.get("own2", 0) == 1:
        a(f"buffer_store_dword v15, v12, s[36:39], s52 offen{SFG}")
    a("s_cmp_eq_u32 s27, 0")
    a("s_cbranch_scc1 K1_GO")
    a.label("K1_GW")
    a("ds_read_b32 v15, v14")
    a("s_waitcnt lgkmcnt(0)")
    a("v_readfirstlane_b32 s51, v15")
    a("s_nop 0")
    a("s_cmp_lt_u32 s51, 8")
    a("s_cbranch_scc1 K1_GW")
    a.label("K1_GO")
    if opt.get("own2", 0) == 2:
        a(f"buffer_store_dword v15, v12, s[36:39], s52 offen{SFG}")
    stamp(a, opt, 8, SV)
    AF = 32; BF = 48; DA = 80; DB = 96
    def reads(sidx):
        st = sidx & 3
        a(f"ds_read_b128 {v(AF+4*st,4)}, v{16+sidx}")
        for X in range(2):
            for e in range(2):
                a(f"ds_read_b64_tr_b16 {v(BF+8*st+4*X+2*e,2)}, v{24+X} offset:{sidx*4096+e*1024}")
    def mm(sidx):
        st = sidx & 3
        ca = "0" if sidx == 0 else v(DA, 16)
        cb = "0" if sidx == 0 else v(DB, 16)
        a(f"v_mfma_f32_32x32x16_bf16 {v(DA,16)}, {v(AF+4*st,4)}, {v(BF+8*st,4)}, {ca}")
        a(f"v_mfma_f32_32x32x16_bf16 {v(DB,16)}, {v(AF+4*st,4)}, {v(BF+8*st+4,4)}, {cb}")
    reads(0); reads(1); reads(2)
    for sidx in range(8):
        a(f"s_waitcnt lgkmcnt({5*min(2, 7-sidx)})"); mm(sidx)
        if sidx + 3 < 8: reads(sidx + 3)
    a("s_nop 10")
    stamp(a, opt, 3, SV)
    DUP = opt.get("dup", 0)
    if DUP: srd_ws(a, 40, 20, 100 << 20, (N + 1) * 512)
    S1, S2 = ("s[40:43]", "s[36:39]") if DUP == 1 else ("s[36:39]", "s[40:43]")
    for r in range(0, 16, 2):
        a(f"v_pk_mul_f32 {v(DA+r,2)}, {v(DA+r,2)}, s[56:57]")
        a(f"v_pk_mul_f32 {v(DB+r,2)}, {v(DB+r,2)}, s[56:57]")
        for rr in (r, r + 1):
            a(f"v_cvt_pk_bf16_f32 v{AF+rr}, v{DA+rr}, v{DB+rr}")
            a(f"buffer_store_dword v{AF+rr}, v13, {S1}, s{52 + (rr >> 2)} offen offset:{(rr & 3)*512}{SFG}")
    if opt.get("epf3"):
        sh = {1: 7, 2: 6, 3: 5}[opt["epf3"]]
        srd(a, 40, "s6", "s7", E * 32)
        a("s_lshl_b32 s44, s2, 16")
        a(f"v_lshlrev_b32 v12, {sh}, v0")
        a("buffer_load_dword v31, v12, s[40:43], s44 offen")
    if DUP:
        a("s_waitcnt vmcnt(0)")
        stamp(a, opt, 7, SV)
        a("s_sleep 127"); a("s_sleep 127")
        for rr in range(16):
            a(f"buffer_store_dword v{AF+rr}, v13, {S2}, s{52 + (rr >> 2)} offen offset:{(rr & 3)*512}{SFG}")
    stamp(a, opt, 4, SV)
    if opt.get("stamps"): a("s_waitcnt vmcnt(0)")
    stamp(a, opt, 5, SV)
    stamp_out(a, opt, 20, 0xF00000, 22, SV, tmpv=121)
    a("s_endpgm")
    a.label("K1_SORT")
    CNT = 32768
    HB = 36864
    a(f"s_sub_u32 s3, s2, {NGEMM}")
    a(f"s_cmp_ge_u32 s3, {NSORTWG}")
    a("s_cbranch_scc1 K1_HELP")
    a("s_and_b32 s24, s3, 7")
    a("s_lshl_b32 s24, s24, 4")
    a("s_lshr_b32 s25, s3, 3")
    a("s_lshl_b32 s25, s25, 1")
    a("s_add_u32 s24, s24, s25")
    a("s_lshr_b32 s25, s22, 3")
    a("s_add_u32 s3, s24, s25")
    a(f"s_mul_i32 s54, s25, {HB}")
    a("v_mov_b32 v47, v0")
    a("v_and_b32 v0, 511, v0")
    a("v_lshlrev_b32 v3, 2, v0")
    a("v_add_u32 v4, 4096, v3")
    a("v_add_u32 v5, 8192, v3")
    a(f"s_mul_i32 s23, s3, {CHUNK*4}")
    a("s_waitcnt lgkmcnt(0)")
    srd(a, 32, "s10", "s11", E * 4)
    for i in range(5):
        a(f"buffer_load_dword v{10+i}, v{3 + (i >> 1)}, s[32:35], s23 offen offset:{(i & 1)*2048}{NT}")
    srd(a, 28, "s8", "s9", E * 4)
    if opt.get("sb", 1): a("s_barrier")
    for i in range(5):
        a(f"buffer_load_dword v{16+i}, v{3 + (i >> 1)}, s[28:31], s23 offen offset:{(i & 1)*2048}{NT}")
    a("v_mov_b32 v24, -1\nv_mov_b32 v25, -1\nv_mov_b32 v26, -1\nv_mov_b32 v27, -1")
    a("v_mov_b32 v28, 0")
    a("v_lshl_add_u32 v6, v0, 4, s54")
    a("v_add_u32 v7, s54, v3")
    a(f"ds_write_b32 v7, v28 offset:{CNT}")
    for i in range(4):
        a(f"ds_write_b128 v6, v[24:27] offset:{i*8192}")
    srd_ws(a, 36, 20, CELL_OFF, 256 * 128 * 128)
    a("v_mov_b32 v29, 1")
    a(f"v_mov_b32 v30, {OVF - (1 << 32)}")
    a("v_lshlrev_b32 v31, 6, v0")
    a("v_lshrrev_b32 v44, 3, v47")
    a("v_and_b32 v45, 3, v47")
    a("v_lshlrev_b32 v45, 1, v45")
    a("v_xor_b32 v45, v45, v44")
    a("v_and_b32 v45, 7, v45")
    a("v_lshlrev_b32 v45, 4, v45")
    a("v_lshl_add_u32 v45, v44, 7, v45")
    a("v_bfe_u32 v43, v47, 2, 1")
    a(f"v_mul_u32_u24 v43, {HB}, v43")
    a("v_add_u32 v45, v45, v43")
    a("v_xor_b32 v42, 16, v45")
    a("v_lshl_add_u32 v43, v44, 2, v43")
    a("v_and_b32 v46, 7, v47")
    a("v_lshlrev_b32 v46, 4, v46")
    a("v_lshl_add_u32 v46, v44, 13, v46")
    a("s_lshr_b32 s24, s3, 1")
    a("s_lshl_b32 s24, s24, 7")
    for i in range(1, 4):
        a(f"s_add_u32 s{24+i}, s24, {i << 20}")
    for i in range(5):
        a(f"v_add_u32 v{84+i}, {i*32768}, v31")
    a(f"v_cmp_gt_u32 vcc, {CHUNK - 2048}, v0")
    a("s_waitcnt lgkmcnt(0)")
    a("s_mov_b64 s[52:53], vcc")
    stamp(a, opt, 1, SV)
    a("s_barrier")
    if opt.get("stamps"): a("s_waitcnt vmcnt(5)")
    stamp(a, opt, 2, SV)
    for i in range(5):
        a(f"s_waitcnt vmcnt({9 - i})")
        a(f"v_and_b32 v{32+i}, 255, v{10+i}")
        a(f"v_lshl_add_u32 v{37+i}, v{32+i}, 2, s54")
        if i == 4: a("s_mov_b64 exec, s[52:53]")
        a(f"ds_add_rtn_u32 v{60+i}, v{37+i}, v29 offset:{CNT}")
        if i == 4: a("s_mov_b64 exec, -1")
    for i in range(5):
        a(f"s_waitcnt vmcnt({4 - i})")
        a(f"v_lshrrev_b32 v{10+i}, 8, v{10+i}")
        a(f"v_lshl_or_b32 v{10+i}, v{16+i}, 18, v{10+i}")
        a(f"v_or_b32 v{10+i}, v{10+i}, v{84+i}")
        a(f"v_and_b32 v{16+i}, 28, v{37+i}")
        a(f"v_lshlrev_b32 v{32+i}, 5, v{32+i}")
    for i in range(5):
        a("s_waitcnt lgkmcnt(4)")
        a(f"v_cmp_lt_u32 vcc, 30, v{60+i}")
        a(f"v_min_u32 v{60+i}, 31, v{60+i}")
        a(f"v_lshl_or_b32 v{60+i}, v{60+i}, 5, v{60+i}")
        a(f"v_bfe_u32 v{60+i}, v{60+i}, 2, 5")
        a(f"v_xad_u32 v{60+i}, v{60+i}, v{16+i}, v{32+i}")
        a(f"v_cndmask_b32 v{10+i}, v{10+i}, v30, vcc")
        a(f"v_lshl_add_u32 v{60+i}, v{60+i}, 2, s54")
        if i == 4: a("s_mov_b64 exec, s[52:53]")
        a(f"ds_write_b32 v{60+i}, v{10+i}")
        if i == 4: a("s_mov_b64 exec, -1")
    a("s_waitcnt lgkmcnt(0)")
    a("s_barrier")
    stamp(a, opt, 3, SV)
    for i in range(2):
        a(f"ds_read_b128 {v(64+4*i,4)}, v45 offset:{i*16384}")
    for i in range(2):
        a(f"ds_read_b32 v{80+i}, v43 offset:{CNT + i*512}")
        a(f"ds_read_b128 {v(72+4*i,4)}, v42 offset:{i*16384}")
    for i in range(2):
        a(f"s_waitcnt lgkmcnt({5 - i})")
        a(f"buffer_store_dwordx4 {v(64+4*i,4)}, v46, s[36:39], s{24+i} offen{SF}")
    for i in range(2):
        a(f"s_waitcnt lgkmcnt({2 - 2*i})")
        a(f"v_cmp_lt_u32 vcc, 15, v{80+i}")
        a("s_and_saveexec_b64 s[52:53], vcc")
        a(f"s_cbranch_execz K1_NB{i}")
        a(f"buffer_store_dwordx4 {v(72+4*i,4)}, v46, s[36:39], s{26+i} offen{SF}")
        a.label(f"K1_NB{i}")
        a("s_mov_b64 exec, -1")
    stamp(a, opt, 4, SV)
    if opt.get("stamps"): a("s_waitcnt vmcnt(0)")
    stamp(a, opt, 5, SV)
    stamp_out(a, opt, 20, 0xF00000, 22, SV, tmpv=121)
    a("s_endpgm")
    a.label("K1_HELP")
    a(f"s_sub_u32 s3, s3, {NSORTWG}")
    a("s_waitcnt lgkmcnt(0)")
    srd_ws(a, 40, 20, W2F_OFF, FRAG_BYTES)
    a("v_lshlrev_b32 v6, 4, v2")
    if EPF:
        a("s_cmp_lt_u32 s22, 10")
        a("s_cbranch_scc1 K1_NPF")
        srd(a, 44, "s6", "s7", E * 32)
        a(f"s_mul_i32 s24, s3, {384*EPF*128}")
        a("v_subrev_u32 v7, 640, v0")
        a("v_lshlrev_b32 v7, 7, v7")
        for i in range(EPF):
            a("buffer_load_dword v22, v7, s[44:47], s24 offen")
            a(f"s_add_u32 s24, s24, {384*128}")
        a("s_endpgm")
        a.label("K1_NPF")
        a(f"s_cmp_ge_u32 s3, {NPREP}")
        a("s_cbranch_scc1 K1_END")
    a("s_cmp_lt_u32 s22, 8")
    a("s_cbranch_scc1 K1_H8")
    a("s_cmp_lt_u32 s22, 10")
    a("s_cbranch_scc0 K1_END")
    a("s_getpc_b64 s[60:61]")
    a.label("K1_PC")
    a("s_add_u32 s60, s60, mpnn_main_kernel-K1_PC")
    a("s_addc_u32 s61, s61, 0")
    a("s_mov_b32 s62, K2_REDO-mpnn_main_kernel")
    a("s_mov_b32 s63, 0x00020000")
    a("v_subrev_u32 v7, 512, v0")
    a("v_lshlrev_b32 v7, 7, v7")
    a("buffer_load_dword v22, v7, s[60:63], 0 offen")
    a("s_endpgm")
    a.label("K1_H8")
    a("s_lshl_b32 s3, s3, 3")
    a("s_add_u32 s3, s3, s22")
    a("s_mov_b32 s58, s3")
    a("s_bfe_u32 s26, s3, 0x30003")
    a("s_and_b32 s27, s3, 7")
    a("s_cmp_ge_u32 s3, 128")
    a("s_cselect_b32 s26, s27, s26")
    a("s_cselect_b32 s27, 8, s27")
    a("s_cmp_ge_u32 s3, 64")
    a("s_cbranch_scc1 K1_PREP1")
    srd(a, 44, "s16", "s17", 256 * 256)
    a("v_and_b32 v40, 15, v2")
    a("v_lshlrev_b32 v40, 1, v40")
    a("v_lshrrev_b32 v41, 4, v2")
    a("v_lshl_add_u32 v40, v41, 10, v40")
    a("v_add_u32 v41, 8192, v40")
    a("s_bfe_u32 s24, s3, 0x20001")
    a("s_lshl_b32 s24, s24, 14")
    a("s_and_b32 s25, s3, 1")
    a("s_lshl_b32 s25, s25, 12")
    a("s_add_u32 s24, s24, s25")
    a("s_lshr_b32 s25, s3, 3")
    a("s_lshl_b32 s25, s25, 5")
    a("s_add_u32 s24, s24, s25")
    for e in range(8):
        a(f"buffer_load_ushort v{48+e}, v{40 + (e & 1)}, s[44:47], s24 offen offset:{(e >> 1)*256}")
    a("s_branch K1_PFIN")
    a.label("K1_PREP1")
    srd(a, 44, "s12", "s13", 272 * 512)
    a("v_and_b32 v42, 1, v2")
    a("v_lshlrev_b32 v42, 6, v42")
    a("v_and_b32 v43, 30, v2")
    a("v_add_u32 v42, v42, v43")
    a("v_lshrrev_b32 v43, 5, v2")
    a("v_lshl_add_u32 v42, v43, 12, v42")
    a("s_lshr_b32 s24, s26, 1")
    a("s_lshl_b32 s24, s24, 7")
    a("s_and_b32 s25, s26, 1")
    a("s_lshl_b32 s25, s25, 5")
    a("s_add_u32 s24, s24, s25")
    a("s_lshl_b32 s27, s27, 13")
    a("s_add_u32 s24, s24, s27")
    a(f"s_add_u32 s24, s24, {128*512}")
    for e in range(8):
        a(f"buffer_load_ushort v{48+e}, v42, s[44:47], s24 offen offset:{e*512}")
    a.label("K1_PFIN")
    a("s_lshl_b32 s24, s58, 10")
    a("s_cmp_ge_u32 s58, 128")
    a("s_waitcnt vmcnt(0)")
    a("s_cbranch_scc1 K1_FINC")
    for e in range(4):
        a(f"v_lshl_or_b32 v{56+e}, v{49+2*e}, 16, v{48+2*e}")
    a("buffer_store_dwordx4 v[56:59], v6, s[40:43], s24 offen" + (" sc1" if opt.get("fsc", 1) else ""))
    a("s_endpgm")
    a.label("K1_FINC")
    a(f"s_mov_b32 s25, {NEGLOG2E:#x}")
    for e in range(8):
        a(f"v_lshlrev_b32 v{48+e}, 16, v{48+e}")
        a(f"v_mul_f32 v{48+e}, s25, v{48+e}")
    for e in range(4):
        a(f"v_cvt_pk_bf16_f32 v{56+e}, v{48+2*e}, v{49+2*e}")
    a("buffer_store_dwordx4 v[56:59], v6, s[40:43], s24 offen" + (" sc1" if opt.get("fsc", 1) else ""))
    a.label("K1_END")
    a("s_endpgm")
    return a, (128 if opt.get('stamps') else 112), (102 if opt.get('stamps') else 64)
```

```python
from asmlib import *
from k1 import *

NW = 12
PSLOT = 0
EIM = 49152
OH = 98304
ZERO = 147456
CNT = ZERO + 256
FLAG = ZERO + 512
DEG = ZERO + 1536
IDX = ZERO + 3328
EOFF = IDX + 6400
HSTR = 160
K2_LDS = 163840
assert EOFF + 6144 <= K2_LDS
GCAP = 48
KILL = 0x40000000
NEGLN2 = 0xBF317218
aAE = 1; aAP = 2; aAO = 7; aS1 = 8; aS2 = 9; aIDX = 10; aEI = 11; EI = 12; CHK = 14
D = [16, 32]; EX = 48; ACC = 64; BC = [80, 84]; BQ = [88, 92]; ID = [96, 100]
AE = 104; FV = 164; MG = 165; AO = 108; S = 112; AP = [116, 120, 124, 128]; HQ = 132; IX = [136, 138, 140, 142]
WP = 144
NV2 = 168

def pr(r): return v(r, 2)
def q4(r): return v(r, 4)
def x16(r): return v(r, 16)

C1 = 116
def mf_tile(Y):
    d = D[Y]
    return [f"v_mfma_f32_32x32x16_bf16 {x16(d)}, {q4(AE)}, {q4(BC[Y])}, {x16(C1 if Y else d)}",
            f"v_mfma_f32_32x32x16_bf16 {x16(d)}, {q4(AO)}, {q4(BQ[Y])}, {x16(d)}"]
TR8 = [0]
def p_reads():
    if TR8[0]: return [f"ds_read_b64_tr_b16 {pr((C1 if X else D[0])+2*j)}, v{aAP+X} offset:{j*128}" for X in range(2) for j in range(8)]
    return [f"ds_read_b64_tr_b16 {pr((C1 if X else D[0])+4*j)}, v{aAP+X} offset:{j*256}" for X in range(2) for j in range(4)]
def p_shift(X):
    if TR8[0]: return []
    b = C1 if X else D[0]
    return [f"v_lshlrev_b64 {pr(b+4*j+2)}, 16, {pr(b+4*j)}" for j in range(4)]
SEGSUM = f"v_mfma_f32_32x32x16_bf16 {x16(ACC)}, {q4(HQ)}, {q4(S)}, {x16(ACC)}"

OCT = [0]
QTAILS = []
def tile(X, mf, ex_exp, mid, ex_rcp, tag=None, mpos=(0, 3, 6, 9, 12), pre=()):
    d = D[X]; out = list(pre); mi = 0
    for i in range(16):
        if i in mpos and mi < len(mf):
            out.append(mf[mi]); mi += 1
        out.append(f"v_exp_f32 v{EX+i}, v{d+i}")
        out += ex_exp.get(i, [])
    out += mid
    NAB, NCD, DAB, DCD = d, d + 8, EX, EX + 8
    out.append(f"v_pk_add_f32 {pr(DAB)}, {pr(EX)}, 1.0 op_sel_hi:[1,0]")
    out.append(f"v_pk_add_f32 {pr(DCD)}, {pr(EX+8)}, 1.0 op_sel_hi:[1,0]")
    for k in range(1, 4):
        out.append(f"v_pk_fma_f32 {pr(NAB)}, {pr(NAB)}, {pr(EX+2*k)}, {pr(NAB)}")
        out.append(f"v_pk_fma_f32 {pr(NCD)}, {pr(NCD)}, {pr(EX+8+2*k)}, {pr(NCD)}")
        out.append(f"v_pk_fma_f32 {pr(NAB)}, {pr(d+2*k)}, {pr(DAB)}, {pr(NAB)}")
        out.append(f"v_pk_fma_f32 {pr(NCD)}, {pr(d+8+2*k)}, {pr(DCD)}, {pr(NCD)}")
        out.append(f"v_pk_fma_f32 {pr(DAB)}, {pr(DAB)}, {pr(EX+2*k)}, {pr(DAB)}")
        out.append(f"v_pk_fma_f32 {pr(DCD)}, {pr(DCD)}, {pr(EX+8+2*k)}, {pr(DCD)}")
    qt = [f"v_pk_fma_f32 {pr(CHK)}, {pr(DAB)}, {pr(DCD)}, {pr(CHK)}"]
    for r in (DAB, DAB + 1, DCD, DCD + 1):
        qt.append(f"v_rcp_f32 v{r}, v{r}")
    qt.append(f"v_pk_mul_f32 {pr(NAB)}, {pr(NAB)}, {pr(DAB)}")
    qt.append(f"v_pk_mul_f32 {pr(NCD)}, {pr(NCD)}, {pr(DCD)}")
    qt.append(f"v_cvt_pk_bf16_f32 v{HQ+2*X}, v{NAB}, v{NAB+1}")
    qt.append(f"v_cvt_pk_bf16_f32 v{HQ+2*X+1}, v{NCD}, v{NCD+1}")
    out += ex_rcp
    if not OCT[0] or tag is None:
        return out + qt
    DM = EX + 2
    if tag[0] != "P": out += ["s_cmp_ge_u32 s55, 9", f"s_cbranch_scc1 K2_QT{tag}"]
    out += [f"v_pk_mul_f32 {pr(DM)}, {pr(DAB)}, {pr(DCD)}",
            f"v_pk_mul_f32 {pr(NAB)}, {pr(NAB)}, {pr(DCD)}",
            f"v_rcp_f32 v{DM+2}, v{DM}",
            f"v_rcp_f32 v{DM+3}, v{DM+1}",
            f"v_pk_fma_f32 {pr(NAB)}, {pr(NCD)}, {pr(DAB)}, {pr(NAB)}",
            f"v_pk_add_f32 {pr(CHK)}, {pr(CHK)}, {pr(DM)}",
            f"v_pk_mul_f32 {pr(NAB)}, {pr(NAB)}, {pr(DM+2)}",
            f"v_cvt_pk_bf16_f32 v{HQ+2*X}, v{NAB}, v{NAB+1}"]
    if tag[0] == "P": return out + [f"v_mov_b32 v{HQ+2*X+1}, 0"]
    out += [f"K2_QR{tag}:"]
    QTAILS.append([f"K2_QT{tag}:"] + qt + [f"s_branch K2_QR{tag}"])
    return out

PFL = [""]
def p_dma():
    return [f"buffer_load_dwordx4 {pr(IX[k])}, s[32:35], s{28+k} idxen offen offset:{k*1024}{PFL[0]} lds" for k in range(4)]

EFL = [""]
def e_dma():
    return ["s_cmp_lt_u32 s61, s53",
            f"s_cselect_b32 s86, {E}, 0",
            f"s_cselect_b32 m0, s59, {K2_LDS:#x}",
            "s_add_u32 s61, s61, 4",
            f"buffer_load_dwordx4 {pr(EI)}, s[84:87], 0 idxen offen{EFL[0]} lds",
            "s_mov_b32 m0, s57",
            "s_add_u32 s59, s59, 4096"]
NW2 = 7
WREG = [144, 148, 152, 156, 160, 96, 100]
def w2_pre(vaddr):
    return [f"buffer_load_dwordx4 {q4(WREG[sidx])}, v{vaddr}, s[40:43], s{73 + (sidx >> 2)} offen offset:{(sidx & 3)*1024}" for sidx in range(NW2)]

def gen_k2(opt=None):
    opt = opt or {}
    EFL[0] = " nt" if opt.get("e0nt", 0) else ""
    OCT[0] = opt.get("oct", 0)
    QTAILS.clear()
    TR8[0] = opt.get("tr8", 2)
    PFL[0] = {0: "", 1: " sc1", 2: " sc0 sc1", 3: " sc0"}[opt.get("pfl", 0)]
    a = Asm()
    def stp(i):
        if opt.get("stamps"):
            a("s_memrealtime s[96:97]"); a("s_waitcnt lgkmcnt(0)"); a(f"v_writelane_b32 v0, s96, {i}")
    def stc(i):
        if opt.get("stamps"):
            a("s_memtime s[96:97]"); a("s_waitcnt lgkmcnt(0)"); a(f"v_writelane_b32 v0, s96, {i}")
    a.label("mpnn_main_kernel")
    a("s_cmp_ge_u32 s2, 256")
    a("s_cbranch_scc1 K2_END")
    a("s_mov_b32 s70, 0")
    a.label("K2_TOP")
    a("s_load_dwordx2 s[22:23], s[0:1], 80")
    a("s_load_dwordx16 s[4:19], s[0:1], 0")
    a("s_load_dwordx2 s[20:21], s[0:1], 64")
    if opt.get("stamps"): a("s_memrealtime s[98:99]")
    a("v_lshrrev_b32 v72, 6, v0")
    a("v_and_b32 v1, 63, v0")
    a("v_readfirstlane_b32 s24, v72")
    a("v_lshlrev_b32 v24, 4, v0")
    L16 = 6
    a(f"v_lshlrev_b32 v{L16}, 4, v1")
    a("s_lshl_b32 s66, s2, 13")
    a(f"s_add_u32 s67, s66, {1 << 21}")
    a("s_and_b32 s25, s24, 3")
    a("s_lshr_b32 s26, s24, 2")
    a("s_cmp_ge_u32 s24, 8")
    a("s_cbranch_scc1 K2_HL")
    a("s_waitcnt lgkmcnt(0)")
    srd_ws(a, 40, 22, CELL_OFF, (W2F_OFF - CELL_OFF) + FRAG_BYTES)
    a("buffer_load_dwordx4 v[16:19], v24, s[40:43], s66 offen")
    a(f"buffer_load_dwordx4 v[20:23], v24, s[40:43], s67 offen{' nt' if opt.get('bnt', 1) else ''}")
    a("s_branch K2_CM")
    a.label("K2_HL")
    if opt.get("hp", 0): a("s_setprio 3")
    a("v_lshrrev_b32 v77, 4, v1")
    a("s_lshl_b32 s68, s25, 2")
    a("v_add_u32 v77, s68, v77")
    a("v_xor_b32 v27, v77, v1")
    a("v_and_b32 v27, 15, v27")
    a("v_lshlrev_b32 v27, 4, v27")
    a("v_lshl_add_u32 v26, v77, 16, v27")
    for win in (1, 2):
        a(f"v_subrev_u32 v78, {12*win}, v77")
        a("v_and_b32 v78, 15, v78")
        a(f"v_add_u32 v78, {12*win}, v78")
        a(f"v_lshl_add_u32 v{27+win}, v78, 16, v27")
    a("s_lshl_b32 s68, s2, 8")
    a("s_lshl_b32 s69, s25, 10")
    a(f"s_add_u32 m0, s69, {EIM + 4096}")
    a("s_waitcnt lgkmcnt(0)")
    srd(a, 36, "s4", "s5", N * 256)
    a("buffer_load_dwordx4 v26, s[36:39], s68 offen lds")
    a(f"s_add_u32 m0, s69, {EIM + 4096 + 16384}")
    srd_ws(a, 40, 22, CELL_OFF, (W2F_OFF - CELL_OFF) + FRAG_BYTES)
    a("buffer_load_dwordx4 v28, s[36:39], s68 offen lds")
    a(f"s_add_u32 m0, s69, {EIM + 4096 + 32768}")
    a("s_lshr_b32 s66, s2, 3")
    a("buffer_load_dwordx4 v29, s[36:39], s68 offen lds")
    a(f"s_mul_i32 s66, s66, {34*128}")
    a(f"s_mul_i32 s67, s25, {9*128}")
    a("s_add_u32 s66, s66, s67")
    a(f"s_add_u32 s66, s66, {W2F_OFF - CELL_OFF}")
    a("v_min_u32 v30, 8, v1")
    a("v_lshlrev_b32 v30, 7, v30")
    a("buffer_load_dword v134, v30, s[40:43], s66 offen")
    a.label("K2_CM")
    a("s_mul_i32 s71, s26, 12")
    a("s_lshl_b32 s56, s26, 14")
    a(f"s_add_u32 s56, s56, {EIM}")
    a("s_lshl_b32 s69, s25, 10")
    a("s_add_u32 s59, s56, s69")
    a("s_lshl_b32 s66, s24, 13")
    a(f"s_add_u32 s73, s66, {W2F_OFF - CELL_OFF}")
    a("s_cmp_lt_u32 s24, 8")
    a(f"s_cselect_b32 s73, s73, {KILL:#x}")
    a("s_add_u32 s74, s73, 4096")
    a("s_lshl_b32 s72, s25, 11")
    a(f"s_add_u32 s72, s72, {WCF_OFF - CELL_OFF}")
    a(f"v_add_u32 v156, {OH}, v24")
    for i in range(4): a(f"v_mov_b32 v{144+i}, 0")
    a(f"v_mov_b32 v31, {N}")
    a(f"v_mov_b32 v152, {E}")
    a(f"v_cmp_gt_u32 vcc, {EOFF - ZERO}, v24")
    a("v_mov_b32 v153, v152")
    a("v_mov_b32 v154, v152")
    a("v_cndmask_b32 v148, v152, v31, vcc")
    a("v_mov_b32 v155, v152")
    for i in range(1, 4): a(f"v_mov_b32 v{148+i}, v148")
    a(f"v_cmpx_le_u32 vcc, {IDX - ZERO}, v24")
    a(f"ds_write_b128 v156, v[148:151] offset:{4*12288}")
    a("s_mov_b64 exec, -1")
    a("s_cmp_lg_u32 s24, 0")
    a("s_cbranch_scc1 K2_I0")
    for i in range(3): a(f"ds_write_b128 v156, v[144:147] offset:{4*12288 + i*1024}")
    a("s_mov_b64 exec, 0xffff")
    a(f"ds_write_b128 v156, v[144:147] offset:{4*12288 + 3072}")
    a("s_mov_b64 exec, -1")
    a.label("K2_I0")
    for i in range(4): a(f"ds_write_b128 v156, v[144:147] offset:{i*12288}")
    a("s_cmp_lt_u32 s24, 4")
    a("s_cbranch_scc0 K2_I1")
    a(f"ds_write_b128 v156, v[152:155] offset:{5*12288}")
    a.label("K2_I1")
    a("v_lshrrev_b32 v72, 2, v0")
    if opt.get("stamps"):
        a("v_mov_b32 v0, 0"); a("v_writelane_b32 v0, s98, 0")
        a("s_getreg_b32 s96, hwreg(HW_REG_XCC_ID)"); a("v_writelane_b32 v0, s96, 15")
    a(f"v_mov_b32 v111, {FLAG}")
    a("v_mov_b32 v114, 1")
    a("s_lshl_b32 s57, s24, 12")
    a("s_lshl_b32 s58, s25, 7")
    if opt.get("hs", 0):
        a("s_cmp_ge_u32 s24, 8")
        a("s_cbranch_scc1 K2_HQ")
    a.label("K2_SET")
    a("s_mov_b32 s84, s6")
    a("s_and_b32 s85, s7, 0xffff")
    a(f"s_or_b32 s85, s85, {32 << 16:#x}")
    a("s_mov_b32 s87, 0x00020000")
    a(f"s_add_u32 s32, s22, {P_OFF - 3072}")
    a("s_addc_u32 s33, s23, 0")
    a("s_and_b32 s33, s33, 0xffff")
    a(f"s_or_b32 s33, s33, {512 << 16:#x}")
    a(f"s_mov_b32 s34, {N+1}")
    a("s_mov_b32 s35, 0x00020000")
    srd(a, 44, "s20", "s21", N * 256)
    H_, I_, T0, T1 = 77, 78, 105, 106
    a(f"v_lshrrev_b32 v{H_}, 5, v1")
    a(f"v_and_b32 v{I_}, 31, v1")
    a(f"v_bfe_u32 v{T0}, v1, 3, 2")
    a(f"v_bfe_u32 v{T1}, v1, 1, 1")
    a(f"v_lshl_or_b32 v{T0}, v{T0}, 1, v{T1}")
    a(f"v_and_b32 v{T1}, 1, v1")
    a(f"v_lshl_or_b32 v{T0}, v{T1}, 3, v{T0}")
    a(f"v_and_b32 v{T1}, 4, v1")
    a(f"v_lshl_or_b32 v{T0}, v{T1}, 2, v{T0}")
    a("s_mov_b32 m0, s57")
    for k in range(4): a(f"s_add_u32 s{28+k}, s58, {(3-k)*1024}")
    a(f"v_and_b32 v{T1}, 3, v1")
    a(f"v_lshl_add_u32 v{aAP}, v{T1}, 3, s57")
    a(f"v_and_b32 v{T1}, 16, v1")
    a(f"v_lshl_add_u32 v{aAP}, v{T1}, 1, v{aAP}")
    a(f"v_lshl_add_u32 v{aAP}, v{H_}, 11, v{aAP}")
    if TR8[0]:
        a(f"v_lshlrev_b32 v{T1}, 1, v1")
        a(f"v_xor_b32 v{T1}, v{T1}, v1")
        a(f"v_not_b32 v{T1}, v{T1}")
        a(f"v_and_b32 v{T1}, 8, v{T1}")
        a(f"v_mul_u32_u24 v{T1}, {(1024 + 64) // 8}, v{T1}")
        a(f"v_add_u32 v{aAP}, v{aAP}, v{T1}")
    else:
        a(f"v_and_b32 v{T1}, 8, v1")
        a(f"v_mul_u32_u24 v{T1}, {(1024 + 64) // 8}, v{T1}")
        a(f"v_add_u32 v{aAP}, v{aAP}, v{T1}")
        a(f"v_not_b32 v{T1}, v1")
        a(f"v_and_b32 v{T1}, 4, v{T1}")
        a(f"v_lshl_add_u32 v{aAP}, v{T1}, 5, v{aAP}")
    a(f"v_xor_b32 v{aAP+1}, 64, v{aAP}")
    a(f"v_bfe_u32 v{T1}, v{T0}, 3, 1")
    a(f"v_xor_b32 v{T1}, v{T1}, v{H_}")
    a(f"v_lshl_add_u32 v{T1}, v{T1}, 4, s56")
    a(f"v_lshl_add_u32 v110, v{T0}, 5, v{T1}")
    a(f"s_add_u32 s52, s56, {OH - EIM}")
    a(f"v_lshl_add_u32 v{T1}, v{H_}, 4, s52")
    a(f"v_lshl_add_u32 v{aAO}, v{T0}, 5, v{T1}")
    a("s_lshl_b32 s66, s26, 11")
    a(f"s_add_u32 s67, s66, {EOFF}")
    a(f"s_add_u32 s66, s66, {IDX}")
    a(f"v_and_b32 v{T1}, 62, v1")
    a(f"v_lshl_add_u32 v{aEI}, v{T1}, 1, s67")
    a(f"v_lshrrev_b32 v{T1}, 3, v1")
    a(f"v_lshl_add_u32 v{aIDX}, v{T1}, 2, s66")
    a(f"v_add_u32 v4, s58, v{aEI}")
    SOFF = 104
    a(f"v_and_b32 v{T1}, 8, v1")
    a(f"v_lshl_add_u32 v{SOFF}, v{T1}, 4, s52")
    a(f"v_lshl_add_u32 v{SOFF}, v{H_}, 9, v{SOFF}")
    a(f"v_and_b32 v{T1}, 4, v1")
    a(f"v_lshl_add_u32 v{SOFF}, v{T1}, 6, v{SOFF}")
    a(f"v_and_b32 v{T1}, 3, v1")
    a(f"v_lshl_add_u32 v{SOFF}, v{T1}, 3, v{SOFF}")
    a("s_mov_b32 s62, 0xffff\ns_mov_b32 s63, 0xffff\ns_mov_b32 s64, 0xffff0000\ns_mov_b32 s65, 0xffff0000")
    a(f"v_mov_b32 v{T0}, {ZERO}")
    a(f"v_cndmask_b32 v{aS1}, v{T0}, v{SOFF}, s[62:63]")
    a(f"v_cndmask_b32 v{aS2}, v{T0}, v{SOFF}, s[64:65]")
    a(f"v_lshrrev_b32 v{T1}, 4, v1")
    a(f"v_xor_b32 v{T1}, v{T1}, v1")
    a(f"v_mov_b32 v{EI}, -1")
    a(f"v_and_b32 v{EI+1}, 1, v{T1}")
    a(f"v_lshlrev_b32 v{EI+1}, 4, v{EI+1}")
    a(f"v_and_b32 v{T1}, 7, v1")
    a(f"v_lshlrev_b32 v{IX[0]+1}, 4, v{T1}")
    a(f"v_xor_b32 v{IX[1]+1}, 64, v{IX[0]+1}")
    a(f"v_mov_b32 v{IX[2]+1}, v{IX[0]+1}")
    a(f"v_mov_b32 v{IX[3]+1}, v{IX[1]+1}")
    a("v_mov_b32 v75, 0x3f80")
    a("s_lshl_b32 s66, s25, 11")
    a("s_add_u32 s67, s56, s66")
    a(f"v_add_u32 v115, s67, v{L16}")
    a("s_mov_b32 s55, 0")
    a("s_mov_b32 s60, 0")
    a("s_mov_b32 s61, s25")
    a("s_cmp_ge_u32 s24, 8")
    a("s_cbranch_scc1 K2_HP" if opt.get("hs", 0) else "s_cbranch_scc1 K2_HQ")
    RA, RK = 32, 40
    SB, TO, TW = 48, 56, 64
    TS, TE, TF, TP = 116, 124, 88, 96
    DYN = (1 << 13) | (1 << 25) | (1 << 26) | (1 << 39)
    a(f"s_mov_b32 s66, {CHUNK}")
    a("v_mul_u32_u24 v72, s66, v72")
    a(f"s_mov_b32 s78, {CNT}")
    a("v_lshl_add_u32 v76, v1, 2, s78")
    a(f"s_mov_b32 s79, {IDX}")
    a(f"s_mov_b32 s80, {OH}")
    a("s_mov_b32 s81, 0")
    a(f"s_mov_b32 s68, {DYN & 0xffffffff:#x}")
    a(f"s_mov_b32 s69, {DYN >> 32:#x}")
    for k in range(8): a(f"v_mov_b32 v{RK+k}, -1")
    if opt.get("cls", 0) >= 4:
        mp = {4: [0,1,2,2,3,3,3,4,4,4], 5: [0,1,1,2,2,3,3,4,4,4], 6: [0,1,2,3,3,4,4,4,4,4]}[opt["cls"]]
        a(f"s_mov_b32 s75, {sum(c << (3*i) for i, c in enumerate(mp)):#x}")
    if opt.get("cls") in (1, 3):
        a("v_mov_b32 v77, s26")
        a("v_sub_u32 v78, 3, v77")
    if opt.get("cls") == 2:
        a("s_lshr_b32 s66, s24, 1")
        a("v_mov_b32 v77, s66")
    a("v_mov_b32 v73, -24")
    QM = opt.get("qm", 1)
    U = 4 if QM else 8
    a(f"v_mov_b32 v74, {11*U}")
    a("v_cndmask_b32 v73, 0, v73, s[68:69]")
    a("s_cmp_lg_u32 s24, 0")
    a("s_cbranch_scc1 K2_NCI")
    a(f"v_lshlrev_b32 v105, {18 if QM else 19}, v1")
    a(f"s_mov_b64 exec, {1 << 12:#x}")
    a(f"v_add_u32 v105, {(512 - 12*U) << 16:#x}, v105")
    a(f"s_mov_b64 exec, {(1 << 25) - (1 << 14):#x}")
    a(f"v_add_u32 v105, {(512 - 13*U) << 16:#x}, v105")
    a("s_mov_b32 exec_lo, 0xf8000000")
    a("s_mov_b32 exec_hi, 0x7f")
    a(f"v_add_u32 v105, {(1024 - 27*U) << 16:#x}, v105")
    a("s_mov_b64 exec, s[68:69]")
    a("v_mov_b32 v105, 24")
    a("s_mov_b32 exec_lo, -1")
    a("s_mov_b32 exec_hi, 0xff")
    for c in range(5): a(f"ds_write_b32 v76, v105 offset:{c*512}")
    a("s_mov_b64 exec, -1")
    a.label("K2_NCI")
    a(f"buffer_load_dwordx4 {q4(BC[0])}, v{L16}, s[40:43], s72 offen")
    a(f"buffer_load_dwordx4 {q4(BC[1])}, v{L16}, s[40:43], s72 offen offset:1024")
    a("s_waitcnt lgkmcnt(0)")
    stp(1)
    a("s_barrier")
    a("s_waitcnt vmcnt(3)")
    stp(2)
    NOCL = opt.get("nocl", 0)
    def count(ks):
        for k in ks:
            a(f"v_and_b32 v{RA+k}, 63, v{16+k}")
            CLS = opt.get("cls", 0)
            if CLS == 1:
                a(f"v_cmp_lt_u32 vcc, {5000 << 18:#x}, v{16+k}")
                a("s_nop 1")
                a(f"v_cndmask_b32 v{TF+k}, v77, v78, vcc")
            elif CLS >= 4:
                a(f"v_lshrrev_b32 v{TF+k}, 28, v{16+k}")
                a(f"v_lshl_add_u32 v{TF+k}, v{TF+k}, 1, v{TF+k}")
                a(f"v_bfe_u32 v{TF+k}, s75, v{TF+k}, 3")
            elif CLS == 2: a(f"v_mov_b32 v{TF+k}, v77")
            elif CLS == 3:
                a(f"v_lshrrev_b32 v{TF+k}, 30, v{16+k}")
                a(f"v_cmp_eq_u32 vcc, 0, v{TF+k}")
                a(f"v_add_u32 v{TF+k}, 1, v{TF+k}")
                a("s_nop 0")
                a(f"v_cndmask_b32 v{TF+k}, v{TF+k}, v77, vcc")
            else: a(f"v_lshrrev_b32 v{TF+k}, 29, v{16+k}" if not NOCL else f"v_mov_b32 v{TF+k}, 0")
            a(f"v_lshl_add_u32 v{RA+k}, v{RA+k}, 2, s78")
            a(f"v_lshl_add_u32 v{RA+k}, v{TF+k}, 9, v{RA+k}")
        for k in ks:
            a(f"v_cmpx_gt_u32 vcc, -2, v{16+k}")
            a(f"ds_add_rtn_u32 v{RK+k}, v{RA+k}, v114")
        a("s_mov_b64 exec, -1")
    def decode(ks):
        for k in ks:
            a(f"v_lshrrev_b32 v{TS+k}, {18 + opt.get('pshift', 0)}, v{16+k}")
            a(f"v_bfe_u32 v{TE+k}, v{16+k}, 6, 12")
            a(f"v_add_u32 v{TE+k}, v{TE+k}, v72")
            if opt.get("eshift"): a(f"v_lshrrev_b32 v{TE+k}, {opt['eshift']}, v{TE+k}")
            a(f"v_and_b32 v{TO+k}, 15, v{16+k}")
            a(f"v_lshl_add_u32 v{TO+k}, v{TO+k}, 1, s80")
            a(f"v_mad_i32_i24 v{TF+k}, v{TF+k}, -7, 28")
    SD = "dst_sel:DWORD dst_unused:UNUSED_PAD"
    def pos_ops(k):
        return [f"v_bfe_u32 v{TP+k}, v{TP+k}, v{TF+k}, 7",
                f"v_add_u32_sdwa v{TP+k}, v{TP+k}, v{RK+k} {SD} src0_sel:DWORD src1_sel:WORD_0",
                f"v_add_u32_sdwa v{TF+k}, v{TP+k}, v{RK+k} {SD} src0_sel:DWORD src1_sel:WORD_1",
                f"v_lshrrev_b32 v{TW+k}, {2 if QM else 3}, v{TP+k}",
                f"v_mad_u32_u24 v{TF+k}, v{TW+k}, v74, v{TF+k}"]
    def scatter(ks):
        for k in ks:
            a(f"v_add_u32 v{SB+k}, v{SB+k}, v{TP+k}")
        for k in ks:
            a(f"v_cmp_gt_u32 vcc, s76, v{SB+k}")
            a(f"v_cmp_gt_u32 s[68:69], s77, v{SB+k}")
            a(f"v_cmp_gt_u32 s[82:83], 24, v{TP+k}")
            a(f"s_nop 0")
            a(f"v_cndmask_b32 v{TW+k}, v107, v106, s[68:69]")
            a(f"v_cndmask_b32 v{TW+k}, v{TW+k}, v105, vcc")
            a(f"v_add_u32 v{SB+k}, v{SB+k}, v{TW+k}")
            a(f"v_cndmask_b32 v{SB+k}, v{SB+k}, v{TF+k}, s[82:83]")
            a(f"v_lshl_add_u32 v{TO+k}, v{SB+k}, 5, v{TO+k}")
            a(f"v_lshl_add_u32 v{SB+k}, v{SB+k}, 2, s79")
        for k in ks:
            a(f"v_cmpx_gt_u32 vcc, -2, v{16+k}")
            a(f"ds_write2st64_b32 v{SB+k}, v{TS+k}, v{TE+k} offset0:0 offset1:{(EOFF-IDX)//256}")
            a(f"ds_write_b16 v{TO+k}, v75")
        a("s_mov_b64 exec, -1")
    def arrive(off):
        a("s_mov_b64 exec, 1")
        a(f"ds_add_u32 v111, v114 offset:{off}")
        a("s_mov_b64 exec, -1")
    a("v_mov_b32_dpp v25, v19 quad_perm:[3,3,3,3] row_mask:0xf bank_mask:0xf")
    count(range(4))
    a("v_cmp_ne_u32 vcc, -1, v25")
    a("s_nop 1")
    a("s_cbranch_vccz K2_C1")
    a("s_waitcnt vmcnt(2)")
    for k in range(4): a(f"v_cndmask_b32 v{20+k}, -1, v{20+k}, vcc")
    a("s_mov_b32 s81, 1")
    count([4])
    a("v_cmp_ne_u32 vcc, -1, v21")
    decode([4])
    a("s_cbranch_vccnz K2_CX")
    a.label("K2_C1")
    arrive(4)
    decode(range(4))
    a.label("K2_SB1")
    a("ds_read_b64 v[108:109], v111")
    for c in range(5): a(f"ds_read_u16 v{26+c}, v76 offset:{c*512}")
    a("s_waitcnt lgkmcnt(0)")
    a("v_readfirstlane_b32 s66, v109")
    a("v_add_u32 v26, v26, v73")
    a("s_cmp_lt_u32 s66, 8")
    a("s_cbranch_scc1 K2_SB1")
    stp(3)
    a("v_add3_u32 v27, v26, v27, v73")
    a("v_add3_u32 v28, v27, v28, v73")
    a("v_lshl_or_b32 v31, v26, 7, v27")
    a("v_add3_u32 v29, v28, v29, v73")
    a("v_lshl_or_b32 v31, v31, 7, v28")
    a("v_readfirstlane_b32 s82, v108")
    a("v_lshl_or_b32 v31, v31, 7, v29")
    for k in range(5): a(f"ds_bpermute_b32 v{TP+k}, v{RA+k}, v31")
    a("v_add_u32 v30, v29, v30")
    a("v_cmp_lt_u32 vcc, 0x7f, v29")
    a("v_max_u32 v105, 24, v30")
    a("v_add_u32 v105, -21, v105")
    a("v_and_b32 v105, -4, v105")
    a("s_or_b32 s82, s82, s70")
    a("s_or_b32 s82, s82, vcc_lo")
    a("v_add_u32_dpp v107, v105, v105 row_shr:1 row_mask:0xf bank_mask:0xf bound_ctrl:0")
    a("s_or_b32 s82, s82, vcc_hi")
    a("v_add_u32 v30, v30, v73")
    a("v_add_u32_dpp v107, v107, v107 row_shr:2 row_mask:0xf bank_mask:0xf bound_ctrl:0")
    a("s_cmp_lg_u32 s82, 0")
    a("s_cbranch_scc1 K2_BAD")
    a("v_add_u32_dpp v107, v107, v107 row_shr:4 row_mask:0xf bank_mask:0xf bound_ctrl:0")
    a("s_waitcnt lgkmcnt(0)")
    def stat(ks):
        for k in ks:
            a("\n".join(pos_ops(k)))
            a(f"v_lshl_add_u32 v{TW+k}, v{TF+k}, 5, v{TO+k}")
            a(f"v_lshl_add_u32 v{TF+k}, v{TF+k}, 2, s79")
            a(f"v_cmpx_gt_u32 vcc, 24, v{TP+k}")
            a(f"ds_write2st64_b32 v{TF+k}, v{TS+k}, v{TE+k} offset0:0 offset1:{(EOFF-IDX)//256}")
            a(f"ds_write_b16 v{TW+k}, v75")
            a("s_mov_b64 exec, -1")
    def late(ks):
        for k in ks:
            a(f"v_add_u32 v{SB+k}, v{SB+k}, v{TP+k}")
            a(f"v_cmp_gt_u32 vcc, s76, v{SB+k}")
            a(f"v_cmp_gt_u32 s[68:69], s77, v{SB+k}")
            a(f"v_cmpx_le_u32 s[82:83], 24, v{TP+k}")
            a(f"v_cmpx_gt_u32 s[82:83], -2, v{16+k}")
            a(f"v_cndmask_b32 v{TW+k}, v107, v106, s[68:69]")
            a(f"v_cndmask_b32 v{TW+k}, v{TW+k}, v105, vcc")
            a(f"v_add_u32 v{SB+k}, v{SB+k}, v{TW+k}")
            a(f"v_lshl_add_u32 v{TO+k}, v{SB+k}, 5, v{TO+k}")
            a(f"v_lshl_add_u32 v{SB+k}, v{SB+k}, 2, s79")
            a(f"ds_write2st64_b32 v{SB+k}, v{TS+k}, v{TE+k} offset0:0 offset1:{(EOFF-IDX)//256}")
            a(f"ds_write_b16 v{TO+k}, v75")
            a("s_mov_b64 exec, -1")
    stat(range(4))
    a("s_cmp_eq_u32 s81, 0")
    a("s_cbranch_scc1 K2_S0")
    stat([4])
    a("s_cmp_lg_u32 s81, 1")
    a("s_cbranch_scc1 K2_SY")
    a.label("K2_S0")
    arrive(8)
    nlw = [0]
    def lwait(off, n, vt=109, va=111, extra=None, sleep=1):
        nlw[0] += 1; t = nlw[0]
        a.label(f"LW{t}")
        a(f"ds_read_b32 v{vt}, v{va} offset:{off}")
        if extra: extra()
        a("s_waitcnt lgkmcnt(0)")
        a(f"v_readfirstlane_b32 s66, v{vt}")
        a("s_nop 0")
        a(f"s_cmp_ge_u32 s66, {n}")
        a(f"s_cbranch_scc1 LX{t}")
        if sleep: a(f"s_sleep {sleep}")
        a(f"s_branch LW{t}")
        a.label(f"LX{t}")
    def g0_addr(): pass
    def first_reads():
        for k in range(4): a(f"ds_read_b32 v{IX[k]}, v{aIDX} offset:{k*32}")
        a(f"ds_read_b32 v{EI}, v4")
    nfl = [0]
    LATE = 0
    EA = opt.get("ea", 0)
    NOROT = opt.get("norot", 0)
    D3 = opt.get("d3", 0)
    EOF_ = 384 if D3 else 512
    def first_loads():
        nfl[0] += 1
        a("s_cmp_lg_u32 s25, 0")
        a(f"s_cbranch_scc1 K2_FL{nfl[0]}")
        a("\n".join(e_dma()))
        a.label(f"K2_FL{nfl[0]}")
        a("\n".join(p_dma()))
        if EA:
            a("s_cmp_eq_u32 s25, 0")
            a(f"s_cbranch_scc1 K2_FM{nfl[0]}")
            a("\n".join(e_dma()))
            a.label(f"K2_FM{nfl[0]}")
    def sb2(tag):
        a.label(f"K2_SB2{tag}")
        a("ds_read_b32 v109, v111 offset:8")
        first_reads()
        a("s_waitcnt lgkmcnt(0)")
        a("v_readfirstlane_b32 s66, v109")
        a("s_nop 0")
        a(f"s_cmp_lt_u32 s66, {12 if opt.get('wg', 1) else 8}")
        a(f"s_cbranch_scc1 K2_SB2{tag}")
        stp(4)
        first_loads()
    a(f"ds_write_b32 v76, v30 offset:{DEG - CNT}")
    a("v_add_u32_dpp v107, v107, v107 row_shr:8 row_mask:0xf bank_mask:0xf bound_ctrl:0")
    a("s_mov_b32 s53, 9")
    a("s_nop 0")
    a("v_add_u32_dpp v107, v107, v107 row_bcast:15 row_mask:0xa bank_mask:0xf")
    a("s_nop 1")
    a("v_add_u32_dpp v107, v107, v107 row_bcast:31 row_mask:0xc bank_mask:0xf")
    a("v_sub_u32 v108, v107, v105")
    a("v_readlane_b32 s83, v107, 63")
    for k in range(5): a(f"ds_bpermute_b32 v{SB+k}, v{RA+k}, v108")
    R1L = opt.get("r1l", 1)
    if R1L:
        a("s_cmp_lg_u32 s26, 0")
        a("s_cbranch_scc1 K2_NE1")
    sb2("a")
    if R1L: a.label("K2_NE1")
    a("v_readlane_b32 s76, v108, 12")
    a("v_readlane_b32 s77, v108, 16")
    a("v_readlane_b32 s68, v108, 24")
    a("v_readlane_b32 s69, v108, 28")
    sal = ["s_add_u32 s88, s83, 95", "s_lshr_b32 s88, s88, 5", "s_mul_i32 s88, s88, 171", "s_lshr_b32 s88, s88, 9",
           "s_add_u32 s89, s76, 31", "s_lshr_b32 s89, s89, 5", "s_max_u32 s88, s88, s89", "s_lshr_b32 s89, s77, 5", "s_min_u32 s88, s88, s89",
           "s_lshl_b32 s88, s88, 5", "s_max_u32 s76, s88, s76",
           "s_sub_u32 s88, s83, s76", "s_add_u32 s88, s88, 63", "s_lshr_b32 s88, s88, 6",
           "s_sub_u32 s89, s68, s76", "s_add_u32 s89, s89, 31", "s_lshr_b32 s89, s89, 5", "s_max_u32 s88, s88, s89",
           "s_sub_u32 s89, s69, s76", "s_lshr_b32 s89, s89, 5", "s_min_u32 s88, s88, s89",
           "s_lshl_b32 s88, s88, 5", "s_add_u32 s88, s88, s76", "s_max_u32 s77, s88, s68",
           "s_sub_u32 s88, s83, 224", "s_max_i32 s77, s77, s88", "s_min_u32 s77, s77, s69",
           f"s_add_u32 s53, s76, {288+31}", "s_lshr_b32 s53, s53, 5",
           "s_sub_u32 s90, s77, s76", f"s_add_u32 s90, s90, {288+31}", "s_lshr_b32 s90, s90, 5",
           "s_sub_u32 s91, s83, s77", f"s_add_u32 s91, s91, {288+31}", "s_lshr_b32 s91, s91, 5",
           f"s_sub_u32 s88, {512+288-24}, s76", f"s_sub_u32 s89, {1024+288-24}, s77",
           "s_add_u32 s76, s76, 24", "s_add_u32 s77, s77, 24",
           "s_max_u32 s92, s90, s53", "s_max_u32 s92, s92, s91"]
    a("\n".join(sal))
    a("s_cmp_gt_u32 s92, 16")
    a("s_cbranch_scc1 K2_BAD")
    if opt.get("force_slow"): a("s_branch K2_BAD")
    a("v_mov_b32 v106, s91")
    a("ds_write_b32 v111, v106 offset:16")
    a("s_cmp_eq_u32 s26, 1")
    a("s_cselect_b32 s53, s90, s53")
    a(f"v_mov_b32 v105, {288-24}")
    a("s_waitcnt lgkmcnt(0)")
    a("v_mov_b32 v106, s88")
    a("v_mov_b32 v107, s89")
    late(range(4))
    a("s_cmp_eq_u32 s81, 0")
    a("s_cbranch_scc1 K2_S1")
    late([4])
    a("s_cmp_lg_u32 s81, 1")
    a("s_cbranch_scc1 K2_SX")
    a.label("K2_S1")
    arrive(40)
    if R1L:
        a("s_cmp_eq_u32 s26, 0")
        a("s_cbranch_scc1 K2_NE2")
        sb2("b")
        a.label("K2_NE2")
    a("s_branch K2_QD")
    a.label("K2_HQ")
    WA, QA, QB, XA, BIAS = 32, 16, 116, 132, 112
    a(f"v_lshrrev_b32 v{H_}, 5, v1")
    a("s_lshl_b32 s66, s25, 11")
    a(f"v_and_b32 v{T0}, 3, v1")
    a(f"v_and_b32 v{T1}, 4, v1")
    a(f"v_lshl_or_b32 v{T0}, v{T1}, 1, v{T0}")
    a(f"v_bfe_u32 v{T1}, v1, 3, 1")
    a(f"v_lshl_or_b32 v{T0}, v{T1}, 2, v{T0}")
    a(f"v_xor_b32 v{T1}, v{T0}, v{H_}")
    a(f"v_lshlrev_b32 v{T1}, 4, v{T1}")
    a(f"v_lshl_add_u32 v{XA}, v{T0}, 8, v{T1}")
    a(f"v_and_b32 v{T1}, 16, v1")
    a(f"v_lshl_add_u32 v{XA}, v{T1}, 10, v{XA}")
    a(f"v_add_u32 v{XA}, {EIM + 4096}, v{XA}")
    a(f"s_add_u32 s67, s66, {EIM + 8192}")
    a(f"v_add_u32 v107, s67, v{L16}")
    srd(a, 48, "s14", "s15", 512)
    a("v_and_b32 v108, 1, v1")
    a("v_and_b32 v109, 30, v1")
    a("v_lshl_add_u32 v108, v108, 6, v109")
    a("s_lshl_b32 s66, s25, 14")
    a(f"s_add_u32 s76, s66, {W1BF_OFF - CELL_OFF}")
    for i in range(1, 4): a(f"s_add_u32 s{76+i}, s76, {i*4096}")
    PFT = opt.get("pft", 0)
    if PFT:
        srd_ws(a, 92, 22, P_OFF, N * 512)
        a("s_lshr_b32 s80, s2, 3")
        a(f"s_mul_i32 s80, s80, {PFT*256*128}")
        a("s_lshl_b32 s81, s25, 13")
        a("s_add_u32 s80, s80, s81")
        a("v_lshlrev_b32 v109, 7, v1")
    a(f"s_mov_b32 s68, {NEGLOG2E:#x}")
    a(f"s_mov_b32 s69, {NEGLOG2E:#x}")
    a(f"buffer_load_ushort v{BIAS}, v108, s[48:51], s58 offen")
    a(f"buffer_load_ushort v{BIAS+1}, v108, s[48:51], s58 offen offset:32")
    a(f"buffer_load_dwordx4 {q4(BC[0])}, v{L16}, s[40:43], s72 offen")
    a(f"buffer_load_dwordx4 {q4(BC[1])}, v{L16}, s[40:43], s72 offen offset:1024")
    a("s_mov_b32 s53, 9")
    def wr(i): return WA + 4*i if i not in (12, 13) else 96 + 4*(i - 12)
    a("s_waitcnt lgkmcnt(0)")
    stp(1)
    a("s_barrier")
    for i in [x for k in range(8) for x in (k, 8 + k)]:
        a(f"buffer_load_dwordx4 {q4(wr(i))}, v{L16}, s[40:43], s{76 + (i >> 2)} offen offset:{(i & 3)*1024}")
        if i == 15:
            if opt.get("wg", 1): arrive(8)
            a("s_waitcnt vmcnt(20)")
            arrive(12)
    for i in range(PFT):
        a("buffer_load_dword v135, v109, s[92:95], s80 offen")
        a(f"s_add_u32 s80, s80, {256*128}")
    stp(2)
    a.label("K2_HS")
    a("ds_read_b32 v108, v111 offset:12")
    a("s_waitcnt lgkmcnt(0)")
    a("v_readfirstlane_b32 s66, v108")
    a("s_nop 0")
    a("s_cmp_lt_u32 s66, 4")
    a("s_cbranch_scc1 K2_HS")
    def xread(step):
        sidx = step & 7; st_ = step % 4
        if sidx: a(f"v_xor_b32 v{XA+1}, {sidx << 5}, v{XA}")
        r = XA + 1 if sidx else XA
        a(f"ds_read_b128 {q4(WP+4*st_)}, v{r} offset:{32768 if step >= 8 else 0}")
    for st in range(4): xread(st)
    if opt.get("qp", 1): a("s_setprio 3")
    a(f"s_waitcnt vmcnt({16 + PFT})")
    a(f"v_lshlrev_b32 v{BIAS}, 16, v{BIAS}")
    a(f"v_lshlrev_b32 v{BIAS+1}, 16, v{BIAS+1}")
    a(f"v_mul_f32 v{BIAS}, s68, v{BIAS}")
    a(f"v_mul_f32 v{BIAS+1}, s68, v{BIAS+1}")
    CV = 160
    for P_ in range(2):
        for sidx in range(8):
            step = 8*P_ + sidx; st_ = step % 4
            if P_ == 0: a(f"s_waitcnt vmcnt({14 - 2*sidx + PFT}) lgkmcnt(3)")
            elif sidx >= 4: a(f"s_waitcnt lgkmcnt({min(3, 15 - step)})")
            a(f"v_mfma_f32_32x32x16_bf16 {x16(QA)}, {q4(WP+4*st_)}, {q4(wr(sidx))}, {'0' if sidx == 0 else x16(QA)}")
            a(f"v_mfma_f32_32x32x16_bf16 {x16(QB)}, {q4(WP+4*st_)}, {q4(wr(8+sidx))}, {'0' if sidx == 0 else x16(QB)}")
            if step + 4 < 16: xread(step + 4)
        a("s_nop 10")
        n = 0
        for wi in range(2 if P_ == 0 else 1):
            for X, base in enumerate((QA, QB)):
                b = base + 8*wi
                dstr = (CV + 4*(n & 1)) if P_ == 0 else BQ[X]
                for k in range(8):
                    a(f"v_fma_f32 v{b+k}, v{b+k}, s68, v{BIAS+X}")
                if P_ == 0 and n == 2: a("s_waitcnt lgkmcnt(0)")
                for k in range(4):
                    a(f"v_cvt_pk_bf16_f32 v{dstr+k}, v{b+2*k}, v{b+2*k+1}")
                a(f"ds_write_b128 v107, {q4(dstr)} offset:{(wi + 2*P_)*16384 + X*1024}")
                n += 1
        if P_ == 0:
            arrive(36)
            if opt.get("qp", 1): a("s_setprio 0")
            stp(3)
            sb2("h")
    arrive(44)
    a.label("K2_QD")
    a("v_mov_b32 v167, v111")
    a(f"v_mov_b32 v166, v4")
    a(f"v_mov_b32 v{aAE}, v110")
    a(f"v_mov_b32 v{MG}, -1")
    for k in range(4): a(f"ds_read_b32 v{IX[k]}, v{aIDX} offset:{128+k*32}")
    a(f"ds_read_b128 {q4(AO)}, v{aAO}")
    def bq_reads():
        a(f"ds_read_b128 {q4(BQ[0])}, v115 offset:8192")
        a(f"ds_read_b128 {q4(BQ[1])}, v115 offset:9216")
    stp(5)
    for i in range(16): a(f"v_mov_b32 v{ACC+i}, 0")
    a(f"v_mov_b32 v{CHK}, 0\nv_mov_b32 v{CHK+1}, 0")
    T3, T2, T1_ = opt.get("t3", 6), opt.get("t2", 3), opt.get("t1", 1)
    if OCT[0]:
        a(f"v_mov_b32 v{HQ+1}, 0")
    def flag_wait(tag, off):
        a.label(f"K2_W{tag}")
        a(f"ds_read_b32 v{FV}, v{aEI} offset:{off}")
        a("s_waitcnt lgkmcnt(0)")
        a(f"v_readfirstlane_b32 s66, v{FV}")
        a("s_nop 0")
        a("s_cmp_eq_u32 s66, -1")
        a(f"s_cbranch_scc1 K2_X{tag}")
        a("s_sleep 1")
        a(f"s_branch K2_W{tag}")
        a.label(f"K2_X{tag}")
    if LATE:
        a("s_max_i32 s90, s90, 1")
        a("s_min_u32 s90, s90, s53")
        a("s_min_u32 s67, s53, 2")
        a("s_cmp_ge_u32 s25, s67")
        a("s_waitcnt vmcnt(0)")
        a("s_cbranch_scc1 K2_NF")
        a(f"ds_write_b32 v166, v{MG}")
        a.label("K2_NF")
        for m in range(4): a(f"ds_read_b128 {q4(AP[m])}, v{aAP+m}")
        a("s_waitcnt lgkmcnt(0)")
        a("\n".join(p_dma()))
        a("s_cmp_lt_u32 s25, 2")
        a("s_cbranch_scc1 K2_F2")
        a("\n".join(e_dma()))
        a.label("K2_F2")
        for i in range(4): a(f"v_mov_b32 v{HQ+i}, 0")
        a("s_cmp_eq_u32 s53, 0")
        a("s_cbranch_scc1 K2_EXIT")
        flag_wait("A", 0)
        a(f"ds_read_b128 {q4(AE)}, v{aAE}")
        stp(6)
        stc(12)
        if opt.get("prio", 1): a("s_setprio 3")
        a("s_sub_u32 s68, 0, s25")
        a("s_and_b32 s68, s68, 3")
        a("s_lshl_b32 s67, s68, 7")
        a("s_lshl_b32 s69, s68, 10")
        a(f"v_subrev_u32 v{aAO}, s69, v{aAO}")
        a(f"v_subrev_u32 v{aAE}, s69, v{aAE}")
        a(f"v_subrev_u32 v{aIDX}, s67, v{aIDX}")
        a(f"v_subrev_u32 v{aEI}, s67, v{aEI}")
        a("s_mov_b64 exec, s[62:63]")
        a(f"v_subrev_u32 v{aS1}, s69, v{aS1}")
        a("s_mov_b64 exec, s[64:65]")
        a(f"v_subrev_u32 v{aS2}, s69, v{aS2}")
        a("s_mov_b64 exec, -1")
        a("s_waitcnt lgkmcnt(0)")
        a("\n".join(mf_tile(0)))
        a("s_nop 8")
        a("s_cmp_eq_u32 s68, 1")
        a("s_cbranch_scc1 K2_U1")
        a("s_cmp_eq_u32 s68, 2")
        a("s_cbranch_scc1 K2_U2")
        a("s_cmp_eq_u32 s68, 3")
        a("s_cbranch_scc1 K2_U3")
    else:
        a("s_cmp_lg_u32 s25, 0")
        a(f"s_waitcnt vmcnt({1 if EA else 0})")
        a("s_cbranch_scc1 K2_NF")
        a("s_waitcnt vmcnt(0)")
        a(f"ds_write_b32 v166, v{MG}")
        a(f"ds_read_b32 v{EI}, v{aEI} offset:512")
        a.label("K2_NF")
        a("\n".join(p_reads()))
        a("s_waitcnt lgkmcnt(0)")
        a("\n".join(p_dma()))
        a("\n".join(p_shift(0) + p_shift(1)))
        a("s_sub_u32 s67, s25, 1")
        if not EA:
            a(f"s_cmp_ge_u32 s67, {3 if NOROT else 2}")
            a("s_cbranch_scc1 K2_F2")
            a("\n".join(e_dma()))
        a.label("K2_F2")
        a("s_cmp_eq_u32 s26, 2")
        a("s_cbranch_scc1 K2_NBQ")
        lwait(36, 4, vt=FV, va=167, extra=bq_reads)
        a.label("K2_NBQ")
        def flag_wait(tag, off):
            a.label(f"K2_W{tag}")
            a(f"ds_read_b32 v{FV}, v{aEI} offset:{off}")
            a("s_waitcnt lgkmcnt(0)")
            a(f"v_readfirstlane_b32 s66, v{FV}")
            a("s_nop 0")
            a("s_cmp_eq_u32 s66, -1")
            a(f"s_cbranch_scc1 K2_X{tag}")
            a("s_sleep 1")
            a(f"s_branch K2_W{tag}")
            a.label(f"K2_X{tag}")
        flag_wait("A", 0)
        a(f"ds_read_b128 {q4(AE)}, v{aAE}")
        stp(6)
        stc(12)
        if opt.get("prio", 1): a("s_setprio 3")
        a("s_waitcnt lgkmcnt(0)")
        a("\n".join(mf_tile(0)))
        a("s_nop 10")
        ex0 = {1: [f"ds_read_b32 v{IX[k]}, v{aIDX} offset:{256+k*32}" for k in range(4)]}
        ex1 = {1: [f"ds_read_b64_tr_b16 {pr(S)}, v{aS1}", f"ds_read_b64_tr_b16 {pr(S+2)}, v{aS2}", f"ds_read_b128 {q4(AO)}, v{aAO} offset:1024"]}
        a("\n".join(tile(0, mf_tile(1), ex0, [], [], "P0") + tile(1, [], ex1, [], ["s_waitcnt lgkmcnt(0)"], "P1")))
        a("s_mov_b32 s55, 1")
        a("s_cmp_lg_u32 s26, 2")
        a("s_cbranch_scc1 K2_NX2")
        lwait(44, 4, vt=FV, va=167)
        a.label("K2_NX2")
        lwait(40, 8, vt=FV, va=167, extra=lambda: a("ds_read_b32 v5, v167 offset:16"))
        a("v_readfirstlane_b32 s66, v5")
        a("s_cmp_eq_u32 s26, 2")
        a("s_cselect_b32 s53, s66, s53")
        a("s_cmp_eq_u32 s53, -1")
        a("s_cbranch_scc1 K2_SLOW")
        a("s_cmp_eq_u32 s26, 2")
        a(f"s_cselect_b32 s94, {opt.get('r2lag', 0)}, 0")
        a("s_sub_u32 s94, s53, s94")
        a(f"s_sub_u32 s90, s94, {T3}")
        a("s_max_i32 s90, s90, 2")
        a("s_mov_b32 s91, 0")
        a("s_sub_u32 s93, s53, 2")
        if NOROT: a(f"ds_read_b32 v{EI}, v166 offset:512")
        a(f"s_cmp_ge_u32 s67, {3 if (EA or NOROT) else 2}")
        a("s_waitcnt vmcnt(0)")
        a("s_cbranch_scc1 K2_NF2")
        a(f"ds_write_b32 v166, v{MG}")
        a.label("K2_NF2")
        a("\n".join(p_reads()))
        a("s_waitcnt lgkmcnt(0)")
        a("\n".join(p_dma()))
        a("\n".join(p_shift(0) + p_shift(1)))
        if D3:
            a("s_cmp_lg_u32 s25, 3")
            a("s_cbranch_scc1 K2_F3")
        elif not NOROT:
            a(f"s_cmp_lt_u32 s67, {3 if EA else 2}")
            a("s_cbranch_scc1 K2_F3")
        a("\n".join(e_dma()))
        a.label("K2_F3")
        flag_wait("B", 128)
        a(f"ds_read_b128 {q4(AE)}, v{aAE} offset:1024")
        if NOROT: a("s_mov_b32 s68, 1")
        else:
            a(f"s_sub_u32 s68, {0 if D3 else 1}, s25")
            a("s_and_b32 s68, s68, 3")
        a("s_sub_u32 s69, 1, s68")
        a("s_lshl_b32 s67, s69, 7")
        a("s_lshl_b32 s69, s69, 10")
        a(f"v_add_u32 v{aAO}, s69, v{aAO}")
        a(f"v_add_u32 v{aAE}, s69, v{aAE}")
        a(f"v_add_u32 v{aIDX}, s67, v{aIDX}")
        a(f"v_add_u32 v{aEI}, s67, v{aEI}")
        a("s_mov_b64 exec, s[62:63]")
        a(f"v_add_u32 v{aS1}, s69, v{aS1}")
        a("s_mov_b64 exec, s[64:65]")
        a(f"v_add_u32 v{aS2}, s69, v{aS2}")
        a("s_mov_b64 exec, -1")
        a("s_waitcnt lgkmcnt(0)")
        a("\n".join(mf_tile(0)))
        a("s_nop 8")
        a("s_cmp_eq_u32 s68, 1")
        a("s_cbranch_scc1 K2_U1")
        a("s_cmp_eq_u32 s68, 2")
        a("s_cbranch_scc1 K2_U2")
        a("s_cmp_eq_u32 s68, 3")
        a("s_cbranch_scc1 K2_U3")
    EFL[0] = {0: "", 1: " nt", 2: " sc1"}[opt.get("efl", 0)]
    WPOS = opt.get("wpos", 6)
    MP0 = {0: (0, 3, 6), 1: (0, 4, 8), 2: (2, 6, 10)}[opt.get("mp0", 0)]
    a(".p2align 6")
    for _ in range(opt.get("shift", 0)): a("s_nop 0")
    loop_start = len(a.lines)
    for u in range(4):
        a.label(f"K2_U{u}")
        if LATE:
            upd = []
            if u == 3:
                upd = [f"v_add_u32 v{aAO}, 4096, v{aAO}", f"v_add_u32 v{aAE}, 4096, v{aAE}", f"v_add_u32 v{aIDX}, 512, v{aIDX}", f"v_add_u32 v{aEI}, 512, v{aEI}",
                       "s_mov_b64 exec, s[62:63]", f"v_add_u32 v{aS1}, 4096, v{aS1}", "s_mov_b64 exec, s[64:65]", f"v_add_u32 v{aS2}, 4096, v{aS2}", "s_mov_b64 exec, -1"]
            mid0 = [f"ds_read_b64_tr_b16 {pr(S)}, v{aS1} offset:{u*1024}", f"ds_read_b64_tr_b16 {pr(S+2)}, v{aS2} offset:{u*1024}",
                    f"ds_read_b128 {q4(AO)}, v{aAO} offset:{(u+1)*1024}"]
            t0 = tile(0, mf_tile(1) + [SEGSUM], {}, mid0, [])
            ex1 = {}
            ex1[1] = [f"ds_read_b32 v{FV}, v{aEI} offset:{(u+1)*128}"] + [f"ds_read_b32 v{IX[k]}, v{aIDX} offset:{(u+2)*128+k*32}" for k in range(4)]
            if u == 0: ex1[1] += [f"ds_read_b32 v{EI}, v{aEI} offset:512"]
            ex1[12] = ["s_waitcnt lgkmcnt(0)", f"v_readfirstlane_b32 s66, v{FV}"]
            mid = ["s_cmp_eq_u32 s66, -1", f"s_waitcnt vmcnt({1 if u == 1 else 0})"]
            mid += [f"ds_read_b128 {q4(AP[m])}, v{aAP+m}" for m in range(4)]
            mid += [f"s_cbranch_scc0 K2_FW{u}", f"K2_FR{u}:"]
            mid += [f"ds_read_b128 {q4(AE)}, v{aAE} offset:{(u+1)*1024}"]
            if opt.get("gstamps"): mid += ["s_memrealtime s[96:97]", "s_add_u32 m0, s55, 16"]
            t1 = tile(1, [], ex1, mid, [])
            mf = mf_tile(0)
            post = ["s_add_u32 s66, s55, 2", "s_cmp_ge_u32 s66, s53", "s_waitcnt lgkmcnt(0)"]
            if opt.get("gstamps"): post += ["v_writelane_b32 v0, s96, m0"]
            post += [f"s_cbranch_scc1 K2_ND{u}"]
            if u == 2: post += [f"ds_write_b32 v{aEI}, v{MG} offset:512"]
            for k in range(4):
                post += [f"s_add_u32 m0, s57, {k*1024}", mf[k], f"buffer_load_dwordx4 {pr(IX[k])}, s[32:35], s58 idxen offen{PFL[0]} lds"]
            post += [f"K2_NR{u}:"]
            if u == 0: post += e_dma()
            post += upd
            nst = 1 + (6 if u == 0 else 0) + len(upd) + 3 + (1 if u == 3 else 0) + 1
            if nst - 1 < 12: post += [f"s_nop {12 - (nst - 1) - 1}"]
            a("\n".join(t0 + t1 + post))
        else:
            ex0 = {}
            ex0[1] = [f"ds_read_b32 v{FV}, v{aEI} offset:{(u+1)*128}"] + [f"ds_read_b32 v{IX[k]}, v{aIDX} offset:{(u+2)*128+k*32}" for k in range(4)]
            if u == 0: ex0[1] += [f"ds_read_b32 v{EI}, v{166 if NOROT else aEI} offset:{EOF_}"]
            ex0[12] = ["s_waitcnt lgkmcnt(0)", f"v_readfirstlane_b32 s66, v{FV}"]
            mid = ["s_cmp_eq_u32 s66, -1"]
            mid += [f"ds_read_b128 {q4(AO)}, v{aAO} offset:{(u+1)*1024}"]
            mid += [f"ds_read_b64_tr_b16 {pr(S)}, v{aS1} offset:{u*1024}", f"ds_read_b64_tr_b16 {pr(S+2)}, v{aS2} offset:{u*1024}"]
            mid += [f"s_cbranch_scc0 K2_FW{u}", f"K2_FR{u}:"]
            mid += [f"ds_read_b128 {q4(AE)}, v{aAE} offset:{(u+1)*1024}"]
            t0 = tile(0, mf_tile(1) + [SEGSUM], ex0, mid, [], f"A{u}", mpos=MP0)
            pre = [f"s_waitcnt vmcnt({1 if (u == 1 and not D3) else 0})"] + p_reads()
            blk = ["s_cmp_ge_i32 s55, s93", "s_waitcnt lgkmcnt(0)"] + p_shift(0) + [f"s_cbranch_scc1 K2_ND{u}"]
            if u == (1 if D3 else 2): blk += [f"ds_write_b32 v{166 if NOROT else aEI}, v{MG} offset:{EOF_}"]
            blk += p_dma() + [f"K2_ND{u}:"]
            if u == 0:
                ed = e_dma()
                if opt.get("e0nt", 0) > 1:
                    k = [i for i, l in enumerate(ed) if l.startswith("buffer_load")][0]
                    ed = ed[:k] + [f"s_cmp_ge_u32 s55, {opt['e0nt']}", "s_cbranch_scc1 K2_EN1", ed[k].replace(" lds", " nt lds"), "s_branch K2_EN2", "K2_EN1:", ed[k], "K2_EN2:"] + ed[k+1:]
                blk += ed
            ex1 = {WPOS: blk}
            if TR8[0] == 2:
                rd = pre[1:]; pre = pre[:1] + rd[:8]
                ex1[0] = rd[8:12]; ex1[1] = rd[12:]
            mid1 = p_shift(1)
            if u == 3 and NOROT: mid1 += ["v_add_u32 v166, 512, v166"]
            if u == 3:
                mid1 += [f"v_add_u32 v{aAO}, 4096, v{aAO}", f"v_add_u32 v{aAE}, 4096, v{aAE}", f"v_add_u32 v{aIDX}, 512, v{aIDX}", f"v_add_u32 v{aEI}, 512, v{aEI}",
                        "s_mov_b64 exec, s[62:63]", f"v_add_u32 v{aS1}, 4096, v{aS1}", "s_mov_b64 exec, s[64:65]", f"v_add_u32 v{aS2}, 4096, v{aS2}", "s_mov_b64 exec, -1"]
            exr1 = []
            if opt.get("gstamps"):
                mid1 = mid1 + ["s_memrealtime s[96:97]", "s_add_u32 m0, s55, 16"]
                exr1 += ["s_waitcnt lgkmcnt(0)", "v_writelane_b32 v0, s96, m0", "s_mov_b32 m0, s57"]
            t1 = tile(1, mf_tile(0), ex1, mid1, exr1, f"B{u}", mpos=(WPOS + 2, WPOS + 5), pre=pre)
            a("\n".join(t0 + t1))
        a("s_add_u32 s55, s55, 1")
        a("s_cmp_ge_u32 s55, s90")
        a(f"s_cbranch_scc1 K2_TH{u}")
        if u == 3: a("s_branch K2_U0")
    loop_end = len(a.lines)
    for qtl in QTAILS: a("\n".join(qtl))
    for u in range(4):
        a.label(f"K2_TH{u}")
        a(f"s_mov_b32 s92, {(u+1)&3}")
        if u < 3: a("s_branch K2_TH")
    a.label("K2_TH")
    a("s_cmp_ge_u32 s55, s53")
    a("s_cbranch_scc1 K2_EXIT")
    a("s_add_u32 s91, s91, 1")
    a("s_cmp_eq_u32 s91, 1")
    a("s_cbranch_scc0 K2_TH_2")
    if opt.get("prio", 1): a("s_setprio 2")
    a(f"s_sub_u32 s90, s94, {T2}")
    a("s_branch K2_TH_R")
    a.label("K2_TH_2")
    a("s_cmp_eq_u32 s91, 2")
    a("s_cbranch_scc0 K2_TH_3")
    if opt.get("prio", 1): a("s_setprio 1")
    a(f"s_sub_u32 s90, s94, {T1_}")
    a("s_branch K2_TH_R")
    a.label("K2_TH_3")
    if opt.get("prio", 1): a("s_setprio 0")
    a("s_mov_b32 s90, s53")
    a.label("K2_TH_R")
    a("s_max_i32 s90, s90, 0")
    a("s_cmp_eq_u32 s92, 1")
    a("s_cbranch_scc1 K2_U1")
    a("s_cmp_lg_u32 s60, 0")
    a("s_cbranch_scc1 K2_TH_J")
    a("s_mov_b32 s60, 1")
    a("\n".join(w2_pre(L16)))
    a.label("K2_TH_J")
    a("s_cmp_eq_u32 s92, 2")
    a("s_cbranch_scc1 K2_U2")
    a("s_cmp_eq_u32 s92, 3")
    a("s_cbranch_scc1 K2_U3")
    a("s_branch K2_U0")
    if LATE:
        for u in range(4):
            a.label(f"K2_ND{u}")
            a("\n".join(mf_tile(0)))
            a(f"s_branch K2_NR{u}")
    for u in range(4):
        a.label(f"K2_FW{u}")
        a("s_add_u32 s66, s55, 1")
        a("s_cmp_ge_u32 s66, s53")
        a(f"s_cbranch_scc1 K2_FR{u}")
        a(f"ds_read_b32 v{FV}, v{aEI} offset:{(u+1)*128}")
        a("s_waitcnt lgkmcnt(0)")
        a(f"v_readfirstlane_b32 s66, v{FV}")
        a("s_nop 0")
        a("s_cmp_eq_u32 s66, -1")
        a(f"s_cbranch_scc1 K2_FR{u}")
        a("s_sleep 1")
        a(f"s_branch K2_FW{u}")
    a.label("K2_EXIT")
    a(SEGSUM)
    stp(7)
    stc(13)
    if opt.get("stamps"): a("v_writelane_b32 v0, s53, 14")
    a(f"v_lshrrev_b32 v1, 4, v{L16}")
    a("s_cmp_lg_u32 s60, 0")
    a("s_cbranch_scc1 K2_X1")
    a("\n".join(w2_pre(L16)))
    a.label("K2_X1")
    WL = 116
    def fin_loads(l16):
        srd(a, 48, "s18", "s19", 256)
        for sidx in range(NW2, 8):
            a(f"buffer_load_dwordx4 {q4(WL+4*(sidx-NW2))}, v{l16}, s[40:43], s74 offen offset:{(sidx & 3)*1024}")
        a("v_lshrrev_b32 v8, 4, v1")
        a("v_lshlrev_b32 v9, 3, v8")
        a("s_lshl_b32 s68, s24, 5")
        a("buffer_load_dwordx2 v[10:11], v9, s[48:51], s68 offen")
    fin_loads(L16)
    a("v_subrev_u32 v2, s71, v1")
    a("v_and_b32 v2, 15, v2")
    a(f"v_mul_u32_u24 v2, {HSTR}, v2")
    a("v_and_b32 v3, 16, v1")
    a("v_lshl_add_u32 v2, v3, 2, v2")
    a("v_lshrrev_b32 v3, 5, v1")
    a("v_lshl_add_u32 v3, v3, 3, s57")
    a("v_add_u32 v2, v2, v3")
    a(f"s_waitcnt vmcnt({9 - NW2})")
    for k in range(8):
        a(f"v_cvt_pk_bf16_f32 v{EX+k}, v{ACC+2*k}, v{ACC+2*k+1}")
        if k & 1: a(f"ds_write_b64 v2, {pr(EX+k-1)} offset:{16*(k>>1)}")
    for k in range(0, 8, 2):
        a(f"v_pk_add_f32 {pr(ACC+2*k)}, {pr(ACC+2*k)}, {pr(ACC+2*k+2)}")
    a(f"v_pk_add_f32 {pr(ACC)}, {pr(ACC)}, {pr(ACC+4)}")
    a(f"v_pk_add_f32 {pr(ACC+8)}, {pr(ACC+8)}, {pr(ACC+12)}")
    a(f"v_add_f32 v{CHK}, v{CHK}, v{CHK+1}")
    a(f"v_pk_add_f32 {pr(ACC)}, {pr(ACC)}, {pr(ACC+8)}")
    a(f"v_mul_f32 v{CHK}, 0x41800000, v{CHK}")
    a(f"v_add_f32 v{CHK+1}, v{ACC}, v{ACC+1}")
    a(f"v_mul_f32 v{CHK+1}, 0, v{CHK+1}")
    a("v_mov_b32 v4, 0x207")
    a(f"v_add_f32 v{CHK}, v{CHK}, v{CHK+1}")
    a(f"v_mov_b32 v5, {FLAG}")
    a("v_mov_b32 v7, 1")
    a(f"v_cmpx_class_f32 vcc, v{CHK}, v4")
    a("ds_write_b32 v5, v7")
    a("s_mov_b64 exec, -1")
    a.label("K2_FIN")
    a("s_cmp_ge_u32 s24, 8")
    a("s_cbranch_scc1 K2_HEND")
    a("s_mov_b64 exec, 1")
    a("ds_add_u32 v5, v7 offset:24")
    a("s_mov_b64 exec, -1")
    a("v_and_b32 v12, 15, v1")
    a(f"v_mul_u32_u24 v2, {HSTR}, v12")
    a("v_lshl_add_u32 v2, v8, 4, v2")
    a(f"s_mov_b32 s78, {DEG}")
    a("v_lshl_add_u32 v4, v12, 2, s78")
    for mt in range(3): a(f"ds_read_b32 v{112+mt}, v4 offset:{mt*48}")
    a("v_lshl_add_u32 v13, v12, 16, v9")
    a(f"v_mov_b32 v3, {KILL:#x}")
    a("v_cmp_gt_u32 vcc, 4, v12")
    a("s_lshl_b32 s69, s2, 8")
    a("s_add_u32 s69, s69, s68")
    a("v_cndmask_b32 v14, v13, v3, vcc")
    a(f"s_add_u32 s72, s69, {12 << 16}")
    a(f"s_add_u32 s75, s69, {24 << 16}")
    a(f"s_mov_b32 s76, {NEGLN2:#x}")
    RS = 80
    a.label("K2_E1")
    a("ds_read_b32 v6, v5 offset:24")
    a("s_waitcnt lgkmcnt(0)")
    a("v_readfirstlane_b32 s66, v6")
    a("s_nop 0")
    a("s_cmp_ge_u32 s66, 8")
    a("s_cbranch_scc1 K2_E2")
    a("s_sleep 2")
    a("s_branch K2_E1")
    a.label("K2_E2")
    HB = 16
    OD = 120
    def wfrag(sidx): return WREG[sidx] if sidx < NW2 else WL + 4*(sidx - NW2)
    def hoff(mt, sidx): return (4*mt + (sidx >> 1))*4096 + (sidx & 1)*64
    order = [(sidx, mt) for sidx in range(8) for mt in range(2)]
    for n, (sidx, mt) in enumerate(order[:14]):
        a(f"ds_read_b128 {q4(HB+4*n)}, v2 offset:{hoff(mt, sidx)}")
    for n, (sidx, mt) in enumerate(order):
        issued = min(16, 14 + n)
        wv = f" vmcnt({8 - sidx})" if (sidx >= NW2 and mt == 0) else ""
        a(f"s_waitcnt{wv} lgkmcnt({issued - n - 1})")
        a(f"v_mfma_f32_16x16x32_bf16 {q4(OD+4*mt)}, {q4(wfrag(sidx))}, {q4(HB+4*n)}, {'0' if sidx == 0 else q4(OD+4*mt)}")
        if n < 2: a(f"ds_read_b128 {q4(HB+4*(14+n))}, v2 offset:{hoff(order[14+n][1], order[14+n][0])}")
    a("s_waitcnt vmcnt(0)")
    a("v_lshlrev_b32 v104, 16, v10")
    a("v_and_b32 v105, 0xffff0000, v10")
    a("v_lshlrev_b32 v106, 16, v11")
    a("v_and_b32 v107, 0xffff0000, v11")
    for mt in range(3): a(f"v_cvt_f32_u32 v{112+mt}, v{112+mt}")
    for mt in range(3):
        for i in range(4):
            a(f"v_mul_f32 v{RS+4*mt+i}, v{112+mt}, v{104+i}")
    def fin_tile(mt):
        for i in range(4):
            a(f"v_fma_f32 v{RS+4*mt+i}, v{OD+4*mt+i}, s76, v{RS+4*mt+i}")
        a(f"v_cvt_pk_bf16_f32 v{132+2*mt}, v{RS+4*mt}, v{RS+4*mt+1}")
        a(f"v_cvt_pk_bf16_f32 v{133+2*mt}, v{RS+4*mt+2}, v{RS+4*mt+3}")
        a(f"buffer_store_dwordx2 {pr(132+2*mt)}, v{13 if mt == 0 else 14}, s[44:47], s{(69,72,75)[mt]} offen{('', ' sc1', ' nt')[opt.get('osc', 1)]}")
    def merge(mt):
        for i in range(4):
            a(f"v_add_f32_dpp v{OD+4*mt+i}, v{OD+4*mt+4+i}, v{OD+4*mt+i} row_shr:12 row_mask:0xf bank_mask:0xf bound_ctrl:0")
    merge(0)
    fin_tile(0)
    stp(8)
    a("s_barrier")
    stp(9)
    for sidx in range(8):
        a(f"ds_read_b128 {q4(HB+4*sidx)}, v2 offset:{hoff(2, sidx)}")
    a("ds_read_b32 v6, v5")
    for sidx in range(8):
        a(f"s_waitcnt lgkmcnt({8 - sidx})")
        a(f"v_mfma_f32_16x16x32_bf16 {q4(OD+8)}, {q4(wfrag(sidx))}, {q4(HB+4*sidx)}, {'0' if sidx == 0 else q4(OD+8)}")
    a("s_waitcnt lgkmcnt(0)")
    a("v_readfirstlane_b32 s82, v6")
    a("s_nop 1")
    a("s_andn2_b32 s82, s82, s70")
    a("s_cmp_lg_u32 s82, 0")
    a("s_cbranch_scc1 K2_REDO")
    a("s_nop 0")
    merge(1)
    fin_tile(2)
    fin_tile(1)
    stp(10)
    if opt.get("stamps"): a("s_waitcnt vmcnt(0)")
    stp(11)
    a.label("K2_END2")
    stamp_out(a, opt, 22, 0xF80000, 24, 0, tmpv=2)
    if opt.get('gstamps'): stamp_out2(a, opt, 22, 0x1000000, 24, 0, tmpv=2)
    a.label("K2_END")
    a("s_endpgm")
    a.label("K2_HEND")
    a("s_waitcnt lgkmcnt(0)")
    stp(8)
    a("s_barrier")
    a("ds_read_b32 v6, v5")
    a("s_waitcnt lgkmcnt(0)")
    a("v_readfirstlane_b32 s82, v6")
    a("s_nop 0")
    a("s_andn2_b32 s82, s82, s70")
    a("s_cmp_lg_u32 s82, 0")
    a("s_cbranch_scc1 K2_REDO")
    a("s_branch K2_END2")
    a.label("K2_CX")
    a("s_mov_b32 s81, 2")
    count([5, 6, 7])
    decode([5, 6, 7])
    a("v_cmpx_eq_u32 vcc, -2, v23")
    a("ds_write_b32 v111, v114")
    a("s_mov_b64 exec, -1")
    a("s_branch K2_C1")
    a.label("K2_SY")
    for k in (5, 6, 7): a(f"ds_bpermute_b32 v{TP+k}, v{RA+k}, v31")
    a("s_waitcnt lgkmcnt(0)")
    stat([5, 6, 7])
    a("s_branch K2_S0")
    a.label("K2_SX")
    for k in (5, 6, 7): a(f"ds_bpermute_b32 v{SB+k}, v{RA+k}, v108")
    a("s_waitcnt lgkmcnt(0)")
    late([5, 6, 7])
    a("s_branch K2_S1")
    a.label("K2_REDO")
    a("s_setprio 0")
    a("s_mov_b32 s70, -1")
    a("s_lshl_b32 s66, s24, 6")
    a("v_add_u32 v0, s66, v1")
    a("s_waitcnt vmcnt(0) lgkmcnt(0)")
    a("s_barrier")
    a("s_branch K2_TOP")
    a.label("K2_BAD")
    arrive(8)
    a("v_mov_b32 v109, -1")
    a("ds_write_b32 v111, v109 offset:16")
    arrive(40)
    a.label("K2_SLOW")
    a(f"v_lshrrev_b32 v1, 4, v{L16}")
    a("s_setprio 0")
    a("s_mov_b32 s70, -1")
    a("s_waitcnt vmcnt(0) lgkmcnt(0)")
    a("s_barrier")
    a("s_lshl_b32 s66, s24, 10")
    a(f"s_add_u32 s66, s66, {OH}")
    a("v_lshl_add_u32 v2, v1, 4, s66")
    for i in range(4): a(f"v_mov_b32 v{4+i}, 0")
    for i in range(4): a(f"ds_write_b128 v2, v[4:7] offset:{i*12288}")
    a("v_lshlrev_b32 v12, 2, v1")
    a(f"v_add_u32 v3, {DEG}, v12")
    a("ds_write_b32 v3, v4")
    srd(a, 84, "s8", "s9", E * 4)
    srd(a, 88, "s10", "s11", E * 4)
    a("v_and_b32 v8, 31, v1")
    a("v_lshlrev_b32 v8, 4, v8")
    a("v_lshrrev_b32 v9, 5, v1")
    a("v_lshl_add_u32 v8, v9, 10, v8")
    a("s_lshl_b32 s72, s25, 11")
    a(f"s_add_u32 s66, s72, {WCF_OFF - CELL_OFF}")
    a("buffer_load_dwordx4 v[16:19], v8, s[40:43], s66 offen")
    a("buffer_load_dwordx4 v[20:23], v8, s[40:43], s66 offen offset:512")
    a(f"s_add_u32 s72, s72, {EIM + 8192}")
    a("v_add_u32 v8, s72, v8")
    a("v_lshlrev_b32 v7, 4, v1")
    a("\n".join(w2_pre(7)))
    srd_ws(a, 92, 22, P_OFF, N * 512)
    a("v_lshlrev_b32 v10, 1, v1")
    a("v_add_u32 v10, s58, v10")
    a("v_lshlrev_b32 v11, 1, v10")
    a(f"v_add_u32 v11, {OH}, v11")
    a("v_mov_b32 v13, 1")
    a("s_waitcnt vmcnt(0)")
    for k in range(8):
        a(f"v_lshlrev_b32 v{24+2*k}, 16, v{16+k}")
        a(f"v_and_b32 v{25+2*k}, 0xffff0000, v{16+k}")
    a("s_waitcnt lgkmcnt(0)")
    a("s_barrier")
    a("s_mov_b32 s66, s26")
    a.label("K2_SL_BLK")
    a("s_lshl_b32 s67, s66, 8")
    a("buffer_load_dword v40, v12, s[88:91], s67 offen")
    a("buffer_load_dword v41, v12, s[84:87], s67 offen")
    a("s_waitcnt vmcnt(0)")
    a("v_and_b32 v42, 255, v40")
    a("v_cmp_eq_u32 vcc, s2, v42")
    a("s_nop 1")
    a("s_mov_b64 s[68:69], vcc")
    a.label("K2_SL_E")
    a("s_cmp_eq_u64 s[68:69], 0")
    a("s_cbranch_scc1 K2_SL_NB")
    a("s_ff1_i32_b64 s72, s[68:69]")
    a("s_bitset0_b64 s[68:69], s72")
    a("v_readlane_b32 s52, v40, s72")
    a("v_readlane_b32 s53, v41, s72")
    a("s_lshl_b32 s75, s66, 6")
    a("s_add_u32 s75, s75, s72")
    a("s_lshl_b32 s75, s75, 5")
    a("s_load_dwordx8 s[76:83], s[6:7], s75")
    a("s_lshl_b32 s53, s53, 9")
    a("s_lshr_b32 s52, s52, 8")
    a("s_cmp_ge_u32 s52, 16")
    a("s_cselect_b32 s75, 16384, 0")
    a("s_cmp_ge_u32 s52, 28")
    a("s_cselect_b32 s75, 32768, s75")
    a("s_bfe_u32 s55, s52, 0x10003")
    a("s_lshl_b32 s55, s55, 9")
    a("s_add_u32 s75, s75, s55")
    a("s_and_b32 s55, s52, 7")
    a("s_lshl_b32 s55, s55, 1")
    a("s_add_u32 s75, s75, s55")
    a("v_add_u32 v45, s75, v8")
    a("buffer_load_ushort v43, v10, s[92:95], s53 offen")
    a("ds_read_u16 v44, v45")
    a("s_waitcnt vmcnt(0) lgkmcnt(0)")
    a("v_lshlrev_b32 v43, 16, v43")
    a("v_lshlrev_b32 v44, 16, v44")
    import struct
    PC = struct.unpack("<I", struct.pack("<f", 1.0 / (1 - opt.get("pcomp", 27) * 1e-4)))[0]
    a(f"v_mul_f32 v43, {PC:#x}, v43")
    a("v_add_f32 v43, v43, v44")
    for k in range(8):
        a(f"s_lshl_b32 s53, s{76+k}, 16")
        a(f"v_fmac_f32 v43, s53, v{24+2*k}")
        a(f"s_and_b32 s53, s{76+k}, 0xffff0000")
        a(f"v_fmac_f32 v43, s53, v{25+2*k}")
    a("v_exp_f32 v44, v43")
    a("s_lshl_b32 s53, s52, 10")
    a("v_add_f32 v44, 1.0, v44")
    a("v_rcp_f32 v44, v44")
    a("v_add_u32 v45, s53, v11")
    a("v_mul_f32 v43, v43, v44")
    a("ds_add_f32 v45, v43")
    a("s_cmp_lg_u32 s25, 0")
    a("s_cbranch_scc1 K2_SL_E")
    a("s_lshl_b32 s53, s52, 2")
    a(f"s_add_u32 s53, s53, {DEG}")
    a("v_mov_b32 v45, s53")
    a("s_mov_b64 exec, 1")
    a("ds_add_u32 v45, v13")
    a("s_mov_b64 exec, -1")
    a("s_branch K2_SL_E")
    a.label("K2_SL_NB")
    a("s_add_u32 s66, s66, 3")
    a(f"s_cmp_lt_u32 s66, {E // 64}")
    a("s_cbranch_scc1 K2_SL_BLK")
    a("s_waitcnt lgkmcnt(0)")
    a("s_barrier")
    a("v_and_b32 v2, 31, v1")
    a("v_lshrrev_b32 v3, 5, v1")
    a("s_mov_b32 s66, 0")
    a.label("K2_SL_CV")
    a("v_add_u32 v4, s66, v3")
    a("v_add_u32 v5, s71, v4")
    a("s_cmp_lt_u32 s66, 4")
    a("s_cselect_b32 s67, s26, 0")
    a("s_cmp_lg_u32 s67, 0")
    a("s_cbranch_scc0 K2_SL_NZ")
    a("v_mov_b32 v5, 47")
    a.label("K2_SL_NZ")
    a("v_lshlrev_b32 v5, 10, v5")
    a("v_lshl_add_u32 v5, v2, 3, v5")
    a("s_lshl_b32 s67, s58, 1")
    a(f"s_add_u32 s67, s67, {OH}")
    a("v_add_u32 v5, s67, v5")
    a("ds_read_b64 v[6:7], v5")
    a(f"v_mul_u32_u24 v4, {HSTR}, v4")
    a("v_lshl_add_u32 v4, v2, 2, v4")
    a("v_add_u32 v4, s57, v4")
    a("s_waitcnt lgkmcnt(0)")
    a("v_cvt_pk_bf16_f32 v6, v6, v7")
    a("ds_write_b32 v4, v6")
    a("s_add_u32 s66, s66, 2")
    a("s_cmp_lt_u32 s66, 16")
    a("s_cbranch_scc1 K2_SL_CV")
    a("v_lshlrev_b32 v7, 4, v1")
    fin_loads(7)
    a(f"v_mov_b32 v5, {FLAG}")
    a("v_mov_b32 v7, 1")
    a("s_branch K2_FIN")
    if opt.get("e64"):
        for i in range(loop_start, loop_end):
            l = a.lines[i]
            if l.startswith("v_exp_f32 ") or l.startswith("v_rcp_f32 "): a.lines[i] = l.replace("_f32 ", "_f32_e64 ", 1)
    a.loop = (loop_start, loop_end)
    return a, NV2, (102 if opt.get('stamps') else 96)
```

```python
import sys, re
from asmlib import *
from k1 import *
from k2 import *
import k3

CLK = [0]
DOC = '''; ---------------------------------------------------------------------------------------------
;   z = x[src] W1a + x[dst] W1b + e W1c + b1 ;  out[n] = (sum_{dst=n} silu(z)) W2 + deg(n) b2
; ---------------------------------------------------------------------------------------------
'''
def gen_diag(code):
    kern = code // 1000; idx = (code % 1000) // 10; mx = code % 10
    off = {1: 0xF00000, 2: 0xF80000, 3: 0xF00000, 4: 0xF00000 + NGEMM * 1024}[kern]
    nwg = {1: NGEMM + NSORTWG, 2: 256, 3: NGEMM, 4: NSORTWG}[kern]
    nw = 8
    a = Asm()
    a.label("mpnn_diag_kernel")
    a("s_cmp_ge_u32 s2, 1")
    a("s_cbranch_scc1 KD_END")
    a("s_load_dwordx2 s[4:5], s[0:1], 80")
    a("s_memrealtime s[6:7]")
    a("v_lshlrev_b32 v1, 10, v0")
    a("s_waitcnt lgkmcnt(0)")
    a(f"s_add_u32 s8, s4, {off}")
    a("s_addc_u32 s9, s5, 0")
    a(f"s_mov_b32 s10, {nwg*1024}")
    a("s_mov_b32 s11, 0x00020000")
    a(f"v_mov_b32 v2, {-1 if mx else 0}")
    for i in range((nwg + 63) // 64):
        a(f"s_mov_b32 s12, {i*65536}")
        for w in range(nw):
            a(f"buffer_load_dword v{8+w}, v1, s[8:11], s12 offen offset:{w*64+idx*4}")
        a("s_waitcnt vmcnt(0)")
        for w in range(nw):
            a(f"v_cmp_ne_u32 vcc, 0, v{8+w}")
            a(f"v_sub_u32 v3, s6, v{8+w}")
            a("s_nop 0")
            a(f"v_cndmask_b32 v3, v2, v3, vcc")
            a(f"v_{'min' if mx else 'max'}_u32 v2, v2, v3")
    a(f"s_mov_b32 s13, {-1 if mx else 0}")
    a("s_nop 1")
    for l in range(64):
        a(f"v_readlane_b32 s14, v2, {l}")
        a("s_nop 0")
        a(f"s_{'min' if mx else 'max'}_u32 s13, s13, s14")
    a("s_min_u32 s13, s13, 10000")
    a("s_sub_u32 s13, s6, s13")
    if CLK[0]:
        a(f"s_add_u32 s8, s4, {0xF80000}")
        a("s_addc_u32 s9, s5, 0")
        a("s_mov_b32 s10, 0x40000")
        for n, o in enumerate((6, 7, 12, 13)):
            a(f"buffer_load_dword v{8+n}, v1, s[8:11], 0 offen offset:{64 + o*4}")
        a("s_waitcnt vmcnt(0)")
        a("v_sub_u32 v8, v9, v8")
        a("v_sub_u32 v10, v11, v10")
        a("v_cvt_f32_u32 v8, v8")
        a("v_cvt_f32_u32 v10, v10")
        a("v_rcp_f32 v8, v8")
        a("s_nop 0")
        a("v_mul_f32 v8, v8, v10")
        a("v_mul_f32 v8, 0x42c80000, v8")
        a("v_cvt_u32_f32 v8, v8")
        a("s_mov_b32 s15, 0")
        a("s_nop 0")
        for l in range(64):
            a(f"v_readlane_b32 s14, v8, {l}")
            a("s_nop 0")
            a("s_add_u32 s15, s15, s14")
        a("s_lshr_b32 s15, s15, 6")
        a("s_min_u32 s15, s15, 3000")
        a("s_add_u32 s13, s13, s15")
    a.label("KD_SPIN")
    a("s_memrealtime s[6:7]")
    a("s_waitcnt lgkmcnt(0)")
    a("s_sub_u32 s14, s6, s13")
    a("s_cmp_lt_i32 s14, 10000")
    a("s_cbranch_scc1 KD_SPIN")
    a.label("KD_END")
    a("s_endpgm")
    return a, 24, 24

def build3(opt):
    hdr = open("standalone__edge_featured_mpnn_mpnn__graph.s.ref").read().split("\n")
    hdr = [l for l in hdr if l.startswith(";")][:12]
    out = "\n".join(hdr) + "\n"
    if opt.get("single"):
        out += f"; @launch grid=(256,1,1) block=(768,1,1) lds={K2_LDS}\n"
    else:
        out += f"; @launch kernel={k3.KNAME} grid=(256,1,1) block=(768,1,1) lds={K2_LDS}\n"
    if "diag" in opt:
        out += "; @launch kernel=mpnn_diag_kernel grid=(1,1,1) block=(64,1,1) lds=0\n"
    out += '.amdgcn_target "amdgcn-amd-amdhsa--gfx950"\n.text\n'
    ks = [(k3.KNAME,) + k3.gen_k3(opt)]
    if "diag" in opt:
        ks.append(("mpnn_diag_kernel",) + gen_diag(opt["diag"]))
    return finish(out, ks)

def build(opt):
    CLK[0] = opt.get("clk", 0)
    if opt.get("fused"): return build3(opt)
    hdr = open("standalone__edge_featured_mpnn_mpnn__graph.s.ref").read().split("\n")
    hdr = [l for l in hdr if l.startswith(";")][:12]
    out = "\n".join(hdr) + "\n"
    for _ in range(opt.get("pre_empty", 0)):
        out += "; @launch kernel=mpnn_empty_kernel grid=(256,1,1) block=(64,1,1) lds=0\n"
    out += f"; @launch kernel=mpnn_pre_kernel grid=({K1_WGS},1,1) block=({K1_BLOCK},1,1) lds={K1_LDS}\n"
    for _ in range(opt.get("mid_empty", 0)):
        out += "; @launch kernel=mpnn_empty_kernel grid=(256,1,1) block=(64,1,1) lds=0\n"
    for _ in range(opt.get("mid_big", 0)):
        out += "; @launch kernel=mpnn_empty_kernel grid=(256,1,1) block=(768,1,1) lds=163840\n"
    for _ in range(opt.get("k1x", 0)):
        out += f"; @launch kernel=mpnn_pre_kernel grid=({K1_WGS},1,1) block=({K1_BLOCK},1,1) lds={K1_LDS}\n"
    if not opt.get("k1only"):
        out += f"; @launch kernel=mpnn_main_kernel grid=(256,1,1) block=(768,1,1) lds={K2_LDS}\n"
    for _ in range(opt.get("post_empty", 0)):
        out += "; @launch kernel=mpnn_empty_kernel grid=(256,1,1) block=(64,1,1) lds=0\n"
    if "diag" in opt:
        out += "; @launch kernel=mpnn_diag_kernel grid=(1,1,1) block=(64,1,1) lds=0\n"
    out += DOC
    out += '.amdgcn_target "amdgcn-amd-amdhsa--gfx950"\n.text\n'
    ks = [("mpnn_pre_kernel",) + gen_k1(opt), ("mpnn_main_kernel",) + gen_k2(opt)]
    if opt.get("pre_empty") or opt.get("post_empty") or opt.get("mid_empty") or opt.get("mid_big"):
        e = Asm(); e.label("mpnn_empty_kernel"); e("s_endpgm")
        ks.append(("mpnn_empty_kernel", e, 168 if opt.get("mid_big") else 8, 8))
    if "diag" in opt:
        ks.append(("mpnn_diag_kernel",) + gen_diag(opt["diag"]))
    return finish(out, ks)

def finish(out, ks):
    errs = []
    for name, a, nv, ns in ks:
        errs += check_hazards(a.lines, name)
        if hasattr(a, "loop"):
            b = a.lines[a.loop[0]:a.loop[1]]
            errs += check_hazards(b[-40:] + b[:40], name + " backedge")
        out += f".globl {name}\n.p2align 8\n.type {name},@function\n" + a.text()
    out += '.section .rodata,"a"\n'
    for name, a, nv, ns in ks:
        out += f""".p2align 6
.amdhsa_kernel {name}
  .amdhsa_next_free_vgpr {nv}
  .amdhsa_next_free_sgpr {ns}
  .amdhsa_accum_offset {(nv + 3) // 4 * 4}
  .amdhsa_group_segment_fixed_size 0
  .amdhsa_kernarg_size 88
  .amdhsa_user_sgpr_count 2
  .amdhsa_user_sgpr_kernarg_segment_ptr 1
  .amdhsa_system_sgpr_workgroup_id_x 1
  .amdhsa_float_denorm_mode_32 3
.end_amdhsa_kernel
"""
    return out, errs

if __name__ == "__main__":
    opt = {}
    dst = "standalone__edge_featured_mpnn_mpnn__graph.s"
    for x in sys.argv[1:]:
        if x.endswith(".s"): dst = x
        else:
            k, _, val = x.partition("=")
            opt[k] = int(val) if val else 1
    out, errs = build(opt)
    for e in errs: print(e)
    open(dst, "w").write(out)
    print("wrote", dst, len(out), "bytes; hazards:", len(errs))
```

```python
from asmlib import *
from k1 import *

NW = 12
PSLOT = 0
EIM = 49152
OH = 98304
ZERO = 147456
CNT = ZERO
FLAG = ZERO + 1280
DEG = ZERO + 1536
SZERO = ZERO + 240
PZERO = ZERO + 2048 + 128
IDX = ZERO + 3328
EOFF = IDX + 6400
HSTR = 160
K2_LDS = 163840
assert EOFF + 6144 <= K2_LDS
GCAP = 48
KILL = 0x40000000
NEGLN2 = 0xBF317218
aAE = 1; aAP = 2; aAO = 7; aS1 = 8; aS2 = 9; aIDX = 10; aEI = 11; EI = 12; CHK = 14
D = [16, 32]; EX = 48; ACC = 64; BC = [80, 84]; BQ = [88, 92]; ID = [96, 100]
AE = 104; FV = 164; MG = 165; AO = 108; S = 112; AP = [116, 120, 124, 128]; HQ = 132; IX = [136, 138, 140, 142]
WP = 144
NV2 = 168

def pr(r): return v(r, 2)
def q4(r): return v(r, 4)
def x16(r): return v(r, 16)

C1 = 116
def mf_tile(Y):
    d = D[Y]
    return [f"v_mfma_f32_32x32x16_bf16 {x16(d)}, {q4(AE)}, {q4(BC[Y])}, {x16(C1 if Y else d)}",
            f"v_mfma_f32_32x32x16_bf16 {x16(d)}, {q4(AO)}, {q4(BQ[Y])}, {x16(d)}"]
TR8 = [0]
def p_reads():
    if TR8[0]: return [f"ds_read_b64_tr_b16 {pr((C1 if X else D[0])+2*j)}, v{aAP+X} offset:{j*128}" for X in range(2) for j in range(8)]
    return [f"ds_read_b64_tr_b16 {pr((C1 if X else D[0])+4*j)}, v{aAP+X} offset:{j*256}" for X in range(2) for j in range(4)]
def p_shift(X):
    if TR8[0]: return []
    b = C1 if X else D[0]
    return [f"v_lshlrev_b64 {pr(b+4*j+2)}, 16, {pr(b+4*j)}" for j in range(4)]
SEGSUM = f"v_mfma_f32_32x32x16_bf16 {x16(ACC)}, {q4(HQ)}, {q4(S)}, {x16(ACC)}"

OCT = [0]
QTAILS = []
def tile(X, mf, ex_exp, mid, ex_rcp, tag=None, mpos=(0, 3, 6, 9, 12), pre=()):
    d = D[X]; out = list(pre); mi = 0
    for i in range(16):
        if i in mpos and mi < len(mf):
            out.append(mf[mi]); mi += 1
        out.append(f"v_exp_f32 v{EX+i}, v{d+i}")
        out += ex_exp.get(i, [])
    out += mid
    NAB, NCD, DAB, DCD = d, d + 8, EX, EX + 8
    out.append(f"v_pk_add_f32 {pr(DAB)}, {pr(EX)}, 1.0 op_sel_hi:[1,0]")
    out.append(f"v_pk_add_f32 {pr(DCD)}, {pr(EX+8)}, 1.0 op_sel_hi:[1,0]")
    for k in range(1, 4):
        out.append(f"v_pk_fma_f32 {pr(NAB)}, {pr(NAB)}, {pr(EX+2*k)}, {pr(NAB)}")
        out.append(f"v_pk_fma_f32 {pr(NCD)}, {pr(NCD)}, {pr(EX+8+2*k)}, {pr(NCD)}")
        out.append(f"v_pk_fma_f32 {pr(NAB)}, {pr(d+2*k)}, {pr(DAB)}, {pr(NAB)}")
        out.append(f"v_pk_fma_f32 {pr(NCD)}, {pr(d+8+2*k)}, {pr(DCD)}, {pr(NCD)}")
        out.append(f"v_pk_fma_f32 {pr(DAB)}, {pr(DAB)}, {pr(EX+2*k)}, {pr(DAB)}")
        out.append(f"v_pk_fma_f32 {pr(DCD)}, {pr(DCD)}, {pr(EX+8+2*k)}, {pr(DCD)}")
    qt = [f"v_pk_fma_f32 {pr(CHK)}, {pr(DAB)}, {pr(DCD)}, {pr(CHK)}"]
    for r in (DAB, DAB + 1, DCD, DCD + 1):
        qt.append(f"v_rcp_f32 v{r}, v{r}")
    qt.append(f"v_pk_mul_f32 {pr(NAB)}, {pr(NAB)}, {pr(DAB)}")
    qt.append(f"v_pk_mul_f32 {pr(NCD)}, {pr(NCD)}, {pr(DCD)}")
    qt.append(f"v_cvt_pk_bf16_f32 v{HQ+2*X}, v{NAB}, v{NAB+1}")
    qt.append(f"v_cvt_pk_bf16_f32 v{HQ+2*X+1}, v{NCD}, v{NCD+1}")
    out += ex_rcp
    if not OCT[0] or tag is None:
        return out + qt
    DM = EX + 2
    if tag[0] != "P": out += ["s_cmp_ge_u32 s55, 9", f"s_cbranch_scc1 K2_QT{tag}"]
    out += [f"v_pk_mul_f32 {pr(DM)}, {pr(DAB)}, {pr(DCD)}",
            f"v_pk_mul_f32 {pr(NAB)}, {pr(NAB)}, {pr(DCD)}",
            f"v_rcp_f32 v{DM+2}, v{DM}",
            f"v_rcp_f32 v{DM+3}, v{DM+1}",
            f"v_pk_fma_f32 {pr(NAB)}, {pr(NCD)}, {pr(DAB)}, {pr(NAB)}",
            f"v_pk_add_f32 {pr(CHK)}, {pr(CHK)}, {pr(DM)}",
            f"v_pk_mul_f32 {pr(NAB)}, {pr(NAB)}, {pr(DM+2)}",
            f"v_cvt_pk_bf16_f32 v{HQ+2*X}, v{NAB}, v{NAB+1}"]
    if tag[0] == "P": return out + [f"v_mov_b32 v{HQ+2*X+1}, 0"]
    out += [f"K2_QR{tag}:"]
    QTAILS.append([f"K2_QT{tag}:"] + qt + [f"s_branch K2_QR{tag}"])
    return out

PFL = [""]
def p_dma():
    return [f"buffer_load_dwordx4 {pr(IX[k])}, s[32:35], s{28+k} idxen offen offset:{k*1024}{PFL[0]} lds" for k in range(4)]

EFL = [""]
def e_dma():
    return ["s_cmp_lt_u32 s61, s53",
            f"s_cselect_b32 s86, {E}, 0",
            f"s_cselect_b32 m0, s59, {K2_LDS:#x}",
            "s_add_u32 s61, s61, 4",
            f"buffer_load_dwordx4 {pr(EI)}, s[84:87], 0 idxen offen{EFL[0]} lds",
            "s_mov_b32 m0, s57",
            "s_add_u32 s59, s59, 4096"]
NW2 = 7
WREG = [144, 148, 152, 156, 160, 96, 100]
def w2_pre(vaddr):
    return [f"buffer_load_dwordx4 {q4(WREG[sidx])}, v{vaddr}, s[40:43], s{73 + (sidx >> 2)} offen offset:{(sidx & 3)*1024}" for sidx in range(NW2)]

def gen_k2(opt=None):
    opt = opt or {}
    EFL[0] = " nt" if opt.get("e0nt", 0) else ""
    OCT[0] = opt.get("oct", 0)
    QTAILS.clear()
    TR8[0] = opt.get("tr8", 2)
    PFL[0] = {0: "", 1: " sc1", 2: " sc0 sc1", 3: " sc0"}[opt.get("pfl", 0)]
    a = Asm()
    def stp(i):
        if opt.get("stamps"):
            a("s_memrealtime s[96:97]"); a("s_waitcnt lgkmcnt(0)"); a(f"v_writelane_b32 v0, s96, {i}")
    def stc(i):
        if opt.get("stamps"):
            a("s_memtime s[96:97]"); a("s_waitcnt lgkmcnt(0)"); a(f"v_writelane_b32 v0, s96, {i}")
    a.label("mpnn_main_kernel")
    a("s_cmp_ge_u32 s2, 256")
    a("s_cbranch_scc1 K2_END")
    a("s_mov_b32 s70, 0")
    a.label("K2_TOP")
    a("s_load_dwordx2 s[22:23], s[0:1], 80")
    a("s_load_dwordx16 s[4:19], s[0:1], 0")
    a("s_load_dwordx2 s[20:21], s[0:1], 64")
    if opt.get("stamps"): a("s_memrealtime s[98:99]")
    a("v_lshrrev_b32 v72, 6, v0")
    a("v_and_b32 v1, 63, v0")
    a("v_readfirstlane_b32 s24, v72")
    a("v_lshlrev_b32 v24, 4, v0")
    L16 = 6
    a(f"v_lshlrev_b32 v{L16}, 4, v1")
    a("s_lshl_b32 s66, s2, 13")
    a(f"s_add_u32 s67, s66, {1 << 21}")
    a("s_and_b32 s25, s24, 3")
    a("s_lshr_b32 s26, s24, 2")
    a("s_cmp_ge_u32 s24, 8")
    a("s_cbranch_scc1 K2_HL")
    a("s_waitcnt lgkmcnt(0)")
    srd_ws(a, 40, 22, CELL_OFF, (W2F_OFF - CELL_OFF) + FRAG_BYTES)
    a("buffer_load_dwordx4 v[16:19], v24, s[40:43], s66 offen")
    a(f"buffer_load_dwordx4 v[20:23], v24, s[40:43], s67 offen{' nt' if opt.get('bnt', 1) else ''}")
    a("s_branch K2_CM")
    a.label("K2_HL")
    if opt.get("hp", 0): a("s_setprio 3")
    a("v_lshrrev_b32 v77, 4, v1")
    a("s_lshl_b32 s68, s25, 2")
    a("v_add_u32 v77, s68, v77")
    a("v_xor_b32 v27, v77, v1")
    a("v_and_b32 v27, 15, v27")
    a("v_lshlrev_b32 v27, 4, v27")
    a("v_lshl_add_u32 v26, v77, 16, v27")
    for win in (1, 2):
        a(f"v_subrev_u32 v78, {12*win}, v77")
        a("v_and_b32 v78, 15, v78")
        a(f"v_add_u32 v78, {12*win}, v78")
        a(f"v_lshl_add_u32 v{27+win}, v78, 16, v27")
    a("s_lshl_b32 s68, s2, 8")
    a("s_lshl_b32 s69, s25, 10")
    a(f"s_add_u32 m0, s69, {EIM + 4096}")
    a("s_waitcnt lgkmcnt(0)")
    srd(a, 36, "s4", "s5", N * 256)
    a("buffer_load_dwordx4 v26, s[36:39], s68 offen lds")
    a(f"s_add_u32 m0, s69, {EIM + 4096 + 16384}")
    srd_ws(a, 40, 22, CELL_OFF, (W2F_OFF - CELL_OFF) + FRAG_BYTES)
    a("buffer_load_dwordx4 v28, s[36:39], s68 offen lds")
    a(f"s_add_u32 m0, s69, {EIM + 4096 + 32768}")
    a("s_lshr_b32 s66, s2, 3")
    a("buffer_load_dwordx4 v29, s[36:39], s68 offen lds")
    a(f"s_mul_i32 s66, s66, {34*128}")
    a(f"s_mul_i32 s67, s25, {9*128}")
    a("s_add_u32 s66, s66, s67")
    a(f"s_add_u32 s66, s66, {W2F_OFF - CELL_OFF}")
    a("v_min_u32 v30, 8, v1")
    a("v_lshlrev_b32 v30, 7, v30")
    a("buffer_load_dword v134, v30, s[40:43], s66 offen")
    a.label("K2_CM")
    a("s_mul_i32 s71, s26, 12")
    a("s_lshl_b32 s56, s26, 14")
    a(f"s_add_u32 s56, s56, {EIM}")
    a("s_lshl_b32 s69, s25, 10")
    a("s_add_u32 s59, s56, s69")
    a("s_lshl_b32 s66, s24, 13")
    a(f"s_add_u32 s73, s66, {W2F_OFF - CELL_OFF}")
    a("s_cmp_lt_u32 s24, 8")
    a(f"s_cselect_b32 s73, s73, {KILL:#x}")
    a("s_add_u32 s74, s73, 4096")
    a("s_lshl_b32 s72, s25, 11")
    a(f"s_add_u32 s72, s72, {WCF_OFF - CELL_OFF}")
    a(f"v_add_u32 v156, {OH}, v24")
    for i in range(4): a(f"v_mov_b32 v{144+i}, 0")
    a(f"v_mov_b32 v31, {N}")
    a(f"v_mov_b32 v152, {E}")
    a(f"v_cmp_gt_u32 vcc, {EOFF - ZERO}, v24")
    a("v_mov_b32 v153, v152")
    a("v_mov_b32 v154, v152")
    a("v_cndmask_b32 v148, v152, v31, vcc")
    a("v_mov_b32 v155, v152")
    for i in range(1, 4): a(f"v_mov_b32 v{148+i}, v148")
    a(f"v_cmpx_le_u32 vcc, {IDX - ZERO}, v24")
    a(f"ds_write_b128 v156, v[148:151] offset:{4*12288}")
    a("s_mov_b64 exec, -1")
    a("s_cmp_lg_u32 s24, 0")
    a("s_cbranch_scc1 K2_I0")
    for i in range(3): a(f"ds_write_b128 v156, v[144:147] offset:{4*12288 + i*1024}")
    a("s_mov_b64 exec, 0xffff")
    a(f"ds_write_b128 v156, v[144:147] offset:{4*12288 + 3072}")
    a("s_mov_b64 exec, -1")
    a.label("K2_I0")
    for i in range(4): a(f"ds_write_b128 v156, v[144:147] offset:{i*12288}")
    a("s_cmp_lt_u32 s24, 4")
    a("s_cbranch_scc0 K2_I1")
    a(f"ds_write_b128 v156, v[152:155] offset:{5*12288}")
    a.label("K2_I1")
    a("v_lshrrev_b32 v72, 2, v0")
    if opt.get("stamps"):
        a("v_mov_b32 v0, 0"); a("v_writelane_b32 v0, s98, 0")
        a("s_getreg_b32 s96, hwreg(HW_REG_XCC_ID)"); a("v_writelane_b32 v0, s96, 15")
    a(f"v_mov_b32 v111, {FLAG}")
    a("v_mov_b32 v114, 1")
    a("s_lshl_b32 s57, s24, 12")
    a("s_lshl_b32 s58, s25, 7")
    if opt.get("hs", 0):
        a("s_cmp_ge_u32 s24, 8")
        a("s_cbranch_scc1 K2_HQ")
    a.label("K2_SET")
    a("s_mov_b32 s84, s6")
    a("s_and_b32 s85, s7, 0xffff")
    a(f"s_or_b32 s85, s85, {32 << 16:#x}")
    a("s_mov_b32 s87, 0x00020000")
    a(f"s_add_u32 s32, s22, {P_OFF - 3072}")
    a("s_addc_u32 s33, s23, 0")
    a("s_and_b32 s33, s33, 0xffff")
    a(f"s_or_b32 s33, s33, {512 << 16:#x}")
    a(f"s_mov_b32 s34, {N+1}")
    a("s_mov_b32 s35, 0x00020000")
    srd(a, 44, "s20", "s21", N * 256)
    H_, I_, T0, T1 = 77, 78, 105, 106
    a(f"v_lshrrev_b32 v{H_}, 5, v1")
    a(f"v_and_b32 v{I_}, 31, v1")
    a(f"v_bfe_u32 v{T0}, v1, 3, 2")
    a(f"v_bfe_u32 v{T1}, v1, 1, 1")
    a(f"v_lshl_or_b32 v{T0}, v{T0}, 1, v{T1}")
    a(f"v_and_b32 v{T1}, 1, v1")
    a(f"v_lshl_or_b32 v{T0}, v{T1}, 3, v{T0}")
    a(f"v_and_b32 v{T1}, 4, v1")
    a(f"v_lshl_or_b32 v{T0}, v{T1}, 2, v{T0}")
    a("s_mov_b32 m0, s57")
    for k in range(4): a(f"s_add_u32 s{28+k}, s58, {(3-k)*1024}")
    a(f"v_and_b32 v{T1}, 3, v1")
    a(f"v_lshl_add_u32 v{aAP}, v{T1}, 3, s57")
    a(f"v_and_b32 v{T1}, 16, v1")
    a(f"v_lshl_add_u32 v{aAP}, v{T1}, 1, v{aAP}")
    a(f"v_lshl_add_u32 v{aAP}, v{H_}, 11, v{aAP}")
    if TR8[0]:
        a(f"v_and_b32 v{T1}, 8, v1")
        a(f"v_mul_u32_u24 v{T1}, {(1024 + 64) // 8}, v{T1}")
        a(f"v_add_u32 v{aAP}, v{aAP}, v{T1}")
    else:
        a(f"v_and_b32 v{T1}, 8, v1")
        a(f"v_mul_u32_u24 v{T1}, {(1024 + 64) // 8}, v{T1}")
        a(f"v_add_u32 v{aAP}, v{aAP}, v{T1}")
        a(f"v_not_b32 v{T1}, v1")
        a(f"v_and_b32 v{T1}, 4, v{T1}")
        a(f"v_lshl_add_u32 v{aAP}, v{T1}, 5, v{aAP}")
    a(f"v_xor_b32 v{aAP+1}, 64, v{aAP}")
    if TR8[0]:
        a("s_mov_b32 exec_lo, 0x0f0f0f0f")
        a("s_mov_b32 exec_hi, 0x0f0f0f0f")
        a(f"v_mov_b32 v{aAP}, {PZERO}")
        a(f"v_mov_b32 v{aAP+1}, {PZERO}")
        a("s_mov_b64 exec, -1")
    a(f"v_bfe_u32 v{T1}, v{T0}, 3, 1")
    a(f"v_xor_b32 v{T1}, v{T1}, v{H_}")
    a(f"v_lshl_add_u32 v{T1}, v{T1}, 4, s56")
    a(f"v_lshl_add_u32 v110, v{T0}, 5, v{T1}")
    a(f"s_add_u32 s52, s56, {OH - EIM}")
    a(f"v_lshl_add_u32 v{T1}, v{H_}, 4, s52")
    a(f"v_lshl_add_u32 v{aAO}, v{T0}, 5, v{T1}")
    a("s_lshl_b32 s66, s26, 11")
    a(f"s_add_u32 s67, s66, {EOFF}")
    a(f"s_add_u32 s66, s66, {IDX}")
    a(f"v_and_b32 v{T1}, 62, v1")
    a(f"v_lshl_add_u32 v{aEI}, v{T1}, 1, s67")
    a(f"v_lshrrev_b32 v{T1}, 3, v1")
    a(f"v_lshl_add_u32 v{aIDX}, v{T1}, 2, s66")
    a(f"v_add_u32 v4, s58, v{aEI}")
    SOFF = 104
    a(f"v_and_b32 v{T1}, 8, v1")
    a(f"v_lshl_add_u32 v{SOFF}, v{T1}, 4, s52")
    a(f"v_lshl_add_u32 v{SOFF}, v{H_}, 9, v{SOFF}")
    a(f"v_and_b32 v{T1}, 4, v1")
    a(f"v_lshl_add_u32 v{SOFF}, v{T1}, 6, v{SOFF}")
    a(f"v_and_b32 v{T1}, 3, v1")
    a(f"v_lshl_add_u32 v{SOFF}, v{T1}, 3, v{SOFF}")
    a("s_mov_b32 s62, 0xffff\ns_mov_b32 s63, 0xffff\ns_mov_b32 s64, 0xffff0000\ns_mov_b32 s65, 0xffff0000")
    a(f"v_mov_b32 v{T0}, {SZERO}")
    a(f"v_cndmask_b32 v{aS1}, v{T0}, v{SOFF}, s[62:63]")
    a(f"v_cndmask_b32 v{aS2}, v{T0}, v{SOFF}, s[64:65]")
    a(f"v_lshrrev_b32 v{T1}, 4, v1")
    a(f"v_xor_b32 v{T1}, v{T1}, v1")
    a(f"v_mov_b32 v{EI}, -1")
    a(f"v_and_b32 v{EI+1}, 1, v{T1}")
    a(f"v_lshlrev_b32 v{EI+1}, 4, v{EI+1}")
    a(f"v_and_b32 v{T1}, 7, v1")
    a(f"v_lshlrev_b32 v{IX[0]+1}, 4, v{T1}")
    a(f"v_xor_b32 v{IX[1]+1}, 64, v{IX[0]+1}")
    a(f"v_mov_b32 v{IX[2]+1}, v{IX[0]+1}")
    a(f"v_mov_b32 v{IX[3]+1}, v{IX[1]+1}")
    a("v_mov_b32 v75, 0x3f80")
    a("s_lshl_b32 s66, s25, 11")
    a("s_add_u32 s67, s56, s66")
    a(f"v_add_u32 v115, s67, v{L16}")
    a("s_mov_b32 s55, 0")
    a("s_mov_b32 s60, 0")
    a("s_mov_b32 s61, s25")
    a("s_cmp_ge_u32 s24, 8")
    a("s_cbranch_scc1 K2_HP" if opt.get("hs", 0) else "s_cbranch_scc1 K2_HQ")
    RA, RK = 32, 40
    SB, TO, TW = 48, 56, 64
    TS, TE, TF, TP = 116, 124, 88, 96
    DYN = (1 << 13) | (1 << 25) | (1 << 26) | (1 << 39)
    a(f"s_mov_b32 s66, {CHUNK}")
    a("v_mul_u32_u24 v72, s66, v72")
    a(f"s_mov_b32 s78, {CNT}")
    a("v_lshl_add_u32 v76, v1, 2, s78")
    a(f"s_mov_b32 s79, {IDX}")
    a(f"s_mov_b32 s80, {OH}")
    a("s_mov_b32 s81, 0")
    a(f"s_mov_b32 s68, {DYN & 0xffffffff:#x}")
    a(f"s_mov_b32 s69, {DYN >> 32:#x}")
    for k in range(8): a(f"v_mov_b32 v{RK+k}, -1")
    if opt.get("cls", 0) >= 4:
        mp = {4: [0,1,2,2,3,3,3,4,4,4], 5: [0,1,1,2,2,3,3,4,4,4], 6: [0,1,2,3,3,4,4,4,4,4]}[opt["cls"]]
        a(f"s_mov_b32 s75, {sum(c << (3*i) for i, c in enumerate(mp)):#x}")
    if opt.get("cls") in (1, 3):
        a("v_mov_b32 v77, s26")
        a("v_sub_u32 v78, 3, v77")
    if opt.get("cls") == 2:
        a("s_lshr_b32 s66, s24, 1")
        a("v_mov_b32 v77, s66")
    a("v_mov_b32 v73, -24")
    QM = opt.get("qm", 1)
    U = 4 if QM else 8
    a(f"v_mov_b32 v74, {11*U}")
    a("v_cndmask_b32 v73, 0, v73, s[68:69]")
    a("s_cmp_lg_u32 s24, 0")
    a("s_cbranch_scc1 K2_NCI")
    a(f"v_lshlrev_b32 v105, {18 if QM else 19}, v1")
    a(f"s_mov_b64 exec, {1 << 12:#x}")
    a(f"v_add_u32 v105, {(512 - 12*U) << 16:#x}, v105")
    a(f"s_mov_b64 exec, {(1 << 25) - (1 << 14):#x}")
    a(f"v_add_u32 v105, {(512 - 13*U) << 16:#x}, v105")
    a("s_mov_b32 exec_lo, 0xf8000000")
    a("s_mov_b32 exec_hi, 0x7f")
    a(f"v_add_u32 v105, {(1024 - 27*U) << 16:#x}, v105")
    a("s_mov_b64 exec, s[68:69]")
    a("v_mov_b32 v105, 24")
    a("s_mov_b32 exec_lo, -1")
    a("s_mov_b32 exec_hi, 0xff")
    for c in range(5): a(f"ds_write_b32 v76, v105 offset:{c*256}")
    a("s_mov_b64 exec, -1")
    a.label("K2_NCI")
    a(f"buffer_load_dwordx4 {q4(BC[0])}, v{L16}, s[40:43], s72 offen")
    a(f"buffer_load_dwordx4 {q4(BC[1])}, v{L16}, s[40:43], s72 offen offset:1024")
    a("s_waitcnt lgkmcnt(0)")
    stp(1)
    a("s_barrier")
    a("s_waitcnt vmcnt(3)")
    stp(2)
    NOCL = opt.get("nocl", 0)
    def count(ks):
        for k in ks:
            a(f"v_and_b32 v{RA+k}, 63, v{16+k}")
            CLS = opt.get("cls", 0)
            if CLS == 1:
                a(f"v_cmp_lt_u32 vcc, {5000 << 18:#x}, v{16+k}")
                a("s_nop 1")
                a(f"v_cndmask_b32 v{TF+k}, v77, v78, vcc")
            elif CLS >= 4:
                a(f"v_lshrrev_b32 v{TF+k}, 28, v{16+k}")
                a(f"v_lshl_add_u32 v{TF+k}, v{TF+k}, 1, v{TF+k}")
                a(f"v_bfe_u32 v{TF+k}, s75, v{TF+k}, 3")
            elif CLS == 2: a(f"v_mov_b32 v{TF+k}, v77")
            elif CLS == 3:
                a(f"v_lshrrev_b32 v{TF+k}, 30, v{16+k}")
                a(f"v_cmp_eq_u32 vcc, 0, v{TF+k}")
                a(f"v_add_u32 v{TF+k}, 1, v{TF+k}")
                a("s_nop 0")
                a(f"v_cndmask_b32 v{TF+k}, v{TF+k}, v77, vcc")
            else: a(f"v_lshrrev_b32 v{TF+k}, 29, v{16+k}" if not NOCL else f"v_mov_b32 v{TF+k}, 0")
            a(f"v_lshl_add_u32 v{RA+k}, v{RA+k}, 2, s78")
            a(f"v_lshl_add_u32 v{RA+k}, v{TF+k}, 8, v{RA+k}")
        for k in ks:
            a(f"v_cmpx_gt_u32 vcc, -2, v{16+k}")
            a(f"ds_add_rtn_u32 v{RK+k}, v{RA+k}, v114")
        a("s_mov_b64 exec, -1")
    def decode(ks):
        for k in ks:
            a(f"v_lshrrev_b32 v{TS+k}, {18 + opt.get('pshift', 0)}, v{16+k}")
            a(f"v_bfe_u32 v{TE+k}, v{16+k}, 6, 12")
            a(f"v_add_u32 v{TE+k}, v{TE+k}, v72")
            if opt.get("eshift"): a(f"v_lshrrev_b32 v{TE+k}, {opt['eshift']}, v{TE+k}")
            a(f"v_and_b32 v{TO+k}, 15, v{16+k}")
            a(f"v_lshl_add_u32 v{TO+k}, v{TO+k}, 1, s80")
            a(f"v_mad_i32_i24 v{TF+k}, v{TF+k}, -7, 28")
    SD = "dst_sel:DWORD dst_unused:UNUSED_PAD"
    def pos_ops(k):
        return [f"v_bfe_u32 v{TP+k}, v{TP+k}, v{TF+k}, 7",
                f"v_add_u32_sdwa v{TP+k}, v{TP+k}, v{RK+k} {SD} src0_sel:DWORD src1_sel:WORD_0",
                f"v_add_u32_sdwa v{TF+k}, v{TP+k}, v{RK+k} {SD} src0_sel:DWORD src1_sel:WORD_1",
                f"v_lshrrev_b32 v{TW+k}, {2 if QM else 3}, v{TP+k}",
                f"v_mad_u32_u24 v{TF+k}, v{TW+k}, v74, v{TF+k}"]
    def scatter(ks):
        for k in ks:
            a(f"v_add_u32 v{SB+k}, v{SB+k}, v{TP+k}")
        for k in ks:
            a(f"v_cmp_gt_u32 vcc, s76, v{SB+k}")
            a(f"v_cmp_gt_u32 s[68:69], s77, v{SB+k}")
            a(f"v_cmp_gt_u32 s[82:83], 24, v{TP+k}")
            a(f"s_nop 0")
            a(f"v_cndmask_b32 v{TW+k}, v107, v106, s[68:69]")
            a(f"v_cndmask_b32 v{TW+k}, v{TW+k}, v105, vcc")
            a(f"v_add_u32 v{SB+k}, v{SB+k}, v{TW+k}")
            a(f"v_cndmask_b32 v{SB+k}, v{SB+k}, v{TF+k}, s[82:83]")
            a(f"v_lshl_add_u32 v{TO+k}, v{SB+k}, 5, v{TO+k}")
            a(f"v_lshl_add_u32 v{SB+k}, v{SB+k}, 2, s79")
        for k in ks:
            a(f"v_cmpx_gt_u32 vcc, -2, v{16+k}")
            a(f"ds_write2st64_b32 v{SB+k}, v{TS+k}, v{TE+k} offset0:0 offset1:{(EOFF-IDX)//256}")
            a(f"ds_write_b16 v{TO+k}, v75")
        a("s_mov_b64 exec, -1")
    def arrive(off):
        a("s_mov_b64 exec, 1")
        a(f"ds_add_u32 v111, v114 offset:{off}")
        a("s_mov_b64 exec, -1")
    a("v_mov_b32_dpp v25, v19 quad_perm:[3,3,3,3] row_mask:0xf bank_mask:0xf")
    count(range(4))
    a("v_cmp_ne_u32 vcc, -1, v25")
    a("s_nop 1")
    a("s_cbranch_vccz K2_C1")
    a("s_waitcnt vmcnt(2)")
    for k in range(4): a(f"v_cndmask_b32 v{20+k}, -1, v{20+k}, vcc")
    a("s_mov_b32 s81, 1")
    count([4])
    a("v_cmp_ne_u32 vcc, -1, v21")
    decode([4])
    a("s_cbranch_vccnz K2_CX")
    a.label("K2_C1")
    arrive(4)
    decode(range(4))
    a.label("K2_SB1")
    a("ds_read_b64 v[108:109], v111")
    for c in range(5): a(f"ds_read_u16 v{26+c}, v76 offset:{c*256}")
    a("s_waitcnt lgkmcnt(0)")
    a("v_readfirstlane_b32 s66, v109")
    a("v_add_u32 v26, v26, v73")
    a("s_cmp_lt_u32 s66, 8")
    a("s_cbranch_scc1 K2_SB1")
    stp(3)
    a("v_add3_u32 v27, v26, v27, v73")
    a("v_add3_u32 v28, v27, v28, v73")
    a("v_lshl_or_b32 v31, v26, 7, v27")
    a("v_add3_u32 v29, v28, v29, v73")
    a("v_lshl_or_b32 v31, v31, 7, v28")
    a("v_readfirstlane_b32 s82, v108")
    a("v_lshl_or_b32 v31, v31, 7, v29")
    for k in range(5): a(f"ds_bpermute_b32 v{TP+k}, v{RA+k}, v31")
    a("v_add_u32 v30, v29, v30")
    a("v_cmp_lt_u32 vcc, 0x7f, v29")
    a("v_max_u32 v105, 24, v30")
    a("v_add_u32 v105, -21, v105")
    a("v_and_b32 v105, -4, v105")
    a("s_or_b32 s82, s82, s70")
    a("s_or_b32 s82, s82, vcc_lo")
    a("v_add_u32_dpp v107, v105, v105 row_shr:1 row_mask:0xf bank_mask:0xf bound_ctrl:0")
    a("s_or_b32 s82, s82, vcc_hi")
    a("v_add_u32 v30, v30, v73")
    a("v_add_u32_dpp v107, v107, v107 row_shr:2 row_mask:0xf bank_mask:0xf bound_ctrl:0")
    a("s_cmp_lg_u32 s82, 0")
    a("s_cbranch_scc1 K2_BAD")
    a("v_add_u32_dpp v107, v107, v107 row_shr:4 row_mask:0xf bank_mask:0xf bound_ctrl:0")
    a("s_waitcnt lgkmcnt(0)")
    def stat(ks):
        for k in ks:
            a("\n".join(pos_ops(k)))
            a(f"v_lshl_add_u32 v{TW+k}, v{TF+k}, 5, v{TO+k}")
            a(f"v_lshl_add_u32 v{TF+k}, v{TF+k}, 2, s79")
            a(f"v_cmpx_gt_u32 vcc, 24, v{TP+k}")
            a(f"ds_write2st64_b32 v{TF+k}, v{TS+k}, v{TE+k} offset0:0 offset1:{(EOFF-IDX)//256}")
            a(f"ds_write_b16 v{TW+k}, v75")
            a("s_mov_b64 exec, -1")
    def late(ks):
        for k in ks:
            a(f"v_add_u32 v{SB+k}, v{SB+k}, v{TP+k}")
            a(f"v_cmp_gt_u32 vcc, s76, v{SB+k}")
            a(f"v_cmp_gt_u32 s[68:69], s77, v{SB+k}")
            a(f"v_cmpx_le_u32 s[82:83], 24, v{TP+k}")
            a(f"v_cmpx_gt_u32 s[82:83], -2, v{16+k}")
            a(f"v_cndmask_b32 v{TW+k}, v107, v106, s[68:69]")
            a(f"v_cndmask_b32 v{TW+k}, v{TW+k}, v105, vcc")
            a(f"v_add_u32 v{SB+k}, v{SB+k}, v{TW+k}")
            a(f"v_lshl_add_u32 v{TO+k}, v{SB+k}, 5, v{TO+k}")
            a(f"v_lshl_add_u32 v{SB+k}, v{SB+k}, 2, s79")
            a(f"ds_write2st64_b32 v{SB+k}, v{TS+k}, v{TE+k} offset0:0 offset1:{(EOFF-IDX)//256}")
            a(f"ds_write_b16 v{TO+k}, v75")
            a("s_mov_b64 exec, -1")
    stat(range(4))
    a("s_cmp_eq_u32 s81, 0")
    a("s_cbranch_scc1 K2_S0")
    stat([4])
    a("s_cmp_lg_u32 s81, 1")
    a("s_cbranch_scc1 K2_SY")
    a.label("K2_S0")
    arrive(8)
    nlw = [0]
    def lwait(off, n, vt=109, va=111, extra=None, sleep=1):
        nlw[0] += 1; t = nlw[0]
        a.label(f"LW{t}")
        a(f"ds_read_b32 v{vt}, v{va} offset:{off}")
        if extra: extra()
        a("s_waitcnt lgkmcnt(0)")
        a(f"v_readfirstlane_b32 s66, v{vt}")
        a("s_nop 0")
        a(f"s_cmp_ge_u32 s66, {n}")
        a(f"s_cbranch_scc1 LX{t}")
        if sleep: a(f"s_sleep {sleep}")
        a(f"s_branch LW{t}")
        a.label(f"LX{t}")
    def g0_addr(): pass
    def first_reads():
        for k in range(4): a(f"ds_read_b32 v{IX[k]}, v{aIDX} offset:{k*32}")
        a(f"ds_read_b32 v{EI}, v4")
    nfl = [0]
    LATE = 0
    EA = opt.get("ea", 0)
    NOROT = opt.get("norot", 0)
    D3 = opt.get("d3", 0)
    EOF_ = 384 if D3 else 512
    def first_loads():
        nfl[0] += 1
        a("s_cmp_lg_u32 s25, 0")
        a(f"s_cbranch_scc1 K2_FL{nfl[0]}")
        a("\n".join(e_dma()))
        a.label(f"K2_FL{nfl[0]}")
        a("\n".join(p_dma()))
        if EA:
            a("s_cmp_eq_u32 s25, 0")
            a(f"s_cbranch_scc1 K2_FM{nfl[0]}")
            a("\n".join(e_dma()))
            a.label(f"K2_FM{nfl[0]}")
    def sb2(tag):
        a.label(f"K2_SB2{tag}")
        a("ds_read_b32 v109, v111 offset:8")
        first_reads()
        a("s_waitcnt lgkmcnt(0)")
        a("v_readfirstlane_b32 s66, v109")
        a("s_nop 0")
        a(f"s_cmp_lt_u32 s66, {12 if opt.get('wg', 1) else 8}")
        a(f"s_cbranch_scc1 K2_SB2{tag}")
        stp(4)
        first_loads()
    a(f"ds_write_b32 v76, v30 offset:{DEG - CNT}")
    a("v_add_u32_dpp v107, v107, v107 row_shr:8 row_mask:0xf bank_mask:0xf bound_ctrl:0")
    a("s_mov_b32 s53, 9")
    a("s_nop 0")
    a("v_add_u32_dpp v107, v107, v107 row_bcast:15 row_mask:0xa bank_mask:0xf")
    a("s_nop 1")
    a("v_add_u32_dpp v107, v107, v107 row_bcast:31 row_mask:0xc bank_mask:0xf")
    a("v_sub_u32 v108, v107, v105")
    a("v_readlane_b32 s83, v107, 63")
    for k in range(5): a(f"ds_bpermute_b32 v{SB+k}, v{RA+k}, v108")
    R1L = opt.get("r1l", 1)
    if R1L:
        a("s_cmp_lg_u32 s26, 0")
        a("s_cbranch_scc1 K2_NE1")
    sb2("a")
    if R1L: a.label("K2_NE1")
    a("v_readlane_b32 s76, v108, 12")
    a("v_readlane_b32 s77, v108, 16")
    a("v_readlane_b32 s68, v108, 24")
    a("v_readlane_b32 s69, v108, 28")
    sal = ["s_add_u32 s88, s83, 95", "s_lshr_b32 s88, s88, 5", "s_mul_i32 s88, s88, 171", "s_lshr_b32 s88, s88, 9",
           "s_add_u32 s89, s76, 31", "s_lshr_b32 s89, s89, 5", "s_max_u32 s88, s88, s89", "s_lshr_b32 s89, s77, 5", "s_min_u32 s88, s88, s89",
           "s_lshl_b32 s88, s88, 5", "s_max_u32 s76, s88, s76",
           "s_sub_u32 s88, s83, s76", "s_add_u32 s88, s88, 63", "s_lshr_b32 s88, s88, 6",
           "s_sub_u32 s89, s68, s76", "s_add_u32 s89, s89, 31", "s_lshr_b32 s89, s89, 5", "s_max_u32 s88, s88, s89",
           "s_sub_u32 s89, s69, s76", "s_lshr_b32 s89, s89, 5", "s_min_u32 s88, s88, s89",
           "s_lshl_b32 s88, s88, 5", "s_add_u32 s88, s88, s76", "s_max_u32 s77, s88, s68",
           "s_sub_u32 s88, s83, 224", "s_max_i32 s77, s77, s88", "s_min_u32 s77, s77, s69",
           f"s_add_u32 s53, s76, {288+31}", "s_lshr_b32 s53, s53, 5",
           "s_sub_u32 s90, s77, s76", f"s_add_u32 s90, s90, {288+31}", "s_lshr_b32 s90, s90, 5",
           "s_sub_u32 s91, s83, s77", f"s_add_u32 s91, s91, {288+31}", "s_lshr_b32 s91, s91, 5",
           f"s_sub_u32 s88, {512+288-24}, s76", f"s_sub_u32 s89, {1024+288-24}, s77",
           "s_add_u32 s76, s76, 24", "s_add_u32 s77, s77, 24",
           "s_max_u32 s92, s90, s53", "s_max_u32 s92, s92, s91"]
    a("\n".join(sal))
    a("s_cmp_gt_u32 s92, 16")
    a("s_cbranch_scc1 K2_BAD")
    if opt.get("force_slow"): a("s_branch K2_BAD")
    a("v_mov_b32 v106, s91")
    a("ds_write_b32 v111, v106 offset:16")
    a("s_cmp_eq_u32 s26, 1")
    a("s_cselect_b32 s53, s90, s53")
    a(f"v_mov_b32 v105, {288-24}")
    a("s_waitcnt lgkmcnt(0)")
    a("v_mov_b32 v106, s88")
    a("v_mov_b32 v107, s89")
    late(range(4))
    a("s_cmp_eq_u32 s81, 0")
    a("s_cbranch_scc1 K2_S1")
    late([4])
    a("s_cmp_lg_u32 s81, 1")
    a("s_cbranch_scc1 K2_SX")
    a.label("K2_S1")
    arrive(40)
    if R1L:
        a("s_cmp_eq_u32 s26, 0")
        a("s_cbranch_scc1 K2_NE2")
        sb2("b")
        a.label("K2_NE2")
    a("s_branch K2_QD")
    a.label("K2_HQ")
    WA, QA, QB, XA, BIAS = 32, 16, 116, 132, 112
    a(f"v_lshrrev_b32 v{H_}, 5, v1")
    a("s_lshl_b32 s66, s25, 11")
    a(f"v_and_b32 v{T0}, 3, v1")
    a(f"v_and_b32 v{T1}, 4, v1")
    a(f"v_lshl_or_b32 v{T0}, v{T1}, 1, v{T0}")
    a(f"v_bfe_u32 v{T1}, v1, 3, 1")
    a(f"v_lshl_or_b32 v{T0}, v{T1}, 2, v{T0}")
    a(f"v_xor_b32 v{T1}, v{T0}, v{H_}")
    a(f"v_lshlrev_b32 v{T1}, 4, v{T1}")
    a(f"v_lshl_add_u32 v{XA}, v{T0}, 8, v{T1}")
    a(f"v_and_b32 v{T1}, 16, v1")
    a(f"v_lshl_add_u32 v{XA}, v{T1}, 10, v{XA}")
    a(f"v_add_u32 v{XA}, {EIM + 4096}, v{XA}")
    a(f"s_add_u32 s67, s66, {EIM + 8192}")
    a(f"v_add_u32 v107, s67, v{L16}")
    srd(a, 48, "s14", "s15", 512)
    a("v_and_b32 v108, 1, v1")
    a("v_and_b32 v109, 30, v1")
    a("v_lshl_add_u32 v108, v108, 6, v109")
    a("s_lshl_b32 s66, s25, 14")
    a(f"s_add_u32 s76, s66, {W1BF_OFF - CELL_OFF}")
    for i in range(1, 4): a(f"s_add_u32 s{76+i}, s76, {i*4096}")
    PFT = opt.get("pft", 0)
    if PFT:
        srd_ws(a, 92, 22, P_OFF, N * 512)
        a("s_lshr_b32 s80, s2, 3")
        a(f"s_mul_i32 s80, s80, {PFT*256*128}")
        a("s_lshl_b32 s81, s25, 13")
        a("s_add_u32 s80, s80, s81")
        a("v_lshlrev_b32 v109, 7, v1")
    a(f"s_mov_b32 s68, {NEGLOG2E:#x}")
    a(f"s_mov_b32 s69, {NEGLOG2E:#x}")
    a(f"buffer_load_ushort v{BIAS}, v108, s[48:51], s58 offen")
    a(f"buffer_load_ushort v{BIAS+1}, v108, s[48:51], s58 offen offset:32")
    a(f"buffer_load_dwordx4 {q4(BC[0])}, v{L16}, s[40:43], s72 offen")
    a(f"buffer_load_dwordx4 {q4(BC[1])}, v{L16}, s[40:43], s72 offen offset:1024")
    a("s_mov_b32 s53, 9")
    def wr(i): return WA + 4*i if i not in (12, 13) else 96 + 4*(i - 12)
    a("s_waitcnt lgkmcnt(0)")
    stp(1)
    a("s_barrier")
    for i in [x for k in range(8) for x in (k, 8 + k)]:
        a(f"buffer_load_dwordx4 {q4(wr(i))}, v{L16}, s[40:43], s{76 + (i >> 2)} offen offset:{(i & 3)*1024}")
        if i == 15:
            if opt.get("wg", 1): arrive(8)
            a("s_waitcnt vmcnt(20)")
            arrive(12)
    for i in range(PFT):
        a("buffer_load_dword v135, v109, s[92:95], s80 offen")
        a(f"s_add_u32 s80, s80, {256*128}")
    stp(2)
    a.label("K2_HS")
    a("ds_read_b32 v108, v111 offset:12")
    a("s_waitcnt lgkmcnt(0)")
    a("v_readfirstlane_b32 s66, v108")
    a("s_nop 0")
    a("s_cmp_lt_u32 s66, 4")
    a("s_cbranch_scc1 K2_HS")
    def xread(step):
        sidx = step & 7; st_ = step % 4
        if sidx: a(f"v_xor_b32 v{XA+1}, {sidx << 5}, v{XA}")
        r = XA + 1 if sidx else XA
        a(f"ds_read_b128 {q4(WP+4*st_)}, v{r} offset:{32768 if step >= 8 else 0}")
    for st in range(4): xread(st)
    if opt.get("qp", 1): a("s_setprio 3")
    a(f"s_waitcnt vmcnt({16 + PFT})")
    a(f"v_lshlrev_b32 v{BIAS}, 16, v{BIAS}")
    a(f"v_lshlrev_b32 v{BIAS+1}, 16, v{BIAS+1}")
    a(f"v_mul_f32 v{BIAS}, s68, v{BIAS}")
    a(f"v_mul_f32 v{BIAS+1}, s68, v{BIAS+1}")
    CV = 160
    for P_ in range(2):
        for sidx in range(8):
            step = 8*P_ + sidx; st_ = step % 4
            if P_ == 0: a(f"s_waitcnt vmcnt({14 - 2*sidx + PFT}) lgkmcnt(3)")
            elif sidx >= 4: a(f"s_waitcnt lgkmcnt({min(3, 15 - step)})")
            a(f"v_mfma_f32_32x32x16_bf16 {x16(QA)}, {q4(WP+4*st_)}, {q4(wr(sidx))}, {'0' if sidx == 0 else x16(QA)}")
            a(f"v_mfma_f32_32x32x16_bf16 {x16(QB)}, {q4(WP+4*st_)}, {q4(wr(8+sidx))}, {'0' if sidx == 0 else x16(QB)}")
            if step + 4 < 16: xread(step + 4)
        a("s_nop 10")
        n = 0
        for wi in range(2 if P_ == 0 else 1):
            for X, base in enumerate((QA, QB)):
                b = base + 8*wi
                dstr = (CV + 4*(n & 1)) if P_ == 0 else BQ[X]
                for k in range(8):
                    a(f"v_fma_f32 v{b+k}, v{b+k}, s68, v{BIAS+X}")
                if P_ == 0 and n == 2: a("s_waitcnt lgkmcnt(0)")
                for k in range(4):
                    a(f"v_cvt_pk_bf16_f32 v{dstr+k}, v{b+2*k}, v{b+2*k+1}")
                a(f"ds_write_b128 v107, {q4(dstr)} offset:{(wi + 2*P_)*16384 + X*1024}")
                n += 1
        if P_ == 0:
            arrive(36)
            if opt.get("qp", 1): a("s_setprio 0")
            stp(3)
            sb2("h")
    arrive(44)
    a.label("K2_QD")
    a("v_mov_b32 v167, v111")
    a(f"v_mov_b32 v166, v4")
    a(f"v_mov_b32 v{aAE}, v110")
    a(f"v_mov_b32 v{MG}, -1")
    for k in range(4): a(f"ds_read_b32 v{IX[k]}, v{aIDX} offset:{128+k*32}")
    a(f"ds_read_b128 {q4(AO)}, v{aAO}")
    def bq_reads():
        a(f"ds_read_b128 {q4(BQ[0])}, v115 offset:8192")
        a(f"ds_read_b128 {q4(BQ[1])}, v115 offset:9216")
    stp(5)
    for i in range(16): a(f"v_mov_b32 v{ACC+i}, 0")
    a(f"v_mov_b32 v{CHK}, 0\nv_mov_b32 v{CHK+1}, 0")
    T3, T2, T1_ = opt.get("t3", 6), opt.get("t2", 3), opt.get("t1", 1)
    if OCT[0]:
        a(f"v_mov_b32 v{HQ+1}, 0")
    def flag_wait(tag, off):
        a.label(f"K2_W{tag}")
        a(f"ds_read_b32 v{FV}, v{aEI} offset:{off}")
        a("s_waitcnt lgkmcnt(0)")
        a(f"v_readfirstlane_b32 s66, v{FV}")
        a("s_nop 0")
        a("s_cmp_eq_u32 s66, -1")
        a(f"s_cbranch_scc1 K2_X{tag}")
        a("s_sleep 1")
        a(f"s_branch K2_W{tag}")
        a.label(f"K2_X{tag}")
    if LATE:
        a("s_max_i32 s90, s90, 1")
        a("s_min_u32 s90, s90, s53")
        a("s_min_u32 s67, s53, 2")
        a("s_cmp_ge_u32 s25, s67")
        a("s_waitcnt vmcnt(0)")
        a("s_cbranch_scc1 K2_NF")
        a(f"ds_write_b32 v166, v{MG}")
        a.label("K2_NF")
        for m in range(4): a(f"ds_read_b128 {q4(AP[m])}, v{aAP+m}")
        a("s_waitcnt lgkmcnt(0)")
        a("\n".join(p_dma()))
        a("s_cmp_lt_u32 s25, 2")
        a("s_cbranch_scc1 K2_F2")
        a("\n".join(e_dma()))
        a.label("K2_F2")
        for i in range(4): a(f"v_mov_b32 v{HQ+i}, 0")
        a("s_cmp_eq_u32 s53, 0")
        a("s_cbranch_scc1 K2_EXIT")
        flag_wait("A", 0)
        a(f"ds_read_b128 {q4(AE)}, v{aAE}")
        stp(6)
        stc(12)
        if opt.get("prio", 1): a("s_setprio 3")
        a("s_sub_u32 s68, 0, s25")
        a("s_and_b32 s68, s68, 3")
        a("s_lshl_b32 s67, s68, 7")
        a("s_lshl_b32 s69, s68, 10")
        a(f"v_subrev_u32 v{aAO}, s69, v{aAO}")
        a(f"v_subrev_u32 v{aAE}, s69, v{aAE}")
        a(f"v_subrev_u32 v{aIDX}, s67, v{aIDX}")
        a(f"v_subrev_u32 v{aEI}, s67, v{aEI}")
        a("s_mov_b64 exec, s[62:63]")
        a(f"v_subrev_u32 v{aS1}, s69, v{aS1}")
        a("s_mov_b64 exec, s[64:65]")
        a(f"v_subrev_u32 v{aS2}, s69, v{aS2}")
        a("s_mov_b64 exec, -1")
        a("s_waitcnt lgkmcnt(0)")
        a("\n".join(mf_tile(0)))
        a("s_nop 8")
        a("s_cmp_eq_u32 s68, 1")
        a("s_cbranch_scc1 K2_U1")
        a("s_cmp_eq_u32 s68, 2")
        a("s_cbranch_scc1 K2_U2")
        a("s_cmp_eq_u32 s68, 3")
        a("s_cbranch_scc1 K2_U3")
    else:
        a("s_cmp_lg_u32 s25, 0")
        a(f"s_waitcnt vmcnt({1 if EA else 0})")
        a("s_cbranch_scc1 K2_NF")
        a("s_waitcnt vmcnt(0)")
        a(f"ds_write_b32 v166, v{MG}")
        a(f"ds_read_b32 v{EI}, v{aEI} offset:512")
        a.label("K2_NF")
        a("\n".join(p_reads()))
        a("s_waitcnt lgkmcnt(0)")
        a("\n".join(p_dma()))
        a("\n".join(p_shift(0) + p_shift(1)))
        a("s_sub_u32 s67, s25, 1")
        if not EA:
            a(f"s_cmp_ge_u32 s67, {3 if NOROT else 2}")
            a("s_cbranch_scc1 K2_F2")
            a("\n".join(e_dma()))
        a.label("K2_F2")
        a("s_cmp_eq_u32 s26, 2")
        a("s_cbranch_scc1 K2_NBQ")
        lwait(36, 4, vt=FV, va=167, extra=bq_reads)
        a.label("K2_NBQ")
        def flag_wait(tag, off):
            a.label(f"K2_W{tag}")
            a(f"ds_read_b32 v{FV}, v{aEI} offset:{off}")
            a("s_waitcnt lgkmcnt(0)")
            a(f"v_readfirstlane_b32 s66, v{FV}")
            a("s_nop 0")
            a("s_cmp_eq_u32 s66, -1")
            a(f"s_cbranch_scc1 K2_X{tag}")
            a("s_sleep 1")
            a(f"s_branch K2_W{tag}")
            a.label(f"K2_X{tag}")
        flag_wait("A", 0)
        a(f"ds_read_b128 {q4(AE)}, v{aAE}")
        stp(6)
        stc(12)
        if opt.get("prio", 1): a("s_setprio 3")
        a("s_waitcnt lgkmcnt(0)")
        a("\n".join(mf_tile(0)))
        a("s_nop 10")
        ex0 = {1: [f"ds_read_b32 v{IX[k]}, v{aIDX} offset:{256+k*32}" for k in range(4)]}
        ex1 = {1: [f"ds_read_b64_tr_b16 {pr(S)}, v{aS1}", f"ds_read_b64_tr_b16 {pr(S+2)}, v{aS2}", f"ds_read_b128 {q4(AO)}, v{aAO} offset:1024"]}
        a("\n".join(tile(0, mf_tile(1), ex0, [], [], "P0") + tile(1, [], ex1, [], ["s_waitcnt lgkmcnt(0)"], "P1")))
        a("s_mov_b32 s55, 1")
        a("s_cmp_lg_u32 s26, 2")
        a("s_cbranch_scc1 K2_NX2")
        lwait(44, 4, vt=FV, va=167)
        a.label("K2_NX2")
        lwait(40, 8, vt=FV, va=167, extra=lambda: a("ds_read_b32 v5, v167 offset:16"))
        a("v_readfirstlane_b32 s66, v5")
        a("s_cmp_eq_u32 s26, 2")
        a("s_cselect_b32 s53, s66, s53")
        a("s_cmp_eq_u32 s53, -1")
        a("s_cbranch_scc1 K2_SLOW")
        a("s_cmp_eq_u32 s26, 2")
        a(f"s_cselect_b32 s94, {opt.get('r2lag', 0)}, 0")
        a("s_sub_u32 s94, s53, s94")
        a(f"s_sub_u32 s90, s94, {T3}")
        a("s_max_i32 s90, s90, 2")
        a("s_mov_b32 s91, 0")
        a("s_sub_u32 s93, s53, 2")
        if NOROT: a(f"ds_read_b32 v{EI}, v166 offset:512")
        a(f"s_cmp_ge_u32 s67, {3 if (EA or NOROT) else 2}")
        a("s_waitcnt vmcnt(0)")
        a("s_cbranch_scc1 K2_NF2")
        a(f"ds_write_b32 v166, v{MG}")
        a.label("K2_NF2")
        a("\n".join(p_reads()))
        a("s_waitcnt lgkmcnt(0)")
        a("\n".join(p_dma()))
        a("\n".join(p_shift(0) + p_shift(1)))
        if D3:
            a("s_cmp_lg_u32 s25, 3")
            a("s_cbranch_scc1 K2_F3")
        elif not NOROT:
            a(f"s_cmp_lt_u32 s67, {3 if EA else 2}")
            a("s_cbranch_scc1 K2_F3")
        a("\n".join(e_dma()))
        a.label("K2_F3")
        flag_wait("B", 128)
        a(f"ds_read_b128 {q4(AE)}, v{aAE} offset:1024")
        if NOROT: a("s_mov_b32 s68, 1")
        else:
            a(f"s_sub_u32 s68, {0 if D3 else 1}, s25")
            a("s_and_b32 s68, s68, 3")
        a("s_sub_u32 s69, 1, s68")
        a("s_lshl_b32 s67, s69, 7")
        a("s_lshl_b32 s69, s69, 10")
        a(f"v_add_u32 v{aAO}, s69, v{aAO}")
        a(f"v_add_u32 v{aAE}, s69, v{aAE}")
        a(f"v_add_u32 v{aIDX}, s67, v{aIDX}")
        a(f"v_add_u32 v{aEI}, s67, v{aEI}")
        a("s_mov_b64 exec, s[62:63]")
        a(f"v_add_u32 v{aS1}, s69, v{aS1}")
        a("s_mov_b64 exec, s[64:65]")
        a(f"v_add_u32 v{aS2}, s69, v{aS2}")
        a("s_mov_b64 exec, -1")
        a("s_waitcnt lgkmcnt(0)")
        a("\n".join(mf_tile(0)))
        a("s_nop 8")
        a("s_cmp_eq_u32 s68, 1")
        a("s_cbranch_scc1 K2_U1")
        a("s_cmp_eq_u32 s68, 2")
        a("s_cbranch_scc1 K2_U2")
        a("s_cmp_eq_u32 s68, 3")
        a("s_cbranch_scc1 K2_U3")
    EFL[0] = {0: "", 1: " nt", 2: " sc1"}[opt.get("efl", 0)]
    WPOS = opt.get("wpos", 6)
    MP0 = {0: (0, 3, 6), 1: (0, 4, 8), 2: (2, 6, 10)}[opt.get("mp0", 0)]
    a(".p2align 6")
    for _ in range(opt.get("shift", 0)): a("s_nop 0")
    loop_start = len(a.lines)
    for u in range(4):
        a.label(f"K2_U{u}")
        if LATE:
            upd = []
            if u == 3:
                upd = [f"v_add_u32 v{aAO}, 4096, v{aAO}", f"v_add_u32 v{aAE}, 4096, v{aAE}", f"v_add_u32 v{aIDX}, 512, v{aIDX}", f"v_add_u32 v{aEI}, 512, v{aEI}",
                       "s_mov_b64 exec, s[62:63]", f"v_add_u32 v{aS1}, 4096, v{aS1}", "s_mov_b64 exec, s[64:65]", f"v_add_u32 v{aS2}, 4096, v{aS2}", "s_mov_b64 exec, -1"]
            mid0 = [f"ds_read_b64_tr_b16 {pr(S)}, v{aS1} offset:{u*1024}", f"ds_read_b64_tr_b16 {pr(S+2)}, v{aS2} offset:{u*1024}",
                    f"ds_read_b128 {q4(AO)}, v{aAO} offset:{(u+1)*1024}"]
            t0 = tile(0, mf_tile(1) + [SEGSUM], {}, mid0, [])
            ex1 = {}
            ex1[1] = [f"ds_read_b32 v{FV}, v{aEI} offset:{(u+1)*128}"] + [f"ds_read_b32 v{IX[k]}, v{aIDX} offset:{(u+2)*128+k*32}" for k in range(4)]
            if u == 0: ex1[1] += [f"ds_read_b32 v{EI}, v{aEI} offset:512"]
            ex1[12] = ["s_waitcnt lgkmcnt(0)", f"v_readfirstlane_b32 s66, v{FV}"]
            mid = ["s_cmp_eq_u32 s66, -1", f"s_waitcnt vmcnt({1 if u == 1 else 0})"]
            mid += [f"ds_read_b128 {q4(AP[m])}, v{aAP+m}" for m in range(4)]
            mid += [f"s_cbranch_scc0 K2_FW{u}", f"K2_FR{u}:"]
            mid += [f"ds_read_b128 {q4(AE)}, v{aAE} offset:{(u+1)*1024}"]
            if opt.get("gstamps"): mid += ["s_memrealtime s[96:97]", "s_add_u32 m0, s55, 16"]
            t1 = tile(1, [], ex1, mid, [])
            mf = mf_tile(0)
            post = ["s_add_u32 s66, s55, 2", "s_cmp_ge_u32 s66, s53", "s_waitcnt lgkmcnt(0)"]
            if opt.get("gstamps"): post += ["v_writelane_b32 v0, s96, m0"]
            post += [f"s_cbranch_scc1 K2_ND{u}"]
            if u == 2: post += [f"ds_write_b32 v{aEI}, v{MG} offset:512"]
            for k in range(4):
                post += [f"s_add_u32 m0, s57, {k*1024}", mf[k], f"buffer_load_dwordx4 {pr(IX[k])}, s[32:35], s58 idxen offen{PFL[0]} lds"]
            post += [f"K2_NR{u}:"]
            if u == 0: post += e_dma()
            post += upd
            nst = 1 + (6 if u == 0 else 0) + len(upd) + 3 + (1 if u == 3 else 0) + 1
            if nst - 1 < 12: post += [f"s_nop {12 - (nst - 1) - 1}"]
            a("\n".join(t0 + t1 + post))
        else:
            ex0 = {}
            ex0[1] = [f"ds_read_b32 v{FV}, v{aEI} offset:{(u+1)*128}"] + [f"ds_read_b32 v{IX[k]}, v{aIDX} offset:{(u+2)*128+k*32}" for k in range(4)]
            if u == 0: ex0[1] += [f"ds_read_b32 v{EI}, v{166 if NOROT else aEI} offset:{EOF_}"]
            ex0[12] = ["s_waitcnt lgkmcnt(0)", f"v_readfirstlane_b32 s66, v{FV}"]
            mid = ["s_cmp_eq_u32 s66, -1"]
            mid += [f"ds_read_b128 {q4(AO)}, v{aAO} offset:{(u+1)*1024}"]
            mid += [f"ds_read_b64_tr_b16 {pr(S)}, v{aS1} offset:{u*1024}", f"ds_read_b64_tr_b16 {pr(S+2)}, v{aS2} offset:{u*1024}"]
            mid += [f"s_cbranch_scc0 K2_FW{u}", f"K2_FR{u}:"]
            mid += [f"ds_read_b128 {q4(AE)}, v{aAE} offset:{(u+1)*1024}"]
            t0 = tile(0, mf_tile(1) + [SEGSUM], ex0, mid, [], f"A{u}", mpos=MP0)
            pre = [f"s_waitcnt vmcnt({1 if (u == 1 and not D3) else 0})"] + p_reads()
            blk = ["s_cmp_ge_i32 s55, s93", "s_waitcnt lgkmcnt(0)"] + p_shift(0) + [f"s_cbranch_scc1 K2_ND{u}"]
            if u == (1 if D3 else 2): blk += [f"ds_write_b32 v{166 if NOROT else aEI}, v{MG} offset:{EOF_}"]
            blk += p_dma() + [f"K2_ND{u}:"]
            if u == 0:
                ed = e_dma()
                if opt.get("e0nt", 0) > 1:
                    k = [i for i, l in enumerate(ed) if l.startswith("buffer_load")][0]
                    ed = ed[:k] + [f"s_cmp_ge_u32 s55, {opt['e0nt']}", "s_cbranch_scc1 K2_EN1", ed[k].replace(" lds", " nt lds"), "s_branch K2_EN2", "K2_EN1:", ed[k], "K2_EN2:"] + ed[k+1:]
                blk += ed
            ex1 = {WPOS: blk}
            if TR8[0] == 2:
                rd = pre[1:]; pre = pre[:1] + rd[:8]
                ex1[0] = rd[8:12]; ex1[1] = rd[12:]
            mid1 = p_shift(1)
            if u == 3 and NOROT: mid1 += ["v_add_u32 v166, 512, v166"]
            if u == 3:
                mid1 += [f"v_add_u32 v{aAO}, 4096, v{aAO}", f"v_add_u32 v{aAE}, 4096, v{aAE}", f"v_add_u32 v{aIDX}, 512, v{aIDX}", f"v_add_u32 v{aEI}, 512, v{aEI}",
                        "s_mov_b64 exec, s[62:63]", f"v_add_u32 v{aS1}, 4096, v{aS1}", "s_mov_b64 exec, s[64:65]", f"v_add_u32 v{aS2}, 4096, v{aS2}", "s_mov_b64 exec, -1"]
            exr1 = []
            if opt.get("gstamps"):
                mid1 = mid1 + ["s_memrealtime s[96:97]", "s_add_u32 m0, s55, 16"]
                exr1 += ["s_waitcnt lgkmcnt(0)", "v_writelane_b32 v0, s96, m0", "s_mov_b32 m0, s57"]
            t1 = tile(1, mf_tile(0), ex1, mid1, exr1, f"B{u}", mpos=(WPOS + 2, WPOS + 5), pre=pre)
            a("\n".join(t0 + t1))
        a("s_add_u32 s55, s55, 1")
        a("s_cmp_ge_u32 s55, s90")
        a(f"s_cbranch_scc1 K2_TH{u}")
        if u == 3: a("s_branch K2_U0")
    loop_end = len(a.lines)
    for qtl in QTAILS: a("\n".join(qtl))
    for u in range(4):
        a.label(f"K2_TH{u}")
        a(f"s_mov_b32 s92, {(u+1)&3}")
        if u < 3: a("s_branch K2_TH")
    a.label("K2_TH")
    a("s_cmp_ge_u32 s55, s53")
    a("s_cbranch_scc1 K2_EXIT")
    a("s_add_u32 s91, s91, 1")
    a("s_cmp_eq_u32 s91, 1")
    a("s_cbranch_scc0 K2_TH_2")
    if opt.get("prio", 1): a("s_setprio 2")
    a(f"s_sub_u32 s90, s94, {T2}")
    a("s_branch K2_TH_R")
    a.label("K2_TH_2")
    a("s_cmp_eq_u32 s91, 2")
    a("s_cbranch_scc0 K2_TH_3")
    if opt.get("prio", 1): a("s_setprio 1")
    a(f"s_sub_u32 s90, s94, {T1_}")
    a("s_branch K2_TH_R")
    a.label("K2_TH_3")
    if opt.get("prio", 1): a("s_setprio 0")
    a("s_mov_b32 s90, s53")
    a.label("K2_TH_R")
    a("s_max_i32 s90, s90, 0")
    a("s_cmp_eq_u32 s92, 1")
    a("s_cbranch_scc1 K2_U1")
    a("s_cmp_lg_u32 s60, 0")
    a("s_cbranch_scc1 K2_TH_J")
    a("s_mov_b32 s60, 1")
    a("\n".join(w2_pre(L16)))
    a.label("K2_TH_J")
    a("s_cmp_eq_u32 s92, 2")
    a("s_cbranch_scc1 K2_U2")
    a("s_cmp_eq_u32 s92, 3")
    a("s_cbranch_scc1 K2_U3")
    a("s_branch K2_U0")
    if LATE:
        for u in range(4):
            a.label(f"K2_ND{u}")
            a("\n".join(mf_tile(0)))
            a(f"s_branch K2_NR{u}")
    for u in range(4):
        a.label(f"K2_FW{u}")
        a("s_add_u32 s66, s55, 1")
        a("s_cmp_ge_u32 s66, s53")
        a(f"s_cbranch_scc1 K2_FR{u}")
        a(f"ds_read_b32 v{FV}, v{aEI} offset:{(u+1)*128}")
        a("s_waitcnt lgkmcnt(0)")
        a(f"v_readfirstlane_b32 s66, v{FV}")
        a("s_nop 0")
        a("s_cmp_eq_u32 s66, -1")
        a(f"s_cbranch_scc1 K2_FR{u}")
        a("s_sleep 1")
        a(f"s_branch K2_FW{u}")
    a.label("K2_EXIT")
    a(SEGSUM)
    stp(7)
    stc(13)
    if opt.get("stamps"): a("v_writelane_b32 v0, s53, 14")
    a(f"v_lshrrev_b32 v1, 4, v{L16}")
    a("s_cmp_lg_u32 s60, 0")
    a("s_cbranch_scc1 K2_X1")
    a("\n".join(w2_pre(L16)))
    a.label("K2_X1")
    WL = 116
    def fin_loads(l16):
        srd(a, 48, "s18", "s19", 256)
        for sidx in range(NW2, 8):
            a(f"buffer_load_dwordx4 {q4(WL+4*(sidx-NW2))}, v{l16}, s[40:43], s74 offen offset:{(sidx & 3)*1024}")
        a("v_lshrrev_b32 v8, 4, v1")
        a("v_lshlrev_b32 v9, 3, v8")
        a("s_lshl_b32 s68, s24, 5")
        a("buffer_load_dwordx2 v[10:11], v9, s[48:51], s68 offen")
    fin_loads(L16)
    a("v_subrev_u32 v2, s71, v1")
    a("v_and_b32 v2, 15, v2")
    a(f"v_mul_u32_u24 v2, {HSTR}, v2")
    a("v_and_b32 v3, 16, v1")
    a("v_lshl_add_u32 v2, v3, 2, v2")
    a("v_lshrrev_b32 v3, 5, v1")
    a("v_lshl_add_u32 v3, v3, 3, s57")
    a("v_add_u32 v2, v2, v3")
    a(f"s_waitcnt vmcnt({9 - NW2})")
    for k in range(8):
        a(f"v_cvt_pk_bf16_f32 v{EX+k}, v{ACC+2*k}, v{ACC+2*k+1}")
        if k & 1: a(f"ds_write_b64 v2, {pr(EX+k-1)} offset:{16*(k>>1)}")
    for k in range(0, 8, 2):
        a(f"v_pk_add_f32 {pr(ACC+2*k)}, {pr(ACC+2*k)}, {pr(ACC+2*k+2)}")
    a(f"v_pk_add_f32 {pr(ACC)}, {pr(ACC)}, {pr(ACC+4)}")
    a(f"v_pk_add_f32 {pr(ACC+8)}, {pr(ACC+8)}, {pr(ACC+12)}")
    a(f"v_add_f32 v{CHK}, v{CHK}, v{CHK+1}")
    a(f"v_pk_add_f32 {pr(ACC)}, {pr(ACC)}, {pr(ACC+8)}")
    a(f"v_mul_f32 v{CHK}, 0x41800000, v{CHK}")
    a(f"v_add_f32 v{CHK+1}, v{ACC}, v{ACC+1}")
    a(f"v_mul_f32 v{CHK+1}, 0, v{CHK+1}")
    a("v_mov_b32 v4, 0x207")
    a(f"v_add_f32 v{CHK}, v{CHK}, v{CHK+1}")
    a(f"v_mov_b32 v5, {FLAG}")
    a("v_mov_b32 v7, 1")
    a(f"v_cmpx_class_f32 vcc, v{CHK}, v4")
    a("ds_write_b32 v5, v7")
    a("s_mov_b64 exec, -1")
    a.label("K2_FIN")
    a("s_cmp_ge_u32 s24, 8")
    a("s_cbranch_scc1 K2_HEND")
    a("s_mov_b64 exec, 1")
    a("ds_add_u32 v5, v7 offset:24")
    a("s_mov_b64 exec, -1")
    a("v_and_b32 v12, 15, v1")
    a(f"v_mul_u32_u24 v2, {HSTR}, v12")
    a("v_lshl_add_u32 v2, v8, 4, v2")
    a(f"s_mov_b32 s78, {DEG}")
    a("v_lshl_add_u32 v4, v12, 2, s78")
    for mt in range(3): a(f"ds_read_b32 v{112+mt}, v4 offset:{mt*48}")
    a("v_lshl_add_u32 v13, v12, 16, v9")
    a(f"v_mov_b32 v3, {KILL:#x}")
    a("v_cmp_gt_u32 vcc, 4, v12")
    a("s_lshl_b32 s69, s2, 8")
    a("s_add_u32 s69, s69, s68")
    a("v_cndmask_b32 v14, v13, v3, vcc")
    a(f"s_add_u32 s72, s69, {12 << 16}")
    a(f"s_add_u32 s75, s69, {24 << 16}")
    a(f"s_mov_b32 s76, {NEGLN2:#x}")
    RS = 80
    a.label("K2_E1")
    a("ds_read_b32 v6, v5 offset:24")
    a("s_waitcnt lgkmcnt(0)")
    a("v_readfirstlane_b32 s66, v6")
    a("s_nop 0")
    a("s_cmp_ge_u32 s66, 8")
    a("s_cbranch_scc1 K2_E2")
    a("s_sleep 2")
    a("s_branch K2_E1")
    a.label("K2_E2")
    HB = 16
    OD = 120
    def wfrag(sidx): return WREG[sidx] if sidx < NW2 else WL + 4*(sidx - NW2)
    def hoff(mt, sidx): return (4*mt + (sidx >> 1))*4096 + (sidx & 1)*64
    order = [(sidx, mt) for sidx in range(8) for mt in range(2)]
    for n, (sidx, mt) in enumerate(order[:14]):
        a(f"ds_read_b128 {q4(HB+4*n)}, v2 offset:{hoff(mt, sidx)}")
    for n, (sidx, mt) in enumerate(order):
        issued = min(16, 14 + n)
        wv = f" vmcnt({8 - sidx})" if (sidx >= NW2 and mt == 0) else ""
        a(f"s_waitcnt{wv} lgkmcnt({issued - n - 1})")
        a(f"v_mfma_f32_16x16x32_bf16 {q4(OD+4*mt)}, {q4(wfrag(sidx))}, {q4(HB+4*n)}, {'0' if sidx == 0 else q4(OD+4*mt)}")
        if n < 2: a(f"ds_read_b128 {q4(HB+4*(14+n))}, v2 offset:{hoff(order[14+n][1], order[14+n][0])}")
    a("s_waitcnt vmcnt(0)")
    a("v_lshlrev_b32 v104, 16, v10")
    a("v_and_b32 v105, 0xffff0000, v10")
    a("v_lshlrev_b32 v106, 16, v11")
    a("v_and_b32 v107, 0xffff0000, v11")
    for mt in range(3): a(f"v_cvt_f32_u32 v{112+mt}, v{112+mt}")
    for mt in range(3):
        for i in range(4):
            a(f"v_mul_f32 v{RS+4*mt+i}, v{112+mt}, v{104+i}")
    def fin_tile(mt):
        for i in range(4):
            a(f"v_fma_f32 v{RS+4*mt+i}, v{OD+4*mt+i}, s76, v{RS+4*mt+i}")
        a(f"v_cvt_pk_bf16_f32 v{132+2*mt}, v{RS+4*mt}, v{RS+4*mt+1}")
        a(f"v_cvt_pk_bf16_f32 v{133+2*mt}, v{RS+4*mt+2}, v{RS+4*mt+3}")
        a(f"buffer_store_dwordx2 {pr(132+2*mt)}, v{13 if mt == 0 else 14}, s[44:47], s{(69,72,75)[mt]} offen{('', ' sc1', ' nt')[opt.get('osc', 1)]}")
    def merge(mt):
        for i in range(4):
            a(f"v_add_f32_dpp v{OD+4*mt+i}, v{OD+4*mt+4+i}, v{OD+4*mt+i} row_shr:12 row_mask:0xf bank_mask:0xf bound_ctrl:0")
    merge(0)
    fin_tile(0)
    stp(8)
    a("s_barrier")
    stp(9)
    for sidx in range(8):
        a(f"ds_read_b128 {q4(HB+4*sidx)}, v2 offset:{hoff(2, sidx)}")
    a("ds_read_b32 v6, v5")
    for sidx in range(8):
        a(f"s_waitcnt lgkmcnt({8 - sidx})")
        a(f"v_mfma_f32_16x16x32_bf16 {q4(OD+8)}, {q4(wfrag(sidx))}, {q4(HB+4*sidx)}, {'0' if sidx == 0 else q4(OD+8)}")
    a("s_waitcnt lgkmcnt(0)")
    a("v_readfirstlane_b32 s82, v6")
    a("s_nop 1")
    a("s_andn2_b32 s82, s82, s70")
    a("s_cmp_lg_u32 s82, 0")
    a("s_cbranch_scc1 K2_REDO")
    a("s_nop 0")
    merge(1)
    fin_tile(2)
    fin_tile(1)
    stp(10)
    if opt.get("stamps"): a("s_waitcnt vmcnt(0)")
    stp(11)
    a.label("K2_END2")
    stamp_out(a, opt, 22, 0xF80000, 24, 0, tmpv=2)
    if opt.get('gstamps'): stamp_out2(a, opt, 22, 0x1000000, 24, 0, tmpv=2)
    a.label("K2_END")
    a("s_endpgm")
    a.label("K2_HEND")
    a("s_waitcnt lgkmcnt(0)")
    stp(8)
    a("s_barrier")
    a("ds_read_b32 v6, v5")
    a("s_waitcnt lgkmcnt(0)")
    a("v_readfirstlane_b32 s82, v6")
    a("s_nop 0")
    a("s_andn2_b32 s82, s82, s70")
    a("s_cmp_lg_u32 s82, 0")
    a("s_cbranch_scc1 K2_REDO")
    a("s_branch K2_END2")
    a.label("K2_CX")
    a("s_mov_b32 s81, 2")
    count([5, 6, 7])
    decode([5, 6, 7])
    a("v_cmpx_eq_u32 vcc, -2, v23")
    a("ds_write_b32 v111, v114")
    a("s_mov_b64 exec, -1")
    a("s_branch K2_C1")
    a.label("K2_SY")
    for k in (5, 6, 7): a(f"ds_bpermute_b32 v{TP+k}, v{RA+k}, v31")
    a("s_waitcnt lgkmcnt(0)")
    stat([5, 6, 7])
    a("s_branch K2_S0")
    a.label("K2_SX")
    for k in (5, 6, 7): a(f"ds_bpermute_b32 v{SB+k}, v{RA+k}, v108")
    a("s_waitcnt lgkmcnt(0)")
    late([5, 6, 7])
    a("s_branch K2_S1")
    a.label("K2_REDO")
    a("s_setprio 0")
    a("s_mov_b32 s70, -1")
    a("s_lshl_b32 s66, s24, 6")
    a("v_add_u32 v0, s66, v1")
    a("s_waitcnt vmcnt(0) lgkmcnt(0)")
    a("s_barrier")
    a("s_branch K2_TOP")
    a.label("K2_BAD")
    arrive(8)
    a("v_mov_b32 v109, -1")
    a("ds_write_b32 v111, v109 offset:16")
    arrive(40)
    a.label("K2_SLOW")
    a(f"v_lshrrev_b32 v1, 4, v{L16}")
    a("s_setprio 0")
    a("s_mov_b32 s70, -1")
    a("s_waitcnt vmcnt(0) lgkmcnt(0)")
    a("s_barrier")
    a("s_lshl_b32 s66, s24, 10")
    a(f"s_add_u32 s66, s66, {OH}")
    a("v_lshl_add_u32 v2, v1, 4, s66")
    for i in range(4): a(f"v_mov_b32 v{4+i}, 0")
    for i in range(4): a(f"ds_write_b128 v2, v[4:7] offset:{i*12288}")
    a("v_lshlrev_b32 v12, 2, v1")
    a(f"v_add_u32 v3, {DEG}, v12")
    a("ds_write_b32 v3, v4")
    srd(a, 84, "s8", "s9", E * 4)
    srd(a, 88, "s10", "s11", E * 4)
    a("v_and_b32 v8, 31, v1")
    a("v_lshlrev_b32 v8, 4, v8")
    a("v_lshrrev_b32 v9, 5, v1")
    a("v_lshl_add_u32 v8, v9, 10, v8")
    a("s_lshl_b32 s72, s25, 11")
    a(f"s_add_u32 s66, s72, {WCF_OFF - CELL_OFF}")
    a("buffer_load_dwordx4 v[16:19], v8, s[40:43], s66 offen")
    a("buffer_load_dwordx4 v[20:23], v8, s[40:43], s66 offen offset:512")
    a(f"s_add_u32 s72, s72, {EIM + 8192}")
    a("v_add_u32 v8, s72, v8")
    a("v_lshlrev_b32 v7, 4, v1")
    a("\n".join(w2_pre(7)))
    srd_ws(a, 92, 22, P_OFF, N * 512)
    a("v_lshlrev_b32 v10, 1, v1")
    a("v_add_u32 v10, s58, v10")
    a("v_lshlrev_b32 v11, 1, v10")
    a(f"v_add_u32 v11, {OH}, v11")
    a("v_mov_b32 v13, 1")
    a("s_waitcnt vmcnt(0)")
    for k in range(8):
        a(f"v_lshlrev_b32 v{24+2*k}, 16, v{16+k}")
        a(f"v_and_b32 v{25+2*k}, 0xffff0000, v{16+k}")
    a("s_waitcnt lgkmcnt(0)")
    a("s_barrier")
    a("s_mov_b32 s66, s26")
    a.label("K2_SL_BLK")
    a("s_lshl_b32 s67, s66, 8")
    a("buffer_load_dword v40, v12, s[88:91], s67 offen")
    a("buffer_load_dword v41, v12, s[84:87], s67 offen")
    a("s_waitcnt vmcnt(0)")
    a("v_and_b32 v42, 255, v40")
    a("v_cmp_eq_u32 vcc, s2, v42")
    a("s_nop 1")
    a("s_mov_b64 s[68:69], vcc")
    a.label("K2_SL_E")
    a("s_cmp_eq_u64 s[68:69], 0")
    a("s_cbranch_scc1 K2_SL_NB")
    a("s_ff1_i32_b64 s72, s[68:69]")
    a("s_bitset0_b64 s[68:69], s72")
    a("v_readlane_b32 s52, v40, s72")
    a("v_readlane_b32 s53, v41, s72")
    a("s_lshl_b32 s75, s66, 6")
    a("s_add_u32 s75, s75, s72")
    a("s_lshl_b32 s75, s75, 5")
    a("s_load_dwordx8 s[76:83], s[6:7], s75")
    a("s_lshl_b32 s53, s53, 9")
    a("s_lshr_b32 s52, s52, 8")
    a("s_cmp_ge_u32 s52, 16")
    a("s_cselect_b32 s75, 16384, 0")
    a("s_cmp_ge_u32 s52, 28")
    a("s_cselect_b32 s75, 32768, s75")
    a("s_bfe_u32 s55, s52, 0x10003")
    a("s_lshl_b32 s55, s55, 9")
    a("s_add_u32 s75, s75, s55")
    a("s_and_b32 s55, s52, 7")
    a("s_lshl_b32 s55, s55, 1")
    a("s_add_u32 s75, s75, s55")
    a("v_add_u32 v45, s75, v8")
    a("buffer_load_ushort v43, v10, s[92:95], s53 offen")
    a("ds_read_u16 v44, v45")
    a("s_waitcnt vmcnt(0) lgkmcnt(0)")
    a("v_lshlrev_b32 v43, 16, v43")
    a("v_lshlrev_b32 v44, 16, v44")
    import struct
    PC = struct.unpack("<I", struct.pack("<f", 1.0 / (1 - opt.get("pcomp", 0) * 1e-4)))[0]
    if opt.get("pcomp", 0): a(f"v_mul_f32 v43, {PC:#x}, v43")
    a("v_add_f32 v43, v43, v44")
    for k in range(8):
        a(f"s_lshl_b32 s53, s{76+k}, 16")
        a(f"v_fmac_f32 v43, s53, v{24+2*k}")
        a(f"s_and_b32 s53, s{76+k}, 0xffff0000")
        a(f"v_fmac_f32 v43, s53, v{25+2*k}")
    a("v_exp_f32 v44, v43")
    a("s_lshl_b32 s53, s52, 10")
    a("v_add_f32 v44, 1.0, v44")
    a("v_rcp_f32 v44, v44")
    a("v_add_u32 v45, s53, v11")
    a("v_mul_f32 v43, v43, v44")
    a("ds_add_f32 v45, v43")
    a("s_cmp_lg_u32 s25, 0")
    a("s_cbranch_scc1 K2_SL_E")
    a("s_lshl_b32 s53, s52, 2")
    a(f"s_add_u32 s53, s53, {DEG}")
    a("v_mov_b32 v45, s53")
    a("s_mov_b64 exec, 1")
    a("ds_add_u32 v45, v13")
    a("s_mov_b64 exec, -1")
    a("s_branch K2_SL_E")
    a.label("K2_SL_NB")
    a("s_add_u32 s66, s66, 3")
    a(f"s_cmp_lt_u32 s66, {E // 64}")
    a("s_cbranch_scc1 K2_SL_BLK")
    a("s_waitcnt lgkmcnt(0)")
    a("s_barrier")
    a("v_and_b32 v2, 31, v1")
    a("v_lshrrev_b32 v3, 5, v1")
    a("s_mov_b32 s66, 0")
    a.label("K2_SL_CV")
    a("v_add_u32 v4, s66, v3")
    a("v_add_u32 v5, s71, v4")
    a("s_cmp_lt_u32 s66, 4")
    a("s_cselect_b32 s67, s26, 0")
    a("s_cmp_lg_u32 s67, 0")
    a("s_cbranch_scc0 K2_SL_NZ")
    a("v_mov_b32 v5, 47")
    a.label("K2_SL_NZ")
    a("v_lshlrev_b32 v5, 10, v5")
    a("v_lshl_add_u32 v5, v2, 3, v5")
    a("s_lshl_b32 s67, s58, 1")
    a(f"s_add_u32 s67, s67, {OH}")
    a("v_add_u32 v5, s67, v5")
    a("ds_read_b64 v[6:7], v5")
    a(f"v_mul_u32_u24 v4, {HSTR}, v4")
    a("v_lshl_add_u32 v4, v2, 2, v4")
    a("v_add_u32 v4, s57, v4")
    a("s_waitcnt lgkmcnt(0)")
    a("v_cvt_pk_bf16_f32 v6, v6, v7")
    a("ds_write_b32 v4, v6")
    a("s_add_u32 s66, s66, 2")
    a("s_cmp_lt_u32 s66, 16")
    a("s_cbranch_scc1 K2_SL_CV")
    a("v_lshlrev_b32 v7, 4, v1")
    fin_loads(7)
    a(f"v_mov_b32 v5, {FLAG}")
    a("v_mov_b32 v7, 1")
    a("s_branch K2_FIN")
    if opt.get("e64"):
        for i in range(loop_start, loop_end):
            l = a.lines[i]
            if l.startswith("v_exp_f32 ") or l.startswith("v_rcp_f32 "): a.lines[i] = l.replace("_f32 ", "_f32_e64 ", 1)
    a.loop = (loop_start, loop_end)
    return a, NV2, (102 if opt.get('stamps') else 96)
```

```python
from asmlib import *
from k1 import *

NW = 12
PSLOT = 0
EIM = 49152
OH = 98304
ZERO = 147456
CNT = ZERO
FLAG = ZERO + 1280
DEG = ZERO + 1536
SZERO = ZERO + 240
PZERO = ZERO + 2048 + 128
IDX = ZERO + 3328
EOFF = IDX + 6400
HSTR = 160
K2_LDS = 163840
assert EOFF + 6144 <= K2_LDS
GCAP = 48
KILL = 0x40000000
NEGLN2 = 0xBF317218
aAE = 1; aAP = 2; aAO = 7; aS1 = 8; aS2 = 9; aIDX = 10; aEI = 11; EI = 12; CHK = 14
D = [16, 32]; EX = 48; ACC = 64; BC = [80, 84]; BQ = [88, 92]; ID = [96, 100]
AE = 104; FV = 164; MG = 165; AO = 108; S = 112; AP = [116, 120, 124, 128]; HQ = 132; IX = [136, 138, 140, 142]
WP = 144
NV2 = 168

def pr(r): return v(r, 2)
def q4(r): return v(r, 4)
def x16(r): return v(r, 16)

C1 = 116
def mf_tile(Y):
    d = D[Y]
    return [f"v_mfma_f32_32x32x16_bf16 {x16(d)}, {q4(AE)}, {q4(BC[Y])}, {x16(C1 if Y else d)}",
            f"v_mfma_f32_32x32x16_bf16 {x16(d)}, {q4(AO)}, {q4(BQ[Y])}, {x16(d)}"]
TR8 = [0]
def p_reads():
    if TR8[0]: return [f"ds_read_b64_tr_b16 {pr((C1 if X else D[0])+2*j)}, v{aAP+X} offset:{j*128}" for X in range(2) for j in range(8)]
    return [f"ds_read_b64_tr_b16 {pr((C1 if X else D[0])+4*j)}, v{aAP+X} offset:{j*256}" for X in range(2) for j in range(4)]
def p_shift(X):
    if TR8[0]: return []
    b = C1 if X else D[0]
    return [f"v_lshlrev_b64 {pr(b+4*j+2)}, 16, {pr(b+4*j)}" for j in range(4)]
SEGSUM = f"v_mfma_f32_32x32x16_bf16 {x16(ACC)}, {q4(HQ)}, {q4(S)}, {x16(ACC)}"

OCT = [0]
QTAILS = []
def tile(X, mf, ex_exp, mid, ex_rcp, tag=None, mpos=(0, 3, 6, 9, 12), pre=()):
    d = D[X]; out = list(pre); mi = 0
    for i in range(16):
        if i in mpos and mi < len(mf):
            out.append(mf[mi]); mi += 1
        out.append(f"v_exp_f32 v{EX+i}, v{d+i}")
        out += ex_exp.get(i, [])
    out += mid
    NAB, NCD, DAB, DCD = d, d + 8, EX, EX + 8
    out.append(f"v_pk_add_f32 {pr(DAB)}, {pr(EX)}, 1.0 op_sel_hi:[1,0]")
    out.append(f"v_pk_add_f32 {pr(DCD)}, {pr(EX+8)}, 1.0 op_sel_hi:[1,0]")
    for k in range(1, 4):
        out.append(f"v_pk_fma_f32 {pr(NAB)}, {pr(NAB)}, {pr(EX+2*k)}, {pr(NAB)}")
        out.append(f"v_pk_fma_f32 {pr(NCD)}, {pr(NCD)}, {pr(EX+8+2*k)}, {pr(NCD)}")
        out.append(f"v_pk_fma_f32 {pr(NAB)}, {pr(d+2*k)}, {pr(DAB)}, {pr(NAB)}")
        out.append(f"v_pk_fma_f32 {pr(NCD)}, {pr(d+8+2*k)}, {pr(DCD)}, {pr(NCD)}")
        out.append(f"v_pk_fma_f32 {pr(DAB)}, {pr(DAB)}, {pr(EX+2*k)}, {pr(DAB)}")
        out.append(f"v_pk_fma_f32 {pr(DCD)}, {pr(DCD)}, {pr(EX+8+2*k)}, {pr(DCD)}")
    qt = [f"v_pk_fma_f32 {pr(CHK)}, {pr(DAB)}, {pr(DCD)}, {pr(CHK)}"]
    for r in (DAB, DAB + 1, DCD, DCD + 1):
        qt.append(f"v_rcp_f32 v{r}, v{r}")
    qt.append(f"v_pk_mul_f32 {pr(NAB)}, {pr(NAB)}, {pr(DAB)}")
    qt.append(f"v_pk_mul_f32 {pr(NCD)}, {pr(NCD)}, {pr(DCD)}")
    qt.append(f"v_cvt_pk_bf16_f32 v{HQ+2*X}, v{NAB}, v{NAB+1}")
    qt.append(f"v_cvt_pk_bf16_f32 v{HQ+2*X+1}, v{NCD}, v{NCD+1}")
    out += ex_rcp
    if not OCT[0] or tag is None:
        return out + qt
    DM = EX + 2
    if tag[0] != "P": out += ["s_cmp_ge_u32 s55, 9", f"s_cbranch_scc1 K2_QT{tag}"]
    out += [f"v_pk_mul_f32 {pr(DM)}, {pr(DAB)}, {pr(DCD)}",
            f"v_pk_mul_f32 {pr(NAB)}, {pr(NAB)}, {pr(DCD)}",
            f"v_rcp_f32 v{DM+2}, v{DM}",
            f"v_rcp_f32 v{DM+3}, v{DM+1}",
            f"v_pk_fma_f32 {pr(NAB)}, {pr(NCD)}, {pr(DAB)}, {pr(NAB)}",
            f"v_pk_add_f32 {pr(CHK)}, {pr(CHK)}, {pr(DM)}",
            f"v_pk_mul_f32 {pr(NAB)}, {pr(NAB)}, {pr(DM+2)}",
            f"v_cvt_pk_bf16_f32 v{HQ+2*X}, v{NAB}, v{NAB+1}"]
    if tag[0] == "P": return out + [f"v_mov_b32 v{HQ+2*X+1}, 0"]
    out += [f"K2_QR{tag}:"]
    QTAILS.append([f"K2_QT{tag}:"] + qt + [f"s_branch K2_QR{tag}"])
    return out

PFL = [""]
def p_dma():
    return [f"buffer_load_dwordx4 {pr(IX[k])}, s[32:35], s{28+k} idxen offen offset:{k*1024}{PFL[0]} lds" for k in range(4)]

EFL = [""]
def e_dma():
    return ["s_cmp_lt_u32 s61, s53",
            f"s_cselect_b32 s86, {E}, 0",
            f"s_cselect_b32 m0, s59, {K2_LDS:#x}",
            "s_add_u32 s61, s61, 4",
            f"buffer_load_dwordx4 {pr(EI)}, s[84:87], 0 idxen offen{EFL[0]} lds",
            "s_mov_b32 m0, s57",
            "s_add_u32 s59, s59, 4096"]
NW2 = 7
WREG = [144, 148, 152, 156, 160, 96, 100]
def w2_pre(vaddr):
    return [f"buffer_load_dwordx4 {q4(WREG[sidx])}, v{vaddr}, s[40:43], s{73 + (sidx >> 2)} offen offset:{(sidx & 3)*1024}" for sidx in range(NW2)]

def gen_k2(opt=None):
    opt = opt or {}
    EFL[0] = " nt" if opt.get("e0nt", 0) else ""
    OCT[0] = opt.get("oct", 0)
    QTAILS.clear()
    TR8[0] = opt.get("tr8", 2)
    PFL[0] = {0: "", 1: " sc1", 2: " sc0 sc1", 3: " sc0"}[opt.get("pfl", 0)]
    a = Asm()
    def stp(i):
        if opt.get("stamps"):
            a("s_memrealtime s[96:97]"); a("s_waitcnt lgkmcnt(0)"); a(f"v_writelane_b32 v0, s96, {i}")
    def stc(i):
        if opt.get("stamps"):
            a("s_memtime s[96:97]"); a("s_waitcnt lgkmcnt(0)"); a(f"v_writelane_b32 v0, s96, {i}")
    a.label("mpnn_main_kernel")
    a("s_cmp_ge_u32 s2, 256")
    a("s_cbranch_scc1 K2_END")
    a("s_mov_b32 s70, 0")
    a.label("K2_TOP")
    a("s_load_dwordx2 s[22:23], s[0:1], 80")
    a("s_load_dwordx16 s[4:19], s[0:1], 0")
    a("s_load_dwordx2 s[20:21], s[0:1], 64")
    if opt.get("stamps"): a("s_memrealtime s[98:99]")
    a("v_lshrrev_b32 v72, 6, v0")
    a("v_and_b32 v1, 63, v0")
    a("v_readfirstlane_b32 s24, v72")
    a("v_lshlrev_b32 v24, 4, v0")
    L16 = 6
    a(f"v_lshlrev_b32 v{L16}, 4, v1")
    a("s_lshl_b32 s66, s2, 13")
    a(f"s_add_u32 s67, s66, {1 << 21}")
    a("s_and_b32 s25, s24, 3")
    a("s_lshr_b32 s26, s24, 2")
    a("s_cmp_ge_u32 s24, 8")
    a("s_cbranch_scc1 K2_HL")
    a("s_waitcnt lgkmcnt(0)")
    srd_ws(a, 40, 22, CELL_OFF, (W2F_OFF - CELL_OFF) + FRAG_BYTES)
    a("buffer_load_dwordx4 v[16:19], v24, s[40:43], s66 offen")
    a(f"buffer_load_dwordx4 v[20:23], v24, s[40:43], s67 offen{' nt' if opt.get('bnt', 1) else ''}")
    a("s_branch K2_CM")
    a.label("K2_HL")
    if opt.get("hp", 0): a("s_setprio 3")
    a("v_lshrrev_b32 v77, 4, v1")
    a("s_lshl_b32 s68, s25, 2")
    a("v_add_u32 v77, s68, v77")
    a("v_xor_b32 v27, v77, v1")
    a("v_and_b32 v27, 15, v27")
    a("v_lshlrev_b32 v27, 4, v27")
    a("v_lshl_add_u32 v26, v77, 16, v27")
    for win in (1, 2):
        a(f"v_subrev_u32 v78, {12*win}, v77")
        a("v_and_b32 v78, 15, v78")
        a(f"v_add_u32 v78, {12*win}, v78")
        a(f"v_lshl_add_u32 v{27+win}, v78, 16, v27")
    a("s_lshl_b32 s68, s2, 8")
    a("s_lshl_b32 s69, s25, 10")
    a(f"s_add_u32 m0, s69, {EIM + 4096}")
    a("s_waitcnt lgkmcnt(0)")
    srd(a, 36, "s4", "s5", N * 256)
    a("buffer_load_dwordx4 v26, s[36:39], s68 offen lds")
    a(f"s_add_u32 m0, s69, {EIM + 4096 + 16384}")
    srd_ws(a, 40, 22, CELL_OFF, (W2F_OFF - CELL_OFF) + FRAG_BYTES)
    a("buffer_load_dwordx4 v28, s[36:39], s68 offen lds")
    a(f"s_add_u32 m0, s69, {EIM + 4096 + 32768}")
    a("s_lshr_b32 s66, s2, 3")
    a("buffer_load_dwordx4 v29, s[36:39], s68 offen lds")
    a(f"s_mul_i32 s66, s66, {34*128}")
    a(f"s_mul_i32 s67, s25, {9*128}")
    a("s_add_u32 s66, s66, s67")
    a(f"s_add_u32 s66, s66, {W2F_OFF - CELL_OFF}")
    a("v_min_u32 v30, 8, v1")
    a("v_lshlrev_b32 v30, 7, v30")
    a("buffer_load_dword v134, v30, s[40:43], s66 offen")
    a.label("K2_CM")
    a("s_mul_i32 s71, s26, 12")
    a("s_lshl_b32 s56, s26, 14")
    a(f"s_add_u32 s56, s56, {EIM}")
    a("s_lshl_b32 s69, s25, 10")
    a("s_add_u32 s59, s56, s69")
    a("s_lshl_b32 s66, s24, 13")
    a(f"s_add_u32 s73, s66, {W2F_OFF - CELL_OFF}")
    a("s_cmp_lt_u32 s24, 8")
    a(f"s_cselect_b32 s73, s73, {KILL:#x}")
    a("s_add_u32 s74, s73, 4096")
    a("s_lshl_b32 s72, s25, 11")
    a(f"s_add_u32 s72, s72, {WCF_OFF - CELL_OFF}")
    a(f"v_add_u32 v156, {OH}, v24")
    for i in range(4): a(f"v_mov_b32 v{144+i}, 0")
    a(f"v_mov_b32 v31, {N + opt.get('doob', 1)}")
    a(f"v_mov_b32 v152, {E}")
    a(f"v_cmp_gt_u32 vcc, {EOFF - ZERO}, v24")
    a("v_mov_b32 v153, v152")
    a("v_mov_b32 v154, v152")
    a("v_cndmask_b32 v148, v152, v31, vcc")
    a("v_mov_b32 v155, v152")
    for i in range(1, 4): a(f"v_mov_b32 v{148+i}, v148")
    a(f"v_cmpx_le_u32 vcc, {IDX - ZERO}, v24")
    a(f"ds_write_b128 v156, v[148:151] offset:{4*12288}")
    a("s_mov_b64 exec, -1")
    a("s_cmp_lg_u32 s24, 0")
    a("s_cbranch_scc1 K2_I0")
    for i in range(3): a(f"ds_write_b128 v156, v[144:147] offset:{4*12288 + i*1024}")
    a("s_mov_b64 exec, 0xffff")
    a(f"ds_write_b128 v156, v[144:147] offset:{4*12288 + 3072}")
    a("s_mov_b64 exec, -1")
    a.label("K2_I0")
    for i in range(4): a(f"ds_write_b128 v156, v[144:147] offset:{i*12288}")
    a("s_cmp_lt_u32 s24, 4")
    a("s_cbranch_scc0 K2_I1")
    a(f"ds_write_b128 v156, v[152:155] offset:{5*12288}")
    a.label("K2_I1")
    a("v_lshrrev_b32 v72, 2, v0")
    if opt.get("stamps"):
        a("v_mov_b32 v0, 0"); a("v_writelane_b32 v0, s98, 0")
        a("s_getreg_b32 s96, hwreg(HW_REG_XCC_ID)"); a("v_writelane_b32 v0, s96, 15")
    a(f"v_mov_b32 v111, {FLAG}")
    a("v_mov_b32 v114, 1")
    a("s_lshl_b32 s57, s24, 12")
    a("s_lshl_b32 s58, s25, 7")
    if opt.get("hs", 0):
        a("s_cmp_ge_u32 s24, 8")
        a("s_cbranch_scc1 K2_HQ")
    a.label("K2_SET")
    a("s_mov_b32 s84, s6")
    a("s_and_b32 s85, s7, 0xffff")
    a(f"s_or_b32 s85, s85, {32 << 16:#x}")
    a("s_mov_b32 s87, 0x00020000")
    a(f"s_add_u32 s32, s22, {P_OFF - 3072}")
    a("s_addc_u32 s33, s23, 0")
    a("s_and_b32 s33, s33, 0xffff")
    a(f"s_or_b32 s33, s33, {512 << 16:#x}")
    a(f"s_mov_b32 s34, {N+1}")
    a("s_mov_b32 s35, 0x00020000")
    srd(a, 44, "s20", "s21", N * 256)
    H_, I_, T0, T1 = 77, 78, 105, 106
    a(f"v_lshrrev_b32 v{H_}, 5, v1")
    a(f"v_and_b32 v{I_}, 31, v1")
    a(f"v_bfe_u32 v{T0}, v1, 3, 2")
    a(f"v_bfe_u32 v{T1}, v1, 1, 1")
    a(f"v_lshl_or_b32 v{T0}, v{T0}, 1, v{T1}")
    a(f"v_and_b32 v{T1}, 1, v1")
    a(f"v_lshl_or_b32 v{T0}, v{T1}, 3, v{T0}")
    a(f"v_and_b32 v{T1}, 4, v1")
    a(f"v_lshl_or_b32 v{T0}, v{T1}, 2, v{T0}")
    a("s_mov_b32 m0, s57")
    for k in range(4): a(f"s_add_u32 s{28+k}, s58, {(3-k)*1024}")
    a(f"v_and_b32 v{T1}, 3, v1")
    a(f"v_lshl_add_u32 v{aAP}, v{T1}, 3, s57")
    a(f"v_and_b32 v{T1}, 16, v1")
    a(f"v_lshl_add_u32 v{aAP}, v{T1}, 1, v{aAP}")
    a(f"v_lshl_add_u32 v{aAP}, v{H_}, 11, v{aAP}")
    if TR8[0]:
        a(f"v_and_b32 v{T1}, 8, v1")
        a(f"v_mul_u32_u24 v{T1}, {(1024 + 64) // 8}, v{T1}")
        a(f"v_add_u32 v{aAP}, v{aAP}, v{T1}")
    else:
        a(f"v_and_b32 v{T1}, 8, v1")
        a(f"v_mul_u32_u24 v{T1}, {(1024 + 64) // 8}, v{T1}")
        a(f"v_add_u32 v{aAP}, v{aAP}, v{T1}")
        a(f"v_not_b32 v{T1}, v1")
        a(f"v_and_b32 v{T1}, 4, v{T1}")
        a(f"v_lshl_add_u32 v{aAP}, v{T1}, 5, v{aAP}")
    a(f"v_xor_b32 v{aAP+1}, 64, v{aAP}")
    if TR8[0]:
        a("s_mov_b32 exec_lo, 0x0f0f0f0f")
        a("s_mov_b32 exec_hi, 0x0f0f0f0f")
        a(f"v_mov_b32 v{aAP}, {PZERO}")
        a(f"v_mov_b32 v{aAP+1}, {PZERO}")
        a("s_mov_b64 exec, -1")
    a(f"v_bfe_u32 v{T1}, v{T0}, 3, 1")
    a(f"v_xor_b32 v{T1}, v{T1}, v{H_}")
    a(f"v_lshl_add_u32 v{T1}, v{T1}, 4, s56")
    a(f"v_lshl_add_u32 v110, v{T0}, 5, v{T1}")
    a(f"s_add_u32 s52, s56, {OH - EIM}")
    a(f"v_lshl_add_u32 v{T1}, v{H_}, 4, s52")
    a(f"v_lshl_add_u32 v{aAO}, v{T0}, 5, v{T1}")
    a("s_lshl_b32 s66, s26, 11")
    a(f"s_add_u32 s67, s66, {EOFF}")
    a(f"s_add_u32 s66, s66, {IDX}")
    a(f"v_and_b32 v{T1}, 62, v1")
    a(f"v_lshl_add_u32 v{aEI}, v{T1}, 1, s67")
    a(f"v_lshrrev_b32 v{T1}, 3, v1")
    a(f"v_lshl_add_u32 v{aIDX}, v{T1}, 2, s66")
    a(f"v_add_u32 v4, s58, v{aEI}")
    SOFF = 104
    a(f"v_and_b32 v{T1}, 8, v1")
    a(f"v_lshl_add_u32 v{SOFF}, v{T1}, 4, s52")
    a(f"v_lshl_add_u32 v{SOFF}, v{H_}, 9, v{SOFF}")
    a(f"v_and_b32 v{T1}, 4, v1")
    a(f"v_lshl_add_u32 v{SOFF}, v{T1}, 6, v{SOFF}")
    a(f"v_and_b32 v{T1}, 3, v1")
    a(f"v_lshl_add_u32 v{SOFF}, v{T1}, 3, v{SOFF}")
    a("s_mov_b32 s62, 0xffff\ns_mov_b32 s63, 0xffff\ns_mov_b32 s64, 0xffff0000\ns_mov_b32 s65, 0xffff0000")
    a(f"v_mov_b32 v{T0}, {SZERO}")
    a(f"v_cndmask_b32 v{aS1}, v{T0}, v{SOFF}, s[62:63]")
    a(f"v_cndmask_b32 v{aS2}, v{T0}, v{SOFF}, s[64:65]")
    a(f"v_lshrrev_b32 v{T1}, 4, v1")
    a(f"v_xor_b32 v{T1}, v{T1}, v1")
    a(f"v_mov_b32 v{EI}, -1")
    a(f"v_and_b32 v{EI+1}, 1, v{T1}")
    a(f"v_lshlrev_b32 v{EI+1}, 4, v{EI+1}")
    a(f"v_and_b32 v{T1}, 7, v1")
    a(f"v_lshlrev_b32 v{IX[0]+1}, 4, v{T1}")
    a(f"v_xor_b32 v{IX[1]+1}, 64, v{IX[0]+1}")
    a(f"v_mov_b32 v{IX[2]+1}, v{IX[0]+1}")
    a(f"v_mov_b32 v{IX[3]+1}, v{IX[1]+1}")
    a("v_mov_b32 v75, 0x3f80")
    a("s_lshl_b32 s66, s25, 11")
    a("s_add_u32 s67, s56, s66")
    a(f"v_add_u32 v115, s67, v{L16}")
    a("s_mov_b32 s55, 0")
    a("s_mov_b32 s60, 0")
    a("s_mov_b32 s61, s25")
    a("s_cmp_ge_u32 s24, 8")
    a("s_cbranch_scc1 K2_HP" if opt.get("hs", 0) else "s_cbranch_scc1 K2_HQ")
    RA, RK = 32, 40
    SB, TO, TW = 48, 56, 64
    TS, TE, TF, TP = 116, 124, 88, 96
    DYN = (1 << 13) | (1 << 25) | (1 << 26) | (1 << 39)
    a(f"s_mov_b32 s66, {CHUNK}")
    a("v_mul_u32_u24 v72, s66, v72")
    a(f"s_mov_b32 s78, {CNT}")
    a("v_lshl_add_u32 v76, v1, 2, s78")
    a(f"s_mov_b32 s79, {IDX}")
    a(f"s_mov_b32 s80, {OH}")
    a("s_mov_b32 s81, 0")
    a(f"s_mov_b32 s68, {DYN & 0xffffffff:#x}")
    a(f"s_mov_b32 s69, {DYN >> 32:#x}")
    for k in range(8): a(f"v_mov_b32 v{RK+k}, -1")
    if opt.get("cls", 0) >= 4:
        mp = {4: [0,1,2,2,3,3,3,4,4,4], 5: [0,1,1,2,2,3,3,4,4,4], 6: [0,1,2,3,3,4,4,4,4,4]}[opt["cls"]]
        a(f"s_mov_b32 s75, {sum(c << (3*i) for i, c in enumerate(mp)):#x}")
    if opt.get("cls") in (1, 3):
        a("v_mov_b32 v77, s26")
        a("v_sub_u32 v78, 3, v77")
    if opt.get("cls") == 2:
        a("s_lshr_b32 s66, s24, 1")
        a("v_mov_b32 v77, s66")
    a("v_mov_b32 v73, -24")
    QM = opt.get("qm", 1)
    U = 4 if QM else 8
    a(f"v_mov_b32 v74, {11*U}")
    a("v_cndmask_b32 v73, 0, v73, s[68:69]")
    a("s_cmp_lg_u32 s24, 0")
    a("s_cbranch_scc1 K2_NCI")
    a(f"v_lshlrev_b32 v105, {18 if QM else 19}, v1")
    a(f"s_mov_b64 exec, {1 << 12:#x}")
    a(f"v_add_u32 v105, {(512 - 12*U) << 16:#x}, v105")
    a(f"s_mov_b64 exec, {(1 << 25) - (1 << 14):#x}")
    a(f"v_add_u32 v105, {(512 - 13*U) << 16:#x}, v105")
    a("s_mov_b32 exec_lo, 0xf8000000")
    a("s_mov_b32 exec_hi, 0x7f")
    a(f"v_add_u32 v105, {(1024 - 27*U) << 16:#x}, v105")
    a("s_mov_b64 exec, s[68:69]")
    a("v_mov_b32 v105, 24")
    a("s_mov_b32 exec_lo, -1")
    a("s_mov_b32 exec_hi, 0xff")
    for c in range(5): a(f"ds_write_b32 v76, v105 offset:{c*256}")
    a("s_mov_b64 exec, -1")
    a.label("K2_NCI")
    a(f"buffer_load_dwordx4 {q4(BC[0])}, v{L16}, s[40:43], s72 offen")
    a(f"buffer_load_dwordx4 {q4(BC[1])}, v{L16}, s[40:43], s72 offen offset:1024")
    a("s_waitcnt lgkmcnt(0)")
    stp(1)
    a("s_barrier")
    a("s_waitcnt vmcnt(3)")
    stp(2)
    NOCL = opt.get("nocl", 0)
    def count(ks):
        for k in ks:
            a(f"v_and_b32 v{RA+k}, 63, v{16+k}")
            CLS = opt.get("cls", 0)
            if CLS == 1:
                a(f"v_cmp_lt_u32 vcc, {5000 << 18:#x}, v{16+k}")
                a("s_nop 1")
                a(f"v_cndmask_b32 v{TF+k}, v77, v78, vcc")
            elif CLS >= 4:
                a(f"v_lshrrev_b32 v{TF+k}, 28, v{16+k}")
                a(f"v_lshl_add_u32 v{TF+k}, v{TF+k}, 1, v{TF+k}")
                a(f"v_bfe_u32 v{TF+k}, s75, v{TF+k}, 3")
            elif CLS == 2: a(f"v_mov_b32 v{TF+k}, v77")
            elif CLS == 3:
                a(f"v_lshrrev_b32 v{TF+k}, 30, v{16+k}")
                a(f"v_cmp_eq_u32 vcc, 0, v{TF+k}")
                a(f"v_add_u32 v{TF+k}, 1, v{TF+k}")
                a("s_nop 0")
                a(f"v_cndmask_b32 v{TF+k}, v{TF+k}, v77, vcc")
            else: a(f"v_lshrrev_b32 v{TF+k}, 29, v{16+k}" if not NOCL else f"v_mov_b32 v{TF+k}, 0")
            a(f"v_lshl_add_u32 v{RA+k}, v{RA+k}, 2, s78")
            a(f"v_lshl_add_u32 v{RA+k}, v{TF+k}, 8, v{RA+k}")
        for k in ks:
            a(f"v_cmpx_gt_u32 vcc, -2, v{16+k}")
            a(f"ds_add_rtn_u32 v{RK+k}, v{RA+k}, v114")
        a("s_mov_b64 exec, -1")
    def decode(ks):
        for k in ks:
            a(f"v_lshrrev_b32 v{TS+k}, {18 + opt.get('pshift', 0)}, v{16+k}")
            a(f"v_bfe_u32 v{TE+k}, v{16+k}, 6, 12")
            a(f"v_add_u32 v{TE+k}, v{TE+k}, v72")
            if opt.get("eshift"): a(f"v_lshrrev_b32 v{TE+k}, {opt['eshift']}, v{TE+k}")
            a(f"v_and_b32 v{TO+k}, 15, v{16+k}")
            a(f"v_lshl_add_u32 v{TO+k}, v{TO+k}, 1, s80")
            a(f"v_mad_i32_i24 v{TF+k}, v{TF+k}, -7, 28")
    SD = "dst_sel:DWORD dst_unused:UNUSED_PAD"
    def pos_ops(k):
        return [f"v_bfe_u32 v{TP+k}, v{TP+k}, v{TF+k}, 7",
                f"v_add_u32_sdwa v{TP+k}, v{TP+k}, v{RK+k} {SD} src0_sel:DWORD src1_sel:WORD_0",
                f"v_add_u32_sdwa v{TF+k}, v{TP+k}, v{RK+k} {SD} src0_sel:DWORD src1_sel:WORD_1",
                f"v_lshrrev_b32 v{TW+k}, {2 if QM else 3}, v{TP+k}",
                f"v_mad_u32_u24 v{TF+k}, v{TW+k}, v74, v{TF+k}"]
    def scatter(ks):
        for k in ks:
            a(f"v_add_u32 v{SB+k}, v{SB+k}, v{TP+k}")
        for k in ks:
            a(f"v_cmp_gt_u32 vcc, s76, v{SB+k}")
            a(f"v_cmp_gt_u32 s[68:69], s77, v{SB+k}")
            a(f"v_cmp_gt_u32 s[82:83], 24, v{TP+k}")
            a(f"s_nop 0")
            a(f"v_cndmask_b32 v{TW+k}, v107, v106, s[68:69]")
            a(f"v_cndmask_b32 v{TW+k}, v{TW+k}, v105, vcc")
            a(f"v_add_u32 v{SB+k}, v{SB+k}, v{TW+k}")
            a(f"v_cndmask_b32 v{SB+k}, v{SB+k}, v{TF+k}, s[82:83]")
            a(f"v_lshl_add_u32 v{TO+k}, v{SB+k}, 5, v{TO+k}")
            a(f"v_lshl_add_u32 v{SB+k}, v{SB+k}, 2, s79")
        for k in ks:
            a(f"v_cmpx_gt_u32 vcc, -2, v{16+k}")
            a(f"ds_write2st64_b32 v{SB+k}, v{TS+k}, v{TE+k} offset0:0 offset1:{(EOFF-IDX)//256}")
            a(f"ds_write_b16 v{TO+k}, v75")
        a("s_mov_b64 exec, -1")
    def arrive(off):
        a("s_mov_b64 exec, 1")
        a(f"ds_add_u32 v111, v114 offset:{off}")
        a("s_mov_b64 exec, -1")
    a("v_mov_b32_dpp v25, v19 quad_perm:[3,3,3,3] row_mask:0xf bank_mask:0xf")
    count(range(4))
    a("v_cmp_ne_u32 vcc, -1, v25")
    a("s_nop 1")
    a("s_cbranch_vccz K2_C1")
    a("s_waitcnt vmcnt(2)")
    for k in range(4): a(f"v_cndmask_b32 v{20+k}, -1, v{20+k}, vcc")
    a("s_mov_b32 s81, 1")
    count([4])
    a("v_cmp_ne_u32 vcc, -1, v21")
    decode([4])
    a("s_cbranch_vccnz K2_CX")
    a.label("K2_C1")
    arrive(4)
    decode(range(4))
    a.label("K2_SB1")
    a("ds_read_b64 v[108:109], v111")
    for c in range(5): a(f"ds_read_u16 v{26+c}, v76 offset:{c*256}")
    a("s_waitcnt lgkmcnt(0)")
    a("v_readfirstlane_b32 s66, v109")
    a("v_add_u32 v26, v26, v73")
    a("s_cmp_lt_u32 s66, 8")
    a("s_cbranch_scc1 K2_SB1")
    stp(3)
    a("v_add3_u32 v27, v26, v27, v73")
    a("v_add3_u32 v28, v27, v28, v73")
    a("v_lshl_or_b32 v31, v26, 7, v27")
    a("v_add3_u32 v29, v28, v29, v73")
    a("v_lshl_or_b32 v31, v31, 7, v28")
    a("v_readfirstlane_b32 s82, v108")
    a("v_lshl_or_b32 v31, v31, 7, v29")
    for k in range(5): a(f"ds_bpermute_b32 v{TP+k}, v{RA+k}, v31")
    a("v_add_u32 v30, v29, v30")
    a("v_cmp_lt_u32 vcc, 0x7f, v29")
    a("v_max_u32 v105, 24, v30")
    a("v_add_u32 v105, -21, v105")
    a("v_and_b32 v105, -4, v105")
    a("s_or_b32 s82, s82, s70")
    a("s_or_b32 s82, s82, vcc_lo")
    a("v_add_u32_dpp v107, v105, v105 row_shr:1 row_mask:0xf bank_mask:0xf bound_ctrl:0")
    a("s_or_b32 s82, s82, vcc_hi")
    a("v_add_u32 v30, v30, v73")
    a("v_add_u32_dpp v107, v107, v107 row_shr:2 row_mask:0xf bank_mask:0xf bound_ctrl:0")
    a("s_cmp_lg_u32 s82, 0")
    a("s_cbranch_scc1 K2_BAD")
    a("v_add_u32_dpp v107, v107, v107 row_shr:4 row_mask:0xf bank_mask:0xf bound_ctrl:0")
    a("s_waitcnt lgkmcnt(0)")
    def stat(ks):
        for k in ks:
            a("\n".join(pos_ops(k)))
            a(f"v_lshl_add_u32 v{TW+k}, v{TF+k}, 5, v{TO+k}")
            a(f"v_lshl_add_u32 v{TF+k}, v{TF+k}, 2, s79")
            a(f"v_cmpx_gt_u32 vcc, 24, v{TP+k}")
            a(f"ds_write2st64_b32 v{TF+k}, v{TS+k}, v{TE+k} offset0:0 offset1:{(EOFF-IDX)//256}")
            a(f"ds_write_b16 v{TW+k}, v75")
            a("s_mov_b64 exec, -1")
    def late(ks):
        for k in ks:
            a(f"v_add_u32 v{SB+k}, v{SB+k}, v{TP+k}")
            a(f"v_cmp_gt_u32 vcc, s76, v{SB+k}")
            a(f"v_cmp_gt_u32 s[68:69], s77, v{SB+k}")
            a(f"v_cmpx_le_u32 s[82:83], 24, v{TP+k}")
            a(f"v_cmpx_gt_u32 s[82:83], -2, v{16+k}")
            a(f"v_cndmask_b32 v{TW+k}, v107, v106, s[68:69]")
            a(f"v_cndmask_b32 v{TW+k}, v{TW+k}, v105, vcc")
            a(f"v_add_u32 v{SB+k}, v{SB+k}, v{TW+k}")
            a(f"v_lshl_add_u32 v{TO+k}, v{SB+k}, 5, v{TO+k}")
            a(f"v_lshl_add_u32 v{SB+k}, v{SB+k}, 2, s79")
            a(f"ds_write2st64_b32 v{SB+k}, v{TS+k}, v{TE+k} offset0:0 offset1:{(EOFF-IDX)//256}")
            a(f"ds_write_b16 v{TO+k}, v75")
            a("s_mov_b64 exec, -1")
    stat(range(4))
    a("s_cmp_eq_u32 s81, 0")
    a("s_cbranch_scc1 K2_S0")
    stat([4])
    a("s_cmp_lg_u32 s81, 1")
    a("s_cbranch_scc1 K2_SY")
    a.label("K2_S0")
    arrive(8)
    nlw = [0]
    def lwait(off, n, vt=109, va=111, extra=None, sleep=1):
        nlw[0] += 1; t = nlw[0]
        a.label(f"LW{t}")
        a(f"ds_read_b32 v{vt}, v{va} offset:{off}")
        if extra: extra()
        a("s_waitcnt lgkmcnt(0)")
        a(f"v_readfirstlane_b32 s66, v{vt}")
        a("s_nop 0")
        a(f"s_cmp_ge_u32 s66, {n}")
        a(f"s_cbranch_scc1 LX{t}")
        if sleep: a(f"s_sleep {sleep}")
        a(f"s_branch LW{t}")
        a.label(f"LX{t}")
    def g0_addr(): pass
    def first_reads():
        for k in range(4): a(f"ds_read_b32 v{IX[k]}, v{aIDX} offset:{k*32}")
        a(f"ds_read_b32 v{EI}, v4")
    nfl = [0]
    LATE = 0
    EA = opt.get("ea", 0)
    NOROT = opt.get("norot", 0)
    D3 = opt.get("d3", 0)
    EOF_ = 384 if D3 else 512
    def first_loads():
        nfl[0] += 1
        a("s_cmp_lg_u32 s25, 0")
        a(f"s_cbranch_scc1 K2_FL{nfl[0]}")
        a("\n".join(e_dma()))
        a.label(f"K2_FL{nfl[0]}")
        a("\n".join(p_dma()))
        if EA:
            a("s_cmp_eq_u32 s25, 0")
            a(f"s_cbranch_scc1 K2_FM{nfl[0]}")
            a("\n".join(e_dma()))
            a.label(f"K2_FM{nfl[0]}")
    def sb2(tag):
        a.label(f"K2_SB2{tag}")
        a("ds_read_b32 v109, v111 offset:8")
        first_reads()
        a("s_waitcnt lgkmcnt(0)")
        a("v_readfirstlane_b32 s66, v109")
        a("s_nop 0")
        a(f"s_cmp_lt_u32 s66, {12 if opt.get('wg', 1) else 8}")
        a(f"s_cbranch_scc1 K2_SB2{tag}")
        stp(4)
        first_loads()
    a(f"ds_write_b32 v76, v30 offset:{DEG - CNT}")
    a("v_add_u32_dpp v107, v107, v107 row_shr:8 row_mask:0xf bank_mask:0xf bound_ctrl:0")
    a("s_mov_b32 s53, 9")
    a("s_nop 0")
    a("v_add_u32_dpp v107, v107, v107 row_bcast:15 row_mask:0xa bank_mask:0xf")
    a("s_nop 1")
    a("v_add_u32_dpp v107, v107, v107 row_bcast:31 row_mask:0xc bank_mask:0xf")
    a("v_sub_u32 v108, v107, v105")
    a("v_readlane_b32 s83, v107, 63")
    for k in range(5): a(f"ds_bpermute_b32 v{SB+k}, v{RA+k}, v108")
    R1L = opt.get("r1l", 1)
    if R1L:
        a("s_cmp_lg_u32 s26, 0")
        a("s_cbranch_scc1 K2_NE1")
    sb2("a")
    if R1L: a.label("K2_NE1")
    a("v_readlane_b32 s76, v108, 12")
    a("v_readlane_b32 s77, v108, 16")
    a("v_readlane_b32 s68, v108, 24")
    a("v_readlane_b32 s69, v108, 28")
    sal = ["s_add_u32 s88, s83, 95", "s_lshr_b32 s88, s88, 5", "s_mul_i32 s88, s88, 171", "s_lshr_b32 s88, s88, 9",
           "s_add_u32 s89, s76, 31", "s_lshr_b32 s89, s89, 5", "s_max_u32 s88, s88, s89", "s_lshr_b32 s89, s77, 5", "s_min_u32 s88, s88, s89",
           "s_lshl_b32 s88, s88, 5", "s_max_u32 s76, s88, s76",
           "s_sub_u32 s88, s83, s76", "s_add_u32 s88, s88, 63", "s_lshr_b32 s88, s88, 6",
           "s_sub_u32 s89, s68, s76", "s_add_u32 s89, s89, 31", "s_lshr_b32 s89, s89, 5", "s_max_u32 s88, s88, s89",
           "s_sub_u32 s89, s69, s76", "s_lshr_b32 s89, s89, 5", "s_min_u32 s88, s88, s89",
           "s_lshl_b32 s88, s88, 5", "s_add_u32 s88, s88, s76", "s_max_u32 s77, s88, s68",
           "s_sub_u32 s88, s83, 224", "s_max_i32 s77, s77, s88", "s_min_u32 s77, s77, s69",
           f"s_add_u32 s53, s76, {288+31}", "s_lshr_b32 s53, s53, 5",
           "s_sub_u32 s90, s77, s76", f"s_add_u32 s90, s90, {288+31}", "s_lshr_b32 s90, s90, 5",
           "s_sub_u32 s91, s83, s77", f"s_add_u32 s91, s91, {288+31}", "s_lshr_b32 s91, s91, 5",
           f"s_sub_u32 s88, {512+288-24}, s76", f"s_sub_u32 s89, {1024+288-24}, s77",
           "s_add_u32 s76, s76, 24", "s_add_u32 s77, s77, 24",
           "s_max_u32 s92, s90, s53", "s_max_u32 s92, s92, s91"]
    a("\n".join(sal))
    a("s_cmp_gt_u32 s92, 16")
    a("s_cbranch_scc1 K2_BAD")
    if opt.get("force_slow"): a("s_branch K2_BAD")
    a("v_mov_b32 v106, s91")
    a("ds_write_b32 v111, v106 offset:16")
    a("s_cmp_eq_u32 s26, 1")
    a("s_cselect_b32 s53, s90, s53")
    a(f"v_mov_b32 v105, {288-24}")
    a("s_waitcnt lgkmcnt(0)")
    a("v_mov_b32 v106, s88")
    a("v_mov_b32 v107, s89")
    late(range(4))
    a("s_cmp_eq_u32 s81, 0")
    a("s_cbranch_scc1 K2_S1")
    late([4])
    a("s_cmp_lg_u32 s81, 1")
    a("s_cbranch_scc1 K2_SX")
    a.label("K2_S1")
    arrive(40)
    if R1L:
        a("s_cmp_eq_u32 s26, 0")
        a("s_cbranch_scc1 K2_NE2")
        sb2("b")
        a.label("K2_NE2")
    a("s_branch K2_QD")
    a.label("K2_HQ")
    WA, QA, QB, XA, BIAS = 32, 16, 116, 132, 112
    a(f"v_lshrrev_b32 v{H_}, 5, v1")
    a("s_lshl_b32 s66, s25, 11")
    a(f"v_and_b32 v{T0}, 3, v1")
    a(f"v_and_b32 v{T1}, 4, v1")
    a(f"v_lshl_or_b32 v{T0}, v{T1}, 1, v{T0}")
    a(f"v_bfe_u32 v{T1}, v1, 3, 1")
    a(f"v_lshl_or_b32 v{T0}, v{T1}, 2, v{T0}")
    a(f"v_xor_b32 v{T1}, v{T0}, v{H_}")
    a(f"v_lshlrev_b32 v{T1}, 4, v{T1}")
    a(f"v_lshl_add_u32 v{XA}, v{T0}, 8, v{T1}")
    a(f"v_and_b32 v{T1}, 16, v1")
    a(f"v_lshl_add_u32 v{XA}, v{T1}, 10, v{XA}")
    a(f"v_add_u32 v{XA}, {EIM + 4096}, v{XA}")
    a(f"s_add_u32 s67, s66, {EIM + 8192}")
    a(f"v_add_u32 v107, s67, v{L16}")
    srd(a, 48, "s14", "s15", 512)
    a("v_and_b32 v108, 1, v1")
    a("v_and_b32 v109, 30, v1")
    a("v_lshl_add_u32 v108, v108, 6, v109")
    a("s_lshl_b32 s66, s25, 14")
    a(f"s_add_u32 s76, s66, {W1BF_OFF - CELL_OFF}")
    for i in range(1, 4): a(f"s_add_u32 s{76+i}, s76, {i*4096}")
    PFT = opt.get("pft", 0)
    if PFT:
        srd_ws(a, 92, 22, P_OFF, N * 512)
        a("s_lshr_b32 s80, s2, 3")
        a(f"s_mul_i32 s80, s80, {PFT*256*128}")
        a("s_lshl_b32 s81, s25, 13")
        a("s_add_u32 s80, s80, s81")
        a("v_lshlrev_b32 v109, 7, v1")
    a(f"s_mov_b32 s68, {NEGLOG2E:#x}")
    a(f"s_mov_b32 s69, {NEGLOG2E:#x}")
    a(f"buffer_load_ushort v{BIAS}, v108, s[48:51], s58 offen")
    a(f"buffer_load_ushort v{BIAS+1}, v108, s[48:51], s58 offen offset:32")
    a(f"buffer_load_dwordx4 {q4(BC[0])}, v{L16}, s[40:43], s72 offen")
    a(f"buffer_load_dwordx4 {q4(BC[1])}, v{L16}, s[40:43], s72 offen offset:1024")
    a("s_mov_b32 s53, 9")
    def wr(i): return WA + 4*i if i not in (12, 13) else 96 + 4*(i - 12)
    a("s_waitcnt lgkmcnt(0)")
    stp(1)
    a("s_barrier")
    for i in [x for k in range(8) for x in (k, 8 + k)]:
        a(f"buffer_load_dwordx4 {q4(wr(i))}, v{L16}, s[40:43], s{76 + (i >> 2)} offen offset:{(i & 3)*1024}")
        if i == 15:
            if opt.get("wg", 1): arrive(8)
            a("s_waitcnt vmcnt(20)")
            arrive(12)
    for i in range(PFT):
        a("buffer_load_dword v135, v109, s[92:95], s80 offen")
        a(f"s_add_u32 s80, s80, {256*128}")
    stp(2)
    a.label("K2_HS")
    a("ds_read_b32 v108, v111 offset:12")
    a("s_waitcnt lgkmcnt(0)")
    a("v_readfirstlane_b32 s66, v108")
    a("s_nop 0")
    a("s_cmp_lt_u32 s66, 4")
    a("s_cbranch_scc1 K2_HS")
    def xread(step):
        sidx = step & 7; st_ = step % 4
        if sidx: a(f"v_xor_b32 v{XA+1}, {sidx << 5}, v{XA}")
        r = XA + 1 if sidx else XA
        a(f"ds_read_b128 {q4(WP+4*st_)}, v{r} offset:{32768 if step >= 8 else 0}")
    for st in range(4): xread(st)
    if opt.get("qp", 1): a("s_setprio 3")
    a(f"s_waitcnt vmcnt({16 + PFT})")
    a(f"v_lshlrev_b32 v{BIAS}, 16, v{BIAS}")
    a(f"v_lshlrev_b32 v{BIAS+1}, 16, v{BIAS+1}")
    a(f"v_mul_f32 v{BIAS}, s68, v{BIAS}")
    a(f"v_mul_f32 v{BIAS+1}, s68, v{BIAS+1}")
    CV = 160
    for P_ in range(2):
        for sidx in range(8):
            step = 8*P_ + sidx; st_ = step % 4
            if P_ == 0: a(f"s_waitcnt vmcnt({14 - 2*sidx + PFT}) lgkmcnt(3)")
            elif sidx >= 4: a(f"s_waitcnt lgkmcnt({min(3, 15 - step)})")
            a(f"v_mfma_f32_32x32x16_bf16 {x16(QA)}, {q4(WP+4*st_)}, {q4(wr(sidx))}, {'0' if sidx == 0 else x16(QA)}")
            a(f"v_mfma_f32_32x32x16_bf16 {x16(QB)}, {q4(WP+4*st_)}, {q4(wr(8+sidx))}, {'0' if sidx == 0 else x16(QB)}")
            if step + 4 < 16: xread(step + 4)
        a("s_nop 10")
        n = 0
        for wi in range(2 if P_ == 0 else 1):
            for X, base in enumerate((QA, QB)):
                b = base + 8*wi
                dstr = (CV + 4*(n & 1)) if P_ == 0 else BQ[X]
                for k in range(8):
                    a(f"v_fma_f32 v{b+k}, v{b+k}, s68, v{BIAS+X}")
                if P_ == 0 and n == 2: a("s_waitcnt lgkmcnt(0)")
                for k in range(4):
                    a(f"v_cvt_pk_bf16_f32 v{dstr+k}, v{b+2*k}, v{b+2*k+1}")
                a(f"ds_write_b128 v107, {q4(dstr)} offset:{(wi + 2*P_)*16384 + X*1024}")
                n += 1
        if P_ == 0:
            arrive(36)
            if opt.get("qp", 1): a("s_setprio 0")
            stp(3)
            sb2("h")
    arrive(44)
    a.label("K2_QD")
    a("v_mov_b32 v167, v111")
    a(f"v_mov_b32 v166, v4")
    a(f"v_mov_b32 v{aAE}, v110")
    a(f"v_mov_b32 v{MG}, -1")
    for k in range(4): a(f"ds_read_b32 v{IX[k]}, v{aIDX} offset:{128+k*32}")
    a(f"ds_read_b128 {q4(AO)}, v{aAO}")
    def bq_reads():
        a(f"ds_read_b128 {q4(BQ[0])}, v115 offset:8192")
        a(f"ds_read_b128 {q4(BQ[1])}, v115 offset:9216")
    stp(5)
    for i in range(16): a(f"v_mov_b32 v{ACC+i}, 0")
    a(f"v_mov_b32 v{CHK}, 0\nv_mov_b32 v{CHK+1}, 0")
    T3, T2, T1_ = opt.get("t3", 6), opt.get("t2", 3), opt.get("t1", 1)
    if OCT[0]:
        a(f"v_mov_b32 v{HQ+1}, 0")
    def flag_wait(tag, off):
        a.label(f"K2_W{tag}")
        a(f"ds_read_b32 v{FV}, v{aEI} offset:{off}")
        a("s_waitcnt lgkmcnt(0)")
        a(f"v_readfirstlane_b32 s66, v{FV}")
        a("s_nop 0")
        a("s_cmp_eq_u32 s66, -1")
        a(f"s_cbranch_scc1 K2_X{tag}")
        a("s_sleep 1")
        a(f"s_branch K2_W{tag}")
        a.label(f"K2_X{tag}")
    if LATE:
        a("s_max_i32 s90, s90, 1")
        a("s_min_u32 s90, s90, s53")
        a("s_min_u32 s67, s53, 2")
        a("s_cmp_ge_u32 s25, s67")
        a("s_waitcnt vmcnt(0)")
        a("s_cbranch_scc1 K2_NF")
        a(f"ds_write_b32 v166, v{MG}")
        a.label("K2_NF")
        for m in range(4): a(f"ds_read_b128 {q4(AP[m])}, v{aAP+m}")
        a("s_waitcnt lgkmcnt(0)")
        a("\n".join(p_dma()))
        a("s_cmp_lt_u32 s25, 2")
        a("s_cbranch_scc1 K2_F2")
        a("\n".join(e_dma()))
        a.label("K2_F2")
        for i in range(4): a(f"v_mov_b32 v{HQ+i}, 0")
        a("s_cmp_eq_u32 s53, 0")
        a("s_cbranch_scc1 K2_EXIT")
        flag_wait("A", 0)
        a(f"ds_read_b128 {q4(AE)}, v{aAE}")
        stp(6)
        stc(12)
        if opt.get("prio", 1): a("s_setprio 3")
        a("s_sub_u32 s68, 0, s25")
        a("s_and_b32 s68, s68, 3")
        a("s_lshl_b32 s67, s68, 7")
        a("s_lshl_b32 s69, s68, 10")
        a(f"v_subrev_u32 v{aAO}, s69, v{aAO}")
        a(f"v_subrev_u32 v{aAE}, s69, v{aAE}")
        a(f"v_subrev_u32 v{aIDX}, s67, v{aIDX}")
        a(f"v_subrev_u32 v{aEI}, s67, v{aEI}")
        a("s_mov_b64 exec, s[62:63]")
        a(f"v_subrev_u32 v{aS1}, s69, v{aS1}")
        a("s_mov_b64 exec, s[64:65]")
        a(f"v_subrev_u32 v{aS2}, s69, v{aS2}")
        a("s_mov_b64 exec, -1")
        a("s_waitcnt lgkmcnt(0)")
        a("\n".join(mf_tile(0)))
        a("s_nop 8")
        a("s_cmp_eq_u32 s68, 1")
        a("s_cbranch_scc1 K2_U1")
        a("s_cmp_eq_u32 s68, 2")
        a("s_cbranch_scc1 K2_U2")
        a("s_cmp_eq_u32 s68, 3")
        a("s_cbranch_scc1 K2_U3")
    else:
        a("s_cmp_lg_u32 s25, 0")
        a(f"s_waitcnt vmcnt({1 if EA else 0})")
        a("s_cbranch_scc1 K2_NF")
        a("s_waitcnt vmcnt(0)")
        a(f"ds_write_b32 v166, v{MG}")
        a(f"ds_read_b32 v{EI}, v{aEI} offset:512")
        a.label("K2_NF")
        a("\n".join(p_reads()))
        a("s_waitcnt lgkmcnt(0)")
        a("\n".join(p_dma()))
        a("\n".join(p_shift(0) + p_shift(1)))
        a("s_sub_u32 s67, s25, 1")
        if not EA:
            a(f"s_cmp_ge_u32 s67, {3 if NOROT else 2}")
            a("s_cbranch_scc1 K2_F2")
            a("\n".join(e_dma()))
        a.label("K2_F2")
        a("s_cmp_eq_u32 s26, 2")
        a("s_cbranch_scc1 K2_NBQ")
        lwait(36, 4, vt=FV, va=167, extra=bq_reads)
        a.label("K2_NBQ")
        def flag_wait(tag, off):
            a.label(f"K2_W{tag}")
            a(f"ds_read_b32 v{FV}, v{aEI} offset:{off}")
            a("s_waitcnt lgkmcnt(0)")
            a(f"v_readfirstlane_b32 s66, v{FV}")
            a("s_nop 0")
            a("s_cmp_eq_u32 s66, -1")
            a(f"s_cbranch_scc1 K2_X{tag}")
            a("s_sleep 1")
            a(f"s_branch K2_W{tag}")
            a.label(f"K2_X{tag}")
        flag_wait("A", 0)
        a(f"ds_read_b128 {q4(AE)}, v{aAE}")
        stp(6)
        stc(12)
        if opt.get("prio", 1): a("s_setprio 3")
        a("s_waitcnt lgkmcnt(0)")
        a("\n".join(mf_tile(0)))
        a("s_nop 10")
        ex0 = {1: [f"ds_read_b32 v{IX[k]}, v{aIDX} offset:{256+k*32}" for k in range(4)]}
        ex1 = {1: [f"ds_read_b64_tr_b16 {pr(S)}, v{aS1}", f"ds_read_b64_tr_b16 {pr(S+2)}, v{aS2}", f"ds_read_b128 {q4(AO)}, v{aAO} offset:1024"]}
        a("\n".join(tile(0, mf_tile(1), ex0, [], [], "P0") + tile(1, [], ex1, [], ["s_waitcnt lgkmcnt(0)"], "P1")))
        a("s_mov_b32 s55, 1")
        a("s_cmp_lg_u32 s26, 2")
        a("s_cbranch_scc1 K2_NX2")
        lwait(44, 4, vt=FV, va=167)
        a.label("K2_NX2")
        lwait(40, 8, vt=FV, va=167, extra=lambda: a("ds_read_b32 v5, v167 offset:16"))
        a("v_readfirstlane_b32 s66, v5")
        a("s_cmp_eq_u32 s26, 2")
        a("s_cselect_b32 s53, s66, s53")
        a("s_cmp_eq_u32 s53, -1")
        a("s_cbranch_scc1 K2_SLOW")
        a("s_cmp_eq_u32 s26, 2")
        a(f"s_cselect_b32 s94, {opt.get('r2lag', 0)}, 0")
        a("s_sub_u32 s94, s53, s94")
        a(f"s_sub_u32 s90, s94, {T3}")
        a("s_max_i32 s90, s90, 2")
        a("s_mov_b32 s91, 0")
        a("s_sub_u32 s93, s53, 2")
        if NOROT: a(f"ds_read_b32 v{EI}, v166 offset:512")
        a(f"s_cmp_ge_u32 s67, {3 if (EA or NOROT) else 2}")
        a("s_waitcnt vmcnt(0)")
        a("s_cbranch_scc1 K2_NF2")
        a(f"ds_write_b32 v166, v{MG}")
        a.label("K2_NF2")
        a("\n".join(p_reads()))
        a("s_waitcnt lgkmcnt(0)")
        a("\n".join(p_dma()))
        a("\n".join(p_shift(0) + p_shift(1)))
        if D3:
            a("s_cmp_lg_u32 s25, 3")
            a("s_cbranch_scc1 K2_F3")
        elif not NOROT:
            a(f"s_cmp_lt_u32 s67, {3 if EA else 2}")
            a("s_cbranch_scc1 K2_F3")
        a("\n".join(e_dma()))
        a.label("K2_F3")
        flag_wait("B", 128)
        a(f"ds_read_b128 {q4(AE)}, v{aAE} offset:1024")
        if NOROT: a("s_mov_b32 s68, 1")
        else:
            a(f"s_sub_u32 s68, {0 if D3 else 1}, s25")
            a("s_and_b32 s68, s68, 3")
        a("s_sub_u32 s69, 1, s68")
        a("s_lshl_b32 s67, s69, 7")
        a("s_lshl_b32 s69, s69, 10")
        a(f"v_add_u32 v{aAO}, s69, v{aAO}")
        a(f"v_add_u32 v{aAE}, s69, v{aAE}")
        a(f"v_add_u32 v{aIDX}, s67, v{aIDX}")
        a(f"v_add_u32 v{aEI}, s67, v{aEI}")
        a("s_mov_b64 exec, s[62:63]")
        a(f"v_add_u32 v{aS1}, s69, v{aS1}")
        a("s_mov_b64 exec, s[64:65]")
        a(f"v_add_u32 v{aS2}, s69, v{aS2}")
        a("s_mov_b64 exec, -1")
        a("s_waitcnt lgkmcnt(0)")
        a("\n".join(mf_tile(0)))
        a("s_nop 8")
        a("s_cmp_eq_u32 s68, 1")
        a("s_cbranch_scc1 K2_U1")
        a("s_cmp_eq_u32 s68, 2")
        a("s_cbranch_scc1 K2_U2")
        a("s_cmp_eq_u32 s68, 3")
        a("s_cbranch_scc1 K2_U3")
    EFL[0] = {0: "", 1: " nt", 2: " sc1"}[opt.get("efl", 0)]
    WPOS = opt.get("wpos", 6)
    MP0 = {0: (0, 3, 6), 1: (0, 4, 8), 2: (2, 6, 10)}[opt.get("mp0", 0)]
    a(".p2align 6")
    for _ in range(opt.get("shift", 0)): a("s_nop 0")
    loop_start = len(a.lines)
    for u in range(4):
        a.label(f"K2_U{u}")
        if LATE:
            upd = []
            if u == 3:
                upd = [f"v_add_u32 v{aAO}, 4096, v{aAO}", f"v_add_u32 v{aAE}, 4096, v{aAE}", f"v_add_u32 v{aIDX}, 512, v{aIDX}", f"v_add_u32 v{aEI}, 512, v{aEI}",
                       "s_mov_b64 exec, s[62:63]", f"v_add_u32 v{aS1}, 4096, v{aS1}", "s_mov_b64 exec, s[64:65]", f"v_add_u32 v{aS2}, 4096, v{aS2}", "s_mov_b64 exec, -1"]
            mid0 = [f"ds_read_b64_tr_b16 {pr(S)}, v{aS1} offset:{u*1024}", f"ds_read_b64_tr_b16 {pr(S+2)}, v{aS2} offset:{u*1024}",
                    f"ds_read_b128 {q4(AO)}, v{aAO} offset:{(u+1)*1024}"]
            t0 = tile(0, mf_tile(1) + [SEGSUM], {}, mid0, [])
            ex1 = {}
            ex1[1] = [f"ds_read_b32 v{FV}, v{aEI} offset:{(u+1)*128}"] + [f"ds_read_b32 v{IX[k]}, v{aIDX} offset:{(u+2)*128+k*32}" for k in range(4)]
            if u == 0: ex1[1] += [f"ds_read_b32 v{EI}, v{aEI} offset:512"]
            ex1[12] = ["s_waitcnt lgkmcnt(0)", f"v_readfirstlane_b32 s66, v{FV}"]
            mid = ["s_cmp_eq_u32 s66, -1", f"s_waitcnt vmcnt({1 if u == 1 else 0})"]
            mid += [f"ds_read_b128 {q4(AP[m])}, v{aAP+m}" for m in range(4)]
            mid += [f"s_cbranch_scc0 K2_FW{u}", f"K2_FR{u}:"]
            mid += [f"ds_read_b128 {q4(AE)}, v{aAE} offset:{(u+1)*1024}"]
            if opt.get("gstamps"): mid += ["s_memrealtime s[96:97]", "s_add_u32 m0, s55, 16"]
            t1 = tile(1, [], ex1, mid, [])
            mf = mf_tile(0)
            post = ["s_add_u32 s66, s55, 2", "s_cmp_ge_u32 s66, s53", "s_waitcnt lgkmcnt(0)"]
            if opt.get("gstamps"): post += ["v_writelane_b32 v0, s96, m0"]
            post += [f"s_cbranch_scc1 K2_ND{u}"]
            if u == 2: post += [f"ds_write_b32 v{aEI}, v{MG} offset:512"]
            for k in range(4):
                post += [f"s_add_u32 m0, s57, {k*1024}", mf[k], f"buffer_load_dwordx4 {pr(IX[k])}, s[32:35], s58 idxen offen{PFL[0]} lds"]
            post += [f"K2_NR{u}:"]
            if u == 0: post += e_dma()
            post += upd
            nst = 1 + (6 if u == 0 else 0) + len(upd) + 3 + (1 if u == 3 else 0) + 1
            if nst - 1 < 12: post += [f"s_nop {12 - (nst - 1) - 1}"]
            a("\n".join(t0 + t1 + post))
        else:
            ex0 = {}
            ex0[1] = [f"ds_read_b32 v{FV}, v{aEI} offset:{(u+1)*128}"] + [f"ds_read_b32 v{IX[k]}, v{aIDX} offset:{(u+2)*128+k*32}" for k in range(4)]
            if u == 0: ex0[1] += [f"ds_read_b32 v{EI}, v{166 if NOROT else aEI} offset:{EOF_}"]
            ex0[12] = ["s_waitcnt lgkmcnt(0)", f"v_readfirstlane_b32 s66, v{FV}"]
            mid = ["s_cmp_eq_u32 s66, -1"]
            mid += [f"ds_read_b128 {q4(AO)}, v{aAO} offset:{(u+1)*1024}"]
            mid += [f"ds_read_b64_tr_b16 {pr(S)}, v{aS1} offset:{u*1024}", f"ds_read_b64_tr_b16 {pr(S+2)}, v{aS2} offset:{u*1024}"]
            mid += [f"s_cbranch_scc0 K2_FW{u}", f"K2_FR{u}:"]
            mid += [f"ds_read_b128 {q4(AE)}, v{aAE} offset:{(u+1)*1024}"]
            t0 = tile(0, mf_tile(1) + [SEGSUM], ex0, mid, [], f"A{u}", mpos=MP0)
            pre = [f"s_waitcnt vmcnt({1 if (u == 1 and not D3) else 0})"] + p_reads()
            blk = ["s_cmp_ge_i32 s55, s93", "s_waitcnt lgkmcnt(0)"] + p_shift(0) + [f"s_cbranch_scc1 K2_ND{u}"]
            if u == (1 if D3 else 2): blk += [f"ds_write_b32 v{166 if NOROT else aEI}, v{MG} offset:{EOF_}"]
            blk += p_dma() + [f"K2_ND{u}:"]
            if u == 0:
                ed = e_dma()
                if opt.get("e0nt", 0) > 1:
                    k = [i for i, l in enumerate(ed) if l.startswith("buffer_load")][0]
                    ed = ed[:k] + [f"s_cmp_ge_u32 s55, {opt['e0nt']}", "s_cbranch_scc1 K2_EN1", ed[k].replace(" lds", " nt lds"), "s_branch K2_EN2", "K2_EN1:", ed[k], "K2_EN2:"] + ed[k+1:]
                blk += ed
            ex1 = {WPOS: blk}
            if TR8[0] == 2:
                rd = pre[1:]; pre = pre[:1] + rd[:8]
                ex1[0] = rd[8:12]; ex1[1] = rd[12:]
            mid1 = p_shift(1)
            if u == 3 and NOROT: mid1 += ["v_add_u32 v166, 512, v166"]
            if u == 3:
                mid1 += [f"v_add_u32 v{aAO}, 4096, v{aAO}", f"v_add_u32 v{aAE}, 4096, v{aAE}", f"v_add_u32 v{aIDX}, 512, v{aIDX}", f"v_add_u32 v{aEI}, 512, v{aEI}",
                        "s_mov_b64 exec, s[62:63]", f"v_add_u32 v{aS1}, 4096, v{aS1}", "s_mov_b64 exec, s[64:65]", f"v_add_u32 v{aS2}, 4096, v{aS2}", "s_mov_b64 exec, -1"]
            exr1 = []
            if opt.get("gstamps"):
                mid1 = mid1 + ["s_memrealtime s[96:97]", "s_add_u32 m0, s55, 16"]
                exr1 += ["s_waitcnt lgkmcnt(0)", "v_writelane_b32 v0, s96, m0", "s_mov_b32 m0, s57"]
            t1 = tile(1, mf_tile(0), ex1, mid1, exr1, f"B{u}", mpos=(WPOS + 2, WPOS + 5), pre=pre)
            a("\n".join(t0 + t1))
        a("s_add_u32 s55, s55, 1")
        a("s_cmp_ge_u32 s55, s90")
        a(f"s_cbranch_scc1 K2_TH{u}")
        if u == 3: a("s_branch K2_U0")
    loop_end = len(a.lines)
    for qtl in QTAILS: a("\n".join(qtl))
    for u in range(4):
        a.label(f"K2_TH{u}")
        a(f"s_mov_b32 s92, {(u+1)&3}")
        if u < 3: a("s_branch K2_TH")
    a.label("K2_TH")
    a("s_cmp_ge_u32 s55, s53")
    a("s_cbranch_scc1 K2_EXIT")
    a("s_add_u32 s91, s91, 1")
    a("s_cmp_eq_u32 s91, 1")
    a("s_cbranch_scc0 K2_TH_2")
    if opt.get("prio", 1): a("s_setprio 2")
    a(f"s_sub_u32 s90, s94, {T2}")
    a("s_branch K2_TH_R")
    a.label("K2_TH_2")
    a("s_cmp_eq_u32 s91, 2")
    a("s_cbranch_scc0 K2_TH_3")
    if opt.get("prio", 1): a("s_setprio 1")
    a(f"s_sub_u32 s90, s94, {T1_}")
    a("s_branch K2_TH_R")
    a.label("K2_TH_3")
    if opt.get("prio", 1): a("s_setprio 0")
    a("s_mov_b32 s90, s53")
    a.label("K2_TH_R")
    a("s_max_i32 s90, s90, 0")
    a("s_cmp_eq_u32 s92, 1")
    a("s_cbranch_scc1 K2_U1")
    if opt.get("w2s", 2) > 1:
        a(f"s_cmp_lt_u32 s91, {opt.get('w2s', 2)}")
        a("s_cbranch_scc1 K2_TH_J")
    a("s_cmp_lg_u32 s60, 0")
    a("s_cbranch_scc1 K2_TH_J")
    a("s_mov_b32 s60, 1")
    a("\n".join(w2_pre(L16)))
    a.label("K2_TH_J")
    a("s_cmp_eq_u32 s92, 2")
    a("s_cbranch_scc1 K2_U2")
    a("s_cmp_eq_u32 s92, 3")
    a("s_cbranch_scc1 K2_U3")
    a("s_branch K2_U0")
    if LATE:
        for u in range(4):
            a.label(f"K2_ND{u}")
            a("\n".join(mf_tile(0)))
            a(f"s_branch K2_NR{u}")
    for u in range(4):
        a.label(f"K2_FW{u}")
        a("s_add_u32 s66, s55, 1")
        a("s_cmp_ge_u32 s66, s53")
        a(f"s_cbranch_scc1 K2_FR{u}")
        a(f"ds_read_b32 v{FV}, v{aEI} offset:{(u+1)*128}")
        a("s_waitcnt lgkmcnt(0)")
        a(f"v_readfirstlane_b32 s66, v{FV}")
        a("s_nop 0")
        a("s_cmp_eq_u32 s66, -1")
        a(f"s_cbranch_scc1 K2_FR{u}")
        a("s_sleep 1")
        a(f"s_branch K2_FW{u}")
    a.label("K2_EXIT")
    a(SEGSUM)
    stp(7)
    stc(13)
    if opt.get("stamps"): a("v_writelane_b32 v0, s53, 14")
    a(f"v_lshrrev_b32 v1, 4, v{L16}")
    a("s_cmp_lg_u32 s60, 0")
    a("s_cbranch_scc1 K2_X1")
    a("\n".join(w2_pre(L16)))
    a.label("K2_X1")
    WL = 116
    def fin_loads(l16):
        srd(a, 48, "s18", "s19", 256)
        for sidx in range(NW2, 8):
            a(f"buffer_load_dwordx4 {q4(WL+4*(sidx-NW2))}, v{l16}, s[40:43], s74 offen offset:{(sidx & 3)*1024}")
        a("v_lshrrev_b32 v8, 4, v1")
        a("v_lshlrev_b32 v9, 3, v8")
        a("s_lshl_b32 s68, s24, 5")
        a("buffer_load_dwordx2 v[10:11], v9, s[48:51], s68 offen")
    fin_loads(L16)
    a("v_subrev_u32 v2, s71, v1")
    a("v_and_b32 v2, 15, v2")
    a(f"v_mul_u32_u24 v2, {HSTR}, v2")
    a("v_and_b32 v3, 16, v1")
    a("v_lshl_add_u32 v2, v3, 2, v2")
    a("v_lshrrev_b32 v3, 5, v1")
    a("v_lshl_add_u32 v3, v3, 3, s57")
    a("v_add_u32 v2, v2, v3")
    a(f"s_waitcnt vmcnt({9 - NW2})")
    for k in range(8):
        a(f"v_cvt_pk_bf16_f32 v{EX+k}, v{ACC+2*k}, v{ACC+2*k+1}")
        if k & 1: a(f"ds_write_b64 v2, {pr(EX+k-1)} offset:{16*(k>>1)}")
    for k in range(0, 8, 2):
        a(f"v_pk_add_f32 {pr(ACC+2*k)}, {pr(ACC+2*k)}, {pr(ACC+2*k+2)}")
    a(f"v_pk_add_f32 {pr(ACC)}, {pr(ACC)}, {pr(ACC+4)}")
    a(f"v_pk_add_f32 {pr(ACC+8)}, {pr(ACC+8)}, {pr(ACC+12)}")
    a(f"v_add_f32 v{CHK}, v{CHK}, v{CHK+1}")
    a(f"v_pk_add_f32 {pr(ACC)}, {pr(ACC)}, {pr(ACC+8)}")
    a(f"v_mul_f32 v{CHK}, 0x41800000, v{CHK}")
    a(f"v_add_f32 v{CHK+1}, v{ACC}, v{ACC+1}")
    a(f"v_mul_f32 v{CHK+1}, 0, v{CHK+1}")
    a("v_mov_b32 v4, 0x207")
    a(f"v_add_f32 v{CHK}, v{CHK}, v{CHK+1}")
    a(f"v_mov_b32 v5, {FLAG}")
    a("v_mov_b32 v7, 1")
    a(f"v_cmpx_class_f32 vcc, v{CHK}, v4")
    a("ds_write_b32 v5, v7")
    a("s_mov_b64 exec, -1")
    a.label("K2_FIN")
    a("s_cmp_ge_u32 s24, 8")
    a("s_cbranch_scc1 K2_HEND")
    a("s_mov_b64 exec, 1")
    a("ds_add_u32 v5, v7 offset:24")
    a("s_mov_b64 exec, -1")
    a("v_and_b32 v12, 15, v1")
    a(f"v_mul_u32_u24 v2, {HSTR}, v12")
    a("v_lshl_add_u32 v2, v8, 4, v2")
    a(f"s_mov_b32 s78, {DEG}")
    a("v_lshl_add_u32 v4, v12, 2, s78")
    for mt in range(3): a(f"ds_read_b32 v{112+mt}, v4 offset:{mt*48}")
    a("v_lshl_add_u32 v13, v12, 16, v9")
    a(f"v_mov_b32 v3, {KILL:#x}")
    a("v_cmp_gt_u32 vcc, 4, v12")
    a("s_lshl_b32 s69, s2, 8")
    a("s_add_u32 s69, s69, s68")
    a("v_cndmask_b32 v14, v13, v3, vcc")
    a(f"s_add_u32 s72, s69, {12 << 16}")
    a(f"s_add_u32 s75, s69, {24 << 16}")
    a(f"s_mov_b32 s76, {NEGLN2:#x}")
    RS = 80
    a.label("K2_E1")
    a("ds_read_b32 v6, v5 offset:24")
    a("s_waitcnt lgkmcnt(0)")
    a("v_readfirstlane_b32 s66, v6")
    a("s_nop 0")
    a("s_cmp_ge_u32 s66, 8")
    a("s_cbranch_scc1 K2_E2")
    a("s_sleep 2")
    a("s_branch K2_E1")
    a.label("K2_E2")
    HB = 16
    OD = 120
    def wfrag(sidx): return WREG[sidx] if sidx < NW2 else WL + 4*(sidx - NW2)
    def hoff(mt, sidx): return (4*mt + (sidx >> 1))*4096 + (sidx & 1)*64
    order = [(sidx, mt) for sidx in range(8) for mt in range(2)]
    for n, (sidx, mt) in enumerate(order[:14]):
        a(f"ds_read_b128 {q4(HB+4*n)}, v2 offset:{hoff(mt, sidx)}")
    for n, (sidx, mt) in enumerate(order):
        issued = min(16, 14 + n)
        wv = f" vmcnt({8 - sidx})" if (sidx >= NW2 and mt == 0) else ""
        a(f"s_waitcnt{wv} lgkmcnt({issued - n - 1})")
        a(f"v_mfma_f32_16x16x32_bf16 {q4(OD+4*mt)}, {q4(wfrag(sidx))}, {q4(HB+4*n)}, {'0' if sidx == 0 else q4(OD+4*mt)}")
        if n < 2: a(f"ds_read_b128 {q4(HB+4*(14+n))}, v2 offset:{hoff(order[14+n][1], order[14+n][0])}")
    a("s_waitcnt vmcnt(0)")
    a("v_lshlrev_b32 v104, 16, v10")
    a("v_and_b32 v105, 0xffff0000, v10")
    a("v_lshlrev_b32 v106, 16, v11")
    a("v_and_b32 v107, 0xffff0000, v11")
    for mt in range(3): a(f"v_cvt_f32_u32 v{112+mt}, v{112+mt}")
    for mt in range(3):
        for i in range(4):
            a(f"v_mul_f32 v{RS+4*mt+i}, v{112+mt}, v{104+i}")
    def fin_tile(mt):
        for i in range(4):
            a(f"v_fma_f32 v{RS+4*mt+i}, v{OD+4*mt+i}, s76, v{RS+4*mt+i}")
        a(f"v_cvt_pk_bf16_f32 v{132+2*mt}, v{RS+4*mt}, v{RS+4*mt+1}")
        a(f"v_cvt_pk_bf16_f32 v{133+2*mt}, v{RS+4*mt+2}, v{RS+4*mt+3}")
        a(f"buffer_store_dwordx2 {pr(132+2*mt)}, v{13 if mt == 0 else 14}, s[44:47], s{(69,72,75)[mt]} offen{('', ' sc1', ' nt')[opt.get('osc', 1)]}")
    def merge(mt):
        for i in range(4):
            a(f"v_add_f32_dpp v{OD+4*mt+i}, v{OD+4*mt+4+i}, v{OD+4*mt+i} row_shr:12 row_mask:0xf bank_mask:0xf bound_ctrl:0")
    merge(0)
    fin_tile(0)
    stp(8)
    a("s_barrier")
    stp(9)
    for sidx in range(8):
        a(f"ds_read_b128 {q4(HB+4*sidx)}, v2 offset:{hoff(2, sidx)}")
    a("ds_read_b32 v6, v5")
    for sidx in range(8):
        a(f"s_waitcnt lgkmcnt({8 - sidx})")
        a(f"v_mfma_f32_16x16x32_bf16 {q4(OD+8)}, {q4(wfrag(sidx))}, {q4(HB+4*sidx)}, {'0' if sidx == 0 else q4(OD+8)}")
    a("s_waitcnt lgkmcnt(0)")
    a("v_readfirstlane_b32 s82, v6")
    a("s_nop 1")
    a("s_andn2_b32 s82, s82, s70")
    a("s_cmp_lg_u32 s82, 0")
    a("s_cbranch_scc1 K2_REDO")
    a("s_nop 0")
    merge(1)
    fin_tile(2)
    fin_tile(1)
    stp(10)
    if opt.get("stamps"): a("s_waitcnt vmcnt(0)")
    stp(11)
    a.label("K2_END2")
    stamp_out(a, opt, 22, 0xF80000, 24, 0, tmpv=2)
    if opt.get('gstamps'): stamp_out2(a, opt, 22, 0x1000000, 24, 0, tmpv=2)
    a.label("K2_END")
    a("s_endpgm")
    a.label("K2_HEND")
    a("s_waitcnt lgkmcnt(0)")
    stp(8)
    a("s_barrier")
    a("ds_read_b32 v6, v5")
    a("s_waitcnt lgkmcnt(0)")
    a("v_readfirstlane_b32 s82, v6")
    a("s_nop 0")
    a("s_andn2_b32 s82, s82, s70")
    a("s_cmp_lg_u32 s82, 0")
    a("s_cbranch_scc1 K2_REDO")
    a("s_branch K2_END2")
    a.label("K2_CX")
    a("s_mov_b32 s81, 2")
    count([5, 6, 7])
    decode([5, 6, 7])
    a("v_cmpx_eq_u32 vcc, -2, v23")
    a("ds_write_b32 v111, v114")
    a("s_mov_b64 exec, -1")
    a("s_branch K2_C1")
    a.label("K2_SY")
    for k in (5, 6, 7): a(f"ds_bpermute_b32 v{TP+k}, v{RA+k}, v31")
    a("s_waitcnt lgkmcnt(0)")
    stat([5, 6, 7])
    a("s_branch K2_S0")
    a.label("K2_SX")
    for k in (5, 6, 7): a(f"ds_bpermute_b32 v{SB+k}, v{RA+k}, v108")
    a("s_waitcnt lgkmcnt(0)")
    late([5, 6, 7])
    a("s_branch K2_S1")
    a.label("K2_REDO")
    a("s_setprio 0")
    a("s_mov_b32 s70, -1")
    a("s_lshl_b32 s66, s24, 6")
    a("v_add_u32 v0, s66, v1")
    a("s_waitcnt vmcnt(0) lgkmcnt(0)")
    a("s_barrier")
    a("s_branch K2_TOP")
    a.label("K2_BAD")
    arrive(8)
    a("v_mov_b32 v109, -1")
    a("ds_write_b32 v111, v109 offset:16")
    arrive(40)
    a.label("K2_SLOW")
    a(f"v_lshrrev_b32 v1, 4, v{L16}")
    a("s_setprio 0")
    a("s_mov_b32 s70, -1")
    a("s_waitcnt vmcnt(0) lgkmcnt(0)")
    a("s_barrier")
    a("s_lshl_b32 s66, s24, 10")
    a(f"s_add_u32 s66, s66, {OH}")
    a("v_lshl_add_u32 v2, v1, 4, s66")
    for i in range(4): a(f"v_mov_b32 v{4+i}, 0")
    for i in range(4): a(f"ds_write_b128 v2, v[4:7] offset:{i*12288}")
    a("v_lshlrev_b32 v12, 2, v1")
    a(f"v_add_u32 v3, {DEG}, v12")
    a("ds_write_b32 v3, v4")
    srd(a, 84, "s8", "s9", E * 4)
    srd(a, 88, "s10", "s11", E * 4)
    a("v_and_b32 v8, 31, v1")
    a("v_lshlrev_b32 v8, 4, v8")
    a("v_lshrrev_b32 v9, 5, v1")
    a("v_lshl_add_u32 v8, v9, 10, v8")
    a("s_lshl_b32 s72, s25, 11")
    a(f"s_add_u32 s66, s72, {WCF_OFF - CELL_OFF}")
    a("buffer_load_dwordx4 v[16:19], v8, s[40:43], s66 offen")
    a("buffer_load_dwordx4 v[20:23], v8, s[40:43], s66 offen offset:512")
    a(f"s_add_u32 s72, s72, {EIM + 8192}")
    a("v_add_u32 v8, s72, v8")
    a("v_lshlrev_b32 v7, 4, v1")
    a("\n".join(w2_pre(7)))
    srd_ws(a, 92, 22, P_OFF, N * 512)
    a("v_lshlrev_b32 v10, 1, v1")
    a("v_add_u32 v10, s58, v10")
    a("v_lshlrev_b32 v11, 1, v10")
    a(f"v_add_u32 v11, {OH}, v11")
    a("v_mov_b32 v13, 1")
    a("s_waitcnt vmcnt(0)")
    for k in range(8):
        a(f"v_lshlrev_b32 v{24+2*k}, 16, v{16+k}")
        a(f"v_and_b32 v{25+2*k}, 0xffff0000, v{16+k}")
    a("s_waitcnt lgkmcnt(0)")
    a("s_barrier")
    a("s_mov_b32 s66, s26")
    a.label("K2_SL_BLK")
    a("s_lshl_b32 s67, s66, 8")
    a("buffer_load_dword v40, v12, s[88:91], s67 offen")
    a("buffer_load_dword v41, v12, s[84:87], s67 offen")
    a("s_waitcnt vmcnt(0)")
    a("v_and_b32 v42, 255, v40")
    a("v_cmp_eq_u32 vcc, s2, v42")
    a("s_nop 1")
    a("s_mov_b64 s[68:69], vcc")
    a.label("K2_SL_E")
    a("s_cmp_eq_u64 s[68:69], 0")
    a("s_cbranch_scc1 K2_SL_NB")
    a("s_ff1_i32_b64 s72, s[68:69]")
    a("s_bitset0_b64 s[68:69], s72")
    a("v_readlane_b32 s52, v40, s72")
    a("v_readlane_b32 s53, v41, s72")
    a("s_lshl_b32 s75, s66, 6")
    a("s_add_u32 s75, s75, s72")
    a("s_lshl_b32 s75, s75, 5")
    a("s_load_dwordx8 s[76:83], s[6:7], s75")
    a("s_lshl_b32 s53, s53, 9")
    a("s_lshr_b32 s52, s52, 8")
    a("s_cmp_ge_u32 s52, 16")
    a("s_cselect_b32 s75, 16384, 0")
    a("s_cmp_ge_u32 s52, 28")
    a("s_cselect_b32 s75, 32768, s75")
    a("s_bfe_u32 s55, s52, 0x10003")
    a("s_lshl_b32 s55, s55, 9")
    a("s_add_u32 s75, s75, s55")
    a("s_and_b32 s55, s52, 7")
    a("s_lshl_b32 s55, s55, 1")
    a("s_add_u32 s75, s75, s55")
    a("v_add_u32 v45, s75, v8")
    a("buffer_load_ushort v43, v10, s[92:95], s53 offen")
    a("ds_read_u16 v44, v45")
    a("s_waitcnt vmcnt(0) lgkmcnt(0)")
    a("v_lshlrev_b32 v43, 16, v43")
    a("v_lshlrev_b32 v44, 16, v44")
    import struct
    PC = struct.unpack("<I", struct.pack("<f", 1.0 / (1 - opt.get("pcomp", 0) * 1e-4)))[0]
    if opt.get("pcomp", 0): a(f"v_mul_f32 v43, {PC:#x}, v43")
    a("v_add_f32 v43, v43, v44")
    for k in range(8):
        a(f"s_lshl_b32 s53, s{76+k}, 16")
        a(f"v_fmac_f32 v43, s53, v{24+2*k}")
        a(f"s_and_b32 s53, s{76+k}, 0xffff0000")
        a(f"v_fmac_f32 v43, s53, v{25+2*k}")
    a("v_exp_f32 v44, v43")
    a("s_lshl_b32 s53, s52, 10")
    a("v_add_f32 v44, 1.0, v44")
    a("v_rcp_f32 v44, v44")
    a("v_add_u32 v45, s53, v11")
    a("v_mul_f32 v43, v43, v44")
    a("ds_add_f32 v45, v43")
    a("s_cmp_lg_u32 s25, 0")
    a("s_cbranch_scc1 K2_SL_E")
    a("s_lshl_b32 s53, s52, 2")
    a(f"s_add_u32 s53, s53, {DEG}")
    a("v_mov_b32 v45, s53")
    a("s_mov_b64 exec, 1")
    a("ds_add_u32 v45, v13")
    a("s_mov_b64 exec, -1")
    a("s_branch K2_SL_E")
    a.label("K2_SL_NB")
    a("s_add_u32 s66, s66, 3")
    a(f"s_cmp_lt_u32 s66, {E // 64}")
    a("s_cbranch_scc1 K2_SL_BLK")
    a("s_waitcnt lgkmcnt(0)")
    a("s_barrier")
    a("v_and_b32 v2, 31, v1")
    a("v_lshrrev_b32 v3, 5, v1")
    a("s_mov_b32 s66, 0")
    a.label("K2_SL_CV")
    a("v_add_u32 v4, s66, v3")
    a("v_add_u32 v5, s71, v4")
    a("s_cmp_lt_u32 s66, 4")
    a("s_cselect_b32 s67, s26, 0")
    a("s_cmp_lg_u32 s67, 0")
    a("s_cbranch_scc0 K2_SL_NZ")
    a("v_mov_b32 v5, 47")
    a.label("K2_SL_NZ")
    a("v_lshlrev_b32 v5, 10, v5")
    a("v_lshl_add_u32 v5, v2, 3, v5")
    a("s_lshl_b32 s67, s58, 1")
    a(f"s_add_u32 s67, s67, {OH}")
    a("v_add_u32 v5, s67, v5")
    a("ds_read_b64 v[6:7], v5")
    a(f"v_mul_u32_u24 v4, {HSTR}, v4")
    a("v_lshl_add_u32 v4, v2, 2, v4")
    a("v_add_u32 v4, s57, v4")
    a("s_waitcnt lgkmcnt(0)")
    a("v_cvt_pk_bf16_f32 v6, v6, v7")
    a("ds_write_b32 v4, v6")
    a("s_add_u32 s66, s66, 2")
    a("s_cmp_lt_u32 s66, 16")
    a("s_cbranch_scc1 K2_SL_CV")
    a("v_lshlrev_b32 v7, 4, v1")
    fin_loads(7)
    a(f"v_mov_b32 v5, {FLAG}")
    a("v_mov_b32 v7, 1")
    a("s_branch K2_FIN")
    if opt.get("e64"):
        for i in range(loop_start, loop_end):
            l = a.lines[i]
            if l.startswith("v_exp_f32 ") or l.startswith("v_rcp_f32 "): a.lines[i] = l.replace("_f32 ", "_f32_e64 ", 1)
    a.loop = (loop_start, loop_end)
    return a, NV2, (102 if opt.get('stamps') else 96)
```
